```python
import torch

def _softmax(x, axis=-1):
    return torch.softmax(x, dim=axis)
def _gelu(x):
    return torch.nn.functional.gelu(x, approximate="tanh")
def _silu(x):
    return torch.nn.functional.silu(x)
def _sigmoid(x):
    return torch.sigmoid(x)
def _layernorm(x, axis=-1, eps=1e-5):
    m = x.mean(dim=axis, keepdim=True)
    v = x.var(dim=axis, keepdim=True, unbiased=False)
    return (x - m) / torch.sqrt(v + eps)
def _scatter_add(tgt, idx, src, axis=0):
    return tgt.clone().index_add_(axis, idx, src)
def _segment_sum(src, seg, n):
    out = torch.zeros((n,) + src.shape[1:], dtype=src.dtype)
    return out.index_add_(0, seg, src)
def _pad(x, pw):
    flat = tuple(v for pair in reversed(pw) for v in pair)
    return torch.nn.functional.pad(x, flat)

kernel_name = 'interleave_layers__sliding_local_dilated__linear_kernel_hedgehog__prompt'

def setup_inputs():

    _w = (lambda a: (lambda t: t.to(torch.bfloat16) if t.is_floating_point() else t)(torch.as_tensor(a)))
    def _A_setup():
        B, S, D = 1, 2048, 448
        return {
            "x": _w((lambda *s: torch.randn(*s, dtype=torch.bfloat16) * 0.05)(B, S, D)),
            "wqkv": _w((lambda *s: torch.randn(*s, dtype=torch.bfloat16) * 0.05)(D, 3 * D)),
            "wo": _w((lambda *s: torch.randn(*s, dtype=torch.bfloat16) * 0.05)(D, D)),
        }
    _A_in = _A_setup()

    def _B_setup():
        B, S, D, H = 1, 2048, 448, 16
        Dh = D // H
        return {
            "x": _w((lambda *s: torch.randn(*s, dtype=torch.bfloat16) * 0.05)(B, S, D)),
            "wqkv": _w((lambda *s: torch.randn(*s, dtype=torch.bfloat16) * 0.4)(D, 3 * D)),
            "w_phi": _w((lambda *s: torch.randn(*s, dtype=torch.bfloat16) * 0.4)(H, Dh, Dh) * (Dh ** -0.5)),
            "wo": _w((lambda *s: torch.randn(*s, dtype=torch.bfloat16) * 0.1)(D, D)),
        }
    _B_in = _B_setup()

    return {
        "A_x": _A_in["x"],
        "A_wqkv": _A_in["wqkv"],
        "A_wo": _A_in["wo"],
        "B_x": _B_in["x"],
        "B_wqkv": _B_in["wqkv"],
        "B_w_phi": _B_in["w_phi"],
        "B_wo": _B_in["wo"],
    }

def reference(A_x, A_wqkv, A_wo, B_x, B_wqkv, B_w_phi, B_wo):
    def _A_ref(x, wqkv, wo):
        B, S, D = x.shape
        H = 16; Dh = D // H
        W, dil = 8, 2
        qkv = (lambda x, *d: x.permute(*d))((x @ wqkv).reshape(B, S, 3, H, Dh), 2, 0, 3, 1, 4)
        q, k, v = qkv[0], qkv[1], qkv[2]
        scale = Dh ** -0.5
        pos = torch.arange(S)
        off = torch.arange(W) * dil
        idx = pos[:, None] - off[None, :]
        mask = idx >= 0
        idx_c = torch.where(mask, idx, 0).reshape(-1)
        kg = k[:, :, idx_c, :].reshape(B, H, S, W, Dh)
        vg = v[:, :, idx_c, :].reshape(B, H, S, W, Dh)
        logits = torch.einsum("bhsd,bhswd->bhsw", q, kg) * scale
        logits = torch.where(mask[None, None, :, :], logits, -1e9)
        attn = _softmax(logits, axis=-1)
        o = torch.einsum("bhsw,bhswd->bhsd", attn, vg)
        return (lambda x, *d: x.permute(*d))(o, 0, 2, 1, 3).reshape(B, S, D) @ wo

    def _B_ref(x, wqkv, w_phi, wo):
        B, S, D = x.shape
        H = 16; Dh = D // H
        qkv = (lambda x, *d: x.permute(*d))((x @ wqkv).reshape(B, S, 3, H, Dh), 2, 0, 3, 1, 4)
        q, k, v = qkv[0], qkv[1], qkv[2]
        pq = torch.einsum("bhsd,hdf->bhsf", q, w_phi)
        pk = torch.einsum("bhsd,hdf->bhsf", k, w_phi)
        phi_q = torch.concatenate([_softmax(pq, axis=-1), _softmax(-pq, axis=-1)], axis=-1)
        phi_k = torch.concatenate([_softmax(pk, axis=-1), _softmax(-pk, axis=-1)], axis=-1)
        kv = torch.einsum("bhsf,bhsd->bhfd", phi_k, v)
        z  = torch.einsum("bhsf->bhf", phi_k)
        num = torch.einsum("bhqf,bhfd->bhqd", phi_q, kv)
        den = torch.einsum("bhqf,bhf->bhq", phi_q, z)[..., None] + 1e-6
        o = num / den
        return (lambda x, *d: x.permute(*d))(o, 0, 2, 1, 3).reshape(B, S, D) @ wo

    x = A_x
    x = x + _A_ref(_layernorm(x, axis=-1), A_wqkv, A_wo)
    x = x + _B_ref(_layernorm(x, axis=-1), B_wqkv, B_w_phi, B_wo)
    x = x + _A_ref(_layernorm(x, axis=-1), A_wqkv, A_wo)
    x = x + _B_ref(_layernorm(x, axis=-1), B_wqkv, B_w_phi, B_wo)
    return x
```

```python
class Reg:
    def __init__(self, kind, n, cnt=1):
        self.kind, self.n, self.cnt = kind, n, cnt
        if kind in "va" and cnt > 1:
            assert n % 2 == 0, f"odd tuple {kind}{n}x{cnt}"
        if kind == "s" and cnt == 2:
            assert n % 2 == 0
        if kind == "s" and cnt >= 4:
            assert n % 4 == 0
        assert n + cnt <= (102 if kind == "s" else 256), f"{kind}{n}+{cnt}"

    def __str__(self):
        return f"{self.kind}{self.n}" if self.cnt == 1 else f"{self.kind}[{self.n}:{self.n + self.cnt - 1}]"

    def regs(self):
        return [(self.kind, self.n + i) for i in range(self.cnt)]

    def __getitem__(self, k):
        if isinstance(k, slice):
            a = k.start or 0
            b = self.cnt if k.stop is None else k.stop
            assert 0 <= a < b <= self.cnt
            return Reg(self.kind, self.n + a, b - a)
        assert 0 <= k < self.cnt
        return Reg(self.kind, self.n + k, 1)


def V(n, c=1): return Reg("v", n, c)
def A(n, c=1): return Reg("a", n, c)
def S(n, c=1): return Reg("s", n, c)


class Special:
    def __init__(self, name, regs): self.name, self._r = name, regs
    def __str__(self): return self.name
    def regs(self): return self._r


VCC = Special("vcc", [("s", "vcc")])
EXEC = Special("exec", [("s", "exec")])
M0 = Special("m0", [("s", "m0")])
OFF = Special("off", [])

TRANS = ("v_exp_", "v_log_", "v_rcp_", "v_rsq_", "v_sqrt_", "v_sin_", "v_cos_")
NODEF_S = ("s_cmp", "s_waitcnt", "s_barrier", "s_branch", "s_cbranch", "s_nop", "s_endpgm", "s_setprio", "s_sleep", "s_bitcmp")


def regs_of(x):
    return x.regs() if hasattr(x, "regs") else []


class Asm:
    def __init__(self):
        self.lines = []
        self.pos = 0
        self.w_valu = {}
        self.w_trans = {}
        self.w_mfma = {}
        self.r_mfmac = {}
        self.w_vsgpr = {}
        self.w_m0 = -99
        self.r_store = {}
        self.vm = []
        self.lg = []
        self.smem = set()
        self.nops = 0
        self.count = {}

    def raw(self, text):
        self.lines.append(text)

    def comment(self, text):
        self.lines.append("    ; " + text)

    def _out(self, text, states=1):
        self.lines.append("    " + text)
        self.pos += states

    def nop(self, n):
        while n > 0:
            k = min(n, 16)
            self._out(f"s_nop {k - 1}", k)
            self.nops += k
            n -= k

    def wait(self, vm=None, lg=None):
        parts = []
        if vm is not None:
            assert vm <= 63
            parts.append(f"vmcnt({vm})")
            self.vm = self.vm[len(self.vm) - vm:] if vm > 0 else []
        if lg is not None:
            lg = min(lg, 15)
            parts.append(f"lgkmcnt({lg})")
            if lg == 0:
                self.smem = set()
            self.lg = self.lg[len(self.lg) - lg:] if lg > 0 else []
        self._out("s_waitcnt " + " ".join(parts))

    def wait_vm_tag(self, tag):
        idx = [i for i, (t, _) in enumerate(self.vm) if t == tag]
        if idx:
            self.wait(vm=len(self.vm) - 1 - idx[-1])

    def wait_lg_all(self):
        if self.lg or self.smem:
            self.wait(lg=0)

    def _need_waits(self, touched):
        t = set(touched)
        vm = lg = None
        for i in range(len(self.vm) - 1, -1, -1):
            if self.vm[i][1] & t:
                vm = len(self.vm) - 1 - i
                break
        if self.smem & t:
            lg = 0
        else:
            for i in range(len(self.lg) - 1, -1, -1):
                if self.lg[i][1] & t:
                    lg = 0 if self.smem else len(self.lg) - 1 - i
                    break
        if vm is not None or lg is not None:
            self.wait(vm, lg)

    def flush(self):
        need = 0
        for d, n in ((self.w_valu, 2), (self.w_trans, 1), (self.r_mfmac, 3), (self.w_vsgpr, 5), (self.r_store, 2)):
            for p in d.values():
                need = max(need, n - (self.pos - p - 1))
        for p, _ in self.w_mfma.values():
            need = max(need, 8 - (self.pos - p - 1))
        need = max(need, 1 - (self.pos - self.w_m0 - 1))
        if need > 0:
            self.nop(need)

    def label(self, name):
        self.lines.append(name + ":")

    def forget_counters(self):
        self.vm, self.lg, self.smem = [], [], set()

    def I(self, op, *ops, mods="", tag=None):
        self.count[op] = self.count.get(op, 0) + 1
        defs, uses, ab, cc = [], [], [], []
        is_v = op.startswith("v_")
        is_mfma = op.startswith("v_mfma")
        is_valu = is_v and not is_mfma
        is_buf = op.startswith("buffer_") or op.startswith("global_")
        is_ds = op.startswith("ds_")
        lds_dma = is_buf and " lds" in (" " + mods)
        is_load = (is_buf and "_load" in op and not lds_dma) or (is_ds and "_read" in op)
        is_smem = op.startswith("s_load") or op.startswith("s_memtime") or op.startswith("s_memrealtime")
        if is_mfma:
            defs = regs_of(ops[0]); ab = regs_of(ops[1]) + regs_of(ops[2]); cc = regs_of(ops[3]); uses = ab + cc
        elif "permlane" in op:
            defs = regs_of(ops[0]) + regs_of(ops[1]); uses = list(defs)
        elif is_valu:
            defs = regs_of(ops[0])
            for o in ops[1:]: uses += regs_of(o)
            if op.startswith(("v_fmac", "v_dot2c", "v_pk_fmac")): uses += defs
        elif is_load:
            defs = regs_of(ops[0])
            for o in ops[1:]: uses += regs_of(o)
        elif is_buf or is_ds:
            for o in ops: uses += regs_of(o)
            if lds_dma: uses += [("s", "m0")]
        elif op.startswith(NODEF_S):
            for o in ops: uses += regs_of(o)
        else:
            defs = regs_of(ops[0])
            for o in ops[1:]: uses += regs_of(o)

        self._need_waits(defs + uses)

        need = 0
        def req(p, n):
            nonlocal need
            need = max(need, n - (self.pos - p - 1))
        dtuple = tuple(defs)
        for r in uses:
            if r in self.w_valu:
                p = self.w_valu[r]
                if is_mfma or "permlane" in op or "dpp" in op or "dpp" in mods or "row_" in mods: req(p, 2)
                if op.startswith(("v_readfirstlane", "v_readlane")): req(p, 1)
            if r in self.w_trans and is_v: req(self.w_trans[r], 1)
            if r in self.w_mfma:
                p, d = self.w_mfma[r]
                if is_mfma:
                    if r in ab: req(p, 8)
                    elif tuple(cc) != d: req(p, 6)
                else:
                    req(p, 8)
            if r in self.w_vsgpr:
                p = self.w_vsgpr[r]
                if is_v: req(p, 2)
                elif is_buf: req(p, 5)
                else: req(p, 1)
            if r == ("s", "m0") and lds_dma: req(self.w_m0, 1)
        for r in defs:
            if r in self.w_mfma and not is_mfma: req(self.w_mfma[r][0], 8)
            if r in self.w_mfma and is_mfma and self.w_mfma[r][1] != tuple(cc): req(self.w_mfma[r][0], 6)
            if r in self.r_mfmac and is_valu: req(self.r_mfmac[r], 3)
            if r in self.r_store: req(self.r_store[r], 2 if is_valu else 1)
        if need > 0:
            self.nop(need)

        if is_buf:
            assert len(self.vm) < 63, "vmcnt overflow"
        if is_ds and len(self.lg) >= 15:
            self.wait(lg=0 if self.smem else 14)

        p = self.pos
        text = op + (" " + ", ".join(str(o) for o in ops) if ops else "") + (" " + mods if mods else "")
        self._out(text)

        for r in defs:
            for d in (self.w_valu, self.w_trans, self.w_mfma, self.w_vsgpr):
                d.pop(r, None)
        if is_mfma:
            for r in defs: self.w_mfma[r] = (p, dtuple)
            for r in cc: self.r_mfmac[r] = p
        elif is_valu:
            for r in defs:
                if r[0] == "s": self.w_vsgpr[r] = p
                else:
                    self.w_valu[r] = p
                    if op.startswith(TRANS): self.w_trans[r] = p
        if ("s", "m0") in defs and not is_v: self.w_m0 = p
        if is_buf:
            self.vm.append((tag, set(defs)))
            if "_store" in op and ("x3" in op or "x4" in op):
                data = ops[0] if op.startswith("buffer_") else ops[1]
                for r in regs_of(data): self.r_store[r] = p
        if is_ds: self.lg.append((tag, set(defs)))
        if is_smem: self.smem |= set(defs)

    def text(self):
        return "\n".join(self.lines) + "\n"
```

```python
import sys
import math
import struct
from emit import Asm, V, A, S, VCC, EXEC, M0, OFF

NAME = "interleave_layers__sliding_local_dilated__linear_kernel_hedgehog__prompt_kernel"


def f32(x):
    return "0x%08x" % struct.unpack("<I", struct.pack("<f", x))[0]


WS_E = 0x0
WS_FX = 0x1000
WS_FO = 0x5000
WS_SLOW = 0x8000
WS_FH = 0x10000
WS_HELLO = 0x11000
WS_STAMP = 0x20000
WS_X = 0x100000
WS_XS = 0x2C0000
WS_O = 0x300000
WS_KV = 0x500000
WS_HX = 0x700000
WS_SIZE = 0x800000
OOB = 0x7FFF0000

L_QW = 0
MAT = 28672
L_PW = 86016
L_SP = 151552
L_KVX = L_SP
L_WPHI = L_SP + 8192
L_CS = L_SP + 10240
L_EXK = 0
L_EXV = 8192
L_PH = 2 * MAT
LDS_BYTES = 163840

LOG2E = math.log2(math.e)


class Gen:
    def __init__(self, opt):
        self.opt = opt
        self.a = Asm()
        self.tail = []
        self.nstamp = 0
        self.uid = 0

    def lab(self, base):
        self.uid += 1
        return f"L_{base}_{self.uid}"

    sX0, sWA, sWOA, sWB, sWOB, sOUT, sWS, sWP = (S(24 + 4 * i, 4) for i in range(8))
    (sGrp, sH, sW, sC, sRh, sBase, sTag, sMode, sIt, sPhase, sL, sBudget, sXq, sXSq, sOq, sXp, sXSp, sOp, sFXp, sFOq,
     sFOp, sHX, sHaloProd, sFHp, sKVst, sKVld, sQWo, sFirst, sPend, sX0o, sNonce, sXcc) = (S(56 + i) for i in range(32))
    sT = [S(88 + i) for i in range(8)]
    sT2 = S(96, 2)
    sStamp = S(98, 2)

    vL16, vQ0, vQ1, vQv0, vQv1, vQh = (V(1 + i) for i in range(6))
    vP = [V(7 + i) for i in range(4)]
    vQWd, vPWd, vPWd3, vPollQ, vPollM, vPollP, vEXW, vEXRa, vHW, vM3, vStat = (V(11 + i) for i in range(11))
    vE0 = V(22, 2)
    vHalo, vHaloS, vStatSt, vZ, vOut, vExpC, vExpM, vMH = (V(24 + i) for i in range(8))
    vCH = V(32, 4)
    bCur, bPrev, bPrev0 = V(36, 4), V(40, 4), V(44, 4)
    vR = V(48, 16)
    cA, cB = V(64, 24), V(88, 24)
    vKA, vKB, vPollH, vKrd, vStamp = (V(250 + i) for i in range(5))
    vT = V(255)

    aOnes, aSel, aWphi = A(232, 4), A(236, 6), A(242, 8)

    def acc(self, T, ft): return V(112 + (T * 6 + ft) * 4, 4)
    hacc = V(160, 4)
    def straw(self, T): return V(164 + 4 * T, 4)
    def st(self, T): return V(176 + 4 * T, 4)
    def xf(self, T, ks): return A((ks * 2 + T) * 4, 4)
    def hx(self, ks): return A(112 + 4 * ks, 4)
    def wf(self, f): return A(168 + 4 * f, 4)

    def I(self, *x, **k): self.a.I(*x, **k)

    def stamp(self):
        if not self.opt.get("stamps"):
            return
        a = self.a
        a.I("s_memtime", self.sStamp)
        a.wait(lg=0)
        a.I("v_writelane_b32", self.vStamp, self.sStamp[0], self.sT[7])
        a.I("s_add_u32", self.sT[7], self.sT[7], 1)

    def srd(self, dst, src, nbytes):
        self.I("s_mov_b32", dst[0], src[0])
        self.I("s_and_b32", dst[1], src[1], "0xffff")
        self.I("s_mov_b32", dst[2], nbytes)
        self.I("s_mov_b32", dst[3], "0x20000")

    def mfma(self, d, x, y, c):
        self.I("v_mfma_f32_16x16x32_bf16", d, x, y, c)

    def pk(self, op, d, x, y, z=None, bx=None, by=None, bz=None, neg=None):
        srcs = [(x, bx), (y, by)] + ([(z, bz)] if z is not None else [])
        lo = [0 if b is None else b for _, b in srcs]
        hi = [1 if b is None else b for _, b in srcs]
        mods = []
        if any(lo): mods.append("op_sel:[%s]" % ",".join(map(str, lo)))
        if not all(hi): mods.append("op_sel_hi:[%s]" % ",".join(map(str, hi)))
        self.I(op, d, *[s for s, _ in srcs], mods=" ".join(mods))

    def allreduce_pairs(self, chains):
        for step in range(7):
            for op, x, y in chains:
                if step in (0, 6): self.I("v_permlane32_swap_b32", x, y)
                elif step in (1, 4): self.I(op, x, x, y)
                elif step in (2, 5): self.I("v_mov_b32", y, x)
                else: self.I("v_permlane16_swap_b32", x, y)

    def budget_branch(self, loop):
        self.I("s_sub_u32", self.sBudget, self.sBudget, 1)
        self.I("s_cbranch_scc1", "L_end")
        self.I("s_branch", loop)

    def publish(self, soff, drain_tag):
        a = self.a
        slow, done = self.lab("pubslow"), self.lab("pubdone")
        a.I("v_mov_b32", self.vT, self.sT[0])
        a.wait_vm_tag(drain_tag)
        a.I("s_cmp_eq_u32", self.sMode, 0)
        a.I("s_cbranch_scc1", slow)
        a.I("s_mov_b64", EXEC, 1)
        a.I("buffer_store_dword", self.vT, OFF, self.sWS, soff)
        a.label(done)
        a.I("s_mov_b64", EXEC, -1)

        def tail():
            b = self.a
            b.label(slow)
            b.I("buffer_wbl2", mods="sc1")
            b.raw("    s_waitcnt vmcnt(0)")
            b.I("s_mov_b64", EXEC, 1)
            b.I("buffer_store_dword", self.vT, OFF, self.sWS, soff, mods="sc1")
            b.I("s_branch", done)
            b.forget_counters()
        self.tail.append(tail)

    def qw_dma_list(self, srd, mats, blocks=range(7)):
        out = []
        for mat in mats:
            for i in blocks:
                def f(mat=mat, i=i):
                    self.I("s_add_u32", M0, self.sT[5], mat * MAT + i * 1024)
                    self.I("s_add_u32", self.sT[6], self.sQWo, mat * 896 + i * 16 * 2688)
                    self.I("buffer_load_dwordx4", self.vQWd, srd, self.sT[6], mods="offen lds", tag="qw")
                out.append(f)
        return out

    def qw_dma_setup(self):
        self.I("s_mul_i32", self.sT[5], self.sW, 7 * 1024)

    def pw_dma_list(self, srd):
        out = []
        for i in range(16):
            hh, b = i >> 2, i & 3
            def f(hh=hh, b=b):
                self.I("s_add_u32", M0, self.sT[3], hh * 4096 + b * 1024)
                self.I("s_add_u32", self.sT[6], self.sT[4], (28 * hh + 8 * b) * 896)
                self.I("buffer_load_dwordx4", self.vPWd3 if b == 3 else self.vPWd, srd, self.sT[6], mods="offen lds", tag="pw")
            out.append(f)
        return out

    def pw_dma_setup(self):
        self.I("s_lshl_b32", self.sT[3], self.sW, 14)
        self.I("s_add_u32", self.sT[3], self.sT[3], L_PW)
        self.I("s_mul_i32", self.sT[4], self.sW, 4 * 28 * 896)
        self.I("s_min_u32", self.sT[6], self.sC, 6)
        self.I("s_lshl_b32", self.sT[6], self.sT[6], 7)
        self.I("s_add_u32", self.sT[4], self.sT[4], self.sT[6])

    def qw_read(self, dst, ft, ks):
        base = (self.vQ0, self.vQ1, self.vQ0, self.vQ1, self.vQv0, self.vQv1)[ft]
        off = (MAT if ft in (2, 3) else 0) + ks * 2048
        self.I("ds_read_b64_tr_b16", dst[0:2], base, mods=f"offset:{off}")
        self.I("ds_read_b64_tr_b16", dst[2:4], base, mods=f"offset:{off + 1024}")

    def prologue(self):
        a, I = self.a, self.I
        T = self.sT
        I("s_cmp_ge_u32", S(2), 256)
        I("s_cbranch_scc1", "L_end")
        I("s_getpc_b64", S(22, 2))
        a.label("L_pc")
        I("s_load_dwordx8", S(4, 8), S(0, 2), 0)
        I("s_load_dwordx8", S(12, 8), S(0, 2), 32)
        I("s_load_dwordx2", S(20, 2), S(0, 2), 72)
        I("v_lshlrev_b32", V(112), 7, V(0))
        I("v_min_u32", V(112), "L_end-L_pc", V(112))
        I("global_load_dword", V(249), V(112), S(22, 2))
        I("s_getreg_b32", self.sXcc, "hwreg(HW_REG_XCC_ID)")
        I("s_and_b32", self.sXcc, self.sXcc, 15)
        I("v_lshrrev_b32", V(114), 6, V(0))
        I("v_and_b32", V(0), 63, V(0))
        I("v_readfirstlane_b32", self.sW, V(114))
        I("s_and_b32", T[0], S(2), 7)
        I("s_lshr_b32", T[1], S(2), 3)
        I("s_and_b32", self.sH, T[1], 15)
        I("s_lshr_b32", T[1], T[1], 4)
        I("s_lshl_b32", T[0], T[0], 1)
        I("s_add_u32", self.sGrp, T[0], T[1])
        I("s_and_b32", self.sC, self.sH, 7)
        I("s_lshr_b32", self.sRh, self.sH, 3)
        lane, j, g, t0, t1, t2 = V(0), V(115), V(116), V(117), V(118), V(119)
        I("v_and_b32", j, 15, lane)
        I("v_lshrrev_b32", g, 4, lane)
        I("v_lshlrev_b32", self.vL16, 4, lane)
        I("s_lshl_b32", T[0], self.sGrp, 3)
        I("s_lshl_b32", T[1], self.sRh, 2)
        I("s_add_u32", T[0], T[0], T[1])
        I("s_add_u32", T[0], T[0], self.sW)
        I("s_and_b32", T[1], T[0], 63)
        I("s_mul_i32", T[1], T[1], 16 * 1792)
        I("s_lshr_b32", T[2], self.sGrp, 3)
        I("s_mul_i32", T[2], T[2], 896)
        I("s_add_u32", T[1], T[1], T[2])
        I("s_lshl_b32", T[2], self.sC, 7)
        I("s_add_u32", self.sX0o, T[1], T[2])
        I("v_lshrrev_b32", t0, 3, lane)
        I("v_mul_u32_u24", t0, 1792, t0)
        I("v_and_b32", t1, 7, lane)
        I("v_lshl_add_u32", V(120), t1, 4, t0)
        I("v_lshrrev_b32", t0, 2, lane)
        I("v_mul_u32_u24", t1, 2688, t0)
        I("v_lshrrev_b32", t0, 3, lane)
        I("v_and_b32", t0, 2, t0)
        I("v_and_b32", t2, 3, lane)
        I("v_xor_b32", t0, t0, t2)
        I("v_lshl_add_u32", self.vQWd, t0, 4, t1)
        I("s_mul_i32", self.sQWo, self.sH, 56)
        I("s_mul_i32", T[1], self.sW, 7 * 16 * 2688)
        I("s_add_u32", self.sQWo, self.sQWo, T[1])
        a.wait(lg=0)
        self.srd(self.sX0, S(4, 2), 1835008)
        self.srd(self.sWA, S(6, 2), 1204224)
        I("s_load_dword", self.sNonce, S(20, 2), WS_E)
        skip0 = self.lab("nox0")
        I("s_cmp_eq_u32", self.sC, 7)
        I("s_cbranch_scc1", skip0)
        I("s_lshl_b32", T[1], self.sW, 11)
        I("s_add_u32", M0, T[1], L_SP)
        I("s_add_u32", T[2], self.sX0o, 8 * 1792 - 1024)
        I("buffer_load_dwordx4", V(120), self.sX0, self.sX0o, mods="offen lds", tag="x0")
        I("buffer_load_dwordx4", V(120), self.sX0, T[2], mods="offen offset:1024 lds", tag="x0")
        a.label(skip0)
        self.srd(self.sWOA, S(8, 2), 401408)
        self.srd(self.sWB, S(12, 2), 1204224)
        self.srd(self.sWP, S(14, 2), 25088)
        self.srd(self.sWOB, S(16, 2), 401408)
        self.srd(self.sOUT, S(18, 2), 1835008)
        self.srd(self.sWS, S(20, 2), WS_SIZE)
        I("s_mul_i32", T[1], S(2), 37 * 128)
        I("s_mul_i32", T[2], S(2), 13 * 128)
        I("v_lshlrev_b32", t0, 7, lane)
        I("v_mov_b32", t1, OOB)
        I("v_cmp_gt_u32", VCC, 37, lane)
        I("v_cndmask_b32", V(121), t1, t0, VCC)
        I("v_cmp_gt_u32", VCC, 13, lane)
        I("v_cndmask_b32", V(122), t1, t0, VCC)
        tl = [self.lab("touch") for _ in range(4)]
        I("s_cmp_lg_u32", self.sW, 1)
        I("s_cbranch_scc1", tl[0])
        I("buffer_load_dword", V(245), V(121), self.sWA, T[1], mods="offen")
        a.label(tl[0])
        qw = self.qw_dma_list(self.sWA, (0, 1, 2))
        order = [m * 7 + i for i in range(7) for m in range(3)]
        n1 = self.opt.get("n1", 13)
        self.qw_dma_setup()
        for k in order[:n1]: qw[k]()
        I("s_cmp_lg_u32", self.sW, 2)
        I("s_cbranch_scc1", tl[1])
        I("buffer_load_dword", V(248), V(122), self.sWOA, T[2], mods="offen")
        I("buffer_load_dword", V(247), V(122), self.sWOB, T[2], mods="offen")
        a.label(tl[1])
        I("s_cmp_lg_u32", self.sW, 3)
        I("s_cbranch_scc1", tl[2])
        I("buffer_load_dword", V(246), V(121), self.sWB, T[1], mods="offen")
        a.label(tl[2])
        I("s_cmp_lg_u32", self.sW, 0)
        I("s_cbranch_scc1", tl[3])
        I("s_mul_i32", T[1], self.sH, 1568)
        I("s_mov_b32", M0, L_WPHI)
        I("s_nop", 0)
        I("buffer_load_dwordx4", self.vL16, self.sWP, T[1], mods="offen lds")
        I("buffer_load_dwordx4", self.vL16, self.sWP, T[1], mods="offen offset:1024 lds")
        a.label(tl[3])
        self.qw_rest = [qw[k] for k in order[n1:]]

        I("s_lshl_b32", T[1], self.sGrp, 3)
        I("s_lshl_b32", T[2], self.sW, 1)
        I("s_add_u32", T[1], T[1], T[2])
        I("s_mul_i32", self.sXq, T[1], 14336)
        I("s_add_u32", self.sXq, self.sXq, WS_X)
        I("s_lshl_b32", self.sXSq, T[1], 10)
        I("s_add_u32", self.sXSq, self.sXSq, WS_XS)
        I("s_lshl_b32", self.sOq, T[1], 14)
        I("s_lshl_b32", T[2], self.sH, 10)
        I("s_add_u32", self.sOq, self.sOq, T[2])
        I("s_add_u32", self.sOq, self.sOq, WS_O)
        I("s_lshl_b32", T[3], T[1], 7)
        I("s_add_u32", T[3], T[3], WS_FX)
        I("s_mul_i32", self.sXp, T[0], 14336)
        I("s_lshl_b32", T[2], self.sC, 11)
        I("s_add_u32", self.sXp, self.sXp, T[2])
        I("s_add_u32", self.sXp, self.sXp, WS_X)
        I("s_lshl_b32", self.sXSp, T[0], 10)
        I("s_lshl_b32", T[2], self.sC, 7)
        I("s_add_u32", self.sXSp, self.sXSp, T[2])
        I("s_add_u32", self.sXSp, self.sXSp, WS_XS)
        I("s_lshl_b32", self.sOp, T[0], 14)
        I("s_add_u32", self.sOp, self.sOp, WS_O)
        I("s_lshl_b32", self.sFXp, T[0], 7)
        I("s_lshl_b32", T[2], self.sC, 2)
        I("s_add_u32", self.sFXp, self.sFXp, T[2])
        I("s_add_u32", self.sFXp, self.sFXp, WS_FX)
        I("s_lshl_b32", T[1], self.sGrp, 2)
        I("s_add_u32", T[2], T[1], self.sW)
        I("s_lshl_b32", self.sFOq, T[2], 7)
        I("s_lshl_b32", T[2], self.sH, 2)
        I("s_add_u32", self.sFOq, self.sFOq, T[2])
        I("s_add_u32", self.sFOq, self.sFOq, WS_FO)
        I("s_lshr_b32", T[2], T[0], 1)
        I("s_lshl_b32", self.sFOp, T[2], 7)
        I("s_add_u32", self.sFOp, self.sFOp, WS_FO)
        I("s_lshl_b32", self.sHX, self.sGrp, 14)
        I("s_add_u32", self.sHX, self.sHX, WS_HX)
        I("s_lshl_b32", self.sFHp, self.sGrp, 7)
        I("s_add_u32", self.sFHp, self.sFHp, WS_FH)
        I("s_and_b32", T[1], self.sGrp, 7)
        I("s_cmp_eq_u32", T[1], 0)
        I("s_cselect_b32", self.sFirst, 1, 0)
        I("s_cmp_lg_u32", T[1], 7)
        I("s_cselect_b32", T[1], 1, 0)
        I("s_and_b32", T[2], T[0], 7)
        I("s_cmp_eq_u32", T[2], 7)
        I("s_cselect_b32", self.sHaloProd, T[1], 0)
        I("s_lshl_b32", T[1], self.sH, 2)
        I("s_add_u32", T[1], T[1], self.sW)
        I("s_lshl_b32", self.sKVld, T[1], 14)
        I("s_add_u32", self.sKVld, self.sKVld, WS_KV)
        I("s_lshl_b32", T[1], self.sGrp, 10)
        I("s_add_u32", self.sKVst, self.sKVld, T[1])
        I("s_mov_b32", self.sMode, 1)
        I("s_mov_b32", self.sIt, 0)
        I("s_mov_b32", self.sPhase, 0)
        I("s_mov_b32", self.sL, 0)
        I("s_mov_b32", self.sPend, 0)
        I("s_mov_b32", self.sBudget, 400000)
        if self.opt.get("stamps"):
            I("s_mov_b32", T[7], 0)
            I("v_mov_b32", self.vStamp, 0)

        r, cc = V(123), V(124)
        I("v_lshrrev_b32", r, 2, j)
        I("v_and_b32", cc, 3, j)
        I("v_lshl_add_u32", t0, g, 2, r)
        I("v_lshlrev_b32", t1, 3, cc)
        I("v_lshl_add_u32", t2, t0, 6, t1)
        I("v_and_b32", V(125), 1, g)
        I("v_lshl_add_u32", self.vQ0, V(125), 5, t2)
        I("v_xor_b32", self.vQ1, 32, self.vQ0)
        I("v_add_u32", self.vQv0, 2 * MAT, self.vQ0)
        I("v_add_u32", self.vQv1, 2 * MAT, self.vQ1)
        I("s_and_b32", T[1], self.sW, 1)
        I("s_lshl_b32", T[2], T[1], 5)
        I("v_xor_b32", self.vQh, T[2], self.vQ0)
        I("s_lshr_b32", T[2], self.sW, 1)
        I("s_add_u32", T[2], T[2], 1)
        I("s_mul_i32", T[2], T[2], MAT)
        I("v_add_u32", self.vQh, T[2], self.vQh)
        I("v_lshl_add_u32", t2, t0, 7, t1)
        I("v_add_u32", t2, L_PW, t2)
        I("v_lshrrev_b32", V(125), 1, t0)
        I("v_and_b32", V(125), 3, V(125))
        for n in range(4):
            I("v_xor_b32", V(126), n, V(125))
            I("v_lshl_add_u32", self.vP[n], V(126), 5, t2)
        I("v_lshrrev_b32", V(125), 1, t0)
        I("v_xor_b32", V(125), V(125), cc)
        I("v_and_b32", V(125), 3, V(125))
        I("v_lshlrev_b32", V(125), 4, V(125))
        I("v_lshl_add_u32", V(126), t0, 6, V(125))
        I("s_lshl_b32", T[2], self.sW, 11)
        I("s_add_u32", T[4], T[2], L_EXV)
        I("v_add_u32", self.vEXRa, T[4], V(126))
        I("s_lshr_b32", T[4], self.sW, 1)
        I("s_lshl_b32", T[4], T[4], 13)
        I("s_add_u32", T[4], T[4], L_PH)
        I("v_add_u32", self.vKA, T[4], V(126))
        I("s_lshl_b32", T[4], T[1], 3)
        I("s_add_u32", T[4], T[4], L_PH + 16384)
        I("v_add_u32", self.vKB, T[4], V(126))
        I("v_lshrrev_b32", V(125), 1, j)
        I("v_xor_b32", V(125), V(125), g)
        I("v_and_b32", V(125), 3, V(125))
        I("v_lshlrev_b32", V(125), 4, V(125))
        I("v_lshl_add_u32", V(126), j, 6, V(125))
        I("v_add_u32", self.vEXW, T[2], V(126))
        I("s_lshl_b32", T[4], self.sW, 10)
        I("v_add_u32", self.vKrd, T[4], self.vL16)
        I("v_add_u32", V(126), L_EXV, V(126))
        I("s_cmp_lt_u32", self.sW, 2)
        I("s_cselect_b64", VCC, -1, 0)
        I("v_cndmask_b32", V(126), V(126), self.vL16, VCC)
        I("s_lshl_b32", T[4], T[1], 3)
        I("v_add_u32", self.vHW, T[4], V(126))
        I("v_lshrrev_b32", t0, 3, lane)
        I("v_mul_u32_u24", t1, 896, t0)
        I("v_lshrrev_b32", t0, 3, lane)
        I("v_and_b32", t0, 6, t0)
        I("v_and_b32", t2, 7, lane)
        I("v_xor_b32", t0, t0, t2)
        I("v_lshl_add_u32", self.vPWd, t0, 4, t1)
        I("v_mov_b32", t1, OOB)
        I("v_cmp_gt_u32", VCC, 32, lane)
        I("v_cndmask_b32", self.vPWd3, t1, self.vPWd, VCC)
        I("v_cmp_gt_u32", VCC, 48, lane)
        I("v_cndmask_b32", self.vM3, 0, -1, VCC, mods="")
        I("v_cndmask_b32", self.vE0[0], 1.0, 0, VCC)
        I("v_mov_b32", self.vE0[1], 0)
        I("s_cmp_eq_u32", T[1], 1)
        I("s_cselect_b64", VCC, -1, 0)
        I("v_cndmask_b32", self.vMH, -1, self.vM3, VCC)
        I("v_lshlrev_b32", self.vStatSt, 3, j)
        I("v_lshl_add_u32", self.vStat, g, 7, self.vStatSt)
        I("v_cmp_le_u32", VCC, 8, j)
        I("v_cndmask_b32", self.vHalo, t1, self.vL16, VCC)
        I("s_cmp_eq_u32", self.sFirst, 1)
        I("s_cselect_b64", VCC, -1, 0)
        I("v_cndmask_b32", self.vHalo, self.vHalo, t1, VCC)
        I("v_cndmask_b32", self.vHaloS, self.vStat, t1, VCC)
        I("v_lshlrev_b32", self.vZ, 8, g)
        I("v_add_u32", self.vZ, L_KVX + 1024 + 12 * 16, self.vZ)
        I("v_mul_u32_u24", t0, 1792, j)
        I("v_lshl_add_u32", self.vOut, g, 3, t0)
        I("v_lshlrev_b32", self.vPollP, 2, j)
        I("v_and_b32", t0, 7, lane)
        I("v_min_u32", t0, 6, t0)
        I("v_lshlrev_b32", self.vPollH, 2, t0)
        I("v_lshrrev_b32", t2, 3, j)
        I("v_lshl_add_u32", t2, t2, 7, self.vPollH)
        I("v_add_u32", t2, T[3], t2)
        I("s_lshl_b32", T[4], self.sGrp, 7)
        I("s_add_u32", T[4], T[4], WS_HELLO)
        I("v_add_u32", t0, T[4], self.vPollP)
        I("v_and_b32", V(125), 1, g)
        I("v_cmp_eq_u32", VCC, 0, V(125))
        I("v_cndmask_b32", self.vPollQ, t0, t2, VCC)
        I("v_cndmask_b32", self.vPollM, -16, -1, VCC)
        I("v_cndmask_b32", self.vExpM, 0, 16, VCC)
        I("v_mov_b32", t0, self.sXcc)
        I("v_cndmask_b32", self.vExpC, t0, 0, VCC)
        I("v_mov_b32", V(125), f32(-1e30))
        for rr in range(4):
            I("v_lshl_add_u32", t0, g, 2, rr)
            I("v_sub_u32", t2, j, t0)
            I("v_cmp_gt_u32", VCC, 8, t2)
            I("v_cndmask_b32", self.bCur[rr], V(125), 0, VCC)
            I("v_add_u32", t2, 16, t2)
            I("v_cmp_gt_u32", VCC, 8, t2)
            I("v_cndmask_b32", self.bPrev[rr], V(125), 0, VCC)
        I("s_cmp_eq_u32", self.sW, 0)
        I("s_cselect_b32", T[2], self.sFirst, 0)
        I("s_cmp_eq_u32", T[2], 1)
        I("s_cselect_b64", VCC, -1, 0)
        for rr in range(4):
            I("v_cndmask_b32", self.bPrev0[rr], self.bPrev[rr], V(125), VCC)
        I("v_mov_b32", t0, "0x3f803f80")
        for k in range(4): I("v_accvgpr_write_b32", self.aOnes[k], t0)
        for k in (0, 1, 4, 5): I("v_accvgpr_write_b32", self.aSel[k], 0)
        I("v_and_b32", V(125), 1, j)
        I("v_lshlrev_b32", V(125), 4, V(125))
        I("v_mov_b32", t0, "0x3f80")
        I("v_lshlrev_b32", t0, V(125), t0)
        I("v_cmp_eq_u32", VCC, r, g)
        I("v_cndmask_b32", t0, 0, t0, VCC)
        I("v_cmp_gt_u32", VCC, 2, cc)
        I("v_cndmask_b32", t2, 0, t0, VCC)
        I("v_cndmask_b32", t0, t0, 0, VCC)
        I("v_accvgpr_write_b32", self.aSel[2], t2)
        I("v_accvgpr_write_b32", self.aSel[3], t0)
        a.wait(lg=0)
        I("s_add_u32", self.sNonce, self.sNonce, "0x10100")
        I("s_and_b32", self.sBase, self.sNonce, "0xffffff00")
        I("s_and_b32", self.sTag, self.sNonce, "0x3fff0000")
        I("v_or_b32", self.vExpC, self.sBase, self.vExpC)
        nh = self.lab("nohello")
        I("s_cmp_lg_u32", self.sW, 0)
        I("s_cbranch_scc1", nh)
        I("s_or_b32", T[1], self.sBase, self.sXcc)
        I("v_mov_b32", t0, T[1])
        I("s_lshl_b32", T[1], self.sH, 2)
        I("s_add_u32", T[4], T[4], T[1])
        I("s_mov_b64", EXEC, 1)
        I("buffer_store_dword", t0, OFF, self.sWS, T[4], mods="sc1")
        I("s_mov_b64", EXEC, -1)
        a.label(nh)
        self.stamp()

        I("s_cmp_eq_u32", self.sC, 7)
        I("s_cbranch_scc1", "L_pdone")
        a.forget_counters()
        a.raw(f"    s_waitcnt vmcnt({n1})")
        a.pos += 1
        I("s_lshl_b32", T[1], self.sW, 11)
        I("v_lshlrev_b32", t0, 7, j)
        I("v_lshl_add_u32", t0, g, 3, t0)
        I("v_add_u32", t0, T[1], t0)
        I("v_add_u32", t0, L_SP, t0)
        for n in range(4):
            I("ds_read_b64", V(128 + 2 * n, 2), t0, mods=f"offset:{32 * n}")
        for n in range(4):
            for p in range(2):
                I("v_lshlrev_b32", self.vR[4 * n + 2 * p], 16, V(128 + 2 * n + p))
                I("v_and_b32", self.vR[4 * n + 2 * p + 1], "0xffff0000", V(128 + 2 * n + p))
        a.flush()
        I("s_branch", "L_pepi")

    def p_stage(self):
        a, I = self.a, self.I
        T = self.sT
        a.label("L_p")
        a.forget_counters()
        I("s_barrier")
        I("s_cmp_eq_u32", self.sC, 7)
        I("s_cbranch_scc1", "L_pidle")
        def pwf(hh, n): return A(64 + ((hh & 7) * 4 + n) * 4, 4)
        def pw_read(hh):
            for n in range(4):
                I("ds_read_b64_tr_b16", pwf(hh, n)[0:2], self.vP[n], mods=f"offset:{hh * 4096}")
                I("ds_read_b64_tr_b16", pwf(hh, n)[2:4], self.vP[n], mods=f"offset:{hh * 4096 + 2048}")
        I("s_lshl_b32", T[0], self.sL, 4)
        I("s_or_b32", T[0], T[0], self.sBase)
        I("buffer_load_dword", V(112), self.vPollP, self.sWS, self.sFOp, mods="offen sc1")
        for hh in range(6): pw_read(hh)
        loop, ok = self.lab("ppoll"), self.lab("ppass")
        a.label(loop)
        a.wait(vm=0)
        I("v_cmp_ne_u32", VCC, T[0], V(112))
        I("s_cbranch_vccz", ok)
        I("buffer_load_dword", V(112), self.vPollP, self.sWS, self.sFOp, mods="offen sc1")
        self.budget_branch(loop)
        a.label(ok)
        a.vm = []
        self.stamp()
        def of(hh): return A(4 * hh, 4)
        def oload(hh):
            if hh % 4 == 0 and hh:
                I("s_add_u32", T[1], self.sOp, hh * 1024)
            so = self.sOp if hh < 4 else T[1]
            I("buffer_load_dwordx4", of(hh), self.vL16, self.sWS, so, mods=f"offen offset:{(hh % 4) * 1024} sc1")
        for hh in range(8): oload(hh)
        for hh in (6, 7): pw_read(hh)
        for hh in range(16):
            for n in range(4):
                self.mfma(self.vR[4 * n:4 * n + 4], pwf(hh, n), of(hh), self.vR[4 * n:4 * n + 4])
                if n == 0 and hh < 8: oload(hh + 8)
            if hh < 8: pw_read(hh + 8)
        a.flush()
        self.stamp()
        I("s_cmp_eq_u32", self.sL, 4)
        I("s_cbranch_scc1", "L_final")

        a.label("L_pepi")
        xo = V(112, 8)
        for k in range(8):
            I("v_cvt_pk_bf16_f32", xo[k], self.vR[2 * k], self.vR[2 * k + 1])
        I("buffer_store_dwordx4", xo[0:4], self.vL16, self.sWS, self.sXp, mods="offen", tag="st")
        I("buffer_store_dwordx4", xo[4:8], self.vL16, self.sWS, self.sXp, mods="offen offset:1024", tag="st")
        sm, sq = V(120, 2), V(122, 2)
        self.pk("v_pk_add_f32", sm, self.vR[0:2], self.vR[2:4])
        self.pk("v_pk_mul_f32", sq, self.vR[0:2], self.vR[0:2])
        self.pk("v_pk_fma_f32", sq, self.vR[2:4], self.vR[2:4], sq)
        for k in range(2, 8):
            self.pk("v_pk_add_f32", sm, sm, self.vR[2 * k:2 * k + 2])
            self.pk("v_pk_fma_f32", sq, self.vR[2 * k:2 * k + 2], self.vR[2 * k:2 * k + 2], sq)
        pr = V(124, 2)
        I("v_add_f32", pr[0], sm[0], sm[1])
        I("v_add_f32", pr[1], sq[0], sq[1])
        I("s_add_u32", self.sL, self.sL, 1)
        I("s_lshl_b32", T[0], self.sL, 4)
        I("s_or_b32", T[0], T[0], self.sBase)
        self.allreduce_pairs([("v_add_f32", pr[0], pr[1])])
        I("s_mov_b64", EXEC, "0xffff")
        I("buffer_store_dwordx2", pr, self.vStatSt, self.sWS, self.sXSp, mods="offen", tag="st")
        I("s_mov_b64", EXEC, -1)
        self.publish(self.sFXp, "st")
        I("s_cmp_eq_u32", self.sPhase, 0)
        I("s_cselect_b32", self.sPend, self.sHaloProd, 0)
        I("s_cmp_eq_u32", self.sPend, 0)
        I("s_cbranch_scc1", "L_pnext")
        I("s_lshl_b32", T[1], self.sC, 11)
        I("s_add_u32", T[1], T[1], self.sHX)
        I("s_add_u32", T[1], T[1], 16384)
        I("buffer_store_dwordx4", xo[0:4], self.vL16, self.sWS, T[1], mods="offen sc1")
        I("buffer_store_dwordx4", xo[4:8], self.vL16, self.sWS, T[1], mods="offen offset:1024 sc1")
        I("s_lshl_b32", T[1], self.sC, 7)
        I("s_add_u32", T[1], T[1], self.sHX)
        I("s_add_u32", T[1], T[1], 16384 + 14336)
        I("s_mov_b64", EXEC, "0xffff")
        I("buffer_store_dwordx2", pr, self.vStatSt, self.sWS, T[1], mods="offen sc1")
        I("s_mov_b64", EXEC, -1)
        I("s_branch", "L_pnext")
        a.label("L_pidle")
        I("s_cmp_eq_u32", self.sL, 4)
        I("s_cbranch_scc1", "L_fin2")
        a.label("L_pdone")
        I("s_add_u32", self.sL, self.sL, 1)
        a.label("L_pnext")
        a.flush()
        a.forget_counters()
        self.stamp()
        if self.opt.get("stop"):
            I("s_cmp_eq_u32", self.sL, self.opt["stop"])
            I("s_cbranch_scc1", "L_fin2")
        I("s_cmp_eq_u32", self.sPhase, 1)
        I("s_cbranch_scc1", "L_qb")

    def q_poll(self):
        a, I = self.a, self.I
        T = self.sT
        ex, t, pv = V(112), V(113), V(114)
        loop, ok, nopend, slow, again = (self.lab(x) for x in ("qpoll", "qpass", "nopend", "qslow", "qagain"))
        I("v_mad_u32_u24", ex, self.vExpM, self.sL, self.vExpC)
        a.label(loop)
        I("buffer_load_dword", pv, self.vPollQ, self.sWS, 0, mods="offen sc1")
        a.wait(vm=0)
        I("s_cmp_eq_u32", self.sPend, 0)
        I("s_cbranch_scc1", nopend)
        I("s_lshl_b32", T[1], self.sC, 2)
        I("s_add_u32", T[1], T[1], self.sFHp)
        I("s_add_u32", T[1], T[1], 128)
        I("s_lshl_b32", T[0], self.sL, 4)
        I("s_or_b32", T[0], T[0], self.sBase)
        I("v_mov_b32", self.vT, T[0])
        I("s_mov_b64", EXEC, 1)
        I("buffer_store_dword", self.vT, OFF, self.sWS, T[1], mods="sc1")
        I("s_mov_b64", EXEC, -1)
        I("s_mov_b32", self.sPend, 0)
        a.label(nopend)
        I("v_xor_b32", t, pv, ex)
        I("v_cmp_ne_u32", VCC, 0, t)
        I("s_cbranch_vccnz", slow)
        a.label(ok)
        a.vm = []

        def tail():
            b = self.a
            b.label(slow)
            b.I("s_cmp_eq_u32", self.sMode, 0)
            b.I("s_cbranch_scc1", again + "m")
            b.I("v_not_b32", V(115), self.vPollM)
            b.I("v_and_b32", V(116), t, self.vPollM)
            b.I("v_and_b32", V(115), t, V(115))
            b.I("v_cmp_ne_u32", self.sT2, 0, V(115))
            b.I("v_cmp_eq_u32", VCC, 0, V(116))
            b.nop(2)
            b.I("s_and_b64", self.sT2, self.sT2, VCC)
            b.I("s_cbranch_scc0", again)
            b.I("s_mov_b32", self.sMode, 0)
            b.I("s_add_u32", self.sFXp, self.sFXp, WS_SLOW)
            b.I("s_add_u32", self.sFOq, self.sFOq, WS_SLOW)
            b.I("s_add_u32", self.sFOp, self.sFOp, WS_SLOW)
            b.I("v_lshlrev_b32", V(115), 11, self.vExpM)
            b.I("v_add_u32", self.vPollQ, V(115), self.vPollQ)
            b.I("s_cmp_eq_u32", self.sC, 7)
            b.I("s_cbranch_scc1", again)
            b.I("buffer_wbl2", mods="sc1")
            b.raw("    s_waitcnt vmcnt(0)")
            b.I("s_or_b32", T[0], self.sBase, 16)
            b.I("v_mov_b32", self.vT, T[0])
            b.I("s_mov_b64", EXEC, 1)
            b.I("buffer_store_dword", self.vT, OFF, self.sWS, self.sFXp, mods="sc1")
            b.I("s_mov_b64", EXEC, -1)
            b.I("s_branch", again)
            b.label(again + "m")
            b.I("v_and_b32", V(116), t, self.vPollM)
            b.I("v_cmp_ne_u32", VCC, 0, V(116))
            b.I("s_cbranch_vccz", ok)
            b.label(again)
            self.budget_branch(loop)
            b.forget_counters()
        self.tail.append(tail)

    def xload(self, T, ks):
        if T == 0 and ks % 4 == 0:
            self.I("s_add_u32", self.sT[1], self.sXq, ks * 1024)
            self.I("s_add_u32", self.sT[2], self.sXq, ks * 1024 + 14336)
        self.I("buffer_load_dwordx4", self.xf(T, ks), self.vL16, self.sWS, self.sT[1 + T], mods=f"offen offset:{(ks % 4) * 1024} sc1")

    def stats_ops(self, T, layer):
        raw, st = self.straw(T), self.st(T)
        t = V(188 + 2 * T, 2)
        ops = []
        def add(*x, **k): ops.append(lambda: self.I(*x, **k))
        add("v_and_b32", raw[2], raw[2], self.vM3)
        add("v_and_b32", raw[3], raw[3], self.vM3)
        add("v_add_f32", raw[0], raw[0], raw[2])
        add("v_add_f32", raw[1], raw[1], raw[3])
        for step in range(7):
            x, y = raw[0], raw[1]
            if step in (0, 6): add("v_permlane32_swap_b32", x, y)
            elif step in (1, 4): add("v_add_f32", x, x, y)
            elif step in (2, 5): add("v_mov_b32", y, x)
            else: add("v_permlane16_swap_b32", x, y)
        add("v_mul_f32", st[0], f32(-1.0 / 448), raw[0])
        add("v_mul_f32", t[0], f32(1.0 / 448), raw[1])
        ops.append(lambda: self.fma_negsq(t[0], st[0]))
        add("v_max_f32", t[0], 0, t[0])
        add("v_add_f32", t[0], f32(1e-5), t[0])
        add("v_rsq_f32", st[1], t[0])
        add("v_and_b32", st[2], st[1], self.vMH if T == 2 else self.vM3)
        if T < 2:
            add("v_mul_f32", st[3], f32(LOG2E * (28 ** -0.5 if layer == "A" else 1.0)), st[1])
        return ops

    def fma_negsq(self, acc, x):
        class Neg:
            def __init__(s, r): s.r = r
            def __str__(s): return "-" + str(s.r)
            def regs(s): return s.r.regs()
        self.I("v_fma_f32", acc, Neg(x), x, acc)

    def colsum(self, dst, with_halo):
        a, I = self.a, self.I
        T = self.sT
        ad0, ad1 = V(188), V(189)
        d0, d1 = V(192, 4), V(196, 4)
        I("s_and_b32", T[0], self.sW, 1)
        I("s_lshl_b32", T[0], T[0], 5)
        I("v_xor_b32", ad0, T[0], self.vQ0)
        I("v_add_u32", ad1, 2 * MAT, ad0)
        I("s_lshr_b32", T[0], self.sW, 1)
        I("s_mul_i32", T[0], T[0], MAT)
        I("v_add_u32", ad0, T[0], ad0)
        def rd(ks):
            for q, ad in enumerate((ad0, ad1)):
                w = self.wf((ks % 3) * 2 + q)
                I("ds_read_b64_tr_b16", w[0:2], ad, mods=f"offset:{ks * 2048}")
                I("ds_read_b64_tr_b16", w[2:4], ad, mods=f"offset:{ks * 2048 + 1024}")
        for ks in range(3): rd(ks)
        for ks in range(14):
            self.mfma(d0, self.wf((ks % 3) * 2), self.aOnes, 0 if ks == 0 else d0)
            self.mfma(d1, self.wf((ks % 3) * 2 + 1), self.aOnes, 0 if ks == 0 else d1)
            if ks + 3 < 14: rd(ks + 3)
        I("v_lshrrev_b32", ad0, 8, self.vL16)
        I("v_lshlrev_b32", ad0, 4, ad0)
        I("v_add_u32", ad0, L_CS, ad0)
        I("s_lshl_b32", T[0], self.sW, 6)
        I("v_add_u32", ad1, T[0], ad0)
        I("s_and_b32", T[0], self.sW, 1)
        I("s_lshl_b32", T[0], T[0], 6)
        I("v_add_u32", V(190), T[0], ad0)
        I("s_mov_b32", self.sT2[0], "0x00010001")
        I("s_mov_b32", self.sT2[1], "0x00010001")
        a.flush()
        I("s_mov_b64", EXEC, self.sT2)
        I("ds_write_b128", ad1, d0)
        I("ds_write_b128", V(190), d1, mods="offset:256")
        I("s_mov_b64", EXEC, -1)
        a.wait(lg=0)
        I("s_barrier")
        for ft in range(6):
            I("ds_read_b128", dst[4 * ft:4 * ft + 4], ad0, mods=f"offset:{64 * ft}")
        if with_halo:
            I("ds_read_b128", self.vCH, ad1, mods="offset:128")
        a.wait(lg=0)

    def wphi_gather(self):
        a, I = self.a, self.I
        j, g, f1, ad, t = V(188), V(189), V(190), V(191), V(200)
        I("v_lshrrev_b32", g, 8, self.vL16)
        I("v_lshrrev_b32", j, 2, self.vPollP)
        I("v_lshrrev_b32", t, 2, j)
        I("v_sub_u32", f1, j, t)
        I("v_add_u32", f1, 16, f1)
        I("v_mul_u32_u24", ad, 4 * 56, g)
        I("v_add_u32", ad, L_WPHI, ad)
        I("v_lshl_add_u32", f1, f1, 1, ad)
        I("v_lshl_add_u32", ad, j, 1, ad)
        I("v_and_b32", t, 3, j)
        I("v_cmp_ne_u32", VCC, 3, t)
        I("v_cndmask_b32", t, 0, -1, VCC)
        I("v_and_b32", j, t, self.vM3)
        for oft, base in enumerate((ad, f1)):
            for e in range(8):
                d = e if e < 4 else 16 + e - 4
                I("ds_read_u16", V(204 + e), base, mods=f"offset:{d * 56}")
            for p in range(4):
                I("v_lshl_or_b32", V(204 + 2 * p), V(205 + 2 * p), 16, V(204 + 2 * p))
                m = (None, self.vM3)[p >> 1] if oft == 0 else (t, j)[p >> 1]
                if m is not None: I("v_and_b32", V(204 + 2 * p), V(204 + 2 * p), m)
                I("v_accvgpr_write_b32", self.aWphi[4 * oft + p], V(204 + 2 * p))

    def q_gemm(self, layer):
        a, I = self.a, self.I
        T = self.sT
        isA = layer == "A"
        LOOK = 4
        for t in range(2):
            I("buffer_load_dwordx2", self.straw(t)[0:2], self.vStat, self.sWS, self.sXSq, mods=f"offen offset:{t * 1024} sc1")
            I("buffer_load_dwordx2", self.straw(t)[2:4], self.vStat, self.sWS, self.sXSq, mods=f"offen offset:{t * 1024 + 512} sc1")
        for ks in range(LOOK):
            for t in range(2): self.xload(t, ks)
        I("s_barrier")
        once = self.lab("once")
        I("s_cmp_lg_u32", self.sIt, 0)
        I("s_cbranch_scc1", once)
        nvm = len(a.vm)
        self.colsum(self.cA if isA else self.cB, isA)
        if not isA: self.wphi_gather()
        a.wait_lg_all()
        a.flush()
        assert nvm == len(a.vm)
        a.label(once)
        for ft in range(6): self.qw_read(self.wf(ft), ft, 0)
        self.pw_dma_setup()

        fill = {ks: [] for ks in range(14)}
        for ks in range(14 - LOOK):
            for t in range(2): fill[ks].append(lambda t=t, ks=ks: self.xload(t, ks + LOOK))
        s0, s1 = self.stats_ops(0, layer), self.stats_ops(1, layer)
        inter = [x for p in zip(s0, s1) for x in p]
        for i, f in enumerate(inter): fill[1 + i // 10].append(f)
        pw = self.pw_dma_list(self.sWOA if isA else self.sWOB)
        HK0, HCHK, HM0 = 3, 6, 7
        hm = {}
        if isA:
            def hload(k):
                if k % 4 == 0: I("s_add_u32", T[0], self.sHX, k * 1024)
                I("buffer_load_dwordx4", self.hx(k), self.vHalo, self.sWS, T[0], mods=f"offen offset:{(k % 4) * 1024} sc1")
            def hstat():
                I("s_add_u32", self.sT2[0], self.sHX, 14336)
                I("buffer_load_dwordx2", self.straw(2)[0:2], self.vHaloS, self.sWS, self.sT2[0], mods="offen sc1")
                I("buffer_load_dwordx2", self.straw(2)[2:4], self.vHaloS, self.sWS, self.sT2[0], mods="offen offset:512 sc1")
            fill[HK0].append(lambda: I("buffer_load_dword", V(194), self.vPollH, self.sWS, self.sFHp, mods="offen sc1"))
            fill[HK0].append(hstat)
            for k in range(14): fill[HK0 + k // 2].append(lambda k=k: hload(k))
            issued = 2 * (HCHK - HK0)
            def hcheck():
                slow, back = self.lab("hslow"), self.lab("hback")
                I("s_lshl_b32", self.sT2[1], self.sL, 4)
                I("s_or_b32", self.sT2[1], self.sT2[1], self.sBase)
                I("v_cmp_ne_u32", VCC, self.sT2[1], V(194))
                I("s_cbranch_vccnz", slow)
                a.label(back)
                def tail():
                    b = self.a
                    loop = self.lab("hloop")
                    b.label(slow)
                    b.I("s_cmp_eq_u32", self.sFirst, 1)
                    b.I("s_cbranch_scc1", back)
                    b.label(loop)
                    b.I("s_sub_u32", self.sBudget, self.sBudget, 1)
                    b.I("s_cbranch_scc1", "L_end")
                    b.I("buffer_load_dword", V(194), self.vPollH, self.sWS, self.sFHp, mods="offen sc1")
                    b.raw("    s_waitcnt vmcnt(0)")
                    b.forget_counters()
                    b.I("v_cmp_ne_u32", VCC, self.sT2[1], V(194))
                    b.I("s_cbranch_vccnz", loop)
                    hstat()
                    for k in range(issued): hload(k)
                    b.raw("    s_waitcnt vmcnt(0)")
                    b.forget_counters()
                    b.I("s_branch", back)
                self.tail.append(tail)
            fill[HCHK].insert(0, hcheck)
            for i, f in enumerate(self.stats_ops(2, layer)): fill[HCHK + 1 + i // 8].append(f)
            for k in range(14): hm.setdefault(HM0 + k // 2, []).append(k)
            for i, f in enumerate(pw): fill[10 + i // 4].append(f)
        else:
            for i, f in enumerate(pw): fill[8 + (i * 6) // 16].append(f)

        def hread(k):
            w = self.wf(6 + (k & 1))
            I("ds_read_b64_tr_b16", w[0:2], self.vQh, mods=f"offset:{k * 2048}")
            I("ds_read_b64_tr_b16", w[2:4], self.vQh, mods=f"offset:{k * 2048 + 1024}")

        for ks in range(14):
            q = list(fill[ks])
            per = -(-len(q) // 6)
            if ks + 1 in hm and ks not in hm:
                for k in hm[ks + 1]: hread(k)
            for ft in range(6):
                for t in range(2):
                    self.mfma(self.acc(t, ft), self.wf(ft), self.xf(t, ks), 0 if ks == 0 else self.acc(t, ft))
                if ks < 13: self.qw_read(self.wf(ft), ft, ks + 1)
                for f in q[:per]: f()
                q = q[per:]
                if ks in hm and ft in (1, 4):
                    k = hm[ks][ft // 3]
                    self.mfma(self.hacc, self.wf(6 + (k & 1)), self.hx(k), 0 if k == 0 else self.hacc)
                    if k + 2 < 14: hread(k + 2)
                if ks == 13 and ft == 1:
                    a.wait(lg=0)
                    I("s_barrier")

    def ln(self, acc, c, st, scale):
        for p in range(2):
            self.pk("v_pk_fma_f32", acc[2 * p:2 * p + 2], c[2 * p:2 * p + 2], st[0:2], acc[2 * p:2 * p + 2], by=0)
        if scale == "r":
            for p in range(2): self.pk("v_pk_mul_f32", acc[2 * p:2 * p + 2], acc[2 * p:2 * p + 2], st[0:2], by=1)
        elif scale == "m":
            for p in range(2): self.pk("v_pk_mul_f32", acc[2 * p:2 * p + 2], acc[2 * p:2 * p + 2], st[2:4], by=0)
        elif scale == "e":
            self.pk("v_pk_fma_f32", acc[0:2], acc[0:2], st[2:4], self.vE0, by=0)
            self.pk("v_pk_mul_f32", acc[2:4], acc[2:4], st[2:4], by=0)

    def cvt(self, dst, src):
        for p in range(src.cnt // 2):
            self.I("v_cvt_pk_bf16_f32", dst[p], src[2 * p], src[2 * p + 1])

    def conv(self, dst, T, mat, c, scales):
        for f in range(2):
            ft = 2 * mat + f
            self.ln(self.acc(T, ft), c[4 * ft:4 * ft + 4], self.st(T), scales[f])
        for f in range(2):
            self.cvt(dst[2 * f:2 * f + 2], self.acc(T, 2 * mat + f))

    def o_store_publish(self, of, dma):
        a, I = self.a, self.I
        T = self.sT
        I("s_add_u32", T[1], self.sOq, 16384)
        I("buffer_store_dwordx4", of[0], self.vL16, self.sWS, self.sOq, mods="offen", tag="st")
        I("buffer_store_dwordx4", of[1], self.vL16, self.sWS, T[1], mods="offen", tag="st")
        I("s_lshl_b32", T[0], self.sL, 4)
        I("s_or_b32", T[0], T[0], self.sBase)
        self.publish(self.sFOq, "st")
        self.stamp()
        for f in dma: f()

    def qa_stage(self):
        a, I = self.a, self.I
        a.label("L_qa")
        first = self.lab("qarest")
        I("s_cmp_lg_u32", self.sIt, 0)
        I("s_cbranch_scc1", first)
        self.qw_dma_setup()
        for f in self.qw_rest: f()
        a.label(first)
        self.q_poll()
        self.stamp()
        self.q_gemm("A")
        self.stamp()
        kf = [V(196, 4), V(200, 4)]
        qf = [V(204, 4), V(208, 4)]
        vp = [V(212, 4), V(216, 4)]
        hp = V(220, 2)
        self.qw_dma_setup()
        dk = self.qw_dma_list(self.sWB, (1,))
        self.conv(kf[1], 1, 1, self.cA, ("r", "m"))
        I("ds_write_b128", self.vKrd, kf[1], mods=f"offset:{L_EXK + 1024}")
        self.conv(vp[0], 0, 2, self.cA, ("r", "r"))
        I("ds_write_b128", self.vEXW, vp[0], mods=f"offset:{L_EXV + 1024}")
        self.conv(vp[1], 1, 2, self.cA, ("r", "r"))
        I("ds_write_b128", self.vEXW, vp[1], mods=f"offset:{L_EXV + 2048}")
        self.ln(self.hacc, self.vCH, self.st(2), "m")
        self.cvt(hp, self.hacc)
        I("ds_write_b64", self.vHW, hp)
        self.conv(qf[0], 0, 0, self.cA, (None, None))
        a.wait(lg=0)
        I("s_barrier")
        kprev = V(222, 4)
        vt = [V(226, 6), V(232, 6)]
        I("ds_read_b128", kprev, self.vKrd, mods=f"offset:{L_EXK}")
        for f in range(2):
            for i in range(3):
                I("ds_read_b64_tr_b16", vt[f][2 * i:2 * i + 2], self.vEXRa, mods=f"offset:{1024 * i + 8 * f}")
        self.conv(kf[0], 0, 1, self.cA, ("r", "m"))
        self.conv(qf[1], 1, 0, self.cA, (None, None))
        s = [V(112, 8), V(120, 8)]
        self.mfma(s[0][4:8], kf[0], qf[0], self.bCur)
        self.mfma(s[1][0:4], kf[0], qf[1], self.bPrev)
        self.mfma(s[1][4:8], kf[1], qf[1], self.bCur)
        self.mfma(s[0][0:4], kprev, qf[0], self.bPrev0)
        for f in dk[:3]: f()
        m = V(128, 2)
        for t in (1, 0):
            I("v_max3_f32", m[t], s[t][4], s[t][5], s[t][6])
            I("v_max3_f32", m[t], m[t], s[t][7], s[t][0])
            I("v_max3_f32", m[t], m[t], s[t][1], s[t][2])
            I("v_max_f32", m[t], m[t], s[t][3])
        self.allreduce_pairs([("v_max_f32", m[0], m[1])])
        nm = [V(130, 2), V(132, 2)]
        for t in range(2):
            I("v_mul_f32", nm[t][0], m[t], self.st(t)[3])
        for t in range(2):
            for p in range(4):
                self.I("v_pk_fma_f32", s[t][2 * p:2 * p + 2], s[t][2 * p:2 * p + 2], self.st(t)[2:4], nm[t],
                       mods="op_sel:[0,1,0] op_sel_hi:[1,1,0] neg_lo:[0,0,1] neg_hi:[0,0,1]")
        pf = [V(136, 4), V(140, 4)]
        for t in range(2):
            for k in range(8): I("v_exp_f32", s[t][k], s[t][k])
        for t in range(2): self.cvt(pf[t], s[t])
        o = [V(144, 8), V(152, 8)]
        sm = [V(160, 4), V(164, 4)]
        for t in range(2):
            self.mfma(sm[t], self.aOnes, pf[t], 0)
            for f in range(2):
                self.mfma(o[t][4 * f:4 * f + 4], vt[f][2 * t:2 * t + 4], pf[t], 0)
        for f in dk[3:]: f()
        of = [V(168, 4), V(172, 4)]
        for t in range(2): I("v_rcp_f32", sm[t][0], sm[t][0])
        for t in range(2):
            for p in range(4): self.pk("v_pk_mul_f32", o[t][2 * p:2 * p + 2], o[t][2 * p:2 * p + 2], sm[t][0:2], by=0)
            self.cvt(of[t], o[t])
        self.o_store_publish(of, self.qw_dma_list(self.sWB, (2,)))
        I("s_mov_b32", self.sPhase, 1)
        a.flush()
        I("s_branch", "L_p")

    def phi(self, src, dst, extra=()):
        a, I = self.a, self.I
        extra = list(extra)
        p = [V(112, 8), V(120, 8)]
        for t in range(2):
            for oft in range(2):
                self.mfma(p[t][4 * oft:4 * oft + 4], self.aWphi[4 * oft:4 * oft + 4], src[t], 0)
        for f in extra[:2]: f()
        mx, mn = V(128, 2), V(130, 2)
        for k in range(3):
            for t in range(2):
                if k == 0:
                    I("v_max3_f32", mx[t], p[t][0], p[t][1], p[t][2])
                    I("v_min3_f32", mn[t], p[t][0], p[t][1], p[t][2])
                else:
                    I("v_max3_f32", mx[t], mx[t], p[t][2 * k + 1], p[t][2 * k + 2])
                    I("v_min3_f32", mn[t], mn[t], p[t][2 * k + 1], p[t][2 * k + 2])
        kk = [V(132, 2), V(134, 2)]
        bb = [V(136, 2), V(138, 2)]
        for t in range(2):
            I("v_mov_b32", kk[t][0], self.st(t)[3])
            I("v_sub_f32", kk[t][1], 0, self.st(t)[3])
        self.allreduce_pairs([("v_max_f32", mx[0], mx[1]), ("v_min_f32", mn[0], mn[1])])
        for t in range(2):
            I("v_mul_f32", bb[t][0], mx[t], kk[t][1])
            I("v_mul_f32", bb[t][1], mn[t], kk[t][0])
        e = [V(140, 14), V(154, 14)]
        rest = extra[2:]
        for i in range(7):
            for t in range(2):
                self.pk("v_pk_fma_f32", e[t][2 * i:2 * i + 2], p[t][(i & ~1):(i & ~1) + 2], kk[t], bb[t], bx=i & 1)
        for i in range(14):
            for t in range(2): I("v_exp_f32", e[t][i], e[t][i])
            if rest: rest.pop(0)()
        sm = [V(128, 2), V(130, 2)]
        for t in range(2): self.pk("v_pk_add_f32", sm[t], e[t][0:2], e[t][2:4])
        for i in range(2, 7):
            for t in range(2): self.pk("v_pk_add_f32", sm[t], sm[t], e[t][2 * i:2 * i + 2])
        self.allreduce_pairs([("v_add_f32", sm[0][0], sm[0][1]), ("v_add_f32", sm[1][0], sm[1][1])])
        for t in range(2):
            for k in range(2): I("v_rcp_f32", sm[t][k], sm[t][k])
        for t in range(2):
            for i in range(7): self.pk("v_pk_mul_f32", e[t][2 * i:2 * i + 2], e[t][2 * i:2 * i + 2], sm[t])
            for s in range(2):
                for q in range(4):
                    I("v_cvt_pk_bf16_f32", dst[t][s][q], e[t][4 * q + s], e[t][4 * q + 2 + s] if q < 3 else 0)
            if callable(getattr(self, "_phi_done", None)): self._phi_done(t)
        for f in rest: f()

    def qb_stage(self):
        a, I = self.a, self.I
        T = self.sT
        a.label("L_qb")
        self.qw_dma_setup()
        for f in self.qw_dma_list(self.sWB, (0,)): f()
        self.q_poll()
        self.stamp()
        self.q_gemm("B")
        self.stamp()
        kf = [V(196, 4), V(200, 4)]
        qf = [V(204, 4), V(208, 4)]
        vp = [V(212, 4), V(216, 4)]
        for t in range(2): self.conv(kf[t], t, 1, self.cB, (None, None))
        for t in range(2): self.conv(qf[t], t, 0, self.cB, (None, None))
        for t in range(2):
            self.conv(vp[t], t, 2, self.cB, ("r", "e"))
        exw = V(220)
        I("v_add_u32", exw, L_PH, self.vEXW)
        for t in range(2): I("ds_write_b128", exw, vp[t], mods=f"offset:{16384 + 1024 * t}")
        ph = [[V(168, 4), V(172, 4)], [V(224, 4), V(228, 4)]]
        def done(t):
            for s in range(2): I("ds_write_b128", exw, ph[t][s], mods=f"offset:{8192 * s + 1024 * t}")
        self._phi_done = done
        self.phi(kf, ph)
        self._phi_done = None
        a.wait(lg=0)
        I("s_barrier")
        kacc = V(112, 8)
        def fa(k, oft): return A(8 * (k * 2 + oft) // 2, 4)
        def fb(k): return A(40 + 4 * k, 4)
        for k in range(4):
            for t in range(2):
                I("ds_read_b64_tr_b16", fb(k)[2 * t:2 * t + 2], self.vKB, mods=f"offset:{(2 * k + t) * 1024}")
            for oft in range(2):
                for t in range(2):
                    I("ds_read_b64_tr_b16", fa(k, oft)[2 * t:2 * t + 2], self.vKA, mods=f"offset:{(2 * k + t) * 1024 + 8 * oft}")
        for k in range(4):
            for oft in range(2):
                self.mfma(kacc[4 * oft:4 * oft + 4], fa(k, oft), fb(k), 0 if k == 0 else kacc[4 * oft:4 * oft + 4])
        kvp = V(120, 4)
        self.cvt(kvp, kacc)
        I("v_and_b32", kvp[3], "0xffff", kvp[3])
        I("v_or_b32", kvp[3], self.sTag, kvp[3])
        I("buffer_store_dwordx4", kvp, self.vL16, self.sWS, self.sKVst, mods="offen sc1")
        self.stamp()
        self.qw_dma_setup()
        phq = [[V(168, 4), V(172, 4)], [V(224, 4), V(228, 4)]]
        self.phi(qf, phq, extra=self.qw_dma_list(self.sWA, (0, 1)))
        self.stamp()
        def gf(p): return V(112 + 4 * p, 4) if p < 14 else V(232 + 4 * (p - 14), 4)
        red = V(240, 8)
        lo, hi = V(248), V(249)
        loop, ok = self.lab("gather"), self.lab("gpass")
        a.flush()
        a.label(loop)
        def gload(p):
            if p % 4 == 0: I("s_add_u32", T[1], self.sKVld, p * 1024)
            I("buffer_load_dwordx4", gf(p), self.vL16, self.sWS, T[1], mods=f"offen offset:{(p % 4) * 1024} sc1")
        for p in range(10): gload(p)
        for p in range(16):
            self.mfma(red[0:4], self.aSel[2:6], gf(p), 0 if p == 0 else red[0:4])
            self.mfma(red[4:8], self.aSel[0:4], gf(p), 0 if p == 0 else red[4:8])
            if p + 10 < 16: gload(p + 10)
            if p == 1:
                I("v_min_u32", lo, gf(0)[3], gf(1)[3])
                I("v_max_u32", hi, gf(0)[3], gf(1)[3])
            elif p & 1:
                I("v_min3_u32", lo, lo, gf(p - 1)[3], gf(p)[3])
                I("v_max3_u32", hi, hi, gf(p - 1)[3], gf(p)[3])
        I("v_xor_b32", lo, self.sTag, lo)
        I("v_xor_b32", hi, self.sTag, hi)
        I("v_or_b32", lo, lo, hi)
        I("v_cmp_lt_u32", VCC, "0xffff", lo)
        I("s_cbranch_vccz", ok)
        a.flush()
        self.budget_branch(loop)
        a.label(ok)
        self.stamp()
        kvs = V(112, 4)
        self.cvt(kvs, red)
        I("v_add_u32", exw, L_KVX, self.vKrd)
        I("ds_write_b128", exw, kvs)
        I("v_add_u32", V(221), L_KVX, self.vL16)
        a.wait(lg=0)
        I("s_barrier")
        kvf = [[A(0, 4), A(4, 4)], [A(8, 4), A(12, 4)]]
        zf = [A(16, 4), A(20, 4)]
        for s in range(2):
            I("ds_read_b128", zf[s], self.vZ, mods=f"offset:{2048 * s}")
            for dt in range(2):
                I("ds_read_b128", kvf[s][dt], V(221), mods=f"offset:{(2 * s + dt) * 1024}")
        o = [V(144, 8), V(152, 8)]
        dn = [V(160, 4), V(164, 4)]
        for s in range(2):
            for t in range(2):
                self.mfma(dn[t], zf[s], phq[t][s], 0 if s == 0 else dn[t])
                for dt in range(2):
                    self.mfma(o[t][4 * dt:4 * dt + 4], kvf[s][dt], phq[t][s], 0 if s == 0 else o[t][4 * dt:4 * dt + 4])
        of = [V(116, 4), V(120, 4)]
        for t in range(2): I("v_add_f32", dn[t][0], f32(1e-6), dn[t][0])
        for t in range(2): I("v_rcp_f32", dn[t][0], dn[t][0])
        for t in range(2):
            for p in range(4): self.pk("v_pk_mul_f32", o[t][2 * p:2 * p + 2], o[t][2 * p:2 * p + 2], dn[t][0:2], by=0)
            self.cvt(of[t], o[t])
        self.o_store_publish(of, self.qw_dma_list(self.sWA, (2,)))
        I("s_mov_b32", self.sPhase, 0)
        I("s_add_u32", self.sIt, self.sIt, 1)
        I("s_add_u32", self.sKVst, self.sKVst, 0x100000)
        I("s_add_u32", self.sKVld, self.sKVld, 0x100000)
        I("s_add_u32", self.sHX, self.sHX, 0x40000)
        a.flush()
        I("s_branch", "L_p")

    def final(self):
        a, I = self.a, self.I
        T = self.sT
        a.label("L_final")
        a.forget_counters()
        xo = V(112, 8)
        for k in range(8):
            I("v_cvt_pk_bf16_f32", xo[k], self.vR[2 * k], self.vR[2 * k + 1])
        for n in range(4):
            I("buffer_store_dwordx2", xo[2 * n:2 * n + 2], self.vOut, self.sOUT, self.sX0o, mods=f"offen offset:{32 * n}")
        a.label("L_fin2")
        self.stamp()
        if self.opt.get("stamps"):
            I("s_lshl_b32", T[0], S(2), 2)
            I("s_add_u32", T[0], T[0], self.sW)
            I("s_lshl_b32", T[0], T[0], 8)
            I("s_add_u32", T[0], T[0], WS_STAMP)
            I("v_lshrrev_b32", V(120), 2, self.vL16)
            I("buffer_store_dword", self.vStamp, V(120), self.sWS, T[0], mods="offen")
        I("s_or_b32", T[0], S(2), self.sW)
        I("s_cmp_lg_u32", T[0], 0)
        I("s_cbranch_scc1", "L_end")
        I("v_mov_b32", V(120), self.sNonce)
        I("s_mov_b64", EXEC, 1)
        I("buffer_store_dword", V(120), OFF, self.sWS, 0)
        I("s_endpgm")

    def build(self):
        a = self.a
        self.prologue()
        self.p_stage()
        self.qa_stage()
        self.qb_stage()
        self.final()
        done = 0
        while done < len(self.tail):
            a.forget_counters()
            self.tail[done]()
            done += 1
        a.label("L_end")
        a.I("s_endpgm")
        head = open("cdna_kernels/" + NAME[:-7] + ".s.ref").read().split("; Override launch")[0]
        out = head + f"; @launch grid=(256,1,1) block=(256,1,1) lds={LDS_BYTES}\n"
        out += f'.amdgcn_target "amdgcn-amd-amdhsa--gfx950"\n.text\n.globl {NAME}\n.p2align 8\n.type {NAME},@function\n{NAME}:\n'
        out += a.text()
        out += f""".section .rodata,"a"
.p2align 6
.amdhsa_kernel {NAME}
  .amdhsa_next_free_vgpr 512
  .amdhsa_next_free_sgpr 102
  .amdhsa_accum_offset 256
  .amdhsa_group_segment_fixed_size 0
  .amdhsa_kernarg_size 80
  .amdhsa_user_sgpr_count 2
  .amdhsa_user_sgpr_kernarg_segment_ptr 1
  .amdhsa_system_sgpr_workgroup_id_x 1
.end_amdhsa_kernel
"""
        return out


if __name__ == "__main__":
    opt = {}
    path = sys.argv[1]
    for kv in sys.argv[2:]:
        k, v = kv.split("=")
        opt[k] = int(v)
    g = Gen(opt)
    open(path, "w").write(g.build())
    print("instructions", sum(g.a.count.values()), "nop states", g.a.nops)
```

```python
import sys
import math
import struct
from emit import Asm, V, A, S, VCC, EXEC, M0, OFF

NAME = "interleave_layers__sliding_local_dilated__linear_kernel_hedgehog__prompt_kernel"


def f32(x):
    return "0x%08x" % struct.unpack("<I", struct.pack("<f", x))[0]


WS_E = 0x0
WS_FX = 0x1000
WS_FO = 0x5000
WS_SLOW = 0x8000
WS_FH = 0x10000
WS_HELLO = 0x11000
WS_STAMP = 0x20000
WS_X = 0x100000
WS_XS = 0x2C0000
WS_O = 0x300000
WS_KV = 0x500000
WS_HX = 0x700000
WS_SIZE = 0x800000
OOB = 0x7FFF0000

L_QW = 0
MAT = 28672
L_PW = 86016
L_SP = 151552
L_KVX = L_SP
L_WPHI = L_SP + 8192
L_CS = L_SP + 10240
L_EXK = 0
L_EXV = 8192
L_PH = 2 * MAT
LDS_BYTES = 163840

LOG2E = math.log2(math.e)


class Gen:
    def __init__(self, opt):
        self.opt = opt
        self.a = Asm()
        self.tail = []
        self.nstamp = 0
        self.uid = 0

    def lab(self, base):
        self.uid += 1
        return f"L_{base}_{self.uid}"

    sX0, sWA, sWOA, sWB, sWOB, sOUT, sWS, sWP = (S(24 + 4 * i, 4) for i in range(8))
    (sGrp, sH, sW, sC, sRh, sBase, sTag, sMode, sIt, sPhase, sL, sBudget, sXq, sXSq, sOq, sXp, sXSp, sOp, sFXp, sFOq,
     sFOp, sHX, sHaloProd, sFHp, sKVst, sKVld, sQWo, sFirst, sPend, sX0o, sNonce, sXcc) = (S(56 + i) for i in range(32))
    sT = [S(88 + i) for i in range(8)]
    sT2 = S(96, 2)
    sStamp = S(98, 2)

    vL16, vQ0, vQ1, vQv0, vQv1, vQh = (V(1 + i) for i in range(6))
    vP = [V(7 + i) for i in range(4)]
    vQWd, vPWd, vPWd3, vPollQ, vPollM, vPollP, vEXW, vEXRa, vHW, vM3, vStat = (V(11 + i) for i in range(11))
    vE0 = V(22, 2)
    vHalo, vHaloS, vStatSt, vZ, vOut, vExpC, vExpM, vMH = (V(24 + i) for i in range(8))
    vCH = V(32, 4)
    bCur, bPrev, bPrev0 = V(36, 4), V(40, 4), V(44, 4)
    vR = V(48, 16)
    cA, cB = V(64, 24), V(88, 24)
    vKA, vKB, vPollH, vKrd, vStamp = (V(250 + i) for i in range(5))
    vT = V(255)

    aOnes, aSel, aWphi = A(232, 4), A(236, 6), A(242, 8)

    def acc(self, T, ft): return V(112 + (T * 6 + ft) * 4, 4)
    hacc = V(160, 4)
    def straw(self, T): return V(164 + 4 * T, 4)
    def st(self, T): return V(176 + 4 * T, 4)
    def xf(self, T, ks): return A((ks * 2 + T) * 4, 4)
    def hx(self, ks): return A(112 + 4 * ks, 4)
    def wf(self, f): return A(168 + 4 * f, 4)

    def I(self, *x, **k): self.a.I(*x, **k)

    def stamp(self, real=False):
        if not self.opt.get("stamps"):
            return
        a = self.a
        a.I("s_memrealtime" if real else "s_memtime", self.sStamp)
        a.I("s_mov_b32", M0, self.sT[7])
        a.wait(lg=0)
        a.I("v_writelane_b32", self.vStamp, self.sStamp[0], M0)
        a.I("s_add_u32", self.sT[7], self.sT[7], 1)

    def srd(self, dst, src, nbytes):
        self.I("s_mov_b32", dst[0], src[0])
        self.I("s_and_b32", dst[1], src[1], "0xffff")
        self.I("s_mov_b32", dst[2], nbytes)
        self.I("s_mov_b32", dst[3], "0x20000")

    def mfma(self, d, x, y, c):
        self.I("v_mfma_f32_16x16x32_bf16", d, x, y, c)

    def pk(self, op, d, x, y, z=None, bx=None, by=None, bz=None, neg=None):
        srcs = [(x, bx), (y, by)] + ([(z, bz)] if z is not None else [])
        lo = [0 if b is None else b for _, b in srcs]
        hi = [1 if b is None else b for _, b in srcs]
        mods = []
        if any(lo): mods.append("op_sel:[%s]" % ",".join(map(str, lo)))
        if not all(hi): mods.append("op_sel_hi:[%s]" % ",".join(map(str, hi)))
        self.I(op, d, *[s for s, _ in srcs], mods=" ".join(mods))

    def allreduce_pairs(self, chains):
        for step in range(7):
            for op, x, y in chains:
                if step in (0, 6): self.I("v_permlane32_swap_b32", x, y)
                elif step in (1, 4): self.I(op, x, x, y)
                elif step in (2, 5): self.I("v_mov_b32", y, x)
                else: self.I("v_permlane16_swap_b32", x, y)

    def budget_branch(self, loop):
        self.I("s_sub_u32", self.sBudget, self.sBudget, 1)
        self.I("s_cbranch_scc1", "L_end")
        self.I("s_branch", loop)

    def publish(self, soff, drain_tag):
        a = self.a
        slow, done = self.lab("pubslow"), self.lab("pubdone")
        a.I("v_mov_b32", self.vT, self.sT[0])
        a.wait_vm_tag(drain_tag)
        a.I("s_cmp_eq_u32", self.sMode, 0)
        a.I("s_cbranch_scc1", slow)
        a.I("s_mov_b64", EXEC, 1)
        a.I("buffer_store_dword", self.vT, OFF, self.sWS, soff)
        a.label(done)
        a.I("s_mov_b64", EXEC, -1)

        def tail():
            b = self.a
            b.label(slow)
            b.I("buffer_wbl2", mods="sc1")
            b.raw("    s_waitcnt vmcnt(0)")
            b.I("s_mov_b64", EXEC, 1)
            b.I("buffer_store_dword", self.vT, OFF, self.sWS, soff, mods="sc1")
            b.I("s_branch", done)
            b.forget_counters()
        self.tail.append(tail)

    def qw_dma_list(self, srd, mats, blocks=range(7)):
        out = []
        for mat in mats:
            for i in blocks:
                def f(mat=mat, i=i):
                    self.I("s_add_u32", M0, self.sT[5], mat * MAT + i * 1024)
                    self.I("s_add_u32", self.sT[6], self.sQWo, mat * 896 + i * 16 * 2688)
                    self.I("buffer_load_dwordx4", self.vQWd, srd, self.sT[6], mods="offen lds", tag="qw")
                out.append(f)
        return out

    def qw_dma_setup(self):
        self.I("s_mul_i32", self.sT[5], self.sW, 7 * 1024)

    def pw_dma_list(self, srd):
        out = []
        for i in range(16):
            hh, b = i >> 2, i & 3
            def f(hh=hh, b=b):
                self.I("s_add_u32", M0, self.sT[3], hh * 4096 + b * 1024)
                self.I("s_add_u32", self.sT[6], self.sT[4], (28 * hh + 8 * b) * 896)
                self.I("buffer_load_dwordx4", self.vPWd3 if b == 3 else self.vPWd, srd, self.sT[6], mods="offen lds", tag="pw")
            out.append(f)
        return out

    def pw_dma_setup(self):
        self.I("s_lshl_b32", self.sT[3], self.sW, 14)
        self.I("s_add_u32", self.sT[3], self.sT[3], L_PW)
        self.I("s_mul_i32", self.sT[4], self.sW, 4 * 28 * 896)
        self.I("s_min_u32", self.sT[6], self.sC, 6)
        self.I("s_lshl_b32", self.sT[6], self.sT[6], 7)
        self.I("s_add_u32", self.sT[4], self.sT[4], self.sT[6])

    def qw_read(self, dst, ft, ks):
        base = (self.vQ0, self.vQ1, self.vQ0, self.vQ1, self.vQv0, self.vQv1)[ft]
        off = (MAT if ft in (2, 3) else 0) + ks * 2048
        self.I("ds_read_b64_tr_b16", dst[0:2], base, mods=f"offset:{off}")
        self.I("ds_read_b64_tr_b16", dst[2:4], base, mods=f"offset:{off + 1024}")

    def prologue(self):
        a, I = self.a, self.I
        T = self.sT
        I("s_cmp_ge_u32", S(2), 256)
        I("s_cbranch_scc1", "L_end")
        I("s_getpc_b64", S(22, 2))
        a.label("L_pc")
        if self.opt.get("stamps"):
            I("s_memrealtime", S(100, 2))
            I("s_memtime", self.sStamp)
        I("s_load_dwordx8", S(4, 8), S(0, 2), 0)
        I("s_load_dwordx8", S(12, 8), S(0, 2), 32)
        I("s_load_dwordx2", S(20, 2), S(0, 2), 72)
        I("v_lshlrev_b32", V(112), 7, V(0))
        I("v_min_u32", V(112), "L_end-L_pc", V(112))
        I("global_load_dword", V(249), V(112), S(22, 2))
        I("s_getreg_b32", self.sXcc, "hwreg(HW_REG_XCC_ID)")
        I("s_and_b32", self.sXcc, self.sXcc, 15)
        I("v_lshrrev_b32", V(114), 6, V(0))
        I("v_and_b32", V(0), 63, V(0))
        I("v_readfirstlane_b32", self.sW, V(114))
        I("s_and_b32", T[0], S(2), 7)
        I("s_lshr_b32", T[1], S(2), 3)
        I("s_and_b32", self.sH, T[1], 15)
        I("s_lshr_b32", T[1], T[1], 4)
        I("s_lshl_b32", T[0], T[0], 1)
        I("s_add_u32", self.sGrp, T[0], T[1])
        I("s_and_b32", self.sC, self.sH, 7)
        I("s_lshr_b32", self.sRh, self.sH, 3)
        lane, j, g, t0, t1, t2 = V(0), V(115), V(116), V(117), V(118), V(119)
        I("v_and_b32", j, 15, lane)
        I("v_lshrrev_b32", g, 4, lane)
        I("v_lshlrev_b32", self.vL16, 4, lane)
        I("s_lshl_b32", T[0], self.sGrp, 3)
        I("s_lshl_b32", T[1], self.sRh, 2)
        I("s_add_u32", T[0], T[0], T[1])
        I("s_add_u32", T[0], T[0], self.sW)
        I("s_and_b32", T[1], T[0], 63)
        I("s_mul_i32", T[1], T[1], 16 * 1792)
        I("s_lshr_b32", T[2], self.sGrp, 3)
        I("s_mul_i32", T[2], T[2], 896)
        I("s_add_u32", T[1], T[1], T[2])
        I("s_lshl_b32", T[2], self.sC, 7)
        I("s_add_u32", self.sX0o, T[1], T[2])
        I("v_lshrrev_b32", t0, 3, lane)
        I("v_mul_u32_u24", t0, 1792, t0)
        I("v_and_b32", t1, 7, lane)
        I("v_lshl_add_u32", V(120), t1, 4, t0)
        I("v_lshrrev_b32", t0, 2, lane)
        I("v_mul_u32_u24", t1, 2688, t0)
        I("v_lshrrev_b32", t0, 3, lane)
        I("v_and_b32", t0, 2, t0)
        I("v_and_b32", t2, 3, lane)
        I("v_xor_b32", t0, t0, t2)
        I("v_lshl_add_u32", self.vQWd, t0, 4, t1)
        I("s_mul_i32", self.sQWo, self.sH, 56)
        I("s_mul_i32", T[1], self.sW, 7 * 16 * 2688)
        I("s_add_u32", self.sQWo, self.sQWo, T[1])
        a.wait(lg=0)
        self.srd(self.sX0, S(4, 2), 1835008)
        self.srd(self.sWA, S(6, 2), 1204224)
        I("s_load_dword", self.sNonce, S(20, 2), WS_E)
        skip0 = self.lab("nox0")
        I("s_cmp_eq_u32", self.sC, 7)
        I("s_cbranch_scc1", skip0)
        I("s_lshl_b32", T[1], self.sW, 11)
        I("s_add_u32", M0, T[1], L_SP)
        I("s_add_u32", T[2], self.sX0o, 8 * 1792 - 1024)
        I("buffer_load_dwordx4", V(120), self.sX0, self.sX0o, mods="offen lds", tag="x0")
        I("buffer_load_dwordx4", V(120), self.sX0, T[2], mods="offen offset:1024 lds", tag="x0")
        a.label(skip0)
        self.srd(self.sWOA, S(8, 2), 401408)
        self.srd(self.sWB, S(12, 2), 1204224)
        self.srd(self.sWP, S(14, 2), 25088)
        self.srd(self.sWOB, S(16, 2), 401408)
        self.srd(self.sOUT, S(18, 2), 1835008)
        self.srd(self.sWS, S(20, 2), WS_SIZE)
        I("s_mul_i32", T[1], S(2), 37 * 128)
        I("s_mul_i32", T[2], S(2), 13 * 128)
        I("v_lshlrev_b32", t0, 7, lane)
        I("v_mov_b32", t1, OOB)
        I("v_cmp_gt_u32", VCC, 37, lane)
        I("v_cndmask_b32", V(121), t1, t0, VCC)
        I("v_cmp_gt_u32", VCC, 13, lane)
        I("v_cndmask_b32", V(122), t1, t0, VCC)
        tl = [self.lab("touch") for _ in range(4)]
        I("s_cmp_lg_u32", self.sW, 1)
        I("s_cbranch_scc1", tl[0])
        I("buffer_load_dword", V(245), V(121), self.sWA, T[1], mods="offen")
        a.label(tl[0])
        qw = self.qw_dma_list(self.sWA, (0, 1, 2))
        order = [m * 7 + i for i in range(7) for m in range(3)]
        n1 = self.opt.get("n1", 13)
        self.qw_dma_setup()
        for k in order[:n1]: qw[k]()
        I("s_cmp_lg_u32", self.sW, 2)
        I("s_cbranch_scc1", tl[1])
        I("buffer_load_dword", V(248), V(122), self.sWOA, T[2], mods="offen")
        I("buffer_load_dword", V(247), V(122), self.sWOB, T[2], mods="offen")
        a.label(tl[1])
        I("s_cmp_lg_u32", self.sW, 3)
        I("s_cbranch_scc1", tl[2])
        I("buffer_load_dword", V(246), V(121), self.sWB, T[1], mods="offen")
        a.label(tl[2])
        I("s_cmp_lg_u32", self.sW, 0)
        I("s_cbranch_scc1", tl[3])
        I("s_mul_i32", T[1], self.sH, 1568)
        I("s_mov_b32", M0, L_WPHI)
        I("s_nop", 0)
        I("buffer_load_dwordx4", self.vL16, self.sWP, T[1], mods="offen lds")
        I("buffer_load_dwordx4", self.vL16, self.sWP, T[1], mods="offen offset:1024 lds")
        a.label(tl[3])
        self.qw_rest = [qw[k] for k in order[n1:]]

        I("s_lshl_b32", T[1], self.sGrp, 3)
        I("s_lshl_b32", T[2], self.sW, 1)
        I("s_add_u32", T[1], T[1], T[2])
        I("s_mul_i32", self.sXq, T[1], 14336)
        I("s_add_u32", self.sXq, self.sXq, WS_X)
        I("s_lshl_b32", self.sXSq, T[1], 10)
        I("s_add_u32", self.sXSq, self.sXSq, WS_XS)
        I("s_lshl_b32", self.sOq, T[1], 14)
        I("s_lshl_b32", T[2], self.sH, 10)
        I("s_add_u32", self.sOq, self.sOq, T[2])
        I("s_add_u32", self.sOq, self.sOq, WS_O)
        I("s_lshl_b32", T[3], T[1], 7)
        I("s_add_u32", T[3], T[3], WS_FX)
        I("s_mul_i32", self.sXp, T[0], 14336)
        I("s_lshl_b32", T[2], self.sC, 11)
        I("s_add_u32", self.sXp, self.sXp, T[2])
        I("s_add_u32", self.sXp, self.sXp, WS_X)
        I("s_lshl_b32", self.sXSp, T[0], 10)
        I("s_lshl_b32", T[2], self.sC, 7)
        I("s_add_u32", self.sXSp, self.sXSp, T[2])
        I("s_add_u32", self.sXSp, self.sXSp, WS_XS)
        I("s_lshl_b32", self.sOp, T[0], 14)
        I("s_add_u32", self.sOp, self.sOp, WS_O)
        I("s_lshl_b32", self.sFXp, T[0], 7)
        I("s_lshl_b32", T[2], self.sC, 2)
        I("s_add_u32", self.sFXp, self.sFXp, T[2])
        I("s_add_u32", self.sFXp, self.sFXp, WS_FX)
        I("s_lshl_b32", T[1], self.sGrp, 2)
        I("s_add_u32", T[2], T[1], self.sW)
        I("s_lshl_b32", self.sFOq, T[2], 7)
        I("s_lshl_b32", T[2], self.sH, 2)
        I("s_add_u32", self.sFOq, self.sFOq, T[2])
        I("s_add_u32", self.sFOq, self.sFOq, WS_FO)
        I("s_lshr_b32", T[2], T[0], 1)
        I("s_lshl_b32", self.sFOp, T[2], 7)
        I("s_add_u32", self.sFOp, self.sFOp, WS_FO)
        I("s_lshl_b32", self.sHX, self.sGrp, 14)
        I("s_add_u32", self.sHX, self.sHX, WS_HX)
        I("s_lshl_b32", self.sFHp, self.sGrp, 7)
        I("s_add_u32", self.sFHp, self.sFHp, WS_FH)
        I("s_and_b32", T[1], self.sGrp, 7)
        I("s_cmp_eq_u32", T[1], 0)
        I("s_cselect_b32", self.sFirst, 1, 0)
        I("s_cmp_lg_u32", T[1], 7)
        I("s_cselect_b32", T[1], 1, 0)
        I("s_and_b32", T[2], T[0], 7)
        I("s_cmp_eq_u32", T[2], 7)
        I("s_cselect_b32", self.sHaloProd, T[1], 0)
        I("s_lshl_b32", T[1], self.sH, 2)
        I("s_add_u32", T[1], T[1], self.sW)
        I("s_lshl_b32", self.sKVld, T[1], 14)
        I("s_add_u32", self.sKVld, self.sKVld, WS_KV)
        I("s_lshl_b32", T[1], self.sGrp, 10)
        I("s_add_u32", self.sKVst, self.sKVld, T[1])
        I("s_mov_b32", self.sMode, 1)
        I("s_mov_b32", self.sIt, 0)
        I("s_mov_b32", self.sPhase, 0)
        I("s_mov_b32", self.sL, 0)
        I("s_mov_b32", self.sPend, 0)
        I("s_mov_b32", self.sBudget, 400000)
        if self.opt.get("stamps"):
            I("s_mov_b32", T[7], 1)
            I("v_mov_b32", self.vStamp, 0)
            I("v_writelane_b32", self.vStamp, self.sStamp[0], 0)
            I("v_writelane_b32", self.vStamp, S(100), 62)

        r, cc = V(123), V(124)
        I("v_lshrrev_b32", r, 2, j)
        I("v_and_b32", cc, 3, j)
        I("v_lshl_add_u32", t0, g, 2, r)
        I("v_lshlrev_b32", t1, 3, cc)
        I("v_lshl_add_u32", t2, t0, 6, t1)
        I("v_and_b32", V(125), 1, g)
        I("v_lshl_add_u32", self.vQ0, V(125), 5, t2)
        I("v_xor_b32", self.vQ1, 32, self.vQ0)
        I("v_add_u32", self.vQv0, 2 * MAT, self.vQ0)
        I("v_add_u32", self.vQv1, 2 * MAT, self.vQ1)
        I("s_and_b32", T[1], self.sW, 1)
        I("s_lshl_b32", T[2], T[1], 5)
        I("v_xor_b32", self.vQh, T[2], self.vQ0)
        I("s_lshr_b32", T[2], self.sW, 1)
        I("s_add_u32", T[2], T[2], 1)
        I("s_mul_i32", T[2], T[2], MAT)
        I("v_add_u32", self.vQh, T[2], self.vQh)
        I("v_lshl_add_u32", t2, t0, 7, t1)
        I("v_add_u32", t2, L_PW, t2)
        I("v_lshrrev_b32", V(125), 1, t0)
        I("v_and_b32", V(125), 3, V(125))
        for n in range(4):
            I("v_xor_b32", V(126), n, V(125))
            I("v_lshl_add_u32", self.vP[n], V(126), 5, t2)
        I("v_lshrrev_b32", V(125), 1, t0)
        I("v_xor_b32", V(125), V(125), cc)
        I("v_and_b32", V(125), 3, V(125))
        I("v_lshlrev_b32", V(125), 4, V(125))
        I("v_lshl_add_u32", V(126), t0, 6, V(125))
        I("s_lshl_b32", T[2], self.sW, 11)
        I("s_add_u32", T[4], T[2], L_EXV)
        I("v_add_u32", self.vEXRa, T[4], V(126))
        I("s_lshr_b32", T[4], self.sW, 1)
        I("s_lshl_b32", T[4], T[4], 13)
        I("s_add_u32", T[4], T[4], L_PH)
        I("v_add_u32", self.vKA, T[4], V(126))
        I("s_lshl_b32", T[4], T[1], 3)
        I("s_add_u32", T[4], T[4], L_PH + 16384)
        I("v_add_u32", self.vKB, T[4], V(126))
        I("v_lshrrev_b32", V(125), 1, j)
        I("v_xor_b32", V(125), V(125), g)
        I("v_and_b32", V(125), 3, V(125))
        I("v_lshlrev_b32", V(125), 4, V(125))
        I("v_lshl_add_u32", V(126), j, 6, V(125))
        I("v_add_u32", self.vEXW, T[2], V(126))
        I("s_lshl_b32", T[4], self.sW, 10)
        I("v_add_u32", self.vKrd, T[4], self.vL16)
        I("v_add_u32", V(126), L_EXV, V(126))
        I("s_cmp_lt_u32", self.sW, 2)
        I("s_cselect_b64", VCC, -1, 0)
        I("v_cndmask_b32", V(126), V(126), self.vL16, VCC)
        I("s_lshl_b32", T[4], T[1], 3)
        I("v_add_u32", self.vHW, T[4], V(126))
        I("v_lshrrev_b32", t0, 3, lane)
        I("v_mul_u32_u24", t1, 896, t0)
        I("v_lshrrev_b32", t0, 3, lane)
        I("v_and_b32", t0, 6, t0)
        I("v_and_b32", t2, 7, lane)
        I("v_xor_b32", t0, t0, t2)
        I("v_lshl_add_u32", self.vPWd, t0, 4, t1)
        I("v_mov_b32", t1, OOB)
        I("v_cmp_gt_u32", VCC, 32, lane)
        I("v_cndmask_b32", self.vPWd3, t1, self.vPWd, VCC)
        I("v_cmp_gt_u32", VCC, 48, lane)
        I("v_cndmask_b32", self.vM3, 0, -1, VCC, mods="")
        I("v_cndmask_b32", self.vE0[0], 1.0, 0, VCC)
        I("v_mov_b32", self.vE0[1], 0)
        I("s_cmp_eq_u32", T[1], 1)
        I("s_cselect_b64", VCC, -1, 0)
        I("v_cndmask_b32", self.vMH, -1, self.vM3, VCC)
        I("v_lshlrev_b32", self.vStatSt, 3, j)
        I("v_lshl_add_u32", self.vStat, g, 7, self.vStatSt)
        I("v_cmp_le_u32", VCC, 8, j)
        I("v_cndmask_b32", self.vHalo, t1, self.vL16, VCC)
        I("s_cmp_eq_u32", self.sFirst, 1)
        I("s_cselect_b64", VCC, -1, 0)
        I("v_cndmask_b32", self.vHalo, self.vHalo, t1, VCC)
        I("v_cndmask_b32", self.vHaloS, self.vStat, t1, VCC)
        I("v_lshlrev_b32", self.vZ, 8, g)
        I("v_add_u32", self.vZ, L_KVX + 1024 + 12 * 16, self.vZ)
        I("v_mul_u32_u24", t0, 1792, j)
        I("v_lshl_add_u32", self.vOut, g, 3, t0)
        I("v_lshlrev_b32", self.vPollP, 2, j)
        I("v_and_b32", t0, 7, lane)
        I("v_min_u32", t0, 6, t0)
        I("v_lshlrev_b32", self.vPollH, 2, t0)
        I("v_lshrrev_b32", t2, 3, j)
        I("v_lshl_add_u32", t2, t2, 7, self.vPollH)
        I("v_add_u32", t2, T[3], t2)
        I("s_lshl_b32", T[4], self.sGrp, 7)
        I("s_add_u32", T[4], T[4], WS_HELLO)
        I("v_add_u32", t0, T[4], self.vPollP)
        I("v_and_b32", V(125), 1, g)
        I("v_cmp_eq_u32", VCC, 0, V(125))
        I("v_cndmask_b32", self.vPollQ, t0, t2, VCC)
        I("v_cndmask_b32", self.vPollM, -16, -1, VCC)
        I("v_cndmask_b32", self.vExpM, 0, 16, VCC)
        I("v_mov_b32", t0, self.sXcc)
        I("v_cndmask_b32", self.vExpC, t0, 0, VCC)
        I("v_mov_b32", V(125), f32(-1e30))
        for rr in range(4):
            I("v_lshl_add_u32", t0, g, 2, rr)
            I("v_sub_u32", t2, j, t0)
            I("v_cmp_gt_u32", VCC, 8, t2)
            I("v_cndmask_b32", self.bCur[rr], V(125), 0, VCC)
            I("v_add_u32", t2, 16, t2)
            I("v_cmp_gt_u32", VCC, 8, t2)
            I("v_cndmask_b32", self.bPrev[rr], V(125), 0, VCC)
        I("s_cmp_eq_u32", self.sW, 0)
        I("s_cselect_b32", T[2], self.sFirst, 0)
        I("s_cmp_eq_u32", T[2], 1)
        I("s_cselect_b64", VCC, -1, 0)
        for rr in range(4):
            I("v_cndmask_b32", self.bPrev0[rr], self.bPrev[rr], V(125), VCC)
        I("v_mov_b32", t0, "0x3f803f80")
        for k in range(4): I("v_accvgpr_write_b32", self.aOnes[k], t0)
        for k in (0, 1, 4, 5): I("v_accvgpr_write_b32", self.aSel[k], 0)
        I("v_and_b32", V(125), 1, j)
        I("v_lshlrev_b32", V(125), 4, V(125))
        I("v_mov_b32", t0, "0x3f80")
        I("v_lshlrev_b32", t0, V(125), t0)
        I("v_cmp_eq_u32", VCC, r, g)
        I("v_cndmask_b32", t0, 0, t0, VCC)
        I("v_cmp_gt_u32", VCC, 2, cc)
        I("v_cndmask_b32", t2, 0, t0, VCC)
        I("v_cndmask_b32", t0, t0, 0, VCC)
        I("v_accvgpr_write_b32", self.aSel[2], t2)
        I("v_accvgpr_write_b32", self.aSel[3], t0)
        a.wait(lg=0)
        I("s_add_u32", self.sNonce, self.sNonce, "0x10100")
        I("s_and_b32", self.sBase, self.sNonce, "0xffffff00")
        I("s_and_b32", self.sTag, self.sNonce, "0x3fff0000")
        I("v_or_b32", self.vExpC, self.sBase, self.vExpC)
        nh = self.lab("nohello")
        I("s_cmp_lg_u32", self.sW, 0)
        I("s_cbranch_scc1", nh)
        I("s_or_b32", T[1], self.sBase, self.sXcc)
        I("v_mov_b32", t0, T[1])
        I("s_lshl_b32", T[1], self.sH, 2)
        I("s_add_u32", T[4], T[4], T[1])
        I("s_mov_b64", EXEC, 1)
        I("buffer_store_dword", t0, OFF, self.sWS, T[4], mods="sc1")
        I("s_mov_b64", EXEC, -1)
        a.label(nh)
        self.stamp()

        I("s_cmp_eq_u32", self.sC, 7)
        I("s_cbranch_scc1", "L_pdone")
        a.forget_counters()
        a.raw(f"    s_waitcnt vmcnt({n1})")
        a.pos += 1
        I("s_lshl_b32", T[1], self.sW, 11)
        I("v_lshlrev_b32", t0, 7, j)
        I("v_lshl_add_u32", t0, g, 3, t0)
        I("v_add_u32", t0, T[1], t0)
        I("v_add_u32", t0, L_SP, t0)
        for n in range(4):
            I("ds_read_b64", V(128 + 2 * n, 2), t0, mods=f"offset:{32 * n}")
        for n in range(4):
            for p in range(2):
                I("v_lshlrev_b32", self.vR[4 * n + 2 * p], 16, V(128 + 2 * n + p))
                I("v_and_b32", self.vR[4 * n + 2 * p + 1], "0xffff0000", V(128 + 2 * n + p))
        a.flush()
        I("s_branch", "L_pepi")

    def p_stage(self):
        a, I = self.a, self.I
        T = self.sT
        a.label("L_p")
        a.forget_counters()
        I("s_barrier")
        I("s_cmp_eq_u32", self.sC, 7)
        I("s_cbranch_scc1", "L_pidle")
        def pwf(hh, n): return A(64 + ((hh & 7) * 4 + n) * 4, 4)
        def pw_read(hh):
            for n in range(4):
                I("ds_read_b64_tr_b16", pwf(hh, n)[0:2], self.vP[n], mods=f"offset:{hh * 4096}")
                I("ds_read_b64_tr_b16", pwf(hh, n)[2:4], self.vP[n], mods=f"offset:{hh * 4096 + 2048}")
        I("s_lshl_b32", T[0], self.sL, 4)
        I("s_or_b32", T[0], T[0], self.sBase)
        I("buffer_load_dword", V(112), self.vPollP, self.sWS, self.sFOp, mods="offen sc1")
        for hh in range(6): pw_read(hh)
        loop, ok = self.lab("ppoll"), self.lab("ppass")
        a.label(loop)
        a.wait(vm=0)
        I("v_cmp_ne_u32", VCC, T[0], V(112))
        I("s_cbranch_vccz", ok)
        I("buffer_load_dword", V(112), self.vPollP, self.sWS, self.sFOp, mods="offen sc1")
        self.budget_branch(loop)
        a.label(ok)
        a.vm = []
        self.stamp()
        def of(hh): return A(4 * hh, 4)
        def oload(hh):
            if hh % 4 == 0 and hh:
                I("s_add_u32", T[1], self.sOp, hh * 1024)
            so = self.sOp if hh < 4 else T[1]
            I("buffer_load_dwordx4", of(hh), self.vL16, self.sWS, so, mods=f"offen offset:{(hh % 4) * 1024} sc1")
        for hh in range(8): oload(hh)
        for hh in (6, 7): pw_read(hh)
        for hh in range(16):
            for n in range(4):
                self.mfma(self.vR[4 * n:4 * n + 4], pwf(hh, n), of(hh), self.vR[4 * n:4 * n + 4])
                if n == 0 and hh < 8: oload(hh + 8)
            if hh < 8: pw_read(hh + 8)
        a.flush()
        self.stamp()
        I("s_cmp_eq_u32", self.sL, 4)
        I("s_cbranch_scc1", "L_final")

        a.label("L_pepi")
        xo = V(112, 8)
        for k in range(8):
            I("v_cvt_pk_bf16_f32", xo[k], self.vR[2 * k], self.vR[2 * k + 1])
        I("buffer_store_dwordx4", xo[0:4], self.vL16, self.sWS, self.sXp, mods="offen", tag="st")
        I("buffer_store_dwordx4", xo[4:8], self.vL16, self.sWS, self.sXp, mods="offen offset:1024", tag="st")
        sm, sq = V(120, 2), V(122, 2)
        self.pk("v_pk_add_f32", sm, self.vR[0:2], self.vR[2:4])
        self.pk("v_pk_mul_f32", sq, self.vR[0:2], self.vR[0:2])
        self.pk("v_pk_fma_f32", sq, self.vR[2:4], self.vR[2:4], sq)
        for k in range(2, 8):
            self.pk("v_pk_add_f32", sm, sm, self.vR[2 * k:2 * k + 2])
            self.pk("v_pk_fma_f32", sq, self.vR[2 * k:2 * k + 2], self.vR[2 * k:2 * k + 2], sq)
        pr = V(124, 2)
        I("v_add_f32", pr[0], sm[0], sm[1])
        I("v_add_f32", pr[1], sq[0], sq[1])
        I("s_add_u32", self.sL, self.sL, 1)
        I("s_lshl_b32", T[0], self.sL, 4)
        I("s_or_b32", T[0], T[0], self.sBase)
        self.allreduce_pairs([("v_add_f32", pr[0], pr[1])])
        I("s_mov_b64", EXEC, "0xffff")
        I("buffer_store_dwordx2", pr, self.vStatSt, self.sWS, self.sXSp, mods="offen", tag="st")
        I("s_mov_b64", EXEC, -1)
        self.publish(self.sFXp, "st")
        I("s_cmp_eq_u32", self.sPhase, 0)
        I("s_cselect_b32", self.sPend, self.sHaloProd, 0)
        I("s_cmp_eq_u32", self.sPend, 0)
        I("s_cbranch_scc1", "L_pnext")
        I("s_lshl_b32", T[1], self.sC, 11)
        I("s_add_u32", T[1], T[1], self.sHX)
        I("s_add_u32", T[1], T[1], 16384)
        I("buffer_store_dwordx4", xo[0:4], self.vL16, self.sWS, T[1], mods="offen sc1")
        I("buffer_store_dwordx4", xo[4:8], self.vL16, self.sWS, T[1], mods="offen offset:1024 sc1")
        I("s_lshl_b32", T[1], self.sC, 7)
        I("s_add_u32", T[1], T[1], self.sHX)
        I("s_add_u32", T[1], T[1], 16384 + 14336)
        I("s_mov_b64", EXEC, "0xffff")
        I("buffer_store_dwordx2", pr, self.vStatSt, self.sWS, T[1], mods="offen sc1")
        I("s_mov_b64", EXEC, -1)
        I("s_branch", "L_pnext")
        a.label("L_pidle")
        I("s_cmp_eq_u32", self.sL, 4)
        I("s_cbranch_scc1", "L_fin2")
        a.label("L_pdone")
        I("s_add_u32", self.sL, self.sL, 1)
        a.label("L_pnext")
        a.flush()
        a.forget_counters()
        self.stamp()
        if self.opt.get("stop"):
            I("s_cmp_eq_u32", self.sL, self.opt["stop"])
            I("s_cbranch_scc1", "L_fin2")
        I("s_cmp_eq_u32", self.sPhase, 1)
        I("s_cbranch_scc1", "L_qb")

    def q_poll(self):
        a, I = self.a, self.I
        T = self.sT
        ex, t, pv = V(112), V(113), V(114)
        loop, ok, nopend, slow, again = (self.lab(x) for x in ("qpoll", "qpass", "nopend", "qslow", "qagain"))
        I("v_mad_u32_u24", ex, self.vExpM, self.sL, self.vExpC)
        a.label(loop)
        I("buffer_load_dword", pv, self.vPollQ, self.sWS, 0, mods="offen sc1")
        a.wait(vm=0)
        I("s_cmp_eq_u32", self.sPend, 0)
        I("s_cbranch_scc1", nopend)
        I("s_lshl_b32", T[1], self.sC, 2)
        I("s_add_u32", T[1], T[1], self.sFHp)
        I("s_add_u32", T[1], T[1], 128)
        I("s_lshl_b32", T[0], self.sL, 4)
        I("s_or_b32", T[0], T[0], self.sBase)
        I("v_mov_b32", self.vT, T[0])
        I("s_mov_b64", EXEC, 1)
        I("buffer_store_dword", self.vT, OFF, self.sWS, T[1], mods="sc1")
        I("s_mov_b64", EXEC, -1)
        I("s_mov_b32", self.sPend, 0)
        a.label(nopend)
        I("v_xor_b32", t, pv, ex)
        I("v_cmp_ne_u32", VCC, 0, t)
        I("s_cbranch_vccnz", slow)
        a.label(ok)
        a.vm = []

        def tail():
            b = self.a
            b.label(slow)
            b.I("s_cmp_eq_u32", self.sMode, 0)
            b.I("s_cbranch_scc1", again + "m")
            b.I("v_not_b32", V(115), self.vPollM)
            b.I("v_and_b32", V(116), t, self.vPollM)
            b.I("v_and_b32", V(115), t, V(115))
            b.I("v_cmp_ne_u32", self.sT2, 0, V(115))
            b.I("v_cmp_eq_u32", VCC, 0, V(116))
            b.nop(2)
            b.I("s_and_b64", self.sT2, self.sT2, VCC)
            b.I("s_cbranch_scc0", again)
            b.I("s_mov_b32", self.sMode, 0)
            b.I("s_add_u32", self.sFXp, self.sFXp, WS_SLOW)
            b.I("s_add_u32", self.sFOq, self.sFOq, WS_SLOW)
            b.I("s_add_u32", self.sFOp, self.sFOp, WS_SLOW)
            b.I("v_lshlrev_b32", V(115), 11, self.vExpM)
            b.I("v_add_u32", self.vPollQ, V(115), self.vPollQ)
            b.I("s_cmp_eq_u32", self.sC, 7)
            b.I("s_cbranch_scc1", again)
            b.I("buffer_wbl2", mods="sc1")
            b.raw("    s_waitcnt vmcnt(0)")
            b.I("s_or_b32", T[0], self.sBase, 16)
            b.I("v_mov_b32", self.vT, T[0])
            b.I("s_mov_b64", EXEC, 1)
            b.I("buffer_store_dword", self.vT, OFF, self.sWS, self.sFXp, mods="sc1")
            b.I("s_mov_b64", EXEC, -1)
            b.I("s_branch", again)
            b.label(again + "m")
            b.I("v_and_b32", V(116), t, self.vPollM)
            b.I("v_cmp_ne_u32", VCC, 0, V(116))
            b.I("s_cbranch_vccz", ok)
            b.label(again)
            self.budget_branch(loop)
            b.forget_counters()
        self.tail.append(tail)

    def xload(self, T, ks):
        if T == 0 and ks % 4 == 0:
            self.I("s_add_u32", self.sT[1], self.sXq, ks * 1024)
            self.I("s_add_u32", self.sT[2], self.sXq, ks * 1024 + 14336)
        self.I("buffer_load_dwordx4", self.xf(T, ks), self.vL16, self.sWS, self.sT[1 + T], mods=f"offen offset:{(ks % 4) * 1024} sc1")

    def stats_ops(self, T, layer):
        raw, st = self.straw(T), self.st(T)
        t = V(188 + 2 * T, 2)
        ops = []
        def add(*x, **k): ops.append(lambda: self.I(*x, **k))
        add("v_and_b32", raw[2], raw[2], self.vM3)
        add("v_and_b32", raw[3], raw[3], self.vM3)
        add("v_add_f32", raw[0], raw[0], raw[2])
        add("v_add_f32", raw[1], raw[1], raw[3])
        for step in range(7):
            x, y = raw[0], raw[1]
            if step in (0, 6): add("v_permlane32_swap_b32", x, y)
            elif step in (1, 4): add("v_add_f32", x, x, y)
            elif step in (2, 5): add("v_mov_b32", y, x)
            else: add("v_permlane16_swap_b32", x, y)
        add("v_mul_f32", st[0], f32(-1.0 / 448), raw[0])
        add("v_mul_f32", t[0], f32(1.0 / 448), raw[1])
        ops.append(lambda: self.fma_negsq(t[0], st[0]))
        add("v_max_f32", t[0], 0, t[0])
        add("v_add_f32", t[0], f32(1e-5), t[0])
        add("v_rsq_f32", st[1], t[0])
        add("v_and_b32", st[2], st[1], self.vMH if T == 2 else self.vM3)
        if T < 2:
            add("v_mul_f32", st[3], f32(LOG2E * (28 ** -0.5 if layer == "A" else 1.0)), st[1])
        return ops

    def fma_negsq(self, acc, x):
        class Neg:
            def __init__(s, r): s.r = r
            def __str__(s): return "-" + str(s.r)
            def regs(s): return s.r.regs()
        self.I("v_fma_f32", acc, Neg(x), x, acc)

    def colsum(self, dst, with_halo):
        a, I = self.a, self.I
        T = self.sT
        ad0, ad1 = V(188), V(189)
        d0, d1 = V(192, 4), V(196, 4)
        I("s_and_b32", T[0], self.sW, 1)
        I("s_lshl_b32", T[0], T[0], 5)
        I("v_xor_b32", ad0, T[0], self.vQ0)
        I("v_add_u32", ad1, 2 * MAT, ad0)
        I("s_lshr_b32", T[0], self.sW, 1)
        I("s_mul_i32", T[0], T[0], MAT)
        I("v_add_u32", ad0, T[0], ad0)
        def rd(ks):
            for q, ad in enumerate((ad0, ad1)):
                w = self.wf((ks % 3) * 2 + q)
                I("ds_read_b64_tr_b16", w[0:2], ad, mods=f"offset:{ks * 2048}")
                I("ds_read_b64_tr_b16", w[2:4], ad, mods=f"offset:{ks * 2048 + 1024}")
        for ks in range(3): rd(ks)
        for ks in range(14):
            self.mfma(d0, self.wf((ks % 3) * 2), self.aOnes, 0 if ks == 0 else d0)
            self.mfma(d1, self.wf((ks % 3) * 2 + 1), self.aOnes, 0 if ks == 0 else d1)
            if ks + 3 < 14: rd(ks + 3)
        I("v_lshrrev_b32", ad0, 8, self.vL16)
        I("v_lshlrev_b32", ad0, 4, ad0)
        I("v_add_u32", ad0, L_CS, ad0)
        I("s_lshl_b32", T[0], self.sW, 6)
        I("v_add_u32", ad1, T[0], ad0)
        I("s_and_b32", T[0], self.sW, 1)
        I("s_lshl_b32", T[0], T[0], 6)
        I("v_add_u32", V(190), T[0], ad0)
        I("s_mov_b32", self.sT2[0], "0x00010001")
        I("s_mov_b32", self.sT2[1], "0x00010001")
        a.flush()
        I("s_mov_b64", EXEC, self.sT2)
        I("ds_write_b128", ad1, d0)
        I("ds_write_b128", V(190), d1, mods="offset:256")
        I("s_mov_b64", EXEC, -1)
        a.wait(lg=0)
        I("s_barrier")
        for ft in range(6):
            I("ds_read_b128", dst[4 * ft:4 * ft + 4], ad0, mods=f"offset:{64 * ft}")
        if with_halo:
            I("ds_read_b128", self.vCH, ad1, mods="offset:128")
        a.wait(lg=0)

    def wphi_gather(self):
        a, I = self.a, self.I
        j, g, f1, ad, t = V(188), V(189), V(190), V(191), V(200)
        I("v_lshrrev_b32", g, 8, self.vL16)
        I("v_lshrrev_b32", j, 2, self.vPollP)
        I("v_lshrrev_b32", t, 2, j)
        I("v_sub_u32", f1, j, t)
        I("v_add_u32", f1, 16, f1)
        I("v_mul_u32_u24", ad, 4 * 56, g)
        I("v_add_u32", ad, L_WPHI, ad)
        I("v_lshl_add_u32", f1, f1, 1, ad)
        I("v_lshl_add_u32", ad, j, 1, ad)
        I("v_and_b32", t, 3, j)
        I("v_cmp_ne_u32", VCC, 3, t)
        I("v_cndmask_b32", t, 0, -1, VCC)
        I("v_and_b32", j, t, self.vM3)
        for oft, base in enumerate((ad, f1)):
            for e in range(8):
                d = e if e < 4 else 16 + e - 4
                I("ds_read_u16", V(204 + e), base, mods=f"offset:{d * 56}")
            for p in range(4):
                I("v_lshl_or_b32", V(204 + 2 * p), V(205 + 2 * p), 16, V(204 + 2 * p))
                m = (None, self.vM3)[p >> 1] if oft == 0 else (t, j)[p >> 1]
                if m is not None: I("v_and_b32", V(204 + 2 * p), V(204 + 2 * p), m)
                I("v_accvgpr_write_b32", self.aWphi[4 * oft + p], V(204 + 2 * p))

    def q_gemm(self, layer):
        a, I = self.a, self.I
        T = self.sT
        isA = layer == "A"
        LOOK = 4
        for t in range(2):
            I("buffer_load_dwordx2", self.straw(t)[0:2], self.vStat, self.sWS, self.sXSq, mods=f"offen offset:{t * 1024} sc1")
            I("buffer_load_dwordx2", self.straw(t)[2:4], self.vStat, self.sWS, self.sXSq, mods=f"offen offset:{t * 1024 + 512} sc1")
        for ks in range(LOOK):
            for t in range(2): self.xload(t, ks)
        I("s_barrier")
        once = self.lab("once")
        I("s_cmp_lg_u32", self.sIt, 0)
        I("s_cbranch_scc1", once)
        nvm = len(a.vm)
        self.colsum(self.cA if isA else self.cB, isA)
        if not isA: self.wphi_gather()
        a.wait_lg_all()
        a.flush()
        assert nvm == len(a.vm)
        a.label(once)
        for ft in range(6): self.qw_read(self.wf(ft), ft, 0)
        self.pw_dma_setup()

        fill = {ks: [] for ks in range(14)}
        for ks in range(14 - LOOK):
            for t in range(2): fill[ks].append(lambda t=t, ks=ks: self.xload(t, ks + LOOK))
        s0, s1 = self.stats_ops(0, layer), self.stats_ops(1, layer)
        inter = [x for p in zip(s0, s1) for x in p]
        for i, f in enumerate(inter): fill[1 + i // 10].append(f)
        pw = self.pw_dma_list(self.sWOA if isA else self.sWOB)
        HK0, HCHK, HM0 = 3, 6, 7
        hm = {}
        if isA:
            def hload(k):
                if k % 4 == 0: I("s_add_u32", T[0], self.sHX, k * 1024)
                I("buffer_load_dwordx4", self.hx(k), self.vHalo, self.sWS, T[0], mods=f"offen offset:{(k % 4) * 1024} sc1")
            def hstat():
                I("s_add_u32", self.sT2[0], self.sHX, 14336)
                I("buffer_load_dwordx2", self.straw(2)[0:2], self.vHaloS, self.sWS, self.sT2[0], mods="offen sc1")
                I("buffer_load_dwordx2", self.straw(2)[2:4], self.vHaloS, self.sWS, self.sT2[0], mods="offen offset:512 sc1")
            fill[HK0].append(lambda: I("buffer_load_dword", V(194), self.vPollH, self.sWS, self.sFHp, mods="offen sc1"))
            fill[HK0].append(hstat)
            for k in range(14): fill[HK0 + k // 2].append(lambda k=k: hload(k))
            issued = 2 * (HCHK - HK0)
            def hcheck():
                slow, back = self.lab("hslow"), self.lab("hback")
                I("s_lshl_b32", self.sT2[1], self.sL, 4)
                I("s_or_b32", self.sT2[1], self.sT2[1], self.sBase)
                I("v_cmp_ne_u32", VCC, self.sT2[1], V(194))
                I("s_cbranch_vccnz", slow)
                a.label(back)
                def tail():
                    b = self.a
                    loop = self.lab("hloop")
                    b.label(slow)
                    b.I("s_cmp_eq_u32", self.sFirst, 1)
                    b.I("s_cbranch_scc1", back)
                    b.label(loop)
                    b.I("s_sub_u32", self.sBudget, self.sBudget, 1)
                    b.I("s_cbranch_scc1", "L_end")
                    b.I("buffer_load_dword", V(194), self.vPollH, self.sWS, self.sFHp, mods="offen sc1")
                    b.raw("    s_waitcnt vmcnt(0)")
                    b.forget_counters()
                    b.I("v_cmp_ne_u32", VCC, self.sT2[1], V(194))
                    b.I("s_cbranch_vccnz", loop)
                    hstat()
                    for k in range(issued): hload(k)
                    b.raw("    s_waitcnt vmcnt(0)")
                    b.forget_counters()
                    b.I("s_branch", back)
                self.tail.append(tail)
            fill[HCHK].insert(0, hcheck)
            for i, f in enumerate(self.stats_ops(2, layer)): fill[HCHK + 1 + i // 8].append(f)
            for k in range(14): hm.setdefault(HM0 + k // 2, []).append(k)
            for i, f in enumerate(pw): fill[10 + i // 4].append(f)
        else:
            for i, f in enumerate(pw): fill[8 + (i * 6) // 16].append(f)

        def hread(k):
            w = self.wf(6 + (k & 1))
            I("ds_read_b64_tr_b16", w[0:2], self.vQh, mods=f"offset:{k * 2048}")
            I("ds_read_b64_tr_b16", w[2:4], self.vQh, mods=f"offset:{k * 2048 + 1024}")

        for ks in range(14):
            q = list(fill[ks])
            per = -(-len(q) // 6)
            if ks + 1 in hm and ks not in hm:
                for k in hm[ks + 1]: hread(k)
            for ft in range(6):
                for t in range(2):
                    self.mfma(self.acc(t, ft), self.wf(ft), self.xf(t, ks), 0 if ks == 0 else self.acc(t, ft))
                if ks < 13: self.qw_read(self.wf(ft), ft, ks + 1)
                for f in q[:per]: f()
                q = q[per:]
                if ks in hm and ft in (1, 4):
                    k = hm[ks][ft // 3]
                    self.mfma(self.hacc, self.wf(6 + (k & 1)), self.hx(k), 0 if k == 0 else self.hacc)
                    if k + 2 < 14: hread(k + 2)
                if ks == 13 and ft == 1:
                    a.wait(lg=0)
                    I("s_barrier")

    def ln(self, acc, c, st, scale):
        for p in range(2):
            self.pk("v_pk_fma_f32", acc[2 * p:2 * p + 2], c[2 * p:2 * p + 2], st[0:2], acc[2 * p:2 * p + 2], by=0)
        if scale == "r":
            for p in range(2): self.pk("v_pk_mul_f32", acc[2 * p:2 * p + 2], acc[2 * p:2 * p + 2], st[0:2], by=1)
        elif scale == "m":
            for p in range(2): self.pk("v_pk_mul_f32", acc[2 * p:2 * p + 2], acc[2 * p:2 * p + 2], st[2:4], by=0)
        elif scale == "e":
            self.pk("v_pk_fma_f32", acc[0:2], acc[0:2], st[2:4], self.vE0, by=0)
            self.pk("v_pk_mul_f32", acc[2:4], acc[2:4], st[2:4], by=0)

    def cvt(self, dst, src):
        for p in range(src.cnt // 2):
            self.I("v_cvt_pk_bf16_f32", dst[p], src[2 * p], src[2 * p + 1])

    def conv(self, dst, T, mat, c, scales):
        for f in range(2):
            ft = 2 * mat + f
            self.ln(self.acc(T, ft), c[4 * ft:4 * ft + 4], self.st(T), scales[f])
        for f in range(2):
            self.cvt(dst[2 * f:2 * f + 2], self.acc(T, 2 * mat + f))

    def o_store_publish(self, of, dma):
        a, I = self.a, self.I
        T = self.sT
        I("s_add_u32", T[1], self.sOq, 16384)
        I("buffer_store_dwordx4", of[0], self.vL16, self.sWS, self.sOq, mods="offen", tag="st")
        I("buffer_store_dwordx4", of[1], self.vL16, self.sWS, T[1], mods="offen", tag="st")
        I("s_lshl_b32", T[0], self.sL, 4)
        I("s_or_b32", T[0], T[0], self.sBase)
        self.publish(self.sFOq, "st")
        self.stamp()
        for f in dma: f()

    def qa_stage(self):
        a, I = self.a, self.I
        a.label("L_qa")
        first = self.lab("qarest")
        I("s_cmp_lg_u32", self.sIt, 0)
        I("s_cbranch_scc1", first)
        self.qw_dma_setup()
        for f in self.qw_rest: f()
        a.label(first)
        self.q_poll()
        self.stamp()
        self.q_gemm("A")
        self.stamp()
        kf = [V(196, 4), V(200, 4)]
        qf = [V(204, 4), V(208, 4)]
        vp = [V(212, 4), V(216, 4)]
        hp = V(220, 2)
        self.qw_dma_setup()
        dk = self.qw_dma_list(self.sWB, (1,))
        self.conv(kf[1], 1, 1, self.cA, ("r", "m"))
        I("ds_write_b128", self.vKrd, kf[1], mods=f"offset:{L_EXK + 1024}")
        self.conv(vp[0], 0, 2, self.cA, ("r", "r"))
        I("ds_write_b128", self.vEXW, vp[0], mods=f"offset:{L_EXV + 1024}")
        self.conv(vp[1], 1, 2, self.cA, ("r", "r"))
        I("ds_write_b128", self.vEXW, vp[1], mods=f"offset:{L_EXV + 2048}")
        self.ln(self.hacc, self.vCH, self.st(2), "m")
        self.cvt(hp, self.hacc)
        I("ds_write_b64", self.vHW, hp)
        self.conv(qf[0], 0, 0, self.cA, (None, None))
        a.wait(lg=0)
        I("s_barrier")
        kprev = V(222, 4)
        vt = [V(226, 6), V(232, 6)]
        I("ds_read_b128", kprev, self.vKrd, mods=f"offset:{L_EXK}")
        for f in range(2):
            for i in range(3):
                I("ds_read_b64_tr_b16", vt[f][2 * i:2 * i + 2], self.vEXRa, mods=f"offset:{1024 * i + 8 * f}")
        self.conv(kf[0], 0, 1, self.cA, ("r", "m"))
        self.conv(qf[1], 1, 0, self.cA, (None, None))
        s = [V(112, 8), V(120, 8)]
        self.mfma(s[0][4:8], kf[0], qf[0], self.bCur)
        self.mfma(s[1][0:4], kf[0], qf[1], self.bPrev)
        self.mfma(s[1][4:8], kf[1], qf[1], self.bCur)
        self.mfma(s[0][0:4], kprev, qf[0], self.bPrev0)
        for f in dk[:3]: f()
        m = V(128, 2)
        for t in (1, 0):
            I("v_max3_f32", m[t], s[t][4], s[t][5], s[t][6])
            I("v_max3_f32", m[t], m[t], s[t][7], s[t][0])
            I("v_max3_f32", m[t], m[t], s[t][1], s[t][2])
            I("v_max_f32", m[t], m[t], s[t][3])
        self.allreduce_pairs([("v_max_f32", m[0], m[1])])
        nm = [V(130, 2), V(132, 2)]
        for t in range(2):
            I("v_mul_f32", nm[t][0], m[t], self.st(t)[3])
        for t in range(2):
            for p in range(4):
                self.I("v_pk_fma_f32", s[t][2 * p:2 * p + 2], s[t][2 * p:2 * p + 2], self.st(t)[2:4], nm[t],
                       mods="op_sel:[0,1,0] op_sel_hi:[1,1,0] neg_lo:[0,0,1] neg_hi:[0,0,1]")
        pf = [V(136, 4), V(140, 4)]
        for t in range(2):
            for k in range(8): I("v_exp_f32", s[t][k], s[t][k])
        for t in range(2): self.cvt(pf[t], s[t])
        o = [V(144, 8), V(152, 8)]
        sm = [V(160, 4), V(164, 4)]
        for t in range(2):
            self.mfma(sm[t], self.aOnes, pf[t], 0)
            for f in range(2):
                self.mfma(o[t][4 * f:4 * f + 4], vt[f][2 * t:2 * t + 4], pf[t], 0)
        for f in dk[3:]: f()
        of = [V(168, 4), V(172, 4)]
        for t in range(2): I("v_rcp_f32", sm[t][0], sm[t][0])
        for t in range(2):
            for p in range(4): self.pk("v_pk_mul_f32", o[t][2 * p:2 * p + 2], o[t][2 * p:2 * p + 2], sm[t][0:2], by=0)
            self.cvt(of[t], o[t])
        self.o_store_publish(of, self.qw_dma_list(self.sWB, (2,)))
        I("s_mov_b32", self.sPhase, 1)
        a.flush()
        I("s_branch", "L_p")

    def phi(self, src, dst, extra=()):
        a, I = self.a, self.I
        extra = list(extra)
        p = [V(112, 8), V(120, 8)]
        for t in range(2):
            for oft in range(2):
                self.mfma(p[t][4 * oft:4 * oft + 4], self.aWphi[4 * oft:4 * oft + 4], src[t], 0)
        for f in extra[:2]: f()
        mx, mn = V(128, 2), V(130, 2)
        for k in range(3):
            for t in range(2):
                if k == 0:
                    I("v_max3_f32", mx[t], p[t][0], p[t][1], p[t][2])
                    I("v_min3_f32", mn[t], p[t][0], p[t][1], p[t][2])
                else:
                    I("v_max3_f32", mx[t], mx[t], p[t][2 * k + 1], p[t][2 * k + 2])
                    I("v_min3_f32", mn[t], mn[t], p[t][2 * k + 1], p[t][2 * k + 2])
        kk = [V(132, 2), V(134, 2)]
        bb = [V(136, 2), V(138, 2)]
        for t in range(2):
            I("v_mov_b32", kk[t][0], self.st(t)[3])
            I("v_sub_f32", kk[t][1], 0, self.st(t)[3])
        self.allreduce_pairs([("v_max_f32", mx[0], mx[1]), ("v_min_f32", mn[0], mn[1])])
        for t in range(2):
            I("v_mul_f32", bb[t][0], mx[t], kk[t][1])
            I("v_mul_f32", bb[t][1], mn[t], kk[t][0])
        e = [V(140, 14), V(154, 14)]
        rest = extra[2:]
        for i in range(7):
            for t in range(2):
                self.pk("v_pk_fma_f32", e[t][2 * i:2 * i + 2], p[t][(i & ~1):(i & ~1) + 2], kk[t], bb[t], bx=i & 1)
        for i in range(14):
            for t in range(2): I("v_exp_f32", e[t][i], e[t][i])
            if rest: rest.pop(0)()
        sm = [V(128, 2), V(130, 2)]
        for t in range(2): self.pk("v_pk_add_f32", sm[t], e[t][0:2], e[t][2:4])
        for i in range(2, 7):
            for t in range(2): self.pk("v_pk_add_f32", sm[t], sm[t], e[t][2 * i:2 * i + 2])
        self.allreduce_pairs([("v_add_f32", sm[0][0], sm[0][1]), ("v_add_f32", sm[1][0], sm[1][1])])
        for t in range(2):
            for k in range(2): I("v_rcp_f32", sm[t][k], sm[t][k])
        for t in range(2):
            for i in range(7): self.pk("v_pk_mul_f32", e[t][2 * i:2 * i + 2], e[t][2 * i:2 * i + 2], sm[t])
            for s in range(2):
                for q in range(4):
                    I("v_cvt_pk_bf16_f32", dst[t][s][q], e[t][4 * q + s], e[t][4 * q + 2 + s] if q < 3 else 0)
            if callable(getattr(self, "_phi_done", None)): self._phi_done(t)
        for f in rest: f()

    def qb_stage(self):
        a, I = self.a, self.I
        T = self.sT
        a.label("L_qb")
        self.qw_dma_setup()
        for f in self.qw_dma_list(self.sWB, (0,)): f()
        self.q_poll()
        self.stamp()
        self.q_gemm("B")
        self.stamp()
        kf = [V(196, 4), V(200, 4)]
        qf = [V(204, 4), V(208, 4)]
        vp = [V(212, 4), V(216, 4)]
        for t in range(2): self.conv(kf[t], t, 1, self.cB, (None, None))
        for t in range(2): self.conv(qf[t], t, 0, self.cB, (None, None))
        for t in range(2):
            self.conv(vp[t], t, 2, self.cB, ("r", "e"))
        exw = V(220)
        I("v_add_u32", exw, L_PH, self.vEXW)
        for t in range(2): I("ds_write_b128", exw, vp[t], mods=f"offset:{16384 + 1024 * t}")
        ph = [[V(168, 4), V(172, 4)], [V(224, 4), V(228, 4)]]
        def done(t):
            for s in range(2): I("ds_write_b128", exw, ph[t][s], mods=f"offset:{8192 * s + 1024 * t}")
        self._phi_done = done
        self.phi(kf, ph)
        self._phi_done = None
        a.wait(lg=0)
        I("s_barrier")
        kacc = V(112, 8)
        def fa(k, oft): return A(8 * (k * 2 + oft) // 2, 4)
        def fb(k): return A(40 + 4 * k, 4)
        for k in range(4):
            for t in range(2):
                I("ds_read_b64_tr_b16", fb(k)[2 * t:2 * t + 2], self.vKB, mods=f"offset:{(2 * k + t) * 1024}")
            for oft in range(2):
                for t in range(2):
                    I("ds_read_b64_tr_b16", fa(k, oft)[2 * t:2 * t + 2], self.vKA, mods=f"offset:{(2 * k + t) * 1024 + 8 * oft}")
        for k in range(4):
            for oft in range(2):
                self.mfma(kacc[4 * oft:4 * oft + 4], fa(k, oft), fb(k), 0 if k == 0 else kacc[4 * oft:4 * oft + 4])
        kvp = V(120, 4)
        self.cvt(kvp, kacc)
        I("v_and_b32", kvp[3], "0xffff", kvp[3])
        I("v_or_b32", kvp[3], self.sTag, kvp[3])
        I("buffer_store_dwordx4", kvp, self.vL16, self.sWS, self.sKVst, mods="offen sc1")
        self.stamp()
        self.qw_dma_setup()
        phq = [[V(168, 4), V(172, 4)], [V(224, 4), V(228, 4)]]
        self.phi(qf, phq, extra=self.qw_dma_list(self.sWA, (0, 1)))
        self.stamp()
        def gf(p): return V(112 + 4 * p, 4) if p < 14 else V(232 + 4 * (p - 14), 4)
        red = V(240, 8)
        lo, hi = V(248), V(249)
        loop, ok = self.lab("gather"), self.lab("gpass")
        a.flush()
        a.label(loop)
        def gload(p):
            if p % 4 == 0: I("s_add_u32", T[1], self.sKVld, p * 1024)
            I("buffer_load_dwordx4", gf(p), self.vL16, self.sWS, T[1], mods=f"offen offset:{(p % 4) * 1024} sc1")
        for p in range(10): gload(p)
        for p in range(16):
            self.mfma(red[0:4], self.aSel[2:6], gf(p), 0 if p == 0 else red[0:4])
            self.mfma(red[4:8], self.aSel[0:4], gf(p), 0 if p == 0 else red[4:8])
            if p + 10 < 16: gload(p + 10)
            if p == 1:
                I("v_min_u32", lo, gf(0)[3], gf(1)[3])
                I("v_max_u32", hi, gf(0)[3], gf(1)[3])
            elif p & 1:
                I("v_min3_u32", lo, lo, gf(p - 1)[3], gf(p)[3])
                I("v_max3_u32", hi, hi, gf(p - 1)[3], gf(p)[3])
        I("v_xor_b32", lo, self.sTag, lo)
        I("v_xor_b32", hi, self.sTag, hi)
        I("v_or_b32", lo, lo, hi)
        I("v_cmp_lt_u32", VCC, "0xffff", lo)
        I("s_cbranch_vccz", ok)
        a.flush()
        self.budget_branch(loop)
        a.label(ok)
        self.stamp()
        kvs = V(112, 4)
        self.cvt(kvs, red)
        I("v_add_u32", exw, L_KVX, self.vKrd)
        I("ds_write_b128", exw, kvs)
        I("v_add_u32", V(221), L_KVX, self.vL16)
        a.wait(lg=0)
        I("s_barrier")
        kvf = [[A(0, 4), A(4, 4)], [A(8, 4), A(12, 4)]]
        zf = [A(16, 4), A(20, 4)]
        for s in range(2):
            I("ds_read_b128", zf[s], self.vZ, mods=f"offset:{2048 * s}")
            for dt in range(2):
                I("ds_read_b128", kvf[s][dt], V(221), mods=f"offset:{(2 * s + dt) * 1024}")
        o = [V(144, 8), V(152, 8)]
        dn = [V(160, 4), V(164, 4)]
        for s in range(2):
            for t in range(2):
                self.mfma(dn[t], zf[s], phq[t][s], 0 if s == 0 else dn[t])
                for dt in range(2):
                    self.mfma(o[t][4 * dt:4 * dt + 4], kvf[s][dt], phq[t][s], 0 if s == 0 else o[t][4 * dt:4 * dt + 4])
        of = [V(116, 4), V(120, 4)]
        for t in range(2): I("v_add_f32", dn[t][0], f32(1e-6), dn[t][0])
        for t in range(2): I("v_rcp_f32", dn[t][0], dn[t][0])
        for t in range(2):
            for p in range(4): self.pk("v_pk_mul_f32", o[t][2 * p:2 * p + 2], o[t][2 * p:2 * p + 2], dn[t][0:2], by=0)
            self.cvt(of[t], o[t])
        self.o_store_publish(of, self.qw_dma_list(self.sWA, (2,)))
        I("s_mov_b32", self.sPhase, 0)
        I("s_add_u32", self.sIt, self.sIt, 1)
        I("s_add_u32", self.sKVst, self.sKVst, 0x100000)
        I("s_add_u32", self.sKVld, self.sKVld, 0x100000)
        I("s_add_u32", self.sHX, self.sHX, 0x40000)
        a.flush()
        I("s_branch", "L_p")

    def final(self):
        a, I = self.a, self.I
        T = self.sT
        a.label("L_final")
        a.forget_counters()
        xo = V(112, 8)
        for k in range(8):
            I("v_cvt_pk_bf16_f32", xo[k], self.vR[2 * k], self.vR[2 * k + 1])
        for n in range(4):
            I("buffer_store_dwordx2", xo[2 * n:2 * n + 2], self.vOut, self.sOUT, self.sX0o, mods=f"offen offset:{32 * n}")
        a.label("L_fin2")
        self.stamp()
        if self.opt.get("stamps"):
            I("s_mov_b32", T[7], 63)
            self.stamp(real=True)
            I("s_lshl_b32", T[0], S(2), 2)
            I("s_add_u32", T[0], T[0], self.sW)
            I("s_lshl_b32", T[0], T[0], 8)
            I("s_add_u32", T[0], T[0], WS_STAMP)
            I("v_lshrrev_b32", V(120), 2, self.vL16)
            I("buffer_store_dword", self.vStamp, V(120), self.sWS, T[0], mods="offen")
        I("s_or_b32", T[0], S(2), self.sW)
        I("s_cmp_lg_u32", T[0], 0)
        I("s_cbranch_scc1", "L_end")
        if self.opt.get("dbg"):
            I("s_load_dwordx2", S(4, 2), S(0, 2), 64)
            a.wait(lg=0)
            self.srd(S(8, 4), S(4, 2), 256)
            I("v_lshrrev_b32", V(120), 2, self.vL16)
            I("v_readlane_b32", T[0], self.vStamp, 0)
            I("v_readlane_b32", T[1], self.vStamp, 62)
            I("v_readlane_b32", T[2], self.vStamp, 63)
            I("s_sub_u32", T[1], T[2], T[1])
            I("v_subrev_u32", V(121), T[0], self.vStamp)
            I("v_writelane_b32", V(121), T[1], 0)
            I("v_writelane_b32", V(121), self.sNonce, 15)
            I("v_readlane_b32", T[0], V(121), 32)
            I("v_writelane_b32", V(121), T[0], 14)
            I("buffer_store_dword", V(121), V(120), S(8, 4), 0, mods="offen")
        I("v_mov_b32", V(120), self.sNonce)
        I("s_mov_b64", EXEC, 1)
        I("buffer_store_dword", V(120), OFF, self.sWS, 0)
        I("s_endpgm")

    def build(self):
        a = self.a
        self.prologue()
        self.p_stage()
        self.qa_stage()
        self.qb_stage()
        self.final()
        done = 0
        while done < len(self.tail):
            a.forget_counters()
            self.tail[done]()
            done += 1
        a.label("L_end")
        a.I("s_endpgm")
        head = open("cdna_kernels/" + NAME[:-7] + ".s.ref").read().split("; Override launch")[0]
        out = head + f"; @launch grid=(256,1,1) block=(256,1,1) lds={LDS_BYTES}\n"
        out += f'.amdgcn_target "amdgcn-amd-amdhsa--gfx950"\n.text\n.globl {NAME}\n.p2align 8\n.type {NAME},@function\n{NAME}:\n'
        out += a.text()
        out += f""".section .rodata,"a"
.p2align 6
.amdhsa_kernel {NAME}
  .amdhsa_next_free_vgpr 512
  .amdhsa_next_free_sgpr 102
  .amdhsa_accum_offset 256
  .amdhsa_group_segment_fixed_size 0
  .amdhsa_kernarg_size 80
  .amdhsa_user_sgpr_count 2
  .amdhsa_user_sgpr_kernarg_segment_ptr 1
  .amdhsa_system_sgpr_workgroup_id_x 1
.end_amdhsa_kernel
"""
        return out


if __name__ == "__main__":
    opt = {}
    path = sys.argv[1]
    for kv in sys.argv[2:]:
        k, v = kv.split("=")
        opt[k] = int(v)
    g = Gen(opt)
    open(path, "w").write(g.build())
    import subprocess
    r = subprocess.run(["clang", "-x", "assembler", "-target", "amdgcn-amd-amdhsa", "-mcpu=gfx950", "-c", path, "-o", "gen_check.o"], capture_output=True, text=True)
    if r.returncode: print(r.stderr[:3000]); sys.exit(1)
    sz = subprocess.run(["llvm-readelf", "-S", "gen_check.o"], capture_output=True, text=True).stdout
    print("text bytes", [int(l.split()[6], 16) for l in sz.splitlines() if " .text" in l])
    print("instructions", sum(g.a.count.values()), "nop states", g.a.nops)
```

```python
class Reg:
    def __init__(self, kind, n, cnt=1):
        self.kind, self.n, self.cnt = kind, n, cnt
        if kind in "va" and cnt > 1:
            assert n % 2 == 0, f"odd tuple {kind}{n}x{cnt}"
        if kind == "s" and cnt == 2:
            assert n % 2 == 0
        if kind == "s" and cnt >= 4:
            assert n % 4 == 0
        assert n + cnt <= (102 if kind == "s" else 256), f"{kind}{n}+{cnt}"

    def __str__(self):
        return f"{self.kind}{self.n}" if self.cnt == 1 else f"{self.kind}[{self.n}:{self.n + self.cnt - 1}]"

    def regs(self):
        return [(self.kind, self.n + i) for i in range(self.cnt)]

    def __getitem__(self, k):
        if isinstance(k, slice):
            a = k.start or 0
            b = self.cnt if k.stop is None else k.stop
            assert 0 <= a < b <= self.cnt
            return Reg(self.kind, self.n + a, b - a)
        assert 0 <= k < self.cnt
        return Reg(self.kind, self.n + k, 1)


def V(n, c=1): return Reg("v", n, c)
def A(n, c=1): return Reg("a", n, c)
def S(n, c=1): return Reg("s", n, c)


class Special:
    def __init__(self, name, regs): self.name, self._r = name, regs
    def __str__(self): return self.name
    def regs(self): return self._r


VCC = Special("vcc", [("s", "vcc")])
EXEC = Special("exec", [("s", "exec")])
M0 = Special("m0", [("s", "m0")])
OFF = Special("off", [])

TRANS = ("v_exp_", "v_log_", "v_rcp_", "v_rsq_", "v_sqrt_", "v_sin_", "v_cos_")
NODEF_S = ("s_cmp", "s_waitcnt", "s_barrier", "s_branch", "s_cbranch", "s_nop", "s_endpgm", "s_setprio", "s_sleep", "s_bitcmp")


def regs_of(x):
    return x.regs() if hasattr(x, "regs") else []


class Asm:
    def __init__(self):
        self.lines = []
        self.pos = 0
        self.w_valu = {}
        self.w_trans = {}
        self.w_mfma = {}
        self.r_mfmac = {}
        self.w_vsgpr = {}
        self.w_m0 = -99
        self.r_store = {}
        self.vm = []
        self.lg = []
        self.smem = set()
        self.nops = 0
        self.count = {}

    def raw(self, text):
        self.lines.append(text)

    def comment(self, text):
        self.lines.append("    ; " + text)

    def _out(self, text, states=1):
        self.lines.append("    " + text)
        self.pos += states

    def nop(self, n):
        while n > 0:
            k = min(n, 16)
            self._out(f"s_nop {k - 1}", k)
            self.nops += k
            n -= k

    def wait(self, vm=None, lg=None):
        parts = []
        if vm is not None:
            assert vm <= 63
            parts.append(f"vmcnt({vm})")
            self.vm = self.vm[len(self.vm) - vm:] if vm > 0 else []
        if lg is not None:
            lg = min(lg, 15)
            parts.append(f"lgkmcnt({lg})")
            if lg == 0:
                self.smem = set()
            self.lg = self.lg[len(self.lg) - lg:] if lg > 0 else []
        self._out("s_waitcnt " + " ".join(parts))

    def wait_vm_tag(self, tag):
        idx = [i for i, (t, _) in enumerate(self.vm) if t == tag]
        if idx:
            self.wait(vm=len(self.vm) - 1 - idx[-1])

    def wait_lg_all(self):
        if self.lg or self.smem:
            self.wait(lg=0)

    def prewait(self, *operands):
        n = len(self.lines)
        r = []
        for o in operands: r += regs_of(o)
        self._need_waits(r)
        return len(self.lines) != n

    def _need_waits(self, touched):
        t = set(touched)
        vm = lg = None
        for i in range(len(self.vm) - 1, -1, -1):
            if self.vm[i][1] & t:
                vm = len(self.vm) - 1 - i
                break
        if self.smem & t:
            lg = 0
        else:
            for i in range(len(self.lg) - 1, -1, -1):
                if self.lg[i][1] & t:
                    lg = 0 if self.smem else len(self.lg) - 1 - i
                    break
        if vm is not None or lg is not None:
            self.wait(vm, lg)

    def flush(self):
        need = 0
        for d, n in ((self.w_valu, 2), (self.w_trans, 1), (self.r_mfmac, 3), (self.w_vsgpr, 5), (self.r_store, 2)):
            for p in d.values():
                need = max(need, n - (self.pos - p - 1))
        for p, _ in self.w_mfma.values():
            need = max(need, 8 - (self.pos - p - 1))
        need = max(need, 1 - (self.pos - self.w_m0 - 1))
        if need > 0:
            self.nop(need)

    def label(self, name):
        self.lines.append(name + ":")

    def forget_counters(self):
        self.vm, self.lg, self.smem = [], [], set()

    def I(self, op, *ops, mods="", tag=None, untracked=False):
        self.count[op] = self.count.get(op, 0) + 1
        defs, uses, ab, cc = [], [], [], []
        is_v = op.startswith("v_")
        is_mfma = op.startswith("v_mfma")
        is_valu = is_v and not is_mfma
        is_buf = op.startswith("buffer_") or op.startswith("global_")
        is_ds = op.startswith("ds_")
        lds_dma = is_buf and " lds" in (" " + mods)
        is_load = (is_buf and "_load" in op and not lds_dma) or (is_ds and "_read" in op)
        is_smem = op.startswith("s_load") or op.startswith("s_memtime") or op.startswith("s_memrealtime")
        if is_mfma:
            defs = regs_of(ops[0]); ab = regs_of(ops[1]) + regs_of(ops[2]); cc = regs_of(ops[3]); uses = ab + cc
        elif "permlane" in op:
            defs = regs_of(ops[0]) + regs_of(ops[1]); uses = list(defs)
        elif is_valu:
            defs = regs_of(ops[0])
            for o in ops[1:]: uses += regs_of(o)
            if op.startswith(("v_fmac", "v_dot2c", "v_pk_fmac")): uses += defs
        elif is_load:
            defs = regs_of(ops[0])
            for o in ops[1:]: uses += regs_of(o)
        elif is_buf or is_ds:
            for o in ops: uses += regs_of(o)
            if lds_dma: uses += [("s", "m0")]
        elif op.startswith(NODEF_S):
            for o in ops: uses += regs_of(o)
        else:
            defs = regs_of(ops[0])
            for o in ops[1:]: uses += regs_of(o)

        self._need_waits(defs + uses)

        need = 0
        def req(p, n):
            nonlocal need
            need = max(need, n - (self.pos - p - 1))
        dtuple = tuple(defs)
        for r in uses:
            if r in self.w_valu:
                p = self.w_valu[r]
                if is_mfma or "permlane" in op or "dpp" in op or "dpp" in mods or "row_" in mods: req(p, 2)
                if op.startswith(("v_readfirstlane", "v_readlane")): req(p, 1)
            if r in self.w_trans and is_v: req(self.w_trans[r], 1)
            if r in self.w_mfma:
                p, d = self.w_mfma[r]
                if is_mfma:
                    if r in ab: req(p, 8)
                    elif tuple(cc) != d: req(p, 6)
                else:
                    req(p, 8)
            if r in self.w_vsgpr:
                p = self.w_vsgpr[r]
                if is_v: req(p, 2)
                elif is_buf: req(p, 5)
                else: req(p, 1)
            if r == ("s", "m0") and lds_dma: req(self.w_m0, 1)
        for r in defs:
            if r in self.w_mfma and not is_mfma: req(self.w_mfma[r][0], 8)
            if r in self.w_mfma and is_mfma and self.w_mfma[r][1] != tuple(cc): req(self.w_mfma[r][0], 6)
            if r in self.r_mfmac and is_valu: req(self.r_mfmac[r], 3)
            if r in self.r_store: req(self.r_store[r], 2 if is_valu else 1)
        if need > 0:
            self.nop(need)

        if is_buf:
            assert len(self.vm) < 63, "vmcnt overflow"
        if is_ds and len(self.lg) >= 15:
            self.wait(lg=0 if self.smem else 14)

        p = self.pos
        text = op + (" " + ", ".join(str(o) for o in ops) if ops else "") + (" " + mods if mods else "")
        self._out(text)

        for r in defs:
            for d in (self.w_valu, self.w_trans, self.w_mfma, self.w_vsgpr):
                d.pop(r, None)
        if is_mfma:
            for r in defs: self.w_mfma[r] = (p, dtuple)
            for r in cc: self.r_mfmac[r] = p
        elif is_valu:
            for r in defs:
                if r[0] == "s": self.w_vsgpr[r] = p
                else:
                    self.w_valu[r] = p
                    if op.startswith(TRANS): self.w_trans[r] = p
        if ("s", "m0") in defs and not is_v: self.w_m0 = p
        if is_buf:
            if not untracked: self.vm.append((tag, set(defs)))
            if "_store" in op and ("x3" in op or "x4" in op):
                data = ops[0] if op.startswith("buffer_") else ops[1]
                for r in regs_of(data): self.r_store[r] = p
        if is_ds: self.lg.append((tag, set(defs)))
        if is_smem: self.smem |= set(defs)

    def text(self):
        return "\n".join(self.lines) + "\n"
```

```python
import sys
import math
import struct
from emit import Asm, V, A, S, VCC, EXEC, M0, OFF

NAME = "interleave_layers__sliding_local_dilated__linear_kernel_hedgehog__prompt_kernel"


def f32(x):
    return "0x%08x" % struct.unpack("<I", struct.pack("<f", x))[0]


WS_E = 0x0
WS_FX = 0x1000
WS_FO = 0x5000
WS_SLOW = 0x8000
WS_FH = 0x10000
WS_HELLO = 0x11000
WS_FWF = 0x12000
WS_STAMP = 0x20000
WS_X = 0x100000
WS_XS = 0x2C0000
WS_O = 0x300000
WS_KV = 0x500000
WS_HX = 0x700000
WS_FW = 0x800000
FW_T = 16 * 86016
WS_SIZE = 0xB00000
OOB = 0x7FFF0000

MAT = 28672
L_PW = 86016
L_SP = 151552
L_KVX = L_SP
L_WPHI = L_SP + 8192
L_CS = L_SP + 10240
L_EXK = 0
L_EXV = 8192
L_PH = 2 * MAT
LDS_BYTES = 163840

LOG2E = math.log2(math.e)


class Neg:
    def __init__(self, r): self.r = r
    def __str__(self): return "-" + str(self.r)
    def regs(self): return self.r.regs()


class Gen:
    def __init__(self, opt):
        self.opt = opt
        self.a = Asm()
        self.tail = []
        self.uid = 0

    def lab(self, base):
        self.uid += 1
        return f"L_{base}_{self.uid}"

    sX0, sWA, sWOA, sWB, sWOB, sOUT, sWS, sWP = (S(24 + 4 * i, 4) for i in range(8))
    (sGrp, sH, sW, sC, sRh, sBase, sTag, sMode, sIt, sPhase, sL, sBudget, sXq, sXSq, sOq, sXp, sXSp, sOp, sFXp, sFOq,
     sFOp, sHX, sHaloProd, sFHp, sKVst, sKVld, sQWo, sFirst, sPend, sX0o, sNonce, sXcc) = (S(56 + i) for i in range(32))
    sT = [S(88 + i) for i in range(8)]
    sT2 = S(96, 2)
    sStamp = S(98, 2)
    sFW, sQWl, sPWl, sPWo = S(4), S(5), S(6), S(7)

    vL16, vQ0, vQ1, vQv0, vQv1, vQh = (V(1 + i) for i in range(6))
    vP = [V(7 + i) for i in range(4)]
    vQWd, vX0d, vExpHC, vPollQ, vPollM, vPollP, vEXW, vEXRa, vHW, vM3, vStat = (V(11 + i) for i in range(11))
    vE0 = V(22, 2)
    vHalo, vHaloS, vStatSt, vZ, vExpHM, vExpC, vExpM, vMH = (V(24 + i) for i in range(8))
    vCH = V(32, 4)
    bCur, bPrev, bPrev0 = V(36, 4), V(40, 4), V(44, 4)
    vR = V(48, 16)
    cA, cB = V(64, 24), V(88, 24)
    vDummy = V(245)
    vPWd = [V(246 + i) for i in range(4)]
    vKA, vKB, vPollH, vKrd, vStamp = (V(250 + i) for i in range(5))
    vT = V(255)

    aOnes, aSel, aWphi = A(232, 4), A(236, 6), A(242, 8)

    def acc(self, T, ft): return V(112 + (T * 6 + ft) * 4, 4)
    hacc = V(160, 4)
    def straw(self, T): return V(164 + 4 * T, 4)
    def st(self, T): return V(176 + 4 * T, 4)
    def xf(self, T, ks): return A((ks * 2 + T) * 4, 4)
    def hx(self, ks): return A(112 + 4 * ks, 4)
    def wf(self, f): return A(168 + 4 * f, 4)

    def I(self, *x, **k): self.a.I(*x, **k)

    def stamp(self, real=False):
        if not self.opt.get("stamps"):
            return
        a = self.a
        a.I("s_memrealtime" if real else "s_memtime", self.sStamp)
        a.I("s_mov_b32", M0, self.sT[7])
        a.wait(lg=0)
        a.I("v_writelane_b32", self.vStamp, self.sStamp[0], M0)
        a.I("s_add_u32", self.sT[7], self.sT[7], 1)
        if getattr(self, "fine_pending", False):
            self.fine_pending = False
            for i in range(7): a.I("v_writelane_b32", self.vStamp, S(8 + 2 * i), 40 + i)
            a.I("v_writelane_b32", self.vStamp, self.sStamp[0], 47)

    def srd(self, dst, src, nbytes):
        self.I("s_mov_b32", dst[0], src[0])
        self.I("s_and_b32", dst[1], src[1], "0xffff")
        self.I("s_mov_b32", dst[2], nbytes)
        self.I("s_mov_b32", dst[3], "0x20000")

    def mfma(self, d, x, y, c):
        self.I("v_mfma_f32_16x16x32_bf16", d, x, y, c)

    def pk(self, op, d, x, y, z=None, bx=None, by=None, bz=None):
        srcs = [(x, bx), (y, by)] + ([(z, bz)] if z is not None else [])
        lo = [0 if b is None else b for _, b in srcs]
        hi = [1 if b is None else b for _, b in srcs]
        mods = []
        if any(lo): mods.append("op_sel:[%s]" % ",".join(map(str, lo)))
        if not all(hi): mods.append("op_sel_hi:[%s]" % ",".join(map(str, hi)))
        self.I(op, d, *[s for s, _ in srcs], mods=" ".join(mods))

    def allreduce_pairs(self, chains):
        for step in range(7):
            for op, x, y in chains:
                if step in (0, 6): self.I("v_permlane32_swap_b32", x, y)
                elif step in (1, 4): self.I(op, x, x, y)
                elif step in (2, 5): self.I("v_mov_b32", y, x)
                else: self.I("v_permlane16_swap_b32", x, y)

    def budget_branch(self, loop):
        self.I("s_sub_u32", self.sBudget, self.sBudget, 1)
        self.I("s_cbranch_scc1", "L_end")
        self.I("s_branch", loop)

    def flag_value(self, dst):
        self.I("s_lshl_b32", dst, self.sL, 4)
        self.I("s_or_b32", dst, dst, self.sBase)

    def publish(self, soff):
        a = self.a
        slow, done = self.lab("pubslow"), self.lab("pubdone")
        a.I("s_cmp_eq_u32", self.sMode, 0)
        a.I("s_cbranch_scc1", slow)
        a.I("s_mov_b64", EXEC, 1)
        a.I("buffer_store_dword", self.vT, OFF, self.sWS, soff)
        a.label(done)
        a.I("s_mov_b64", EXEC, -1)

        def tail():
            b = self.a
            b.label(slow)
            b.I("buffer_wbl2", mods="sc1")
            b.wait(vm=0)
            b.I("s_mov_b64", EXEC, 1)
            b.I("buffer_store_dword", self.vT, OFF, self.sWS, soff, mods="sc1")
            b.I("s_branch", done)
        self.tail.append(tail)

    def sched(self, mfmas, streams):
        a = self.a
        streams = [list(s) for s in streams]
        for i, m in enumerate(mfmas):
            self.mfma(*m)
            scalar_free = True
            if i + 1 < len(mfmas):
                n = mfmas[i + 1]
                if a.prewait(n[1], n[2]): scalar_free = False
            if scalar_free:
                for s in streams:
                    if s and s[0][0] <= i and s[0][1] == "s":
                        s.pop(0)[2]()
                        break
            slots = 2
            progress = True
            while slots > 0 and progress:
                progress = False
                for s in streams:
                    if not s or s[0][0] > i: continue
                    cost = 2 if s[0][1] == "w" else 1
                    if cost <= slots:
                        s.pop(0)[2]()
                        slots -= cost
                        progress = True
                        break
        return [it[2] for s in streams for it in s]

    def fw_dma(self, typ, mats):
        out = []
        for mat in mats:
            for i in range(7):
                if i % 4 == 0:
                    out.append(("s", lambda mat=mat, i=i: self.I("s_add_u32", M0, self.sQWl, mat * MAT + i * 1024)))
                    out.append(("s", lambda mat=mat, i=i: self.I("s_add_u32", self.sT[6], self.sFW, typ * FW_T + mat * MAT + i * 1024)))
                out.append(("v", lambda i=i: self.I("buffer_load_dwordx4", self.vL16, self.sWS, self.sT[6], mods=f"offen offset:{(i % 4) * 1024} lds")))
        return out

    def pw_dma(self, srd):
        out = []
        for hh in range(4):
            out.append(("s", lambda hh=hh: self.I("s_add_u32", M0, self.sPWl, hh * 4096)))
            out.append(("s", lambda hh=hh: self.I("s_add_u32", self.sT[5], self.sPWo, 28 * hh * 896)))
            for b in range(4):
                out.append(("v", lambda b=b: self.I("buffer_load_dwordx4", self.vPWd[b], srd, self.sT[5], mods=f"offen offset:{b * 1024} lds")))
        return out

    def raw_block(self, ks):
        for half in range(2):
            self.I("s_add_u32", M0, self.sT[4], ks * 2048 + half * 1024)
            self.I("s_add_u32", self.sT[6], self.sQWo, (32 * ks + 16 * half) * 2688)
            self.I("buffer_load_dwordx4", self.vQWd, self.sWA, self.sT[6], mods="offen lds", tag=f"raw{ks}")

    def tr_pair(self, dst, base, off):
        return [lambda: self.I("ds_read_b64_tr_b16", dst[0:2], base, mods=f"offset:{off}"),
                lambda: self.I("ds_read_b64_tr_b16", dst[2:4], base, mods=f"offset:{off + 1024}")]

    def qw_read(self, dst, ft, ks):
        base = (self.vQ0, self.vQ1, self.vQ0, self.vQ1, self.vQv0, self.vQv1)[ft]
        return self.tr_pair(dst, base, (MAT if ft in (2, 3) else 0) + ks * 2048)

    def prologue(self):
        a, I = self.a, self.I
        T = self.sT
        N1 = self.opt.get("n1", 4)
        assert N1 >= 3
        I("s_cmp_ge_u32", S(2), 256)
        I("s_cbranch_scc1", "L_end")
        I("s_getpc_b64", S(22, 2))
        a.label("L_pc")
        if self.opt.get("stamps"):
            I("s_memrealtime", S(100, 2))
            I("s_memtime", self.sStamp)
        I("s_load_dwordx8", S(4, 8), S(0, 2), 0)
        I("s_load_dwordx8", S(12, 8), S(0, 2), 32)
        I("s_load_dwordx2", S(20, 2), S(0, 2), 72)
        I("v_lshlrev_b32", V(112), 7, V(0))
        I("v_min_u32", V(112), "L_end-L_pc", V(112))
        I("global_load_dword", self.vDummy, V(112), S(22, 2), untracked=True)
        I("v_lshrrev_b32", V(114), 6, V(0))
        I("v_and_b32", V(0), 63, V(0))
        I("v_readfirstlane_b32", self.sW, V(114))
        I("s_and_b32", T[0], S(2), 7)
        I("s_lshr_b32", T[1], S(2), 3)
        I("s_and_b32", self.sH, T[1], 15)
        I("s_lshr_b32", T[1], T[1], 4)
        I("s_lshl_b32", T[0], T[0], 1)
        I("s_add_u32", self.sGrp, T[0], T[1])
        I("s_and_b32", self.sC, self.sH, 7)
        I("s_lshr_b32", self.sRh, self.sH, 3)
        lane, j, g, t0, t1, t2 = V(0), V(115), V(116), V(117), V(118), V(119)
        I("v_and_b32", j, 15, lane)
        I("v_lshrrev_b32", g, 4, lane)
        I("v_lshlrev_b32", self.vL16, 4, lane)
        I("s_lshl_b32", T[0], self.sGrp, 3)
        I("s_lshl_b32", T[1], self.sRh, 2)
        I("s_add_u32", T[0], T[0], T[1])
        I("s_add_u32", T[0], T[0], self.sW)
        I("s_and_b32", T[1], T[0], 63)
        I("s_mul_i32", T[1], T[1], 16 * 1792)
        I("s_lshr_b32", T[2], self.sGrp, 3)
        I("s_mul_i32", T[2], T[2], 896)
        I("s_add_u32", T[1], T[1], T[2])
        I("s_lshl_b32", T[2], self.sC, 7)
        I("s_add_u32", self.sX0o, T[1], T[2])
        I("v_lshrrev_b32", t0, 3, lane)
        I("v_mul_u32_u24", t0, 1792, t0)
        I("v_and_b32", t1, 7, lane)
        I("v_lshl_add_u32", self.vX0d, t1, 4, t0)
        I("v_lshrrev_b32", t0, 2, lane)
        I("v_mul_u32_u24", t1, 2688, t0)
        I("v_lshrrev_b32", t0, 3, lane)
        I("v_and_b32", t0, 2, t0)
        I("v_and_b32", t2, 3, lane)
        I("v_xor_b32", t0, t0, t2)
        I("v_lshl_add_u32", self.vQWd, t0, 4, t1)
        I("s_mul_i32", self.sQWo, self.sH, 56)
        I("s_mul_i32", T[1], self.sW, 896)
        I("s_add_u32", self.sQWo, self.sQWo, T[1])
        I("s_mul_i32", T[4], self.sW, MAT)
        I("s_lshl_b32", T[1], self.sW, 11)
        I("s_add_u32", M0, T[1], L_SP)
        I("s_add_u32", T[2], self.sX0o, 8 * 1792 - 1024)
        I("s_mul_i32", T[3], S(2), 37 * 128)
        I("s_mul_i32", T[5], S(2), 13 * 128)
        I("v_lshlrev_b32", t0, 7, lane)
        I("v_mov_b32", t1, OOB)
        I("v_cmp_gt_u32", VCC, 37, lane)
        I("v_cndmask_b32", V(121), t1, t0, VCC)
        I("v_cmp_gt_u32", VCC, 13, lane)
        I("v_cndmask_b32", V(122), t1, t0, VCC)
        I("s_mov_b32", self.sX0[2], 1835008)
        I("s_mov_b32", self.sX0[3], "0x20000")
        I("s_mov_b32", self.sWA[2], 1204224)
        I("s_mov_b32", self.sWA[3], "0x20000")
        a.wait(lg=0)
        I("s_load_dword", self.sNonce, S(20, 2), WS_E)
        I("s_mov_b32", self.sX0[0], S(4))
        I("s_and_b32", self.sX0[1], S(5), "0xffff")
        I("s_mov_b32", self.sWA[0], S(6))
        I("s_and_b32", self.sWA[1], S(7), "0xffff")
        skip0, w3a, w3b, w3c, w3d = (self.lab(x) for x in ("nox0", "w3a", "w3b", "w3c", "w3d"))
        I("s_cmp_eq_u32", self.sC, 7)
        I("s_cbranch_scc1", skip0)
        I("buffer_load_dwordx4", self.vX0d, self.sX0, self.sX0o, mods="offen lds")
        I("buffer_load_dwordx4", self.vX0d, self.sX0, T[2], mods="offen offset:1024 lds")
        a.label(skip0)
        I("s_cmp_eq_u32", self.sW, 3)
        I("s_cbranch_scc1", w3a)
        for ks in range(N1): self.raw_block(ks)
        I("s_branch", w3b)
        a.label(w3a)
        I("buffer_load_dword", self.vDummy, V(121), self.sWA, T[3], mods="offen", untracked=True)
        a.label(w3b)
        self.srd(self.sWB, S(12, 2), 1204224)
        self.srd(self.sWP, S(14, 2), 25088)
        self.srd(self.sWOA, S(8, 2), 401408)
        self.srd(self.sWOB, S(16, 2), 401408)
        self.srd(self.sOUT, S(18, 2), 1835008)
        self.srd(self.sWS, S(20, 2), WS_SIZE)
        I("s_cmp_lg_u32", self.sW, 3)
        I("s_cbranch_scc1", w3c)
        I("buffer_load_dword", self.vDummy, V(122), self.sWOA, T[5], mods="offen", untracked=True)
        I("buffer_load_dword", self.vDummy, V(121), self.sWB, T[3], mods="offen", untracked=True)
        I("buffer_load_dword", self.vDummy, V(122), self.sWOB, T[5], mods="offen", untracked=True)
        I("s_mul_i32", T[1], self.sH, 1568)
        I("s_mov_b32", M0, L_WPHI)
        I("s_mul_i32", T[2], self.sH, 56)
        I("buffer_load_dwordx4", self.vL16, self.sWP, T[1], mods="offen lds")
        I("buffer_load_dwordx4", self.vL16, self.sWP, T[1], mods="offen offset:1024 lds")
        I("s_cmp_ge_u32", self.sGrp, 14)
        I("s_cbranch_scc1", w3c)
        I("s_mul_i32", T[1], self.sGrp, 32 * 2688)
        I("s_add_u32", T[2], T[2], T[1])
        for typ in (1, 0):
            for mat in range(3):
                for half in range(2):
                    k = (typ * 3 + mat) * 2 + half
                    I("s_add_u32", T[1], T[2], mat * 896 + half * 16 * 2688)
                    I("buffer_load_dwordx4", V(128 + 4 * k, 4), self.vQWd, self.sWB if typ else self.sWA, T[1], mods="offen", untracked=True)
        a.label(w3c)
        a.forget_counters()
        a.smem = {("s", self.sNonce.n)}

        I("s_getreg_b32", self.sXcc, "hwreg(HW_REG_XCC_ID)")
        I("s_and_b32", self.sXcc, self.sXcc, 15)
        I("s_lshl_b32", T[1], self.sGrp, 3)
        I("s_lshl_b32", T[2], self.sW, 1)
        I("s_add_u32", T[1], T[1], T[2])
        I("s_mul_i32", self.sXq, T[1], 14336)
        I("s_add_u32", self.sXq, self.sXq, WS_X)
        I("s_lshl_b32", self.sXSq, T[1], 10)
        I("s_add_u32", self.sXSq, self.sXSq, WS_XS)
        I("s_lshl_b32", self.sOq, T[1], 14)
        I("s_lshl_b32", T[2], self.sH, 10)
        I("s_add_u32", self.sOq, self.sOq, T[2])
        I("s_add_u32", self.sOq, self.sOq, WS_O)
        I("s_lshl_b32", T[3], T[1], 7)
        I("s_add_u32", T[3], T[3], WS_FX)
        I("s_mul_i32", self.sXp, T[0], 14336)
        I("s_lshl_b32", T[2], self.sC, 11)
        I("s_add_u32", self.sXp, self.sXp, T[2])
        I("s_add_u32", self.sXp, self.sXp, WS_X)
        I("s_lshl_b32", self.sXSp, T[0], 10)
        I("s_lshl_b32", T[2], self.sC, 7)
        I("s_add_u32", self.sXSp, self.sXSp, T[2])
        I("s_add_u32", self.sXSp, self.sXSp, WS_XS)
        I("s_lshl_b32", self.sOp, T[0], 14)
        I("s_add_u32", self.sOp, self.sOp, WS_O)
        I("s_lshl_b32", self.sFXp, T[0], 7)
        I("s_lshl_b32", T[2], self.sC, 2)
        I("s_add_u32", self.sFXp, self.sFXp, T[2])
        I("s_add_u32", self.sFXp, self.sFXp, WS_FX)
        I("s_lshl_b32", T[1], self.sGrp, 2)
        I("s_add_u32", T[2], T[1], self.sW)
        I("s_lshl_b32", self.sFOq, T[2], 7)
        I("s_lshl_b32", T[2], self.sH, 2)
        I("s_add_u32", self.sFOq, self.sFOq, T[2])
        I("s_add_u32", self.sFOq, self.sFOq, WS_FO)
        I("s_lshr_b32", T[2], T[0], 1)
        I("s_lshl_b32", self.sFOp, T[2], 7)
        I("s_add_u32", self.sFOp, self.sFOp, WS_FO)
        I("s_lshl_b32", self.sHX, self.sGrp, 14)
        I("s_add_u32", self.sHX, self.sHX, WS_HX)
        I("s_lshl_b32", self.sFHp, self.sGrp, 7)
        I("s_add_u32", self.sFHp, self.sFHp, WS_FH)
        I("s_and_b32", T[1], self.sGrp, 7)
        I("s_cmp_eq_u32", T[1], 0)
        I("s_cselect_b32", self.sFirst, 1, 0)
        I("s_cmp_lg_u32", T[1], 7)
        I("s_cselect_b32", T[1], 1, 0)
        I("s_and_b32", T[2], T[0], 7)
        I("s_cmp_eq_u32", T[2], 7)
        I("s_cselect_b32", self.sHaloProd, T[1], 0)
        I("s_lshl_b32", T[1], self.sH, 2)
        I("s_add_u32", T[1], T[1], self.sW)
        I("s_lshl_b32", self.sKVld, T[1], 14)
        I("s_add_u32", self.sKVld, self.sKVld, WS_KV)
        I("s_lshl_b32", T[1], self.sGrp, 10)
        I("s_add_u32", self.sKVst, self.sKVld, T[1])
        I("s_mul_i32", self.sQWl, self.sW, 7168)
        I("s_mul_i32", self.sFW, self.sH, 86016)
        I("s_add_u32", self.sFW, self.sFW, self.sQWl)
        I("s_add_u32", self.sFW, self.sFW, WS_FW)
        I("s_lshl_b32", self.sPWl, self.sW, 14)
        I("s_add_u32", self.sPWl, self.sPWl, L_PW)
        I("s_mul_i32", self.sPWo, self.sW, 4 * 28 * 896)
        I("s_min_u32", T[1], self.sC, 6)
        I("s_lshl_b32", T[1], T[1], 7)
        I("s_add_u32", self.sPWo, self.sPWo, T[1])
        I("s_mov_b32", self.sMode, 1)
        I("s_mov_b32", self.sIt, 0)
        I("s_mov_b32", self.sPhase, 0)
        I("s_mov_b32", self.sL, 0)
        I("s_mov_b32", self.sPend, 0)
        I("s_mov_b32", self.sBudget, 400000)
        if self.opt.get("stamps"):
            I("s_mov_b32", T[7], 1)
            I("v_mov_b32", self.vStamp, 0)
            I("v_writelane_b32", self.vStamp, self.sStamp[0], 0)
            I("v_writelane_b32", self.vStamp, S(100), 62)

        if self.opt.get("touch", 1):
            u, vv = V(123), V(124)
            I("v_and_b32", u, 7, lane)
            I("v_lshlrev_b32", u, 7, u)
            I("s_cmp_eq_u32", self.sC, 7)
            I("s_cselect_b32", T[5], OOB, self.sXp)
            I("s_cselect_b32", T[6], OOB, self.sXSp)
            I("v_lshl_add_u32", t0, lane, 7, T[5])
            I("s_add_u32", T[1], self.sOq, 16384)
            I("s_add_u32", T[2], self.sKVst, 0x100000)
            for lo, base in ((16, self.sOq), (24, T[1]), (32, self.sKVst), (40, T[2]), (48, T[6])):
                I("v_add_u32", vv, base, u)
                I("v_cmp_le_u32", VCC, lo, lane)
                I("v_cndmask_b32", t0, t0, vv, VCC)
            I("v_cmp_lt_u32", VCC, 48, lane)
            I("v_mov_b32", vv, OOB)
            I("v_cndmask_b32", t0, t0, vv, VCC)
            I("buffer_load_dword", self.vDummy, t0, self.sWS, 0, mods="offen", untracked=True)

        r, cc = V(123), V(124)
        I("v_lshrrev_b32", r, 2, j)
        I("v_and_b32", cc, 3, j)
        I("v_lshl_add_u32", t0, g, 2, r)
        I("v_lshlrev_b32", t1, 3, cc)
        I("v_lshl_add_u32", t2, t0, 6, t1)
        I("v_and_b32", V(125), 1, g)
        I("v_lshl_add_u32", self.vQ0, V(125), 5, t2)
        I("v_xor_b32", self.vQ1, 32, self.vQ0)
        I("v_add_u32", self.vQv0, 2 * MAT, self.vQ0)
        I("v_add_u32", self.vQv1, 2 * MAT, self.vQ1)
        I("s_and_b32", T[1], self.sW, 1)
        I("s_lshl_b32", T[2], T[1], 5)
        I("v_xor_b32", self.vQh, T[2], self.vQ0)
        I("s_lshr_b32", T[2], self.sW, 1)
        I("s_add_u32", T[2], T[2], 1)
        I("s_mul_i32", T[2], T[2], MAT)
        I("v_add_u32", self.vQh, T[2], self.vQh)
        I("v_lshl_add_u32", t2, t0, 7, t1)
        I("v_add_u32", t2, L_PW, t2)
        I("v_lshrrev_b32", V(125), 1, t0)
        I("v_and_b32", V(125), 3, V(125))
        for n in range(4):
            I("v_xor_b32", V(126), n, V(125))
            I("v_lshl_add_u32", self.vP[n], V(126), 5, t2)
        I("v_lshrrev_b32", V(125), 1, t0)
        I("v_xor_b32", V(125), V(125), cc)
        I("v_and_b32", V(125), 3, V(125))
        I("v_lshlrev_b32", V(125), 4, V(125))
        I("v_lshl_add_u32", V(126), t0, 6, V(125))
        I("s_lshl_b32", T[2], self.sW, 11)
        I("s_add_u32", T[5], T[2], L_EXV)
        I("v_add_u32", self.vEXRa, T[5], V(126))
        I("s_lshr_b32", T[5], self.sW, 1)
        I("s_lshl_b32", T[5], T[5], 13)
        I("s_add_u32", T[5], T[5], L_PH)
        I("v_add_u32", self.vKA, T[5], V(126))
        I("s_lshl_b32", T[5], T[1], 3)
        I("s_add_u32", T[5], T[5], L_PH + 16384)
        I("v_add_u32", self.vKB, T[5], V(126))
        I("v_lshrrev_b32", V(125), 1, j)
        I("v_xor_b32", V(125), V(125), g)
        I("v_and_b32", V(125), 3, V(125))
        I("v_lshlrev_b32", V(125), 4, V(125))
        I("v_lshl_add_u32", V(126), j, 6, V(125))
        I("v_add_u32", self.vEXW, T[2], V(126))
        I("s_lshl_b32", T[5], self.sW, 10)
        I("v_add_u32", self.vKrd, T[5], self.vL16)
        I("v_add_u32", V(126), L_EXV, V(126))
        I("s_cmp_lt_u32", self.sW, 2)
        I("s_cselect_b64", VCC, -1, 0)
        I("v_cndmask_b32", V(126), V(126), self.vL16, VCC)
        I("s_lshl_b32", T[5], T[1], 3)
        I("v_add_u32", self.vHW, T[5], V(126))
        I("v_lshrrev_b32", t0, 3, lane)
        I("v_mul_u32_u24", t1, 896, t0)
        I("v_and_b32", t0, 6, t0)
        I("v_and_b32", t2, 7, lane)
        I("v_xor_b32", t0, t0, t2)
        I("v_lshl_add_u32", self.vPWd[0], t0, 4, t1)
        for b in range(1, 4):
            I("v_add_u32", self.vPWd[b], b * (8 * 896 - 1024), self.vPWd[0])
        I("v_mov_b32", t1, OOB)
        I("v_cmp_gt_u32", VCC, 32, lane)
        I("v_cndmask_b32", self.vPWd[3], t1, self.vPWd[3], VCC)
        I("v_cmp_gt_u32", VCC, 48, lane)
        I("v_cndmask_b32", self.vM3, 0, -1, VCC)
        I("v_cndmask_b32", self.vE0[0], 1.0, 0, VCC)
        I("v_mov_b32", self.vE0[1], 0)
        I("s_cmp_eq_u32", T[1], 1)
        I("s_cselect_b64", VCC, -1, 0)
        I("v_cndmask_b32", self.vMH, -1, self.vM3, VCC)
        I("v_lshlrev_b32", self.vStatSt, 3, j)
        I("v_lshl_add_u32", self.vStat, g, 7, self.vStatSt)
        I("v_cmp_le_u32", VCC, 8, j)
        I("v_cndmask_b32", self.vHalo, t1, self.vL16, VCC)
        I("s_cmp_eq_u32", self.sFirst, 1)
        I("s_cselect_b64", VCC, -1, 0)
        I("v_cndmask_b32", self.vHalo, self.vHalo, t1, VCC)
        I("v_cndmask_b32", self.vHaloS, self.vStat, t1, VCC)
        I("v_lshlrev_b32", self.vZ, 8, g)
        I("v_add_u32", self.vZ, L_KVX + 1024 + 12 * 16, self.vZ)
        I("v_lshlrev_b32", self.vPollP, 2, j)
        I("v_and_b32", t0, 7, lane)
        I("v_min_u32", t0, 6, t0)
        I("v_lshlrev_b32", V(127), 2, t0)
        I("v_min_u32", t0, 13, j)
        I("v_lshlrev_b32", t0, 2, t0)
        I("v_lshrrev_b32", t2, 1, g)
        I("v_xor_b32", t2, 1, t2)
        I("v_lshl_add_u32", t0, t2, 11, t0)
        I("s_lshl_b32", T[5], self.sH, 7)
        I("s_add_u32", T[5], T[5], WS_FWF)
        I("v_add_u32", t0, T[5], t0)
        I("v_add_u32", t2, self.sFHp, V(127))
        I("s_cmp_eq_u32", self.sFirst, 1)
        I("s_cselect_b32", T[5], 0, 16)
        I("v_cmp_gt_u32", VCC, T[5], lane)
        I("v_cndmask_b32", self.vPollH, t0, t2, VCC)
        I("v_cndmask_b32", self.vExpHM, 0, 16, VCC)
        I("v_cndmask_b32", self.vExpHC, 16, 0, VCC)
        I("v_lshrrev_b32", t2, 3, j)
        I("v_lshl_add_u32", t2, t2, 7, V(127))
        I("v_add_u32", t2, T[3], t2)
        I("s_lshl_b32", T[5], self.sGrp, 7)
        I("s_add_u32", T[5], T[5], WS_HELLO)
        I("v_add_u32", t0, T[5], self.vPollP)
        I("v_and_b32", V(125), 1, g)
        I("v_cmp_eq_u32", VCC, 0, V(125))
        I("v_cndmask_b32", self.vPollQ, t0, t2, VCC)
        I("v_cndmask_b32", self.vPollM, -16, -1, VCC)
        I("v_cndmask_b32", self.vExpM, 0, 16, VCC)
        I("v_mov_b32", t0, self.sXcc)
        I("v_cndmask_b32", self.vExpC, t0, 0, VCC)
        I("v_mov_b32", V(125), f32(-1e30))
        for rr in range(4):
            I("v_lshl_add_u32", t0, g, 2, rr)
            I("v_sub_u32", t2, j, t0)
            I("v_cmp_gt_u32", VCC, 8, t2)
            I("v_cndmask_b32", self.bCur[rr], V(125), 0, VCC)
            I("v_add_u32", t2, 16, t2)
            I("v_cmp_gt_u32", VCC, 8, t2)
            I("v_cndmask_b32", self.bPrev[rr], V(125), 0, VCC)
        I("s_cmp_eq_u32", self.sW, 0)
        I("s_cselect_b32", T[2], self.sFirst, 0)
        I("s_cmp_eq_u32", T[2], 1)
        I("s_cselect_b64", VCC, -1, 0)
        for rr in range(4):
            I("v_cndmask_b32", self.bPrev0[rr], self.bPrev[rr], V(125), VCC)
        I("v_mov_b32", t0, "0x3f803f80")
        for k in range(4): I("v_accvgpr_write_b32", self.aOnes[k], t0)
        for k in (0, 1, 4, 5): I("v_accvgpr_write_b32", self.aSel[k], 0)
        I("v_and_b32", V(125), 1, j)
        I("v_lshlrev_b32", V(125), 4, V(125))
        I("v_mov_b32", t0, "0x3f80")
        I("v_lshlrev_b32", t0, V(125), t0)
        I("v_cmp_eq_u32", VCC, r, g)
        I("v_cndmask_b32", t0, 0, t0, VCC)
        I("v_cmp_gt_u32", VCC, 2, cc)
        I("v_cndmask_b32", t2, 0, t0, VCC)
        I("v_cndmask_b32", t0, t0, 0, VCC)
        I("v_accvgpr_write_b32", self.aSel[2], t2)
        I("v_accvgpr_write_b32", self.aSel[3], t0)
        I("s_lshl_b32", T[1], self.sW, 11)
        I("s_add_u32", T[1], T[1], L_SP)
        I("v_lshlrev_b32", t0, 7, j)
        I("v_lshl_add_u32", t0, g, 3, t0)
        I("v_add_u32", V(0), T[1], t0)
        self.stamp()

        nos0 = self.lab("nos0")
        I("s_cmp_eq_u32", self.sC, 7)
        I("s_cbranch_scc1", nos0)
        a.raw("    s_waitcnt vmcnt(6)")
        a.pos += 1
        for n in range(4):
            I("ds_read_b64", V(112 + 2 * n, 2), V(0), mods=f"offset:{32 * n}")
        a.wait(lg=0)
        for n in range(4):
            for p in range(2):
                I("v_lshlrev_b32", self.vR[4 * n + 2 * p], 16, V(112 + 2 * n + p))
                I("v_and_b32", self.vR[4 * n + 2 * p + 1], "0xffff0000", V(112 + 2 * n + p))
        a.label(nos0)
        a.raw("    s_waitcnt lgkmcnt(0)")
        a.pos += 1
        a.forget_counters()
        I("s_add_u32", self.sNonce, self.sNonce, "0x10100")
        I("s_and_b32", self.sBase, self.sNonce, "0xffffff00")
        I("s_and_b32", self.sTag, self.sNonce, "0x3fff0000")
        I("v_or_b32", self.vExpC, self.sBase, self.vExpC)
        I("v_or_b32", self.vExpHC, self.sBase, self.vExpHC)
        a.flush()
        I("s_cmp_eq_u32", self.sC, 7)
        I("s_cbranch_scc1", "L_pdone")
        I("s_branch", "L_pepi")

    def startup2(self):
        a, I = self.a, self.I
        T = self.sT
        N1 = self.opt.get("n1", 4)
        w3, done = self.lab("s2w3"), self.lab("s2done")
        I("s_cmp_eq_u32", self.sW, 3)
        I("s_cbranch_scc1", w3)
        ad0, ad1 = V(188), V(189)
        d0, d1 = V(192, 4), V(196, 4)
        I("s_mul_i32", T[4], self.sW, MAT)
        I("v_add_u32", ad0, T[4], self.vQ0)
        I("v_add_u32", ad1, T[4], self.vQ1)
        a.vm = [(f"raw{ks}", set()) for ks in range(N1) for _ in range(2)]
        AH = self.opt.get("ah", 5)
        nxt = N1
        for ks in range(14):
            while nxt < 14 and nxt <= ks + AH:
                self.raw_block(nxt)
                nxt += 1
            a.wait_vm_tag(f"raw{ks}")
            w0, w1 = self.wf(2 * (ks & 1)), self.wf(2 * (ks & 1) + 1)
            for f in self.tr_pair(w0, ad0, ks * 2048) + self.tr_pair(w1, ad1, ks * 2048): f()
            if ks:
                p0, p1 = self.wf(2 * ((ks - 1) & 1)), self.wf(2 * ((ks - 1) & 1) + 1)
                self.mfma(d0, p0, self.aOnes, 0 if ks == 1 else d0)
                self.mfma(d1, p1, self.aOnes, 0 if ks == 1 else d1)
        self.mfma(d0, self.wf(2), self.aOnes, d0)
        self.mfma(d1, self.wf(3), self.aOnes, d1)
        I("v_lshrrev_b32", ad0, 8, self.vL16)
        I("v_lshlrev_b32", ad0, 4, ad0)
        I("s_lshl_b32", T[0], self.sW, 7)
        I("s_add_u32", T[0], T[0], L_CS)
        I("v_add_u32", ad0, T[0], ad0)
        I("s_mov_b32", self.sT2[0], "0x00010001")
        I("s_mov_b32", self.sT2[1], "0x00010001")
        a.flush()
        I("s_mov_b64", EXEC, self.sT2)
        I("ds_write_b128", ad0, d0)
        I("ds_write_b128", ad0, d1, mods="offset:64")
        I("s_mov_b64", EXEC, -1)
        a.wait(lg=0)
        I("s_branch", done)

        a.label(w3)
        a.forget_counters()
        nofw, nofw2, nopend = self.lab("nofw"), self.lab("nofw2"), self.lab("nopend")
        I("s_or_b32", T[1], self.sBase, self.sXcc)
        I("v_mov_b32", self.vT, T[1])
        I("s_lshl_b32", T[1], self.sGrp, 7)
        I("s_lshl_b32", T[2], self.sH, 2)
        I("s_add_u32", T[1], T[1], T[2])
        I("s_add_u32", T[1], T[1], WS_HELLO)
        I("s_mov_b64", EXEC, 1)
        I("buffer_store_dword", self.vT, OFF, self.sWS, T[1], mods="sc1")
        I("s_mov_b64", EXEC, -1)
        I("s_cmp_ge_u32", self.sGrp, 14)
        I("s_cbranch_scc1", nofw)
        I("s_lshl_b32", T[1], self.sGrp, 11)
        I("s_add_u32", T[1], T[1], self.sFW)
        I("s_sub_u32", T[1], T[1], 3 * 7168)
        a.wait(vm=1)
        for typ in (1, 0):
            for mat in range(3):
                I("s_add_u32", T[2], T[1], typ * FW_T + mat * MAT)
                for half in range(2):
                    k = (typ * 3 + mat) * 2 + half
                    I("buffer_store_dwordx4", V(128 + 4 * k, 4), self.vL16, self.sWS, T[2], mods=f"offen offset:{half * 1024} sc1")
        a.label(nofw)
        I("s_or_b32", T[0], self.sBase, 16)
        I("v_mov_b32", V(112), T[0])
        I("s_lshl_b32", T[1], self.sH, 7)
        I("s_lshl_b32", T[2], self.sGrp, 2)
        I("s_add_u32", T[1], T[1], T[2])
        I("s_add_u32", T[1], T[1], WS_FWF)
        a.wait(vm=0)
        I("s_mov_b64", EXEC, 1)
        I("s_cmp_ge_u32", self.sGrp, 14)
        I("s_cbranch_scc1", nofw2)
        I("buffer_store_dword", V(112), OFF, self.sWS, T[1], mods="sc1")
        I("buffer_store_dword", V(112), OFF, self.sWS, T[1], mods="offset:2048 sc1")
        a.label(nofw2)
        I("s_cmp_eq_u32", self.sPend, 0)
        I("s_cbranch_scc1", nopend)
        I("s_lshl_b32", T[1], self.sC, 2)
        I("s_add_u32", T[1], T[1], self.sFHp)
        I("buffer_store_dword", V(112), OFF, self.sWS, T[1], mods="offset:128 sc1")
        I("s_mov_b32", self.sPend, 0)
        a.label(nopend)
        I("s_mov_b64", EXEC, -1)
        a.label(done)
        a.flush()
        a.forget_counters()

    def p_stage(self):
        a, I = self.a, self.I
        T = self.sT
        NPRE = self.opt.get("npre", 10)
        a.label("L_p")
        a.forget_counters()
        I("s_barrier")
        I("s_cmp_eq_u32", self.sC, 7)
        I("s_cbranch_scc1", "L_pidle")
        def pwf(hh, n): return A(64 + ((hh % NPRE) * 4 + n) * 4, 4)
        def pw_read(hh, n):
            return [lambda: I("ds_read_b64_tr_b16", pwf(hh, n)[0:2], self.vP[n], mods=f"offset:{hh * 4096}"),
                    lambda: I("ds_read_b64_tr_b16", pwf(hh, n)[2:4], self.vP[n], mods=f"offset:{hh * 4096 + 2048}")]
        self.flag_value(T[0])
        I("buffer_load_dword", V(112), self.vPollP, self.sWS, self.sFOp, mods="offen sc1")
        early = self.opt.get("pearly", 7)
        for hh in range(early):
            for n in range(4):
                for f in pw_read(hh, n): f()
        loop, ok = self.lab("ppoll"), self.lab("ppass")
        a.label(loop)
        a.wait(vm=0)
        I("v_cmp_ne_u32", VCC, T[0], V(112))
        I("s_cbranch_vccz", ok)
        I("buffer_load_dword", V(112), self.vPollP, self.sWS, self.sFOp, mods="offen sc1")
        self.budget_branch(loop)
        a.label(ok)
        a.vm = []
        self.stamp()
        def of(hh): return A(4 * hh, 4)
        def oload(hh):
            out = []
            if hh % 4 == 0 and hh:
                out.append(("s", lambda: I("s_add_u32", T[1], self.sOp, hh * 1024)))
            so = self.sOp if hh < 4 else T[1]
            out.append(("v", lambda: I("buffer_load_dwordx4", of(hh), self.vL16, self.sWS, so, mods=f"offen offset:{(hh % 4) * 1024} sc1")))
            return out
        NO = 9
        for hh in range(NO):
            for _, f in oload(hh): f()
        for hh in range(early, NPRE):
            for n in range(4):
                for f in pw_read(hh, n): f()
        mf, so, sw = [], [], []
        for hh in range(16):
            for n in range(4):
                mf.append((self.vR[4 * n:4 * n + 4], pwf(hh, n), of(hh), self.vR[4 * n:4 * n + 4]))
                if hh + NPRE < 16:
                    sw += [(4 * hh + n, "v", f) for f in pw_read(hh + NPRE, n)]
            if hh + NO < 16: so += [(4 * hh, k, f) for k, f in oload(hh + NO)]
        rest = self.sched(mf, [so, sw])
        assert not rest
        a.flush()
        self.stamp()
        I("s_cmp_eq_u32", self.sL, 4)
        I("s_cbranch_scc1", "L_final")

        a.label("L_pepi")
        xo = V(112, 8)
        for k in range(8):
            I("v_cvt_pk_bf16_f32", xo[k], self.vR[2 * k], self.vR[2 * k + 1])
            if k == 3: I("buffer_store_dwordx4", xo[0:4], self.vL16, self.sWS, self.sXp, mods="offen")
        I("buffer_store_dwordx4", xo[4:8], self.vL16, self.sWS, self.sXp, mods="offen offset:1024")
        sm, sq = V(120, 2), V(122, 2)
        self.pk("v_pk_add_f32", sm, self.vR[0:2], self.vR[2:4])
        self.pk("v_pk_mul_f32", sq, self.vR[0:2], self.vR[0:2])
        self.pk("v_pk_fma_f32", sq, self.vR[2:4], self.vR[2:4], sq)
        for k in range(2, 8):
            self.pk("v_pk_add_f32", sm, sm, self.vR[2 * k:2 * k + 2])
            self.pk("v_pk_fma_f32", sq, self.vR[2 * k:2 * k + 2], self.vR[2 * k:2 * k + 2], sq)
        pr = V(124, 2)
        I("v_add_f32", pr[0], sm[0], sm[1])
        I("v_add_f32", pr[1], sq[0], sq[1])
        x, y = pr[0], pr[1]
        I("s_add_u32", self.sL, self.sL, 1)
        I("s_lshl_b32", T[0], self.sL, 4)
        I("v_permlane32_swap_b32", x, y)
        I("s_or_b32", T[0], T[0], self.sBase)
        I("v_add_f32", x, x, y)
        I("v_mov_b32", y, x)
        I("v_mov_b32", self.vT, T[0])
        I("s_cmp_eq_u32", self.sPhase, 0)
        I("v_permlane16_swap_b32", x, y)
        I("s_cselect_b32", self.sPend, self.sHaloProd, 0)
        I("v_add_f32", x, x, y)
        I("v_mov_b32", y, x)
        I("s_lshl_b32", T[1], self.sC, 11)
        I("s_add_u32", T[1], T[1], self.sHX)
        I("v_permlane32_swap_b32", x, y)
        I("s_mov_b64", EXEC, "0xffff")
        I("buffer_store_dwordx2", pr, self.vStatSt, self.sWS, self.sXSp, mods="offen")
        I("s_mov_b64", EXEC, -1)
        nh, pub = self.lab("nohalo"), self.lab("pub")
        I("s_cmp_eq_u32", self.sPend, 0)
        I("s_cbranch_scc0", nh)
        a.wait(vm=0)
        a.label(pub)
        self.publish(self.sFXp)

        def tail():
            b = self.a
            b.label(nh)
            b.I("s_add_u32", T[1], T[1], 16384)
            b.I("buffer_store_dwordx4", xo[0:4], self.vL16, self.sWS, T[1], mods="offen sc1")
            b.I("buffer_store_dwordx4", xo[4:8], self.vL16, self.sWS, T[1], mods="offen offset:1024 sc1")
            b.I("s_lshl_b32", T[1], self.sC, 7)
            b.I("s_add_u32", T[1], T[1], self.sHX)
            b.I("s_add_u32", T[1], T[1], 16384 + 14336)
            b.I("s_mov_b64", EXEC, "0xffff")
            b.I("buffer_store_dwordx2", pr, self.vStatSt, self.sWS, T[1], mods="offen sc1")
            b.I("s_mov_b64", EXEC, -1)
            b.wait(vm=3)
            b.I("s_branch", pub)
        self.tail.append(tail)
        a.label("L_pnext")
        a.flush()
        a.forget_counters()
        self.stamp()
        if self.opt.get("stop"):
            I("s_cmp_eq_u32", self.sL, self.opt["stop"])
            I("s_cbranch_scc1", "L_fin2")
        I("s_cmp_eq_u32", self.sPhase, 1)
        I("s_cbranch_scc1", "L_qb")

        def idle():
            b = self.a
            b.label("L_pidle")
            b.I("s_cmp_eq_u32", self.sL, 4)
            b.I("s_cbranch_scc1", "L_fin2")
            b.label("L_pdone")
            b.I("s_add_u32", self.sL, self.sL, 1)
            b.I("s_branch", "L_pnext")
        self.tail.append(idle)

    def q_poll(self):
        a, I = self.a, self.I
        T = self.sT
        ex, t, pv = V(112), V(113), V(114)
        loop, ok, pend, nopend, slow, again = (self.lab(x) for x in ("qpoll", "qpass", "pend", "nopend", "qslow", "qagain"))
        I("v_mad_u32_u24", ex, self.vExpM, self.sL, self.vExpC)
        a.label(loop)
        I("buffer_load_dword", pv, self.vPollQ, self.sWS, 0, mods="offen sc1")
        I("s_cmp_eq_u32", self.sPend, 0)
        a.wait(vm=0)
        I("s_cbranch_scc0", pend)
        a.label(nopend)
        I("v_xor_b32", t, pv, ex)
        I("v_cmp_ne_u32", VCC, 0, t)
        I("s_cbranch_vccnz", slow)
        a.label(ok)
        a.vm = []

        def tail():
            b = self.a
            b.label(pend)
            b.I("s_lshl_b32", T[1], self.sC, 2)
            b.I("s_add_u32", T[1], T[1], self.sFHp)
            self.flag_value(T[0])
            b.I("v_mov_b32", self.vT, T[0])
            b.I("s_mov_b64", EXEC, 1)
            b.I("buffer_store_dword", self.vT, OFF, self.sWS, T[1], mods="offset:128 sc1")
            b.I("s_mov_b64", EXEC, -1)
            b.I("s_mov_b32", self.sPend, 0)
            b.I("s_branch", nopend)
            b.label(slow)
            b.I("s_cmp_eq_u32", self.sMode, 0)
            b.I("s_cbranch_scc1", again + "m")
            b.I("v_not_b32", V(115), self.vPollM)
            b.I("v_and_b32", V(116), t, self.vPollM)
            b.I("v_and_b32", V(115), t, V(115))
            b.I("v_cmp_ne_u32", self.sT2, 0, V(115))
            b.I("v_cmp_eq_u32", VCC, 0, V(116))
            b.nop(2)
            b.I("s_and_b64", self.sT2, self.sT2, VCC)
            b.I("s_cbranch_scc0", again)
            b.I("s_mov_b32", self.sMode, 0)
            b.I("s_add_u32", self.sFXp, self.sFXp, WS_SLOW)
            b.I("s_add_u32", self.sFOq, self.sFOq, WS_SLOW)
            b.I("s_add_u32", self.sFOp, self.sFOp, WS_SLOW)
            b.I("v_lshlrev_b32", V(115), 11, self.vExpM)
            b.I("v_add_u32", self.vPollQ, V(115), self.vPollQ)
            b.I("s_cmp_eq_u32", self.sC, 7)
            b.I("s_cbranch_scc1", again)
            b.I("buffer_wbl2", mods="sc1")
            b.wait(vm=0)
            b.I("s_or_b32", T[0], self.sBase, 16)
            b.I("v_mov_b32", self.vT, T[0])
            b.I("s_mov_b64", EXEC, 1)
            b.I("buffer_store_dword", self.vT, OFF, self.sWS, self.sFXp, mods="sc1")
            b.I("s_mov_b64", EXEC, -1)
            b.I("s_branch", again)
            b.label(again + "m")
            b.I("v_and_b32", V(116), t, self.vPollM)
            b.I("v_cmp_ne_u32", VCC, 0, V(116))
            b.I("s_cbranch_vccz", ok)
            b.label(again)
            self.budget_branch(loop)
        self.tail.append(tail)

    def xload(self, ks):
        out = []
        if ks % 4 == 0:
            out.append(("s", lambda: self.I("s_add_u32", self.sT[1], self.sXq, ks * 1024)))
            out.append(("s", lambda: self.I("s_add_u32", self.sT[2], self.sXq, ks * 1024 + 14336)))
        for t in range(2):
            out.append(("v", lambda t=t: self.I("buffer_load_dwordx4", self.xf(t, ks), self.vL16, self.sWS, self.sT[1 + t],
                                               mods=f"offen offset:{(ks % 4) * 1024} sc1")))
        return out

    def stats_ops(self, T, layer):
        raw, st = self.straw(T), self.st(T)
        t = V(188 + 2 * T, 2)
        ops = []
        def add(*x, **k): ops.append(("w" if ("perm" in x[0] or "rsq" in x[0]) else "v", lambda: self.I(*x, **k)))
        add("v_and_b32", raw[2], raw[2], self.vM3)
        add("v_and_b32", raw[3], raw[3], self.vM3)
        add("v_add_f32", raw[0], raw[0], raw[2])
        add("v_add_f32", raw[1], raw[1], raw[3])
        for step in range(7):
            x, y = raw[0], raw[1]
            if step in (0, 6): add("v_permlane32_swap_b32", x, y)
            elif step in (1, 4): add("v_add_f32", x, x, y)
            elif step in (2, 5): add("v_mov_b32", y, x)
            else: add("v_permlane16_swap_b32", x, y)
        add("v_mul_f32", st[0], f32(-1.0 / 448), raw[0])
        add("v_mul_f32", t[0], f32(1.0 / 448), raw[1])
        add("v_fma_f32", t[0], Neg(st[0]), st[0], t[0])
        add("v_max_f32", t[0], 0, t[0])
        add("v_add_f32", t[0], f32(1e-5), t[0])
        add("v_rsq_f32", st[1], t[0])
        add("v_and_b32", st[2], st[1], self.vMH if T == 2 else self.vM3)
        if T < 2:
            add("v_mul_f32", st[3], f32(LOG2E * (28 ** -0.5 if layer == "A" else 1.0)), st[1])
        return ops

    def colsum_b(self):
        a, I = self.a, self.I
        T = self.sT
        ad0, ad1 = V(188), V(189)
        d0, d1 = V(192, 4), V(196, 4)
        I("s_and_b32", T[0], self.sW, 1)
        I("s_lshl_b32", T[0], T[0], 5)
        I("v_xor_b32", ad0, T[0], self.vQ0)
        I("v_add_u32", ad1, 2 * MAT, ad0)
        I("s_lshr_b32", T[0], self.sW, 1)
        I("s_mul_i32", T[0], T[0], MAT)
        I("v_add_u32", ad0, T[0], ad0)
        def w(ks, q): return self.wf((ks % 3) * 2 + q)
        for ks in range(3):
            for f in self.tr_pair(w(ks, 0), ad0, ks * 2048) + self.tr_pair(w(ks, 1), ad1, ks * 2048): f()
        mf, sw = [], []
        for ks in range(14):
            for q, (d, ad) in enumerate(((d0, ad0), (d1, ad1))):
                mf.append((d, w(ks, q), self.aOnes, 0 if ks == 0 else d))
                if ks + 3 < 14: sw += [(2 * ks + q, "v", f) for f in self.tr_pair(w(ks, q), ad, (ks + 3) * 2048)]
        assert not self.sched(mf, [sw])
        I("v_lshrrev_b32", ad0, 8, self.vL16)
        I("v_lshlrev_b32", ad0, 4, ad0)
        I("v_add_u32", ad0, L_CS, ad0)
        I("s_lshl_b32", T[0], self.sW, 6)
        I("v_add_u32", ad1, T[0], ad0)
        I("s_and_b32", T[0], self.sW, 1)
        I("s_lshl_b32", T[0], T[0], 6)
        I("v_add_u32", V(190), T[0], ad0)
        I("s_mov_b32", self.sT2[0], "0x00010001")
        I("s_mov_b32", self.sT2[1], "0x00010001")
        a.flush()
        I("s_mov_b64", EXEC, self.sT2)
        I("ds_write_b128", ad1, d0)
        I("ds_write_b128", V(190), d1, mods="offset:256")
        I("s_mov_b64", EXEC, -1)
        self.wphi_gather()
        a.wait(lg=0)
        I("s_barrier")
        self.cs_read(self.cB, False)

    def cs_read(self, dst, with_halo):
        I = self.I
        ad = V(188)
        I("v_lshrrev_b32", ad, 8, self.vL16)
        I("v_lshlrev_b32", ad, 4, ad)
        I("v_add_u32", ad, L_CS, ad)
        for ft in range(6):
            I("ds_read_b128", dst[4 * ft:4 * ft + 4], ad, mods=f"offset:{64 * ft}")
        if with_halo:
            I("s_lshl_b32", self.sT[0], self.sW, 6)
            I("v_add_u32", V(189), self.sT[0], ad)
            I("ds_read_b128", self.vCH, V(189), mods="offset:128")

    def wphi_gather(self):
        a, I = self.a, self.I
        j, g, f1, ad, t = V(214), V(215), V(216), V(217), V(218)
        I("v_lshrrev_b32", g, 8, self.vL16)
        I("v_lshrrev_b32", j, 2, self.vPollP)
        I("v_lshrrev_b32", t, 2, j)
        I("v_sub_u32", f1, j, t)
        I("v_add_u32", f1, 16, f1)
        I("v_mul_u32_u24", ad, 4 * 56, g)
        I("v_add_u32", ad, L_WPHI, ad)
        I("v_lshl_add_u32", f1, f1, 1, ad)
        I("v_lshl_add_u32", ad, j, 1, ad)
        I("v_and_b32", t, 3, j)
        I("v_cmp_ne_u32", VCC, 3, t)
        I("v_cndmask_b32", t, 0, -1, VCC)
        I("v_and_b32", j, t, self.vM3)
        for oft, base in enumerate((ad, f1)):
            for e in range(8):
                d = e if e < 4 else 16 + e - 4
                I("ds_read_u16", V(204 + e), base, mods=f"offset:{d * 56}")
            for p in range(4):
                I("v_lshl_or_b32", V(204 + 2 * p), V(205 + 2 * p), 16, V(204 + 2 * p))
                m = (None, self.vM3)[p >> 1] if oft == 0 else (t, j)[p >> 1]
                if m is not None: I("v_and_b32", V(204 + 2 * p), V(204 + 2 * p), m)
                I("v_accvgpr_write_b32", self.aWphi[4 * oft + p], V(204 + 2 * p))

    def conv_scalar(self, dst, T, mat, c, scales):
        out = []
        st = self.st(T)
        for f in range(2):
            acc = self.acc(T, 2 * mat + f)
            cc = c[4 * (2 * mat + f):4 * (2 * mat + f) + 4]
            for k in range(4): out.append(lambda acc=acc, cc=cc, k=k: self.I("v_fma_f32", acc[k], cc[k], st[0], acc[k]))
            m = {"r": st[1], "m": st[2]}[scales[f]]
            for k in range(4): out.append(lambda acc=acc, m=m, k=k: self.I("v_mul_f32", acc[k], acc[k], m))
            for p in range(2): out.append(lambda acc=acc, f=f, p=p: self.I("v_cvt_pk_bf16_f32", dst[2 * f + p], acc[2 * p], acc[2 * p + 1]))
        return out

    def q_gemm(self, layer, tail_ops=()):
        a, I = self.a, self.I
        T = self.sT
        isA = layer == "A"
        LOOK = self.opt.get("look", 4)
        for t in range(2):
            I("buffer_load_dwordx2", self.straw(t)[0:2], self.vStat, self.sWS, self.sXSq, mods=f"offen offset:{t * 1024} sc1")
            I("buffer_load_dwordx2", self.straw(t)[2:4], self.vStat, self.sWS, self.sXSq, mods=f"offen offset:{t * 1024 + 512} sc1")
        for ks in range(LOOK):
            for _, f in self.xload(ks): f()
        I("s_barrier")
        once = self.lab("once")
        I("s_cmp_lg_u32", self.sIt, 0)
        I("s_cbranch_scc1", once)
        nvm = len(a.vm)
        if isA: self.cs_read(self.cA, True)
        else: self.colsum_b()
        a.wait_lg_all()
        a.flush()
        assert nvm == len(a.vm)
        a.label(once)
        reads0, writes0 = a.count.get("ds_read_b64_tr_b16", 0), a.count.get("ds_write_b128", 0)
        def bar(n):
            assert a.count["ds_read_b64_tr_b16"] - reads0 == n and not a.lg and a.count.get("ds_write_b128", 0) == writes0
            I("s_barrier")
        for ft in range(6):
            for f in self.qw_read(self.wf(ft), ft, 0): f()

        G = 12
        mf, sw, sx, sd, sv, sh = [], [], [], [], [], []
        for ks in range(14):
            order = (2, 3, 4, 5, 0, 1) if ks == 13 else range(6)
            for ft in order:
                for t in ((1, 0) if ks == 13 else (0, 1)):
                    mf.append((self.acc(t, ft), self.wf(ft), self.xf(t, ks), 0 if ks == 0 else self.acc(t, ft)))
                if ks < 13:
                    sw += [(len(mf) - 1, "v", f) for f in self.qw_read(self.wf(ft), ft, ks + 1)]
            if ks + LOOK < 14: sx += [(G * ks, k, f) for k, f in self.xload(ks + LOOK)]
        s0, s1 = self.stats_ops(0, layer), self.stats_ops(1, layer)
        sv += [(G, k, f) for p in zip(s0, s1) for k, f in p]
        sf = []
        if self.opt.get("fine") == (1 if isA else 2):
            def ft_(i):
                a.raw(f"    s_memtime s[{8 + 2 * i}:{9 + 2 * i}]"); a.pos += 1
            sf = [(G * 2 * i, "s", lambda i=i: ft_(i)) for i in range(7)]
            self.fine_pending = True
        pw = self.pw_dma(self.sWOA if isA else self.sWOB)
        nd = 0
        for k, f in pw:
            ks = min(13, (nd * 14) // 16) if isA else 2 + (nd * 11) // 16
            sd.append((G * ks + 6, k, f))
            nd += k == "v"
        if isA:
            HF, HC = self.opt.get("hf", 4), self.opt.get("hc", 8)
            hv, hx = V(194), V(195)
            sh.append((G * HF + 8, "v", lambda: I("buffer_load_dword", hv, self.vPollH, self.sWS, 0, mods="offen sc1")))
            sh.append((G * HF + 8, "v", lambda: I("v_mad_u32_u24", hx, self.vExpHM, self.sL, self.vExpHC)))
            slow, back = self.lab("hslow"), self.lab("hback")
            sh.append((G * HC, "v", lambda: I("v_cmp_ne_u32", VCC, hx, hv)))
            def br():
                I("s_cbranch_vccnz", slow)
                a.label(back)
            sh.append((G * HC, "s", br))
            def tail():
                b = self.a
                b.label(slow)
                b.I("s_sub_u32", self.sBudget, self.sBudget, 1)
                b.I("s_cbranch_scc1", "L_end")
                b.I("buffer_load_dword", hv, self.vPollH, self.sWS, 0, mods="offen sc1")
                b.wait(vm=0)
                b.I("v_cmp_ne_u32", VCC, hx, hv)
                b.I("s_cbranch_vccnz", slow)
                b.I("s_branch", back)
            self.tail.append(tail)
            sh.append((G * HC, "s", lambda: I("s_add_u32", T[0], self.sHX, 14336)))
            for q in range(2):
                sh.append((G * HC, "v", lambda q=q: I("buffer_load_dwordx2", self.straw(2)[2 * q:2 * q + 2], self.vHaloS, self.sWS, T[0],
                                                     mods=f"offen offset:{512 * q} sc1")))
            for k in range(14):
                if k % 4 == 0: sh.append((G * HC, "s", lambda k=k: I("s_add_u32", T[0], self.sHX, k * 1024)))
                sh.append((G * HC + 2 * k, "v", lambda k=k: I("buffer_load_dwordx4", self.hx(k), self.vHalo, self.sWS, T[0],
                                                             mods=f"offen offset:{(k % 4) * 1024} sc1")))
            def hw(k): return A(4 * k, 4)
            shw = []
            for k in range(14): shw += [(G * 8 + 4 * k, "v", f) for f in self.tr_pair(hw(k), self.vQh, k * 2048)]
            sv += [(G * 12, k, f) for k, f in self.stats_ops(2, layer)]
            n0 = len(mf)
            for k in range(14): mf.append((self.hacc, hw(k), self.hx(k), 0 if k == 0 else self.hacc))
            sb = [(n0 - 1, "s", lambda: a.wait(lg=0)), (n0 - 1, "s", lambda: bar(168 + 28))]
            stl = [(n0 - 2, "v", f) for f in tail_ops]
            rest = self.sched(mf, [sf, sw, sx, sh, shw, sd, sv, sb, stl])
        else:
            n0 = len(mf)
            sb = [(n0 - 9, "s", lambda: a.wait(lg=0)), (n0 - 9, "s", lambda: bar(168))]
            rest = self.sched(mf, [sf, sw, sx, sd, sv, sb])
        return rest

    def ln(self, acc, c, st, scale):
        for p in range(2):
            self.pk("v_pk_fma_f32", acc[2 * p:2 * p + 2], c[2 * p:2 * p + 2], st[0:2], acc[2 * p:2 * p + 2], by=0)
        if scale == "r":
            for p in range(2): self.pk("v_pk_mul_f32", acc[2 * p:2 * p + 2], acc[2 * p:2 * p + 2], st[0:2], by=1)
        elif scale == "m":
            for p in range(2): self.pk("v_pk_mul_f32", acc[2 * p:2 * p + 2], acc[2 * p:2 * p + 2], st[2:4], by=0)
        elif scale == "e":
            self.pk("v_pk_fma_f32", acc[0:2], acc[0:2], st[2:4], self.vE0, by=0)
            self.pk("v_pk_mul_f32", acc[2:4], acc[2:4], st[2:4], by=0)

    def cvt(self, dst, src):
        for p in range(src.cnt // 2):
            self.I("v_cvt_pk_bf16_f32", dst[p], src[2 * p], src[2 * p + 1])

    def conv(self, dst, T, mat, c, scales):
        for f in range(2):
            ft = 2 * mat + f
            self.ln(self.acc(T, ft), c[4 * ft:4 * ft + 4], self.st(T), scales[f])
        for f in range(2):
            self.cvt(dst[2 * f:2 * f + 2], self.acc(T, 2 * mat + f))

    def o_finish(self, o, den, of, dma):
        a, I = self.a, self.I
        T = self.sT
        I("s_add_u32", T[1], self.sOq, 16384)
        self.flag_value(T[0])
        for t in range(2): I("v_rcp_f32", den[t][0], den[t][0])
        I("v_mov_b32", self.vT, T[0])
        for t in range(2):
            for p in range(4): self.pk("v_pk_mul_f32", o[t][2 * p:2 * p + 2], o[t][2 * p:2 * p + 2], den[t][0:2], by=0)
            self.cvt(of[t], o[t])
            I("buffer_store_dwordx4", of[t], self.vL16, self.sWS, T[1] if t else self.sOq, mods="offen")
        a.wait(vm=0)
        self.publish(self.sFOq)
        self.stamp()
        for _, f in dma: f()

    def qa_stage(self):
        a, I = self.a, self.I
        a.label("L_qa")
        first = self.lab("qarest")
        I("s_cmp_lg_u32", self.sIt, 0)
        I("s_cbranch_scc1", first)
        self.startup2()
        a.label(first)
        self.q_poll()
        self.stamp()
        kf = [V(196, 4), V(200, 4)]
        qf = [V(204, 4), V(208, 4)]
        vp = [V(212, 4), V(216, 4)]
        hp = V(220, 2)
        tail_ops = self.conv_scalar(kf[1], 1, 1, self.cA, ("r", "m"))
        tail_ops.append(lambda: I("ds_write_b128", self.vKrd, kf[1], mods=f"offset:{L_EXK + 1024}"))
        rest = self.q_gemm("A", tail_ops)
        for f in rest: f()
        self.stamp()
        dk = [f for _, f in self.fw_dma(1, (1,))]
        self.conv(vp[1], 1, 2, self.cA, ("r", "r"))
        I("ds_write_b128", self.vEXW, vp[1], mods=f"offset:{L_EXV + 2048}")
        self.ln(self.hacc, self.vCH, self.st(2), "m")
        self.cvt(hp, self.hacc)
        I("ds_write_b64", self.vHW, hp)
        self.conv(vp[0], 0, 2, self.cA, ("r", "r"))
        I("ds_write_b128", self.vEXW, vp[0], mods=f"offset:{L_EXV + 1024}")
        for f in dk[:4]: f()
        self.conv(qf[0], 0, 0, self.cA, (None, None))
        a.wait(lg=0)
        I("s_barrier")
        kprev = V(222, 4)
        vt = [V(226, 6), V(232, 6)]
        I("ds_read_b128", kprev, self.vKrd, mods=f"offset:{L_EXK}")
        for f in range(2):
            for i in range(3):
                I("ds_read_b64_tr_b16", vt[f][2 * i:2 * i + 2], self.vEXRa, mods=f"offset:{1024 * i + 8 * f}")
        self.conv(kf[0], 0, 1, self.cA, ("r", "m"))
        self.conv(qf[1], 1, 0, self.cA, (None, None))
        s = [V(112, 8), V(120, 8)]
        self.mfma(s[1][4:8], kf[1], qf[1], self.bCur)
        self.mfma(s[1][0:4], kf[0], qf[1], self.bPrev)
        self.mfma(s[0][4:8], kf[0], qf[0], self.bCur)
        self.mfma(s[0][0:4], kprev, qf[0], self.bPrev0)
        for f in dk[4:8]: f()
        m = V(128, 2)
        for t in (1, 0):
            I("v_max3_f32", m[t], s[t][4], s[t][5], s[t][6])
            I("v_max3_f32", m[t], m[t], s[t][7], s[t][0])
            I("v_max3_f32", m[t], m[t], s[t][1], s[t][2])
            I("v_max_f32", m[t], m[t], s[t][3])
        self.allreduce_pairs([("v_max_f32", m[0], m[1])])
        nm = [V(130, 2), V(132, 2)]
        for t in range(2):
            I("v_mul_f32", nm[t][0], m[t], self.st(t)[3])
        for t in range(2):
            for p in range(4):
                self.I("v_pk_fma_f32", s[t][2 * p:2 * p + 2], s[t][2 * p:2 * p + 2], self.st(t)[2:4], nm[t],
                       mods="op_sel:[0,1,0] op_sel_hi:[1,1,0] neg_lo:[0,0,1] neg_hi:[0,0,1]")
        pf = [V(136, 4), V(140, 4)]
        o = [V(144, 8), V(152, 8)]
        sm = [V(160, 4), V(164, 4)]
        for k in range(8): I("v_exp_f32", s[0][k], s[0][k])
        for k in range(2): I("v_exp_f32", s[1][k], s[1][k])
        self.cvt(pf[0], s[0])
        for k in range(2, 4): I("v_exp_f32", s[1][k], s[1][k])
        self.mfma(sm[0], self.aOnes, pf[0], 0)
        I("v_exp_f32", s[1][4], s[1][4])
        self.mfma(o[0][0:4], vt[0][0:4], pf[0], 0)
        I("v_exp_f32", s[1][5], s[1][5])
        self.mfma(o[0][4:8], vt[1][0:4], pf[0], 0)
        for k in range(6, 8): I("v_exp_f32", s[1][k], s[1][k])
        self.cvt(pf[1], s[1])
        self.mfma(sm[1], self.aOnes, pf[1], 0)
        for f in range(2):
            self.mfma(o[1][4 * f:4 * f + 4], vt[f][2:6], pf[1], 0)
        for f in dk[8:]: f()
        self.o_finish(o, sm, [V(168, 4), V(172, 4)], self.fw_dma(1, (2,)))
        I("s_mov_b32", self.sPhase, 1)
        a.flush()
        I("s_branch", "L_p")

    def phi(self, src, dst, extra=(), done=None):
        a, I = self.a, self.I
        rest = list(extra)
        def more(n=1):
            for _ in range(n):
                if rest: rest.pop(0)()
        p = [V(112, 8), V(120, 8)]
        for t in range(2):
            for oft in range(2):
                self.mfma(p[t][4 * oft:4 * oft + 4], self.aWphi[4 * oft:4 * oft + 4], src[t], 0)
        kk = [V(132, 2), V(134, 2)]
        bb = [V(136, 2), V(138, 2)]
        for t in range(2):
            I("v_mov_b32", kk[t][0], self.st(t)[3])
            I("v_sub_f32", kk[t][1], 0, self.st(t)[3])
        more(3)
        mx, mn = V(128, 2), V(130, 2)
        for t in range(2):
            for k in range(3):
                if k == 0:
                    I("v_max3_f32", mx[t], p[t][0], p[t][1], p[t][2])
                    I("v_min3_f32", mn[t], p[t][0], p[t][1], p[t][2])
                else:
                    I("v_max3_f32", mx[t], mx[t], p[t][2 * k + 1], p[t][2 * k + 2])
                    I("v_min3_f32", mn[t], mn[t], p[t][2 * k + 1], p[t][2 * k + 2])
        self.allreduce_pairs([("v_max_f32", mx[0], mx[1]), ("v_min_f32", mn[0], mn[1])])
        for t in range(2):
            I("v_mul_f32", bb[t][0], mx[t], kk[t][1])
            I("v_mul_f32", bb[t][1], mn[t], kk[t][0])
        e = [V(140, 14), V(154, 14)]
        for i in range(7):
            for t in range(2):
                self.pk("v_pk_fma_f32", e[t][2 * i:2 * i + 2], p[t][(i & ~1):(i & ~1) + 2], kk[t], bb[t], bx=i & 1)
        for i in range(14):
            for t in range(2): I("v_exp_f32", e[t][i], e[t][i])
            more()
        sm = [V(128, 2), V(130, 2)]
        for t in range(2): self.pk("v_pk_add_f32", sm[t], e[t][0:2], e[t][2:4])
        for i in range(2, 7):
            for t in range(2): self.pk("v_pk_add_f32", sm[t], sm[t], e[t][2 * i:2 * i + 2])
            more()
        self.allreduce_pairs([("v_add_f32", sm[0][0], sm[0][1]), ("v_add_f32", sm[1][0], sm[1][1])])
        for t in range(2):
            for k in range(2): I("v_rcp_f32", sm[t][k], sm[t][k])
        for t in range(2):
            for i in range(7): self.pk("v_pk_mul_f32", e[t][2 * i:2 * i + 2], e[t][2 * i:2 * i + 2], sm[t])
            for s in range(2):
                for q in range(4):
                    I("v_cvt_pk_bf16_f32", dst[t][s][q], e[t][4 * q + s], e[t][4 * q + 2 + s] if q < 3 else 0)
                if done: done(t, s)
        more(99)

    def qb_stage(self):
        a, I = self.a, self.I
        T = self.sT
        a.label("L_qb")
        for _, f in self.fw_dma(1, (0,)): f()
        self.q_poll()
        self.stamp()
        rest = self.q_gemm("B")
        for f in rest: f()
        self.stamp()
        kf = [V(196, 4), V(200, 4)]
        qf = [V(204, 4), V(208, 4)]
        vp = [V(212, 4), V(216, 4)]
        exw = V(220)
        I("v_add_u32", exw, L_PH, self.vEXW)
        for t in (1, 0): self.conv(kf[t], t, 1, self.cB, (None, None))
        for t in (1, 0):
            self.conv(vp[t], t, 2, self.cB, ("r", "e"))
            I("ds_write_b128", exw, vp[t], mods=f"offset:{16384 + 1024 * t}")
        for t in (1, 0): self.conv(qf[t], t, 0, self.cB, (None, None))
        ph = [[V(168, 4), V(172, 4)], [V(224, 4), V(228, 4)]]
        self.phi(kf, ph, done=lambda t, s: I("ds_write_b128", exw, ph[t][s], mods=f"offset:{8192 * s + 1024 * t}"))
        a.wait(lg=0)
        I("s_barrier")
        kacc = V(112, 8)
        def fa(k, oft): return A(4 * (k * 2 + oft), 4)
        def fb(k): return A(40 + 4 * k, 4)
        for k in range(4):
            for t in range(2):
                I("ds_read_b64_tr_b16", fb(k)[2 * t:2 * t + 2], self.vKB, mods=f"offset:{(2 * k + t) * 1024}")
            for oft in range(2):
                for t in range(2):
                    I("ds_read_b64_tr_b16", fa(k, oft)[2 * t:2 * t + 2], self.vKA, mods=f"offset:{(2 * k + t) * 1024 + 8 * oft}")
            if k:
                for oft in range(2):
                    self.mfma(kacc[4 * oft:4 * oft + 4], fa(k - 1, oft), fb(k - 1), 0 if k == 1 else kacc[4 * oft:4 * oft + 4])
        for oft in range(2):
            self.mfma(kacc[4 * oft:4 * oft + 4], fa(3, oft), fb(3), kacc[4 * oft:4 * oft + 4])
        kvp = V(120, 4)
        self.cvt(kvp, kacc)
        I("v_and_b32", kvp[3], "0xffff", kvp[3])
        I("v_or_b32", kvp[3], self.sTag, kvp[3])
        I("buffer_store_dwordx4", kvp, self.vL16, self.sWS, self.sKVst, mods="offen sc1")
        self.stamp()
        self.phi(qf, ph, extra=[f for _, f in self.fw_dma(0, (0, 1))])
        self.stamp()
        def gf(p): return V(112 + 4 * p, 4) if p < 14 else V(232 + 4 * (p - 14), 4)
        red = V(176, 8)
        lo, hi = V(184), V(185)
        loop, ok, slow = self.lab("gather"), self.lab("gpass"), self.lab("gslow")
        a.flush()
        a.label(loop)
        def gload(p):
            out = []
            if p % 4 == 0: out.append(("s", lambda: I("s_add_u32", T[1], self.sKVld, p * 1024)))
            out.append(("v", lambda: I("buffer_load_dwordx4", gf(p), self.vL16, self.sWS, T[1], mods=f"offen offset:{(p % 4) * 1024} sc1")))
            return out
        NG = 10
        for p in range(NG):
            for _, f in gload(p): f()
        I("v_add_u32", exw, L_KVX, self.vKrd)
        I("v_add_u32", V(221), L_KVX, self.vL16)
        mf, sg, sc = [], [], []
        for p in range(16):
            mf.append((red[0:4], self.aSel[2:6], gf(p), 0 if p == 0 else red[0:4]))
            mf.append((red[4:8], self.aSel[0:4], gf(p), 0 if p == 0 else red[4:8]))
            if p + NG < 16: sg += [(2 * p, k, f) for k, f in gload(p + NG)]
            if p == 1:
                sc.append((2 * p, "v", lambda: I("v_min_u32", lo, gf(0)[3], gf(1)[3])))
                sc.append((2 * p, "v", lambda: I("v_max_u32", hi, gf(0)[3], gf(1)[3])))
            elif p & 1:
                sc.append((2 * p, "v", lambda p=p: I("v_min3_u32", lo, lo, gf(p - 1)[3], gf(p)[3])))
                sc.append((2 * p, "v", lambda p=p: I("v_max3_u32", hi, hi, gf(p - 1)[3], gf(p)[3])))
        rest = self.sched(mf, [sg, sc])
        for f in rest: f()
        I("v_xor_b32", lo, self.sTag, lo)
        I("v_xor_b32", hi, self.sTag, hi)
        I("v_or_b32", lo, lo, hi)
        I("v_cmp_lt_u32", VCC, "0xffff", lo)
        I("s_cbranch_vccnz", slow)

        def tail():
            b = self.a
            b.label(slow)
            b.I("v_lshlrev_b32", hi, 8, self.vPollP)
            b.label(slow + "l")
            b.I("s_sub_u32", self.sBudget, self.sBudget, 1)
            b.I("s_cbranch_scc1", "L_end")
            b.I("buffer_load_dword", lo, hi, self.sWS, self.sKVld, mods="offen offset:12 sc1")
            b.wait(vm=0)
            b.I("v_xor_b32", lo, self.sTag, lo)
            b.I("v_cmp_lt_u32", VCC, "0xffff", lo)
            b.I("s_cbranch_vccnz", slow + "l")
            b.I("s_branch", loop)
        self.tail.append(tail)
        self.stamp()
        kvs = V(112, 4)
        self.cvt(kvs, red)
        I("ds_write_b128", exw, kvs)
        a.wait(lg=0)
        I("s_barrier")
        kvf = [[A(0, 4), A(4, 4)], [A(8, 4), A(12, 4)]]
        zf = [A(16, 4), A(20, 4)]
        for s in range(2):
            I("ds_read_b128", zf[s], self.vZ, mods=f"offset:{2048 * s}")
            for dt in range(2):
                I("ds_read_b128", kvf[s][dt], V(221), mods=f"offset:{(2 * s + dt) * 1024}")
        o = [V(144, 8), V(152, 8)]
        dn = [V(160, 4), V(164, 4)]
        for s in range(2):
            for t in range(2): self.mfma(dn[t], zf[s], ph[t][s], 0 if s == 0 else dn[t])
            for t in range(2):
                for dt in range(2):
                    self.mfma(o[t][4 * dt:4 * dt + 4], kvf[s][dt], ph[t][s], 0 if s == 0 else o[t][4 * dt:4 * dt + 4])
        I("s_mov_b32", self.sPhase, 0)
        I("s_add_u32", self.sIt, self.sIt, 1)
        I("s_add_u32", self.sKVst, self.sKVst, 0x100000)
        I("s_add_u32", self.sKVld, self.sKVld, 0x100000)
        I("s_add_u32", self.sHX, self.sHX, 0x40000)
        for t in range(2): I("v_add_f32", dn[t][0], f32(1e-6), dn[t][0])
        self.o_finish(o, dn, [V(116, 4), V(120, 4)], self.fw_dma(0, (2,)))
        a.flush()
        I("s_branch", "L_p")

    def final(self):
        a, I = self.a, self.I
        T = self.sT
        a.label("L_final")
        a.forget_counters()
        xo = V(112, 8)
        I("s_lshl_b32", T[1], self.sW, 11)
        I("s_add_u32", T[1], T[1], L_SP)
        I("v_add_u32", V(120), T[1], self.vL16)
        I("s_add_u32", T[2], self.sX0o, 8 * 1792)
        for n in range(4):
            self.cvt(xo[2 * n:2 * n + 2], self.vR[4 * n:4 * n + 4])
            I("ds_write_b64", V(0), xo[2 * n:2 * n + 2], mods=f"offset:{32 * n}")
        a.wait(lg=0)
        for b in range(2): I("ds_read_b128", V(124 + 4 * b, 4), V(120), mods=f"offset:{1024 * b}")
        for b in range(2): I("buffer_store_dwordx4", V(124 + 4 * b, 4), self.vX0d, self.sOUT, T[2] if b else self.sX0o, mods="offen")
        a.label("L_fin2")
        self.stamp()
        if self.opt.get("stamps"):
            I("s_mov_b32", T[7], 63)
            self.stamp(real=True)
            I("s_lshl_b32", T[0], S(2), 2)
            I("s_add_u32", T[0], T[0], self.sW)
            I("s_lshl_b32", T[0], T[0], 8)
            I("s_add_u32", T[0], T[0], WS_STAMP)
            I("v_lshrrev_b32", V(120), 2, self.vL16)
            I("buffer_store_dword", self.vStamp, V(120), self.sWS, T[0], mods="offen")
        I("s_or_b32", T[0], S(2), self.sW)
        I("s_cmp_lg_u32", T[0], 0)
        I("s_cbranch_scc1", "L_end")
        if self.opt.get("dbg"):
            I("s_load_dwordx2", S(8, 2), S(0, 2), 64)
            a.wait(lg=0)
            self.srd(S(12, 4), S(8, 2), 256)
            I("v_lshrrev_b32", V(120), 2, self.vL16)
            I("v_readlane_b32", T[0], self.vStamp, 0)
            I("v_readlane_b32", T[1], self.vStamp, 62)
            I("v_readlane_b32", T[2], self.vStamp, 63)
            I("s_sub_u32", T[1], T[2], T[1])
            I("v_subrev_u32", V(121), T[0], self.vStamp)
            I("v_writelane_b32", V(121), T[1], 0)
            I("v_readlane_b32", T[0], V(121), 32)
            I("v_writelane_b32", V(121), T[0], 15)
            I("buffer_store_dword", V(121), V(120), S(12, 4), 0, mods="offen")
        I("v_mov_b32", V(120), self.sNonce)
        I("s_mov_b64", EXEC, 1)
        I("buffer_store_dword", V(120), OFF, self.sWS, 0)
        I("s_endpgm")

    def build(self):
        a = self.a
        self.prologue()
        self.p_stage()
        self.qa_stage()
        self.qb_stage()
        self.final()
        done = 0
        while done < len(self.tail):
            a.forget_counters()
            a.pos += 100
            self.tail[done]()
            done += 1
        a.label("L_end")
        a.I("s_endpgm")
        head = open("cdna_kernels/" + NAME[:-7] + ".s.ref").read().split("; Override launch")[0]
        out = head + f"; @launch grid=(256,1,1) block=(256,1,1) lds={LDS_BYTES}\n"
        out += f'.amdgcn_target "amdgcn-amd-amdhsa--gfx950"\n.text\n.globl {NAME}\n.p2align 8\n.type {NAME},@function\n{NAME}:\n'
        out += a.text()
        out += f""".section .rodata,"a"
.p2align 6
.amdhsa_kernel {NAME}
  .amdhsa_next_free_vgpr 512
  .amdhsa_next_free_sgpr 102
  .amdhsa_accum_offset 256
  .amdhsa_group_segment_fixed_size 0
  .amdhsa_kernarg_size 80
  .amdhsa_user_sgpr_count 2
  .amdhsa_user_sgpr_kernarg_segment_ptr 1
  .amdhsa_system_sgpr_workgroup_id_x 1
.end_amdhsa_kernel
"""
        return out


if __name__ == "__main__":
    opt = {}
    path = sys.argv[1]
    for kv in sys.argv[2:]:
        k, v = kv.split("=")
        opt[k] = int(v)
    g = Gen(opt)
    open(path, "w").write(g.build())
    import subprocess
    r = subprocess.run(["clang", "-x", "assembler", "-target", "amdgcn-amd-amdhsa", "-mcpu=gfx950", "-c", path, "-o", "gen_check.o"], capture_output=True, text=True)
    if r.returncode: print(r.stderr[:3000]); sys.exit(1)
    sz = subprocess.run(["llvm-readelf", "-S", "gen_check.o"], capture_output=True, text=True).stdout
    print("text bytes", [int(l.split()[6], 16) for l in sz.splitlines() if " .text" in l],
          "instructions", sum(g.a.count.values()), "nop states", g.a.nops)
```

```python
import sys
import math
import struct
from emit import Asm, V, A, S, VCC, EXEC, M0, OFF

NAME = "interleave_layers__sliding_local_dilated__linear_kernel_hedgehog__prompt_kernel"


def f32(x):
    return "0x%08x" % struct.unpack("<I", struct.pack("<f", x))[0]


WS_E = 0x0
WS_FX = 0x1000
WS_FO = 0x5000
WS_SLOW = 0x8000
WS_FH = 0x10000
WS_HELLO = 0x11000
WS_FWF = 0x12000
WS_STAMP = 0x20000
WS_X = 0x100000
WS_XS = 0x2C0000
WS_O = 0x300000
WS_KV = 0x500000
WS_HX = 0x700000
WS_FW = 0x800000
FW_T = 16 * 86016
WS_SIZE = 0xB00000
OOB = 0x7FFF0000

MAT = 28672
L_PW = 86016
L_SP = 151552
L_KVX = L_SP
L_WPHI = L_SP + 8192
L_CS = L_SP + 10240
L_EXK = 0
L_EXV = 8192
L_PH = 2 * MAT
LDS_BYTES = 163840

LOG2E = math.log2(math.e)


class Neg:
    def __init__(self, r): self.r = r
    def __str__(self): return "-" + str(self.r)
    def regs(self): return self.r.regs()


class Gen:
    def __init__(self, opt):
        self.opt = opt
        self.a = Asm()
        self.tail = []
        self.uid = 0

    def lab(self, base):
        self.uid += 1
        return f"L_{base}_{self.uid}"

    sX0, sWA, sWOA, sWB, sWOB, sOUT, sWS, sWP = (S(24 + 4 * i, 4) for i in range(8))
    (sGrp, sH, sW, sC, sRh, sBase, sTag, sMode, sIt, sPhase, sL, sBudget, sXq, sXSq, sOq, sXp, sXSp, sOp, sFXp, sFOq,
     sFOp, sHX, sHaloProd, sFHp, sKVst, sKVld, sQWo, sFirst, sPend, sX0o, sNonce, sXcc) = (S(56 + i) for i in range(32))
    sT = [S(88 + i) for i in range(8)]
    sT2 = S(96, 2)
    sStamp = S(98, 2)
    sFW, sQWl, sPWl, sPWo = S(4), S(5), S(6), S(7)

    vL16, vQ0, vQ1, vQv0, vQv1, vQh = (V(1 + i) for i in range(6))
    vP = [V(7 + i) for i in range(4)]
    vQWd, vX0d, vExpHC, vPollQ, vPollM, vPollP, vEXW, vEXRa, vHW, vM3, vStat = (V(11 + i) for i in range(11))
    vE0 = V(22, 2)
    vHalo, vHaloS, vStatSt, vZ, vExpHM, vExpC, vExpM, vMH = (V(24 + i) for i in range(8))
    vCH = V(32, 4)
    bCur, bPrev, bPrev0 = V(36, 4), V(40, 4), V(44, 4)
    vR = V(48, 16)
    cA, cB = V(64, 24), V(88, 24)
    vDummy = V(245)
    vPWd = [V(246 + i) for i in range(4)]
    vKA, vKB, vPollH, vKrd, vStamp = (V(250 + i) for i in range(5))
    vT = V(255)

    aOnes, aSel, aWphi = A(232, 4), A(236, 6), A(242, 8)

    def acc(self, T, ft): return V(112 + (T * 6 + ft) * 4, 4)
    hacc = V(160, 4)
    def straw(self, T): return V(164 + 4 * T, 4)
    def st(self, T): return V(176 + 4 * T, 4)
    def xf(self, T, ks): return A((ks * 2 + T) * 4, 4)
    def hx(self, ks): return A(112 + 4 * ks, 4)
    def wf(self, f): return A(168 + 4 * f, 4)

    def I(self, *x, **k): self.a.I(*x, **k)

    def stamp(self, real=False):
        if not self.opt.get("stamps"):
            return
        a = self.a
        a.I("s_memrealtime" if real else "s_memtime", self.sStamp)
        a.I("s_mov_b32", M0, self.sT[7])
        a.wait(lg=0)
        a.I("v_writelane_b32", self.vStamp, self.sStamp[0], M0)
        a.I("s_add_u32", self.sT[7], self.sT[7], 1)
        if getattr(self, "fine_pending", False):
            self.fine_pending = False
            for i in range(7): a.I("v_writelane_b32", self.vStamp, S(8 + 2 * i), 40 + i)
            a.I("v_writelane_b32", self.vStamp, self.sStamp[0], 47)

    def srd(self, dst, src, nbytes):
        self.I("s_mov_b32", dst[0], src[0])
        self.I("s_and_b32", dst[1], src[1], "0xffff")
        self.I("s_mov_b32", dst[2], nbytes)
        self.I("s_mov_b32", dst[3], "0x20000")

    def mfma(self, d, x, y, c):
        self.I("v_mfma_f32_16x16x32_bf16", d, x, y, c)

    def pk(self, op, d, x, y, z=None, bx=None, by=None, bz=None):
        srcs = [(x, bx), (y, by)] + ([(z, bz)] if z is not None else [])
        lo = [0 if b is None else b for _, b in srcs]
        hi = [1 if b is None else b for _, b in srcs]
        mods = []
        if any(lo): mods.append("op_sel:[%s]" % ",".join(map(str, lo)))
        if not all(hi): mods.append("op_sel_hi:[%s]" % ",".join(map(str, hi)))
        self.I(op, d, *[s for s, _ in srcs], mods=" ".join(mods))

    def allreduce_pairs(self, chains):
        for step in range(7):
            for op, x, y in chains:
                if step in (0, 6): self.I("v_permlane32_swap_b32", x, y)
                elif step in (1, 4): self.I(op, x, x, y)
                elif step in (2, 5): self.I("v_mov_b32", y, x)
                else: self.I("v_permlane16_swap_b32", x, y)

    def budget_branch(self, loop):
        self.I("s_sub_u32", self.sBudget, self.sBudget, 1)
        self.I("s_cbranch_scc1", "L_end")
        self.I("s_branch", loop)

    def flag_value(self, dst):
        self.I("s_lshl_b32", dst, self.sL, 4)
        self.I("s_or_b32", dst, dst, self.sBase)

    def publish(self, soff):
        a = self.a
        slow, done = self.lab("pubslow"), self.lab("pubdone")
        a.I("s_cmp_eq_u32", self.sMode, 0)
        a.I("s_cbranch_scc1", slow)
        a.I("s_mov_b64", EXEC, 1)
        a.I("buffer_store_dword", self.vT, OFF, self.sWS, soff)
        a.label(done)
        a.I("s_mov_b64", EXEC, -1)

        def tail():
            b = self.a
            b.label(slow)
            b.I("buffer_wbl2", mods="sc1")
            b.wait(vm=0)
            b.I("s_mov_b64", EXEC, 1)
            b.I("buffer_store_dword", self.vT, OFF, self.sWS, soff, mods="sc1")
            b.I("s_branch", done)
        self.tail.append(tail)

    def sched(self, mfmas, streams):
        a = self.a
        streams = [list(s) for s in streams]
        for i, m in enumerate(mfmas):
            self.mfma(*m)
            scalar_free = True
            if i + 1 < len(mfmas):
                n = mfmas[i + 1]
                if a.prewait(n[1], n[2]): scalar_free = False
            if scalar_free:
                for s in streams:
                    if s and s[0][0] <= i and s[0][1] == "s":
                        s.pop(0)[2]()
                        break
            slots = 2
            progress = True
            while slots > 0 and progress:
                progress = False
                for s in streams:
                    if not s or s[0][0] > i: continue
                    cost = 2 if s[0][1] == "w" else 1
                    if cost <= slots:
                        s.pop(0)[2]()
                        slots -= cost
                        progress = True
                        break
        return [it[2] for s in streams for it in s]

    def fw_dma(self, typ, mats):
        out = []
        for mat in mats:
            for i in range(7):
                if i % 4 == 0:
                    out.append(("s", lambda mat=mat, i=i: self.I("s_add_u32", M0, self.sQWl, mat * MAT + i * 1024)))
                    out.append(("s", lambda mat=mat, i=i: self.I("s_add_u32", self.sT[6], self.sFW, typ * FW_T + mat * MAT + i * 1024)))
                out.append(("v", lambda i=i: self.I("buffer_load_dwordx4", self.vL16, self.sWS, self.sT[6], mods=f"offen offset:{(i % 4) * 1024} lds")))
        return out

    def pw_dma(self, srd):
        out = []
        for hh in range(4):
            out.append(("s", lambda hh=hh: self.I("s_add_u32", M0, self.sPWl, hh * 4096)))
            out.append(("s", lambda hh=hh: self.I("s_add_u32", self.sT[5], self.sPWo, 28 * hh * 896)))
            for b in range(4):
                out.append(("v", lambda b=b: self.I("buffer_load_dwordx4", self.vPWd[b], srd, self.sT[5], mods=f"offen offset:{b * 1024} lds")))
        return out

    def raw_block(self, ks):
        for half in range(2):
            self.I("s_add_u32", M0, self.sT[4], ks * 2048 + half * 1024)
            self.I("s_add_u32", self.sT[6], self.sQWo, (32 * ks + 16 * half) * 2688)
            self.I("buffer_load_dwordx4", self.vQWd, self.sWA, self.sT[6], mods="offen lds", tag=f"raw{ks}")

    def tr_pair(self, dst, base, off):
        return [lambda: self.I("ds_read_b64_tr_b16", dst[0:2], base, mods=f"offset:{off}"),
                lambda: self.I("ds_read_b64_tr_b16", dst[2:4], base, mods=f"offset:{off + 1024}")]

    def qw_read(self, dst, ft, ks):
        base = (self.vQ0, self.vQ1, self.vQ0, self.vQ1, self.vQv0, self.vQv1)[ft]
        return self.tr_pair(dst, base, (MAT if ft in (2, 3) else 0) + ks * 2048)

    def prologue(self):
        a, I = self.a, self.I
        T = self.sT
        N1 = self.opt.get("n1", 4)
        assert N1 >= 3
        I("s_cmp_ge_u32", S(2), 256)
        I("s_cbranch_scc1", "L_end")
        I("s_getpc_b64", S(22, 2))
        a.label("L_pc")
        if self.opt.get("stamps"):
            I("s_memrealtime", S(100, 2))
            I("s_memtime", self.sStamp)
        I("s_load_dwordx8", S(4, 8), S(0, 2), 0)
        I("s_load_dwordx8", S(12, 8), S(0, 2), 32)
        I("s_load_dwordx2", S(20, 2), S(0, 2), 72)
        I("v_lshlrev_b32", V(112), 7, V(0))
        I("v_min_u32", V(112), "L_end-L_pc", V(112))
        I("global_load_dword", self.vDummy, V(112), S(22, 2), untracked=True)
        I("v_lshrrev_b32", V(114), 6, V(0))
        I("v_and_b32", V(0), 63, V(0))
        I("v_readfirstlane_b32", self.sW, V(114))
        I("s_and_b32", T[0], S(2), 7)
        I("s_lshr_b32", T[1], S(2), 3)
        I("s_and_b32", self.sH, T[1], 15)
        I("s_lshr_b32", T[1], T[1], 4)
        I("s_lshl_b32", T[0], T[0], 1)
        I("s_add_u32", self.sGrp, T[0], T[1])
        I("s_and_b32", self.sC, self.sH, 7)
        I("s_lshr_b32", self.sRh, self.sH, 3)
        lane, j, g, t0, t1, t2 = V(0), V(115), V(116), V(117), V(118), V(119)
        I("v_and_b32", j, 15, lane)
        I("v_lshrrev_b32", g, 4, lane)
        I("v_lshlrev_b32", self.vL16, 4, lane)
        I("s_lshl_b32", T[0], self.sGrp, 3)
        I("s_lshl_b32", T[1], self.sRh, 2)
        I("s_add_u32", T[0], T[0], T[1])
        I("s_add_u32", T[0], T[0], self.sW)
        I("s_and_b32", T[1], T[0], 63)
        I("s_mul_i32", T[1], T[1], 16 * 1792)
        I("s_lshr_b32", T[2], self.sGrp, 3)
        I("s_mul_i32", T[2], T[2], 896)
        I("s_add_u32", T[1], T[1], T[2])
        I("s_lshl_b32", T[2], self.sC, 7)
        I("s_add_u32", self.sX0o, T[1], T[2])
        I("v_lshrrev_b32", t0, 3, lane)
        I("v_mul_u32_u24", t0, 1792, t0)
        I("v_and_b32", t1, 7, lane)
        I("v_lshl_add_u32", self.vX0d, t1, 4, t0)
        I("v_lshrrev_b32", t0, 2, lane)
        I("v_mul_u32_u24", t1, 2688, t0)
        I("v_lshrrev_b32", t0, 3, lane)
        I("v_and_b32", t0, 2, t0)
        I("v_and_b32", t2, 3, lane)
        I("v_xor_b32", t0, t0, t2)
        I("v_lshl_add_u32", self.vQWd, t0, 4, t1)
        I("s_mul_i32", self.sQWo, self.sH, 56)
        I("s_mul_i32", T[1], self.sW, 896)
        I("s_add_u32", self.sQWo, self.sQWo, T[1])
        I("s_mul_i32", T[4], self.sW, MAT)
        I("s_lshl_b32", T[1], self.sW, 11)
        I("s_add_u32", M0, T[1], L_SP)
        I("s_add_u32", T[2], self.sX0o, 8 * 1792 - 1024)
        I("s_mul_i32", T[3], S(2), 37 * 128)
        I("s_mul_i32", T[5], S(2), 13 * 128)
        I("v_lshlrev_b32", t0, 7, lane)
        I("v_mov_b32", t1, OOB)
        I("v_cmp_gt_u32", VCC, 37, lane)
        I("v_cndmask_b32", V(121), t1, t0, VCC)
        I("v_cmp_gt_u32", VCC, 13, lane)
        I("v_cndmask_b32", V(122), t1, t0, VCC)
        I("s_mov_b32", self.sX0[2], 1835008)
        I("s_mov_b32", self.sX0[3], "0x20000")
        I("s_mov_b32", self.sWA[2], 1204224)
        I("s_mov_b32", self.sWA[3], "0x20000")
        a.wait(lg=0)
        I("s_load_dword", self.sNonce, S(20, 2), WS_E)
        I("s_mov_b32", self.sX0[0], S(4))
        I("s_and_b32", self.sX0[1], S(5), "0xffff")
        I("s_mov_b32", self.sWA[0], S(6))
        I("s_and_b32", self.sWA[1], S(7), "0xffff")
        skip0, w3a, w3b, w3c, w3d = (self.lab(x) for x in ("nox0", "w3a", "w3b", "w3c", "w3d"))
        I("s_cmp_eq_u32", self.sC, 7)
        I("s_cbranch_scc1", skip0)
        I("buffer_load_dwordx4", self.vX0d, self.sX0, self.sX0o, mods="offen lds")
        I("buffer_load_dwordx4", self.vX0d, self.sX0, T[2], mods="offen offset:1024 lds")
        a.label(skip0)
        I("s_cmp_eq_u32", self.sW, 3)
        I("s_cbranch_scc1", w3a)
        for ks in range(N1): self.raw_block(ks)
        I("s_branch", w3b)
        a.label(w3a)
        I("buffer_load_dword", self.vDummy, V(121), self.sWA, T[3], mods="offen", untracked=True)
        a.label(w3b)
        self.srd(self.sWB, S(12, 2), 1204224)
        self.srd(self.sWP, S(14, 2), 25088)
        self.srd(self.sWOA, S(8, 2), 401408)
        self.srd(self.sWOB, S(16, 2), 401408)
        self.srd(self.sOUT, S(18, 2), 1835008)
        self.srd(self.sWS, S(20, 2), WS_SIZE)
        I("s_cmp_lg_u32", self.sW, 3)
        I("s_cbranch_scc1", w3c)
        I("buffer_load_dword", self.vDummy, V(122), self.sWOA, T[5], mods="offen", untracked=True)
        I("buffer_load_dword", self.vDummy, V(121), self.sWB, T[3], mods="offen", untracked=True)
        I("buffer_load_dword", self.vDummy, V(122), self.sWOB, T[5], mods="offen", untracked=True)
        I("s_mul_i32", T[1], self.sH, 1568)
        I("s_mov_b32", M0, L_WPHI)
        I("s_mul_i32", T[2], self.sH, 56)
        I("buffer_load_dwordx4", self.vL16, self.sWP, T[1], mods="offen lds")
        I("buffer_load_dwordx4", self.vL16, self.sWP, T[1], mods="offen offset:1024 lds")
        I("s_cmp_ge_u32", self.sGrp, 14)
        I("s_cbranch_scc1", w3c)
        I("s_mul_i32", T[1], self.sGrp, 32 * 2688)
        I("s_add_u32", T[2], T[2], T[1])
        for typ in (1, 0):
            for mat in range(3):
                for half in range(2):
                    k = (typ * 3 + mat) * 2 + half
                    I("s_add_u32", T[1], T[2], mat * 896 + half * 16 * 2688)
                    I("buffer_load_dwordx4", V(128 + 4 * k, 4), self.vQWd, self.sWB if typ else self.sWA, T[1], mods="offen", untracked=True)
        a.label(w3c)
        a.forget_counters()
        a.smem = {("s", self.sNonce.n)}

        I("s_getreg_b32", self.sXcc, "hwreg(HW_REG_XCC_ID)")
        I("s_and_b32", self.sXcc, self.sXcc, 15)
        I("s_lshl_b32", T[1], self.sGrp, 3)
        I("s_lshl_b32", T[2], self.sW, 1)
        I("s_add_u32", T[1], T[1], T[2])
        I("s_mul_i32", self.sXq, T[1], 14336)
        I("s_add_u32", self.sXq, self.sXq, WS_X)
        I("s_lshl_b32", self.sXSq, T[1], 10)
        I("s_add_u32", self.sXSq, self.sXSq, WS_XS)
        I("s_lshl_b32", self.sOq, T[1], 14)
        I("s_lshl_b32", T[2], self.sH, 10)
        I("s_add_u32", self.sOq, self.sOq, T[2])
        I("s_add_u32", self.sOq, self.sOq, WS_O)
        I("s_lshl_b32", T[3], T[1], 7)
        I("s_add_u32", T[3], T[3], WS_FX)
        I("s_mul_i32", self.sXp, T[0], 14336)
        I("s_lshl_b32", T[2], self.sC, 11)
        I("s_add_u32", self.sXp, self.sXp, T[2])
        I("s_add_u32", self.sXp, self.sXp, WS_X)
        I("s_lshl_b32", self.sXSp, T[0], 10)
        I("s_lshl_b32", T[2], self.sC, 7)
        I("s_add_u32", self.sXSp, self.sXSp, T[2])
        I("s_add_u32", self.sXSp, self.sXSp, WS_XS)
        I("s_lshl_b32", self.sOp, T[0], 14)
        I("s_add_u32", self.sOp, self.sOp, WS_O)
        I("s_lshl_b32", self.sFXp, T[0], 7)
        I("s_lshl_b32", T[2], self.sC, 2)
        I("s_add_u32", self.sFXp, self.sFXp, T[2])
        I("s_add_u32", self.sFXp, self.sFXp, WS_FX)
        I("s_lshl_b32", T[1], self.sGrp, 2)
        I("s_add_u32", T[2], T[1], self.sW)
        I("s_lshl_b32", self.sFOq, T[2], 7)
        I("s_lshl_b32", T[2], self.sH, 2)
        I("s_add_u32", self.sFOq, self.sFOq, T[2])
        I("s_add_u32", self.sFOq, self.sFOq, WS_FO)
        I("s_lshr_b32", T[2], T[0], 1)
        I("s_lshl_b32", self.sFOp, T[2], 7)
        I("s_add_u32", self.sFOp, self.sFOp, WS_FO)
        I("s_lshl_b32", self.sHX, self.sGrp, 14)
        I("s_add_u32", self.sHX, self.sHX, WS_HX)
        I("s_lshl_b32", self.sFHp, self.sGrp, 7)
        I("s_add_u32", self.sFHp, self.sFHp, WS_FH)
        I("s_and_b32", T[1], self.sGrp, 7)
        I("s_cmp_eq_u32", T[1], 0)
        I("s_cselect_b32", self.sFirst, 1, 0)
        I("s_cmp_lg_u32", T[1], 7)
        I("s_cselect_b32", T[1], 1, 0)
        I("s_and_b32", T[2], T[0], 7)
        I("s_cmp_eq_u32", T[2], 7)
        I("s_cselect_b32", self.sHaloProd, T[1], 0)
        I("s_lshl_b32", T[1], self.sH, 2)
        I("s_add_u32", T[1], T[1], self.sW)
        I("s_lshl_b32", self.sKVld, T[1], 14)
        I("s_add_u32", self.sKVld, self.sKVld, WS_KV)
        I("s_lshl_b32", T[1], self.sGrp, 10)
        I("s_add_u32", self.sKVst, self.sKVld, T[1])
        I("s_mul_i32", self.sQWl, self.sW, 7168)
        I("s_mul_i32", self.sFW, self.sH, 86016)
        I("s_add_u32", self.sFW, self.sFW, self.sQWl)
        I("s_add_u32", self.sFW, self.sFW, WS_FW)
        I("s_lshl_b32", self.sPWl, self.sW, 14)
        I("s_add_u32", self.sPWl, self.sPWl, L_PW)
        I("s_mul_i32", self.sPWo, self.sW, 4 * 28 * 896)
        I("s_min_u32", T[1], self.sC, 6)
        I("s_lshl_b32", T[1], T[1], 7)
        I("s_add_u32", self.sPWo, self.sPWo, T[1])
        I("s_mov_b32", self.sMode, 1)
        I("s_mov_b32", self.sIt, 0)
        I("s_mov_b32", self.sPhase, 0)
        I("s_mov_b32", self.sL, 0)
        I("s_mov_b32", self.sPend, 0)
        I("s_mov_b32", self.sBudget, 400000)
        if self.opt.get("stamps"):
            I("s_mov_b32", T[7], 1)
            I("v_mov_b32", self.vStamp, 0)
            I("v_writelane_b32", self.vStamp, self.sStamp[0], 0)
            I("v_writelane_b32", self.vStamp, S(100), 62)

        if self.opt.get("touch", 1):
            u, vv = V(123), V(124)
            I("v_and_b32", u, 7, lane)
            I("v_lshlrev_b32", u, 7, u)
            I("s_cmp_eq_u32", self.sC, 7)
            I("s_cselect_b32", T[5], OOB, self.sXp)
            I("s_cselect_b32", T[6], OOB, self.sXSp)
            I("v_lshl_add_u32", t0, lane, 7, T[5])
            I("s_add_u32", T[1], self.sOq, 16384)
            I("s_add_u32", T[2], self.sKVst, 0x100000)
            for lo, base in ((16, self.sOq), (24, T[1]), (32, self.sKVst), (40, T[2]), (48, T[6])):
                I("v_add_u32", vv, base, u)
                I("v_cmp_le_u32", VCC, lo, lane)
                I("v_cndmask_b32", t0, t0, vv, VCC)
            I("v_cmp_lt_u32", VCC, 48, lane)
            I("v_mov_b32", vv, OOB)
            I("v_cndmask_b32", t0, t0, vv, VCC)
            I("buffer_load_dword", self.vDummy, t0, self.sWS, 0, mods="offen", untracked=True)

        r, cc = V(123), V(124)
        I("v_lshrrev_b32", r, 2, j)
        I("v_and_b32", cc, 3, j)
        I("v_lshl_add_u32", t0, g, 2, r)
        I("v_lshlrev_b32", t1, 3, cc)
        I("v_lshl_add_u32", t2, t0, 6, t1)
        I("v_and_b32", V(125), 1, g)
        I("v_lshl_add_u32", self.vQ0, V(125), 5, t2)
        I("v_xor_b32", self.vQ1, 32, self.vQ0)
        I("v_add_u32", self.vQv0, 2 * MAT, self.vQ0)
        I("v_add_u32", self.vQv1, 2 * MAT, self.vQ1)
        I("s_and_b32", T[1], self.sW, 1)
        I("s_lshl_b32", T[2], T[1], 5)
        I("v_xor_b32", self.vQh, T[2], self.vQ0)
        I("s_lshr_b32", T[2], self.sW, 1)
        I("s_add_u32", T[2], T[2], 1)
        I("s_mul_i32", T[2], T[2], MAT)
        I("v_add_u32", self.vQh, T[2], self.vQh)
        I("v_lshl_add_u32", t2, t0, 7, t1)
        I("v_add_u32", t2, L_PW, t2)
        I("v_lshrrev_b32", V(125), 1, t0)
        I("v_and_b32", V(125), 3, V(125))
        for n in range(4):
            I("v_xor_b32", V(126), n, V(125))
            I("v_lshl_add_u32", self.vP[n], V(126), 5, t2)
        I("v_lshrrev_b32", V(125), 1, t0)
        I("v_xor_b32", V(125), V(125), cc)
        I("v_and_b32", V(125), 3, V(125))
        I("v_lshlrev_b32", V(125), 4, V(125))
        I("v_lshl_add_u32", V(126), t0, 6, V(125))
        I("s_lshl_b32", T[2], self.sW, 11)
        I("s_add_u32", T[5], T[2], L_EXV)
        I("v_add_u32", self.vEXRa, T[5], V(126))
        I("s_lshr_b32", T[5], self.sW, 1)
        I("s_lshl_b32", T[5], T[5], 13)
        I("s_add_u32", T[5], T[5], L_PH)
        I("v_add_u32", self.vKA, T[5], V(126))
        I("s_lshl_b32", T[5], T[1], 3)
        I("s_add_u32", T[5], T[5], L_PH + 16384)
        I("v_add_u32", self.vKB, T[5], V(126))
        I("v_lshrrev_b32", V(125), 1, j)
        I("v_xor_b32", V(125), V(125), g)
        I("v_and_b32", V(125), 3, V(125))
        I("v_lshlrev_b32", V(125), 4, V(125))
        I("v_lshl_add_u32", V(126), j, 6, V(125))
        I("v_add_u32", self.vEXW, T[2], V(126))
        I("s_lshl_b32", T[5], self.sW, 10)
        I("v_add_u32", self.vKrd, T[5], self.vL16)
        I("v_add_u32", V(126), L_EXV, V(126))
        I("s_cmp_lt_u32", self.sW, 2)
        I("s_cselect_b64", VCC, -1, 0)
        I("v_cndmask_b32", V(126), V(126), self.vL16, VCC)
        I("s_lshl_b32", T[5], T[1], 3)
        I("v_add_u32", self.vHW, T[5], V(126))
        I("v_lshrrev_b32", t0, 3, lane)
        I("v_mul_u32_u24", t1, 896, t0)
        I("v_and_b32", t0, 6, t0)
        I("v_and_b32", t2, 7, lane)
        I("v_xor_b32", t0, t0, t2)
        I("v_lshl_add_u32", self.vPWd[0], t0, 4, t1)
        for b in range(1, 4):
            I("v_add_u32", self.vPWd[b], b * (8 * 896 - 1024), self.vPWd[0])
        I("v_mov_b32", t1, OOB)
        I("v_cmp_gt_u32", VCC, 32, lane)
        I("v_cndmask_b32", self.vPWd[3], t1, self.vPWd[3], VCC)
        I("v_cmp_gt_u32", VCC, 48, lane)
        I("v_cndmask_b32", self.vM3, 0, -1, VCC)
        I("v_cndmask_b32", self.vE0[0], 1.0, 0, VCC)
        I("v_mov_b32", self.vE0[1], 0)
        I("s_cmp_eq_u32", T[1], 1)
        I("s_cselect_b64", VCC, -1, 0)
        I("v_cndmask_b32", self.vMH, -1, self.vM3, VCC)
        I("v_lshlrev_b32", self.vStatSt, 3, j)
        I("v_lshl_add_u32", self.vStat, g, 7, self.vStatSt)
        I("v_cmp_le_u32", VCC, 8, j)
        I("v_cndmask_b32", self.vHalo, t1, self.vL16, VCC)
        I("s_cmp_eq_u32", self.sFirst, 1)
        I("s_cselect_b64", VCC, -1, 0)
        I("v_cndmask_b32", self.vHalo, self.vHalo, t1, VCC)
        I("v_cndmask_b32", self.vHaloS, self.vStat, t1, VCC)
        I("v_lshlrev_b32", self.vZ, 8, g)
        I("v_add_u32", self.vZ, L_KVX + 1024 + 12 * 16, self.vZ)
        I("v_lshlrev_b32", self.vPollP, 2, j)
        I("v_and_b32", t0, 7, lane)
        I("v_min_u32", t0, 6, t0)
        I("v_lshlrev_b32", V(127), 2, t0)
        I("v_min_u32", t0, 13, j)
        I("v_lshlrev_b32", t0, 2, t0)
        I("v_lshrrev_b32", t2, 1, g)
        I("v_xor_b32", t2, 1, t2)
        I("v_lshl_add_u32", t0, t2, 11, t0)
        I("s_lshl_b32", T[5], self.sH, 7)
        I("s_add_u32", T[5], T[5], WS_FWF)
        I("v_add_u32", t0, T[5], t0)
        I("v_add_u32", t2, self.sFHp, V(127))
        I("s_cmp_eq_u32", self.sFirst, 1)
        I("s_cselect_b32", T[5], 0, 16)
        I("v_cmp_gt_u32", VCC, T[5], lane)
        I("v_cndmask_b32", self.vPollH, t0, t2, VCC)
        I("v_cndmask_b32", self.vExpHM, 0, 16, VCC)
        I("v_cndmask_b32", self.vExpHC, 16, 0, VCC)
        I("v_lshrrev_b32", t2, 3, j)
        I("v_lshl_add_u32", t2, t2, 7, V(127))
        I("v_add_u32", t2, T[3], t2)
        I("s_lshl_b32", T[5], self.sGrp, 7)
        I("s_add_u32", T[5], T[5], WS_HELLO)
        I("v_add_u32", t0, T[5], self.vPollP)
        I("v_and_b32", V(125), 1, g)
        I("v_cmp_eq_u32", VCC, 0, V(125))
        I("v_cndmask_b32", self.vPollQ, t0, t2, VCC)
        I("v_cndmask_b32", self.vPollM, -16, -1, VCC)
        I("v_cndmask_b32", self.vExpM, 0, 16, VCC)
        I("v_mov_b32", t0, self.sXcc)
        I("v_cndmask_b32", self.vExpC, t0, 0, VCC)
        I("v_mov_b32", V(125), f32(-1e30))
        for rr in range(4):
            I("v_lshl_add_u32", t0, g, 2, rr)
            I("v_sub_u32", t2, j, t0)
            I("v_cmp_gt_u32", VCC, 8, t2)
            I("v_cndmask_b32", self.bCur[rr], V(125), 0, VCC)
            I("v_add_u32", t2, 16, t2)
            I("v_cmp_gt_u32", VCC, 8, t2)
            I("v_cndmask_b32", self.bPrev[rr], V(125), 0, VCC)
        I("s_cmp_eq_u32", self.sW, 0)
        I("s_cselect_b32", T[2], self.sFirst, 0)
        I("s_cmp_eq_u32", T[2], 1)
        I("s_cselect_b64", VCC, -1, 0)
        for rr in range(4):
            I("v_cndmask_b32", self.bPrev0[rr], self.bPrev[rr], V(125), VCC)
        I("v_mov_b32", t0, "0x3f803f80")
        for k in range(4): I("v_accvgpr_write_b32", self.aOnes[k], t0)
        for k in (0, 1, 4, 5): I("v_accvgpr_write_b32", self.aSel[k], 0)
        I("v_and_b32", V(125), 1, j)
        I("v_lshlrev_b32", V(125), 4, V(125))
        I("v_mov_b32", t0, "0x3f80")
        I("v_lshlrev_b32", t0, V(125), t0)
        I("v_cmp_eq_u32", VCC, r, g)
        I("v_cndmask_b32", t0, 0, t0, VCC)
        I("v_cmp_gt_u32", VCC, 2, cc)
        I("v_cndmask_b32", t2, 0, t0, VCC)
        I("v_cndmask_b32", t0, t0, 0, VCC)
        I("v_accvgpr_write_b32", self.aSel[2], t2)
        I("v_accvgpr_write_b32", self.aSel[3], t0)
        I("s_lshl_b32", T[1], self.sW, 11)
        I("s_add_u32", T[1], T[1], L_SP)
        I("v_lshlrev_b32", t0, 7, j)
        I("v_lshl_add_u32", t0, g, 3, t0)
        I("v_add_u32", V(0), T[1], t0)
        self.stamp()

        nos0 = self.lab("nos0")
        I("s_cmp_eq_u32", self.sC, 7)
        I("s_cbranch_scc1", nos0)
        a.raw("    s_waitcnt vmcnt(6)")
        a.pos += 1
        for n in range(4):
            I("ds_read_b64", V(112 + 2 * n, 2), V(0), mods=f"offset:{32 * n}")
        a.wait(lg=0)
        for n in range(4):
            for p in range(2):
                I("v_lshlrev_b32", self.vR[4 * n + 2 * p], 16, V(112 + 2 * n + p))
                I("v_and_b32", self.vR[4 * n + 2 * p + 1], "0xffff0000", V(112 + 2 * n + p))
        a.label(nos0)
        a.raw("    s_waitcnt lgkmcnt(0)")
        a.pos += 1
        a.forget_counters()
        I("s_add_u32", self.sNonce, self.sNonce, "0x10100")
        I("s_and_b32", self.sBase, self.sNonce, "0xffffff00")
        I("s_and_b32", self.sTag, self.sNonce, "0x3fff0000")
        I("v_or_b32", self.vExpC, self.sBase, self.vExpC)
        I("v_or_b32", self.vExpHC, self.sBase, self.vExpHC)
        a.flush()
        I("s_cmp_eq_u32", self.sC, 7)
        I("s_cbranch_scc1", "L_pdone")
        I("s_branch", "L_pepi")

    def startup2(self):
        a, I = self.a, self.I
        T = self.sT
        N1 = self.opt.get("n1", 4)
        w3, done = self.lab("s2w3"), self.lab("s2done")
        I("s_cmp_eq_u32", self.sW, 3)
        I("s_cbranch_scc1", w3)
        ad0, ad1 = V(188), V(189)
        d0, d1 = V(192, 4), V(196, 4)
        I("s_mul_i32", T[4], self.sW, MAT)
        I("v_add_u32", ad0, T[4], self.vQ0)
        I("v_add_u32", ad1, T[4], self.vQ1)
        a.vm = [(f"raw{ks}", set()) for ks in range(N1) for _ in range(2)]
        AH = self.opt.get("ah", 5)
        nxt = N1
        for ks in range(14):
            while nxt < 14 and nxt <= ks + AH:
                self.raw_block(nxt)
                nxt += 1
            a.wait_vm_tag(f"raw{ks}")
            w0, w1 = self.wf(2 * (ks & 1)), self.wf(2 * (ks & 1) + 1)
            for f in self.tr_pair(w0, ad0, ks * 2048) + self.tr_pair(w1, ad1, ks * 2048): f()
            if ks:
                p0, p1 = self.wf(2 * ((ks - 1) & 1)), self.wf(2 * ((ks - 1) & 1) + 1)
                self.mfma(d0, p0, self.aOnes, 0 if ks == 1 else d0)
                self.mfma(d1, p1, self.aOnes, 0 if ks == 1 else d1)
        self.mfma(d0, self.wf(2), self.aOnes, d0)
        self.mfma(d1, self.wf(3), self.aOnes, d1)
        I("v_lshrrev_b32", ad0, 8, self.vL16)
        I("v_lshlrev_b32", ad0, 4, ad0)
        I("s_lshl_b32", T[0], self.sW, 7)
        I("s_add_u32", T[0], T[0], L_CS)
        I("v_add_u32", ad0, T[0], ad0)
        I("s_mov_b32", self.sT2[0], "0x00010001")
        I("s_mov_b32", self.sT2[1], "0x00010001")
        a.flush()
        I("s_mov_b64", EXEC, self.sT2)
        I("ds_write_b128", ad0, d0)
        I("ds_write_b128", ad0, d1, mods="offset:64")
        I("s_mov_b64", EXEC, -1)
        a.wait(lg=0)
        I("s_branch", done)

        a.label(w3)
        a.forget_counters()
        nofw, nofw2, nopend = self.lab("nofw"), self.lab("nofw2"), self.lab("nopend")
        I("s_or_b32", T[1], self.sBase, self.sXcc)
        I("v_mov_b32", self.vT, T[1])
        I("s_lshl_b32", T[1], self.sGrp, 7)
        I("s_lshl_b32", T[2], self.sH, 2)
        I("s_add_u32", T[1], T[1], T[2])
        I("s_add_u32", T[1], T[1], WS_HELLO)
        I("s_mov_b64", EXEC, 1)
        I("buffer_store_dword", self.vT, OFF, self.sWS, T[1], mods="sc1")
        I("s_mov_b64", EXEC, -1)
        I("s_cmp_ge_u32", self.sGrp, 14)
        I("s_cbranch_scc1", nofw)
        I("s_lshl_b32", T[1], self.sGrp, 11)
        I("s_add_u32", T[1], T[1], self.sFW)
        I("s_sub_u32", T[1], T[1], 3 * 7168)
        a.wait(vm=1)
        for typ in (1, 0):
            for mat in range(3):
                I("s_add_u32", T[2], T[1], typ * FW_T + mat * MAT)
                for half in range(2):
                    k = (typ * 3 + mat) * 2 + half
                    I("buffer_store_dwordx4", V(128 + 4 * k, 4), self.vL16, self.sWS, T[2], mods=f"offen offset:{half * 1024} sc1")
        a.label(nofw)
        I("s_or_b32", T[0], self.sBase, 16)
        I("v_mov_b32", V(112), T[0])
        I("s_lshl_b32", T[1], self.sH, 7)
        I("s_lshl_b32", T[2], self.sGrp, 2)
        I("s_add_u32", T[1], T[1], T[2])
        I("s_add_u32", T[1], T[1], WS_FWF)
        a.wait(vm=0)
        I("s_mov_b64", EXEC, 1)
        I("s_cmp_ge_u32", self.sGrp, 14)
        I("s_cbranch_scc1", nofw2)
        I("buffer_store_dword", V(112), OFF, self.sWS, T[1], mods="sc1")
        I("buffer_store_dword", V(112), OFF, self.sWS, T[1], mods="offset:2048 sc1")
        a.label(nofw2)
        I("s_cmp_eq_u32", self.sPend, 0)
        I("s_cbranch_scc1", nopend)
        I("s_lshl_b32", T[1], self.sC, 2)
        I("s_add_u32", T[1], T[1], self.sFHp)
        I("buffer_store_dword", V(112), OFF, self.sWS, T[1], mods="offset:128 sc1")
        I("s_mov_b32", self.sPend, 0)
        a.label(nopend)
        I("s_mov_b64", EXEC, -1)
        a.label(done)
        a.flush()
        a.forget_counters()

    def p_stage(self):
        a, I = self.a, self.I
        T = self.sT
        NPRE = self.opt.get("npre", 10)
        a.label("L_p")
        a.forget_counters()
        I("s_barrier")
        I("s_cmp_eq_u32", self.sC, 7)
        I("s_cbranch_scc1", "L_pidle")
        def pwf(hh, n): return A(64 + ((hh % NPRE) * 4 + n) * 4, 4)
        def pw_read(hh, n):
            return [lambda: I("ds_read_b64_tr_b16", pwf(hh, n)[0:2], self.vP[n], mods=f"offset:{hh * 4096}"),
                    lambda: I("ds_read_b64_tr_b16", pwf(hh, n)[2:4], self.vP[n], mods=f"offset:{hh * 4096 + 2048}")]
        self.flag_value(T[0])
        I("buffer_load_dword", V(112), self.vPollP, self.sWS, self.sFOp, mods="offen sc1")
        early = self.opt.get("pearly", 7)
        for hh in range(early):
            for n in range(4):
                for f in pw_read(hh, n): f()
        loop, ok = self.lab("ppoll"), self.lab("ppass")
        a.label(loop)
        a.wait(vm=0)
        I("v_cmp_ne_u32", VCC, T[0], V(112))
        I("s_cbranch_vccz", ok)
        I("buffer_load_dword", V(112), self.vPollP, self.sWS, self.sFOp, mods="offen sc1")
        self.budget_branch(loop)
        a.label(ok)
        a.vm = []
        self.stamp()
        def of(hh): return A(4 * hh, 4)
        def oload(hh):
            out = []
            if hh % 4 == 0 and hh:
                out.append(("s", lambda: I("s_add_u32", T[1], self.sOp, hh * 1024)))
            so = self.sOp if hh < 4 else T[1]
            out.append(("v", lambda: I("buffer_load_dwordx4", of(hh), self.vL16, self.sWS, so, mods=f"offen offset:{(hh % 4) * 1024} sc1")))
            return out
        NO = 9
        for hh in range(NO):
            for _, f in oload(hh): f()
        for hh in range(early, NPRE):
            for n in range(4):
                for f in pw_read(hh, n): f()
        mf, so, sw = [], [], []
        for hh in range(16):
            for n in range(4):
                mf.append((self.vR[4 * n:4 * n + 4], pwf(hh, n), of(hh), self.vR[4 * n:4 * n + 4]))
                if hh + NPRE < 16:
                    sw += [(4 * hh + n, "v", f) for f in pw_read(hh + NPRE, n)]
            if hh + NO < 16: so += [(4 * hh, k, f) for k, f in oload(hh + NO)]
        rest = self.sched(mf, [so, sw])
        assert not rest
        a.flush()
        self.stamp()
        I("s_cmp_eq_u32", self.sL, 4)
        I("s_cbranch_scc1", "L_final")

        a.label("L_pepi")
        xo = V(112, 8)
        for k in range(8):
            I("v_cvt_pk_bf16_f32", xo[k], self.vR[2 * k], self.vR[2 * k + 1])
            if k == 3: I("buffer_store_dwordx4", xo[0:4], self.vL16, self.sWS, self.sXp, mods="offen")
        I("buffer_store_dwordx4", xo[4:8], self.vL16, self.sWS, self.sXp, mods="offen offset:1024")
        sm, sq = V(120, 2), V(122, 2)
        self.pk("v_pk_add_f32", sm, self.vR[0:2], self.vR[2:4])
        self.pk("v_pk_mul_f32", sq, self.vR[0:2], self.vR[0:2])
        self.pk("v_pk_fma_f32", sq, self.vR[2:4], self.vR[2:4], sq)
        for k in range(2, 8):
            self.pk("v_pk_add_f32", sm, sm, self.vR[2 * k:2 * k + 2])
            self.pk("v_pk_fma_f32", sq, self.vR[2 * k:2 * k + 2], self.vR[2 * k:2 * k + 2], sq)
        pr = V(124, 2)
        I("v_add_f32", pr[0], sm[0], sm[1])
        I("v_add_f32", pr[1], sq[0], sq[1])
        x, y = pr[0], pr[1]
        I("s_add_u32", self.sL, self.sL, 1)
        I("s_lshl_b32", T[0], self.sL, 4)
        I("v_permlane32_swap_b32", x, y)
        I("s_or_b32", T[0], T[0], self.sBase)
        I("v_add_f32", x, x, y)
        I("v_mov_b32", y, x)
        I("v_mov_b32", self.vT, T[0])
        I("s_cmp_eq_u32", self.sPhase, 0)
        I("v_permlane16_swap_b32", x, y)
        I("s_cselect_b32", self.sPend, self.sHaloProd, 0)
        I("v_add_f32", x, x, y)
        I("v_mov_b32", y, x)
        I("s_lshl_b32", T[1], self.sC, 11)
        I("s_add_u32", T[1], T[1], self.sHX)
        I("v_permlane32_swap_b32", x, y)
        I("s_mov_b64", EXEC, "0xffff")
        I("buffer_store_dwordx2", pr, self.vStatSt, self.sWS, self.sXSp, mods="offen")
        I("s_mov_b64", EXEC, -1)
        nh, pub = self.lab("nohalo"), self.lab("pub")
        I("s_cmp_eq_u32", self.sPend, 0)
        I("s_cbranch_scc0", nh)
        a.wait(vm=0)
        a.label(pub)
        self.publish(self.sFXp)

        def tail():
            b = self.a
            b.label(nh)
            b.I("s_add_u32", T[1], T[1], 16384)
            b.I("buffer_store_dwordx4", xo[0:4], self.vL16, self.sWS, T[1], mods="offen sc1")
            b.I("buffer_store_dwordx4", xo[4:8], self.vL16, self.sWS, T[1], mods="offen offset:1024 sc1")
            b.I("s_lshl_b32", T[1], self.sC, 7)
            b.I("s_add_u32", T[1], T[1], self.sHX)
            b.I("s_add_u32", T[1], T[1], 16384 + 14336)
            b.I("s_mov_b64", EXEC, "0xffff")
            b.I("buffer_store_dwordx2", pr, self.vStatSt, self.sWS, T[1], mods="offen sc1")
            b.I("s_mov_b64", EXEC, -1)
            b.wait(vm=3)
            b.I("s_branch", pub)
        self.tail.append(tail)
        a.label("L_pnext")
        a.flush()
        a.forget_counters()
        self.stamp()
        if self.opt.get("stop"):
            I("s_cmp_eq_u32", self.sL, self.opt["stop"])
            I("s_cbranch_scc1", "L_fin2")
        I("s_cmp_eq_u32", self.sPhase, 1)
        I("s_cbranch_scc1", "L_qb")

        def idle():
            b = self.a
            b.label("L_pidle")
            b.I("s_cmp_eq_u32", self.sL, 4)
            b.I("s_cbranch_scc1", "L_fin2")
            b.label("L_pdone")
            b.I("s_add_u32", self.sL, self.sL, 1)
            b.I("s_branch", "L_pnext")
        self.tail.append(idle)

    def q_poll(self):
        a, I = self.a, self.I
        T = self.sT
        ex, t, pv = V(112), V(113), V(114)
        loop, ok, pend, nopend, slow, again = (self.lab(x) for x in ("qpoll", "qpass", "pend", "nopend", "qslow", "qagain"))
        I("v_mad_u32_u24", ex, self.vExpM, self.sL, self.vExpC)
        a.label(loop)
        I("buffer_load_dword", pv, self.vPollQ, self.sWS, 0, mods="offen sc1")
        I("s_cmp_eq_u32", self.sPend, 0)
        a.wait(vm=0)
        I("s_cbranch_scc0", pend)
        a.label(nopend)
        I("v_xor_b32", t, pv, ex)
        I("v_cmp_ne_u32", VCC, 0, t)
        I("s_cbranch_vccnz", slow)
        a.label(ok)
        a.vm = []

        def tail():
            b = self.a
            b.label(pend)
            b.I("s_lshl_b32", T[1], self.sC, 2)
            b.I("s_add_u32", T[1], T[1], self.sFHp)
            self.flag_value(T[0])
            b.I("v_mov_b32", self.vT, T[0])
            b.I("s_mov_b64", EXEC, 1)
            b.I("buffer_store_dword", self.vT, OFF, self.sWS, T[1], mods="offset:128 sc1")
            b.I("s_mov_b64", EXEC, -1)
            b.I("s_mov_b32", self.sPend, 0)
            b.I("s_branch", nopend)
            b.label(slow)
            b.I("s_cmp_eq_u32", self.sMode, 0)
            b.I("s_cbranch_scc1", again + "m")
            b.I("v_not_b32", V(115), self.vPollM)
            b.I("v_and_b32", V(116), t, self.vPollM)
            b.I("v_and_b32", V(115), t, V(115))
            b.I("v_cmp_ne_u32", self.sT2, 0, V(115))
            b.I("v_cmp_eq_u32", VCC, 0, V(116))
            b.nop(2)
            b.I("s_and_b64", self.sT2, self.sT2, VCC)
            b.I("s_cbranch_scc0", again)
            b.I("s_mov_b32", self.sMode, 0)
            b.I("s_add_u32", self.sFXp, self.sFXp, WS_SLOW)
            b.I("s_add_u32", self.sFOq, self.sFOq, WS_SLOW)
            b.I("s_add_u32", self.sFOp, self.sFOp, WS_SLOW)
            b.I("v_lshlrev_b32", V(115), 11, self.vExpM)
            b.I("v_add_u32", self.vPollQ, V(115), self.vPollQ)
            b.I("s_cmp_eq_u32", self.sC, 7)
            b.I("s_cbranch_scc1", again)
            b.I("buffer_wbl2", mods="sc1")
            b.wait(vm=0)
            b.I("s_or_b32", T[0], self.sBase, 16)
            b.I("v_mov_b32", self.vT, T[0])
            b.I("s_mov_b64", EXEC, 1)
            b.I("buffer_store_dword", self.vT, OFF, self.sWS, self.sFXp, mods="sc1")
            b.I("s_mov_b64", EXEC, -1)
            b.I("s_branch", again)
            b.label(again + "m")
            b.I("v_and_b32", V(116), t, self.vPollM)
            b.I("v_cmp_ne_u32", VCC, 0, V(116))
            b.I("s_cbranch_vccz", ok)
            b.label(again)
            self.budget_branch(loop)
        self.tail.append(tail)

    def xload(self, ks):
        out = []
        if ks % 4 == 0:
            out.append(("s", lambda: self.I("s_add_u32", self.sT[1], self.sXq, ks * 1024)))
            out.append(("s", lambda: self.I("s_add_u32", self.sT[2], self.sXq, ks * 1024 + 14336)))
        for t in range(2):
            out.append(("v", lambda t=t: self.I("buffer_load_dwordx4", self.xf(t, ks), self.vL16, self.sWS, self.sT[1 + t],
                                               mods=f"offen offset:{(ks % 4) * 1024} sc1")))
        return out

    def stats_ops(self, T, layer):
        raw, st = self.straw(T), self.st(T)
        t = V(188 + 2 * T, 2)
        ops = []
        def add(*x, **k): ops.append(("w" if ("perm" in x[0] or "rsq" in x[0]) else "v", lambda: self.I(*x, **k)))
        add("v_and_b32", raw[2], raw[2], self.vM3)
        add("v_and_b32", raw[3], raw[3], self.vM3)
        add("v_add_f32", raw[0], raw[0], raw[2])
        add("v_add_f32", raw[1], raw[1], raw[3])
        for step in range(7):
            x, y = raw[0], raw[1]
            if step in (0, 6): add("v_permlane32_swap_b32", x, y)
            elif step in (1, 4): add("v_add_f32", x, x, y)
            elif step in (2, 5): add("v_mov_b32", y, x)
            else: add("v_permlane16_swap_b32", x, y)
        add("v_mul_f32", st[0], f32(-1.0 / 448), raw[0])
        add("v_mul_f32", t[0], f32(1.0 / 448), raw[1])
        add("v_fma_f32", t[0], Neg(st[0]), st[0], t[0])
        add("v_max_f32", t[0], 0, t[0])
        add("v_add_f32", t[0], f32(1e-5), t[0])
        add("v_rsq_f32", st[1], t[0])
        add("v_and_b32", st[2], st[1], self.vMH if T == 2 else self.vM3)
        if T < 2:
            add("v_mul_f32", st[3], f32(LOG2E * (28 ** -0.5 if layer == "A" else 1.0)), st[1])
        return ops

    def colsum_b(self):
        a, I = self.a, self.I
        T = self.sT
        ad0, ad1 = V(188), V(189)
        d0, d1 = V(192, 4), V(196, 4)
        I("s_and_b32", T[0], self.sW, 1)
        I("s_lshl_b32", T[0], T[0], 5)
        I("v_xor_b32", ad0, T[0], self.vQ0)
        I("v_add_u32", ad1, 2 * MAT, ad0)
        I("s_lshr_b32", T[0], self.sW, 1)
        I("s_mul_i32", T[0], T[0], MAT)
        I("v_add_u32", ad0, T[0], ad0)
        def w(ks, q): return self.wf((ks % 3) * 2 + q)
        for ks in range(3):
            for f in self.tr_pair(w(ks, 0), ad0, ks * 2048) + self.tr_pair(w(ks, 1), ad1, ks * 2048): f()
        mf, sw = [], []
        for ks in range(14):
            for q, (d, ad) in enumerate(((d0, ad0), (d1, ad1))):
                mf.append((d, w(ks, q), self.aOnes, 0 if ks == 0 else d))
                if ks + 3 < 14: sw += [(2 * ks + q, "v", f) for f in self.tr_pair(w(ks, q), ad, (ks + 3) * 2048)]
        assert not self.sched(mf, [sw])
        I("v_lshrrev_b32", ad0, 8, self.vL16)
        I("v_lshlrev_b32", ad0, 4, ad0)
        I("v_add_u32", ad0, L_CS, ad0)
        I("s_lshl_b32", T[0], self.sW, 6)
        I("v_add_u32", ad1, T[0], ad0)
        I("s_and_b32", T[0], self.sW, 1)
        I("s_lshl_b32", T[0], T[0], 6)
        I("v_add_u32", V(190), T[0], ad0)
        I("s_mov_b32", self.sT2[0], "0x00010001")
        I("s_mov_b32", self.sT2[1], "0x00010001")
        a.flush()
        I("s_mov_b64", EXEC, self.sT2)
        I("ds_write_b128", ad1, d0)
        I("ds_write_b128", V(190), d1, mods="offset:256")
        I("s_mov_b64", EXEC, -1)
        self.wphi_gather()
        a.wait(lg=0)
        I("s_barrier")
        self.cs_read(self.cB, False)

    def cs_read(self, dst, with_halo):
        I = self.I
        ad = V(188)
        I("v_lshrrev_b32", ad, 8, self.vL16)
        I("v_lshlrev_b32", ad, 4, ad)
        I("v_add_u32", ad, L_CS, ad)
        for ft in range(6):
            I("ds_read_b128", dst[4 * ft:4 * ft + 4], ad, mods=f"offset:{64 * ft}")
        if with_halo:
            I("s_lshl_b32", self.sT[0], self.sW, 6)
            I("v_add_u32", V(189), self.sT[0], ad)
            I("ds_read_b128", self.vCH, V(189), mods="offset:128")

    def wphi_gather(self):
        a, I = self.a, self.I
        j, g, f1, ad, t = V(214), V(215), V(216), V(217), V(218)
        I("v_lshrrev_b32", g, 8, self.vL16)
        I("v_lshrrev_b32", j, 2, self.vPollP)
        I("v_lshrrev_b32", t, 2, j)
        I("v_sub_u32", f1, j, t)
        I("v_add_u32", f1, 16, f1)
        I("v_mul_u32_u24", ad, 4 * 56, g)
        I("v_add_u32", ad, L_WPHI, ad)
        I("v_lshl_add_u32", f1, f1, 1, ad)
        I("v_lshl_add_u32", ad, j, 1, ad)
        I("v_and_b32", t, 3, j)
        I("v_cmp_ne_u32", VCC, 3, t)
        I("v_cndmask_b32", t, 0, -1, VCC)
        I("v_and_b32", j, t, self.vM3)
        for oft, base in enumerate((ad, f1)):
            for e in range(8):
                d = e if e < 4 else 16 + e - 4
                I("ds_read_u16", V(204 + e), base, mods=f"offset:{d * 56}")
            for p in range(4):
                I("v_lshl_or_b32", V(204 + 2 * p), V(205 + 2 * p), 16, V(204 + 2 * p))
                m = (None, self.vM3)[p >> 1] if oft == 0 else (t, j)[p >> 1]
                if m is not None: I("v_and_b32", V(204 + 2 * p), V(204 + 2 * p), m)
                I("v_accvgpr_write_b32", self.aWphi[4 * oft + p], V(204 + 2 * p))

    def conv_scalar(self, dst, T, mat, c, scales):
        out = []
        st = self.st(T)
        for f in range(2):
            acc = self.acc(T, 2 * mat + f)
            cc = c[4 * (2 * mat + f):4 * (2 * mat + f) + 4]
            for k in range(4): out.append(lambda acc=acc, cc=cc, k=k: self.I("v_fma_f32", acc[k], cc[k], st[0], acc[k]))
            m = {"r": st[1], "m": st[2]}[scales[f]]
            for k in range(4): out.append(lambda acc=acc, m=m, k=k: self.I("v_mul_f32", acc[k], acc[k], m))
            for p in range(2): out.append(lambda acc=acc, f=f, p=p: self.I("v_cvt_pk_bf16_f32", dst[2 * f + p], acc[2 * p], acc[2 * p + 1]))
        return out

    def q_gemm(self, layer, tail_ops=()):
        a, I = self.a, self.I
        T = self.sT
        isA = layer == "A"
        LOOK = self.opt.get("look", 4)
        for t in range(2):
            I("buffer_load_dwordx2", self.straw(t)[0:2], self.vStat, self.sWS, self.sXSq, mods=f"offen offset:{t * 1024} sc1")
            I("buffer_load_dwordx2", self.straw(t)[2:4], self.vStat, self.sWS, self.sXSq, mods=f"offen offset:{t * 1024 + 512} sc1")
        for ks in range(LOOK):
            for _, f in self.xload(ks): f()
        I("s_barrier")
        once = self.lab("once")
        I("s_cmp_lg_u32", self.sIt, 0)
        I("s_cbranch_scc1", once)
        nvm = len(a.vm)
        if isA: self.cs_read(self.cA, True)
        else: self.colsum_b()
        a.wait_lg_all()
        a.flush()
        assert nvm == len(a.vm)
        a.label(once)
        reads0, writes0 = a.count.get("ds_read_b64_tr_b16", 0), a.count.get("ds_write_b128", 0)
        def bar(n):
            assert a.count["ds_read_b64_tr_b16"] - reads0 == n and not a.lg and a.count.get("ds_write_b128", 0) == writes0
            I("s_barrier")
        for ft in range(6):
            for f in self.qw_read(self.wf(ft), ft, 0): f()

        G = 12
        mf, sw, sx, sd, sv, sh = [], [], [], [], [], []
        for ks in range(14):
            order = (2, 3, 4, 5, 0, 1) if ks == 13 else range(6)
            for ft in order:
                for t in ((1, 0) if ks == 13 else (0, 1)):
                    mf.append((self.acc(t, ft), self.wf(ft), self.xf(t, ks), 0 if ks == 0 else self.acc(t, ft)))
                if ks < 13:
                    sw += [(len(mf) - 1, "v", f) for f in self.qw_read(self.wf(ft), ft, ks + 1)]
            if ks + LOOK < 14: sx += [(G * ks, k, f) for k, f in self.xload(ks + LOOK)]
        s0, s1 = self.stats_ops(0, layer), self.stats_ops(1, layer)
        sv += [(G, k, f) for p in zip(s0, s1) for k, f in p]
        sf = []
        if self.opt.get("fine") == (1 if isA else 2):
            def ft_(i):
                a.raw(f"    s_memtime s[{8 + 2 * i}:{9 + 2 * i}]"); a.pos += 1
            sf = [(G * 2 * i, "s", lambda i=i: ft_(i)) for i in range(7)]
            self.fine_pending = True
        pw = self.pw_dma(self.sWOA if isA else self.sWOB)
        nd = 0
        for k, f in pw:
            ks = min(13, (nd * 14) // 16) if isA else 2 + (nd * 11) // 16
            sd.append((G * ks + 6, k, f))
            nd += k == "v"
        if isA:
            HF, HC = self.opt.get("hf", 4), self.opt.get("hc", 8)
            hv, hx = V(194), V(195)
            sh.append((G * HF + 8, "v", lambda: I("buffer_load_dword", hv, self.vPollH, self.sWS, 0, mods="offen sc1")))
            sh.append((G * HF + 8, "v", lambda: I("v_mad_u32_u24", hx, self.vExpHM, self.sL, self.vExpHC)))
            slow, back = self.lab("hslow"), self.lab("hback")
            sh.append((G * HC, "v", lambda: I("v_cmp_ne_u32", VCC, hx, hv)))
            def br():
                I("s_cbranch_vccnz", slow)
                a.label(back)
            sh.append((G * HC, "s", br))
            def tail():
                b = self.a
                b.label(slow)
                b.I("s_sub_u32", self.sBudget, self.sBudget, 1)
                b.I("s_cbranch_scc1", "L_end")
                b.I("buffer_load_dword", hv, self.vPollH, self.sWS, 0, mods="offen sc1")
                b.wait(vm=0)
                b.I("v_cmp_ne_u32", VCC, hx, hv)
                b.I("s_cbranch_vccnz", slow)
                b.I("s_branch", back)
            self.tail.append(tail)
            sh.append((G * HC, "s", lambda: I("s_add_u32", T[0], self.sHX, 14336)))
            for q in range(2):
                sh.append((G * HC, "v", lambda q=q: I("buffer_load_dwordx2", self.straw(2)[2 * q:2 * q + 2], self.vHaloS, self.sWS, T[0],
                                                     mods=f"offen offset:{512 * q} sc1")))
            for k in range(14):
                if k % 4 == 0: sh.append((G * HC, "s", lambda k=k: I("s_add_u32", T[0], self.sHX, k * 1024)))
                sh.append((G * HC + 2 * k, "v", lambda k=k: I("buffer_load_dwordx4", self.hx(k), self.vHalo, self.sWS, T[0],
                                                             mods=f"offen offset:{(k % 4) * 1024} sc1")))
            def hw(k): return A(4 * k, 4)
            shw = []
            for k in range(14): shw += [(G * 8 + 4 * k, "v", f) for f in self.tr_pair(hw(k), self.vQh, k * 2048)]
            sv += [(G * 12, k, f) for k, f in self.stats_ops(2, layer)]
            n0 = len(mf)
            for k in range(14): mf.append((self.hacc, hw(k), self.hx(k), 0 if k == 0 else self.hacc))
            sb = [(n0 - 1, "s", lambda: a.wait(lg=0)), (n0 - 1, "s", lambda: bar(168 + 28))]
            stl = [(n0 - 2, "v", f) for f in tail_ops]
            rest = self.sched(mf, [sf, sw, sx, sh, shw, sd, sv, sb, stl])
        else:
            n0 = len(mf)
            sb = [(n0 - 9, "s", lambda: a.wait(lg=0)), (n0 - 9, "s", lambda: bar(168))]
            rest = self.sched(mf, [sf, sw, sx, sd, sv, sb])
        return rest

    def ln(self, acc, c, st, scale):
        for p in range(2):
            self.pk("v_pk_fma_f32", acc[2 * p:2 * p + 2], c[2 * p:2 * p + 2], st[0:2], acc[2 * p:2 * p + 2], by=0)
        if scale == "r":
            for p in range(2): self.pk("v_pk_mul_f32", acc[2 * p:2 * p + 2], acc[2 * p:2 * p + 2], st[0:2], by=1)
        elif scale == "m":
            for p in range(2): self.pk("v_pk_mul_f32", acc[2 * p:2 * p + 2], acc[2 * p:2 * p + 2], st[2:4], by=0)
        elif scale == "e":
            self.pk("v_pk_fma_f32", acc[0:2], acc[0:2], st[2:4], self.vE0, by=0)
            self.pk("v_pk_mul_f32", acc[2:4], acc[2:4], st[2:4], by=0)

    def cvt(self, dst, src):
        for p in range(src.cnt // 2):
            self.I("v_cvt_pk_bf16_f32", dst[p], src[2 * p], src[2 * p + 1])

    def conv(self, dst, T, mat, c, scales):
        for f in range(2):
            ft = 2 * mat + f
            self.ln(self.acc(T, ft), c[4 * ft:4 * ft + 4], self.st(T), scales[f])
        for f in range(2):
            self.cvt(dst[2 * f:2 * f + 2], self.acc(T, 2 * mat + f))

    def o_finish(self, o, den, of, dma):
        a, I = self.a, self.I
        T = self.sT
        I("s_add_u32", T[1], self.sOq, 16384)
        self.flag_value(T[0])
        for t in range(2): I("v_rcp_f32", den[t][0], den[t][0])
        I("v_mov_b32", self.vT, T[0])
        for t in range(2):
            for p in range(4): self.pk("v_pk_mul_f32", o[t][2 * p:2 * p + 2], o[t][2 * p:2 * p + 2], den[t][0:2], by=0)
            self.cvt(of[t], o[t])
            I("buffer_store_dwordx4", of[t], self.vL16, self.sWS, T[1] if t else self.sOq, mods="offen")
        a.wait(vm=0)
        self.publish(self.sFOq)
        self.stamp()
        for _, f in dma: f()

    def qa_stage(self):
        a, I = self.a, self.I
        a.label("L_qa")
        first = self.lab("qarest")
        I("s_cmp_lg_u32", self.sIt, 0)
        I("s_cbranch_scc1", first)
        self.startup2()
        a.label(first)
        self.q_poll()
        self.stamp()
        kf = [V(196, 4), V(200, 4)]
        qf = [V(204, 4), V(208, 4)]
        vp = [V(212, 4), V(216, 4)]
        hp = V(220, 2)
        tail_ops = self.conv_scalar(kf[1], 1, 1, self.cA, ("r", "m"))
        tail_ops.append(lambda: I("ds_write_b128", self.vKrd, kf[1], mods=f"offset:{L_EXK + 1024}"))
        rest = self.q_gemm("A", tail_ops)
        for f in rest: f()
        self.stamp()
        dk = [f for _, f in self.fw_dma(1, (1,))]
        self.conv(vp[1], 1, 2, self.cA, ("r", "r"))
        I("ds_write_b128", self.vEXW, vp[1], mods=f"offset:{L_EXV + 2048}")
        self.ln(self.hacc, self.vCH, self.st(2), "m")
        self.cvt(hp, self.hacc)
        I("ds_write_b64", self.vHW, hp)
        self.conv(vp[0], 0, 2, self.cA, ("r", "r"))
        I("ds_write_b128", self.vEXW, vp[0], mods=f"offset:{L_EXV + 1024}")
        for f in dk[:4]: f()
        self.conv(qf[0], 0, 0, self.cA, (None, None))
        a.wait(lg=0)
        I("s_barrier")
        kprev = V(222, 4)
        vt = [V(226, 6), V(232, 6)]
        I("ds_read_b128", kprev, self.vKrd, mods=f"offset:{L_EXK}")
        for f in range(2):
            for i in range(3):
                I("ds_read_b64_tr_b16", vt[f][2 * i:2 * i + 2], self.vEXRa, mods=f"offset:{1024 * i + 8 * f}")
        self.conv(kf[0], 0, 1, self.cA, ("r", "m"))
        self.conv(qf[1], 1, 0, self.cA, (None, None))
        s = [V(112, 8), V(120, 8)]
        self.mfma(s[1][4:8], kf[1], qf[1], self.bCur)
        self.mfma(s[1][0:4], kf[0], qf[1], self.bPrev)
        self.mfma(s[0][4:8], kf[0], qf[0], self.bCur)
        self.mfma(s[0][0:4], kprev, qf[0], self.bPrev0)
        for f in dk[4:8]: f()
        m = V(128, 2)
        for t in (1, 0):
            I("v_max3_f32", m[t], s[t][4], s[t][5], s[t][6])
            I("v_max3_f32", m[t], m[t], s[t][7], s[t][0])
            I("v_max3_f32", m[t], m[t], s[t][1], s[t][2])
            I("v_max_f32", m[t], m[t], s[t][3])
        self.allreduce_pairs([("v_max_f32", m[0], m[1])])
        nm = [V(130, 2), V(132, 2)]
        for t in range(2):
            I("v_mul_f32", nm[t][0], m[t], self.st(t)[3])
        for t in range(2):
            for p in range(4):
                self.I("v_pk_fma_f32", s[t][2 * p:2 * p + 2], s[t][2 * p:2 * p + 2], self.st(t)[2:4], nm[t],
                       mods="op_sel:[0,1,0] op_sel_hi:[1,1,0] neg_lo:[0,0,1] neg_hi:[0,0,1]")
        pf = [V(136, 4), V(140, 4)]
        o = [V(144, 8), V(152, 8)]
        sm = [V(160, 4), V(164, 4)]
        for k in range(8): I("v_exp_f32", s[0][k], s[0][k])
        for k in range(2): I("v_exp_f32", s[1][k], s[1][k])
        self.cvt(pf[0], s[0])
        for k in range(2, 4): I("v_exp_f32", s[1][k], s[1][k])
        self.mfma(sm[0], self.aOnes, pf[0], 0)
        I("v_exp_f32", s[1][4], s[1][4])
        self.mfma(o[0][0:4], vt[0][0:4], pf[0], 0)
        I("v_exp_f32", s[1][5], s[1][5])
        self.mfma(o[0][4:8], vt[1][0:4], pf[0], 0)
        for k in range(6, 8): I("v_exp_f32", s[1][k], s[1][k])
        self.cvt(pf[1], s[1])
        self.mfma(sm[1], self.aOnes, pf[1], 0)
        for f in range(2):
            self.mfma(o[1][4 * f:4 * f + 4], vt[f][2:6], pf[1], 0)
        for f in dk[8:]: f()
        self.o_finish(o, sm, [V(168, 4), V(172, 4)], self.fw_dma(1, (2,)))
        I("s_mov_b32", self.sPhase, 1)
        a.flush()
        I("s_branch", "L_p")

    def phi(self, src, dst, extra=(), done=None):
        a, I = self.a, self.I
        rest = list(extra)
        def more(n=1):
            for _ in range(n):
                if rest: rest.pop(0)()
        p = [V(112, 8), V(120, 8)]
        for t in range(2):
            for oft in range(2):
                self.mfma(p[t][4 * oft:4 * oft + 4], self.aWphi[4 * oft:4 * oft + 4], src[t], 0)
        kk = [V(132, 2), V(134, 2)]
        bb = [V(136, 2), V(138, 2)]
        for t in range(2):
            I("v_mov_b32", kk[t][0], self.st(t)[3])
            I("v_sub_f32", kk[t][1], 0, self.st(t)[3])
        more(3)
        mx, mn = V(128, 2), V(130, 2)
        for t in range(2):
            for k in range(3):
                if k == 0:
                    I("v_max3_f32", mx[t], p[t][0], p[t][1], p[t][2])
                    I("v_min3_f32", mn[t], p[t][0], p[t][1], p[t][2])
                else:
                    I("v_max3_f32", mx[t], mx[t], p[t][2 * k + 1], p[t][2 * k + 2])
                    I("v_min3_f32", mn[t], mn[t], p[t][2 * k + 1], p[t][2 * k + 2])
        self.allreduce_pairs([("v_max_f32", mx[0], mx[1]), ("v_min_f32", mn[0], mn[1])])
        for t in range(2):
            I("v_mul_f32", bb[t][0], mx[t], kk[t][1])
            I("v_mul_f32", bb[t][1], mn[t], kk[t][0])
        e = [V(140, 14), V(154, 14)]
        for i in range(7):
            for t in range(2):
                self.pk("v_pk_fma_f32", e[t][2 * i:2 * i + 2], p[t][(i & ~1):(i & ~1) + 2], kk[t], bb[t], bx=i & 1)
        for i in range(14):
            for t in range(2): I("v_exp_f32", e[t][i], e[t][i])
            more()
        sm = [V(128, 2), V(130, 2)]
        for t in range(2): self.pk("v_pk_add_f32", sm[t], e[t][0:2], e[t][2:4])
        for i in range(2, 7):
            for t in range(2): self.pk("v_pk_add_f32", sm[t], sm[t], e[t][2 * i:2 * i + 2])
            more()
        self.allreduce_pairs([("v_add_f32", sm[0][0], sm[0][1]), ("v_add_f32", sm[1][0], sm[1][1])])
        for t in range(2):
            for k in range(2): I("v_rcp_f32", sm[t][k], sm[t][k])
        for t in range(2):
            for i in range(7): self.pk("v_pk_mul_f32", e[t][2 * i:2 * i + 2], e[t][2 * i:2 * i + 2], sm[t])
            for s in range(2):
                for q in range(4):
                    I("v_cvt_pk_bf16_f32", dst[t][s][q], e[t][4 * q + s], e[t][4 * q + 2 + s] if q < 3 else 0)
                if done: done(t, s)
        more(99)

    def qb_stage(self):
        a, I = self.a, self.I
        T = self.sT
        a.label("L_qb")
        for _, f in self.fw_dma(1, (0,)): f()
        self.q_poll()
        self.stamp()
        rest = self.q_gemm("B")
        for f in rest: f()
        self.stamp()
        kf = [V(196, 4), V(200, 4)]
        qf = [V(204, 4), V(208, 4)]
        vp = [V(212, 4), V(216, 4)]
        exw = V(220)
        I("v_add_u32", exw, L_PH, self.vEXW)
        for t in (1, 0): self.conv(kf[t], t, 1, self.cB, (None, None))
        for t in (1, 0):
            self.conv(vp[t], t, 2, self.cB, ("r", "e"))
            I("ds_write_b128", exw, vp[t], mods=f"offset:{16384 + 1024 * t}")
        for t in (1, 0): self.conv(qf[t], t, 0, self.cB, (None, None))
        ph = [[V(168, 4), V(172, 4)], [V(224, 4), V(228, 4)]]
        self.phi(kf, ph, done=lambda t, s: I("ds_write_b128", exw, ph[t][s], mods=f"offset:{8192 * s + 1024 * t}"))
        a.wait(lg=0)
        I("s_barrier")
        kacc = V(112, 8)
        def fa(k, oft): return A(4 * (k * 2 + oft), 4)
        def fb(k): return A(40 + 4 * k, 4)
        for k in range(4):
            for t in range(2):
                I("ds_read_b64_tr_b16", fb(k)[2 * t:2 * t + 2], self.vKB, mods=f"offset:{(2 * k + t) * 1024}")
            for oft in range(2):
                for t in range(2):
                    I("ds_read_b64_tr_b16", fa(k, oft)[2 * t:2 * t + 2], self.vKA, mods=f"offset:{(2 * k + t) * 1024 + 8 * oft}")
            if k:
                for oft in range(2):
                    self.mfma(kacc[4 * oft:4 * oft + 4], fa(k - 1, oft), fb(k - 1), 0 if k == 1 else kacc[4 * oft:4 * oft + 4])
        for oft in range(2):
            self.mfma(kacc[4 * oft:4 * oft + 4], fa(3, oft), fb(3), kacc[4 * oft:4 * oft + 4])
        kvp = V(120, 4)
        self.cvt(kvp, kacc)
        I("v_and_b32", kvp[3], "0xffff", kvp[3])
        I("v_or_b32", kvp[3], self.sTag, kvp[3])
        I("buffer_store_dwordx4", kvp, self.vL16, self.sWS, self.sKVst, mods="offen sc1")
        self.stamp()
        self.phi(qf, ph, extra=[f for _, f in self.fw_dma(0, (0, 1))])
        self.stamp()
        def gf(p): return V(112 + 4 * p, 4) if p < 14 else V(232 + 4 * (p - 14), 4)
        red = V(176, 8)
        lo, hi = V(184), V(185)
        loop, ok, slow = self.lab("gather"), self.lab("gpass"), self.lab("gslow")
        a.flush()
        a.label(loop)
        def gload(p):
            out = []
            if p % 4 == 0: out.append(("s", lambda: I("s_add_u32", T[1], self.sKVld, p * 1024)))
            out.append(("v", lambda: I("buffer_load_dwordx4", gf(p), self.vL16, self.sWS, T[1], mods=f"offen offset:{(p % 4) * 1024} sc1")))
            return out
        NG = 10
        for p in range(NG):
            for _, f in gload(p): f()
        I("v_add_u32", exw, L_KVX, self.vKrd)
        I("v_add_u32", V(221), L_KVX, self.vL16)
        mf, sg, sc = [], [], []
        for p in range(16):
            mf.append((red[0:4], self.aSel[2:6], gf(p), 0 if p == 0 else red[0:4]))
            mf.append((red[4:8], self.aSel[0:4], gf(p), 0 if p == 0 else red[4:8]))
            if p + NG < 16: sg += [(2 * p, k, f) for k, f in gload(p + NG)]
            if p == 1:
                sc.append((2 * p, "v", lambda: I("v_min_u32", lo, gf(0)[3], gf(1)[3])))
                sc.append((2 * p, "v", lambda: I("v_max_u32", hi, gf(0)[3], gf(1)[3])))
            elif p & 1:
                sc.append((2 * p, "v", lambda p=p: I("v_min3_u32", lo, lo, gf(p - 1)[3], gf(p)[3])))
                sc.append((2 * p, "v", lambda p=p: I("v_max3_u32", hi, hi, gf(p - 1)[3], gf(p)[3])))
        rest = self.sched(mf, [sg, sc])
        for f in rest: f()
        I("v_xor_b32", lo, self.sTag, lo)
        I("v_xor_b32", hi, self.sTag, hi)
        I("v_or_b32", lo, lo, hi)
        I("v_cmp_lt_u32", VCC, "0xffff", lo)
        I("s_cbranch_vccnz", slow)

        def tail():
            b = self.a
            b.label(slow)
            b.I("v_lshlrev_b32", hi, 8, self.vPollP)
            b.label(slow + "l")
            b.I("s_sub_u32", self.sBudget, self.sBudget, 1)
            b.I("s_cbranch_scc1", "L_end")
            b.I("buffer_load_dword", lo, hi, self.sWS, self.sKVld, mods="offen offset:12 sc1")
            b.wait(vm=0)
            b.I("v_xor_b32", lo, self.sTag, lo)
            b.I("v_cmp_lt_u32", VCC, "0xffff", lo)
            b.I("s_cbranch_vccnz", slow + "l")
            b.I("s_branch", loop)
        self.tail.append(tail)
        self.stamp()
        kvs = V(112, 4)
        self.cvt(kvs, red)
        I("ds_write_b128", exw, kvs)
        a.wait(lg=0)
        I("s_barrier")
        kvf = [[A(0, 4), A(4, 4)], [A(8, 4), A(12, 4)]]
        zf = [A(16, 4), A(20, 4)]
        for s in range(2):
            I("ds_read_b128", zf[s], self.vZ, mods=f"offset:{2048 * s}")
            for dt in range(2):
                I("ds_read_b128", kvf[s][dt], V(221), mods=f"offset:{(2 * s + dt) * 1024}")
        o = [V(144, 8), V(152, 8)]
        dn = [V(160, 4), V(164, 4)]
        for s in range(2):
            for t in range(2): self.mfma(dn[t], zf[s], ph[t][s], 0 if s == 0 else dn[t])
            for t in range(2):
                for dt in range(2):
                    self.mfma(o[t][4 * dt:4 * dt + 4], kvf[s][dt], ph[t][s], 0 if s == 0 else o[t][4 * dt:4 * dt + 4])
        I("s_mov_b32", self.sPhase, 0)
        I("s_add_u32", self.sIt, self.sIt, 1)
        I("s_add_u32", self.sKVst, self.sKVst, 0x100000)
        I("s_add_u32", self.sKVld, self.sKVld, 0x100000)
        I("s_add_u32", self.sHX, self.sHX, 0x40000)
        for t in range(2): I("v_add_f32", dn[t][0], f32(1e-6), dn[t][0])
        self.o_finish(o, dn, [V(116, 4), V(120, 4)], self.fw_dma(0, (2,)))
        a.flush()
        I("s_branch", "L_p")

    def final(self):
        a, I = self.a, self.I
        T = self.sT
        a.label("L_final")
        a.forget_counters()
        xo = V(112, 8)
        I("s_lshl_b32", T[1], self.sW, 11)
        I("s_add_u32", T[1], T[1], L_SP)
        I("v_add_u32", V(120), T[1], self.vL16)
        I("s_add_u32", T[2], self.sX0o, 8 * 1792)
        for n in range(4):
            self.cvt(xo[2 * n:2 * n + 2], self.vR[4 * n:4 * n + 4])
            I("ds_write_b64", V(0), xo[2 * n:2 * n + 2], mods=f"offset:{32 * n}")
        a.wait(lg=0)
        for b in range(2): I("ds_read_b128", V(124 + 4 * b, 4), V(120), mods=f"offset:{1024 * b}")
        for b in range(2): I("buffer_store_dwordx4", V(124 + 4 * b, 4), self.vX0d, self.sOUT, T[2] if b else self.sX0o, mods="offen")
        a.label("L_fin2")
        self.stamp()
        if self.opt.get("stamps"):
            I("s_mov_b32", T[7], 63)
            self.stamp(real=True)
            I("s_lshl_b32", T[0], S(2), 2)
            I("s_add_u32", T[0], T[0], self.sW)
            I("s_lshl_b32", T[0], T[0], 8)
            I("s_add_u32", T[0], T[0], WS_STAMP)
            I("v_lshrrev_b32", V(120), 2, self.vL16)
            I("buffer_store_dword", self.vStamp, V(120), self.sWS, T[0], mods="offen")
        I("s_or_b32", T[0], S(2), self.sW)
        I("s_cmp_lg_u32", T[0], 0)
        I("s_cbranch_scc1", "L_end")
        if self.opt.get("dbg"):
            I("s_load_dwordx2", S(8, 2), S(0, 2), 64)
            a.wait(lg=0)
            self.srd(S(12, 4), S(8, 2), 256)
            I("v_lshrrev_b32", V(120), 2, self.vL16)
            I("v_readlane_b32", T[0], self.vStamp, 0)
            I("v_readlane_b32", T[1], self.vStamp, 62)
            I("v_readlane_b32", T[2], self.vStamp, 63)
            I("s_sub_u32", T[1], T[2], T[1])
            I("v_subrev_u32", V(121), T[0], self.vStamp)
            I("v_writelane_b32", V(121), T[1], 0)
            I("v_readlane_b32", T[0], V(121), 32)
            I("v_writelane_b32", V(121), T[0], 15)
            I("buffer_store_dword", V(121), V(120), S(12, 4), 0, mods="offen")
        if self.opt.get("leak"):
            skip = self.lab("noleak")
            I("v_readlane_b32", T[1], self.vStamp, 62)
            I("v_readlane_b32", T[2], self.vStamp, 63)
            I("v_readlane_b32", T[3], self.vStamp, self.opt.get("leakidx", 0))
            I("v_readlane_b32", T[4], self.vStamp, 0)
            I("s_sub_u32", T[1], T[2], T[1])
            I("s_sub_u32", T[3], T[3], T[4])
            I("s_cmp_lt_u32", T[1], self.opt["leak"])
            I("s_cbranch_scc1", skip)
            I("s_cmp_eq_u32", self.sMode, 0)
            I("s_cbranch_scc1", skip)
            I("v_cvt_f32_u32", V(121), T[3] if self.opt.get("leakidx") else T[1])
            I("v_lshrrev_b32", V(121), 16, V(121))
            a.wait(vm=0)
            I("s_mov_b64", EXEC, 1)
            I("buffer_store_short", V(121), OFF, self.sOUT, 0)
            a.label(skip)
        I("v_mov_b32", V(120), self.sNonce)
        I("s_mov_b64", EXEC, 1)
        I("buffer_store_dword", V(120), OFF, self.sWS, 0)
        I("s_endpgm")

    def build(self):
        a = self.a
        self.prologue()
        self.p_stage()
        self.qa_stage()
        self.qb_stage()
        self.final()
        done = 0
        while done < len(self.tail):
            a.forget_counters()
            a.pos += 100
            self.tail[done]()
            done += 1
        a.label("L_end")
        a.I("s_endpgm")
        head = open("cdna_kernels/" + NAME[:-7] + ".s.ref").read().split("; Override launch")[0]
        out = head + f"; @launch grid=(256,1,1) block=(256,1,1) lds={LDS_BYTES}\n"
        out += f'.amdgcn_target "amdgcn-amd-amdhsa--gfx950"\n.text\n.globl {NAME}\n.p2align 8\n.type {NAME},@function\n{NAME}:\n'
        out += a.text()
        out += f""".section .rodata,"a"
.p2align 6
.amdhsa_kernel {NAME}
  .amdhsa_next_free_vgpr 512
  .amdhsa_next_free_sgpr 102
  .amdhsa_accum_offset 256
  .amdhsa_group_segment_fixed_size 0
  .amdhsa_kernarg_size 80
  .amdhsa_user_sgpr_count 2
  .amdhsa_user_sgpr_kernarg_segment_ptr 1
  .amdhsa_system_sgpr_workgroup_id_x 1
.end_amdhsa_kernel
"""
        return out


if __name__ == "__main__":
    opt = {}
    path = sys.argv[1]
    for kv in sys.argv[2:]:
        k, v = kv.split("=")
        opt[k] = int(v)
    g = Gen(opt)
    open(path, "w").write(g.build())
    import subprocess
    r = subprocess.run(["clang", "-x", "assembler", "-target", "amdgcn-amd-amdhsa", "-mcpu=gfx950", "-c", path, "-o", "gen_check.o"], capture_output=True, text=True)
    if r.returncode: print(r.stderr[:3000]); sys.exit(1)
    sz = subprocess.run(["llvm-readelf", "-S", "gen_check.o"], capture_output=True, text=True).stdout
    print("text bytes", [int(l.split()[6], 16) for l in sz.splitlines() if " .text" in l],
          "instructions", sum(g.a.count.values()), "nop states", g.a.nops)
```

```python
class Reg:
    def __init__(self, kind, n, cnt=1):
        self.kind, self.n, self.cnt = kind, n, cnt
        if kind in "va" and cnt > 1:
            assert n % 2 == 0, f"odd tuple {kind}{n}x{cnt}"
        if kind == "s" and cnt == 2:
            assert n % 2 == 0
        if kind == "s" and cnt >= 4:
            assert n % 4 == 0
        assert n + cnt <= (102 if kind == "s" else 256), f"{kind}{n}+{cnt}"

    def __str__(self):
        return f"{self.kind}{self.n}" if self.cnt == 1 else f"{self.kind}[{self.n}:{self.n + self.cnt - 1}]"

    def regs(self):
        return [(self.kind, self.n + i) for i in range(self.cnt)]

    def __getitem__(self, k):
        if isinstance(k, slice):
            a = k.start or 0
            b = self.cnt if k.stop is None else k.stop
            assert 0 <= a < b <= self.cnt
            return Reg(self.kind, self.n + a, b - a)
        assert 0 <= k < self.cnt
        return Reg(self.kind, self.n + k, 1)


def V(n, c=1): return Reg("v", n, c)
def A(n, c=1): return Reg("a", n, c)
def S(n, c=1): return Reg("s", n, c)


class Special:
    def __init__(self, name, regs): self.name, self._r = name, regs
    def __str__(self): return self.name
    def regs(self): return self._r


VCC = Special("vcc", [("s", "vcc")])
EXEC = Special("exec", [("s", "exec")])
M0 = Special("m0", [("s", "m0")])
OFF = Special("off", [])

TRANS = ("v_exp_", "v_log_", "v_rcp_", "v_rsq_", "v_sqrt_", "v_sin_", "v_cos_")
NODEF_S = ("s_cmp", "s_waitcnt", "s_barrier", "s_branch", "s_cbranch", "s_nop", "s_endpgm", "s_setprio", "s_sleep", "s_bitcmp")


def regs_of(x):
    return x.regs() if hasattr(x, "regs") else []


class Asm:
    def __init__(self):
        self.lines = []
        self.pos = 0
        self.w_valu = {}
        self.w_trans = {}
        self.w_mfma = {}
        self.r_mfmac = {}
        self.w_vsgpr = {}
        self.w_m0 = -99
        self.w_dot = {}
        self.r_store = {}
        self.vm = []
        self.lg = []
        self.smem = set()
        self.nops = 0
        self.count = {}

    def raw(self, text):
        self.lines.append(text)

    def comment(self, text):
        self.lines.append("    ; " + text)

    def _out(self, text, states=1):
        self.lines.append("    " + text)
        self.pos += states

    def nop(self, n):
        while n > 0:
            k = min(n, 16)
            self._out(f"s_nop {k - 1}", k)
            self.nops += k
            n -= k

    def wait(self, vm=None, lg=None):
        parts = []
        if vm is not None:
            assert vm <= 63
            parts.append(f"vmcnt({vm})")
            self.vm = self.vm[len(self.vm) - vm:] if vm > 0 else []
        if lg is not None:
            lg = min(lg, 15)
            parts.append(f"lgkmcnt({lg})")
            if lg == 0:
                self.smem = set()
            self.lg = self.lg[len(self.lg) - lg:] if lg > 0 else []
        self._out("s_waitcnt " + " ".join(parts))

    def wait_vm_tag(self, tag):
        idx = [i for i, (t, _) in enumerate(self.vm) if t == tag]
        if idx:
            self.wait(vm=len(self.vm) - 1 - idx[-1])

    def wait_lg_all(self):
        if self.lg or self.smem:
            self.wait(lg=0)

    def prewait(self, *operands):
        n = len(self.lines)
        r = []
        for o in operands: r += regs_of(o)
        self._need_waits(r)
        return len(self.lines) != n

    def _need_waits(self, touched):
        t = set(touched)
        vm = lg = None
        for i in range(len(self.vm) - 1, -1, -1):
            if self.vm[i][1] & t:
                vm = len(self.vm) - 1 - i
                break
        if self.smem & t:
            lg = 0
        else:
            for i in range(len(self.lg) - 1, -1, -1):
                if self.lg[i][1] & t:
                    lg = 0 if self.smem else len(self.lg) - 1 - i
                    break
        if vm is not None or lg is not None:
            self.wait(vm, lg)

    def flush(self):
        need = 0
        for d, n in ((self.w_valu, 2), (self.w_trans, 1), (self.r_mfmac, 3), (self.w_vsgpr, 5), (self.r_store, 2)):
            for p in d.values():
                need = max(need, n - (self.pos - p - 1))
        for p, _ in self.w_mfma.values():
            need = max(need, 8 - (self.pos - p - 1))
        for p, _ in self.w_dot.values():
            need = max(need, 3 - (self.pos - p - 1))
        need = max(need, 1 - (self.pos - self.w_m0 - 1))
        if need > 0:
            self.nop(need)

    def label(self, name):
        self.lines.append(name + ":")

    def forget_counters(self):
        self.vm, self.lg, self.smem = [], [], set()

    def I(self, op, *ops, mods="", tag=None, untracked=False, nodest=False):
        self.count[op] = self.count.get(op, 0) + 1
        defs, uses, ab, cc = [], [], [], []
        is_v = op.startswith("v_")
        is_mfma = op.startswith("v_mfma")
        is_valu = is_v and not is_mfma
        is_buf = op.startswith("buffer_") or op.startswith("global_")
        is_ds = op.startswith("ds_")
        lds_dma = is_buf and " lds" in (" " + mods)
        is_load = (is_buf and "_load" in op and not lds_dma) or (is_ds and "_read" in op)
        is_smem = op.startswith("s_load") or op.startswith("s_memtime") or op.startswith("s_memrealtime")
        if is_mfma:
            defs = regs_of(ops[0]); ab = regs_of(ops[1]) + regs_of(ops[2]); cc = regs_of(ops[3]); uses = ab + cc
        elif "permlane" in op:
            defs = regs_of(ops[0]) + regs_of(ops[1]); uses = list(defs)
        elif is_valu:
            defs = regs_of(ops[0])
            for o in ops[1:]: uses += regs_of(o)
            if op.startswith(("v_fmac", "v_dot2c", "v_pk_fmac", "v_writelane")): uses += defs
        elif is_load:
            defs = regs_of(ops[0])
            for o in ops[1:]: uses += regs_of(o)
        elif is_buf or is_ds:
            for o in ops: uses += regs_of(o)
            if lds_dma: uses += [("s", "m0")]
        elif op.startswith(NODEF_S):
            for o in ops: uses += regs_of(o)
        else:
            defs = regs_of(ops[0])
            for o in ops[1:]: uses += regs_of(o)

        self._need_waits(defs + uses)

        need = 0
        def req(p, n):
            nonlocal need
            need = max(need, n - (self.pos - p - 1))
        dtuple = tuple(defs)
        for r in uses:
            if r in self.w_valu:
                p = self.w_valu[r]
                if is_mfma or "permlane" in op or "dpp" in op or "dpp" in mods or "row_" in mods: req(p, 2)
                if op.startswith(("v_readfirstlane", "v_readlane")): req(p, 1)
            if r in self.w_trans and is_v: req(self.w_trans[r], 1)
            if r in self.w_mfma:
                p, d = self.w_mfma[r]
                if is_mfma:
                    if r in ab: req(p, 8)
                    elif tuple(cc) != d: req(p, 6)
                else:
                    req(p, 8)
            if r in self.w_vsgpr:
                p = self.w_vsgpr[r]
                if is_v: req(p, 2)
                elif is_buf: req(p, 5)
                else: req(p, 1)
            if r == ("s", "m0") and lds_dma: req(self.w_m0, 1)
            if r in self.w_dot and not (self.w_dot[r][1] == op and r in regs_of(ops[-1]) and r not in regs_of(ops[1]) + regs_of(ops[2])): req(self.w_dot[r][0], 3)
        for r in defs:
            if r in self.w_mfma and not is_mfma: req(self.w_mfma[r][0], 8)
            if r in self.w_mfma and is_mfma and self.w_mfma[r][1] != tuple(cc): req(self.w_mfma[r][0], 6)
            if r in self.r_mfmac and is_valu: req(self.r_mfmac[r], 3)
            if r in self.r_store: req(self.r_store[r], 2 if is_valu else 1)
            if r in self.w_dot and self.w_dot[r][1] != op: req(self.w_dot[r][0], 3)
        if need > 0:
            self.nop(need)

        if is_buf:
            assert len(self.vm) < 63, "vmcnt overflow"
        if is_ds and len(self.lg) >= 15:
            self.wait(lg=0 if self.smem else 14)

        p = self.pos
        text = op + (" " + ", ".join(str(o) for o in ops) if ops else "") + (" " + mods if mods else "")
        self._out(text)

        for r in defs:
            for d in (self.w_valu, self.w_trans, self.w_mfma, self.w_vsgpr, self.w_dot):
                d.pop(r, None)
        if is_mfma:
            for r in defs: self.w_mfma[r] = (p, dtuple)
            for r in cc: self.r_mfmac[r] = p
        elif is_valu:
            for r in defs:
                if r[0] == "s": self.w_vsgpr[r] = p
                else:
                    self.w_valu[r] = p
                    if op.startswith(TRANS): self.w_trans[r] = p
                    if op.startswith("v_dot"): self.w_dot[r] = (p, op)
        if ("s", "m0") in defs and not is_v: self.w_m0 = p
        if is_buf:
            if not untracked: self.vm.append((tag, set() if nodest else set(defs)))
            if "_store" in op and ("x3" in op or "x4" in op):
                data = ops[0] if op.startswith("buffer_") else ops[1]
                for r in regs_of(data): self.r_store[r] = p
        if is_ds: self.lg.append((tag, set(defs)))
        if is_smem: self.smem |= set(defs)

    def text(self):
        return "\n".join(self.lines) + "\n"
```

```python
import sys
import math
import struct
from emit import Asm, V, A, S, VCC, EXEC, M0, OFF, Special

VCC_LO = Special("vcc_lo", [("s", "vcc")])

NAME = "interleave_layers__sliding_local_dilated__linear_kernel_hedgehog__prompt_kernel"


def f32(x):
    return "0x%08x" % struct.unpack("<I", struct.pack("<f", x))[0]


WS_E = 0x0
WS_FX = 0x1000
WS_FO = 0x5000
WS_SLOW = 0x8000
WS_FH = 0x10000
WS_HELLO = 0x11000
WS_FWF = 0x12000
WS_STAMP = 0x20000
WS_X = 0x100000
WS_XS = 0x2C0000
WS_O = 0x300000
WS_KV = 0x500000
WS_HX = 0x700000
WS_FW = 0x800000
FW_T = 16 * 86016
WS_SIZE = 0xB00000
OOB = 0x7FFF0000

MAT = 28672
L_PW = 86016
L_SP = 151552
L_KVX = L_SP
L_HX = L_SP
L_WPHI = L_SP + 8192
L_CS = L_SP + 10240
L_EXK = L_PW + 49152
L_EXV = L_EXK + 5120
L_PH = L_PW
LDS_BYTES = 163840

LOG2E = math.log2(math.e)


class Neg:
    def __init__(self, r): self.r = r
    def __str__(self): return "-" + str(self.r)
    def regs(self): return self.r.regs()


class Gen:
    def __init__(self, opt):
        self.opt = opt
        self.a = Asm()
        self.tail = []
        self.uid = 0

    def lab(self, base):
        self.uid += 1
        return f"L_{base}_{self.uid}"

    sX0, sWA, sWOA, sWB, sWOB, sOUT, sWS, sWP = (S(24 + 4 * i, 4) for i in range(8))
    (sGrp, sH, sW, sC, sRh, sBase, sTag, sMode, sIt, sPhase, sL, sBudget, sXq, sXSq, sOq, sXp, sXSp, sOp, sFXp, sFOq,
     sFOp, sHX, sHaloProd, sFHp, sKVst, sKVld, sQWo, sFirst, sPend, sX0o, sNonce, sXcc) = (S(56 + i) for i in range(32))
    sT = [S(88 + i) for i in range(8)]
    sT2 = S(96, 2)
    sStamp = S(98, 2)
    sFW, sQWl, sPWl, sPWo = S(4), S(5), S(6), S(7)

    vL16, vQ0, vQ1, vQv0, vQv1, vQh = (V(1 + i) for i in range(6))
    vP = [V(7 + i) for i in range(4)]
    vQWd, vX0d, vExpHC, vPollQ, vPollM, vPollP, vEXW, vEXRa, vHW, vM3, vStat = (V(11 + i) for i in range(11))
    vE0 = V(22, 2)
    vHalo, vHaloS, vStatSt, vZ, vExpHM, vExpC, vExpM, vMH = (V(24 + i) for i in range(8))
    vCH = V(32, 4)
    bCur, bPrev, bPrev0 = V(36, 4), V(40, 4), V(44, 4)
    vR = V(48, 16)
    cA, cB = V(64, 24), V(88, 24)
    vTA, vProbe, vHp, vQS = V(241), V(242), V(243), V(244)
    vDummy = V(245)
    vPWd = [V(246 + i) for i in range(4)]
    vKA, vKB, vPollH, vKrd, vStamp = (V(250 + i) for i in range(5))
    vT = V(255)

    aOnes, aSel, aWphi = A(232, 4), A(236, 6), A(242, 8)

    def acc(self, T, ft): return V(112 + (T * 6 + ft) * 4, 4)
    hacc = V(160, 4)
    def straw(self, T): return V(164 + 4 * T, 4)
    def st(self, T): return V(176 + 4 * T, 4)
    def xf(self, T, ks): return A((ks * 2 + T) * 4, 4)
    def hx(self, ks): return A(56 + 4 * ks, 4) if ks < 12 else self.wf(ks - 6)
    def stash(self, i): return A(112 + 4 * i, 4) if i < 14 else A(200 + 4 * (i - 14), 4)
    def wf(self, f): return A(168 + 4 * f, 4)

    def I(self, *x, **k): self.a.I(*x, **k)

    def stamp(self, real=False):
        if not self.opt.get("stamps"):
            return
        a = self.a
        a.I("s_memrealtime" if real or self.opt.get("real") else "s_memtime", self.sStamp)
        a.I("s_mov_b32", M0, self.sT[7])
        a.wait(lg=0)
        a.I("v_writelane_b32", self.vStamp, self.sStamp[0], M0)
        a.I("s_add_u32", self.sT[7], self.sT[7], 1)
        if getattr(self, "fine_pending", False):
            self.fine_pending = False
            for i in range(7): a.I("v_writelane_b32", self.vStamp, S(8 + 2 * i), 40 + i)
            a.I("v_writelane_b32", self.vStamp, self.sStamp[0], 47)

    def fine(self, region, i):
        if self.opt.get("fine") == region and region == 5:
            self.a.raw("    s_memtime s[100:101]")
            self.a.raw("    s_waitcnt lgkmcnt(0)")
            self.a.raw(f"    v_writelane_b32 v240, s100, {i}")
            self.a.pos += 3
            return
        if self.opt.get("fine") == region:
            self.a.raw(f"    s_memtime s[{8 + 2 * i}:{9 + 2 * i}]")
            self.a.pos += 1
            self.fine_pending = True

    def srd(self, dst, src, nbytes):
        self.I("s_mov_b32", dst[0], src[0])
        self.I("s_and_b32", dst[1], src[1], "0xffff")
        self.I("s_mov_b32", dst[2], nbytes)
        self.I("s_mov_b32", dst[3], "0x20000")

    def mfma(self, d, x, y, c):
        self.I("v_mfma_f32_16x16x32_bf16", d, x, y, c)

    def pk(self, op, d, x, y, z=None, bx=None, by=None, bz=None):
        srcs = [(x, bx), (y, by)] + ([(z, bz)] if z is not None else [])
        lo = [0 if b is None else b for _, b in srcs]
        hi = [1 if b is None else b for _, b in srcs]
        mods = []
        if any(lo): mods.append("op_sel:[%s]" % ",".join(map(str, lo)))
        if not all(hi): mods.append("op_sel_hi:[%s]" % ",".join(map(str, hi)))
        self.I(op, d, *[s for s, _ in srcs], mods=" ".join(mods))

    def allreduce_pairs(self, chains):
        for step in range(7):
            for op, x, y in chains:
                if step in (0, 6): self.I("v_permlane32_swap_b32", x, y)
                elif step in (1, 4): self.I(op, x, x, y)
                elif step in (2, 5): self.I("v_mov_b32", y, x)
                else: self.I("v_permlane16_swap_b32", x, y)

    def budget_branch(self, loop):
        self.I("s_sub_u32", self.sBudget, self.sBudget, 1)
        self.I("s_cbranch_scc1", "L_end")
        self.I("s_branch", loop)

    def flag_value(self, dst):
        self.I("s_lshl_b32", dst, self.sL, 4)
        self.I("s_or_b32", dst, dst, self.sBase)

    def publish(self, soff):
        a = self.a
        slow, done = self.lab("pubslow"), self.lab("pubdone")
        a.I("s_cmp_eq_u32", self.sMode, 0)
        a.I("s_cbranch_scc1", slow)
        a.I("s_mov_b64", EXEC, 1)
        a.I("buffer_store_dword", self.vT, OFF, self.sWS, soff)
        a.label(done)
        a.I("s_mov_b64", EXEC, -1)

        def tail():
            b = self.a
            b.label(slow)
            b.I("buffer_wbl2", mods="sc1")
            b.wait(vm=0)
            b.I("s_mov_b64", EXEC, 1)
            b.I("buffer_store_dword", self.vT, OFF, self.sWS, soff, mods="sc1")
            b.I("s_branch", done)
        self.tail.append(tail)

    def sched(self, mfmas, streams):
        a = self.a
        streams = [list(s) for s in streams]
        for i, m in enumerate(mfmas):
            self.mfma(*m)
            scalar_free = True
            if i + 1 < len(mfmas):
                n = mfmas[i + 1]
                if a.prewait(n[1], n[2]): scalar_free = False
            if scalar_free:
                for s in streams:
                    if s and s[0][0] <= i and s[0][1] == "s":
                        s.pop(0)[2]()
                        break
            slots = 2
            progress = True
            while slots > 0 and progress:
                progress = False
                for s in streams:
                    if not s or s[0][0] > i: continue
                    cost = 2 if s[0][1] == "w" else 1
                    if cost <= slots:
                        s.pop(0)[2]()
                        slots -= cost
                        progress = True
                        break
        return [it[2] for s in streams for it in s]

    def fw_dma(self, mats):
        out = []
        for mat in mats:
            for i in range(7):
                if i % 4 == 0:
                    out.append(("s", lambda mat=mat, i=i: self.I("s_add_u32", M0, self.sQWl, mat * MAT + i * 1024)))
                    out.append(("s", lambda mat=mat, i=i: self.I("s_add_u32", self.sT[6], self.sFW, mat * MAT + i * 1024)))
                out.append(("v", lambda i=i: self.I("buffer_load_dwordx4", self.vL16, self.sWS, self.sT[6],
                                                   mods=f"offen offset:{(i % 4) * 1024} lds", untracked=True)))
        return out

    def piece(self, n): return f"offset:{(n // 7) * MAT + (n % 7) * 1024}"

    def a_to_b(self, mats, extra0=None):
        a, I = self.a, self.I
        second, done = self.lab("ab2"), self.lab("abdone")
        a.wait_lg_all()
        I("s_cmp_lg_u32", self.sIt, 0)
        I("s_cbranch_scc1", second)
        for mat in mats[0]:
            for n in range(7 * mat, 7 * mat + 7): I("ds_read_b128", self.stash(n + 1), self.vQS, mods=self.piece(n))
        a.wait(lg=0)
        for _, f in self.fw_dma(mats[0]): f()
        if extra0: extra0()
        a.wait_lg_all()
        a.flush()
        I("s_branch", done)
        a.label(second)
        for mat in mats[1]:
            for n in range(7 * mat, 7 * mat + 7): I("ds_write_b128", self.vQS, self.stash(n), mods=self.piece(n))
        a.label(done)

    def b_to_a(self, pieces):
        a, I = self.a, self.I
        done = self.lab("badone")
        a.wait_lg_all()
        I("s_cmp_lg_u32", self.sIt, self.it_b)
        I("s_cbranch_scc1", done)
        for n in pieces:
            I("ds_read_b128", self.stash(n), self.vQS, mods=self.piece(n))
            I("ds_write_b128", self.vQS, self.stash(n + 1), mods=self.piece(n))
        a.label(done)

    def pw_dma(self, srd, which):
        out = []
        for i in which:
            out.append(("s", lambda i=i: self.I("s_add_u32", M0, self.sPWl, i * 16384)))
            out.append(("s", lambda i=i: self.I("s_add_u32", self.sT[5], self.sPWo, 4 * 28 * i * 896)))
            for b in range(4):
                out.append(("v", lambda b=b: self.I("buffer_load_dwordx4", self.vPWd[b], srd, self.sT[5], mods=f"offen offset:{b * 1024} lds")))
        return out

    def raw_block(self, ks):
        for half in range(2):
            self.I("s_add_u32", M0, self.sT[4], ks * 2048 + half * 1024)
            self.I("s_add_u32", self.sT[6], self.sQWo, (32 * ks + 16 * half) * 2688)
            self.I("buffer_load_dwordx4", self.vQWd, self.sWA, self.sT[6], mods="offen lds", tag=f"raw{ks}")

    def tr_pair(self, dst, base, off):
        return [lambda: self.I("ds_read_b64_tr_b16", dst[0:2], base, mods=f"offset:{off}"),
                lambda: self.I("ds_read_b64_tr_b16", dst[2:4], base, mods=f"offset:{off + 1024}")]

    def qw_read(self, dst, ft, ks):
        base = (self.vQ0, self.vQ1, self.vQ0, self.vQ1, self.vQv0, self.vQv1)[ft]
        return self.tr_pair(dst, base, (MAT if ft in (2, 3) else 0) + ks * 2048)

    def bg(self, n=1):
        if self.bg_next >= self.bg_max: return
        skip = self.lab("bg")
        self.I("s_cmp_eq_u32", self.sW, 3)
        self.I("s_cbranch_scc1", skip)
        for _ in range(n):
            if self.bg_next < self.bg_max:
                self.raw_block(self.bg_next)
                self.bg_next += 1
        self.a.label(skip)

    def prologue(self):
        a, I = self.a, self.I
        T = self.sT
        self.bg_next, self.bg_max = 0, self.opt.get("n1", 7)
        I("s_cmp_ge_u32", S(2), 256)
        I("s_cbranch_scc1", "L_end")
        I("s_getpc_b64", S(22, 2))
        a.label("L_pc")
        if self.opt.get("stamps"):
            I("s_memrealtime", S(100, 2))
            I("s_memtime", self.sStamp)
        I("s_load_dwordx8", S(4, 8), S(0, 2), 0)
        I("s_load_dwordx8", S(12, 8), S(0, 2), 32)
        I("s_load_dwordx2", S(20, 2), S(0, 2), 72)
        I("v_lshrrev_b32", V(114), 6, V(0))
        I("s_lshr_b32", T[1], S(2), 3)
        I("v_and_b32", V(0), 63, V(0))
        I("v_readfirstlane_b32", self.sW, V(114))
        I("s_lshl_b32", T[0], T[1], 10)
        I("v_and_b32", V(112), 7, V(0))
        I("v_lshl_add_u32", V(112), V(112), 7, T[0])
        I("v_min_u32", V(112), "L_end-L_pc", V(112))
        I("global_load_dword", self.vDummy, V(112), S(22, 2), untracked=True)
        I("s_and_b32", T[0], S(2), 7)
        I("s_and_b32", self.sH, T[1], 15)
        I("s_lshr_b32", T[1], T[1], 4)
        I("s_lshl_b32", T[0], T[0], 1)
        I("s_add_u32", self.sGrp, T[0], T[1])
        I("s_and_b32", self.sC, self.sH, 7)
        I("s_lshr_b32", self.sRh, self.sH, 3)
        lane, j, g, t0, t1, t2 = V(0), V(115), V(116), V(117), V(118), V(119)
        I("s_lshl_b32", T[0], self.sGrp, 3)
        I("s_lshl_b32", T[1], self.sRh, 2)
        I("s_add_u32", T[0], T[0], T[1])
        I("s_add_u32", T[0], T[0], self.sW)
        I("s_and_b32", T[1], T[0], 63)
        I("s_mul_i32", T[1], T[1], 16 * 1792)
        I("s_lshr_b32", T[2], self.sGrp, 3)
        I("s_mul_i32", T[2], T[2], 896)
        I("s_add_u32", T[1], T[1], T[2])
        I("s_lshl_b32", T[2], self.sC, 7)
        I("s_add_u32", self.sX0o, T[1], T[2])
        I("v_lshrrev_b32", t0, 3, lane)
        I("v_mul_u32_u24", t0, 1792, t0)
        I("v_and_b32", t1, 7, lane)
        I("v_lshl_add_u32", self.vX0d, t1, 4, t0)
        I("v_min_u32", t0, 36, lane)
        I("v_lshlrev_b32", V(121), 7, t0)
        I("s_mov_b32", self.sX0[2], 1835008)
        I("s_mov_b32", self.sX0[3], "0x20000")
        I("s_mov_b32", self.sWA[2], 1204224)
        I("s_mov_b32", self.sWA[3], "0x20000")
        I("s_mul_i32", T[1], S(2), 37 * 128)
        I("s_min_u32", T[1], T[1], 1204224 - 37 * 128)
        I("s_sub_u32", T[2], self.sX0o, 3 * 16 * 1792)
        a.wait(lg=0)
        if self.opt.get("fine") == 5: a.raw("    v_writelane_b32 v240, s100, 63")
        self.fine(5, 0)
        I("s_load_dword", self.sNonce, S(20, 2), WS_E)
        for r, p in ((self.sX0, 4), (self.sWA, 6)):
            I("s_mov_b32", r[0], S(p))
            I("s_and_b32", r[1], S(p + 1), "0xffff")
        no3, nox = self.lab("not3"), self.lab("nox0")
        I("s_cmp_lg_u32", self.sW, 3)
        I("s_cbranch_scc1", no3)
        I("s_cmp_eq_u32", self.sC, 7)
        I("s_cbranch_scc1", nox)
        for t in range(4):
            I("s_mov_b32", M0, L_SP + 2048 * t)
            I("s_add_u32", T[5], T[2], t * 16 * 1792)
            I("s_add_u32", T[6], T[2], t * 16 * 1792 + 8 * 1792 - 1024)
            I("buffer_load_dwordx4", self.vX0d, self.sX0, T[5], mods="offen lds")
            I("buffer_load_dwordx4", self.vX0d, self.sX0, T[6], mods="offen offset:1024 lds")
        a.label(nox)
        I("buffer_load_dword", self.vDummy, V(121), self.sWA, T[1], mods="offen", nodest=True)
        a.label(no3)
        I("v_and_b32", j, 15, lane)
        I("v_lshrrev_b32", g, 4, lane)
        I("v_lshlrev_b32", self.vL16, 4, lane)
        I("v_lshrrev_b32", t0, 2, lane)
        I("v_mul_u32_u24", t1, 2688, t0)
        I("v_lshrrev_b32", t0, 3, lane)
        I("v_and_b32", t0, 2, t0)
        I("v_and_b32", t2, 3, lane)
        I("v_xor_b32", t0, t0, t2)
        I("v_lshl_add_u32", self.vQWd, t0, 4, t1)
        I("s_mul_i32", self.sQWo, self.sH, 56)
        I("s_mul_i32", T[1], self.sW, 896)
        I("s_add_u32", self.sQWo, self.sQWo, T[1])
        I("s_mul_i32", T[4], self.sW, MAT)
        for r, p, n in ((self.sWS, 20, WS_SIZE), (self.sWB, 12, 1204224), (self.sWP, 14, 25088), (self.sWOA, 8, 401408),
                        (self.sWOB, 16, 401408), (self.sOUT, 18, 1835008)):
            self.srd(r, S(p, 2), n)
        self.bg()
        I("s_getreg_b32", self.sXcc, "hwreg(HW_REG_XCC_ID)")
        I("s_and_b32", self.sXcc, self.sXcc, 15)
        I("s_lshl_b32", T[1], self.sGrp, 3)
        I("s_lshl_b32", T[2], self.sW, 1)
        I("s_add_u32", T[1], T[1], T[2])
        I("s_mul_i32", self.sXq, T[1], 14336)
        I("s_add_u32", self.sXq, self.sXq, WS_X)
        I("s_lshl_b32", self.sXSq, T[1], 10)
        I("s_add_u32", self.sXSq, self.sXSq, WS_XS)
        I("s_lshl_b32", self.sOq, T[1], 14)
        I("s_lshl_b32", T[2], self.sH, 10)
        I("s_add_u32", self.sOq, self.sOq, T[2])
        I("s_add_u32", self.sOq, self.sOq, WS_O)
        I("s_lshl_b32", T[3], T[1], 7)
        I("s_add_u32", T[3], T[3], WS_FX)
        I("s_mul_i32", self.sXp, T[0], 14336)
        I("s_lshl_b32", T[2], self.sC, 11)
        I("s_add_u32", self.sXp, self.sXp, T[2])
        I("s_add_u32", self.sXp, self.sXp, WS_X)
        I("s_lshl_b32", self.sXSp, T[0], 10)
        I("s_lshl_b32", T[2], self.sC, 7)
        I("s_add_u32", self.sXSp, self.sXSp, T[2])
        I("s_add_u32", self.sXSp, self.sXSp, WS_XS)
        I("s_lshl_b32", self.sOp, T[0], 14)
        I("s_add_u32", self.sOp, self.sOp, WS_O)
        I("s_lshl_b32", self.sFXp, T[0], 7)
        I("s_lshl_b32", T[2], self.sC, 2)
        I("s_add_u32", self.sFXp, self.sFXp, T[2])
        I("s_add_u32", self.sFXp, self.sFXp, WS_FX)
        I("s_lshl_b32", T[1], self.sGrp, 2)
        I("s_add_u32", T[2], T[1], self.sW)
        I("s_lshl_b32", self.sFOq, T[2], 7)
        I("s_lshl_b32", T[2], self.sH, 2)
        I("s_add_u32", self.sFOq, self.sFOq, T[2])
        I("s_add_u32", self.sFOq, self.sFOq, WS_FO)
        I("s_lshr_b32", T[2], T[0], 1)
        I("s_lshl_b32", self.sFOp, T[2], 7)
        I("s_add_u32", self.sFOp, self.sFOp, WS_FO)
        I("s_lshl_b32", self.sHX, self.sGrp, 14)
        I("s_add_u32", self.sHX, self.sHX, WS_HX)
        I("s_lshl_b32", self.sFHp, self.sGrp, 7)
        I("s_add_u32", self.sFHp, self.sFHp, WS_FH)
        I("s_and_b32", T[1], self.sGrp, 7)
        I("s_cmp_eq_u32", T[1], 0)
        I("s_cselect_b32", self.sFirst, 1, 0)
        I("s_cmp_lg_u32", T[1], 7)
        I("s_cselect_b32", T[1], 1, 0)
        I("s_and_b32", T[2], T[0], 7)
        I("s_cmp_eq_u32", T[2], 7)
        I("s_cselect_b32", self.sHaloProd, T[1], 0)
        I("s_lshl_b32", T[1], self.sH, 2)
        I("s_add_u32", T[1], T[1], self.sW)
        I("s_lshl_b32", self.sKVld, T[1], 14)
        I("s_add_u32", self.sKVld, self.sKVld, WS_KV)
        I("s_lshl_b32", T[1], self.sGrp, 10)
        I("s_add_u32", self.sKVst, self.sKVld, T[1])
        I("s_mov_b32", self.sMode, 1)
        I("s_mov_b32", self.sIt, 0)
        I("s_mov_b32", self.sPhase, 0)
        I("s_mov_b32", self.sL, 1)
        I("s_mov_b32", self.sPend, 0)
        I("s_mov_b32", self.sBudget, 400000)
        self.bg()
        I("v_min_u32", t0, 12, lane)
        I("v_lshlrev_b32", V(122), 7, t0)
        I("v_lshlrev_b32", self.vStatSt, 3, j)
        I("v_and_b32", t0, 7, j)
        I("v_lshlrev_b32", t0, 4, t0)
        I("v_lshl_add_u32", self.vHp, g, 7, t0)
        I("v_lshlrev_b32", t0, 7, j)
        I("v_lshl_add_u32", t0, g, 3, t0)
        I("v_add_u32", V(123), L_SP, t0)
        I("s_mul_i32", self.sQWl, self.sW, 7168)
        I("s_mul_i32", self.sFW, self.sH, 86016)
        I("s_add_u32", self.sFW, self.sFW, self.sQWl)
        I("s_add_u32", self.sFW, self.sFW, WS_FW)
        I("s_lshl_b32", self.sPWl, self.sW, 12)
        I("s_add_u32", self.sPWl, self.sPWl, L_PW)
        I("s_mul_i32", self.sPWo, self.sW, 28 * 896)
        I("s_min_u32", T[1], self.sC, 6)
        I("s_lshl_b32", T[1], T[1], 7)
        I("s_add_u32", self.sPWo, self.sPWo, T[1])
        if self.opt.get("stamps"):
            I("s_mov_b32", T[7], 1)
            I("v_mov_b32", self.vStamp, 0)
            I("v_writelane_b32", self.vStamp, self.sStamp[0], 0)
            if self.opt.get("fine") != 5: I("v_writelane_b32", self.vStamp, S(100), 62)
        self.bg()
        a.forget_counters()
        a.smem = {("s", self.sNonce.n)}
        self.fine(5, 1)

        r, cc = V(113), V(124)
        I("s_lshl_b32", T[1], self.sW, 11)
        I("v_add_u32", V(114), T[1], V(123))
        I("v_lshrrev_b32", r, 2, j)
        I("v_and_b32", cc, 3, j)
        I("v_lshl_add_u32", t0, g, 2, r)
        I("v_lshlrev_b32", t1, 3, cc)
        I("v_lshl_add_u32", t2, t0, 6, t1)
        I("v_and_b32", V(125), 1, g)
        I("v_lshl_add_u32", self.vQ0, V(125), 5, t2)
        I("v_xor_b32", self.vQ1, 32, self.vQ0)
        I("v_add_u32", self.vQv0, 2 * MAT, self.vQ0)
        I("v_add_u32", self.vQv1, 2 * MAT, self.vQ1)
        I("s_and_b32", T[1], self.sW, 1)
        I("s_lshl_b32", T[2], T[1], 5)
        I("v_xor_b32", self.vQh, T[2], self.vQ0)
        I("s_lshr_b32", T[2], self.sW, 1)
        I("s_add_u32", T[2], T[2], 1)
        I("s_mul_i32", T[2], T[2], MAT)
        I("v_add_u32", self.vQh, T[2], self.vQh)
        I("v_lshl_add_u32", t2, t0, 7, t1)
        I("v_add_u32", t2, L_PW, t2)
        I("v_lshrrev_b32", V(125), 1, t0)
        I("v_and_b32", V(125), 3, V(125))
        for n in range(4):
            I("v_xor_b32", V(126), n, V(125))
            I("v_lshl_add_u32", self.vP[n], V(126), 5, t2)
        self.bg()
        I("v_lshrrev_b32", V(125), 1, t0)
        I("v_xor_b32", V(125), V(125), cc)
        I("v_and_b32", V(125), 3, V(125))
        I("v_lshlrev_b32", V(125), 4, V(125))
        I("v_lshl_add_u32", V(126), t0, 6, V(125))
        I("s_lshl_b32", T[2], self.sW, 11)
        I("s_add_u32", T[5], T[2], L_EXV)
        I("v_add_u32", self.vEXRa, T[5], V(126))
        I("s_lshr_b32", T[5], self.sW, 1)
        I("s_lshl_b32", T[5], T[5], 13)
        I("s_add_u32", T[5], T[5], L_PH)
        I("v_add_u32", self.vKA, T[5], V(126))
        I("s_lshl_b32", T[5], T[1], 3)
        I("s_add_u32", T[5], T[5], L_PH + 16384)
        I("v_add_u32", self.vKB, T[5], V(126))
        I("v_lshrrev_b32", V(125), 1, j)
        I("v_xor_b32", V(125), V(125), g)
        I("v_and_b32", V(125), 3, V(125))
        I("v_lshlrev_b32", V(125), 4, V(125))
        I("v_lshl_add_u32", V(126), j, 6, V(125))
        I("v_add_u32", V(126), L_EXV, V(126))
        I("v_add_u32", self.vEXW, T[2], V(126))
        I("s_lshl_b32", T[5], self.sW, 10)
        I("v_add_u32", V(125), L_EXK, self.vL16)
        I("v_add_u32", self.vKrd, T[5], V(125))
        I("v_add_u32", self.vQS, self.sQWl, self.vL16)
        I("s_cmp_lt_u32", self.sW, 2)
        I("s_cselect_b64", VCC, -1, 0)
        I("v_cndmask_b32", V(126), V(126), V(125), VCC)
        I("s_lshl_b32", T[5], T[1], 3)
        I("v_add_u32", self.vHW, T[5], V(126))
        self.bg()
        I("v_lshrrev_b32", t0, 3, lane)
        I("v_mul_u32_u24", t1, 896, t0)
        I("v_and_b32", t0, 6, t0)
        I("v_and_b32", t2, 7, lane)
        I("v_xor_b32", t0, t0, t2)
        I("v_lshl_add_u32", self.vPWd[0], t0, 4, t1)
        for b in range(1, 4):
            I("v_add_u32", self.vPWd[b], b * (8 * 896 - 1024), self.vPWd[0])
        I("v_mov_b32", t1, OOB)
        I("v_cmp_gt_u32", VCC, 32, lane)
        I("v_cndmask_b32", self.vPWd[3], t1, self.vPWd[3], VCC)
        I("v_cmp_gt_u32", VCC, 48, lane)
        I("v_cndmask_b32", self.vM3, 0, -1, VCC)
        I("v_cndmask_b32", self.vE0[0], 1.0, 0, VCC)
        I("v_mov_b32", self.vE0[1], 0)
        I("s_cmp_eq_u32", T[1], 1)
        I("s_cselect_b64", VCC, -1, 0)
        I("v_cndmask_b32", self.vMH, -1, self.vM3, VCC)
        I("v_lshl_add_u32", self.vStat, g, 7, self.vStatSt)
        I("s_cmp_eq_u32", self.sFirst, 1)
        I("s_cselect_b64", VCC, -1, 0)
        I("v_cndmask_b32", self.vHalo, self.vL16, t1, VCC)
        I("v_cndmask_b32", self.vHaloS, self.vStat, t1, VCC)
        I("s_or_b32", T[2], self.sGrp, 1)
        I("s_add_u32", T[2], T[2], 1)
        I("v_add_u32", t0, T[2], j)
        I("v_and_b32", t0, 15, t0)
        I("v_lshlrev_b32", self.vProbe, 10, t0)
        I("v_lshrrev_b32", t0, 3, lane)
        I("v_add_u32", t0, T[2], t0)
        I("v_and_b32", t0, 15, t0)
        I("v_lshlrev_b32", t0, 3, t0)
        I("v_and_b32", t2, 7, lane)
        I("v_add_lshl_u32", self.vTA, t0, t2, 7)
        self.bg()
        I("v_lshlrev_b32", self.vZ, 8, g)
        I("v_add_u32", self.vZ, L_KVX + 1024 + 12 * 16, self.vZ)
        I("v_lshlrev_b32", self.vPollP, 2, j)
        I("v_and_b32", t0, 7, lane)
        I("v_min_u32", t0, 6, t0)
        I("v_lshlrev_b32", V(127), 2, t0)
        I("v_min_u32", t0, 13, j)
        I("v_lshlrev_b32", t0, 2, t0)
        I("s_lshl_b32", T[5], self.sH, 7)
        I("s_add_u32", T[5], T[5], WS_FWF)
        I("v_add_u32", t0, T[5], t0)
        I("v_add_u32", t2, self.sFHp, V(127))
        I("s_cmp_eq_u32", self.sFirst, 1)
        I("s_cselect_b32", T[5], 0, 16)
        I("v_cmp_gt_u32", VCC, T[5], lane)
        I("v_cndmask_b32", self.vPollH, t0, t2, VCC)
        I("v_cndmask_b32", self.vExpHM, 0, 16, VCC)
        I("v_cndmask_b32", self.vExpHC, 16, 0, VCC)
        I("v_lshrrev_b32", t2, 3, j)
        I("v_lshl_add_u32", t2, t2, 7, V(127))
        I("v_add_u32", t2, T[3], t2)
        I("s_lshl_b32", T[5], self.sGrp, 7)
        I("s_add_u32", T[5], T[5], WS_HELLO)
        I("v_add_u32", t0, T[5], self.vPollP)
        I("v_and_b32", V(125), 1, g)
        I("v_cmp_eq_u32", VCC, 0, V(125))
        I("v_cndmask_b32", self.vPollQ, t0, t2, VCC)
        I("v_cndmask_b32", self.vPollM, -16, -1, VCC)
        I("v_cndmask_b32", self.vExpM, 0, 16, VCC)
        I("v_mov_b32", t0, self.sXcc)
        I("v_cndmask_b32", self.vExpC, t0, 0, VCC)
        self.bg()
        I("v_mov_b32", V(125), f32(-1e30))
        for rr in range(4):
            I("v_lshl_add_u32", t0, g, 2, rr)
            I("v_sub_u32", t2, j, t0)
            I("v_cmp_gt_u32", VCC, 8, t2)
            I("v_cndmask_b32", self.bCur[rr], V(125), 0, VCC)
            I("v_add_u32", t2, 16, t2)
            I("v_cmp_gt_u32", VCC, 8, t2)
            I("v_cndmask_b32", self.bPrev[rr], V(125), 0, VCC)
        I("s_cmp_eq_u32", self.sW, 0)
        I("s_cselect_b32", T[2], self.sFirst, 0)
        I("s_cmp_eq_u32", T[2], 1)
        I("s_cselect_b64", VCC, -1, 0)
        for rr in range(4):
            I("v_cndmask_b32", self.bPrev0[rr], self.bPrev[rr], V(125), VCC)
        self.bg()
        I("v_mov_b32", t0, "0x3f803f80")
        for k in range(4): I("v_accvgpr_write_b32", self.aOnes[k], t0)
        for k in (0, 1, 4, 5): I("v_accvgpr_write_b32", self.aSel[k], 0)
        I("v_and_b32", V(125), 1, j)
        I("v_lshlrev_b32", V(125), 4, V(125))
        I("v_mov_b32", t0, "0x3f80")
        I("v_lshlrev_b32", t0, V(125), t0)
        I("v_cmp_eq_u32", VCC, r, g)
        I("v_cndmask_b32", t0, 0, t0, VCC)
        I("v_cmp_gt_u32", VCC, 2, cc)
        I("v_cndmask_b32", t2, 0, t0, VCC)
        I("v_cndmask_b32", t0, t0, 0, VCC)
        I("v_accvgpr_write_b32", self.aSel[2], t2)
        I("v_accvgpr_write_b32", self.aSel[3], t0)
        I("v_mov_b32", V(127), V(0))
        I("v_mov_b32", V(0), V(114))
        a.wait(lg=0)
        I("s_add_u32", T[1], self.sNonce, "0x10100")
        I("s_and_b32", self.sBase, T[1], "0xffffff00")
        I("s_and_b32", self.sTag, T[1], "0x3fff0000")
        I("v_or_b32", self.vExpC, self.sBase, self.vExpC)
        I("v_or_b32", self.vExpHC, self.sBase, self.vExpHC)
        self.stamp()
        I("s_cmp_eq_u32", self.sW, 3)
        I("s_cbranch_scc1", "L_s0")
        I("s_barrier")
        self.stamp()

        N1 = self.bg_next
        ad0, ad1 = V(188), V(189)
        d0, d1 = V(192, 4), V(196, 4)
        I("v_add_u32", ad0, T[4], self.vQ0)
        I("v_add_u32", ad1, T[4], self.vQ1)
        a.vm = [(f"raw{ks}", set()) for ks in range(N1) for _ in range(2)]
        AH = self.opt.get("ah", 6)
        nxt = N1
        for ks in range(14):
            while nxt < 14 and nxt <= ks + AH:
                self.raw_block(nxt)
                nxt += 1
            a.wait_vm_tag(f"raw{ks}")
            w0, w1 = self.wf(2 * (ks & 1)), self.wf(2 * (ks & 1) + 1)
            for f in self.tr_pair(w0, ad0, ks * 2048) + self.tr_pair(w1, ad1, ks * 2048): f()
            if ks:
                p0, p1 = self.wf(2 * ((ks - 1) & 1)), self.wf(2 * ((ks - 1) & 1) + 1)
                self.mfma(d0, p0, self.aOnes, 0 if ks == 1 else d0)
                self.mfma(d1, p1, self.aOnes, 0 if ks == 1 else d1)
        self.mfma(d0, self.wf(2), self.aOnes, d0)
        self.mfma(d1, self.wf(3), self.aOnes, d1)
        I("v_lshrrev_b32", ad0, 8, self.vL16)
        I("v_lshlrev_b32", ad0, 4, ad0)
        I("s_lshl_b32", T[0], self.sW, 7)
        I("s_add_u32", T[0], T[0], L_CS)
        I("v_add_u32", ad0, T[0], ad0)
        I("s_mov_b32", self.sT2[0], "0x00010001")
        I("s_mov_b32", self.sT2[1], "0x00010001")
        a.flush()
        I("s_mov_b64", EXEC, self.sT2)
        I("ds_write_b128", ad0, d0)
        I("ds_write_b128", ad0, d1, mods="offset:64")
        I("s_mov_b64", EXEC, -1)
        a.wait(lg=0)
        I("s_branch", "L_qa")
        self.stage0()

    def stage0(self):
        a, I = self.a, self.I
        T = self.sT
        lane = V(127)
        idle, nohalo, pub, nofw = (self.lab(x) for x in ("idle", "nohalo", "pub", "nofw"))
        a.label("L_s0")
        a.forget_counters()
        a.pos += 100
        I("s_or_b32", T[1], self.sBase, 16)
        I("v_mov_b32", self.vT, T[1])
        I("s_or_b32", T[1], self.sBase, self.sXcc)
        I("v_mov_b32", V(112), T[1])
        I("s_lshl_b32", T[1], self.sGrp, 7)
        I("s_lshl_b32", T[2], self.sH, 2)
        I("s_add_u32", T[1], T[1], T[2])
        I("s_add_u32", T[1], T[1], WS_HELLO)
        I("s_mov_b64", EXEC, 1)
        I("buffer_store_dword", V(112), OFF, self.sWS, T[1], mods="sc1")
        I("s_mov_b64", EXEC, -1)
        I("s_cmp_eq_u32", self.sC, 7)
        I("s_cbranch_scc1", idle)
        a.wait(vm=2)
        self.fine(5, 2)
        xo = [V(128 + 8 * t, 8) for t in range(4)]
        pr = [V(160 + 2 * t, 2) for t in range(4)]
        for t in range(4):
            for n in range(4): I("ds_read_b64", xo[t][2 * n:2 * n + 2], V(123), mods=f"offset:{2048 * t + 32 * n}")
        one = V(125)
        I("v_mov_b32", one, "0x3f803f80")
        I("s_sub_u32", T[5], self.sXp, 3 * 14336)
        I("s_sub_u32", T[6], self.sXSp, 3 * 1024)
        for t in range(4):
            I("buffer_store_dwordx4", xo[t][0:4], self.vL16, self.sWS, T[5], mods="offen sc1")
            I("buffer_store_dwordx4", xo[t][4:8], self.vL16, self.sWS, T[5], mods="offen offset:1024 sc1")
            if t < 3: I("s_add_u32", T[5], T[5], 14336)
        for k in range(8):
            for t in range(4):
                I("v_dot2_f32_bf16", pr[t][0], xo[t][k], one, 0 if k == 0 else pr[t][0])
                I("v_dot2_f32_bf16", pr[t][1], xo[t][k], xo[t][k], 0 if k == 0 else pr[t][1])
        self.allreduce_pairs([("v_add_f32", pr[t][0], pr[t][1]) for t in range(4)])
        I("s_mov_b64", EXEC, "0xffff")
        for t in range(4):
            I("buffer_store_dwordx2", pr[t], self.vStatSt, self.sWS, T[6], mods=f"offen offset:{1024 * t} sc1")
        I("s_mov_b64", EXEC, -1)
        I("s_cmp_eq_u32", self.sHaloProd, 0)
        I("s_cbranch_scc1", nohalo)
        I("s_lshl_b32", T[1], self.sC, 10)
        I("s_add_u32", T[1], T[1], self.sHX)
        I("s_add_u32", T[1], T[1], 16384)
        I("s_mov_b32", self.sT2[0], "0xff00ff00")
        I("s_mov_b32", self.sT2[1], "0xff00ff00")
        I("s_mov_b64", EXEC, self.sT2)
        I("buffer_store_dwordx4", xo[3][0:4], self.vHp, self.sWS, T[1], mods="offen sc1")
        I("buffer_store_dwordx4", xo[3][4:8], self.vHp, self.sWS, T[1], mods="offen offset:512 sc1")
        I("s_lshl_b32", T[1], self.sC, 7)
        I("s_add_u32", T[1], T[1], self.sHX)
        I("s_add_u32", T[1], T[1], 16384 + 14336)
        I("s_mov_b64", EXEC, "0xffff")
        I("buffer_store_dwordx2", pr[3], self.vStatSt, self.sWS, T[1], mods="offen sc1")
        I("s_mov_b64", EXEC, -1)
        a.label(nohalo)
        a.flush()
        I("v_and_b32", V(126), 3, lane)
        I("v_lshlrev_b32", V(126), 7, V(126))
        I("v_lshrrev_b32", V(113), 2, lane)
        I("v_lshl_add_u32", V(126), V(113), 15, V(126))
        I("s_sub_u32", T[2], self.sFXp, 3 * 128)
        I("v_add_u32", V(126), T[2], V(126))
        I("s_lshl_b32", T[1], self.sC, 2)
        I("s_add_u32", T[1], T[1], self.sFHp)
        I("s_add_u32", T[1], T[1], 128)
        I("v_writelane_b32", V(126), T[1], 8)
        I("s_lshl_b32", T[1], self.sHaloProd, 8)
        I("s_or_b32", self.sT2[0], T[1], "0xff")
        I("s_mov_b32", self.sT2[1], 0)
        if not self.opt.get("late_release"): I("s_barrier")
        a.wait(vm=0)
        I("s_mov_b64", EXEC, self.sT2)
        I("buffer_store_dword", self.vT, V(126), self.sWS, 0, mods="offen sc1")
        I("s_mov_b64", EXEC, -1)
        if self.opt.get("late_release"): I("s_barrier")
        self.fine(5, 3)
        I("s_branch", pub)
        a.label(idle)
        I("s_barrier")
        a.label(pub)
        self.stamp()
        a.forget_counters()
        I("s_cmp_ge_u32", self.sGrp, 14)
        I("s_cbranch_scc1", nofw)
        I("s_mul_i32", T[2], self.sH, 56)
        I("s_mul_i32", T[1], self.sGrp, 32 * 2688)
        I("s_add_u32", T[2], T[2], T[1])
        for mat in range(3):
            for half in range(2):
                I("s_add_u32", T[1], T[2], mat * 896 + half * 16 * 2688)
                I("buffer_load_dwordx4", V(168 + 8 * mat + 4 * half, 4), self.vQWd, self.sWB, T[1], mods="offen")
        I("s_lshl_b32", T[1], self.sGrp, 11)
        I("s_add_u32", T[1], T[1], self.sFW)
        I("s_sub_u32", T[1], T[1], 3 * 7168)
        for mat in range(3):
            I("s_add_u32", T[2], T[1], mat * MAT)
            for half in range(2):
                I("buffer_store_dwordx4", V(168 + 8 * mat + 4 * half, 4), self.vL16, self.sWS, T[2], mods=f"offen offset:{half * 1024} sc1")
        a.label(nofw)
        I("s_mul_i32", T[1], self.sH, 1568)
        I("s_mov_b32", M0, L_WPHI)
        I("s_mul_i32", T[2], S(2), 13 * 128)
        I("s_min_u32", T[2], T[2], 401408 - 13 * 128)
        I("v_lshrrev_b32", V(112), 3, lane)
        I("v_and_b32", V(113), 7, lane)
        I("v_lshlrev_b32", V(113), 7, V(113))
        I("v_lshl_add_u32", V(126), V(112), 14, V(113))
        I("s_sub_u32", T[5], self.sOq, 6 * 16384)
        I("buffer_load_dwordx4", self.vL16, self.sWP, T[1], mods="offen lds")
        I("buffer_load_dwordx4", self.vL16, self.sWP, T[1], mods="offen offset:1024 lds")
        I("buffer_load_dword", self.vDummy, V(122), self.sWOA, T[2], mods="offen", nodest=True)
        I("buffer_load_dword", self.vDummy, V(122), self.sWOB, T[2], mods="offen", nodest=True)
        I("buffer_load_dword", self.vDummy, V(126), self.sWS, T[5], mods="offen", nodest=True)
        I("s_lshl_b32", T[1], self.sH, 7)
        I("s_lshl_b32", T[2], self.sGrp, 2)
        I("s_add_u32", T[1], T[1], T[2])
        I("s_add_u32", T[1], T[1], WS_FWF)
        I("s_cmp_ge_u32", self.sGrp, 14)
        I("s_cbranch_scc1", "L_qa")
        a.wait(vm=5)
        I("s_mov_b64", EXEC, 1)
        I("buffer_store_dword", self.vT, OFF, self.sWS, T[1], mods="sc1")
        I("s_mov_b64", EXEC, -1)
        self.fine(5, 4)
        I("s_branch", "L_qa")

    def p_stage(self):
        a, I = self.a, self.I
        T = self.sT
        NPRE = 12
        a.label("L_p")
        a.forget_counters()
        a.wait(lg=0)
        I("s_barrier")
        I("s_cmp_eq_u32", self.sC, 7)
        I("s_cbranch_scc1", "L_pidle")
        slots = [A(64 + 4 * k, 4) for k in range(12)] + [A(168 + 4 * k, 4) for k in range(8)] + [V(128 + 4 * k, 4) for k in range(28)]
        def pwf(hh, n): return slots[(hh % NPRE) * 4 + n]
        def pw_read(hh, n):
            return [lambda: I("ds_read_b64_tr_b16", pwf(hh, n)[0:2], self.vP[n], mods=f"offset:{hh * 4096}"),
                    lambda: I("ds_read_b64_tr_b16", pwf(hh, n)[2:4], self.vP[n], mods=f"offset:{hh * 4096 + 2048}")]
        self.flag_value(T[0])
        I("buffer_load_dword", V(112), self.vPollP, self.sWS, self.sFOp, mods="offen sc1")
        early = self.opt.get("pearly", 7)
        for hh in range(early):
            for n in range(4):
                for f in pw_read(hh, n): f()
        loop, ok = self.lab("ppoll"), self.lab("ppass")
        a.label(loop)
        a.wait(vm=0)
        I("v_cmp_ne_u32", VCC, T[0], V(112))
        I("s_cbranch_vccz", ok)
        I("buffer_load_dword", V(112), self.vPollP, self.sWS, self.sFOp, mods="offen sc1")
        self.budget_branch(loop)
        a.label(ok)
        a.vm = []
        self.stamp()
        def of(hh): return A(4 * hh, 4)
        def oload(hh):
            out = []
            if hh % 4 == 0 and hh:
                out.append(("s", lambda: I("s_add_u32", T[1], self.sOp, hh * 1024)))
            so = self.sOp if hh < 4 else T[1]
            out.append(("v", lambda: I("buffer_load_dwordx4", of(hh), self.vL16, self.sWS, so, mods=f"offen offset:{(hh % 4) * 1024} sc1")))
            return out
        NO = self.opt.get("no", 5)
        for hh in range(NO):
            for _, f in oload(hh): f()
        for hh in range(early, NPRE):
            for n in range(4):
                for f in pw_read(hh, n): f()
        mf, so, sw = [], [], []
        for hh in range(16):
            for n in range(4):
                mf.append((self.vR[4 * n:4 * n + 4], pwf(hh, n), of(hh), self.vR[4 * n:4 * n + 4]))
                if hh + NPRE < 16:
                    sw += [(4 * hh + n, "v", f) for f in pw_read(hh + NPRE, n)]
            if hh + NO < 16: so += [(4 * hh, k, f) for k, f in oload(hh + NO)]
        rest = self.sched(mf, [so, sw])
        assert not rest
        a.flush()
        self.stamp()
        I("s_cmp_eq_u32", self.sL, 4)
        I("s_cbranch_scc1", "L_final")

        a.label("L_pepi")
        xo = V(112, 8)
        for k in range(8):
            I("v_cvt_pk_bf16_f32", xo[k], self.vR[2 * k], self.vR[2 * k + 1])
            if k == 3: I("buffer_store_dwordx4", xo[0:4], self.vL16, self.sWS, self.sXp, mods="offen")
        I("buffer_store_dwordx4", xo[4:8], self.vL16, self.sWS, self.sXp, mods="offen offset:1024")
        sm, sq = V(120, 2), V(122, 2)
        self.pk("v_pk_add_f32", sm, self.vR[0:2], self.vR[2:4])
        self.pk("v_pk_mul_f32", sq, self.vR[0:2], self.vR[0:2])
        self.pk("v_pk_fma_f32", sq, self.vR[2:4], self.vR[2:4], sq)
        for k in range(2, 8):
            self.pk("v_pk_add_f32", sm, sm, self.vR[2 * k:2 * k + 2])
            self.pk("v_pk_fma_f32", sq, self.vR[2 * k:2 * k + 2], self.vR[2 * k:2 * k + 2], sq)
        pr = V(124, 2)
        I("v_add_f32", pr[0], sm[0], sm[1])
        I("v_add_f32", pr[1], sq[0], sq[1])
        x, y = pr[0], pr[1]
        I("s_add_u32", self.sL, self.sL, 1)
        I("s_lshl_b32", T[0], self.sL, 4)
        I("v_permlane32_swap_b32", x, y)
        I("s_or_b32", T[0], T[0], self.sBase)
        I("v_add_f32", x, x, y)
        I("v_mov_b32", y, x)
        I("v_mov_b32", self.vT, T[0])
        I("s_cmp_eq_u32", self.sPhase, 0)
        I("v_permlane16_swap_b32", x, y)
        I("s_cselect_b32", self.sPend, self.sHaloProd, 0)
        I("v_add_f32", x, x, y)
        I("v_mov_b32", y, x)
        I("s_lshl_b32", T[1], self.sC, 10)
        I("s_add_u32", T[1], T[1], self.sHX)
        I("v_permlane32_swap_b32", x, y)
        I("s_mov_b64", EXEC, "0xffff")
        I("buffer_store_dwordx2", pr, self.vStatSt, self.sWS, self.sXSp, mods="offen")
        I("s_mov_b64", EXEC, -1)
        nh, pub = self.lab("nohalo"), self.lab("pub")
        I("s_cmp_eq_u32", self.sPend, 0)
        I("s_cbranch_scc0", nh)
        a.wait(vm=0)
        a.label(pub)
        self.publish(self.sFXp)

        def tail():
            b = self.a
            b.label(nh)
            b.I("s_add_u32", T[1], T[1], 16384)
            b.I("s_mov_b32", self.sT2[0], "0xff00ff00")
            b.I("s_mov_b32", self.sT2[1], "0xff00ff00")
            b.I("s_mov_b64", EXEC, self.sT2)
            b.I("buffer_store_dwordx4", xo[0:4], self.vHp, self.sWS, T[1], mods="offen sc1")
            b.I("buffer_store_dwordx4", xo[4:8], self.vHp, self.sWS, T[1], mods="offen offset:512 sc1")
            b.I("s_lshl_b32", T[1], self.sC, 7)
            b.I("s_add_u32", T[1], T[1], self.sHX)
            b.I("s_add_u32", T[1], T[1], 16384 + 14336)
            b.I("s_mov_b64", EXEC, "0xffff")
            b.I("buffer_store_dwordx2", pr, self.vStatSt, self.sWS, T[1], mods="offen sc1")
            b.I("s_mov_b64", EXEC, -1)
            b.wait(vm=3)
            b.I("s_branch", pub)
        self.tail.append(tail)
        a.label("L_pnext")
        a.flush()
        a.forget_counters()
        self.stamp()
        if self.opt.get("stop"):
            I("s_cmp_eq_u32", self.sL, self.opt["stop"])
            I("s_cbranch_scc1", "L_fin2")
        I("s_cmp_eq_u32", self.sPhase, 1)
        I("s_cbranch_scc1", "L_qb")

        def idle():
            b = self.a
            b.label("L_pidle")
            b.I("s_cmp_eq_u32", self.sL, 4)
            b.I("s_cbranch_scc1", "L_fin2")
            b.I("s_add_u32", self.sL, self.sL, 1)
            b.I("s_branch", "L_pnext")
        self.tail.append(idle)

    def q_poll(self, shadow=None):
        a, I = self.a, self.I
        T = self.sT
        ex, t, pv = V(112), V(113), V(114)
        loop, ok, pend, nopend, slow, again = (self.lab(x) for x in ("qpoll", "qpass", "pend", "nopend", "qslow", "qagain"))
        I("v_mad_u32_u24", ex, self.vExpM, self.sL, self.vExpC)
        if shadow:
            chk = self.lab("qchk")
            I("buffer_load_dword", pv, self.vPollQ, self.sWS, 0, mods="offen sc1")
            shadow()
            I("s_branch", chk)
        a.label(loop)
        I("buffer_load_dword", pv, self.vPollQ, self.sWS, 0, mods="offen sc1")
        if shadow: a.label(chk)
        I("s_cmp_eq_u32", self.sPend, 0)
        a.wait(vm=0)
        I("s_cbranch_scc0", pend)
        a.label(nopend)
        I("v_xor_b32", t, pv, ex)
        I("v_cmp_ne_u32", VCC, 0, t)
        I("s_cbranch_vccnz", slow)
        a.label(ok)
        a.vm = []

        def tail():
            b = self.a
            b.label(pend)
            b.I("s_lshl_b32", T[1], self.sC, 2)
            b.I("s_add_u32", T[1], T[1], self.sFHp)
            self.flag_value(T[0])
            b.I("v_mov_b32", self.vT, T[0])
            b.I("s_mov_b64", EXEC, 1)
            b.I("buffer_store_dword", self.vT, OFF, self.sWS, T[1], mods="offset:128 sc1")
            b.I("s_mov_b64", EXEC, -1)
            b.I("s_mov_b32", self.sPend, 0)
            b.I("s_branch", nopend)
            b.label(slow)
            b.I("s_cmp_eq_u32", self.sMode, 0)
            b.I("s_cbranch_scc1", again + "m")
            b.I("v_not_b32", V(115), self.vPollM)
            b.I("v_and_b32", V(116), t, self.vPollM)
            b.I("v_and_b32", V(115), t, V(115))
            b.I("v_cmp_ne_u32", self.sT2, 0, V(115))
            b.I("v_cmp_eq_u32", VCC, 0, V(116))
            b.nop(2)
            b.I("s_cmp_eq_u64", self.sT2, 0)
            b.I("s_cbranch_scc1", again)
            b.I("s_andn2_b32", T[0], "0xffff0000", VCC_LO)
            b.I("s_cbranch_scc1", again)
            b.I("s_mov_b32", self.sMode, 0)
            b.I("s_add_u32", self.sFXp, self.sFXp, WS_SLOW)
            b.I("s_add_u32", self.sFOq, self.sFOq, WS_SLOW)
            b.I("s_add_u32", self.sFOp, self.sFOp, WS_SLOW)
            b.I("v_lshlrev_b32", V(115), 11, self.vExpM)
            b.I("v_add_u32", self.vPollQ, V(115), self.vPollQ)
            b.I("s_branch", again)
            b.label(again + "m")
            b.I("v_and_b32", V(116), t, self.vPollM)
            b.I("v_cmp_ne_u32", VCC, 0, V(116))
            b.I("s_cbranch_vccz", ok)
            b.label(again)
            self.budget_branch(loop)
        self.tail.append(tail)

    def xload(self, ks):
        out = []
        if ks % 4 == 0:
            out.append(("s", lambda: self.I("s_add_u32", self.sT[1], self.sXq, ks * 1024)))
            out.append(("s", lambda: self.I("s_add_u32", self.sT[2], self.sXq, ks * 1024 + 14336)))
        for t in range(2):
            out.append(("v", lambda t=t: self.I("buffer_load_dwordx4", self.xf(t, ks), self.vL16, self.sWS, self.sT[1 + t],
                                               mods=f"offen offset:{(ks % 4) * 1024} sc1")))
        return out

    def stats_ops(self, T, layer):
        raw, st = self.straw(T), self.st(T)
        t = V(188 + 2 * T, 2)
        ops = []
        def add(*x, **k): ops.append(("w" if ("perm" in x[0] or "rsq" in x[0]) else "v", lambda: self.I(*x, **k)))
        add("v_and_b32", raw[2], raw[2], self.vM3)
        add("v_and_b32", raw[3], raw[3], self.vM3)
        add("v_add_f32", raw[0], raw[0], raw[2])
        add("v_add_f32", raw[1], raw[1], raw[3])
        for step in range(7):
            x, y = raw[0], raw[1]
            if step in (0, 6): add("v_permlane32_swap_b32", x, y)
            elif step in (1, 4): add("v_add_f32", x, x, y)
            elif step in (2, 5): add("v_mov_b32", y, x)
            else: add("v_permlane16_swap_b32", x, y)
        add("v_mul_f32", st[0], f32(-1.0 / 448), raw[0])
        add("v_mul_f32", t[0], f32(1.0 / 448), raw[1])
        add("v_fma_f32", t[0], Neg(st[0]), st[0], t[0])
        add("v_max_f32", t[0], 0, t[0])
        add("v_add_f32", t[0], f32(1e-5), t[0])
        add("v_rsq_f32", st[1], t[0])
        add("v_and_b32", st[2], st[1], self.vMH if T == 2 else self.vM3)
        if T < 2:
            add("v_mul_f32", st[3], f32(LOG2E * (28 ** -0.5 if layer == "A" else 1.0)), st[1])
        return ops

    def colsum_part(self, ad, steps, cs_off):
        a, I = self.a, self.I
        d = V(192, 4)
        def w(k): return self.wf(k % 4)
        for k in range(4):
            for f in self.tr_pair(w(k), ad, steps[k] * 2048): f()
        mf, sw = [], []
        for k in range(len(steps)):
            mf.append((d, w(k), self.aOnes, 0 if k == 0 else d))
            if k + 4 < len(steps): sw += [(k, "v", f) for f in self.tr_pair(w(k), ad, steps[k + 4] * 2048)]
        assert not self.sched(mf, [sw])
        I("v_lshrrev_b32", V(189), 8, self.vL16)
        I("v_lshlrev_b32", V(189), 4, V(189))
        I("s_add_u32", self.sT[0], self.sT[0], L_CS + cs_off)
        I("v_add_u32", V(189), self.sT[0], V(189))
        I("s_mov_b32", self.sT2[0], "0x00010001")
        I("s_mov_b32", self.sT2[1], "0x00010001")
        a.flush()
        I("s_mov_b64", EXEC, self.sT2)
        I("ds_write_b128", V(189), d)
        I("s_mov_b64", EXEC, -1)

    def colsum_b_kv(self):
        self.a.raw("    s_waitcnt vmcnt(8)")
        self.a.pos += 1
        self.I("s_barrier")
        self.I("s_lshl_b32", self.sT[0], self.sW, 6)
        self.colsum_part(self.vQh, list(range(14)), 128)
        self.wphi_gather()

    def colsum_b_q(self):
        I, T = self.I, self.sT
        I("v_lshrrev_b32", V(188), 8, self.vL16)
        I("v_lshlrev_b32", V(188), 4, V(188))
        I("v_add_u32", V(188), L_CS, V(188))
        for ft in range(2, 6):
            I("ds_read_b128", self.cB[4 * ft:4 * ft + 4], V(188), mods=f"offset:{64 * ft}")
        I("s_lshr_b32", T[0], self.sW, 1)
        I("s_lshl_b32", T[0], T[0], 5)
        I("v_xor_b32", V(188), T[0], self.vQ0)
        I("s_and_b32", T[0], self.sW, 1)
        I("s_mul_i32", T[0], T[0], 7 * 2048)
        I("v_add_u32", V(188), T[0], V(188))
        I("s_lshl_b32", T[0], self.sW, 6)
        self.colsum_part(V(188), list(range(7)), 512)

    def colsum_b_q2(self):
        a, I = self.a, self.I
        done = self.lab("cq2")
        a.wait_lg_all()
        I("s_cmp_lg_u32", self.sIt, 0)
        I("s_cbranch_scc1", done)
        I("v_lshrrev_b32", V(188), 8, self.vL16)
        I("v_lshlrev_b32", V(188), 4, V(188))
        I("v_add_u32", V(188), L_CS + 512, V(188))
        for k in range(4):
            I("ds_read_b128", self.cB[4 * (k >> 1):4 * (k >> 1) + 4] if k % 2 == 0 else V(204 + 4 * (k >> 1), 4), V(188), mods=f"offset:{64 * k}")
        for k in range(8): I("v_add_f32", self.cB[k], self.cB[k], V(204 + k))
        a.flush()
        a.label(done)

    def cs_read(self, dst, with_halo):
        I = self.I
        ad = V(188)
        I("v_lshrrev_b32", ad, 8, self.vL16)
        I("v_lshlrev_b32", ad, 4, ad)
        I("v_add_u32", ad, L_CS, ad)
        for ft in range(6):
            I("ds_read_b128", dst[4 * ft:4 * ft + 4], ad, mods=f"offset:{64 * ft}")
        if with_halo:
            I("s_lshl_b32", self.sT[0], self.sW, 6)
            I("v_add_u32", V(189), self.sT[0], ad)
            I("ds_read_b128", self.vCH, V(189), mods="offset:128")

    def wphi_gather(self):
        a, I = self.a, self.I
        j, g, f1, ad, t = V(214), V(215), V(216), V(217), V(218)
        I("v_lshrrev_b32", g, 8, self.vL16)
        I("v_lshrrev_b32", j, 2, self.vPollP)
        I("v_lshrrev_b32", t, 2, j)
        I("v_sub_u32", f1, j, t)
        I("v_add_u32", f1, 16, f1)
        I("v_mul_u32_u24", ad, 4 * 56, g)
        I("v_add_u32", ad, L_WPHI, ad)
        I("v_lshl_add_u32", f1, f1, 1, ad)
        I("v_lshl_add_u32", ad, j, 1, ad)
        I("v_and_b32", t, 3, j)
        I("v_cmp_ne_u32", VCC, 3, t)
        I("v_cndmask_b32", t, 0, -1, VCC)
        I("v_and_b32", j, t, self.vM3)
        for oft, base in enumerate((ad, f1)):
            for e in range(8):
                d = e if e < 4 else 16 + e - 4
                I("ds_read_u16", V(204 + e), base, mods=f"offset:{d * 56}")
            for p in range(4):
                I("v_lshl_or_b32", V(204 + 2 * p), V(205 + 2 * p), 16, V(204 + 2 * p))
                m = (None, self.vM3)[p >> 1] if oft == 0 else (t, j)[p >> 1]
                if m is not None: I("v_and_b32", V(204 + 2 * p), V(204 + 2 * p), m)
                I("v_accvgpr_write_b32", self.aWphi[4 * oft + p], V(204 + 2 * p))

    def conv_scalar(self, dst, T, mat, c, scales):
        out = []
        st = self.st(T)
        for f in range(2):
            acc = self.acc(T, 2 * mat + f)
            cc = c[4 * (2 * mat + f):4 * (2 * mat + f) + 4]
            for k in range(4): out.append(lambda acc=acc, cc=cc, k=k: self.I("v_fma_f32", acc[k], cc[k], st[0], acc[k]))
            m = {"r": st[1], "m": st[2]}[scales[f]]
            for k in range(4): out.append(lambda acc=acc, m=m, k=k: self.I("v_mul_f32", acc[k], acc[k], m))
            for p in range(2): out.append(lambda acc=acc, f=f, p=p: self.I("v_cvt_pk_bf16_f32", dst[2 * f + p], acc[2 * p], acc[2 * p + 1]))
        return out

    def q_gemm(self, layer, tail_ops=()):
        a, I = self.a, self.I
        T = self.sT
        isA = layer == "A"
        LOOK = self.opt.get("look", 4)
        for ks in range(2):
            for _, f in self.xload(ks): f()
        a.wait(lg=0)
        I("s_barrier")
        once = self.lab("once")
        I("s_cmp_lg_u32", self.sIt, 0)
        I("s_cbranch_scc1", once)
        nvm = len(a.vm)
        if isA:
            self.cs_read(self.cA, True)
            for n in range(4): I("ds_read_b64", V(200 + 2 * n, 2), V(0), mods=f"offset:{32 * n}")
            for n in range(4):
                for p in range(2):
                    I("v_lshlrev_b32", self.vR[4 * n + 2 * p], 16, V(200 + 2 * n + p))
                    I("v_and_b32", self.vR[4 * n + 2 * p + 1], "0xffff0000", V(200 + 2 * n + p))
        else: self.colsum_b_q()
        a.wait_lg_all()
        a.flush()
        assert nvm == len(a.vm)
        a.label(once)
        reads0, writes0 = a.count.get("ds_read_b64_tr_b16", 0), a.count.get("ds_write_b128", 0)
        def bar(n):
            assert a.count["ds_read_b64_tr_b16"] - reads0 == n and not a.lg and a.count.get("ds_write_b128", 0) == writes0
            I("s_barrier")
        for ft in range(6):
            for f in self.qw_read(self.wf(ft), ft, 0): f()
        for _, f in self.xload(2): f()

        G = 12
        mf, sw, sx, sd, sv, sh, stc = [], [], [], [], [], [], []
        for ks in range(14):
            order = (2, 3, 4, 5, 0, 1) if ks == 13 else range(6)
            for ft in order:
                for t in ((1, 0) if ks == 13 else (0, 1)):
                    mf.append((self.acc(t, ft), self.wf(ft), self.xf(t, ks), 0 if ks == 0 else self.acc(t, ft)))
                if ks < 13:
                    sw += [(len(mf) - 1, "v", f) for f in self.qw_read(self.wf(ft), ft, ks + 1)]
        for k in range(3, 14):
            gap = 0 if k == 3 else max(6, G * (k - LOOK))
            xl = self.xload(k)
            sx += [(gap, kind, f) for kind, f in xl[:-1]] + [(gap + 4, "v", xl[-1][1])]
            if k == 5:
                for t in range(2):
                    for q in range(2):
                        sx.append((G + 6 + 2 * (2 * t + q), "v", lambda t=t, q=q: I(
                            "buffer_load_dwordx2", self.straw(t)[2 * q:2 * q + 2], self.vStat, self.sWS, self.sXSq,
                            mods=f"offen offset:{t * 1024 + 512 * q} sc1")))
        s0, s1 = self.stats_ops(0, layer), self.stats_ops(1, layer)
        sv += [(G * 4, k, f) for p in zip(s0, s1) for k, f in p]
        sf = []
        if self.opt.get("fine") == (1 if isA else 2):
            sf = [(G * 2 * i, "s", lambda i=i: self.fine(1 if isA else 2, i)) for i in range(7)]
        nd = 0
        for k, f in self.pw_dma(self.sWOA if isA else self.sWOB, (0, 1, 2) if isA else (2, 3)):
            sd.append((G * 9 + 6 + 5 * nd, k, f))
            nd += k == "v"
        if isA:
            HF, HC = self.opt.get("hf", 4), self.opt.get("hc", 8)
            hv, hx, fv = V(194), V(195), V(196)
            def check(reg, first, gap, shift):
                slow, back = self.lab("hslow"), self.lab("hback")
                out = [(first, "v", lambda: I("buffer_load_dword", reg, self.vPollH, self.sWS, 0, mods="offen sc1")),
                       (gap, "v", lambda: I("v_cmp_ne_u32", VCC, hx, reg))]
                if shift: out.append((gap, "s", lambda: I("s_lshr_b64", VCC, VCC, 16)))
                def br():
                    I("s_cbranch_scc1" if shift else "s_cbranch_vccnz", slow)
                    a.label(back)
                out.append((gap, "s", br))
                def tail():
                    b = self.a
                    b.label(slow)
                    b.I("s_sub_u32", self.sBudget, self.sBudget, 1)
                    b.I("s_cbranch_scc1", "L_end")
                    b.I("buffer_load_dword", reg, self.vPollH, self.sWS, 0, mods="offen sc1")
                    b.wait(vm=0)
                    b.I("v_cmp_ne_u32", VCC, hx, reg)
                    if shift: b.I("s_lshr_b64", VCC, VCC, 16)
                    b.I("s_cbranch_scc1" if shift else "s_cbranch_vccnz", slow)
                    b.I("s_branch", back)
                self.tail.append(tail)
                return out
            stc = [(2, "v", lambda: I("v_mad_u32_u24", hx, self.vExpHM, self.sL, self.vExpHC))]
            sh += check(hv, G * HF + 8, G * HC, False)
            sh.append((G * HC, "s", lambda: I("s_lshl_b32", T[0], self.sW, 11)))
            sh.append((G * HC, "s", lambda: I("s_add_u32", M0, T[0], L_HX)))
            sh.append((G * HC, "s", lambda: I("s_add_u32", T[0], T[0], self.sHX)))
            for q in range(2):
                sh.append((G * HC, "v", lambda q=q: I("buffer_load_dwordx4", self.vHalo, self.sWS, T[0], mods=f"offen offset:{1024 * q} sc1 lds", tag="halo")))
            sh.append((G * HC, "s", lambda: I("s_add_u32", T[0], self.sHX, 14336)))
            for q in range(2):
                sh.append((G * HC, "v", lambda q=q: I("buffer_load_dwordx2", self.straw(2)[2 * q:2 * q + 2], self.vHaloS, self.sWS, T[0],
                                                     mods=f"offen offset:{512 * q} sc1")))
            sh.append((G * HC, "v", lambda: I("v_add_u32", V(194), L_HX, self.vHp)))
            def hw(k): return A(4 * k, 4)
            shw = []
            for k in range(14): shw += [(G * 8 + 4 * k, "v", f) for f in self.tr_pair(hw(k), self.vQh, k * 2048)]
            sv += [(G * 12, k, f) for k, f in self.stats_ops(2, layer)]
            nb = len(mf) - 5
            sb = [(nb, "s", lambda: a.wait_vm_tag("halo")), (nb, "s", lambda: a.wait(lg=0)), (nb, "s", lambda: bar(168 + 28))]
            sb += [(nb, "v", lambda k=k: I("ds_read_b128", self.hx(k), V(194), mods=f"offset:{512 * k}")) for k in range(14)]
            n0 = len(mf)
            for k in range(14): mf.append((self.hacc, hw(k), self.hx(k), 0 if k == 0 else self.hacc))
            stl = [(n0 - 2, "v", f) for f in tail_ops]
            rest = self.sched(mf, [sf, sw, sx, stc, sh, shw, sb, sd, sv, stl])
        else:
            n0 = len(mf)
            sb = [(n0 - 9, "s", lambda: a.wait(lg=0)), (n0 - 9, "s", lambda: bar(168))]
            stl = [(n0 - 4, "v", f) for f in tail_ops]
            rest = self.sched(mf, [sf, sw, sx, stc, sb, sd, sv, stl])
        return rest

    def ln(self, acc, c, st, scale):
        for p in range(2):
            self.pk("v_pk_fma_f32", acc[2 * p:2 * p + 2], c[2 * p:2 * p + 2], st[0:2], acc[2 * p:2 * p + 2], by=0)
        if scale == "r":
            for p in range(2): self.pk("v_pk_mul_f32", acc[2 * p:2 * p + 2], acc[2 * p:2 * p + 2], st[0:2], by=1)
        elif scale == "m":
            for p in range(2): self.pk("v_pk_mul_f32", acc[2 * p:2 * p + 2], acc[2 * p:2 * p + 2], st[2:4], by=0)
        elif scale == "e":
            self.pk("v_pk_fma_f32", acc[0:2], acc[0:2], st[2:4], self.vE0, by=0)
            self.pk("v_pk_mul_f32", acc[2:4], acc[2:4], st[2:4], by=0)

    def cvt(self, dst, src):
        for p in range(src.cnt // 2):
            self.I("v_cvt_pk_bf16_f32", dst[p], src[2 * p], src[2 * p + 1])

    def conv(self, dst, T, mat, c, scales):
        for f in range(2):
            ft = 2 * mat + f
            self.ln(self.acc(T, ft), c[4 * ft:4 * ft + 4], self.st(T), scales[f])
        for f in range(2):
            self.cvt(dst[2 * f:2 * f + 2], self.acc(T, 2 * mat + f))

    def o_finish(self, o, den, of, in_drain, after):
        a, I = self.a, self.I
        T = self.sT
        I("s_add_u32", T[1], self.sOq, 16384)
        self.flag_value(T[0])
        for t in range(2): I("v_rcp_f32", den[t][0], den[t][0])
        I("v_mov_b32", self.vT, T[0])
        for t in range(2):
            for p in range(4): self.pk("v_pk_mul_f32", o[t][2 * p:2 * p + 2], o[t][2 * p:2 * p + 2], den[t][0:2], by=0)
            self.cvt(of[t], o[t])
            I("buffer_store_dwordx4", of[t], self.vL16, self.sWS, T[1] if t else self.sOq, mods="offen")
        self.fine(getattr(self, "fin_region", 0) or -1, 6)
        self.fin_region = 0
        if in_drain: in_drain()
        a.wait(vm=0)
        self.publish(self.sFOq)
        self.stamp()
        if after: after()

    def qa_stage(self):
        a, I = self.a, self.I
        a.label("L_qa")
        a.forget_counters()
        self.it_b = 1
        self.q_poll(lambda: self.b_to_a(range(7, 21)))
        self.stamp()
        kf = [V(196, 4), V(200, 4)]
        qf = [V(204, 4), V(208, 4)]
        vp = [V(212, 4), V(216, 4)]
        hp = V(220, 2)
        tail_ops = self.conv_scalar(kf[1], 1, 1, self.cA, ("r", "m"))
        tail_ops.append(lambda: I("ds_write_b128", self.vKrd, kf[1], mods="offset:1024"))
        rest = self.q_gemm("A", tail_ops)
        for f in rest: f()
        self.stamp()
        late = [f for _, f in self.pw_dma(self.sWOA, (3,))]
        self.conv(vp[1], 1, 2, self.cA, ("r", "r"))
        I("ds_write_b128", self.vEXW, vp[1], mods="offset:2048")
        self.ln(self.hacc, self.vCH, self.st(2), "m")
        self.cvt(hp, self.hacc)
        I("ds_write_b64", self.vHW, hp)
        self.conv(vp[0], 0, 2, self.cA, ("r", "r"))
        I("ds_write_b128", self.vEXW, vp[0], mods="offset:1024")
        self.conv(qf[0], 0, 0, self.cA, (None, None))
        self.fine(4, 0)
        a.wait(lg=0)
        I("s_barrier")
        self.fine(4, 1)
        kprev = V(222, 4)
        vt = [V(226, 6), V(232, 6)]
        I("ds_read_b128", kprev, self.vKrd)
        for f in range(2):
            for i in range(3):
                I("ds_read_b64_tr_b16", vt[f][2 * i:2 * i + 2], self.vEXRa, mods=f"offset:{1024 * i + 8 * f}")
        self.conv(kf[0], 0, 1, self.cA, ("r", "m"))
        self.conv(qf[1], 1, 0, self.cA, (None, None))
        s = [V(112, 8), V(120, 8)]
        self.mfma(s[1][4:8], kf[1], qf[1], self.bCur)
        self.mfma(s[1][0:4], kf[0], qf[1], self.bPrev)
        self.mfma(s[0][4:8], kf[0], qf[0], self.bCur)
        self.mfma(s[0][0:4], kprev, qf[0], self.bPrev0)
        self.fine(4, 2)
        a.wait(lg=0)
        I("s_barrier")
        for f in late[:3]: f()
        m = V(128, 2)
        for t in (1, 0):
            I("v_max3_f32", m[t], s[t][4], s[t][5], s[t][6])
            I("v_max3_f32", m[t], m[t], s[t][7], s[t][0])
            I("v_max3_f32", m[t], m[t], s[t][1], s[t][2])
            I("v_max_f32", m[t], m[t], s[t][3])
        self.allreduce_pairs([("v_max_f32", m[0], m[1])])
        late[3]()
        nm = [V(130, 2), V(132, 2)]
        for t in range(2):
            I("v_mul_f32", nm[t][0], m[t], self.st(t)[3])
        for t in range(2):
            for p in range(4):
                self.I("v_pk_fma_f32", s[t][2 * p:2 * p + 2], s[t][2 * p:2 * p + 2], self.st(t)[2:4], nm[t],
                       mods="op_sel:[0,1,0] op_sel_hi:[1,1,0] neg_lo:[0,0,1] neg_hi:[0,0,1]")
        self.fine(4, 3)
        pf = [V(136, 4), V(140, 4)]
        o = [V(144, 8), V(152, 8)]
        sm = [V(160, 4), V(164, 4)]
        late[4]()
        for k in range(8): I("v_exp_f32", s[0][k], s[0][k])
        late[5]()
        for k in range(2): I("v_exp_f32", s[1][k], s[1][k])
        self.cvt(pf[0], s[0])
        for k in range(2, 4): I("v_exp_f32", s[1][k], s[1][k])
        self.mfma(sm[0], self.aOnes, pf[0], 0)
        I("v_exp_f32", s[1][4], s[1][4])
        self.mfma(o[0][0:4], vt[0][0:4], pf[0], 0)
        I("v_exp_f32", s[1][5], s[1][5])
        self.mfma(o[0][4:8], vt[1][0:4], pf[0], 0)
        for k in range(6, 8): I("v_exp_f32", s[1][k], s[1][k])
        self.cvt(pf[1], s[1])
        self.mfma(sm[1], self.aOnes, pf[1], 0)
        for f in range(2):
            self.mfma(o[1][4 * f:4 * f + 4], vt[f][2:6], pf[1], 0)
        self.fine(4, 4)
        self.fine(4, 5)
        self.fin_region = 4
        self.o_finish(o, sm, [V(168, 4), V(172, 4)], lambda: self.a_to_b(((), (1,))), lambda: self.a_to_b(((1, 2), ())))
        I("s_mov_b32", self.sPhase, 1)
        a.flush()
        I("s_branch", "L_p")

    def phi(self, src, dst, extra=(), done=None):
        a, I = self.a, self.I
        rest = list(extra)
        def more(n=1):
            for _ in range(n):
                if rest: rest.pop(0)()
        p = [V(120, 8), V(128, 8)]
        for t in range(2):
            for oft in range(2):
                self.mfma(p[t][4 * oft:4 * oft + 4], self.aWphi[4 * oft:4 * oft + 4], src[t], 0)
        kk = [V(204, 2), V(206, 2)]
        bb = [V(208, 2), V(210, 2)]
        for t in range(2):
            I("v_mov_b32", kk[t][0], self.st(t)[3])
            I("v_sub_f32", kk[t][1], 0, self.st(t)[3])
        more(3)
        mx, mn = V(188, 2), V(190, 2)
        for t in range(2):
            for k in range(3):
                if k == 0:
                    I("v_max3_f32", mx[t], p[t][0], p[t][1], p[t][2])
                    I("v_min3_f32", mn[t], p[t][0], p[t][1], p[t][2])
                else:
                    I("v_max3_f32", mx[t], mx[t], p[t][2 * k + 1], p[t][2 * k + 2])
                    I("v_min3_f32", mn[t], mn[t], p[t][2 * k + 1], p[t][2 * k + 2])
        self.fine(self.phi_region or -1, 1)
        self.allreduce_pairs([("v_max_f32", mx[0], mx[1]), ("v_min_f32", mn[0], mn[1])])
        for t in range(2):
            I("v_mul_f32", bb[t][0], mx[t], kk[t][1])
            I("v_mul_f32", bb[t][1], mn[t], kk[t][0])
        e = [V(144, 14), V(158, 14)]
        for i in range(7):
            for t in range(2):
                self.pk("v_pk_fma_f32", e[t][2 * i:2 * i + 2], p[t][(i & ~1):(i & ~1) + 2], kk[t], bb[t], bx=i & 1)
        self.fine(self.phi_region or -1, 2)
        for i in range(14):
            for t in range(2): I("v_exp_f32", e[t][i], e[t][i])
            more()
        sm = [V(188, 2), V(190, 2)]
        for t in range(2): self.pk("v_pk_add_f32", sm[t], e[t][0:2], e[t][2:4])
        for i in range(2, 7):
            for t in range(2): self.pk("v_pk_add_f32", sm[t], sm[t], e[t][2 * i:2 * i + 2])
            more()
        self.fine(self.phi_region or -1, 3)
        self.allreduce_pairs([("v_add_f32", sm[0][0], sm[0][1]), ("v_add_f32", sm[1][0], sm[1][1])])
        for t in range(2):
            for k in range(2): I("v_rcp_f32", sm[t][k], sm[t][k])
        for t in range(2):
            more()
            for i in range(7):
                self.pk("v_pk_mul_f32", e[t][2 * i:2 * i + 2], e[t][2 * i:2 * i + 2], sm[t])
                if i == 3: more()
            for s in range(2):
                more()
                for q in range(4):
                    I("v_cvt_pk_bf16_f32", dst[t][s][q], e[t][4 * q + s], e[t][4 * q + 2 + s] if q < 3 else 0)
                if done: done(t, s)
        more(99)

    def qb_stage(self):
        a, I = self.a, self.I
        T = self.sT
        a.label("L_qb")
        self.q_poll(lambda: self.a_to_b(((0,), (2, 0)), self.colsum_b_kv))
        self.stamp()
        rest = self.q_gemm("B")
        for f in rest: f()
        self.stamp()
        kf = qf = [V(196, 4), V(200, 4)]
        vp = [V(212, 4), V(216, 4)]
        exw = V(220)
        I("v_subrev_u32", exw, L_EXV - L_PH, self.vEXW)
        for t in (1, 0): self.conv(kf[t], t, 1, self.cB, (None, None))
        for t in (1, 0):
            self.conv(vp[t], t, 2, self.cB, ("r", "e"))
            I("ds_write_b128", exw, vp[t], mods=f"offset:{16384 + 1024 * t}")
        self.fine(3, 0)
        self.phi_region = 3
        ph = [[V(232, 4), V(236, 4)], [V(224, 4), V(228, 4)]]
        self.phi(kf, ph, done=lambda t, s: I("ds_write_b128", exw, ph[t][s], mods=f"offset:{8192 * s + 1024 * t}"))
        self.phi_region = 0
        self.fine(3, 4)
        a.wait(lg=0)
        I("s_barrier")
        self.fine(3, 5)
        lo, hi, real, pr = V(184), V(185), V(186), V(187)
        sP = T[4]
        I("s_lshl_b32", sP, self.sW, 14)
        I("s_sub_u32", sP, self.sKVld, sP)
        I("s_add_u32", sP, sP, 3 * 16384)
        def probe(reg): I("buffer_load_dword", reg, self.vProbe, self.sWS, sP, mods="offen offset:12 sc1")
        P1 = self.opt.get("p1", 0)
        if P1 == 0: probe(pr)
        kacc = V(120, 8)
        def fa(k, oft): return A(4 * (k * 2 + oft), 4)
        def fb(k): return A(40 + 4 * k, 4)
        for k in range(4):
            for t in range(2):
                I("ds_read_b64_tr_b16", fb(k)[2 * t:2 * t + 2], self.vKB, mods=f"offset:{(2 * k + t) * 1024}")
            for oft in range(2):
                for t in range(2):
                    I("ds_read_b64_tr_b16", fa(k, oft)[2 * t:2 * t + 2], self.vKA, mods=f"offset:{(2 * k + t) * 1024 + 8 * oft}")
            if k:
                for oft in range(2):
                    self.mfma(kacc[4 * oft:4 * oft + 4], fa(k - 1, oft), fb(k - 1), 0 if k == 1 else kacc[4 * oft:4 * oft + 4])
        for oft in range(2):
            self.mfma(kacc[4 * oft:4 * oft + 4], fa(3, oft), fb(3), kacc[4 * oft:4 * oft + 4])
        self.fine(3, 6)
        if P1 == 1: probe(pr)
        kvp = V(128, 4)
        self.cvt(kvp, kacc)
        I("v_and_b32", kvp[3], "0xffff", kvp[3])
        I("v_or_b32", kvp[3], self.sTag, kvp[3])
        I("buffer_store_dwordx4", kvp, self.vL16, self.sWS, self.sKVst, mods="offen sc1")
        self.stamp()
        a.wait(lg=0)
        I("s_barrier")
        self.colsum_b_q2()
        for t in (1, 0): self.conv(qf[t], t, 0, self.cB, (None, None))
        sO = [S(8 + k) for k in range(16)]
        sM = T[3]
        def gf(p): return A(4 * p, 4)
        def ready(reg):
            I("v_xor_b32", reg, self.sTag, reg)
            I("v_cmp_ge_u32", VCC, "0xffff", reg)
            I("v_lshrrev_b32", hi, 7, self.vL16)
            I("s_and_b32", sM, VCC_LO, "0xffff")
        def touch():
            for half in range(2):
                t = V(188 + half)
                if half:
                    I("s_lshr_b32", T[0], sM, 8)
                    I("v_add_u32", V(190), 8192, self.vTA)
                    I("v_and_b32", V(190), "0x3fff", V(190))
                I("v_lshrrev_b32", t, hi, T[0] if half else sM)
                I("v_and_b32", t, 1, t)
                I("v_cmp_eq_u32", VCC, 1, t)
                I("v_mov_b32", t, OOB)
                I("v_cndmask_b32", t, t, V(190) if half else self.vTA, VCC)
                I("buffer_load_dword", self.vDummy, t, self.sWS, self.sKVld, mods="offen sc1", nodest=True)
        I("v_add_u32", real, self.sKVld, self.vProbe)
        ready(pr)
        P2 = self.opt.get("p2", 0)
        if P2 == 0: probe(lo)
        touch()
        ex = [lambda p=p: I("v_readlane_b32", sO[p], real, p) for p in range(16)]
        if P2: ex.insert(P2, lambda: probe(lo))
        self.phi(qf, ph, extra=ex)
        self.stamp()
        red = V(176, 8)
        tg = [V(112 + k) for k in range(16)]
        chk, go, slow = self.lab("gchk"), self.lab("ggo"), self.lab("gslow")
        a.label(chk)
        ready(lo)
        I("s_cmp_lg_u32", sM, "0xffff")
        I("s_cbranch_scc1", slow)
        def gload(p): I("buffer_load_dwordx4", gf(p), self.vL16, self.sWS, sO[p], mods="offen sc1")
        NG = self.opt.get("ng", 6)
        for p in range(NG): gload(p)
        I("v_add_u32", exw, L_KVX - L_EXK, self.vKrd)
        I("v_add_u32", V(221), L_KVX, self.vL16)
        mf, sc, sg = [], [], []
        for p in range(16):
            mf.append((red[0:4], self.aSel[2:6], gf(p), 0 if p == 0 else red[0:4]))
            mf.append((red[4:8], self.aSel[0:4], gf(p), 0 if p == 0 else red[4:8]))
            if p + NG < 16: sg.append((2 * p, "v", lambda p=p: gload(p + NG)))
            sc.append((2 * p, "v", lambda p=p: I("v_accvgpr_read_b32", tg[p], gf(p)[3])))
            if p == 1:
                sc.append((2 * p, "v", lambda: I("v_min_u32", lo, tg[0], tg[1])))
                sc.append((2 * p, "v", lambda: I("v_max_u32", hi, tg[0], tg[1])))
            elif p & 1:
                sc.append((2 * p, "v", lambda p=p: I("v_min3_u32", lo, lo, tg[p - 1], tg[p])))
                sc.append((2 * p, "v", lambda p=p: I("v_max3_u32", hi, hi, tg[p - 1], tg[p])))
        rest = self.sched(mf, [sg, sc])
        for f in rest: f()
        I("v_xor_b32", lo, self.sTag, lo)
        I("v_xor_b32", hi, self.sTag, hi)
        I("v_or_b32", lo, lo, hi)
        I("v_cmp_lt_u32", VCC, "0xffff", lo)
        I("s_cbranch_vccnz", slow + "r")
        latep = [f for _, f in self.pw_dma(self.sWOB, (0, 1))]

        def tail():
            b = self.a
            b.label(slow)
            probe(lo)
            touch()
            b.I("s_sub_u32", self.sBudget, self.sBudget, 1)
            b.I("s_cbranch_scc1", "L_end")
            b.wait(vm=2)
            b.flush()
            b.I("s_branch", chk)
            b.label(slow + "r")
            probe(lo)
            b.I("s_sub_u32", self.sBudget, self.sBudget, 1)
            b.I("s_cbranch_scc1", "L_end")
            b.wait(vm=0)
            b.I("s_branch", chk)
        self.tail.append(tail)
        self.stamp()
        kvs = V(112, 4)
        self.cvt(kvs, red)
        I("ds_write_b128", exw, kvs)
        for f in latep[:3]: f()
        a.wait(lg=0)
        I("s_barrier")
        kvf = [[A(0, 4), A(4, 4)], [A(8, 4), A(12, 4)]]
        zf = [A(16, 4), A(20, 4)]
        for s in range(2):
            I("ds_read_b128", zf[s], self.vZ, mods=f"offset:{2048 * s}")
            for dt in range(2):
                I("ds_read_b128", kvf[s][dt], V(221), mods=f"offset:{(2 * s + dt) * 1024}")
        for f in latep[3:5]: f()
        o = [V(144, 8), V(152, 8)]
        dn = [V(160, 4), V(164, 4)]
        mf = []
        for s in range(2):
            for t in range(2): mf.append((dn[t], zf[s], ph[t][s], 0 if s == 0 else dn[t]))
            for t in range(2):
                for dt in range(2):
                    mf.append((o[t][4 * dt:4 * dt + 4], kvf[s][dt], ph[t][s], 0 if s == 0 else o[t][4 * dt:4 * dt + 4]))
        for f in self.sched(mf, [[(2 * k, "v", f) for k, f in enumerate(latep[5:])]]): f()
        I("s_mov_b32", self.sPhase, 0)
        I("s_add_u32", self.sIt, self.sIt, 1)
        I("s_add_u32", self.sKVst, self.sKVst, 0x100000)
        I("s_add_u32", self.sKVld, self.sKVld, 0x100000)
        I("s_add_u32", self.sHX, self.sHX, 0x40000)
        for t in range(2): I("v_add_f32", dn[t][0], f32(1e-6), dn[t][0])
        self.it_b = 1
        self.o_finish(o, dn, [V(116, 4), V(120, 4)], lambda: self.b_to_a(range(7)), None)
        a.flush()
        I("s_branch", "L_p")

    def final(self):
        a, I = self.a, self.I
        T = self.sT
        a.label("L_final")
        a.forget_counters()
        xo = V(112, 8)
        I("s_lshl_b32", T[1], self.sW, 11)
        I("s_add_u32", T[1], T[1], L_SP)
        I("v_add_u32", V(120), T[1], self.vL16)
        I("s_add_u32", T[2], self.sX0o, 8 * 1792)
        for n in range(4):
            self.cvt(xo[2 * n:2 * n + 2], self.vR[4 * n:4 * n + 4])
            I("ds_write_b64", V(0), xo[2 * n:2 * n + 2], mods=f"offset:{32 * n}")
        a.wait(lg=0)
        for b in range(2): I("ds_read_b128", V(124 + 4 * b, 4), V(120), mods=f"offset:{1024 * b}")
        for b in range(2): I("buffer_store_dwordx4", V(124 + 4 * b, 4), self.vX0d, self.sOUT, T[2] if b else self.sX0o, mods="offen")
        a.label("L_fin2")
        self.stamp()
        if self.opt.get("stamps"):
            I("s_mov_b32", T[7], 63)
            self.stamp(real=True)
            I("s_lshl_b32", T[0], S(2), 2)
            I("s_add_u32", T[0], T[0], self.sW)
            I("s_lshl_b32", T[0], T[0], 8)
            I("s_add_u32", T[0], T[0], WS_STAMP)
            I("v_lshrrev_b32", V(120), 2, self.vL16)
            if self.opt.get("fine") == 5:
                for k in range(7):
                    I("v_readlane_b32", T[1], V(240), k)
                    I("v_writelane_b32", self.vStamp, T[1], 40 + k)
                I("v_readlane_b32", T[1], V(240), 63)
                I("v_writelane_b32", self.vStamp, T[1], 62)
                I("v_readlane_b32", T[1], self.vStamp, 2)
                I("v_writelane_b32", self.vStamp, T[1], 47)
            I("buffer_store_dword", self.vStamp, V(120), self.sWS, T[0], mods="offen")
        I("s_or_b32", T[0], S(2), self.sW)
        I("s_cmp_lg_u32", T[0], 0)
        I("s_cbranch_scc1", "L_end")
        if self.opt.get("dbg"):
            I("s_load_dwordx2", S(8, 2), S(0, 2), 64)
            a.wait(lg=0)
            self.srd(S(12, 4), S(8, 2), 256)
            I("v_lshrrev_b32", V(120), 2, self.vL16)
            I("v_readlane_b32", T[0], self.vStamp, 0)
            I("v_readlane_b32", T[1], self.vStamp, 62)
            I("v_readlane_b32", T[2], self.vStamp, 63)
            I("s_sub_u32", T[1], T[2], T[1])
            I("v_subrev_u32", V(121), T[0], self.vStamp)
            I("v_writelane_b32", V(121), T[1], 0)
            I("v_readlane_b32", T[0], V(121), 32)
            I("v_writelane_b32", V(121), T[0], 15)
            I("buffer_store_dword", V(121), V(120), S(12, 4), 0, mods="offen")
        if self.opt.get("leak"):
            skip = self.lab("noleak")
            I("v_readlane_b32", T[1], self.vStamp, 62)
            I("v_readlane_b32", T[2], self.vStamp, 63)
            I("v_readlane_b32", T[3], self.vStamp, self.opt.get("leakidx", 0))
            I("v_readlane_b32", T[4], self.vStamp, 0)
            I("s_sub_u32", T[1], T[2], T[1])
            I("s_sub_u32", T[3], T[3], T[4])
            I("s_cmp_lt_u32", T[1], self.opt["leak"])
            I("s_cbranch_scc1", skip)
            I("s_cmp_eq_u32", self.sMode, 0)
            I("s_cbranch_scc1", skip)
            I("v_cvt_f32_u32", V(121), T[3] if self.opt.get("leakidx") else T[1])
            I("v_lshrrev_b32", V(121), 16, V(121))
            a.wait(vm=0)
            I("s_mov_b64", EXEC, 1)
            I("buffer_store_short", V(121), OFF, self.sOUT, 0)
            a.label(skip)
        I("s_add_u32", T[0], self.sNonce, "0x10100")
        I("v_mov_b32", V(120), T[0])
        I("s_mov_b64", EXEC, 1)
        I("buffer_store_dword", V(120), OFF, self.sWS, 0)
        I("s_endpgm")

    def build(self):
        a = self.a
        self.prologue()
        self.p_stage()
        self.qa_stage()
        self.qb_stage()
        self.final()
        done = 0
        while done < len(self.tail):
            a.forget_counters()
            a.pos += 100
            self.tail[done]()
            done += 1
        a.label("L_end")
        a.I("s_endpgm")
        head = open("cdna_kernels/" + NAME[:-7] + ".s.ref").read().split("; Override launch")[0]
        out = head + f"; @launch grid=(256,1,1) block=(256,1,1) lds={LDS_BYTES}\n"
        out += f'.amdgcn_target "amdgcn-amd-amdhsa--gfx950"\n.text\n.globl {NAME}\n.p2align 8\n.type {NAME},@function\n{NAME}:\n'
        out += a.text()
        out += f""".section .rodata,"a"
.p2align 6
.amdhsa_kernel {NAME}
  .amdhsa_next_free_vgpr 512
  .amdhsa_next_free_sgpr 102
  .amdhsa_accum_offset 256
  .amdhsa_group_segment_fixed_size 0
  .amdhsa_kernarg_size 80
  .amdhsa_user_sgpr_count 2
  .amdhsa_user_sgpr_kernarg_segment_ptr 1
  .amdhsa_system_sgpr_workgroup_id_x 1
.end_amdhsa_kernel
"""
        return out


if __name__ == "__main__":
    opt = {}
    path = sys.argv[1]
    for kv in sys.argv[2:]:
        k, v = kv.split("=")
        opt[k] = int(v)
    g = Gen(opt)
    open(path, "w").write(g.build())
    import subprocess
    r = subprocess.run(["clang", "-x", "assembler", "-target", "amdgcn-amd-amdhsa", "-mcpu=gfx950", "-c", path, "-o", "gen_check.o"], capture_output=True, text=True)
    if r.returncode: print(r.stderr[:3000]); sys.exit(1)
    sz = subprocess.run(["llvm-readelf", "-S", "gen_check.o"], capture_output=True, text=True).stdout
    print("text bytes", [int(l.split()[6], 16) for l in sz.splitlines() if " .text" in l],
          "instructions", sum(g.a.count.values()), "nop states", g.a.nops)
```

```python
import sys
import math
import struct
from emit import Asm, V, A, S, VCC, EXEC, M0, OFF, Special

VCC_LO = Special("vcc_lo", [("s", "vcc")])

NAME = "interleave_layers__sliding_local_dilated__linear_kernel_hedgehog__prompt_kernel"


def f32(x):
    return "0x%08x" % struct.unpack("<I", struct.pack("<f", x))[0]


WS_E = 0x0
WS_FX = 0x1000
WS_FO = 0x5000
WS_SLOW = 0x8000
WS_FH = 0x10000
WS_HELLO = 0x11000
WS_FWF = 0x12000
WS_STAMP = 0x20000
WS_X = 0x100000
WS_XS = 0x2C0000
WS_O = 0x300000
WS_KV = 0x500000
WS_HX = 0x700000
WS_FW = 0x800000
FW_T = 16 * 86016
WS_SIZE = 0xB00000
OOB = 0x7FFF0000

MAT = 28672
L_PW = 86016
L_SP = 151552
L_KVX = L_SP
L_HX = L_SP
L_WPHI = L_SP + 8192
L_CS = L_SP + 10240
L_EXK = L_PW + 49152
L_EXV = L_EXK + 5120
L_PH = L_PW
LDS_BYTES = 163840

LOG2E = math.log2(math.e)


class Neg:
    def __init__(self, r): self.r = r
    def __str__(self): return "-" + str(self.r)
    def regs(self): return self.r.regs()


class Gen:
    def __init__(self, opt):
        self.opt = opt
        self.a = Asm()
        self.tail = []
        self.uid = 0

    def lab(self, base):
        self.uid += 1
        return f"L_{base}_{self.uid}"

    sX0, sWA, sWOA, sWB, sWOB, sOUT, sWS, sWP = (S(24 + 4 * i, 4) for i in range(8))
    (sGrp, sH, sW, sC, sRh, sBase, sTag, sMode, sIt, sPhase, sL, sBudget, sXq, sXSq, sOq, sXp, sXSp, sOp, sFXp, sFOq,
     sFOp, sHX, sHaloProd, sFHp, sKVst, sKVld, sQWo, sFirst, sPend, sX0o, sNonce, sXcc) = (S(56 + i) for i in range(32))
    sT = [S(88 + i) for i in range(8)]
    sT2 = S(96, 2)
    sStamp = S(98, 2)
    sFW, sQWl, sPWl, sPWo = S(4), S(5), S(6), S(7)

    vL16, vQ0, vQ1, vQv0, vQv1, vQh = (V(1 + i) for i in range(6))
    vP = [V(7 + i) for i in range(4)]
    vQWd, vX0d, vExpHC, vPollQ, vPollM, vPollP, vEXW, vEXRa, vHW, vM3, vStat = (V(11 + i) for i in range(11))
    vE0 = V(22, 2)
    vHalo, vHaloS, vStatSt, vZ, vExpHM, vExpC, vExpM, vMH = (V(24 + i) for i in range(8))
    vCH = V(32, 4)
    bCur, bPrev, bPrev0 = V(36, 4), V(40, 4), V(44, 4)
    vR = V(48, 16)
    cA, cB = V(64, 24), V(88, 24)
    vTA, vProbe, vHp, vQS = V(241), V(242), V(243), V(244)
    vDummy = V(245)
    vPWd = [V(246 + i) for i in range(4)]
    vKA, vKB, vPollH, vKrd, vStamp = (V(250 + i) for i in range(5))
    vT = V(255)

    aOnes, aSel, aWphi = A(232, 4), A(236, 6), A(242, 8)

    def acc(self, T, ft): return V(112 + (T * 6 + ft) * 4, 4)
    hacc = V(160, 4)
    def straw(self, T): return V(164 + 4 * T, 4)
    def st(self, T): return V(176 + 4 * T, 4)
    def xf(self, T, ks): return A((ks * 2 + T) * 4, 4)
    def hx(self, ks): return A(56 + 4 * ks, 4) if ks < 12 else self.wf(ks - 6)
    def stash(self, i): return A(112 + 4 * i, 4) if i < 14 else A(200 + 4 * (i - 14), 4)
    def wf(self, f): return A(168 + 4 * f, 4)

    def I(self, *x, **k): self.a.I(*x, **k)

    def stamp(self, real=False):
        if not self.opt.get("stamps"):
            return
        a = self.a
        a.I("s_memrealtime" if real or self.opt.get("real") else "s_memtime", self.sStamp)
        a.I("s_mov_b32", M0, self.sT[7])
        a.wait(lg=0)
        a.I("v_writelane_b32", self.vStamp, self.sStamp[0], M0)
        a.I("s_add_u32", self.sT[7], self.sT[7], 1)
        if getattr(self, "fine_pending", False):
            self.fine_pending = False
            for i in range(7): a.I("v_writelane_b32", self.vStamp, S(8 + 2 * i), 40 + i)
            a.I("v_writelane_b32", self.vStamp, self.sStamp[0], 47)

    def fine(self, region, i):
        if self.opt.get("fine") == region and region == 5:
            self.a.raw("    s_memtime s[100:101]")
            self.a.raw("    s_waitcnt lgkmcnt(0)")
            self.a.raw(f"    v_writelane_b32 v240, s100, {i}")
            self.a.pos += 3
            return
        if self.opt.get("fine") == region:
            self.a.raw(f"    s_memtime s[{8 + 2 * i}:{9 + 2 * i}]")
            self.a.pos += 1
            self.fine_pending = True

    def srd(self, dst, src, nbytes):
        self.I("s_mov_b32", dst[0], src[0])
        self.I("s_and_b32", dst[1], src[1], "0xffff")
        self.I("s_mov_b32", dst[2], nbytes)
        self.I("s_mov_b32", dst[3], "0x20000")

    def mfma(self, d, x, y, c):
        self.I("v_mfma_f32_16x16x32_bf16", d, x, y, c)

    def pk(self, op, d, x, y, z=None, bx=None, by=None, bz=None):
        srcs = [(x, bx), (y, by)] + ([(z, bz)] if z is not None else [])
        lo = [0 if b is None else b for _, b in srcs]
        hi = [1 if b is None else b for _, b in srcs]
        mods = []
        if any(lo): mods.append("op_sel:[%s]" % ",".join(map(str, lo)))
        if not all(hi): mods.append("op_sel_hi:[%s]" % ",".join(map(str, hi)))
        self.I(op, d, *[s for s, _ in srcs], mods=" ".join(mods))

    def allreduce_pairs(self, chains):
        for step in range(7):
            for op, x, y in chains:
                if step in (0, 6): self.I("v_permlane32_swap_b32", x, y)
                elif step in (1, 4): self.I(op, x, x, y)
                elif step in (2, 5): self.I("v_mov_b32", y, x)
                else: self.I("v_permlane16_swap_b32", x, y)

    def budget_branch(self, loop):
        self.I("s_sub_u32", self.sBudget, self.sBudget, 1)
        self.I("s_cbranch_scc1", "L_end")
        self.I("s_branch", loop)

    def flag_value(self, dst):
        self.I("s_lshl_b32", dst, self.sL, 4)
        self.I("s_or_b32", dst, dst, self.sBase)

    def publish(self, soff):
        a = self.a
        slow, done = self.lab("pubslow"), self.lab("pubdone")
        a.I("s_cmp_eq_u32", self.sMode, 0)
        a.I("s_cbranch_scc1", slow)
        a.I("s_mov_b64", EXEC, 1)
        a.I("buffer_store_dword", self.vT, OFF, self.sWS, soff)
        a.label(done)
        a.I("s_mov_b64", EXEC, -1)

        def tail():
            b = self.a
            b.label(slow)
            b.I("buffer_wbl2", mods="sc1")
            b.wait(vm=0)
            b.I("s_mov_b64", EXEC, 1)
            b.I("buffer_store_dword", self.vT, OFF, self.sWS, soff, mods="sc1")
            b.I("s_branch", done)
        self.tail.append(tail)

    def sched(self, mfmas, streams):
        a = self.a
        streams = [list(s) for s in streams]
        for i, m in enumerate(mfmas):
            self.mfma(*m)
            scalar_free = True
            if i + 1 < len(mfmas):
                n = mfmas[i + 1]
                if a.prewait(n[1], n[2]): scalar_free = False
            if scalar_free:
                for s in streams:
                    if s and s[0][0] <= i and s[0][1] == "s":
                        s.pop(0)[2]()
                        break
            slots = 2
            progress = True
            while slots > 0 and progress:
                progress = False
                for s in streams:
                    if not s or s[0][0] > i: continue
                    cost = 2 if s[0][1] == "w" else 1
                    if cost <= slots:
                        s.pop(0)[2]()
                        slots -= cost
                        progress = True
                        break
        return [it[2] for s in streams for it in s]

    def fw_dma(self, mats):
        out = []
        for mat in mats:
            for i in range(7):
                if i % 4 == 0:
                    out.append(("s", lambda mat=mat, i=i: self.I("s_add_u32", M0, self.sQWl, mat * MAT + i * 1024)))
                    out.append(("s", lambda mat=mat, i=i: self.I("s_add_u32", self.sT[6], self.sFW, mat * MAT + i * 1024)))
                out.append(("v", lambda i=i: self.I("buffer_load_dwordx4", self.vL16, self.sWS, self.sT[6],
                                                   mods=f"offen offset:{(i % 4) * 1024} lds", untracked=True)))
        return out

    def piece(self, n): return f"offset:{(n // 7) * MAT + (n % 7) * 1024}"

    def a_to_b(self, mats, extra0=None):
        a, I = self.a, self.I
        second, done = self.lab("ab2"), self.lab("abdone")
        a.wait_lg_all()
        I("s_cmp_lg_u32", self.sIt, 0)
        I("s_cbranch_scc1", second)
        for mat in mats[0]:
            for n in range(7 * mat, 7 * mat + 7): I("ds_read_b128", self.stash(n + 1), self.vQS, mods=self.piece(n))
        a.wait(lg=0)
        for _, f in self.fw_dma(mats[0]): f()
        if extra0: extra0()
        a.wait_lg_all()
        a.flush()
        I("s_branch", done)
        a.label(second)
        for mat in mats[1]:
            for n in range(7 * mat, 7 * mat + 7): I("ds_write_b128", self.vQS, self.stash(n), mods=self.piece(n))
        a.label(done)

    def b_to_a(self, pieces):
        a, I = self.a, self.I
        done = self.lab("badone")
        a.wait_lg_all()
        I("s_cmp_lg_u32", self.sIt, self.it_b)
        I("s_cbranch_scc1", done)
        for n in pieces:
            I("ds_read_b128", self.stash(n), self.vQS, mods=self.piece(n))
            I("ds_write_b128", self.vQS, self.stash(n + 1), mods=self.piece(n))
        a.label(done)

    def pw_dma(self, srd, which):
        out = []
        for i in which:
            out.append(("s", lambda i=i: self.I("s_add_u32", M0, self.sPWl, i * 16384)))
            out.append(("s", lambda i=i: self.I("s_add_u32", self.sT[5], self.sPWo, 4 * 28 * i * 896)))
            for b in range(4):
                out.append(("v", lambda b=b: self.I("buffer_load_dwordx4", self.vPWd[b], srd, self.sT[5], mods=f"offen offset:{b * 1024} lds")))
        return out

    def raw_block(self, ks):
        for half in range(2):
            self.I("s_add_u32", M0, self.sT[4], ks * 2048 + half * 1024)
            self.I("s_add_u32", self.sT[6], self.sQWo, (32 * ks + 16 * half) * 2688)
            self.I("buffer_load_dwordx4", self.vQWd, self.sWA, self.sT[6], mods="offen lds", tag=f"raw{ks}")

    def tr_pair(self, dst, base, off):
        return [lambda: self.I("ds_read_b64_tr_b16", dst[0:2], base, mods=f"offset:{off}"),
                lambda: self.I("ds_read_b64_tr_b16", dst[2:4], base, mods=f"offset:{off + 1024}")]

    def qw_read(self, dst, ft, ks):
        base = (self.vQ0, self.vQ1, self.vQ0, self.vQ1, self.vQv0, self.vQv1)[ft]
        return self.tr_pair(dst, base, (MAT if ft in (2, 3) else 0) + ks * 2048)

    def bg(self, n=1):
        if self.bg_next >= self.bg_max: return
        skip = self.lab("bg")
        self.I("s_cmp_eq_u32", self.sW, 3)
        self.I("s_cbranch_scc1", skip)
        for _ in range(n):
            if self.bg_next < self.bg_max:
                self.raw_block(self.bg_next)
                self.bg_next += 1
        self.a.label(skip)

    def prologue(self):
        a, I = self.a, self.I
        T = self.sT
        self.bg_next, self.bg_max = 0, self.opt.get("n1", 7)
        I("s_cmp_ge_u32", S(2), 256)
        I("s_cbranch_scc1", "L_end")
        I("s_getpc_b64", S(22, 2))
        a.label("L_pc")
        if self.opt.get("stamps"):
            I("s_memrealtime", S(100, 2))
            I("s_memtime", self.sStamp)
        I("s_load_dwordx8", S(4, 8), S(0, 2), 0)
        I("s_load_dwordx8", S(12, 8), S(0, 2), 32)
        I("s_load_dwordx2", S(20, 2), S(0, 2), 72)
        I("v_lshrrev_b32", V(114), 6, V(0))
        I("s_lshr_b32", T[1], S(2), 3)
        I("v_and_b32", V(0), 63, V(0))
        I("v_readfirstlane_b32", self.sW, V(114))
        I("s_lshl_b32", T[0], T[1], 10)
        I("v_and_b32", V(112), 7, V(0))
        I("v_lshl_add_u32", V(112), V(112), 7, T[0])
        I("v_min_u32", V(112), "L_end-L_pc", V(112))
        I("global_load_dword", self.vDummy, V(112), S(22, 2), untracked=True)
        I("s_and_b32", T[0], S(2), 7)
        I("s_and_b32", self.sH, T[1], 15)
        I("s_lshr_b32", T[1], T[1], 4)
        I("s_lshl_b32", T[0], T[0], 1)
        I("s_add_u32", self.sGrp, T[0], T[1])
        I("s_and_b32", self.sC, self.sH, 7)
        I("s_lshr_b32", self.sRh, self.sH, 3)
        lane, j, g, t0, t1, t2 = V(0), V(115), V(116), V(117), V(118), V(119)
        I("s_lshl_b32", T[0], self.sGrp, 3)
        I("s_lshl_b32", T[1], self.sRh, 2)
        I("s_add_u32", T[0], T[0], T[1])
        I("s_add_u32", T[0], T[0], self.sW)
        I("s_and_b32", T[1], T[0], 63)
        I("s_mul_i32", T[1], T[1], 16 * 1792)
        I("s_lshr_b32", T[2], self.sGrp, 3)
        I("s_mul_i32", T[2], T[2], 896)
        I("s_add_u32", T[1], T[1], T[2])
        I("s_lshl_b32", T[2], self.sC, 7)
        I("s_add_u32", self.sX0o, T[1], T[2])
        I("v_lshrrev_b32", t0, 3, lane)
        I("v_mul_u32_u24", t0, 1792, t0)
        I("v_and_b32", t1, 7, lane)
        I("v_lshl_add_u32", self.vX0d, t1, 4, t0)
        I("v_min_u32", t0, 36, lane)
        I("v_lshlrev_b32", V(121), 7, t0)
        I("s_mov_b32", self.sX0[2], 1835008)
        I("s_mov_b32", self.sX0[3], "0x20000")
        I("s_mov_b32", self.sWA[2], 1204224)
        I("s_mov_b32", self.sWA[3], "0x20000")
        I("s_mul_i32", T[1], S(2), 37 * 128)
        I("s_min_u32", T[1], T[1], 1204224 - 37 * 128)
        I("s_sub_u32", T[2], self.sX0o, 3 * 16 * 1792)
        a.wait(lg=0)
        if self.opt.get("fine") == 5: a.raw("    v_writelane_b32 v240, s100, 63")
        self.fine(5, 0)
        I("s_load_dword", self.sNonce, S(20, 2), WS_E)
        for r, p in ((self.sX0, 4), (self.sWA, 6)):
            I("s_mov_b32", r[0], S(p))
            I("s_and_b32", r[1], S(p + 1), "0xffff")
        no3, nox = self.lab("not3"), self.lab("nox0")
        I("s_cmp_lg_u32", self.sW, 3)
        I("s_cbranch_scc1", no3)
        I("s_cmp_eq_u32", self.sC, 7)
        I("s_cbranch_scc1", nox)
        for t in range(4):
            I("s_mov_b32", M0, L_SP + 2048 * t)
            I("s_add_u32", T[5], T[2], t * 16 * 1792)
            I("s_add_u32", T[6], T[2], t * 16 * 1792 + 8 * 1792 - 1024)
            I("buffer_load_dwordx4", self.vX0d, self.sX0, T[5], mods="offen lds")
            I("buffer_load_dwordx4", self.vX0d, self.sX0, T[6], mods="offen offset:1024 lds")
        a.label(nox)
        I("buffer_load_dword", self.vDummy, V(121), self.sWA, T[1], mods="offen", nodest=True)
        a.label(no3)
        I("v_and_b32", j, 15, lane)
        I("v_lshrrev_b32", g, 4, lane)
        I("v_lshlrev_b32", self.vL16, 4, lane)
        I("v_lshrrev_b32", t0, 2, lane)
        I("v_mul_u32_u24", t1, 2688, t0)
        I("v_lshrrev_b32", t0, 3, lane)
        I("v_and_b32", t0, 2, t0)
        I("v_and_b32", t2, 3, lane)
        I("v_xor_b32", t0, t0, t2)
        I("v_lshl_add_u32", self.vQWd, t0, 4, t1)
        I("s_mul_i32", self.sQWo, self.sH, 56)
        I("s_mul_i32", T[1], self.sW, 896)
        I("s_add_u32", self.sQWo, self.sQWo, T[1])
        I("s_mul_i32", T[4], self.sW, MAT)
        for r, p, n in ((self.sWS, 20, WS_SIZE), (self.sWB, 12, 1204224), (self.sWP, 14, 25088), (self.sWOA, 8, 401408),
                        (self.sWOB, 16, 401408), (self.sOUT, 18, 1835008)):
            self.srd(r, S(p, 2), n)
        self.bg()
        I("s_getreg_b32", self.sXcc, "hwreg(HW_REG_XCC_ID)")
        I("s_and_b32", self.sXcc, self.sXcc, 15)
        I("s_lshl_b32", T[1], self.sGrp, 3)
        I("s_lshl_b32", T[2], self.sW, 1)
        I("s_add_u32", T[1], T[1], T[2])
        I("s_mul_i32", self.sXq, T[1], 14336)
        I("s_add_u32", self.sXq, self.sXq, WS_X)
        I("s_lshl_b32", self.sXSq, T[1], 10)
        I("s_add_u32", self.sXSq, self.sXSq, WS_XS)
        I("s_lshl_b32", self.sOq, T[1], 14)
        I("s_lshl_b32", T[2], self.sH, 10)
        I("s_add_u32", self.sOq, self.sOq, T[2])
        I("s_add_u32", self.sOq, self.sOq, WS_O)
        I("s_lshl_b32", T[3], T[1], 7)
        I("s_add_u32", T[3], T[3], WS_FX)
        I("s_mul_i32", self.sXp, T[0], 14336)
        I("s_lshl_b32", T[2], self.sC, 11)
        I("s_add_u32", self.sXp, self.sXp, T[2])
        I("s_add_u32", self.sXp, self.sXp, WS_X)
        I("s_lshl_b32", self.sXSp, T[0], 10)
        I("s_lshl_b32", T[2], self.sC, 7)
        I("s_add_u32", self.sXSp, self.sXSp, T[2])
        I("s_add_u32", self.sXSp, self.sXSp, WS_XS)
        I("s_lshl_b32", self.sOp, T[0], 14)
        I("s_add_u32", self.sOp, self.sOp, WS_O)
        I("s_lshl_b32", self.sFXp, T[0], 7)
        I("s_lshl_b32", T[2], self.sC, 2)
        I("s_add_u32", self.sFXp, self.sFXp, T[2])
        I("s_add_u32", self.sFXp, self.sFXp, WS_FX)
        I("s_lshl_b32", T[1], self.sGrp, 2)
        I("s_add_u32", T[2], T[1], self.sW)
        I("s_lshl_b32", self.sFOq, T[2], 7)
        I("s_lshl_b32", T[2], self.sH, 2)
        I("s_add_u32", self.sFOq, self.sFOq, T[2])
        I("s_add_u32", self.sFOq, self.sFOq, WS_FO)
        I("s_lshr_b32", T[2], T[0], 1)
        I("s_lshl_b32", self.sFOp, T[2], 7)
        I("s_add_u32", self.sFOp, self.sFOp, WS_FO)
        I("s_lshl_b32", self.sHX, self.sGrp, 14)
        I("s_add_u32", self.sHX, self.sHX, WS_HX)
        I("s_lshl_b32", self.sFHp, self.sGrp, 7)
        I("s_add_u32", self.sFHp, self.sFHp, WS_FH)
        I("s_and_b32", T[1], self.sGrp, 7)
        I("s_cmp_eq_u32", T[1], 0)
        I("s_cselect_b32", self.sFirst, 1, 0)
        I("s_cmp_lg_u32", T[1], 7)
        I("s_cselect_b32", T[1], 1, 0)
        I("s_and_b32", T[2], T[0], 7)
        I("s_cmp_eq_u32", T[2], 7)
        I("s_cselect_b32", self.sHaloProd, T[1], 0)
        I("s_lshl_b32", T[1], self.sH, 2)
        I("s_add_u32", T[1], T[1], self.sW)
        I("s_lshl_b32", self.sKVld, T[1], 14)
        I("s_add_u32", self.sKVld, self.sKVld, WS_KV)
        I("s_lshl_b32", T[1], self.sGrp, 10)
        I("s_add_u32", self.sKVst, self.sKVld, T[1])
        I("s_mov_b32", self.sMode, 1)
        I("s_mov_b32", self.sIt, 0)
        I("s_mov_b32", self.sPhase, 0)
        I("s_mov_b32", self.sL, 1)
        I("s_mov_b32", self.sPend, 0)
        I("s_mov_b32", self.sBudget, 400000)
        self.bg()
        I("v_min_u32", t0, 12, lane)
        I("v_lshlrev_b32", V(122), 7, t0)
        I("v_lshlrev_b32", self.vStatSt, 3, j)
        I("v_and_b32", t0, 7, j)
        I("v_lshlrev_b32", t0, 4, t0)
        I("v_lshl_add_u32", self.vHp, g, 7, t0)
        I("v_lshlrev_b32", t0, 7, j)
        I("v_lshl_add_u32", t0, g, 3, t0)
        I("v_add_u32", V(123), L_SP, t0)
        I("s_mul_i32", self.sQWl, self.sW, 7168)
        I("s_mul_i32", self.sFW, self.sH, 86016)
        I("s_add_u32", self.sFW, self.sFW, self.sQWl)
        I("s_add_u32", self.sFW, self.sFW, WS_FW)
        I("s_lshl_b32", self.sPWl, self.sW, 12)
        I("s_add_u32", self.sPWl, self.sPWl, L_PW)
        I("s_mul_i32", self.sPWo, self.sW, 28 * 896)
        I("s_min_u32", T[1], self.sC, 6)
        I("s_lshl_b32", T[1], T[1], 7)
        I("s_add_u32", self.sPWo, self.sPWo, T[1])
        if self.opt.get("stamps"):
            I("s_mov_b32", T[7], 1)
            I("v_mov_b32", self.vStamp, 0)
            I("v_writelane_b32", self.vStamp, self.sStamp[0], 0)
            if self.opt.get("fine") != 5: I("v_writelane_b32", self.vStamp, S(100), 62)
        self.bg()
        a.forget_counters()
        a.smem = {("s", self.sNonce.n)}
        self.fine(5, 1)

        r, cc = V(113), V(124)
        I("s_lshl_b32", T[1], self.sW, 11)
        I("v_add_u32", V(114), T[1], V(123))
        I("v_lshrrev_b32", r, 2, j)
        I("v_and_b32", cc, 3, j)
        I("v_lshl_add_u32", t0, g, 2, r)
        I("v_lshlrev_b32", t1, 3, cc)
        I("v_lshl_add_u32", t2, t0, 6, t1)
        I("v_and_b32", V(125), 1, g)
        I("v_lshl_add_u32", self.vQ0, V(125), 5, t2)
        I("v_xor_b32", self.vQ1, 32, self.vQ0)
        I("v_add_u32", self.vQv0, 2 * MAT, self.vQ0)
        I("v_add_u32", self.vQv1, 2 * MAT, self.vQ1)
        I("s_and_b32", T[1], self.sW, 1)
        I("s_lshl_b32", T[2], T[1], 5)
        I("v_xor_b32", self.vQh, T[2], self.vQ0)
        I("s_lshr_b32", T[2], self.sW, 1)
        I("s_add_u32", T[2], T[2], 1)
        I("s_mul_i32", T[2], T[2], MAT)
        I("v_add_u32", self.vQh, T[2], self.vQh)
        I("v_lshl_add_u32", t2, t0, 7, t1)
        I("v_add_u32", t2, L_PW, t2)
        I("v_lshrrev_b32", V(125), 1, t0)
        I("v_and_b32", V(125), 3, V(125))
        for n in range(4):
            I("v_xor_b32", V(126), n, V(125))
            I("v_lshl_add_u32", self.vP[n], V(126), 5, t2)
        self.bg()
        I("v_lshrrev_b32", V(125), 1, t0)
        I("v_xor_b32", V(125), V(125), cc)
        I("v_and_b32", V(125), 3, V(125))
        I("v_lshlrev_b32", V(125), 4, V(125))
        I("v_lshl_add_u32", V(126), t0, 6, V(125))
        I("s_lshl_b32", T[2], self.sW, 11)
        I("s_add_u32", T[5], T[2], L_EXV)
        I("v_add_u32", self.vEXRa, T[5], V(126))
        I("s_lshr_b32", T[5], self.sW, 1)
        I("s_lshl_b32", T[5], T[5], 13)
        I("s_add_u32", T[5], T[5], L_PH)
        I("v_add_u32", self.vKA, T[5], V(126))
        I("s_lshl_b32", T[5], T[1], 3)
        I("s_add_u32", T[5], T[5], L_PH + 16384)
        I("v_add_u32", self.vKB, T[5], V(126))
        I("v_lshrrev_b32", V(125), 1, j)
        I("v_xor_b32", V(125), V(125), g)
        I("v_and_b32", V(125), 3, V(125))
        I("v_lshlrev_b32", V(125), 4, V(125))
        I("v_lshl_add_u32", V(126), j, 6, V(125))
        I("v_add_u32", V(126), L_EXV, V(126))
        I("v_add_u32", self.vEXW, T[2], V(126))
        I("s_lshl_b32", T[5], self.sW, 10)
        I("v_add_u32", V(125), L_EXK, self.vL16)
        I("v_add_u32", self.vKrd, T[5], V(125))
        I("v_add_u32", self.vQS, self.sQWl, self.vL16)
        I("s_cmp_lt_u32", self.sW, 2)
        I("s_cselect_b64", VCC, -1, 0)
        I("v_cndmask_b32", V(126), V(126), V(125), VCC)
        I("s_lshl_b32", T[5], T[1], 3)
        I("v_add_u32", self.vHW, T[5], V(126))
        self.bg()
        I("v_lshrrev_b32", t0, 3, lane)
        I("v_mul_u32_u24", t1, 896, t0)
        I("v_and_b32", t0, 6, t0)
        I("v_and_b32", t2, 7, lane)
        I("v_xor_b32", t0, t0, t2)
        I("v_lshl_add_u32", self.vPWd[0], t0, 4, t1)
        for b in range(1, 4):
            I("v_add_u32", self.vPWd[b], b * (8 * 896 - 1024), self.vPWd[0])
        I("v_mov_b32", t1, OOB)
        I("v_cmp_gt_u32", VCC, 32, lane)
        I("v_cndmask_b32", self.vPWd[3], t1, self.vPWd[3], VCC)
        I("v_cmp_gt_u32", VCC, 48, lane)
        I("v_cndmask_b32", self.vM3, 0, -1, VCC)
        I("v_cndmask_b32", self.vE0[0], 1.0, 0, VCC)
        I("v_mov_b32", self.vE0[1], 0)
        I("s_cmp_eq_u32", T[1], 1)
        I("s_cselect_b64", VCC, -1, 0)
        I("v_cndmask_b32", self.vMH, -1, self.vM3, VCC)
        I("v_lshl_add_u32", self.vStat, g, 7, self.vStatSt)
        I("s_cmp_eq_u32", self.sFirst, 1)
        I("s_cselect_b64", VCC, -1, 0)
        I("v_cndmask_b32", self.vHalo, self.vL16, t1, VCC)
        I("v_cndmask_b32", self.vHaloS, self.vStat, t1, VCC)
        I("s_or_b32", T[2], self.sGrp, 1)
        I("s_add_u32", T[2], T[2], 1)
        I("v_add_u32", t0, T[2], j)
        I("v_and_b32", t0, 15, t0)
        I("v_lshlrev_b32", self.vProbe, 10, t0)
        I("v_lshrrev_b32", t0, 3, lane)
        I("v_add_u32", t0, T[2], t0)
        I("v_and_b32", t0, 15, t0)
        I("v_lshlrev_b32", t0, 3, t0)
        I("v_and_b32", t2, 7, lane)
        I("v_add_lshl_u32", self.vTA, t0, t2, 7)
        self.bg()
        I("v_lshlrev_b32", self.vZ, 8, g)
        I("v_add_u32", self.vZ, L_KVX + 1024 + 12 * 16, self.vZ)
        I("v_lshlrev_b32", self.vPollP, 2, j)
        I("v_and_b32", t0, 7, lane)
        I("v_min_u32", t0, 6, t0)
        I("v_lshlrev_b32", V(127), 2, t0)
        I("v_min_u32", t0, 13, j)
        I("v_lshlrev_b32", t0, 2, t0)
        I("s_lshl_b32", T[5], self.sH, 7)
        I("s_add_u32", T[5], T[5], WS_FWF)
        I("v_add_u32", t0, T[5], t0)
        I("v_add_u32", t2, self.sFHp, V(127))
        I("s_cmp_eq_u32", self.sFirst, 1)
        I("s_cselect_b32", T[5], 0, 16)
        I("v_cmp_gt_u32", VCC, T[5], lane)
        I("v_cndmask_b32", self.vPollH, t0, t2, VCC)
        I("v_cndmask_b32", self.vExpHM, 0, 16, VCC)
        I("v_cndmask_b32", self.vExpHC, 16, 0, VCC)
        I("v_lshrrev_b32", t2, 3, j)
        I("v_lshl_add_u32", t2, t2, 7, V(127))
        I("v_add_u32", t2, T[3], t2)
        I("s_lshl_b32", T[5], self.sGrp, 7)
        I("s_add_u32", T[5], T[5], WS_HELLO)
        I("v_add_u32", t0, T[5], self.vPollP)
        I("v_and_b32", V(125), 1, g)
        I("v_cmp_eq_u32", VCC, 0, V(125))
        I("v_cndmask_b32", self.vPollQ, t0, t2, VCC)
        I("v_cndmask_b32", self.vPollM, -16, -1, VCC)
        I("v_cndmask_b32", self.vExpM, 0, 16, VCC)
        I("v_mov_b32", t0, self.sXcc)
        I("v_cndmask_b32", self.vExpC, t0, 0, VCC)
        self.bg()
        I("v_mov_b32", V(125), f32(-1e30))
        for rr in range(4):
            I("v_lshl_add_u32", t0, g, 2, rr)
            I("v_sub_u32", t2, j, t0)
            I("v_cmp_gt_u32", VCC, 8, t2)
            I("v_cndmask_b32", self.bCur[rr], V(125), 0, VCC)
            I("v_add_u32", t2, 16, t2)
            I("v_cmp_gt_u32", VCC, 8, t2)
            I("v_cndmask_b32", self.bPrev[rr], V(125), 0, VCC)
        I("s_cmp_eq_u32", self.sW, 0)
        I("s_cselect_b32", T[2], self.sFirst, 0)
        I("s_cmp_eq_u32", T[2], 1)
        I("s_cselect_b64", VCC, -1, 0)
        for rr in range(4):
            I("v_cndmask_b32", self.bPrev0[rr], self.bPrev[rr], V(125), VCC)
        self.bg()
        I("v_mov_b32", t0, "0x3f803f80")
        for k in range(4): I("v_accvgpr_write_b32", self.aOnes[k], t0)
        for k in (0, 1, 4, 5): I("v_accvgpr_write_b32", self.aSel[k], 0)
        I("v_and_b32", V(125), 1, j)
        I("v_lshlrev_b32", V(125), 4, V(125))
        I("v_mov_b32", t0, "0x3f80")
        I("v_lshlrev_b32", t0, V(125), t0)
        I("v_cmp_eq_u32", VCC, r, g)
        I("v_cndmask_b32", t0, 0, t0, VCC)
        I("v_cmp_gt_u32", VCC, 2, cc)
        I("v_cndmask_b32", t2, 0, t0, VCC)
        I("v_cndmask_b32", t0, t0, 0, VCC)
        I("v_accvgpr_write_b32", self.aSel[2], t2)
        I("v_accvgpr_write_b32", self.aSel[3], t0)
        I("v_mov_b32", V(127), V(0))
        I("v_mov_b32", V(0), V(114))
        a.wait(lg=0)
        I("s_add_u32", T[1], self.sNonce, "0x10100")
        I("s_and_b32", self.sBase, T[1], "0xffffff00")
        I("s_and_b32", self.sTag, T[1], "0x3fff0000")
        I("v_or_b32", self.vExpC, self.sBase, self.vExpC)
        I("v_or_b32", self.vExpHC, self.sBase, self.vExpHC)
        self.stamp()
        I("s_cmp_eq_u32", self.sW, 3)
        I("s_cbranch_scc1", "L_s0")
        I("s_barrier")
        self.stamp()

        N1 = self.bg_next
        ad0, ad1 = V(188), V(189)
        d0, d1 = V(192, 4), V(196, 4)
        I("v_add_u32", ad0, T[4], self.vQ0)
        I("v_add_u32", ad1, T[4], self.vQ1)
        a.vm = [(f"raw{ks}", set()) for ks in range(N1) for _ in range(2)]
        AH = self.opt.get("ah", 6)
        nxt = N1
        for ks in range(14):
            while nxt < 14 and nxt <= ks + AH:
                self.raw_block(nxt)
                nxt += 1
            a.wait_vm_tag(f"raw{ks}")
            w0, w1 = self.wf(2 * (ks & 1)), self.wf(2 * (ks & 1) + 1)
            for f in self.tr_pair(w0, ad0, ks * 2048) + self.tr_pair(w1, ad1, ks * 2048): f()
            if ks:
                p0, p1 = self.wf(2 * ((ks - 1) & 1)), self.wf(2 * ((ks - 1) & 1) + 1)
                self.mfma(d0, p0, self.aOnes, 0 if ks == 1 else d0)
                self.mfma(d1, p1, self.aOnes, 0 if ks == 1 else d1)
        self.mfma(d0, self.wf(2), self.aOnes, d0)
        self.mfma(d1, self.wf(3), self.aOnes, d1)
        I("v_lshrrev_b32", ad0, 8, self.vL16)
        I("v_lshlrev_b32", ad0, 4, ad0)
        I("s_lshl_b32", T[0], self.sW, 7)
        I("s_add_u32", T[0], T[0], L_CS)
        I("v_add_u32", ad0, T[0], ad0)
        I("s_mov_b32", self.sT2[0], "0x00010001")
        I("s_mov_b32", self.sT2[1], "0x00010001")
        a.flush()
        I("s_mov_b64", EXEC, self.sT2)
        I("ds_write_b128", ad0, d0)
        I("ds_write_b128", ad0, d1, mods="offset:64")
        I("s_mov_b64", EXEC, -1)
        a.wait(lg=0)
        I("s_branch", "L_qa")
        self.stage0()

    def stage0(self):
        a, I = self.a, self.I
        T = self.sT
        lane = V(127)
        idle, nohalo, pub, nofw = (self.lab(x) for x in ("idle", "nohalo", "pub", "nofw"))
        a.label("L_s0")
        a.forget_counters()
        a.pos += 100
        I("s_or_b32", T[1], self.sBase, 16)
        I("v_mov_b32", self.vT, T[1])
        I("s_or_b32", T[1], self.sBase, self.sXcc)
        I("v_mov_b32", V(112), T[1])
        I("s_lshl_b32", T[1], self.sGrp, 7)
        I("s_lshl_b32", T[2], self.sH, 2)
        I("s_add_u32", T[1], T[1], T[2])
        I("s_add_u32", T[1], T[1], WS_HELLO)
        I("s_mov_b64", EXEC, 1)
        I("buffer_store_dword", V(112), OFF, self.sWS, T[1], mods="sc1")
        I("s_mov_b64", EXEC, -1)
        I("s_cmp_eq_u32", self.sC, 7)
        I("s_cbranch_scc1", idle)
        a.wait(vm=2)
        self.fine(5, 2)
        xo = [V(128 + 8 * t, 8) for t in range(4)]
        pr = [V(160 + 2 * t, 2) for t in range(4)]
        for t in range(4):
            for n in range(4): I("ds_read_b64", xo[t][2 * n:2 * n + 2], V(123), mods=f"offset:{2048 * t + 32 * n}")
        one = V(125)
        I("v_mov_b32", one, "0x3f803f80")
        I("s_sub_u32", T[5], self.sXp, 3 * 14336)
        I("s_sub_u32", T[6], self.sXSp, 3 * 1024)
        for t in range(4):
            I("buffer_store_dwordx4", xo[t][0:4], self.vL16, self.sWS, T[5], mods="offen sc1")
            I("buffer_store_dwordx4", xo[t][4:8], self.vL16, self.sWS, T[5], mods="offen offset:1024 sc1")
            if t < 3: I("s_add_u32", T[5], T[5], 14336)
        for k in range(8):
            for t in range(4):
                I("v_dot2_f32_bf16", pr[t][0], xo[t][k], one, 0 if k == 0 else pr[t][0])
                I("v_dot2_f32_bf16", pr[t][1], xo[t][k], xo[t][k], 0 if k == 0 else pr[t][1])
        self.allreduce_pairs([("v_add_f32", pr[t][0], pr[t][1]) for t in range(4)])
        I("s_mov_b64", EXEC, "0xffff")
        for t in range(4):
            I("buffer_store_dwordx2", pr[t], self.vStatSt, self.sWS, T[6], mods=f"offen offset:{1024 * t} sc1")
        I("s_mov_b64", EXEC, -1)
        I("s_cmp_eq_u32", self.sHaloProd, 0)
        I("s_cbranch_scc1", nohalo)
        I("s_lshl_b32", T[1], self.sC, 10)
        I("s_add_u32", T[1], T[1], self.sHX)
        I("s_add_u32", T[1], T[1], 16384)
        I("s_mov_b32", self.sT2[0], "0xff00ff00")
        I("s_mov_b32", self.sT2[1], "0xff00ff00")
        I("s_mov_b64", EXEC, self.sT2)
        I("buffer_store_dwordx4", xo[3][0:4], self.vHp, self.sWS, T[1], mods="offen sc1")
        I("buffer_store_dwordx4", xo[3][4:8], self.vHp, self.sWS, T[1], mods="offen offset:512 sc1")
        I("s_lshl_b32", T[1], self.sC, 7)
        I("s_add_u32", T[1], T[1], self.sHX)
        I("s_add_u32", T[1], T[1], 16384 + 14336)
        I("s_mov_b64", EXEC, "0xffff")
        I("buffer_store_dwordx2", pr[3], self.vStatSt, self.sWS, T[1], mods="offen sc1")
        I("s_mov_b64", EXEC, -1)
        a.label(nohalo)
        a.flush()
        I("v_and_b32", V(126), 3, lane)
        I("v_lshlrev_b32", V(126), 7, V(126))
        I("v_lshrrev_b32", V(113), 2, lane)
        I("v_lshl_add_u32", V(126), V(113), 15, V(126))
        I("s_sub_u32", T[2], self.sFXp, 3 * 128)
        I("v_add_u32", V(126), T[2], V(126))
        I("s_lshl_b32", T[1], self.sC, 2)
        I("s_add_u32", T[1], T[1], self.sFHp)
        I("s_add_u32", T[1], T[1], 128)
        I("v_writelane_b32", V(126), T[1], 8)
        I("s_lshl_b32", T[1], self.sHaloProd, 8)
        I("s_or_b32", self.sT2[0], T[1], "0xff")
        I("s_mov_b32", self.sT2[1], 0)
        if not self.opt.get("late_release"): I("s_barrier")
        a.wait(vm=0)
        I("s_mov_b64", EXEC, self.sT2)
        I("buffer_store_dword", self.vT, V(126), self.sWS, 0, mods="offen sc1")
        I("s_mov_b64", EXEC, -1)
        if self.opt.get("late_release"): I("s_barrier")
        self.fine(5, 3)
        I("s_branch", pub)
        a.label(idle)
        I("s_barrier")
        a.label(pub)
        self.stamp()
        a.forget_counters()
        I("s_cmp_ge_u32", self.sGrp, 14)
        I("s_cbranch_scc1", nofw)
        I("s_mul_i32", T[2], self.sH, 56)
        I("s_mul_i32", T[1], self.sGrp, 32 * 2688)
        I("s_add_u32", T[2], T[2], T[1])
        for mat in range(3):
            for half in range(2):
                I("s_add_u32", T[1], T[2], mat * 896 + half * 16 * 2688)
                I("buffer_load_dwordx4", V(168 + 8 * mat + 4 * half, 4), self.vQWd, self.sWB, T[1], mods="offen")
        I("s_lshl_b32", T[1], self.sGrp, 11)
        I("s_add_u32", T[1], T[1], self.sFW)
        I("s_sub_u32", T[1], T[1], 3 * 7168)
        for mat in range(3):
            I("s_add_u32", T[2], T[1], mat * MAT)
            for half in range(2):
                I("buffer_store_dwordx4", V(168 + 8 * mat + 4 * half, 4), self.vL16, self.sWS, T[2], mods=f"offen offset:{half * 1024} sc1")
        a.label(nofw)
        I("s_mul_i32", T[1], self.sH, 1568)
        I("s_mov_b32", M0, L_WPHI)
        I("s_mul_i32", T[2], S(2), 13 * 128)
        I("s_min_u32", T[2], T[2], 401408 - 13 * 128)
        I("v_lshrrev_b32", V(112), 3, lane)
        I("v_and_b32", V(113), 7, lane)
        I("v_lshlrev_b32", V(113), 7, V(113))
        I("v_lshl_add_u32", V(126), V(112), 14, V(113))
        I("s_sub_u32", T[5], self.sOq, 6 * 16384)
        I("buffer_load_dwordx4", self.vL16, self.sWP, T[1], mods="offen lds")
        I("buffer_load_dwordx4", self.vL16, self.sWP, T[1], mods="offen offset:1024 lds")
        I("buffer_load_dword", self.vDummy, V(122), self.sWOA, T[2], mods="offen", nodest=True)
        I("buffer_load_dword", self.vDummy, V(122), self.sWOB, T[2], mods="offen", nodest=True)
        I("buffer_load_dword", self.vDummy, V(126), self.sWS, T[5], mods="offen", nodest=True)
        I("s_lshl_b32", T[1], self.sH, 7)
        I("s_lshl_b32", T[2], self.sGrp, 2)
        I("s_add_u32", T[1], T[1], T[2])
        I("s_add_u32", T[1], T[1], WS_FWF)
        I("s_cmp_ge_u32", self.sGrp, 14)
        I("s_cbranch_scc1", "L_qa")
        a.wait(vm=5)
        I("s_mov_b64", EXEC, 1)
        I("buffer_store_dword", self.vT, OFF, self.sWS, T[1], mods="sc1")
        I("s_mov_b64", EXEC, -1)
        self.fine(5, 4)
        I("s_branch", "L_qa")

    def p_stage(self):
        a, I = self.a, self.I
        T = self.sT
        NPRE = 12
        a.label("L_p")
        a.forget_counters()
        a.wait(lg=0)
        I("s_barrier")
        I("s_cmp_eq_u32", self.sC, 7)
        I("s_cbranch_scc1", "L_pidle")
        slots = [A(64 + 4 * k, 4) for k in range(12)] + [A(168 + 4 * k, 4) for k in range(8)] + [V(128 + 4 * k, 4) for k in range(28)]
        def pwf(hh, n): return slots[(hh % NPRE) * 4 + n]
        def pw_read(hh, n):
            return [lambda: I("ds_read_b64_tr_b16", pwf(hh, n)[0:2], self.vP[n], mods=f"offset:{hh * 4096}"),
                    lambda: I("ds_read_b64_tr_b16", pwf(hh, n)[2:4], self.vP[n], mods=f"offset:{hh * 4096 + 2048}")]
        self.flag_value(T[0])
        I("buffer_load_dword", V(112), self.vPollP, self.sWS, self.sFOp, mods="offen sc1")
        early = self.opt.get("pearly", 7)
        for hh in range(early):
            for n in range(4):
                for f in pw_read(hh, n): f()
        loop, ok = self.lab("ppoll"), self.lab("ppass")
        a.label(loop)
        a.wait(vm=0)
        I("v_cmp_ne_u32", VCC, T[0], V(112))
        I("s_cbranch_vccz", ok)
        I("buffer_load_dword", V(112), self.vPollP, self.sWS, self.sFOp, mods="offen sc1")
        self.budget_branch(loop)
        a.label(ok)
        a.vm = []
        self.stamp()
        def of(hh): return A(4 * hh, 4)
        def oload(hh):
            out = []
            if hh % 4 == 0 and hh:
                out.append(("s", lambda: I("s_add_u32", T[1], self.sOp, hh * 1024)))
            so = self.sOp if hh < 4 else T[1]
            out.append(("v", lambda: I("buffer_load_dwordx4", of(hh), self.vL16, self.sWS, so, mods=f"offen offset:{(hh % 4) * 1024} sc1")))
            return out
        NO = self.opt.get("no", 5)
        for hh in range(NO):
            for _, f in oload(hh): f()
        for hh in range(early, NPRE):
            for n in range(4):
                for f in pw_read(hh, n): f()
        mf, so, sw = [], [], []
        for hh in range(16):
            for n in range(4):
                mf.append((self.vR[4 * n:4 * n + 4], pwf(hh, n), of(hh), self.vR[4 * n:4 * n + 4]))
                if hh + NPRE < 16:
                    sw += [(4 * hh + n, "v", f) for f in pw_read(hh + NPRE, n)]
            if hh + NO < 16: so += [(4 * hh, k, f) for k, f in oload(hh + NO)]
        rest = self.sched(mf, [so, sw])
        assert not rest
        a.flush()
        self.stamp()
        I("s_cmp_eq_u32", self.sL, 4)
        I("s_cbranch_scc1", "L_final")

        a.label("L_pepi")
        xo = V(112, 8)
        for k in range(8):
            I("v_cvt_pk_bf16_f32", xo[k], self.vR[2 * k], self.vR[2 * k + 1])
            if k == 3: I("buffer_store_dwordx4", xo[0:4], self.vL16, self.sWS, self.sXp, mods="offen")
        I("buffer_store_dwordx4", xo[4:8], self.vL16, self.sWS, self.sXp, mods="offen offset:1024")
        sm, sq = V(120, 2), V(122, 2)
        self.pk("v_pk_add_f32", sm, self.vR[0:2], self.vR[2:4])
        self.pk("v_pk_mul_f32", sq, self.vR[0:2], self.vR[0:2])
        self.pk("v_pk_fma_f32", sq, self.vR[2:4], self.vR[2:4], sq)
        for k in range(2, 8):
            self.pk("v_pk_add_f32", sm, sm, self.vR[2 * k:2 * k + 2])
            self.pk("v_pk_fma_f32", sq, self.vR[2 * k:2 * k + 2], self.vR[2 * k:2 * k + 2], sq)
        pr = V(124, 2)
        I("v_add_f32", pr[0], sm[0], sm[1])
        I("v_add_f32", pr[1], sq[0], sq[1])
        x, y = pr[0], pr[1]
        I("s_add_u32", self.sL, self.sL, 1)
        I("s_lshl_b32", T[0], self.sL, 4)
        I("v_permlane32_swap_b32", x, y)
        I("s_or_b32", T[0], T[0], self.sBase)
        I("v_add_f32", x, x, y)
        I("v_mov_b32", y, x)
        I("v_mov_b32", self.vT, T[0])
        I("s_cmp_eq_u32", self.sPhase, 0)
        I("v_permlane16_swap_b32", x, y)
        I("s_cselect_b32", self.sPend, self.sHaloProd, 0)
        I("v_add_f32", x, x, y)
        I("v_mov_b32", y, x)
        I("s_lshl_b32", T[1], self.sC, 10)
        I("s_add_u32", T[1], T[1], self.sHX)
        I("v_permlane32_swap_b32", x, y)
        I("s_mov_b64", EXEC, "0xffff")
        I("buffer_store_dwordx2", pr, self.vStatSt, self.sWS, self.sXSp, mods="offen")
        I("s_mov_b64", EXEC, -1)
        nh, pub = self.lab("nohalo"), self.lab("pub")
        I("s_cmp_eq_u32", self.sPend, 0)
        I("s_cbranch_scc0", nh)
        a.wait(vm=0)
        a.label(pub)
        self.publish(self.sFXp)

        def tail():
            b = self.a
            b.label(nh)
            b.I("s_add_u32", T[1], T[1], 16384)
            b.I("s_mov_b32", self.sT2[0], "0xff00ff00")
            b.I("s_mov_b32", self.sT2[1], "0xff00ff00")
            b.I("s_mov_b64", EXEC, self.sT2)
            b.I("buffer_store_dwordx4", xo[0:4], self.vHp, self.sWS, T[1], mods="offen sc1")
            b.I("buffer_store_dwordx4", xo[4:8], self.vHp, self.sWS, T[1], mods="offen offset:512 sc1")
            b.I("s_lshl_b32", T[1], self.sC, 7)
            b.I("s_add_u32", T[1], T[1], self.sHX)
            b.I("s_add_u32", T[1], T[1], 16384 + 14336)
            b.I("s_mov_b64", EXEC, "0xffff")
            b.I("buffer_store_dwordx2", pr, self.vStatSt, self.sWS, T[1], mods="offen sc1")
            b.I("s_mov_b64", EXEC, -1)
            b.wait(vm=3)
            b.I("s_branch", pub)
        self.tail.append(tail)
        a.label("L_pnext")
        a.flush()
        a.forget_counters()
        self.stamp()
        if self.opt.get("stop"):
            I("s_cmp_eq_u32", self.sL, self.opt["stop"])
            I("s_cbranch_scc1", "L_fin2")
        I("s_cmp_eq_u32", self.sPhase, 1)
        I("s_cbranch_scc1", "L_qb")

        def idle():
            b = self.a
            b.label("L_pidle")
            b.I("s_cmp_eq_u32", self.sL, 4)
            b.I("s_cbranch_scc1", "L_fin2")
            b.I("s_add_u32", self.sL, self.sL, 1)
            b.I("s_branch", "L_pnext")
        self.tail.append(idle)

    def q_poll(self, shadow=None):
        a, I = self.a, self.I
        T = self.sT
        ex, t, pv = V(112), V(113), V(114)
        loop, ok, pend, nopend, slow, again = (self.lab(x) for x in ("qpoll", "qpass", "pend", "nopend", "qslow", "qagain"))
        I("v_mad_u32_u24", ex, self.vExpM, self.sL, self.vExpC)
        if shadow:
            chk = self.lab("qchk")
            I("buffer_load_dword", pv, self.vPollQ, self.sWS, 0, mods="offen sc1")
            shadow()
            I("s_branch", chk)
        a.label(loop)
        I("buffer_load_dword", pv, self.vPollQ, self.sWS, 0, mods="offen sc1")
        if shadow: a.label(chk)
        I("s_cmp_eq_u32", self.sPend, 0)
        a.wait(vm=0)
        I("s_cbranch_scc0", pend)
        a.label(nopend)
        I("v_xor_b32", t, pv, ex)
        I("v_cmp_ne_u32", VCC, 0, t)
        I("s_cbranch_vccnz", slow)
        a.label(ok)
        a.vm = []

        def tail():
            b = self.a
            b.label(pend)
            b.I("s_lshl_b32", T[1], self.sC, 2)
            b.I("s_add_u32", T[1], T[1], self.sFHp)
            self.flag_value(T[0])
            b.I("v_mov_b32", self.vT, T[0])
            b.I("s_mov_b64", EXEC, 1)
            b.I("buffer_store_dword", self.vT, OFF, self.sWS, T[1], mods="offset:128 sc1")
            b.I("s_mov_b64", EXEC, -1)
            b.I("s_mov_b32", self.sPend, 0)
            b.I("s_branch", nopend)
            b.label(slow)
            b.I("s_cmp_eq_u32", self.sMode, 0)
            b.I("s_cbranch_scc1", again + "m")
            b.I("v_not_b32", V(115), self.vPollM)
            b.I("v_and_b32", V(116), t, self.vPollM)
            b.I("v_and_b32", V(115), t, V(115))
            b.I("v_cmp_ne_u32", self.sT2, 0, V(115))
            b.I("v_cmp_eq_u32", VCC, 0, V(116))
            b.nop(2)
            b.I("s_cmp_eq_u64", self.sT2, 0)
            b.I("s_cbranch_scc1", again)
            b.I("s_andn2_b32", T[0], "0xffff0000", VCC_LO)
            b.I("s_cbranch_scc1", again)
            b.I("s_mov_b32", self.sMode, 0)
            b.I("s_add_u32", self.sFXp, self.sFXp, WS_SLOW)
            b.I("s_add_u32", self.sFOq, self.sFOq, WS_SLOW)
            b.I("s_add_u32", self.sFOp, self.sFOp, WS_SLOW)
            b.I("v_lshlrev_b32", V(115), 11, self.vExpM)
            b.I("v_add_u32", self.vPollQ, V(115), self.vPollQ)
            b.I("s_branch", again)
            b.label(again + "m")
            b.I("v_and_b32", V(116), t, self.vPollM)
            b.I("v_cmp_ne_u32", VCC, 0, V(116))
            b.I("s_cbranch_vccz", ok)
            b.label(again)
            self.budget_branch(loop)
        self.tail.append(tail)

    def xload(self, ks):
        out = []
        if ks % 4 == 0:
            out.append(("s", lambda: self.I("s_add_u32", self.sT[1], self.sXq, ks * 1024)))
            out.append(("s", lambda: self.I("s_add_u32", self.sT[2], self.sXq, ks * 1024 + 14336)))
        for t in range(2):
            out.append(("v", lambda t=t: self.I("buffer_load_dwordx4", self.xf(t, ks), self.vL16, self.sWS, self.sT[1 + t],
                                               mods=f"offen offset:{(ks % 4) * 1024} sc1")))
        return out

    def stats_ops(self, T, layer):
        raw, st = self.straw(T), self.st(T)
        t = V(188 + 2 * T, 2)
        ops = []
        def add(*x, **k): ops.append(("w" if ("perm" in x[0] or "rsq" in x[0]) else "v", lambda: self.I(*x, **k)))
        add("v_and_b32", raw[2], raw[2], self.vM3)
        add("v_and_b32", raw[3], raw[3], self.vM3)
        add("v_add_f32", raw[0], raw[0], raw[2])
        add("v_add_f32", raw[1], raw[1], raw[3])
        for step in range(7):
            x, y = raw[0], raw[1]
            if step in (0, 6): add("v_permlane32_swap_b32", x, y)
            elif step in (1, 4): add("v_add_f32", x, x, y)
            elif step in (2, 5): add("v_mov_b32", y, x)
            else: add("v_permlane16_swap_b32", x, y)
        add("v_mul_f32", st[0], f32(-1.0 / 448), raw[0])
        add("v_mul_f32", t[0], f32(1.0 / 448), raw[1])
        add("v_fma_f32", t[0], Neg(st[0]), st[0], t[0])
        add("v_max_f32", t[0], 0, t[0])
        add("v_add_f32", t[0], f32(1e-5), t[0])
        add("v_rsq_f32", st[1], t[0])
        add("v_and_b32", st[2], st[1], self.vMH if T == 2 else self.vM3)
        if T < 2:
            add("v_mul_f32", st[3], f32(LOG2E * (28 ** -0.5 if layer == "A" else 1.0)), st[1])
        return ops

    def colsum_part(self, ad, steps, cs_off):
        a, I = self.a, self.I
        d = V(192, 4)
        def w(k): return self.wf(k % 4)
        for k in range(4):
            for f in self.tr_pair(w(k), ad, steps[k] * 2048): f()
        mf, sw = [], []
        for k in range(len(steps)):
            mf.append((d, w(k), self.aOnes, 0 if k == 0 else d))
            if k + 4 < len(steps): sw += [(k, "v", f) for f in self.tr_pair(w(k), ad, steps[k + 4] * 2048)]
        assert not self.sched(mf, [sw])
        I("v_lshrrev_b32", V(189), 8, self.vL16)
        I("v_lshlrev_b32", V(189), 4, V(189))
        I("s_add_u32", self.sT[0], self.sT[0], L_CS + cs_off)
        I("v_add_u32", V(189), self.sT[0], V(189))
        I("s_mov_b32", self.sT2[0], "0x00010001")
        I("s_mov_b32", self.sT2[1], "0x00010001")
        a.flush()
        I("s_mov_b64", EXEC, self.sT2)
        I("ds_write_b128", V(189), d)
        I("s_mov_b64", EXEC, -1)

    def colsum_b_kv(self):
        self.a.raw("    s_waitcnt vmcnt(8)")
        self.a.pos += 1
        self.I("s_barrier")
        self.I("s_lshl_b32", self.sT[0], self.sW, 6)
        self.colsum_part(self.vQh, list(range(14)), 128)
        self.wphi_gather()

    def colsum_b_q(self):
        I, T = self.I, self.sT
        I("v_lshrrev_b32", V(188), 8, self.vL16)
        I("v_lshlrev_b32", V(188), 4, V(188))
        I("v_add_u32", V(188), L_CS, V(188))
        for ft in range(2, 6):
            I("ds_read_b128", self.cB[4 * ft:4 * ft + 4], V(188), mods=f"offset:{64 * ft}")
        I("s_lshr_b32", T[0], self.sW, 1)
        I("s_lshl_b32", T[0], T[0], 5)
        I("v_xor_b32", V(188), T[0], self.vQ0)
        I("s_and_b32", T[0], self.sW, 1)
        I("s_mul_i32", T[0], T[0], 7 * 2048)
        I("v_add_u32", V(188), T[0], V(188))
        I("s_lshl_b32", T[0], self.sW, 6)
        self.colsum_part(V(188), list(range(7)), 512)

    def colsum_b_q2(self):
        a, I = self.a, self.I
        done = self.lab("cq2")
        a.wait_lg_all()
        I("s_cmp_lg_u32", self.sIt, 0)
        I("s_cbranch_scc1", done)
        I("v_lshrrev_b32", V(188), 8, self.vL16)
        I("v_lshlrev_b32", V(188), 4, V(188))
        I("v_add_u32", V(188), L_CS + 512, V(188))
        for k in range(4):
            I("ds_read_b128", self.cB[4 * (k >> 1):4 * (k >> 1) + 4] if k % 2 == 0 else V(204 + 4 * (k >> 1), 4), V(188), mods=f"offset:{64 * k}")
        for k in range(8): I("v_add_f32", self.cB[k], self.cB[k], V(204 + k))
        a.flush()
        a.label(done)

    def cs_read(self, dst, with_halo):
        I = self.I
        ad = V(188)
        I("v_lshrrev_b32", ad, 8, self.vL16)
        I("v_lshlrev_b32", ad, 4, ad)
        I("v_add_u32", ad, L_CS, ad)
        for ft in range(6):
            I("ds_read_b128", dst[4 * ft:4 * ft + 4], ad, mods=f"offset:{64 * ft}")
        if with_halo:
            I("s_lshl_b32", self.sT[0], self.sW, 6)
            I("v_add_u32", V(189), self.sT[0], ad)
            I("ds_read_b128", self.vCH, V(189), mods="offset:128")

    def wphi_gather(self):
        a, I = self.a, self.I
        j, g, f1, ad, t = V(214), V(215), V(216), V(217), V(218)
        I("v_lshrrev_b32", g, 8, self.vL16)
        I("v_lshrrev_b32", j, 2, self.vPollP)
        I("v_lshrrev_b32", t, 2, j)
        I("v_sub_u32", f1, j, t)
        I("v_add_u32", f1, 16, f1)
        I("v_mul_u32_u24", ad, 4 * 56, g)
        I("v_add_u32", ad, L_WPHI, ad)
        I("v_lshl_add_u32", f1, f1, 1, ad)
        I("v_lshl_add_u32", ad, j, 1, ad)
        I("v_and_b32", t, 3, j)
        I("v_cmp_ne_u32", VCC, 3, t)
        I("v_cndmask_b32", t, 0, -1, VCC)
        I("v_and_b32", j, t, self.vM3)
        for oft, base in enumerate((ad, f1)):
            for e in range(8):
                d = e if e < 4 else 16 + e - 4
                I("ds_read_u16", V(204 + e), base, mods=f"offset:{d * 56}")
            for p in range(4):
                I("v_lshl_or_b32", V(204 + 2 * p), V(205 + 2 * p), 16, V(204 + 2 * p))
                m = (None, self.vM3)[p >> 1] if oft == 0 else (t, j)[p >> 1]
                if m is not None: I("v_and_b32", V(204 + 2 * p), V(204 + 2 * p), m)
                I("v_accvgpr_write_b32", self.aWphi[4 * oft + p], V(204 + 2 * p))

    def conv_scalar(self, dst, T, mat, c, scales):
        out = []
        st = self.st(T)
        for f in range(2):
            acc = self.acc(T, 2 * mat + f)
            cc = c[4 * (2 * mat + f):4 * (2 * mat + f) + 4]
            for k in range(4): out.append(lambda acc=acc, cc=cc, k=k: self.I("v_fma_f32", acc[k], cc[k], st[0], acc[k]))
            m = {"r": st[1], "m": st[2]}[scales[f]]
            for k in range(4): out.append(lambda acc=acc, m=m, k=k: self.I("v_mul_f32", acc[k], acc[k], m))
            for p in range(2): out.append(lambda acc=acc, f=f, p=p: self.I("v_cvt_pk_bf16_f32", dst[2 * f + p], acc[2 * p], acc[2 * p + 1]))
        return out

    def q_gemm(self, layer, tail_ops=()):
        a, I = self.a, self.I
        T = self.sT
        isA = layer == "A"
        LOOK = self.opt.get("look", 4)
        for ks in range(2):
            for _, f in self.xload(ks): f()
        a.wait(lg=0)
        I("s_barrier")
        once = self.lab("once")
        I("s_cmp_lg_u32", self.sIt, 0)
        I("s_cbranch_scc1", once)
        nvm = len(a.vm)
        if isA:
            self.cs_read(self.cA, True)
            for n in range(4): I("ds_read_b64", V(200 + 2 * n, 2), V(0), mods=f"offset:{32 * n}")
            for n in range(4):
                for p in range(2):
                    I("v_lshlrev_b32", self.vR[4 * n + 2 * p], 16, V(200 + 2 * n + p))
                    I("v_and_b32", self.vR[4 * n + 2 * p + 1], "0xffff0000", V(200 + 2 * n + p))
        else: self.colsum_b_q()
        a.wait_lg_all()
        a.flush()
        assert nvm == len(a.vm)
        a.label(once)
        reads0, writes0 = a.count.get("ds_read_b64_tr_b16", 0), a.count.get("ds_write_b128", 0)
        def bar(n):
            assert a.count["ds_read_b64_tr_b16"] - reads0 == n and not a.lg and a.count.get("ds_write_b128", 0) == writes0
            I("s_barrier")
        for ft in range(6):
            for f in self.qw_read(self.wf(ft), ft, 0): f()
        for _, f in self.xload(2): f()

        G = 12
        mf, sw, sx, sd, sv, sh, stc = [], [], [], [], [], [], []
        for ks in range(14):
            order = (2, 3, 4, 5, 0, 1) if ks == 13 else range(6)
            for ft in order:
                for t in ((1, 0) if ks == 13 else (0, 1)):
                    mf.append((self.acc(t, ft), self.wf(ft), self.xf(t, ks), 0 if ks == 0 else self.acc(t, ft)))
                if ks < 13:
                    sw += [(len(mf) - 1, "v", f) for f in self.qw_read(self.wf(ft), ft, ks + 1)]
        for k in range(3, 14):
            gap = 0 if k == 3 else max(6, G * (k - LOOK))
            xl = self.xload(k)
            sx += [(gap, kind, f) for kind, f in xl[:-1]] + [(gap + 4, "v", xl[-1][1])]
            if k == 5:
                for t in range(2):
                    for q in range(2):
                        sx.append((G + 6 + 2 * (2 * t + q), "v", lambda t=t, q=q: I(
                            "buffer_load_dwordx2", self.straw(t)[2 * q:2 * q + 2], self.vStat, self.sWS, self.sXSq,
                            mods=f"offen offset:{t * 1024 + 512 * q} sc1")))
        s0, s1 = self.stats_ops(0, layer), self.stats_ops(1, layer)
        sv += [(G * 4, k, f) for p in zip(s0, s1) for k, f in p]
        sf = []
        if self.opt.get("fine") == (1 if isA else 2):
            sf = [(G * 2 * i, "s", lambda i=i: self.fine(1 if isA else 2, i)) for i in range(7)]
        nd = 0
        for k, f in self.pw_dma(self.sWOA if isA else self.sWOB, (0, 1, 2) if isA else (2, 3)):
            sd.append((G * 9 + 6 + 5 * nd, k, f))
            nd += k == "v"
        if isA:
            HF, HC = self.opt.get("hf", 4), self.opt.get("hc", 8)
            hv, hx, fv = V(194), V(195), V(196)
            def check(reg, first, gap, shift):
                slow, back = self.lab("hslow"), self.lab("hback")
                out = [(first, "v", lambda: I("buffer_load_dword", reg, self.vPollH, self.sWS, 0, mods="offen sc1")),
                       (gap, "v", lambda: I("v_cmp_ne_u32", VCC, hx, reg))]
                if shift: out.append((gap, "s", lambda: I("s_lshr_b64", VCC, VCC, 16)))
                def br():
                    I("s_cbranch_scc1" if shift else "s_cbranch_vccnz", slow)
                    a.label(back)
                out.append((gap, "s", br))
                def tail():
                    b = self.a
                    b.label(slow)
                    b.I("s_sub_u32", self.sBudget, self.sBudget, 1)
                    b.I("s_cbranch_scc1", "L_end")
                    b.I("buffer_load_dword", reg, self.vPollH, self.sWS, 0, mods="offen sc1")
                    b.wait(vm=0)
                    b.I("v_cmp_ne_u32", VCC, hx, reg)
                    if shift: b.I("s_lshr_b64", VCC, VCC, 16)
                    b.I("s_cbranch_scc1" if shift else "s_cbranch_vccnz", slow)
                    b.I("s_branch", back)
                self.tail.append(tail)
                return out
            stc = [(2, "v", lambda: I("v_mad_u32_u24", hx, self.vExpHM, self.sL, self.vExpHC))]
            sh += check(hv, G * HF + 8, G * HC, False)
            sh.append((G * HC, "s", lambda: I("s_lshl_b32", T[0], self.sW, 11)))
            sh.append((G * HC, "s", lambda: I("s_add_u32", M0, T[0], L_HX)))
            sh.append((G * HC, "s", lambda: I("s_add_u32", T[0], T[0], self.sHX)))
            for q in range(2):
                sh.append((G * HC, "v", lambda q=q: I("buffer_load_dwordx4", self.vHalo, self.sWS, T[0], mods=f"offen offset:{1024 * q} sc1 lds", tag="halo")))
            sh.append((G * HC, "s", lambda: I("s_add_u32", T[0], self.sHX, 14336)))
            for q in range(2):
                sh.append((G * HC, "v", lambda q=q: I("buffer_load_dwordx2", self.straw(2)[2 * q:2 * q + 2], self.vHaloS, self.sWS, T[0],
                                                     mods=f"offen offset:{512 * q} sc1")))
            sh.append((G * HC, "v", lambda: I("v_add_u32", V(194), L_HX, self.vHp)))
            def hw(k): return A(4 * k, 4)
            shw = []
            for k in range(14): shw += [(G * 8 + 4 * k, "v", f) for f in self.tr_pair(hw(k), self.vQh, k * 2048)]
            sv += [(G * 12, k, f) for k, f in self.stats_ops(2, layer)]
            nb = len(mf) - 5
            sb = [(nb, "s", lambda: a.wait_vm_tag("halo")), (nb, "s", lambda: a.wait(lg=0)), (nb, "s", lambda: bar(168 + 28))]
            sb += [(nb, "v", lambda k=k: I("ds_read_b128", self.hx(k), V(194), mods=f"offset:{512 * k}")) for k in range(14)]
            n0 = len(mf)
            for k in range(14): mf.append((self.hacc, hw(k), self.hx(k), 0 if k == 0 else self.hacc))
            stl = [(n0 - 2, "v", f) for f in tail_ops]
            rest = self.sched(mf, [sf, sw, sx, stc, sh, shw, sb, sd, sv, stl])
        else:
            n0 = len(mf)
            sb = [(n0 - 9, "s", lambda: a.wait(lg=0)), (n0 - 9, "s", lambda: bar(168))]
            stl = [(n0 - 4, "v", f) for f in tail_ops]
            rest = self.sched(mf, [sf, sw, sx, stc, sb, sd, sv, stl])
        return rest

    def ln(self, acc, c, st, scale):
        for p in range(2):
            self.pk("v_pk_fma_f32", acc[2 * p:2 * p + 2], c[2 * p:2 * p + 2], st[0:2], acc[2 * p:2 * p + 2], by=0)
        if scale == "r":
            for p in range(2): self.pk("v_pk_mul_f32", acc[2 * p:2 * p + 2], acc[2 * p:2 * p + 2], st[0:2], by=1)
        elif scale == "m":
            for p in range(2): self.pk("v_pk_mul_f32", acc[2 * p:2 * p + 2], acc[2 * p:2 * p + 2], st[2:4], by=0)
        elif scale == "e":
            self.pk("v_pk_fma_f32", acc[0:2], acc[0:2], st[2:4], self.vE0, by=0)
            self.pk("v_pk_mul_f32", acc[2:4], acc[2:4], st[2:4], by=0)

    def cvt(self, dst, src):
        for p in range(src.cnt // 2):
            self.I("v_cvt_pk_bf16_f32", dst[p], src[2 * p], src[2 * p + 1])

    def conv(self, dst, T, mat, c, scales):
        for f in range(2):
            ft = 2 * mat + f
            self.ln(self.acc(T, ft), c[4 * ft:4 * ft + 4], self.st(T), scales[f])
        for f in range(2):
            self.cvt(dst[2 * f:2 * f + 2], self.acc(T, 2 * mat + f))

    def o_finish(self, o, den, of, in_drain, after):
        a, I = self.a, self.I
        T = self.sT
        I("s_add_u32", T[1], self.sOq, 16384)
        self.flag_value(T[0])
        for t in range(2): I("v_rcp_f32", den[t][0], den[t][0])
        I("v_mov_b32", self.vT, T[0])
        for t in range(2):
            for p in range(4): self.pk("v_pk_mul_f32", o[t][2 * p:2 * p + 2], o[t][2 * p:2 * p + 2], den[t][0:2], by=0)
            self.cvt(of[t], o[t])
            I("buffer_store_dwordx4", of[t], self.vL16, self.sWS, T[1] if t else self.sOq, mods="offen")
        self.fine(getattr(self, "fin_region", 0) or -1, 6)
        self.fin_region = 0
        if in_drain: in_drain()
        a.wait(vm=0)
        self.publish(self.sFOq)
        self.stamp()
        if after: after()

    def qa_stage(self):
        a, I = self.a, self.I
        a.label("L_qa")
        a.forget_counters()
        self.it_b = 1
        self.q_poll(lambda: self.b_to_a(range(7, 21)))
        self.stamp()
        kf = [V(196, 4), V(200, 4)]
        qf = [V(204, 4), V(208, 4)]
        vp = [V(212, 4), V(216, 4)]
        hp = V(220, 2)
        tail_ops = self.conv_scalar(kf[1], 1, 1, self.cA, ("r", "m"))
        tail_ops.append(lambda: I("ds_write_b128", self.vKrd, kf[1], mods="offset:1024"))
        rest = self.q_gemm("A", tail_ops)
        for f in rest: f()
        self.stamp()
        late = [f for _, f in self.pw_dma(self.sWOA, (3,))]
        self.conv(vp[1], 1, 2, self.cA, ("r", "r"))
        I("ds_write_b128", self.vEXW, vp[1], mods="offset:2048")
        self.ln(self.hacc, self.vCH, self.st(2), "m")
        self.cvt(hp, self.hacc)
        I("ds_write_b64", self.vHW, hp)
        self.conv(vp[0], 0, 2, self.cA, ("r", "r"))
        I("ds_write_b128", self.vEXW, vp[0], mods="offset:1024")
        self.conv(qf[0], 0, 0, self.cA, (None, None))
        self.fine(4, 0)
        a.wait(lg=0)
        I("s_barrier")
        self.fine(4, 1)
        kprev = V(222, 4)
        vt = [V(226, 6), V(232, 6)]
        I("ds_read_b128", kprev, self.vKrd)
        for f in range(2):
            for i in range(3):
                I("ds_read_b64_tr_b16", vt[f][2 * i:2 * i + 2], self.vEXRa, mods=f"offset:{1024 * i + 8 * f}")
        self.conv(kf[0], 0, 1, self.cA, ("r", "m"))
        self.conv(qf[1], 1, 0, self.cA, (None, None))
        s = [V(112, 8), V(120, 8)]
        self.mfma(s[1][4:8], kf[1], qf[1], self.bCur)
        self.mfma(s[1][0:4], kf[0], qf[1], self.bPrev)
        self.mfma(s[0][4:8], kf[0], qf[0], self.bCur)
        self.mfma(s[0][0:4], kprev, qf[0], self.bPrev0)
        self.fine(4, 2)
        a.wait(lg=0)
        I("s_barrier")
        for f in late[:3]: f()
        m = V(128, 2)
        for t in (1, 0):
            I("v_max3_f32", m[t], s[t][4], s[t][5], s[t][6])
            I("v_max3_f32", m[t], m[t], s[t][7], s[t][0])
            I("v_max3_f32", m[t], m[t], s[t][1], s[t][2])
            I("v_max_f32", m[t], m[t], s[t][3])
        self.allreduce_pairs([("v_max_f32", m[0], m[1])])
        late[3]()
        nm = [V(130, 2), V(132, 2)]
        for t in range(2):
            I("v_mul_f32", nm[t][0], m[t], self.st(t)[3])
        for t in range(2):
            for p in range(4):
                self.I("v_pk_fma_f32", s[t][2 * p:2 * p + 2], s[t][2 * p:2 * p + 2], self.st(t)[2:4], nm[t],
                       mods="op_sel:[0,1,0] op_sel_hi:[1,1,0] neg_lo:[0,0,1] neg_hi:[0,0,1]")
        self.fine(4, 3)
        pf = [V(136, 4), V(140, 4)]
        o = [V(144, 8), V(152, 8)]
        sm = [V(160, 4), V(164, 4)]
        late[4]()
        for k in range(8): I("v_exp_f32", s[0][k], s[0][k])
        late[5]()
        for k in range(2): I("v_exp_f32", s[1][k], s[1][k])
        self.cvt(pf[0], s[0])
        for k in range(2, 4): I("v_exp_f32", s[1][k], s[1][k])
        self.mfma(sm[0], self.aOnes, pf[0], 0)
        I("v_exp_f32", s[1][4], s[1][4])
        self.mfma(o[0][0:4], vt[0][0:4], pf[0], 0)
        I("v_exp_f32", s[1][5], s[1][5])
        self.mfma(o[0][4:8], vt[1][0:4], pf[0], 0)
        for k in range(6, 8): I("v_exp_f32", s[1][k], s[1][k])
        self.cvt(pf[1], s[1])
        self.mfma(sm[1], self.aOnes, pf[1], 0)
        for f in range(2):
            self.mfma(o[1][4 * f:4 * f + 4], vt[f][2:6], pf[1], 0)
        self.fine(4, 4)
        self.fine(4, 5)
        self.fin_region = 4
        self.o_finish(o, sm, [V(168, 4), V(172, 4)], lambda: self.a_to_b(((), (1,))), lambda: self.a_to_b(((1, 2), ())))
        I("s_mov_b32", self.sPhase, 1)
        a.flush()
        I("s_branch", "L_p")

    def phi(self, src, dst, extra=(), done=None):
        a, I = self.a, self.I
        rest = list(extra)
        def more(n=1):
            for _ in range(n):
                if rest: rest.pop(0)()
        p = [V(120, 8), V(128, 8)]
        for t in range(2):
            for oft in range(2):
                self.mfma(p[t][4 * oft:4 * oft + 4], self.aWphi[4 * oft:4 * oft + 4], src[t], 0)
        kk = [V(204, 2), V(206, 2)]
        bb = [V(208, 2), V(210, 2)]
        for t in range(2):
            I("v_mov_b32", kk[t][0], self.st(t)[3])
            I("v_sub_f32", kk[t][1], 0, self.st(t)[3])
        more(3)
        mx, mn = V(188, 2), V(190, 2)
        for t in range(2):
            for k in range(3):
                if k == 0:
                    I("v_max3_f32", mx[t], p[t][0], p[t][1], p[t][2])
                    I("v_min3_f32", mn[t], p[t][0], p[t][1], p[t][2])
                else:
                    I("v_max3_f32", mx[t], mx[t], p[t][2 * k + 1], p[t][2 * k + 2])
                    I("v_min3_f32", mn[t], mn[t], p[t][2 * k + 1], p[t][2 * k + 2])
        self.fine(self.phi_region or -1, 1)
        self.allreduce_pairs([("v_max_f32", mx[0], mx[1]), ("v_min_f32", mn[0], mn[1])])
        for t in range(2):
            I("v_mul_f32", bb[t][0], mx[t], kk[t][1])
            I("v_mul_f32", bb[t][1], mn[t], kk[t][0])
        e = [V(144, 14), V(158, 14)]
        for i in range(7):
            for t in range(2):
                self.pk("v_pk_fma_f32", e[t][2 * i:2 * i + 2], p[t][(i & ~1):(i & ~1) + 2], kk[t], bb[t], bx=i & 1)
        self.fine(self.phi_region or -1, 2)
        for i in range(14):
            for t in range(2): I("v_exp_f32", e[t][i], e[t][i])
            more()
        sm = [V(188, 2), V(190, 2)]
        for t in range(2): self.pk("v_pk_add_f32", sm[t], e[t][0:2], e[t][2:4])
        for i in range(2, 7):
            for t in range(2): self.pk("v_pk_add_f32", sm[t], sm[t], e[t][2 * i:2 * i + 2])
            more()
        self.fine(self.phi_region or -1, 3)
        self.allreduce_pairs([("v_add_f32", sm[0][0], sm[0][1]), ("v_add_f32", sm[1][0], sm[1][1])])
        for t in range(2):
            for k in range(2): I("v_rcp_f32", sm[t][k], sm[t][k])
        for t in range(2):
            more()
            for i in range(7):
                self.pk("v_pk_mul_f32", e[t][2 * i:2 * i + 2], e[t][2 * i:2 * i + 2], sm[t])
                if i == 3: more()
            for s in range(2):
                more()
                for q in range(4):
                    I("v_cvt_pk_bf16_f32", dst[t][s][q], e[t][4 * q + s], e[t][4 * q + 2 + s] if q < 3 else 0)
                if done: done(t, s)
        more(99)

    def qb_stage(self):
        a, I = self.a, self.I
        T = self.sT
        a.label("L_qb")
        self.q_poll(lambda: self.a_to_b(((0,), (2, 0)), self.colsum_b_kv))
        self.stamp()
        rest = self.q_gemm("B")
        for f in rest: f()
        self.stamp()
        kf = qf = [V(196, 4), V(200, 4)]
        vp = [V(212, 4), V(216, 4)]
        exw = V(220)
        I("v_subrev_u32", exw, L_EXV - L_PH, self.vEXW)
        for t in (1, 0): self.conv(kf[t], t, 1, self.cB, (None, None))
        for t in (1, 0):
            self.conv(vp[t], t, 2, self.cB, ("r", "e"))
            I("ds_write_b128", exw, vp[t], mods=f"offset:{16384 + 1024 * t}")
        self.fine(3, 0)
        self.phi_region = 3
        ph = [[V(232, 4), V(236, 4)], [V(224, 4), V(228, 4)]]
        self.phi(kf, ph, done=lambda t, s: I("ds_write_b128", exw, ph[t][s], mods=f"offset:{8192 * s + 1024 * t}"))
        self.phi_region = 0
        self.fine(3, 4)
        a.wait(lg=0)
        I("s_barrier")
        self.fine(3, 5)
        lo, hi, real, pr = V(184), V(185), V(186), V(187)
        sP = T[4]
        I("s_lshl_b32", sP, self.sW, 14)
        I("s_sub_u32", sP, self.sKVld, sP)
        I("s_add_u32", sP, sP, 3 * 16384)
        def probe(reg): I("buffer_load_dword", reg, self.vProbe, self.sWS, sP, mods="offen offset:12 sc1")
        P1 = self.opt.get("p1", 0)
        if P1 == 0: probe(pr)
        kacc = V(120, 8)
        def fa(k, oft): return A(4 * (k * 2 + oft), 4)
        def fb(k): return A(40 + 4 * k, 4)
        for k in range(4):
            for t in range(2):
                I("ds_read_b64_tr_b16", fb(k)[2 * t:2 * t + 2], self.vKB, mods=f"offset:{(2 * k + t) * 1024}")
            for oft in range(2):
                for t in range(2):
                    I("ds_read_b64_tr_b16", fa(k, oft)[2 * t:2 * t + 2], self.vKA, mods=f"offset:{(2 * k + t) * 1024 + 8 * oft}")
            if k:
                for oft in range(2):
                    self.mfma(kacc[4 * oft:4 * oft + 4], fa(k - 1, oft), fb(k - 1), 0 if k == 1 else kacc[4 * oft:4 * oft + 4])
        for oft in range(2):
            self.mfma(kacc[4 * oft:4 * oft + 4], fa(3, oft), fb(3), kacc[4 * oft:4 * oft + 4])
        self.fine(3, 6)
        if P1 == 1: probe(pr)
        kvp = V(128, 4)
        self.cvt(kvp, kacc)
        I("v_and_b32", kvp[3], "0xffff", kvp[3])
        I("v_or_b32", kvp[3], self.sTag, kvp[3])
        I("buffer_store_dwordx4", kvp, self.vL16, self.sWS, self.sKVst, mods="offen sc1")
        self.stamp()
        a.wait(lg=0)
        I("s_barrier")
        self.colsum_b_q2()
        for t in (1, 0): self.conv(qf[t], t, 0, self.cB, (None, None))
        sO = [S(8 + k) for k in range(16)]
        sM = T[3]
        def gf(p): return A(4 * p, 4)
        def ready(reg):
            I("v_xor_b32", reg, self.sTag, reg)
            I("v_cmp_ge_u32", VCC, "0xffff", reg)
            I("v_lshrrev_b32", hi, 7, self.vL16)
            I("s_and_b32", sM, VCC_LO, "0xffff")
        def touch():
            for half in range(2):
                t = V(188 + half)
                if half:
                    I("s_lshr_b32", T[0], sM, 8)
                    I("v_add_u32", V(190), 8192, self.vTA)
                    I("v_and_b32", V(190), "0x3fff", V(190))
                I("v_lshrrev_b32", t, hi, T[0] if half else sM)
                I("v_and_b32", t, 1, t)
                I("v_cmp_eq_u32", VCC, 1, t)
                I("v_mov_b32", t, OOB)
                I("v_cndmask_b32", t, t, V(190) if half else self.vTA, VCC)
                I("buffer_load_dword", self.vDummy, t, self.sWS, self.sKVld, mods="offen sc1", nodest=True)
        I("v_add_u32", real, self.sKVld, self.vProbe)
        ready(pr)
        P2 = self.opt.get("p2", 0)
        if P2 == 0: probe(lo)
        touch()
        ex = [lambda p=p: I("v_readlane_b32", sO[p], real, p) for p in range(16)]
        if P2: ex.insert(P2, lambda: probe(lo))
        self.phi(qf, ph, extra=ex)
        self.stamp()
        red = V(176, 8)
        tg = [V(112 + k) for k in range(16)]
        chk, go, slow = self.lab("gchk"), self.lab("ggo"), self.lab("gslow")
        a.label(chk)
        ready(lo)
        I("s_cmp_lg_u32", sM, "0xffff")
        I("s_cbranch_scc1", slow)
        def gload(p): I("buffer_load_dwordx4", gf(p), self.vL16, self.sWS, sO[p], mods="offen sc1")
        NG = self.opt.get("ng", 6)
        for p in range(NG): gload(p)
        I("v_add_u32", exw, L_KVX - L_EXK, self.vKrd)
        I("v_add_u32", V(221), L_KVX, self.vL16)
        mf, sc, sg = [], [], []
        for p in range(16):
            mf.append((red[0:4], self.aSel[2:6], gf(p), 0 if p == 0 else red[0:4]))
            mf.append((red[4:8], self.aSel[0:4], gf(p), 0 if p == 0 else red[4:8]))
            if p + NG < 16: sg.append((2 * p, "v", lambda p=p: gload(p + NG)))
            sc.append((2 * p, "v", lambda p=p: I("v_accvgpr_read_b32", tg[p], gf(p)[3])))
            if p == 1:
                sc.append((2 * p, "v", lambda: I("v_min_u32", lo, tg[0], tg[1])))
                sc.append((2 * p, "v", lambda: I("v_max_u32", hi, tg[0], tg[1])))
            elif p & 1:
                sc.append((2 * p, "v", lambda p=p: I("v_min3_u32", lo, lo, tg[p - 1], tg[p])))
                sc.append((2 * p, "v", lambda p=p: I("v_max3_u32", hi, hi, tg[p - 1], tg[p])))
        rest = self.sched(mf, [sg, sc])
        for f in rest: f()
        I("v_xor_b32", lo, self.sTag, lo)
        I("v_xor_b32", hi, self.sTag, hi)
        I("v_or_b32", lo, lo, hi)
        I("v_cmp_lt_u32", VCC, "0xffff", lo)
        I("s_cbranch_vccnz", slow + "r")
        latep = [f for _, f in self.pw_dma(self.sWOB, (0, 1))]

        def tail():
            b = self.a
            b.label(slow)
            probe(lo)
            touch()
            b.I("s_sub_u32", self.sBudget, self.sBudget, 1)
            b.I("s_cbranch_scc1", "L_end")
            b.wait(vm=2)
            b.flush()
            b.I("s_branch", chk)
            b.label(slow + "r")
            probe(lo)
            b.I("s_sub_u32", self.sBudget, self.sBudget, 1)
            b.I("s_cbranch_scc1", "L_end")
            b.wait(vm=0)
            b.I("s_branch", chk)
        self.tail.append(tail)
        self.stamp()
        kvs = V(112, 4)
        self.cvt(kvs, red)
        I("ds_write_b128", exw, kvs)
        for f in latep[:3]: f()
        a.wait(lg=0)
        I("s_barrier")
        kvf = [[A(0, 4), A(4, 4)], [A(8, 4), A(12, 4)]]
        zf = [A(16, 4), A(20, 4)]
        for s in range(2):
            I("ds_read_b128", zf[s], self.vZ, mods=f"offset:{2048 * s}")
            for dt in range(2):
                I("ds_read_b128", kvf[s][dt], V(221), mods=f"offset:{(2 * s + dt) * 1024}")
        for f in latep[3:5]: f()
        o = [V(144, 8), V(152, 8)]
        dn = [V(160, 4), V(164, 4)]
        mf = []
        for s in range(2):
            for t in range(2): mf.append((dn[t], zf[s], ph[t][s], 0 if s == 0 else dn[t]))
            for t in range(2):
                for dt in range(2):
                    mf.append((o[t][4 * dt:4 * dt + 4], kvf[s][dt], ph[t][s], 0 if s == 0 else o[t][4 * dt:4 * dt + 4]))
        for f in self.sched(mf, [[(2 * k, "v", f) for k, f in enumerate(latep[5:])]]): f()
        I("s_mov_b32", self.sPhase, 0)
        I("s_add_u32", self.sIt, self.sIt, 1)
        I("s_add_u32", self.sKVst, self.sKVst, 0x100000)
        I("s_add_u32", self.sKVld, self.sKVld, 0x100000)
        I("s_add_u32", self.sHX, self.sHX, 0x40000)
        for t in range(2): I("v_add_f32", dn[t][0], f32(1e-6), dn[t][0])
        if self.opt.get("wb"):
            skipw = self.lab("nowb")
            I("s_cmp_eq_u32", self.sIt, 2)
            I("s_cselect_b32", T[0], self.sC, 0)
            I("s_cmp_lg_u32", T[0], 7)
            I("s_cbranch_scc1", skipw)
            I("buffer_wbl2", mods="sc1", untracked=True)
            a.label(skipw)
        self.it_b = 1
        self.o_finish(o, dn, [V(116, 4), V(120, 4)], lambda: self.b_to_a(range(7)), None)
        a.flush()
        I("s_branch", "L_p")

    def final(self):
        a, I = self.a, self.I
        T = self.sT
        a.label("L_final")
        a.forget_counters()
        xo = V(112, 8)
        I("s_lshl_b32", T[1], self.sW, 11)
        I("s_add_u32", T[1], T[1], L_SP)
        I("v_add_u32", V(120), T[1], self.vL16)
        I("s_add_u32", T[2], self.sX0o, 8 * 1792)
        for n in range(4):
            self.cvt(xo[2 * n:2 * n + 2], self.vR[4 * n:4 * n + 4])
            I("ds_write_b64", V(0), xo[2 * n:2 * n + 2], mods=f"offset:{32 * n}")
        a.wait(lg=0)
        for b in range(2): I("ds_read_b128", V(124 + 4 * b, 4), V(120), mods=f"offset:{1024 * b}")
        for b in range(2): I("buffer_store_dwordx4", V(124 + 4 * b, 4), self.vX0d, self.sOUT, T[2] if b else self.sX0o, mods="offen" + ("", " sc1", " nt", " sc0 sc1")[self.opt.get("outfl", 0)])
        a.label("L_fin2")
        self.stamp()
        if self.opt.get("stamps"):
            I("s_mov_b32", T[7], 63)
            self.stamp(real=True)
            I("s_lshl_b32", T[0], S(2), 2)
            I("s_add_u32", T[0], T[0], self.sW)
            I("s_lshl_b32", T[0], T[0], 8)
            I("s_add_u32", T[0], T[0], WS_STAMP)
            I("v_lshrrev_b32", V(120), 2, self.vL16)
            if self.opt.get("fine") == 5:
                for k in range(7):
                    I("v_readlane_b32", T[1], V(240), k)
                    I("v_writelane_b32", self.vStamp, T[1], 40 + k)
                I("v_readlane_b32", T[1], V(240), 63)
                I("v_writelane_b32", self.vStamp, T[1], 62)
                I("v_readlane_b32", T[1], self.vStamp, 2)
                I("v_writelane_b32", self.vStamp, T[1], 47)
            I("buffer_store_dword", self.vStamp, V(120), self.sWS, T[0], mods="offen")
        I("s_or_b32", T[0], S(2), self.sW)
        I("s_cmp_lg_u32", T[0], 0)
        I("s_cbranch_scc1", "L_end")
        if self.opt.get("dbg"):
            I("s_load_dwordx2", S(8, 2), S(0, 2), 64)
            a.wait(lg=0)
            self.srd(S(12, 4), S(8, 2), 256)
            I("v_lshrrev_b32", V(120), 2, self.vL16)
            I("v_readlane_b32", T[0], self.vStamp, 0)
            I("v_readlane_b32", T[1], self.vStamp, 62)
            I("v_readlane_b32", T[2], self.vStamp, 63)
            I("s_sub_u32", T[1], T[2], T[1])
            I("v_subrev_u32", V(121), T[0], self.vStamp)
            I("v_writelane_b32", V(121), T[1], 0)
            I("v_readlane_b32", T[0], V(121), 32)
            I("v_writelane_b32", V(121), T[0], 15)
            I("buffer_store_dword", V(121), V(120), S(12, 4), 0, mods="offen")
        if self.opt.get("leak"):
            skip = self.lab("noleak")
            I("v_readlane_b32", T[1], self.vStamp, 62)
            I("v_readlane_b32", T[2], self.vStamp, 63)
            I("v_readlane_b32", T[3], self.vStamp, self.opt.get("leakidx", 0))
            I("v_readlane_b32", T[4], self.vStamp, 0)
            I("s_sub_u32", T[1], T[2], T[1])
            I("s_sub_u32", T[3], T[3], T[4])
            I("s_cmp_lt_u32", T[1], self.opt["leak"])
            I("s_cbranch_scc1", skip)
            I("s_cmp_eq_u32", self.sMode, 0)
            I("s_cbranch_scc1", skip)
            I("v_cvt_f32_u32", V(121), T[3] if self.opt.get("leakidx") else T[1])
            I("v_lshrrev_b32", V(121), 16, V(121))
            a.wait(vm=0)
            I("s_mov_b64", EXEC, 1)
            I("buffer_store_short", V(121), OFF, self.sOUT, 0)
            a.label(skip)
        I("s_add_u32", T[0], self.sNonce, "0x10100")
        I("v_mov_b32", V(120), T[0])
        I("s_mov_b64", EXEC, 1)
        I("buffer_store_dword", V(120), OFF, self.sWS, 0)
        I("s_endpgm")

    def build(self):
        a = self.a
        self.prologue()
        self.p_stage()
        self.qa_stage()
        self.qb_stage()
        self.final()
        done = 0
        while done < len(self.tail):
            a.forget_counters()
            a.pos += 100
            self.tail[done]()
            done += 1
        a.label("L_end")
        a.I("s_endpgm")
        head = open("cdna_kernels/" + NAME[:-7] + ".s.ref").read().split("; Override launch")[0]
        out = head + f"; @launch grid=(256,1,1) block=(256,1,1) lds={LDS_BYTES}\n"
        out += f'.amdgcn_target "amdgcn-amd-amdhsa--gfx950"\n.text\n.globl {NAME}\n.p2align 8\n.type {NAME},@function\n{NAME}:\n'
        out += a.text()
        out += f""".section .rodata,"a"
.p2align 6
.amdhsa_kernel {NAME}
  .amdhsa_next_free_vgpr 512
  .amdhsa_next_free_sgpr 102
  .amdhsa_accum_offset 256
  .amdhsa_group_segment_fixed_size 0
  .amdhsa_kernarg_size 80
  .amdhsa_user_sgpr_count 2
  .amdhsa_user_sgpr_kernarg_segment_ptr 1
  .amdhsa_system_sgpr_workgroup_id_x 1
.end_amdhsa_kernel
"""
        return out


if __name__ == "__main__":
    opt = {}
    path = sys.argv[1]
    for kv in sys.argv[2:]:
        k, v = kv.split("=")
        opt[k] = int(v)
    g = Gen(opt)
    open(path, "w").write(g.build())
    import subprocess
    r = subprocess.run(["clang", "-x", "assembler", "-target", "amdgcn-amd-amdhsa", "-mcpu=gfx950", "-c", path, "-o", "gen_check.o"], capture_output=True, text=True)
    if r.returncode: print(r.stderr[:3000]); sys.exit(1)
    sz = subprocess.run(["llvm-readelf", "-S", "gen_check.o"], capture_output=True, text=True).stdout
    print("text bytes", [int(l.split()[6], 16) for l in sz.splitlines() if " .text" in l],
          "instructions", sum(g.a.count.values()), "nop states", g.a.nops)
```

```python
class Reg:
    def __init__(self, kind, n, cnt=1):
        self.kind, self.n, self.cnt = kind, n, cnt
        if kind in "va" and cnt > 1:
            assert n % 2 == 0, f"odd tuple {kind}{n}x{cnt}"
        if kind == "s" and cnt == 2:
            assert n % 2 == 0
        if kind == "s" and cnt >= 4:
            assert n % 4 == 0
        assert n + cnt <= (102 if kind == "s" else 256), f"{kind}{n}+{cnt}"

    def __str__(self):
        return f"{self.kind}{self.n}" if self.cnt == 1 else f"{self.kind}[{self.n}:{self.n + self.cnt - 1}]"

    def regs(self):
        return [(self.kind, self.n + i) for i in range(self.cnt)]

    def __getitem__(self, k):
        if isinstance(k, slice):
            a = k.start or 0
            b = self.cnt if k.stop is None else k.stop
            assert 0 <= a < b <= self.cnt
            return Reg(self.kind, self.n + a, b - a)
        assert 0 <= k < self.cnt
        return Reg(self.kind, self.n + k, 1)


def V(n, c=1): return Reg("v", n, c)
def A(n, c=1): return Reg("a", n, c)
def S(n, c=1): return Reg("s", n, c)


class Special:
    def __init__(self, name, regs): self.name, self._r = name, regs
    def __str__(self): return self.name
    def regs(self): return self._r


VCC = Special("vcc", [("s", "vcc")])
EXEC = Special("exec", [("s", "exec")])
M0 = Special("m0", [("s", "m0")])
OFF = Special("off", [])

TRANS = ("v_exp_", "v_log_", "v_rcp_", "v_rsq_", "v_sqrt_", "v_sin_", "v_cos_")
NODEF_S = ("s_cmp", "s_waitcnt", "s_barrier", "s_branch", "s_cbranch", "s_nop", "s_endpgm", "s_setprio", "s_sleep", "s_bitcmp")


def regs_of(x):
    return x.regs() if hasattr(x, "regs") else []


class Asm:
    def __init__(self):
        self.lines = []
        self.pos = 0
        self.w_valu = {}
        self.w_trans = {}
        self.w_mfma = {}
        self.r_mfmac = {}
        self.w_vsgpr = {}
        self.w_m0 = -99
        self.m0_owner = None
        self.w_dot = {}
        self.r_store = {}
        self.vm = []
        self.lg = []
        self.smem = set()
        self.nops = 0
        self.count = {}

    def raw(self, text):
        self.lines.append(text)

    def comment(self, text):
        self.lines.append("    ; " + text)

    def _out(self, text, states=1):
        self.lines.append("    " + text)
        self.pos += states

    def nop(self, n):
        while n > 0:
            k = min(n, 16)
            self._out(f"s_nop {k - 1}", k)
            self.nops += k
            n -= k

    def wait(self, vm=None, lg=None):
        parts = []
        if vm is not None:
            assert vm <= 63
            parts.append(f"vmcnt({vm})")
            self.vm = self.vm[len(self.vm) - vm:] if vm > 0 else []
        if lg is not None:
            lg = min(lg, 15)
            parts.append(f"lgkmcnt({lg})")
            if lg == 0:
                self.smem = set()
            self.lg = self.lg[len(self.lg) - lg:] if lg > 0 else []
        self._out("s_waitcnt " + " ".join(parts))

    def wait_vm_tag(self, tag):
        idx = [i for i, (t, _) in enumerate(self.vm) if t == tag]
        if idx:
            self.wait(vm=len(self.vm) - 1 - idx[-1])

    def wait_lg_all(self):
        if self.lg or self.smem:
            self.wait(lg=0)

    def prewait(self, *operands):
        n = len(self.lines)
        r = []
        for o in operands: r += regs_of(o)
        self._need_waits(r)
        return len(self.lines) != n

    def _need_waits(self, touched):
        t = set(touched)
        vm = lg = None
        for i in range(len(self.vm) - 1, -1, -1):
            if self.vm[i][1] & t:
                vm = len(self.vm) - 1 - i
                break
        if self.smem & t:
            lg = 0
        else:
            for i in range(len(self.lg) - 1, -1, -1):
                if self.lg[i][1] & t:
                    lg = 0 if self.smem else len(self.lg) - 1 - i
                    break
        if vm is not None or lg is not None:
            self.wait(vm, lg)

    def flush(self):
        need = 0
        for d, n in ((self.w_valu, 2), (self.w_trans, 1), (self.r_mfmac, 3), (self.w_vsgpr, 5), (self.r_store, 2)):
            for p in d.values():
                need = max(need, n - (self.pos - p - 1))
        for p, _ in self.w_mfma.values():
            need = max(need, 8 - (self.pos - p - 1))
        for p, _ in self.w_dot.values():
            need = max(need, 3 - (self.pos - p - 1))
        need = max(need, 1 - (self.pos - self.w_m0 - 1))
        if need > 0:
            self.nop(need)

    def label(self, name):
        self.lines.append(name + ":")

    def forget_counters(self):
        self.vm, self.lg, self.smem = [], [], set()

    def I(self, op, *ops, mods="", tag=None, untracked=False, nodest=False, m0=None):
        self.count[op] = self.count.get(op, 0) + 1
        defs, uses, ab, cc = [], [], [], []
        is_v = op.startswith("v_")
        is_mfma = op.startswith("v_mfma")
        is_valu = is_v and not is_mfma
        is_buf = op.startswith("buffer_") or op.startswith("global_")
        is_ds = op.startswith("ds_")
        lds_dma = is_buf and " lds" in (" " + mods)
        is_load = (is_buf and "_load" in op and not lds_dma) or (is_ds and ("_read" in op or "permute" in op))
        is_smem = op.startswith("s_load") or op.startswith("s_memtime") or op.startswith("s_memrealtime")
        if is_mfma:
            defs = regs_of(ops[0]); ab = regs_of(ops[1]) + regs_of(ops[2]); cc = regs_of(ops[3]); uses = ab + cc
        elif "permlane" in op:
            defs = regs_of(ops[0]) + regs_of(ops[1]); uses = list(defs)
        elif is_valu:
            defs = regs_of(ops[0])
            for o in ops[1:]: uses += regs_of(o)
            if op.startswith(("v_fmac", "v_dot2c", "v_pk_fmac", "v_writelane")): uses += defs
        elif is_load:
            defs = regs_of(ops[0])
            for o in ops[1:]: uses += regs_of(o)
        elif is_buf or is_ds:
            for o in ops: uses += regs_of(o)
            if lds_dma: uses += [("s", "m0")]
        elif op.startswith(NODEF_S):
            for o in ops: uses += regs_of(o)
        else:
            defs = regs_of(ops[0])
            for o in ops[1:]: uses += regs_of(o)
            if op in ("s_addk_i32", "s_mulk_i32"): uses += defs

        if m0 is not None:
            if lds_dma: assert self.m0_owner == m0, f"M0 set by {self.m0_owner}, used by {m0}"
            else: self.m0_owner = m0
        self._need_waits(defs + uses)

        need = 0
        def req(p, n):
            nonlocal need
            need = max(need, n - (self.pos - p - 1))
        dtuple = tuple(defs)
        for r in uses:
            if r in self.w_valu:
                p = self.w_valu[r]
                if is_mfma or "permlane" in op or "dpp" in op or "dpp" in mods or "row_" in mods: req(p, 2)
                if op.startswith(("v_readfirstlane", "v_readlane")): req(p, 1)
            if r in self.w_trans and is_v: req(self.w_trans[r], 1)
            if r in self.w_mfma:
                p, d = self.w_mfma[r]
                if is_mfma:
                    if r in ab: req(p, 8)
                    elif tuple(cc) != d: req(p, 6)
                else:
                    req(p, 8)
            if r in self.w_vsgpr:
                p = self.w_vsgpr[r]
                if is_v: req(p, 2)
                elif is_buf: req(p, 5)
                else: req(p, 1)
            if r == ("s", "m0") and lds_dma: req(self.w_m0, 1)
            if r in self.w_dot and not (self.w_dot[r][1] == op and r in regs_of(ops[-1]) and r not in regs_of(ops[1]) + regs_of(ops[2])): req(self.w_dot[r][0], 3)
        for r in defs:
            if r in self.w_mfma and not is_mfma: req(self.w_mfma[r][0], 8)
            if r in self.w_mfma and is_mfma and self.w_mfma[r][1] != tuple(cc): req(self.w_mfma[r][0], 6)
            if r in self.r_mfmac and is_valu: req(self.r_mfmac[r], 3)
            if r in self.r_store: req(self.r_store[r], 2 if is_valu else 1)
            if r in self.w_dot and self.w_dot[r][1] != op: req(self.w_dot[r][0], 3)
        if need > 0:
            self.nop(need)

        if is_buf:
            assert len(self.vm) < 63, "vmcnt overflow"
        if is_ds and len(self.lg) >= 15:
            self.wait(lg=0 if self.smem else 14)

        p = self.pos
        text = op + (" " + ", ".join(str(o) for o in ops) if ops else "") + (" " + mods if mods else "")
        self._out(text)

        for r in defs:
            for d in (self.w_valu, self.w_trans, self.w_mfma, self.w_vsgpr, self.w_dot):
                d.pop(r, None)
        if is_mfma:
            for r in defs: self.w_mfma[r] = (p, dtuple)
            for r in cc: self.r_mfmac[r] = p
        elif is_valu:
            for r in defs:
                if r[0] == "s": self.w_vsgpr[r] = p
                else:
                    self.w_valu[r] = p
                    if op.startswith(TRANS): self.w_trans[r] = p
                    if op.startswith("v_dot"): self.w_dot[r] = (p, op)
        if ("s", "m0") in defs and not is_v: self.w_m0 = p
        if is_buf:
            if not untracked: self.vm.append((tag, set() if nodest else set(defs)))
            if "_store" in op and ("x3" in op or "x4" in op):
                data = ops[0] if op.startswith("buffer_") else ops[1]
                for r in regs_of(data): self.r_store[r] = p
        if is_ds: self.lg.append((tag, set(defs)))
        if is_smem: self.smem |= set(defs)

    def text(self):
        return "\n".join(self.lines) + "\n"
```

```python
import sys
import math
import struct
from emit import Asm, V, A, S, VCC, EXEC, M0, OFF, Special

VCC_LO = Special("vcc_lo", [("s", "vcc")])

NAME = "interleave_layers__sliding_local_dilated__linear_kernel_hedgehog__prompt_kernel"


def f32(x):
    return "0x%08x" % struct.unpack("<I", struct.pack("<f", x))[0]


WS_E = 0x0
WS_FX = 0x1000
WS_FO = 0x5000
WS_SLOW = 0x8000
WS_FH = 0x10000
WS_HELLO = 0x11000
WS_FWF = 0x12000
WS_STAMP = 0xC0000
WS_X = 0x100000
WS_XS = 0x2C0000
WS_O = 0x300000
WS_KV = 0x500000
WS_HX = 0x700000
WS_FW = 0x800000
FW_T = 16 * 86016
WS_SIZE = 0xB00000
OOB = 0x7FFF0000

MAT = 28672
L_PW = 86016
L_SP = 151552
L_KVX = L_SP
L_HX = L_SP
L_WPHI = L_SP + 8192
L_CS = L_SP + 10240
L_EXK = L_PW + 49152
L_EXV = L_EXK + 5120
L_PH = L_PW
LDS_BYTES = 163840

LOG2E = math.log2(math.e)


class Neg:
    def __init__(self, r): self.r = r
    def __str__(self): return "-" + str(self.r)
    def regs(self): return self.r.regs()


class Gen:
    def __init__(self, opt):
        self.opt = opt
        self.a = Asm()
        self.tail = []
        self.uid = 0

    def lab(self, base):
        self.uid += 1
        return f"L_{base}_{self.uid}"

    sX0, sWA, sWOA, sWB, sWOB, sOUT, sWS, sWP = (S(24 + 4 * i, 4) for i in range(8))
    (sGrp, sH, sW, sC, sRh, sBase, sTag, sMode, sIt, sPhase, sL, sBudget, sXq, sXSq, sOq, sXp, sXSp, sOp, sFXp, sFOq,
     sFOp, sHX, sHaloProd, sFHp, sKVst, sKVld, sQWo, sFirst, sPend, sX0o, sNonce, sXcc) = (S(56 + i) for i in range(32))
    sT = [S(88 + i) for i in range(8)]
    sT2 = S(96, 2)
    sStamp = S(98, 2)
    sFW, sQWl, sPWl, sPWo = S(4), S(5), S(6), S(7)

    vL16, vQ0, vQ1, vQv0, vQv1, vQh = (V(1 + i) for i in range(6))
    vP = [V(7 + i) for i in range(4)]
    vQWd, vX0d, vExpHC, vPollQ, vPollM, vPollP, vEXW, vEXRa, vHW, vM3, vStat = (V(11 + i) for i in range(11))
    vE0 = V(22, 2)
    vHalo, vHaloS, vStatSt, vZ, vExpHM, vExpC, vExpM, vMH = (V(24 + i) for i in range(8))
    vCH = V(32, 4)
    bCur, bPrev, bPrev0 = V(36, 4), V(40, 4), V(44, 4)
    vR = V(48, 16)
    cA, cB = V(64, 24), V(88, 24)
    vTA, vProbe, vHp, vQS = V(241), V(242), V(243), V(244)
    vDummy = V(245)
    vPWd = [V(246 + i) for i in range(4)]
    vKA, vKB, vPollH, vKrd, vStamp = (V(250 + i) for i in range(5))
    vT = V(255)

    aOnes, aSel, aWphi = A(232, 4), A(236, 6), A(242, 8)

    def acc(self, T, ft): return V(112 + (T * 6 + ft) * 4, 4)
    hacc = V(160, 4)
    def straw(self, T): return V(164 + 4 * T, 4)
    def st(self, T): return V(176 + 4 * T, 4)
    def xf(self, T, ks): return A((ks * 2 + T) * 4, 4)
    def hx(self, ks): return A(56 + 4 * ks, 4) if ks < 12 else self.wf(ks - 6)
    def stash(self, i): return A(112 + 4 * i, 4) if i < 14 else A(200 + 4 * (i - 14), 4)
    def wf(self, f): return A(168 + 4 * f, 4)

    def I(self, *x, **k): self.a.I(*x, **k)

    def stamp(self, real=False):
        if not self.opt.get("stamps"):
            return
        a = self.a
        a.I("s_memrealtime" if real or self.opt.get("real") else "s_memtime", self.sStamp)
        a.I("s_mov_b32", M0, self.sT[7])
        a.wait(lg=0)
        a.I("v_writelane_b32", self.vStamp, self.sStamp[0], M0)
        a.I("s_add_u32", self.sT[7], self.sT[7], 1)
        if getattr(self, "fine_pending", False):
            self.fine_pending = False
            for i in range(7): a.I("v_writelane_b32", self.vStamp, S(8 + 2 * i), 40 + i)
            a.I("v_writelane_b32", self.vStamp, self.sStamp[0], 47)

    def fine(self, region, i):
        if self.opt.get("fine") == region and region == 5:
            self.a.raw("    s_memtime s[100:101]")
            self.a.raw("    s_waitcnt lgkmcnt(0)")
            self.a.raw(f"    v_writelane_b32 v240, s100, {i}")
            self.a.pos += 3
            return
        if self.opt.get("fine") == region:
            self.a.raw(f"    s_memtime s[{8 + 2 * i}:{9 + 2 * i}]")
            self.a.pos += 1
            self.fine_pending = True

    def srd(self, dst, src, nbytes):
        self.I("s_mov_b32", dst[0], src[0])
        self.I("s_and_b32", dst[1], src[1], "0xffff")
        self.I("s_mov_b32", dst[2], nbytes)
        self.I("s_mov_b32", dst[3], "0x20000")

    def mfma(self, d, x, y, c):
        self.I("v_mfma_f32_16x16x32_bf16", d, x, y, c)

    def pk(self, op, d, x, y, z=None, bx=None, by=None, bz=None):
        srcs = [(x, bx), (y, by)] + ([(z, bz)] if z is not None else [])
        lo = [0 if b is None else b for _, b in srcs]
        hi = [1 if b is None else b for _, b in srcs]
        mods = []
        if any(lo): mods.append("op_sel:[%s]" % ",".join(map(str, lo)))
        if not all(hi): mods.append("op_sel_hi:[%s]" % ",".join(map(str, hi)))
        self.I(op, d, *[s for s, _ in srcs], mods=" ".join(mods))

    def allreduce_pairs(self, chains):
        for step in range(7):
            for op, x, y in chains:
                if step in (0, 6): self.I("v_permlane32_swap_b32", x, y)
                elif step in (1, 4): self.I(op, x, x, y)
                elif step in (2, 5): self.I("v_mov_b32", y, x)
                else: self.I("v_permlane16_swap_b32", x, y)

    def budget_branch(self, loop):
        self.I("s_sub_u32", self.sBudget, self.sBudget, 1)
        self.I("s_cbranch_scc1", "L_end")
        self.I("s_branch", loop)

    def flag_value(self, dst):
        self.I("s_lshl_b32", dst, self.sL, 4)
        self.I("s_or_b32", dst, dst, self.sBase)

    def publish(self, soff):
        a = self.a
        slow, done = self.lab("pubslow"), self.lab("pubdone")
        a.I("s_cmp_eq_u32", self.sMode, 0)
        a.I("s_cbranch_scc1", slow)
        a.I("s_mov_b64", EXEC, 1)
        a.I("buffer_store_dword", self.vT, OFF, self.sWS, soff)
        a.label(done)
        a.I("s_mov_b64", EXEC, -1)

        def tail():
            b = self.a
            b.label(slow)
            b.I("buffer_wbl2", mods="sc1")
            b.wait(vm=0)
            b.I("s_mov_b64", EXEC, 1)
            b.I("buffer_store_dword", self.vT, OFF, self.sWS, soff, mods="sc1")
            b.I("s_branch", done)
        self.tail.append(tail)

    def sched(self, mfmas, streams):
        a = self.a
        streams = [list(s) for s in streams]
        for i, m in enumerate(mfmas):
            self.mfma(*m)
            scalar_free = True
            if i + 1 < len(mfmas):
                n = mfmas[i + 1]
                if a.prewait(n[1], n[2]): scalar_free = False
            if scalar_free:
                for s in streams:
                    if s and s[0][0] <= i and s[0][1] == "s":
                        s.pop(0)[2]()
                        break
            slots = 2
            progress = True
            while slots > 0 and progress:
                progress = False
                for s in streams:
                    if not s or s[0][0] > i: continue
                    cost = 2 if s[0][1] == "w" else 1
                    if cost <= slots:
                        s.pop(0)[2]()
                        slots -= cost
                        progress = True
                        break
        return [it[2] for s in streams for it in s]

    def fw_dma(self, mats):
        out = []
        for mat in mats:
            for i in range(7):
                if i % 4 == 0:
                    out.append(("s", lambda mat=mat, i=i: self.I("s_add_u32", M0, self.sQWl, mat * MAT + i * 1024)))
                    out.append(("s", lambda mat=mat, i=i: self.I("s_add_u32", self.sT[6], self.sFW, mat * MAT + i * 1024)))
                out.append(("v", lambda i=i: self.I("buffer_load_dwordx4", self.vL16, self.sWS, self.sT[6],
                                                   mods=f"offen offset:{(i % 4) * 1024} lds", untracked=True)))
        return out

    def piece(self, n): return f"offset:{(n // 7) * MAT + (n % 7) * 1024}"

    def a_to_b(self, mats, extra0=None):
        a, I = self.a, self.I
        second, done = self.lab("ab2"), self.lab("abdone")
        a.wait_lg_all()
        I("s_cmp_lg_u32", self.sIt, 0)
        I("s_cbranch_scc1", second)
        for mat in mats[0]:
            for n in range(7 * mat, 7 * mat + 7): I("ds_read_b128", self.stash(n + 1), self.vQS, mods=self.piece(n))
        a.wait(lg=0)
        for _, f in self.fw_dma(mats[0]): f()
        if extra0: extra0()
        a.wait_lg_all()
        a.flush()
        I("s_branch", done)
        a.label(second)
        for mat in mats[1]:
            for n in range(7 * mat, 7 * mat + 7): I("ds_write_b128", self.vQS, self.stash(n), mods=self.piece(n))
        a.label(done)

    def b_to_a(self, pieces):
        a, I = self.a, self.I
        done = self.lab("badone")
        a.wait_lg_all()
        I("s_cmp_lg_u32", self.sIt, self.it_b)
        I("s_cbranch_scc1", done)
        for n in pieces:
            I("ds_read_b128", self.stash(n), self.vQS, mods=self.piece(n))
            I("ds_write_b128", self.vQS, self.stash(n + 1), mods=self.piece(n))
        a.label(done)

    def pw_dma(self, srd, which):
        out = []
        for i in which:
            out.append(("s", lambda i=i: self.I("s_add_u32", M0, self.sPWl, i * 16384)))
            out.append(("s", lambda i=i: self.I("s_add_u32", self.sT[5], self.sPWo, 4 * 28 * i * 896)))
            for b in range(4):
                out.append(("v", lambda b=b: self.I("buffer_load_dwordx4", self.vPWd[b], srd, self.sT[5], mods=f"offen offset:{b * 1024} lds")))
        return out

    def raw_block(self, ks):
        for half in range(2):
            self.I("s_add_u32", M0, self.sT[4], ks * 2048 + half * 1024)
            self.I("s_add_u32", self.sT[6], self.sQWo, (32 * ks + 16 * half) * 2688)
            self.I("buffer_load_dwordx4", self.vQWd, self.sWA, self.sT[6], mods="offen lds", tag=f"raw{ks}")

    def tr_pair(self, dst, base, off):
        return [lambda: self.I("ds_read_b64_tr_b16", dst[0:2], base, mods=f"offset:{off}"),
                lambda: self.I("ds_read_b64_tr_b16", dst[2:4], base, mods=f"offset:{off + 1024}")]

    def qw_read(self, dst, ft, ks):
        base = (self.vQ0, self.vQ1, self.vQ0, self.vQ1, self.vQv0, self.vQv1)[ft]
        return self.tr_pair(dst, base, (MAT if ft in (2, 3) else 0) + ks * 2048)

    def bg(self, n=1):
        if self.bg_next >= self.bg_max: return
        skip = self.lab("bg")
        self.I("s_cmp_eq_u32", self.sW, 3)
        self.I("s_cbranch_scc1", skip)
        for _ in range(n):
            if self.bg_next < self.bg_max:
                self.raw_block(self.bg_next)
                self.bg_next += 1
        self.a.label(skip)

    def prologue(self):
        a, I = self.a, self.I
        T = self.sT
        self.bg_next, self.bg_max = 0, self.opt.get("n1", 2)
        I("s_load_dwordx8", S(4, 8), S(0, 2), 0)
        I("s_getpc_b64", S(22, 2))
        a.label("L_pc")
        if self.opt.get("pf0", 47):
            I("v_min_u32", V(113), self.opt.get("pf0", 47), V(0))
            I("v_lshlrev_b32", V(113), 7, V(113))
            I("global_load_dword", self.vDummy, V(113), S(22, 2), mods="offset:128", untracked=True)
        I("s_load_dwordx8", S(12, 8), S(0, 2), 32)
        I("s_load_dwordx2", S(20, 2), S(0, 2), 72)
        if self.opt.get("stamps"):
            I("s_memrealtime", S(100, 2))
            I("s_memtime", self.sStamp)
        I("s_cmp_ge_u32", S(2), 256)
        I("s_cbranch_scc1", "L_end")
        I("v_lshrrev_b32", V(114), 6, V(0))
        I("s_lshr_b32", T[1], S(2), 3)
        I("v_and_b32", V(0), 63, V(0))
        I("v_readfirstlane_b32", self.sW, V(114))
        I("s_lshl_b32", T[0], T[1], 10)
        I("v_and_b32", V(112), 7, V(0))
        I("v_lshl_add_u32", V(112), V(112), 7, T[0])
        I("v_min_u32", V(112), "L_end-L_pc", V(112))
        I("global_load_dword", self.vDummy, V(112), S(22, 2), untracked=True)
        I("s_and_b32", T[0], S(2), 7)
        I("s_and_b32", self.sH, T[1], 15)
        I("s_lshr_b32", T[1], T[1], 4)
        I("s_lshl_b32", T[0], T[0], 1)
        I("s_add_u32", self.sGrp, T[0], T[1])
        I("s_and_b32", self.sC, self.sH, 7)
        I("s_lshr_b32", self.sRh, self.sH, 3)
        lane, j, g, t0, t1, t2 = V(0), V(115), V(116), V(117), V(118), V(119)
        I("s_lshl_b32", T[0], self.sGrp, 3)
        I("s_lshl_b32", T[1], self.sRh, 2)
        I("s_add_u32", T[0], T[0], T[1])
        I("s_add_u32", T[0], T[0], self.sW)
        I("s_and_b32", T[1], T[0], 63)
        I("s_mul_i32", T[1], T[1], 16 * 1792)
        I("s_lshr_b32", T[2], self.sGrp, 3)
        I("s_mul_i32", T[2], T[2], 896)
        I("s_add_u32", T[1], T[1], T[2])
        I("s_lshl_b32", T[2], self.sC, 7)
        I("s_add_u32", self.sX0o, T[1], T[2])
        I("v_lshrrev_b32", t0, 3, lane)
        I("v_mul_u32_u24", t0, 1792, t0)
        I("v_and_b32", t1, 7, lane)
        I("v_lshl_add_u32", self.vX0d, t1, 4, t0)
        I("v_min_u32", t0, 36, lane)
        I("v_lshlrev_b32", V(121), 7, t0)
        I("s_mov_b32", self.sX0[2], 1835008)
        I("s_mov_b32", self.sX0[3], "0x20000")
        I("s_mov_b32", self.sWA[2], 1204224)
        I("s_mov_b32", self.sWA[3], "0x20000")
        I("s_mul_i32", T[1], S(2), 37 * 128)
        I("s_min_u32", T[1], T[1], 1204224 - 37 * 128)
        I("s_sub_u32", T[2], self.sX0o, 3 * 16 * 1792)
        a.wait(lg=0)
        if self.opt.get("fine") == 5: a.raw("    v_writelane_b32 v240, s100, 63")
        self.fine(5, 0)
        I("s_load_dword", self.sNonce, S(20, 2), WS_E)
        for r, p in ((self.sX0, 4), (self.sWA, 6)):
            I("s_mov_b32", r[0], S(p))
            I("s_and_b32", r[1], S(p + 1), "0xffff")
        no3, nox = self.lab("not3"), self.lab("nox0")
        I("s_cmp_lg_u32", self.sW, 3)
        I("s_cbranch_scc1", no3)
        I("s_cmp_eq_u32", self.sC, 7)
        I("s_cbranch_scc1", nox)
        for t in range(4):
            I("s_mov_b32", M0, L_SP + 2048 * t)
            I("s_add_u32", T[5], T[2], t * 16 * 1792)
            I("s_add_u32", T[6], T[2], t * 16 * 1792 + 8 * 1792 - 1024)
            I("buffer_load_dwordx4", self.vX0d, self.sX0, T[5], mods="offen lds")
            I("buffer_load_dwordx4", self.vX0d, self.sX0, T[6], mods="offen offset:1024 lds")
        a.label(nox)
        I("buffer_load_dword", self.vDummy, V(121), self.sWA, T[1], mods="offen", nodest=True)
        a.label(no3)
        I("v_and_b32", j, 15, lane)
        I("v_lshrrev_b32", g, 4, lane)
        I("v_lshlrev_b32", self.vL16, 4, lane)
        I("v_lshrrev_b32", t0, 2, lane)
        I("v_mul_u32_u24", t1, 2688, t0)
        I("v_lshrrev_b32", t0, 3, lane)
        I("v_and_b32", t0, 2, t0)
        I("v_and_b32", t2, 3, lane)
        I("v_xor_b32", t0, t0, t2)
        I("v_lshl_add_u32", self.vQWd, t0, 4, t1)
        I("s_mul_i32", self.sQWo, self.sH, 56)
        I("s_mul_i32", T[1], self.sW, 896)
        I("s_add_u32", self.sQWo, self.sQWo, T[1])
        I("s_mul_i32", T[4], self.sW, MAT)
        for r, p, n in ((self.sWS, 20, WS_SIZE), (self.sWB, 12, 1204224), (self.sWP, 14, 25088), (self.sWOA, 8, 401408),
                        (self.sWOB, 16, 401408), (self.sOUT, 18, 1835008)):
            self.srd(r, S(p, 2), n)
        self.bg()
        I("s_getreg_b32", self.sXcc, "hwreg(HW_REG_XCC_ID)")
        I("s_and_b32", self.sXcc, self.sXcc, 15)
        I("s_lshl_b32", T[1], self.sGrp, 3)
        I("s_lshl_b32", T[2], self.sW, 1)
        I("s_add_u32", T[1], T[1], T[2])
        I("s_mul_i32", self.sXq, T[1], 14336)
        I("s_add_u32", self.sXq, self.sXq, WS_X)
        I("s_lshl_b32", self.sXSq, T[1], 10)
        I("s_add_u32", self.sXSq, self.sXSq, WS_XS)
        I("s_lshl_b32", self.sOq, T[1], 14)
        I("s_lshl_b32", T[2], self.sH, 10)
        I("s_add_u32", self.sOq, self.sOq, T[2])
        I("s_add_u32", self.sOq, self.sOq, WS_O)
        I("s_lshl_b32", T[3], T[1], 7)
        I("s_add_u32", T[3], T[3], WS_FX)
        I("s_mul_i32", self.sXp, T[0], 14336)
        I("s_lshl_b32", T[2], self.sC, 11)
        I("s_add_u32", self.sXp, self.sXp, T[2])
        I("s_add_u32", self.sXp, self.sXp, WS_X)
        I("s_lshl_b32", self.sXSp, T[0], 10)
        I("s_lshl_b32", T[2], self.sC, 7)
        I("s_add_u32", self.sXSp, self.sXSp, T[2])
        I("s_add_u32", self.sXSp, self.sXSp, WS_XS)
        I("s_lshl_b32", self.sOp, T[0], 14)
        I("s_add_u32", self.sOp, self.sOp, WS_O)
        I("s_lshl_b32", self.sFXp, T[0], 7)
        I("s_lshl_b32", T[2], self.sC, 2)
        I("s_add_u32", self.sFXp, self.sFXp, T[2])
        I("s_add_u32", self.sFXp, self.sFXp, WS_FX)
        I("s_lshl_b32", T[1], self.sGrp, 2)
        I("s_add_u32", T[2], T[1], self.sW)
        I("s_lshl_b32", self.sFOq, T[2], 7)
        I("s_lshl_b32", T[2], self.sH, 2)
        I("s_add_u32", self.sFOq, self.sFOq, T[2])
        I("s_add_u32", self.sFOq, self.sFOq, WS_FO)
        I("s_lshr_b32", T[2], T[0], 1)
        I("s_lshl_b32", self.sFOp, T[2], 7)
        I("s_add_u32", self.sFOp, self.sFOp, WS_FO)
        I("s_lshl_b32", self.sHX, self.sGrp, 14)
        I("s_add_u32", self.sHX, self.sHX, WS_HX)
        I("s_lshl_b32", self.sFHp, self.sGrp, 7)
        I("s_add_u32", self.sFHp, self.sFHp, WS_FH)
        I("s_and_b32", T[1], self.sGrp, 7)
        I("s_cmp_eq_u32", T[1], 0)
        I("s_cselect_b32", self.sFirst, 1, 0)
        I("s_cmp_lg_u32", T[1], 7)
        I("s_cselect_b32", T[1], 1, 0)
        I("s_and_b32", T[2], T[0], 7)
        I("s_cmp_eq_u32", T[2], 7)
        I("s_cselect_b32", self.sHaloProd, T[1], 0)
        I("s_lshl_b32", T[1], self.sH, 2)
        I("s_add_u32", T[1], T[1], self.sW)
        I("s_lshl_b32", self.sKVld, T[1], 14)
        I("s_add_u32", self.sKVld, self.sKVld, WS_KV)
        I("s_lshl_b32", T[1], self.sGrp, 10)
        I("s_add_u32", self.sKVst, self.sKVld, T[1])
        I("s_mov_b32", self.sMode, 1)
        I("s_mov_b32", self.sIt, 0)
        I("s_mov_b32", self.sPhase, 0)
        I("s_mov_b32", self.sL, 1)
        I("s_mov_b32", self.sPend, 0)
        I("s_mov_b32", self.sBudget, 400000)
        self.bg()
        I("v_min_u32", t0, 12, lane)
        I("v_lshlrev_b32", V(122), 7, t0)
        I("v_lshlrev_b32", self.vStatSt, 3, j)
        I("v_and_b32", t0, 7, j)
        I("v_lshlrev_b32", t0, 4, t0)
        I("v_lshl_add_u32", self.vHp, g, 7, t0)
        I("v_lshlrev_b32", t0, 7, j)
        I("v_lshl_add_u32", t0, g, 3, t0)
        I("v_add_u32", V(123), L_SP, t0)
        I("s_mul_i32", self.sQWl, self.sW, 7168)
        I("s_mul_i32", self.sFW, self.sH, 86016)
        I("s_add_u32", self.sFW, self.sFW, self.sQWl)
        I("s_add_u32", self.sFW, self.sFW, WS_FW)
        I("s_lshl_b32", self.sPWl, self.sW, 12)
        I("s_add_u32", self.sPWl, self.sPWl, L_PW)
        I("s_mul_i32", self.sPWo, self.sW, 28 * 896)
        I("s_min_u32", T[1], self.sC, 6)
        I("s_lshl_b32", T[1], T[1], 7)
        I("s_add_u32", self.sPWo, self.sPWo, T[1])
        if self.opt.get("stamps"):
            I("s_mov_b32", T[7], 1)
            I("v_mov_b32", self.vStamp, 0)
            I("v_writelane_b32", self.vStamp, self.sStamp[0], 0)
            if self.opt.get("fine") != 5: I("v_writelane_b32", self.vStamp, S(100), 62)
        self.bg()
        a.forget_counters()
        a.smem = {("s", self.sNonce.n)}
        self.fine(5, 1)

        r, cc = V(113), V(124)
        I("s_lshl_b32", T[1], self.sW, 11)
        I("v_add_u32", V(114), T[1], V(123))
        I("v_lshrrev_b32", r, 2, j)
        I("v_and_b32", cc, 3, j)
        I("v_lshl_add_u32", t0, g, 2, r)
        I("v_lshlrev_b32", t1, 3, cc)
        I("v_lshl_add_u32", t2, t0, 6, t1)
        I("v_and_b32", V(125), 1, g)
        I("v_lshl_add_u32", self.vQ0, V(125), 5, t2)
        I("v_xor_b32", self.vQ1, 32, self.vQ0)
        I("v_add_u32", self.vQv0, 2 * MAT, self.vQ0)
        I("v_add_u32", self.vQv1, 2 * MAT, self.vQ1)
        I("s_and_b32", T[1], self.sW, 1)
        I("s_lshl_b32", T[2], T[1], 5)
        I("v_xor_b32", self.vQh, T[2], self.vQ0)
        I("s_lshr_b32", T[2], self.sW, 1)
        I("s_add_u32", T[2], T[2], 1)
        I("s_mul_i32", T[2], T[2], MAT)
        I("v_add_u32", self.vQh, T[2], self.vQh)
        I("v_lshl_add_u32", t2, t0, 7, t1)
        I("v_add_u32", t2, L_PW, t2)
        I("v_lshrrev_b32", V(125), 1, t0)
        I("v_and_b32", V(125), 3, V(125))
        for n in range(4):
            I("v_xor_b32", V(126), n, V(125))
            I("v_lshl_add_u32", self.vP[n], V(126), 5, t2)
        self.bg()
        I("v_lshrrev_b32", V(125), 1, t0)
        I("v_xor_b32", V(125), V(125), cc)
        I("v_and_b32", V(125), 3, V(125))
        I("v_lshlrev_b32", V(125), 4, V(125))
        I("v_lshl_add_u32", V(126), t0, 6, V(125))
        I("s_lshl_b32", T[2], self.sW, 11)
        I("s_add_u32", T[5], T[2], L_EXV)
        I("v_add_u32", self.vEXRa, T[5], V(126))
        I("s_lshr_b32", T[5], self.sW, 1)
        I("s_lshl_b32", T[5], T[5], 13)
        I("s_add_u32", T[5], T[5], L_PH)
        I("v_add_u32", self.vKA, T[5], V(126))
        I("s_lshl_b32", T[5], T[1], 3)
        I("s_add_u32", T[5], T[5], L_PH + 16384)
        I("v_add_u32", self.vKB, T[5], V(126))
        I("v_lshrrev_b32", V(125), 1, j)
        I("v_xor_b32", V(125), V(125), g)
        I("v_and_b32", V(125), 3, V(125))
        I("v_lshlrev_b32", V(125), 4, V(125))
        I("v_lshl_add_u32", V(126), j, 6, V(125))
        I("v_add_u32", V(126), L_EXV, V(126))
        I("v_add_u32", self.vEXW, T[2], V(126))
        I("s_lshl_b32", T[5], self.sW, 10)
        I("v_add_u32", V(125), L_EXK, self.vL16)
        I("v_add_u32", self.vKrd, T[5], V(125))
        I("v_add_u32", self.vQS, self.sQWl, self.vL16)
        I("s_cmp_lt_u32", self.sW, 2)
        I("s_cselect_b64", VCC, -1, 0)
        I("v_cndmask_b32", V(126), V(126), V(125), VCC)
        I("s_lshl_b32", T[5], T[1], 3)
        I("v_add_u32", self.vHW, T[5], V(126))
        self.bg()
        I("v_lshrrev_b32", t0, 3, lane)
        I("v_mul_u32_u24", t1, 896, t0)
        I("v_and_b32", t0, 6, t0)
        I("v_and_b32", t2, 7, lane)
        I("v_xor_b32", t0, t0, t2)
        I("v_lshl_add_u32", self.vPWd[0], t0, 4, t1)
        for b in range(1, 4):
            I("v_add_u32", self.vPWd[b], b * (8 * 896 - 1024), self.vPWd[0])
        I("v_mov_b32", t1, OOB)
        I("v_cmp_gt_u32", VCC, 32, lane)
        I("v_cndmask_b32", self.vPWd[3], t1, self.vPWd[3], VCC)
        I("v_cmp_gt_u32", VCC, 48, lane)
        I("v_cndmask_b32", self.vM3, 0, -1, VCC)
        I("v_cndmask_b32", self.vE0[0], 1.0, 0, VCC)
        I("v_mov_b32", self.vE0[1], 0)
        I("s_cmp_eq_u32", T[1], 1)
        I("s_cselect_b64", VCC, -1, 0)
        I("v_cndmask_b32", self.vMH, -1, self.vM3, VCC)
        I("v_lshl_add_u32", self.vStat, g, 7, self.vStatSt)
        I("s_cmp_eq_u32", self.sFirst, 1)
        I("s_cselect_b64", VCC, -1, 0)
        I("v_cndmask_b32", self.vHalo, self.vL16, t1, VCC)
        I("v_cndmask_b32", self.vHaloS, self.vStat, t1, VCC)
        I("s_or_b32", T[2], self.sGrp, 1)
        I("s_add_u32", T[2], T[2], 1)
        I("v_add_u32", t0, T[2], j)
        I("v_and_b32", t0, 15, t0)
        I("v_lshlrev_b32", self.vProbe, 10, t0)
        I("v_lshrrev_b32", t0, 3, lane)
        I("v_add_u32", t0, T[2], t0)
        I("v_and_b32", t0, 15, t0)
        I("v_lshlrev_b32", t0, 3, t0)
        I("v_and_b32", t2, 7, lane)
        I("v_add_lshl_u32", self.vTA, t0, t2, 7)
        self.bg()
        I("v_lshlrev_b32", self.vZ, 8, g)
        I("v_add_u32", self.vZ, L_KVX + 1024 + 12 * 16, self.vZ)
        I("v_lshlrev_b32", self.vPollP, 2, j)
        I("v_and_b32", t0, 7, lane)
        I("v_min_u32", t0, 6, t0)
        I("v_lshlrev_b32", V(127), 2, t0)
        I("v_min_u32", t0, 13, j)
        I("v_lshlrev_b32", t0, 2, t0)
        I("s_lshl_b32", T[5], self.sH, 7)
        I("s_add_u32", T[5], T[5], WS_FWF)
        I("v_add_u32", t0, T[5], t0)
        I("v_add_u32", t2, self.sFHp, V(127))
        I("s_cmp_eq_u32", self.sFirst, 1)
        I("s_cselect_b32", T[5], 0, 16)
        I("v_cmp_gt_u32", VCC, T[5], lane)
        I("v_cndmask_b32", self.vPollH, t0, t2, VCC)
        I("v_cndmask_b32", self.vExpHM, 0, 16, VCC)
        I("v_cndmask_b32", self.vExpHC, 16, 0, VCC)
        I("v_lshrrev_b32", t2, 3, j)
        I("v_lshl_add_u32", t2, t2, 7, V(127))
        I("v_add_u32", t2, T[3], t2)
        I("s_lshl_b32", T[5], self.sGrp, 7)
        I("s_add_u32", T[5], T[5], WS_HELLO)
        I("v_add_u32", t0, T[5], self.vPollP)
        I("v_and_b32", V(125), 1, g)
        I("v_cmp_eq_u32", VCC, 0, V(125))
        I("v_cndmask_b32", self.vPollQ, t0, t2, VCC)
        I("v_cndmask_b32", self.vPollM, -16, -1, VCC)
        I("v_cndmask_b32", self.vExpM, 0, 16, VCC)
        I("v_mov_b32", t0, self.sXcc)
        I("v_cndmask_b32", self.vExpC, t0, 0, VCC)
        self.bg()
        I("v_mov_b32", V(125), f32(-1e30))
        for rr in range(4):
            I("v_lshl_add_u32", t0, g, 2, rr)
            I("v_sub_u32", t2, j, t0)
            I("v_cmp_gt_u32", VCC, 8, t2)
            I("v_cndmask_b32", self.bCur[rr], V(125), 0, VCC)
            I("v_add_u32", t2, 16, t2)
            I("v_cmp_gt_u32", VCC, 8, t2)
            I("v_cndmask_b32", self.bPrev[rr], V(125), 0, VCC)
        I("s_cmp_eq_u32", self.sW, 0)
        I("s_cselect_b32", T[2], self.sFirst, 0)
        I("s_cmp_eq_u32", T[2], 1)
        I("s_cselect_b64", VCC, -1, 0)
        for rr in range(4):
            I("v_cndmask_b32", self.bPrev0[rr], self.bPrev[rr], V(125), VCC)
        self.bg()
        I("v_mov_b32", t0, "0x3f803f80")
        for k in range(4): I("v_accvgpr_write_b32", self.aOnes[k], t0)
        for k in (0, 1, 4, 5): I("v_accvgpr_write_b32", self.aSel[k], 0)
        I("v_and_b32", V(125), 1, j)
        I("v_lshlrev_b32", V(125), 4, V(125))
        I("v_mov_b32", t0, "0x3f80")
        I("v_lshlrev_b32", t0, V(125), t0)
        I("v_cmp_eq_u32", VCC, r, g)
        I("v_cndmask_b32", t0, 0, t0, VCC)
        I("v_cmp_gt_u32", VCC, 2, cc)
        I("v_cndmask_b32", t2, 0, t0, VCC)
        I("v_cndmask_b32", t0, t0, 0, VCC)
        I("v_accvgpr_write_b32", self.aSel[2], t2)
        I("v_accvgpr_write_b32", self.aSel[3], t0)
        I("v_mov_b32", V(127), V(0))
        I("v_mov_b32", V(0), V(114))
        a.wait(lg=0)
        I("s_add_u32", T[1], self.sNonce, "0x10100")
        I("s_and_b32", self.sBase, T[1], "0xffffff00")
        I("s_and_b32", self.sTag, T[1], "0x3fff0000")
        I("v_or_b32", self.vExpC, self.sBase, self.vExpC)
        I("v_or_b32", self.vExpHC, self.sBase, self.vExpHC)
        self.stamp()
        I("s_cmp_eq_u32", self.sW, 3)
        I("s_cbranch_scc1", "L_s0")
        I("s_barrier")
        self.stamp()

        N1 = self.bg_next
        ad0, ad1 = V(188), V(189)
        d0, d1 = V(192, 4), V(196, 4)
        I("v_add_u32", ad0, T[4], self.vQ0)
        I("v_add_u32", ad1, T[4], self.vQ1)
        a.vm = [(f"raw{ks}", set()) for ks in range(N1) for _ in range(2)]
        AH = self.opt.get("ah", 6)
        nxt = N1
        for ks in range(14):
            while nxt < 14 and nxt <= ks + AH:
                self.raw_block(nxt)
                nxt += 1
            a.wait_vm_tag(f"raw{ks}")
            w0, w1 = self.wf(2 * (ks & 1)), self.wf(2 * (ks & 1) + 1)
            for f in self.tr_pair(w0, ad0, ks * 2048) + self.tr_pair(w1, ad1, ks * 2048): f()
            if ks:
                p0, p1 = self.wf(2 * ((ks - 1) & 1)), self.wf(2 * ((ks - 1) & 1) + 1)
                self.mfma(d0, p0, self.aOnes, 0 if ks == 1 else d0)
                self.mfma(d1, p1, self.aOnes, 0 if ks == 1 else d1)
        self.mfma(d0, self.wf(2), self.aOnes, d0)
        self.mfma(d1, self.wf(3), self.aOnes, d1)
        I("v_lshrrev_b32", ad0, 8, self.vL16)
        I("v_lshlrev_b32", ad0, 4, ad0)
        I("s_lshl_b32", T[0], self.sW, 7)
        I("s_add_u32", T[0], T[0], L_CS)
        I("v_add_u32", ad0, T[0], ad0)
        I("s_mov_b32", self.sT2[0], "0x00010001")
        I("s_mov_b32", self.sT2[1], "0x00010001")
        a.flush()
        I("s_mov_b64", EXEC, self.sT2)
        I("ds_write_b128", ad0, d0)
        I("ds_write_b128", ad0, d1, mods="offset:64")
        I("s_mov_b64", EXEC, -1)
        a.wait(lg=0)
        I("s_branch", "L_qa")
        self.stage0()

    def stage0(self):
        a, I = self.a, self.I
        T = self.sT
        lane = V(127)
        idle, nohalo, pub, nofw = (self.lab(x) for x in ("idle", "nohalo", "pub", "nofw"))
        a.label("L_s0")
        a.forget_counters()
        a.pos += 100
        I("s_or_b32", T[1], self.sBase, 16)
        I("v_mov_b32", self.vT, T[1])
        I("s_or_b32", T[1], self.sBase, self.sXcc)
        I("v_mov_b32", V(112), T[1])
        I("s_lshl_b32", T[1], self.sGrp, 7)
        I("s_lshl_b32", T[2], self.sH, 2)
        I("s_add_u32", T[1], T[1], T[2])
        I("s_add_u32", T[1], T[1], WS_HELLO)
        I("s_mov_b64", EXEC, 1)
        I("buffer_store_dword", V(112), OFF, self.sWS, T[1], mods="sc1")
        I("s_mov_b64", EXEC, -1)
        I("s_cmp_eq_u32", self.sC, 7)
        I("s_cbranch_scc1", idle)
        a.wait(vm=2)
        self.fine(5, 2)
        xo = [V(128 + 8 * t, 8) for t in range(4)]
        pr = [V(160 + 2 * t, 2) for t in range(4)]
        for t in range(4):
            for n in range(4): I("ds_read_b64", xo[t][2 * n:2 * n + 2], V(123), mods=f"offset:{2048 * t + 32 * n}")
        one = V(125)
        I("v_mov_b32", one, "0x3f803f80")
        I("s_sub_u32", T[5], self.sXp, 3 * 14336)
        I("s_sub_u32", T[6], self.sXSp, 3 * 1024)
        for t in range(4):
            I("buffer_store_dwordx4", xo[t][0:4], self.vL16, self.sWS, T[5], mods="offen sc1")
            I("buffer_store_dwordx4", xo[t][4:8], self.vL16, self.sWS, T[5], mods="offen offset:1024 sc1")
            if t < 3: I("s_add_u32", T[5], T[5], 14336)
        for k in range(8):
            for t in range(4):
                I("v_dot2_f32_bf16", pr[t][0], xo[t][k], one, 0 if k == 0 else pr[t][0])
                I("v_dot2_f32_bf16", pr[t][1], xo[t][k], xo[t][k], 0 if k == 0 else pr[t][1])
        self.allreduce_pairs([("v_add_f32", pr[t][0], pr[t][1]) for t in range(4)])
        I("s_mov_b64", EXEC, "0xffff")
        for t in range(4):
            I("buffer_store_dwordx2", pr[t], self.vStatSt, self.sWS, T[6], mods=f"offen offset:{1024 * t} sc1")
        I("s_mov_b64", EXEC, -1)
        I("s_cmp_eq_u32", self.sHaloProd, 0)
        I("s_cbranch_scc1", nohalo)
        I("s_lshl_b32", T[1], self.sC, 10)
        I("s_add_u32", T[1], T[1], self.sHX)
        I("s_add_u32", T[1], T[1], 16384)
        I("s_mov_b32", self.sT2[0], "0xff00ff00")
        I("s_mov_b32", self.sT2[1], "0xff00ff00")
        I("s_mov_b64", EXEC, self.sT2)
        I("buffer_store_dwordx4", xo[3][0:4], self.vHp, self.sWS, T[1], mods="offen sc1")
        I("buffer_store_dwordx4", xo[3][4:8], self.vHp, self.sWS, T[1], mods="offen offset:512 sc1")
        I("s_lshl_b32", T[1], self.sC, 7)
        I("s_add_u32", T[1], T[1], self.sHX)
        I("s_add_u32", T[1], T[1], 16384 + 14336)
        I("s_mov_b64", EXEC, "0xffff")
        I("buffer_store_dwordx2", pr[3], self.vStatSt, self.sWS, T[1], mods="offen sc1")
        I("s_mov_b64", EXEC, -1)
        a.label(nohalo)
        a.flush()
        I("v_and_b32", V(126), 3, lane)
        I("v_lshlrev_b32", V(126), 7, V(126))
        I("v_lshrrev_b32", V(113), 2, lane)
        I("v_lshl_add_u32", V(126), V(113), 15, V(126))
        I("s_sub_u32", T[2], self.sFXp, 3 * 128)
        I("v_add_u32", V(126), T[2], V(126))
        I("s_lshl_b32", T[1], self.sC, 2)
        I("s_add_u32", T[1], T[1], self.sFHp)
        I("s_add_u32", T[1], T[1], 128)
        I("v_writelane_b32", V(126), T[1], 8)
        I("s_lshl_b32", T[1], self.sHaloProd, 8)
        I("s_or_b32", self.sT2[0], T[1], "0xff")
        I("s_mov_b32", self.sT2[1], 0)
        if not self.opt.get("late_release"): I("s_barrier")
        a.wait(vm=0)
        I("s_mov_b64", EXEC, self.sT2)
        I("buffer_store_dword", self.vT, V(126), self.sWS, 0, mods="offen sc1")
        I("s_mov_b64", EXEC, -1)
        if self.opt.get("late_release"): I("s_barrier")
        self.fine(5, 3)
        I("s_branch", pub)
        a.label(idle)
        I("s_barrier")
        a.label(pub)
        self.stamp()
        a.forget_counters()
        I("s_cmp_ge_u32", self.sGrp, 14)
        I("s_cbranch_scc1", nofw)
        I("s_mul_i32", T[2], self.sH, 56)
        I("s_mul_i32", T[1], self.sGrp, 32 * 2688)
        I("s_add_u32", T[2], T[2], T[1])
        for mat in range(3):
            for half in range(2):
                I("s_add_u32", T[1], T[2], mat * 896 + half * 16 * 2688)
                I("buffer_load_dwordx4", V(168 + 8 * mat + 4 * half, 4), self.vQWd, self.sWB, T[1], mods="offen")
        I("s_lshl_b32", T[1], self.sGrp, 11)
        I("s_add_u32", T[1], T[1], self.sFW)
        I("s_sub_u32", T[1], T[1], 3 * 7168)
        for mat in range(3):
            I("s_add_u32", T[2], T[1], mat * MAT)
            for half in range(2):
                I("buffer_store_dwordx4", V(168 + 8 * mat + 4 * half, 4), self.vL16, self.sWS, T[2], mods=f"offen offset:{half * 1024} sc1")
        a.label(nofw)
        I("s_mul_i32", T[1], self.sH, 1568)
        I("s_mov_b32", M0, L_WPHI)
        I("s_mul_i32", T[2], S(2), 13 * 128)
        I("s_min_u32", T[2], T[2], 401408 - 13 * 128)
        I("v_lshrrev_b32", V(112), 3, lane)
        I("v_and_b32", V(113), 7, lane)
        I("v_lshlrev_b32", V(113), 7, V(113))
        I("v_lshl_add_u32", V(126), V(112), 14, V(113))
        I("s_sub_u32", T[5], self.sOq, 6 * 16384)
        I("buffer_load_dwordx4", self.vL16, self.sWP, T[1], mods="offen lds")
        I("buffer_load_dwordx4", self.vL16, self.sWP, T[1], mods="offen offset:1024 lds")
        I("buffer_load_dword", self.vDummy, V(122), self.sWOA, T[2], mods="offen", nodest=True)
        I("buffer_load_dword", self.vDummy, V(122), self.sWOB, T[2], mods="offen", nodest=True)
        I("buffer_load_dword", self.vDummy, V(126), self.sWS, T[5], mods="offen", nodest=True)
        I("s_lshl_b32", T[1], self.sH, 7)
        I("s_lshl_b32", T[2], self.sGrp, 2)
        I("s_add_u32", T[1], T[1], T[2])
        I("s_add_u32", T[1], T[1], WS_FWF)
        I("s_cmp_ge_u32", self.sGrp, 14)
        I("s_cbranch_scc1", "L_qa")
        a.wait(vm=5)
        I("s_mov_b64", EXEC, 1)
        I("buffer_store_dword", self.vT, OFF, self.sWS, T[1], mods="sc1")
        I("s_mov_b64", EXEC, -1)
        self.fine(5, 4)
        I("s_branch", "L_qa")

    def p_stage(self):
        a, I = self.a, self.I
        T = self.sT
        NPRE = 12
        a.label("L_p")
        a.forget_counters()
        a.wait(lg=0)
        I("s_barrier")
        I("s_cmp_eq_u32", self.sC, 7)
        I("s_cbranch_scc1", "L_pidle")
        slots = [A(64 + 4 * k, 4) for k in range(12)] + [A(168 + 4 * k, 4) for k in range(8)] + [V(128 + 4 * k, 4) for k in range(28)]
        def pwf(hh, n): return slots[(hh % NPRE) * 4 + n]
        def pw_read(hh, n):
            return [lambda: I("ds_read_b64_tr_b16", pwf(hh, n)[0:2], self.vP[n], mods=f"offset:{hh * 4096}"),
                    lambda: I("ds_read_b64_tr_b16", pwf(hh, n)[2:4], self.vP[n], mods=f"offset:{hh * 4096 + 2048}")]
        self.flag_value(T[0])
        I("buffer_load_dword", V(112), self.vPollP, self.sWS, self.sFOp, mods="offen sc1")
        early = self.opt.get("pearly", 7)
        for hh in range(early):
            for n in range(4):
                for f in pw_read(hh, n): f()
        loop, ok = self.lab("ppoll"), self.lab("ppass")
        a.label(loop)
        a.wait(vm=0)
        I("v_cmp_ne_u32", VCC, T[0], V(112))
        I("s_cbranch_vccz", ok)
        I("buffer_load_dword", V(112), self.vPollP, self.sWS, self.sFOp, mods="offen sc1")
        self.budget_branch(loop)
        a.label(ok)
        a.vm = []
        self.stamp()
        def of(hh): return A(4 * hh, 4)
        def oload(hh):
            out = []
            if hh % 4 == 0 and hh:
                out.append(("s", lambda: I("s_add_u32", T[1], self.sOp, hh * 1024)))
            so = self.sOp if hh < 4 else T[1]
            out.append(("v", lambda: I("buffer_load_dwordx4", of(hh), self.vL16, self.sWS, so, mods=f"offen offset:{(hh % 4) * 1024} sc1")))
            return out
        NO = self.opt.get("no", 5)
        for hh in range(NO):
            for _, f in oload(hh): f()
        for hh in range(early, NPRE):
            for n in range(4):
                for f in pw_read(hh, n): f()
        mf, so, sw = [], [], []
        for hh in range(16):
            for n in range(4):
                mf.append((self.vR[4 * n:4 * n + 4], pwf(hh, n), of(hh), self.vR[4 * n:4 * n + 4]))
                if hh + NPRE < 16:
                    sw += [(4 * hh + n, "v", f) for f in pw_read(hh + NPRE, n)]
            if hh + NO < 16: so += [(4 * hh, k, f) for k, f in oload(hh + NO)]
        rest = self.sched(mf, [so, sw])
        assert not rest
        a.flush()
        self.stamp()
        I("s_cmp_eq_u32", self.sL, 4)
        I("s_cbranch_scc1", "L_final")

        a.label("L_pepi")
        xo = V(112, 8)
        for k in range(8):
            I("v_cvt_pk_bf16_f32", xo[k], self.vR[2 * k], self.vR[2 * k + 1])
            if k == 3: I("buffer_store_dwordx4", xo[0:4], self.vL16, self.sWS, self.sXp, mods="offen")
        I("buffer_store_dwordx4", xo[4:8], self.vL16, self.sWS, self.sXp, mods="offen offset:1024")
        sm, sq = V(120, 2), V(122, 2)
        self.pk("v_pk_add_f32", sm, self.vR[0:2], self.vR[2:4])
        self.pk("v_pk_mul_f32", sq, self.vR[0:2], self.vR[0:2])
        self.pk("v_pk_fma_f32", sq, self.vR[2:4], self.vR[2:4], sq)
        for k in range(2, 8):
            self.pk("v_pk_add_f32", sm, sm, self.vR[2 * k:2 * k + 2])
            self.pk("v_pk_fma_f32", sq, self.vR[2 * k:2 * k + 2], self.vR[2 * k:2 * k + 2], sq)
        pr = V(124, 2)
        I("v_add_f32", pr[0], sm[0], sm[1])
        I("v_add_f32", pr[1], sq[0], sq[1])
        x, y = pr[0], pr[1]
        I("s_add_u32", self.sL, self.sL, 1)
        I("s_lshl_b32", T[0], self.sL, 4)
        I("v_permlane32_swap_b32", x, y)
        I("s_or_b32", T[0], T[0], self.sBase)
        I("v_add_f32", x, x, y)
        I("v_mov_b32", y, x)
        I("v_mov_b32", self.vT, T[0])
        I("s_cmp_eq_u32", self.sPhase, 0)
        I("v_permlane16_swap_b32", x, y)
        I("s_cselect_b32", self.sPend, self.sHaloProd, 0)
        I("v_add_f32", x, x, y)
        I("v_mov_b32", y, x)
        I("s_lshl_b32", T[1], self.sC, 10)
        I("s_add_u32", T[1], T[1], self.sHX)
        I("v_permlane32_swap_b32", x, y)
        I("s_mov_b64", EXEC, "0xffff")
        I("buffer_store_dwordx2", pr, self.vStatSt, self.sWS, self.sXSp, mods="offen")
        I("s_mov_b64", EXEC, -1)
        nh, pub = self.lab("nohalo"), self.lab("pub")
        I("s_cmp_eq_u32", self.sPend, 0)
        I("s_cbranch_scc0", nh)
        a.wait(vm=0)
        a.label(pub)
        self.publish(self.sFXp)

        def tail():
            b = self.a
            b.label(nh)
            b.I("s_add_u32", T[1], T[1], 16384)
            b.I("s_mov_b32", self.sT2[0], "0xff00ff00")
            b.I("s_mov_b32", self.sT2[1], "0xff00ff00")
            b.I("s_mov_b64", EXEC, self.sT2)
            b.I("buffer_store_dwordx4", xo[0:4], self.vHp, self.sWS, T[1], mods="offen sc1")
            b.I("buffer_store_dwordx4", xo[4:8], self.vHp, self.sWS, T[1], mods="offen offset:512 sc1")
            b.I("s_lshl_b32", T[1], self.sC, 7)
            b.I("s_add_u32", T[1], T[1], self.sHX)
            b.I("s_add_u32", T[1], T[1], 16384 + 14336)
            b.I("s_mov_b64", EXEC, "0xffff")
            b.I("buffer_store_dwordx2", pr, self.vStatSt, self.sWS, T[1], mods="offen sc1")
            b.I("s_mov_b64", EXEC, -1)
            b.wait(vm=3)
            b.I("s_branch", pub)
        self.tail.append(tail)
        a.label("L_pnext")
        a.flush()
        a.forget_counters()
        self.stamp()
        if self.opt.get("stop"):
            I("s_cmp_eq_u32", self.sL, self.opt["stop"])
            I("s_cbranch_scc1", "L_fin2")
        I("s_cmp_eq_u32", self.sPhase, 1)
        I("s_cbranch_scc1", "L_qb")

        def idle():
            b = self.a
            b.label("L_pidle")
            b.I("s_cmp_eq_u32", self.sL, 4)
            b.I("s_cbranch_scc1", "L_fin2")
            b.I("s_add_u32", self.sL, self.sL, 1)
            b.I("s_branch", "L_pnext")
        self.tail.append(idle)

    def q_poll(self, shadow=None):
        a, I = self.a, self.I
        T = self.sT
        ex, t, pv = V(112), V(113), V(114)
        loop, ok, pend, nopend, slow, again = (self.lab(x) for x in ("qpoll", "qpass", "pend", "nopend", "qslow", "qagain"))
        I("v_mad_u32_u24", ex, self.vExpM, self.sL, self.vExpC)
        if shadow:
            chk = self.lab("qchk")
            I("buffer_load_dword", pv, self.vPollQ, self.sWS, 0, mods="offen sc1")
            shadow()
            I("s_branch", chk)
        a.label(loop)
        I("buffer_load_dword", pv, self.vPollQ, self.sWS, 0, mods="offen sc1")
        if shadow: a.label(chk)
        I("s_cmp_eq_u32", self.sPend, 0)
        a.wait(vm=0)
        I("s_cbranch_scc0", pend)
        a.label(nopend)
        I("v_xor_b32", t, pv, ex)
        I("v_cmp_ne_u32", VCC, 0, t)
        I("s_cbranch_vccnz", slow)
        a.label(ok)
        a.vm = []

        def tail():
            b = self.a
            b.label(pend)
            b.I("s_lshl_b32", T[1], self.sC, 2)
            b.I("s_add_u32", T[1], T[1], self.sFHp)
            self.flag_value(T[0])
            b.I("v_mov_b32", self.vT, T[0])
            b.I("s_mov_b64", EXEC, 1)
            b.I("buffer_store_dword", self.vT, OFF, self.sWS, T[1], mods="offset:128 sc1")
            b.I("s_mov_b64", EXEC, -1)
            b.I("s_mov_b32", self.sPend, 0)
            b.I("s_branch", nopend)
            b.label(slow)
            b.I("s_cmp_eq_u32", self.sMode, 0)
            b.I("s_cbranch_scc1", again + "m")
            b.I("v_not_b32", V(115), self.vPollM)
            b.I("v_and_b32", V(116), t, self.vPollM)
            b.I("v_and_b32", V(115), t, V(115))
            b.I("v_cmp_ne_u32", self.sT2, 0, V(115))
            b.I("v_cmp_eq_u32", VCC, 0, V(116))
            b.nop(2)
            b.I("s_cmp_eq_u64", self.sT2, 0)
            b.I("s_cbranch_scc1", again)
            b.I("s_andn2_b32", T[0], "0xffff0000", VCC_LO)
            b.I("s_cbranch_scc1", again)
            b.I("s_mov_b32", self.sMode, 0)
            b.I("s_add_u32", self.sFXp, self.sFXp, WS_SLOW)
            b.I("s_add_u32", self.sFOq, self.sFOq, WS_SLOW)
            b.I("s_add_u32", self.sFOp, self.sFOp, WS_SLOW)
            b.I("v_lshlrev_b32", V(115), 11, self.vExpM)
            b.I("v_add_u32", self.vPollQ, V(115), self.vPollQ)
            b.I("s_branch", again)
            b.label(again + "m")
            b.I("v_and_b32", V(116), t, self.vPollM)
            b.I("v_cmp_ne_u32", VCC, 0, V(116))
            b.I("s_cbranch_vccz", ok)
            b.label(again)
            self.budget_branch(loop)
        self.tail.append(tail)

    def xload(self, ks):
        out = []
        if ks % 4 == 0:
            out.append(("s", lambda: self.I("s_add_u32", self.sT[1], self.sXq, ks * 1024)))
            out.append(("s", lambda: self.I("s_add_u32", self.sT[2], self.sXq, ks * 1024 + 14336)))
        for t in range(2):
            out.append(("v", lambda t=t: self.I("buffer_load_dwordx4", self.xf(t, ks), self.vL16, self.sWS, self.sT[1 + t],
                                               mods=f"offen offset:{(ks % 4) * 1024} sc1")))
        return out

    def stats_ops(self, T, layer):
        raw, st = self.straw(T), self.st(T)
        t = V(188 + 2 * T, 2)
        ops = []
        def add(*x, **k): ops.append(("w" if ("perm" in x[0] or "rsq" in x[0]) else "v", lambda: self.I(*x, **k)))
        add("v_and_b32", raw[2], raw[2], self.vM3)
        add("v_and_b32", raw[3], raw[3], self.vM3)
        add("v_add_f32", raw[0], raw[0], raw[2])
        add("v_add_f32", raw[1], raw[1], raw[3])
        for step in range(7):
            x, y = raw[0], raw[1]
            if step in (0, 6): add("v_permlane32_swap_b32", x, y)
            elif step in (1, 4): add("v_add_f32", x, x, y)
            elif step in (2, 5): add("v_mov_b32", y, x)
            else: add("v_permlane16_swap_b32", x, y)
        add("v_mul_f32", st[0], f32(-1.0 / 448), raw[0])
        add("v_mul_f32", t[0], f32(1.0 / 448), raw[1])
        add("v_fma_f32", t[0], Neg(st[0]), st[0], t[0])
        add("v_max_f32", t[0], 0, t[0])
        add("v_add_f32", t[0], f32(1e-5), t[0])
        add("v_rsq_f32", st[1], t[0])
        add("v_and_b32", st[2], st[1], self.vMH if T == 2 else self.vM3)
        if T < 2:
            add("v_mul_f32", st[3], f32(LOG2E * (28 ** -0.5 if layer == "A" else 1.0)), st[1])
        return ops

    def colsum_part(self, ad, steps, cs_off):
        a, I = self.a, self.I
        d = V(192, 4)
        def w(k): return self.wf(k % 4)
        for k in range(4):
            for f in self.tr_pair(w(k), ad, steps[k] * 2048): f()
        mf, sw = [], []
        for k in range(len(steps)):
            mf.append((d, w(k), self.aOnes, 0 if k == 0 else d))
            if k + 4 < len(steps): sw += [(k, "v", f) for f in self.tr_pair(w(k), ad, steps[k + 4] * 2048)]
        assert not self.sched(mf, [sw])
        I("v_lshrrev_b32", V(189), 8, self.vL16)
        I("v_lshlrev_b32", V(189), 4, V(189))
        I("s_add_u32", self.sT[0], self.sT[0], L_CS + cs_off)
        I("v_add_u32", V(189), self.sT[0], V(189))
        I("s_mov_b32", self.sT2[0], "0x00010001")
        I("s_mov_b32", self.sT2[1], "0x00010001")
        a.flush()
        I("s_mov_b64", EXEC, self.sT2)
        I("ds_write_b128", V(189), d)
        I("s_mov_b64", EXEC, -1)

    def colsum_b_kv(self):
        self.a.raw("    s_waitcnt vmcnt(8)")
        self.a.pos += 1
        self.I("s_barrier")
        self.I("s_lshl_b32", self.sT[0], self.sW, 6)
        self.colsum_part(self.vQh, list(range(14)), 128)
        self.wphi_gather()

    def colsum_b_q(self):
        I, T = self.I, self.sT
        I("v_lshrrev_b32", V(188), 8, self.vL16)
        I("v_lshlrev_b32", V(188), 4, V(188))
        I("v_add_u32", V(188), L_CS, V(188))
        for ft in range(2, 6):
            I("ds_read_b128", self.cB[4 * ft:4 * ft + 4], V(188), mods=f"offset:{64 * ft}")
        I("s_lshr_b32", T[0], self.sW, 1)
        I("s_lshl_b32", T[0], T[0], 5)
        I("v_xor_b32", V(188), T[0], self.vQ0)
        I("s_and_b32", T[0], self.sW, 1)
        I("s_mul_i32", T[0], T[0], 7 * 2048)
        I("v_add_u32", V(188), T[0], V(188))
        I("s_lshl_b32", T[0], self.sW, 6)
        self.colsum_part(V(188), list(range(7)), 512)

    def colsum_b_q2(self):
        a, I = self.a, self.I
        done = self.lab("cq2")
        a.wait_lg_all()
        I("s_cmp_lg_u32", self.sIt, 0)
        I("s_cbranch_scc1", done)
        I("v_lshrrev_b32", V(188), 8, self.vL16)
        I("v_lshlrev_b32", V(188), 4, V(188))
        I("v_add_u32", V(188), L_CS + 512, V(188))
        for k in range(4):
            I("ds_read_b128", self.cB[4 * (k >> 1):4 * (k >> 1) + 4] if k % 2 == 0 else V(204 + 4 * (k >> 1), 4), V(188), mods=f"offset:{64 * k}")
        for k in range(8): I("v_add_f32", self.cB[k], self.cB[k], V(204 + k))
        a.flush()
        a.label(done)

    def cs_read(self, dst, with_halo):
        I = self.I
        ad = V(188)
        I("v_lshrrev_b32", ad, 8, self.vL16)
        I("v_lshlrev_b32", ad, 4, ad)
        I("v_add_u32", ad, L_CS, ad)
        for ft in range(6):
            I("ds_read_b128", dst[4 * ft:4 * ft + 4], ad, mods=f"offset:{64 * ft}")
        if with_halo:
            I("s_lshl_b32", self.sT[0], self.sW, 6)
            I("v_add_u32", V(189), self.sT[0], ad)
            I("ds_read_b128", self.vCH, V(189), mods="offset:128")

    def wphi_gather(self):
        a, I = self.a, self.I
        j, g, f1, ad, t = V(214), V(215), V(216), V(217), V(218)
        I("v_lshrrev_b32", g, 8, self.vL16)
        I("v_lshrrev_b32", j, 2, self.vPollP)
        I("v_lshrrev_b32", t, 2, j)
        I("v_sub_u32", f1, j, t)
        I("v_add_u32", f1, 16, f1)
        I("v_mul_u32_u24", ad, 4 * 56, g)
        I("v_add_u32", ad, L_WPHI, ad)
        I("v_lshl_add_u32", f1, f1, 1, ad)
        I("v_lshl_add_u32", ad, j, 1, ad)
        I("v_and_b32", t, 3, j)
        I("v_cmp_ne_u32", VCC, 3, t)
        I("v_cndmask_b32", t, 0, -1, VCC)
        I("v_and_b32", j, t, self.vM3)
        for oft, base in enumerate((ad, f1)):
            for e in range(8):
                d = e if e < 4 else 16 + e - 4
                I("ds_read_u16", V(204 + e), base, mods=f"offset:{d * 56}")
            for p in range(4):
                I("v_lshl_or_b32", V(204 + 2 * p), V(205 + 2 * p), 16, V(204 + 2 * p))
                m = (None, self.vM3)[p >> 1] if oft == 0 else (t, j)[p >> 1]
                if m is not None: I("v_and_b32", V(204 + 2 * p), V(204 + 2 * p), m)
                I("v_accvgpr_write_b32", self.aWphi[4 * oft + p], V(204 + 2 * p))

    def conv_scalar(self, dst, T, mat, c, scales):
        out = []
        st = self.st(T)
        for f in range(2):
            acc = self.acc(T, 2 * mat + f)
            cc = c[4 * (2 * mat + f):4 * (2 * mat + f) + 4]
            for k in range(4): out.append(lambda acc=acc, cc=cc, k=k: self.I("v_fma_f32", acc[k], cc[k], st[0], acc[k]))
            m = {"r": st[1], "m": st[2]}[scales[f]]
            for k in range(4): out.append(lambda acc=acc, m=m, k=k: self.I("v_mul_f32", acc[k], acc[k], m))
            for p in range(2): out.append(lambda acc=acc, f=f, p=p: self.I("v_cvt_pk_bf16_f32", dst[2 * f + p], acc[2 * p], acc[2 * p + 1]))
        return out

    def q_gemm(self, layer, tail_ops=()):
        a, I = self.a, self.I
        T = self.sT
        isA = layer == "A"
        LOOK = self.opt.get("look", 4)
        for ks in range(2):
            for _, f in self.xload(ks): f()
        a.wait(lg=0)
        I("s_barrier")
        once = self.lab("once")
        I("s_cmp_lg_u32", self.sIt, 0)
        I("s_cbranch_scc1", once)
        nvm = len(a.vm)
        if isA:
            self.cs_read(self.cA, True)
            for n in range(4): I("ds_read_b64", V(200 + 2 * n, 2), V(0), mods=f"offset:{32 * n}")
            for n in range(4):
                for p in range(2):
                    I("v_lshlrev_b32", self.vR[4 * n + 2 * p], 16, V(200 + 2 * n + p))
                    I("v_and_b32", self.vR[4 * n + 2 * p + 1], "0xffff0000", V(200 + 2 * n + p))
        else: self.colsum_b_q()
        a.wait_lg_all()
        a.flush()
        assert nvm == len(a.vm)
        a.label(once)
        reads0, writes0 = a.count.get("ds_read_b64_tr_b16", 0), a.count.get("ds_write_b128", 0)
        def bar(n):
            assert a.count["ds_read_b64_tr_b16"] - reads0 == n and not a.lg and a.count.get("ds_write_b128", 0) == writes0
            I("s_barrier")
        for ft in range(6):
            for f in self.qw_read(self.wf(ft), ft, 0): f()
        for _, f in self.xload(2): f()

        G = 12
        mf, sw, sx, sd, sv, sh, stc = [], [], [], [], [], [], []
        for ks in range(14):
            order = (2, 3, 4, 5, 0, 1) if ks == 13 else range(6)
            for ft in order:
                for t in ((1, 0) if ks == 13 else (0, 1)):
                    mf.append((self.acc(t, ft), self.wf(ft), self.xf(t, ks), 0 if ks == 0 else self.acc(t, ft)))
                if ks < 13:
                    sw += [(len(mf) - 1, "v", f) for f in self.qw_read(self.wf(ft), ft, ks + 1)]
        for k in range(3, 14):
            gap = 0 if k == 3 else max(6, G * (k - LOOK))
            xl = self.xload(k)
            sx += [(gap, kind, f) for kind, f in xl[:-1]] + [(gap + 4, "v", xl[-1][1])]
            if k == 5:
                for t in range(2):
                    for q in range(2):
                        sx.append((G + 6 + 2 * (2 * t + q), "v", lambda t=t, q=q: I(
                            "buffer_load_dwordx2", self.straw(t)[2 * q:2 * q + 2], self.vStat, self.sWS, self.sXSq,
                            mods=f"offen offset:{t * 1024 + 512 * q} sc1")))
        s0, s1 = self.stats_ops(0, layer), self.stats_ops(1, layer)
        sv += [(G * 4, k, f) for p in zip(s0, s1) for k, f in p]
        sf = []
        if self.opt.get("fine") == (1 if isA else 2):
            sf = [(G * 2 * i, "s", lambda i=i: self.fine(1 if isA else 2, i)) for i in range(7)]
        nd = 0
        for k, f in self.pw_dma(self.sWOA if isA else self.sWOB, (0, 1, 2) if isA else (2, 3)):
            sd.append((G * 9 + 6 + 5 * nd, k, f))
            nd += k == "v"
        if isA:
            HF, HC = self.opt.get("hf", 4), self.opt.get("hc", 8)
            hv, hx, fv = V(194), V(195), V(196)
            def check(reg, first, gap, shift):
                slow, back = self.lab("hslow"), self.lab("hback")
                out = [(first, "v", lambda: I("buffer_load_dword", reg, self.vPollH, self.sWS, 0, mods="offen sc1")),
                       (gap, "v", lambda: I("v_cmp_ne_u32", VCC, hx, reg))]
                if shift: out.append((gap, "s", lambda: I("s_lshr_b64", VCC, VCC, 16)))
                def br():
                    I("s_cbranch_scc1" if shift else "s_cbranch_vccnz", slow)
                    a.label(back)
                out.append((gap, "s", br))
                def tail():
                    b = self.a
                    b.label(slow)
                    b.I("s_sub_u32", self.sBudget, self.sBudget, 1)
                    b.I("s_cbranch_scc1", "L_end")
                    b.I("buffer_load_dword", reg, self.vPollH, self.sWS, 0, mods="offen sc1")
                    b.wait(vm=0)
                    b.I("v_cmp_ne_u32", VCC, hx, reg)
                    if shift: b.I("s_lshr_b64", VCC, VCC, 16)
                    b.I("s_cbranch_scc1" if shift else "s_cbranch_vccnz", slow)
                    b.I("s_branch", back)
                self.tail.append(tail)
                return out
            stc = [(2, "v", lambda: I("v_mad_u32_u24", hx, self.vExpHM, self.sL, self.vExpHC))]
            sh += check(hv, G * HF + 8, G * HC, False)
            sh.append((G * HC, "s", lambda: I("s_lshl_b32", T[0], self.sW, 11)))
            sh.append((G * HC, "s", lambda: I("s_add_u32", M0, T[0], L_HX)))
            sh.append((G * HC, "s", lambda: I("s_add_u32", T[0], T[0], self.sHX)))
            for q in range(2):
                sh.append((G * HC, "v", lambda q=q: I("buffer_load_dwordx4", self.vHalo, self.sWS, T[0], mods=f"offen offset:{1024 * q} sc1 lds", tag="halo")))
            sh.append((G * HC, "s", lambda: I("s_add_u32", T[0], self.sHX, 14336)))
            for q in range(2):
                sh.append((G * HC, "v", lambda q=q: I("buffer_load_dwordx2", self.straw(2)[2 * q:2 * q + 2], self.vHaloS, self.sWS, T[0],
                                                     mods=f"offen offset:{512 * q} sc1")))
            sh.append((G * HC, "v", lambda: I("v_add_u32", V(194), L_HX, self.vHp)))
            def hw(k): return A(4 * k, 4)
            shw = []
            for k in range(14): shw += [(G * 8 + 4 * k, "v", f) for f in self.tr_pair(hw(k), self.vQh, k * 2048)]
            sv += [(G * 12, k, f) for k, f in self.stats_ops(2, layer)]
            nb = len(mf) - 5
            sb = [(nb, "s", lambda: a.wait_vm_tag("halo")), (nb, "s", lambda: a.wait(lg=0)), (nb, "s", lambda: bar(168 + 28))]
            sb += [(nb, "v", lambda k=k: I("ds_read_b128", self.hx(k), V(194), mods=f"offset:{512 * k}")) for k in range(14)]
            n0 = len(mf)
            for k in range(14): mf.append((self.hacc, hw(k), self.hx(k), 0 if k == 0 else self.hacc))
            stl = [(n0 - 2, "v", f) for f in tail_ops]
            rest = self.sched(mf, [sf, sw, sx, stc, sh, shw, sb, sd, sv, stl])
        else:
            n0 = len(mf)
            sb = [(n0 - 9, "s", lambda: a.wait(lg=0)), (n0 - 9, "s", lambda: bar(168))]
            stl = [(n0 - 4, "v", f) for f in tail_ops]
            rest = self.sched(mf, [sf, sw, sx, stc, sb, sd, sv, stl])
        return rest

    def ln(self, acc, c, st, scale):
        for p in range(2):
            self.pk("v_pk_fma_f32", acc[2 * p:2 * p + 2], c[2 * p:2 * p + 2], st[0:2], acc[2 * p:2 * p + 2], by=0)
        if scale == "r":
            for p in range(2): self.pk("v_pk_mul_f32", acc[2 * p:2 * p + 2], acc[2 * p:2 * p + 2], st[0:2], by=1)
        elif scale == "m":
            for p in range(2): self.pk("v_pk_mul_f32", acc[2 * p:2 * p + 2], acc[2 * p:2 * p + 2], st[2:4], by=0)
        elif scale == "e":
            self.pk("v_pk_fma_f32", acc[0:2], acc[0:2], st[2:4], self.vE0, by=0)
            self.pk("v_pk_mul_f32", acc[2:4], acc[2:4], st[2:4], by=0)

    def cvt(self, dst, src):
        for p in range(src.cnt // 2):
            self.I("v_cvt_pk_bf16_f32", dst[p], src[2 * p], src[2 * p + 1])

    def conv(self, dst, T, mat, c, scales):
        for f in range(2):
            ft = 2 * mat + f
            self.ln(self.acc(T, ft), c[4 * ft:4 * ft + 4], self.st(T), scales[f])
        for f in range(2):
            self.cvt(dst[2 * f:2 * f + 2], self.acc(T, 2 * mat + f))

    def o_finish(self, o, den, of, in_drain, after):
        a, I = self.a, self.I
        T = self.sT
        I("s_add_u32", T[1], self.sOq, 16384)
        self.flag_value(T[0])
        for t in range(2): I("v_rcp_f32", den[t][0], den[t][0])
        I("v_mov_b32", self.vT, T[0])
        for t in range(2):
            for p in range(4): self.pk("v_pk_mul_f32", o[t][2 * p:2 * p + 2], o[t][2 * p:2 * p + 2], den[t][0:2], by=0)
            self.cvt(of[t], o[t])
            I("buffer_store_dwordx4", of[t], self.vL16, self.sWS, T[1] if t else self.sOq, mods="offen")
        self.fine(getattr(self, "fin_region", 0) or -1, 6)
        self.fin_region = 0
        if in_drain: in_drain()
        a.wait(vm=0)
        self.publish(self.sFOq)
        self.stamp()
        if after: after()

    def qa_stage(self):
        a, I = self.a, self.I
        a.label("L_qa")
        a.forget_counters()
        self.it_b = 1
        self.q_poll(lambda: self.b_to_a(range(7, 21)))
        self.stamp()
        kf = [V(196, 4), V(200, 4)]
        qf = [V(204, 4), V(208, 4)]
        vp = [V(212, 4), V(216, 4)]
        hp = V(220, 2)
        tail_ops = self.conv_scalar(kf[1], 1, 1, self.cA, ("r", "m"))
        tail_ops.append(lambda: I("ds_write_b128", self.vKrd, kf[1], mods="offset:1024"))
        rest = self.q_gemm("A", tail_ops)
        for f in rest: f()
        self.stamp()
        late = [f for _, f in self.pw_dma(self.sWOA, (3,))]
        self.conv(vp[1], 1, 2, self.cA, ("r", "r"))
        I("ds_write_b128", self.vEXW, vp[1], mods="offset:2048")
        self.ln(self.hacc, self.vCH, self.st(2), "m")
        self.cvt(hp, self.hacc)
        I("ds_write_b64", self.vHW, hp)
        self.conv(vp[0], 0, 2, self.cA, ("r", "r"))
        I("ds_write_b128", self.vEXW, vp[0], mods="offset:1024")
        self.conv(qf[0], 0, 0, self.cA, (None, None))
        self.fine(4, 0)
        a.wait(lg=0)
        I("s_barrier")
        self.fine(4, 1)
        kprev = V(222, 4)
        vt = [V(226, 6), V(232, 6)]
        I("ds_read_b128", kprev, self.vKrd)
        for f in range(2):
            for i in range(3):
                I("ds_read_b64_tr_b16", vt[f][2 * i:2 * i + 2], self.vEXRa, mods=f"offset:{1024 * i + 8 * f}")
        self.conv(kf[0], 0, 1, self.cA, ("r", "m"))
        self.conv(qf[1], 1, 0, self.cA, (None, None))
        s = [V(112, 8), V(120, 8)]
        self.mfma(s[1][4:8], kf[1], qf[1], self.bCur)
        self.mfma(s[1][0:4], kf[0], qf[1], self.bPrev)
        self.mfma(s[0][4:8], kf[0], qf[0], self.bCur)
        self.mfma(s[0][0:4], kprev, qf[0], self.bPrev0)
        self.fine(4, 2)
        a.wait(lg=0)
        I("s_barrier")
        for f in late[:3]: f()
        m = V(128, 2)
        for t in (1, 0):
            I("v_max3_f32", m[t], s[t][4], s[t][5], s[t][6])
            I("v_max3_f32", m[t], m[t], s[t][7], s[t][0])
            I("v_max3_f32", m[t], m[t], s[t][1], s[t][2])
            I("v_max_f32", m[t], m[t], s[t][3])
        self.allreduce_pairs([("v_max_f32", m[0], m[1])])
        late[3]()
        nm = [V(130, 2), V(132, 2)]
        for t in range(2):
            I("v_mul_f32", nm[t][0], m[t], self.st(t)[3])
        for t in range(2):
            for p in range(4):
                self.I("v_pk_fma_f32", s[t][2 * p:2 * p + 2], s[t][2 * p:2 * p + 2], self.st(t)[2:4], nm[t],
                       mods="op_sel:[0,1,0] op_sel_hi:[1,1,0] neg_lo:[0,0,1] neg_hi:[0,0,1]")
        self.fine(4, 3)
        pf = [V(136, 4), V(140, 4)]
        o = [V(144, 8), V(152, 8)]
        sm = [V(160, 4), V(164, 4)]
        late[4]()
        for k in range(8): I("v_exp_f32", s[0][k], s[0][k])
        late[5]()
        for k in range(2): I("v_exp_f32", s[1][k], s[1][k])
        self.cvt(pf[0], s[0])
        for k in range(2, 4): I("v_exp_f32", s[1][k], s[1][k])
        self.mfma(sm[0], self.aOnes, pf[0], 0)
        I("v_exp_f32", s[1][4], s[1][4])
        self.mfma(o[0][0:4], vt[0][0:4], pf[0], 0)
        I("v_exp_f32", s[1][5], s[1][5])
        self.mfma(o[0][4:8], vt[1][0:4], pf[0], 0)
        for k in range(6, 8): I("v_exp_f32", s[1][k], s[1][k])
        self.cvt(pf[1], s[1])
        self.mfma(sm[1], self.aOnes, pf[1], 0)
        for f in range(2):
            self.mfma(o[1][4 * f:4 * f + 4], vt[f][2:6], pf[1], 0)
        self.fine(4, 4)
        self.fine(4, 5)
        self.fin_region = 4
        self.o_finish(o, sm, [V(168, 4), V(172, 4)], lambda: self.a_to_b(((), (1,))), lambda: self.a_to_b(((1, 2), ())))
        I("s_mov_b32", self.sPhase, 1)
        a.flush()
        I("s_branch", "L_p")

    def phi(self, src, dst, extra=(), done=None):
        a, I = self.a, self.I
        rest = list(extra)
        def more(n=1):
            for _ in range(n):
                if rest: rest.pop(0)()
        p = [V(120, 8), V(128, 8)]
        for t in range(2):
            for oft in range(2):
                self.mfma(p[t][4 * oft:4 * oft + 4], self.aWphi[4 * oft:4 * oft + 4], src[t], 0)
        kk = [V(204, 2), V(206, 2)]
        bb = [V(208, 2), V(210, 2)]
        for t in range(2):
            I("v_mov_b32", kk[t][0], self.st(t)[3])
            I("v_sub_f32", kk[t][1], 0, self.st(t)[3])
        more(3)
        mx, mn = V(188, 2), V(190, 2)
        for t in range(2):
            for k in range(3):
                if k == 0:
                    I("v_max3_f32", mx[t], p[t][0], p[t][1], p[t][2])
                    I("v_min3_f32", mn[t], p[t][0], p[t][1], p[t][2])
                else:
                    I("v_max3_f32", mx[t], mx[t], p[t][2 * k + 1], p[t][2 * k + 2])
                    I("v_min3_f32", mn[t], mn[t], p[t][2 * k + 1], p[t][2 * k + 2])
        self.fine(self.phi_region or -1, 1)
        self.allreduce_pairs([("v_max_f32", mx[0], mx[1]), ("v_min_f32", mn[0], mn[1])])
        for t in range(2):
            I("v_mul_f32", bb[t][0], mx[t], kk[t][1])
            I("v_mul_f32", bb[t][1], mn[t], kk[t][0])
        e = [V(144, 14), V(158, 14)]
        for i in range(7):
            for t in range(2):
                self.pk("v_pk_fma_f32", e[t][2 * i:2 * i + 2], p[t][(i & ~1):(i & ~1) + 2], kk[t], bb[t], bx=i & 1)
        self.fine(self.phi_region or -1, 2)
        for i in range(14):
            for t in range(2): I("v_exp_f32", e[t][i], e[t][i])
            more()
        sm = [V(188, 2), V(190, 2)]
        for t in range(2): self.pk("v_pk_add_f32", sm[t], e[t][0:2], e[t][2:4])
        for i in range(2, 7):
            for t in range(2): self.pk("v_pk_add_f32", sm[t], sm[t], e[t][2 * i:2 * i + 2])
            more()
        self.fine(self.phi_region or -1, 3)
        self.allreduce_pairs([("v_add_f32", sm[0][0], sm[0][1]), ("v_add_f32", sm[1][0], sm[1][1])])
        for t in range(2):
            for k in range(2): I("v_rcp_f32", sm[t][k], sm[t][k])
        for t in range(2):
            more()
            for i in range(7):
                self.pk("v_pk_mul_f32", e[t][2 * i:2 * i + 2], e[t][2 * i:2 * i + 2], sm[t])
                if i == 3: more()
            for s in range(2):
                more()
                for q in range(4):
                    I("v_cvt_pk_bf16_f32", dst[t][s][q], e[t][4 * q + s], e[t][4 * q + 2 + s] if q < 3 else 0)
                if done: done(t, s)
        more(99)

    def qb_stage(self):
        a, I = self.a, self.I
        T = self.sT
        a.label("L_qb")
        self.q_poll(lambda: self.a_to_b(((0,), (2, 0)), self.colsum_b_kv))
        self.stamp()
        rest = self.q_gemm("B")
        for f in rest: f()
        self.stamp()
        kf = qf = [V(196, 4), V(200, 4)]
        vp = [V(212, 4), V(216, 4)]
        exw = V(220)
        I("v_subrev_u32", exw, L_EXV - L_PH, self.vEXW)
        for t in (1, 0): self.conv(kf[t], t, 1, self.cB, (None, None))
        for t in (1, 0):
            self.conv(vp[t], t, 2, self.cB, ("r", "e"))
            I("ds_write_b128", exw, vp[t], mods=f"offset:{16384 + 1024 * t}")
        self.fine(3, 0)
        self.phi_region = 3
        ph = [[V(232, 4), V(236, 4)], [V(224, 4), V(228, 4)]]
        self.phi(kf, ph, done=lambda t, s: I("ds_write_b128", exw, ph[t][s], mods=f"offset:{8192 * s + 1024 * t}"))
        self.phi_region = 0
        self.fine(3, 4)
        a.wait(lg=0)
        I("s_barrier")
        self.fine(3, 5)
        lo, hi, real, pr = V(184), V(185), V(186), V(187)
        sP = T[4]
        I("s_lshl_b32", sP, self.sW, 14)
        I("s_sub_u32", sP, self.sKVld, sP)
        I("s_add_u32", sP, sP, 3 * 16384)
        def probe(reg): I("buffer_load_dword", reg, self.vProbe, self.sWS, sP, mods="offen offset:12 sc1")
        P1 = self.opt.get("p1", 0)
        if P1 == 0: probe(pr)
        kacc = V(120, 8)
        def fa(k, oft): return A(4 * (k * 2 + oft), 4)
        def fb(k): return A(40 + 4 * k, 4)
        for k in range(4):
            for t in range(2):
                I("ds_read_b64_tr_b16", fb(k)[2 * t:2 * t + 2], self.vKB, mods=f"offset:{(2 * k + t) * 1024}")
            for oft in range(2):
                for t in range(2):
                    I("ds_read_b64_tr_b16", fa(k, oft)[2 * t:2 * t + 2], self.vKA, mods=f"offset:{(2 * k + t) * 1024 + 8 * oft}")
            if k:
                for oft in range(2):
                    self.mfma(kacc[4 * oft:4 * oft + 4], fa(k - 1, oft), fb(k - 1), 0 if k == 1 else kacc[4 * oft:4 * oft + 4])
        for oft in range(2):
            self.mfma(kacc[4 * oft:4 * oft + 4], fa(3, oft), fb(3), kacc[4 * oft:4 * oft + 4])
        self.fine(3, 6)
        if P1 == 1: probe(pr)
        kvp = V(128, 4)
        self.cvt(kvp, kacc)
        I("v_and_b32", kvp[3], "0xffff", kvp[3])
        I("v_or_b32", kvp[3], self.sTag, kvp[3])
        I("buffer_store_dwordx4", kvp, self.vL16, self.sWS, self.sKVst, mods="offen sc1")
        self.stamp()
        a.wait(lg=0)
        I("s_barrier")
        self.colsum_b_q2()
        for t in (1, 0): self.conv(qf[t], t, 0, self.cB, (None, None))
        sO = [S(8 + k) for k in range(16)]
        sM = T[3]
        def gf(p): return A(4 * p, 4)
        def ready(reg):
            I("v_xor_b32", reg, self.sTag, reg)
            I("v_cmp_ge_u32", VCC, "0xffff", reg)
            I("v_lshrrev_b32", hi, 7, self.vL16)
            I("s_and_b32", sM, VCC_LO, "0xffff")
        def touch():
            for half in range(2):
                t = V(188 + half)
                if half:
                    I("s_lshr_b32", T[0], sM, 8)
                    I("v_add_u32", V(190), 8192, self.vTA)
                    I("v_and_b32", V(190), "0x3fff", V(190))
                I("v_lshrrev_b32", t, hi, T[0] if half else sM)
                I("v_and_b32", t, 1, t)
                I("v_cmp_eq_u32", VCC, 1, t)
                I("v_mov_b32", t, OOB)
                I("v_cndmask_b32", t, t, V(190) if half else self.vTA, VCC)
                I("buffer_load_dword", self.vDummy, t, self.sWS, self.sKVld, mods="offen sc1", nodest=True)
        I("v_add_u32", real, self.sKVld, self.vProbe)
        ready(pr)
        P2 = self.opt.get("p2", 0)
        if P2 == 0: probe(lo)
        touch()
        ex = [lambda p=p: I("v_readlane_b32", sO[p], real, p) for p in range(16)]
        if P2: ex.insert(P2, lambda: probe(lo))
        self.phi(qf, ph, extra=ex)
        self.stamp()
        red = V(176, 8)
        tg = [V(112 + k) for k in range(16)]
        chk, go, slow = self.lab("gchk"), self.lab("ggo"), self.lab("gslow")
        a.label(chk)
        ready(lo)
        I("s_cmp_lg_u32", sM, "0xffff")
        I("s_cbranch_scc1", slow)
        def gload(p): I("buffer_load_dwordx4", gf(p), self.vL16, self.sWS, sO[p], mods="offen sc1")
        NG = self.opt.get("ng", 6)
        for p in range(NG): gload(p)
        I("v_add_u32", exw, L_KVX - L_EXK, self.vKrd)
        I("v_add_u32", V(221), L_KVX, self.vL16)
        mf, sc, sg = [], [], []
        for p in range(16):
            mf.append((red[0:4], self.aSel[2:6], gf(p), 0 if p == 0 else red[0:4]))
            mf.append((red[4:8], self.aSel[0:4], gf(p), 0 if p == 0 else red[4:8]))
            if p + NG < 16: sg.append((2 * p, "v", lambda p=p: gload(p + NG)))
            sc.append((2 * p, "v", lambda p=p: I("v_accvgpr_read_b32", tg[p], gf(p)[3])))
            if p == 1:
                sc.append((2 * p, "v", lambda: I("v_min_u32", lo, tg[0], tg[1])))
                sc.append((2 * p, "v", lambda: I("v_max_u32", hi, tg[0], tg[1])))
            elif p & 1:
                sc.append((2 * p, "v", lambda p=p: I("v_min3_u32", lo, lo, tg[p - 1], tg[p])))
                sc.append((2 * p, "v", lambda p=p: I("v_max3_u32", hi, hi, tg[p - 1], tg[p])))
        rest = self.sched(mf, [sg, sc])
        for f in rest: f()
        I("v_xor_b32", lo, self.sTag, lo)
        I("v_xor_b32", hi, self.sTag, hi)
        I("v_or_b32", lo, lo, hi)
        I("v_cmp_lt_u32", VCC, "0xffff", lo)
        I("s_cbranch_vccnz", slow + "r")
        latep = [f for _, f in self.pw_dma(self.sWOB, (0, 1))]

        def tail():
            b = self.a
            b.label(slow)
            probe(lo)
            touch()
            b.I("s_sub_u32", self.sBudget, self.sBudget, 1)
            b.I("s_cbranch_scc1", "L_end")
            b.wait(vm=2)
            b.flush()
            b.I("s_branch", chk)
            b.label(slow + "r")
            probe(lo)
            b.I("s_sub_u32", self.sBudget, self.sBudget, 1)
            b.I("s_cbranch_scc1", "L_end")
            b.wait(vm=0)
            b.I("s_branch", chk)
        self.tail.append(tail)
        self.stamp()
        kvs = V(112, 4)
        self.cvt(kvs, red)
        I("ds_write_b128", exw, kvs)
        for f in latep[:3]: f()
        a.wait(lg=0)
        I("s_barrier")
        kvf = [[A(0, 4), A(4, 4)], [A(8, 4), A(12, 4)]]
        zf = [A(16, 4), A(20, 4)]
        for s in range(2):
            I("ds_read_b128", zf[s], self.vZ, mods=f"offset:{2048 * s}")
            for dt in range(2):
                I("ds_read_b128", kvf[s][dt], V(221), mods=f"offset:{(2 * s + dt) * 1024}")
        for f in latep[3:5]: f()
        o = [V(144, 8), V(152, 8)]
        dn = [V(160, 4), V(164, 4)]
        mf = []
        for s in range(2):
            for t in range(2): mf.append((dn[t], zf[s], ph[t][s], 0 if s == 0 else dn[t]))
            for t in range(2):
                for dt in range(2):
                    mf.append((o[t][4 * dt:4 * dt + 4], kvf[s][dt], ph[t][s], 0 if s == 0 else o[t][4 * dt:4 * dt + 4]))
        for f in self.sched(mf, [[(2 * k, "v", f) for k, f in enumerate(latep[5:])]]): f()
        I("s_mov_b32", self.sPhase, 0)
        I("s_add_u32", self.sIt, self.sIt, 1)
        I("s_add_u32", self.sKVst, self.sKVst, 0x100000)
        I("s_add_u32", self.sKVld, self.sKVld, 0x100000)
        I("s_add_u32", self.sHX, self.sHX, 0x40000)
        for t in range(2): I("v_add_f32", dn[t][0], f32(1e-6), dn[t][0])
        if self.opt.get("wb"):
            skipw = self.lab("nowb")
            I("s_cmp_eq_u32", self.sIt, 2)
            I("s_cselect_b32", T[0], self.sC, 0)
            I("s_cmp_lg_u32", T[0], 7)
            I("s_cbranch_scc1", skipw)
            I("buffer_wbl2", mods="sc1", untracked=True)
            a.label(skipw)
        self.it_b = 1
        self.o_finish(o, dn, [V(116, 4), V(120, 4)], lambda: self.b_to_a(range(7)), None)
        a.flush()
        I("s_branch", "L_p")

    def final(self):
        a, I = self.a, self.I
        T = self.sT
        a.label("L_final")
        a.forget_counters()
        xo = V(112, 8)
        I("s_lshl_b32", T[1], self.sW, 11)
        I("s_add_u32", T[1], T[1], L_SP)
        I("v_add_u32", V(120), T[1], self.vL16)
        I("s_add_u32", T[2], self.sX0o, 8 * 1792)
        for n in range(4):
            self.cvt(xo[2 * n:2 * n + 2], self.vR[4 * n:4 * n + 4])
            I("ds_write_b64", V(0), xo[2 * n:2 * n + 2], mods=f"offset:{32 * n}")
        a.wait(lg=0)
        for b in range(2): I("ds_read_b128", V(124 + 4 * b, 4), V(120), mods=f"offset:{1024 * b}")
        for b in range(2): I("buffer_store_dwordx4", V(124 + 4 * b, 4), self.vX0d, self.sOUT, T[2] if b else self.sX0o, mods="offen" + ("", " sc1", " nt", " sc0 sc1")[self.opt.get("outfl", 0)])
        a.label("L_fin2")
        self.stamp()
        if self.opt.get("stamps"):
            I("s_mov_b32", T[7], 63)
            self.stamp(real=True)
            I("s_lshl_b32", T[0], S(2), 2)
            I("s_add_u32", T[0], T[0], self.sW)
            I("s_lshl_b32", T[0], T[0], 8)
            I("s_add_u32", T[0], T[0], WS_STAMP)
            I("v_lshrrev_b32", V(120), 2, self.vL16)
            if self.opt.get("fine") == 5:
                for k in range(7):
                    I("v_readlane_b32", T[1], V(240), k)
                    I("v_writelane_b32", self.vStamp, T[1], 40 + k)
                I("v_readlane_b32", T[1], V(240), 63)
                I("v_writelane_b32", self.vStamp, T[1], 62)
                I("v_readlane_b32", T[1], self.vStamp, 2)
                I("v_writelane_b32", self.vStamp, T[1], 47)
            I("buffer_store_dword", self.vStamp, V(120), self.sWS, T[0], mods="offen")
        I("s_or_b32", T[0], S(2), self.sW)
        I("s_cmp_lg_u32", T[0], 0)
        I("s_cbranch_scc1", "L_end")
        if self.opt.get("dbg"):
            I("s_load_dwordx2", S(8, 2), S(0, 2), 64)
            a.wait(lg=0)
            self.srd(S(12, 4), S(8, 2), 256)
            I("v_lshrrev_b32", V(120), 2, self.vL16)
            I("v_readlane_b32", T[0], self.vStamp, 0)
            I("v_readlane_b32", T[1], self.vStamp, 62)
            I("v_readlane_b32", T[2], self.vStamp, 63)
            I("s_sub_u32", T[1], T[2], T[1])
            I("v_subrev_u32", V(121), T[0], self.vStamp)
            I("v_writelane_b32", V(121), T[1], 0)
            I("v_readlane_b32", T[0], V(121), 32)
            I("v_writelane_b32", V(121), T[0], 15)
            I("buffer_store_dword", V(121), V(120), S(12, 4), 0, mods="offen")
        if self.opt.get("leak"):
            skip = self.lab("noleak")
            I("v_readlane_b32", T[1], self.vStamp, 62)
            I("v_readlane_b32", T[2], self.vStamp, 63)
            I("v_readlane_b32", T[3], self.vStamp, self.opt.get("leakidx", 0))
            I("v_readlane_b32", T[4], self.vStamp, 0)
            I("s_sub_u32", T[1], T[2], T[1])
            I("s_sub_u32", T[3], T[3], T[4])
            I("s_cmp_lt_u32", T[1], self.opt["leak"])
            I("s_cbranch_scc1", skip)
            I("s_cmp_eq_u32", self.sMode, 0)
            I("s_cbranch_scc1", skip)
            I("v_cvt_f32_u32", V(121), T[3] if self.opt.get("leakidx") else T[1])
            I("v_lshrrev_b32", V(121), 16, V(121))
            a.wait(vm=0)
            I("s_mov_b64", EXEC, 1)
            I("buffer_store_short", V(121), OFF, self.sOUT, 0)
            a.label(skip)
        I("s_add_u32", T[0], self.sNonce, "0x10100")
        I("v_mov_b32", V(120), T[0])
        I("s_mov_b64", EXEC, 1)
        I("buffer_store_dword", V(120), OFF, self.sWS, 0)
        I("s_endpgm")

    def build(self):
        a = self.a
        self.prologue()
        self.p_stage()
        self.qa_stage()
        self.qb_stage()
        self.final()
        done = 0
        while done < len(self.tail):
            a.forget_counters()
            a.pos += 100
            self.tail[done]()
            done += 1
        a.label("L_end")
        a.I("s_endpgm")
        head = open("cdna_kernels/" + NAME[:-7] + ".s.ref").read().split("; Override launch")[0]
        out = head + f"; @launch grid=(256,1,1) block=(256,1,1) lds={LDS_BYTES}\n"
        out += f'.amdgcn_target "amdgcn-amd-amdhsa--gfx950"\n.text\n.globl {NAME}\n.p2align 8\n.type {NAME},@function\n{NAME}:\n'
        out += a.text()
        out += f""".section .rodata,"a"
.p2align 6
.amdhsa_kernel {NAME}
  .amdhsa_next_free_vgpr 512
  .amdhsa_next_free_sgpr 102
  .amdhsa_accum_offset 256
  .amdhsa_group_segment_fixed_size 0
  .amdhsa_kernarg_size 80
  .amdhsa_user_sgpr_count 2
  .amdhsa_user_sgpr_kernarg_segment_ptr 1
  .amdhsa_system_sgpr_workgroup_id_x 1
.end_amdhsa_kernel
"""
        return out


if __name__ == "__main__":
    opt = {}
    path = sys.argv[1]
    for kv in sys.argv[2:]:
        k, v = kv.split("=")
        opt[k] = int(v)
    g = Gen(opt)
    open(path, "w").write(g.build())
    import subprocess
    r = subprocess.run(["clang", "-x", "assembler", "-target", "amdgcn-amd-amdhsa", "-mcpu=gfx950", "-c", path, "-o", "gen_check.o"], capture_output=True, text=True)
    if r.returncode: print(r.stderr[:3000]); sys.exit(1)
    sz = subprocess.run(["llvm-readelf", "-S", "gen_check.o"], capture_output=True, text=True).stdout
    print("text bytes", [int(l.split()[6], 16) for l in sz.splitlines() if " .text" in l],
          "instructions", sum(g.a.count.values()), "nop states", g.a.nops)
```

```python
import sys
import math
import struct
from emit import Asm, V, A, S, VCC, EXEC, M0, OFF, Special

VCC_LO = Special("vcc_lo", [("s", "vcc")])

NAME = "interleave_layers__sliding_local_dilated__linear_kernel_hedgehog__prompt_kernel"


def f32(x):
    return "0x%08x" % struct.unpack("<I", struct.pack("<f", x))[0]


WS_E = 0x0
WS_FX = 0x1000
WS_FO = 0x5000
WS_SLOW = 0x8000
WS_FH = 0x10000
WS_HELLO = 0x11000
WS_FWF = 0x12000
WS_STAMP = 0xC0000
WS_X = 0x100000
WS_XS = 0x2C0000
WS_O = 0x300000
WS_KV = 0x500000
WS_HX = 0x700000
WS_FW = 0x800000
FW_T = 16 * 86016
WS_SIZE = 0xB00000
OOB = 0x7FFF0000

MAT = 28672
L_PW = 86016
L_SP = 151552
L_KVX = L_SP
L_HX = L_SP
L_WPHI = L_SP + 8192
L_CS = L_SP + 10240
L_EXK = L_PW + 49152
L_EXV = L_EXK + 5120
L_PH = L_PW + 40960
LDS_BYTES = 163840

LOG2E = math.log2(math.e)


class Neg:
    def __init__(self, r): self.r = r
    def __str__(self): return "-" + str(self.r)
    def regs(self): return self.r.regs()


class Gen:
    def __init__(self, opt):
        self.opt = opt
        self.a = Asm()
        self.tail = []
        self.uid = 0

    def lab(self, base):
        self.uid += 1
        return f"L_{base}_{self.uid}"

    sX0, sWA, sWOA, sWB, sWOB, sOUT, sWS, sWP = (S(24 + 4 * i, 4) for i in range(8))
    (sGrp, sH, sW, sC, sRh, sBase, sTag, sMode, sIt, sPhase, sL, sBudget, sXq, sXSq, sOq, sXp, sXSp, sOp, sFXp, sFOq,
     sFOp, sHX, sHaloProd, sFHp, sKVst, sKVld, sQWo, sFirst, sPend, sX0o, sNonce, sXcc) = (S(56 + i) for i in range(32))
    sPWc = sX0
    sT = [S(88 + i) for i in range(8)]
    sT2 = S(96, 2)
    sStamp = S(98, 2)
    sFW, sQWl, sPWl, sPWo = S(4), S(5), S(6), S(7)

    vL16, vQ0, vQ1, vQv0, vQv1, vQh = (V(1 + i) for i in range(6))
    vP = [V(7 + i) for i in range(4)]
    vQWd, vX0d, vExpHC, vPollQ, vPollM, vPollP, vEXW, vEXRa, vHW, vM3, vStat = (V(11 + i) for i in range(11))
    vE0 = V(22, 2)
    vHalo, vHaloS, vStatSt, vZ, vExpHM, vExpC, vExpM, vMH = (V(24 + i) for i in range(8))
    vCH = V(32, 4)
    bCur, bPrev, bPrev0 = V(36, 4), V(40, 4), V(44, 4)
    vR = V(48, 16)
    cA, cB = V(64, 24), V(88, 24)
    vTA, vProbe, vHp, vQS = V(241), V(242), V(243), V(244)
    vDummy = V(245)
    vPWd = [V(246 + i) for i in range(4)]
    vKA, vKB, vPollH, vKrd, vStamp = (V(250 + i) for i in range(5))
    vT = V(255)

    aOnes, aSel, aWphi = A(232, 4), A(236, 6), A(242, 8)

    def acc(self, T, ft): return V(112 + (T * 6 + ft) * 4, 4)
    hacc = V(160, 4)
    def straw(self, T): return V(164 + 4 * T, 4)
    def st(self, T): return V(176 + 4 * T, 4)
    def xf(self, T, ks): return A((ks * 2 + T) * 4, 4)
    def hx(self, ks): return A(56 + 4 * ks, 4) if ks < 12 else self.wf(ks - 6)
    def stash(self, i): return A(112 + 4 * i, 4) if i < 14 else A(200 + 4 * (i - 14), 4)
    def wf(self, f): return A(168 + 4 * f, 4)

    def I(self, *x, **k): self.a.I(*x, **k)

    def stamp(self, real=False):
        if not self.opt.get("stamps"):
            return
        a = self.a
        a.I("s_memrealtime" if real or self.opt.get("real") else "s_memtime", self.sStamp)
        a.I("s_mov_b32", M0, self.sT[7])
        a.wait(lg=0)
        a.I("v_writelane_b32", self.vStamp, self.sStamp[0], M0)
        a.I("s_add_u32", self.sT[7], self.sT[7], 1)
        if getattr(self, "fine_pending", False):
            self.fine_pending = False
            for i in range(7): a.I("v_writelane_b32", self.vStamp, S(8 + 2 * i), 40 + i)
            a.I("v_writelane_b32", self.vStamp, self.sStamp[0], 47)

    def fine(self, region, i):
        if self.opt.get("fine") == region and region == 5:
            self.a.raw("    s_memtime s[100:101]")
            self.a.raw("    s_waitcnt lgkmcnt(0)")
            self.a.raw(f"    v_writelane_b32 v240, s100, {i}")
            self.a.pos += 3
            return
        if self.opt.get("fine") == region:
            self.a.raw(f"    s_memtime s[{8 + 2 * i}:{9 + 2 * i}]")
            self.a.pos += 1
            self.fine_pending = True

    def srd(self, dst, src, nbytes):
        self.I("s_mov_b32", dst[0], src[0])
        self.I("s_and_b32", dst[1], src[1], "0xffff")
        self.I("s_mov_b32", dst[2], nbytes)
        self.I("s_mov_b32", dst[3], "0x20000")

    def mfma(self, d, x, y, c):
        self.I("v_mfma_f32_16x16x32_bf16", d, x, y, c)

    def pk(self, op, d, x, y, z=None, bx=None, by=None, bz=None):
        srcs = [(x, bx), (y, by)] + ([(z, bz)] if z is not None else [])
        lo = [0 if b is None else b for _, b in srcs]
        hi = [1 if b is None else b for _, b in srcs]
        mods = []
        if any(lo): mods.append("op_sel:[%s]" % ",".join(map(str, lo)))
        if not all(hi): mods.append("op_sel_hi:[%s]" % ",".join(map(str, hi)))
        self.I(op, d, *[s for s, _ in srcs], mods=" ".join(mods))

    def allreduce_pairs(self, chains):
        for step in range(7):
            for op, x, y in chains:
                if step in (0, 6): self.I("v_permlane32_swap_b32", x, y)
                elif step in (1, 4): self.I(op, x, x, y)
                elif step in (2, 5): self.I("v_mov_b32", y, x)
                else: self.I("v_permlane16_swap_b32", x, y)

    def budget_branch(self, loop):
        self.I("s_sub_u32", self.sBudget, self.sBudget, 1)
        self.I("s_cbranch_scc1", "L_end")
        self.I("s_branch", loop)

    def flag_value(self, dst):
        self.I("s_lshl_b32", dst, self.sL, 4)
        self.I("s_or_b32", dst, dst, self.sBase)

    def publish(self, soff):
        a = self.a
        slow, done = self.lab("pubslow"), self.lab("pubdone")
        a.I("s_cmp_eq_u32", self.sMode, 0)
        a.I("s_cbranch_scc1", slow)
        a.I("s_mov_b64", EXEC, 1)
        a.I("buffer_store_dword", self.vT, OFF, self.sWS, soff)
        a.label(done)
        a.I("s_mov_b64", EXEC, -1)

        def tail():
            b = self.a
            b.label(slow)
            b.I("buffer_wbl2", mods="sc1")
            b.wait(vm=0)
            b.I("s_mov_b64", EXEC, 1)
            b.I("buffer_store_dword", self.vT, OFF, self.sWS, soff, mods="sc1")
            b.I("s_branch", done)
        self.tail.append(tail)

    def sched(self, mfmas, streams):
        a = self.a
        streams = [list(s) for s in streams]
        for i, m in enumerate(mfmas):
            self.mfma(*m)
            scalar_free = True
            if i + 1 < len(mfmas):
                n = mfmas[i + 1]
                if a.prewait(n[1], n[2]): scalar_free = False
            if scalar_free:
                for s in streams:
                    if s and s[0][0] <= i and s[0][1] == "s":
                        s.pop(0)[2]()
                        break
            slots = 2
            progress = True
            while slots > 0 and progress:
                progress = False
                for s in streams:
                    if not s or s[0][0] > i: continue
                    cost = 2 if s[0][1] == "w" else 1
                    if cost <= slots:
                        s.pop(0)[2]()
                        slots -= cost
                        progress = True
                        break
        return [it[2] for s in streams for it in s]

    def fw_dma(self, mats):
        out = []
        for mat in mats:
            for i in range(7):
                if i % 4 == 0:
                    out.append(("s", lambda mat=mat, i=i: self.I("s_add_u32", M0, self.sQWl, mat * MAT + i * 1024)))
                    out.append(("s", lambda mat=mat, i=i: self.I("s_add_u32", self.sT[6], self.sFW, mat * MAT + i * 1024)))
                out.append(("v", lambda i=i: self.I("buffer_load_dwordx4", self.vL16, self.sWS, self.sT[6],
                                                   mods=f"offen offset:{(i % 4) * 1024} lds", untracked=True)))
        return out

    def piece(self, n): return f"offset:{(n // 7) * MAT + (n % 7) * 1024}"

    def a_to_b(self, mats, extra0=None):
        a, I = self.a, self.I
        second, done = self.lab("ab2"), self.lab("abdone")
        if not mats[0] and not mats[1]: return
        I("s_cmp_lg_u32", self.sIt, 0)
        I("s_cbranch_scc1" if mats[0] else "s_cbranch_scc0", (second if mats[1] else done) if mats[0] else done)
        if not mats[0]:
            for mat in mats[1]:
                for n in range(7 * mat, 7 * mat + 7): I("ds_write_b128", self.vQS, self.stash(n), mods=self.piece(n))
            a.label(done)
            return
        import copy
        keep = copy.deepcopy((a.lg, a.w_valu, a.w_trans, a.w_mfma, a.r_mfmac, a.w_vsgpr, a.r_store, a.pos))
        for mat in mats[0]:
            for n in range(7 * mat, 7 * mat + 7): I("ds_read_b128", self.stash(n + 1), self.vQS, mods=self.piece(n))
        a.wait(lg=0)
        for _, f in self.fw_dma(mats[0]): f()
        if extra0: extra0()
        a.wait_lg_all()
        a.flush()
        if mats[1]: I("s_branch", done)
        a.label(second)
        a.lg, a.w_valu, a.w_trans, a.w_mfma, a.r_mfmac, a.w_vsgpr, a.r_store, a.pos = keep
        for mat in mats[1]:
            for n in range(7 * mat, 7 * mat + 7): I("ds_write_b128", self.vQS, self.stash(n), mods=self.piece(n))
        a.label(done)

    def b_to_a(self, pieces):
        a, I = self.a, self.I
        done = self.lab("badone")
        a.wait_lg_all()
        I("s_cmp_lg_u32", self.sIt, self.it_b)
        I("s_cbranch_scc1", done)
        for n in pieces:
            I("ds_read_b128", self.stash(n), self.vQS, mods=self.piece(n))
            I("ds_write_b128", self.vQS, self.stash(n + 1), mods=self.piece(n))
        a.label(done)

    def pw_dma(self, srd, which):
        out = []
        for i in which:
            out.append(("s", lambda i=i: self.I("s_add_u32", M0, self.sPWl, i * 16384)))
            out.append(("s", lambda i=i: self.I("s_add_u32", self.sT[5], self.sPWo, 4 * 28 * i * 896)))
            for b in range(4):
                out.append(("v", lambda b=b: self.I("buffer_load_dwordx4", self.vPWd[b], srd, self.sT[5], mods=f"offen offset:{b * 1024} lds")))
        return out

    def raw_block(self, ks):
        for half in range(2):
            self.I("s_add_u32", M0, self.sT[4], ks * 2048 + half * 1024)
            self.I("s_add_u32", self.sT[6], self.sQWo, (32 * ks + 16 * half) * 2688)
            self.I("buffer_load_dwordx4", self.vQWd, self.sWA, self.sT[6], mods="offen lds", tag=f"raw{ks}")

    def tr_pair(self, dst, base, off):
        return [lambda: self.I("ds_read_b64_tr_b16", dst[0:2], base, mods=f"offset:{off}"),
                lambda: self.I("ds_read_b64_tr_b16", dst[2:4], base, mods=f"offset:{off + 1024}")]

    def qw_read(self, dst, ft, ks):
        base = (self.vQ0, self.vQ1, self.vQ0, self.vQ1, self.vQv0, self.vQv1)[ft]
        return self.tr_pair(dst, base, (MAT if ft in (2, 3) else 0) + ks * 2048)

    def bg(self, n=1):
        if self.bg_next >= self.bg_max: return
        skip = self.lab("bg")
        self.I("s_cmp_eq_u32", self.sW, 3)
        self.I("s_cbranch_scc1", skip)
        for _ in range(n):
            if self.bg_next < self.bg_max:
                self.raw_block(self.bg_next)
                self.bg_next += 1
        self.a.label(skip)

    def prologue(self):
        a, I = self.a, self.I
        T = self.sT
        self.bg_next, self.bg_max = 0, self.opt.get("n1", 2)
        I("s_load_dwordx8", S(4, 8), S(0, 2), 0)
        I("s_getpc_b64", S(22, 2))
        a.label("L_pc")
        if self.opt.get("pf0", 47):
            I("v_min_u32", V(113), self.opt.get("pf0", 47), V(0))
            I("v_lshlrev_b32", V(113), 7, V(113))
            I("global_load_dword", self.vDummy, V(113), S(22, 2), mods="offset:128", untracked=True)
        I("s_load_dwordx8", S(12, 8), S(0, 2), 32)
        I("s_load_dwordx2", S(20, 2), S(0, 2), 72)
        if self.opt.get("stamps"):
            I("s_memrealtime", S(100, 2))
            I("s_memtime", self.sStamp)
        I("s_cmp_ge_u32", S(2), 256)
        I("s_cbranch_scc1", "L_end")
        I("v_lshrrev_b32", V(114), 6, V(0))
        I("s_lshr_b32", T[1], S(2), 3)
        I("v_and_b32", V(0), 63, V(0))
        I("v_readfirstlane_b32", self.sW, V(114))
        I("s_lshl_b32", T[0], T[1], 10)
        I("v_and_b32", V(112), 7, V(0))
        I("v_lshl_add_u32", V(112), V(112), 7, T[0])
        I("v_min_u32", V(112), "L_end-L_pc", V(112))
        I("global_load_dword", self.vDummy, V(112), S(22, 2), untracked=True)
        I("s_and_b32", T[0], S(2), 7)
        I("s_and_b32", self.sH, T[1], 15)
        I("s_lshr_b32", T[1], T[1], 4)
        I("s_lshl_b32", T[0], T[0], 1)
        I("s_add_u32", self.sGrp, T[0], T[1])
        I("s_and_b32", self.sC, self.sH, 7)
        I("s_lshr_b32", self.sRh, self.sH, 3)
        lane, j, g, t0, t1, t2 = V(0), V(115), V(116), V(117), V(118), V(119)
        I("s_lshl_b32", T[0], self.sGrp, 3)
        I("s_lshl_b32", T[1], self.sRh, 2)
        I("s_add_u32", T[0], T[0], T[1])
        I("s_add_u32", T[0], T[0], self.sW)
        I("s_and_b32", T[1], T[0], 63)
        I("s_mul_i32", T[1], T[1], 16 * 1792)
        I("s_lshr_b32", T[2], self.sGrp, 3)
        I("s_mul_i32", T[2], T[2], 896)
        I("s_add_u32", T[1], T[1], T[2])
        I("s_lshl_b32", T[2], self.sC, 7)
        I("s_add_u32", self.sX0o, T[1], T[2])
        I("v_lshrrev_b32", t0, 3, lane)
        I("v_mul_u32_u24", t0, 1792, t0)
        I("v_and_b32", t1, 7, lane)
        I("v_lshl_add_u32", self.vX0d, t1, 4, t0)
        I("v_min_u32", t0, 36, lane)
        I("v_lshlrev_b32", V(121), 7, t0)
        I("s_mov_b32", self.sX0[2], 1835008)
        I("s_mov_b32", self.sX0[3], "0x20000")
        I("s_mov_b32", self.sWA[2], 1204224)
        I("s_mov_b32", self.sWA[3], "0x20000")
        I("s_mul_i32", T[1], S(2), 37 * 128)
        I("s_min_u32", T[1], T[1], 1204224 - 37 * 128)
        I("s_sub_u32", T[2], self.sX0o, 3 * 16 * 1792)
        a.wait(lg=0)
        if self.opt.get("fine") == 5: a.raw("    v_writelane_b32 v240, s100, 63")
        self.fine(5, 0)
        I("s_load_dword", self.sNonce, S(20, 2), WS_E)
        for r, p in ((self.sX0, 4), (self.sWA, 6)):
            I("s_mov_b32", r[0], S(p))
            I("s_and_b32", r[1], S(p + 1), "0xffff")
        no3, nox = self.lab("not3"), self.lab("nox0")
        I("s_cmp_lg_u32", self.sW, 3)
        I("s_cbranch_scc1", no3)
        I("s_cmp_eq_u32", self.sC, 7)
        I("s_cbranch_scc1", nox)
        for t in range(4):
            I("s_mov_b32", M0, L_SP + 2048 * t)
            I("s_add_u32", T[5], T[2], t * 16 * 1792)
            I("s_add_u32", T[6], T[2], t * 16 * 1792 + 8 * 1792 - 1024)
            I("buffer_load_dwordx4", self.vX0d, self.sX0, T[5], mods="offen lds")
            I("buffer_load_dwordx4", self.vX0d, self.sX0, T[6], mods="offen offset:1024 lds")
        a.label(nox)
        I("buffer_load_dword", self.vDummy, V(121), self.sWA, T[1], mods="offen", nodest=True)
        a.label(no3)
        I("v_and_b32", j, 15, lane)
        I("v_lshrrev_b32", g, 4, lane)
        I("v_lshlrev_b32", self.vL16, 4, lane)
        I("v_lshrrev_b32", t0, 2, lane)
        I("v_mul_u32_u24", t1, 2688, t0)
        I("v_lshrrev_b32", t0, 3, lane)
        I("v_and_b32", t0, 2, t0)
        I("v_and_b32", t2, 3, lane)
        I("v_xor_b32", t0, t0, t2)
        I("v_lshl_add_u32", self.vQWd, t0, 4, t1)
        I("s_mul_i32", self.sQWo, self.sH, 56)
        I("s_mul_i32", T[1], self.sW, 896)
        I("s_add_u32", self.sQWo, self.sQWo, T[1])
        I("s_mul_i32", T[4], self.sW, MAT)
        for r, p, n in ((self.sWS, 20, WS_SIZE), (self.sWB, 12, 1204224), (self.sWP, 14, 25088), (self.sWOA, 8, 401408),
                        (self.sWOB, 16, 401408), (self.sOUT, 18, 1835008)):
            self.srd(r, S(p, 2), n)
        self.bg()
        I("s_getreg_b32", self.sXcc, "hwreg(HW_REG_XCC_ID)")
        I("s_and_b32", self.sXcc, self.sXcc, 15)
        I("s_lshl_b32", T[1], self.sGrp, 3)
        I("s_lshl_b32", T[2], self.sW, 1)
        I("s_add_u32", T[1], T[1], T[2])
        I("s_mul_i32", self.sXq, T[1], 14336)
        I("s_add_u32", self.sXq, self.sXq, WS_X)
        I("s_lshl_b32", self.sXSq, T[1], 10)
        I("s_add_u32", self.sXSq, self.sXSq, WS_XS)
        I("s_lshl_b32", self.sOq, T[1], 14)
        I("s_lshl_b32", T[2], self.sH, 10)
        I("s_add_u32", self.sOq, self.sOq, T[2])
        I("s_add_u32", self.sOq, self.sOq, WS_O)
        I("s_lshl_b32", T[3], T[1], 7)
        I("s_add_u32", T[3], T[3], WS_FX)
        I("s_mul_i32", self.sXp, T[0], 14336)
        I("s_lshl_b32", T[2], self.sC, 11)
        I("s_add_u32", self.sXp, self.sXp, T[2])
        I("s_add_u32", self.sXp, self.sXp, WS_X)
        I("s_lshl_b32", self.sXSp, T[0], 10)
        I("s_lshl_b32", T[2], self.sC, 7)
        I("s_add_u32", self.sXSp, self.sXSp, T[2])
        I("s_add_u32", self.sXSp, self.sXSp, WS_XS)
        I("s_lshl_b32", self.sOp, T[0], 14)
        I("s_add_u32", self.sOp, self.sOp, WS_O)
        I("s_lshl_b32", self.sFXp, T[0], 7)
        I("s_lshl_b32", T[2], self.sC, 2)
        I("s_add_u32", self.sFXp, self.sFXp, T[2])
        I("s_add_u32", self.sFXp, self.sFXp, WS_FX)
        I("s_lshl_b32", T[1], self.sGrp, 2)
        I("s_add_u32", T[2], T[1], self.sW)
        I("s_lshl_b32", self.sFOq, T[2], 7)
        I("s_lshl_b32", T[2], self.sH, 2)
        I("s_add_u32", self.sFOq, self.sFOq, T[2])
        I("s_add_u32", self.sFOq, self.sFOq, WS_FO)
        I("s_lshr_b32", T[2], T[0], 1)
        I("s_lshl_b32", self.sFOp, T[2], 7)
        I("s_add_u32", self.sFOp, self.sFOp, WS_FO)
        I("s_lshl_b32", self.sHX, self.sGrp, 14)
        I("s_add_u32", self.sHX, self.sHX, WS_HX)
        I("s_lshl_b32", self.sFHp, self.sGrp, 7)
        I("s_add_u32", self.sFHp, self.sFHp, WS_FH)
        I("s_and_b32", T[1], self.sGrp, 7)
        I("s_cmp_eq_u32", T[1], 0)
        I("s_cselect_b32", self.sFirst, 1, 0)
        I("s_cmp_lg_u32", T[1], 7)
        I("s_cselect_b32", T[1], 1, 0)
        I("s_and_b32", T[2], T[0], 7)
        I("s_cmp_eq_u32", T[2], 7)
        I("s_cselect_b32", self.sHaloProd, T[1], 0)
        I("s_lshl_b32", T[1], self.sH, 2)
        I("s_add_u32", T[1], T[1], self.sW)
        I("s_lshl_b32", self.sKVld, T[1], 14)
        I("s_add_u32", self.sKVld, self.sKVld, WS_KV)
        I("s_lshl_b32", T[1], self.sGrp, 10)
        I("s_add_u32", self.sKVst, self.sKVld, T[1])
        I("s_mov_b32", self.sMode, 1)
        I("s_mov_b32", self.sIt, 0)
        I("s_mov_b32", self.sPhase, 0)
        I("s_mov_b32", self.sL, 1)
        I("s_mov_b32", self.sPend, 0)
        I("s_mov_b32", self.sBudget, 400000)
        self.bg()
        I("v_min_u32", t0, 12, lane)
        I("v_lshlrev_b32", V(122), 7, t0)
        I("v_lshlrev_b32", self.vStatSt, 3, j)
        I("v_and_b32", t0, 7, j)
        I("v_lshlrev_b32", t0, 4, t0)
        I("v_lshl_add_u32", self.vHp, g, 7, t0)
        I("v_lshlrev_b32", t0, 7, j)
        I("v_lshl_add_u32", t0, g, 3, t0)
        I("v_add_u32", V(123), L_SP, t0)
        I("s_mul_i32", self.sQWl, self.sW, 7168)
        I("s_mul_i32", self.sFW, self.sH, 86016)
        I("s_add_u32", self.sFW, self.sFW, self.sQWl)
        I("s_add_u32", self.sFW, self.sFW, WS_FW)
        I("s_lshl_b32", self.sPWl, self.sW, 12)
        I("s_add_u32", self.sPWl, self.sPWl, L_PW)
        I("s_mul_i32", self.sPWo, self.sW, 28 * 896)
        I("s_min_u32", T[1], self.sC, 6)
        I("s_lshl_b32", T[1], T[1], 7)
        I("s_add_u32", self.sPWo, self.sPWo, T[1])
        if self.opt.get("stamps"):
            I("s_mov_b32", T[7], 1)
            I("v_mov_b32", self.vStamp, 0)
            I("v_writelane_b32", self.vStamp, self.sStamp[0], 0)
            if self.opt.get("fine") != 5: I("v_writelane_b32", self.vStamp, S(100), 62)
        self.bg()
        a.forget_counters()
        a.smem = {("s", self.sNonce.n)}
        self.fine(5, 1)

        r, cc = V(113), V(124)
        I("s_lshl_b32", T[1], self.sW, 11)
        I("v_add_u32", V(114), T[1], V(123))
        I("v_lshrrev_b32", r, 2, j)
        I("v_and_b32", cc, 3, j)
        I("v_lshl_add_u32", t0, g, 2, r)
        I("v_lshlrev_b32", t1, 3, cc)
        I("v_lshl_add_u32", t2, t0, 6, t1)
        I("v_and_b32", V(125), 1, g)
        I("v_lshl_add_u32", self.vQ0, V(125), 5, t2)
        I("v_xor_b32", self.vQ1, 32, self.vQ0)
        I("v_add_u32", self.vQv0, 2 * MAT, self.vQ0)
        I("v_add_u32", self.vQv1, 2 * MAT, self.vQ1)
        I("s_and_b32", T[1], self.sW, 1)
        I("s_lshl_b32", T[2], T[1], 5)
        I("v_xor_b32", self.vQh, T[2], self.vQ0)
        I("s_lshr_b32", T[2], self.sW, 1)
        I("s_add_u32", T[2], T[2], 1)
        I("s_mul_i32", T[2], T[2], MAT)
        I("v_add_u32", self.vQh, T[2], self.vQh)
        I("v_lshl_add_u32", t2, t0, 7, t1)
        I("v_add_u32", t2, L_PW, t2)
        I("v_lshrrev_b32", V(125), 1, t0)
        I("v_and_b32", V(125), 3, V(125))
        for n in range(4):
            I("v_xor_b32", V(126), n, V(125))
            I("v_lshl_add_u32", self.vP[n], V(126), 5, t2)
        self.bg()
        I("v_lshrrev_b32", V(125), 1, t0)
        I("v_xor_b32", V(125), V(125), cc)
        I("v_and_b32", V(125), 3, V(125))
        I("v_lshlrev_b32", V(125), 4, V(125))
        I("v_lshl_add_u32", V(126), t0, 6, V(125))
        I("s_lshl_b32", T[2], self.sW, 11)
        I("s_add_u32", T[5], T[2], L_EXV)
        I("v_add_u32", self.vEXRa, T[5], V(126))
        I("s_lshr_b32", T[5], self.sW, 1)
        I("s_lshl_b32", T[5], T[5], 13)
        I("s_add_u32", T[5], T[5], L_PH)
        I("v_add_u32", self.vKA, T[5], V(126))
        I("s_lshl_b32", T[5], T[1], 3)
        I("s_add_u32", T[5], T[5], L_PH + 16384)
        I("v_add_u32", self.vKB, T[5], V(126))
        I("v_lshrrev_b32", V(125), 1, j)
        I("v_xor_b32", V(125), V(125), g)
        I("v_and_b32", V(125), 3, V(125))
        I("v_lshlrev_b32", V(125), 4, V(125))
        I("v_lshl_add_u32", V(126), j, 6, V(125))
        I("v_add_u32", V(126), L_EXV, V(126))
        I("v_add_u32", self.vEXW, T[2], V(126))
        I("s_lshl_b32", T[5], self.sW, 10)
        I("v_add_u32", V(125), L_EXK, self.vL16)
        I("v_add_u32", self.vKrd, T[5], V(125))
        I("v_add_u32", self.vQS, self.sQWl, self.vL16)
        I("s_cmp_lt_u32", self.sW, 2)
        I("s_cselect_b64", VCC, -1, 0)
        I("v_cndmask_b32", V(126), V(126), V(125), VCC)
        I("s_lshl_b32", T[5], T[1], 3)
        I("v_add_u32", self.vHW, T[5], V(126))
        self.bg()
        I("v_lshrrev_b32", t0, 3, lane)
        I("v_mul_u32_u24", t1, 896, t0)
        I("v_and_b32", t0, 6, t0)
        I("v_and_b32", t2, 7, lane)
        I("v_xor_b32", t0, t0, t2)
        I("v_lshl_add_u32", self.vPWd[0], t0, 4, t1)
        for b in range(1, 4):
            I("v_add_u32", self.vPWd[b], b * (8 * 896 - 1024), self.vPWd[0])
        I("v_mov_b32", t1, OOB)
        I("v_cmp_gt_u32", VCC, 32, lane)
        I("v_cndmask_b32", self.vPWd[3], t1, self.vPWd[3], VCC)
        I("v_cmp_gt_u32", VCC, 48, lane)
        I("v_cndmask_b32", self.vM3, 0, -1, VCC)
        I("v_cndmask_b32", self.vE0[0], 1.0, 0, VCC)
        I("v_mov_b32", self.vE0[1], 0)
        I("s_cmp_eq_u32", T[1], 1)
        I("s_cselect_b64", VCC, -1, 0)
        I("v_cndmask_b32", self.vMH, -1, self.vM3, VCC)
        I("v_lshl_add_u32", self.vStat, g, 7, self.vStatSt)
        I("s_cmp_eq_u32", self.sFirst, 1)
        I("s_cselect_b64", VCC, -1, 0)
        I("v_cndmask_b32", self.vHalo, self.vL16, t1, VCC)
        I("v_cndmask_b32", self.vHaloS, self.vStat, t1, VCC)
        I("s_or_b32", T[2], self.sGrp, 1)
        I("s_add_u32", T[2], T[2], 1)
        I("v_add_u32", t0, T[2], j)
        I("v_and_b32", t0, 15, t0)
        I("v_lshlrev_b32", self.vProbe, 10, t0)
        I("v_lshrrev_b32", t0, 3, lane)
        I("v_add_u32", t0, T[2], t0)
        I("v_and_b32", t0, 15, t0)
        I("v_lshlrev_b32", t0, 3, t0)
        I("v_and_b32", t2, 7, lane)
        I("v_add_lshl_u32", self.vTA, t0, t2, 7)
        self.bg()
        I("v_lshlrev_b32", self.vZ, 8, g)
        I("v_add_u32", self.vZ, L_KVX + 1024 + 12 * 16, self.vZ)
        I("v_lshlrev_b32", self.vPollP, 2, j)
        I("v_and_b32", t0, 7, lane)
        I("v_min_u32", t0, 6, t0)
        I("v_lshlrev_b32", V(127), 2, t0)
        I("v_min_u32", t0, 13, j)
        I("v_lshlrev_b32", t0, 2, t0)
        I("s_lshl_b32", T[5], self.sH, 7)
        I("s_add_u32", T[5], T[5], WS_FWF)
        I("v_add_u32", t0, T[5], t0)
        I("v_add_u32", t2, self.sFHp, V(127))
        I("s_cmp_eq_u32", self.sFirst, 1)
        I("s_cselect_b32", T[5], 0, 16)
        I("v_cmp_gt_u32", VCC, T[5], lane)
        I("v_cndmask_b32", self.vPollH, t0, t2, VCC)
        I("v_cndmask_b32", self.vExpHM, 0, 16, VCC)
        I("v_cndmask_b32", self.vExpHC, 16, 0, VCC)
        I("v_lshrrev_b32", t2, 3, j)
        I("v_lshl_add_u32", t2, t2, 7, V(127))
        I("v_add_u32", t2, T[3], t2)
        I("s_lshl_b32", T[5], self.sGrp, 7)
        I("s_add_u32", T[5], T[5], WS_HELLO)
        I("v_add_u32", t0, T[5], self.vPollP)
        I("v_and_b32", V(125), 1, g)
        I("v_cmp_eq_u32", VCC, 0, V(125))
        I("v_cndmask_b32", self.vPollQ, t0, t2, VCC)
        I("v_cndmask_b32", self.vPollM, -16, -1, VCC)
        I("v_cndmask_b32", self.vExpM, 0, 16, VCC)
        I("v_mov_b32", t0, self.sXcc)
        I("v_cndmask_b32", self.vExpC, t0, 0, VCC)
        self.bg()
        I("v_mov_b32", V(125), f32(-1e30))
        for rr in range(4):
            I("v_lshl_add_u32", t0, g, 2, rr)
            I("v_sub_u32", t2, j, t0)
            I("v_cmp_gt_u32", VCC, 8, t2)
            I("v_cndmask_b32", self.bCur[rr], V(125), 0, VCC)
            I("v_add_u32", t2, 16, t2)
            I("v_cmp_gt_u32", VCC, 8, t2)
            I("v_cndmask_b32", self.bPrev[rr], V(125), 0, VCC)
        I("s_cmp_eq_u32", self.sW, 0)
        I("s_cselect_b32", T[2], self.sFirst, 0)
        I("s_cmp_eq_u32", T[2], 1)
        I("s_cselect_b64", VCC, -1, 0)
        for rr in range(4):
            I("v_cndmask_b32", self.bPrev0[rr], self.bPrev[rr], V(125), VCC)
        self.bg()
        I("v_mov_b32", t0, "0x3f803f80")
        for k in range(4): I("v_accvgpr_write_b32", self.aOnes[k], t0)
        for k in (0, 1, 4, 5): I("v_accvgpr_write_b32", self.aSel[k], 0)
        I("v_and_b32", V(125), 1, j)
        I("v_lshlrev_b32", V(125), 4, V(125))
        I("v_mov_b32", t0, "0x3f80")
        I("v_lshlrev_b32", t0, V(125), t0)
        I("v_cmp_eq_u32", VCC, r, g)
        I("v_cndmask_b32", t0, 0, t0, VCC)
        I("v_cmp_gt_u32", VCC, 2, cc)
        I("v_cndmask_b32", t2, 0, t0, VCC)
        I("v_cndmask_b32", t0, t0, 0, VCC)
        I("v_accvgpr_write_b32", self.aSel[2], t2)
        I("v_accvgpr_write_b32", self.aSel[3], t0)
        I("v_mov_b32", V(127), V(0))
        I("v_mov_b32", V(0), V(114))
        a.wait(lg=0)
        I("s_add_u32", T[1], self.sNonce, "0x10100")
        I("s_and_b32", self.sBase, T[1], "0xffffff00")
        I("s_and_b32", self.sTag, T[1], "0x3fff0000")
        I("v_or_b32", self.vExpC, self.sBase, self.vExpC)
        I("v_or_b32", self.vExpHC, self.sBase, self.vExpHC)
        self.stamp()
        I("s_cmp_eq_u32", self.sW, 3)
        I("s_cbranch_scc1", "L_s0")
        I("s_barrier")
        self.stamp()

        N1 = self.bg_next
        ad0, ad1 = V(188), V(189)
        d0, d1 = V(192, 4), V(196, 4)
        I("v_add_u32", ad0, T[4], self.vQ0)
        I("v_add_u32", ad1, T[4], self.vQ1)
        a.vm = [(f"raw{ks}", set()) for ks in range(N1) for _ in range(2)]
        AH = self.opt.get("ah", 6)
        nxt = N1
        for ks in range(14):
            while nxt < 14 and nxt <= ks + AH:
                self.raw_block(nxt)
                nxt += 1
            a.wait_vm_tag(f"raw{ks}")
            w0, w1 = self.wf(2 * (ks & 1)), self.wf(2 * (ks & 1) + 1)
            for f in self.tr_pair(w0, ad0, ks * 2048) + self.tr_pair(w1, ad1, ks * 2048): f()
            if ks:
                p0, p1 = self.wf(2 * ((ks - 1) & 1)), self.wf(2 * ((ks - 1) & 1) + 1)
                self.mfma(d0, p0, self.aOnes, 0 if ks == 1 else d0)
                self.mfma(d1, p1, self.aOnes, 0 if ks == 1 else d1)
        self.mfma(d0, self.wf(2), self.aOnes, d0)
        self.mfma(d1, self.wf(3), self.aOnes, d1)
        I("v_lshrrev_b32", ad0, 8, self.vL16)
        I("v_lshlrev_b32", ad0, 4, ad0)
        I("s_lshl_b32", T[0], self.sW, 7)
        I("s_add_u32", T[0], T[0], L_CS)
        I("v_add_u32", ad0, T[0], ad0)
        I("s_mov_b32", self.sT2[0], "0x00010001")
        I("s_mov_b32", self.sT2[1], "0x00010001")
        a.flush()
        I("s_mov_b64", EXEC, self.sT2)
        I("ds_write_b128", ad0, d0)
        I("ds_write_b128", ad0, d1, mods="offset:64")
        I("s_mov_b64", EXEC, -1)
        a.wait(lg=0)
        I("s_branch", "L_qa")
        self.stage0()

    def stage0(self):
        a, I = self.a, self.I
        T = self.sT
        lane = V(127)
        idle, nohalo, pub, nofw = (self.lab(x) for x in ("idle", "nohalo", "pub", "nofw"))
        a.label("L_s0")
        a.forget_counters()
        a.pos += 100
        I("s_or_b32", T[1], self.sBase, 16)
        I("v_mov_b32", self.vT, T[1])
        I("s_or_b32", T[1], self.sBase, self.sXcc)
        I("v_mov_b32", V(112), T[1])
        I("s_lshl_b32", T[1], self.sGrp, 7)
        I("s_lshl_b32", T[2], self.sH, 2)
        I("s_add_u32", T[1], T[1], T[2])
        I("s_add_u32", T[1], T[1], WS_HELLO)
        I("s_mov_b64", EXEC, 1)
        I("buffer_store_dword", V(112), OFF, self.sWS, T[1], mods="sc1")
        I("s_mov_b64", EXEC, -1)
        I("s_cmp_eq_u32", self.sC, 7)
        I("s_cbranch_scc1", idle)
        a.wait(vm=2)
        self.fine(5, 2)
        xo = [V(128 + 8 * t, 8) for t in range(4)]
        pr = [V(160 + 2 * t, 2) for t in range(4)]
        for t in range(4):
            for n in range(4): I("ds_read_b64", xo[t][2 * n:2 * n + 2], V(123), mods=f"offset:{2048 * t + 32 * n}")
        one = V(125)
        I("v_mov_b32", one, "0x3f803f80")
        I("s_sub_u32", T[5], self.sXp, 3 * 14336)
        I("s_sub_u32", T[6], self.sXSp, 3 * 1024)
        for t in range(4):
            I("buffer_store_dwordx4", xo[t][0:4], self.vL16, self.sWS, T[5], mods="offen sc1")
            I("buffer_store_dwordx4", xo[t][4:8], self.vL16, self.sWS, T[5], mods="offen offset:1024 sc1")
            if t < 3: I("s_add_u32", T[5], T[5], 14336)
        for k in range(8):
            for t in range(4):
                I("v_dot2_f32_bf16", pr[t][0], xo[t][k], one, 0 if k == 0 else pr[t][0])
                I("v_dot2_f32_bf16", pr[t][1], xo[t][k], xo[t][k], 0 if k == 0 else pr[t][1])
        self.allreduce_pairs([("v_add_f32", pr[t][0], pr[t][1]) for t in range(4)])
        I("s_mov_b64", EXEC, "0xffff")
        for t in range(4):
            I("buffer_store_dwordx2", pr[t], self.vStatSt, self.sWS, T[6], mods=f"offen offset:{1024 * t} sc1")
        I("s_mov_b64", EXEC, -1)
        I("s_cmp_eq_u32", self.sHaloProd, 0)
        I("s_cbranch_scc1", nohalo)
        I("s_lshl_b32", T[1], self.sC, 10)
        I("s_add_u32", T[1], T[1], self.sHX)
        I("s_add_u32", T[1], T[1], 16384)
        I("s_mov_b32", self.sT2[0], "0xff00ff00")
        I("s_mov_b32", self.sT2[1], "0xff00ff00")
        I("s_mov_b64", EXEC, self.sT2)
        I("buffer_store_dwordx4", xo[3][0:4], self.vHp, self.sWS, T[1], mods="offen sc1")
        I("buffer_store_dwordx4", xo[3][4:8], self.vHp, self.sWS, T[1], mods="offen offset:512 sc1")
        I("s_lshl_b32", T[1], self.sC, 7)
        I("s_add_u32", T[1], T[1], self.sHX)
        I("s_add_u32", T[1], T[1], 16384 + 14336)
        I("s_mov_b64", EXEC, "0xffff")
        I("buffer_store_dwordx2", pr[3], self.vStatSt, self.sWS, T[1], mods="offen sc1")
        I("s_mov_b64", EXEC, -1)
        a.label(nohalo)
        a.flush()
        I("v_and_b32", V(126), 3, lane)
        I("v_lshlrev_b32", V(126), 7, V(126))
        I("v_lshrrev_b32", V(113), 2, lane)
        I("v_lshl_add_u32", V(126), V(113), 15, V(126))
        I("s_sub_u32", T[2], self.sFXp, 3 * 128)
        I("v_add_u32", V(126), T[2], V(126))
        I("s_lshl_b32", T[1], self.sC, 2)
        I("s_add_u32", T[1], T[1], self.sFHp)
        I("s_add_u32", T[1], T[1], 128)
        I("v_writelane_b32", V(126), T[1], 8)
        I("s_lshl_b32", T[1], self.sHaloProd, 8)
        I("s_or_b32", self.sT2[0], T[1], "0xff")
        I("s_mov_b32", self.sT2[1], 0)
        if not self.opt.get("late_release"): I("s_barrier")
        a.wait(vm=0)
        I("s_mov_b64", EXEC, self.sT2)
        I("buffer_store_dword", self.vT, V(126), self.sWS, 0, mods="offen sc1")
        I("s_mov_b64", EXEC, -1)
        if self.opt.get("late_release"): I("s_barrier")
        self.fine(5, 3)
        I("s_branch", pub)
        a.label(idle)
        I("s_barrier")
        a.label(pub)
        self.stamp()
        a.forget_counters()
        I("s_cmp_ge_u32", self.sGrp, 14)
        I("s_cbranch_scc1", nofw)
        I("s_mul_i32", T[2], self.sH, 56)
        I("s_mul_i32", T[1], self.sGrp, 32 * 2688)
        I("s_add_u32", T[2], T[2], T[1])
        for mat in range(3):
            for half in range(2):
                I("s_add_u32", T[1], T[2], mat * 896 + half * 16 * 2688)
                I("buffer_load_dwordx4", V(168 + 8 * mat + 4 * half, 4), self.vQWd, self.sWB, T[1], mods="offen")
        I("s_lshl_b32", T[1], self.sGrp, 11)
        I("s_add_u32", T[1], T[1], self.sFW)
        I("s_sub_u32", T[1], T[1], 3 * 7168)
        for mat in range(3):
            I("s_add_u32", T[2], T[1], mat * MAT)
            for half in range(2):
                I("buffer_store_dwordx4", V(168 + 8 * mat + 4 * half, 4), self.vL16, self.sWS, T[2], mods=f"offen offset:{half * 1024} sc1")
        a.label(nofw)
        I("s_mul_i32", T[1], self.sH, 1568)
        I("s_mov_b32", M0, L_WPHI)
        I("s_mul_i32", T[2], S(2), 13 * 128)
        I("s_min_u32", T[2], T[2], 401408 - 13 * 128)
        I("v_lshrrev_b32", V(112), 3, lane)
        I("v_and_b32", V(113), 7, lane)
        I("v_lshlrev_b32", V(113), 7, V(113))
        I("v_lshl_add_u32", V(126), V(112), 14, V(113))
        I("s_sub_u32", T[5], self.sOq, 6 * 16384)
        I("buffer_load_dwordx4", self.vL16, self.sWP, T[1], mods="offen lds")
        I("buffer_load_dwordx4", self.vL16, self.sWP, T[1], mods="offen offset:1024 lds")
        I("buffer_load_dword", self.vDummy, V(122), self.sWOA, T[2], mods="offen", nodest=True)
        I("buffer_load_dword", self.vDummy, V(122), self.sWOB, T[2], mods="offen", nodest=True)
        I("buffer_load_dword", self.vDummy, V(126), self.sWS, T[5], mods="offen", nodest=True)
        I("s_lshl_b32", T[1], self.sH, 7)
        I("s_lshl_b32", T[2], self.sGrp, 2)
        I("s_add_u32", T[1], T[1], T[2])
        I("s_add_u32", T[1], T[1], WS_FWF)
        I("s_cmp_ge_u32", self.sGrp, 14)
        I("s_cbranch_scc1", "L_qa")
        a.wait(vm=5)
        I("s_mov_b64", EXEC, 1)
        I("buffer_store_dword", self.vT, OFF, self.sWS, T[1], mods="sc1")
        I("s_mov_b64", EXEC, -1)
        self.fine(5, 4)
        I("s_branch", "L_qa")

    def p_stage(self):
        a, I = self.a, self.I
        T = self.sT
        NPRE = 12
        a.label("L_p")
        a.forget_counters()
        a.wait(lg=0)
        I("s_barrier")
        I("s_cmp_eq_u32", self.sC, 7)
        I("s_cbranch_scc1", "L_pidle")
        slots = [A(64 + 4 * k, 4) for k in range(12)] + [A(168 + 4 * k, 4) for k in range(8)] + [V(128 + 4 * k, 4) for k in range(28)]
        def pwf(hh, n): return slots[(hh % NPRE) * 4 + n]
        def pw_read(hh, n):
            return [lambda: I("ds_read_b64_tr_b16", pwf(hh, n)[0:2], self.vP[n], mods=f"offset:{hh * 4096}"),
                    lambda: I("ds_read_b64_tr_b16", pwf(hh, n)[2:4], self.vP[n], mods=f"offset:{hh * 4096 + 2048}")]
        self.flag_value(T[0])
        early = 8
        late = [f for _, f in self.pw_dma(self.sPWc, (2, 3))]
        PP = self.opt.get("pp", 5)
        for hh in range(early):
            for n in range(4):
                for f in pw_read(hh, n): f()
                if late and (n & 1 or hh == 0): late.pop(0)()
            if hh == PP: I("buffer_load_dword", V(112), self.vPollP, self.sWS, self.sFOp, mods="offen sc1")
        assert not late
        loop, ok = self.lab("ppoll"), self.lab("ppass")
        a.label(loop)
        a.wait(vm=0)
        I("v_cmp_ne_u32", VCC, T[0], V(112))
        I("s_cbranch_vccz", ok)
        I("buffer_load_dword", V(112), self.vPollP, self.sWS, self.sFOp, mods="offen sc1")
        self.budget_branch(loop)
        a.label(ok)
        a.vm = []
        self.stamp()
        def of(hh): return A(4 * hh, 4)
        def oload(hh):
            out = []
            if hh % 4 == 0 and hh:
                out.append(("s", lambda: I("s_add_u32", T[1], self.sOp, hh * 1024)))
            so = self.sOp if hh < 4 else T[1]
            out.append(("v", lambda: I("buffer_load_dwordx4", of(hh), self.vL16, self.sWS, so, mods=f"offen offset:{(hh % 4) * 1024} sc1")))
            return out
        NO = self.opt.get("no", 5)
        for hh in range(NO):
            for _, f in oload(hh): f()
        I("s_barrier")
        for hh in range(early, NPRE):
            for n in range(4):
                for f in pw_read(hh, n): f()
        mf, so, sw = [], [], []
        for hh in range(16):
            for n in range(4):
                mf.append((self.vR[4 * n:4 * n + 4], pwf(hh, n), of(hh), self.vR[4 * n:4 * n + 4]))
                if hh + NPRE < 16:
                    sw += [(4 * hh + n, "v", f) for f in pw_read(hh + NPRE, n)]
            if hh + NO < 16: so += [(4 * hh, k, f) for k, f in oload(hh + NO)]
        j, t = V(136), V(137)
        fa = [("v", lambda: I("v_lshrrev_b32", j, 2, self.vPollP)), ("v", lambda: I("v_lshrrev_b32", t, 9, self.vL16)),
              ("v", lambda: I("v_xor_b32", t, t, j)), ("v", lambda: I("v_and_b32", t, 7, t)), ("v", lambda: I("v_lshlrev_b32", t, 4, t)),
              ("v", lambda: I("v_lshl_add_u32", t, j, 7, t)), ("v", lambda: I("v_bfe_u32", j, self.vL16, 8, 1)),
              ("s", lambda: I("s_lshl_b32", T[1], self.sW, 11)), ("s", lambda: I("s_add_u32", T[1], T[1], L_SP)),
              ("v", lambda: I("v_lshl_add_u32", t, j, 3, t)), ("v", lambda: I("v_add_u32", V(132), T[1], t))]
        fa += [("v", lambda n=n: I("v_xor_b32", V(132 + n), 32 * n, V(132))) for n in range(1, 4)]
        fa += [("v", lambda: I("v_lshrrev_b32", j, 3, self.vL16)), ("v", lambda: I("v_and_b32", j, "0x70", j)),
               ("v", lambda: I("v_xor_b32", j, j, self.vL16)), ("v", lambda: I("v_add_u32", V(120), T[1], j)),
               ("s", lambda: I("s_add_u32", T[2], self.sX0o, 8 * 1792))]
        rest = self.sched(mf, [so, sw, [(48, k, f) for k, f in fa]])
        assert not rest
        a.flush()
        self.stamp()
        I("s_cmp_eq_u32", self.sL, 4)
        I("s_cbranch_scc1", "L_final")

        a.label("L_pepi")
        xo = V(112, 8)
        for k in range(8):
            I("v_cvt_pk_bf16_f32", xo[k], self.vR[2 * k], self.vR[2 * k + 1])
            if k == 3: I("buffer_store_dwordx4", xo[0:4], self.vL16, self.sWS, self.sXp, mods="offen")
        I("buffer_store_dwordx4", xo[4:8], self.vL16, self.sWS, self.sXp, mods="offen offset:1024")
        sm, sq = V(120, 2), V(122, 2)
        self.pk("v_pk_add_f32", sm, self.vR[0:2], self.vR[2:4])
        self.pk("v_pk_mul_f32", sq, self.vR[0:2], self.vR[0:2])
        self.pk("v_pk_fma_f32", sq, self.vR[2:4], self.vR[2:4], sq)
        for k in range(2, 8):
            self.pk("v_pk_add_f32", sm, sm, self.vR[2 * k:2 * k + 2])
            self.pk("v_pk_fma_f32", sq, self.vR[2 * k:2 * k + 2], self.vR[2 * k:2 * k + 2], sq)
        pr = V(124, 2)
        I("v_add_f32", pr[0], sm[0], sm[1])
        I("v_add_f32", pr[1], sq[0], sq[1])
        x, y = pr[0], pr[1]
        I("s_add_u32", self.sL, self.sL, 1)
        I("s_lshl_b32", T[0], self.sL, 4)
        I("v_permlane32_swap_b32", x, y)
        I("s_or_b32", T[0], T[0], self.sBase)
        I("v_add_f32", x, x, y)
        I("v_mov_b32", y, x)
        I("v_mov_b32", self.vT, T[0])
        I("s_cmp_eq_u32", self.sPhase, 0)
        I("v_permlane16_swap_b32", x, y)
        I("s_cselect_b32", self.sPend, self.sHaloProd, 0)
        I("v_add_f32", x, x, y)
        I("v_mov_b32", y, x)
        I("s_lshl_b32", T[1], self.sC, 10)
        I("s_add_u32", T[1], T[1], self.sHX)
        I("v_permlane32_swap_b32", x, y)
        I("s_mov_b64", EXEC, "0xffff")
        I("buffer_store_dwordx2", pr, self.vStatSt, self.sWS, self.sXSp, mods="offen")
        I("s_mov_b64", EXEC, -1)
        nh, pub = self.lab("nohalo"), self.lab("pub")
        I("s_cmp_eq_u32", self.sPend, 0)
        I("s_cbranch_scc0", nh)
        wb, wbd = self.lab("pwb"), self.lab("pwbd")
        I("s_cmp_eq_u32", self.sL, 4)
        I("s_cbranch_scc1", wb)
        a.label(wbd)
        def write_back():
            self.a.label(wb)
            for n in range(14, 21): self.I("ds_write_b128", self.vQS, self.stash(n), mods=self.piece(n))
            self.I("s_branch", wbd)
        self.tail.append(write_back)
        a.wait(vm=0)
        a.label(pub)
        self.publish(self.sFXp)

        def tail():
            b = self.a
            b.label(nh)
            b.I("s_add_u32", T[1], T[1], 16384)
            b.I("s_mov_b32", self.sT2[0], "0xff00ff00")
            b.I("s_mov_b32", self.sT2[1], "0xff00ff00")
            b.I("s_mov_b64", EXEC, self.sT2)
            b.I("buffer_store_dwordx4", xo[0:4], self.vHp, self.sWS, T[1], mods="offen sc1")
            b.I("buffer_store_dwordx4", xo[4:8], self.vHp, self.sWS, T[1], mods="offen offset:512 sc1")
            b.I("s_lshl_b32", T[1], self.sC, 7)
            b.I("s_add_u32", T[1], T[1], self.sHX)
            b.I("s_add_u32", T[1], T[1], 16384 + 14336)
            b.I("s_mov_b64", EXEC, "0xffff")
            b.I("buffer_store_dwordx2", pr, self.vStatSt, self.sWS, T[1], mods="offen sc1")
            b.I("s_mov_b64", EXEC, -1)
            b.wait(vm=3)
            b.I("s_branch", pub)
        self.tail.append(tail)
        a.label("L_pnext")
        a.flush()
        a.forget_counters()
        self.stamp()
        if self.opt.get("stop"):
            I("s_cmp_eq_u32", self.sL, self.opt["stop"])
            I("s_cbranch_scc1", "L_fin2")
        I("s_cmp_eq_u32", self.sPhase, 1)
        I("s_cbranch_scc1", "L_qb")

        def idle():
            b = self.a
            b.label("L_pidle")
            b.I("s_cmp_eq_u32", self.sL, 4)
            b.I("s_cbranch_scc1", "L_fin2")
            b.I("s_add_u32", self.sL, self.sL, 1)
            b.I("s_cmp_lg_u32", self.sL, 4)
            b.I("s_cbranch_scc1", "L_pnext")
            for n in range(14, 21): b.I("ds_write_b128", self.vQS, self.stash(n), mods=self.piece(n))
            b.I("s_branch", "L_pnext")
        self.tail.append(idle)

    def q_poll(self, shadow=None):
        a, I = self.a, self.I
        T = self.sT
        ex, t, pv = V(112), V(113), V(114)
        loop, ok, pend, nopend, slow, again = (self.lab(x) for x in ("qpoll", "qpass", "pend", "nopend", "qslow", "qagain"))
        I("v_mad_u32_u24", ex, self.vExpM, self.sL, self.vExpC)
        if shadow:
            chk = self.lab("qchk")
            I("buffer_load_dword", pv, self.vPollQ, self.sWS, 0, mods="offen sc1")
            shadow()
            I("s_branch", chk)
        a.label(loop)
        I("buffer_load_dword", pv, self.vPollQ, self.sWS, 0, mods="offen sc1")
        if shadow: a.label(chk)
        I("s_cmp_eq_u32", self.sPend, 0)
        a.wait(vm=0)
        I("s_cbranch_scc0", pend)
        a.label(nopend)
        I("v_xor_b32", t, pv, ex)
        I("v_cmp_ne_u32", VCC, 0, t)
        I("s_cbranch_vccnz", slow)
        a.label(ok)
        a.vm = []

        def tail():
            b = self.a
            b.label(pend)
            b.I("s_lshl_b32", T[1], self.sC, 2)
            b.I("s_add_u32", T[1], T[1], self.sFHp)
            self.flag_value(T[0])
            b.I("v_mov_b32", self.vT, T[0])
            b.I("s_mov_b64", EXEC, 1)
            b.I("buffer_store_dword", self.vT, OFF, self.sWS, T[1], mods="offset:128 sc1")
            b.I("s_mov_b64", EXEC, -1)
            b.I("s_mov_b32", self.sPend, 0)
            b.I("s_branch", nopend)
            b.label(slow)
            b.I("s_cmp_eq_u32", self.sMode, 0)
            b.I("s_cbranch_scc1", again + "m")
            b.I("v_not_b32", V(115), self.vPollM)
            b.I("v_and_b32", V(116), t, self.vPollM)
            b.I("v_and_b32", V(115), t, V(115))
            b.I("v_cmp_ne_u32", self.sT2, 0, V(115))
            b.I("v_cmp_eq_u32", VCC, 0, V(116))
            b.nop(2)
            b.I("s_cmp_eq_u64", self.sT2, 0)
            b.I("s_cbranch_scc1", again)
            b.I("s_andn2_b32", T[0], "0xffff0000", VCC_LO)
            b.I("s_cbranch_scc1", again)
            b.I("s_mov_b32", self.sMode, 0)
            b.I("s_add_u32", self.sFXp, self.sFXp, WS_SLOW)
            b.I("s_add_u32", self.sFOq, self.sFOq, WS_SLOW)
            b.I("s_add_u32", self.sFOp, self.sFOp, WS_SLOW)
            b.I("v_lshlrev_b32", V(115), 11, self.vExpM)
            b.I("v_add_u32", self.vPollQ, V(115), self.vPollQ)
            b.I("s_branch", again)
            b.label(again + "m")
            b.I("v_and_b32", V(116), t, self.vPollM)
            b.I("v_cmp_ne_u32", VCC, 0, V(116))
            b.I("s_cbranch_vccz", ok)
            b.label(again)
            self.budget_branch(loop)
        self.tail.append(tail)

    def xload(self, ks):
        out = []
        if ks % 4 == 0:
            out.append(("s", lambda: self.I("s_add_u32", self.sT[1], self.sXq, ks * 1024)))
            out.append(("s", lambda: self.I("s_add_u32", self.sT[2], self.sXq, ks * 1024 + 14336)))
        for t in range(2):
            out.append(("v", lambda t=t: self.I("buffer_load_dwordx4", self.xf(t, ks), self.vL16, self.sWS, self.sT[1 + t],
                                               mods=f"offen offset:{(ks % 4) * 1024} sc1")))
        return out

    def stats_ops(self, T, layer):
        raw, st = self.straw(T), self.st(T)
        t = V(188 + 2 * T, 2)
        ops = []
        def add(*x, **k): ops.append(("w" if ("perm" in x[0] or "rsq" in x[0]) else "v", lambda: self.I(*x, **k)))
        add("v_and_b32", raw[2], raw[2], self.vM3)
        add("v_and_b32", raw[3], raw[3], self.vM3)
        add("v_add_f32", raw[0], raw[0], raw[2])
        add("v_add_f32", raw[1], raw[1], raw[3])
        for step in range(7):
            x, y = raw[0], raw[1]
            if step in (0, 6): add("v_permlane32_swap_b32", x, y)
            elif step in (1, 4): add("v_add_f32", x, x, y)
            elif step in (2, 5): add("v_mov_b32", y, x)
            else: add("v_permlane16_swap_b32", x, y)
        add("v_mul_f32", st[0], f32(-1.0 / 448), raw[0])
        add("v_mul_f32", t[0], f32(1.0 / 448), raw[1])
        add("v_fma_f32", t[0], Neg(st[0]), st[0], t[0])
        add("v_max_f32", t[0], 0, t[0])
        add("v_add_f32", t[0], f32(1e-5), t[0])
        add("v_rsq_f32", st[1], t[0])
        add("v_and_b32", st[2], st[1], self.vMH if T == 2 else self.vM3)
        if T < 2:
            add("v_mul_f32", st[3], f32(LOG2E * (28 ** -0.5 if layer == "A" else 1.0)), st[1])
        return ops

    def colsum_part(self, ad, steps, cs_off):
        a, I = self.a, self.I
        d = V(192, 4)
        def w(k): return self.wf(k % 4)
        for k in range(4):
            for f in self.tr_pair(w(k), ad, steps[k] * 2048): f()
        mf, sw = [], []
        for k in range(len(steps)):
            mf.append((d, w(k), self.aOnes, 0 if k == 0 else d))
            if k + 4 < len(steps): sw += [(k, "v", f) for f in self.tr_pair(w(k), ad, steps[k + 4] * 2048)]
        assert not self.sched(mf, [sw])
        I("v_lshrrev_b32", V(189), 8, self.vL16)
        I("v_lshlrev_b32", V(189), 4, V(189))
        I("s_add_u32", self.sT[0], self.sT[0], L_CS + cs_off)
        I("v_add_u32", V(189), self.sT[0], V(189))
        I("s_mov_b32", self.sT2[0], "0x00010001")
        I("s_mov_b32", self.sT2[1], "0x00010001")
        a.flush()
        I("s_mov_b64", EXEC, self.sT2)
        I("ds_write_b128", V(189), d)
        I("s_mov_b64", EXEC, -1)

    def colsum_b_kv(self):
        self.a.raw("    s_waitcnt vmcnt(8)")
        self.a.pos += 1
        self.I("s_barrier")
        self.I("s_lshl_b32", self.sT[0], self.sW, 6)
        self.colsum_part(self.vQh, list(range(14)), 128)
        self.wphi_gather()

    def colsum_b_q(self):
        I, T = self.I, self.sT
        I("v_lshrrev_b32", V(188), 8, self.vL16)
        I("v_lshlrev_b32", V(188), 4, V(188))
        I("v_add_u32", V(188), L_CS, V(188))
        for ft in range(2, 6):
            I("ds_read_b128", self.cB[4 * ft:4 * ft + 4], V(188), mods=f"offset:{64 * ft}")
        I("s_lshr_b32", T[0], self.sW, 1)
        I("s_lshl_b32", T[0], T[0], 5)
        I("v_xor_b32", V(188), T[0], self.vQ0)
        I("s_and_b32", T[0], self.sW, 1)
        I("s_mul_i32", T[0], T[0], 7 * 2048)
        I("v_add_u32", V(188), T[0], V(188))
        I("s_lshl_b32", T[0], self.sW, 6)
        self.colsum_part(V(188), list(range(7)), 512)

    def colsum_b_q2(self):
        a, I = self.a, self.I
        done = self.lab("cq2")
        a.wait_lg_all()
        I("s_cmp_lg_u32", self.sIt, 0)
        I("s_cbranch_scc1", done)
        I("v_lshrrev_b32", V(188), 8, self.vL16)
        I("v_lshlrev_b32", V(188), 4, V(188))
        I("v_add_u32", V(188), L_CS + 512, V(188))
        for k in range(4):
            I("ds_read_b128", self.cB[4 * (k >> 1):4 * (k >> 1) + 4] if k % 2 == 0 else V(204 + 4 * (k >> 1), 4), V(188), mods=f"offset:{64 * k}")
        for k in range(8): I("v_add_f32", self.cB[k], self.cB[k], V(204 + k))
        a.flush()
        a.label(done)

    def cs_read(self, dst, with_halo):
        I = self.I
        ad = V(188)
        I("v_lshrrev_b32", ad, 8, self.vL16)
        I("v_lshlrev_b32", ad, 4, ad)
        I("v_add_u32", ad, L_CS, ad)
        for ft in range(6):
            I("ds_read_b128", dst[4 * ft:4 * ft + 4], ad, mods=f"offset:{64 * ft}")
        if with_halo:
            I("s_lshl_b32", self.sT[0], self.sW, 6)
            I("v_add_u32", V(189), self.sT[0], ad)
            I("ds_read_b128", self.vCH, V(189), mods="offset:128")

    def wphi_gather(self):
        a, I = self.a, self.I
        j, g, f1, ad, t = V(214), V(215), V(216), V(217), V(218)
        I("v_lshrrev_b32", g, 8, self.vL16)
        I("v_lshrrev_b32", j, 2, self.vPollP)
        I("v_lshrrev_b32", t, 2, j)
        I("v_sub_u32", f1, j, t)
        I("v_add_u32", f1, 16, f1)
        I("v_mul_u32_u24", ad, 4 * 56, g)
        I("v_add_u32", ad, L_WPHI, ad)
        I("v_lshl_add_u32", f1, f1, 1, ad)
        I("v_lshl_add_u32", ad, j, 1, ad)
        I("v_and_b32", t, 3, j)
        I("v_cmp_ne_u32", VCC, 3, t)
        I("v_cndmask_b32", t, 0, -1, VCC)
        I("v_and_b32", j, t, self.vM3)
        for oft, base in enumerate((ad, f1)):
            for e in range(8):
                d = e if e < 4 else 16 + e - 4
                I("ds_read_u16", V(204 + e), base, mods=f"offset:{d * 56}")
            for p in range(4):
                I("v_lshl_or_b32", V(204 + 2 * p), V(205 + 2 * p), 16, V(204 + 2 * p))
                m = (None, self.vM3)[p >> 1] if oft == 0 else (t, j)[p >> 1]
                if m is not None: I("v_and_b32", V(204 + 2 * p), V(204 + 2 * p), m)
                I("v_accvgpr_write_b32", self.aWphi[4 * oft + p], V(204 + 2 * p))

    def conv_scalar(self, dst, T, mat, c, scales):
        out = []
        st = self.st(T)
        for f in range(2):
            acc = self.acc(T, 2 * mat + f)
            cc = c[4 * (2 * mat + f):4 * (2 * mat + f) + 4]
            for k in range(4): out.append(lambda acc=acc, cc=cc, k=k: self.I("v_fma_f32", acc[k], cc[k], st[0], acc[k]))
            m = {"r": st[1], "m": st[2], None: None}[scales[f]]
            if m is not None:
                for k in range(4): out.append(lambda acc=acc, m=m, k=k: self.I("v_mul_f32", acc[k], acc[k], m))
            for p in range(2): out.append(lambda acc=acc, f=f, p=p: self.I("v_cvt_pk_bf16_f32", dst[2 * f + p], acc[2 * p], acc[2 * p + 1]))
        return out

    def q_ready(self, layer):
        a, I = self.a, self.I
        a.wait(lg=0)
        I("s_barrier")
        once = self.lab("once")
        I("s_cmp_lg_u32", self.sIt, 0)
        I("s_cbranch_scc1", once)
        nvm = len(a.vm)
        if layer == "A":
            self.cs_read(self.cA, True)
            for n in range(4): I("ds_read_b64", V(200 + 2 * n, 2), V(0), mods=f"offset:{32 * n}")
            for n in range(4):
                for p in range(2):
                    I("v_lshlrev_b32", self.vR[4 * n + 2 * p], 16, V(200 + 2 * n + p))
                    I("v_and_b32", self.vR[4 * n + 2 * p + 1], "0xffff0000", V(200 + 2 * n + p))
        else:
            self.colsum_b_q()
        a.wait_lg_all()
        a.flush()
        assert nvm == len(a.vm)
        a.label(once)
        for ft in range(6):
            for f in self.qw_read(self.wf(ft), ft, 0): f()

    def q_gemm(self, layer, tail_ops=()):
        a, I = self.a, self.I
        T = self.sT
        isA = layer == "A"
        LOOK = self.opt.get("look", 3)
        for ks in range(2):
            for _, f in self.xload(ks): f()
        if not isA: self.q_ready("B")
        for _, f in self.xload(2): f()
        reads0, writes0 = a.count.get("ds_read_b64_tr_b16", 0) - 12, a.count.get("ds_write_b128", 0)
        def bar(n):
            assert a.count["ds_read_b64_tr_b16"] - reads0 == n and not a.lg and a.count.get("ds_write_b128", 0) == writes0
            I("s_barrier")

        G = 12
        mf, sw, sx, sd, sv, sh, stc = [], [], [], [], [], [], []
        for ks in range(14):
            order = (2, 3, 4, 5, 0, 1) if ks == 13 else range(6)
            for ft in order:
                for t in ((1, 0) if ks == 13 else (0, 1)):
                    mf.append((self.acc(t, ft), self.wf(ft), self.xf(t, ks), 0 if ks == 0 else self.acc(t, ft)))
                if ks < 13:
                    sw += [(len(mf) - 1, "v", f) for f in self.qw_read(self.wf(ft), ft, ks + 1)]
        for k in range(3, 14):
            gap = max(0, G * (k - LOOK) - (6 if k > 6 else 0))
            xl = self.xload(k)
            sx += [(gap, kind, f) for kind, f in xl[:-1]] + [(gap + 4, "v", xl[-1][1])]
            if k in (6, 7):
                for t in (k - 6,):
                    for q in range(2):
                        sx.append((gap + 7 + 2 * q, "v", lambda t=t, q=q: I(
                            "buffer_load_dwordx2", self.straw(t)[2 * q:2 * q + 2], self.vStat, self.sWS, self.sXSq,
                            mods=f"offen offset:{t * 1024 + 512 * q} sc1")))
        s0, s1 = self.stats_ops(0, layer), self.stats_ops(1, layer)
        sv += [(G * 6 + 6, k, f) for p in zip(s0, s1) for k, f in p]
        sf = []
        if self.opt.get("fine") == (1 if isA else 2):
            sf = [(G * 2 * i, "s", lambda i=i: self.fine(1 if isA else 2, i)) for i in range(7)]
        nd = 0
        for k, f in self.pw_dma(self.sWOA if isA else self.sWOB, (0, 1)):
            sd.append((G * 10 + 2 + 5 * nd, k, f))
            nd += k == "v"
        if isA:
            HF, HC = self.opt.get("hf", 4), self.opt.get("hc", 8)
            hv, hx, fv = V(194), V(195), V(196)
            def check(reg, first, gap, shift):
                slow, back = self.lab("hslow"), self.lab("hback")
                out = [(first, "v", lambda: I("buffer_load_dword", reg, self.vPollH, self.sWS, 0, mods="offen sc1")),
                       (gap, "v", lambda: I("v_cmp_ne_u32", VCC, hx, reg))]
                if shift: out.append((gap, "s", lambda: I("s_lshr_b64", VCC, VCC, 16)))
                def br():
                    I("s_cbranch_scc1" if shift else "s_cbranch_vccnz", slow)
                    a.label(back)
                out.append((gap, "s", br))
                def tail():
                    b = self.a
                    b.label(slow)
                    b.I("s_sub_u32", self.sBudget, self.sBudget, 1)
                    b.I("s_cbranch_scc1", "L_end")
                    b.I("buffer_load_dword", reg, self.vPollH, self.sWS, 0, mods="offen sc1")
                    b.wait(vm=0)
                    b.I("v_cmp_ne_u32", VCC, hx, reg)
                    if shift: b.I("s_lshr_b64", VCC, VCC, 16)
                    b.I("s_cbranch_scc1" if shift else "s_cbranch_vccnz", slow)
                    b.I("s_branch", back)
                self.tail.append(tail)
                return out
            stc = [(2, "v", lambda: I("v_mad_u32_u24", hx, self.vExpHM, self.sL, self.vExpHC))]
            sh += check(hv, G * HF + 8, G * HC, False)
            sh.append((G * HC, "s", lambda: I("s_lshl_b32", T[0], self.sW, 11)))
            sh.append((G * HC, "s", lambda: I("s_add_u32", M0, T[0], L_HX)))
            sh.append((G * HC, "s", lambda: I("s_add_u32", T[0], T[0], self.sHX)))
            for q in range(2):
                sh.append((G * HC, "v", lambda q=q: I("buffer_load_dwordx4", self.vHalo, self.sWS, T[0], mods=f"offen offset:{1024 * q} sc1 lds", tag="halo")))
            sh.append((G * HC, "s", lambda: I("s_add_u32", T[0], self.sHX, 14336)))
            for q in range(2):
                sh.append((G * HC, "v", lambda q=q: I("buffer_load_dwordx2", self.straw(2)[2 * q:2 * q + 2], self.vHaloS, self.sWS, T[0],
                                                     mods=f"offen offset:{512 * q} sc1")))
            sh.append((G * HC, "v", lambda: I("v_add_u32", V(194), L_HX, self.vHp)))
            def hw(k): return A(4 * k, 4)
            shw = []
            for k in range(14): shw += [(G * (1 + (k * 11) // 14) + 3, "v", f) for f in self.tr_pair(hw(k), self.vQh, k * 2048)]
            sv += [(G * (HC + 4), k, f) for k, f in self.stats_ops(2, layer)]
            nb = len(mf) - 11
            sb = [(nb, "s", lambda: a.wait_vm_tag("halo")), (nb, "s", lambda: a.wait(lg=0)), (nb, "s", lambda: bar(168 + 28))]
            sb += [(nb, "v", lambda k=k: I("ds_read_b128", self.hx(k), V(194), mods=f"offset:{512 * k}")) for k in range(14)]
            n0 = len(mf)
            for k in range(14): mf.append((self.hacc, hw(k), self.hx(k), 0 if k == 0 else self.hacc))
            stl = [(n0 - 6, "v", f) for f in tail_ops]
            rest = self.sched(mf, [sf, sw, sx, stc, sh, shw, sb, sd, sv, stl])
        else:
            n0 = len(mf)
            sb = [(n0 - 9, "s", lambda: a.wait(lg=0)), (n0 - 9, "s", lambda: bar(168))]
            stl = [(n0 - 7, "v", f) for f in tail_ops]
            rest = self.sched(mf, [sf, sw, sx, stc, sb, sd, sv, stl])
        return rest

    def ln(self, acc, c, st, scale):
        for p in range(2):
            self.pk("v_pk_fma_f32", acc[2 * p:2 * p + 2], c[2 * p:2 * p + 2], st[0:2], acc[2 * p:2 * p + 2], by=0)
        if scale == "r":
            for p in range(2): self.pk("v_pk_mul_f32", acc[2 * p:2 * p + 2], acc[2 * p:2 * p + 2], st[0:2], by=1)
        elif scale == "m":
            for p in range(2): self.pk("v_pk_mul_f32", acc[2 * p:2 * p + 2], acc[2 * p:2 * p + 2], st[2:4], by=0)
        elif scale == "e":
            self.pk("v_pk_fma_f32", acc[0:2], acc[0:2], st[2:4], self.vE0, by=0)
            self.pk("v_pk_mul_f32", acc[2:4], acc[2:4], st[2:4], by=0)

    def cvt(self, dst, src):
        for p in range(src.cnt // 2):
            self.I("v_cvt_pk_bf16_f32", dst[p], src[2 * p], src[2 * p + 1])

    def conv(self, dst, T, mat, c, scales):
        for f in range(2):
            ft = 2 * mat + f
            self.ln(self.acc(T, ft), c[4 * ft:4 * ft + 4], self.st(T), scales[f])
        for f in range(2):
            self.cvt(dst[2 * f:2 * f + 2], self.acc(T, 2 * mat + f))

    def o_finish(self, o, den, of, in_drain, after):
        a, I = self.a, self.I
        T = self.sT
        I("s_add_u32", T[1], self.sOq, 16384)
        self.flag_value(T[0])
        for t in range(2): I("v_rcp_f32", den[t][0], den[t][0])
        I("v_mov_b32", self.vT, T[0])
        for t in range(2):
            for p in range(4): self.pk("v_pk_mul_f32", o[t][2 * p:2 * p + 2], o[t][2 * p:2 * p + 2], den[t][0:2], by=0)
            self.cvt(of[t], o[t])
            I("buffer_store_dwordx4", of[t], self.vL16, self.sWS, T[1] if t else self.sOq, mods="offen")
        self.fine(getattr(self, "fin_region", 0) or -1, 6)
        self.fin_region = 0
        if in_drain: in_drain()
        a.wait(vm=0)
        self.publish(self.sFOq)
        self.stamp()
        if after: after()

    def qa_stage(self):
        a, I = self.a, self.I
        a.label("L_qa")
        a.forget_counters()
        self.it_b = 1
        self.q_poll(lambda: (self.b_to_a(range(14, 21)), self.q_ready("A")))
        self.stamp()
        kf = [V(196, 4), V(200, 4)]
        qf = [V(204, 4), V(208, 4)]
        vp = [V(212, 4), V(216, 4)]
        hp = V(220, 2)
        tail_ops = self.conv_scalar(kf[1], 1, 1, self.cA, ("r", "m"))
        tail_ops.append(lambda: I("ds_write_b128", self.vKrd, kf[1], mods="offset:1024"))
        tail_ops += self.conv_scalar(vp[1], 1, 2, self.cA, ("r", "r"))
        tail_ops.append(lambda: I("ds_write_b128", self.vEXW, vp[1], mods="offset:2048"))
        rest = self.q_gemm("A", tail_ops)
        for f in rest: f()
        self.stamp()
        self.a_to_b((((1, 2) if self.opt.get("abearly", 0) else ()), ()))
        self.conv(vp[0], 0, 2, self.cA, ("r", "r"))
        I("ds_write_b128", self.vEXW, vp[0], mods="offset:1024")
        self.ln(self.hacc, self.vCH, self.st(2), "m")
        self.cvt(hp, self.hacc)
        I("ds_write_b64", self.vHW, hp)
        self.conv(qf[0], 0, 0, self.cA, (None, None))
        self.fine(4, 0)
        a.wait(lg=0)
        I("s_barrier")
        self.fine(4, 1)
        kprev = V(222, 4)
        vt = [V(226, 6), V(232, 6)]
        I("ds_read_b128", kprev, self.vKrd)
        for f in range(2):
            for i in range(3):
                I("ds_read_b64_tr_b16", vt[f][2 * i:2 * i + 2], self.vEXRa, mods=f"offset:{1024 * i + 8 * f}")
        self.conv(kf[0], 0, 1, self.cA, ("r", "m"))
        self.conv(qf[1], 1, 0, self.cA, (None, None))
        s = [V(112, 8), V(120, 8)]
        self.mfma(s[1][4:8], kf[1], qf[1], self.bCur)
        self.mfma(s[1][0:4], kf[0], qf[1], self.bPrev)
        self.mfma(s[0][4:8], kf[0], qf[0], self.bCur)
        self.mfma(s[0][0:4], kprev, qf[0], self.bPrev0)
        self.fine(4, 2)
        m = V(128, 2)
        for t in (1, 0):
            I("v_max3_f32", m[t], s[t][4], s[t][5], s[t][6])
            I("v_max3_f32", m[t], m[t], s[t][7], s[t][0])
            I("v_max3_f32", m[t], m[t], s[t][1], s[t][2])
            I("v_max_f32", m[t], m[t], s[t][3])
        self.allreduce_pairs([("v_max_f32", m[0], m[1])])
        nm = [V(130, 2), V(132, 2)]
        for t in range(2):
            I("v_mul_f32", nm[t][0], m[t], self.st(t)[3])
        for t in range(2):
            for p in range(4):
                self.I("v_pk_fma_f32", s[t][2 * p:2 * p + 2], s[t][2 * p:2 * p + 2], self.st(t)[2:4], nm[t],
                       mods="op_sel:[0,1,0] op_sel_hi:[1,1,0] neg_lo:[0,0,1] neg_hi:[0,0,1]")
        self.fine(4, 3)
        pf = [V(136, 4), V(140, 4)]
        o = [V(144, 8), V(152, 8)]
        sm = [V(160, 4), V(164, 4)]
        for k in range(8): I("v_exp_f32", s[0][k], s[0][k])
        for k in range(2): I("v_exp_f32", s[1][k], s[1][k])
        self.cvt(pf[0], s[0])
        for k in range(2, 4): I("v_exp_f32", s[1][k], s[1][k])
        self.mfma(sm[0], self.aOnes, pf[0], 0)
        I("v_exp_f32", s[1][4], s[1][4])
        self.mfma(o[0][0:4], vt[0][0:4], pf[0], 0)
        I("v_exp_f32", s[1][5], s[1][5])
        self.mfma(o[0][4:8], vt[1][0:4], pf[0], 0)
        for k in range(6, 8): I("v_exp_f32", s[1][k], s[1][k])
        self.cvt(pf[1], s[1])
        self.mfma(sm[1], self.aOnes, pf[1], 0)
        for f in range(2):
            self.mfma(o[1][4 * f:4 * f + 4], vt[f][2:6], pf[1], 0)
        self.fine(4, 4)
        self.fine(4, 5)
        self.fin_region = 4
        self.o_finish(o, sm, [V(168, 4), V(172, 4)], lambda: self.a_to_b(((), (1,))), None if self.opt.get("abearly", 0) else lambda: self.a_to_b(((1, 2), ())))
        I("s_mov_b32", self.sPhase, 1)
        I("s_mov_b64", self.sPWc[0:2], self.sWOA[0:2])
        I("s_mov_b32", self.sPWc[2], 401408)
        a.flush()
        I("s_branch", "L_p")

    def phi(self, src, dst, extra=(), done=None):
        a, I = self.a, self.I
        rest = list(extra)
        def more(n=1):
            for _ in range(n):
                if rest: rest.pop(0)()
        p = [V(120, 8), V(128, 8)]
        for t in range(2):
            for oft in range(2):
                self.mfma(p[t][4 * oft:4 * oft + 4], self.aWphi[4 * oft:4 * oft + 4], src[t], 0)
        kk = [V(204, 2), V(206, 2)]
        bb = [V(208, 2), V(210, 2)]
        for t in range(2):
            I("v_mov_b32", kk[t][0], self.st(t)[3])
            I("v_sub_f32", kk[t][1], 0, self.st(t)[3])
        more(3)
        mx, mn = V(188, 2), V(190, 2)
        for t in range(2):
            for k in range(3):
                if k == 0:
                    I("v_max3_f32", mx[t], p[t][0], p[t][1], p[t][2])
                    I("v_min3_f32", mn[t], p[t][0], p[t][1], p[t][2])
                else:
                    I("v_max3_f32", mx[t], mx[t], p[t][2 * k + 1], p[t][2 * k + 2])
                    I("v_min3_f32", mn[t], mn[t], p[t][2 * k + 1], p[t][2 * k + 2])
        self.fine(self.phi_region or -1, 1)
        self.allreduce_pairs([("v_max_f32", mx[0], mx[1]), ("v_min_f32", mn[0], mn[1])])
        for t in range(2):
            I("v_mul_f32", bb[t][0], mx[t], kk[t][1])
            I("v_mul_f32", bb[t][1], mn[t], kk[t][0])
        e = [V(144, 14), V(158, 14)]
        for i in range(7):
            for t in range(2):
                self.pk("v_pk_fma_f32", e[t][2 * i:2 * i + 2], p[t][(i & ~1):(i & ~1) + 2], kk[t], bb[t], bx=i & 1)
        self.fine(self.phi_region or -1, 2)
        for i in range(14):
            for t in range(2): I("v_exp_f32", e[t][i], e[t][i])
            more()
        sm = [V(188, 2), V(190, 2)]
        for t in range(2): self.pk("v_pk_add_f32", sm[t], e[t][0:2], e[t][2:4])
        for i in range(2, 7):
            for t in range(2): self.pk("v_pk_add_f32", sm[t], sm[t], e[t][2 * i:2 * i + 2])
            more()
        self.fine(self.phi_region or -1, 3)
        self.allreduce_pairs([("v_add_f32", sm[0][0], sm[0][1]), ("v_add_f32", sm[1][0], sm[1][1])])
        for t in range(2):
            for k in range(2): I("v_rcp_f32", sm[t][k], sm[t][k])
        for t in range(2):
            more()
            for i in range(7):
                self.pk("v_pk_mul_f32", e[t][2 * i:2 * i + 2], e[t][2 * i:2 * i + 2], sm[t])
                if i == 3: more()
            for s in range(2):
                more()
                for q in range(4):
                    I("v_cvt_pk_bf16_f32", dst[t][s][q], e[t][4 * q + s], e[t][4 * q + 2 + s] if q < 3 else 0)
                if done: done(t, s)
        more(99)

    def qb_stage(self):
        a, I = self.a, self.I
        T = self.sT
        a.label("L_qb")
        self.q_poll(lambda: self.a_to_b(((0,), (0,)), self.colsum_b_kv))
        self.stamp()
        kf = qf = [V(196, 4), V(200, 4)]
        rest = self.q_gemm("B", self.conv_scalar(kf[1], 1, 1, self.cB, (None, None)))
        for f in rest: f()
        self.stamp()
        vp = [V(212, 4), V(216, 4)]
        exw = V(220)
        I("v_subrev_u32", exw, L_EXV - L_PH, self.vEXW)
        self.conv(kf[0], 0, 1, self.cB, (None, None))
        for t in (1, 0):
            self.conv(vp[t], t, 2, self.cB, ("r", "e"))
            I("ds_write_b128", exw, vp[t], mods=f"offset:{16384 + 1024 * t}")
        self.fine(3, 0)
        self.phi_region = 3
        ph = [[V(232, 4), V(236, 4)], [V(224, 4), V(228, 4)]]
        self.phi(kf, ph, done=lambda t, s: I("ds_write_b128", exw, ph[t][s], mods=f"offset:{8192 * s + 1024 * t}"))
        self.phi_region = 0
        self.fine(3, 4)
        a.wait(lg=0)
        I("s_barrier")
        self.fine(3, 5)
        lo, hi, real, pr = V(184), V(185), V(186), V(187)
        sP = T[4]
        I("s_lshl_b32", sP, self.sW, 14)
        I("s_sub_u32", sP, self.sKVld, sP)
        I("s_add_u32", sP, sP, 3 * 16384)
        def probe(reg): I("buffer_load_dword", reg, self.vProbe, self.sWS, sP, mods="offen offset:12 sc1")
        P1 = self.opt.get("p1", 0)
        if P1 == 0: probe(pr)
        kacc = V(120, 8)
        def fa(k, oft): return A(4 * (k * 2 + oft), 4)
        def fb(k): return A(40 + 4 * k, 4)
        for k in range(4):
            for t in range(2):
                I("ds_read_b64_tr_b16", fb(k)[2 * t:2 * t + 2], self.vKB, mods=f"offset:{(2 * k + t) * 1024}")
            for oft in range(2):
                for t in range(2):
                    I("ds_read_b64_tr_b16", fa(k, oft)[2 * t:2 * t + 2], self.vKA, mods=f"offset:{(2 * k + t) * 1024 + 8 * oft}")
            if k:
                for oft in range(2):
                    self.mfma(kacc[4 * oft:4 * oft + 4], fa(k - 1, oft), fb(k - 1), 0 if k == 1 else kacc[4 * oft:4 * oft + 4])
        for oft in range(2):
            self.mfma(kacc[4 * oft:4 * oft + 4], fa(3, oft), fb(3), kacc[4 * oft:4 * oft + 4])
        self.fine(3, 6)
        if P1 == 1: probe(pr)
        kvp = V(128, 4)
        self.cvt(kvp, kacc)
        I("v_and_b32", kvp[3], "0xffff", kvp[3])
        I("v_or_b32", kvp[3], self.sTag, kvp[3])
        I("buffer_store_dwordx4", kvp, self.vL16, self.sWS, self.sKVst, mods="offen sc1")
        self.stamp()
        self.colsum_b_q2()
        for t in (1, 0): self.conv(qf[t], t, 0, self.cB, (None, None))
        sO = [S(8 + k) for k in range(16)]
        sM = T[3]
        def gf(p): return A(4 * p, 4)
        def ready(reg):
            I("v_xor_b32", reg, self.sTag, reg)
            I("v_cmp_ge_u32", VCC, "0xffff", reg)
            I("v_lshrrev_b32", hi, 7, self.vL16)
            I("s_and_b32", sM, VCC_LO, "0xffff")
        def touch():
            for half in range(2):
                t = V(188 + half)
                if half:
                    I("s_lshr_b32", T[0], sM, 8)
                    I("v_add_u32", V(190), 8192, self.vTA)
                    I("v_and_b32", V(190), "0x3fff", V(190))
                I("v_lshrrev_b32", t, hi, T[0] if half else sM)
                I("v_and_b32", t, 1, t)
                I("v_cmp_eq_u32", VCC, 1, t)
                I("v_mov_b32", t, OOB)
                I("v_cndmask_b32", t, t, V(190) if half else self.vTA, VCC)
                I("buffer_load_dword", self.vDummy, t, self.sWS, self.sKVld, mods="offen sc1", nodest=True)
        I("v_add_u32", real, self.sKVld, self.vProbe)
        ready(pr)
        P2 = self.opt.get("p2", 0)
        if P2 == 0: probe(lo)
        touch()
        ex = [lambda p=p: I("v_readlane_b32", sO[p], real, p) for p in range(16)]
        if P2: ex.insert(P2, lambda: probe(lo))
        self.phi(qf, ph, extra=ex)
        self.stamp()
        red = V(176, 8)
        tg = [V(112 + k) for k in range(16)]
        chk, go, slow = self.lab("gchk"), self.lab("ggo"), self.lab("gslow")
        I("s_mov_b32", T[2], 0)
        a.label(chk)
        ready(lo)
        I("s_cmp_lg_u32", sM, "0xffff")
        I("s_cbranch_scc1", slow)
        def gload(p): I("buffer_load_dwordx4", gf(p), self.vL16, self.sWS, sO[p], mods="offen sc1")
        NG = self.opt.get("ng", 6)
        for p in range(NG): gload(p)
        self.it_b = T[2]
        self.b_to_a(range(7))
        I("s_mov_b32", T[2], 9)
        I("v_add_u32", exw, L_KVX - L_EXK, self.vKrd)
        I("v_add_u32", V(221), L_KVX, self.vL16)
        mf, sc, sg = [], [], []
        for p in range(16):
            mf.append((red[0:4], self.aSel[2:6], gf(p), 0 if p == 0 else red[0:4]))
            mf.append((red[4:8], self.aSel[0:4], gf(p), 0 if p == 0 else red[4:8]))
            if p + NG < 16: sg.append((2 * p, "v", lambda p=p: gload(p + NG)))
            sc.append((2 * p, "v", lambda p=p: I("v_accvgpr_read_b32", tg[p], gf(p)[3])))
            if p == 1:
                sc.append((2 * p, "v", lambda: I("v_min_u32", lo, tg[0], tg[1])))
                sc.append((2 * p, "v", lambda: I("v_max_u32", hi, tg[0], tg[1])))
            elif p & 1:
                sc.append((2 * p, "v", lambda p=p: I("v_min3_u32", lo, lo, tg[p - 1], tg[p])))
                sc.append((2 * p, "v", lambda p=p: I("v_max3_u32", hi, hi, tg[p - 1], tg[p])))
        rest = self.sched(mf, [sg, sc])
        for f in rest: f()
        I("v_xor_b32", lo, self.sTag, lo)
        I("v_xor_b32", hi, self.sTag, hi)
        I("v_or_b32", lo, lo, hi)
        I("v_cmp_lt_u32", VCC, "0xffff", lo)
        I("s_cbranch_vccnz", slow + "r")

        def tail():
            b = self.a
            b.label(slow)
            probe(lo)
            touch()
            b.I("s_sub_u32", self.sBudget, self.sBudget, 1)
            b.I("s_cbranch_scc1", "L_end")
            b.wait(vm=2)
            b.flush()
            b.I("s_branch", chk)
            b.label(slow + "r")
            probe(lo)
            b.I("s_sub_u32", self.sBudget, self.sBudget, 1)
            b.I("s_cbranch_scc1", "L_end")
            b.wait(vm=0)
            b.I("s_branch", chk)
        self.tail.append(tail)
        self.stamp()
        kvs = V(112, 4)
        self.cvt(kvs, red)
        I("ds_write_b128", exw, kvs)
        a.wait(lg=0)
        I("s_barrier")
        kvf = [[A(0, 4), A(4, 4)], [A(8, 4), A(12, 4)]]
        zf = [A(16, 4), A(20, 4)]
        for s in range(2):
            I("ds_read_b128", zf[s], self.vZ, mods=f"offset:{2048 * s}")
            for dt in range(2):
                I("ds_read_b128", kvf[s][dt], V(221), mods=f"offset:{(2 * s + dt) * 1024}")
        o = [V(144, 8), V(152, 8)]
        dn = [V(160, 4), V(164, 4)]
        mf = []
        for s in range(2):
            for t in range(2): mf.append((dn[t], zf[s], ph[t][s], 0 if s == 0 else dn[t]))
            for t in range(2):
                for dt in range(2):
                    mf.append((o[t][4 * dt:4 * dt + 4], kvf[s][dt], ph[t][s], 0 if s == 0 else o[t][4 * dt:4 * dt + 4]))
        self.sched(mf, [])
        I("s_mov_b32", self.sPhase, 0)
        I("s_mov_b64", self.sPWc[0:2], self.sWOB[0:2])
        I("s_add_u32", self.sIt, self.sIt, 1)
        I("s_add_u32", self.sKVst, self.sKVst, 0x100000)
        I("s_add_u32", self.sKVld, self.sKVld, 0x100000)
        I("s_add_u32", self.sHX, self.sHX, 0x40000)
        for t in range(2): I("v_add_f32", dn[t][0], f32(1e-6), dn[t][0])
        if self.opt.get("wb"):
            skipw = self.lab("nowb")
            I("s_cmp_eq_u32", self.sIt, 2)
            I("s_cselect_b32", T[0], self.sC, 0)
            I("s_cmp_lg_u32", T[0], 7)
            I("s_cbranch_scc1", skipw)
            I("buffer_wbl2", mods="sc1", untracked=True)
            a.label(skipw)
        self.it_b = 1
        self.o_finish(o, dn, [V(116, 4), V(120, 4)], lambda: self.b_to_a(range(7, 14)), None)
        a.flush()
        I("s_branch", "L_p")

    def final(self):
        a, I = self.a, self.I
        T = self.sT
        a.label("L_final")
        a.forget_counters()
        xo = V(112, 8)
        for n in range(4):
            self.cvt(xo[2 * n:2 * n + 2], self.vR[4 * n:4 * n + 4])
            I("ds_write_b64", V(132 + n), xo[2 * n:2 * n + 2])
        a.wait(lg=0)
        for b in range(2): I("ds_read_b128", V(124 + 4 * b, 4), V(120), mods=f"offset:{1024 * b}")
        for b in range(2): I("buffer_store_dwordx4", V(124 + 4 * b, 4), self.vX0d, self.sOUT, T[2] if b else self.sX0o, mods="offen" + ("", " sc1", " nt", " sc0 sc1")[self.opt.get("outfl", 0)])
        a.label("L_fin2")
        self.stamp()
        if self.opt.get("stamps"):
            I("s_mov_b32", T[7], 63)
            self.stamp(real=True)
            I("s_lshl_b32", T[0], S(2), 2)
            I("s_add_u32", T[0], T[0], self.sW)
            I("s_lshl_b32", T[0], T[0], 8)
            I("s_add_u32", T[0], T[0], WS_STAMP)
            I("v_lshrrev_b32", V(120), 2, self.vL16)
            if self.opt.get("fine") == 5:
                for k in range(7):
                    I("v_readlane_b32", T[1], V(240), k)
                    I("v_writelane_b32", self.vStamp, T[1], 40 + k)
                I("v_readlane_b32", T[1], V(240), 63)
                I("v_writelane_b32", self.vStamp, T[1], 62)
                I("v_readlane_b32", T[1], self.vStamp, 2)
                I("v_writelane_b32", self.vStamp, T[1], 47)
            I("buffer_store_dword", self.vStamp, V(120), self.sWS, T[0], mods="offen")
        I("s_or_b32", T[0], S(2), self.sW)
        I("s_cmp_lg_u32", T[0], 0)
        I("s_cbranch_scc1", "L_end")
        if self.opt.get("dbg"):
            I("s_load_dwordx2", S(8, 2), S(0, 2), 64)
            a.wait(lg=0)
            self.srd(S(12, 4), S(8, 2), 256)
            I("v_lshrrev_b32", V(120), 2, self.vL16)
            I("v_readlane_b32", T[0], self.vStamp, 0)
            I("v_readlane_b32", T[1], self.vStamp, 62)
            I("v_readlane_b32", T[2], self.vStamp, 63)
            I("s_sub_u32", T[1], T[2], T[1])
            I("v_subrev_u32", V(121), T[0], self.vStamp)
            I("v_writelane_b32", V(121), T[1], 0)
            I("v_readlane_b32", T[0], V(121), 32)
            I("v_writelane_b32", V(121), T[0], 15)
            I("buffer_store_dword", V(121), V(120), S(12, 4), 0, mods="offen")
        if self.opt.get("leak"):
            skip = self.lab("noleak")
            I("v_readlane_b32", T[1], self.vStamp, 62)
            I("v_readlane_b32", T[2], self.vStamp, 63)
            I("v_readlane_b32", T[3], self.vStamp, self.opt.get("leakidx", 0))
            I("v_readlane_b32", T[4], self.vStamp, 0)
            I("s_sub_u32", T[1], T[2], T[1])
            I("s_sub_u32", T[3], T[3], T[4])
            I("s_cmp_lt_u32", T[1], self.opt["leak"])
            I("s_cbranch_scc1", skip)
            I("s_cmp_eq_u32", self.sMode, 0)
            I("s_cbranch_scc1", skip)
            I("v_cvt_f32_u32", V(121), T[3] if self.opt.get("leakidx") else T[1])
            I("v_lshrrev_b32", V(121), 16, V(121))
            a.wait(vm=0)
            I("s_mov_b64", EXEC, 1)
            I("buffer_store_short", V(121), OFF, self.sOUT, 0)
            a.label(skip)
        I("s_add_u32", T[0], self.sNonce, "0x10100")
        I("v_mov_b32", V(120), T[0])
        I("s_mov_b64", EXEC, 1)
        I("buffer_store_dword", V(120), OFF, self.sWS, 0)
        I("s_endpgm")

    def build(self):
        a = self.a
        self.prologue()
        self.p_stage()
        self.qa_stage()
        self.qb_stage()
        self.final()
        done = 0
        while done < len(self.tail):
            a.forget_counters()
            a.pos += 100
            self.tail[done]()
            done += 1
        a.label("L_end")
        a.I("s_endpgm")
        head = open("cdna_kernels/" + NAME[:-7] + ".s.ref").read().split("; Override launch")[0]
        out = head + f"; @launch grid=(256,1,1) block=(256,1,1) lds={LDS_BYTES}\n"
        out += f'.amdgcn_target "amdgcn-amd-amdhsa--gfx950"\n.text\n.globl {NAME}\n.p2align 8\n.type {NAME},@function\n{NAME}:\n'
        out += a.text()
        out += f""".section .rodata,"a"
.p2align 6
.amdhsa_kernel {NAME}
  .amdhsa_next_free_vgpr 512
  .amdhsa_next_free_sgpr 102
  .amdhsa_accum_offset 256
  .amdhsa_group_segment_fixed_size 0
  .amdhsa_kernarg_size 80
  .amdhsa_user_sgpr_count 2
  .amdhsa_user_sgpr_kernarg_segment_ptr 1
  .amdhsa_system_sgpr_workgroup_id_x 1
.end_amdhsa_kernel
"""
        return out


if __name__ == "__main__":
    opt = {}
    path = sys.argv[1]
    for kv in sys.argv[2:]:
        k, v = kv.split("=")
        opt[k] = int(v)
    g = Gen(opt)
    open(path, "w").write(g.build())
    import subprocess
    r = subprocess.run(["clang", "-x", "assembler", "-target", "amdgcn-amd-amdhsa", "-mcpu=gfx950", "-c", path, "-o", "gen_check.o"], capture_output=True, text=True)
    if r.returncode: print(r.stderr[:3000]); sys.exit(1)
    sz = subprocess.run(["llvm-readelf", "-S", "gen_check.o"], capture_output=True, text=True).stdout
    print("text bytes", [int(l.split()[6], 16) for l in sz.splitlines() if " .text" in l],
          "instructions", sum(g.a.count.values()), "nop states", g.a.nops)
```

```python
import sys
import math
import struct
from emit import Asm, V, A, S, VCC, EXEC, M0, OFF, Special

VCC_LO = Special("vcc_lo", [("s", "vcc")])

NAME = "interleave_layers__sliding_local_dilated__linear_kernel_hedgehog__prompt_kernel"


def f32(x):
    return "0x%08x" % struct.unpack("<I", struct.pack("<f", x))[0]


WS_E = 0x0
WS_FX = 0x1000
WS_FO = 0x5000
WS_SLOW = 0x8000
WS_FH = 0x10000
WS_HELLO = 0x11000
WS_FWF = 0x12000
WS_STAMP = 0xC0000
WS_X = 0x100000
WS_XS = 0x2C0000
WS_O = 0x300000
WS_KV = 0x500000
WS_HX = 0x700000
WS_FW = 0x800000
FW_T = 16 * 86016
WS_SIZE = 0xB00000
OOB = 0x7FFF0000

MAT = 28672
L_PW = 86016
L_SP = 151552
L_KVX = L_SP
L_HX = L_SP
L_WPHI = L_SP + 8192
L_CS = L_SP + 10240
L_EXK = L_PW + 49152
L_EXV = L_EXK + 5120
L_PH = L_PW + 40960
LDS_BYTES = 163840

LOG2E = math.log2(math.e)


class Neg:
    def __init__(self, r): self.r = r
    def __str__(self): return "-" + str(self.r)
    def regs(self): return self.r.regs()


class Gen:
    def __init__(self, opt):
        self.opt = opt
        self.a = Asm()
        self.tail = []
        self.uid = 0

    def lab(self, base):
        self.uid += 1
        return f"L_{base}_{self.uid}"

    sX0, sWA, sWOA, sWB, sWOB, sOUT, sWS, sWP = (S(24 + 4 * i, 4) for i in range(8))
    (sGrp, sH, sW, sC, sRh, sBase, sTag, sMode, sIt, sPhase, sL, sBudget, sXq, sXSq, sOq, sXp, sXSp, sOp, sFXp, sFOq,
     sFOp, sHX, sHaloProd, sFHp, sKVst, sKVld, sQWo, sFirst, sPend, sX0o, sNonce, sXcc) = (S(56 + i) for i in range(32))
    sPWc = sX0
    sT = [S(88 + i) for i in range(8)]
    sT2 = S(96, 2)
    sStamp = S(98, 2)
    sFW, sQWl, sPWl, sPWo = S(4), S(5), S(6), S(7)

    vL16, vQ0, vQ1, vQv0, vQv1, vQh = (V(1 + i) for i in range(6))
    vP = [V(7 + i) for i in range(4)]
    vQWd, vX0d, vExpHC, vPollQ, vPollM, vPollP, vEXW, vEXRa, vHW, vM3, vStat = (V(11 + i) for i in range(11))
    vE0 = V(22, 2)
    vHalo, vHaloS, vStatSt, vZ, vExpHM, vExpC, vExpM, vMH = (V(24 + i) for i in range(8))
    vCH = V(32, 4)
    bCur, bPrev, bPrev0 = V(36, 4), V(40, 4), V(44, 4)
    vR = V(48, 16)
    cA, cB = V(64, 24), V(88, 24)
    vTA, vProbe, vHp, vQS = V(241), V(242), V(243), V(244)
    vDummy = V(245)
    vPWd = [V(246 + i) for i in range(4)]
    vKA, vKB, vPollH, vKrd, vStamp = (V(250 + i) for i in range(5))
    vT = V(255)

    aOnes, aSel, aWphi = A(232, 4), A(236, 6), A(242, 8)

    def acc(self, T, ft): return V(112 + (T * 6 + ft) * 4, 4)
    hacc = V(160, 4)
    def straw(self, T): return V(164 + 4 * T, 4)
    def st(self, T): return V(176 + 4 * T, 4)
    def xf(self, T, ks): return A((ks * 2 + T) * 4, 4)
    def hx(self, ks): return A(56 + 4 * ks, 4) if ks < 12 else self.wf(ks - 6)
    def stash(self, i): return A(112 + 4 * i, 4) if i < 14 else A(200 + 4 * (i - 14), 4)
    def wf(self, f): return A(168 + 4 * f, 4)

    def I(self, *x, **k): self.a.I(*x, **k)

    def stamp(self, real=False):
        if not self.opt.get("stamps"):
            return
        a = self.a
        a.I("s_memrealtime" if real or self.opt.get("real") else "s_memtime", self.sStamp)
        a.I("s_mov_b32", M0, self.sT[7])
        a.wait(lg=0)
        a.I("v_writelane_b32", self.vStamp, self.sStamp[0], M0)
        a.I("s_add_u32", self.sT[7], self.sT[7], 1)
        if getattr(self, "fine_pending", False):
            self.fine_pending = False
            for i in range(7): a.I("v_writelane_b32", self.vStamp, S(8 + 2 * i), 40 + i)
            a.I("v_writelane_b32", self.vStamp, self.sStamp[0], 47)

    def fine(self, region, i):
        if self.opt.get("fine") == region and region == 5:
            self.a.raw("    s_memtime s[100:101]")
            self.a.raw("    s_waitcnt lgkmcnt(0)")
            self.a.raw(f"    v_writelane_b32 v240, s100, {i}")
            self.a.pos += 3
            return
        if self.opt.get("fine") == region:
            self.a.raw(f"    s_memtime s[{8 + 2 * i}:{9 + 2 * i}]")
            self.a.pos += 1
            self.fine_pending = True

    def srd(self, dst, src, nbytes):
        self.I("s_mov_b32", dst[0], src[0])
        self.I("s_and_b32", dst[1], src[1], "0xffff")
        self.I("s_mov_b32", dst[2], nbytes)
        self.I("s_mov_b32", dst[3], "0x20000")

    def mfma(self, d, x, y, c):
        self.I("v_mfma_f32_16x16x32_bf16", d, x, y, c)

    def pk(self, op, d, x, y, z=None, bx=None, by=None, bz=None):
        srcs = [(x, bx), (y, by)] + ([(z, bz)] if z is not None else [])
        lo = [0 if b is None else b for _, b in srcs]
        hi = [1 if b is None else b for _, b in srcs]
        mods = []
        if any(lo): mods.append("op_sel:[%s]" % ",".join(map(str, lo)))
        if not all(hi): mods.append("op_sel_hi:[%s]" % ",".join(map(str, hi)))
        self.I(op, d, *[s for s, _ in srcs], mods=" ".join(mods))

    def allreduce_pairs(self, chains):
        for step in range(7):
            for op, x, y in chains:
                if step in (0, 6): self.I("v_permlane32_swap_b32", x, y)
                elif step in (1, 4): self.I(op, x, x, y)
                elif step in (2, 5): self.I("v_mov_b32", y, x)
                else: self.I("v_permlane16_swap_b32", x, y)

    def budget_branch(self, loop):
        self.I("s_sub_u32", self.sBudget, self.sBudget, 1)
        self.I("s_cbranch_scc1", "L_end")
        self.I("s_branch", loop)

    def flag_value(self, dst):
        self.I("s_lshl_b32", dst, self.sL, 4)
        self.I("s_or_b32", dst, dst, self.sBase)

    def publish(self, soff):
        a = self.a
        slow, done = self.lab("pubslow"), self.lab("pubdone")
        a.I("s_cmp_eq_u32", self.sMode, 0)
        a.I("s_cbranch_scc1", slow)
        a.I("s_mov_b64", EXEC, 1)
        a.I("buffer_store_dword", self.vT, OFF, self.sWS, soff)
        a.label(done)
        a.I("s_mov_b64", EXEC, -1)

        def tail():
            b = self.a
            b.label(slow)
            b.I("buffer_wbl2", mods="sc1")
            b.wait(vm=0)
            b.I("s_mov_b64", EXEC, 1)
            b.I("buffer_store_dword", self.vT, OFF, self.sWS, soff, mods="sc1")
            b.I("s_branch", done)
        self.tail.append(tail)

    def sched(self, mfmas, streams):
        a = self.a
        streams = [list(s) for s in streams]
        for i, m in enumerate(mfmas):
            self.mfma(*m)
            scalar_free = True
            if i + 1 < len(mfmas):
                n = mfmas[i + 1]
                if a.prewait(n[1], n[2]): scalar_free = False
            if scalar_free:
                for s in streams:
                    if s and s[0][0] <= i and s[0][1] == "s":
                        s.pop(0)[2]()
                        break
            slots = 2
            progress = True
            while slots > 0 and progress:
                progress = False
                for s in streams:
                    if not s or s[0][0] > i: continue
                    cost = 2 if s[0][1] == "w" else 1
                    if cost <= slots:
                        s.pop(0)[2]()
                        slots -= cost
                        progress = True
                        break
        return [it[2] for s in streams for it in s]

    def fw_piece(self, n):
        off = (n // 7) * MAT + (n % 7) * 1024
        self.I("s_add_u32", M0, self.sQWl, off, m0="fw")
        self.I("s_add_u32", self.sT[6], self.sFW, off)
        self.I("buffer_load_dwordx4", self.vL16, self.sWS, self.sT[6], mods="offen lds", untracked=True, m0="fw")

    def piece(self, n): return f"offset:{(n // 7) * MAT + (n % 7) * 1024}"

    def unpark(self, pieces):
        for n in pieces: self.I("ds_write_b128", self.vQS, self.stash(n), mods=self.piece(n))

    def qb_shadow(self):
        a, I = self.a, self.I
        second, done = self.lab("ab2"), self.lab("abdone")
        I("s_cmp_lg_u32", self.sIt, 0)
        I("s_cbranch_scc1", second)
        for n in self.fw_left: self.fw_piece(n)
        a.raw(f"    s_waitcnt vmcnt({1 + len(self.fw_left)})")
        a.pos += 1
        I("s_barrier")
        I("s_lshl_b32", self.sT[0], self.sW, 6)
        self.colsum_part(self.vQh, list(range(14)), 128)
        a.wait_lg_all()
        a.flush()
        I("s_branch", done)
        a.label(second)
        self.unpark(range(7))
        a.label(done)

    def b_to_a(self, pieces):
        a, I = self.a, self.I
        done = self.lab("badone")
        if self.it_b is not None:
            I("s_cmp_lg_u32", self.sIt, self.it_b)
            I("s_cbranch_scc1", done)
        for n in pieces:
            I("ds_read_b128", self.stash(n), self.vQS, mods=self.piece(n))
            I("ds_write_b128", self.vQS, self.stash(n + 1), mods=self.piece(n))
        a.label(done)

    def pw_dma(self, srd, which):
        out = []
        for i in which:
            out.append(("s", lambda i=i: self.I("s_add_u32", M0, self.sPWl, i * 16384, m0="pw")))
            out.append(("s", lambda i=i: self.I("s_add_u32", self.sT[5], self.sPWo, 4 * 28 * i * 896)))
            for b in range(4):
                out.append(("v", lambda b=b: self.I("buffer_load_dwordx4", self.vPWd[b], srd, self.sT[5], mods=f"offen offset:{b * 1024} lds", m0="pw")))
        return out

    def raw_block(self, ks):
        for half in range(2):
            self.I("s_add_u32", M0, self.sT[4], ks * 2048 + half * 1024)
            self.I("s_add_u32", self.sT[6], self.sQWo, (32 * ks + 16 * half) * 2688)
            self.I("buffer_load_dwordx4", self.vQWd, self.sWA, self.sT[6], mods="offen lds", tag=f"raw{ks}")

    def tr_pair(self, dst, base, off):
        return [lambda: self.I("ds_read_b64_tr_b16", dst[0:2], base, mods=f"offset:{off}"),
                lambda: self.I("ds_read_b64_tr_b16", dst[2:4], base, mods=f"offset:{off + 1024}")]

    def qw_read(self, dst, ft, ks):
        base = (self.vQ0, self.vQ1, self.vQ0, self.vQ1, self.vQv0, self.vQv1)[ft]
        return self.tr_pair(dst, base, (MAT if ft in (2, 3) else 0) + ks * 2048)

    def bg(self, n=1):
        if self.bg_next >= self.bg_max: return
        skip = self.lab("bg")
        self.I("s_cmp_eq_u32", self.sW, 3)
        self.I("s_cbranch_scc1", skip)
        for _ in range(n):
            if self.bg_next < self.bg_max:
                self.raw_block(self.bg_next)
                self.bg_next += 1
        self.a.label(skip)

    def prologue(self):
        a, I = self.a, self.I
        T = self.sT
        self.bg_next, self.bg_max = 0, self.opt.get("n1", 2)
        I("s_load_dwordx8", S(4, 8), S(0, 2), 0)
        I("s_getpc_b64", S(22, 2))
        a.label("L_pc")
        if self.opt.get("pf0", 47):
            I("v_min_u32", V(113), self.opt.get("pf0", 47), V(0))
            I("v_lshlrev_b32", V(113), 7, V(113))
            I("global_load_dword", self.vDummy, V(113), S(22, 2), mods="offset:128", untracked=True)
        I("s_load_dwordx8", S(12, 8), S(0, 2), 32)
        I("s_load_dwordx2", S(20, 2), S(0, 2), 72)
        if self.opt.get("stamps"):
            I("s_memrealtime", S(100, 2))
            I("s_memtime", self.sStamp)
        I("s_cmp_ge_u32", S(2), 256)
        I("s_cbranch_scc1", "L_end")
        I("v_lshrrev_b32", V(114), 6, V(0))
        I("s_lshr_b32", T[1], S(2), 3)
        I("v_and_b32", V(0), 63, V(0))
        I("v_readfirstlane_b32", self.sW, V(114))
        I("s_mul_i32", T[0], T[1], 1280)
        I("v_min_u32", V(112), 9, V(0))
        I("v_lshl_add_u32", V(112), V(112), 7, T[0])
        I("v_min_u32", V(112), "L_end-L_pc", V(112))
        I("global_load_dword", self.vDummy, V(112), S(22, 2), untracked=True)
        I("s_and_b32", T[0], S(2), 7)
        I("s_and_b32", self.sH, T[1], 15)
        I("s_lshr_b32", T[1], T[1], 4)
        I("s_lshl_b32", T[0], T[0], 1)
        I("s_add_u32", self.sGrp, T[0], T[1])
        I("s_and_b32", self.sC, self.sH, 7)
        I("s_lshr_b32", self.sRh, self.sH, 3)
        lane, j, g, t0, t1, t2 = V(0), V(115), V(116), V(117), V(118), V(119)
        I("s_lshl_b32", T[0], self.sGrp, 3)
        I("s_lshl_b32", T[1], self.sRh, 2)
        I("s_add_u32", T[0], T[0], T[1])
        I("s_add_u32", T[0], T[0], self.sW)
        I("s_and_b32", T[1], T[0], 63)
        I("s_mul_i32", T[1], T[1], 16 * 1792)
        I("s_lshr_b32", T[2], self.sGrp, 3)
        I("s_mul_i32", T[2], T[2], 896)
        I("s_add_u32", T[1], T[1], T[2])
        I("s_lshl_b32", T[2], self.sC, 7)
        I("s_add_u32", self.sX0o, T[1], T[2])
        I("v_lshrrev_b32", t0, 3, lane)
        I("v_mul_u32_u24", t0, 1792, t0)
        I("v_and_b32", t1, 7, lane)
        I("v_lshl_add_u32", self.vX0d, t1, 4, t0)
        I("v_min_u32", t0, 36, lane)
        I("v_lshlrev_b32", V(121), 7, t0)
        I("s_mov_b32", self.sX0[2], 1835008)
        I("s_mov_b32", self.sX0[3], "0x20000")
        I("s_mov_b32", self.sWA[2], 1204224)
        I("s_mov_b32", self.sWA[3], "0x20000")
        I("s_mul_i32", T[1], S(2), 37 * 128)
        I("s_min_u32", T[1], T[1], 1204224 - 37 * 128)
        I("s_sub_u32", T[2], self.sX0o, 3 * 16 * 1792)
        a.wait(lg=0)
        if self.opt.get("fine") == 5: a.raw("    v_writelane_b32 v240, s100, 63")
        self.fine(5, 0)
        I("s_load_dword", self.sNonce, S(20, 2), WS_E)
        for r, p in ((self.sX0, 4), (self.sWA, 6)):
            I("s_mov_b32", r[0], S(p))
            I("s_and_b32", r[1], S(p + 1), "0xffff")
        no3, nox = self.lab("not3"), self.lab("nox0")
        I("s_cmp_lg_u32", self.sW, 3)
        I("s_cbranch_scc1", no3)
        I("s_cmp_eq_u32", self.sC, 7)
        I("s_cbranch_scc1", nox)
        for t in range(4):
            I("s_mov_b32", M0, L_SP + 2048 * t)
            I("s_add_u32", T[5], T[2], t * 16 * 1792)
            I("s_add_u32", T[6], T[2], t * 16 * 1792 + 8 * 1792 - 1024)
            I("buffer_load_dwordx4", self.vX0d, self.sX0, T[5], mods="offen lds")
            I("buffer_load_dwordx4", self.vX0d, self.sX0, T[6], mods="offen offset:1024 lds")
        a.label(nox)
        I("buffer_load_dword", self.vDummy, V(121), self.sWA, T[1], mods="offen", nodest=True)
        a.label(no3)
        I("v_and_b32", j, 15, lane)
        I("v_lshrrev_b32", g, 4, lane)
        I("v_lshlrev_b32", self.vL16, 4, lane)
        I("v_lshrrev_b32", t0, 2, lane)
        I("v_mul_u32_u24", t1, 2688, t0)
        I("v_lshrrev_b32", t0, 3, lane)
        I("v_and_b32", t0, 2, t0)
        I("v_and_b32", t2, 3, lane)
        I("v_xor_b32", t0, t0, t2)
        I("v_lshl_add_u32", self.vQWd, t0, 4, t1)
        I("s_mul_i32", self.sQWo, self.sH, 56)
        I("s_mul_i32", T[1], self.sW, 896)
        I("s_add_u32", self.sQWo, self.sQWo, T[1])
        I("s_mul_i32", T[4], self.sW, MAT)
        for r, p, n in ((self.sWS, 20, WS_SIZE), (self.sWB, 12, 1204224), (self.sWP, 14, 25088), (self.sWOA, 8, 401408),
                        (self.sWOB, 16, 401408), (self.sOUT, 18, 1835008)):
            self.srd(r, S(p, 2), n)
        self.bg()
        I("s_getreg_b32", self.sXcc, "hwreg(HW_REG_XCC_ID)")
        I("s_and_b32", self.sXcc, self.sXcc, 15)
        I("s_lshl_b32", T[1], self.sGrp, 3)
        I("s_lshl_b32", T[2], self.sW, 1)
        I("s_add_u32", T[1], T[1], T[2])
        I("s_mul_i32", self.sXq, T[1], 14336)
        I("s_add_u32", self.sXq, self.sXq, WS_X)
        I("s_lshl_b32", self.sXSq, T[1], 10)
        I("s_add_u32", self.sXSq, self.sXSq, WS_XS)
        I("s_lshl_b32", self.sOq, T[1], 14)
        I("s_lshl_b32", T[2], self.sH, 10)
        I("s_add_u32", self.sOq, self.sOq, T[2])
        I("s_add_u32", self.sOq, self.sOq, WS_O)
        I("s_lshl_b32", T[3], T[1], 7)
        I("s_add_u32", T[3], T[3], WS_FX)
        I("s_mul_i32", self.sXp, T[0], 14336)
        I("s_lshl_b32", T[2], self.sC, 11)
        I("s_add_u32", self.sXp, self.sXp, T[2])
        I("s_add_u32", self.sXp, self.sXp, WS_X)
        I("s_lshl_b32", self.sXSp, T[0], 10)
        I("s_lshl_b32", T[2], self.sC, 7)
        I("s_add_u32", self.sXSp, self.sXSp, T[2])
        I("s_add_u32", self.sXSp, self.sXSp, WS_XS)
        I("s_lshl_b32", self.sOp, T[0], 14)
        I("s_add_u32", self.sOp, self.sOp, WS_O)
        I("s_lshl_b32", self.sFXp, T[0], 7)
        I("s_lshl_b32", T[2], self.sC, 2)
        I("s_add_u32", self.sFXp, self.sFXp, T[2])
        I("s_add_u32", self.sFXp, self.sFXp, WS_FX)
        I("s_lshl_b32", T[1], self.sGrp, 2)
        I("s_add_u32", T[2], T[1], self.sW)
        I("s_lshl_b32", self.sFOq, T[2], 7)
        I("s_lshl_b32", T[2], self.sH, 2)
        I("s_add_u32", self.sFOq, self.sFOq, T[2])
        I("s_add_u32", self.sFOq, self.sFOq, WS_FO)
        I("s_lshr_b32", T[2], T[0], 1)
        I("s_lshl_b32", self.sFOp, T[2], 7)
        I("s_add_u32", self.sFOp, self.sFOp, WS_FO)
        I("s_lshl_b32", self.sHX, self.sGrp, 14)
        I("s_add_u32", self.sHX, self.sHX, WS_HX)
        I("s_lshl_b32", self.sFHp, self.sGrp, 7)
        I("s_add_u32", self.sFHp, self.sFHp, WS_FH)
        I("s_and_b32", T[1], self.sGrp, 7)
        I("s_cmp_eq_u32", T[1], 0)
        I("s_cselect_b32", self.sFirst, 1, 0)
        I("s_cmp_lg_u32", T[1], 7)
        I("s_cselect_b32", T[1], 1, 0)
        I("s_and_b32", T[2], T[0], 7)
        I("s_cmp_eq_u32", T[2], 7)
        I("s_cselect_b32", self.sHaloProd, T[1], 0)
        I("s_lshl_b32", T[1], self.sH, 2)
        I("s_add_u32", T[1], T[1], self.sW)
        I("s_lshl_b32", self.sKVld, T[1], 14)
        I("s_add_u32", self.sKVld, self.sKVld, WS_KV)
        I("s_lshl_b32", T[1], self.sGrp, 10)
        I("s_add_u32", self.sKVst, self.sKVld, T[1])
        I("s_mov_b32", self.sMode, 1)
        I("s_mov_b32", self.sIt, 0)
        I("s_mov_b32", self.sPhase, 0)
        I("s_mov_b32", self.sL, 1)
        I("s_mov_b32", self.sPend, 0)
        I("s_mov_b32", self.sBudget, 400000)
        self.bg()
        I("v_min_u32", t0, 12, lane)
        I("v_lshlrev_b32", V(122), 7, t0)
        I("v_lshlrev_b32", self.vStatSt, 3, j)
        I("v_and_b32", t0, 7, j)
        I("v_lshlrev_b32", t0, 4, t0)
        I("v_lshl_add_u32", self.vHp, g, 7, t0)
        I("v_lshlrev_b32", t0, 7, j)
        I("v_lshl_add_u32", t0, g, 3, t0)
        I("v_add_u32", V(123), L_SP, t0)
        I("s_mul_i32", self.sQWl, self.sW, 7168)
        I("s_mul_i32", self.sFW, self.sH, 86016)
        I("s_add_u32", self.sFW, self.sFW, self.sQWl)
        I("s_add_u32", self.sFW, self.sFW, WS_FW)
        I("s_lshl_b32", self.sPWl, self.sW, 12)
        I("s_add_u32", self.sPWl, self.sPWl, L_PW)
        I("s_mul_i32", self.sPWo, self.sW, 28 * 896)
        I("s_min_u32", T[1], self.sC, 6)
        I("s_lshl_b32", T[1], T[1], 7)
        I("s_add_u32", self.sPWo, self.sPWo, T[1])
        if self.opt.get("stamps"):
            I("s_mov_b32", T[7], 1)
            I("v_mov_b32", self.vStamp, 0)
            I("v_writelane_b32", self.vStamp, self.sStamp[0], 0)
            if self.opt.get("fine") != 5: I("v_writelane_b32", self.vStamp, S(100), 62)
        self.bg()
        a.forget_counters()
        a.smem = {("s", self.sNonce.n)}
        self.fine(5, 1)

        r, cc = V(113), V(124)
        I("s_lshl_b32", T[1], self.sW, 11)
        I("v_add_u32", V(114), T[1], V(123))
        I("v_lshrrev_b32", r, 2, j)
        I("v_and_b32", cc, 3, j)
        I("v_lshl_add_u32", t0, g, 2, r)
        I("v_lshlrev_b32", t1, 3, cc)
        I("v_lshl_add_u32", t2, t0, 6, t1)
        I("v_and_b32", V(125), 1, g)
        I("v_lshl_add_u32", self.vQ0, V(125), 5, t2)
        I("v_xor_b32", self.vQ1, 32, self.vQ0)
        I("v_add_u32", self.vQv0, 2 * MAT, self.vQ0)
        I("v_add_u32", self.vQv1, 2 * MAT, self.vQ1)
        I("s_and_b32", T[1], self.sW, 1)
        I("s_lshl_b32", T[2], T[1], 5)
        I("v_xor_b32", self.vQh, T[2], self.vQ0)
        I("s_lshr_b32", T[2], self.sW, 1)
        I("s_add_u32", T[2], T[2], 1)
        I("s_mul_i32", T[2], T[2], MAT)
        I("v_add_u32", self.vQh, T[2], self.vQh)
        I("v_lshl_add_u32", t2, t0, 7, t1)
        I("v_add_u32", t2, L_PW, t2)
        I("v_lshrrev_b32", V(125), 1, t0)
        I("v_and_b32", V(125), 3, V(125))
        for n in range(4):
            I("v_xor_b32", V(126), n, V(125))
            I("v_lshl_add_u32", self.vP[n], V(126), 5, t2)
        self.bg()
        I("v_lshrrev_b32", V(125), 1, t0)
        I("v_xor_b32", V(125), V(125), cc)
        I("v_and_b32", V(125), 3, V(125))
        I("v_lshlrev_b32", V(125), 4, V(125))
        I("v_lshl_add_u32", V(126), t0, 6, V(125))
        I("s_lshl_b32", T[2], self.sW, 11)
        I("s_add_u32", T[5], T[2], L_EXV)
        I("v_add_u32", self.vEXRa, T[5], V(126))
        I("s_lshr_b32", T[5], self.sW, 1)
        I("s_lshl_b32", T[5], T[5], 13)
        I("s_add_u32", T[5], T[5], L_PH)
        I("v_add_u32", self.vKA, T[5], V(126))
        I("s_lshl_b32", T[5], T[1], 3)
        I("s_add_u32", T[5], T[5], L_PH + 16384)
        I("v_add_u32", self.vKB, T[5], V(126))
        I("v_lshrrev_b32", V(125), 1, j)
        I("v_xor_b32", V(125), V(125), g)
        I("v_and_b32", V(125), 3, V(125))
        I("v_lshlrev_b32", V(125), 4, V(125))
        I("v_lshl_add_u32", V(126), j, 6, V(125))
        I("v_add_u32", V(126), L_EXV, V(126))
        I("v_add_u32", self.vEXW, T[2], V(126))
        I("s_lshl_b32", T[5], self.sW, 10)
        I("v_add_u32", V(125), L_EXK, self.vL16)
        I("v_add_u32", self.vKrd, T[5], V(125))
        I("v_add_u32", self.vQS, self.sQWl, self.vL16)
        I("s_cmp_lt_u32", self.sW, 2)
        I("s_cselect_b64", VCC, -1, 0)
        I("v_cndmask_b32", V(126), V(126), V(125), VCC)
        I("s_lshl_b32", T[5], T[1], 3)
        I("v_add_u32", self.vHW, T[5], V(126))
        self.bg()
        I("v_lshrrev_b32", t0, 3, lane)
        I("v_mul_u32_u24", t1, 896, t0)
        I("v_and_b32", t0, 6, t0)
        I("v_and_b32", t2, 7, lane)
        I("v_xor_b32", t0, t0, t2)
        I("v_lshl_add_u32", self.vPWd[0], t0, 4, t1)
        for b in range(1, 4):
            I("v_add_u32", self.vPWd[b], b * (8 * 896 - 1024), self.vPWd[0])
        I("v_mov_b32", t1, OOB)
        I("v_cmp_gt_u32", VCC, 32, lane)
        I("v_cndmask_b32", self.vPWd[3], t1, self.vPWd[3], VCC)
        I("v_cmp_gt_u32", VCC, 48, lane)
        I("v_cndmask_b32", self.vM3, 0, -1, VCC)
        I("v_cndmask_b32", self.vE0[0], 1.0, 0, VCC)
        I("v_mov_b32", self.vE0[1], 0)
        I("s_cmp_eq_u32", T[1], 1)
        I("s_cselect_b64", VCC, -1, 0)
        I("v_cndmask_b32", self.vMH, -1, self.vM3, VCC)
        I("v_lshl_add_u32", self.vStat, g, 7, self.vStatSt)
        I("s_cmp_eq_u32", self.sFirst, 1)
        I("s_cselect_b64", VCC, -1, 0)
        I("v_cndmask_b32", self.vHalo, self.vL16, t1, VCC)
        I("v_cndmask_b32", self.vHaloS, self.vStat, t1, VCC)
        I("s_or_b32", T[2], self.sGrp, 1)
        I("s_add_u32", T[2], T[2], 1)
        I("v_add_u32", t0, T[2], j)
        I("v_and_b32", t0, 15, t0)
        I("v_lshlrev_b32", self.vProbe, 10, t0)
        I("v_lshrrev_b32", t0, 3, lane)
        I("v_add_u32", t0, T[2], t0)
        I("v_and_b32", t0, 15, t0)
        I("v_lshlrev_b32", t0, 3, t0)
        I("v_and_b32", t2, 7, lane)
        I("v_add_lshl_u32", self.vTA, t0, t2, 7)
        self.bg()
        I("v_lshlrev_b32", self.vZ, 8, g)
        I("v_add_u32", self.vZ, L_KVX + 1024 + 12 * 16, self.vZ)
        I("v_lshlrev_b32", self.vPollP, 2, j)
        I("v_and_b32", t0, 7, lane)
        I("v_min_u32", t0, 6, t0)
        I("v_lshlrev_b32", V(127), 2, t0)
        I("v_min_u32", t0, 13, j)
        I("v_lshlrev_b32", t0, 2, t0)
        I("s_lshl_b32", T[5], self.sH, 7)
        I("s_add_u32", T[5], T[5], WS_FWF)
        I("v_add_u32", t0, T[5], t0)
        I("v_add_u32", t2, self.sFHp, V(127))
        I("s_cmp_eq_u32", self.sFirst, 1)
        I("s_cselect_b32", T[5], 0, 16)
        I("v_cmp_gt_u32", VCC, T[5], lane)
        I("v_cndmask_b32", self.vPollH, t0, t2, VCC)
        I("v_cndmask_b32", self.vExpHM, 0, 16, VCC)
        I("v_cndmask_b32", self.vExpHC, 16, 0, VCC)
        I("v_lshrrev_b32", t2, 3, j)
        I("v_lshl_add_u32", t2, t2, 7, V(127))
        I("v_add_u32", t2, T[3], t2)
        I("s_lshl_b32", T[5], self.sGrp, 7)
        I("s_add_u32", T[5], T[5], WS_HELLO)
        I("v_add_u32", t0, T[5], self.vPollP)
        I("v_and_b32", V(125), 1, g)
        I("v_cmp_eq_u32", VCC, 0, V(125))
        I("v_cndmask_b32", self.vPollQ, t0, t2, VCC)
        I("v_cndmask_b32", self.vPollM, -16, -1, VCC)
        I("v_cndmask_b32", self.vExpM, 0, 16, VCC)
        I("v_mov_b32", t0, self.sXcc)
        I("v_cndmask_b32", self.vExpC, t0, 0, VCC)
        self.bg()
        I("v_mov_b32", V(125), f32(-1e30))
        for rr in range(4):
            I("v_lshl_add_u32", t0, g, 2, rr)
            I("v_sub_u32", t2, j, t0)
            I("v_cmp_gt_u32", VCC, 8, t2)
            I("v_cndmask_b32", self.bCur[rr], V(125), 0, VCC)
            I("v_add_u32", t2, 16, t2)
            I("v_cmp_gt_u32", VCC, 8, t2)
            I("v_cndmask_b32", self.bPrev[rr], V(125), 0, VCC)
        I("s_cmp_eq_u32", self.sW, 0)
        I("s_cselect_b32", T[2], self.sFirst, 0)
        I("s_cmp_eq_u32", T[2], 1)
        I("s_cselect_b64", VCC, -1, 0)
        for rr in range(4):
            I("v_cndmask_b32", self.bPrev0[rr], self.bPrev[rr], V(125), VCC)
        self.bg()
        I("v_mov_b32", t0, "0x3f803f80")
        for k in range(4): I("v_accvgpr_write_b32", self.aOnes[k], t0)
        for k in (0, 1, 4, 5): I("v_accvgpr_write_b32", self.aSel[k], 0)
        I("v_and_b32", V(125), 1, j)
        I("v_lshlrev_b32", V(125), 4, V(125))
        I("v_mov_b32", t0, "0x3f80")
        I("v_lshlrev_b32", t0, V(125), t0)
        I("v_cmp_eq_u32", VCC, r, g)
        I("v_cndmask_b32", t0, 0, t0, VCC)
        I("v_cmp_gt_u32", VCC, 2, cc)
        I("v_cndmask_b32", t2, 0, t0, VCC)
        I("v_cndmask_b32", t0, t0, 0, VCC)
        I("v_accvgpr_write_b32", self.aSel[2], t2)
        I("v_accvgpr_write_b32", self.aSel[3], t0)
        I("v_mov_b32", V(127), V(0))
        I("v_mov_b32", V(0), V(114))
        a.wait(lg=0)
        I("s_add_u32", T[1], self.sNonce, "0x10100")
        I("s_and_b32", self.sBase, T[1], "0xffffff00")
        I("s_and_b32", self.sTag, T[1], "0x3fff0000")
        I("v_or_b32", self.vExpC, self.sBase, self.vExpC)
        I("v_or_b32", self.vExpHC, self.sBase, self.vExpHC)
        self.stamp()
        I("s_cmp_eq_u32", self.sW, 3)
        I("s_cbranch_scc1", "L_s0")
        I("s_barrier")
        self.stamp()

        N1 = self.bg_next
        ad0, ad1 = V(188), V(189)
        d0, d1 = V(192, 4), V(196, 4)
        I("v_add_u32", ad0, T[4], self.vQ0)
        I("v_add_u32", ad1, T[4], self.vQ1)
        a.vm = [(f"raw{ks}", set()) for ks in range(N1) for _ in range(2)]
        AH = self.opt.get("ah", 6)
        nxt = N1
        for ks in range(14):
            while nxt < 14 and nxt <= ks + AH:
                self.raw_block(nxt)
                nxt += 1
            a.wait_vm_tag(f"raw{ks}")
            w0, w1 = self.wf(2 * (ks & 1)), self.wf(2 * (ks & 1) + 1)
            for f in self.tr_pair(w0, ad0, ks * 2048) + self.tr_pair(w1, ad1, ks * 2048): f()
            if ks:
                p0, p1 = self.wf(2 * ((ks - 1) & 1)), self.wf(2 * ((ks - 1) & 1) + 1)
                self.mfma(d0, p0, self.aOnes, 0 if ks == 1 else d0)
                self.mfma(d1, p1, self.aOnes, 0 if ks == 1 else d1)
        self.mfma(d0, self.wf(2), self.aOnes, d0)
        self.mfma(d1, self.wf(3), self.aOnes, d1)
        I("v_lshrrev_b32", ad0, 8, self.vL16)
        I("v_lshlrev_b32", ad0, 4, ad0)
        I("s_lshl_b32", T[0], self.sW, 7)
        I("s_add_u32", T[0], T[0], L_CS)
        I("v_add_u32", ad0, T[0], ad0)
        I("s_mov_b32", self.sT2[0], "0x00010001")
        I("s_mov_b32", self.sT2[1], "0x00010001")
        a.flush()
        I("s_mov_b64", EXEC, self.sT2)
        I("ds_write_b128", ad0, d0)
        I("ds_write_b128", ad0, d1, mods="offset:64")
        I("s_mov_b64", EXEC, -1)
        a.wait(lg=0)
        I("s_branch", "L_qa1")
        self.stage0()

    def stage0(self):
        a, I = self.a, self.I
        T = self.sT
        lane = V(127)
        idle, nohalo, pub, nofw = (self.lab(x) for x in ("idle", "nohalo", "pub", "nofw"))
        a.label("L_s0")
        a.forget_counters()
        a.pos += 100
        I("s_or_b32", T[1], self.sBase, 16)
        I("v_mov_b32", self.vT, T[1])
        I("s_or_b32", T[1], self.sBase, self.sXcc)
        I("v_mov_b32", V(112), T[1])
        I("s_lshl_b32", T[1], self.sGrp, 7)
        I("s_lshl_b32", T[2], self.sH, 2)
        I("s_add_u32", T[1], T[1], T[2])
        I("s_add_u32", T[1], T[1], WS_HELLO)
        I("s_mov_b64", EXEC, 1)
        I("buffer_store_dword", V(112), OFF, self.sWS, T[1], mods="sc1")
        I("s_mov_b64", EXEC, -1)
        I("s_cmp_eq_u32", self.sC, 7)
        I("s_cbranch_scc1", idle)
        a.wait(vm=2)
        self.fine(5, 2)
        xo = [V(128 + 8 * t, 8) for t in range(4)]
        pr = [V(160 + 2 * t, 2) for t in range(4)]
        for t in range(4):
            for n in range(4): I("ds_read_b64", xo[t][2 * n:2 * n + 2], V(123), mods=f"offset:{2048 * t + 32 * n}")
        one = V(125)
        I("v_mov_b32", one, "0x3f803f80")
        I("s_sub_u32", T[5], self.sXp, 3 * 14336)
        I("s_sub_u32", T[6], self.sXSp, 3 * 1024)
        for t in range(4):
            I("buffer_store_dwordx4", xo[t][0:4], self.vL16, self.sWS, T[5], mods="offen sc1")
            I("buffer_store_dwordx4", xo[t][4:8], self.vL16, self.sWS, T[5], mods="offen offset:1024 sc1")
            if t < 3: I("s_add_u32", T[5], T[5], 14336)
        for k in range(8):
            for t in range(4):
                I("v_dot2_f32_bf16", pr[t][0], xo[t][k], one, 0 if k == 0 else pr[t][0])
                I("v_dot2_f32_bf16", pr[t][1], xo[t][k], xo[t][k], 0 if k == 0 else pr[t][1])
        self.allreduce_pairs([("v_add_f32", pr[t][0], pr[t][1]) for t in range(4)])
        I("s_mov_b64", EXEC, "0xffff")
        for t in range(4):
            I("buffer_store_dwordx2", pr[t], self.vStatSt, self.sWS, T[6], mods=f"offen offset:{1024 * t} sc1")
        I("s_mov_b64", EXEC, -1)
        I("s_cmp_eq_u32", self.sHaloProd, 0)
        I("s_cbranch_scc1", nohalo)
        I("s_lshl_b32", T[1], self.sC, 10)
        I("s_add_u32", T[1], T[1], self.sHX)
        I("s_add_u32", T[1], T[1], 16384)
        I("s_mov_b32", self.sT2[0], "0xff00ff00")
        I("s_mov_b32", self.sT2[1], "0xff00ff00")
        I("s_mov_b64", EXEC, self.sT2)
        I("buffer_store_dwordx4", xo[3][0:4], self.vHp, self.sWS, T[1], mods="offen sc1")
        I("buffer_store_dwordx4", xo[3][4:8], self.vHp, self.sWS, T[1], mods="offen offset:512 sc1")
        I("s_lshl_b32", T[1], self.sC, 7)
        I("s_add_u32", T[1], T[1], self.sHX)
        I("s_add_u32", T[1], T[1], 16384 + 14336)
        I("s_mov_b64", EXEC, "0xffff")
        I("buffer_store_dwordx2", pr[3], self.vStatSt, self.sWS, T[1], mods="offen sc1")
        I("s_mov_b64", EXEC, -1)
        a.label(nohalo)
        a.flush()
        I("v_and_b32", V(126), 3, lane)
        I("v_lshlrev_b32", V(126), 7, V(126))
        I("v_lshrrev_b32", V(113), 2, lane)
        I("v_lshl_add_u32", V(126), V(113), 15, V(126))
        I("s_sub_u32", T[2], self.sFXp, 3 * 128)
        I("v_add_u32", V(126), T[2], V(126))
        I("s_lshl_b32", T[1], self.sC, 2)
        I("s_add_u32", T[1], T[1], self.sFHp)
        I("s_add_u32", T[1], T[1], 128)
        I("v_writelane_b32", V(126), T[1], 8)
        I("s_lshl_b32", T[1], self.sHaloProd, 8)
        I("s_or_b32", self.sT2[0], T[1], "0xff")
        I("s_mov_b32", self.sT2[1], 0)
        if not self.opt.get("late_release"): I("s_barrier")
        a.wait(vm=0)
        I("s_mov_b64", EXEC, self.sT2)
        I("buffer_store_dword", self.vT, V(126), self.sWS, 0, mods="offen sc1")
        I("s_mov_b64", EXEC, -1)
        if self.opt.get("late_release"): I("s_barrier")
        self.fine(5, 3)
        I("s_branch", pub)
        a.label(idle)
        I("s_barrier")
        a.label(pub)
        self.stamp()
        a.forget_counters()
        I("s_cmp_ge_u32", self.sGrp, 14)
        I("s_cbranch_scc1", nofw)
        I("s_mul_i32", T[2], self.sH, 56)
        I("s_mul_i32", T[1], self.sGrp, 32 * 2688)
        I("s_add_u32", T[2], T[2], T[1])
        for mat in range(3):
            for half in range(2):
                I("s_add_u32", T[1], T[2], mat * 896 + half * 16 * 2688)
                I("buffer_load_dwordx4", V(168 + 8 * mat + 4 * half, 4), self.vQWd, self.sWB, T[1], mods="offen")
        I("s_lshl_b32", T[1], self.sGrp, 11)
        I("s_add_u32", T[1], T[1], self.sFW)
        I("s_sub_u32", T[1], T[1], 3 * 7168)
        for mat in range(3):
            I("s_add_u32", T[2], T[1], mat * MAT)
            for half in range(2):
                I("buffer_store_dwordx4", V(168 + 8 * mat + 4 * half, 4), self.vL16, self.sWS, T[2], mods=f"offen offset:{half * 1024} sc1")
        a.label(nofw)
        I("s_mul_i32", T[1], self.sH, 1568)
        I("s_mov_b32", M0, L_WPHI)
        I("s_mul_i32", T[2], S(2), 13 * 128)
        I("s_min_u32", T[2], T[2], 401408 - 13 * 128)
        I("v_lshrrev_b32", V(112), 3, lane)
        I("v_and_b32", V(113), 7, lane)
        I("v_lshlrev_b32", V(113), 7, V(113))
        I("v_lshl_add_u32", V(126), V(112), 14, V(113))
        I("s_sub_u32", T[5], self.sOq, 6 * 16384)
        I("buffer_load_dwordx4", self.vL16, self.sWP, T[1], mods="offen lds")
        I("buffer_load_dwordx4", self.vL16, self.sWP, T[1], mods="offen offset:1024 lds")
        I("buffer_load_dword", self.vDummy, V(122), self.sWOA, T[2], mods="offen", nodest=True)
        I("buffer_load_dword", self.vDummy, V(122), self.sWOB, T[2], mods="offen", nodest=True)
        I("buffer_load_dword", self.vDummy, V(126), self.sWS, T[5], mods="offen", nodest=True)
        I("s_lshl_b32", T[1], self.sH, 7)
        I("s_lshl_b32", T[2], self.sGrp, 2)
        I("s_add_u32", T[1], T[1], T[2])
        I("s_add_u32", T[1], T[1], WS_FWF)
        I("s_cmp_ge_u32", self.sGrp, 14)
        I("s_cbranch_scc1", "L_qa1")
        a.wait(vm=5)
        I("s_mov_b64", EXEC, 1)
        I("buffer_store_dword", self.vT, OFF, self.sWS, T[1], mods="sc1")
        I("s_mov_b64", EXEC, -1)
        self.fine(5, 4)
        I("s_branch", "L_qa1")

    def p_stage(self):
        a, I = self.a, self.I
        T = self.sT
        NPRE = 12
        a.label("L_p")
        a.forget_counters()
        a.wait(lg=0)
        I("s_barrier")
        I("s_cmp_eq_u32", self.sC, 7)
        I("s_cbranch_scc1", "L_pidle")
        slots = [A(64 + 4 * k, 4) for k in range(12)] + [A(168 + 4 * k, 4) for k in range(8)] + [V(128 + 4 * k, 4) for k in range(28)]
        def pwf(hh, n): return slots[(hh % NPRE) * 4 + n]
        def pw_read(hh, n):
            return [lambda: I("ds_read_b64_tr_b16", pwf(hh, n)[0:2], self.vP[n], mods=f"offset:{hh * 4096}"),
                    lambda: I("ds_read_b64_tr_b16", pwf(hh, n)[2:4], self.vP[n], mods=f"offset:{hh * 4096 + 2048}")]
        self.flag_value(T[0])
        early = 8
        late = [f for _, f in self.pw_dma(self.sPWc, (2, 3))]
        PP = self.opt.get("pp", 5)
        for hh in range(early):
            for n in range(4):
                for f in pw_read(hh, n): f()
                if late and (n & 1 or hh == 0): late.pop(0)()
            if hh == PP: I("buffer_load_dword", V(112), self.vPollP, self.sWS, self.sFOp, mods="offen sc1")
        assert not late
        loop, ok = self.lab("ppoll"), self.lab("ppass")
        a.label(loop)
        a.wait(vm=0)
        I("v_cmp_ne_u32", VCC, T[0], V(112))
        I("s_cbranch_vccz", ok)
        I("buffer_load_dword", V(112), self.vPollP, self.sWS, self.sFOp, mods="offen sc1")
        self.budget_branch(loop)
        a.label(ok)
        a.vm = []
        self.stamp()
        def of(hh): return A(4 * hh, 4)
        def oload(hh):
            out = []
            if hh % 4 == 0 and hh:
                out.append(("s", lambda: I("s_add_u32", T[1], self.sOp, hh * 1024)))
            so = self.sOp if hh < 4 else T[1]
            out.append(("v", lambda: I("buffer_load_dwordx4", of(hh), self.vL16, self.sWS, so, mods=f"offen offset:{(hh % 4) * 1024} sc1")))
            return out
        NO = self.opt.get("no", 5)
        for hh in range(NO):
            for _, f in oload(hh): f()
        I("s_barrier")
        for hh in range(early, NPRE):
            for n in range(4):
                for f in pw_read(hh, n): f()
        mf, so, sw = [], [], []
        for hh in range(16):
            for n in range(4):
                mf.append((self.vR[4 * n:4 * n + 4], pwf(hh, n), of(hh), self.vR[4 * n:4 * n + 4]))
                if hh + NPRE < 16:
                    sw += [(4 * hh + n, "v", f) for f in pw_read(hh + NPRE, n)]
            if hh + NO < 16: so += [(4 * hh, k, f) for k, f in oload(hh + NO)]
        j, t = V(136), V(137)
        fa = [("v", lambda: I("v_lshrrev_b32", j, 2, self.vPollP)), ("v", lambda: I("v_lshrrev_b32", t, 9, self.vL16)),
              ("v", lambda: I("v_xor_b32", t, t, j)), ("v", lambda: I("v_and_b32", t, 7, t)), ("v", lambda: I("v_lshlrev_b32", t, 4, t)),
              ("v", lambda: I("v_lshl_add_u32", t, j, 7, t)), ("v", lambda: I("v_bfe_u32", j, self.vL16, 8, 1)),
              ("s", lambda: I("s_lshl_b32", T[1], self.sW, 11)), ("s", lambda: I("s_add_u32", T[1], T[1], L_SP)),
              ("v", lambda: I("v_lshl_add_u32", t, j, 3, t)), ("v", lambda: I("v_add_u32", V(132), T[1], t))]
        fa += [("v", lambda n=n: I("v_xor_b32", V(132 + n), 32 * n, V(132))) for n in range(1, 4)]
        fa += [("v", lambda: I("v_lshrrev_b32", j, 3, self.vL16)), ("v", lambda: I("v_and_b32", j, "0x70", j)),
               ("v", lambda: I("v_xor_b32", j, j, self.vL16)), ("v", lambda: I("v_add_u32", V(120), T[1], j)),
               ("s", lambda: I("s_add_u32", T[2], self.sX0o, 8 * 1792))]
        rest = self.sched(mf, [so, sw, [(48, k, f) for k, f in fa]])
        assert not rest
        a.flush()
        self.stamp()
        I("s_cmp_eq_u32", self.sL, 4)
        I("s_cbranch_scc1", "L_final")

        a.label("L_pepi")
        xo = V(112, 8)
        for k in range(8):
            I("v_cvt_pk_bf16_f32", xo[k], self.vR[2 * k], self.vR[2 * k + 1])
            if k == 3: I("buffer_store_dwordx4", xo[0:4], self.vL16, self.sWS, self.sXp, mods="offen")
        I("buffer_store_dwordx4", xo[4:8], self.vL16, self.sWS, self.sXp, mods="offen offset:1024")
        sm, sq = V(120, 2), V(122, 2)
        self.pk("v_pk_add_f32", sm, self.vR[0:2], self.vR[2:4])
        self.pk("v_pk_mul_f32", sq, self.vR[0:2], self.vR[0:2])
        self.pk("v_pk_fma_f32", sq, self.vR[2:4], self.vR[2:4], sq)
        for k in range(2, 8):
            self.pk("v_pk_add_f32", sm, sm, self.vR[2 * k:2 * k + 2])
            self.pk("v_pk_fma_f32", sq, self.vR[2 * k:2 * k + 2], self.vR[2 * k:2 * k + 2], sq)
        pr = V(124, 2)
        I("v_add_f32", pr[0], sm[0], sm[1])
        I("v_add_f32", pr[1], sq[0], sq[1])
        x, y = pr[0], pr[1]
        I("s_add_u32", self.sL, self.sL, 1)
        I("s_lshl_b32", T[0], self.sL, 4)
        I("v_permlane32_swap_b32", x, y)
        I("s_or_b32", T[0], T[0], self.sBase)
        I("v_add_f32", x, x, y)
        I("v_mov_b32", y, x)
        I("v_mov_b32", self.vT, T[0])
        I("s_cmp_eq_u32", self.sPhase, 0)
        I("v_permlane16_swap_b32", x, y)
        I("s_cselect_b32", self.sPend, self.sHaloProd, 0)
        I("v_add_f32", x, x, y)
        I("v_mov_b32", y, x)
        I("s_lshl_b32", T[1], self.sC, 10)
        I("s_add_u32", T[1], T[1], self.sHX)
        I("v_permlane32_swap_b32", x, y)
        I("s_mov_b64", EXEC, "0xffff")
        I("buffer_store_dwordx2", pr, self.vStatSt, self.sWS, self.sXSp, mods="offen")
        I("s_mov_b64", EXEC, -1)
        nh, pub = self.lab("nohalo"), self.lab("pub")
        I("s_cmp_eq_u32", self.sPend, 0)
        I("s_cbranch_scc0", nh)
        wb, wbd = self.lab("pwb"), self.lab("pwbd")
        I("s_cmp_eq_u32", self.sL, 4)
        I("s_cbranch_scc1", wb)
        a.label(wbd)
        def write_back():
            self.a.label(wb)
            for n in range(14, 21): self.I("ds_write_b128", self.vQS, self.stash(n), mods=self.piece(n))
            self.I("s_branch", wbd)
        self.tail.append(write_back)
        a.wait(vm=0)
        a.label(pub)
        self.publish(self.sFXp)

        def tail():
            b = self.a
            b.label(nh)
            b.I("s_add_u32", T[1], T[1], 16384)
            b.I("s_mov_b32", self.sT2[0], "0xff00ff00")
            b.I("s_mov_b32", self.sT2[1], "0xff00ff00")
            b.I("s_mov_b64", EXEC, self.sT2)
            b.I("buffer_store_dwordx4", xo[0:4], self.vHp, self.sWS, T[1], mods="offen sc1")
            b.I("buffer_store_dwordx4", xo[4:8], self.vHp, self.sWS, T[1], mods="offen offset:512 sc1")
            b.I("s_lshl_b32", T[1], self.sC, 7)
            b.I("s_add_u32", T[1], T[1], self.sHX)
            b.I("s_add_u32", T[1], T[1], 16384 + 14336)
            b.I("s_mov_b64", EXEC, "0xffff")
            b.I("buffer_store_dwordx2", pr, self.vStatSt, self.sWS, T[1], mods="offen sc1")
            b.I("s_mov_b64", EXEC, -1)
            b.wait(vm=3)
            b.I("s_branch", pub)
        self.tail.append(tail)
        a.label("L_pnext")
        a.flush()
        a.forget_counters()
        self.stamp()
        if self.opt.get("stop"):
            I("s_cmp_eq_u32", self.sL, self.opt["stop"])
            I("s_cbranch_scc1", "L_fin2")
        I("s_cmp_eq_u32", self.sPhase, 1)
        I("s_cbranch_scc1", "L_qb")

        def idle():
            b = self.a
            b.label("L_pidle")
            b.I("s_cmp_eq_u32", self.sL, 4)
            b.I("s_cbranch_scc1", "L_fin2")
            b.I("s_add_u32", self.sL, self.sL, 1)
            b.I("s_cmp_lg_u32", self.sL, 4)
            b.I("s_cbranch_scc1", "L_pnext")
            for n in range(14, 21): b.I("ds_write_b128", self.vQS, self.stash(n), mods=self.piece(n))
            b.I("s_branch", "L_pnext")
        self.tail.append(idle)

    def q_poll(self, shadow=None):
        a, I = self.a, self.I
        T = self.sT
        ex, t, pv = V(112), V(113), V(114)
        loop, ok, pend, nopend, slow, again = (self.lab(x) for x in ("qpoll", "qpass", "pend", "nopend", "qslow", "qagain"))
        I("v_mad_u32_u24", ex, self.vExpM, self.sL, self.vExpC)
        if shadow:
            chk = self.lab("qchk")
            I("buffer_load_dword", pv, self.vPollQ, self.sWS, 0, mods="offen sc1")
            shadow()
            I("s_branch", chk)
        a.label(loop)
        I("buffer_load_dword", pv, self.vPollQ, self.sWS, 0, mods="offen sc1")
        if shadow: a.label(chk)
        I("s_cmp_eq_u32", self.sPend, 0)
        a.wait(vm=0)
        I("s_cbranch_scc0", pend)
        a.label(nopend)
        I("v_xor_b32", t, pv, ex)
        I("v_cmp_ne_u32", VCC, 0, t)
        I("s_cbranch_vccnz", slow)
        a.label(ok)
        a.vm = []

        def tail():
            b = self.a
            b.label(pend)
            b.I("s_lshl_b32", T[1], self.sC, 2)
            b.I("s_add_u32", T[1], T[1], self.sFHp)
            self.flag_value(T[0])
            b.I("v_mov_b32", self.vT, T[0])
            b.I("s_mov_b64", EXEC, 1)
            b.I("buffer_store_dword", self.vT, OFF, self.sWS, T[1], mods="offset:128 sc1")
            b.I("s_mov_b64", EXEC, -1)
            b.I("s_mov_b32", self.sPend, 0)
            b.I("s_branch", nopend)
            b.label(slow)
            b.I("s_cmp_eq_u32", self.sMode, 0)
            b.I("s_cbranch_scc1", again + "m")
            b.I("v_not_b32", V(115), self.vPollM)
            b.I("v_and_b32", V(116), t, self.vPollM)
            b.I("v_and_b32", V(115), t, V(115))
            b.I("v_cmp_ne_u32", self.sT2, 0, V(115))
            b.I("v_cmp_eq_u32", VCC, 0, V(116))
            b.nop(2)
            b.I("s_cmp_eq_u64", self.sT2, 0)
            b.I("s_cbranch_scc1", again)
            b.I("s_andn2_b32", T[0], "0xffff0000", VCC_LO)
            b.I("s_cbranch_scc1", again)
            b.I("s_mov_b32", self.sMode, 0)
            b.I("s_add_u32", self.sFXp, self.sFXp, WS_SLOW)
            b.I("s_add_u32", self.sFOq, self.sFOq, WS_SLOW)
            b.I("s_add_u32", self.sFOp, self.sFOp, WS_SLOW)
            b.I("v_lshlrev_b32", V(115), 11, self.vExpM)
            b.I("v_add_u32", self.vPollQ, V(115), self.vPollQ)
            b.I("s_branch", again)
            b.label(again + "m")
            b.I("v_and_b32", V(116), t, self.vPollM)
            b.I("v_cmp_ne_u32", VCC, 0, V(116))
            b.I("s_cbranch_vccz", ok)
            b.label(again)
            self.budget_branch(loop)
        self.tail.append(tail)

    def xload(self, ks):
        out = []
        if ks % 4 == 0:
            out.append(("s", lambda: self.I("s_add_u32", self.sT[1], self.sXq, ks * 1024)))
            out.append(("s", lambda: self.I("s_add_u32", self.sT[2], self.sXq, ks * 1024 + 14336)))
        for t in range(2):
            out.append(("v", lambda t=t: self.I("buffer_load_dwordx4", self.xf(t, ks), self.vL16, self.sWS, self.sT[1 + t],
                                               mods=f"offen offset:{(ks % 4) * 1024} sc1")))
        return out

    def stats_ops(self, T, layer):
        raw, st = self.straw(T), self.st(T)
        t = V(188 + 2 * T, 2)
        ops = []
        def add(*x, **k): ops.append(("w" if ("perm" in x[0] or "rsq" in x[0]) else "v", lambda: self.I(*x, **k)))
        add("v_and_b32", raw[2], raw[2], self.vM3)
        add("v_and_b32", raw[3], raw[3], self.vM3)
        add("v_add_f32", raw[0], raw[0], raw[2])
        add("v_add_f32", raw[1], raw[1], raw[3])
        for step in range(7):
            x, y = raw[0], raw[1]
            if step in (0, 6): add("v_permlane32_swap_b32", x, y)
            elif step in (1, 4): add("v_add_f32", x, x, y)
            elif step in (2, 5): add("v_mov_b32", y, x)
            else: add("v_permlane16_swap_b32", x, y)
        add("v_mul_f32", st[0], f32(-1.0 / 448), raw[0])
        add("v_mul_f32", t[0], f32(1.0 / 448), raw[1])
        add("v_fma_f32", t[0], Neg(st[0]), st[0], t[0])
        add("v_max_f32", t[0], 0, t[0])
        add("v_add_f32", t[0], f32(1e-5), t[0])
        add("v_rsq_f32", st[1], t[0])
        add("v_and_b32", st[2], st[1], self.vMH if T == 2 else self.vM3)
        if T < 2:
            add("v_mul_f32", st[3], f32(LOG2E * (28 ** -0.5 if layer == "A" else 1.0)), st[1])
        return ops

    def colsum_part(self, ad, steps, cs_off):
        a, I = self.a, self.I
        d = V(192, 4)
        def w(k): return self.wf(k % 4)
        for k in range(4):
            for f in self.tr_pair(w(k), ad, steps[k] * 2048): f()
        mf, sw = [], []
        for k in range(len(steps)):
            mf.append((d, w(k), self.aOnes, 0 if k == 0 else d))
            if k + 4 < len(steps): sw += [(k, "v", f) for f in self.tr_pair(w(k), ad, steps[k + 4] * 2048)]
        assert not self.sched(mf, [sw])
        I("v_lshrrev_b32", V(189), 8, self.vL16)
        I("v_lshlrev_b32", V(189), 4, V(189))
        I("s_add_u32", self.sT[0], self.sT[0], L_CS + cs_off)
        I("v_add_u32", V(189), self.sT[0], V(189))
        I("s_mov_b32", self.sT2[0], "0x00010001")
        I("s_mov_b32", self.sT2[1], "0x00010001")
        a.flush()
        I("s_mov_b64", EXEC, self.sT2)
        I("ds_write_b128", V(189), d)
        I("s_mov_b64", EXEC, -1)

    def colsum_b_q(self):
        I, T = self.I, self.sT
        I("v_lshrrev_b32", V(188), 8, self.vL16)
        I("v_lshlrev_b32", V(188), 4, V(188))
        I("v_add_u32", V(188), L_CS, V(188))
        for ft in range(2, 6):
            I("ds_read_b128", self.cB[4 * ft:4 * ft + 4], V(188), mods=f"offset:{64 * ft}")
        I("s_lshr_b32", T[0], self.sW, 1)
        I("s_lshl_b32", T[0], T[0], 5)
        I("v_xor_b32", V(188), T[0], self.vQ0)
        I("s_and_b32", T[0], self.sW, 1)
        I("s_mul_i32", T[0], T[0], 7 * 2048)
        I("v_add_u32", V(188), T[0], V(188))
        I("s_lshl_b32", T[0], self.sW, 6)
        self.colsum_part(V(188), list(range(7)), 512)

    def colsum_b_q2(self):
        a, I = self.a, self.I
        done = self.lab("cq2")
        a.wait_lg_all()
        I("s_cmp_lg_u32", self.sIt, 0)
        I("s_cbranch_scc1", done)
        I("v_lshrrev_b32", V(188), 8, self.vL16)
        I("v_lshlrev_b32", V(188), 4, V(188))
        I("v_add_u32", V(188), L_CS + 512, V(188))
        for k in range(4):
            I("ds_read_b128", self.cB[4 * (k >> 1):4 * (k >> 1) + 4] if k % 2 == 0 else V(204 + 4 * (k >> 1), 4), V(188), mods=f"offset:{64 * k}")
        for k in range(8): I("v_add_f32", self.cB[k], self.cB[k], V(204 + k))
        a.flush()
        a.label(done)

    def cs_read(self, dst, with_halo):
        I = self.I
        ad = V(188)
        I("v_lshrrev_b32", ad, 8, self.vL16)
        I("v_lshlrev_b32", ad, 4, ad)
        I("v_add_u32", ad, L_CS, ad)
        for ft in range(6):
            I("ds_read_b128", dst[4 * ft:4 * ft + 4], ad, mods=f"offset:{64 * ft}")
        if with_halo:
            I("s_lshl_b32", self.sT[0], self.sW, 6)
            I("v_add_u32", V(189), self.sT[0], ad)
            I("ds_read_b128", self.vCH, V(189), mods="offset:128")

    def wphi_gather(self):
        a, I = self.a, self.I
        j, g, f1, ad, t = V(214), V(215), V(216), V(217), V(218)
        I("v_lshrrev_b32", g, 8, self.vL16)
        I("v_lshrrev_b32", j, 2, self.vPollP)
        I("v_lshrrev_b32", t, 2, j)
        I("v_sub_u32", f1, j, t)
        I("v_add_u32", f1, 16, f1)
        I("v_mul_u32_u24", ad, 4 * 56, g)
        I("v_add_u32", ad, L_WPHI, ad)
        I("v_lshl_add_u32", f1, f1, 1, ad)
        I("v_lshl_add_u32", ad, j, 1, ad)
        I("v_and_b32", t, 3, j)
        I("v_cmp_ne_u32", VCC, 3, t)
        I("v_cndmask_b32", t, 0, -1, VCC)
        I("v_and_b32", j, t, self.vM3)
        for oft, base in enumerate((ad, f1)):
            for e in range(8):
                d = e if e < 4 else 16 + e - 4
                I("ds_read_u16", V(204 + e), base, mods=f"offset:{d * 56}")
            for p in range(4):
                I("v_lshl_or_b32", V(204 + 2 * p), V(205 + 2 * p), 16, V(204 + 2 * p))
                m = (None, self.vM3)[p >> 1] if oft == 0 else (t, j)[p >> 1]
                if m is not None: I("v_and_b32", V(204 + 2 * p), V(204 + 2 * p), m)
                I("v_accvgpr_write_b32", self.aWphi[4 * oft + p], V(204 + 2 * p))

    def conv_scalar(self, dst, T, mat, c, scales):
        out = []
        st = self.st(T)
        for f in range(2):
            acc = self.acc(T, 2 * mat + f)
            cc = c[4 * (2 * mat + f):4 * (2 * mat + f) + 4]
            for k in range(4): out.append(lambda acc=acc, cc=cc, k=k: self.I("v_fma_f32", acc[k], cc[k], st[0], acc[k]))
            m = {"r": st[1], "m": st[2], None: None}[scales[f]]
            if m is not None:
                for k in range(4): out.append(lambda acc=acc, m=m, k=k: self.I("v_mul_f32", acc[k], acc[k], m))
            for p in range(2): out.append(lambda acc=acc, f=f, p=p: self.I("v_cvt_pk_bf16_f32", dst[2 * f + p], acc[2 * p], acc[2 * p + 1]))
        return out

    def check_parked(self, before):
        assert self.a.count["ds_read_b128"] - before == 21

    def q_ready(self, layer, first=False):
        a, I = self.a, self.I
        a.wait(lg=0)
        I("s_barrier")
        once = self.lab("once")
        if layer == "B":
            I("s_cmp_lg_u32", self.sIt, 0)
            I("s_cbranch_scc1", once)
        nvm = len(a.vm)
        if layer == "A" and not first:
            pass
        elif layer == "A":
            self.cs_read(self.cA, True)
            for n in range(4): I("ds_read_b64", V(200 + 2 * n, 2), V(0), mods=f"offset:{32 * n}")
            for n in range(4):
                for p in range(2):
                    I("v_lshlrev_b32", self.vR[4 * n + 2 * p], 16, V(200 + 2 * n + p))
                    I("v_and_b32", self.vR[4 * n + 2 * p + 1], "0xffff0000", V(200 + 2 * n + p))
        else:
            self.colsum_b_q()
        a.wait_lg_all()
        a.flush()
        assert nvm == len(a.vm)
        a.label(once)
        for ft in range(6):
            for f in self.qw_read(self.wf(ft), ft, 0): f()

    def q_gemm(self, layer, tail_ops=(), first=None):
        a, I = self.a, self.I
        T = self.sT
        isA = layer == "A"
        LOOK = self.opt.get("look", 3)
        for ks in range(2):
            for _, f in self.xload(ks): f()
        if not isA: self.q_ready("B")
        for _, f in self.xload(2): f()
        reads0, writes0 = a.count.get("ds_read_b64_tr_b16", 0) - 12, a.count.get("ds_write_b128", 0)
        parked0 = a.count.get("ds_read_b128", 0)
        def bar(n):
            assert a.count["ds_read_b64_tr_b16"] - reads0 == n and not a.lg and a.count.get("ds_write_b128", 0) == writes0
            I("s_barrier")

        G = 12
        mf, sw, sx, sd, sv, sh, stc = [], [], [], [], [], [], []
        for ks in range(14):
            order = (2, 3, 4, 5, 0, 1) if ks == 13 else range(6)
            for ft in order:
                for t in ((1, 0) if ks == 13 else (0, 1)):
                    mf.append((self.acc(t, ft), self.wf(ft), self.xf(t, ks), 0 if ks == 0 else self.acc(t, ft)))
                if ks < 13:
                    sw += [(len(mf) - 1, "v", f) for f in self.qw_read(self.wf(ft), ft, ks + 1)]
        for k in range(3, 14):
            gap = max(0, G * (k - LOOK) - (6 if k > 6 else 0))
            xl = self.xload(k)
            sx += [(gap, kind, f) for kind, f in xl[:-1]] + [(gap + 4, "v", xl[-1][1])]
            if k in (6, 7):
                for t in (k - 6,):
                    for q in range(2):
                        sx.append((gap + 7 + 2 * q, "v", lambda t=t, q=q: I(
                            "buffer_load_dwordx2", self.straw(t)[2 * q:2 * q + 2], self.vStat, self.sWS, self.sXSq,
                            mods=f"offen offset:{t * 1024 + 512 * q} sc1")))
        s0, s1 = self.stats_ops(0, layer), self.stats_ops(1, layer)
        sv += [(G * 6 + 6, k, f) for p in zip(s0, s1) for k, f in p]
        sf = []
        if self.opt.get("fine") == (1 if isA else 2):
            sf = [(G * 2 * i, "s", lambda i=i: self.fine(1 if isA else 2, i)) for i in range(7)]
        nd = 0
        for k, f in self.pw_dma(self.sWOA if isA else self.sWOB, (0, 1)):
            sd.append((G * 10 + 2 + 5 * nd, k, f))
            nd += k == "v"
        if isA:
            HF, HC = self.opt.get("hf", 4), self.opt.get("hc", 8)
            hv, hx, fv = V(194), V(195), V(196)
            def check(reg, first, gap, shift):
                slow, back = self.lab("hslow"), self.lab("hback")
                out = [(first, "v", lambda: I("buffer_load_dword", reg, self.vPollH, self.sWS, 0, mods="offen sc1")),
                       (gap, "v", lambda: I("v_cmp_ne_u32", VCC, hx, reg))]
                if shift: out.append((gap, "s", lambda: I("s_lshr_b64", VCC, VCC, 16)))
                def br():
                    I("s_cbranch_scc1" if shift else "s_cbranch_vccnz", slow)
                    a.label(back)
                out.append((gap, "s", br))
                def tail():
                    b = self.a
                    b.label(slow)
                    b.I("s_sub_u32", self.sBudget, self.sBudget, 1)
                    b.I("s_cbranch_scc1", "L_end")
                    b.I("buffer_load_dword", reg, self.vPollH, self.sWS, 0, mods="offen sc1")
                    b.wait(vm=0)
                    b.I("v_cmp_ne_u32", VCC, hx, reg)
                    if shift: b.I("s_lshr_b64", VCC, VCC, 16)
                    b.I("s_cbranch_scc1" if shift else "s_cbranch_vccnz", slow)
                    b.I("s_branch", back)
                self.tail.append(tail)
                return out
            stc = [(2, "v", lambda: I("v_mad_u32_u24", hx, self.vExpHM, self.sL, self.vExpHC))]
            sh += check(hv, G * HF + 8, G * HC, False)
            sh.append((G * HC, "s", lambda: I("s_lshl_b32", T[0], self.sW, 11)))
            sh.append((G * HC, "s", lambda: I("s_add_u32", M0, T[0], L_HX, m0="halo")))
            sh.append((G * HC, "s", lambda: I("s_add_u32", T[0], T[0], self.sHX)))
            for q in range(2):
                sh.append((G * HC, "v", lambda q=q: I("buffer_load_dwordx4", self.vHalo, self.sWS, T[0], mods=f"offen offset:{1024 * q} sc1 lds", tag="halo", m0="halo")))
            sh.append((G * HC, "s", lambda: I("s_add_u32", T[0], self.sHX, 14336)))
            for q in range(2):
                sh.append((G * HC, "v", lambda q=q: I("buffer_load_dwordx2", self.straw(2)[2 * q:2 * q + 2], self.vHaloS, self.sWS, T[0],
                                                     mods=f"offen offset:{512 * q} sc1")))
            sh.append((G * HC, "v", lambda: I("v_add_u32", V(194), L_HX, self.vHp)))
            def hw(k): return A(4 * k, 4)
            shw = []
            for k in range(14): shw += [(G * (1 + (k * 11) // 14) + 3, "v", f) for f in self.tr_pair(hw(k), self.vQh, k * 2048)]
            sv += [(G * (HC + 4), k, f) for k, f in self.stats_ops(2, layer)]
            nb = len(mf) - 11
            sb = [(nb, "s", lambda: a.wait_vm_tag("halo")), (nb, "s", lambda: a.wait(lg=0)), (nb, "s", lambda: bar(168 + 28))]
            sb += [(nb, "v", lambda k=k: I("ds_read_b128", self.hx(k), V(194), mods=f"offset:{512 * k}")) for k in range(14)]
            n0 = len(mf)
            for k in range(14): mf.append((self.hacc, hw(k), self.hx(k), 0 if k == 0 else self.hacc))
            stl = [(n0 - 6, "v", f) for f in tail_ops]
            spark, sfw = [], []
            if first:
                spark = [(G * 6 + 4 * n, "v", lambda n=n: I("ds_read_b128", self.stash(n + 1), self.vQS, mods=self.piece(n))) for n in range(21)]
                sfw = [(nb + 6 + 8 * k, "w", first) for k in range(2)]
                sb.insert(0, (nb, "s", lambda: self.check_parked(parked0)))
            rest = self.sched(mf, [sf, sw, sx, stc, sh, shw, spark, sb, sd, sv, sfw, stl])
        else:
            n0 = len(mf)
            sb = [(n0 - 9, "s", lambda: a.wait(lg=0)), (n0 - 9, "s", lambda: bar(168))]
            stl = [(n0 - 7, "v", f) for f in tail_ops]
            rest = self.sched(mf, [sf, sw, sx, stc, sb, sd, sv, stl])
        return rest

    def ln(self, acc, c, st, scale):
        for p in range(2):
            self.pk("v_pk_fma_f32", acc[2 * p:2 * p + 2], c[2 * p:2 * p + 2], st[0:2], acc[2 * p:2 * p + 2], by=0)
        if scale == "r":
            for p in range(2): self.pk("v_pk_mul_f32", acc[2 * p:2 * p + 2], acc[2 * p:2 * p + 2], st[0:2], by=1)
        elif scale == "m":
            for p in range(2): self.pk("v_pk_mul_f32", acc[2 * p:2 * p + 2], acc[2 * p:2 * p + 2], st[2:4], by=0)
        elif scale == "e":
            self.pk("v_pk_fma_f32", acc[0:2], acc[0:2], st[2:4], self.vE0, by=0)
            self.pk("v_pk_mul_f32", acc[2:4], acc[2:4], st[2:4], by=0)

    def cvt(self, dst, src):
        for p in range(src.cnt // 2):
            self.I("v_cvt_pk_bf16_f32", dst[p], src[2 * p], src[2 * p + 1])

    def conv(self, dst, T, mat, c, scales):
        for f in range(2):
            ft = 2 * mat + f
            self.ln(self.acc(T, ft), c[4 * ft:4 * ft + 4], self.st(T), scales[f])
        for f in range(2):
            self.cvt(dst[2 * f:2 * f + 2], self.acc(T, 2 * mat + f))

    def o_finish(self, o, den, of, in_drain, after):
        a, I = self.a, self.I
        T = self.sT
        I("s_add_u32", T[1], self.sOq, 16384)
        self.flag_value(T[0])
        for t in range(2): I("v_rcp_f32", den[t][0], den[t][0])
        I("v_mov_b32", self.vT, T[0])
        for t in range(2):
            for p in range(4): self.pk("v_pk_mul_f32", o[t][2 * p:2 * p + 2], o[t][2 * p:2 * p + 2], den[t][0:2], by=0)
            self.cvt(of[t], o[t])
            I("buffer_store_dwordx4", of[t], self.vL16, self.sWS, T[1] if t else self.sOq, mods="offen")
        self.fine(getattr(self, "fin_region", 0) or -1, 6)
        self.fin_region = 0
        if in_drain: in_drain()
        a.wait(vm=0)
        self.publish(self.sFOq)
        self.stamp()
        if after: after()

    def qa_stage(self, first=False):
        a, I = self.a, self.I
        a.label("L_qa1" if first else "L_qa")
        a.forget_counters()
        self.it_b = None
        left = list(range(7, 21)) + list(range(7))
        NE, NH = self.opt.get("ne", 12), self.opt.get("nh", 4)
        def more():
            if first and len(left) > 21 - NE: self.fw_piece(left.pop(0))
        self.more = more
        if first: self.q_poll(lambda: self.q_ready("A", True))
        else: self.q_poll(lambda: (self.b_to_a(range(14, 21)), self.q_ready("A")))
        self.stamp()
        kf = [V(196, 4), V(200, 4)]
        qf = [V(204, 4), V(208, 4)]
        vp = [V(212, 4), V(216, 4)]
        hp = V(220, 2)
        tail_ops = self.conv_scalar(kf[1], 1, 1, self.cA, ("r", "m"))
        tail_ops.append(lambda: I("ds_write_b128", self.vKrd, kf[1], mods="offset:1024"))
        tail_ops += self.conv_scalar(vp[1], 1, 2, self.cA, ("r", "r"))
        tail_ops.append(lambda: I("ds_write_b128", self.vEXW, vp[1], mods="offset:2048"))
        rest = self.q_gemm("A", tail_ops, more if first else None)
        for f in rest: f()
        self.stamp()
        more()
        self.conv(vp[0], 0, 2, self.cA, ("r", "r"))
        I("ds_write_b128", self.vEXW, vp[0], mods="offset:1024")
        self.ln(self.hacc, self.vCH, self.st(2), "m")
        self.cvt(hp, self.hacc)
        I("ds_write_b64", self.vHW, hp)
        more()
        self.conv(qf[0], 0, 0, self.cA, (None, None))
        self.fine(4, 0)
        a.wait(lg=0)
        I("s_barrier")
        self.fine(4, 1)
        kprev = V(222, 4)
        vt = [V(226, 6), V(232, 6)]
        I("ds_read_b128", kprev, self.vKrd)
        for f in range(2):
            for i in range(3):
                I("ds_read_b64_tr_b16", vt[f][2 * i:2 * i + 2], self.vEXRa, mods=f"offset:{1024 * i + 8 * f}")
        more()
        self.conv(kf[0], 0, 1, self.cA, ("r", "m"))
        more()
        self.conv(qf[1], 1, 0, self.cA, (None, None))
        s = [V(112, 8), V(120, 8)]
        self.mfma(s[1][4:8], kf[1], qf[1], self.bCur)
        self.mfma(s[1][0:4], kf[0], qf[1], self.bPrev)
        self.mfma(s[0][4:8], kf[0], qf[0], self.bCur)
        self.mfma(s[0][0:4], kprev, qf[0], self.bPrev0)
        self.fine(4, 2)
        more()
        m = V(128, 2)
        for t in (1, 0):
            I("v_max3_f32", m[t], s[t][4], s[t][5], s[t][6])
            I("v_max3_f32", m[t], m[t], s[t][7], s[t][0])
            I("v_max3_f32", m[t], m[t], s[t][1], s[t][2])
            I("v_max_f32", m[t], m[t], s[t][3])
        self.allreduce_pairs([("v_max_f32", m[0], m[1])])
        more()
        nm = [V(130, 2), V(132, 2)]
        for t in range(2):
            I("v_mul_f32", nm[t][0], m[t], self.st(t)[3])
        for t in range(2):
            for p in range(4):
                self.I("v_pk_fma_f32", s[t][2 * p:2 * p + 2], s[t][2 * p:2 * p + 2], self.st(t)[2:4], nm[t],
                       mods="op_sel:[0,1,0] op_sel_hi:[1,1,0] neg_lo:[0,0,1] neg_hi:[0,0,1]")
        self.fine(4, 3)
        pf = [V(136, 4), V(140, 4)]
        o = [V(144, 8), V(152, 8)]
        sm = [V(160, 4), V(164, 4)]
        more()
        for k in range(8): I("v_exp_f32", s[0][k], s[0][k])
        more()
        for k in range(2): I("v_exp_f32", s[1][k], s[1][k])
        self.cvt(pf[0], s[0])
        for k in range(2, 4): I("v_exp_f32", s[1][k], s[1][k])
        self.mfma(sm[0], self.aOnes, pf[0], 0)
        I("v_exp_f32", s[1][4], s[1][4])
        self.mfma(o[0][0:4], vt[0][0:4], pf[0], 0)
        I("v_exp_f32", s[1][5], s[1][5])
        self.mfma(o[0][4:8], vt[1][0:4], pf[0], 0)
        for k in range(6, 8): I("v_exp_f32", s[1][k], s[1][k])
        self.cvt(pf[1], s[1])
        self.mfma(sm[1], self.aOnes, pf[1], 0)
        for f in range(2):
            self.mfma(o[1][4 * f:4 * f + 4], vt[f][2:6], pf[1], 0)
        self.fine(4, 4)
        more()
        more()
        self.fine(4, 5)
        self.fin_region = 4
        def hop1():
            for _ in range(NH): self.fw_piece(left.pop(0))
            self.fw_left = left
            assert len(left) <= 7
        if first: self.o_finish(o, sm, [V(168, 4), V(172, 4)], self.wphi_gather, hop1)
        else: self.o_finish(o, sm, [V(168, 4), V(172, 4)], lambda: self.unpark(range(7, 14)), None)
        I("s_mov_b32", self.sPhase, 1)
        I("s_mov_b64", self.sPWc[0:2], self.sWOA[0:2])
        I("s_mov_b32", self.sPWc[2], 401408)
        a.flush()
        I("s_branch", "L_p")

    def phi(self, src, dst, extra=(), done=None):
        a, I = self.a, self.I
        rest = list(extra)
        def more(n=1):
            for _ in range(n):
                if rest: rest.pop(0)()
        p = [V(120, 8), V(128, 8)]
        for t in range(2):
            for oft in range(2):
                self.mfma(p[t][4 * oft:4 * oft + 4], self.aWphi[4 * oft:4 * oft + 4], src[t], 0)
        kk = [V(204, 2), V(206, 2)]
        bb = [V(208, 2), V(210, 2)]
        for t in range(2):
            I("v_mov_b32", kk[t][0], self.st(t)[3])
            I("v_sub_f32", kk[t][1], 0, self.st(t)[3])
        more(3)
        mx, mn = V(188, 2), V(190, 2)
        for t in range(2):
            for k in range(3):
                if k == 0:
                    I("v_max3_f32", mx[t], p[t][0], p[t][1], p[t][2])
                    I("v_min3_f32", mn[t], p[t][0], p[t][1], p[t][2])
                else:
                    I("v_max3_f32", mx[t], mx[t], p[t][2 * k + 1], p[t][2 * k + 2])
                    I("v_min3_f32", mn[t], mn[t], p[t][2 * k + 1], p[t][2 * k + 2])
        self.fine(self.phi_region or -1, 1)
        self.allreduce_pairs([("v_max_f32", mx[0], mx[1]), ("v_min_f32", mn[0], mn[1])])
        for t in range(2):
            I("v_mul_f32", bb[t][0], mx[t], kk[t][1])
            I("v_mul_f32", bb[t][1], mn[t], kk[t][0])
        e = [V(144, 14), V(158, 14)]
        for i in range(7):
            for t in range(2):
                self.pk("v_pk_fma_f32", e[t][2 * i:2 * i + 2], p[t][(i & ~1):(i & ~1) + 2], kk[t], bb[t], bx=i & 1)
        self.fine(self.phi_region or -1, 2)
        for i in range(14):
            for t in range(2): I("v_exp_f32", e[t][i], e[t][i])
            more()
        sm = [V(188, 2), V(190, 2)]
        for t in range(2): self.pk("v_pk_add_f32", sm[t], e[t][0:2], e[t][2:4])
        for i in range(2, 7):
            for t in range(2): self.pk("v_pk_add_f32", sm[t], sm[t], e[t][2 * i:2 * i + 2])
            more()
        self.fine(self.phi_region or -1, 3)
        self.allreduce_pairs([("v_add_f32", sm[0][0], sm[0][1]), ("v_add_f32", sm[1][0], sm[1][1])])
        for t in range(2):
            for k in range(2): I("v_rcp_f32", sm[t][k], sm[t][k])
        for t in range(2):
            more()
            for i in range(7):
                self.pk("v_pk_mul_f32", e[t][2 * i:2 * i + 2], e[t][2 * i:2 * i + 2], sm[t])
                if i == 3: more()
            for s in range(2):
                more()
                for q in range(4):
                    I("v_cvt_pk_bf16_f32", dst[t][s][q], e[t][4 * q + s], e[t][4 * q + 2 + s] if q < 3 else 0)
                if done: done(t, s)
        more(99)

    def qb_stage(self):
        a, I = self.a, self.I
        T = self.sT
        a.label("L_qb")
        self.q_poll(self.qb_shadow)
        self.stamp()
        kf = qf = [V(196, 4), V(200, 4)]
        rest = self.q_gemm("B", self.conv_scalar(kf[1], 1, 1, self.cB, (None, None)))
        for f in rest: f()
        self.stamp()
        vp = [V(212, 4), V(216, 4)]
        exw = V(220)
        I("v_subrev_u32", exw, L_EXV - L_PH, self.vEXW)
        self.conv(kf[0], 0, 1, self.cB, (None, None))
        for t in (1, 0):
            self.conv(vp[t], t, 2, self.cB, ("r", "e"))
            I("ds_write_b128", exw, vp[t], mods=f"offset:{16384 + 1024 * t}")
        self.fine(3, 0)
        self.phi_region = 3
        ph = [[V(232, 4), V(236, 4)], [V(224, 4), V(228, 4)]]
        self.phi(kf, ph, done=lambda t, s: I("ds_write_b128", exw, ph[t][s], mods=f"offset:{8192 * s + 1024 * t}"))
        self.phi_region = 0
        self.fine(3, 4)
        a.wait(lg=0)
        I("s_barrier")
        self.fine(3, 5)
        lo, hi, real, pr = V(184), V(185), V(186), V(187)
        sP = T[4]
        I("s_lshl_b32", sP, self.sW, 14)
        I("s_sub_u32", sP, self.sKVld, sP)
        I("s_add_u32", sP, sP, 3 * 16384)
        def probe(reg): I("buffer_load_dword", reg, self.vProbe, self.sWS, sP, mods="offen offset:12 sc1")
        P1 = self.opt.get("p1", 0)
        if P1 == 0: probe(pr)
        kacc = V(120, 8)
        def fa(k, oft): return A(4 * (k * 2 + oft), 4)
        def fb(k): return A(40 + 4 * k, 4)
        for k in range(4):
            for t in range(2):
                I("ds_read_b64_tr_b16", fb(k)[2 * t:2 * t + 2], self.vKB, mods=f"offset:{(2 * k + t) * 1024}")
            for oft in range(2):
                for t in range(2):
                    I("ds_read_b64_tr_b16", fa(k, oft)[2 * t:2 * t + 2], self.vKA, mods=f"offset:{(2 * k + t) * 1024 + 8 * oft}")
            if k:
                for oft in range(2):
                    self.mfma(kacc[4 * oft:4 * oft + 4], fa(k - 1, oft), fb(k - 1), 0 if k == 1 else kacc[4 * oft:4 * oft + 4])
        for oft in range(2):
            self.mfma(kacc[4 * oft:4 * oft + 4], fa(3, oft), fb(3), kacc[4 * oft:4 * oft + 4])
        self.fine(3, 6)
        if P1 == 1: probe(pr)
        kvp = V(128, 4)
        self.cvt(kvp, kacc)
        I("v_and_b32", kvp[3], "0xffff", kvp[3])
        I("v_or_b32", kvp[3], self.sTag, kvp[3])
        I("buffer_store_dwordx4", kvp, self.vL16, self.sWS, self.sKVst, mods="offen sc1")
        self.stamp()
        self.colsum_b_q2()
        for t in (1, 0): self.conv(qf[t], t, 0, self.cB, (None, None))
        sO = [S(8 + k) for k in range(16)]
        sM = T[3]
        def gf(p): return A(4 * p, 4)
        def ready(reg):
            I("v_xor_b32", reg, self.sTag, reg)
            I("v_cmp_ge_u32", VCC, "0xffff", reg)
            I("v_lshrrev_b32", hi, 7, self.vL16)
            I("s_and_b32", sM, VCC_LO, "0xffff")
        def touch():
            for half in range(2):
                t = V(188 + half)
                if half:
                    I("s_lshr_b32", T[0], sM, 8)
                    I("v_add_u32", V(190), 8192, self.vTA)
                    I("v_and_b32", V(190), "0x3fff", V(190))
                I("v_lshrrev_b32", t, hi, T[0] if half else sM)
                I("v_and_b32", t, 1, t)
                I("v_cmp_eq_u32", VCC, 1, t)
                I("v_mov_b32", t, OOB)
                I("v_cndmask_b32", t, t, V(190) if half else self.vTA, VCC)
                I("buffer_load_dword", self.vDummy, t, self.sWS, self.sKVld, mods="offen sc1", nodest=True)
        I("v_add_u32", real, self.sKVld, self.vProbe)
        ready(pr)
        P2 = self.opt.get("p2", 0)
        if P2 == 0: probe(lo)
        touch()
        ex = [lambda p=p: I("v_readlane_b32", sO[p], real, p) for p in range(16)]
        if P2: ex.insert(P2, lambda: probe(lo))
        self.phi(qf, ph, extra=ex)
        self.stamp()
        red = V(176, 8)
        tg = [V(112 + k) for k in range(16)]
        chk, go, slow = self.lab("gchk"), self.lab("ggo"), self.lab("gslow")
        I("s_mov_b32", T[2], 0)
        a.label(chk)
        ready(lo)
        I("s_cmp_lg_u32", sM, "0xffff")
        I("s_cbranch_scc1", slow)
        def gload(p): I("buffer_load_dwordx4", gf(p), self.vL16, self.sWS, sO[p], mods="offen sc1")
        NG = self.opt.get("ng", 6)
        for p in range(NG): gload(p)
        self.it_b = T[2]
        self.b_to_a(range(7))
        I("s_mov_b32", T[2], 9)
        I("v_add_u32", exw, L_KVX - L_EXK, self.vKrd)
        I("v_add_u32", V(221), L_KVX, self.vL16)
        mf, sc, sg = [], [], []
        for p in range(16):
            mf.append((red[0:4], self.aSel[2:6], gf(p), 0 if p == 0 else red[0:4]))
            mf.append((red[4:8], self.aSel[0:4], gf(p), 0 if p == 0 else red[4:8]))
            if p + NG < 16: sg.append((2 * p, "v", lambda p=p: gload(p + NG)))
            sc.append((2 * p, "v", lambda p=p: I("v_accvgpr_read_b32", tg[p], gf(p)[3])))
            if p == 1:
                sc.append((2 * p, "v", lambda: I("v_min_u32", lo, tg[0], tg[1])))
                sc.append((2 * p, "v", lambda: I("v_max_u32", hi, tg[0], tg[1])))
            elif p & 1:
                sc.append((2 * p, "v", lambda p=p: I("v_min3_u32", lo, lo, tg[p - 1], tg[p])))
                sc.append((2 * p, "v", lambda p=p: I("v_max3_u32", hi, hi, tg[p - 1], tg[p])))
        rest = self.sched(mf, [sg, sc])
        for f in rest: f()
        I("v_xor_b32", lo, self.sTag, lo)
        I("v_xor_b32", hi, self.sTag, hi)
        I("v_or_b32", lo, lo, hi)
        I("v_cmp_lt_u32", VCC, "0xffff", lo)
        I("s_cbranch_vccnz", slow + "r")

        def tail():
            b = self.a
            b.label(slow)
            probe(lo)
            touch()
            b.I("s_sub_u32", self.sBudget, self.sBudget, 1)
            b.I("s_cbranch_scc1", "L_end")
            b.wait(vm=2)
            b.flush()
            b.I("s_branch", chk)
            b.label(slow + "r")
            probe(lo)
            b.I("s_sub_u32", self.sBudget, self.sBudget, 1)
            b.I("s_cbranch_scc1", "L_end")
            b.wait(vm=0)
            b.I("s_branch", chk)
        self.tail.append(tail)
        self.stamp()
        kvs = V(112, 4)
        self.cvt(kvs, red)
        I("ds_write_b128", exw, kvs)
        a.wait(lg=0)
        I("s_barrier")
        kvf = [[A(0, 4), A(4, 4)], [A(8, 4), A(12, 4)]]
        zf = [A(16, 4), A(20, 4)]
        for s in range(2):
            I("ds_read_b128", zf[s], self.vZ, mods=f"offset:{2048 * s}")
            for dt in range(2):
                I("ds_read_b128", kvf[s][dt], V(221), mods=f"offset:{(2 * s + dt) * 1024}")
        o = [V(144, 8), V(152, 8)]
        dn = [V(160, 4), V(164, 4)]
        mf = []
        for s in range(2):
            for t in range(2): mf.append((dn[t], zf[s], ph[t][s], 0 if s == 0 else dn[t]))
            for t in range(2):
                for dt in range(2):
                    mf.append((o[t][4 * dt:4 * dt + 4], kvf[s][dt], ph[t][s], 0 if s == 0 else o[t][4 * dt:4 * dt + 4]))
        self.sched(mf, [])
        I("s_mov_b32", self.sPhase, 0)
        I("s_mov_b64", self.sPWc[0:2], self.sWOB[0:2])
        I("s_add_u32", self.sIt, self.sIt, 1)
        I("s_add_u32", self.sKVst, self.sKVst, 0x100000)
        I("s_add_u32", self.sKVld, self.sKVld, 0x100000)
        I("s_add_u32", self.sHX, self.sHX, 0x40000)
        for t in range(2): I("v_add_f32", dn[t][0], f32(1e-6), dn[t][0])
        if self.opt.get("wb"):
            skipw = self.lab("nowb")
            I("s_cmp_eq_u32", self.sIt, 2)
            I("s_cselect_b32", T[0], self.sC, 0)
            I("s_cmp_lg_u32", T[0], 7)
            I("s_cbranch_scc1", skipw)
            I("buffer_wbl2", mods="sc1", untracked=True)
            a.label(skipw)
        self.it_b = 1
        self.o_finish(o, dn, [V(116, 4), V(120, 4)], lambda: self.b_to_a(range(7, 14)), None)
        a.flush()
        I("s_branch", "L_p")

    def final(self):
        a, I = self.a, self.I
        T = self.sT
        a.label("L_final")
        a.forget_counters()
        xo = V(112, 8)
        for n in range(4):
            self.cvt(xo[2 * n:2 * n + 2], self.vR[4 * n:4 * n + 4])
            I("ds_write_b64", V(132 + n), xo[2 * n:2 * n + 2])
        a.wait(lg=0)
        for b in range(2): I("ds_read_b128", V(124 + 4 * b, 4), V(120), mods=f"offset:{1024 * b}")
        for b in range(2): I("buffer_store_dwordx4", V(124 + 4 * b, 4), self.vX0d, self.sOUT, T[2] if b else self.sX0o, mods="offen" + ("", " sc1", " nt", " sc0 sc1")[self.opt.get("outfl", 0)])
        a.label("L_fin2")
        self.stamp()
        if self.opt.get("stamps"):
            I("s_mov_b32", T[7], 63)
            self.stamp(real=True)
            I("s_lshl_b32", T[0], S(2), 2)
            I("s_add_u32", T[0], T[0], self.sW)
            I("s_lshl_b32", T[0], T[0], 8)
            I("s_add_u32", T[0], T[0], WS_STAMP)
            I("v_lshrrev_b32", V(120), 2, self.vL16)
            if self.opt.get("fine") == 5:
                for k in range(7):
                    I("v_readlane_b32", T[1], V(240), k)
                    I("v_writelane_b32", self.vStamp, T[1], 40 + k)
                I("v_readlane_b32", T[1], V(240), 63)
                I("v_writelane_b32", self.vStamp, T[1], 62)
                I("v_readlane_b32", T[1], self.vStamp, 2)
                I("v_writelane_b32", self.vStamp, T[1], 47)
            I("buffer_store_dword", self.vStamp, V(120), self.sWS, T[0], mods="offen")
        I("s_or_b32", T[0], S(2), self.sW)
        I("s_cmp_lg_u32", T[0], 0)
        I("s_cbranch_scc1", "L_end")
        if self.opt.get("dbg"):
            I("s_load_dwordx2", S(8, 2), S(0, 2), 64)
            a.wait(lg=0)
            self.srd(S(12, 4), S(8, 2), 256)
            I("v_lshrrev_b32", V(120), 2, self.vL16)
            I("v_readlane_b32", T[0], self.vStamp, 0)
            I("v_readlane_b32", T[1], self.vStamp, 62)
            I("v_readlane_b32", T[2], self.vStamp, 63)
            I("s_sub_u32", T[1], T[2], T[1])
            I("v_subrev_u32", V(121), T[0], self.vStamp)
            I("v_writelane_b32", V(121), T[1], 0)
            I("v_readlane_b32", T[0], V(121), 32)
            I("v_writelane_b32", V(121), T[0], 15)
            I("buffer_store_dword", V(121), V(120), S(12, 4), 0, mods="offen")
        if self.opt.get("leak"):
            skip = self.lab("noleak")
            I("v_readlane_b32", T[1], self.vStamp, 62)
            I("v_readlane_b32", T[2], self.vStamp, 63)
            I("v_readlane_b32", T[3], self.vStamp, self.opt.get("leakidx", 0))
            I("v_readlane_b32", T[4], self.vStamp, 0)
            I("s_sub_u32", T[1], T[2], T[1])
            I("s_sub_u32", T[3], T[3], T[4])
            I("s_cmp_lt_u32", T[1], self.opt["leak"])
            I("s_cbranch_scc1", skip)
            I("s_cmp_eq_u32", self.sMode, 0)
            I("s_cbranch_scc1", skip)
            I("v_cvt_f32_u32", V(121), T[3] if self.opt.get("leakidx") else T[1])
            I("v_lshrrev_b32", V(121), 16, V(121))
            a.wait(vm=0)
            I("s_mov_b64", EXEC, 1)
            I("buffer_store_short", V(121), OFF, self.sOUT, 0)
            a.label(skip)
        I("s_add_u32", T[0], self.sNonce, "0x10100")
        I("v_mov_b32", V(120), T[0])
        I("s_mov_b64", EXEC, 1)
        I("buffer_store_dword", V(120), OFF, self.sWS, 0)
        I("s_endpgm")

    def build(self):
        a = self.a
        self.prologue()
        self.qa_stage(first=True)
        self.p_stage()
        self.qa_stage()
        self.qb_stage()
        self.final()
        done = 0
        while done < len(self.tail):
            a.forget_counters()
            a.pos += 100
            self.tail[done]()
            done += 1
        a.label("L_end")
        a.I("s_endpgm")
        head = open("cdna_kernels/" + NAME[:-7] + ".s.ref").read().split("; Override launch")[0]
        out = head + f"; @launch grid=(256,1,1) block=(256,1,1) lds={LDS_BYTES}\n"
        out += f'.amdgcn_target "amdgcn-amd-amdhsa--gfx950"\n.text\n.globl {NAME}\n.p2align 8\n.type {NAME},@function\n{NAME}:\n'
        out += a.text()
        out += f""".section .rodata,"a"
.p2align 6
.amdhsa_kernel {NAME}
  .amdhsa_next_free_vgpr 512
  .amdhsa_next_free_sgpr 102
  .amdhsa_accum_offset 256
  .amdhsa_group_segment_fixed_size 0
  .amdhsa_kernarg_size 80
  .amdhsa_user_sgpr_count 2
  .amdhsa_user_sgpr_kernarg_segment_ptr 1
  .amdhsa_system_sgpr_workgroup_id_x 1
.end_amdhsa_kernel
"""
        return out


if __name__ == "__main__":
    opt = {}
    path = sys.argv[1]
    for kv in sys.argv[2:]:
        k, v = kv.split("=")
        opt[k] = int(v)
    g = Gen(opt)
    open(path, "w").write(g.build())
    import subprocess
    r = subprocess.run(["clang", "-x", "assembler", "-target", "amdgcn-amd-amdhsa", "-mcpu=gfx950", "-c", path, "-o", "gen_check.o"], capture_output=True, text=True)
    if r.returncode: print(r.stderr[:3000]); sys.exit(1)
    sz = subprocess.run(["llvm-readelf", "-S", "gen_check.o"], capture_output=True, text=True).stdout
    print("text bytes", [int(l.split()[6], 16) for l in sz.splitlines() if " .text" in l],
          "instructions", sum(g.a.count.values()), "nop states", g.a.nops)
```

```python
import sys
import math
import struct
from emit import Asm, V, A, S, VCC, EXEC, M0, OFF, Special

VCC_LO = Special("vcc_lo", [("s", "vcc")])

NAME = "interleave_layers__sliding_local_dilated__linear_kernel_hedgehog__prompt_kernel"


def f32(x):
    return "0x%08x" % struct.unpack("<I", struct.pack("<f", x))[0]


WS_E = 0x0
WS_FX = 0x1000
WS_FO = 0x5000
WS_SLOW = 0x8000
WS_FH = 0x10000
WS_HELLO = 0x11000
WS_FWF = 0x12000
WS_STAMP = 0xC0000
WS_X = 0x100000
WS_XS = 0x2C0000
WS_O = 0x300000
WS_KV = 0x500000
WS_HX = 0x700000
WS_FW = 0x800000
FW_T = 16 * 86016
WS_SIZE = 0xB00000
OOB = 0x7FFF0000

MAT = 28672
L_PW = 86016
L_SP = 151552
L_KVX = L_SP
L_HX = L_SP
L_WPHI = L_SP + 8192
L_CS = L_SP + 10240
L_EXK = L_PW + 49152
L_EXV = L_EXK + 5120
L_PH = L_PW + 40960
LDS_BYTES = 163840

LOG2E = math.log2(math.e)


class Neg:
    def __init__(self, r): self.r = r
    def __str__(self): return "-" + str(self.r)
    def regs(self): return self.r.regs()


class Gen:
    def __init__(self, opt):
        self.opt = opt
        self.a = Asm()
        self.tail = []
        self.uid = 0

    def lab(self, base):
        self.uid += 1
        return f"L_{base}_{self.uid}"

    sX0, sWA, sWOA, sWB, sWOB, sOUT, sWS, sWP = (S(24 + 4 * i, 4) for i in range(8))
    (sGrp, sH, sW, sC, sRh, sBase, sTag, sMode, sIt, sPhase, sL, sBudget, sXq, sXSq, sOq, sXp, sXSp, sOp, sFXp, sFOq,
     sFOp, sHX, sHaloProd, sFHp, sKVst, sKVld, sQWo, sFirst, sPend, sX0o, sNonce, sXcc) = (S(56 + i) for i in range(32))
    sPWc = sX0
    sT = [S(88 + i) for i in range(8)]
    sT2 = S(96, 2)
    sStamp = S(98, 2)
    sFW, sQWl, sPWl, sPWo = S(4), S(5), S(6), S(7)

    vL16, vQ0, vQ1, vQv0, vQv1, vQh = (V(1 + i) for i in range(6))
    vP = [V(7 + i) for i in range(4)]
    vQWd, vX0d, vExpHC, vPollQ, vPollM, vPollP, vEXW, vEXRa, vHW, vM3, vStat = (V(11 + i) for i in range(11))
    vE0 = V(22, 2)
    vHalo, vHaloS, vStatSt, vZ, vExpHM, vExpC, vExpM, vMH = (V(24 + i) for i in range(8))
    vCH = V(32, 4)
    bCur, bPrev, bPrev0 = V(36, 4), V(40, 4), V(44, 4)
    vR = V(48, 16)
    cA, cB = V(64, 24), V(88, 24)
    vTA, vProbe, vHp, vQS = V(241), V(242), V(243), V(244)
    vDummy = V(245)
    vPWd = [V(246 + i) for i in range(4)]
    vKA, vKB, vPollH, vKrd, vStamp = (V(250 + i) for i in range(5))
    vT = V(255)

    aOnes, aSel, aWphi = A(232, 4), A(236, 6), A(242, 8)

    def acc(self, T, ft): return V(112 + (T * 6 + ft) * 4, 4)
    hacc = V(160, 4)
    def straw(self, T): return V(164 + 4 * T, 4)
    def st(self, T): return V(176 + 4 * T, 4)
    def xf(self, T, ks): return A((ks * 2 + T) * 4, 4)
    def hx(self, ks): return A(56 + 4 * ks, 4) if ks < 12 else self.wf(ks - 6)
    def stash(self, i): return A(112 + 4 * i, 4) if i < 14 else A(200 + 4 * (i - 14), 4)
    def wf(self, f): return A(168 + 4 * f, 4)

    def I(self, *x, **k): self.a.I(*x, **k)

    def stamp(self, real=False):
        if not self.opt.get("stamps") or (self.opt.get("stamps") == 2 and not real):
            return
        a = self.a
        a.I("s_memrealtime" if real or self.opt.get("real") else "s_memtime", self.sStamp)
        a.I("s_mov_b32", M0, self.sT[7])
        a.wait(lg=0)
        a.I("v_writelane_b32", self.vStamp, self.sStamp[0], M0)
        a.I("s_add_u32", self.sT[7], self.sT[7], 1)
        if getattr(self, "fine_pending", False):
            self.fine_pending = False
            for i in range(7): a.I("v_writelane_b32", self.vStamp, S(8 + 2 * i), 40 + i)
            a.I("v_writelane_b32", self.vStamp, self.sStamp[0], 47)

    def fine(self, region, i):
        if self.opt.get("fine") == region and region == 5:
            self.a.raw("    s_memtime s[100:101]")
            self.a.raw("    s_waitcnt lgkmcnt(0)")
            self.a.raw(f"    v_writelane_b32 v240, s100, {i}")
            self.a.pos += 3
            return
        if self.opt.get("fine") == region:
            self.a.raw(f"    s_memtime s[{8 + 2 * i}:{9 + 2 * i}]")
            self.a.pos += 1
            self.fine_pending = True

    def srd(self, dst, src, nbytes):
        self.I("s_mov_b32", dst[0], src[0])
        self.I("s_and_b32", dst[1], src[1], "0xffff")
        self.I("s_mov_b32", dst[2], nbytes)
        self.I("s_mov_b32", dst[3], "0x20000")

    def mfma(self, d, x, y, c):
        self.I("v_mfma_f32_16x16x32_bf16", d, x, y, c)

    def pk(self, op, d, x, y, z=None, bx=None, by=None, bz=None):
        srcs = [(x, bx), (y, by)] + ([(z, bz)] if z is not None else [])
        lo = [0 if b is None else b for _, b in srcs]
        hi = [1 if b is None else b for _, b in srcs]
        mods = []
        if any(lo): mods.append("op_sel:[%s]" % ",".join(map(str, lo)))
        if not all(hi): mods.append("op_sel_hi:[%s]" % ",".join(map(str, hi)))
        self.I(op, d, *[s for s, _ in srcs], mods=" ".join(mods))

    def allreduce_pairs(self, chains):
        for step in range(7):
            for op, x, y in chains:
                if step in (0, 6): self.I("v_permlane32_swap_b32", x, y)
                elif step in (1, 4): self.I(op, x, x, y)
                elif step in (2, 5): self.I("v_mov_b32", y, x)
                else: self.I("v_permlane16_swap_b32", x, y)

    def budget_branch(self, loop):
        if self.opt.get("psleep"): self.I("s_sleep", self.opt["psleep"])
        self.I("s_sub_u32", self.sBudget, self.sBudget, 1)
        self.I("s_cbranch_scc1", "L_end")
        self.I("s_branch", loop)

    def flag_value(self, dst):
        self.I("s_lshl_b32", dst, self.sL, 4)
        self.I("s_or_b32", dst, dst, self.sBase)

    def publish(self, soff):
        a = self.a
        slow, done = self.lab("pubslow"), self.lab("pubdone")
        a.I("s_cmp_eq_u32", self.sMode, 0)
        a.I("s_cbranch_scc1", slow)
        a.I("s_mov_b64", EXEC, 1)
        a.I("buffer_store_dword", self.vT, OFF, self.sWS, soff)
        a.label(done)
        a.I("s_mov_b64", EXEC, -1)

        def tail():
            b = self.a
            b.label(slow)
            b.I("buffer_wbl2", mods="sc1")
            b.wait(vm=0)
            b.I("s_mov_b64", EXEC, 1)
            b.I("buffer_store_dword", self.vT, OFF, self.sWS, soff, mods="sc1")
            b.I("s_branch", done)
        self.tail.append(tail)

    def sched(self, mfmas, streams):
        a = self.a
        streams = [list(s) for s in streams]
        for i, m in enumerate(mfmas):
            self.mfma(*m)
            scalar_free = True
            if i + 1 < len(mfmas):
                n = mfmas[i + 1]
                if a.prewait(n[1], n[2]): scalar_free = False
            if scalar_free:
                for s in streams:
                    if s and s[0][0] <= i and s[0][1] == "s":
                        s.pop(0)[2]()
                        break
            slots = 2
            progress = True
            while slots > 0 and progress:
                progress = False
                for s in streams:
                    if not s or s[0][0] > i: continue
                    cost = 2 if s[0][1] == "w" else 1
                    if cost <= slots:
                        s.pop(0)[2]()
                        slots -= cost
                        progress = True
                        break
        return [it[2] for s in streams for it in s]

    def fw_piece(self, n):
        off = (n // 7) * MAT + (n % 7) * 1024
        self.I("s_add_u32", M0, self.sQWl, off, m0="fw")
        self.I("s_add_u32", self.sT[6], self.sFW, off)
        self.I("buffer_load_dwordx4", self.vL16, self.sWS, self.sT[6], mods="offen lds", untracked=True, m0="fw")

    def piece(self, n):
        n = (n + 7) % 21
        return f"offset:{(n // 7) * MAT + (n % 7) * 1024}"

    def unpark(self, pieces):
        for n in pieces: self.I("ds_write_b128", self.vQS, self.stash(n), mods=self.piece(n))

    def qb_shadow(self):
        a, I = self.a, self.I
        second, done = self.lab("ab2"), self.lab("abdone")
        I("s_cmp_lg_u32", self.sIt, 0)
        I("s_cbranch_scc1", second)
        for n in self.fw_left: self.fw_piece(n)
        a.raw(f"    s_waitcnt vmcnt({1 + len(self.fw_left)})")
        a.pos += 1
        I("s_barrier")
        I("s_lshl_b32", self.sT[0], self.sW, 6)
        self.colsum_part(self.vQh, list(range(14)), 128)
        a.wait_lg_all()
        a.flush()
        I("s_branch", done)
        a.label(second)
        self.unpark(range(7))
        a.label(done)

    def b_to_a(self, pieces):
        a, I = self.a, self.I
        done = self.lab("badone")
        if self.it_b is not None:
            I("s_cmp_lg_u32", self.sIt, self.it_b)
            I("s_cbranch_scc1", done)
        for n in pieces:
            I("ds_read_b128", self.stash(n), self.vQS, mods=self.piece(n))
            I("ds_write_b128", self.vQS, self.stash(n + 1), mods=self.piece(n))
        a.label(done)

    def pw_dma(self, srd, which):
        out = []
        for i in which:
            out.append(("s", lambda i=i: self.I("s_add_u32", M0, self.sPWl, i * 16384, m0="pw")))
            out.append(("s", lambda i=i: self.I("s_add_u32", self.sT[5], self.sPWo, 4 * 28 * i * 896)))
            for b in range(4):
                out.append(("v", lambda b=b: self.I("buffer_load_dwordx4", self.vPWd[b], srd, self.sT[5], mods=f"offen offset:{b * 1024} lds", m0="pw")))
        return out

    def raw_block(self, ks):
        for half in range(2):
            self.I("s_add_u32", M0, self.sT[4], ks * 2048 + half * 1024)
            self.I("s_add_u32", self.sT[6], self.sQWo, (32 * ks + 16 * half) * 2688)
            self.I("buffer_load_dwordx4", self.vQWd, self.sWA, self.sT[6], mods="offen lds", tag=f"raw{ks}")

    def tr_pair(self, dst, base, off):
        return [lambda: self.I("ds_read_b64_tr_b16", dst[0:2], base, mods=f"offset:{off}"),
                lambda: self.I("ds_read_b64_tr_b16", dst[2:4], base, mods=f"offset:{off + 1024}")]

    def qw_read(self, dst, ft, ks):
        base = (self.vQ0, self.vQ1, self.vQ0, self.vQ1, self.vQv0, self.vQv1)[ft]
        return self.tr_pair(dst, base, (MAT if ft in (2, 3) else 0) + ks * 2048)

    def bg(self, n=1):
        if self.bg_next >= self.bg_max: return
        skip = self.lab("bg")
        self.I("s_cmp_eq_u32", self.sW, 3)
        self.I("s_cbranch_scc1", skip)
        for _ in range(n):
            if self.bg_next < self.bg_max:
                self.raw_block(self.bg_next)
                self.bg_next += 1
        self.a.label(skip)

    def prologue(self):
        a, I = self.a, self.I
        T = self.sT
        self.bg_next, self.bg_max = 0, self.opt.get("n1", 3)
        I("s_load_dwordx8", S(4, 8), S(0, 2), 0)
        I("s_getpc_b64", S(22, 2))
        a.label("L_pc")
        if self.opt.get("pf0", 47):
            I("v_min_u32", V(113), self.opt.get("pf0", 47), V(0))
            I("v_lshlrev_b32", V(113), 7, V(113))
            I("global_load_dword", self.vDummy, V(113), S(22, 2), mods="offset:128", untracked=True)
        I("s_load_dwordx8", S(12, 8), S(0, 2), 32)
        I("s_load_dwordx2", S(20, 2), S(0, 2), 72)
        if self.opt.get("stamps"):
            I("s_memrealtime", S(100, 2))
            I("s_memtime", self.sStamp)
        I("s_cmp_ge_u32", S(2), 256)
        I("s_cbranch_scc1", "L_end")
        I("v_lshrrev_b32", V(114), 6, V(0))
        I("s_lshr_b32", T[1], S(2), 3)
        I("v_and_b32", V(0), 63, V(0))
        I("v_readfirstlane_b32", self.sW, V(114))
        I("s_mul_i32", T[0], T[1], 1280)
        I("v_min_u32", V(112), 9, V(0))
        I("v_lshl_add_u32", V(112), V(112), 7, T[0])
        I("v_min_u32", V(112), "L_end-L_pc", V(112))
        I("global_load_dword", self.vDummy, V(112), S(22, 2), untracked=True)
        I("s_and_b32", T[0], S(2), 7)
        I("s_and_b32", self.sH, T[1], 15)
        I("s_lshr_b32", T[1], T[1], 4)
        I("s_lshl_b32", T[0], T[0], 1)
        I("s_add_u32", self.sGrp, T[0], T[1])
        I("s_and_b32", self.sC, self.sH, 7)
        I("s_lshr_b32", self.sRh, self.sH, 3)
        lane, j, g, t0, t1, t2 = V(0), V(115), V(116), V(117), V(118), V(119)
        I("s_lshl_b32", T[0], self.sGrp, 3)
        I("s_lshl_b32", T[1], self.sRh, 2)
        I("s_add_u32", T[0], T[0], T[1])
        I("s_add_u32", T[0], T[0], self.sW)
        I("s_and_b32", T[1], T[0], 63)
        I("s_mul_i32", T[1], T[1], 16 * 1792)
        I("s_lshr_b32", T[2], self.sGrp, 3)
        I("s_mul_i32", T[2], T[2], 896)
        I("s_add_u32", T[1], T[1], T[2])
        I("s_lshl_b32", T[2], self.sC, 7)
        I("s_add_u32", self.sX0o, T[1], T[2])
        I("v_lshrrev_b32", t0, 3, lane)
        I("v_mul_u32_u24", t0, 1792, t0)
        I("v_and_b32", t1, 7, lane)
        I("v_lshl_add_u32", self.vX0d, t1, 4, t0)
        I("v_min_u32", t0, 36, lane)
        I("v_lshlrev_b32", V(121), 7, t0)
        I("s_mov_b32", self.sX0[2], 1835008)
        I("s_mov_b32", self.sX0[3], "0x20000")
        I("s_mov_b32", self.sWA[2], 1204224)
        I("s_mov_b32", self.sWA[3], "0x20000")
        I("s_mul_i32", T[1], S(2), 37 * 128)
        I("s_min_u32", T[1], T[1], 1204224 - 37 * 128)
        I("s_sub_u32", T[2], self.sX0o, 3 * 16 * 1792)
        a.wait(lg=0)
        if self.opt.get("fine") == 5: a.raw("    v_writelane_b32 v240, s100, 63")
        self.fine(5, 0)
        for r, p in ((self.sX0, 4), (self.sWA, 6)):
            I("s_mov_b32", r[0], S(p))
            I("s_and_b32", r[1], S(p + 1), "0xffff")
        no3, nox = self.lab("not3"), self.lab("nox0")
        I("s_cmp_lg_u32", self.sW, 3)
        I("s_cbranch_scc1", no3)
        I("s_cmp_eq_u32", self.sC, 7)
        I("s_cbranch_scc1", nox)
        for t in range(4):
            I("s_mov_b32", M0, L_SP + 2048 * t)
            I("s_add_u32", T[5], T[2], t * 16 * 1792)
            I("s_add_u32", T[6], T[2], t * 16 * 1792 + 8 * 1792 - 1024)
            I("buffer_load_dwordx4", self.vX0d, self.sX0, T[5], mods="offen lds")
            I("buffer_load_dwordx4", self.vX0d, self.sX0, T[6], mods="offen offset:1024 lds")
        a.label(nox)
        I("buffer_load_dword", self.vDummy, V(121), self.sWA, T[1], mods="offen", nodest=True)
        a.label(no3)
        I("v_and_b32", j, 15, lane)
        I("v_lshrrev_b32", g, 4, lane)
        I("v_lshlrev_b32", self.vL16, 4, lane)
        I("v_lshrrev_b32", t0, 2, lane)
        I("v_mul_u32_u24", t1, 2688, t0)
        I("v_lshrrev_b32", t0, 3, lane)
        I("v_and_b32", t0, 2, t0)
        I("v_and_b32", t2, 3, lane)
        I("v_xor_b32", t0, t0, t2)
        I("v_lshl_add_u32", self.vQWd, t0, 4, t1)
        I("s_mul_i32", self.sQWo, self.sH, 56)
        I("s_mul_i32", T[1], self.sW, 896)
        I("s_add_u32", self.sQWo, self.sQWo, T[1])
        I("s_mul_i32", T[4], self.sW, MAT)
        self.srd(self.sWS, S(20, 2), WS_SIZE)
        I("buffer_load_dword", V(120), OFF, self.sWS, 0, untracked=True)
        self.bg()
        for r, p, n in ((self.sWB, 12, 1204224), (self.sWP, 14, 25088), (self.sWOA, 8, 401408),
                        (self.sWOB, 16, 401408), (self.sOUT, 18, 1835008)):
            self.srd(r, S(p, 2), n)
        I("s_getreg_b32", self.sXcc, "hwreg(HW_REG_XCC_ID)")
        I("s_and_b32", self.sXcc, self.sXcc, 15)
        I("s_lshl_b32", T[1], self.sGrp, 3)
        I("s_lshl_b32", T[2], self.sW, 1)
        I("s_add_u32", T[1], T[1], T[2])
        I("s_mul_i32", self.sXq, T[1], 14336)
        I("s_add_u32", self.sXq, self.sXq, WS_X)
        I("s_lshl_b32", self.sXSq, T[1], 10)
        I("s_add_u32", self.sXSq, self.sXSq, WS_XS)
        I("s_lshl_b32", self.sOq, T[1], 14)
        I("s_lshl_b32", T[2], self.sH, 10)
        I("s_add_u32", self.sOq, self.sOq, T[2])
        I("s_add_u32", self.sOq, self.sOq, WS_O)
        I("s_lshl_b32", T[3], T[1], 7)
        I("s_add_u32", T[3], T[3], WS_FX)
        I("s_mul_i32", self.sXp, T[0], 14336)
        I("s_lshl_b32", T[2], self.sC, 11)
        I("s_add_u32", self.sXp, self.sXp, T[2])
        I("s_add_u32", self.sXp, self.sXp, WS_X)
        I("s_lshl_b32", self.sXSp, T[0], 10)
        I("s_lshl_b32", T[2], self.sC, 7)
        I("s_add_u32", self.sXSp, self.sXSp, T[2])
        I("s_add_u32", self.sXSp, self.sXSp, WS_XS)
        I("s_lshl_b32", self.sOp, T[0], 14)
        I("s_add_u32", self.sOp, self.sOp, WS_O)
        I("s_lshl_b32", self.sFXp, T[0], 7)
        I("s_lshl_b32", T[2], self.sC, 2)
        I("s_add_u32", self.sFXp, self.sFXp, T[2])
        I("s_add_u32", self.sFXp, self.sFXp, WS_FX)
        I("s_lshl_b32", T[1], self.sGrp, 2)
        I("s_add_u32", T[2], T[1], self.sW)
        I("s_lshl_b32", self.sFOq, T[2], 7)
        I("s_lshl_b32", T[2], self.sH, 2)
        I("s_add_u32", self.sFOq, self.sFOq, T[2])
        I("s_add_u32", self.sFOq, self.sFOq, WS_FO)
        I("s_lshr_b32", T[2], T[0], 1)
        I("s_lshl_b32", self.sFOp, T[2], 7)
        I("s_add_u32", self.sFOp, self.sFOp, WS_FO)
        I("s_lshl_b32", self.sHX, self.sGrp, 14)
        I("s_add_u32", self.sHX, self.sHX, WS_HX)
        I("s_lshl_b32", self.sFHp, self.sGrp, 7)
        I("s_add_u32", self.sFHp, self.sFHp, WS_FH)
        I("s_and_b32", T[1], self.sGrp, 7)
        I("s_cmp_eq_u32", T[1], 0)
        I("s_cselect_b32", self.sFirst, 1, 0)
        I("s_cmp_lg_u32", T[1], 7)
        I("s_cselect_b32", T[1], 1, 0)
        I("s_and_b32", T[2], T[0], 7)
        I("s_cmp_eq_u32", T[2], 7)
        I("s_cselect_b32", self.sHaloProd, T[1], 0)
        I("s_lshl_b32", T[1], self.sH, 2)
        I("s_add_u32", T[1], T[1], self.sW)
        I("s_lshl_b32", self.sKVld, T[1], 14)
        I("s_add_u32", self.sKVld, self.sKVld, WS_KV)
        I("s_lshl_b32", T[1], self.sGrp, 10)
        I("s_add_u32", self.sKVst, self.sKVld, T[1])
        I("s_mov_b32", self.sMode, 1)
        I("s_mov_b32", self.sIt, 0)
        I("s_mov_b32", self.sPhase, 0)
        I("s_mov_b32", self.sL, 1)
        I("s_mov_b32", self.sPend, 0)
        I("s_mov_b32", self.sBudget, 400000)
        self.bg()
        I("v_min_u32", t0, 12, lane)
        I("v_lshlrev_b32", V(122), 7, t0)
        I("v_lshlrev_b32", self.vStatSt, 3, j)
        I("v_and_b32", t0, 7, j)
        I("v_lshlrev_b32", t0, 4, t0)
        I("v_lshl_add_u32", self.vHp, g, 7, t0)
        I("v_lshlrev_b32", t0, 7, j)
        I("v_lshl_add_u32", t0, g, 3, t0)
        I("v_add_u32", V(123), L_SP, t0)
        I("s_mul_i32", self.sQWl, self.sW, 7168)
        I("s_mul_i32", self.sFW, self.sH, 86016)
        I("s_add_u32", self.sFW, self.sFW, self.sQWl)
        I("s_add_u32", self.sFW, self.sFW, WS_FW)
        I("s_lshl_b32", self.sPWl, self.sW, 12)
        I("s_add_u32", self.sPWl, self.sPWl, L_PW)
        I("s_mul_i32", self.sPWo, self.sW, 28 * 896)
        I("s_min_u32", T[1], self.sC, 6)
        I("s_lshl_b32", T[1], T[1], 7)
        I("s_add_u32", self.sPWo, self.sPWo, T[1])
        if self.opt.get("stamps"):
            I("s_mov_b32", T[7], 1)
            I("v_mov_b32", self.vStamp, 0)
            I("v_writelane_b32", self.vStamp, self.sStamp[0], 0)
            if self.opt.get("fine") != 5: I("v_writelane_b32", self.vStamp, S(100), 62)
        I("v_mov_b32", V(127), V(0))
        I("s_cmp_eq_u32", self.sW, 3)
        I("s_cbranch_scc1", "L_s0")
        a.label("L_setup")
        a.forget_counters()
        self.bg()
        self.fine(5, 1)

        r, cc = V(113), V(124)
        I("s_lshl_b32", T[1], self.sW, 11)
        I("v_add_u32", V(114), T[1], V(123))
        I("v_lshrrev_b32", r, 2, j)
        I("v_and_b32", cc, 3, j)
        I("v_lshl_add_u32", t0, g, 2, r)
        I("v_lshlrev_b32", t1, 3, cc)
        I("v_lshl_add_u32", t2, t0, 6, t1)
        I("v_and_b32", V(125), 1, g)
        I("v_lshl_add_u32", self.vQ0, V(125), 5, t2)
        I("v_xor_b32", self.vQ1, 32, self.vQ0)
        I("v_add_u32", self.vQv0, 2 * MAT, self.vQ0)
        I("v_add_u32", self.vQv1, 2 * MAT, self.vQ1)
        I("s_and_b32", T[1], self.sW, 1)
        I("s_lshl_b32", T[2], T[1], 5)
        I("v_xor_b32", self.vQh, T[2], self.vQ0)
        I("s_lshr_b32", T[2], self.sW, 1)
        I("s_add_u32", T[2], T[2], 1)
        I("s_mul_i32", T[2], T[2], MAT)
        I("v_add_u32", self.vQh, T[2], self.vQh)
        I("v_lshl_add_u32", t2, t0, 7, t1)
        I("v_add_u32", t2, L_PW, t2)
        I("v_lshrrev_b32", V(125), 1, t0)
        I("v_and_b32", V(125), 3, V(125))
        for n in range(4):
            I("v_xor_b32", V(126), n, V(125))
            I("v_lshl_add_u32", self.vP[n], V(126), 5, t2)
        self.bg()
        I("v_lshrrev_b32", V(125), 1, t0)
        I("v_xor_b32", V(125), V(125), cc)
        I("v_and_b32", V(125), 3, V(125))
        I("v_lshlrev_b32", V(125), 4, V(125))
        I("v_lshl_add_u32", V(126), t0, 6, V(125))
        I("s_lshl_b32", T[2], self.sW, 11)
        I("s_add_u32", T[5], T[2], L_EXV)
        I("v_add_u32", self.vEXRa, T[5], V(126))
        I("s_lshr_b32", T[5], self.sW, 1)
        I("s_lshl_b32", T[5], T[5], 13)
        I("s_add_u32", T[5], T[5], L_PH)
        I("v_add_u32", self.vKA, T[5], V(126))
        I("s_lshl_b32", T[5], T[1], 3)
        I("s_add_u32", T[5], T[5], L_PH + 16384)
        I("v_add_u32", self.vKB, T[5], V(126))
        I("v_lshrrev_b32", V(125), 1, j)
        I("v_xor_b32", V(125), V(125), g)
        I("v_and_b32", V(125), 3, V(125))
        I("v_lshlrev_b32", V(125), 4, V(125))
        I("v_lshl_add_u32", V(126), j, 6, V(125))
        I("v_add_u32", V(126), L_EXV, V(126))
        I("v_add_u32", self.vEXW, T[2], V(126))
        I("s_lshl_b32", T[5], self.sW, 10)
        I("v_add_u32", V(125), L_EXK, self.vL16)
        I("v_add_u32", self.vKrd, T[5], V(125))
        I("v_add_u32", self.vQS, self.sQWl, self.vL16)
        I("s_cmp_lt_u32", self.sW, 2)
        I("s_cselect_b64", VCC, -1, 0)
        I("v_cndmask_b32", V(126), V(126), V(125), VCC)
        I("s_lshl_b32", T[5], T[1], 3)
        I("v_add_u32", self.vHW, T[5], V(126))
        self.bg()
        I("v_lshrrev_b32", t0, 3, lane)
        I("v_mul_u32_u24", t1, 896, t0)
        I("v_and_b32", t0, 6, t0)
        I("v_and_b32", t2, 7, lane)
        I("v_xor_b32", t0, t0, t2)
        I("v_lshl_add_u32", self.vPWd[0], t0, 4, t1)
        for b in range(1, 4):
            I("v_add_u32", self.vPWd[b], b * (8 * 896 - 1024), self.vPWd[0])
        I("v_mov_b32", t1, OOB)
        I("v_cmp_gt_u32", VCC, 32, lane)
        I("v_cndmask_b32", self.vPWd[3], t1, self.vPWd[3], VCC)
        I("v_cmp_gt_u32", VCC, 48, lane)
        I("v_cndmask_b32", self.vM3, 0, -1, VCC)
        I("v_cndmask_b32", self.vE0[0], 1.0, 0, VCC)
        I("v_mov_b32", self.vE0[1], 0)
        I("s_cmp_eq_u32", T[1], 1)
        I("s_cselect_b64", VCC, -1, 0)
        I("v_cndmask_b32", self.vMH, -1, self.vM3, VCC)
        I("v_lshl_add_u32", self.vStat, g, 7, self.vStatSt)
        I("s_cmp_eq_u32", self.sFirst, 1)
        I("s_cselect_b64", VCC, -1, 0)
        I("v_cndmask_b32", self.vHalo, self.vL16, t1, VCC)
        I("v_cndmask_b32", self.vHaloS, self.vStat, t1, VCC)
        I("s_or_b32", T[2], self.sGrp, 1)
        I("s_add_u32", T[2], T[2], 1)
        I("v_add_u32", t0, T[2], j)
        I("v_and_b32", t0, 15, t0)
        I("v_lshlrev_b32", self.vProbe, 10, t0)
        I("v_lshrrev_b32", t0, 3, lane)
        I("v_add_u32", t0, T[2], t0)
        I("v_and_b32", t0, 15, t0)
        I("v_lshlrev_b32", t0, 3, t0)
        I("v_and_b32", t2, 7, lane)
        I("v_add_lshl_u32", self.vTA, t0, t2, 7)
        self.bg()
        I("v_lshlrev_b32", self.vZ, 8, g)
        I("v_add_u32", self.vZ, L_KVX + 1024 + 12 * 16, self.vZ)
        I("v_lshlrev_b32", self.vPollP, 2, j)
        I("v_and_b32", t0, 7, lane)
        I("v_min_u32", t0, 6, t0)
        I("v_lshlrev_b32", V(127), 2, t0)
        I("v_min_u32", t0, 13, j)
        I("v_lshlrev_b32", t0, 2, t0)
        I("s_lshl_b32", T[5], self.sH, 7)
        I("s_add_u32", T[5], T[5], WS_FWF)
        I("v_add_u32", t0, T[5], t0)
        I("v_add_u32", t2, self.sFHp, V(127))
        I("s_cmp_eq_u32", self.sFirst, 1)
        I("s_cselect_b32", T[5], 0, 16)
        I("v_cmp_gt_u32", VCC, T[5], lane)
        I("v_cndmask_b32", self.vPollH, t0, t2, VCC)
        I("v_cndmask_b32", self.vExpHM, 0, 16, VCC)
        I("v_cndmask_b32", self.vExpHC, 16, 0, VCC)
        I("v_lshrrev_b32", t2, 3, j)
        I("v_lshl_add_u32", t2, t2, 7, V(127))
        I("v_add_u32", t2, T[3], t2)
        I("s_lshl_b32", T[5], self.sGrp, 7)
        I("s_add_u32", T[5], T[5], WS_HELLO)
        I("v_add_u32", t0, T[5], self.vPollP)
        I("v_and_b32", V(125), 1, g)
        I("v_cmp_eq_u32", VCC, 0, V(125))
        I("v_cndmask_b32", self.vPollQ, t0, t2, VCC)
        I("v_cndmask_b32", self.vPollM, -16, -1, VCC)
        I("v_cndmask_b32", self.vExpM, 0, 16, VCC)
        I("v_mov_b32", t0, self.sXcc)
        I("v_cndmask_b32", self.vExpC, t0, 0, VCC)
        self.bg()
        I("v_mov_b32", V(125), f32(-1e30))
        for rr in range(4):
            I("v_lshl_add_u32", t0, g, 2, rr)
            I("v_sub_u32", t2, j, t0)
            I("v_cmp_gt_u32", VCC, 8, t2)
            I("v_cndmask_b32", self.bCur[rr], V(125), 0, VCC)
            I("v_add_u32", t2, 16, t2)
            I("v_cmp_gt_u32", VCC, 8, t2)
            I("v_cndmask_b32", self.bPrev[rr], V(125), 0, VCC)
        I("s_cmp_eq_u32", self.sW, 0)
        I("s_cselect_b32", T[2], self.sFirst, 0)
        I("s_cmp_eq_u32", T[2], 1)
        I("s_cselect_b64", VCC, -1, 0)
        for rr in range(4):
            I("v_cndmask_b32", self.bPrev0[rr], self.bPrev[rr], V(125), VCC)
        self.bg()
        I("v_mov_b32", t0, "0x3f803f80")
        for k in range(4): I("v_accvgpr_write_b32", self.aOnes[k], t0)
        for k in (0, 1, 4, 5): I("v_accvgpr_write_b32", self.aSel[k], 0)
        I("v_and_b32", V(125), 1, j)
        I("v_lshlrev_b32", V(125), 4, V(125))
        I("v_mov_b32", t0, "0x3f80")
        I("v_lshlrev_b32", t0, V(125), t0)
        I("v_cmp_eq_u32", VCC, r, g)
        I("v_cndmask_b32", t0, 0, t0, VCC)
        I("v_cmp_gt_u32", VCC, 2, cc)
        I("v_cndmask_b32", t2, 0, t0, VCC)
        I("v_cndmask_b32", t0, t0, 0, VCC)
        I("v_accvgpr_write_b32", self.aSel[2], t2)
        I("v_accvgpr_write_b32", self.aSel[3], t0)
        I("v_mov_b32", V(0), V(114))
        got = self.lab("nonce")
        I("s_cmp_eq_u32", self.sW, 3)
        I("s_cbranch_scc1", got)
        a.raw(f"    s_waitcnt vmcnt({2 * self.bg_next})")
        I("v_readfirstlane_b32", self.sNonce, V(120))
        I("s_add_u32", T[1], self.sNonce, "0x10100")
        I("s_and_b32", self.sBase, T[1], "0xffffff00")
        I("s_and_b32", self.sTag, T[1], "0x3fff0000")
        a.label(got)
        I("v_or_b32", self.vExpC, self.sBase, self.vExpC)
        I("v_or_b32", self.vExpHC, self.sBase, self.vExpHC)
        self.stamp()
        I("s_cmp_eq_u32", self.sW, 3)
        I("s_cbranch_scc1", "L_walk")
        I("s_barrier")
        self.stamp()

        N1 = self.bg_next
        ad0, ad1 = V(188), V(189)
        d0, d1 = V(192, 4), V(196, 4)
        I("v_add_u32", ad0, T[4], self.vQ0)
        I("v_add_u32", ad1, T[4], self.vQ1)
        ZP = self.opt.get("zp", 1)
        if ZP:
            zad, zz = V(190), V(200, 2)
            I("v_bfe_u32", zad, self.vL16, 4, 5)
            I("v_bfe_u32", zz[0], self.vL16, 6, 1)
            I("v_lshlrev_b32", zad, 6, zad)
            I("v_lshlrev_b32", zz[0], 5, zz[0])
            I("v_xor_b32", zz[0], 56, zz[0])
            I("v_add3_u32", zad, zad, zz[0], T[4])
            I("v_mov_b32", zz[0], 0)
            I("v_mov_b32", zz[1], 0)
        a.vm = [(f"raw{ks}", set()) for ks in range(N1) for _ in range(2)]
        AH = self.opt.get("ah", 6)
        nxt = N1
        for ks in range(14):
            while nxt < 14 and nxt <= ks + AH:
                self.raw_block(nxt)
                nxt += 1
            a.wait_vm_tag(f"raw{ks}")
            if ZP: I("ds_write_b64", zad, zz, mods=f"offset:{ks * 2048}")
            w0, w1 = self.wf(2 * (ks & 1)), self.wf(2 * (ks & 1) + 1)
            for f in self.tr_pair(w0, ad0, ks * 2048) + self.tr_pair(w1, ad1, ks * 2048): f()
            if ks:
                p0, p1 = self.wf(2 * ((ks - 1) & 1)), self.wf(2 * ((ks - 1) & 1) + 1)
                self.mfma(d0, p0, self.aOnes, 0 if ks == 1 else d0)
                self.mfma(d1, p1, self.aOnes, 0 if ks == 1 else d1)
        self.mfma(d0, self.wf(2), self.aOnes, d0)
        self.mfma(d1, self.wf(3), self.aOnes, d1)
        I("v_lshrrev_b32", ad0, 8, self.vL16)
        I("v_lshlrev_b32", ad0, 4, ad0)
        I("s_lshl_b32", T[0], self.sW, 7)
        I("s_add_u32", T[0], T[0], L_CS)
        I("v_add_u32", ad0, T[0], ad0)
        I("s_mov_b32", self.sT2[0], "0x00010001")
        I("s_mov_b32", self.sT2[1], "0x00010001")
        a.flush()
        I("s_mov_b64", EXEC, self.sT2)
        I("ds_write_b128", ad0, d0)
        I("ds_write_b128", ad0, d1, mods="offset:64")
        I("s_mov_b64", EXEC, -1)
        a.wait(lg=0)
        I("s_branch", "L_qa1")
        self.stage0()

    def stage0(self):
        a, I = self.a, self.I
        T = self.sT
        lane = V(127)
        idle, nohalo, pub, nofw = (self.lab(x) for x in ("idle", "nohalo", "pub", "nofw"))
        a.label("L_s0")
        a.forget_counters()
        a.pos += 100
        a.wait(vm=0)
        I("v_readfirstlane_b32", self.sNonce, V(120))
        I("s_lshl_b32", T[1], self.sGrp, 7)
        I("s_lshl2_add_u32", T[2], self.sH, T[1])
        I("s_add_u32", T[2], T[2], WS_HELLO)
        I("s_add_u32", T[1], self.sNonce, "0x10100")
        I("s_and_b32", self.sBase, T[1], "0xffffff00")
        I("s_and_b32", self.sTag, T[1], "0x3fff0000")
        I("s_or_b32", T[1], self.sBase, 16)
        I("v_mov_b32", self.vT, T[1])
        I("s_or_b32", T[1], self.sBase, self.sXcc)
        I("v_mov_b32", V(112), T[1])
        I("s_mov_b64", EXEC, 1)
        I("buffer_store_dword", V(112), OFF, self.sWS, T[2], mods="sc1")
        I("s_mov_b64", EXEC, -1)
        I("s_cmp_eq_u32", self.sC, 7)
        I("s_cbranch_scc1", idle)
        self.fine(5, 2)
        xo = [V(128 + 8 * t, 8) for t in range(4)]
        pr = [V(160 + 2 * t, 2) for t in range(4)]
        for t in range(4):
            for n in range(4): I("ds_read_b64", xo[t][2 * n:2 * n + 2], V(123), mods=f"offset:{2048 * t + 32 * n}")
        one = V(125)
        I("v_mov_b32", one, "0x3f803f80")
        I("s_sub_u32", T[5], self.sXp, 3 * 14336)
        I("s_sub_u32", T[6], self.sXSp, 3 * 1024)
        for t in range(4):
            I("buffer_store_dwordx4", xo[t][0:4], self.vL16, self.sWS, T[5], mods="offen sc1")
            I("buffer_store_dwordx4", xo[t][4:8], self.vL16, self.sWS, T[5], mods="offen offset:1024 sc1")
            if t < 3: I("s_add_u32", T[5], T[5], 14336)
        if self.opt.get("rel", 1) == 0: I("s_barrier")
        for k in range(8):
            for t in range(4):
                I("v_dot2_f32_bf16", pr[t][0], xo[t][k], one, 0 if k == 0 else pr[t][0])
                I("v_dot2_f32_bf16", pr[t][1], xo[t][k], xo[t][k], 0 if k == 0 else pr[t][1])
        self.allreduce_pairs([("v_add_f32", pr[t][0], pr[t][1]) for t in range(4)])
        I("s_mov_b64", EXEC, "0xffff")
        for t in range(4):
            I("buffer_store_dwordx2", pr[t], self.vStatSt, self.sWS, T[6], mods=f"offen offset:{1024 * t} sc1")
        I("s_mov_b64", EXEC, -1)
        I("s_cmp_eq_u32", self.sHaloProd, 0)
        I("s_cbranch_scc1", nohalo)
        I("s_lshl_b32", T[1], self.sC, 10)
        I("s_add_u32", T[1], T[1], self.sHX)
        I("s_add_u32", T[1], T[1], 16384)
        I("s_mov_b32", self.sT2[0], "0xff00ff00")
        I("s_mov_b32", self.sT2[1], "0xff00ff00")
        I("s_mov_b64", EXEC, self.sT2)
        I("buffer_store_dwordx4", xo[3][0:4], self.vHp, self.sWS, T[1], mods="offen sc1")
        I("buffer_store_dwordx4", xo[3][4:8], self.vHp, self.sWS, T[1], mods="offen offset:512 sc1")
        I("s_lshl_b32", T[1], self.sC, 7)
        I("s_add_u32", T[1], T[1], self.sHX)
        I("s_add_u32", T[1], T[1], 16384 + 14336)
        I("s_mov_b64", EXEC, "0xffff")
        I("buffer_store_dwordx2", pr[3], self.vStatSt, self.sWS, T[1], mods="offen sc1")
        I("s_mov_b64", EXEC, -1)
        a.label(nohalo)
        a.flush()
        I("v_and_b32", V(126), 3, lane)
        I("v_lshlrev_b32", V(126), 7, V(126))
        I("v_lshrrev_b32", V(113), 2, lane)
        I("v_lshl_add_u32", V(126), V(113), 15, V(126))
        I("s_sub_u32", T[2], self.sFXp, 3 * 128)
        I("v_add_u32", V(126), T[2], V(126))
        I("s_lshl_b32", T[1], self.sC, 2)
        I("s_add_u32", T[1], T[1], self.sFHp)
        I("s_add_u32", T[1], T[1], 128)
        I("v_writelane_b32", V(126), T[1], 8)
        I("s_lshl_b32", T[1], self.sHaloProd, 8)
        I("s_or_b32", self.sT2[0], T[1], "0xff")
        I("s_mov_b32", self.sT2[1], 0)
        if self.opt.get("rel", 1) == 1: I("s_barrier")
        a.wait(vm=0)
        I("s_mov_b64", EXEC, self.sT2)
        I("buffer_store_dword", self.vT, V(126), self.sWS, 0, mods="offen sc1")
        I("s_mov_b64", EXEC, -1)
        if self.opt.get("rel", 1) == 2: I("s_barrier")
        self.fine(5, 3)
        I("s_branch", pub)
        a.label(idle)
        I("s_barrier")
        a.label(pub)
        a.forget_counters()
        I("s_cmp_ge_u32", self.sGrp, 14)
        I("s_cbranch_scc1", nofw)
        I("s_mul_i32", T[2], self.sH, 56)
        I("s_mul_i32", T[1], self.sGrp, 32 * 2688)
        I("s_add_u32", T[2], T[2], T[1])
        for mat in range(3):
            for half in range(2):
                I("s_add_u32", T[1], T[2], mat * 896 + half * 16 * 2688)
                I("buffer_load_dwordx4", V(168 + 8 * mat + 4 * half, 4), self.vQWd, self.sWB, T[1], mods="offen")
        a.label(nofw)
        I("s_mul_i32", T[1], self.sH, 1568)
        I("s_mov_b32", M0, L_WPHI)
        I("s_mul_i32", T[2], S(2), 13 * 128)
        I("s_min_u32", T[2], T[2], 401408 - 13 * 128)
        I("v_lshrrev_b32", V(112), 3, lane)
        I("v_and_b32", V(113), 7, lane)
        I("v_lshlrev_b32", V(113), 7, V(113))
        I("v_lshl_add_u32", V(126), V(112), 14, V(113))
        I("s_sub_u32", T[5], self.sOq, 6 * 16384)
        I("buffer_load_dwordx4", self.vL16, self.sWP, T[1], mods="offen lds")
        I("buffer_load_dwordx4", self.vL16, self.sWP, T[1], mods="offen offset:1024 lds")
        I("buffer_load_dword", self.vDummy, V(122), self.sWOA, T[2], mods="offen", nodest=True)
        I("buffer_load_dword", self.vDummy, V(122), self.sWOB, T[2], mods="offen", nodest=True)
        I("buffer_load_dword", self.vDummy, V(126), self.sWS, T[5], mods="offen", nodest=True)
        I("s_branch", "L_setup")
        a.label("L_walk")
        a.forget_counters()
        self.stamp()
        nofw2 = self.lab("nofw")
        I("s_cmp_ge_u32", self.sGrp, 14)
        I("s_cbranch_scc1", nofw2)
        if self.opt.get("zp", 1):
            I("v_bfe_u32", V(112), self.vL16, 4, 2)
            I("v_bfe_u32", V(113), self.vL16, 8, 1)
            I("v_lshlrev_b32", V(113), 1, V(113))
            I("v_xor_b32", V(112), V(112), V(113))
            I("v_cmp_ne_u32", VCC, 3, V(112))
            I("v_cndmask_b32", V(112), 0, -1, VCC)
        a.raw("    s_waitcnt vmcnt(5)")
        if self.opt.get("zp", 1):
            for k in range(6):
                for d in (2, 3): I("v_and_b32", V(168 + 4 * k + d), V(168 + 4 * k + d), V(112))
        I("s_lshl_b32", T[1], self.sGrp, 11)
        I("s_add_u32", T[1], T[1], self.sFW)
        I("s_sub_u32", T[1], T[1], 3 * 7168)
        for mat in range(3):
            I("s_add_u32", T[2], T[1], mat * MAT)
            for half in range(2):
                I("buffer_store_dwordx4", V(168 + 8 * mat + 4 * half, 4), self.vL16, self.sWS, T[2], mods=f"offen offset:{half * 1024} sc1")
        I("s_lshl_b32", T[1], self.sH, 7)
        I("s_lshl_b32", T[2], self.sGrp, 2)
        I("s_add_u32", T[1], T[1], T[2])
        I("s_add_u32", T[1], T[1], WS_FWF)
        a.wait(vm=0)
        I("s_mov_b64", EXEC, 1)
        I("buffer_store_dword", self.vT, OFF, self.sWS, T[1], mods="sc1")
        I("s_mov_b64", EXEC, -1)
        a.label(nofw2)
        self.fine(5, 4)
        if self.opt.get("visit", 0):
            I("s_mov_b64", EXEC, 0)
            I("s_branch", "L_visit_0")
            a.label("L_visit_ret")
            I("s_mov_b64", EXEC, -1)
        I("s_branch", "L_qa1")

    def p_stage(self):
        a, I = self.a, self.I
        T = self.sT
        NPRE = 12
        a.label("L_p")
        a.raw("@VISIT")
        a.forget_counters()
        a.wait(lg=0)
        I("s_barrier")
        I("s_cmp_eq_u32", self.sC, 7)
        I("s_cbranch_scc1", "L_pidle")
        slots = [A(64 + 4 * k, 4) for k in range(12)] + [A(168 + 4 * k, 4) for k in range(8)] + [V(128 + 4 * k, 4) for k in range(28)]
        def pwf(hh, n): return slots[(hh % NPRE) * 4 + n]
        def pw_read(hh, n):
            return [lambda: I("ds_read_b64_tr_b16", pwf(hh, n)[0:2], self.vP[n], mods=f"offset:{hh * 4096}"),
                    lambda: I("ds_read_b64_tr_b16", pwf(hh, n)[2:4], self.vP[n], mods=f"offset:{hh * 4096 + 2048}")]
        self.flag_value(T[0])
        early = 8
        late = [f for _, f in self.pw_dma(self.sPWc, (2, 3))]
        PP = self.opt.get("pp", 3)
        for hh in range(early):
            for n in range(4):
                for f in pw_read(hh, n): f()
                if late and (n & 1 or hh == 0): late.pop(0)()
            if hh == PP: I("buffer_load_dword", V(112), self.vPollP, self.sWS, self.sFOp, mods="offen sc1")
        assert not late
        loop, ok = self.lab("ppoll"), self.lab("ppass")
        if self.opt.get("dual", 1):
            a.wait(vm=0)
            I("v_cmp_ne_u32", VCC, T[0], V(112))
            I("s_cbranch_vccnz", loop)
            def spin():
                b = self.a
                b.label(loop)
                b.I("buffer_load_dword", V(112), self.vPollP, self.sWS, self.sFOp, mods="offen sc1")
                b.nop(self.opt.get("dnop", 8))
                b.label(loop + "l")
                for x, y in ((V(113), V(112)), (V(112), V(113))):
                    b.I("buffer_load_dword", x, self.vPollP, self.sWS, self.sFOp, mods="offen sc1", untracked=True)
                    b.raw("    s_waitcnt vmcnt(1)")
                    b.forget_counters()
                    b.I("v_cmp_ne_u32", VCC, T[0], y)
                    b.I("s_cbranch_vccz", ok)
                self.budget_branch(loop + "l")
            self.tail.append(spin)
        else:
            a.label(loop)
            a.wait(vm=0)
            I("v_cmp_ne_u32", VCC, T[0], V(112))
            I("s_cbranch_vccz", ok)
            I("buffer_load_dword", V(112), self.vPollP, self.sWS, self.sFOp, mods="offen sc1")
            self.budget_branch(loop)
        a.label(ok)
        a.vm = []
        self.stamp()
        def of(hh): return A(4 * hh, 4)
        def oload(hh):
            out = []
            if hh % 4 == 0 and hh:
                out.append(("s", lambda: I("s_add_u32", T[1], self.sOp, hh * 1024)))
            so = self.sOp if hh < 4 else T[1]
            out.append(("v", lambda: I("buffer_load_dwordx4", of(hh), self.vL16, self.sWS, so, mods=f"offen offset:{(hh % 4) * 1024} sc1")))
            return out
        NO = self.opt.get("no", 5)
        for hh in range(NO):
            for _, f in oload(hh): f()
        I("s_barrier")
        for hh in range(early, NPRE):
            for n in range(4):
                for f in pw_read(hh, n): f()
        mf, so, sw = [], [], []
        for hh in range(16):
            for n in range(4):
                mf.append((self.vR[4 * n:4 * n + 4], pwf(hh, n), of(hh), self.vR[4 * n:4 * n + 4]))
                if hh + NPRE < 16:
                    sw += [(4 * hh + n, "v", f) for f in pw_read(hh + NPRE, n)]
            if hh + NO < 16: so += [(4 * hh, k, f) for k, f in oload(hh + NO)]
        j, t = V(136), V(137)
        fa = [("v", lambda: I("v_lshrrev_b32", j, 2, self.vPollP)), ("v", lambda: I("v_lshrrev_b32", t, 9, self.vL16)),
              ("v", lambda: I("v_xor_b32", t, t, j)), ("v", lambda: I("v_and_b32", t, 7, t)), ("v", lambda: I("v_lshlrev_b32", t, 4, t)),
              ("v", lambda: I("v_lshl_add_u32", t, j, 7, t)), ("v", lambda: I("v_bfe_u32", j, self.vL16, 8, 1)),
              ("s", lambda: I("s_lshl_b32", T[1], self.sW, 11)), ("s", lambda: I("s_add_u32", T[1], T[1], L_SP)),
              ("v", lambda: I("v_lshl_add_u32", t, j, 3, t)), ("v", lambda: I("v_add_u32", V(132), T[1], t))]
        fa += [("v", lambda n=n: I("v_xor_b32", V(132 + n), 32 * n, V(132))) for n in range(1, 4)]
        fa += [("v", lambda: I("v_lshrrev_b32", j, 3, self.vL16)), ("v", lambda: I("v_and_b32", j, "0x70", j)),
               ("v", lambda: I("v_xor_b32", j, j, self.vL16)), ("v", lambda: I("v_add_u32", V(120), T[1], j)),
               ("s", lambda: I("s_add_u32", T[2], self.sX0o, 8 * 1792))]
        rest = self.sched(mf, [so, sw, [(48, k, f) for k, f in fa]])
        assert not rest
        a.flush()
        self.stamp()
        I("s_cmp_eq_u32", self.sL, 4)
        I("s_cbranch_scc1", "L_final")

        a.label("L_pepi")
        xo = V(112, 8)
        for k in range(8):
            I("v_cvt_pk_bf16_f32", xo[k], self.vR[2 * k], self.vR[2 * k + 1])
            if k == 3: I("buffer_store_dwordx4", xo[0:4], self.vL16, self.sWS, self.sXp, mods="offen")
        I("buffer_store_dwordx4", xo[4:8], self.vL16, self.sWS, self.sXp, mods="offen offset:1024")
        sm, sq = V(120, 2), V(122, 2)
        self.pk("v_pk_add_f32", sm, self.vR[0:2], self.vR[2:4])
        self.pk("v_pk_mul_f32", sq, self.vR[0:2], self.vR[0:2])
        self.pk("v_pk_fma_f32", sq, self.vR[2:4], self.vR[2:4], sq)
        for k in range(2, 8):
            self.pk("v_pk_add_f32", sm, sm, self.vR[2 * k:2 * k + 2])
            self.pk("v_pk_fma_f32", sq, self.vR[2 * k:2 * k + 2], self.vR[2 * k:2 * k + 2], sq)
        pr = V(124, 2)
        I("v_add_f32", pr[0], sm[0], sm[1])
        I("v_add_f32", pr[1], sq[0], sq[1])
        x, y = pr[0], pr[1]
        I("s_add_u32", self.sL, self.sL, 1)
        I("s_lshl_b32", T[0], self.sL, 4)
        I("v_permlane32_swap_b32", x, y)
        I("s_or_b32", T[0], T[0], self.sBase)
        I("v_add_f32", x, x, y)
        I("v_mov_b32", y, x)
        I("v_mov_b32", self.vT, T[0])
        I("s_cmp_eq_u32", self.sPhase, 0)
        I("v_permlane16_swap_b32", x, y)
        I("s_cselect_b32", self.sPend, self.sHaloProd, 0)
        I("v_add_f32", x, x, y)
        I("v_mov_b32", y, x)
        I("s_lshl_b32", T[1], self.sC, 10)
        I("s_add_u32", T[1], T[1], self.sHX)
        I("v_permlane32_swap_b32", x, y)
        I("s_mov_b64", EXEC, "0xffff")
        I("buffer_store_dwordx2", pr, self.vStatSt, self.sWS, self.sXSp, mods="offen")
        I("s_mov_b64", EXEC, -1)
        nh, pub = self.lab("nohalo"), self.lab("pub")
        I("s_cmp_eq_u32", self.sPend, 0)
        I("s_cbranch_scc0", nh)
        wb, wbd = self.lab("pwb"), self.lab("pwbd")
        I("s_cmp_eq_u32", self.sL, 4)
        I("s_cbranch_scc1", wb)
        a.label(wbd)
        def write_back():
            self.a.label(wb)
            for n in range(14, 21): self.I("ds_write_b128", self.vQS, self.stash(n), mods=self.piece(n))
            self.I("s_branch", wbd)
        self.tail.append(write_back)
        a.wait(vm=0)
        a.label(pub)
        self.publish(self.sFXp)

        def tail():
            b = self.a
            b.label(nh)
            b.I("s_add_u32", T[1], T[1], 16384)
            b.I("s_mov_b32", self.sT2[0], "0xff00ff00")
            b.I("s_mov_b32", self.sT2[1], "0xff00ff00")
            b.I("s_mov_b64", EXEC, self.sT2)
            b.I("buffer_store_dwordx4", xo[0:4], self.vHp, self.sWS, T[1], mods="offen sc1")
            b.I("buffer_store_dwordx4", xo[4:8], self.vHp, self.sWS, T[1], mods="offen offset:512 sc1")
            b.I("s_lshl_b32", T[1], self.sC, 7)
            b.I("s_add_u32", T[1], T[1], self.sHX)
            b.I("s_add_u32", T[1], T[1], 16384 + 14336)
            b.I("s_mov_b64", EXEC, "0xffff")
            b.I("buffer_store_dwordx2", pr, self.vStatSt, self.sWS, T[1], mods="offen sc1")
            b.I("s_mov_b64", EXEC, -1)
            b.wait(vm=3)
            b.I("s_branch", pub)
        self.tail.append(tail)
        a.label("L_pnext")
        a.flush()
        a.forget_counters()
        self.stamp()
        if self.opt.get("stop"):
            I("s_cmp_eq_u32", self.sL, self.opt["stop"])
            I("s_cbranch_scc1", "L_fin2")
        I("s_cmp_eq_u32", self.sPhase, 1)
        I("s_cbranch_scc1", "L_qb")

        def idle():
            b = self.a
            b.label("L_pidle")
            b.I("s_cmp_eq_u32", self.sL, 4)
            if self.opt.get("wb"):
                cont = self.lab("nowb")
                b.I("s_cbranch_scc0", cont)
                b.I("s_and_b32", T[0], self.sGrp, 1)
                b.I("s_or_b32", T[0], T[0], self.sW)
                if self.opt["wb"] == 1: b.I("s_or_b32", T[0], T[0], self.sRh)
                b.I("s_cbranch_scc1", "L_fin2")
                b.I("buffer_wbl2", mods="sc1")
                b.wait(vm=0)
                b.I("s_branch", "L_fin2")
                b.label(cont)
            else:
                b.I("s_cbranch_scc1", "L_fin2")
            b.I("s_add_u32", self.sL, self.sL, 1)
            b.I("s_cmp_lg_u32", self.sL, 4)
            b.I("s_cbranch_scc1", "L_pnext")
            for n in range(14, 21): b.I("ds_write_b128", self.vQS, self.stash(n), mods=self.piece(n))
            b.I("s_branch", "L_pnext")
        self.tail.append(idle)

    def q_poll(self, shadow=None):
        a, I = self.a, self.I
        T = self.sT
        ex, t, pv = V(112), V(113), V(114)
        loop, ok, pend, nopend, slow, again = (self.lab(x) for x in ("qpoll", "qpass", "pend", "nopend", "qslow", "qagain"))
        I("v_mad_u32_u24", ex, self.vExpM, self.sL, self.vExpC)
        if shadow:
            chk = self.lab("qchk")
            I("buffer_load_dword", pv, self.vPollQ, self.sWS, 0, mods="offen sc1")
            shadow()
            I("s_branch", chk)
        a.label(loop)
        I("buffer_load_dword", pv, self.vPollQ, self.sWS, 0, mods="offen sc1")
        if shadow: a.label(chk)
        I("s_cmp_eq_u32", self.sPend, 0)
        a.wait(vm=0)
        I("s_cbranch_scc0", pend)
        a.label(nopend)
        I("v_xor_b32", t, pv, ex)
        I("v_cmp_ne_u32", VCC, 0, t)
        I("s_cbranch_vccnz", slow)
        a.label(ok)
        a.vm = []

        def tail():
            b = self.a
            b.label(pend)
            b.I("s_lshl_b32", T[1], self.sC, 2)
            b.I("s_add_u32", T[1], T[1], self.sFHp)
            self.flag_value(T[0])
            b.I("v_mov_b32", self.vT, T[0])
            b.I("s_mov_b64", EXEC, 1)
            b.I("buffer_store_dword", self.vT, OFF, self.sWS, T[1], mods="offset:128 sc1")
            b.I("s_mov_b64", EXEC, -1)
            b.I("s_mov_b32", self.sPend, 0)
            b.I("s_branch", nopend)
            b.label(slow)
            if self.opt.get("dual", 1):
                fast, gen = self.lab("qfast"), self.lab("qgen")
                b.I("s_cmp_eq_u32", self.sL, 1)
                b.I("s_cselect_b32", T[0], 0, self.sMode)
                b.I("s_cmp_eq_u32", T[0], 0)
                b.I("s_cbranch_scc1", gen)
                b.I("buffer_load_dword", pv, self.vPollQ, self.sWS, 0, mods="offen sc1")
                b.nop(self.opt.get("dnop", 8))
                b.label(fast)
                for x, y in ((t, pv), (pv, t)):
                    b.I("buffer_load_dword", x, self.vPollQ, self.sWS, 0, mods="offen sc1", untracked=True)
                    b.raw("    s_waitcnt vmcnt(1)")
                    b.forget_counters()
                    b.I("v_cmp_ne_u32", VCC, ex, y)
                    b.I("s_cbranch_vccz", ok)
                self.budget_branch(fast)
                b.label(gen)
            b.I("s_cmp_eq_u32", self.sMode, 0)
            b.I("s_cbranch_scc1", again + "m")
            b.I("v_not_b32", V(115), self.vPollM)
            b.I("v_and_b32", V(116), t, self.vPollM)
            b.I("v_and_b32", V(115), t, V(115))
            b.I("v_cmp_ne_u32", self.sT2, 0, V(115))
            b.I("v_cmp_eq_u32", VCC, 0, V(116))
            b.nop(2)
            b.I("s_cmp_eq_u64", self.sT2, 0)
            b.I("s_cbranch_scc1", again)
            b.I("s_andn2_b32", T[0], "0xffff0000", VCC_LO)
            b.I("s_cbranch_scc1", again)
            b.I("s_mov_b32", self.sMode, 0)
            b.I("s_add_u32", self.sFXp, self.sFXp, WS_SLOW)
            b.I("s_add_u32", self.sFOq, self.sFOq, WS_SLOW)
            b.I("s_add_u32", self.sFOp, self.sFOp, WS_SLOW)
            b.I("v_lshlrev_b32", V(115), 11, self.vExpM)
            b.I("v_add_u32", self.vPollQ, V(115), self.vPollQ)
            b.I("s_branch", again)
            b.label(again + "m")
            b.I("v_and_b32", V(116), t, self.vPollM)
            b.I("v_cmp_ne_u32", VCC, 0, V(116))
            b.I("s_cbranch_vccz", ok)
            b.label(again)
            self.budget_branch(loop)
        self.tail.append(tail)

    def xload(self, ks):
        out = []
        if ks % 4 == 0:
            out.append(("s", lambda: self.I("s_add_u32", self.sT[1], self.sXq, ks * 1024)))
            out.append(("s", lambda: self.I("s_add_u32", self.sT[2], self.sXq, ks * 1024 + 14336)))
        for t in range(2):
            out.append(("v", lambda t=t: self.I("buffer_load_dwordx4", self.xf(t, ks), self.vL16, self.sWS, self.sT[1 + t],
                                               mods=f"offen offset:{(ks % 4) * 1024} sc1")))
        return out

    def stats_ops(self, T, layer):
        raw, st = self.straw(T), self.st(T)
        t = V(188 + 2 * T, 2)
        ops = []
        def add(*x, **k): ops.append(("w" if ("perm" in x[0] or "rsq" in x[0]) else "v", lambda: self.I(*x, **k)))
        add("v_and_b32", raw[2], raw[2], self.vM3)
        add("v_and_b32", raw[3], raw[3], self.vM3)
        add("v_add_f32", raw[0], raw[0], raw[2])
        add("v_add_f32", raw[1], raw[1], raw[3])
        for step in range(7):
            x, y = raw[0], raw[1]
            if step in (0, 6): add("v_permlane32_swap_b32", x, y)
            elif step in (1, 4): add("v_add_f32", x, x, y)
            elif step in (2, 5): add("v_mov_b32", y, x)
            else: add("v_permlane16_swap_b32", x, y)
        add("v_mul_f32", st[0], f32(-1.0 / 448), raw[0])
        add("v_mul_f32", t[0], f32(1.0 / 448), raw[1])
        add("v_fma_f32", t[0], Neg(st[0]), st[0], t[0])
        add("v_max_f32", t[0], 0, t[0])
        add("v_add_f32", t[0], f32(1e-5), t[0])
        add("v_rsq_f32", st[1], t[0])
        add("v_and_b32", st[2], st[1], self.vMH if T == 2 else self.vM3)
        if T < 2:
            add("v_mul_f32", st[3], f32(LOG2E * (28 ** -0.5 if layer == "A" else 1.0)), st[1])
        return ops

    def colsum_part(self, ad, steps, cs_off):
        a, I = self.a, self.I
        d = V(192, 4)
        def w(k): return self.wf(k % 4)
        for k in range(4):
            for f in self.tr_pair(w(k), ad, steps[k] * 2048): f()
        mf, sw = [], []
        for k in range(len(steps)):
            mf.append((d, w(k), self.aOnes, 0 if k == 0 else d))
            if k + 4 < len(steps): sw += [(k, "v", f) for f in self.tr_pair(w(k), ad, steps[k + 4] * 2048)]
        assert not self.sched(mf, [sw])
        I("v_lshrrev_b32", V(189), 8, self.vL16)
        I("v_lshlrev_b32", V(189), 4, V(189))
        I("s_add_u32", self.sT[0], self.sT[0], L_CS + cs_off)
        I("v_add_u32", V(189), self.sT[0], V(189))
        I("s_mov_b32", self.sT2[0], "0x00010001")
        I("s_mov_b32", self.sT2[1], "0x00010001")
        a.flush()
        I("s_mov_b64", EXEC, self.sT2)
        I("ds_write_b128", V(189), d)
        I("s_mov_b64", EXEC, -1)

    def colsum_b_q(self):
        I, T = self.I, self.sT
        I("v_lshrrev_b32", V(188), 8, self.vL16)
        I("v_lshlrev_b32", V(188), 4, V(188))
        I("v_add_u32", V(188), L_CS, V(188))
        for ft in range(2, 6):
            I("ds_read_b128", self.cB[4 * ft:4 * ft + 4], V(188), mods=f"offset:{64 * ft}")
        I("s_lshr_b32", T[0], self.sW, 1)
        I("s_lshl_b32", T[0], T[0], 5)
        I("v_xor_b32", V(188), T[0], self.vQ0)
        I("s_and_b32", T[0], self.sW, 1)
        I("s_mul_i32", T[0], T[0], 7 * 2048)
        I("v_add_u32", V(188), T[0], V(188))
        I("s_lshl_b32", T[0], self.sW, 6)
        self.colsum_part(V(188), list(range(7)), 512)

    def colsum_b_q2(self):
        a, I = self.a, self.I
        done = self.lab("cq2")
        a.wait_lg_all()
        I("s_cmp_lg_u32", self.sIt, 0)
        I("s_cbranch_scc1", done)
        I("v_lshrrev_b32", V(188), 8, self.vL16)
        I("v_lshlrev_b32", V(188), 4, V(188))
        I("v_add_u32", V(188), L_CS + 512, V(188))
        for k in range(4):
            I("ds_read_b128", self.cB[4 * (k >> 1):4 * (k >> 1) + 4] if k % 2 == 0 else V(204 + 4 * (k >> 1), 4), V(188), mods=f"offset:{64 * k}")
        for k in range(8): I("v_add_f32", self.cB[k], self.cB[k], V(204 + k))
        a.flush()
        a.label(done)

    def cs_read(self, dst, with_halo):
        I = self.I
        ad = V(188)
        I("v_lshrrev_b32", ad, 8, self.vL16)
        I("v_lshlrev_b32", ad, 4, ad)
        I("v_add_u32", ad, L_CS, ad)
        for ft in range(6):
            I("ds_read_b128", dst[4 * ft:4 * ft + 4], ad, mods=f"offset:{64 * ft}")
        if with_halo:
            I("s_lshl_b32", self.sT[0], self.sW, 6)
            I("v_add_u32", V(189), self.sT[0], ad)
            I("ds_read_b128", self.vCH, V(189), mods="offset:128")

    def wphi_gather(self):
        a, I = self.a, self.I
        j, g, f1, ad, t = V(214), V(215), V(216), V(217), V(218)
        I("v_lshrrev_b32", g, 8, self.vL16)
        I("v_lshrrev_b32", j, 2, self.vPollP)
        I("v_lshrrev_b32", t, 2, j)
        I("v_sub_u32", f1, j, t)
        I("v_add_u32", f1, 16, f1)
        I("v_mul_u32_u24", ad, 4 * 56, g)
        I("v_add_u32", ad, L_WPHI, ad)
        I("v_lshl_add_u32", f1, f1, 1, ad)
        I("v_lshl_add_u32", ad, j, 1, ad)
        I("v_and_b32", t, 3, j)
        I("v_cmp_ne_u32", VCC, 3, t)
        I("v_cndmask_b32", t, 0, -1, VCC)
        I("v_and_b32", j, t, self.vM3)
        for oft, base in enumerate((ad, f1)):
            for e in range(8):
                d = e if e < 4 else 16 + e - 4
                I("ds_read_u16", V(204 + e), base, mods=f"offset:{d * 56}")
            for p in range(4):
                I("v_lshl_or_b32", V(204 + 2 * p), V(205 + 2 * p), 16, V(204 + 2 * p))
                m = (None, self.vM3)[p >> 1] if oft == 0 else (t, j)[p >> 1]
                if m is not None: I("v_and_b32", V(204 + 2 * p), V(204 + 2 * p), m)
                I("v_accvgpr_write_b32", self.aWphi[4 * oft + p], V(204 + 2 * p))

    def conv_scalar(self, dst, T, mat, c, scales):
        out = []
        st = self.st(T)
        for f in range(2):
            acc = self.acc(T, 2 * mat + f)
            cc = c[4 * (2 * mat + f):4 * (2 * mat + f) + 4]
            for k in range(4): out.append(lambda acc=acc, cc=cc, k=k: self.I("v_fma_f32", acc[k], cc[k], st[0], acc[k]))
            m = {"r": st[1], "m": st[2], None: None}[scales[f]]
            if m is not None:
                for k in range(4): out.append(lambda acc=acc, m=m, k=k: self.I("v_mul_f32", acc[k], acc[k], m))
            for p in range(2): out.append(lambda acc=acc, f=f, p=p: self.I("v_cvt_pk_bf16_f32", dst[2 * f + p], acc[2 * p], acc[2 * p + 1]))
        return out

    def check_parked(self, before):
        assert self.a.count["ds_read_b128"] - before == 21

    def q_ready(self, layer, first=False):
        a, I = self.a, self.I
        a.wait(lg=0)
        I("s_barrier")
        once = self.lab("once")
        if layer == "B":
            I("s_cmp_lg_u32", self.sIt, 0)
            I("s_cbranch_scc1", once)
        nvm = len(a.vm)
        if layer == "A" and not first:
            pass
        elif layer == "A":
            self.cs_read(self.cA, True)
            for n in range(4): I("ds_read_b64", V(200 + 2 * n, 2), V(0), mods=f"offset:{32 * n}")
            for n in range(4):
                for p in range(2):
                    I("v_lshlrev_b32", self.vR[4 * n + 2 * p], 16, V(200 + 2 * n + p))
                    I("v_and_b32", self.vR[4 * n + 2 * p + 1], "0xffff0000", V(200 + 2 * n + p))
        else:
            self.colsum_b_q()
        a.wait_lg_all()
        a.flush()
        assert nvm == len(a.vm)
        a.label(once)
        for ft in range(0 if layer == "A" else 2, 6):
            for f in self.qw_read(self.wf(ft), ft, 0): f()

    def q_gemm(self, layer, tail_ops=(), first=None):
        a, I = self.a, self.I
        T = self.sT
        isA = layer == "A"
        LOOK = self.opt.get("look", 3)
        for ks in range(2):
            for _, f in self.xload(ks): f()
        if not isA: self.q_ready("B")
        for _, f in self.xload(2): f()
        reads0, writes0 = a.count.get("ds_read_b64_tr_b16", 0) - 12, a.count.get("ds_write_b128", 0)
        parked0 = a.count.get("ds_read_b128", 0)
        def bar(n):
            assert a.count["ds_read_b64_tr_b16"] - reads0 == n and not a.lg and a.count.get("ds_write_b128", 0) == writes0
            I("s_barrier")

        G = 12 if isA else 8
        mf, sw, sx, sd, sv, sh, stc = [], [], [], [], [], [], []
        for ks in range(14):
            order = ((2, 3, 4, 5, 0, 1) if ks == 13 else range(6)) if isA else range(2, 6)
            for ft in order:
                for t in ((1, 0) if ks == 13 else (0, 1)):
                    mf.append((self.acc(t, ft), self.wf(ft), self.xf(t, ks), 0 if ks == 0 else self.acc(t, ft)))
                if ks < 13:
                    sw += [(len(mf) - 1, "v", f) for f in self.qw_read(self.wf(ft), ft, ks + 1)]
        for k in range(3, 14):
            gap = max(0, G * (k - LOOK) - (6 if k > 6 else 0)) if isA else max(0, G * (k - self.opt.get("lookb", 4)))
            xl = self.xload(k)
            sx += [(gap, kind, f) for kind, f in xl[:-1]] + [(gap + 4, "v", xl[-1][1])]
            SK = 6 if isA else self.opt.get("skb", 7)
            if k in (SK, SK + 1):
                for t in (k - SK,):
                    for q in range(2):
                        sx.append((gap + 7 + 2 * q, "v", lambda t=t, q=q: I(
                            "buffer_load_dwordx2", self.straw(t)[2 * q:2 * q + 2], self.vStat, self.sWS, self.sXSq,
                            mods=f"offen offset:{t * 1024 + 512 * q} sc1")))
        s0, s1 = self.stats_ops(0, layer), self.stats_ops(1, layer)
        sv += [(G * 6 + 6 if isA else G * (SK - 1), k, f) for p in zip(s0, s1) for k, f in p]
        sf = []
        if self.opt.get("fine") == (1 if isA else 2):
            sf = [(G * 2 * i, "s", lambda i=i: self.fine(1 if isA else 2, i)) for i in range(7)]
        nd = 0
        for k, f in self.pw_dma(self.sWOA, (0, 1)) if isA else ():
            sd.append((G * 10 + 2 + 5 * nd, k, f))
            nd += k == "v"
        if isA:
            HF, HC = self.opt.get("hf", 4), self.opt.get("hc", 8)
            hv, hx, fv = V(194), V(195), V(196)
            def check(reg, first, gap, shift):
                slow, back = self.lab("hslow"), self.lab("hback")
                out = [(first, "v", lambda: I("buffer_load_dword", reg, self.vPollH, self.sWS, 0, mods="offen sc1")),
                       (gap, "v", lambda: I("v_cmp_ne_u32", VCC, hx, reg))]
                if shift: out.append((gap, "s", lambda: I("s_lshr_b64", VCC, VCC, 16)))
                def br():
                    I("s_cbranch_scc1" if shift else "s_cbranch_vccnz", slow)
                    a.label(back)
                out.append((gap, "s", br))
                def tail():
                    b = self.a
                    b.label(slow)
                    b.I("s_sub_u32", self.sBudget, self.sBudget, 1)
                    b.I("s_cbranch_scc1", "L_end")
                    b.I("buffer_load_dword", reg, self.vPollH, self.sWS, 0, mods="offen sc1")
                    b.wait(vm=0)
                    b.I("v_cmp_ne_u32", VCC, hx, reg)
                    if shift: b.I("s_lshr_b64", VCC, VCC, 16)
                    b.I("s_cbranch_scc1" if shift else "s_cbranch_vccnz", slow)
                    b.I("s_branch", back)
                self.tail.append(tail)
                return out
            stc = [(2, "v", lambda: I("v_mad_u32_u24", hx, self.vExpHM, self.sL, self.vExpHC))]
            sh += check(hv, G * HF + 8, G * HC, False)
            sh.append((G * HC, "s", lambda: I("s_lshl_b32", T[0], self.sW, 11)))
            sh.append((G * HC, "s", lambda: I("s_add_u32", M0, T[0], L_HX, m0="halo")))
            sh.append((G * HC, "s", lambda: I("s_add_u32", T[0], T[0], self.sHX)))
            for q in range(2):
                sh.append((G * HC, "v", lambda q=q: I("buffer_load_dwordx4", self.vHalo, self.sWS, T[0], mods=f"offen offset:{1024 * q} sc1 lds", tag="halo", m0="halo")))
            sh.append((G * HC, "s", lambda: I("s_add_u32", T[0], self.sHX, 14336)))
            for q in range(2):
                sh.append((G * HC, "v", lambda q=q: I("buffer_load_dwordx2", self.straw(2)[2 * q:2 * q + 2], self.vHaloS, self.sWS, T[0],
                                                     mods=f"offen offset:{512 * q} sc1")))
            sh.append((G * HC, "v", lambda: I("v_add_u32", V(194), L_HX, self.vHp)))
            def hw(k): return A(4 * k, 4)
            shw = []
            for k in range(14): shw += [(G * (1 + (k * 11) // 14) + 3, "v", f) for f in self.tr_pair(hw(k), self.vQh, k * 2048)]
            sv += [(G * (HC + 4), k, f) for k, f in self.stats_ops(2, layer)]
            nb = len(mf) - 11
            sb = [(nb, "s", lambda: a.wait_vm_tag("halo")), (nb, "s", lambda: a.wait(lg=0)), (nb, "s", lambda: bar(168 + 28))]
            sb += [(nb, "v", lambda k=k: I("ds_read_b128", self.hx(k), V(194), mods=f"offset:{512 * k}")) for k in range(14)]
            n0 = len(mf)
            for k in range(14): mf.append((self.hacc, hw(k), self.hx(k), 0 if k == 0 else self.hacc))
            stl = [(n0 - 6, "v", f) for f in tail_ops]
            spark, sfw = [], []
            if first:
                spark = [(G * 6 + 4 * n, "v", lambda n=n: I("ds_read_b128", self.stash(n + 1), self.vQS, mods=self.piece(n))) for n in range(21)]
                sfw = [(nb + 6 + 8 * k, "w", first) for k in range(2)]
                sb.insert(0, (nb, "s", lambda: self.check_parked(parked0)))
            rest = self.sched(mf, [sf, sw, sx, stc, sh, shw, spark, sb, sd, sv, sfw, stl])
        else:
            n0 = len(mf)
            stl = [(n0 - 4, "v", f) for f in tail_ops]
            rest = self.sched(mf, [sf, sw, sx, sv, stl])
        return rest

    def ln(self, acc, c, st, scale):
        for p in range(2):
            self.pk("v_pk_fma_f32", acc[2 * p:2 * p + 2], c[2 * p:2 * p + 2], st[0:2], acc[2 * p:2 * p + 2], by=0)
        if scale == "r":
            for p in range(2): self.pk("v_pk_mul_f32", acc[2 * p:2 * p + 2], acc[2 * p:2 * p + 2], st[0:2], by=1)
        elif scale == "m":
            for p in range(2): self.pk("v_pk_mul_f32", acc[2 * p:2 * p + 2], acc[2 * p:2 * p + 2], st[2:4], by=0)
        elif scale == "e":
            self.pk("v_pk_fma_f32", acc[0:2], acc[0:2], st[2:4], self.vE0, by=0)
            self.pk("v_pk_mul_f32", acc[2:4], acc[2:4], st[2:4], by=0)

    def cvt(self, dst, src):
        for p in range(src.cnt // 2):
            self.I("v_cvt_pk_bf16_f32", dst[p], src[2 * p], src[2 * p + 1])

    def conv(self, dst, T, mat, c, scales):
        for f in range(2):
            ft = 2 * mat + f
            self.ln(self.acc(T, ft), c[4 * ft:4 * ft + 4], self.st(T), scales[f])
        for f in range(2):
            self.cvt(dst[2 * f:2 * f + 2], self.acc(T, 2 * mat + f))

    def o_finish(self, o, den, of, in_drain, after):
        a, I = self.a, self.I
        T = self.sT
        I("s_add_u32", T[1], self.sOq, 16384)
        self.flag_value(T[0])
        for t in range(2): I("v_rcp_f32", den[t][0], den[t][0])
        I("v_mov_b32", self.vT, T[0])
        for t in range(2):
            for p in range(4): self.pk("v_pk_mul_f32", o[t][2 * p:2 * p + 2], o[t][2 * p:2 * p + 2], den[t][0:2], by=0)
            self.cvt(of[t], o[t])
            I("buffer_store_dwordx4", of[t], self.vL16, self.sWS, T[1] if t else self.sOq, mods="offen")
        self.fine(getattr(self, "fin_region", 0) or -1, 6)
        self.fin_region = 0
        if in_drain: in_drain()
        a.wait(vm=0)
        self.publish(self.sFOq)
        self.stamp()
        if after: after()

    def qa_stage(self, first=False):
        a, I = self.a, self.I
        if first and self.opt.get("visit", 0): a.raw(".p2align 12")
        a.label("L_qa1" if first else "L_qa")
        a.forget_counters()
        self.it_b = None
        left = list(range(7, 21)) + list(range(7))
        NE, NH = self.opt.get("ne", 12), self.opt.get("nh", 4)
        def more():
            if first and len(left) > 21 - NE: self.fw_piece(left.pop(0))
        self.more = more
        if first: self.q_poll(lambda: self.q_ready("A", True))
        else: self.q_poll(lambda: (self.b_to_a(range(14, 21)), self.q_ready("A")))
        self.stamp()
        kf = [V(196, 4), V(200, 4)]
        qf = [V(204, 4), V(208, 4)]
        vp = [V(212, 4), V(216, 4)]
        hp = V(220, 2)
        tail_ops = self.conv_scalar(kf[1], 1, 1, self.cA, ("r", "m"))
        tail_ops.append(lambda: I("ds_write_b128", self.vKrd, kf[1], mods="offset:1024"))
        tail_ops += self.conv_scalar(vp[1], 1, 2, self.cA, ("r", "r"))
        tail_ops.append(lambda: I("ds_write_b128", self.vEXW, vp[1], mods="offset:2048"))
        rest = self.q_gemm("A", tail_ops, more if first else None)
        for f in rest: f()
        self.stamp()
        more()
        self.conv(vp[0], 0, 2, self.cA, ("r", "r"))
        I("ds_write_b128", self.vEXW, vp[0], mods="offset:1024")
        self.ln(self.hacc, self.vCH, self.st(2), "m")
        self.cvt(hp, self.hacc)
        I("ds_write_b64", self.vHW, hp)
        more()
        self.conv(qf[0], 0, 0, self.cA, (None, None))
        self.fine(4, 0)
        a.wait(lg=0)
        I("s_barrier")
        self.fine(4, 1)
        kprev = V(222, 4)
        vt = [V(226, 6), V(232, 6)]
        I("ds_read_b128", kprev, self.vKrd)
        for f in range(2):
            for i in range(3):
                I("ds_read_b64_tr_b16", vt[f][2 * i:2 * i + 2], self.vEXRa, mods=f"offset:{1024 * i + 8 * f}")
        more()
        self.conv(kf[0], 0, 1, self.cA, ("r", "m"))
        more()
        self.conv(qf[1], 1, 0, self.cA, (None, None))
        s = [V(112, 8), V(120, 8)]
        self.mfma(s[1][4:8], kf[1], qf[1], self.bCur)
        self.mfma(s[1][0:4], kf[0], qf[1], self.bPrev)
        self.mfma(s[0][4:8], kf[0], qf[0], self.bCur)
        self.mfma(s[0][0:4], kprev, qf[0], self.bPrev0)
        self.fine(4, 2)
        more()
        m = V(128, 2)
        for t in (1, 0):
            I("v_max3_f32", m[t], s[t][4], s[t][5], s[t][6])
            I("v_max3_f32", m[t], m[t], s[t][7], s[t][0])
            I("v_max3_f32", m[t], m[t], s[t][1], s[t][2])
            I("v_max_f32", m[t], m[t], s[t][3])
        self.allreduce_pairs([("v_max_f32", m[0], m[1])])
        more()
        nm = [V(130, 2), V(132, 2)]
        for t in range(2):
            I("v_mul_f32", nm[t][0], m[t], self.st(t)[3])
        for t in range(2):
            for p in range(4):
                self.I("v_pk_fma_f32", s[t][2 * p:2 * p + 2], s[t][2 * p:2 * p + 2], self.st(t)[2:4], nm[t],
                       mods="op_sel:[0,1,0] op_sel_hi:[1,1,0] neg_lo:[0,0,1] neg_hi:[0,0,1]")
        self.fine(4, 3)
        pf = [V(136, 4), V(140, 4)]
        o = [V(144, 8), V(152, 8)]
        sm = [V(160, 4), V(164, 4)]
        more()
        for k in range(8): I("v_exp_f32", s[0][k], s[0][k])
        more()
        for k in range(2): I("v_exp_f32", s[1][k], s[1][k])
        self.cvt(pf[0], s[0])
        for k in range(2, 4): I("v_exp_f32", s[1][k], s[1][k])
        self.mfma(sm[0], self.aOnes, pf[0], 0)
        I("v_exp_f32", s[1][4], s[1][4])
        self.mfma(o[0][0:4], vt[0][0:4], pf[0], 0)
        I("v_exp_f32", s[1][5], s[1][5])
        self.mfma(o[0][4:8], vt[1][0:4], pf[0], 0)
        for k in range(6, 8): I("v_exp_f32", s[1][k], s[1][k])
        self.cvt(pf[1], s[1])
        self.mfma(sm[1], self.aOnes, pf[1], 0)
        for f in range(2):
            self.mfma(o[1][4 * f:4 * f + 4], vt[f][2:6], pf[1], 0)
        self.fine(4, 4)
        more()
        more()
        self.fine(4, 5)
        self.fin_region = 4
        def hop1():
            for _ in range(NH): self.fw_piece(left.pop(0))
            self.fw_left = left
            assert len(left) <= 7
        if first: self.o_finish(o, sm, [V(168, 4), V(172, 4)], self.wphi_gather, hop1)
        else: self.o_finish(o, sm, [V(168, 4), V(172, 4)], lambda: self.unpark(range(7, 14)), None)
        I("s_mov_b32", self.sPhase, 1)
        I("s_mov_b64", self.sPWc[0:2], self.sWOA[0:2])
        I("s_mov_b32", self.sPWc[2], 401408)
        a.flush()
        I("s_branch", "L_p")

    def phi(self, src, dst, extra=(), done=None):
        a, I = self.a, self.I
        rest = list(extra)
        def more(n=1):
            for _ in range(n):
                if rest: rest.pop(0)()
        p = [V(120, 8), V(128, 8)]
        for t in range(2):
            for oft in range(2):
                self.mfma(p[t][4 * oft:4 * oft + 4], self.aWphi[4 * oft:4 * oft + 4], src[t], 0)
        kk = [V(204, 2), V(206, 2)]
        bb = [V(208, 2), V(210, 2)]
        for t in range(2):
            I("v_mov_b32", kk[t][0], self.st(t)[3])
            I("v_sub_f32", kk[t][1], 0, self.st(t)[3])
        more(3)
        mx, mn = V(188, 2), V(190, 2)
        for t in range(2):
            for k in range(3):
                if k == 0:
                    I("v_max3_f32", mx[t], p[t][0], p[t][1], p[t][2])
                    I("v_min3_f32", mn[t], p[t][0], p[t][1], p[t][2])
                else:
                    I("v_max3_f32", mx[t], mx[t], p[t][2 * k + 1], p[t][2 * k + 2])
                    I("v_min3_f32", mn[t], mn[t], p[t][2 * k + 1], p[t][2 * k + 2])
        self.fine(self.phi_region or -1, 1)
        self.allreduce_pairs([("v_max_f32", mx[0], mx[1]), ("v_min_f32", mn[0], mn[1])])
        for t in range(2):
            I("v_mul_f32", bb[t][0], mx[t], kk[t][1])
            I("v_mul_f32", bb[t][1], mn[t], kk[t][0])
        e = [V(144, 14), V(158, 14)]
        for i in range(7):
            for t in range(2):
                self.pk("v_pk_fma_f32", e[t][2 * i:2 * i + 2], p[t][(i & ~1):(i & ~1) + 2], kk[t], bb[t], bx=i & 1)
        self.fine(self.phi_region or -1, 2)
        for i in range(14):
            for t in range(2): I("v_exp_f32", e[t][i], e[t][i])
            more()
        sm = [V(188, 2), V(190, 2)]
        for t in range(2): self.pk("v_pk_add_f32", sm[t], e[t][0:2], e[t][2:4])
        for i in range(2, 7):
            for t in range(2): self.pk("v_pk_add_f32", sm[t], sm[t], e[t][2 * i:2 * i + 2])
            more()
        self.fine(self.phi_region or -1, 3)
        self.allreduce_pairs([("v_add_f32", sm[0][0], sm[0][1]), ("v_add_f32", sm[1][0], sm[1][1])])
        for t in range(2):
            for k in range(2): I("v_rcp_f32", sm[t][k], sm[t][k])
        for t in range(2):
            more()
            for i in range(7):
                self.pk("v_pk_mul_f32", e[t][2 * i:2 * i + 2], e[t][2 * i:2 * i + 2], sm[t])
                if i == 3: more()
            for s in range(2):
                more()
                for q in range(4):
                    I("v_cvt_pk_bf16_f32", dst[t][s][q], e[t][4 * q + s], e[t][4 * q + 2 + s] if q < 3 else 0)
                if done: done(t, s)
        more(99)

    def qb_stage(self):
        a, I = self.a, self.I
        T = self.sT
        a.label("L_qb")
        a.raw("@VISIT")
        self.q_poll(self.qb_shadow)
        self.stamp()
        kf = qf = [V(196, 4), V(200, 4)]
        rest = self.q_gemm("B", self.conv_scalar(kf[1], 1, 1, self.cB, (None, None)))
        for f in rest: f()
        self.stamp()
        vp = [V(212, 4), V(216, 4)]
        exw = V(220)
        I("v_subrev_u32", exw, L_EXV - L_PH, self.vEXW)
        self.conv(kf[0], 0, 1, self.cB, (None, None))
        for t in (1, 0):
            self.conv(vp[t], t, 2, self.cB, ("r", "e"))
            I("ds_write_b128", exw, vp[t], mods=f"offset:{16384 + 1024 * t}")
        self.fine(3, 0)
        self.phi_region = 3
        ph = [[V(232, 4), V(236, 4)], [V(224, 4), V(228, 4)]]
        self.phi(kf, ph, done=lambda t, s: I("ds_write_b128", exw, ph[t][s], mods=f"offset:{8192 * s + 1024 * t}"))
        self.phi_region = 0
        self.fine(3, 4)
        a.wait(lg=0)
        I("s_barrier")
        self.fine(3, 5)
        lo, hi, real, pr = V(184), V(185), V(186), V(187)
        sP = T[4]
        I("s_lshl_b32", sP, self.sW, 14)
        I("s_sub_u32", sP, self.sKVld, sP)
        I("s_add_u32", sP, sP, 3 * 16384)
        def probe(reg): I("buffer_load_dword", reg, self.vProbe, self.sWS, sP, mods="offen offset:12 sc1")
        P1 = self.opt.get("p1", 0)
        if P1 == 0: probe(pr)
        kacc = V(112, 8)
        def fa(k, oft): return V(128 + 4 * (k * 2 + oft), 4)
        def fb(k): return V(160 + 4 * k, 4)
        for k in range(4):
            for t in range(2):
                I("ds_read_b64_tr_b16", fb(k)[2 * t:2 * t + 2], self.vKB, mods=f"offset:{(2 * k + t) * 1024}")
            for oft in range(2):
                for t in range(2):
                    I("ds_read_b64_tr_b16", fa(k, oft)[2 * t:2 * t + 2], self.vKA, mods=f"offset:{(2 * k + t) * 1024 + 8 * oft}")
            if k:
                for oft in range(2):
                    self.mfma(kacc[4 * oft:4 * oft + 4], fa(k - 1, oft), fb(k - 1), 0 if k == 1 else kacc[4 * oft:4 * oft + 4])
        for oft in range(2):
            self.mfma(kacc[4 * oft:4 * oft + 4], fa(3, oft), fb(3), kacc[4 * oft:4 * oft + 4])
        self.fine(3, 6)
        if P1 == 1: probe(pr)
        def qw(ks, ft): return self.wf(2 * (ks % 3) + ft)
        for ft in range(2):
            for f in self.qw_read(qw(0, ft), ft, 0): f()
        kvp = V(120, 4)
        self.cvt(kvp, kacc)
        I("v_and_b32", kvp[3], "0xffff", kvp[3])
        I("v_or_b32", kvp[3], self.sTag, kvp[3])
        I("buffer_store_dwordx4", kvp, self.vL16, self.sWS, self.sKVst, mods="offen sc1")
        self.stamp()
        sO = [S(8 + k) for k in range(16)]
        sM = T[3]
        def gf(p): return A(4 * p, 4)
        def ready(reg):
            I("v_xor_b32", reg, self.sTag, reg)
            I("v_cmp_ge_u32", VCC, "0xffff", reg)
            I("v_lshrrev_b32", hi, 7, self.vL16)
            I("s_and_b32", sM, VCC_LO, "0xffff")
        def touch(r=(V(188), V(189), V(190))):
            for half in range(2):
                t = r[half]
                if half:
                    I("s_lshr_b32", T[0], sM, 8)
                    I("v_add_u32", r[2], 8192, self.vTA)
                    I("v_and_b32", r[2], "0x3fff", r[2])
                I("v_lshrrev_b32", t, hi, T[0] if half else sM)
                I("v_and_b32", t, 1, t)
                I("v_cmp_eq_u32", VCC, 1, t)
                I("v_mov_b32", t, OOB)
                I("v_cndmask_b32", t, t, r[2] if half else self.vTA, VCC)
                I("buffer_load_dword", self.vDummy, t, self.sWS, self.sKVld, mods="offen sc1", nodest=True)
        for ks in (1, 2):
            for ft in range(2):
                for f in self.qw_read(qw(ks, ft), ft, ks): f()
        rec = []
        keepI, I = I, (lambda *x, **k: rec.append((x, k)))
        I("v_add_u32", real, self.sKVld, self.vProbe)
        for p in range(16): I("v_readlane_b32", sO[p], real, p)
        n_early = len(rec)
        probe(lo)
        ready(pr)
        touch()
        I = keepI
        P2G = self.opt.get("p2g", 14)
        sr = [(0 if k < n_early else P2G, "v" if x[0][0] != "s" else "s", lambda x=x, kw=kw: keepI(*x, **kw)) for k, (x, kw) in enumerate(rec)]
        mf, sw = [], []
        for ks in range(14):
            for ft in range(2):
                for t in range(2):
                    mf.append((self.acc(t, ft), qw(ks, ft), self.xf(t, ks), 0 if ks == 0 else self.acc(t, ft)))
                if ks + 3 < 14: sw += [(len(mf) - 1, "v", f) for f in self.qw_read(qw(ks, ft), ft, ks + 3)]
        sd = [(P2G + 12 + 3 * k, kind, f) for k, (kind, f) in enumerate(self.pw_dma(self.sWOB, (0, 1)))]
        for f in self.sched(mf, [sw, sr, sd]): f()
        self.colsum_b_q2()
        NG = self.opt.get("ng", 6)
        def gload(p, **k): I("buffer_load_dwordx4", gf(p), self.vL16, self.sWS, sO[p], mods="offen sc1", **k)
        def mid(first):
            skip, retry = self.lab("gmid"), self.lab("gretry")
            if not first:
                I("s_cmp_eq_u32", sM, "0xffff")
                I("s_cbranch_scc1", skip)
                a.raw("    s_waitcnt vmcnt(0)")
            ready(lo)
            I("s_cmp_lg_u32", sM, "0xffff")
            I("s_cbranch_scc1", retry if first else skip)
            for p in range(self.opt.get("ng", 6)): gload(p, untracked=True)
            a.label(skip)
            if first:
                def again():
                    self.a.label(retry)
                    probe(lo)
                    self.I("s_branch", skip)
                self.tail.append(again)
        mid(True)
        for t in (1, 0): self.conv(qf[t], t, 0, self.cB, (None, None))
        NG1, NG = NG, NG + self.opt.get("ng2", 6)
        def extra_loads():
            skip = self.lab("gx")
            I("s_cmp_lg_u32", sM, "0xffff")
            I("s_cbranch_scc1", skip)
            for p in range(NG1, NG): gload(p, untracked=True)
            a.label(skip)
        GM, GM2 = self.opt.get("gm", 17), self.opt.get("gm2", 28)
        self.phi(qf, ph, extra=[lambda: None] * GM + [lambda: mid(False)] + [lambda: None] * (GM2 - GM - 1) + [extra_loads])
        self.stamp()
        red = V(176, 8)
        tg = [V(112 + k) for k in range(16)]
        chk, go, slow = self.lab("gchk"), self.lab("ggo"), self.lab("gslow")
        I("s_mov_b32", T[2], 0)
        I("s_cmp_lg_u32", sM, "0xffff")
        I("s_cbranch_scc1", slow)
        a.label(go)
        a.vm = [(None, set(gf(p).regs())) for p in range(NG)]
        self.it_b = T[2]
        self.b_to_a(range(7))
        I("s_mov_b32", T[2], 9)
        I("v_add_u32", exw, L_KVX - L_EXK, self.vKrd)
        I("v_add_u32", V(221), L_KVX, self.vL16)
        mf, sc, sg = [], [], []
        for p in range(16):
            mf.append((red[0:4], self.aSel[2:6], gf(p), 0 if p == 0 else red[0:4]))
            mf.append((red[4:8], self.aSel[0:4], gf(p), 0 if p == 0 else red[4:8]))
            if p + NG < 16: sg.append((2 * p, "v", lambda p=p: gload(p + NG)))
            sc.append((2 * p, "v", lambda p=p: I("v_accvgpr_read_b32", tg[p], gf(p)[3])))
            if p == 1:
                sc.append((2 * p, "v", lambda: I("v_min_u32", lo, tg[0], tg[1])))
                sc.append((2 * p, "v", lambda: I("v_max_u32", hi, tg[0], tg[1])))
            elif p & 1:
                sc.append((2 * p, "v", lambda p=p: I("v_min3_u32", lo, lo, tg[p - 1], tg[p])))
                sc.append((2 * p, "v", lambda p=p: I("v_max3_u32", hi, hi, tg[p - 1], tg[p])))
        rest = self.sched(mf, [sg, sc])
        for f in rest: f()
        I("v_xor_b32", lo, self.sTag, lo)
        I("v_xor_b32", hi, self.sTag, hi)
        I("v_or_b32", lo, lo, hi)
        I("v_cmp_lt_u32", VCC, "0xffff", lo)
        I("s_cbranch_vccnz", slow + "r")

        def tail():
            b = self.a
            b.label(slow)
            probe(lo)
            touch()
            b.I("s_sub_u32", self.sBudget, self.sBudget, 1)
            b.I("s_cbranch_scc1", "L_end")
            b.label(chk)
            ready(lo)
            b.I("s_cmp_lg_u32", sM, "0xffff")
            b.I("s_cbranch_scc1", slow)
            for p in range(NG): gload(p)
            b.I("s_branch", go)
            b.label(slow + "r")
            b.forget_counters()
            probe(lo)
            b.I("s_sub_u32", self.sBudget, self.sBudget, 1)
            b.I("s_cbranch_scc1", "L_end")
            b.wait(vm=0)
            b.I("s_branch", chk)
        self.tail.append(tail)
        self.stamp()
        kvs = V(112, 4)
        self.cvt(kvs, red)
        I("ds_write_b128", exw, kvs)
        a.wait(lg=0)
        I("s_barrier")
        kvf = [[A(0, 4), A(4, 4)], [A(8, 4), A(12, 4)]]
        zf = [A(16, 4), A(20, 4)]
        for s in range(2):
            I("ds_read_b128", zf[s], self.vZ, mods=f"offset:{2048 * s}")
            for dt in range(2):
                I("ds_read_b128", kvf[s][dt], V(221), mods=f"offset:{(2 * s + dt) * 1024}")
        o = [V(144, 8), V(152, 8)]
        dn = [V(160, 4), V(164, 4)]
        mf = []
        for s in range(2):
            for t in range(2): mf.append((dn[t], zf[s], ph[t][s], 0 if s == 0 else dn[t]))
            for t in range(2):
                for dt in range(2):
                    mf.append((o[t][4 * dt:4 * dt + 4], kvf[s][dt], ph[t][s], 0 if s == 0 else o[t][4 * dt:4 * dt + 4]))
        self.sched(mf, [])
        I("s_mov_b32", self.sPhase, 0)
        I("s_mov_b64", self.sPWc[0:2], self.sWOB[0:2])
        I("s_add_u32", self.sIt, self.sIt, 1)
        I("s_add_u32", self.sKVst, self.sKVst, 0x100000)
        I("s_add_u32", self.sKVld, self.sKVld, 0x100000)
        I("s_add_u32", self.sHX, self.sHX, 0x40000)
        for t in range(2): I("v_add_f32", dn[t][0], f32(1e-6), dn[t][0])
        self.it_b = 1
        self.o_finish(o, dn, [V(116, 4), V(120, 4)], lambda: self.b_to_a(range(7, 14)), None)
        a.flush()
        I("s_branch", "L_p")

    def final(self):
        a, I = self.a, self.I
        T = self.sT
        a.label("L_final")
        a.raw("@VISIT")
        a.forget_counters()
        xo = V(112, 8)
        for n in range(4):
            self.cvt(xo[2 * n:2 * n + 2], self.vR[4 * n:4 * n + 4])
            I("ds_write_b64", V(132 + n), xo[2 * n:2 * n + 2])
        a.wait(lg=0)
        for b in range(2): I("ds_read_b128", V(124 + 4 * b, 4), V(120), mods=f"offset:{1024 * b}")
        for b in range(2): I("buffer_store_dwordx4", V(124 + 4 * b, 4), self.vX0d, self.sOUT, T[2] if b else self.sX0o, mods="offen" + ("", " sc1", " nt", " sc0 sc1")[self.opt.get("outfl", 0)])
        a.label("L_fin2")
        self.stamp()
        if self.opt.get("stamps"):
            I("s_mov_b32", T[7], 63)
            self.stamp(real=True)
            I("s_lshl_b32", T[0], S(2), 2)
            I("s_add_u32", T[0], T[0], self.sW)
            I("s_lshl_b32", T[0], T[0], 8)
            I("s_add_u32", T[0], T[0], WS_STAMP)
            I("v_lshrrev_b32", V(120), 2, self.vL16)
            if self.opt.get("fine") == 5:
                for k in range(7):
                    I("v_readlane_b32", T[1], V(240), k)
                    I("v_writelane_b32", self.vStamp, T[1], 40 + k)
                I("v_readlane_b32", T[1], V(240), 63)
                I("v_writelane_b32", self.vStamp, T[1], 62)
                I("v_readlane_b32", T[1], self.vStamp, 2)
                I("v_writelane_b32", self.vStamp, T[1], 47)
            I("buffer_store_dword", self.vStamp, V(120), self.sWS, T[0], mods="offen")
        I("s_or_b32", T[0], S(2), self.sW)
        I("s_cmp_lg_u32", T[0], 0)
        I("s_cbranch_scc1", "L_end")
        if self.opt.get("dbg"):
            I("s_load_dwordx2", S(8, 2), S(0, 2), 64)
            a.wait(lg=0)
            self.srd(S(12, 4), S(8, 2), 256)
            I("v_lshrrev_b32", V(120), 2, self.vL16)
            I("v_readlane_b32", T[0], self.vStamp, 0)
            I("v_readlane_b32", T[1], self.vStamp, 62)
            I("v_readlane_b32", T[2], self.vStamp, 63)
            I("s_sub_u32", T[1], T[2], T[1])
            I("v_subrev_u32", V(121), T[0], self.vStamp)
            I("v_writelane_b32", V(121), T[1], 0)
            I("v_readlane_b32", T[0], V(121), 32)
            I("v_writelane_b32", V(121), T[0], 15)
            I("buffer_store_dword", V(121), V(120), S(12, 4), 0, mods="offen")
        if self.opt.get("leak"):
            skip = self.lab("noleak")
            I("v_readlane_b32", T[1], self.vStamp, 62)
            I("v_readlane_b32", T[2], self.vStamp, 63)
            I("v_readlane_b32", T[3], self.vStamp, self.opt.get("leakidx", 0))
            I("v_readlane_b32", T[4], self.vStamp, 0)
            I("s_sub_u32", T[1], T[2], T[1])
            I("s_sub_u32", T[3], T[3], T[4])
            I("s_cmp_lt_u32", T[1], self.opt["leak"])
            I("s_cbranch_scc1", skip)
            I("s_cmp_eq_u32", self.sMode, 0)
            I("s_cbranch_scc1", skip)
            I("v_cvt_f32_u32", V(121), T[3] if self.opt.get("leakidx") else T[1])
            I("v_lshrrev_b32", V(121), 16, V(121))
            a.wait(vm=0)
            I("s_mov_b64", EXEC, 1)
            I("buffer_store_short", V(121), OFF, self.sOUT, 0)
            a.label(skip)
        I("s_add_u32", T[0], self.sNonce, "0x10100")
        I("v_mov_b32", V(120), T[0])
        I("s_mov_b64", EXEC, 1)
        I("buffer_store_dword", V(120), OFF, self.sWS, 0)
        I("s_endpgm")

    def place_visits(self, head, lines):
        import subprocess, re
        if not self.opt.get("visit", 0):
            return "\n".join(l for l in lines if l != "@VISIT") + "\n"
        lines = list(lines)
        def render(ls):
            n = sum(l == "@VISIT" for l in ls)
            out, k = [], 0
            for l in ls:
                if l == "@VISIT":
                    out += [f"L_visit_{k}:", "    s_cbranch_execz " + (f"L_visit_{k + 1}" if k + 1 < n else "L_visit_ret")]
                    k += 1
                else: out.append(l)
            return "\n".join(out) + "\n"
        start = lines.index("L_qa1:")
        lines.insert(start + 1, "@VISIT")
        page = 1
        while True:
            open("visit.s", "w").write(head + render(lines))
            subprocess.run(["clang", "-x", "assembler", "-target", "amdgcn-amd-amdhsa", "-mcpu=gfx950", "-c", "visit.s", "-o", "visit.o"], check=True)
            dis = subprocess.run(["llvm-objdump", "-d", "--mcpu=gfx950", "visit.o"], capture_output=True, text=True).stdout
            base = int(re.search(r"([0-9a-f]+) <L_(?:qa1|visit_0)>:", dis).group(1), 16)
            addrs = [int(m.group(1), 16) for m in re.finditer(r"// ([0-9A-F]+):", dis)]
            addrs = [x for x in addrs if x >= base]
            idx = [i for i in range(start, len(lines)) if lines[i] == "@VISIT" or (lines[i].startswith("    ") and not lines[i].startswith("    ;"))]
            assert len(addrs) == len(idx), (len(addrs), len(idx))
            hit = [k for k, x in enumerate(addrs) if x >= base + 4096 * page]
            if not hit: break
            k = hit[0]
            if lines[idx[k]] != "@VISIT": lines.insert(idx[k], "@VISIT")
            page += 1
        return render(lines)

    def build(self):
        a = self.a
        self.prologue()
        self.qa_stage(first=True)
        self.p_stage()
        self.qa_stage()
        self.qb_stage()
        self.final()
        done = 0
        while done < len(self.tail):
            a.forget_counters()
            a.pos += 100
            self.tail[done]()
            done += 1
        a.label("L_end")
        a.I("s_endpgm")
        head = open("cdna_kernels/" + NAME[:-7] + ".s.ref").read().split("; Override launch")[0]
        out = head + f"; @launch grid=(256,1,1) block=(256,1,1) lds={LDS_BYTES}\n"
        out += f'.amdgcn_target "amdgcn-amd-amdhsa--gfx950"\n.text\n.globl {NAME}\n.p2align 8\n.type {NAME},@function\n{NAME}:\n'
        out += self.place_visits(out, a.lines)
        out += f""".section .rodata,"a"
.p2align 6
.amdhsa_kernel {NAME}
  .amdhsa_next_free_vgpr 512
  .amdhsa_next_free_sgpr 102
  .amdhsa_accum_offset 256
  .amdhsa_group_segment_fixed_size 0
  .amdhsa_kernarg_size 80
  .amdhsa_user_sgpr_count 2
  .amdhsa_user_sgpr_kernarg_segment_ptr 1
  .amdhsa_system_sgpr_workgroup_id_x 1
.end_amdhsa_kernel
"""
        return out


if __name__ == "__main__":
    opt = {}
    path = sys.argv[1]
    for kv in sys.argv[2:]:
        k, v = kv.split("=")
        opt[k] = int(v)
    g = Gen(opt)
    open(path, "w").write(g.build())
    import subprocess
    r = subprocess.run(["clang", "-x", "assembler", "-target", "amdgcn-amd-amdhsa", "-mcpu=gfx950", "-c", path, "-o", "gen_check.o"], capture_output=True, text=True)
    if r.returncode: print(r.stderr[:3000]); sys.exit(1)
    sz = subprocess.run(["llvm-readelf", "-S", "gen_check.o"], capture_output=True, text=True).stdout
    print("text bytes", [int(l.split()[6], 16) for l in sz.splitlines() if " .text" in l],
          "instructions", sum(g.a.count.values()), "nop states", g.a.nops)
```

```python
import sys
import math
import struct
from emit import Asm, V, A, S, VCC, EXEC, M0, OFF, Special

VCC_LO = Special("vcc_lo", [("s", "vcc")])

NAME = "interleave_layers__sliding_local_dilated__linear_kernel_hedgehog__prompt_kernel"


def f32(x):
    return "0x%08x" % struct.unpack("<I", struct.pack("<f", x))[0]


WS_E = 0x0
WS_FX = 0x1000
WS_FO = 0x5000
WS_SLOW = 0x8000
WS_FH = 0x10000
WS_HELLO = 0x11000
WS_FWF = 0x12000
WS_STAMP = 0xC0000
WS_X = 0x100000
WS_XS = 0x2C0000
WS_O = 0x300000
WS_KV = 0x500000
WS_HX = 0x700000
WS_FW = 0x800000
FW_T = 16 * 86016
WS_SIZE = 0xB00000
OOB = 0x7FFF0000

MAT = 28672
L_PW = 86016
L_SP = 151552
L_KVX = L_SP
L_HX = L_SP
L_WPHI = L_SP + 8192
L_CS = L_SP + 10240
L_EXK = L_PW + 49152
L_EXV = L_EXK + 5120
L_PH = L_PW + 40960
LDS_BYTES = 163840

LOG2E = math.log2(math.e)


class Neg:
    def __init__(self, r): self.r = r
    def __str__(self): return "-" + str(self.r)
    def regs(self): return self.r.regs()


class Gen:
    def __init__(self, opt):
        self.opt = opt
        self.a = Asm()
        self.tail = []
        self.uid = 0

    def lab(self, base):
        self.uid += 1
        return f"L_{base}_{self.uid}"

    sX0, sWA, sWOA, sWB, sWOB, sOUT, sWS, sWP = (S(24 + 4 * i, 4) for i in range(8))
    (sGrp, sH, sW, sC, sRh, sBase, sTag, sMode, sIt, sPhase, sL, sBudget, sXq, sXSq, sOq, sXp, sXSp, sOp, sFXp, sFOq,
     sFOp, sHX, sHaloProd, sFHp, sKVst, sKVld, sQWo, sFirst, sPend, sX0o, sNonce, sXcc) = (S(56 + i) for i in range(32))
    sPWc = sX0
    sT = [S(88 + i) for i in range(8)]
    sT2 = S(96, 2)
    sStamp = S(98, 2)
    sFW, sQWl, sPWl, sPWo = S(4), S(5), S(6), S(7)

    vL16, vQ0, vQ1, vQv0, vQv1, vQh = (V(1 + i) for i in range(6))
    vP = [V(7 + i) for i in range(4)]
    vQWd, vX0d, vExpHC, vPollQ, vPollM, vPollP, vEXW, vEXRa, vHW, vM3, vStat = (V(11 + i) for i in range(11))
    vE0 = V(22, 2)
    vHalo, vHaloS, vStatSt, vZ, vExpHM, vExpC, vExpM, vMH = (V(24 + i) for i in range(8))
    vCH = V(32, 4)
    bCur, bPrev, bPrev0 = V(36, 4), V(40, 4), V(44, 4)
    vR = V(48, 16)
    cA, cB = V(64, 24), V(88, 24)
    vTA, vProbe, vHp, vQS = V(241), V(242), V(243), V(244)
    vDummy = V(245)
    vPWd = [V(246 + i) for i in range(4)]
    vKA, vKB, vPollH, vKrd, vStamp = (V(250 + i) for i in range(5))
    vT = V(255)

    aOnes, aSel, aWphi = A(232, 4), A(236, 6), A(242, 8)

    def acc(self, T, ft): return V(112 + (T * 6 + ft) * 4, 4)
    hacc = V(160, 4)
    def straw(self, T): return V(164 + 4 * T, 4)
    def st(self, T): return V(176 + 4 * T, 4)
    def xf(self, T, ks): return A((ks * 2 + T) * 4, 4)
    def hx(self, ks): return A(56 + 4 * ks, 4) if ks < 12 else self.wf(ks - 6)
    def stash(self, i): return A(112 + 4 * i, 4) if i < 14 else A(200 + 4 * (i - 14), 4)
    def wf(self, f): return A(168 + 4 * f, 4)

    def I(self, *x, **k): self.a.I(*x, **k)

    def stamp(self, real=False):
        if not self.opt.get("stamps") or (self.opt.get("stamps") == 2 and not real):
            return
        a = self.a
        a.I("s_memrealtime" if real or self.opt.get("real") else "s_memtime", self.sStamp)
        a.I("s_mov_b32", M0, self.sT[7])
        a.wait(lg=0)
        a.I("v_writelane_b32", self.vStamp, self.sStamp[0], M0)
        a.I("s_add_u32", self.sT[7], self.sT[7], 1)
        if getattr(self, "fine_pending", False):
            self.fine_pending = False
            for i in range(7): a.I("v_writelane_b32", self.vStamp, S(8 + 2 * i), 40 + i)
            a.I("v_writelane_b32", self.vStamp, self.sStamp[0], 47)

    def fine(self, region, i):
        if self.opt.get("fine") == region and region == 5:
            self.a.raw("    s_memtime s[100:101]")
            self.a.raw("    s_waitcnt lgkmcnt(0)")
            self.a.raw(f"    v_writelane_b32 v240, s100, {i}")
            self.a.pos += 3
            return
        if self.opt.get("fine") == region:
            self.a.raw(f"    s_memtime s[{8 + 2 * i}:{9 + 2 * i}]")
            self.a.pos += 1
            self.fine_pending = True

    def srd(self, dst, src, nbytes):
        self.I("s_mov_b32", dst[0], src[0])
        self.I("s_and_b32", dst[1], src[1], "0xffff")
        self.I("s_mov_b32", dst[2], nbytes)
        self.I("s_mov_b32", dst[3], "0x20000")

    def mfma(self, d, x, y, c):
        self.I("v_mfma_f32_16x16x32_bf16", d, x, y, c)

    def pk(self, op, d, x, y, z=None, bx=None, by=None, bz=None):
        srcs = [(x, bx), (y, by)] + ([(z, bz)] if z is not None else [])
        lo = [0 if b is None else b for _, b in srcs]
        hi = [1 if b is None else b for _, b in srcs]
        mods = []
        if any(lo): mods.append("op_sel:[%s]" % ",".join(map(str, lo)))
        if not all(hi): mods.append("op_sel_hi:[%s]" % ",".join(map(str, hi)))
        self.I(op, d, *[s for s, _ in srcs], mods=" ".join(mods))

    def allreduce_pairs(self, chains):
        for step in range(7):
            for op, x, y in chains:
                if step in (0, 6): self.I("v_permlane32_swap_b32", x, y)
                elif step in (1, 4): self.I(op, x, x, y)
                elif step in (2, 5): self.I("v_mov_b32", y, x)
                else: self.I("v_permlane16_swap_b32", x, y)

    def budget_branch(self, loop):
        if self.opt.get("psleep"): self.I("s_sleep", self.opt["psleep"])
        self.I("s_sub_u32", self.sBudget, self.sBudget, 1)
        self.I("s_cbranch_scc1", "L_end")
        self.I("s_branch", loop)

    def flag_value(self, dst):
        self.I("s_lshl_b32", dst, self.sL, 4)
        self.I("s_or_b32", dst, dst, self.sBase)

    def publish(self, soff):
        a = self.a
        slow, done = self.lab("pubslow"), self.lab("pubdone")
        a.I("s_cmp_eq_u32", self.sMode, 0)
        a.I("s_cbranch_scc1", slow)
        a.I("s_mov_b64", EXEC, 1)
        a.I("buffer_store_dword", self.vT, OFF, self.sWS, soff)
        a.label(done)
        a.I("s_mov_b64", EXEC, -1)

        def tail():
            b = self.a
            b.label(slow)
            b.I("buffer_wbl2", mods="sc1")
            b.wait(vm=0)
            b.I("s_mov_b64", EXEC, 1)
            b.I("buffer_store_dword", self.vT, OFF, self.sWS, soff, mods="sc1")
            b.I("s_branch", done)
        self.tail.append(tail)

    def sched(self, mfmas, streams):
        a = self.a
        streams = [list(s) for s in streams]
        for i, m in enumerate(mfmas):
            self.mfma(*m)
            scalar_free = True
            if i + 1 < len(mfmas):
                n = mfmas[i + 1]
                if a.prewait(n[1], n[2]): scalar_free = False
            if scalar_free:
                for s in streams:
                    if s and s[0][0] <= i and s[0][1] == "s":
                        s.pop(0)[2]()
                        break
            slots = 2
            progress = True
            while slots > 0 and progress:
                progress = False
                for s in streams:
                    if not s or s[0][0] > i: continue
                    cost = 2 if s[0][1] == "w" else 1
                    if cost <= slots:
                        s.pop(0)[2]()
                        slots -= cost
                        progress = True
                        break
        return [it[2] for s in streams for it in s]

    def fw_piece(self, n):
        off = (n // 7) * MAT + (n % 7) * 1024
        self.I("s_add_u32", M0, self.sQWl, off, m0="fw")
        self.I("s_add_u32", self.sT[6], self.sFW, off)
        self.I("buffer_load_dwordx4", self.vL16, self.sWS, self.sT[6], mods="offen lds", untracked=True, m0="fw")

    def piece(self, n):
        n = (n + 7) % 21
        return f"offset:{(n // 7) * MAT + (n % 7) * 1024}"

    def unpark(self, pieces):
        for n in pieces: self.I("ds_write_b128", self.vQS, self.stash(n), mods=self.piece(n))

    def qb_shadow(self):
        a, I = self.a, self.I
        second, done = self.lab("ab2"), self.lab("abdone")
        I("s_cmp_lg_u32", self.sIt, 0)
        I("s_cbranch_scc1", second)
        for n in self.fw_left: self.fw_piece(n)
        a.raw(f"    s_waitcnt vmcnt({1 + len(self.fw_left)})")
        a.pos += 1
        I("s_barrier")
        I("s_lshl_b32", self.sT[0], self.sW, 6)
        self.colsum_part(self.vQh, list(range(14)), 128)
        a.wait_lg_all()
        a.flush()
        I("s_branch", done)
        a.label(second)
        self.unpark(range(7))
        a.label(done)

    def b_to_a(self, pieces):
        a, I = self.a, self.I
        done = self.lab("badone")
        if self.it_b is not None:
            I("s_cmp_lg_u32", self.sIt, self.it_b)
            I("s_cbranch_scc1", done)
        for n in pieces:
            I("ds_read_b128", self.stash(n), self.vQS, mods=self.piece(n))
            I("ds_write_b128", self.vQS, self.stash(n + 1), mods=self.piece(n))
        a.label(done)

    def pw_dma(self, srd, which):
        out = []
        for i in which:
            out.append(("s", lambda i=i: self.I("s_add_u32", M0, self.sPWl, i * 16384, m0="pw")))
            out.append(("s", lambda i=i: self.I("s_add_u32", self.sT[5], self.sPWo, 4 * 28 * i * 896)))
            for b in range(4):
                out.append(("v", lambda b=b: self.I("buffer_load_dwordx4", self.vPWd[b], srd, self.sT[5], mods=f"offen offset:{b * 1024} lds", m0="pw")))
        return out

    def raw_block(self, ks):
        for half in range(2):
            self.I("s_add_u32", M0, self.sT[4], ks * 2048 + half * 1024)
            self.I("s_add_u32", self.sT[6], self.sQWo, (32 * ks + 16 * half) * 2688)
            self.I("buffer_load_dwordx4", self.vQWd, self.sWA, self.sT[6], mods="offen lds", tag=f"raw{ks}")

    def tr_pair(self, dst, base, off):
        return [lambda: self.I("ds_read_b64_tr_b16", dst[0:2], base, mods=f"offset:{off}"),
                lambda: self.I("ds_read_b64_tr_b16", dst[2:4], base, mods=f"offset:{off + 1024}")]

    def qw_read(self, dst, ft, ks):
        base = (self.vQ0, self.vQ1, self.vQ0, self.vQ1, self.vQv0, self.vQv1)[ft]
        return self.tr_pair(dst, base, (MAT if ft in (2, 3) else 0) + ks * 2048)

    def bg(self, n=1):
        if self.bg_next >= self.bg_max: return
        skip = self.lab("bg")
        self.I("s_cmp_eq_u32", self.sW, 3)
        self.I("s_cbranch_scc1", skip)
        for _ in range(n):
            if self.bg_next < self.bg_max:
                self.raw_block(self.bg_next)
                self.bg_next += 1
        self.a.label(skip)

    def prologue(self):
        a, I = self.a, self.I
        T = self.sT
        self.bg_next, self.bg_max = 0, self.opt.get("n1", 3)
        I("s_load_dwordx8", S(4, 8), S(0, 2), 0)
        I("s_getpc_b64", S(22, 2))
        a.label("L_pc")
        if self.opt.get("pf0", 47):
            I("v_min_u32", V(113), self.opt.get("pf0", 47), V(0))
            I("v_lshlrev_b32", V(113), 7, V(113))
            I("global_load_dword", self.vDummy, V(113), S(22, 2), mods="offset:128", untracked=True)
        I("s_load_dwordx8", S(12, 8), S(0, 2), 32)
        I("s_load_dwordx2", S(20, 2), S(0, 2), 72)
        if self.opt.get("stamps"):
            I("s_memrealtime", S(100, 2))
            I("s_memtime", self.sStamp)
        I("s_cmp_ge_u32", S(2), 256)
        I("s_cbranch_scc1", "L_end")
        I("v_lshrrev_b32", V(114), 6, V(0))
        I("s_lshr_b32", T[1], S(2), 3)
        I("v_and_b32", V(0), 63, V(0))
        I("v_readfirstlane_b32", self.sW, V(114))
        I("s_mul_i32", T[0], T[1], 1280)
        I("v_min_u32", V(112), 9, V(0))
        I("v_lshl_add_u32", V(112), V(112), 7, T[0])
        I("v_min_u32", V(112), "L_end-L_pc", V(112))
        I("global_load_dword", self.vDummy, V(112), S(22, 2), untracked=True)
        I("s_and_b32", T[0], S(2), 7)
        I("s_and_b32", self.sH, T[1], 15)
        I("s_lshr_b32", T[1], T[1], 4)
        I("s_lshl_b32", T[0], T[0], 1)
        I("s_add_u32", self.sGrp, T[0], T[1])
        I("s_and_b32", self.sC, self.sH, 7)
        I("s_lshr_b32", self.sRh, self.sH, 3)
        lane, j, g, t0, t1, t2 = V(0), V(115), V(116), V(117), V(118), V(119)
        I("s_lshl_b32", T[0], self.sGrp, 3)
        I("s_lshl_b32", T[1], self.sRh, 2)
        I("s_add_u32", T[0], T[0], T[1])
        I("s_add_u32", T[0], T[0], self.sW)
        I("s_and_b32", T[1], T[0], 63)
        I("s_mul_i32", T[1], T[1], 16 * 1792)
        I("s_lshr_b32", T[2], self.sGrp, 3)
        I("s_mul_i32", T[2], T[2], 896)
        I("s_add_u32", T[1], T[1], T[2])
        I("s_lshl_b32", T[2], self.sC, 7)
        I("s_add_u32", self.sX0o, T[1], T[2])
        I("v_lshrrev_b32", t0, 3, lane)
        I("v_mul_u32_u24", t0, 1792, t0)
        I("v_and_b32", t1, 7, lane)
        I("v_lshl_add_u32", self.vX0d, t1, 4, t0)
        I("v_min_u32", t0, 36, lane)
        I("v_lshlrev_b32", V(121), 7, t0)
        I("s_mov_b32", self.sX0[2], 1835008)
        I("s_mov_b32", self.sX0[3], "0x20000")
        I("s_mov_b32", self.sWA[2], 1204224)
        I("s_mov_b32", self.sWA[3], "0x20000")
        I("s_mul_i32", T[1], S(2), 37 * 128)
        I("s_min_u32", T[1], T[1], 1204224 - 37 * 128)
        I("s_sub_u32", T[2], self.sX0o, 3 * 16 * 1792)
        a.wait(lg=0)
        if self.opt.get("fine") == 5: a.raw("    v_writelane_b32 v240, s100, 63")
        self.fine(5, 0)
        for r, p in ((self.sX0, 4), (self.sWA, 6)):
            I("s_mov_b32", r[0], S(p))
            I("s_and_b32", r[1], S(p + 1), "0xffff")
        no3, nox = self.lab("not3"), self.lab("nox0")
        I("s_cmp_lg_u32", self.sW, 3)
        I("s_cbranch_scc1", no3)
        I("s_cmp_eq_u32", self.sC, 7)
        I("s_cbranch_scc1", nox)
        for t in range(4):
            I("s_mov_b32", M0, L_SP + 2048 * t)
            I("s_add_u32", T[5], T[2], t * 16 * 1792)
            I("s_add_u32", T[6], T[2], t * 16 * 1792 + 8 * 1792 - 1024)
            I("buffer_load_dwordx4", self.vX0d, self.sX0, T[5], mods="offen lds")
            I("buffer_load_dwordx4", self.vX0d, self.sX0, T[6], mods="offen offset:1024 lds")
        a.label(nox)
        I("buffer_load_dword", self.vDummy, V(121), self.sWA, T[1], mods="offen", nodest=True)
        a.label(no3)
        I("v_and_b32", j, 15, lane)
        I("v_lshrrev_b32", g, 4, lane)
        I("v_lshlrev_b32", self.vL16, 4, lane)
        I("v_lshrrev_b32", t0, 2, lane)
        I("v_mul_u32_u24", t1, 2688, t0)
        I("v_lshrrev_b32", t0, 3, lane)
        I("v_and_b32", t0, 2, t0)
        I("v_and_b32", t2, 3, lane)
        I("v_xor_b32", t0, t0, t2)
        I("v_lshl_add_u32", self.vQWd, t0, 4, t1)
        I("s_mul_i32", self.sQWo, self.sH, 56)
        I("s_mul_i32", T[1], self.sW, 896)
        I("s_add_u32", self.sQWo, self.sQWo, T[1])
        I("s_mul_i32", T[4], self.sW, MAT)
        self.srd(self.sWS, S(20, 2), WS_SIZE)
        I("buffer_load_dword", V(120), OFF, self.sWS, 0, untracked=True)
        self.bg()
        for r, p, n in ((self.sWB, 12, 1204224), (self.sWP, 14, 25088), (self.sWOA, 8, 401408),
                        (self.sWOB, 16, 401408), (self.sOUT, 18, 1835008)):
            self.srd(r, S(p, 2), n)
        I("s_getreg_b32", self.sXcc, "hwreg(HW_REG_XCC_ID)")
        I("s_and_b32", self.sXcc, self.sXcc, 15)
        I("s_lshl_b32", T[1], self.sGrp, 3)
        I("s_lshl_b32", T[2], self.sW, 1)
        I("s_add_u32", T[1], T[1], T[2])
        I("s_mul_i32", self.sXq, T[1], 14336)
        I("s_add_u32", self.sXq, self.sXq, WS_X)
        I("s_lshl_b32", self.sXSq, T[1], 10)
        I("s_add_u32", self.sXSq, self.sXSq, WS_XS)
        I("s_lshl_b32", self.sOq, T[1], 14)
        I("s_lshl_b32", T[2], self.sH, 10)
        I("s_add_u32", self.sOq, self.sOq, T[2])
        I("s_add_u32", self.sOq, self.sOq, WS_O)
        I("s_lshl_b32", T[3], T[1], 7)
        I("s_add_u32", T[3], T[3], WS_FX)
        I("s_mul_i32", self.sXp, T[0], 14336)
        I("s_lshl_b32", T[2], self.sC, 11)
        I("s_add_u32", self.sXp, self.sXp, T[2])
        I("s_add_u32", self.sXp, self.sXp, WS_X)
        I("s_lshl_b32", self.sXSp, T[0], 10)
        I("s_lshl_b32", T[2], self.sC, 7)
        I("s_add_u32", self.sXSp, self.sXSp, T[2])
        I("s_add_u32", self.sXSp, self.sXSp, WS_XS)
        I("s_lshl_b32", self.sOp, T[0], 14)
        I("s_add_u32", self.sOp, self.sOp, WS_O)
        I("s_lshl_b32", self.sFXp, T[0], 7)
        I("s_lshl_b32", T[2], self.sC, 2)
        I("s_add_u32", self.sFXp, self.sFXp, T[2])
        I("s_add_u32", self.sFXp, self.sFXp, WS_FX)
        I("s_lshl_b32", T[1], self.sGrp, 2)
        I("s_add_u32", T[2], T[1], self.sW)
        I("s_lshl_b32", self.sFOq, T[2], 7)
        I("s_lshl_b32", T[2], self.sH, 2)
        I("s_add_u32", self.sFOq, self.sFOq, T[2])
        I("s_add_u32", self.sFOq, self.sFOq, WS_FO)
        I("s_lshr_b32", T[2], T[0], 1)
        I("s_lshl_b32", self.sFOp, T[2], 7)
        I("s_add_u32", self.sFOp, self.sFOp, WS_FO)
        I("s_lshl_b32", self.sHX, self.sGrp, 14)
        I("s_add_u32", self.sHX, self.sHX, WS_HX)
        I("s_lshl_b32", self.sFHp, self.sGrp, 7)
        I("s_add_u32", self.sFHp, self.sFHp, WS_FH)
        I("s_and_b32", T[1], self.sGrp, 7)
        I("s_cmp_eq_u32", T[1], 0)
        I("s_cselect_b32", self.sFirst, 1, 0)
        I("s_cmp_lg_u32", T[1], 7)
        I("s_cselect_b32", T[1], 1, 0)
        I("s_and_b32", T[2], T[0], 7)
        I("s_cmp_eq_u32", T[2], 7)
        I("s_cselect_b32", self.sHaloProd, T[1], 0)
        I("s_lshl_b32", T[1], self.sH, 2)
        I("s_add_u32", T[1], T[1], self.sW)
        I("s_lshl_b32", self.sKVld, T[1], 14)
        I("s_add_u32", self.sKVld, self.sKVld, WS_KV)
        I("s_lshl_b32", T[1], self.sGrp, 10)
        I("s_add_u32", self.sKVst, self.sKVld, T[1])
        I("s_mov_b32", self.sMode, 1)
        I("s_mov_b32", self.sIt, 0)
        I("s_mov_b32", self.sPhase, 0)
        I("s_mov_b32", self.sL, 1)
        I("s_mov_b32", self.sPend, 0)
        I("s_mov_b32", self.sBudget, 400000)
        self.bg()
        I("v_min_u32", t0, 12, lane)
        I("v_lshlrev_b32", V(122), 7, t0)
        I("v_lshlrev_b32", self.vStatSt, 3, j)
        I("v_and_b32", t0, 7, j)
        I("v_lshlrev_b32", t0, 4, t0)
        I("v_lshl_add_u32", self.vHp, g, 7, t0)
        I("v_lshlrev_b32", t0, 7, j)
        I("v_lshl_add_u32", t0, g, 3, t0)
        I("v_add_u32", V(123), L_SP, t0)
        I("s_mul_i32", self.sQWl, self.sW, 7168)
        I("s_mul_i32", self.sFW, self.sH, 86016)
        I("s_add_u32", self.sFW, self.sFW, self.sQWl)
        I("s_add_u32", self.sFW, self.sFW, WS_FW)
        I("s_lshl_b32", self.sPWl, self.sW, 12)
        I("s_add_u32", self.sPWl, self.sPWl, L_PW)
        I("s_mul_i32", self.sPWo, self.sW, 28 * 896)
        I("s_min_u32", T[1], self.sC, 6)
        I("s_lshl_b32", T[1], T[1], 7)
        I("s_add_u32", self.sPWo, self.sPWo, T[1])
        if self.opt.get("stamps"):
            I("s_mov_b32", T[7], 1)
            I("v_mov_b32", self.vStamp, 0)
            I("v_writelane_b32", self.vStamp, self.sStamp[0], 0)
            if self.opt.get("fine") != 5: I("v_writelane_b32", self.vStamp, S(100), 62)
        I("v_mov_b32", V(127), V(0))
        I("s_cmp_eq_u32", self.sW, 3)
        I("s_cbranch_scc1", "L_s0")
        a.label("L_setup")
        a.forget_counters()
        self.bg()
        self.fine(5, 1)

        r, cc = V(113), V(124)
        I("s_lshl_b32", T[1], self.sW, 11)
        I("v_add_u32", V(114), T[1], V(123))
        I("v_lshrrev_b32", r, 2, j)
        I("v_and_b32", cc, 3, j)
        I("v_lshl_add_u32", t0, g, 2, r)
        I("v_lshlrev_b32", t1, 3, cc)
        I("v_lshl_add_u32", t2, t0, 6, t1)
        I("v_and_b32", V(125), 1, g)
        I("v_lshl_add_u32", self.vQ0, V(125), 5, t2)
        I("v_xor_b32", self.vQ1, 32, self.vQ0)
        I("v_add_u32", self.vQv0, 2 * MAT, self.vQ0)
        I("v_add_u32", self.vQv1, 2 * MAT, self.vQ1)
        I("s_and_b32", T[1], self.sW, 1)
        I("s_lshl_b32", T[2], T[1], 5)
        I("v_xor_b32", self.vQh, T[2], self.vQ0)
        I("s_lshr_b32", T[2], self.sW, 1)
        I("s_add_u32", T[2], T[2], 1)
        I("s_mul_i32", T[2], T[2], MAT)
        I("v_add_u32", self.vQh, T[2], self.vQh)
        I("v_lshl_add_u32", t2, t0, 7, t1)
        I("v_add_u32", t2, L_PW, t2)
        I("v_lshrrev_b32", V(125), 1, t0)
        I("v_and_b32", V(125), 3, V(125))
        for n in range(4):
            I("v_xor_b32", V(126), n, V(125))
            I("v_lshl_add_u32", self.vP[n], V(126), 5, t2)
        self.bg()
        I("v_lshrrev_b32", V(125), 1, t0)
        I("v_xor_b32", V(125), V(125), cc)
        I("v_and_b32", V(125), 3, V(125))
        I("v_lshlrev_b32", V(125), 4, V(125))
        I("v_lshl_add_u32", V(126), t0, 6, V(125))
        I("s_lshl_b32", T[2], self.sW, 11)
        I("s_add_u32", T[5], T[2], L_EXV)
        I("v_add_u32", self.vEXRa, T[5], V(126))
        I("s_lshr_b32", T[5], self.sW, 1)
        I("s_lshl_b32", T[5], T[5], 13)
        I("s_add_u32", T[5], T[5], L_PH)
        I("v_add_u32", self.vKA, T[5], V(126))
        I("s_lshl_b32", T[5], T[1], 3)
        I("s_add_u32", T[5], T[5], L_PH + 16384)
        I("v_add_u32", self.vKB, T[5], V(126))
        I("v_lshrrev_b32", V(125), 1, j)
        I("v_xor_b32", V(125), V(125), g)
        I("v_and_b32", V(125), 3, V(125))
        I("v_lshlrev_b32", V(125), 4, V(125))
        I("v_lshl_add_u32", V(126), j, 6, V(125))
        I("v_add_u32", V(126), L_EXV, V(126))
        I("v_add_u32", self.vEXW, T[2], V(126))
        I("s_lshl_b32", T[5], self.sW, 10)
        I("v_add_u32", V(125), L_EXK, self.vL16)
        I("v_add_u32", self.vKrd, T[5], V(125))
        I("v_add_u32", self.vQS, self.sQWl, self.vL16)
        I("s_cmp_lt_u32", self.sW, 2)
        I("s_cselect_b64", VCC, -1, 0)
        I("v_cndmask_b32", V(126), V(126), V(125), VCC)
        I("s_lshl_b32", T[5], T[1], 3)
        I("v_add_u32", self.vHW, T[5], V(126))
        self.bg()
        I("v_lshrrev_b32", t0, 3, lane)
        I("v_mul_u32_u24", t1, 896, t0)
        I("v_and_b32", t0, 6, t0)
        I("v_and_b32", t2, 7, lane)
        I("v_xor_b32", t0, t0, t2)
        I("v_lshl_add_u32", self.vPWd[0], t0, 4, t1)
        for b in range(1, 4):
            I("v_add_u32", self.vPWd[b], b * (8 * 896 - 1024), self.vPWd[0])
        I("v_mov_b32", t1, OOB)
        I("v_cmp_gt_u32", VCC, 32, lane)
        I("v_cndmask_b32", self.vPWd[3], t1, self.vPWd[3], VCC)
        I("v_cmp_gt_u32", VCC, 48, lane)
        I("v_cndmask_b32", self.vM3, 0, -1, VCC)
        I("v_cndmask_b32", self.vE0[0], 1.0, 0, VCC)
        I("v_mov_b32", self.vE0[1], 0)
        I("s_cmp_eq_u32", T[1], 1)
        I("s_cselect_b64", VCC, -1, 0)
        I("v_cndmask_b32", self.vMH, -1, self.vM3, VCC)
        I("v_lshl_add_u32", self.vStat, g, 7, self.vStatSt)
        I("s_cmp_eq_u32", self.sFirst, 1)
        I("s_cselect_b64", VCC, -1, 0)
        I("v_cndmask_b32", self.vHalo, self.vL16, t1, VCC)
        I("v_cndmask_b32", self.vHaloS, self.vStat, t1, VCC)
        I("s_or_b32", T[2], self.sGrp, 1)
        I("s_add_u32", T[2], T[2], 1)
        I("v_add_u32", t0, T[2], j)
        I("v_and_b32", t0, 15, t0)
        I("v_lshlrev_b32", self.vProbe, 10, t0)
        I("v_lshrrev_b32", t0, 3, lane)
        I("v_add_u32", t0, T[2], t0)
        I("v_and_b32", t0, 15, t0)
        I("v_lshlrev_b32", t0, 3, t0)
        I("v_and_b32", t2, 7, lane)
        I("v_add_lshl_u32", self.vTA, t0, t2, 7)
        self.bg()
        I("v_lshlrev_b32", self.vZ, 8, g)
        I("v_add_u32", self.vZ, L_KVX + 1024 + 12 * 16, self.vZ)
        I("v_lshlrev_b32", self.vPollP, 2, j)
        I("v_and_b32", t0, 7, lane)
        I("v_min_u32", t0, 6, t0)
        I("v_lshlrev_b32", V(127), 2, t0)
        I("v_min_u32", t0, 13, j)
        I("v_lshlrev_b32", t0, 2, t0)
        I("s_lshl_b32", T[5], self.sH, 7)
        I("s_add_u32", T[5], T[5], WS_FWF)
        I("v_add_u32", t0, T[5], t0)
        I("v_add_u32", t2, self.sFHp, V(127))
        I("s_cmp_eq_u32", self.sFirst, 1)
        I("s_cselect_b32", T[5], 0, 16)
        I("v_cmp_gt_u32", VCC, T[5], lane)
        I("v_cndmask_b32", self.vPollH, t0, t2, VCC)
        I("v_cndmask_b32", self.vExpHM, 0, 16, VCC)
        I("v_cndmask_b32", self.vExpHC, 16, 0, VCC)
        I("v_lshrrev_b32", t2, 3, j)
        I("v_lshl_add_u32", t2, t2, 7, V(127))
        I("v_add_u32", t2, T[3], t2)
        I("s_lshl_b32", T[5], self.sGrp, 7)
        I("s_add_u32", T[5], T[5], WS_HELLO)
        I("v_add_u32", t0, T[5], self.vPollP)
        I("v_and_b32", V(125), 1, g)
        I("v_cmp_eq_u32", VCC, 0, V(125))
        I("v_cndmask_b32", self.vPollQ, t0, t2, VCC)
        I("v_cndmask_b32", self.vPollM, -16, -1, VCC)
        I("v_cndmask_b32", self.vExpM, 0, 16, VCC)
        I("v_mov_b32", t0, self.sXcc)
        I("v_cndmask_b32", self.vExpC, t0, 0, VCC)
        self.bg()
        I("v_mov_b32", V(125), f32(-1e30))
        for rr in range(4):
            I("v_lshl_add_u32", t0, g, 2, rr)
            I("v_sub_u32", t2, j, t0)
            I("v_cmp_gt_u32", VCC, 8, t2)
            I("v_cndmask_b32", self.bCur[rr], V(125), 0, VCC)
            I("v_add_u32", t2, 16, t2)
            I("v_cmp_gt_u32", VCC, 8, t2)
            I("v_cndmask_b32", self.bPrev[rr], V(125), 0, VCC)
        I("s_cmp_eq_u32", self.sW, 0)
        I("s_cselect_b32", T[2], self.sFirst, 0)
        I("s_cmp_eq_u32", T[2], 1)
        I("s_cselect_b64", VCC, -1, 0)
        for rr in range(4):
            I("v_cndmask_b32", self.bPrev0[rr], self.bPrev[rr], V(125), VCC)
        self.bg()
        I("v_mov_b32", t0, "0x3f803f80")
        for k in range(4): I("v_accvgpr_write_b32", self.aOnes[k], t0)
        for k in (0, 1, 4, 5): I("v_accvgpr_write_b32", self.aSel[k], 0)
        I("v_and_b32", V(125), 1, j)
        I("v_lshlrev_b32", V(125), 4, V(125))
        I("v_mov_b32", t0, "0x3f80")
        I("v_lshlrev_b32", t0, V(125), t0)
        I("v_cmp_eq_u32", VCC, r, g)
        I("v_cndmask_b32", t0, 0, t0, VCC)
        I("v_cmp_gt_u32", VCC, 2, cc)
        I("v_cndmask_b32", t2, 0, t0, VCC)
        I("v_cndmask_b32", t0, t0, 0, VCC)
        I("v_accvgpr_write_b32", self.aSel[2], t2)
        I("v_accvgpr_write_b32", self.aSel[3], t0)
        I("v_mov_b32", V(0), V(114))
        got = self.lab("nonce")
        I("s_cmp_eq_u32", self.sW, 3)
        I("s_cbranch_scc1", got)
        a.raw(f"    s_waitcnt vmcnt({2 * self.bg_next})")
        I("v_readfirstlane_b32", self.sNonce, V(120))
        I("s_add_u32", T[1], self.sNonce, "0x10100")
        I("s_and_b32", self.sBase, T[1], "0xffffff00")
        I("s_and_b32", self.sTag, T[1], "0x3fff0000")
        a.label(got)
        I("v_or_b32", self.vExpC, self.sBase, self.vExpC)
        I("v_or_b32", self.vExpHC, self.sBase, self.vExpHC)
        self.stamp()
        I("s_cmp_eq_u32", self.sW, 3)
        I("s_cbranch_scc1", "L_walk")
        I("s_barrier")
        self.stamp()

        N1 = self.bg_next
        ad0, ad1 = V(188), V(189)
        d0, d1 = V(192, 4), V(196, 4)
        I("v_add_u32", ad0, T[4], self.vQ0)
        I("v_add_u32", ad1, T[4], self.vQ1)
        ZP = self.opt.get("zp", 1)
        if ZP:
            zad, zz = V(190), V(200, 2)
            I("v_bfe_u32", zad, self.vL16, 4, 5)
            I("v_bfe_u32", zz[0], self.vL16, 6, 1)
            I("v_lshlrev_b32", zad, 6, zad)
            I("v_lshlrev_b32", zz[0], 5, zz[0])
            I("v_xor_b32", zz[0], 56, zz[0])
            I("v_add3_u32", zad, zad, zz[0], T[4])
            I("v_mov_b32", zz[0], 0)
            I("v_mov_b32", zz[1], 0)
        a.vm = [(f"raw{ks}", set()) for ks in range(N1) for _ in range(2)]
        AH = self.opt.get("ah", 6)
        nxt = N1
        for ks in range(14):
            while nxt < 14 and nxt <= ks + AH:
                self.raw_block(nxt)
                nxt += 1
            a.wait_vm_tag(f"raw{ks}")
            if ZP: I("ds_write_b64", zad, zz, mods=f"offset:{ks * 2048}")
            w0, w1 = self.wf(2 * (ks & 1)), self.wf(2 * (ks & 1) + 1)
            for f in self.tr_pair(w0, ad0, ks * 2048) + self.tr_pair(w1, ad1, ks * 2048): f()
            if ks:
                p0, p1 = self.wf(2 * ((ks - 1) & 1)), self.wf(2 * ((ks - 1) & 1) + 1)
                self.mfma(d0, p0, self.aOnes, 0 if ks == 1 else d0)
                self.mfma(d1, p1, self.aOnes, 0 if ks == 1 else d1)
        self.mfma(d0, self.wf(2), self.aOnes, d0)
        self.mfma(d1, self.wf(3), self.aOnes, d1)
        I("v_lshrrev_b32", ad0, 8, self.vL16)
        I("v_lshlrev_b32", ad0, 4, ad0)
        I("s_lshl_b32", T[0], self.sW, 7)
        I("s_add_u32", T[0], T[0], L_CS)
        I("v_add_u32", ad0, T[0], ad0)
        I("s_mov_b32", self.sT2[0], "0x00010001")
        I("s_mov_b32", self.sT2[1], "0x00010001")
        a.flush()
        I("s_mov_b64", EXEC, self.sT2)
        I("ds_write_b128", ad0, d0)
        I("ds_write_b128", ad0, d1, mods="offset:64")
        I("s_mov_b64", EXEC, -1)
        a.wait(lg=0)
        I("s_branch", "L_qa1")
        self.stage0()

    def stage0(self):
        a, I = self.a, self.I
        T = self.sT
        lane = V(127)
        idle, nohalo, pub, nofw = (self.lab(x) for x in ("idle", "nohalo", "pub", "nofw"))
        a.label("L_s0")
        a.forget_counters()
        a.pos += 100
        a.wait(vm=0)
        I("v_readfirstlane_b32", self.sNonce, V(120))
        I("s_lshl_b32", T[1], self.sGrp, 7)
        I("s_lshl2_add_u32", T[2], self.sH, T[1])
        I("s_add_u32", T[2], T[2], WS_HELLO)
        I("s_add_u32", T[1], self.sNonce, "0x10100")
        I("s_and_b32", self.sBase, T[1], "0xffffff00")
        I("s_and_b32", self.sTag, T[1], "0x3fff0000")
        I("s_or_b32", T[1], self.sBase, 16)
        I("v_mov_b32", self.vT, T[1])
        I("s_or_b32", T[1], self.sBase, self.sXcc)
        I("v_mov_b32", V(112), T[1])
        I("s_mov_b64", EXEC, 1)
        I("buffer_store_dword", V(112), OFF, self.sWS, T[2], mods="sc1")
        I("s_mov_b64", EXEC, -1)
        I("s_cmp_eq_u32", self.sC, 7)
        I("s_cbranch_scc1", idle)
        self.fine(5, 2)
        xo = [V(128 + 8 * t, 8) for t in range(4)]
        pr = [V(160 + 2 * t, 2) for t in range(4)]
        for t in range(4):
            for n in range(4): I("ds_read_b64", xo[t][2 * n:2 * n + 2], V(123), mods=f"offset:{2048 * t + 32 * n}")
        one = V(125)
        I("v_mov_b32", one, "0x3f803f80")
        I("s_sub_u32", T[5], self.sXp, 3 * 14336)
        I("s_sub_u32", T[6], self.sXSp, 3 * 1024)
        for t in range(4):
            I("buffer_store_dwordx4", xo[t][0:4], self.vL16, self.sWS, T[5], mods="offen sc1")
            I("buffer_store_dwordx4", xo[t][4:8], self.vL16, self.sWS, T[5], mods="offen offset:1024 sc1")
            if t < 3: I("s_add_u32", T[5], T[5], 14336)
        if self.opt.get("rel", 1) == 0: I("s_barrier")
        for k in range(8):
            for t in range(4):
                I("v_dot2_f32_bf16", pr[t][0], xo[t][k], one, 0 if k == 0 else pr[t][0])
                I("v_dot2_f32_bf16", pr[t][1], xo[t][k], xo[t][k], 0 if k == 0 else pr[t][1])
        self.allreduce_pairs([("v_add_f32", pr[t][0], pr[t][1]) for t in range(4)])
        I("s_mov_b64", EXEC, "0xffff")
        for t in range(4):
            I("buffer_store_dwordx2", pr[t], self.vStatSt, self.sWS, T[6], mods=f"offen offset:{1024 * t} sc1")
        I("s_mov_b64", EXEC, -1)
        I("s_cmp_eq_u32", self.sHaloProd, 0)
        I("s_cbranch_scc1", nohalo)
        I("s_lshl_b32", T[1], self.sC, 10)
        I("s_add_u32", T[1], T[1], self.sHX)
        I("s_add_u32", T[1], T[1], 16384)
        I("s_mov_b32", self.sT2[0], "0xff00ff00")
        I("s_mov_b32", self.sT2[1], "0xff00ff00")
        I("s_mov_b64", EXEC, self.sT2)
        I("buffer_store_dwordx4", xo[3][0:4], self.vHp, self.sWS, T[1], mods="offen sc1")
        I("buffer_store_dwordx4", xo[3][4:8], self.vHp, self.sWS, T[1], mods="offen offset:512 sc1")
        I("s_lshl_b32", T[1], self.sC, 7)
        I("s_add_u32", T[1], T[1], self.sHX)
        I("s_add_u32", T[1], T[1], 16384 + 14336)
        I("s_mov_b64", EXEC, "0xffff")
        I("buffer_store_dwordx2", pr[3], self.vStatSt, self.sWS, T[1], mods="offen sc1")
        I("s_mov_b64", EXEC, -1)
        a.label(nohalo)
        a.flush()
        I("v_and_b32", V(126), 3, lane)
        I("v_lshlrev_b32", V(126), 7, V(126))
        I("v_lshrrev_b32", V(113), 2, lane)
        I("v_lshl_add_u32", V(126), V(113), 15, V(126))
        I("s_sub_u32", T[2], self.sFXp, 3 * 128)
        I("v_add_u32", V(126), T[2], V(126))
        I("s_lshl_b32", T[1], self.sC, 2)
        I("s_add_u32", T[1], T[1], self.sFHp)
        I("s_add_u32", T[1], T[1], 128)
        I("v_writelane_b32", V(126), T[1], 8)
        I("s_lshl_b32", T[1], self.sHaloProd, 8)
        I("s_or_b32", self.sT2[0], T[1], "0xff")
        I("s_mov_b32", self.sT2[1], 0)
        if self.opt.get("rel", 1) == 1: I("s_barrier")
        a.wait(vm=0)
        I("s_mov_b64", EXEC, self.sT2)
        I("buffer_store_dword", self.vT, V(126), self.sWS, 0, mods="offen sc1")
        I("s_mov_b64", EXEC, -1)
        if self.opt.get("rel", 1) == 2: I("s_barrier")
        self.fine(5, 3)
        I("s_branch", pub)
        a.label(idle)
        I("s_barrier")
        a.label(pub)
        a.forget_counters()
        I("s_cmp_ge_u32", self.sGrp, 14)
        I("s_cbranch_scc1", nofw)
        I("s_mul_i32", T[2], self.sH, 56)
        I("s_mul_i32", T[1], self.sGrp, 32 * 2688)
        I("s_add_u32", T[2], T[2], T[1])
        for mat in range(3):
            for half in range(2):
                I("s_add_u32", T[1], T[2], mat * 896 + half * 16 * 2688)
                I("buffer_load_dwordx4", V(168 + 8 * mat + 4 * half, 4), self.vQWd, self.sWB, T[1], mods="offen")
        a.label(nofw)
        I("s_mul_i32", T[1], self.sH, 1568)
        I("s_mov_b32", M0, L_WPHI)
        I("s_mul_i32", T[2], S(2), 13 * 128)
        I("s_min_u32", T[2], T[2], 401408 - 13 * 128)
        I("v_lshrrev_b32", V(112), 3, lane)
        I("v_and_b32", V(113), 7, lane)
        I("v_lshlrev_b32", V(113), 7, V(113))
        I("v_lshl_add_u32", V(126), V(112), 14, V(113))
        I("s_sub_u32", T[5], self.sOq, 6 * 16384)
        I("buffer_load_dwordx4", self.vL16, self.sWP, T[1], mods="offen lds")
        I("buffer_load_dwordx4", self.vL16, self.sWP, T[1], mods="offen offset:1024 lds")
        I("buffer_load_dword", self.vDummy, V(122), self.sWOA, T[2], mods="offen", nodest=True)
        I("buffer_load_dword", self.vDummy, V(122), self.sWOB, T[2], mods="offen", nodest=True)
        I("buffer_load_dword", self.vDummy, V(126), self.sWS, T[5], mods="offen", nodest=True)
        I("s_branch", "L_setup")
        a.label("L_walk")
        a.forget_counters()
        self.stamp()
        nofw2 = self.lab("nofw")
        I("s_cmp_ge_u32", self.sGrp, 14)
        I("s_cbranch_scc1", nofw2)
        if self.opt.get("zp", 1):
            I("v_bfe_u32", V(112), self.vL16, 4, 2)
            I("v_bfe_u32", V(113), self.vL16, 8, 1)
            I("v_lshlrev_b32", V(113), 1, V(113))
            I("v_xor_b32", V(112), V(112), V(113))
            I("v_cmp_ne_u32", VCC, 3, V(112))
            I("v_cndmask_b32", V(112), 0, -1, VCC)
        a.raw("    s_waitcnt vmcnt(5)")
        if self.opt.get("zp", 1):
            for k in range(6):
                for d in (2, 3): I("v_and_b32", V(168 + 4 * k + d), V(168 + 4 * k + d), V(112))
        I("s_lshl_b32", T[1], self.sGrp, 11)
        I("s_add_u32", T[1], T[1], self.sFW)
        I("s_sub_u32", T[1], T[1], 3 * 7168)
        for mat in range(3):
            I("s_add_u32", T[2], T[1], mat * MAT)
            for half in range(2):
                I("buffer_store_dwordx4", V(168 + 8 * mat + 4 * half, 4), self.vL16, self.sWS, T[2], mods=f"offen offset:{half * 1024} sc1")
        I("s_lshl_b32", T[1], self.sH, 7)
        I("s_lshl_b32", T[2], self.sGrp, 2)
        I("s_add_u32", T[1], T[1], T[2])
        I("s_add_u32", T[1], T[1], WS_FWF)
        a.wait(vm=0)
        I("s_mov_b64", EXEC, 1)
        I("buffer_store_dword", self.vT, OFF, self.sWS, T[1], mods="sc1")
        I("s_mov_b64", EXEC, -1)
        a.label(nofw2)
        self.fine(5, 4)
        if self.opt.get("visit", 0):
            I("s_mov_b64", EXEC, 0)
            I("s_branch", "L_visit_0")
            a.label("L_visit_ret")
            I("s_mov_b64", EXEC, -1)
        I("s_branch", "L_qa1")

    def p_stage(self):
        a, I = self.a, self.I
        T = self.sT
        NPRE = 12
        a.label("L_p")
        a.raw("@VISIT")
        a.forget_counters()
        a.wait(lg=0)
        I("s_barrier")
        I("s_cmp_eq_u32", self.sC, 7)
        I("s_cbranch_scc1", "L_pidle")
        slots = [A(64 + 4 * k, 4) for k in range(12)] + [A(168 + 4 * k, 4) for k in range(8)] + [V(128 + 4 * k, 4) for k in range(28)]
        def pwf(hh, n): return slots[(hh % NPRE) * 4 + n]
        def pw_read(hh, n):
            return [lambda: I("ds_read_b64_tr_b16", pwf(hh, n)[0:2], self.vP[n], mods=f"offset:{hh * 4096}"),
                    lambda: I("ds_read_b64_tr_b16", pwf(hh, n)[2:4], self.vP[n], mods=f"offset:{hh * 4096 + 2048}")]
        self.flag_value(T[0])
        early = 8
        late = [f for _, f in self.pw_dma(self.sPWc, (2, 3))]
        PP = self.opt.get("pp", 3)
        for hh in range(early):
            for n in range(4):
                for f in pw_read(hh, n): f()
                if late and (n & 1 or hh == 0): late.pop(0)()
            if hh == PP: I("buffer_load_dword", V(112), self.vPollP, self.sWS, self.sFOp, mods="offen sc1")
        assert not late
        loop, ok = self.lab("ppoll"), self.lab("ppass")
        if self.opt.get("dual", 1):
            a.wait(vm=0)
            I("v_cmp_ne_u32", VCC, T[0], V(112))
            I("s_cbranch_vccnz", loop)
            def spin():
                b = self.a
                b.label(loop)
                b.I("buffer_load_dword", V(112), self.vPollP, self.sWS, self.sFOp, mods="offen sc1")
                b.nop(self.opt.get("dnop", 8))
                b.label(loop + "l")
                for x, y in ((V(113), V(112)), (V(112), V(113))):
                    b.I("buffer_load_dword", x, self.vPollP, self.sWS, self.sFOp, mods="offen sc1", untracked=True)
                    b.raw("    s_waitcnt vmcnt(1)")
                    b.forget_counters()
                    b.I("v_cmp_ne_u32", VCC, T[0], y)
                    b.I("s_cbranch_vccz", ok)
                self.budget_branch(loop + "l")
            self.tail.append(spin)
        else:
            a.label(loop)
            a.wait(vm=0)
            I("v_cmp_ne_u32", VCC, T[0], V(112))
            I("s_cbranch_vccz", ok)
            I("buffer_load_dword", V(112), self.vPollP, self.sWS, self.sFOp, mods="offen sc1")
            self.budget_branch(loop)
        a.label(ok)
        a.vm = []
        self.stamp()
        def of(hh): return A(4 * hh, 4)
        def oload(hh):
            out = []
            if hh % 4 == 0 and hh:
                out.append(("s", lambda: I("s_add_u32", T[1], self.sOp, hh * 1024)))
            so = self.sOp if hh < 4 else T[1]
            out.append(("v", lambda: I("buffer_load_dwordx4", of(hh), self.vL16, self.sWS, so, mods=f"offen offset:{(hh % 4) * 1024} sc1")))
            return out
        NO = self.opt.get("no", 5)
        for hh in range(NO):
            for _, f in oload(hh): f()
        I("s_barrier")
        for hh in range(early, NPRE):
            for n in range(4):
                for f in pw_read(hh, n): f()
        mf, so, sw = [], [], []
        for hh in range(16):
            for n in range(4):
                mf.append((self.vR[4 * n:4 * n + 4], pwf(hh, n), of(hh), self.vR[4 * n:4 * n + 4]))
                if hh + NPRE < 16:
                    sw += [(4 * hh + n, "v", f) for f in pw_read(hh + NPRE, n)]
            if hh + NO < 16: so += [(4 * hh, k, f) for k, f in oload(hh + NO)]
        j, t = V(136), V(137)
        fa = [("v", lambda: I("v_lshrrev_b32", j, 2, self.vPollP)), ("v", lambda: I("v_lshrrev_b32", t, 9, self.vL16)),
              ("v", lambda: I("v_xor_b32", t, t, j)), ("v", lambda: I("v_and_b32", t, 7, t)), ("v", lambda: I("v_lshlrev_b32", t, 4, t)),
              ("v", lambda: I("v_lshl_add_u32", t, j, 7, t)), ("v", lambda: I("v_bfe_u32", j, self.vL16, 8, 1)),
              ("s", lambda: I("s_lshl_b32", T[1], self.sW, 11)), ("s", lambda: I("s_add_u32", T[1], T[1], L_SP)),
              ("v", lambda: I("v_lshl_add_u32", t, j, 3, t)), ("v", lambda: I("v_add_u32", V(132), T[1], t))]
        fa += [("v", lambda n=n: I("v_xor_b32", V(132 + n), 32 * n, V(132))) for n in range(1, 4)]
        fa += [("v", lambda: I("v_lshrrev_b32", j, 3, self.vL16)), ("v", lambda: I("v_and_b32", j, "0x70", j)),
               ("v", lambda: I("v_xor_b32", j, j, self.vL16)), ("v", lambda: I("v_add_u32", V(120), T[1], j)),
               ("s", lambda: I("s_add_u32", T[2], self.sX0o, 8 * 1792))]
        rest = self.sched(mf, [so, sw, [(48, k, f) for k, f in fa]])
        assert not rest
        a.flush()
        self.stamp()
        I("s_cmp_eq_u32", self.sL, 4)
        I("s_cbranch_scc1", "L_final")

        a.label("L_pepi")
        xo = V(112, 8)
        for k in range(8):
            I("v_cvt_pk_bf16_f32", xo[k], self.vR[2 * k], self.vR[2 * k + 1])
            if k == 3: I("buffer_store_dwordx4", xo[0:4], self.vL16, self.sWS, self.sXp, mods="offen")
        I("buffer_store_dwordx4", xo[4:8], self.vL16, self.sWS, self.sXp, mods="offen offset:1024")
        sm, sq = V(120, 2), V(122, 2)
        self.pk("v_pk_add_f32", sm, self.vR[0:2], self.vR[2:4])
        self.pk("v_pk_mul_f32", sq, self.vR[0:2], self.vR[0:2])
        self.pk("v_pk_fma_f32", sq, self.vR[2:4], self.vR[2:4], sq)
        for k in range(2, 8):
            self.pk("v_pk_add_f32", sm, sm, self.vR[2 * k:2 * k + 2])
            self.pk("v_pk_fma_f32", sq, self.vR[2 * k:2 * k + 2], self.vR[2 * k:2 * k + 2], sq)
        pr = V(124, 2)
        I("v_add_f32", pr[0], sm[0], sm[1])
        I("v_add_f32", pr[1], sq[0], sq[1])
        x, y = pr[0], pr[1]
        I("s_add_u32", self.sL, self.sL, 1)
        I("s_lshl_b32", T[0], self.sL, 4)
        I("v_permlane32_swap_b32", x, y)
        I("s_or_b32", T[0], T[0], self.sBase)
        I("v_add_f32", x, x, y)
        I("v_mov_b32", y, x)
        I("v_mov_b32", self.vT, T[0])
        I("s_cmp_eq_u32", self.sPhase, 0)
        I("v_permlane16_swap_b32", x, y)
        I("s_cselect_b32", self.sPend, self.sHaloProd, 0)
        I("v_add_f32", x, x, y)
        I("v_mov_b32", y, x)
        I("s_lshl_b32", T[1], self.sC, 10)
        I("s_add_u32", T[1], T[1], self.sHX)
        I("v_permlane32_swap_b32", x, y)
        I("s_mov_b64", EXEC, "0xffff")
        I("buffer_store_dwordx2", pr, self.vStatSt, self.sWS, self.sXSp, mods="offen")
        I("s_mov_b64", EXEC, -1)
        nh, pub = self.lab("nohalo"), self.lab("pub")
        I("s_cmp_eq_u32", self.sPend, 0)
        I("s_cbranch_scc0", nh)
        wb, wbd = self.lab("pwb"), self.lab("pwbd")
        I("s_cmp_eq_u32", self.sL, 4)
        I("s_cbranch_scc1", wb)
        a.label(wbd)
        def write_back():
            self.a.label(wb)
            for n in range(14, 21): self.I("ds_write_b128", self.vQS, self.stash(n), mods=self.piece(n))
            self.I("s_branch", wbd)
        self.tail.append(write_back)
        a.wait(vm=0)
        a.label(pub)
        self.publish(self.sFXp)

        def tail():
            b = self.a
            b.label(nh)
            b.I("s_add_u32", T[1], T[1], 16384)
            b.I("s_mov_b32", self.sT2[0], "0xff00ff00")
            b.I("s_mov_b32", self.sT2[1], "0xff00ff00")
            b.I("s_mov_b64", EXEC, self.sT2)
            b.I("buffer_store_dwordx4", xo[0:4], self.vHp, self.sWS, T[1], mods="offen sc1")
            b.I("buffer_store_dwordx4", xo[4:8], self.vHp, self.sWS, T[1], mods="offen offset:512 sc1")
            b.I("s_lshl_b32", T[1], self.sC, 7)
            b.I("s_add_u32", T[1], T[1], self.sHX)
            b.I("s_add_u32", T[1], T[1], 16384 + 14336)
            b.I("s_mov_b64", EXEC, "0xffff")
            b.I("buffer_store_dwordx2", pr, self.vStatSt, self.sWS, T[1], mods="offen sc1")
            b.I("s_mov_b64", EXEC, -1)
            b.wait(vm=3)
            b.I("s_branch", pub)
        self.tail.append(tail)
        a.label("L_pnext")
        a.flush()
        a.forget_counters()
        self.stamp()
        if self.opt.get("stop"):
            I("s_cmp_eq_u32", self.sL, self.opt["stop"])
            I("s_cbranch_scc1", "L_fin2")
        I("s_cmp_eq_u32", self.sPhase, 1)
        I("s_cbranch_scc1", "L_qb")

        def idle():
            b = self.a
            b.label("L_pidle")
            b.I("s_cmp_eq_u32", self.sL, 4)
            b.I("s_cbranch_scc1", "L_fin2")
            b.I("s_add_u32", self.sL, self.sL, 1)
            b.I("s_cmp_lg_u32", self.sL, 4)
            b.I("s_cbranch_scc1", "L_pnext")
            for n in range(14, 21): b.I("ds_write_b128", self.vQS, self.stash(n), mods=self.piece(n))
            b.I("s_branch", "L_pnext")
        self.tail.append(idle)

    def q_poll(self, shadow=None):
        a, I = self.a, self.I
        T = self.sT
        ex, t, pv = V(112), V(113), V(114)
        loop, ok, pend, nopend, slow, again = (self.lab(x) for x in ("qpoll", "qpass", "pend", "nopend", "qslow", "qagain"))
        I("v_mad_u32_u24", ex, self.vExpM, self.sL, self.vExpC)
        if shadow:
            chk = self.lab("qchk")
            I("buffer_load_dword", pv, self.vPollQ, self.sWS, 0, mods="offen sc1")
            shadow()
            I("s_branch", chk)
        a.label(loop)
        I("buffer_load_dword", pv, self.vPollQ, self.sWS, 0, mods="offen sc1")
        if shadow: a.label(chk)
        I("s_cmp_eq_u32", self.sPend, 0)
        a.wait(vm=0)
        I("s_cbranch_scc0", pend)
        a.label(nopend)
        I("v_xor_b32", t, pv, ex)
        I("v_cmp_ne_u32", VCC, 0, t)
        I("s_cbranch_vccnz", slow)
        a.label(ok)
        a.vm = []

        def tail():
            b = self.a
            b.label(pend)
            b.I("s_lshl_b32", T[1], self.sC, 2)
            b.I("s_add_u32", T[1], T[1], self.sFHp)
            self.flag_value(T[0])
            b.I("v_mov_b32", self.vT, T[0])
            b.I("s_mov_b64", EXEC, 1)
            b.I("buffer_store_dword", self.vT, OFF, self.sWS, T[1], mods="offset:128 sc1")
            b.I("s_mov_b64", EXEC, -1)
            b.I("s_mov_b32", self.sPend, 0)
            b.I("s_branch", nopend)
            b.label(slow)
            if self.opt.get("dual", 1):
                fast, gen = self.lab("qfast"), self.lab("qgen")
                b.I("s_cmp_eq_u32", self.sL, 1)
                b.I("s_cselect_b32", T[0], 0, self.sMode)
                b.I("s_cmp_eq_u32", T[0], 0)
                b.I("s_cbranch_scc1", gen)
                b.I("buffer_load_dword", pv, self.vPollQ, self.sWS, 0, mods="offen sc1")
                b.nop(self.opt.get("dnop", 8))
                b.label(fast)
                for x, y in ((t, pv), (pv, t)):
                    b.I("buffer_load_dword", x, self.vPollQ, self.sWS, 0, mods="offen sc1", untracked=True)
                    b.raw("    s_waitcnt vmcnt(1)")
                    b.forget_counters()
                    b.I("v_cmp_ne_u32", VCC, ex, y)
                    b.I("s_cbranch_vccz", ok)
                self.budget_branch(fast)
                b.label(gen)
            b.I("s_cmp_eq_u32", self.sMode, 0)
            b.I("s_cbranch_scc1", again + "m")
            b.I("v_not_b32", V(115), self.vPollM)
            b.I("v_and_b32", V(116), t, self.vPollM)
            b.I("v_and_b32", V(115), t, V(115))
            b.I("v_cmp_ne_u32", self.sT2, 0, V(115))
            b.I("v_cmp_eq_u32", VCC, 0, V(116))
            b.nop(2)
            b.I("s_cmp_eq_u64", self.sT2, 0)
            b.I("s_cbranch_scc1", again)
            b.I("s_andn2_b32", T[0], "0xffff0000", VCC_LO)
            b.I("s_cbranch_scc1", again)
            b.I("s_mov_b32", self.sMode, 0)
            b.I("s_add_u32", self.sFXp, self.sFXp, WS_SLOW)
            b.I("s_add_u32", self.sFOq, self.sFOq, WS_SLOW)
            b.I("s_add_u32", self.sFOp, self.sFOp, WS_SLOW)
            b.I("v_lshlrev_b32", V(115), 11, self.vExpM)
            b.I("v_add_u32", self.vPollQ, V(115), self.vPollQ)
            b.I("s_branch", again)
            b.label(again + "m")
            b.I("v_and_b32", V(116), t, self.vPollM)
            b.I("v_cmp_ne_u32", VCC, 0, V(116))
            b.I("s_cbranch_vccz", ok)
            b.label(again)
            self.budget_branch(loop)
        self.tail.append(tail)

    def xload(self, ks):
        out = []
        if ks % 4 == 0:
            out.append(("s", lambda: self.I("s_add_u32", self.sT[1], self.sXq, ks * 1024)))
            out.append(("s", lambda: self.I("s_add_u32", self.sT[2], self.sXq, ks * 1024 + 14336)))
        for t in range(2):
            out.append(("v", lambda t=t: self.I("buffer_load_dwordx4", self.xf(t, ks), self.vL16, self.sWS, self.sT[1 + t],
                                               mods=f"offen offset:{(ks % 4) * 1024} sc1")))
        return out

    def stats_ops(self, T, layer):
        raw, st = self.straw(T), self.st(T)
        t = V(188 + 2 * T, 2)
        ops = []
        def add(*x, **k): ops.append(("w" if ("perm" in x[0] or "rsq" in x[0]) else "v", lambda: self.I(*x, **k)))
        add("v_and_b32", raw[2], raw[2], self.vM3)
        add("v_and_b32", raw[3], raw[3], self.vM3)
        add("v_add_f32", raw[0], raw[0], raw[2])
        add("v_add_f32", raw[1], raw[1], raw[3])
        for step in range(7):
            x, y = raw[0], raw[1]
            if step in (0, 6): add("v_permlane32_swap_b32", x, y)
            elif step in (1, 4): add("v_add_f32", x, x, y)
            elif step in (2, 5): add("v_mov_b32", y, x)
            else: add("v_permlane16_swap_b32", x, y)
        add("v_mul_f32", st[0], f32(-1.0 / 448), raw[0])
        add("v_mul_f32", t[0], f32(1.0 / 448), raw[1])
        add("v_fma_f32", t[0], Neg(st[0]), st[0], t[0])
        add("v_max_f32", t[0], 0, t[0])
        add("v_add_f32", t[0], f32(1e-5), t[0])
        add("v_rsq_f32", st[1], t[0])
        add("v_and_b32", st[2], st[1], self.vMH if T == 2 else self.vM3)
        if T < 2:
            add("v_mul_f32", st[3], f32(LOG2E * (28 ** -0.5 if layer == "A" else 1.0)), st[1])
        return ops

    def colsum_part(self, ad, steps, cs_off):
        a, I = self.a, self.I
        d = V(192, 4)
        def w(k): return self.wf(k % 4)
        for k in range(4):
            for f in self.tr_pair(w(k), ad, steps[k] * 2048): f()
        mf, sw = [], []
        for k in range(len(steps)):
            mf.append((d, w(k), self.aOnes, 0 if k == 0 else d))
            if k + 4 < len(steps): sw += [(k, "v", f) for f in self.tr_pair(w(k), ad, steps[k + 4] * 2048)]
        assert not self.sched(mf, [sw])
        I("v_lshrrev_b32", V(189), 8, self.vL16)
        I("v_lshlrev_b32", V(189), 4, V(189))
        I("s_add_u32", self.sT[0], self.sT[0], L_CS + cs_off)
        I("v_add_u32", V(189), self.sT[0], V(189))
        I("s_mov_b32", self.sT2[0], "0x00010001")
        I("s_mov_b32", self.sT2[1], "0x00010001")
        a.flush()
        I("s_mov_b64", EXEC, self.sT2)
        I("ds_write_b128", V(189), d)
        I("s_mov_b64", EXEC, -1)

    def colsum_b_q(self):
        I, T = self.I, self.sT
        I("v_lshrrev_b32", V(188), 8, self.vL16)
        I("v_lshlrev_b32", V(188), 4, V(188))
        I("v_add_u32", V(188), L_CS, V(188))
        for ft in range(2, 6):
            I("ds_read_b128", self.cB[4 * ft:4 * ft + 4], V(188), mods=f"offset:{64 * ft}")
        I("s_lshr_b32", T[0], self.sW, 1)
        I("s_lshl_b32", T[0], T[0], 5)
        I("v_xor_b32", V(188), T[0], self.vQ0)
        I("s_and_b32", T[0], self.sW, 1)
        I("s_mul_i32", T[0], T[0], 7 * 2048)
        I("v_add_u32", V(188), T[0], V(188))
        I("s_lshl_b32", T[0], self.sW, 6)
        self.colsum_part(V(188), list(range(7)), 512)

    def colsum_b_q2(self):
        a, I = self.a, self.I
        done = self.lab("cq2")
        a.wait_lg_all()
        I("s_cmp_lg_u32", self.sIt, 0)
        I("s_cbranch_scc1", done)
        I("v_lshrrev_b32", V(188), 8, self.vL16)
        I("v_lshlrev_b32", V(188), 4, V(188))
        I("v_add_u32", V(188), L_CS + 512, V(188))
        for k in range(4):
            I("ds_read_b128", self.cB[4 * (k >> 1):4 * (k >> 1) + 4] if k % 2 == 0 else V(204 + 4 * (k >> 1), 4), V(188), mods=f"offset:{64 * k}")
        for k in range(8): I("v_add_f32", self.cB[k], self.cB[k], V(204 + k))
        a.flush()
        a.label(done)

    def cs_read(self, dst, with_halo):
        I = self.I
        ad = V(188)
        I("v_lshrrev_b32", ad, 8, self.vL16)
        I("v_lshlrev_b32", ad, 4, ad)
        I("v_add_u32", ad, L_CS, ad)
        for ft in range(6):
            I("ds_read_b128", dst[4 * ft:4 * ft + 4], ad, mods=f"offset:{64 * ft}")
        if with_halo:
            I("s_lshl_b32", self.sT[0], self.sW, 6)
            I("v_add_u32", V(189), self.sT[0], ad)
            I("ds_read_b128", self.vCH, V(189), mods="offset:128")

    def wphi_gather(self):
        a, I = self.a, self.I
        j, g, f1, ad, t = V(214), V(215), V(216), V(217), V(218)
        I("v_lshrrev_b32", g, 8, self.vL16)
        I("v_lshrrev_b32", j, 2, self.vPollP)
        I("v_lshrrev_b32", t, 2, j)
        I("v_sub_u32", f1, j, t)
        I("v_add_u32", f1, 16, f1)
        I("v_mul_u32_u24", ad, 4 * 56, g)
        I("v_add_u32", ad, L_WPHI, ad)
        I("v_lshl_add_u32", f1, f1, 1, ad)
        I("v_lshl_add_u32", ad, j, 1, ad)
        I("v_and_b32", t, 3, j)
        I("v_cmp_ne_u32", VCC, 3, t)
        I("v_cndmask_b32", t, 0, -1, VCC)
        I("v_and_b32", j, t, self.vM3)
        for oft, base in enumerate((ad, f1)):
            for e in range(8):
                d = e if e < 4 else 16 + e - 4
                I("ds_read_u16", V(204 + e), base, mods=f"offset:{d * 56}")
            for p in range(4):
                I("v_lshl_or_b32", V(204 + 2 * p), V(205 + 2 * p), 16, V(204 + 2 * p))
                m = (None, self.vM3)[p >> 1] if oft == 0 else (t, j)[p >> 1]
                if m is not None: I("v_and_b32", V(204 + 2 * p), V(204 + 2 * p), m)
                I("v_accvgpr_write_b32", self.aWphi[4 * oft + p], V(204 + 2 * p))

    def conv_scalar(self, dst, T, mat, c, scales):
        out = []
        st = self.st(T)
        for f in range(2):
            acc = self.acc(T, 2 * mat + f)
            cc = c[4 * (2 * mat + f):4 * (2 * mat + f) + 4]
            for k in range(4): out.append(lambda acc=acc, cc=cc, k=k: self.I("v_fma_f32", acc[k], cc[k], st[0], acc[k]))
            m = {"r": st[1], "m": st[2], None: None}[scales[f]]
            if m is not None:
                for k in range(4): out.append(lambda acc=acc, m=m, k=k: self.I("v_mul_f32", acc[k], acc[k], m))
            for p in range(2): out.append(lambda acc=acc, f=f, p=p: self.I("v_cvt_pk_bf16_f32", dst[2 * f + p], acc[2 * p], acc[2 * p + 1]))
        return out

    def check_parked(self, before):
        assert self.a.count["ds_read_b128"] - before == 21

    def q_ready(self, layer, first=False):
        a, I = self.a, self.I
        a.wait(lg=0)
        I("s_barrier")
        once = self.lab("once")
        if layer == "B":
            I("s_cmp_lg_u32", self.sIt, 0)
            I("s_cbranch_scc1", once)
        nvm = len(a.vm)
        if layer == "A" and not first:
            pass
        elif layer == "A":
            self.cs_read(self.cA, True)
            for n in range(4): I("ds_read_b64", V(200 + 2 * n, 2), V(0), mods=f"offset:{32 * n}")
            for n in range(4):
                for p in range(2):
                    I("v_lshlrev_b32", self.vR[4 * n + 2 * p], 16, V(200 + 2 * n + p))
                    I("v_and_b32", self.vR[4 * n + 2 * p + 1], "0xffff0000", V(200 + 2 * n + p))
        else:
            self.colsum_b_q()
        a.wait_lg_all()
        a.flush()
        assert nvm == len(a.vm)
        a.label(once)
        for ft in range(0 if layer == "A" else 2, 6):
            for f in self.qw_read(self.wf(ft), ft, 0): f()

    def q_gemm(self, layer, tail_ops=(), first=None):
        a, I = self.a, self.I
        T = self.sT
        isA = layer == "A"
        LOOK = self.opt.get("look", 3)
        for ks in range(2):
            for _, f in self.xload(ks): f()
        if not isA: self.q_ready("B")
        for _, f in self.xload(2): f()
        reads0, writes0 = a.count.get("ds_read_b64_tr_b16", 0) - 12, a.count.get("ds_write_b128", 0)
        parked0 = a.count.get("ds_read_b128", 0)
        def bar(n):
            assert a.count["ds_read_b64_tr_b16"] - reads0 == n and not a.lg and a.count.get("ds_write_b128", 0) == writes0
            I("s_barrier")

        G = 12 if isA else 8
        mf, sw, sx, sd, sv, sh, stc = [], [], [], [], [], [], []
        for ks in range(14):
            order = ((2, 3, 4, 5, 0, 1) if ks == 13 else range(6)) if isA else range(2, 6)
            for ft in order:
                for t in ((1, 0) if ks == 13 else (0, 1)):
                    mf.append((self.acc(t, ft), self.wf(ft), self.xf(t, ks), 0 if ks == 0 else self.acc(t, ft)))
                if ks < 13:
                    sw += [(len(mf) - 1, "v", f) for f in self.qw_read(self.wf(ft), ft, ks + 1)]
        for k in range(3, 14):
            gap = max(0, G * (k - LOOK) - (6 if k > 6 else 0)) if isA else max(0, G * (k - self.opt.get("lookb", 4)))
            xl = self.xload(k)
            sx += [(gap, kind, f) for kind, f in xl[:-1]] + [(gap + 4, "v", xl[-1][1])]
            SK = 6 if isA else self.opt.get("skb", 7)
            if k in (SK, SK + 1):
                for t in (k - SK,):
                    for q in range(2):
                        sx.append((gap + 7 + 2 * q, "v", lambda t=t, q=q: I(
                            "buffer_load_dwordx2", self.straw(t)[2 * q:2 * q + 2], self.vStat, self.sWS, self.sXSq,
                            mods=f"offen offset:{t * 1024 + 512 * q} sc1")))
        s0, s1 = self.stats_ops(0, layer), self.stats_ops(1, layer)
        sv += [(G * 6 + 6 if isA else G * (SK - 1), k, f) for p in zip(s0, s1) for k, f in p]
        sf = []
        if self.opt.get("fine") == (1 if isA else 2):
            sf = [(G * 2 * i, "s", lambda i=i: self.fine(1 if isA else 2, i)) for i in range(7)]
        nd = 0
        for k, f in self.pw_dma(self.sWOA, (0, 1)) if isA else ():
            sd.append((G * 10 + 2 + 5 * nd, k, f))
            nd += k == "v"
        if isA:
            HF, HC = self.opt.get("hf", 4), self.opt.get("hc", 8)
            hv, hx, fv = V(194), V(195), V(196)
            def check(reg, first, gap, shift):
                slow, back = self.lab("hslow"), self.lab("hback")
                out = [(first, "v", lambda: I("buffer_load_dword", reg, self.vPollH, self.sWS, 0, mods="offen sc1")),
                       (gap, "v", lambda: I("v_cmp_ne_u32", VCC, hx, reg))]
                if shift: out.append((gap, "s", lambda: I("s_lshr_b64", VCC, VCC, 16)))
                def br():
                    I("s_cbranch_scc1" if shift else "s_cbranch_vccnz", slow)
                    a.label(back)
                out.append((gap, "s", br))
                def tail():
                    b = self.a
                    b.label(slow)
                    b.I("s_sub_u32", self.sBudget, self.sBudget, 1)
                    b.I("s_cbranch_scc1", "L_end")
                    b.I("buffer_load_dword", reg, self.vPollH, self.sWS, 0, mods="offen sc1")
                    b.wait(vm=0)
                    b.I("v_cmp_ne_u32", VCC, hx, reg)
                    if shift: b.I("s_lshr_b64", VCC, VCC, 16)
                    b.I("s_cbranch_scc1" if shift else "s_cbranch_vccnz", slow)
                    b.I("s_branch", back)
                self.tail.append(tail)
                return out
            stc = [(2, "v", lambda: I("v_mad_u32_u24", hx, self.vExpHM, self.sL, self.vExpHC))]
            sh += check(hv, G * HF + 8, G * HC, False)
            sh.append((G * HC, "s", lambda: I("s_lshl_b32", T[0], self.sW, 11)))
            sh.append((G * HC, "s", lambda: I("s_add_u32", M0, T[0], L_HX, m0="halo")))
            sh.append((G * HC, "s", lambda: I("s_add_u32", T[0], T[0], self.sHX)))
            for q in range(2):
                sh.append((G * HC, "v", lambda q=q: I("buffer_load_dwordx4", self.vHalo, self.sWS, T[0], mods=f"offen offset:{1024 * q} sc1 lds", tag="halo", m0="halo")))
            sh.append((G * HC, "s", lambda: I("s_add_u32", T[0], self.sHX, 14336)))
            for q in range(2):
                sh.append((G * HC, "v", lambda q=q: I("buffer_load_dwordx2", self.straw(2)[2 * q:2 * q + 2], self.vHaloS, self.sWS, T[0],
                                                     mods=f"offen offset:{512 * q} sc1")))
            sh.append((G * HC, "v", lambda: I("v_add_u32", V(194), L_HX, self.vHp)))
            def hw(k): return A(4 * k, 4)
            shw = []
            for k in range(14): shw += [(G * (1 + (k * 11) // 14) + 3, "v", f) for f in self.tr_pair(hw(k), self.vQh, k * 2048)]
            sv += [(G * (HC + 4), k, f) for k, f in self.stats_ops(2, layer)]
            nb = len(mf) - 11
            sb = [(nb, "s", lambda: a.wait_vm_tag("halo")), (nb, "s", lambda: a.wait(lg=0)), (nb, "s", lambda: bar(168 + 28))]
            sb += [(nb, "v", lambda k=k: I("ds_read_b128", self.hx(k), V(194), mods=f"offset:{512 * k}")) for k in range(14)]
            n0 = len(mf)
            for k in range(14): mf.append((self.hacc, hw(k), self.hx(k), 0 if k == 0 else self.hacc))
            stl = [(n0 - 6, "v", f) for f in tail_ops]
            spark, sfw = [], []
            if first:
                spark = [(G * 6 + 4 * n, "v", lambda n=n: I("ds_read_b128", self.stash(n + 1), self.vQS, mods=self.piece(n))) for n in range(21)]
                sfw = [(nb + 6 + 8 * k, "w", first) for k in range(2)]
                sb.insert(0, (nb, "s", lambda: self.check_parked(parked0)))
            rest = self.sched(mf, [sf, sw, sx, stc, sh, shw, spark, sb, sd, sv, sfw, stl])
        else:
            n0 = len(mf)
            stl = [(n0 - 4, "v", f) for f in tail_ops]
            rest = self.sched(mf, [sf, sw, sx, sv, stl])
        return rest

    def ln(self, acc, c, st, scale):
        for p in range(2):
            self.pk("v_pk_fma_f32", acc[2 * p:2 * p + 2], c[2 * p:2 * p + 2], st[0:2], acc[2 * p:2 * p + 2], by=0)
        if scale == "r":
            for p in range(2): self.pk("v_pk_mul_f32", acc[2 * p:2 * p + 2], acc[2 * p:2 * p + 2], st[0:2], by=1)
        elif scale == "m":
            for p in range(2): self.pk("v_pk_mul_f32", acc[2 * p:2 * p + 2], acc[2 * p:2 * p + 2], st[2:4], by=0)
        elif scale == "e":
            self.pk("v_pk_fma_f32", acc[0:2], acc[0:2], st[2:4], self.vE0, by=0)
            self.pk("v_pk_mul_f32", acc[2:4], acc[2:4], st[2:4], by=0)

    def cvt(self, dst, src):
        for p in range(src.cnt // 2):
            self.I("v_cvt_pk_bf16_f32", dst[p], src[2 * p], src[2 * p + 1])

    def conv(self, dst, T, mat, c, scales):
        for f in range(2):
            ft = 2 * mat + f
            self.ln(self.acc(T, ft), c[4 * ft:4 * ft + 4], self.st(T), scales[f])
        for f in range(2):
            self.cvt(dst[2 * f:2 * f + 2], self.acc(T, 2 * mat + f))

    def o_finish(self, o, den, of, in_drain, after):
        a, I = self.a, self.I
        T = self.sT
        I("s_add_u32", T[1], self.sOq, 16384)
        self.flag_value(T[0])
        for t in range(2): I("v_rcp_f32", den[t][0], den[t][0])
        I("v_mov_b32", self.vT, T[0])
        for t in range(2):
            for p in range(4): self.pk("v_pk_mul_f32", o[t][2 * p:2 * p + 2], o[t][2 * p:2 * p + 2], den[t][0:2], by=0)
            self.cvt(of[t], o[t])
            I("buffer_store_dwordx4", of[t], self.vL16, self.sWS, T[1] if t else self.sOq, mods="offen")
        self.fine(getattr(self, "fin_region", 0) or -1, 6)
        self.fin_region = 0
        if in_drain: in_drain()
        a.wait(vm=0)
        self.publish(self.sFOq)
        self.stamp()
        if after: after()

    def qa_stage(self, first=False):
        a, I = self.a, self.I
        if first and self.opt.get("visit", 0): a.raw(".p2align 12")
        a.label("L_qa1" if first else "L_qa")
        a.forget_counters()
        self.it_b = None
        left = list(range(7, 21)) + list(range(7))
        NE, NH = self.opt.get("ne", 12), self.opt.get("nh", 4)
        def more():
            if first and len(left) > 21 - NE: self.fw_piece(left.pop(0))
        self.more = more
        if first: self.q_poll(lambda: self.q_ready("A", True))
        else: self.q_poll(lambda: (self.b_to_a(range(14, 21)), self.q_ready("A")))
        self.stamp()
        kf = [V(196, 4), V(200, 4)]
        qf = [V(204, 4), V(208, 4)]
        vp = [V(212, 4), V(216, 4)]
        hp = V(220, 2)
        tail_ops = self.conv_scalar(kf[1], 1, 1, self.cA, ("r", "m"))
        tail_ops.append(lambda: I("ds_write_b128", self.vKrd, kf[1], mods="offset:1024"))
        tail_ops += self.conv_scalar(vp[1], 1, 2, self.cA, ("r", "r"))
        tail_ops.append(lambda: I("ds_write_b128", self.vEXW, vp[1], mods="offset:2048"))
        rest = self.q_gemm("A", tail_ops, more if first else None)
        for f in rest: f()
        self.stamp()
        more()
        self.conv(vp[0], 0, 2, self.cA, ("r", "r"))
        I("ds_write_b128", self.vEXW, vp[0], mods="offset:1024")
        self.ln(self.hacc, self.vCH, self.st(2), "m")
        self.cvt(hp, self.hacc)
        I("ds_write_b64", self.vHW, hp)
        more()
        self.conv(qf[0], 0, 0, self.cA, (None, None))
        self.fine(4, 0)
        a.wait(lg=0)
        I("s_barrier")
        self.fine(4, 1)
        kprev = V(222, 4)
        vt = [V(226, 6), V(232, 6)]
        I("ds_read_b128", kprev, self.vKrd)
        for f in range(2):
            for i in range(3):
                I("ds_read_b64_tr_b16", vt[f][2 * i:2 * i + 2], self.vEXRa, mods=f"offset:{1024 * i + 8 * f}")
        more()
        self.conv(kf[0], 0, 1, self.cA, ("r", "m"))
        more()
        self.conv(qf[1], 1, 0, self.cA, (None, None))
        s = [V(112, 8), V(120, 8)]
        self.mfma(s[1][4:8], kf[1], qf[1], self.bCur)
        self.mfma(s[1][0:4], kf[0], qf[1], self.bPrev)
        self.mfma(s[0][4:8], kf[0], qf[0], self.bCur)
        self.mfma(s[0][0:4], kprev, qf[0], self.bPrev0)
        self.fine(4, 2)
        more()
        m = V(128, 2)
        for t in (1, 0):
            I("v_max3_f32", m[t], s[t][4], s[t][5], s[t][6])
            I("v_max3_f32", m[t], m[t], s[t][7], s[t][0])
            I("v_max3_f32", m[t], m[t], s[t][1], s[t][2])
            I("v_max_f32", m[t], m[t], s[t][3])
        self.allreduce_pairs([("v_max_f32", m[0], m[1])])
        more()
        nm = [V(130, 2), V(132, 2)]
        for t in range(2):
            I("v_mul_f32", nm[t][0], m[t], self.st(t)[3])
        for t in range(2):
            for p in range(4):
                self.I("v_pk_fma_f32", s[t][2 * p:2 * p + 2], s[t][2 * p:2 * p + 2], self.st(t)[2:4], nm[t],
                       mods="op_sel:[0,1,0] op_sel_hi:[1,1,0] neg_lo:[0,0,1] neg_hi:[0,0,1]")
        self.fine(4, 3)
        pf = [V(136, 4), V(140, 4)]
        o = [V(144, 8), V(152, 8)]
        sm = [V(160, 4), V(164, 4)]
        more()
        for k in range(8): I("v_exp_f32", s[0][k], s[0][k])
        more()
        for k in range(2): I("v_exp_f32", s[1][k], s[1][k])
        self.cvt(pf[0], s[0])
        for k in range(2, 4): I("v_exp_f32", s[1][k], s[1][k])
        self.mfma(sm[0], self.aOnes, pf[0], 0)
        I("v_exp_f32", s[1][4], s[1][4])
        self.mfma(o[0][0:4], vt[0][0:4], pf[0], 0)
        I("v_exp_f32", s[1][5], s[1][5])
        self.mfma(o[0][4:8], vt[1][0:4], pf[0], 0)
        for k in range(6, 8): I("v_exp_f32", s[1][k], s[1][k])
        self.cvt(pf[1], s[1])
        self.mfma(sm[1], self.aOnes, pf[1], 0)
        for f in range(2):
            self.mfma(o[1][4 * f:4 * f + 4], vt[f][2:6], pf[1], 0)
        self.fine(4, 4)
        more()
        more()
        self.fine(4, 5)
        self.fin_region = 4
        def hop1():
            for _ in range(NH): self.fw_piece(left.pop(0))
            self.fw_left = left
            assert len(left) <= 7
        if first: self.o_finish(o, sm, [V(168, 4), V(172, 4)], self.wphi_gather, hop1)
        else: self.o_finish(o, sm, [V(168, 4), V(172, 4)], lambda: self.unpark(range(7, 14)), None)
        I("s_mov_b32", self.sPhase, 1)
        I("s_mov_b64", self.sPWc[0:2], self.sWOA[0:2])
        I("s_mov_b32", self.sPWc[2], 401408)
        a.flush()
        I("s_branch", "L_p")

    def phi(self, src, dst, extra=(), done=None):
        a, I = self.a, self.I
        rest = list(extra)
        def more(n=1):
            for _ in range(n):
                if rest: rest.pop(0)()
        p = [V(120, 8), V(128, 8)]
        for t in range(2):
            for oft in range(2):
                self.mfma(p[t][4 * oft:4 * oft + 4], self.aWphi[4 * oft:4 * oft + 4], src[t], 0)
        kk = [V(204, 2), V(206, 2)]
        bb = [V(208, 2), V(210, 2)]
        for t in range(2):
            I("v_mov_b32", kk[t][0], self.st(t)[3])
            I("v_sub_f32", kk[t][1], 0, self.st(t)[3])
        more(3)
        mx, mn = V(188, 2), V(190, 2)
        for t in range(2):
            for k in range(3):
                if k == 0:
                    I("v_max3_f32", mx[t], p[t][0], p[t][1], p[t][2])
                    I("v_min3_f32", mn[t], p[t][0], p[t][1], p[t][2])
                else:
                    I("v_max3_f32", mx[t], mx[t], p[t][2 * k + 1], p[t][2 * k + 2])
                    I("v_min3_f32", mn[t], mn[t], p[t][2 * k + 1], p[t][2 * k + 2])
        self.fine(self.phi_region or -1, 1)
        self.allreduce_pairs([("v_max_f32", mx[0], mx[1]), ("v_min_f32", mn[0], mn[1])])
        for t in range(2):
            I("v_mul_f32", bb[t][0], mx[t], kk[t][1])
            I("v_mul_f32", bb[t][1], mn[t], kk[t][0])
        e = [V(144, 14), V(158, 14)]
        for i in range(7):
            for t in range(2):
                self.pk("v_pk_fma_f32", e[t][2 * i:2 * i + 2], p[t][(i & ~1):(i & ~1) + 2], kk[t], bb[t], bx=i & 1)
        self.fine(self.phi_region or -1, 2)
        for i in range(14):
            for t in range(2): I("v_exp_f32", e[t][i], e[t][i])
            more()
        sm = [V(188, 2), V(190, 2)]
        for t in range(2): self.pk("v_pk_add_f32", sm[t], e[t][0:2], e[t][2:4])
        for i in range(2, 7):
            for t in range(2): self.pk("v_pk_add_f32", sm[t], sm[t], e[t][2 * i:2 * i + 2])
            more()
        self.fine(self.phi_region or -1, 3)
        self.allreduce_pairs([("v_add_f32", sm[0][0], sm[0][1]), ("v_add_f32", sm[1][0], sm[1][1])])
        for t in range(2):
            for k in range(2): I("v_rcp_f32", sm[t][k], sm[t][k])
        for t in range(2):
            more()
            for i in range(7):
                self.pk("v_pk_mul_f32", e[t][2 * i:2 * i + 2], e[t][2 * i:2 * i + 2], sm[t])
                if i == 3: more()
            for s in range(2):
                more()
                for q in range(4):
                    I("v_cvt_pk_bf16_f32", dst[t][s][q], e[t][4 * q + s], e[t][4 * q + 2 + s] if q < 3 else 0)
                if done: done(t, s)
        more(99)

    def qb_stage(self):
        a, I = self.a, self.I
        T = self.sT
        a.label("L_qb")
        a.raw("@VISIT")
        self.q_poll(self.qb_shadow)
        self.stamp()
        kf = qf = [V(196, 4), V(200, 4)]
        rest = self.q_gemm("B", self.conv_scalar(kf[1], 1, 1, self.cB, (None, None)))
        for f in rest: f()
        self.stamp()
        vp = [V(212, 4), V(216, 4)]
        exw = V(220)
        I("v_subrev_u32", exw, L_EXV - L_PH, self.vEXW)
        self.conv(kf[0], 0, 1, self.cB, (None, None))
        for t in (1, 0):
            self.conv(vp[t], t, 2, self.cB, ("r", "e"))
            I("ds_write_b128", exw, vp[t], mods=f"offset:{16384 + 1024 * t}")
        self.fine(3, 0)
        self.phi_region = 3
        ph = [[V(232, 4), V(236, 4)], [V(224, 4), V(228, 4)]]
        self.phi(kf, ph, done=lambda t, s: I("ds_write_b128", exw, ph[t][s], mods=f"offset:{8192 * s + 1024 * t}"))
        self.phi_region = 0
        self.fine(3, 4)
        a.wait(lg=0)
        I("s_barrier")
        self.fine(3, 5)
        lo, hi, real, pr = V(184), V(185), V(186), V(187)
        sP = T[4]
        I("s_lshl_b32", sP, self.sW, 14)
        I("s_sub_u32", sP, self.sKVld, sP)
        I("s_add_u32", sP, sP, 3 * 16384)
        def probe(reg): I("buffer_load_dword", reg, self.vProbe, self.sWS, sP, mods="offen offset:12 sc1")
        P1 = self.opt.get("p1", 0)
        if P1 == 0: probe(pr)
        kacc = V(112, 8)
        def fa(k, oft): return V(128 + 4 * (k * 2 + oft), 4)
        def fb(k): return V(160 + 4 * k, 4)
        for k in range(4):
            for t in range(2):
                I("ds_read_b64_tr_b16", fb(k)[2 * t:2 * t + 2], self.vKB, mods=f"offset:{(2 * k + t) * 1024}")
            for oft in range(2):
                for t in range(2):
                    I("ds_read_b64_tr_b16", fa(k, oft)[2 * t:2 * t + 2], self.vKA, mods=f"offset:{(2 * k + t) * 1024 + 8 * oft}")
            if k:
                for oft in range(2):
                    self.mfma(kacc[4 * oft:4 * oft + 4], fa(k - 1, oft), fb(k - 1), 0 if k == 1 else kacc[4 * oft:4 * oft + 4])
        for oft in range(2):
            self.mfma(kacc[4 * oft:4 * oft + 4], fa(3, oft), fb(3), kacc[4 * oft:4 * oft + 4])
        self.fine(3, 6)
        if P1 == 1: probe(pr)
        def qw(ks, ft): return self.wf(2 * (ks % 3) + ft)
        for ft in range(2):
            for f in self.qw_read(qw(0, ft), ft, 0): f()
        kvp = V(120, 4)
        self.cvt(kvp, kacc)
        I("v_and_b32", kvp[3], "0xffff", kvp[3])
        I("v_or_b32", kvp[3], self.sTag, kvp[3])
        I("buffer_store_dwordx4", kvp, self.vL16, self.sWS, self.sKVst, mods="offen sc1")
        self.stamp()
        sO = [S(8 + k) for k in range(16)]
        sM = T[3]
        def gf(p): return A(4 * p, 4)
        def ready(reg):
            I("v_xor_b32", reg, self.sTag, reg)
            I("v_cmp_ge_u32", VCC, "0xffff", reg)
            I("v_lshrrev_b32", hi, 7, self.vL16)
            I("s_and_b32", sM, VCC_LO, "0xffff")
        def touch(r=(V(188), V(189), V(190))):
            for half in range(2):
                t = r[half]
                if half:
                    I("s_lshr_b32", T[0], sM, 8)
                    I("v_add_u32", r[2], 8192, self.vTA)
                    I("v_and_b32", r[2], "0x3fff", r[2])
                I("v_lshrrev_b32", t, hi, T[0] if half else sM)
                I("v_and_b32", t, 1, t)
                I("v_cmp_eq_u32", VCC, 1, t)
                I("v_mov_b32", t, OOB)
                I("v_cndmask_b32", t, t, r[2] if half else self.vTA, VCC)
                I("buffer_load_dword", self.vDummy, t, self.sWS, self.sKVld, mods="offen sc1", nodest=True)
        for ks in (1, 2):
            for ft in range(2):
                for f in self.qw_read(qw(ks, ft), ft, ks): f()
        rec = []
        keepI, I = I, (lambda *x, **k: rec.append((x, k)))
        I("v_add_u32", real, self.sKVld, self.vProbe)
        for p in range(16): I("v_readlane_b32", sO[p], real, p)
        n_early = len(rec)
        probe(lo)
        ready(pr)
        touch()
        I = keepI
        P2G = self.opt.get("p2g", 14)
        sr = [(0 if k < n_early else P2G, "v" if x[0][0] != "s" else "s", lambda x=x, kw=kw: keepI(*x, **kw)) for k, (x, kw) in enumerate(rec)]
        mf, sw = [], []
        for ks in range(14):
            for ft in range(2):
                for t in range(2):
                    mf.append((self.acc(t, ft), qw(ks, ft), self.xf(t, ks), 0 if ks == 0 else self.acc(t, ft)))
                if ks + 3 < 14: sw += [(len(mf) - 1, "v", f) for f in self.qw_read(qw(ks, ft), ft, ks + 3)]
        sd = [(P2G + 12 + 3 * k, kind, f) for k, (kind, f) in enumerate(self.pw_dma(self.sWOB, (0, 1)))]
        for f in self.sched(mf, [sw, sr, sd]): f()
        self.colsum_b_q2()
        NG = self.opt.get("ng", 6)
        def gload(p, **k): I("buffer_load_dwordx4", gf(p), self.vL16, self.sWS, sO[p], mods="offen sc1", **k)
        def mid(first):
            skip, retry = self.lab("gmid"), self.lab("gretry")
            if not first:
                I("s_cmp_eq_u32", sM, "0xffff")
                I("s_cbranch_scc1", skip)
                a.raw("    s_waitcnt vmcnt(0)")
            ready(lo)
            I("s_cmp_lg_u32", sM, "0xffff")
            I("s_cbranch_scc1", retry if first else skip)
            for p in range(self.opt.get("ng", 6)): gload(p, untracked=True)
            a.label(skip)
            if first:
                def again():
                    self.a.label(retry)
                    probe(lo)
                    self.I("s_branch", skip)
                self.tail.append(again)
        mid(True)
        for t in (1, 0): self.conv(qf[t], t, 0, self.cB, (None, None))
        NG1, NG = NG, NG + self.opt.get("ng2", 6)
        def extra_loads():
            skip = self.lab("gx")
            I("s_cmp_lg_u32", sM, "0xffff")
            I("s_cbranch_scc1", skip)
            for p in range(NG1, NG): gload(p, untracked=True)
            a.label(skip)
        GM, GM2 = self.opt.get("gm", 17), self.opt.get("gm2", 28)
        self.phi(qf, ph, extra=[lambda: None] * GM + [lambda: mid(False)] + [lambda: None] * (GM2 - GM - 1) + [extra_loads])
        self.stamp()
        red = V(176, 8)
        tg = [V(112 + k) for k in range(16)]
        chk, go, slow = self.lab("gchk"), self.lab("ggo"), self.lab("gslow")
        I("s_mov_b32", T[2], 0)
        I("s_cmp_lg_u32", sM, "0xffff")
        I("s_cbranch_scc1", slow)
        a.label(go)
        a.vm = [(None, set(gf(p).regs())) for p in range(NG)]
        self.it_b = T[2]
        self.b_to_a(range(7))
        I("s_mov_b32", T[2], 9)
        I("v_add_u32", exw, L_KVX - L_EXK, self.vKrd)
        I("v_add_u32", V(221), L_KVX, self.vL16)
        mf, sc, sg = [], [], []
        for p in range(16):
            mf.append((red[0:4], self.aSel[2:6], gf(p), 0 if p == 0 else red[0:4]))
            mf.append((red[4:8], self.aSel[0:4], gf(p), 0 if p == 0 else red[4:8]))
            if p + NG < 16: sg.append((2 * p, "v", lambda p=p: gload(p + NG)))
            sc.append((2 * p, "v", lambda p=p: I("v_accvgpr_read_b32", tg[p], gf(p)[3])))
            if p == 1:
                sc.append((2 * p, "v", lambda: I("v_min_u32", lo, tg[0], tg[1])))
                sc.append((2 * p, "v", lambda: I("v_max_u32", hi, tg[0], tg[1])))
            elif p & 1:
                sc.append((2 * p, "v", lambda p=p: I("v_min3_u32", lo, lo, tg[p - 1], tg[p])))
                sc.append((2 * p, "v", lambda p=p: I("v_max3_u32", hi, hi, tg[p - 1], tg[p])))
        rest = self.sched(mf, [sg, sc])
        for f in rest: f()
        I("v_xor_b32", lo, self.sTag, lo)
        I("v_xor_b32", hi, self.sTag, hi)
        I("v_or_b32", lo, lo, hi)
        I("v_cmp_lt_u32", VCC, "0xffff", lo)
        I("s_cbranch_vccnz", slow + "r")

        def tail():
            b = self.a
            b.label(slow)
            probe(lo)
            touch()
            b.I("s_sub_u32", self.sBudget, self.sBudget, 1)
            b.I("s_cbranch_scc1", "L_end")
            b.label(chk)
            ready(lo)
            b.I("s_cmp_lg_u32", sM, "0xffff")
            b.I("s_cbranch_scc1", slow)
            for p in range(NG): gload(p)
            b.I("s_branch", go)
            b.label(slow + "r")
            b.forget_counters()
            probe(lo)
            b.I("s_sub_u32", self.sBudget, self.sBudget, 1)
            b.I("s_cbranch_scc1", "L_end")
            b.wait(vm=0)
            b.I("s_branch", chk)
        self.tail.append(tail)
        self.stamp()
        kvs = V(112, 4)
        self.cvt(kvs, red)
        I("ds_write_b128", exw, kvs)
        a.wait(lg=0)
        I("s_barrier")
        kvf = [[A(0, 4), A(4, 4)], [A(8, 4), A(12, 4)]]
        zf = [A(16, 4), A(20, 4)]
        for s in range(2):
            I("ds_read_b128", zf[s], self.vZ, mods=f"offset:{2048 * s}")
            for dt in range(2):
                I("ds_read_b128", kvf[s][dt], V(221), mods=f"offset:{(2 * s + dt) * 1024}")
        o = [V(144, 8), V(152, 8)]
        dn = [V(160, 4), V(164, 4)]
        mf = []
        for s in range(2):
            for t in range(2): mf.append((dn[t], zf[s], ph[t][s], 0 if s == 0 else dn[t]))
            for t in range(2):
                for dt in range(2):
                    mf.append((o[t][4 * dt:4 * dt + 4], kvf[s][dt], ph[t][s], 0 if s == 0 else o[t][4 * dt:4 * dt + 4]))
        self.sched(mf, [])
        I("s_mov_b32", self.sPhase, 0)
        I("s_mov_b64", self.sPWc[0:2], self.sWOB[0:2])
        I("s_add_u32", self.sIt, self.sIt, 1)
        I("s_add_u32", self.sKVst, self.sKVst, 0x100000)
        I("s_add_u32", self.sKVld, self.sKVld, 0x100000)
        I("s_add_u32", self.sHX, self.sHX, 0x40000)
        for t in range(2): I("v_add_f32", dn[t][0], f32(1e-6), dn[t][0])
        if self.opt.get("wb"):
            skipw = self.lab("nowb")
            I("s_cmp_eq_u32", self.sIt, 2)
            I("s_cselect_b32", T[0], self.sC, 0)
            I("s_cmp_lg_u32", T[0], 7)
            I("s_cbranch_scc1", skipw)
            I("buffer_wbl2", mods="sc1", untracked=True)
            a.label(skipw)
        self.it_b = 1
        self.o_finish(o, dn, [V(116, 4), V(120, 4)], lambda: self.b_to_a(range(7, 14)), None)
        a.flush()
        I("s_branch", "L_p")

    def final(self):
        a, I = self.a, self.I
        T = self.sT
        a.label("L_final")
        a.raw("@VISIT")
        a.forget_counters()
        xo = V(112, 8)
        for n in range(4):
            self.cvt(xo[2 * n:2 * n + 2], self.vR[4 * n:4 * n + 4])
            I("ds_write_b64", V(132 + n), xo[2 * n:2 * n + 2])
        a.wait(lg=0)
        for b in range(2): I("ds_read_b128", V(124 + 4 * b, 4), V(120), mods=f"offset:{1024 * b}")
        for b in range(2): I("buffer_store_dwordx4", V(124 + 4 * b, 4), self.vX0d, self.sOUT, T[2] if b else self.sX0o, mods="offen" + ("", " sc1", " nt", " sc0 sc1")[self.opt.get("outfl", 0)])
        a.label("L_fin2")
        self.stamp()
        if self.opt.get("stamps"):
            I("s_mov_b32", T[7], 63)
            self.stamp(real=True)
            I("s_lshl_b32", T[0], S(2), 2)
            I("s_add_u32", T[0], T[0], self.sW)
            I("s_lshl_b32", T[0], T[0], 8)
            I("s_add_u32", T[0], T[0], WS_STAMP)
            I("v_lshrrev_b32", V(120), 2, self.vL16)
            if self.opt.get("fine") == 5:
                for k in range(7):
                    I("v_readlane_b32", T[1], V(240), k)
                    I("v_writelane_b32", self.vStamp, T[1], 40 + k)
                I("v_readlane_b32", T[1], V(240), 63)
                I("v_writelane_b32", self.vStamp, T[1], 62)
                I("v_readlane_b32", T[1], self.vStamp, 2)
                I("v_writelane_b32", self.vStamp, T[1], 47)
            I("buffer_store_dword", self.vStamp, V(120), self.sWS, T[0], mods="offen")
        I("s_or_b32", T[0], S(2), self.sW)
        I("s_cmp_lg_u32", T[0], 0)
        I("s_cbranch_scc1", "L_end")
        if self.opt.get("dbg"):
            I("s_load_dwordx2", S(8, 2), S(0, 2), 64)
            a.wait(lg=0)
            self.srd(S(12, 4), S(8, 2), 256)
            I("v_lshrrev_b32", V(120), 2, self.vL16)
            I("v_readlane_b32", T[0], self.vStamp, 0)
            I("v_readlane_b32", T[1], self.vStamp, 62)
            I("v_readlane_b32", T[2], self.vStamp, 63)
            I("s_sub_u32", T[1], T[2], T[1])
            I("v_subrev_u32", V(121), T[0], self.vStamp)
            I("v_writelane_b32", V(121), T[1], 0)
            I("v_readlane_b32", T[0], V(121), 32)
            I("v_writelane_b32", V(121), T[0], 15)
            I("buffer_store_dword", V(121), V(120), S(12, 4), 0, mods="offen")
        if self.opt.get("leak"):
            skip = self.lab("noleak")
            I("v_readlane_b32", T[1], self.vStamp, 62)
            I("v_readlane_b32", T[2], self.vStamp, 63)
            I("v_readlane_b32", T[3], self.vStamp, self.opt.get("leakidx", 0))
            I("v_readlane_b32", T[4], self.vStamp, 0)
            I("s_sub_u32", T[1], T[2], T[1])
            I("s_sub_u32", T[3], T[3], T[4])
            I("s_cmp_lt_u32", T[1], self.opt["leak"])
            I("s_cbranch_scc1", skip)
            I("s_cmp_eq_u32", self.sMode, 0)
            I("s_cbranch_scc1", skip)
            I("v_cvt_f32_u32", V(121), T[3] if self.opt.get("leakidx") else T[1])
            I("v_lshrrev_b32", V(121), 16, V(121))
            a.wait(vm=0)
            I("s_mov_b64", EXEC, 1)
            I("buffer_store_short", V(121), OFF, self.sOUT, 0)
            a.label(skip)
        I("s_add_u32", T[0], self.sNonce, "0x10100")
        I("v_mov_b32", V(120), T[0])
        I("s_mov_b64", EXEC, 1)
        I("buffer_store_dword", V(120), OFF, self.sWS, 0)
        I("s_endpgm")

    def place_visits(self, head, lines):
        import subprocess, re
        if not self.opt.get("visit", 0):
            return "\n".join(l for l in lines if l != "@VISIT") + "\n"
        lines = list(lines)
        def render(ls):
            n = sum(l == "@VISIT" for l in ls)
            out, k = [], 0
            for l in ls:
                if l == "@VISIT":
                    out += [f"L_visit_{k}:", "    s_cbranch_execz " + (f"L_visit_{k + 1}" if k + 1 < n else "L_visit_ret")]
                    k += 1
                else: out.append(l)
            return "\n".join(out) + "\n"
        start = lines.index("L_qa1:")
        lines.insert(start + 1, "@VISIT")
        page = 1
        while True:
            open("visit.s", "w").write(head + render(lines))
            subprocess.run(["clang", "-x", "assembler", "-target", "amdgcn-amd-amdhsa", "-mcpu=gfx950", "-c", "visit.s", "-o", "visit.o"], check=True)
            dis = subprocess.run(["llvm-objdump", "-d", "--mcpu=gfx950", "visit.o"], capture_output=True, text=True).stdout
            base = int(re.search(r"([0-9a-f]+) <L_(?:qa1|visit_0)>:", dis).group(1), 16)
            addrs = [int(m.group(1), 16) for m in re.finditer(r"// ([0-9A-F]+):", dis)]
            addrs = [x for x in addrs if x >= base]
            idx = [i for i in range(start, len(lines)) if lines[i] == "@VISIT" or (lines[i].startswith("    ") and not lines[i].startswith("    ;"))]
            assert len(addrs) == len(idx), (len(addrs), len(idx))
            hit = [k for k, x in enumerate(addrs) if x >= base + 4096 * page]
            if not hit: break
            k = hit[0]
            if lines[idx[k]] != "@VISIT": lines.insert(idx[k], "@VISIT")
            page += 1
        return render(lines)

    def build(self):
        a = self.a
        self.prologue()
        self.qa_stage(first=True)
        self.p_stage()
        self.qa_stage()
        self.qb_stage()
        self.final()
        done = 0
        while done < len(self.tail):
            a.forget_counters()
            a.pos += 100
            self.tail[done]()
            done += 1
        a.label("L_end")
        a.I("s_endpgm")
        head = open("cdna_kernels/" + NAME[:-7] + ".s.ref").read().split("; Override launch")[0]
        out = head + f"; @launch grid=(256,1,1) block=(256,1,1) lds={LDS_BYTES}\n"
        out += f'.amdgcn_target "amdgcn-amd-amdhsa--gfx950"\n.text\n.globl {NAME}\n.p2align 8\n.type {NAME},@function\n{NAME}:\n'
        out += self.place_visits(out, a.lines)
        out += f""".section .rodata,"a"
.p2align 6
.amdhsa_kernel {NAME}
  .amdhsa_next_free_vgpr 512
  .amdhsa_next_free_sgpr 102
  .amdhsa_accum_offset 256
  .amdhsa_group_segment_fixed_size 0
  .amdhsa_kernarg_size 80
  .amdhsa_user_sgpr_count 2
  .amdhsa_user_sgpr_kernarg_segment_ptr 1
  .amdhsa_system_sgpr_workgroup_id_x 1
.end_amdhsa_kernel
"""
        return out


if __name__ == "__main__":
    opt = {}
    path = sys.argv[1]
    for kv in sys.argv[2:]:
        k, v = kv.split("=")
        opt[k] = int(v)
    g = Gen(opt)
    open(path, "w").write(g.build())
    import subprocess
    r = subprocess.run(["clang", "-x", "assembler", "-target", "amdgcn-amd-amdhsa", "-mcpu=gfx950", "-c", path, "-o", "gen_check.o"], capture_output=True, text=True)
    if r.returncode: print(r.stderr[:3000]); sys.exit(1)
    sz = subprocess.run(["llvm-readelf", "-S", "gen_check.o"], capture_output=True, text=True).stdout
    print("text bytes", [int(l.split()[6], 16) for l in sz.splitlines() if " .text" in l],
          "instructions", sum(g.a.count.values()), "nop states", g.a.nops)
```

```python
import sys
import math
import struct
from emit import Asm, V, A, S, VCC, EXEC, M0, OFF, Special

VCC_LO = Special("vcc_lo", [("s", "vcc")])

NAME = "interleave_layers__sliding_local_dilated__linear_kernel_hedgehog__prompt_kernel"


def f32(x):
    return "0x%08x" % struct.unpack("<I", struct.pack("<f", x))[0]


WS_E = 0x0
WS_FX = 0x1000
WS_FO = 0x5000
WS_SLOW = 0x8000
WS_FH = 0x10000
WS_HELLO = 0x11000
WS_FWF = 0x12000
WS_STAMP = 0xC0000
WS_X = 0x100000
WS_XS = 0x2C0000
WS_O = 0x300000
WS_KV = 0x500000
WS_HX = 0x700000
WS_FW = 0x800000
FW_T = 16 * 86016
WS_SIZE = 0xB00000
OOB = 0x7FFF0000

MAT = 28672
L_PW = 86016
L_SP = 151552
L_KVX = L_SP
L_HX = L_SP
L_WPHI = L_SP + 8192
L_CS = L_SP + 10240
L_EXK = L_PW + 49152
L_EXV = L_EXK + 5120
L_PH = L_PW + 40960
LDS_BYTES = 163840

LOG2E = math.log2(math.e)


class Neg:
    def __init__(self, r): self.r = r
    def __str__(self): return "-" + str(self.r)
    def regs(self): return self.r.regs()


class Gen:
    def __init__(self, opt):
        self.opt = opt
        self.a = Asm()
        self.tail = []
        self.uid = 0

    def lab(self, base):
        self.uid += 1
        return f"L_{base}_{self.uid}"

    sX0, sWA, sWOA, sWB, sWOB, sOUT, sWS, sWP = (S(24 + 4 * i, 4) for i in range(8))
    (sGrp, sH, sW, sC, sRh, sBase, sTag, sMode, sIt, sPhase, sL, sBudget, sXq, sXSq, sOq, sXp, sXSp, sOp, sFXp, sFOq,
     sFOp, sHX, sHaloProd, sFHp, sKVst, sKVld, sQWo, sFirst, sPend, sX0o, sNonce, sXcc) = (S(56 + i) for i in range(32))
    sPWc = sX0
    sT = [S(88 + i) for i in range(8)]
    sT2 = S(96, 2)
    sStamp = S(98, 2)
    sFW, sQWl, sPWl, sPWo = S(4), S(5), S(6), S(7)

    vL16, vQ0, vQ1, vQv0, vQv1, vQh = (V(1 + i) for i in range(6))
    vP = [V(7 + i) for i in range(4)]
    vQWd, vX0d, vExpHC, vPollQ, vPollM, vPollP, vEXW, vEXRa, vHW, vM3, vStat = (V(11 + i) for i in range(11))
    vE0 = V(22, 2)
    vHalo, vHaloS, vStatSt, vZ, vExpHM, vExpC, vExpM, vMH = (V(24 + i) for i in range(8))
    vCH = V(32, 4)
    bCur, bPrev, bPrev0 = V(36, 4), V(40, 4), V(44, 4)
    vR = V(48, 16)
    cA, cB = V(64, 24), V(88, 24)
    vTA, vProbe, vHp, vQS = V(241), V(242), V(243), V(244)
    vDummy = V(245)
    vPWd = [V(246 + i) for i in range(4)]
    vKA, vKB, vPollH, vKrd, vStamp = (V(250 + i) for i in range(5))
    vT = V(255)

    aOnes, aSel, aWphi = A(232, 4), A(236, 6), A(242, 8)

    def acc(self, T, ft): return V(112 + (T * 6 + ft) * 4, 4)
    hacc = V(160, 4)
    def straw(self, T): return V(164 + 4 * T, 4)
    def st(self, T): return V(176 + 4 * T, 4)
    def xf(self, T, ks): return A((ks * 2 + T) * 4, 4)
    def hx(self, ks): return A(56 + 4 * ks, 4) if ks < 12 else self.wf(ks - 6)
    def stash(self, i): return A(112 + 4 * i, 4) if i < 14 else A(200 + 4 * (i - 14), 4)
    def wf(self, f): return A(168 + 4 * f, 4)

    def I(self, *x, **k): self.a.I(*x, **k)

    def stamp(self, real=False):
        if not self.opt.get("stamps") or (self.opt.get("stamps") == 2 and not real):
            return
        a = self.a
        a.I("s_memrealtime" if real or self.opt.get("real") else "s_memtime", self.sStamp)
        a.I("s_mov_b32", M0, self.sT[7])
        a.wait(lg=0)
        a.I("v_writelane_b32", self.vStamp, self.sStamp[0], M0)
        a.I("s_add_u32", self.sT[7], self.sT[7], 1)
        if getattr(self, "fine_pending", False):
            self.fine_pending = False
            for i in range(7): a.I("v_writelane_b32", self.vStamp, S(8 + 2 * i), 40 + i)
            a.I("v_writelane_b32", self.vStamp, self.sStamp[0], 47)

    def fine(self, region, i):
        if self.opt.get("fine") == region and region == 5:
            self.a.raw("    s_memtime s[100:101]")
            self.a.raw("    s_waitcnt lgkmcnt(0)")
            self.a.raw(f"    v_writelane_b32 v240, s100, {i}")
            self.a.pos += 3
            return
        if self.opt.get("fine") == region:
            self.a.raw(f"    s_memtime s[{8 + 2 * i}:{9 + 2 * i}]")
            self.a.pos += 1
            self.fine_pending = True

    def srd(self, dst, src, nbytes):
        self.I("s_mov_b32", dst[0], src[0])
        self.I("s_and_b32", dst[1], src[1], "0xffff")
        self.I("s_mov_b32", dst[2], nbytes)
        self.I("s_mov_b32", dst[3], "0x20000")

    def mfma(self, d, x, y, c):
        self.I("v_mfma_f32_16x16x32_bf16", d, x, y, c)

    def pk(self, op, d, x, y, z=None, bx=None, by=None, bz=None):
        srcs = [(x, bx), (y, by)] + ([(z, bz)] if z is not None else [])
        lo = [0 if b is None else b for _, b in srcs]
        hi = [1 if b is None else b for _, b in srcs]
        mods = []
        if any(lo): mods.append("op_sel:[%s]" % ",".join(map(str, lo)))
        if not all(hi): mods.append("op_sel_hi:[%s]" % ",".join(map(str, hi)))
        self.I(op, d, *[s for s, _ in srcs], mods=" ".join(mods))

    def allreduce_pairs(self, chains):
        for step in range(7):
            for op, x, y in chains:
                if step in (0, 6): self.I("v_permlane32_swap_b32", x, y)
                elif step in (1, 4): self.I(op, x, x, y)
                elif step in (2, 5): self.I("v_mov_b32", y, x)
                else: self.I("v_permlane16_swap_b32", x, y)

    def budget_branch(self, loop):
        if self.opt.get("psleep"): self.I("s_sleep", self.opt["psleep"])
        self.I("s_sub_u32", self.sBudget, self.sBudget, 1)
        self.I("s_cbranch_scc1", "L_end")
        self.I("s_branch", loop)

    def flag_value(self, dst):
        self.I("s_lshl_b32", dst, self.sL, 4)
        self.I("s_or_b32", dst, dst, self.sBase)

    def publish(self, soff):
        a = self.a
        slow, done = self.lab("pubslow"), self.lab("pubdone")
        a.I("s_cmp_eq_u32", self.sMode, 0)
        a.I("s_cbranch_scc1", slow)
        a.I("s_mov_b64", EXEC, 1)
        a.I("buffer_store_dword", self.vT, OFF, self.sWS, soff)
        a.label(done)
        a.I("s_mov_b64", EXEC, -1)

        def tail():
            b = self.a
            b.label(slow)
            b.I("buffer_wbl2", mods="sc1")
            b.wait(vm=0)
            b.I("s_mov_b64", EXEC, 1)
            b.I("buffer_store_dword", self.vT, OFF, self.sWS, soff, mods="sc1")
            b.I("s_branch", done)
        self.tail.append(tail)

    def sched(self, mfmas, streams):
        a = self.a
        streams = [list(s) for s in streams]
        for i, m in enumerate(mfmas):
            self.mfma(*m)
            scalar_free = True
            if i + 1 < len(mfmas):
                n = mfmas[i + 1]
                if a.prewait(n[1], n[2]): scalar_free = False
            if scalar_free:
                for s in streams:
                    if s and s[0][0] <= i and s[0][1] == "s":
                        s.pop(0)[2]()
                        break
            slots = 2
            progress = True
            while slots > 0 and progress:
                progress = False
                for s in streams:
                    if not s or s[0][0] > i: continue
                    cost = 2 if s[0][1] == "w" else 1
                    if cost <= slots:
                        s.pop(0)[2]()
                        slots -= cost
                        progress = True
                        break
        return [it[2] for s in streams for it in s]

    def fw_piece(self, n):
        off = (n // 7) * MAT + (n % 7) * 1024
        self.I("s_add_u32", M0, self.sQWl, off, m0="fw")
        self.I("s_add_u32", self.sT[6], self.sFW, off)
        self.I("buffer_load_dwordx4", self.vL16, self.sWS, self.sT[6], mods="offen lds", untracked=True, m0="fw")

    def piece(self, n):
        n = (n + 7) % 21
        return f"offset:{(n // 7) * MAT + (n % 7) * 1024}"

    def unpark(self, pieces):
        for n in pieces: self.I("ds_write_b128", self.vQS, self.stash(n), mods=self.piece(n))

    def qb_shadow(self):
        a, I = self.a, self.I
        second, done = self.lab("ab2"), self.lab("abdone")
        I("s_cmp_lg_u32", self.sIt, 0)
        I("s_cbranch_scc1", second)
        for n in self.fw_left: self.fw_piece(n)
        a.raw(f"    s_waitcnt vmcnt({1 + len(self.fw_left)})")
        a.pos += 1
        I("s_barrier")
        I("s_lshl_b32", self.sT[0], self.sW, 6)
        self.colsum_part(self.vQh, list(range(14)), 128)
        a.wait_lg_all()
        a.flush()
        I("s_branch", done)
        a.label(second)
        self.unpark(range(7))
        a.label(done)

    def b_to_a(self, pieces):
        a, I = self.a, self.I
        done = self.lab("badone")
        if self.it_b is not None:
            I("s_cmp_lg_u32", self.sIt, self.it_b)
            I("s_cbranch_scc1", done)
        for n in pieces:
            I("ds_read_b128", self.stash(n), self.vQS, mods=self.piece(n))
            I("ds_write_b128", self.vQS, self.stash(n + 1), mods=self.piece(n))
        a.label(done)

    def pw_dma(self, srd, which):
        out = []
        for i in which:
            out.append(("s", lambda i=i: self.I("s_add_u32", M0, self.sPWl, i * 16384, m0="pw")))
            out.append(("s", lambda i=i: self.I("s_add_u32", self.sT[5], self.sPWo, 4 * 28 * i * 896)))
            for b in range(4):
                out.append(("v", lambda b=b: self.I("buffer_load_dwordx4", self.vPWd[b], srd, self.sT[5], mods=f"offen offset:{b * 1024} lds", m0="pw")))
        return out

    def raw_block(self, ks):
        for half in range(2):
            self.I("s_add_u32", M0, self.sT[4], ks * 2048 + half * 1024)
            self.I("s_add_u32", self.sT[6], self.sQWo, (32 * ks + 16 * half) * 2688)
            self.I("buffer_load_dwordx4", self.vQWd, self.sWA, self.sT[6], mods="offen lds", tag=f"raw{ks}")

    def tr_pair(self, dst, base, off):
        return [lambda: self.I("ds_read_b64_tr_b16", dst[0:2], base, mods=f"offset:{off}"),
                lambda: self.I("ds_read_b64_tr_b16", dst[2:4], base, mods=f"offset:{off + 1024}")]

    def qw_read(self, dst, ft, ks):
        base = (self.vQ0, self.vQ1, self.vQ0, self.vQ1, self.vQv0, self.vQv1)[ft]
        return self.tr_pair(dst, base, (MAT if ft in (2, 3) else 0) + ks * 2048)

    def bg(self, n=1):
        if self.bg_next >= self.bg_max: return
        skip = self.lab("bg")
        self.I("s_cmp_eq_u32", self.sW, 3)
        self.I("s_cbranch_scc1", skip)
        for _ in range(n):
            if self.bg_next < self.bg_max:
                self.raw_block(self.bg_next)
                self.bg_next += 1
        self.a.label(skip)

    def prologue(self):
        a, I = self.a, self.I
        T = self.sT
        self.bg_next, self.bg_max = 0, self.opt.get("n1", 3)
        I("s_load_dwordx8", S(4, 8), S(0, 2), 0)
        I("s_getpc_b64", S(22, 2))
        a.label("L_pc")
        if self.opt.get("pf0", 47):
            I("v_min_u32", V(113), self.opt.get("pf0", 47), V(0))
            I("v_lshlrev_b32", V(113), 7, V(113))
            I("global_load_dword", self.vDummy, V(113), S(22, 2), mods="offset:128", untracked=True)
        I("s_load_dwordx8", S(12, 8), S(0, 2), 32)
        I("s_load_dwordx2", S(20, 2), S(0, 2), 72)
        if self.opt.get("stamps"):
            I("s_memrealtime", S(100, 2))
            I("s_memtime", self.sStamp)
        I("s_cmp_ge_u32", S(2), 256)
        I("s_cbranch_scc1", "L_end")
        I("v_lshrrev_b32", V(114), 6, V(0))
        I("s_lshr_b32", T[1], S(2), 3)
        I("v_and_b32", V(0), 63, V(0))
        I("v_readfirstlane_b32", self.sW, V(114))
        I("s_mul_i32", T[0], T[1], 1280)
        I("v_min_u32", V(112), 9, V(0))
        I("v_lshl_add_u32", V(112), V(112), 7, T[0])
        I("v_min_u32", V(112), "L_end-L_pc", V(112))
        I("global_load_dword", self.vDummy, V(112), S(22, 2), untracked=True)
        I("s_and_b32", T[0], S(2), 7)
        I("s_and_b32", self.sH, T[1], 15)
        I("s_lshr_b32", T[1], T[1], 4)
        I("s_lshl_b32", T[0], T[0], 1)
        I("s_add_u32", self.sGrp, T[0], T[1])
        I("s_and_b32", self.sC, self.sH, 7)
        I("s_lshr_b32", self.sRh, self.sH, 3)
        lane, j, g, t0, t1, t2 = V(0), V(115), V(116), V(117), V(118), V(119)
        I("s_lshl_b32", T[0], self.sGrp, 3)
        I("s_lshl_b32", T[1], self.sRh, 2)
        I("s_add_u32", T[0], T[0], T[1])
        I("s_add_u32", T[0], T[0], self.sW)
        I("s_and_b32", T[1], T[0], 63)
        I("s_mul_i32", T[1], T[1], 16 * 1792)
        I("s_lshr_b32", T[2], self.sGrp, 3)
        I("s_mul_i32", T[2], T[2], 896)
        I("s_add_u32", T[1], T[1], T[2])
        I("s_lshl_b32", T[2], self.sC, 7)
        I("s_add_u32", self.sX0o, T[1], T[2])
        I("v_lshrrev_b32", t0, 3, lane)
        I("v_mul_u32_u24", t0, 1792, t0)
        I("v_and_b32", t1, 7, lane)
        I("v_lshl_add_u32", self.vX0d, t1, 4, t0)
        I("v_min_u32", t0, 36, lane)
        I("v_lshlrev_b32", V(121), 7, t0)
        I("s_mov_b32", self.sX0[2], 1835008)
        I("s_mov_b32", self.sX0[3], "0x20000")
        I("s_mov_b32", self.sWA[2], 1204224)
        I("s_mov_b32", self.sWA[3], "0x20000")
        I("s_mul_i32", T[1], S(2), 37 * 128)
        I("s_min_u32", T[1], T[1], 1204224 - 37 * 128)
        I("s_sub_u32", T[2], self.sX0o, 3 * 16 * 1792)
        a.wait(lg=0)
        if self.opt.get("fine") == 5: a.raw("    v_writelane_b32 v240, s100, 63")
        self.fine(5, 0)
        for r, p in ((self.sX0, 4), (self.sWA, 6)):
            I("s_mov_b32", r[0], S(p))
            I("s_and_b32", r[1], S(p + 1), "0xffff")
        no3, nox = self.lab("not3"), self.lab("nox0")
        I("s_cmp_lg_u32", self.sW, 3)
        I("s_cbranch_scc1", no3)
        I("s_cmp_eq_u32", self.sC, 7)
        I("s_cbranch_scc1", nox)
        for t in range(4):
            I("s_mov_b32", M0, L_SP + 2048 * t)
            I("s_add_u32", T[5], T[2], t * 16 * 1792)
            I("s_add_u32", T[6], T[2], t * 16 * 1792 + 8 * 1792 - 1024)
            I("buffer_load_dwordx4", self.vX0d, self.sX0, T[5], mods="offen lds")
            I("buffer_load_dwordx4", self.vX0d, self.sX0, T[6], mods="offen offset:1024 lds")
        a.label(nox)
        I("buffer_load_dword", self.vDummy, V(121), self.sWA, T[1], mods="offen", nodest=True)
        a.label(no3)
        I("v_and_b32", j, 15, lane)
        I("v_lshrrev_b32", g, 4, lane)
        I("v_lshlrev_b32", self.vL16, 4, lane)
        I("v_lshrrev_b32", t0, 2, lane)
        I("v_mul_u32_u24", t1, 2688, t0)
        I("v_lshrrev_b32", t0, 3, lane)
        I("v_and_b32", t0, 2, t0)
        I("v_and_b32", t2, 3, lane)
        I("v_xor_b32", t0, t0, t2)
        I("v_lshl_add_u32", self.vQWd, t0, 4, t1)
        I("s_mul_i32", self.sQWo, self.sH, 56)
        I("s_mul_i32", T[1], self.sW, 896)
        I("s_add_u32", self.sQWo, self.sQWo, T[1])
        I("s_mul_i32", T[4], self.sW, MAT)
        self.srd(self.sWS, S(20, 2), WS_SIZE)
        I("buffer_load_dword", V(120), OFF, self.sWS, 0, untracked=True)
        self.bg()
        for r, p, n in ((self.sWB, 12, 1204224), (self.sWP, 14, 25088), (self.sWOA, 8, 401408),
                        (self.sWOB, 16, 401408), (self.sOUT, 18, 1835008)):
            self.srd(r, S(p, 2), n)
        I("s_getreg_b32", self.sXcc, "hwreg(HW_REG_XCC_ID)")
        I("s_and_b32", self.sXcc, self.sXcc, 15)
        I("s_lshl_b32", T[1], self.sGrp, 3)
        I("s_lshl_b32", T[2], self.sW, 1)
        I("s_add_u32", T[1], T[1], T[2])
        I("s_mul_i32", self.sXq, T[1], 14336)
        I("s_add_u32", self.sXq, self.sXq, WS_X)
        I("s_lshl_b32", self.sXSq, T[1], 10)
        I("s_add_u32", self.sXSq, self.sXSq, WS_XS)
        I("s_lshl_b32", self.sOq, T[1], 14)
        I("s_lshl_b32", T[2], self.sH, 10)
        I("s_add_u32", self.sOq, self.sOq, T[2])
        I("s_add_u32", self.sOq, self.sOq, WS_O)
        I("s_lshl_b32", T[3], T[1], 7)
        I("s_add_u32", T[3], T[3], WS_FX)
        I("s_mul_i32", self.sXp, T[0], 14336)
        I("s_lshl_b32", T[2], self.sC, 11)
        I("s_add_u32", self.sXp, self.sXp, T[2])
        I("s_add_u32", self.sXp, self.sXp, WS_X)
        I("s_lshl_b32", self.sXSp, T[0], 10)
        I("s_lshl_b32", T[2], self.sC, 7)
        I("s_add_u32", self.sXSp, self.sXSp, T[2])
        I("s_add_u32", self.sXSp, self.sXSp, WS_XS)
        I("s_lshl_b32", self.sOp, T[0], 14)
        I("s_add_u32", self.sOp, self.sOp, WS_O)
        I("s_lshl_b32", self.sFXp, T[0], 7)
        I("s_lshl_b32", T[2], self.sC, 2)
        I("s_add_u32", self.sFXp, self.sFXp, T[2])
        I("s_add_u32", self.sFXp, self.sFXp, WS_FX)
        I("s_lshl_b32", T[1], self.sGrp, 2)
        I("s_add_u32", T[2], T[1], self.sW)
        I("s_lshl_b32", self.sFOq, T[2], 7)
        I("s_lshl_b32", T[2], self.sH, 2)
        I("s_add_u32", self.sFOq, self.sFOq, T[2])
        I("s_add_u32", self.sFOq, self.sFOq, WS_FO)
        I("s_lshr_b32", T[2], T[0], 1)
        I("s_lshl_b32", self.sFOp, T[2], 7)
        I("s_add_u32", self.sFOp, self.sFOp, WS_FO)
        I("s_lshl_b32", self.sHX, self.sGrp, 14)
        I("s_add_u32", self.sHX, self.sHX, WS_HX)
        I("s_lshl_b32", self.sFHp, self.sGrp, 7)
        I("s_add_u32", self.sFHp, self.sFHp, WS_FH)
        I("s_and_b32", T[1], self.sGrp, 7)
        I("s_cmp_eq_u32", T[1], 0)
        I("s_cselect_b32", self.sFirst, 1, 0)
        I("s_cmp_lg_u32", T[1], 7)
        I("s_cselect_b32", T[1], 1, 0)
        I("s_and_b32", T[2], T[0], 7)
        I("s_cmp_eq_u32", T[2], 7)
        I("s_cselect_b32", self.sHaloProd, T[1], 0)
        I("s_lshl_b32", T[1], self.sH, 2)
        I("s_add_u32", T[1], T[1], self.sW)
        I("s_lshl_b32", self.sKVld, T[1], 14)
        I("s_add_u32", self.sKVld, self.sKVld, WS_KV)
        I("s_lshl_b32", T[1], self.sGrp, 10)
        I("s_add_u32", self.sKVst, self.sKVld, T[1])
        I("s_mov_b32", self.sMode, 1)
        I("s_mov_b32", self.sIt, 0)
        I("s_mov_b32", self.sPhase, 0)
        I("s_mov_b32", self.sL, 1)
        I("s_mov_b32", self.sPend, 0)
        I("s_mov_b32", self.sBudget, 400000)
        I("s_mov_b32", S(3), 0)
        self.bg()
        I("v_min_u32", t0, 12, lane)
        I("v_lshlrev_b32", V(122), 7, t0)
        I("v_lshlrev_b32", self.vStatSt, 3, j)
        I("v_and_b32", t0, 7, j)
        I("v_lshlrev_b32", t0, 4, t0)
        I("v_lshl_add_u32", self.vHp, g, 7, t0)
        I("v_lshlrev_b32", t0, 7, j)
        I("v_lshl_add_u32", t0, g, 3, t0)
        I("v_add_u32", V(123), L_SP, t0)
        I("s_mul_i32", self.sQWl, self.sW, 7168)
        I("s_mul_i32", self.sFW, self.sH, 86016)
        I("s_add_u32", self.sFW, self.sFW, self.sQWl)
        I("s_add_u32", self.sFW, self.sFW, WS_FW)
        I("s_lshl_b32", self.sPWl, self.sW, 12)
        I("s_add_u32", self.sPWl, self.sPWl, L_PW)
        I("s_mul_i32", self.sPWo, self.sW, 28 * 896)
        I("s_min_u32", T[1], self.sC, 6)
        I("s_lshl_b32", T[1], T[1], 7)
        I("s_add_u32", self.sPWo, self.sPWo, T[1])
        if self.opt.get("stamps"):
            I("s_mov_b32", T[7], 1)
            I("v_mov_b32", self.vStamp, 0)
            I("v_writelane_b32", self.vStamp, self.sStamp[0], 0)
            if self.opt.get("fine") != 5: I("v_writelane_b32", self.vStamp, S(100), 62)
        I("v_mov_b32", V(127), V(0))
        I("s_cmp_eq_u32", self.sW, 3)
        I("s_cbranch_scc1", "L_s0")
        a.label("L_setup")
        a.forget_counters()
        self.bg()
        self.fine(5, 1)

        r, cc = V(113), V(124)
        I("s_lshl_b32", T[1], self.sW, 11)
        I("v_add_u32", V(114), T[1], V(123))
        I("v_lshrrev_b32", r, 2, j)
        I("v_and_b32", cc, 3, j)
        I("v_lshl_add_u32", t0, g, 2, r)
        I("v_lshlrev_b32", t1, 3, cc)
        I("v_lshl_add_u32", t2, t0, 6, t1)
        I("v_and_b32", V(125), 1, g)
        I("v_lshl_add_u32", self.vQ0, V(125), 5, t2)
        I("v_xor_b32", self.vQ1, 32, self.vQ0)
        I("v_add_u32", self.vQv0, 2 * MAT, self.vQ0)
        I("v_add_u32", self.vQv1, 2 * MAT, self.vQ1)
        I("s_and_b32", T[1], self.sW, 1)
        I("s_lshl_b32", T[2], T[1], 5)
        I("v_xor_b32", self.vQh, T[2], self.vQ0)
        I("s_lshr_b32", T[2], self.sW, 1)
        I("s_add_u32", T[2], T[2], 1)
        I("s_mul_i32", T[2], T[2], MAT)
        I("v_add_u32", self.vQh, T[2], self.vQh)
        I("v_lshl_add_u32", t2, t0, 7, t1)
        I("v_add_u32", t2, L_PW, t2)
        I("v_lshrrev_b32", V(125), 1, t0)
        I("v_and_b32", V(125), 3, V(125))
        for n in range(4):
            I("v_xor_b32", V(126), n, V(125))
            I("v_lshl_add_u32", self.vP[n], V(126), 5, t2)
        self.bg()
        I("v_lshrrev_b32", V(125), 1, t0)
        I("v_xor_b32", V(125), V(125), cc)
        I("v_and_b32", V(125), 3, V(125))
        I("v_lshlrev_b32", V(125), 4, V(125))
        I("v_lshl_add_u32", V(126), t0, 6, V(125))
        I("s_lshl_b32", T[2], self.sW, 11)
        I("s_add_u32", T[5], T[2], L_EXV)
        I("v_add_u32", self.vEXRa, T[5], V(126))
        I("s_lshr_b32", T[5], self.sW, 1)
        I("s_lshl_b32", T[5], T[5], 13)
        I("s_add_u32", T[5], T[5], L_PH)
        I("v_add_u32", self.vKA, T[5], V(126))
        I("s_lshl_b32", T[5], T[1], 3)
        I("s_add_u32", T[5], T[5], L_PH + 16384)
        I("v_add_u32", self.vKB, T[5], V(126))
        I("v_lshrrev_b32", V(125), 1, j)
        I("v_xor_b32", V(125), V(125), g)
        I("v_and_b32", V(125), 3, V(125))
        I("v_lshlrev_b32", V(125), 4, V(125))
        I("v_lshl_add_u32", V(126), j, 6, V(125))
        I("v_add_u32", V(126), L_EXV, V(126))
        I("v_add_u32", self.vEXW, T[2], V(126))
        I("s_lshl_b32", T[5], self.sW, 10)
        I("v_add_u32", V(125), L_EXK, self.vL16)
        I("v_add_u32", self.vKrd, T[5], V(125))
        I("v_add_u32", self.vQS, self.sQWl, self.vL16)
        I("s_cmp_lt_u32", self.sW, 2)
        I("s_cselect_b64", VCC, -1, 0)
        I("v_cndmask_b32", V(126), V(126), V(125), VCC)
        I("s_lshl_b32", T[5], T[1], 3)
        I("v_add_u32", self.vHW, T[5], V(126))
        self.bg()
        I("v_lshrrev_b32", t0, 3, lane)
        I("v_mul_u32_u24", t1, 896, t0)
        I("v_and_b32", t0, 6, t0)
        I("v_and_b32", t2, 7, lane)
        I("v_xor_b32", t0, t0, t2)
        I("v_lshl_add_u32", self.vPWd[0], t0, 4, t1)
        for b in range(1, 4):
            I("v_add_u32", self.vPWd[b], b * (8 * 896 - 1024), self.vPWd[0])
        I("v_mov_b32", t1, OOB)
        I("v_cmp_gt_u32", VCC, 32, lane)
        I("v_cndmask_b32", self.vPWd[3], t1, self.vPWd[3], VCC)
        I("v_cmp_gt_u32", VCC, 48, lane)
        I("v_cndmask_b32", self.vM3, 0, -1, VCC)
        I("v_cndmask_b32", self.vE0[0], 1.0, 0, VCC)
        I("v_mov_b32", self.vE0[1], 0)
        I("s_cmp_eq_u32", T[1], 1)
        I("s_cselect_b64", VCC, -1, 0)
        I("v_cndmask_b32", self.vMH, -1, self.vM3, VCC)
        I("v_lshl_add_u32", self.vStat, g, 7, self.vStatSt)
        I("s_cmp_eq_u32", self.sFirst, 1)
        I("s_cselect_b64", VCC, -1, 0)
        I("v_cndmask_b32", self.vHalo, self.vL16, t1, VCC)
        I("v_cndmask_b32", self.vHaloS, self.vStat, t1, VCC)
        I("s_or_b32", T[2], self.sGrp, 1)
        I("s_add_u32", T[2], T[2], 1)
        I("v_add_u32", t0, T[2], j)
        I("v_and_b32", t0, 15, t0)
        I("v_lshlrev_b32", self.vProbe, 10, t0)
        I("v_lshrrev_b32", t0, 3, lane)
        I("v_add_u32", t0, T[2], t0)
        I("v_and_b32", t0, 15, t0)
        I("v_lshlrev_b32", t0, 3, t0)
        I("v_and_b32", t2, 7, lane)
        I("v_add_lshl_u32", self.vTA, t0, t2, 7)
        self.bg()
        I("v_lshlrev_b32", self.vZ, 8, g)
        I("v_add_u32", self.vZ, L_KVX + 1024 + 12 * 16, self.vZ)
        I("v_lshlrev_b32", self.vPollP, 2, j)
        I("v_and_b32", t0, 7, lane)
        I("v_min_u32", t0, 6, t0)
        I("v_lshlrev_b32", V(127), 2, t0)
        I("v_min_u32", t0, 13, j)
        I("v_lshlrev_b32", t0, 2, t0)
        I("s_lshl_b32", T[5], self.sH, 7)
        I("s_add_u32", T[5], T[5], WS_FWF)
        I("v_add_u32", t0, T[5], t0)
        I("v_add_u32", t2, self.sFHp, V(127))
        I("s_cmp_eq_u32", self.sFirst, 1)
        I("s_cselect_b32", T[5], 0, 16)
        I("v_cmp_gt_u32", VCC, T[5], lane)
        I("v_cndmask_b32", self.vPollH, t0, t2, VCC)
        I("v_cndmask_b32", self.vExpHM, 0, 16, VCC)
        I("v_cndmask_b32", self.vExpHC, 16, 0, VCC)
        I("v_lshrrev_b32", t2, 3, j)
        I("v_lshl_add_u32", t2, t2, 7, V(127))
        I("v_add_u32", t2, T[3], t2)
        I("s_lshl_b32", T[5], self.sGrp, 7)
        I("s_add_u32", T[5], T[5], WS_HELLO)
        I("v_add_u32", t0, T[5], self.vPollP)
        I("v_and_b32", V(125), 1, g)
        I("v_cmp_eq_u32", VCC, 0, V(125))
        I("v_cndmask_b32", self.vPollQ, t0, t2, VCC)
        I("v_cndmask_b32", self.vPollM, -16, -1, VCC)
        I("v_cndmask_b32", self.vExpM, 0, 16, VCC)
        I("v_mov_b32", t0, self.sXcc)
        I("v_cndmask_b32", self.vExpC, t0, 0, VCC)
        self.bg()
        I("v_mov_b32", V(125), f32(-1e30))
        for rr in range(4):
            I("v_lshl_add_u32", t0, g, 2, rr)
            I("v_sub_u32", t2, j, t0)
            I("v_cmp_gt_u32", VCC, 8, t2)
            I("v_cndmask_b32", self.bCur[rr], V(125), 0, VCC)
            I("v_add_u32", t2, 16, t2)
            I("v_cmp_gt_u32", VCC, 8, t2)
            I("v_cndmask_b32", self.bPrev[rr], V(125), 0, VCC)
        I("s_cmp_eq_u32", self.sW, 0)
        I("s_cselect_b32", T[2], self.sFirst, 0)
        I("s_cmp_eq_u32", T[2], 1)
        I("s_cselect_b64", VCC, -1, 0)
        for rr in range(4):
            I("v_cndmask_b32", self.bPrev0[rr], self.bPrev[rr], V(125), VCC)
        self.bg()
        I("v_mov_b32", t0, "0x3f803f80")
        for k in range(4): I("v_accvgpr_write_b32", self.aOnes[k], t0)
        for k in (0, 1, 4, 5): I("v_accvgpr_write_b32", self.aSel[k], 0)
        I("v_and_b32", V(125), 1, j)
        I("v_lshlrev_b32", V(125), 4, V(125))
        I("v_mov_b32", t0, "0x3f80")
        I("v_lshlrev_b32", t0, V(125), t0)
        I("v_cmp_eq_u32", VCC, r, g)
        I("v_cndmask_b32", t0, 0, t0, VCC)
        I("v_cmp_gt_u32", VCC, 2, cc)
        I("v_cndmask_b32", t2, 0, t0, VCC)
        I("v_cndmask_b32", t0, t0, 0, VCC)
        I("v_accvgpr_write_b32", self.aSel[2], t2)
        I("v_accvgpr_write_b32", self.aSel[3], t0)
        I("v_mov_b32", V(0), V(114))
        got = self.lab("nonce")
        I("s_cmp_eq_u32", self.sW, 3)
        I("s_cbranch_scc1", got)
        a.raw(f"    s_waitcnt vmcnt({2 * self.bg_next})")
        I("v_readfirstlane_b32", self.sNonce, V(120))
        I("s_add_u32", T[1], self.sNonce, "0x10100")
        I("s_and_b32", self.sBase, T[1], "0xffffff00")
        I("s_and_b32", self.sTag, T[1], "0x3fff0000")
        a.label(got)
        I("v_or_b32", self.vExpC, self.sBase, self.vExpC)
        I("v_or_b32", self.vExpHC, self.sBase, self.vExpHC)
        self.stamp()
        I("s_cmp_eq_u32", self.sW, 3)
        I("s_cbranch_scc1", "L_walk")
        I("s_barrier")
        self.stamp()

        N1 = self.bg_next
        ad0, ad1 = V(188), V(189)
        d0, d1 = V(192, 4), V(196, 4)
        I("v_add_u32", ad0, T[4], self.vQ0)
        I("v_add_u32", ad1, T[4], self.vQ1)
        ZP = self.opt.get("zp", 1)
        if ZP:
            zad, zz = V(190), V(200, 2)
            I("v_bfe_u32", zad, self.vL16, 4, 5)
            I("v_bfe_u32", zz[0], self.vL16, 6, 1)
            I("v_lshlrev_b32", zad, 6, zad)
            I("v_lshlrev_b32", zz[0], 5, zz[0])
            I("v_xor_b32", zz[0], 56, zz[0])
            I("v_add3_u32", zad, zad, zz[0], T[4])
            I("v_mov_b32", zz[0], 0)
            I("v_mov_b32", zz[1], 0)
        a.vm = [(f"raw{ks}", set()) for ks in range(N1) for _ in range(2)]
        AH = self.opt.get("ah", 6)
        EL0 = self.opt.get("el0", 10)
        EL1 = self.opt.get("el1", max(EL0 + 1, 14 - AH))
        nxt = N1
        N2 = self.opt.get("n2", 3)
        if N2:
            for _ in range(N2):
                self.raw_block(nxt)
                nxt += 1
            I("s_barrier")
        for ks in range(14):
            while nxt < 14 and nxt <= ks + AH:
                self.raw_block(nxt)
                if nxt == EL0: self.early_look(0)
                nxt += 1
            if ks == EL1 and EL0 < 14:
                if ks == 13: a.wait_vm_tag("raw13")
                self.early_look(1)
            a.wait_vm_tag(f"raw{ks}")
            if ZP: I("ds_write_b64", zad, zz, mods=f"offset:{ks * 2048}")
            w0, w1 = self.wf(2 * (ks & 1)), self.wf(2 * (ks & 1) + 1)
            for f in self.tr_pair(w0, ad0, ks * 2048) + self.tr_pair(w1, ad1, ks * 2048): f()
            if ks:
                p0, p1 = self.wf(2 * ((ks - 1) & 1)), self.wf(2 * ((ks - 1) & 1) + 1)
                self.mfma(d0, p0, self.aOnes, 0 if ks == 1 else d0)
                self.mfma(d1, p1, self.aOnes, 0 if ks == 1 else d1)
        self.mfma(d0, self.wf(2), self.aOnes, d0)
        self.mfma(d1, self.wf(3), self.aOnes, d1)
        I("v_lshrrev_b32", ad0, 8, self.vL16)
        I("v_lshlrev_b32", ad0, 4, ad0)
        I("s_lshl_b32", T[0], self.sW, 7)
        I("s_add_u32", T[0], T[0], L_CS)
        I("v_add_u32", ad0, T[0], ad0)
        I("s_mov_b32", self.sT2[0], "0x00010001")
        I("s_mov_b32", self.sT2[1], "0x00010001")
        a.flush()
        I("s_mov_b64", EXEC, self.sT2)
        I("ds_write_b128", ad0, d0)
        I("ds_write_b128", ad0, d1, mods="offset:64")
        I("s_mov_b64", EXEC, -1)
        a.wait(lg=0)
        self.fine(5, 4)
        I("s_branch", "L_qa1")
        self.stage0()

    def early_look(self, phase):
        a, I = self.a, self.I
        if phase == 0:
            I("v_mad_u32_u24", V(112), self.vExpM, self.sL, self.vExpC)
            I("buffer_load_dword", V(114), self.vPollQ, self.sWS, 0, mods="offen sc1")
            return
        skip = self.lab("notyet")
        I("v_cmp_ne_u32", VCC, V(112), V(114))
        I("s_cbranch_vccnz", skip)
        vm = list(a.vm)
        for ks in range(3):
            for _, f in self.xload(ks): f()
        a.vm = vm
        I("s_mov_b32", S(3), 1)
        a.label(skip)

    def stage0(self):
        a, I = self.a, self.I
        T = self.sT
        lane = V(127)
        idle, nohalo, pub, nofw = (self.lab(x) for x in ("idle", "nohalo", "pub", "nofw"))
        a.label("L_s0")
        a.forget_counters()
        a.pos += 100
        a.wait(vm=0)
        I("v_readfirstlane_b32", self.sNonce, V(120))
        I("s_lshl_b32", T[1], self.sGrp, 7)
        I("s_lshl2_add_u32", T[2], self.sH, T[1])
        I("s_add_u32", T[2], T[2], WS_HELLO)
        I("s_add_u32", T[1], self.sNonce, "0x10100")
        I("s_and_b32", self.sBase, T[1], "0xffffff00")
        I("s_and_b32", self.sTag, T[1], "0x3fff0000")
        I("s_or_b32", T[1], self.sBase, 16)
        I("v_mov_b32", self.vT, T[1])
        I("s_or_b32", T[1], self.sBase, self.sXcc)
        I("v_mov_b32", V(112), T[1])
        I("s_mov_b64", EXEC, 1)
        I("buffer_store_dword", V(112), OFF, self.sWS, T[2], mods="sc1")
        I("s_mov_b64", EXEC, -1)
        I("s_cmp_eq_u32", self.sC, 7)
        I("s_cbranch_scc1", idle)
        self.fine(5, 2)
        xo = [V(128 + 8 * t, 8) for t in range(4)]
        pr = [V(160 + 2 * t, 2) for t in range(4)]
        for t in range(4):
            for n in range(4): I("ds_read_b64", xo[t][2 * n:2 * n + 2], V(123), mods=f"offset:{2048 * t + 32 * n}")
        one = V(125)
        I("v_mov_b32", one, "0x3f803f80")
        I("s_sub_u32", T[5], self.sXp, 3 * 14336)
        I("s_sub_u32", T[6], self.sXSp, 3 * 1024)
        for t in range(4):
            I("buffer_store_dwordx4", xo[t][0:4], self.vL16, self.sWS, T[5], mods="offen sc1")
            I("buffer_store_dwordx4", xo[t][4:8], self.vL16, self.sWS, T[5], mods="offen offset:1024 sc1")
            if t < 3: I("s_add_u32", T[5], T[5], 14336)
        if self.opt.get("rel", 1) == 0: I("s_barrier")
        for k in range(8):
            for t in range(4):
                I("v_dot2_f32_bf16", pr[t][0], xo[t][k], one, 0 if k == 0 else pr[t][0])
                I("v_dot2_f32_bf16", pr[t][1], xo[t][k], xo[t][k], 0 if k == 0 else pr[t][1])
        self.allreduce_pairs([("v_add_f32", pr[t][0], pr[t][1]) for t in range(4)])
        I("s_mov_b64", EXEC, "0xffff")
        for t in range(4):
            I("buffer_store_dwordx2", pr[t], self.vStatSt, self.sWS, T[6], mods=f"offen offset:{1024 * t} sc1")
        I("s_mov_b64", EXEC, -1)
        I("s_cmp_eq_u32", self.sHaloProd, 0)
        I("s_cbranch_scc1", nohalo)
        I("s_lshl_b32", T[1], self.sC, 10)
        I("s_add_u32", T[1], T[1], self.sHX)
        I("s_add_u32", T[1], T[1], 16384)
        I("s_mov_b32", self.sT2[0], "0xff00ff00")
        I("s_mov_b32", self.sT2[1], "0xff00ff00")
        I("s_mov_b64", EXEC, self.sT2)
        I("buffer_store_dwordx4", xo[3][0:4], self.vHp, self.sWS, T[1], mods="offen sc1")
        I("buffer_store_dwordx4", xo[3][4:8], self.vHp, self.sWS, T[1], mods="offen offset:512 sc1")
        I("s_lshl_b32", T[1], self.sC, 7)
        I("s_add_u32", T[1], T[1], self.sHX)
        I("s_add_u32", T[1], T[1], 16384 + 14336)
        I("s_mov_b64", EXEC, "0xffff")
        I("buffer_store_dwordx2", pr[3], self.vStatSt, self.sWS, T[1], mods="offen sc1")
        I("s_mov_b64", EXEC, -1)
        a.label(nohalo)
        a.flush()
        I("v_and_b32", V(126), 3, lane)
        I("v_lshlrev_b32", V(126), 7, V(126))
        I("v_lshrrev_b32", V(113), 2, lane)
        I("v_lshl_add_u32", V(126), V(113), 15, V(126))
        I("s_sub_u32", T[2], self.sFXp, 3 * 128)
        I("v_add_u32", V(126), T[2], V(126))
        I("s_lshl_b32", T[1], self.sC, 2)
        I("s_add_u32", T[1], T[1], self.sFHp)
        I("s_add_u32", T[1], T[1], 128)
        I("v_writelane_b32", V(126), T[1], 8)
        I("s_lshl_b32", T[1], self.sHaloProd, 8)
        I("s_or_b32", self.sT2[0], T[1], "0xff")
        I("s_mov_b32", self.sT2[1], 0)
        if self.opt.get("rel", 1) == 1: I("s_barrier")
        a.wait(vm=0)
        I("s_mov_b64", EXEC, self.sT2)
        I("buffer_store_dword", self.vT, V(126), self.sWS, 0, mods="offen sc1")
        I("s_mov_b64", EXEC, -1)
        if self.opt.get("rel", 1) == 2: I("s_barrier")
        self.fine(5, 3)
        I("s_branch", pub)
        a.label(idle)
        I("s_barrier")
        a.label(pub)
        if self.opt.get("n2", 3) and self.opt.get("b2", 0) == 0: I("s_barrier")
        a.forget_counters()
        I("s_cmp_ge_u32", self.sGrp, 14)
        I("s_cbranch_scc1", nofw)
        I("s_mul_i32", T[2], self.sH, 56)
        I("s_mul_i32", T[1], self.sGrp, 32 * 2688)
        I("s_add_u32", T[2], T[2], T[1])
        for mat in range(3):
            for half in range(2):
                I("s_add_u32", T[1], T[2], mat * 896 + half * 16 * 2688)
                I("buffer_load_dwordx4", V(168 + 8 * mat + 4 * half, 4), self.vQWd, self.sWB, T[1], mods="offen")
        a.label(nofw)
        I("s_mul_i32", T[1], self.sH, 1568)
        I("s_mov_b32", M0, L_WPHI)
        I("s_mul_i32", T[2], S(2), 13 * 128)
        I("s_min_u32", T[2], T[2], 401408 - 13 * 128)
        I("v_lshrrev_b32", V(112), 3, lane)
        I("v_and_b32", V(113), 7, lane)
        I("v_lshlrev_b32", V(113), 7, V(113))
        I("v_lshl_add_u32", V(126), V(112), 14, V(113))
        I("s_sub_u32", T[5], self.sOq, 6 * 16384)
        I("buffer_load_dwordx4", self.vL16, self.sWP, T[1], mods="offen lds")
        I("buffer_load_dwordx4", self.vL16, self.sWP, T[1], mods="offen offset:1024 lds")
        I("buffer_load_dword", self.vDummy, V(122), self.sWOA, T[2], mods="offen", nodest=True)
        I("buffer_load_dword", self.vDummy, V(122), self.sWOB, T[2], mods="offen", nodest=True)
        I("buffer_load_dword", self.vDummy, V(126), self.sWS, T[5], mods="offen", nodest=True)
        if self.opt.get("n2", 3) and self.opt.get("b2", 0) == 1: I("s_barrier")
        I("s_branch", "L_setup")
        a.label("L_walk")
        a.forget_counters()
        self.stamp()
        nofw2 = self.lab("nofw")
        I("s_cmp_ge_u32", self.sGrp, 14)
        I("s_cbranch_scc1", nofw2)
        if self.opt.get("zp", 1):
            I("v_bfe_u32", V(112), self.vL16, 4, 2)
            I("v_bfe_u32", V(113), self.vL16, 8, 1)
            I("v_lshlrev_b32", V(113), 1, V(113))
            I("v_xor_b32", V(112), V(112), V(113))
            I("v_cmp_ne_u32", VCC, 3, V(112))
            I("v_cndmask_b32", V(112), 0, -1, VCC)
        a.raw("    s_waitcnt vmcnt(5)")
        if self.opt.get("zp", 1):
            for k in range(6):
                for d in (2, 3): I("v_and_b32", V(168 + 4 * k + d), V(168 + 4 * k + d), V(112))
        I("s_lshl_b32", T[1], self.sGrp, 11)
        I("s_add_u32", T[1], T[1], self.sFW)
        I("s_sub_u32", T[1], T[1], 3 * 7168)
        for mat in range(3):
            I("s_add_u32", T[2], T[1], mat * MAT)
            for half in range(2):
                I("buffer_store_dwordx4", V(168 + 8 * mat + 4 * half, 4), self.vL16, self.sWS, T[2], mods=f"offen offset:{half * 1024} sc1")
        I("s_lshl_b32", T[1], self.sH, 7)
        I("s_lshl_b32", T[2], self.sGrp, 2)
        I("s_add_u32", T[1], T[1], T[2])
        I("s_add_u32", T[5], T[1], WS_FWF)
        if self.opt.get("el0", 10) < 14: self.early_look(0)
        a.wait(vm=0)
        I("s_mov_b64", EXEC, 1)
        I("buffer_store_dword", self.vT, OFF, self.sWS, T[5], mods="sc1")
        I("s_mov_b64", EXEC, -1)
        if self.opt.get("el0", 10) < 14: self.early_look(1)
        a.label(nofw2)
        self.fine(5, 4)
        if self.opt.get("visit", 0):
            I("s_mov_b64", EXEC, 0)
            I("s_branch", "L_visit_0")
            a.label("L_visit_ret")
            I("s_mov_b64", EXEC, -1)
        I("s_branch", "L_qa1")

    def p_stage(self):
        a, I = self.a, self.I
        T = self.sT
        NPRE = 12
        a.label("L_p")
        a.raw("@VISIT")
        a.forget_counters()
        a.wait(lg=0)
        I("s_barrier")
        I("s_cmp_eq_u32", self.sC, 7)
        I("s_cbranch_scc1", "L_pidle")
        slots = [A(64 + 4 * k, 4) for k in range(12)] + [A(168 + 4 * k, 4) for k in range(8)] + [V(128 + 4 * k, 4) for k in range(28)]
        def pwf(hh, n): return slots[(hh % NPRE) * 4 + n]
        def pw_read(hh, n):
            return [lambda: I("ds_read_b64_tr_b16", pwf(hh, n)[0:2], self.vP[n], mods=f"offset:{hh * 4096}"),
                    lambda: I("ds_read_b64_tr_b16", pwf(hh, n)[2:4], self.vP[n], mods=f"offset:{hh * 4096 + 2048}")]
        self.flag_value(T[0])
        early = 8
        late = [f for _, f in self.pw_dma(self.sPWc, (2, 3))]
        PP = self.opt.get("pp", 3)
        for hh in range(early):
            for n in range(4):
                for f in pw_read(hh, n): f()
                if late and (n & 1 or hh == 0): late.pop(0)()
            if hh == PP: I("buffer_load_dword", V(112), self.vPollP, self.sWS, self.sFOp, mods="offen sc1")
        assert not late
        loop, ok = self.lab("ppoll"), self.lab("ppass")
        if self.opt.get("dual", 1):
            a.wait(vm=0)
            I("v_cmp_ne_u32", VCC, T[0], V(112))
            I("s_cbranch_vccnz", loop)
            def spin():
                b = self.a
                b.label(loop)
                b.I("buffer_load_dword", V(112), self.vPollP, self.sWS, self.sFOp, mods="offen sc1")
                b.nop(self.opt.get("dnop", 8))
                b.label(loop + "l")
                for x, y in ((V(113), V(112)), (V(112), V(113))):
                    b.I("buffer_load_dword", x, self.vPollP, self.sWS, self.sFOp, mods="offen sc1", untracked=True)
                    b.raw("    s_waitcnt vmcnt(1)")
                    b.forget_counters()
                    b.I("v_cmp_ne_u32", VCC, T[0], y)
                    b.I("s_cbranch_vccz", ok)
                self.budget_branch(loop + "l")
            self.tail.append(spin)
        else:
            a.label(loop)
            a.wait(vm=0)
            I("v_cmp_ne_u32", VCC, T[0], V(112))
            I("s_cbranch_vccz", ok)
            I("buffer_load_dword", V(112), self.vPollP, self.sWS, self.sFOp, mods="offen sc1")
            self.budget_branch(loop)
        a.label(ok)
        a.vm = []
        self.stamp()
        def of(hh): return A(4 * hh, 4)
        def oload(hh):
            out = []
            if hh % 4 == 0 and hh:
                out.append(("s", lambda: I("s_add_u32", T[1], self.sOp, hh * 1024)))
            so = self.sOp if hh < 4 else T[1]
            out.append(("v", lambda: I("buffer_load_dwordx4", of(hh), self.vL16, self.sWS, so, mods=f"offen offset:{(hh % 4) * 1024} sc1")))
            return out
        NO = self.opt.get("no", 5)
        for hh in range(NO):
            for _, f in oload(hh): f()
        I("s_barrier")
        for hh in range(early, NPRE):
            for n in range(4):
                for f in pw_read(hh, n): f()
        mf, so, sw = [], [], []
        for hh in range(16):
            for n in range(4):
                mf.append((self.vR[4 * n:4 * n + 4], pwf(hh, n), of(hh), self.vR[4 * n:4 * n + 4]))
                if hh + NPRE < 16:
                    sw += [(4 * hh + n, "v", f) for f in pw_read(hh + NPRE, n)]
            if hh + NO < 16: so += [(4 * hh, k, f) for k, f in oload(hh + NO)]
        j, t = V(136), V(137)
        fa = [("v", lambda: I("v_lshrrev_b32", j, 2, self.vPollP)), ("v", lambda: I("v_lshrrev_b32", t, 9, self.vL16)),
              ("v", lambda: I("v_xor_b32", t, t, j)), ("v", lambda: I("v_and_b32", t, 7, t)), ("v", lambda: I("v_lshlrev_b32", t, 4, t)),
              ("v", lambda: I("v_lshl_add_u32", t, j, 7, t)), ("v", lambda: I("v_bfe_u32", j, self.vL16, 8, 1)),
              ("s", lambda: I("s_lshl_b32", T[1], self.sW, 11)), ("s", lambda: I("s_add_u32", T[1], T[1], L_SP)),
              ("v", lambda: I("v_lshl_add_u32", t, j, 3, t)), ("v", lambda: I("v_add_u32", V(132), T[1], t))]
        fa += [("v", lambda n=n: I("v_xor_b32", V(132 + n), 32 * n, V(132))) for n in range(1, 4)]
        fa += [("v", lambda: I("v_lshrrev_b32", j, 3, self.vL16)), ("v", lambda: I("v_and_b32", j, "0x70", j)),
               ("v", lambda: I("v_xor_b32", j, j, self.vL16)), ("v", lambda: I("v_add_u32", V(120), T[1], j)),
               ("s", lambda: I("s_add_u32", T[2], self.sX0o, 8 * 1792))]
        rest = self.sched(mf, [so, sw, [(48, k, f) for k, f in fa]])
        assert not rest
        a.flush()
        self.stamp()
        I("s_cmp_eq_u32", self.sL, 4)
        I("s_cbranch_scc1", "L_final")

        a.label("L_pepi")
        xo = V(112, 8)
        for k in range(8):
            I("v_cvt_pk_bf16_f32", xo[k], self.vR[2 * k], self.vR[2 * k + 1])
            if k == 3: I("buffer_store_dwordx4", xo[0:4], self.vL16, self.sWS, self.sXp, mods="offen")
        I("buffer_store_dwordx4", xo[4:8], self.vL16, self.sWS, self.sXp, mods="offen offset:1024")
        sm, sq = V(120, 2), V(122, 2)
        self.pk("v_pk_add_f32", sm, self.vR[0:2], self.vR[2:4])
        self.pk("v_pk_mul_f32", sq, self.vR[0:2], self.vR[0:2])
        self.pk("v_pk_fma_f32", sq, self.vR[2:4], self.vR[2:4], sq)
        for k in range(2, 8):
            self.pk("v_pk_add_f32", sm, sm, self.vR[2 * k:2 * k + 2])
            self.pk("v_pk_fma_f32", sq, self.vR[2 * k:2 * k + 2], self.vR[2 * k:2 * k + 2], sq)
        pr = V(124, 2)
        I("v_add_f32", pr[0], sm[0], sm[1])
        I("v_add_f32", pr[1], sq[0], sq[1])
        x, y = pr[0], pr[1]
        I("s_add_u32", self.sL, self.sL, 1)
        I("s_lshl_b32", T[0], self.sL, 4)
        I("v_permlane32_swap_b32", x, y)
        I("s_or_b32", T[0], T[0], self.sBase)
        I("v_add_f32", x, x, y)
        I("v_mov_b32", y, x)
        I("v_mov_b32", self.vT, T[0])
        I("s_cmp_eq_u32", self.sPhase, 0)
        I("v_permlane16_swap_b32", x, y)
        I("s_cselect_b32", self.sPend, self.sHaloProd, 0)
        I("v_add_f32", x, x, y)
        I("v_mov_b32", y, x)
        I("s_lshl_b32", T[1], self.sC, 10)
        I("s_add_u32", T[1], T[1], self.sHX)
        I("v_permlane32_swap_b32", x, y)
        I("s_mov_b64", EXEC, "0xffff")
        I("buffer_store_dwordx2", pr, self.vStatSt, self.sWS, self.sXSp, mods="offen")
        I("s_mov_b64", EXEC, -1)
        nh, pub = self.lab("nohalo"), self.lab("pub")
        I("s_cmp_eq_u32", self.sPend, 0)
        I("s_cbranch_scc0", nh)
        wb, wbd = self.lab("pwb"), self.lab("pwbd")
        I("s_cmp_eq_u32", self.sL, 4)
        I("s_cbranch_scc1", wb)
        a.label(wbd)
        def write_back():
            self.a.label(wb)
            for n in range(14, 21): self.I("ds_write_b128", self.vQS, self.stash(n), mods=self.piece(n))
            self.I("s_branch", wbd)
        self.tail.append(write_back)
        a.wait(vm=0)
        a.label(pub)
        self.publish(self.sFXp)

        def tail():
            b = self.a
            b.label(nh)
            b.I("s_add_u32", T[1], T[1], 16384)
            b.I("s_mov_b32", self.sT2[0], "0xff00ff00")
            b.I("s_mov_b32", self.sT2[1], "0xff00ff00")
            b.I("s_mov_b64", EXEC, self.sT2)
            b.I("buffer_store_dwordx4", xo[0:4], self.vHp, self.sWS, T[1], mods="offen sc1")
            b.I("buffer_store_dwordx4", xo[4:8], self.vHp, self.sWS, T[1], mods="offen offset:512 sc1")
            b.I("s_lshl_b32", T[1], self.sC, 7)
            b.I("s_add_u32", T[1], T[1], self.sHX)
            b.I("s_add_u32", T[1], T[1], 16384 + 14336)
            b.I("s_mov_b64", EXEC, "0xffff")
            b.I("buffer_store_dwordx2", pr, self.vStatSt, self.sWS, T[1], mods="offen sc1")
            b.I("s_mov_b64", EXEC, -1)
            b.wait(vm=3)
            b.I("s_branch", pub)
        self.tail.append(tail)
        a.label("L_pnext")
        a.flush()
        a.forget_counters()
        self.stamp()
        if self.opt.get("stop"):
            I("s_cmp_eq_u32", self.sL, self.opt["stop"])
            I("s_cbranch_scc1", "L_fin2")
        I("s_cmp_eq_u32", self.sPhase, 1)
        I("s_cbranch_scc1", "L_qb")

        def idle():
            b = self.a
            b.label("L_pidle")
            b.I("s_cmp_eq_u32", self.sL, 4)
            b.I("s_cbranch_scc1", "L_fin2")
            b.I("s_add_u32", self.sL, self.sL, 1)
            b.I("s_cmp_lg_u32", self.sL, 4)
            b.I("s_cbranch_scc1", "L_pnext")
            for n in range(14, 21): b.I("ds_write_b128", self.vQS, self.stash(n), mods=self.piece(n))
            b.I("s_branch", "L_pnext")
        self.tail.append(idle)

    def q_poll(self, shadow=None):
        a, I = self.a, self.I
        T = self.sT
        ex, t, pv = V(112), V(113), V(114)
        loop, ok, pend, nopend, slow, again = (self.lab(x) for x in ("qpoll", "qpass", "pend", "nopend", "qslow", "qagain"))
        I("v_mad_u32_u24", ex, self.vExpM, self.sL, self.vExpC)
        if shadow:
            chk = self.lab("qchk")
            I("buffer_load_dword", pv, self.vPollQ, self.sWS, 0, mods="offen sc1")
            shadow()
            I("s_branch", chk)
        a.label(loop)
        I("buffer_load_dword", pv, self.vPollQ, self.sWS, 0, mods="offen sc1")
        if shadow: a.label(chk)
        I("s_cmp_eq_u32", self.sPend, 0)
        a.wait(vm=0)
        I("s_cbranch_scc0", pend)
        a.label(nopend)
        I("v_xor_b32", t, pv, ex)
        I("v_cmp_ne_u32", VCC, 0, t)
        I("s_cbranch_vccnz", slow)
        a.label(ok)
        a.vm = []

        def tail():
            b = self.a
            b.label(pend)
            b.I("s_lshl_b32", T[1], self.sC, 2)
            b.I("s_add_u32", T[1], T[1], self.sFHp)
            self.flag_value(T[0])
            b.I("v_mov_b32", self.vT, T[0])
            b.I("s_mov_b64", EXEC, 1)
            b.I("buffer_store_dword", self.vT, OFF, self.sWS, T[1], mods="offset:128 sc1")
            b.I("s_mov_b64", EXEC, -1)
            b.I("s_mov_b32", self.sPend, 0)
            b.I("s_branch", nopend)
            b.label(slow)
            if self.opt.get("dual", 1):
                fast, gen = self.lab("qfast"), self.lab("qgen")
                b.I("s_cmp_eq_u32", self.sL, 1)
                b.I("s_cselect_b32", T[0], 0, self.sMode)
                b.I("s_cmp_eq_u32", T[0], 0)
                b.I("s_cbranch_scc1", gen)
                b.I("buffer_load_dword", pv, self.vPollQ, self.sWS, 0, mods="offen sc1")
                b.nop(self.opt.get("dnop", 8))
                b.label(fast)
                for x, y in ((t, pv), (pv, t)):
                    b.I("buffer_load_dword", x, self.vPollQ, self.sWS, 0, mods="offen sc1", untracked=True)
                    b.raw("    s_waitcnt vmcnt(1)")
                    b.forget_counters()
                    b.I("v_cmp_ne_u32", VCC, ex, y)
                    b.I("s_cbranch_vccz", ok)
                self.budget_branch(fast)
                b.label(gen)
            b.I("s_cmp_eq_u32", self.sMode, 0)
            b.I("s_cbranch_scc1", again + "m")
            b.I("v_not_b32", V(115), self.vPollM)
            b.I("v_and_b32", V(116), t, self.vPollM)
            b.I("v_and_b32", V(115), t, V(115))
            b.I("v_cmp_ne_u32", self.sT2, 0, V(115))
            b.I("v_cmp_eq_u32", VCC, 0, V(116))
            b.nop(2)
            b.I("s_cmp_eq_u64", self.sT2, 0)
            b.I("s_cbranch_scc1", again)
            b.I("s_andn2_b32", T[0], "0xffff0000", VCC_LO)
            b.I("s_cbranch_scc1", again)
            b.I("s_mov_b32", self.sMode, 0)
            b.I("s_add_u32", self.sFXp, self.sFXp, WS_SLOW)
            b.I("s_add_u32", self.sFOq, self.sFOq, WS_SLOW)
            b.I("s_add_u32", self.sFOp, self.sFOp, WS_SLOW)
            b.I("v_lshlrev_b32", V(115), 11, self.vExpM)
            b.I("v_add_u32", self.vPollQ, V(115), self.vPollQ)
            b.I("s_branch", again)
            b.label(again + "m")
            b.I("v_and_b32", V(116), t, self.vPollM)
            b.I("v_cmp_ne_u32", VCC, 0, V(116))
            b.I("s_cbranch_vccz", ok)
            b.label(again)
            self.budget_branch(loop)
        self.tail.append(tail)

    def xload(self, ks):
        out = []
        if ks % 4 == 0:
            out.append(("s", lambda: self.I("s_add_u32", self.sT[1], self.sXq, ks * 1024)))
            out.append(("s", lambda: self.I("s_add_u32", self.sT[2], self.sXq, ks * 1024 + 14336)))
        for t in range(2):
            out.append(("v", lambda t=t: self.I("buffer_load_dwordx4", self.xf(t, ks), self.vL16, self.sWS, self.sT[1 + t],
                                               mods=f"offen offset:{(ks % 4) * 1024} sc1")))
        return out

    def stats_ops(self, T, layer):
        raw, st = self.straw(T), self.st(T)
        t = V(188 + 2 * T, 2)
        ops = []
        def add(*x, **k): ops.append(("w" if ("perm" in x[0] or "rsq" in x[0]) else "v", lambda: self.I(*x, **k)))
        add("v_and_b32", raw[2], raw[2], self.vM3)
        add("v_and_b32", raw[3], raw[3], self.vM3)
        add("v_add_f32", raw[0], raw[0], raw[2])
        add("v_add_f32", raw[1], raw[1], raw[3])
        for step in range(7):
            x, y = raw[0], raw[1]
            if step in (0, 6): add("v_permlane32_swap_b32", x, y)
            elif step in (1, 4): add("v_add_f32", x, x, y)
            elif step in (2, 5): add("v_mov_b32", y, x)
            else: add("v_permlane16_swap_b32", x, y)
        add("v_mul_f32", st[0], f32(-1.0 / 448), raw[0])
        add("v_mul_f32", t[0], f32(1.0 / 448), raw[1])
        add("v_fma_f32", t[0], Neg(st[0]), st[0], t[0])
        add("v_max_f32", t[0], 0, t[0])
        add("v_add_f32", t[0], f32(1e-5), t[0])
        add("v_rsq_f32", st[1], t[0])
        add("v_and_b32", st[2], st[1], self.vMH if T == 2 else self.vM3)
        if T < 2:
            add("v_mul_f32", st[3], f32(LOG2E * (28 ** -0.5 if layer == "A" else 1.0)), st[1])
        return ops

    def colsum_part(self, ad, steps, cs_off):
        a, I = self.a, self.I
        d = V(192, 4)
        def w(k): return self.wf(k % 4)
        for k in range(4):
            for f in self.tr_pair(w(k), ad, steps[k] * 2048): f()
        mf, sw = [], []
        for k in range(len(steps)):
            mf.append((d, w(k), self.aOnes, 0 if k == 0 else d))
            if k + 4 < len(steps): sw += [(k, "v", f) for f in self.tr_pair(w(k), ad, steps[k + 4] * 2048)]
        assert not self.sched(mf, [sw])
        I("v_lshrrev_b32", V(189), 8, self.vL16)
        I("v_lshlrev_b32", V(189), 4, V(189))
        I("s_add_u32", self.sT[0], self.sT[0], L_CS + cs_off)
        I("v_add_u32", V(189), self.sT[0], V(189))
        I("s_mov_b32", self.sT2[0], "0x00010001")
        I("s_mov_b32", self.sT2[1], "0x00010001")
        a.flush()
        I("s_mov_b64", EXEC, self.sT2)
        I("ds_write_b128", V(189), d)
        I("s_mov_b64", EXEC, -1)

    def colsum_b_q(self):
        I, T = self.I, self.sT
        I("v_lshrrev_b32", V(188), 8, self.vL16)
        I("v_lshlrev_b32", V(188), 4, V(188))
        I("v_add_u32", V(188), L_CS, V(188))
        for ft in range(2, 6):
            I("ds_read_b128", self.cB[4 * ft:4 * ft + 4], V(188), mods=f"offset:{64 * ft}")
        I("s_lshr_b32", T[0], self.sW, 1)
        I("s_lshl_b32", T[0], T[0], 5)
        I("v_xor_b32", V(188), T[0], self.vQ0)
        I("s_and_b32", T[0], self.sW, 1)
        I("s_mul_i32", T[0], T[0], 7 * 2048)
        I("v_add_u32", V(188), T[0], V(188))
        I("s_lshl_b32", T[0], self.sW, 6)
        self.colsum_part(V(188), list(range(7)), 512)

    def colsum_b_q2(self):
        a, I = self.a, self.I
        done = self.lab("cq2")
        a.wait_lg_all()
        I("s_cmp_lg_u32", self.sIt, 0)
        I("s_cbranch_scc1", done)
        I("v_lshrrev_b32", V(188), 8, self.vL16)
        I("v_lshlrev_b32", V(188), 4, V(188))
        I("v_add_u32", V(188), L_CS + 512, V(188))
        for k in range(4):
            I("ds_read_b128", self.cB[4 * (k >> 1):4 * (k >> 1) + 4] if k % 2 == 0 else V(204 + 4 * (k >> 1), 4), V(188), mods=f"offset:{64 * k}")
        for k in range(8): I("v_add_f32", self.cB[k], self.cB[k], V(204 + k))
        a.flush()
        a.label(done)

    def cs_read(self, dst, with_halo):
        I = self.I
        ad = V(188)
        I("v_lshrrev_b32", ad, 8, self.vL16)
        I("v_lshlrev_b32", ad, 4, ad)
        I("v_add_u32", ad, L_CS, ad)
        for ft in range(6):
            I("ds_read_b128", dst[4 * ft:4 * ft + 4], ad, mods=f"offset:{64 * ft}")
        if with_halo:
            I("s_lshl_b32", self.sT[0], self.sW, 6)
            I("v_add_u32", V(189), self.sT[0], ad)
            I("ds_read_b128", self.vCH, V(189), mods="offset:128")

    def wphi_gather(self):
        a, I = self.a, self.I
        j, g, f1, ad, t = V(214), V(215), V(216), V(217), V(218)
        I("v_lshrrev_b32", g, 8, self.vL16)
        I("v_lshrrev_b32", j, 2, self.vPollP)
        I("v_lshrrev_b32", t, 2, j)
        I("v_sub_u32", f1, j, t)
        I("v_add_u32", f1, 16, f1)
        I("v_mul_u32_u24", ad, 4 * 56, g)
        I("v_add_u32", ad, L_WPHI, ad)
        I("v_lshl_add_u32", f1, f1, 1, ad)
        I("v_lshl_add_u32", ad, j, 1, ad)
        I("v_and_b32", t, 3, j)
        I("v_cmp_ne_u32", VCC, 3, t)
        I("v_cndmask_b32", t, 0, -1, VCC)
        I("v_and_b32", j, t, self.vM3)
        for oft, base in enumerate((ad, f1)):
            for e in range(8):
                d = e if e < 4 else 16 + e - 4
                I("ds_read_u16", V(204 + e), base, mods=f"offset:{d * 56}")
            for p in range(4):
                I("v_lshl_or_b32", V(204 + 2 * p), V(205 + 2 * p), 16, V(204 + 2 * p))
                m = (None, self.vM3)[p >> 1] if oft == 0 else (t, j)[p >> 1]
                if m is not None: I("v_and_b32", V(204 + 2 * p), V(204 + 2 * p), m)
                I("v_accvgpr_write_b32", self.aWphi[4 * oft + p], V(204 + 2 * p))

    def conv_scalar(self, dst, T, mat, c, scales):
        out = []
        st = self.st(T)
        for f in range(2):
            acc = self.acc(T, 2 * mat + f)
            cc = c[4 * (2 * mat + f):4 * (2 * mat + f) + 4]
            for k in range(4): out.append(lambda acc=acc, cc=cc, k=k: self.I("v_fma_f32", acc[k], cc[k], st[0], acc[k]))
            m = {"r": st[1], "m": st[2], None: None}[scales[f]]
            if m is not None:
                for k in range(4): out.append(lambda acc=acc, m=m, k=k: self.I("v_mul_f32", acc[k], acc[k], m))
            for p in range(2): out.append(lambda acc=acc, f=f, p=p: self.I("v_cvt_pk_bf16_f32", dst[2 * f + p], acc[2 * p], acc[2 * p + 1]))
        return out

    def check_parked(self, before):
        assert self.a.count["ds_read_b128"] - before == 21

    def q_ready(self, layer, first=False):
        a, I = self.a, self.I
        a.wait(lg=0)
        I("s_barrier")
        once = self.lab("once")
        if layer == "B":
            I("s_cmp_lg_u32", self.sIt, 0)
            I("s_cbranch_scc1", once)
        nvm = len(a.vm)
        if layer == "A" and not first:
            pass
        elif layer == "A":
            self.cs_read(self.cA, True)
            for n in range(4): I("ds_read_b64", V(200 + 2 * n, 2), V(0), mods=f"offset:{32 * n}")
            for n in range(4):
                for p in range(2):
                    I("v_lshlrev_b32", self.vR[4 * n + 2 * p], 16, V(200 + 2 * n + p))
                    I("v_and_b32", self.vR[4 * n + 2 * p + 1], "0xffff0000", V(200 + 2 * n + p))
        else:
            self.colsum_b_q()
        a.wait_lg_all()
        a.flush()
        assert nvm == len(a.vm)
        a.label(once)
        for ft in range(0 if layer == "A" else 2, 6):
            for f in self.qw_read(self.wf(ft), ft, 0): f()

    def q_gemm(self, layer, tail_ops=(), first=None):
        a, I = self.a, self.I
        T = self.sT
        isA = layer == "A"
        LOOK = self.opt.get("look", 3)
        if not first:
            for ks in range(2):
                for _, f in self.xload(ks): f()
            if not isA: self.q_ready("B")
            for _, f in self.xload(2): f()
        reads0, writes0 = a.count.get("ds_read_b64_tr_b16", 0) - 12, a.count.get("ds_write_b128", 0)
        parked0 = a.count.get("ds_read_b128", 0)
        def bar(n):
            assert a.count["ds_read_b64_tr_b16"] - reads0 == n and not a.lg and a.count.get("ds_write_b128", 0) == writes0
            I("s_barrier")

        G = 12 if isA else 8
        mf, sw, sx, sd, sv, sh, stc = [], [], [], [], [], [], []
        for ks in range(14):
            order = ((2, 3, 4, 5, 0, 1) if ks == 13 else range(6)) if isA else range(2, 6)
            for ft in order:
                for t in ((1, 0) if ks == 13 else (0, 1)):
                    mf.append((self.acc(t, ft), self.wf(ft), self.xf(t, ks), 0 if ks == 0 else self.acc(t, ft)))
                if ks < 13:
                    sw += [(len(mf) - 1, "v", f) for f in self.qw_read(self.wf(ft), ft, ks + 1)]
        for k in range(3, 14):
            gap = max(0, G * (k - LOOK) - (6 if k > 6 else 0)) if isA else max(0, G * (k - self.opt.get("lookb", 4)))
            xl = self.xload(k)
            sx += [(gap, kind, f) for kind, f in xl[:-1]] + [(gap + 4, "v", xl[-1][1])]
            SK = self.opt.get("ska", 6) if isA else self.opt.get("skb", 7)
            if k in (SK, SK + 1):
                for t in (k - SK,):
                    for q in range(2):
                        sx.append((gap + 7 + 2 * q, "v", lambda t=t, q=q: I(
                            "buffer_load_dwordx2", self.straw(t)[2 * q:2 * q + 2], self.vStat, self.sWS, self.sXSq,
                            mods=f"offen offset:{t * 1024 + 512 * q} sc1")))
        s0, s1 = self.stats_ops(0, layer), self.stats_ops(1, layer)
        sv += [(G * SK + 6 - G * self.opt.get("sva", 0) if isA else G * (SK - 1), k, f) for p in zip(s0, s1) for k, f in p]
        x2 = a.count.get("buffer_load_dwordx2", 0)
        def loaded(f, n):
            def g():
                assert a.count["buffer_load_dwordx2"] - x2 >= n, "row sums used before they were requested"
                f()
            return g
        sv[0] = (sv[0][0], sv[0][1], loaded(sv[0][2], 4))
        sf = []
        if self.opt.get("fine") == (1 if isA else 2):
            sf = [(G * 2 * i, "s", lambda i=i: self.fine(1 if isA else 2, i)) for i in range(7)]
        nd = 0
        for k, f in self.pw_dma(self.sWOA, (0, 1)) if isA else ():
            sd.append((G * 10 + 2 + 5 * nd, k, f))
            nd += k == "v"
        if isA:
            HF, HC = self.opt.get("hf", 4), self.opt.get("hc", 8)
            hv, hx, fv = V(194), V(195), V(196)
            def check(reg, first, gap, shift):
                slow, back = self.lab("hslow"), self.lab("hback")
                out = [(first, "v", lambda: I("buffer_load_dword", reg, self.vPollH, self.sWS, 0, mods="offen sc1")),
                       (gap, "v", lambda: I("v_cmp_ne_u32", VCC, hx, reg))]
                if shift: out.append((gap, "s", lambda: I("s_lshr_b64", VCC, VCC, 16)))
                def br():
                    I("s_cbranch_scc1" if shift else "s_cbranch_vccnz", slow)
                    a.label(back)
                out.append((gap, "s", br))
                def tail():
                    b = self.a
                    b.label(slow)
                    b.I("s_sub_u32", self.sBudget, self.sBudget, 1)
                    b.I("s_cbranch_scc1", "L_end")
                    b.I("buffer_load_dword", reg, self.vPollH, self.sWS, 0, mods="offen sc1")
                    b.wait(vm=0)
                    b.I("v_cmp_ne_u32", VCC, hx, reg)
                    if shift: b.I("s_lshr_b64", VCC, VCC, 16)
                    b.I("s_cbranch_scc1" if shift else "s_cbranch_vccnz", slow)
                    b.I("s_branch", back)
                self.tail.append(tail)
                return out
            stc = [(2, "v", lambda: I("v_mad_u32_u24", hx, self.vExpHM, self.sL, self.vExpHC))]
            sh += check(hv, G * HF + 8, G * HC, False)
            sh.append((G * HC, "s", lambda: I("s_lshl_b32", T[0], self.sW, 11)))
            sh.append((G * HC, "s", lambda: I("s_add_u32", M0, T[0], L_HX, m0="halo")))
            sh.append((G * HC, "s", lambda: I("s_add_u32", T[0], T[0], self.sHX)))
            for q in range(2):
                sh.append((G * HC, "v", lambda q=q: I("buffer_load_dwordx4", self.vHalo, self.sWS, T[0], mods=f"offen offset:{1024 * q} sc1 lds", tag="halo", m0="halo")))
            sh.append((G * HC, "s", lambda: I("s_add_u32", T[0], self.sHX, 14336)))
            for q in range(2):
                sh.append((G * HC, "v", lambda q=q: I("buffer_load_dwordx2", self.straw(2)[2 * q:2 * q + 2], self.vHaloS, self.sWS, T[0],
                                                     mods=f"offen offset:{512 * q} sc1")))
            sh.append((G * HC, "v", lambda: I("v_add_u32", V(194), L_HX, self.vHp)))
            def hw(k): return A(4 * k, 4)
            shw = []
            for k in range(14): shw += [(G * (1 + (k * 11) // 14) + 3, "v", f) for f in self.tr_pair(hw(k), self.vQh, k * 2048)]
            s2 = self.stats_ops(2, layer)
            sv += [(G * (HC + 4), k, loaded(f, 6)) for k, f in s2]
            nb = len(mf) - 11
            sb = [(nb, "s", lambda: a.wait_vm_tag("halo")), (nb, "s", lambda: a.wait(lg=0)), (nb, "s", lambda: bar(168 + 28))]
            sb += [(nb, "v", lambda k=k: I("ds_read_b128", self.hx(k), V(194), mods=f"offset:{512 * k}")) for k in range(14)]
            n0 = len(mf)
            for k in range(14): mf.append((self.hacc, hw(k), self.hx(k), 0 if k == 0 else self.hacc))
            stl = [(n0 - 6, "v", f) for f in tail_ops]
            spark, sfw = [], []
            if first:
                spark = [(G * self.opt.get("pk0", 6) + self.opt.get("pkd", 4) * n, "v", lambda n=n: I("ds_read_b128", self.stash(n + 1), self.vQS, mods=self.piece(n))) for n in range(21)]
                sfw = [(nb + 6 + 8 * k, "w", first) for k in range(2)]
                sb.insert(0, (nb, "s", lambda: self.check_parked(parked0)))
            rest = self.sched(mf, [sf, sw, sx, stc, sh, shw, spark, sb, sd, sfw, sv + stl])
        else:
            n0 = len(mf)
            stl = [(n0 - 4, "v", f) for f in tail_ops]
            rest = self.sched(mf, [sf, sw, sx, sv + stl])
        return rest

    def ln(self, acc, c, st, scale):
        for p in range(2):
            self.pk("v_pk_fma_f32", acc[2 * p:2 * p + 2], c[2 * p:2 * p + 2], st[0:2], acc[2 * p:2 * p + 2], by=0)
        if scale == "r":
            for p in range(2): self.pk("v_pk_mul_f32", acc[2 * p:2 * p + 2], acc[2 * p:2 * p + 2], st[0:2], by=1)
        elif scale == "m":
            for p in range(2): self.pk("v_pk_mul_f32", acc[2 * p:2 * p + 2], acc[2 * p:2 * p + 2], st[2:4], by=0)
        elif scale == "e":
            self.pk("v_pk_fma_f32", acc[0:2], acc[0:2], st[2:4], self.vE0, by=0)
            self.pk("v_pk_mul_f32", acc[2:4], acc[2:4], st[2:4], by=0)

    def cvt(self, dst, src):
        for p in range(src.cnt // 2):
            self.I("v_cvt_pk_bf16_f32", dst[p], src[2 * p], src[2 * p + 1])

    def conv(self, dst, T, mat, c, scales):
        for f in range(2):
            ft = 2 * mat + f
            self.ln(self.acc(T, ft), c[4 * ft:4 * ft + 4], self.st(T), scales[f])
        for f in range(2):
            self.cvt(dst[2 * f:2 * f + 2], self.acc(T, 2 * mat + f))

    def o_finish(self, o, den, of, in_drain, after):
        a, I = self.a, self.I
        T = self.sT
        I("s_add_u32", T[1], self.sOq, 16384)
        self.flag_value(T[0])
        for t in range(2): I("v_rcp_f32", den[t][0], den[t][0])
        I("v_mov_b32", self.vT, T[0])
        for t in range(2):
            for p in range(4): self.pk("v_pk_mul_f32", o[t][2 * p:2 * p + 2], o[t][2 * p:2 * p + 2], den[t][0:2], by=0)
            self.cvt(of[t], o[t])
            I("buffer_store_dwordx4", of[t], self.vL16, self.sWS, T[1] if t else self.sOq, mods="offen")
        self.fine(getattr(self, "fin_region", 0) or -1, 6)
        self.fin_region = 0
        if in_drain: in_drain()
        a.wait(vm=0)
        self.publish(self.sFOq)
        self.stamp()
        if after: after()

    def qa_stage(self, first=False):
        a, I = self.a, self.I
        if first and self.opt.get("visit", 0): a.raw(".p2align 12")
        a.label("L_qa1" if first else "L_qa")
        a.forget_counters()
        self.it_b = None
        left = list(range(7, 21)) + list(range(7))
        NE, NH = self.opt.get("ne", 12), self.opt.get("nh", 4)
        def more():
            if first and len(left) > 21 - NE: self.fw_piece(left.pop(0))
        self.more = more
        if first:
            have = self.lab("havex")
            self.q_ready("A", True)
            I("s_cmp_eq_u32", S(3), 1)
            I("s_cbranch_scc1", have)
            self.q_poll()
            for ks in range(3):
                for _, f in self.xload(ks): f()
            a.label(have)
        else: self.q_poll(lambda: (self.b_to_a(range(14, 21)), self.q_ready("A")))
        self.stamp()
        kf = [V(196, 4), V(200, 4)]
        qf = [V(204, 4), V(208, 4)]
        vp = [V(212, 4), V(216, 4)]
        hp = V(220, 2)
        tail_ops = self.conv_scalar(kf[1], 1, 1, self.cA, ("r", "m"))
        tail_ops.append(lambda: I("ds_write_b128", self.vKrd, kf[1], mods="offset:1024"))
        tail_ops += self.conv_scalar(vp[1], 1, 2, self.cA, ("r", "r"))
        tail_ops.append(lambda: I("ds_write_b128", self.vEXW, vp[1], mods="offset:2048"))
        rest = self.q_gemm("A", tail_ops, more if first else None)
        for f in rest: f()
        self.stamp()
        more()
        self.conv(vp[0], 0, 2, self.cA, ("r", "r"))
        I("ds_write_b128", self.vEXW, vp[0], mods="offset:1024")
        self.ln(self.hacc, self.vCH, self.st(2), "m")
        self.cvt(hp, self.hacc)
        I("ds_write_b64", self.vHW, hp)
        more()
        self.conv(qf[0], 0, 0, self.cA, (None, None))
        self.fine(4, 0)
        a.wait(lg=0)
        I("s_barrier")
        self.fine(4, 1)
        kprev = V(222, 4)
        vt = [V(226, 6), V(232, 6)]
        I("ds_read_b128", kprev, self.vKrd)
        for f in range(2):
            for i in range(3):
                I("ds_read_b64_tr_b16", vt[f][2 * i:2 * i + 2], self.vEXRa, mods=f"offset:{1024 * i + 8 * f}")
        more()
        self.conv(kf[0], 0, 1, self.cA, ("r", "m"))
        more()
        self.conv(qf[1], 1, 0, self.cA, (None, None))
        s = [V(112, 8), V(120, 8)]
        self.mfma(s[1][4:8], kf[1], qf[1], self.bCur)
        self.mfma(s[1][0:4], kf[0], qf[1], self.bPrev)
        self.mfma(s[0][4:8], kf[0], qf[0], self.bCur)
        self.mfma(s[0][0:4], kprev, qf[0], self.bPrev0)
        self.fine(4, 2)
        more()
        m = V(128, 2)
        for t in (1, 0):
            I("v_max3_f32", m[t], s[t][4], s[t][5], s[t][6])
            I("v_max3_f32", m[t], m[t], s[t][7], s[t][0])
            I("v_max3_f32", m[t], m[t], s[t][1], s[t][2])
            I("v_max_f32", m[t], m[t], s[t][3])
        self.allreduce_pairs([("v_max_f32", m[0], m[1])])
        more()
        nm = [V(130, 2), V(132, 2)]
        for t in range(2):
            I("v_mul_f32", nm[t][0], m[t], self.st(t)[3])
        for t in range(2):
            for p in range(4):
                self.I("v_pk_fma_f32", s[t][2 * p:2 * p + 2], s[t][2 * p:2 * p + 2], self.st(t)[2:4], nm[t],
                       mods="op_sel:[0,1,0] op_sel_hi:[1,1,0] neg_lo:[0,0,1] neg_hi:[0,0,1]")
        self.fine(4, 3)
        pf = [V(136, 4), V(140, 4)]
        o = [V(144, 8), V(152, 8)]
        sm = [V(160, 4), V(164, 4)]
        more()
        for k in range(8): I("v_exp_f32", s[0][k], s[0][k])
        more()
        for k in range(2): I("v_exp_f32", s[1][k], s[1][k])
        self.cvt(pf[0], s[0])
        for k in range(2, 4): I("v_exp_f32", s[1][k], s[1][k])
        self.mfma(sm[0], self.aOnes, pf[0], 0)
        I("v_exp_f32", s[1][4], s[1][4])
        self.mfma(o[0][0:4], vt[0][0:4], pf[0], 0)
        I("v_exp_f32", s[1][5], s[1][5])
        self.mfma(o[0][4:8], vt[1][0:4], pf[0], 0)
        for k in range(6, 8): I("v_exp_f32", s[1][k], s[1][k])
        self.cvt(pf[1], s[1])
        self.mfma(sm[1], self.aOnes, pf[1], 0)
        for f in range(2):
            self.mfma(o[1][4 * f:4 * f + 4], vt[f][2:6], pf[1], 0)
        self.fine(4, 4)
        more()
        more()
        self.fine(4, 5)
        self.fin_region = 4
        def hop1():
            for _ in range(NH): self.fw_piece(left.pop(0))
            self.fw_left = left
            assert len(left) <= 7
        if first: self.o_finish(o, sm, [V(168, 4), V(172, 4)], self.wphi_gather, hop1)
        else: self.o_finish(o, sm, [V(168, 4), V(172, 4)], lambda: self.unpark(range(7, 14)), None)
        I("s_mov_b32", self.sPhase, 1)
        I("s_mov_b64", self.sPWc[0:2], self.sWOA[0:2])
        I("s_mov_b32", self.sPWc[2], 401408)
        a.flush()
        I("s_branch", "L_p")

    def phi(self, src, dst, extra=(), done=None):
        a, I = self.a, self.I
        rest = list(extra)
        def more(n=1):
            for _ in range(n):
                if rest: rest.pop(0)()
        p = [V(120, 8), V(128, 8)]
        for t in range(2):
            for oft in range(2):
                self.mfma(p[t][4 * oft:4 * oft + 4], self.aWphi[4 * oft:4 * oft + 4], src[t], 0)
        kk = [V(204, 2), V(206, 2)]
        bb = [V(208, 2), V(210, 2)]
        for t in range(2):
            I("v_mov_b32", kk[t][0], self.st(t)[3])
            I("v_sub_f32", kk[t][1], 0, self.st(t)[3])
        more(3)
        mx, mn = V(188, 2), V(190, 2)
        for t in range(2):
            for k in range(3):
                if k == 0:
                    I("v_max3_f32", mx[t], p[t][0], p[t][1], p[t][2])
                    I("v_min3_f32", mn[t], p[t][0], p[t][1], p[t][2])
                else:
                    I("v_max3_f32", mx[t], mx[t], p[t][2 * k + 1], p[t][2 * k + 2])
                    I("v_min3_f32", mn[t], mn[t], p[t][2 * k + 1], p[t][2 * k + 2])
        self.fine(self.phi_region or -1, 1)
        self.allreduce_pairs([("v_max_f32", mx[0], mx[1]), ("v_min_f32", mn[0], mn[1])])
        for t in range(2):
            I("v_mul_f32", bb[t][0], mx[t], kk[t][1])
            I("v_mul_f32", bb[t][1], mn[t], kk[t][0])
        e = [V(144, 14), V(158, 14)]
        for i in range(7):
            for t in range(2):
                self.pk("v_pk_fma_f32", e[t][2 * i:2 * i + 2], p[t][(i & ~1):(i & ~1) + 2], kk[t], bb[t], bx=i & 1)
        self.fine(self.phi_region or -1, 2)
        for i in range(14):
            for t in range(2): I("v_exp_f32", e[t][i], e[t][i])
            more()
        sm = [V(188, 2), V(190, 2)]
        for t in range(2): self.pk("v_pk_add_f32", sm[t], e[t][0:2], e[t][2:4])
        for i in range(2, 7):
            for t in range(2): self.pk("v_pk_add_f32", sm[t], sm[t], e[t][2 * i:2 * i + 2])
            more()
        self.fine(self.phi_region or -1, 3)
        self.allreduce_pairs([("v_add_f32", sm[0][0], sm[0][1]), ("v_add_f32", sm[1][0], sm[1][1])])
        for t in range(2):
            for k in range(2): I("v_rcp_f32", sm[t][k], sm[t][k])
        for t in range(2):
            more()
            for i in range(7):
                self.pk("v_pk_mul_f32", e[t][2 * i:2 * i + 2], e[t][2 * i:2 * i + 2], sm[t])
                if i == 3: more()
            for s in range(2):
                more()
                for q in range(4):
                    I("v_cvt_pk_bf16_f32", dst[t][s][q], e[t][4 * q + s], e[t][4 * q + 2 + s] if q < 3 else 0)
                if done: done(t, s)
        more(99)

    def qb_stage(self):
        a, I = self.a, self.I
        T = self.sT
        a.label("L_qb")
        a.raw("@VISIT")
        self.q_poll(self.qb_shadow)
        self.stamp()
        kf = qf = [V(196, 4), V(200, 4)]
        rest = self.q_gemm("B", self.conv_scalar(kf[1], 1, 1, self.cB, (None, None)))
        for f in rest: f()
        self.stamp()
        vp = [V(212, 4), V(216, 4)]
        exw = V(220)
        I("v_subrev_u32", exw, L_EXV - L_PH, self.vEXW)
        self.conv(kf[0], 0, 1, self.cB, (None, None))
        for t in (1, 0):
            self.conv(vp[t], t, 2, self.cB, ("r", "e"))
            I("ds_write_b128", exw, vp[t], mods=f"offset:{16384 + 1024 * t}")
        self.fine(3, 0)
        self.phi_region = 3
        ph = [[V(232, 4), V(236, 4)], [V(224, 4), V(228, 4)]]
        self.phi(kf, ph, done=lambda t, s: I("ds_write_b128", exw, ph[t][s], mods=f"offset:{8192 * s + 1024 * t}"))
        self.phi_region = 0
        self.fine(3, 4)
        a.wait(lg=0)
        I("s_barrier")
        self.fine(3, 5)
        lo, hi, real, pr = V(184), V(185), V(186), V(187)
        sP = T[4]
        I("s_lshl_b32", sP, self.sW, 14)
        I("s_sub_u32", sP, self.sKVld, sP)
        I("s_add_u32", sP, sP, 3 * 16384)
        def probe(reg): I("buffer_load_dword", reg, self.vProbe, self.sWS, sP, mods="offen offset:12 sc1")
        P1 = self.opt.get("p1", 0)
        if P1 == 0: probe(pr)
        kacc = V(112, 8)
        def fa(k, oft): return V(128 + 4 * (k * 2 + oft), 4)
        def fb(k): return V(160 + 4 * k, 4)
        for k in range(4):
            for t in range(2):
                I("ds_read_b64_tr_b16", fb(k)[2 * t:2 * t + 2], self.vKB, mods=f"offset:{(2 * k + t) * 1024}")
            for oft in range(2):
                for t in range(2):
                    I("ds_read_b64_tr_b16", fa(k, oft)[2 * t:2 * t + 2], self.vKA, mods=f"offset:{(2 * k + t) * 1024 + 8 * oft}")
            if k:
                for oft in range(2):
                    self.mfma(kacc[4 * oft:4 * oft + 4], fa(k - 1, oft), fb(k - 1), 0 if k == 1 else kacc[4 * oft:4 * oft + 4])
        for oft in range(2):
            self.mfma(kacc[4 * oft:4 * oft + 4], fa(3, oft), fb(3), kacc[4 * oft:4 * oft + 4])
        self.fine(3, 6)
        if P1 == 1: probe(pr)
        def qw(ks, ft): return self.wf(2 * (ks % 3) + ft)
        for ft in range(2):
            for f in self.qw_read(qw(0, ft), ft, 0): f()
        kvp = V(120, 4)
        self.cvt(kvp, kacc)
        I("v_and_b32", kvp[3], "0xffff", kvp[3])
        I("v_or_b32", kvp[3], self.sTag, kvp[3])
        I("buffer_store_dwordx4", kvp, self.vL16, self.sWS, self.sKVst, mods="offen sc1")
        self.stamp()
        sO = [S(8 + k) for k in range(16)]
        sM = T[3]
        def gf(p): return A(4 * p, 4)
        def ready(reg):
            I("v_xor_b32", reg, self.sTag, reg)
            I("v_cmp_ge_u32", VCC, "0xffff", reg)
            I("v_lshrrev_b32", hi, 7, self.vL16)
            I("s_and_b32", sM, VCC_LO, "0xffff")
        def touch(r=(V(188), V(189), V(190))):
            for half in range(2):
                t = r[half]
                if half:
                    I("s_lshr_b32", T[0], sM, 8)
                    I("v_add_u32", r[2], 8192, self.vTA)
                    I("v_and_b32", r[2], "0x3fff", r[2])
                I("v_lshrrev_b32", t, hi, T[0] if half else sM)
                I("v_and_b32", t, 1, t)
                I("v_cmp_eq_u32", VCC, 1, t)
                I("v_mov_b32", t, OOB)
                I("v_cndmask_b32", t, t, r[2] if half else self.vTA, VCC)
                I("buffer_load_dword", self.vDummy, t, self.sWS, self.sKVld, mods="offen sc1", nodest=True)
        for ks in (1, 2):
            for ft in range(2):
                for f in self.qw_read(qw(ks, ft), ft, ks): f()
        rec = []
        keepI, I = I, (lambda *x, **k: rec.append((x, k)))
        I("v_add_u32", real, self.sKVld, self.vProbe)
        for p in range(16): I("v_readlane_b32", sO[p], real, p)
        n_early = len(rec)
        probe(lo)
        ready(pr)
        touch()
        I = keepI
        P2G = self.opt.get("p2g", 14)
        sr = [(0 if k < n_early else P2G, "v" if x[0][0] != "s" else "s", lambda x=x, kw=kw: keepI(*x, **kw)) for k, (x, kw) in enumerate(rec)]
        mf, sw = [], []
        for ks in range(14):
            for ft in range(2):
                for t in range(2):
                    mf.append((self.acc(t, ft), qw(ks, ft), self.xf(t, ks), 0 if ks == 0 else self.acc(t, ft)))
                if ks + 3 < 14: sw += [(len(mf) - 1, "v", f) for f in self.qw_read(qw(ks, ft), ft, ks + 3)]
        sd = [(P2G + 12 + 3 * k, kind, f) for k, (kind, f) in enumerate(self.pw_dma(self.sWOB, (0, 1)))]
        for f in self.sched(mf, [sw, sr, sd]): f()
        self.colsum_b_q2()
        NG = self.opt.get("ng", 6)
        def gload(p, **k): I("buffer_load_dwordx4", gf(p), self.vL16, self.sWS, sO[p], mods="offen sc1", **k)
        def mid(first):
            skip, retry = self.lab("gmid"), self.lab("gretry")
            if not first:
                I("s_cmp_eq_u32", sM, "0xffff")
                I("s_cbranch_scc1", skip)
                a.raw("    s_waitcnt vmcnt(0)")
            ready(lo)
            I("s_cmp_lg_u32", sM, "0xffff")
            I("s_cbranch_scc1", retry if first else skip)
            for p in range(self.opt.get("ng", 6)): gload(p, untracked=True)
            a.label(skip)
            if first:
                def again():
                    self.a.label(retry)
                    probe(lo)
                    self.I("s_branch", skip)
                self.tail.append(again)
        mid(True)
        for t in (1, 0): self.conv(qf[t], t, 0, self.cB, (None, None))
        NG1, NG = NG, NG + self.opt.get("ng2", 6)
        def extra_loads():
            skip = self.lab("gx")
            I("s_cmp_lg_u32", sM, "0xffff")
            I("s_cbranch_scc1", skip)
            for p in range(NG1, NG): gload(p, untracked=True)
            a.label(skip)
        GM, GM2 = self.opt.get("gm", 17), self.opt.get("gm2", 28)
        self.phi(qf, ph, extra=[lambda: None] * GM + [lambda: mid(False)] + [lambda: None] * (GM2 - GM - 1) + [extra_loads])
        self.stamp()
        red = V(176, 8)
        tg = [V(112 + k) for k in range(16)]
        chk, go, slow = self.lab("gchk"), self.lab("ggo"), self.lab("gslow")
        I("s_mov_b32", T[2], 0)
        I("s_cmp_lg_u32", sM, "0xffff")
        I("s_cbranch_scc1", slow)
        a.label(go)
        a.vm = [(None, set(gf(p).regs())) for p in range(NG)]
        self.it_b = T[2]
        self.b_to_a(range(7))
        I("s_mov_b32", T[2], 9)
        I("v_add_u32", exw, L_KVX - L_EXK, self.vKrd)
        I("v_add_u32", V(221), L_KVX, self.vL16)
        mf, sc, sg = [], [], []
        for p in range(16):
            mf.append((red[0:4], self.aSel[2:6], gf(p), 0 if p == 0 else red[0:4]))
            mf.append((red[4:8], self.aSel[0:4], gf(p), 0 if p == 0 else red[4:8]))
            if p + NG < 16: sg.append((2 * p, "v", lambda p=p: gload(p + NG)))
            sc.append((2 * p, "v", lambda p=p: I("v_accvgpr_read_b32", tg[p], gf(p)[3])))
            if p == 1:
                sc.append((2 * p, "v", lambda: I("v_min_u32", lo, tg[0], tg[1])))
                sc.append((2 * p, "v", lambda: I("v_max_u32", hi, tg[0], tg[1])))
            elif p & 1:
                sc.append((2 * p, "v", lambda p=p: I("v_min3_u32", lo, lo, tg[p - 1], tg[p])))
                sc.append((2 * p, "v", lambda p=p: I("v_max3_u32", hi, hi, tg[p - 1], tg[p])))
        rest = self.sched(mf, [sg, sc])
        for f in rest: f()
        I("v_xor_b32", lo, self.sTag, lo)
        I("v_xor_b32", hi, self.sTag, hi)
        I("v_or_b32", lo, lo, hi)
        I("v_cmp_lt_u32", VCC, "0xffff", lo)
        I("s_cbranch_vccnz", slow + "r")

        def tail():
            b = self.a
            b.label(slow)
            probe(lo)
            touch()
            b.I("s_sub_u32", self.sBudget, self.sBudget, 1)
            b.I("s_cbranch_scc1", "L_end")
            b.label(chk)
            ready(lo)
            b.I("s_cmp_lg_u32", sM, "0xffff")
            b.I("s_cbranch_scc1", slow)
            for p in range(NG): gload(p)
            b.I("s_branch", go)
            b.label(slow + "r")
            b.forget_counters()
            probe(lo)
            b.I("s_sub_u32", self.sBudget, self.sBudget, 1)
            b.I("s_cbranch_scc1", "L_end")
            b.wait(vm=0)
            b.I("s_branch", chk)
        self.tail.append(tail)
        self.stamp()
        kvs = V(112, 4)
        self.cvt(kvs, red)
        I("ds_write_b128", exw, kvs)
        a.wait(lg=0)
        I("s_barrier")
        kvf = [[A(0, 4), A(4, 4)], [A(8, 4), A(12, 4)]]
        zf = [A(16, 4), A(20, 4)]
        for s in range(2):
            I("ds_read_b128", zf[s], self.vZ, mods=f"offset:{2048 * s}")
            for dt in range(2):
                I("ds_read_b128", kvf[s][dt], V(221), mods=f"offset:{(2 * s + dt) * 1024}")
        o = [V(144, 8), V(152, 8)]
        dn = [V(160, 4), V(164, 4)]
        mf = []
        for s in range(2):
            for t in range(2): mf.append((dn[t], zf[s], ph[t][s], 0 if s == 0 else dn[t]))
            for t in range(2):
                for dt in range(2):
                    mf.append((o[t][4 * dt:4 * dt + 4], kvf[s][dt], ph[t][s], 0 if s == 0 else o[t][4 * dt:4 * dt + 4]))
        self.sched(mf, [])
        I("s_mov_b32", self.sPhase, 0)
        I("s_mov_b64", self.sPWc[0:2], self.sWOB[0:2])
        I("s_add_u32", self.sIt, self.sIt, 1)
        I("s_add_u32", self.sKVst, self.sKVst, 0x100000)
        I("s_add_u32", self.sKVld, self.sKVld, 0x100000)
        I("s_add_u32", self.sHX, self.sHX, 0x40000)
        for t in range(2): I("v_add_f32", dn[t][0], f32(1e-6), dn[t][0])
        if self.opt.get("wb"):
            skipw = self.lab("nowb")
            I("s_cmp_eq_u32", self.sIt, 2)
            I("s_cselect_b32", T[0], self.sC, 0)
            I("s_cmp_lg_u32", T[0], 7)
            I("s_cbranch_scc1", skipw)
            I("buffer_wbl2", mods="sc1", untracked=True)
            a.label(skipw)
        self.it_b = 1
        self.o_finish(o, dn, [V(116, 4), V(120, 4)], lambda: self.b_to_a(range(7, 14)), None)
        a.flush()
        I("s_branch", "L_p")

    def final(self):
        a, I = self.a, self.I
        T = self.sT
        a.label("L_final")
        a.raw("@VISIT")
        a.forget_counters()
        xo = V(112, 8)
        for n in range(4):
            self.cvt(xo[2 * n:2 * n + 2], self.vR[4 * n:4 * n + 4])
            I("ds_write_b64", V(132 + n), xo[2 * n:2 * n + 2])
        a.wait(lg=0)
        for b in range(2): I("ds_read_b128", V(124 + 4 * b, 4), V(120), mods=f"offset:{1024 * b}")
        for b in range(2): I("buffer_store_dwordx4", V(124 + 4 * b, 4), self.vX0d, self.sOUT, T[2] if b else self.sX0o, mods="offen" + ("", " sc1", " nt", " sc0 sc1")[self.opt.get("outfl", 0)])
        a.label("L_fin2")
        self.stamp()
        if self.opt.get("stamps"):
            I("s_mov_b32", T[7], 63)
            self.stamp(real=True)
            I("s_lshl_b32", T[0], S(2), 2)
            I("s_add_u32", T[0], T[0], self.sW)
            I("s_lshl_b32", T[0], T[0], 8)
            I("s_add_u32", T[0], T[0], WS_STAMP)
            I("v_lshrrev_b32", V(120), 2, self.vL16)
            if self.opt.get("fine") == 5:
                for k in range(7):
                    I("v_readlane_b32", T[1], V(240), k)
                    I("v_writelane_b32", self.vStamp, T[1], 40 + k)
                I("v_readlane_b32", T[1], V(240), 63)
                I("v_writelane_b32", self.vStamp, T[1], 62)
                I("v_readlane_b32", T[1], self.vStamp, 2)
                I("v_writelane_b32", self.vStamp, T[1], 47)
            I("buffer_store_dword", self.vStamp, V(120), self.sWS, T[0], mods="offen")
        I("s_or_b32", T[0], S(2), self.sW)
        I("s_cmp_lg_u32", T[0], 0)
        I("s_cbranch_scc1", "L_end")
        if self.opt.get("dbg"):
            I("s_load_dwordx2", S(8, 2), S(0, 2), 64)
            a.wait(lg=0)
            self.srd(S(12, 4), S(8, 2), 256)
            I("v_lshrrev_b32", V(120), 2, self.vL16)
            I("v_readlane_b32", T[0], self.vStamp, 0)
            I("v_readlane_b32", T[1], self.vStamp, 62)
            I("v_readlane_b32", T[2], self.vStamp, 63)
            I("s_sub_u32", T[1], T[2], T[1])
            I("v_subrev_u32", V(121), T[0], self.vStamp)
            I("v_writelane_b32", V(121), T[1], 0)
            I("v_readlane_b32", T[0], V(121), 32)
            I("v_writelane_b32", V(121), T[0], 15)
            I("buffer_store_dword", V(121), V(120), S(12, 4), 0, mods="offen")
        if self.opt.get("leak"):
            skip = self.lab("noleak")
            I("v_readlane_b32", T[1], self.vStamp, 62)
            I("v_readlane_b32", T[2], self.vStamp, 63)
            I("v_readlane_b32", T[3], self.vStamp, self.opt.get("leakidx", 0))
            I("v_readlane_b32", T[4], self.vStamp, 0)
            I("s_sub_u32", T[1], T[2], T[1])
            I("s_sub_u32", T[3], T[3], T[4])
            I("s_cmp_lt_u32", T[3] if self.opt.get("leakidx") else T[1], self.opt["leak"])
            I("s_cbranch_scc1", skip)
            I("s_cmp_eq_u32", self.sMode, 0)
            I("s_cbranch_scc1", skip)
            I("v_cvt_f32_u32", V(121), T[3] if self.opt.get("leakidx") else T[1])
            I("v_lshrrev_b32", V(121), 16, V(121))
            a.wait(vm=0)
            I("s_mov_b64", EXEC, 1)
            I("buffer_store_short", V(121), OFF, self.sOUT, 0)
            a.label(skip)
        I("s_add_u32", T[0], self.sNonce, "0x10100")
        I("v_mov_b32", V(120), T[0])
        I("s_mov_b64", EXEC, 1)
        I("buffer_store_dword", V(120), OFF, self.sWS, 0)
        I("s_endpgm")

    def place_visits(self, head, lines):
        import subprocess, re
        if not self.opt.get("visit", 0):
            return "\n".join(l for l in lines if l != "@VISIT") + "\n"
        lines = list(lines)
        def render(ls):
            n = sum(l == "@VISIT" for l in ls)
            out, k = [], 0
            for l in ls:
                if l == "@VISIT":
                    out += [f"L_visit_{k}:", "    s_cbranch_execz " + (f"L_visit_{k + 1}" if k + 1 < n else "L_visit_ret")]
                    k += 1
                else: out.append(l)
            return "\n".join(out) + "\n"
        start = lines.index("L_qa1:")
        lines.insert(start + 1, "@VISIT")
        page = 1
        while True:
            open("visit.s", "w").write(head + render(lines))
            subprocess.run(["clang", "-x", "assembler", "-target", "amdgcn-amd-amdhsa", "-mcpu=gfx950", "-c", "visit.s", "-o", "visit.o"], check=True)
            dis = subprocess.run(["llvm-objdump", "-d", "--mcpu=gfx950", "visit.o"], capture_output=True, text=True).stdout
            base = int(re.search(r"([0-9a-f]+) <L_(?:qa1|visit_0)>:", dis).group(1), 16)
            addrs = [int(m.group(1), 16) for m in re.finditer(r"// ([0-9A-F]+):", dis)]
            addrs = [x for x in addrs if x >= base]
            idx = [i for i in range(start, len(lines)) if lines[i] == "@VISIT" or (lines[i].startswith("    ") and not lines[i].startswith("    ;"))]
            assert len(addrs) == len(idx), (len(addrs), len(idx))
            hit = [k for k, x in enumerate(addrs) if x >= base + 4096 * page]
            if not hit: break
            k = hit[0]
            if lines[idx[k]] != "@VISIT": lines.insert(idx[k], "@VISIT")
            page += 1
        return render(lines)

    def build(self):
        a = self.a
        self.prologue()
        self.qa_stage(first=True)
        self.p_stage()
        self.qa_stage()
        self.qb_stage()
        self.final()
        done = 0
        while done < len(self.tail):
            a.forget_counters()
            a.pos += 100
            self.tail[done]()
            done += 1
        a.label("L_end")
        a.I("s_endpgm")
        head = open("cdna_kernels/" + NAME[:-7] + ".s.ref").read().split("; Override launch")[0]
        out = head + f"; @launch grid=(256,1,1) block=(256,1,1) lds={LDS_BYTES}\n"
        out += f'.amdgcn_target "amdgcn-amd-amdhsa--gfx950"\n.text\n.globl {NAME}\n.p2align 8\n.type {NAME},@function\n{NAME}:\n'
        out += self.place_visits(out, a.lines)
        out += f""".section .rodata,"a"
.p2align 6
.amdhsa_kernel {NAME}
  .amdhsa_next_free_vgpr 512
  .amdhsa_next_free_sgpr 102
  .amdhsa_accum_offset 256
  .amdhsa_group_segment_fixed_size 0
  .amdhsa_kernarg_size 80
  .amdhsa_user_sgpr_count 2
  .amdhsa_user_sgpr_kernarg_segment_ptr 1
  .amdhsa_system_sgpr_workgroup_id_x 1
.end_amdhsa_kernel
"""
        return out


if __name__ == "__main__":
    opt = {}
    path = sys.argv[1]
    for kv in sys.argv[2:]:
        k, v = kv.split("=")
        opt[k] = int(v)
    g = Gen(opt)
    open(path, "w").write(g.build())
    import subprocess
    r = subprocess.run(["clang", "-x", "assembler", "-target", "amdgcn-amd-amdhsa", "-mcpu=gfx950", "-c", path, "-o", "gen_check.o"], capture_output=True, text=True)
    if r.returncode: print(r.stderr[:3000]); sys.exit(1)
    sz = subprocess.run(["llvm-readelf", "-S", "gen_check.o"], capture_output=True, text=True).stdout
    print("text bytes", [int(l.split()[6], 16) for l in sz.splitlines() if " .text" in l],
          "instructions", sum(g.a.count.values()), "nop states", g.a.nops)
```

```python
import sys
import math
import struct
from emit import Asm, V, A, S, VCC, EXEC, M0, OFF, Special

VCC_LO = Special("vcc_lo", [("s", "vcc")])

NAME = "interleave_layers__sliding_local_dilated__linear_kernel_hedgehog__prompt_kernel"


def f32(x):
    return "0x%08x" % struct.unpack("<I", struct.pack("<f", x))[0]


WS_E = 0x0
WS_FX = 0x1000
WS_FO = 0x5000
WS_SLOW = 0x8000
WS_FH = 0x10000
WS_HELLO = 0x11000
WS_FWF = 0x12000
WS_STAMP = 0xC0000
WS_X = 0x100000
WS_XS = 0x2C0000
WS_O = 0x300000
WS_KV = 0x500000
WS_HX = 0x700000
WS_FW = 0x800000
FW_T = 16 * 86016
WS_SIZE = 0xB00000
OOB = 0x7FFF0000

MAT = 28672
L_PW = 86016
L_SP = 151552
L_KVX = L_SP
L_HX = L_SP
L_WPHI = L_SP + 8192
L_CS = L_SP + 10240
L_EXK = L_PW + 49152
L_EXV = L_EXK + 5120
L_PH = L_PW + 40960
LDS_BYTES = 163840

LOG2E = math.log2(math.e)


class Neg:
    def __init__(self, r): self.r = r
    def __str__(self): return "-" + str(self.r)
    def regs(self): return self.r.regs()


class Gen:
    def __init__(self, opt):
        self.opt = opt
        self.a = Asm()
        self.tail = []
        self.uid = 0

    def lab(self, base):
        self.uid += 1
        return f"L_{base}_{self.uid}"

    sX0, sWA, sWOA, sWB, sWOB, sOUT, sWS, sWP = (S(24 + 4 * i, 4) for i in range(8))
    (sGrp, sH, sW, sC, sRh, sBase, sTag, sMode, sIt, sPhase, sL, sBudget, sXq, sXSq, sOq, sXp, sXSp, sOp, sFXp, sFOq,
     sFOp, sHX, sHaloProd, sFHp, sKVst, sKVld, sQWo, sFirst, sPend, sX0o, sNonce, sXcc) = (S(56 + i) for i in range(32))
    sPWc = sX0
    sT = [S(88 + i) for i in range(8)]
    sT2 = S(96, 2)
    sStamp = S(98, 2)
    sFW, sQWl, sPWl, sPWo = S(4), S(5), S(6), S(7)

    vL16, vQ0, vQ1, vQv0, vQv1, vQh = (V(1 + i) for i in range(6))
    vP = [V(7 + i) for i in range(4)]
    vQWd, vX0d, vExpHC, vPollQ, vPollM, vPollP, vEXW, vEXRa, vHW, vM3, vStat = (V(11 + i) for i in range(11))
    vE0 = V(22, 2)
    vHalo, vHaloS, vStatSt, vZ, vExpHM, vExpC, vExpM, vMH = (V(24 + i) for i in range(8))
    vCH = V(32, 4)
    bCur, bPrev, bPrev0 = V(36, 4), V(40, 4), V(44, 4)
    vR = V(48, 16)
    cA, cB = V(64, 24), V(88, 24)
    vAv, vTA, vProbe, vHp, vQS = V(240), V(241), V(242), V(243), V(244)
    vDummy = V(245)
    vPWd = [V(246 + i) for i in range(4)]
    vKA, vKB, vPollH, vKrd, vStamp = (V(250 + i) for i in range(5))
    vT = V(255)

    aOnes, aSel, aWphi = A(232, 4), A(236, 6), A(242, 8)

    def acc(self, T, ft): return V(112 + (T * 6 + ft) * 4, 4)
    hacc = V(160, 4)
    def straw(self, T): return V(164 + 4 * T, 4)
    def st(self, T): return V(176 + 4 * T, 4)
    def xf(self, T, ks): return A((ks * 2 + T) * 4, 4)
    def hx(self, ks): return A(56 + 4 * ks, 4) if ks < 12 else self.wf(ks - 6)
    def stash(self, i): return A(112 + 4 * i, 4) if i < 14 else A(200 + 4 * (i - 14), 4)
    def wf(self, f): return A(168 + 4 * f, 4)

    def I(self, *x, **k): self.a.I(*x, **k)

    def stamp(self, real=False):
        if not self.opt.get("stamps") or (self.opt.get("stamps") == 2 and not real):
            return
        a = self.a
        a.I("s_memrealtime" if real or self.opt.get("real") else "s_memtime", self.sStamp)
        a.I("s_mov_b32", M0, self.sT[7])
        a.wait(lg=0)
        a.I("v_writelane_b32", self.vStamp, self.sStamp[0], M0)
        a.I("s_add_u32", self.sT[7], self.sT[7], 1)
        if getattr(self, "fine_pending", False):
            self.fine_pending = False
            for i in range(7): a.I("v_writelane_b32", self.vStamp, S(8 + 2 * i), 40 + i)
            a.I("v_writelane_b32", self.vStamp, self.sStamp[0], 47)

    def fine(self, region, i):
        if self.opt.get("fine") == region and region == 5:
            self.a.raw("    s_memtime s[100:101]")
            self.a.raw("    s_waitcnt lgkmcnt(0)")
            self.a.raw(f"    v_writelane_b32 v240, s100, {i}")
            self.a.pos += 3
            return
        if self.opt.get("fine") == region:
            self.a.raw(f"    s_memtime s[{8 + 2 * i}:{9 + 2 * i}]")
            self.a.pos += 1
            self.fine_pending = True

    def srd(self, dst, src, nbytes):
        self.I("s_mov_b32", dst[0], src[0])
        self.I("s_and_b32", dst[1], src[1], "0xffff")
        self.I("s_mov_b32", dst[2], nbytes)
        self.I("s_mov_b32", dst[3], "0x20000")

    def mfma(self, d, x, y, c):
        self.I("v_mfma_f32_16x16x32_bf16", d, x, y, c)

    def pk(self, op, d, x, y, z=None, bx=None, by=None, bz=None):
        srcs = [(x, bx), (y, by)] + ([(z, bz)] if z is not None else [])
        lo = [0 if b is None else b for _, b in srcs]
        hi = [1 if b is None else b for _, b in srcs]
        mods = []
        if any(lo): mods.append("op_sel:[%s]" % ",".join(map(str, lo)))
        if not all(hi): mods.append("op_sel_hi:[%s]" % ",".join(map(str, hi)))
        self.I(op, d, *[s for s, _ in srcs], mods=" ".join(mods))

    def allreduce_pairs(self, chains):
        for step in range(7):
            for op, x, y in chains:
                if step in (0, 6): self.I("v_permlane32_swap_b32", x, y)
                elif step in (1, 4): self.I(op, x, x, y)
                elif step in (2, 5): self.I("v_mov_b32", y, x)
                else: self.I("v_permlane16_swap_b32", x, y)

    def budget_branch(self, loop):
        if self.opt.get("psleep"): self.I("s_sleep", self.opt["psleep"])
        self.I("s_sub_u32", self.sBudget, self.sBudget, 1)
        self.I("s_cbranch_scc1", "L_end")
        self.I("s_branch", loop)

    def flag_value(self, dst):
        self.I("s_lshl_b32", dst, self.sL, 4)
        self.I("s_or_b32", dst, dst, self.sBase)

    def publish(self, soff):
        a = self.a
        slow, done = self.lab("pubslow"), self.lab("pubdone")
        a.I("s_cmp_eq_u32", self.sMode, 0)
        a.I("s_cbranch_scc1", slow)
        a.I("s_mov_b64", EXEC, 1)
        a.I("buffer_store_dword", self.vT, OFF, self.sWS, soff)
        a.label(done)
        a.I("s_mov_b64", EXEC, -1)

        def tail():
            b = self.a
            b.label(slow)
            b.wait(vm=0)
            b.I("buffer_wbl2", mods="sc1")
            b.wait(vm=0)
            b.I("s_mov_b64", EXEC, 1)
            b.I("buffer_store_dword", self.vT, OFF, self.sWS, soff, mods="sc1")
            b.I("s_branch", done)
        self.tail.append(tail)

    def sched(self, mfmas, streams):
        a = self.a
        streams = [list(s) for s in streams]
        for i, m in enumerate(mfmas):
            self.mfma(*m)
            scalar_free = True
            if i + 1 < len(mfmas):
                n = mfmas[i + 1]
                if a.prewait(n[1], n[2]): scalar_free = False
            if scalar_free:
                for s in streams:
                    if s and s[0][0] <= i and s[0][1] == "s":
                        s.pop(0)[2]()
                        break
            slots = 2
            progress = True
            while slots > 0 and progress:
                progress = False
                for s in streams:
                    if not s or s[0][0] > i: continue
                    cost = 2 if s[0][1] == "w" else 1
                    if cost <= slots:
                        s.pop(0)[2]()
                        slots -= cost
                        progress = True
                        break
        return [it[2] for s in streams for it in s]

    def fw_piece(self, n):
        off = (n // 7) * MAT + (n % 7) * 1024
        self.I("s_add_u32", M0, self.sQWl, off, m0="fw")
        self.I("s_add_u32", self.sT[6], self.sFW, off)
        self.I("buffer_load_dwordx4", self.vL16, self.sWS, self.sT[6], mods="offen lds", untracked=True, m0="fw")

    def piece(self, n):
        n = (n + 7) % 21
        return f"offset:{(n // 7) * MAT + (n % 7) * 1024}"

    def unpark(self, pieces):
        for n in pieces: self.I("ds_write_b128", self.vQS, self.stash(n), mods=self.piece(n))

    def qb_shadow(self):
        a, I = self.a, self.I
        second, done = self.lab("ab2"), self.lab("abdone")
        I("s_cmp_lg_u32", self.sIt, 0)
        I("s_cbranch_scc1", second)
        for n in self.fw_left: self.fw_piece(n)
        a.raw(f"    s_waitcnt vmcnt({1 + len(self.fw_left)})")
        a.pos += 1
        I("s_barrier")
        I("s_lshl_b32", self.sT[0], self.sW, 6)
        self.colsum_part(self.vQh, list(range(14)), 128)
        a.wait_lg_all()
        a.flush()
        I("s_branch", done)
        a.label(second)
        self.unpark(range(7))
        a.label(done)

    def b_to_a(self, pieces):
        a, I = self.a, self.I
        done = self.lab("badone")
        if self.it_b is not None:
            I("s_cmp_lg_u32", self.sIt, self.it_b)
            I("s_cbranch_scc1", done)
        for n in pieces:
            I("ds_read_b128", self.stash(n), self.vQS, mods=self.piece(n))
            I("ds_write_b128", self.vQS, self.stash(n + 1), mods=self.piece(n))
        a.label(done)

    def pw_dma(self, srd, which):
        out = []
        for i in which:
            out.append(("s", lambda i=i: self.I("s_add_u32", M0, self.sPWl, i * 16384, m0="pw")))
            out.append(("s", lambda i=i: self.I("s_add_u32", self.sT[5], self.sPWo, 4 * 28 * i * 896)))
            for b in range(4):
                out.append(("v", lambda b=b: self.I("buffer_load_dwordx4", self.vPWd[b], srd, self.sT[5], mods=f"offen offset:{b * 1024} lds", m0="pw")))
        return out

    def raw_block(self, ks):
        for half in range(2):
            self.I("s_add_u32", M0, self.sT[4], ks * 2048 + half * 1024)
            self.I("s_add_u32", self.sT[6], self.sQWo, (32 * ks + 16 * half) * 2688)
            self.I("buffer_load_dwordx4", self.vQWd, self.sWA, self.sT[6], mods="offen lds", tag=f"raw{ks}")

    def tr_pair(self, dst, base, off):
        return [lambda: self.I("ds_read_b64_tr_b16", dst[0:2], base, mods=f"offset:{off}"),
                lambda: self.I("ds_read_b64_tr_b16", dst[2:4], base, mods=f"offset:{off + 1024}")]

    def qa_read(self, dst, ft, ks):
        off = (ft >> 1) * MAT + ks * 2048 + (ft & 1) * 1024
        if ft < 4: return [lambda: self.I("ds_read_b128", dst, self.vL16, mods=f"offset:{off}")]
        return [lambda: self.I("ds_read_b128", dst, self.vAv, mods=f"offset:{off - 2 * MAT}")]

    def bg(self, n=1):
        if self.bg_next >= self.bg_max: return
        skip = self.lab("bg")
        self.I("s_cmp_eq_u32", self.sW, 3)
        self.I("s_cbranch_scc1", skip)
        for _ in range(n):
            if self.bg_next < self.bg_max:
                self.raw_block(self.bg_next)
                self.bg_next += 1
        self.a.label(skip)

    def prologue(self):
        a, I = self.a, self.I
        T = self.sT
        self.bg_next, self.bg_max = 0, self.opt.get("n1", 3)
        I("s_load_dwordx8", S(4, 8), S(0, 2), 0)
        I("s_getpc_b64", S(22, 2))
        a.label("L_pc")
        if self.opt.get("pf0", 47):
            I("v_min_u32", V(113), self.opt.get("pf0", 47), V(0))
            I("v_lshlrev_b32", V(113), 7, V(113))
            I("global_load_dword", self.vDummy, V(113), S(22, 2), mods="offset:128", untracked=True)
        I("s_load_dwordx8", S(12, 8), S(0, 2), 32)
        I("s_load_dwordx2", S(20, 2), S(0, 2), 72)
        if self.opt.get("stamps"):
            I("s_memrealtime", S(100, 2))
            I("s_memtime", self.sStamp)
        I("s_cmp_ge_u32", S(2), 256)
        I("s_cbranch_scc1", "L_end")
        I("v_lshrrev_b32", V(114), 6, V(0))
        I("s_lshr_b32", T[1], S(2), 3)
        I("v_and_b32", V(0), 63, V(0))
        I("v_readfirstlane_b32", self.sW, V(114))
        I("s_mul_i32", T[0], T[1], 1280)
        I("v_min_u32", V(112), 9, V(0))
        I("v_lshl_add_u32", V(112), V(112), 7, T[0])
        I("v_min_u32", V(112), "L_end-L_pc", V(112))
        I("global_load_dword", self.vDummy, V(112), S(22, 2), untracked=True)
        I("s_and_b32", T[0], S(2), 7)
        I("s_and_b32", self.sH, T[1], 15)
        I("s_lshr_b32", T[1], T[1], 4)
        I("s_lshl_b32", T[0], T[0], 1)
        I("s_add_u32", self.sGrp, T[0], T[1])
        I("s_and_b32", self.sC, self.sH, 7)
        I("s_lshr_b32", self.sRh, self.sH, 3)
        lane, j, g, t0, t1, t2 = V(0), V(115), V(116), V(117), V(118), V(119)
        I("s_lshl_b32", T[0], self.sGrp, 3)
        I("s_lshl_b32", T[1], self.sRh, 2)
        I("s_add_u32", T[0], T[0], T[1])
        I("s_add_u32", T[0], T[0], self.sW)
        I("s_and_b32", T[1], T[0], 63)
        I("s_mul_i32", T[1], T[1], 16 * 1792)
        I("s_lshr_b32", T[2], self.sGrp, 3)
        I("s_mul_i32", T[2], T[2], 896)
        I("s_add_u32", T[1], T[1], T[2])
        I("s_lshl_b32", T[2], self.sC, 7)
        I("s_add_u32", self.sX0o, T[1], T[2])
        I("v_lshrrev_b32", t0, 3, lane)
        I("v_mul_u32_u24", t0, 1792, t0)
        I("v_and_b32", t1, 7, lane)
        I("v_lshl_add_u32", self.vX0d, t1, 4, t0)
        I("v_min_u32", t0, 36, lane)
        I("v_lshlrev_b32", V(121), 7, t0)
        I("s_mov_b32", self.sX0[2], 1835008)
        I("s_mov_b32", self.sX0[3], "0x20000")
        I("s_mov_b32", self.sWA[2], 1204224)
        I("s_mov_b32", self.sWA[3], "0x20000")
        I("s_mul_i32", T[1], S(2), 37 * 128)
        I("s_min_u32", T[1], T[1], 1204224 - 37 * 128)
        I("s_sub_u32", T[2], self.sX0o, 3 * 16 * 1792)
        a.wait(lg=0)
        if self.opt.get("fine") == 5: a.raw("    v_writelane_b32 v240, s100, 63")
        self.fine(5, 0)
        for r, p in ((self.sX0, 4), (self.sWA, 6)):
            I("s_mov_b32", r[0], S(p))
            I("s_and_b32", r[1], S(p + 1), "0xffff")
        no3, nox = self.lab("not3"), self.lab("nox0")
        I("s_cmp_lg_u32", self.sW, 3)
        I("s_cbranch_scc1", no3)
        I("s_cmp_eq_u32", self.sC, 7)
        I("s_cbranch_scc1", nox)
        for t in range(4):
            I("s_mov_b32", M0, L_SP + 2048 * t)
            I("s_add_u32", T[5], T[2], t * 16 * 1792)
            I("s_add_u32", T[6], T[2], t * 16 * 1792 + 8 * 1792 - 1024)
            I("buffer_load_dwordx4", self.vX0d, self.sX0, T[5], mods="offen lds")
            I("buffer_load_dwordx4", self.vX0d, self.sX0, T[6], mods="offen offset:1024 lds")
        a.label(nox)
        I("buffer_load_dword", self.vDummy, V(121), self.sWA, T[1], mods="offen", nodest=True)
        a.label(no3)
        I("v_and_b32", j, 15, lane)
        I("v_lshrrev_b32", g, 4, lane)
        I("v_lshlrev_b32", self.vL16, 4, lane)
        I("v_lshrrev_b32", t0, 2, lane)
        I("v_mul_u32_u24", t1, 2688, t0)
        I("v_lshrrev_b32", t0, 3, lane)
        I("v_and_b32", t0, 2, t0)
        I("v_and_b32", t2, 3, lane)
        I("v_xor_b32", t0, t0, t2)
        I("v_lshl_add_u32", self.vQWd, t0, 4, t1)
        I("s_mul_i32", self.sQWo, self.sH, 56)
        I("s_mul_i32", T[1], self.sW, 896)
        I("s_add_u32", self.sQWo, self.sQWo, T[1])
        I("s_mul_i32", T[4], self.sW, MAT)
        self.srd(self.sWS, S(20, 2), WS_SIZE)
        I("buffer_load_dword", V(120), OFF, self.sWS, 0, untracked=True)
        self.bg()
        for r, p, n in ((self.sWB, 12, 1204224), (self.sWP, 14, 25088), (self.sWOA, 8, 401408),
                        (self.sWOB, 16, 401408), (self.sOUT, 18, 1835008)):
            self.srd(r, S(p, 2), n)
        I("s_getreg_b32", self.sXcc, "hwreg(HW_REG_XCC_ID)")
        I("s_and_b32", self.sXcc, self.sXcc, 15)
        I("s_lshl_b32", T[1], self.sGrp, 3)
        I("s_lshl_b32", T[2], self.sW, 1)
        I("s_add_u32", T[1], T[1], T[2])
        I("s_mul_i32", self.sXq, T[1], 14336)
        I("s_add_u32", self.sXq, self.sXq, WS_X)
        I("s_lshl_b32", self.sXSq, T[1], 10)
        I("s_add_u32", self.sXSq, self.sXSq, WS_XS)
        I("s_lshl_b32", self.sOq, T[1], 14)
        I("s_lshl_b32", T[2], self.sH, 10)
        I("s_add_u32", self.sOq, self.sOq, T[2])
        I("s_add_u32", self.sOq, self.sOq, WS_O)
        I("s_lshl_b32", T[3], T[1], 7)
        I("s_add_u32", T[3], T[3], WS_FX)
        I("s_mul_i32", self.sXp, T[0], 14336)
        I("s_lshl_b32", T[2], self.sC, 11)
        I("s_add_u32", self.sXp, self.sXp, T[2])
        I("s_add_u32", self.sXp, self.sXp, WS_X)
        I("s_lshl_b32", self.sXSp, T[0], 10)
        I("s_lshl_b32", T[2], self.sC, 7)
        I("s_add_u32", self.sXSp, self.sXSp, T[2])
        I("s_add_u32", self.sXSp, self.sXSp, WS_XS)
        I("s_lshl_b32", self.sOp, T[0], 14)
        I("s_add_u32", self.sOp, self.sOp, WS_O)
        I("s_lshl_b32", self.sFXp, T[0], 7)
        I("s_lshl_b32", T[2], self.sC, 2)
        I("s_add_u32", self.sFXp, self.sFXp, T[2])
        I("s_add_u32", self.sFXp, self.sFXp, WS_FX)
        I("s_lshl_b32", T[1], self.sGrp, 2)
        I("s_add_u32", T[2], T[1], self.sW)
        I("s_lshl_b32", self.sFOq, T[2], 7)
        I("s_lshl_b32", T[2], self.sH, 2)
        I("s_add_u32", self.sFOq, self.sFOq, T[2])
        I("s_add_u32", self.sFOq, self.sFOq, WS_FO)
        I("s_lshr_b32", T[2], T[0], 1)
        I("s_lshl_b32", self.sFOp, T[2], 7)
        I("s_add_u32", self.sFOp, self.sFOp, WS_FO)
        I("s_lshl_b32", self.sHX, self.sGrp, 14)
        I("s_add_u32", self.sHX, self.sHX, WS_HX)
        I("s_lshl_b32", self.sFHp, self.sGrp, 7)
        I("s_add_u32", self.sFHp, self.sFHp, WS_FH)
        I("s_and_b32", T[1], self.sGrp, 7)
        I("s_cmp_eq_u32", T[1], 0)
        I("s_cselect_b32", self.sFirst, 1, 0)
        I("s_cmp_lg_u32", T[1], 7)
        I("s_cselect_b32", T[1], 1, 0)
        I("s_and_b32", T[2], T[0], 7)
        I("s_cmp_eq_u32", T[2], 7)
        I("s_cselect_b32", self.sHaloProd, T[1], 0)
        I("s_lshl_b32", T[1], self.sH, 2)
        I("s_add_u32", T[1], T[1], self.sW)
        I("s_lshl_b32", self.sKVld, T[1], 14)
        I("s_add_u32", self.sKVld, self.sKVld, WS_KV)
        I("s_lshl_b32", T[1], self.sGrp, 10)
        I("s_add_u32", self.sKVst, self.sKVld, T[1])
        I("s_mov_b32", self.sMode, 1)
        I("s_mov_b32", self.sIt, 0)
        I("s_mov_b32", self.sPhase, 0)
        I("s_mov_b32", self.sL, 1)
        I("s_mov_b32", self.sPend, 0)
        I("s_mov_b32", self.sBudget, 400000)
        I("s_mov_b32", S(3), 0)
        self.bg()
        I("v_min_u32", t0, 12, lane)
        I("v_lshlrev_b32", V(122), 7, t0)
        I("v_lshlrev_b32", self.vStatSt, 3, j)
        I("v_and_b32", t0, 7, j)
        I("v_lshlrev_b32", t0, 4, t0)
        I("v_lshl_add_u32", self.vHp, g, 7, t0)
        I("v_lshlrev_b32", t0, 7, j)
        I("v_lshl_add_u32", t0, g, 3, t0)
        I("v_add_u32", V(123), L_SP, t0)
        I("s_mul_i32", self.sQWl, self.sW, 7168)
        I("s_mul_i32", self.sFW, self.sH, 86016)
        I("s_add_u32", self.sFW, self.sFW, self.sQWl)
        I("s_add_u32", self.sFW, self.sFW, WS_FW)
        I("s_lshl_b32", self.sPWl, self.sW, 12)
        I("s_add_u32", self.sPWl, self.sPWl, L_PW)
        I("s_mul_i32", self.sPWo, self.sW, 28 * 896)
        I("s_min_u32", T[1], self.sC, 6)
        I("s_lshl_b32", T[1], T[1], 7)
        I("s_add_u32", self.sPWo, self.sPWo, T[1])
        if self.opt.get("stamps"):
            I("s_mov_b32", T[7], 1)
            I("v_mov_b32", self.vStamp, 0)
            I("v_writelane_b32", self.vStamp, self.sStamp[0], 0)
            if self.opt.get("fine") != 5: I("v_writelane_b32", self.vStamp, S(100), 62)
        I("v_mov_b32", V(127), V(0))
        I("s_cmp_eq_u32", self.sW, 3)
        I("s_cbranch_scc1", "L_s0")
        a.label("L_setup")
        a.forget_counters()
        self.bg()
        self.fine(5, 1)

        r, cc = V(113), V(124)
        I("s_lshl_b32", T[1], self.sW, 11)
        I("v_add_u32", V(114), T[1], V(123))
        I("v_lshrrev_b32", r, 2, j)
        I("v_and_b32", cc, 3, j)
        I("v_lshl_add_u32", t0, g, 2, r)
        I("v_lshlrev_b32", t1, 3, cc)
        I("v_lshl_add_u32", t2, t0, 6, t1)
        I("v_and_b32", V(125), 1, g)
        I("v_lshl_add_u32", self.vQ0, V(125), 5, t2)
        I("v_xor_b32", self.vQ1, 32, self.vQ0)
        I("s_and_b32", T[1], self.sW, 1)
        I("s_lshr_b32", T[2], self.sW, 1)
        I("s_add_u32", T[2], T[2], 1)
        I("s_mul_i32", T[2], T[2], MAT)
        I("s_lshl_b32", T[5], T[1], 10)
        I("s_add_u32", T[2], T[2], T[5])
        I("v_add_u32", self.vQh, T[2], self.vL16)
        I("v_lshl_add_u32", t2, t0, 7, t1)
        I("v_add_u32", t2, L_PW, t2)
        I("v_lshrrev_b32", V(125), 1, t0)
        I("v_and_b32", V(125), 3, V(125))
        for n in range(4):
            I("v_xor_b32", V(126), n, V(125))
            I("v_lshl_add_u32", self.vP[n], V(126), 5, t2)
        self.bg()
        I("v_lshrrev_b32", V(125), 1, t0)
        I("v_xor_b32", V(125), V(125), cc)
        I("v_and_b32", V(125), 3, V(125))
        I("v_lshlrev_b32", V(125), 4, V(125))
        I("v_lshl_add_u32", V(126), t0, 6, V(125))
        I("s_lshl_b32", T[2], self.sW, 11)
        I("s_add_u32", T[5], T[2], L_EXV)
        I("v_add_u32", self.vEXRa, T[5], V(126))
        I("s_lshr_b32", T[5], self.sW, 1)
        I("s_lshl_b32", T[5], T[5], 13)
        I("s_add_u32", T[5], T[5], L_PH)
        I("v_add_u32", self.vKA, T[5], V(126))
        I("s_lshl_b32", T[5], T[1], 3)
        I("s_add_u32", T[5], T[5], L_PH + 16384)
        I("v_add_u32", self.vKB, T[5], V(126))
        I("v_lshrrev_b32", V(125), 1, j)
        I("v_xor_b32", V(125), V(125), g)
        I("v_and_b32", V(125), 3, V(125))
        I("v_lshlrev_b32", V(125), 4, V(125))
        I("v_lshl_add_u32", V(126), j, 6, V(125))
        I("v_add_u32", V(126), L_EXV, V(126))
        I("v_add_u32", self.vEXW, T[2], V(126))
        I("s_lshl_b32", T[5], self.sW, 10)
        I("v_add_u32", V(125), L_EXK, self.vL16)
        I("v_add_u32", self.vKrd, T[5], V(125))
        I("v_add_u32", self.vQS, self.sQWl, self.vL16)
        I("v_add_u32", self.vAv, 2 * MAT, self.vL16)
        I("s_cmp_lt_u32", self.sW, 2)
        I("s_cselect_b64", VCC, -1, 0)
        I("v_cndmask_b32", V(126), V(126), V(125), VCC)
        I("s_lshl_b32", T[5], T[1], 3)
        I("v_add_u32", self.vHW, T[5], V(126))
        self.bg()
        I("v_lshrrev_b32", t0, 3, lane)
        I("v_mul_u32_u24", t1, 896, t0)
        I("v_and_b32", t0, 6, t0)
        I("v_and_b32", t2, 7, lane)
        I("v_xor_b32", t0, t0, t2)
        I("v_lshl_add_u32", self.vPWd[0], t0, 4, t1)
        for b in range(1, 4):
            I("v_add_u32", self.vPWd[b], b * (8 * 896 - 1024), self.vPWd[0])
        I("v_mov_b32", t1, OOB)
        I("v_cmp_gt_u32", VCC, 32, lane)
        I("v_cndmask_b32", self.vPWd[3], t1, self.vPWd[3], VCC)
        I("v_cmp_gt_u32", VCC, 48, lane)
        I("v_cndmask_b32", self.vM3, 0, -1, VCC)
        I("v_cndmask_b32", self.vE0[0], 1.0, 0, VCC)
        I("v_mov_b32", self.vE0[1], 0)
        I("s_cmp_eq_u32", T[1], 1)
        I("s_cselect_b64", VCC, -1, 0)
        I("v_cndmask_b32", self.vMH, -1, self.vM3, VCC)
        I("v_lshl_add_u32", self.vStat, g, 7, self.vStatSt)
        I("s_cmp_eq_u32", self.sFirst, 1)
        I("s_cselect_b64", VCC, -1, 0)
        I("v_cndmask_b32", self.vHalo, self.vL16, t1, VCC)
        I("v_cndmask_b32", self.vHaloS, self.vStat, t1, VCC)
        I("s_or_b32", T[2], self.sGrp, 1)
        I("s_add_u32", T[2], T[2], 1)
        I("v_add_u32", t0, T[2], j)
        I("v_and_b32", t0, 15, t0)
        I("v_lshlrev_b32", self.vProbe, 10, t0)
        I("v_lshrrev_b32", t0, 3, lane)
        I("v_add_u32", t0, T[2], t0)
        I("v_and_b32", t0, 15, t0)
        I("v_lshlrev_b32", t0, 3, t0)
        I("v_and_b32", t2, 7, lane)
        I("v_add_lshl_u32", self.vTA, t0, t2, 7)
        self.bg()
        I("v_lshlrev_b32", self.vZ, 8, g)
        I("v_add_u32", self.vZ, L_KVX + 1024 + 12 * 16, self.vZ)
        I("v_lshlrev_b32", self.vPollP, 2, j)
        I("v_and_b32", t0, 7, lane)
        I("v_min_u32", t0, 6, t0)
        I("v_lshlrev_b32", V(127), 2, t0)
        I("v_min_u32", t0, 13, j)
        I("v_lshlrev_b32", t0, 2, t0)
        I("s_lshl_b32", T[5], self.sH, 7)
        I("s_add_u32", T[5], T[5], WS_FWF)
        I("v_add_u32", t0, T[5], t0)
        I("v_add_u32", t2, self.sFHp, V(127))
        I("s_cmp_eq_u32", self.sFirst, 1)
        I("s_cselect_b32", T[5], 0, 16)
        I("v_cmp_gt_u32", VCC, T[5], lane)
        I("v_cndmask_b32", self.vPollH, t0, t2, VCC)
        I("v_cndmask_b32", self.vExpHM, 0, 16, VCC)
        I("v_cndmask_b32", self.vExpHC, 16, 0, VCC)
        I("v_lshrrev_b32", t2, 3, j)
        I("v_lshl_add_u32", t2, t2, 7, V(127))
        I("v_add_u32", t2, T[3], t2)
        I("s_lshl_b32", T[5], self.sGrp, 7)
        I("s_add_u32", T[5], T[5], WS_HELLO)
        I("v_add_u32", t0, T[5], self.vPollP)
        I("v_and_b32", V(125), 1, g)
        I("v_cmp_eq_u32", VCC, 0, V(125))
        I("v_cndmask_b32", self.vPollQ, t0, t2, VCC)
        I("v_cndmask_b32", self.vPollM, -16, -1, VCC)
        I("v_cndmask_b32", self.vExpM, 0, 16, VCC)
        I("v_mov_b32", t0, self.sXcc)
        I("v_cndmask_b32", self.vExpC, t0, 0, VCC)
        self.bg()
        I("v_mov_b32", V(125), f32(-1e30))
        for rr in range(4):
            I("v_lshl_add_u32", t0, g, 2, rr)
            I("v_sub_u32", t2, j, t0)
            I("v_cmp_gt_u32", VCC, 8, t2)
            I("v_cndmask_b32", self.bCur[rr], V(125), 0, VCC)
            I("v_add_u32", t2, 16, t2)
            I("v_cmp_gt_u32", VCC, 8, t2)
            I("v_cndmask_b32", self.bPrev[rr], V(125), 0, VCC)
        I("s_cmp_eq_u32", self.sW, 0)
        I("s_cselect_b32", T[2], self.sFirst, 0)
        I("s_cmp_eq_u32", T[2], 1)
        I("s_cselect_b64", VCC, -1, 0)
        for rr in range(4):
            I("v_cndmask_b32", self.bPrev0[rr], self.bPrev[rr], V(125), VCC)
        self.bg()
        I("v_mov_b32", t0, "0x3f803f80")
        for k in range(4): I("v_accvgpr_write_b32", self.aOnes[k], t0)
        for k in (0, 1, 4, 5): I("v_accvgpr_write_b32", self.aSel[k], 0)
        I("v_and_b32", V(125), 1, j)
        I("v_lshlrev_b32", V(125), 4, V(125))
        I("v_mov_b32", t0, "0x3f80")
        I("v_lshlrev_b32", t0, V(125), t0)
        I("v_cmp_eq_u32", VCC, r, g)
        I("v_cndmask_b32", t0, 0, t0, VCC)
        I("v_cmp_gt_u32", VCC, 2, cc)
        I("v_cndmask_b32", t2, 0, t0, VCC)
        I("v_cndmask_b32", t0, t0, 0, VCC)
        I("v_accvgpr_write_b32", self.aSel[2], t2)
        I("v_accvgpr_write_b32", self.aSel[3], t0)
        I("v_mov_b32", V(0), V(114))
        got = self.lab("nonce")
        I("s_cmp_eq_u32", self.sW, 3)
        I("s_cbranch_scc1", got)
        a.raw(f"    s_waitcnt vmcnt({2 * self.bg_next})")
        I("v_readfirstlane_b32", self.sNonce, V(120))
        I("s_add_u32", T[1], self.sNonce, "0x10100")
        I("s_and_b32", self.sBase, T[1], "0xffffff00")
        I("s_and_b32", self.sTag, T[1], "0x3fff0000")
        a.label(got)
        I("v_or_b32", self.vExpC, self.sBase, self.vExpC)
        I("v_or_b32", self.vExpHC, self.sBase, self.vExpHC)
        self.stamp()
        I("s_cmp_eq_u32", self.sW, 3)
        I("s_cbranch_scc1", "L_walk")
        if self.opt.get("visit", 0):
            I("s_cmp_lg_u32", self.sW, 0)
            I("s_cbranch_scc1", "L_visit_ret")
            I("s_mov_b64", EXEC, 0)
            I("s_branch", "L_visit_0")
            a.label("L_visit_ret")
            I("s_mov_b64", EXEC, -1)
        I("s_barrier")
        self.stamp()

        N1 = self.bg_next
        ad0, ad1 = V(188), V(189)
        d0, d1 = V(192, 4), V(196, 4)
        I("v_add_u32", ad0, T[4], self.vQ0)
        I("v_add_u32", ad1, T[4], self.vQ1)
        wad = V(191)
        I("v_add_u32", wad, T[4], self.vL16)
        ZP = self.opt.get("zp", 1)
        if ZP:
            zad, zz = V(190), V(200, 2)
            I("v_bfe_u32", zad, self.vL16, 4, 5)
            I("v_bfe_u32", zz[0], self.vL16, 6, 1)
            I("v_lshlrev_b32", zad, 6, zad)
            I("v_lshlrev_b32", zz[0], 5, zz[0])
            I("v_xor_b32", zz[0], 56, zz[0])
            I("v_add3_u32", zad, zad, zz[0], T[4])
            I("v_mov_b32", zz[0], 0)
            I("v_mov_b32", zz[1], 0)
        a.vm = [(f"raw{ks}", set()) for ks in range(N1) for _ in range(2)]
        AH = self.opt.get("ah", 6)
        EL0 = self.opt.get("el0", 10)
        EL1 = self.opt.get("el1", max(EL0 + 1, 14 - AH))
        nxt = N1
        N2 = self.opt.get("n2", 3)
        if N2:
            for _ in range(N2):
                self.raw_block(nxt)
                nxt += 1
            I("s_barrier")
        for ks in range(14):
            while nxt < 14 and nxt <= ks + AH:
                self.raw_block(nxt)
                if nxt == EL0: self.early_look(0)
                nxt += 1
            if ks == EL1 and EL0 < 14:
                if ks == 13: a.wait_vm_tag("raw13")
                self.early_look(1)
            a.wait_vm_tag(f"raw{ks}")
            if ZP: I("ds_write_b64", zad, zz, mods=f"offset:{ks * 2048}")
            w0, w1 = self.wf(2 * (ks & 1)), self.wf(2 * (ks & 1) + 1)
            for f in self.tr_pair(w0, ad0, ks * 2048) + self.tr_pair(w1, ad1, ks * 2048): f()
            if ks:
                p0, p1 = self.wf(2 * ((ks - 1) & 1)), self.wf(2 * ((ks - 1) & 1) + 1)
                self.mfma(d0, p0, self.aOnes, 0 if ks == 1 else d0)
                self.mfma(d1, p1, self.aOnes, 0 if ks == 1 else d1)
                I("ds_write_b128", wad, p0, mods=f"offset:{(ks - 1) * 2048}")
                I("ds_write_b128", wad, p1, mods=f"offset:{(ks - 1) * 2048 + 1024}")
        self.mfma(d0, self.wf(2), self.aOnes, d0)
        self.mfma(d1, self.wf(3), self.aOnes, d1)
        I("ds_write_b128", wad, self.wf(2), mods=f"offset:{13 * 2048}")
        I("ds_write_b128", wad, self.wf(3), mods=f"offset:{13 * 2048 + 1024}")
        I("v_lshrrev_b32", ad0, 8, self.vL16)
        I("v_lshlrev_b32", ad0, 4, ad0)
        I("s_lshl_b32", T[0], self.sW, 7)
        I("s_add_u32", T[0], T[0], L_CS)
        I("v_add_u32", ad0, T[0], ad0)
        I("s_mov_b32", self.sT2[0], "0x00010001")
        I("s_mov_b32", self.sT2[1], "0x00010001")
        a.flush()
        I("s_mov_b64", EXEC, self.sT2)
        I("ds_write_b128", ad0, d0)
        I("ds_write_b128", ad0, d1, mods="offset:64")
        I("s_mov_b64", EXEC, -1)
        a.wait(lg=0)
        self.fine(5, 4)
        I("s_branch", "L_qa1")
        self.stage0()

    def early_look(self, phase):
        a, I = self.a, self.I
        if phase == 0:
            I("v_mad_u32_u24", V(112), self.vExpM, self.sL, self.vExpC)
            I("buffer_load_dword", V(114), self.vPollQ, self.sWS, 0, mods="offen sc1")
            return
        skip = self.lab("notyet")
        I("v_cmp_ne_u32", VCC, V(112), V(114))
        I("s_cbranch_vccnz", skip)
        vm = list(a.vm)
        for ks in range(3):
            for _, f in self.xload(ks): f()
        a.vm = vm
        I("s_mov_b32", S(3), 1)
        a.label(skip)

    def stage0(self):
        a, I = self.a, self.I
        T = self.sT
        lane = V(127)
        idle, nohalo, pub, nofw = (self.lab(x) for x in ("idle", "nohalo", "pub", "nofw"))
        a.label("L_s0")
        a.forget_counters()
        a.pos += 100
        def hello():
            I("v_readfirstlane_b32", self.sNonce, V(120))
            I("s_lshl_b32", T[1], self.sGrp, 7)
            I("s_lshl2_add_u32", T[2], self.sH, T[1])
            I("s_add_u32", T[2], T[2], WS_HELLO)
            I("s_add_u32", T[1], self.sNonce, "0x10100")
            I("s_and_b32", self.sBase, T[1], "0xffffff00")
            I("s_and_b32", self.sTag, T[1], "0x3fff0000")
            I("s_or_b32", T[1], self.sBase, 16)
            I("v_mov_b32", self.vT, T[1])
            I("s_or_b32", T[1], self.sBase, self.sXcc)
            I("v_mov_b32", V(112), T[1])
            I("s_mov_b64", EXEC, 1)
            I("buffer_store_dword", V(112), OFF, self.sWS, T[2], mods="sc1")
            I("s_mov_b64", EXEC, -1)
        I("s_cmp_eq_u32", self.sC, 7)
        I("s_cbranch_scc1", idle)
        a.raw("    s_waitcnt vmcnt(2)")
        self.fine(5, 2)
        xo = [V(128 + 8 * t, 8) for t in range(4)]
        pr = [V(160 + 2 * t, 2) for t in range(4)]
        for t in range(4):
            for n in range(4): I("ds_read_b64", xo[t][2 * n:2 * n + 2], V(123), mods=f"offset:{2048 * t + 32 * n}")
        one = V(125)
        I("v_mov_b32", one, "0x3f803f80")
        I("s_sub_u32", T[5], self.sXp, 3 * 14336)
        I("s_sub_u32", T[6], self.sXSp, 3 * 1024)
        for t in range(4):
            I("buffer_store_dwordx4", xo[t][0:4], self.vL16, self.sWS, T[5], mods="offen sc1")
            I("buffer_store_dwordx4", xo[t][4:8], self.vL16, self.sWS, T[5], mods="offen offset:1024 sc1")
            if t < 3: I("s_add_u32", T[5], T[5], 14336)
        if self.opt.get("rel", 1) == 0: I("s_barrier")
        a.raw("    s_waitcnt vmcnt(8)")
        hello()
        for k in range(8):
            for t in range(4):
                I("v_dot2_f32_bf16", pr[t][0], xo[t][k], one, 0 if k == 0 else pr[t][0])
                I("v_dot2_f32_bf16", pr[t][1], xo[t][k], xo[t][k], 0 if k == 0 else pr[t][1])
        self.allreduce_pairs([("v_add_f32", pr[t][0], pr[t][1]) for t in range(4)])
        if self.opt.get("stag", 0):
            for t in range(4): I("v_and_or_b32", pr[t][1], pr[t][1], -4, 1)
        I("s_mov_b64", EXEC, "0xffff")
        for t in range(4):
            I("buffer_store_dwordx2", pr[t], self.vStatSt, self.sWS, T[6], mods=f"offen offset:{1024 * t} sc1")
        I("s_mov_b64", EXEC, -1)
        I("s_cmp_eq_u32", self.sHaloProd, 0)
        I("s_cbranch_scc1", nohalo)
        I("s_lshl_b32", T[1], self.sC, 10)
        I("s_add_u32", T[1], T[1], self.sHX)
        I("s_add_u32", T[1], T[1], 16384)
        I("s_mov_b32", self.sT2[0], "0xff00ff00")
        I("s_mov_b32", self.sT2[1], "0xff00ff00")
        I("s_mov_b64", EXEC, self.sT2)
        I("buffer_store_dwordx4", xo[3][0:4], self.vHp, self.sWS, T[1], mods="offen sc1")
        I("buffer_store_dwordx4", xo[3][4:8], self.vHp, self.sWS, T[1], mods="offen offset:512 sc1")
        I("s_lshl_b32", T[1], self.sC, 7)
        I("s_add_u32", T[1], T[1], self.sHX)
        I("s_add_u32", T[1], T[1], 16384 + 14336)
        I("s_mov_b64", EXEC, "0xffff")
        I("buffer_store_dwordx2", pr[3], self.vStatSt, self.sWS, T[1], mods="offen sc1")
        I("s_mov_b64", EXEC, -1)
        a.label(nohalo)
        a.flush()
        I("v_and_b32", V(126), 3, lane)
        I("v_lshlrev_b32", V(126), 7, V(126))
        I("v_lshrrev_b32", V(113), 2, lane)
        I("v_lshl_add_u32", V(126), V(113), 15, V(126))
        I("s_sub_u32", T[2], self.sFXp, 3 * 128)
        I("v_add_u32", V(126), T[2], V(126))
        I("s_lshl_b32", T[1], self.sC, 2)
        I("s_add_u32", T[1], T[1], self.sFHp)
        I("s_add_u32", T[1], T[1], 128)
        I("v_writelane_b32", V(126), T[1], 8)
        I("s_lshl_b32", T[1], self.sHaloProd, 8)
        I("s_or_b32", self.sT2[0], T[1], "0xff")
        I("s_mov_b32", self.sT2[1], 0)
        if self.opt.get("rel", 1) == 1: I("s_barrier")
        a.wait(vm=0)
        I("s_mov_b64", EXEC, self.sT2)
        I("buffer_store_dword", self.vT, V(126), self.sWS, 0, mods="offen sc1")
        I("s_mov_b64", EXEC, -1)
        if self.opt.get("rel", 1) == 2: I("s_barrier")
        self.fine(5, 3)
        I("s_branch", pub)
        a.label(idle)
        a.raw("    s_waitcnt vmcnt(0)")
        hello()
        I("s_barrier")
        a.label(pub)
        if self.opt.get("n2", 3) and self.opt.get("b2", 0) == 0: I("s_barrier")
        a.forget_counters()
        I("s_cmp_ge_u32", self.sGrp, 14)
        I("s_cbranch_scc1", nofw)
        I("s_mul_i32", T[2], self.sH, 56)
        I("s_mul_i32", T[1], self.sGrp, 32 * 2688)
        I("s_add_u32", T[2], T[2], T[1])
        for mat in range(3):
            for half in range(2):
                I("s_mov_b32", M0, L_PW + mat * 2048 + half * 1024)
                I("s_add_u32", T[1], T[2], mat * 896 + half * 16 * 2688)
                I("buffer_load_dwordx4", self.vQWd, self.sWB, T[1], mods="offen lds")
        a.label(nofw)
        I("s_mul_i32", T[1], self.sH, 1568)
        I("s_mov_b32", M0, L_WPHI)
        I("s_mul_i32", T[2], S(2), 13 * 128)
        I("s_min_u32", T[2], T[2], 401408 - 13 * 128)
        I("v_lshrrev_b32", V(112), 3, lane)
        I("v_and_b32", V(113), 7, lane)
        I("v_lshlrev_b32", V(113), 7, V(113))
        I("v_lshl_add_u32", V(126), V(112), 14, V(113))
        I("s_sub_u32", T[5], self.sOq, 6 * 16384)
        I("buffer_load_dwordx4", self.vL16, self.sWP, T[1], mods="offen lds")
        I("buffer_load_dwordx4", self.vL16, self.sWP, T[1], mods="offen offset:1024 lds")
        I("buffer_load_dword", self.vDummy, V(122), self.sWOA, T[2], mods="offen", nodest=True)
        I("buffer_load_dword", self.vDummy, V(122), self.sWOB, T[2], mods="offen", nodest=True)
        I("buffer_load_dword", self.vDummy, V(126), self.sWS, T[5], mods="offen", nodest=True)
        if self.opt.get("n2", 3) and self.opt.get("b2", 0) == 1: I("s_barrier")
        I("s_branch", "L_setup")
        a.label("L_walk")
        a.forget_counters()
        self.stamp()
        nofw2 = self.lab("nofw")
        I("s_cmp_ge_u32", self.sGrp, 14)
        I("s_cbranch_scc1", nofw2)
        zad, zz = V(112), V(116, 2)
        I("v_bfe_u32", zad, self.vL16, 4, 5)
        I("v_bfe_u32", zz[0], self.vL16, 6, 1)
        I("v_lshlrev_b32", zad, 6, zad)
        I("v_lshlrev_b32", zz[0], 5, zz[0])
        I("v_xor_b32", zz[0], 56, zz[0])
        I("v_add_u32", zad, zad, zz[0])
        I("v_add_u32", zad, L_PW, zad)
        I("v_mov_b32", zz[0], 0)
        I("v_mov_b32", zz[1], 0)
        I("v_add_u32", V(113), L_PW, self.vQ0)
        I("v_add_u32", V(115), L_PW, self.vQ1)
        a.raw("    s_waitcnt vmcnt(5)")
        for mat in range(3):
            I("ds_write_b64", zad, zz, mods=f"offset:{mat * 2048}")
            for f in range(2):
                for g in self.tr_pair(V(168 + 8 * mat + 4 * f, 4), V(113 + 2 * f), mat * 2048): g()
        I("s_lshl_b32", T[1], self.sGrp, 11)
        I("s_add_u32", T[1], T[1], self.sFW)
        I("s_sub_u32", T[1], T[1], 3 * 7168)
        for mat in range(3):
            I("s_add_u32", T[2], T[1], mat * MAT)
            for half in range(2):
                I("buffer_store_dwordx4", V(168 + 8 * mat + 4 * half, 4), self.vL16, self.sWS, T[2], mods=f"offen offset:{half * 1024} sc1")
        I("s_lshl_b32", T[1], self.sH, 7)
        I("s_lshl_b32", T[2], self.sGrp, 2)
        I("s_add_u32", T[1], T[1], T[2])
        I("s_add_u32", T[5], T[1], WS_FWF)
        if self.opt.get("el0", 10) < 14: self.early_look(0)
        a.wait(vm=0)
        I("s_mov_b64", EXEC, 1)
        I("buffer_store_dword", self.vT, OFF, self.sWS, T[5], mods="sc1")
        I("s_mov_b64", EXEC, -1)
        if self.opt.get("el0", 10) < 14: self.early_look(1)
        a.label(nofw2)
        self.fine(5, 4)
        I("s_branch", "L_qa1")

    def p_stage(self):
        a, I = self.a, self.I
        T = self.sT
        NPRE = 12
        a.label("L_p")
        a.raw("@VISIT")
        a.forget_counters()
        a.wait(lg=0)
        I("s_barrier")
        I("s_cmp_eq_u32", self.sC, 7)
        I("s_cbranch_scc1", "L_pidle")
        slots = [A(64 + 4 * k, 4) for k in range(12)] + [A(168 + 4 * k, 4) for k in range(8)] + [V(128 + 4 * k, 4) for k in range(28)]
        def pwf(hh, n): return slots[(hh % NPRE) * 4 + n]
        def pw_read(hh, n):
            return [lambda: I("ds_read_b64_tr_b16", pwf(hh, n)[0:2], self.vP[n], mods=f"offset:{hh * 4096}"),
                    lambda: I("ds_read_b64_tr_b16", pwf(hh, n)[2:4], self.vP[n], mods=f"offset:{hh * 4096 + 2048}")]
        self.flag_value(T[0])
        early = 8
        late = [f for _, f in self.pw_dma(self.sPWc, (2, 3))]
        PP = self.opt.get("pp", 3)
        for hh in range(early):
            for n in range(4):
                for f in pw_read(hh, n): f()
                if late and (n & 1 or hh == 0): late.pop(0)()
            if hh == PP: I("buffer_load_dword", V(112), self.vPollP, self.sWS, self.sFOp, mods="offen sc1")
        assert not late
        loop, ok = self.lab("ppoll"), self.lab("ppass")
        if self.opt.get("dual", 1):
            a.wait(vm=0)
            I("v_cmp_ne_u32", VCC, T[0], V(112))
            I("s_cbranch_vccnz", loop)
            def spin():
                b = self.a
                b.label(loop)
                b.I("buffer_load_dword", V(112), self.vPollP, self.sWS, self.sFOp, mods="offen sc1")
                b.nop(self.opt.get("dnop", 8))
                b.label(loop + "l")
                for x, y in ((V(113), V(112)), (V(112), V(113))):
                    b.I("buffer_load_dword", x, self.vPollP, self.sWS, self.sFOp, mods="offen sc1", untracked=True)
                    b.raw("    s_waitcnt vmcnt(1)")
                    b.forget_counters()
                    b.I("v_cmp_ne_u32", VCC, T[0], y)
                    b.I("s_cbranch_vccz", ok)
                self.budget_branch(loop + "l")
            self.tail.append(spin)
        else:
            a.label(loop)
            a.wait(vm=0)
            I("v_cmp_ne_u32", VCC, T[0], V(112))
            I("s_cbranch_vccz", ok)
            I("buffer_load_dword", V(112), self.vPollP, self.sWS, self.sFOp, mods="offen sc1")
            self.budget_branch(loop)
        a.label(ok)
        a.vm = []
        self.stamp()
        def of(hh): return A(4 * hh, 4)
        def oload(hh):
            out = []
            if hh % 4 == 0 and hh:
                out.append(("s", lambda: I("s_add_u32", T[1], self.sOp, hh * 1024)))
            so = self.sOp if hh < 4 else T[1]
            out.append(("v", lambda: I("buffer_load_dwordx4", of(hh), self.vL16, self.sWS, so, mods=f"offen offset:{(hh % 4) * 1024} sc1")))
            return out
        NO = self.opt.get("no", 5)
        for hh in range(NO):
            for _, f in oload(hh): f()
        I("s_barrier")
        for hh in range(early, NPRE):
            for n in range(4):
                for f in pw_read(hh, n): f()
        mf, so, sw = [], [], []
        for hh in range(16):
            for n in range(4):
                mf.append((self.vR[4 * n:4 * n + 4], pwf(hh, n), of(hh), self.vR[4 * n:4 * n + 4]))
                if hh + NPRE < 16:
                    sw += [(4 * hh + n, "v", f) for f in pw_read(hh + NPRE, n)]
            if hh + NO < 16: so += [(4 * hh, k, f) for k, f in oload(hh + NO)]
        j, t = V(136), V(137)
        fa = [("v", lambda: I("v_lshrrev_b32", j, 2, self.vPollP)), ("v", lambda: I("v_lshrrev_b32", t, 9, self.vL16)),
              ("v", lambda: I("v_xor_b32", t, t, j)), ("v", lambda: I("v_and_b32", t, 7, t)), ("v", lambda: I("v_lshlrev_b32", t, 4, t)),
              ("v", lambda: I("v_lshl_add_u32", t, j, 7, t)), ("v", lambda: I("v_bfe_u32", j, self.vL16, 8, 1)),
              ("s", lambda: I("s_lshl_b32", T[1], self.sW, 11)), ("s", lambda: I("s_add_u32", T[1], T[1], L_SP)),
              ("v", lambda: I("v_lshl_add_u32", t, j, 3, t)), ("v", lambda: I("v_add_u32", V(132), T[1], t))]
        fa += [("v", lambda n=n: I("v_xor_b32", V(132 + n), 32 * n, V(132))) for n in range(1, 4)]
        fa += [("v", lambda: I("v_lshrrev_b32", j, 3, self.vL16)), ("v", lambda: I("v_and_b32", j, "0x70", j)),
               ("v", lambda: I("v_xor_b32", j, j, self.vL16)), ("v", lambda: I("v_add_u32", V(120), T[1], j)),
               ("s", lambda: I("s_add_u32", T[2], self.sX0o, 8 * 1792))]
        rest = self.sched(mf, [so, sw, [(48, k, f) for k, f in fa]])
        assert not rest
        a.flush()
        self.stamp()
        I("s_cmp_eq_u32", self.sL, 4)
        I("s_cbranch_scc1", "L_final")

        a.label("L_pepi")
        xo = V(112, 8)
        for k in range(8):
            I("v_cvt_pk_bf16_f32", xo[k], self.vR[2 * k], self.vR[2 * k + 1])
            if k == 3: I("buffer_store_dwordx4", xo[0:4], self.vL16, self.sWS, self.sXp, mods="offen")
        I("buffer_store_dwordx4", xo[4:8], self.vL16, self.sWS, self.sXp, mods="offen offset:1024")
        sm, sq = V(120, 2), V(122, 2)
        self.pk("v_pk_add_f32", sm, self.vR[0:2], self.vR[2:4])
        self.pk("v_pk_mul_f32", sq, self.vR[0:2], self.vR[0:2])
        self.pk("v_pk_fma_f32", sq, self.vR[2:4], self.vR[2:4], sq)
        for k in range(2, 8):
            self.pk("v_pk_add_f32", sm, sm, self.vR[2 * k:2 * k + 2])
            self.pk("v_pk_fma_f32", sq, self.vR[2 * k:2 * k + 2], self.vR[2 * k:2 * k + 2], sq)
        pr = V(124, 2)
        I("v_add_f32", pr[0], sm[0], sm[1])
        I("v_add_f32", pr[1], sq[0], sq[1])
        x, y = pr[0], pr[1]
        I("s_add_u32", self.sL, self.sL, 1)
        I("s_lshl_b32", T[0], self.sL, 4)
        I("v_permlane32_swap_b32", x, y)
        I("s_or_b32", T[0], T[0], self.sBase)
        I("v_add_f32", x, x, y)
        I("v_mov_b32", y, x)
        I("v_mov_b32", self.vT, T[0])
        I("s_cmp_eq_u32", self.sPhase, 0)
        I("v_permlane16_swap_b32", x, y)
        I("s_cselect_b32", self.sPend, self.sHaloProd, 0)
        I("v_add_f32", x, x, y)
        I("v_mov_b32", y, x)
        I("s_lshl_b32", T[1], self.sC, 10)
        I("s_add_u32", T[1], T[1], self.sHX)
        I("v_permlane32_swap_b32", x, y)
        STG = self.opt.get("stag", 0)
        if STG:
            I("s_and_b32", T[2], self.sL, 3)
            I("v_and_or_b32", y, y, -4, T[2])
        I("s_mov_b64", EXEC, "0xffff")
        I("buffer_store_dwordx2", pr, self.vStatSt, self.sWS, self.sXSp, mods="offen")
        I("s_mov_b64", EXEC, -1)
        nh, pub = self.lab("nohalo"), self.lab("pub")
        I("s_cmp_eq_u32", self.sPend, 0)
        I("s_cbranch_scc0", nh)
        wb, wbd = self.lab("pwb"), self.lab("pwbd")
        I("s_cmp_eq_u32", self.sL, 4)
        I("s_cbranch_scc1", wb)
        a.label(wbd)
        def write_back():
            self.a.label(wb)
            for n in range(14, 21): self.I("ds_write_b128", self.vQS, self.stash(n), mods=self.piece(n))
            self.I("s_branch", wbd)
        self.tail.append(write_back)
        a.wait(vm=1 if STG else 0)
        a.label(pub)
        self.publish(self.sFXp)

        def tail():
            b = self.a
            b.label(nh)
            b.I("s_add_u32", T[1], T[1], 16384)
            b.I("s_mov_b32", self.sT2[0], "0xff00ff00")
            b.I("s_mov_b32", self.sT2[1], "0xff00ff00")
            b.I("s_mov_b64", EXEC, self.sT2)
            b.I("buffer_store_dwordx4", xo[0:4], self.vHp, self.sWS, T[1], mods="offen sc1")
            b.I("buffer_store_dwordx4", xo[4:8], self.vHp, self.sWS, T[1], mods="offen offset:512 sc1")
            b.I("s_lshl_b32", T[1], self.sC, 7)
            b.I("s_add_u32", T[1], T[1], self.sHX)
            b.I("s_add_u32", T[1], T[1], 16384 + 14336)
            b.I("s_mov_b64", EXEC, "0xffff")
            b.I("buffer_store_dwordx2", pr, self.vStatSt, self.sWS, T[1], mods="offen sc1")
            b.I("s_mov_b64", EXEC, -1)
            b.wait(vm=4 if STG else 3)
            b.I("s_branch", pub)
        self.tail.append(tail)
        a.label("L_pnext")
        a.flush()
        a.forget_counters()
        self.stamp()
        if self.opt.get("stop"):
            I("s_cmp_eq_u32", self.sL, self.opt["stop"])
            I("s_cbranch_scc1", "L_fin2")
        I("s_cmp_eq_u32", self.sPhase, 1)
        I("s_cbranch_scc1", "L_qb")

        def idle():
            b = self.a
            b.label("L_pidle")
            b.I("s_cmp_eq_u32", self.sL, 4)
            b.I("s_cbranch_scc1", "L_fin2")
            b.I("s_add_u32", self.sL, self.sL, 1)
            b.I("s_cmp_lg_u32", self.sL, 4)
            b.I("s_cbranch_scc1", "L_pnext")
            for n in range(14, 21): b.I("ds_write_b128", self.vQS, self.stash(n), mods=self.piece(n))
            b.I("s_branch", "L_pnext")
        self.tail.append(idle)

    def q_poll(self, shadow=None):
        a, I = self.a, self.I
        T = self.sT
        ex, t, pv = V(112), V(113), V(114)
        loop, ok, pend, nopend, slow, again = (self.lab(x) for x in ("qpoll", "qpass", "pend", "nopend", "qslow", "qagain"))
        I("v_mad_u32_u24", ex, self.vExpM, self.sL, self.vExpC)
        if shadow:
            chk = self.lab("qchk")
            I("buffer_load_dword", pv, self.vPollQ, self.sWS, 0, mods="offen sc1")
            shadow()
            I("s_branch", chk)
        a.label(loop)
        I("buffer_load_dword", pv, self.vPollQ, self.sWS, 0, mods="offen sc1")
        if shadow: a.label(chk)
        I("s_cmp_eq_u32", self.sPend, 0)
        a.wait(vm=0)
        I("s_cbranch_scc0", pend)
        a.label(nopend)
        I("v_xor_b32", t, pv, ex)
        I("v_cmp_ne_u32", VCC, 0, t)
        I("s_cbranch_vccnz", slow)
        a.label(ok)
        a.vm = []

        def tail():
            b = self.a
            b.label(pend)
            b.I("s_lshl_b32", T[1], self.sC, 2)
            b.I("s_add_u32", T[1], T[1], self.sFHp)
            self.flag_value(T[0])
            b.I("v_mov_b32", self.vT, T[0])
            b.I("s_mov_b64", EXEC, 1)
            b.I("buffer_store_dword", self.vT, OFF, self.sWS, T[1], mods="offset:128 sc1")
            b.I("s_mov_b64", EXEC, -1)
            b.I("s_mov_b32", self.sPend, 0)
            b.I("s_branch", nopend)
            b.label(slow)
            if self.opt.get("dual", 1):
                fast, gen = self.lab("qfast"), self.lab("qgen")
                b.I("s_cmp_eq_u32", self.sL, 1)
                b.I("s_cselect_b32", T[0], 0, self.sMode)
                b.I("s_cmp_eq_u32", T[0], 0)
                b.I("s_cbranch_scc1", gen)
                b.I("buffer_load_dword", pv, self.vPollQ, self.sWS, 0, mods="offen sc1")
                b.nop(self.opt.get("dnop", 8))
                b.label(fast)
                for x, y in ((t, pv), (pv, t)):
                    b.I("buffer_load_dword", x, self.vPollQ, self.sWS, 0, mods="offen sc1", untracked=True)
                    b.raw("    s_waitcnt vmcnt(1)")
                    b.forget_counters()
                    b.I("v_cmp_ne_u32", VCC, ex, y)
                    b.I("s_cbranch_vccz", ok)
                self.budget_branch(fast)
                b.label(gen)
            b.I("s_cmp_eq_u32", self.sMode, 0)
            b.I("s_cbranch_scc1", again + "m")
            b.I("v_not_b32", V(115), self.vPollM)
            b.I("v_and_b32", V(116), t, self.vPollM)
            b.I("v_and_b32", V(115), t, V(115))
            b.I("v_cmp_ne_u32", self.sT2, 0, V(115))
            b.I("v_cmp_eq_u32", VCC, 0, V(116))
            b.nop(2)
            b.I("s_cmp_eq_u64", self.sT2, 0)
            b.I("s_cbranch_scc1", again)
            b.I("s_andn2_b32", T[0], "0xffff0000", VCC_LO)
            b.I("s_cbranch_scc1", again)
            b.I("s_mov_b32", self.sMode, 0)
            b.I("s_add_u32", self.sFXp, self.sFXp, WS_SLOW)
            b.I("s_add_u32", self.sFOq, self.sFOq, WS_SLOW)
            b.I("s_add_u32", self.sFOp, self.sFOp, WS_SLOW)
            b.I("v_lshlrev_b32", V(115), 11, self.vExpM)
            b.I("v_add_u32", self.vPollQ, V(115), self.vPollQ)
            b.I("s_branch", again)
            b.label(again + "m")
            b.I("v_and_b32", V(116), t, self.vPollM)
            b.I("v_cmp_ne_u32", VCC, 0, V(116))
            b.I("s_cbranch_vccz", ok)
            b.label(again)
            self.budget_branch(loop)
        self.tail.append(tail)

    def xload(self, ks):
        out = []
        if ks % 4 == 0:
            out.append(("s", lambda: self.I("s_add_u32", self.sT[1], self.sXq, ks * 1024)))
            out.append(("s", lambda: self.I("s_add_u32", self.sT[2], self.sXq, ks * 1024 + 14336)))
        for t in range(2):
            out.append(("v", lambda t=t: self.I("buffer_load_dwordx4", self.xf(t, ks), self.vL16, self.sWS, self.sT[1 + t],
                                               mods=f"offen offset:{(ks % 4) * 1024} sc1")))
        return out

    def stats_ops(self, T, layer):
        raw, st = self.straw(T), self.st(T)
        t = V(188 + 2 * T, 2)
        ops = []
        def add(*x, **k): ops.append(("w" if ("perm" in x[0] or "rsq" in x[0]) else "v", lambda: self.I(*x, **k)))
        add("v_and_b32", raw[2], raw[2], self.vM3)
        add("v_and_b32", raw[3], raw[3], self.vM3)
        add("v_add_f32", raw[0], raw[0], raw[2])
        add("v_add_f32", raw[1], raw[1], raw[3])
        for step in range(7):
            x, y = raw[0], raw[1]
            if step in (0, 6): add("v_permlane32_swap_b32", x, y)
            elif step in (1, 4): add("v_add_f32", x, x, y)
            elif step in (2, 5): add("v_mov_b32", y, x)
            else: add("v_permlane16_swap_b32", x, y)
        add("v_mul_f32", st[0], f32(-1.0 / 448), raw[0])
        add("v_mul_f32", t[0], f32(1.0 / 448), raw[1])
        add("v_fma_f32", t[0], Neg(st[0]), st[0], t[0])
        add("v_max_f32", t[0], 0, t[0])
        add("v_add_f32", t[0], f32(1e-5), t[0])
        add("v_rsq_f32", st[1], t[0])
        add("v_and_b32", st[2], st[1], self.vMH if T == 2 else self.vM3)
        if T < 2:
            add("v_mul_f32", st[3], f32(LOG2E * (28 ** -0.5 if layer == "A" else 1.0)), st[1])
        return ops

    def colsum_part(self, ad, steps, cs_off):
        a, I = self.a, self.I
        d = V(192, 4)
        def w(k): return self.wf(k % 4)
        def rd(k): I("ds_read_b128", w(k), ad, mods=f"offset:{steps[k] * 2048}")
        for k in range(4): rd(k)
        mf, sw = [], []
        for k in range(len(steps)):
            mf.append((d, w(k), self.aOnes, 0 if k == 0 else d))
            if k + 4 < len(steps): sw.append((k, "v", lambda k=k: rd(k + 4)))
        assert not self.sched(mf, [sw])
        I("v_lshrrev_b32", V(189), 8, self.vL16)
        I("v_lshlrev_b32", V(189), 4, V(189))
        I("s_add_u32", self.sT[0], self.sT[0], L_CS + cs_off)
        I("v_add_u32", V(189), self.sT[0], V(189))
        I("s_mov_b32", self.sT2[0], "0x00010001")
        I("s_mov_b32", self.sT2[1], "0x00010001")
        a.flush()
        I("s_mov_b64", EXEC, self.sT2)
        I("ds_write_b128", V(189), d)
        I("s_mov_b64", EXEC, -1)

    def colsum_b_q(self):
        I, T = self.I, self.sT
        I("v_lshrrev_b32", V(188), 8, self.vL16)
        I("v_lshlrev_b32", V(188), 4, V(188))
        I("v_add_u32", V(188), L_CS, V(188))
        for ft in range(2, 6):
            I("ds_read_b128", self.cB[4 * ft:4 * ft + 4], V(188), mods=f"offset:{64 * ft}")
        I("s_lshr_b32", T[0], self.sW, 1)
        I("s_lshl_b32", T[0], T[0], 10)
        I("v_add_u32", V(188), T[0], self.vL16)
        I("s_and_b32", T[0], self.sW, 1)
        I("s_mul_i32", T[0], T[0], 7 * 2048)
        I("v_add_u32", V(188), T[0], V(188))
        I("s_lshl_b32", T[0], self.sW, 6)
        self.colsum_part(V(188), list(range(7)), 512)

    def colsum_b_q2(self):
        a, I = self.a, self.I
        done = self.lab("cq2")
        a.wait_lg_all()
        I("s_cmp_lg_u32", self.sIt, 0)
        I("s_cbranch_scc1", done)
        I("v_lshrrev_b32", V(188), 8, self.vL16)
        I("v_lshlrev_b32", V(188), 4, V(188))
        I("v_add_u32", V(188), L_CS + 512, V(188))
        for k in range(4):
            I("ds_read_b128", self.cB[4 * (k >> 1):4 * (k >> 1) + 4] if k % 2 == 0 else V(204 + 4 * (k >> 1), 4), V(188), mods=f"offset:{64 * k}")
        for k in range(8): I("v_add_f32", self.cB[k], self.cB[k], V(204 + k))
        a.flush()
        a.label(done)

    def cs_read(self, dst, with_halo):
        I = self.I
        ad = V(188)
        I("v_lshrrev_b32", ad, 8, self.vL16)
        I("v_lshlrev_b32", ad, 4, ad)
        I("v_add_u32", ad, L_CS, ad)
        for ft in range(6):
            I("ds_read_b128", dst[4 * ft:4 * ft + 4], ad, mods=f"offset:{64 * ft}")
        if with_halo:
            I("s_lshl_b32", self.sT[0], self.sW, 6)
            I("v_add_u32", V(189), self.sT[0], ad)
            I("ds_read_b128", self.vCH, V(189), mods="offset:128")

    def wphi_gather(self):
        a, I = self.a, self.I
        j, g, f1, ad, t = V(214), V(215), V(216), V(217), V(218)
        I("v_lshrrev_b32", g, 8, self.vL16)
        I("v_lshrrev_b32", j, 2, self.vPollP)
        I("v_lshrrev_b32", t, 2, j)
        I("v_sub_u32", f1, j, t)
        I("v_add_u32", f1, 16, f1)
        I("v_mul_u32_u24", ad, 4 * 56, g)
        I("v_add_u32", ad, L_WPHI, ad)
        I("v_lshl_add_u32", f1, f1, 1, ad)
        I("v_lshl_add_u32", ad, j, 1, ad)
        I("v_and_b32", t, 3, j)
        I("v_cmp_ne_u32", VCC, 3, t)
        I("v_cndmask_b32", t, 0, -1, VCC)
        I("v_and_b32", j, t, self.vM3)
        for oft, base in enumerate((ad, f1)):
            for e in range(8):
                d = e if e < 4 else 16 + e - 4
                I("ds_read_u16", V(204 + e), base, mods=f"offset:{d * 56}")
            for p in range(4):
                I("v_lshl_or_b32", V(204 + 2 * p), V(205 + 2 * p), 16, V(204 + 2 * p))
                m = (None, self.vM3)[p >> 1] if oft == 0 else (t, j)[p >> 1]
                if m is not None: I("v_and_b32", V(204 + 2 * p), V(204 + 2 * p), m)
                I("v_accvgpr_write_b32", self.aWphi[4 * oft + p], V(204 + 2 * p))

    def conv_scalar(self, dst, T, mat, c, scales):
        out = []
        st = self.st(T)
        for f in range(2):
            acc = self.acc(T, 2 * mat + f)
            cc = c[4 * (2 * mat + f):4 * (2 * mat + f) + 4]
            for k in range(4): out.append(lambda acc=acc, cc=cc, k=k: self.I("v_fma_f32", acc[k], cc[k], st[0], acc[k]))
            m = {"r": st[1], "m": st[2], None: None}[scales[f]]
            if m is not None:
                for k in range(4): out.append(lambda acc=acc, m=m, k=k: self.I("v_mul_f32", acc[k], acc[k], m))
            for p in range(2): out.append(lambda acc=acc, f=f, p=p: self.I("v_cvt_pk_bf16_f32", dst[2 * f + p], acc[2 * p], acc[2 * p + 1]))
        return out

    def check_parked(self, before):
        assert self.a.count["ds_read_b128"] - before == 21

    def q_ready(self, layer, first=False):
        a, I = self.a, self.I
        a.wait(lg=0)
        I("s_barrier")
        once = self.lab("once")
        if layer == "B":
            I("s_cmp_lg_u32", self.sIt, 0)
            I("s_cbranch_scc1", once)
        nvm = len(a.vm)
        if layer == "A" and not first:
            pass
        elif layer == "A":
            self.cs_read(self.cA, True)
            for n in range(4): I("ds_read_b64", V(200 + 2 * n, 2), V(0), mods=f"offset:{32 * n}")
            for n in range(4):
                for p in range(2):
                    I("v_lshlrev_b32", self.vR[4 * n + 2 * p], 16, V(200 + 2 * n + p))
                    I("v_and_b32", self.vR[4 * n + 2 * p + 1], "0xffff0000", V(200 + 2 * n + p))
        else:
            self.colsum_b_q()
        a.wait_lg_all()
        a.flush()
        assert nvm == len(a.vm)
        a.label(once)
        for ft in range(0 if layer == "A" else 2, 6):
            for f in self.qa_read(self.wf(ft), ft, 0): f()

    def q_gemm(self, layer, tail_ops=(), first=None):
        a, I = self.a, self.I
        T = self.sT
        isA = layer == "A"
        LOOK = self.opt.get("look", 3)
        if not first:
            for ks in range(2):
                for _, f in self.xload(ks): f()
            if not isA: self.q_ready("B")
            for _, f in self.xload(2): f()
        reads0, writes0 = a.count.get("ds_read_b128", 0), a.count.get("ds_write_b128", 0)
        def bar(n):
            assert a.count["ds_read_b128"] - reads0 == n and not a.lg and a.count.get("ds_write_b128", 0) == writes0
            I("s_barrier")

        G = 12 if isA else 8
        mf, sw, sx, sd, sv, sh, stc = [], [], [], [], [], [], []
        RE = isA and self.opt.get("reord", 1)
        for ks in range(12 if RE else 14):
            order = ((2, 3, 4, 5, 0, 1) if ks == 13 else range(6)) if isA else range(2, 6)
            for ft in order:
                for t in ((1, 0) if ks == 13 else (0, 1)):
                    mf.append((self.acc(t, ft), self.wf(ft), self.xf(t, ks), 0 if ks == 0 else self.acc(t, ft)))
                if ks < 13:
                    sw += [(len(mf) - 1, "v", f) for f in self.qa_read(self.wf(ft), ft, ks + 1)]
                if RE and ks == 11 and ft in (2, 3):
                    sw += [(len(mf) - 1, "v", f) for f in self.qa_read(self.wf(4 + ft), ft, 13)]
        if RE:
            last = {2: 6, 3: 7, 4: 2, 5: 3, 0: 6, 1: 7}
            for mat in (1, 2, 0):
                for ks in (12, 13):
                    for ft in (2 * mat, 2 * mat + 1):
                        slot = ft if ks == 12 else last[ft]
                        for t in (1, 0):
                            mf.append((self.acc(t, ft), self.wf(slot), self.xf(t, ks), self.acc(t, ft)))
                        nxt = [f2 for f2 in last if last[f2] == slot and f2 != ft and ((mat == 1 and ks == 12 and f2 in (4, 5)) or (mat == 1 and ks == 13 and f2 in (0, 1)))]
                        for f2 in nxt: sw += [(len(mf) - 1, "v", f) for f in self.qa_read(self.wf(slot), f2, 13)]
        for k in range(3, 14):
            gap = max(0, G * (k - LOOK) - (6 if k > 6 else 0)) if isA else max(0, G * (k - self.opt.get("lookb", 4)))
            xl = self.xload(k)
            sx += [(gap, kind, f) for kind, f in xl[:-1]] + [(gap + 4, "v", xl[-1][1])]
            SK = self.opt.get("ska", 6) if isA else self.opt.get("skb", 7)
            if k in (SK, SK + 1):
                for t in (k - SK,):
                    for q in range(2):
                        sx.append((gap + 7 + 2 * q, "v", lambda t=t, q=q: I(
                            "buffer_load_dwordx2", self.straw(t)[2 * q:2 * q + 2], self.vStat, self.sWS, self.sXSq,
                            mods=f"offen offset:{t * 1024 + 512 * q} sc1")))
        s0, s1 = self.stats_ops(0, layer), self.stats_ops(1, layer)
        sv += [(G * SK + 6 - G * self.opt.get("sva", 0) if isA else G * (SK - 1), k, f) for p in zip(s0, s1) for k, f in p]
        x2 = a.count.get("buffer_load_dwordx2", 0)
        def loaded(f, n):
            def g():
                assert a.count["buffer_load_dwordx2"] - x2 >= n, "row sums used before they were requested"
                f()
            return g
        if self.opt.get("stag", 0):
            slow_s, back_s = self.lab("sslow"), self.lab("sback")
            u, w = V(188), V(190)
            r0, r1 = self.straw(0), self.straw(1)
            def chk_ops():
                return [("v", lambda: I("v_xor_b32", u, r0[3], r1[3])), ("v", lambda: I("v_xor_b32", w, r0[1], r1[1])),
                        ("v", lambda: I("v_bitop3_b32", u, u, r0[3], self.sL, mods="bitop3:0xf6")),
                        ("v", lambda: I("v_bitop3_b32", w, w, r0[1], self.sL, mods="bitop3:0xf6")),
                        ("v", lambda: I("v_and_or_b32", u, u, self.vM3, w)), ("v", lambda: I("v_and_b32", u, 3, u)),
                        ("v", lambda: I("v_cmp_ne_u32", VCC, 0, u))]
            def br_s():
                I("s_cbranch_vccnz", slow_s)
                a.label(back_s)
            def tail_s():
                b = self.a
                b.label(slow_s)
                b.I("s_sub_u32", self.sBudget, self.sBudget, 1)
                b.I("s_cbranch_scc1", "L_end")
                for t in range(2):
                    for q in range(2):
                        b.I("buffer_load_dwordx2", self.straw(t)[2 * q:2 * q + 2], self.vStat, self.sWS, self.sXSq,
                            mods=f"offen offset:{t * 1024 + 512 * q} sc1")
                b.wait(vm=0)
                for _, f in chk_ops(): f()
                b.I("s_cbranch_vccnz", slow_s)
                b.I("s_branch", back_s)
            self.tail.append(tail_s)
            co = chk_ops()
            sv = [(sv[0][0], k, f) for k, f in co[:-1]] + [(sv[0][0], "v", lambda: (co[-1][1](), br_s()))] + sv
        sv[0] = (sv[0][0], sv[0][1], loaded(sv[0][2], 4))
        sf = []
        if self.opt.get("fine") == (1 if isA else 2):
            sf = [(G * 2 * i, "s", lambda i=i: self.fine(1 if isA else 2, i)) for i in range(7)]
        nd = 0
        for k, f in self.pw_dma(self.sWOA, (0, 1)) if isA else ():
            sd.append((G * 10 + 2 + 5 * nd, k, f))
            nd += k == "v"
        if isA:
            HF, HC = self.opt.get("hf", 3), self.opt.get("hc", 7)
            hv, hx, fv = V(194), V(195), V(196)
            def check(reg, first, gap, shift):
                slow, back = self.lab("hslow"), self.lab("hback")
                def br():
                    I("v_cmp_ne_u32", VCC, hx, reg)
                    I("s_cbranch_vccnz", slow)
                    a.label(back)
                out = [(first, "v", lambda: I("buffer_load_dword", reg, self.vPollH, self.sWS, 0, mods="offen sc1")),
                       (gap, "v", br)]
                def tail():
                    b = self.a
                    b.label(slow)
                    b.I("s_sub_u32", self.sBudget, self.sBudget, 1)
                    b.I("s_cbranch_scc1", "L_end")
                    b.I("buffer_load_dword", reg, self.vPollH, self.sWS, 0, mods="offen sc1")
                    b.wait(vm=0)
                    b.I("v_cmp_ne_u32", VCC, hx, reg)
                    if shift: b.I("s_lshr_b64", VCC, VCC, 16)
                    b.I("s_cbranch_scc1" if shift else "s_cbranch_vccnz", slow)
                    b.I("s_branch", back)
                self.tail.append(tail)
                return out
            stc = [(2, "v", lambda: I("v_mad_u32_u24", hx, self.vExpHM, self.sL, self.vExpHC))]
            sh += check(hv, G * HF + 8, G * HC, False)
            sh.append((G * HC, "s", lambda: I("s_lshl_b32", T[0], self.sW, 11)))
            sh.append((G * HC, "s", lambda: I("s_add_u32", M0, T[0], L_HX, m0="halo")))
            sh.append((G * HC, "s", lambda: I("s_add_u32", T[0], T[0], self.sHX)))
            for q in range(2):
                sh.append((G * HC, "v", lambda q=q: I("buffer_load_dwordx4", self.vHalo, self.sWS, T[0], mods=f"offen offset:{1024 * q} sc1 lds", tag="halo", m0="halo")))
            sh.append((G * HC, "s", lambda: I("s_add_u32", T[0], self.sHX, 14336)))
            for q in range(2):
                sh.append((G * HC, "v", lambda q=q: I("buffer_load_dwordx2", self.straw(2)[2 * q:2 * q + 2], self.vHaloS, self.sWS, T[0],
                                                     mods=f"offen offset:{512 * q} sc1")))
            sh.append((G * HC, "v", lambda: I("v_add_u32", V(194), L_HX, self.vHp)))
            def hw(k): return A(4 * k, 4)
            shw = []
            had = self.vQh
            for k in range(14): shw.append((G * (1 + (k * 11) // 14) + 3, "v", lambda k=k: I("ds_read_b128", hw(k), had, mods=f"offset:{k * 2048}")))
            s2 = self.stats_ops(2, layer)
            sv2 = [(G * (HC + 4), k, loaded(f, 6)) for k, f in s2]
            nb = len(mf) - 11
            sb = [(nb, "s", lambda: a.wait_vm_tag("halo")), (nb, "s", lambda: a.wait(lg=0)), (nb, "s", lambda: bar(78 + 14 + (21 if first else 0)))]
            sb += [((nb if k < 10 or not RE else len(mf) - 1), "v", lambda k=k: I("ds_read_b128", self.hx(k), V(194), mods=f"offset:{512 * k}")) for k in range(14)]
            n0 = len(mf)
            for k in range(14): mf.append((self.hacc, hw(k), self.hx(k), 0 if k == 0 else self.hacc))
            stl = [(n0 - 6, "v", f) for f in tail_ops]
            if RE:
                stl = [(n0 - 15 if k < 20 else (nb + 1 if k == 20 else n0 - 7), "v", f) for k, f in enumerate(tail_ops)]
            spark, sfw = [], []
            if first:
                spark = [(G * self.opt.get("pk0", 6) + self.opt.get("pkd", 4) * n, "v", lambda n=n: I("ds_read_b128", self.stash(n + 1), self.vQS, mods=self.piece(n))) for n in range(21)]
                sfw = [(nb + 6 + 8 * k, "w", first) for k in range(2)]
            rest = self.sched(mf, [sf, sw, sx, stc, sh, shw, spark, sb, sd, sfw, sv + stl, sv2])
        else:
            n0 = len(mf)
            stl = [(n0 - 4, "v", f) for f in tail_ops]
            rest = self.sched(mf, [sf, sw, sx, sv + stl])
        return rest

    def ln(self, acc, c, st, scale):
        for p in range(2):
            self.pk("v_pk_fma_f32", acc[2 * p:2 * p + 2], c[2 * p:2 * p + 2], st[0:2], acc[2 * p:2 * p + 2], by=0)
        if scale == "r":
            for p in range(2): self.pk("v_pk_mul_f32", acc[2 * p:2 * p + 2], acc[2 * p:2 * p + 2], st[0:2], by=1)
        elif scale == "m":
            for p in range(2): self.pk("v_pk_mul_f32", acc[2 * p:2 * p + 2], acc[2 * p:2 * p + 2], st[2:4], by=0)
        elif scale == "e":
            self.pk("v_pk_fma_f32", acc[0:2], acc[0:2], st[2:4], self.vE0, by=0)
            self.pk("v_pk_mul_f32", acc[2:4], acc[2:4], st[2:4], by=0)

    def cvt(self, dst, src):
        for p in range(src.cnt // 2):
            self.I("v_cvt_pk_bf16_f32", dst[p], src[2 * p], src[2 * p + 1])

    def conv(self, dst, T, mat, c, scales):
        for f in range(2):
            ft = 2 * mat + f
            self.ln(self.acc(T, ft), c[4 * ft:4 * ft + 4], self.st(T), scales[f])
        for f in range(2):
            self.cvt(dst[2 * f:2 * f + 2], self.acc(T, 2 * mat + f))

    def o_finish(self, o, den, of, in_drain, after):
        a, I = self.a, self.I
        T = self.sT
        I("s_add_u32", T[1], self.sOq, 16384)
        self.flag_value(T[0])
        for t in range(2): I("v_rcp_f32", den[t][0], den[t][0])
        I("v_mov_b32", self.vT, T[0])
        for t in range(2):
            for p in range(4): self.pk("v_pk_mul_f32", o[t][2 * p:2 * p + 2], o[t][2 * p:2 * p + 2], den[t][0:2], by=0)
            self.cvt(of[t], o[t])
            I("buffer_store_dwordx4", of[t], self.vL16, self.sWS, T[1] if t else self.sOq, mods="offen")
        self.fine(getattr(self, "fin_region", 0) or -1, 6)
        self.fin_region = 0
        if in_drain: in_drain()
        a.wait(vm=0)
        self.publish(self.sFOq)
        self.stamp()
        if after: after()

    def qa_stage(self, first=False):
        a, I = self.a, self.I
        if first and (self.opt.get("visit", 0) or "pad" in self.opt): a.raw(".p2align 12")
        if first and self.opt.get("pad"): a.raw(f".fill {self.opt['pad'] // 4}, 4, 0xbf800000")
        a.label("L_qa1" if first else "L_qa")
        a.forget_counters()
        self.it_b = None
        left = list(range(7, 21)) + list(range(7))
        NE, NH = self.opt.get("ne", 12), self.opt.get("nh", 4)
        def more():
            if first and len(left) > 21 - NE: self.fw_piece(left.pop(0))
        self.more = more
        if first:
            have = self.lab("havex")
            self.q_ready("A", True)
            I("s_cmp_eq_u32", S(3), 1)
            I("s_cbranch_scc1", have)
            self.q_poll()
            for ks in range(3):
                for _, f in self.xload(ks): f()
            a.label(have)
        else: self.q_poll(lambda: (self.b_to_a(range(14, 21)), self.q_ready("A")))
        self.stamp()
        kf = [V(196, 4), V(200, 4)]
        qf = [V(204, 4), V(208, 4)]
        vp = [V(212, 4), V(216, 4)]
        hp = V(220, 2)
        tail_ops = self.conv_scalar(kf[1], 1, 1, self.cA, ("r", "m"))
        tail_ops.append(lambda: I("ds_write_b128", self.vKrd, kf[1], mods="offset:1024"))
        tail_ops += self.conv_scalar(vp[1], 1, 2, self.cA, ("r", "r"))
        tail_ops.append(lambda: I("ds_write_b128", self.vEXW, vp[1], mods="offset:2048"))
        TV0 = self.opt.get("tv0", 0)
        if TV0:
            tail_ops += self.conv_scalar(vp[0], 0, 2, self.cA, ("r", "r"))
            tail_ops.append(lambda: I("ds_write_b128", self.vEXW, vp[0], mods="offset:1024"))
        rest = self.q_gemm("A", tail_ops, more if first else None)
        for f in rest: f()
        self.stamp()
        more()
        if not TV0:
            self.conv(vp[0], 0, 2, self.cA, ("r", "r"))
            I("ds_write_b128", self.vEXW, vp[0], mods="offset:1024")
        self.ln(self.hacc, self.vCH, self.st(2), "m")
        self.cvt(hp, self.hacc)
        I("ds_write_b64", self.vHW, hp)
        more()
        self.conv(qf[0], 0, 0, self.cA, (None, None))
        self.fine(4, 0)
        a.wait(lg=0)
        I("s_barrier")
        self.fine(4, 1)
        kprev = V(222, 4)
        vt = [V(226, 6), V(232, 6)]
        I("ds_read_b128", kprev, self.vKrd)
        for f in range(2):
            for i in range(3):
                I("ds_read_b64_tr_b16", vt[f][2 * i:2 * i + 2], self.vEXRa, mods=f"offset:{1024 * i + 8 * f}")
        more()
        self.conv(kf[0], 0, 1, self.cA, ("r", "m"))
        more()
        self.conv(qf[1], 1, 0, self.cA, (None, None))
        s = [V(112, 8), V(120, 8)]
        self.mfma(s[1][4:8], kf[1], qf[1], self.bCur)
        self.mfma(s[1][0:4], kf[0], qf[1], self.bPrev)
        self.mfma(s[0][4:8], kf[0], qf[0], self.bCur)
        self.mfma(s[0][0:4], kprev, qf[0], self.bPrev0)
        self.fine(4, 2)
        more()
        m = V(128, 2)
        for t in (1, 0):
            I("v_max3_f32", m[t], s[t][4], s[t][5], s[t][6])
            I("v_max3_f32", m[t], m[t], s[t][7], s[t][0])
            I("v_max3_f32", m[t], m[t], s[t][1], s[t][2])
            I("v_max_f32", m[t], m[t], s[t][3])
        self.allreduce_pairs([("v_max_f32", m[0], m[1])])
        more()
        nm = [V(130, 2), V(132, 2)]
        for t in range(2):
            I("v_mul_f32", nm[t][0], m[t], self.st(t)[3])
        for t in range(2):
            for p in range(4):
                self.I("v_pk_fma_f32", s[t][2 * p:2 * p + 2], s[t][2 * p:2 * p + 2], self.st(t)[2:4], nm[t],
                       mods="op_sel:[0,1,0] op_sel_hi:[1,1,0] neg_lo:[0,0,1] neg_hi:[0,0,1]")
        self.fine(4, 3)
        pf = [V(136, 4), V(140, 4)]
        o = [V(144, 8), V(152, 8)]
        sm = [V(160, 4), V(164, 4)]
        more()
        for k in range(8): I("v_exp_f32", s[0][k], s[0][k])
        more()
        for k in range(2): I("v_exp_f32", s[1][k], s[1][k])
        self.cvt(pf[0], s[0])
        for k in range(2, 4): I("v_exp_f32", s[1][k], s[1][k])
        self.mfma(sm[0], self.aOnes, pf[0], 0)
        I("v_exp_f32", s[1][4], s[1][4])
        self.mfma(o[0][0:4], vt[0][0:4], pf[0], 0)
        I("v_exp_f32", s[1][5], s[1][5])
        self.mfma(o[0][4:8], vt[1][0:4], pf[0], 0)
        for k in range(6, 8): I("v_exp_f32", s[1][k], s[1][k])
        self.cvt(pf[1], s[1])
        self.mfma(sm[1], self.aOnes, pf[1], 0)
        for f in range(2):
            self.mfma(o[1][4 * f:4 * f + 4], vt[f][2:6], pf[1], 0)
        self.fine(4, 4)
        more()
        more()
        self.fine(4, 5)
        self.fin_region = 4
        def hop1():
            for _ in range(NH): self.fw_piece(left.pop(0))
            self.fw_left = left
            assert len(left) <= 7
        if first: self.o_finish(o, sm, [V(168, 4), V(172, 4)], self.wphi_gather, hop1)
        else: self.o_finish(o, sm, [V(168, 4), V(172, 4)], lambda: self.unpark(range(7, 14)), None)
        I("s_mov_b32", self.sPhase, 1)
        I("s_mov_b64", self.sPWc[0:2], self.sWOA[0:2])
        I("s_mov_b32", self.sPWc[2], 401408)
        a.flush()
        I("s_branch", "L_p")

    def phi(self, src, dst, extra=(), done=None):
        a, I = self.a, self.I
        rest = list(extra)
        def more(n=1):
            for _ in range(n):
                if rest: rest.pop(0)()
        p = [V(120, 8), V(128, 8)]
        for t in range(2):
            for oft in range(2):
                self.mfma(p[t][4 * oft:4 * oft + 4], self.aWphi[4 * oft:4 * oft + 4], src[t], 0)
        kk = [V(204, 2), V(206, 2)]
        bb = [V(208, 2), V(210, 2)]
        for t in range(2):
            I("v_mov_b32", kk[t][0], self.st(t)[3])
            I("v_sub_f32", kk[t][1], 0, self.st(t)[3])
        more(3)
        mx, mn = V(188, 2), V(190, 2)
        for t in range(2):
            for k in range(3):
                if k == 0:
                    I("v_max3_f32", mx[t], p[t][0], p[t][1], p[t][2])
                    I("v_min3_f32", mn[t], p[t][0], p[t][1], p[t][2])
                else:
                    I("v_max3_f32", mx[t], mx[t], p[t][2 * k + 1], p[t][2 * k + 2])
                    I("v_min3_f32", mn[t], mn[t], p[t][2 * k + 1], p[t][2 * k + 2])
        self.fine(self.phi_region or -1, 1)
        self.allreduce_pairs([("v_max_f32", mx[0], mx[1]), ("v_min_f32", mn[0], mn[1])])
        for t in range(2):
            I("v_mul_f32", bb[t][0], mx[t], kk[t][1])
            I("v_mul_f32", bb[t][1], mn[t], kk[t][0])
        e = [V(144, 14), V(158, 14)]
        for i in range(7):
            for t in range(2):
                self.pk("v_pk_fma_f32", e[t][2 * i:2 * i + 2], p[t][(i & ~1):(i & ~1) + 2], kk[t], bb[t], bx=i & 1)
        self.fine(self.phi_region or -1, 2)
        for i in range(14):
            for t in range(2): I("v_exp_f32", e[t][i], e[t][i])
            more()
        sm = [V(188, 2), V(190, 2)]
        for t in range(2): self.pk("v_pk_add_f32", sm[t], e[t][0:2], e[t][2:4])
        for i in range(2, 7):
            for t in range(2): self.pk("v_pk_add_f32", sm[t], sm[t], e[t][2 * i:2 * i + 2])
            more()
        self.fine(self.phi_region or -1, 3)
        self.allreduce_pairs([("v_add_f32", sm[0][0], sm[0][1]), ("v_add_f32", sm[1][0], sm[1][1])])
        for t in range(2):
            for k in range(2): I("v_rcp_f32", sm[t][k], sm[t][k])
        for t in range(2):
            more()
            for i in range(7):
                self.pk("v_pk_mul_f32", e[t][2 * i:2 * i + 2], e[t][2 * i:2 * i + 2], sm[t])
                if i == 3: more()
            for s in range(2):
                more()
                for q in range(4):
                    I("v_cvt_pk_bf16_f32", dst[t][s][q], e[t][4 * q + s], e[t][4 * q + 2 + s] if q < 3 else 0)
                if done: done(t, s)
        more(99)

    def qb_stage(self):
        a, I = self.a, self.I
        T = self.sT
        a.label("L_qb")
        a.raw("@VISIT")
        self.q_poll(self.qb_shadow)
        self.stamp()
        kf = qf = [V(196, 4), V(200, 4)]
        rest = self.q_gemm("B", self.conv_scalar(kf[1], 1, 1, self.cB, (None, None)))
        for f in rest: f()
        self.stamp()
        vp = [V(212, 4), V(216, 4)]
        exw = V(220)
        I("v_subrev_u32", exw, L_EXV - L_PH, self.vEXW)
        self.conv(kf[0], 0, 1, self.cB, (None, None))
        for t in (1, 0):
            self.conv(vp[t], t, 2, self.cB, ("r", "e"))
            I("ds_write_b128", exw, vp[t], mods=f"offset:{16384 + 1024 * t}")
        self.fine(3, 0)
        self.phi_region = 3
        ph = [[V(232, 4), V(236, 4)], [V(224, 4), V(228, 4)]]
        self.phi(kf, ph, done=lambda t, s: I("ds_write_b128", exw, ph[t][s], mods=f"offset:{8192 * s + 1024 * t}"))
        self.phi_region = 0
        self.fine(3, 4)
        a.wait(lg=0)
        I("s_barrier")
        self.fine(3, 5)
        lo, hi, real, pr = V(184), V(185), V(186), V(187)
        sP = T[4]
        I("s_lshl_b32", sP, self.sW, 14)
        I("s_sub_u32", sP, self.sKVld, sP)
        I("s_add_u32", sP, sP, 3 * 16384)
        def probe(reg): I("buffer_load_dword", reg, self.vProbe, self.sWS, sP, mods="offen offset:12 sc1")
        P1 = self.opt.get("p1", 0)
        if P1 == 0: probe(pr)
        kacc = V(112, 8)
        def fa(k, oft): return V(128 + 4 * (k * 2 + oft), 4)
        def fb(k): return V(160 + 4 * k, 4)
        for k in range(4):
            for t in range(2):
                I("ds_read_b64_tr_b16", fb(k)[2 * t:2 * t + 2], self.vKB, mods=f"offset:{(2 * k + t) * 1024}")
            for oft in range(2):
                for t in range(2):
                    I("ds_read_b64_tr_b16", fa(k, oft)[2 * t:2 * t + 2], self.vKA, mods=f"offset:{(2 * k + t) * 1024 + 8 * oft}")
            if k:
                for oft in range(2):
                    self.mfma(kacc[4 * oft:4 * oft + 4], fa(k - 1, oft), fb(k - 1), 0 if k == 1 else kacc[4 * oft:4 * oft + 4])
        for oft in range(2):
            self.mfma(kacc[4 * oft:4 * oft + 4], fa(3, oft), fb(3), kacc[4 * oft:4 * oft + 4])
        self.fine(3, 6)
        if P1 == 1: probe(pr)
        def qw(ks, ft): return self.wf(2 * (ks % 3) + ft)
        for ft in range(2):
            for f in self.qa_read(qw(0, ft), ft, 0): f()
        kvp = V(120, 4)
        self.cvt(kvp, kacc)
        I("v_and_b32", kvp[3], "0xffff", kvp[3])
        I("v_or_b32", kvp[3], self.sTag, kvp[3])
        I("buffer_store_dwordx4", kvp, self.vL16, self.sWS, self.sKVst, mods="offen sc1")
        self.stamp()
        sO = [S(8 + k) for k in range(16)]
        sM = T[3]
        def gf(p): return A(4 * p, 4)
        def ready(reg):
            I("v_xor_b32", reg, self.sTag, reg)
            I("v_cmp_ge_u32", VCC, "0xffff", reg)
            I("v_lshrrev_b32", hi, 7, self.vL16)
            I("s_and_b32", sM, VCC_LO, "0xffff")
        def touch(r=(V(188), V(189), V(190))):
            for half in range(2):
                t = r[half]
                if half:
                    I("s_lshr_b32", T[0], sM, 8)
                    I("v_add_u32", r[2], 8192, self.vTA)
                    I("v_and_b32", r[2], "0x3fff", r[2])
                I("v_lshrrev_b32", t, hi, T[0] if half else sM)
                I("v_and_b32", t, 1, t)
                I("v_cmp_eq_u32", VCC, 1, t)
                I("v_mov_b32", t, OOB)
                I("v_cndmask_b32", t, t, r[2] if half else self.vTA, VCC)
                I("buffer_load_dword", self.vDummy, t, self.sWS, self.sKVld, mods="offen sc1", nodest=True)
        for ks in (1, 2):
            for ft in range(2):
                for f in self.qa_read(qw(ks, ft), ft, ks): f()
        rec = []
        keepI, I = I, (lambda *x, **k: rec.append((x, k)))
        I("v_add_u32", real, self.sKVld, self.vProbe)
        for p in range(16): I("v_readlane_b32", sO[p], real, p)
        n_early = len(rec)
        probe(lo)
        ready(pr)
        touch()
        I = keepI
        P2G = self.opt.get("p2g", 14)
        sr = [(0 if k < n_early else P2G, "v" if x[0][0] != "s" else "s", lambda x=x, kw=kw: keepI(*x, **kw)) for k, (x, kw) in enumerate(rec)]
        mf, sw = [], []
        for ks in range(14):
            for ft in range(2):
                for t in range(2):
                    mf.append((self.acc(t, ft), qw(ks, ft), self.xf(t, ks), 0 if ks == 0 else self.acc(t, ft)))
                if ks + 3 < 14: sw += [(len(mf) - 1, "v", f) for f in self.qa_read(qw(ks, ft), ft, ks + 3)]
        sd = [(P2G + 12 + 3 * k, kind, f) for k, (kind, f) in enumerate(self.pw_dma(self.sWOB, (0, 1)))]
        for f in self.sched(mf, [sw, sr, sd]): f()
        self.colsum_b_q2()
        NG = self.opt.get("ng", 6)
        def gload(p, **k): I("buffer_load_dwordx4", gf(p), self.vL16, self.sWS, sO[p], mods="offen sc1", **k)
        def mid(first):
            skip, retry = self.lab("gmid"), self.lab("gretry")
            if not first:
                I("s_cmp_eq_u32", sM, "0xffff")
                I("s_cbranch_scc1", skip)
                a.raw("    s_waitcnt vmcnt(0)")
            ready(lo)
            I("s_cmp_lg_u32", sM, "0xffff")
            I("s_cbranch_scc1", retry if first else skip)
            for p in range(self.opt.get("ng", 6)): gload(p, untracked=True)
            a.label(skip)
            if first:
                def again():
                    self.a.label(retry)
                    probe(lo)
                    self.I("s_branch", skip)
                self.tail.append(again)
        mid(True)
        for t in (1, 0): self.conv(qf[t], t, 0, self.cB, (None, None))
        NG1, NG = NG, NG + self.opt.get("ng2", 6)
        def extra_loads():
            skip = self.lab("gx")
            I("s_cmp_lg_u32", sM, "0xffff")
            I("s_cbranch_scc1", skip)
            for p in range(NG1, NG): gload(p, untracked=True)
            a.label(skip)
        GM, GM2 = self.opt.get("gm", 17), self.opt.get("gm2", 28)
        self.phi(qf, ph, extra=[lambda: None] * GM + [lambda: mid(False)] + [lambda: None] * (GM2 - GM - 1) + [extra_loads])
        self.stamp()
        red = V(176, 8)
        tg = [V(112 + k) for k in range(16)]
        chk, go, slow = self.lab("gchk"), self.lab("ggo"), self.lab("gslow")
        I("s_mov_b32", T[2], 0)
        I("s_cmp_lg_u32", sM, "0xffff")
        I("s_cbranch_scc1", slow)
        a.label(go)
        a.vm = [(None, set(gf(p).regs())) for p in range(NG)]
        self.it_b = T[2]
        self.b_to_a(range(7))
        I("s_mov_b32", T[2], 9)
        I("v_add_u32", exw, L_KVX - L_EXK, self.vKrd)
        I("v_add_u32", V(221), L_KVX, self.vL16)
        mf, sc, sg = [], [], []
        for p in range(16):
            mf.append((red[0:4], self.aSel[2:6], gf(p), 0 if p == 0 else red[0:4]))
            mf.append((red[4:8], self.aSel[0:4], gf(p), 0 if p == 0 else red[4:8]))
            if p + NG < 16: sg.append((2 * p, "v", lambda p=p: gload(p + NG)))
            sc.append((2 * p, "v", lambda p=p: I("v_accvgpr_read_b32", tg[p], gf(p)[3])))
            if p == 1:
                sc.append((2 * p, "v", lambda: I("v_min_u32", lo, tg[0], tg[1])))
                sc.append((2 * p, "v", lambda: I("v_max_u32", hi, tg[0], tg[1])))
            elif p & 1:
                sc.append((2 * p, "v", lambda p=p: I("v_min3_u32", lo, lo, tg[p - 1], tg[p])))
                sc.append((2 * p, "v", lambda p=p: I("v_max3_u32", hi, hi, tg[p - 1], tg[p])))
        rest = self.sched(mf, [sg, sc])
        for f in rest: f()
        I("v_xor_b32", lo, self.sTag, lo)
        I("v_xor_b32", hi, self.sTag, hi)
        I("v_or_b32", lo, lo, hi)
        I("v_cmp_lt_u32", VCC, "0xffff", lo)
        I("s_cbranch_vccnz", slow + "r")

        def tail():
            b = self.a
            b.label(slow)
            probe(lo)
            touch()
            b.I("s_sub_u32", self.sBudget, self.sBudget, 1)
            b.I("s_cbranch_scc1", "L_end")
            b.label(chk)
            ready(lo)
            b.I("s_cmp_lg_u32", sM, "0xffff")
            b.I("s_cbranch_scc1", slow)
            for p in range(NG): gload(p)
            b.I("s_branch", go)
            b.label(slow + "r")
            b.forget_counters()
            probe(lo)
            b.I("s_sub_u32", self.sBudget, self.sBudget, 1)
            b.I("s_cbranch_scc1", "L_end")
            b.wait(vm=0)
            b.I("s_branch", chk)
        self.tail.append(tail)
        self.stamp()
        kvs = V(112, 4)
        self.cvt(kvs, red)
        I("ds_write_b128", exw, kvs)
        a.wait(lg=0)
        I("s_barrier")
        kvf = [[A(0, 4), A(4, 4)], [A(8, 4), A(12, 4)]]
        zf = [A(16, 4), A(20, 4)]
        for s in range(2):
            I("ds_read_b128", zf[s], self.vZ, mods=f"offset:{2048 * s}")
            for dt in range(2):
                I("ds_read_b128", kvf[s][dt], V(221), mods=f"offset:{(2 * s + dt) * 1024}")
        o = [V(144, 8), V(152, 8)]
        dn = [V(160, 4), V(164, 4)]
        mf = []
        for s in range(2):
            for t in range(2): mf.append((dn[t], zf[s], ph[t][s], 0 if s == 0 else dn[t]))
            for t in range(2):
                for dt in range(2):
                    mf.append((o[t][4 * dt:4 * dt + 4], kvf[s][dt], ph[t][s], 0 if s == 0 else o[t][4 * dt:4 * dt + 4]))
        self.sched(mf, [])
        I("s_mov_b32", self.sPhase, 0)
        I("s_mov_b64", self.sPWc[0:2], self.sWOB[0:2])
        I("s_add_u32", self.sIt, self.sIt, 1)
        I("s_add_u32", self.sKVst, self.sKVst, 0x100000)
        I("s_add_u32", self.sKVld, self.sKVld, 0x100000)
        I("s_add_u32", self.sHX, self.sHX, 0x40000)
        for t in range(2): I("v_add_f32", dn[t][0], f32(1e-6), dn[t][0])
        if self.opt.get("wb"):
            skipw = self.lab("nowb")
            I("s_cmp_eq_u32", self.sIt, 2)
            I("s_cselect_b32", T[0], self.sC, 0)
            I("s_cmp_lg_u32", T[0], 7)
            I("s_cbranch_scc1", skipw)
            I("buffer_wbl2", mods="sc1", untracked=True)
            a.label(skipw)
        self.it_b = 1
        self.o_finish(o, dn, [V(116, 4), V(120, 4)], lambda: self.b_to_a(range(7, 14)), None)
        a.flush()
        I("s_branch", "L_p")

    def final(self):
        a, I = self.a, self.I
        T = self.sT
        a.label("L_final")
        a.raw("@VISIT")
        a.forget_counters()
        xo = V(112, 8)
        for n in range(4):
            self.cvt(xo[2 * n:2 * n + 2], self.vR[4 * n:4 * n + 4])
            I("ds_write_b64", V(132 + n), xo[2 * n:2 * n + 2])
        a.wait(lg=0)
        for b in range(2): I("ds_read_b128", V(124 + 4 * b, 4), V(120), mods=f"offset:{1024 * b}")
        for b in range(2): I("buffer_store_dwordx4", V(124 + 4 * b, 4), self.vX0d, self.sOUT, T[2] if b else self.sX0o, mods="offen" + ("", " sc1", " nt", " sc0 sc1")[self.opt.get("outfl", 0)])
        a.label("L_fin2")
        self.stamp()
        if self.opt.get("stamps"):
            I("s_mov_b32", T[7], 63)
            self.stamp(real=True)
            I("s_lshl_b32", T[0], S(2), 2)
            I("s_add_u32", T[0], T[0], self.sW)
            I("s_lshl_b32", T[0], T[0], 8)
            I("s_add_u32", T[0], T[0], WS_STAMP)
            I("v_lshrrev_b32", V(120), 2, self.vL16)
            if self.opt.get("fine") == 5:
                for k in range(7):
                    I("v_readlane_b32", T[1], V(240), k)
                    I("v_writelane_b32", self.vStamp, T[1], 40 + k)
                I("v_readlane_b32", T[1], V(240), 63)
                I("v_writelane_b32", self.vStamp, T[1], 62)
                I("v_readlane_b32", T[1], self.vStamp, 2)
                I("v_writelane_b32", self.vStamp, T[1], 47)
            I("buffer_store_dword", self.vStamp, V(120), self.sWS, T[0], mods="offen")
        I("s_or_b32", T[0], S(2), self.sW)
        I("s_cmp_lg_u32", T[0], 0)
        I("s_cbranch_scc1", "L_end")
        if self.opt.get("dbg"):
            I("s_load_dwordx2", S(8, 2), S(0, 2), 64)
            a.wait(lg=0)
            self.srd(S(12, 4), S(8, 2), 256)
            I("v_lshrrev_b32", V(120), 2, self.vL16)
            I("v_readlane_b32", T[0], self.vStamp, 0)
            I("v_readlane_b32", T[1], self.vStamp, 62)
            I("v_readlane_b32", T[2], self.vStamp, 63)
            I("s_sub_u32", T[1], T[2], T[1])
            I("v_subrev_u32", V(121), T[0], self.vStamp)
            I("v_writelane_b32", V(121), T[1], 0)
            I("v_readlane_b32", T[0], V(121), 32)
            I("v_writelane_b32", V(121), T[0], 15)
            I("buffer_store_dword", V(121), V(120), S(12, 4), 0, mods="offen")
        if self.opt.get("leak"):
            skip = self.lab("noleak")
            I("v_readlane_b32", T[1], self.vStamp, 62)
            I("v_readlane_b32", T[2], self.vStamp, 63)
            I("v_readlane_b32", T[3], self.vStamp, self.opt.get("leakidx", 0))
            I("v_readlane_b32", T[4], self.vStamp, 0)
            I("s_sub_u32", T[1], T[2], T[1])
            I("s_sub_u32", T[3], T[3], T[4])
            I("s_cmp_lt_u32", T[3] if self.opt.get("leakidx") else T[1], self.opt["leak"])
            I("s_cbranch_scc1", skip)
            I("s_cmp_eq_u32", self.sMode, 0)
            I("s_cbranch_scc1", skip)
            I("v_cvt_f32_u32", V(121), T[3] if self.opt.get("leakidx") else T[1])
            I("v_lshrrev_b32", V(121), 16, V(121))
            a.wait(vm=0)
            I("s_mov_b64", EXEC, 1)
            I("buffer_store_short", V(121), OFF, self.sOUT, 0)
            a.label(skip)
        I("s_add_u32", T[0], self.sNonce, "0x10100")
        I("v_mov_b32", V(120), T[0])
        I("s_mov_b64", EXEC, 1)
        I("buffer_store_dword", V(120), OFF, self.sWS, 0)
        I("s_endpgm")

    def place_visits(self, head, lines):
        import subprocess, re
        if not self.opt.get("visit", 0):
            return "\n".join(l for l in lines if l != "@VISIT") + "\n"
        lines = list(lines)
        def render(ls):
            n = sum(l == "@VISIT" for l in ls)
            out, k = [], 0
            for l in ls:
                if l == "@VISIT":
                    out += [f"L_visit_{k}:", "    s_cbranch_execz " + (f"L_visit_{k + 1}" if k + 1 < n else "L_visit_ret")]
                    k += 1
                else: out.append(l)
            return "\n".join(out) + "\n"
        start = lines.index("L_qa1:")
        lines.insert(start + 1, "@VISIT")
        page = 1
        while True:
            open("visit.s", "w").write(head + render(lines))
            subprocess.run(["clang", "-x", "assembler", "-target", "amdgcn-amd-amdhsa", "-mcpu=gfx950", "-c", "visit.s", "-o", "visit.o"], check=True)
            dis = subprocess.run(["llvm-objdump", "-d", "--mcpu=gfx950", "visit.o"], capture_output=True, text=True).stdout
            base = int(re.search(r"([0-9a-f]+) <L_(?:qa1|visit_0)>:", dis).group(1), 16)
            addrs = [int(m.group(1), 16) for m in re.finditer(r"// ([0-9A-F]+):", dis)]
            addrs = [x for x in addrs if x >= base]
            idx = [i for i in range(start, len(lines)) if lines[i] == "@VISIT" or (lines[i].startswith("    ") and not lines[i].startswith("    ;"))]
            assert len(addrs) == len(idx), (len(addrs), len(idx))
            hit = [k for k, x in enumerate(addrs) if x >= base + 4096 * page]
            if not hit: break
            k = hit[0]
            if lines[idx[k]] != "@VISIT": lines.insert(idx[k], "@VISIT")
            page += 1
        return render(lines)

    def build(self):
        a = self.a
        self.prologue()
        self.qa_stage(first=True)
        self.p_stage()
        self.qa_stage()
        self.qb_stage()
        self.final()
        done = 0
        while done < len(self.tail):
            a.forget_counters()
            a.pos += 100
            self.tail[done]()
            done += 1
        a.label("L_end")
        a.I("s_endpgm")
        head = open("cdna_kernels/" + NAME[:-7] + ".s.ref").read().split("; Override launch")[0]
        out = head + f"; @launch grid=(256,1,1) block=(256,1,1) lds={LDS_BYTES}\n"
        lead = f".p2align 12\n.fill {self.opt['epad'] // 4}, 4, 0xbf800000\n" if "epad" in self.opt else ""
        out += f'.amdgcn_target "amdgcn-amd-amdhsa--gfx950"\n.text\n.globl {NAME}\n{lead}.p2align 8\n.type {NAME},@function\n{NAME}:\n'
        out += self.place_visits(out, a.lines)
        out += f""".section .rodata,"a"
.p2align 6
.amdhsa_kernel {NAME}
  .amdhsa_next_free_vgpr 512
  .amdhsa_next_free_sgpr 102
  .amdhsa_accum_offset 256
  .amdhsa_group_segment_fixed_size 0
  .amdhsa_kernarg_size 80
  .amdhsa_user_sgpr_count 2
  .amdhsa_user_sgpr_kernarg_segment_ptr 1
  .amdhsa_system_sgpr_workgroup_id_x 1
.end_amdhsa_kernel
"""
        return out


if __name__ == "__main__":
    opt = {}
    path = sys.argv[1]
    for kv in sys.argv[2:]:
        k, v = kv.split("=")
        opt[k] = int(v)
    g = Gen(opt)
    open(path, "w").write(g.build())
    import subprocess
    r = subprocess.run(["clang", "-x", "assembler", "-target", "amdgcn-amd-amdhsa", "-mcpu=gfx950", "-c", path, "-o", "gen_check.o"], capture_output=True, text=True)
    if r.returncode: print(r.stderr[:3000]); sys.exit(1)
    sz = subprocess.run(["llvm-readelf", "-S", "gen_check.o"], capture_output=True, text=True).stdout
    print("text bytes", [int(l.split()[6], 16) for l in sz.splitlines() if " .text" in l],
          "instructions", sum(g.a.count.values()), "nop states", g.a.nops)
```

```python
import sys
import math
import struct
from emit import Asm, V, A, S, VCC, EXEC, M0, OFF, Special

VCC_LO = Special("vcc_lo", [("s", "vcc")])

NAME = "interleave_layers__sliding_local_dilated__linear_kernel_hedgehog__prompt_kernel"


def f32(x):
    return "0x%08x" % struct.unpack("<I", struct.pack("<f", x))[0]


WS_E = 0x0
WS_FX = 0x1000
WS_FO = 0x5000
WS_SLOW = 0x8000
WS_FH = 0x10000
WS_HELLO = 0x11000
WS_FWF = 0x12000
WS_STAMP = 0xC0000
WS_X = 0x100000
WS_XS = 0x2C0000
WS_O = 0x300000
WS_KV = 0x500000
WS_HX = 0x700000
WS_FW = 0x800000
FW_T = 16 * 86016
WS_SIZE = 0xB00000
OOB = 0x7FFF0000

MAT = 28672
L_PW = 86016
L_SP = 151552
L_KVX = L_SP
L_HX = L_SP
L_WPHI = L_SP + 8192
L_CS = L_SP + 10240
L_EXK = L_PW + 49152
L_EXV = L_EXK + 5120
L_PH = L_PW + 40960
LDS_BYTES = 163840

LOG2E = math.log2(math.e)

DOC = '''; One persistent launch, one workgroup per CU. Tokens are reordered by parity into 16 groups of 128; workgroup
'''


class Neg:
    def __init__(self, r): self.r = r
    def __str__(self): return "-" + str(self.r)
    def regs(self): return self.r.regs()


class Gen:
    def __init__(self, opt):
        self.opt = opt
        self.a = Asm()
        self.tail = []
        self.uid = 0

    def lab(self, base):
        self.uid += 1
        return f"L_{base}_{self.uid}"

    sX0, sWA, sWOA, sWB, sWOB, sOUT, sWS, sWP = (S(24 + 4 * i, 4) for i in range(8))
    (sGrp, sH, sW, sC, sRh, sBase, sTag, sMode, sIt, sPhase, sL, sBudget, sXq, sXSq, sOq, sXp, sXSp, sOp, sFXp, sFOq,
     sFOp, sHX, sHaloProd, sFHp, sKVst, sKVld, sQWo, sFirst, sPend, sX0o, sNonce, sXcc) = (S(56 + i) for i in range(32))
    sPWc = sX0
    sT = [S(88 + i) for i in range(8)]
    sT2 = S(96, 2)
    sStamp = S(98, 2)
    sFW, sQWl, sPWl, sPWo = S(4), S(5), S(6), S(7)

    vL16, vQ0, vQ1, vQv0, vQv1, vQh = (V(1 + i) for i in range(6))
    vP = [V(7 + i) for i in range(4)]
    vQWd, vX0d, vExpHC, vPollQ, vPollM, vPollP, vEXW, vEXRa, vHW, vM3, vStat = (V(11 + i) for i in range(11))
    vE0 = V(22, 2)
    vHalo, vHaloS, vStatSt, vZ, vExpHM, vExpC, vExpM, vMH = (V(24 + i) for i in range(8))
    vCH = V(32, 4)
    bCur, bPrev, bPrev0 = V(36, 4), V(40, 4), V(44, 4)
    vR = V(48, 16)
    cA, cB = V(64, 24), V(88, 24)
    vAv, vTA, vProbe, vHp, vQS = V(240), V(241), V(242), V(243), V(244)
    vDummy = V(245)
    vPWd = [V(246 + i) for i in range(4)]
    vKA, vKB, vPollH, vKrd, vStamp = (V(250 + i) for i in range(5))
    vT = V(255)

    aOnes, aSel, aWphi = A(232, 4), A(236, 6), A(242, 8)

    def acc(self, T, ft): return V(112 + (T * 6 + ft) * 4, 4)
    hacc = V(160, 4)
    def straw(self, T): return V(164 + 4 * T, 4)
    def st(self, T): return V(176 + 4 * T, 4)
    def xf(self, T, ks): return A((ks * 2 + T) * 4, 4)
    def hx(self, ks): return A(56 + 4 * ks, 4) if ks < 12 else self.wf(ks - 6)
    def stash(self, i): return A(112 + 4 * i, 4) if i < 14 else A(200 + 4 * (i - 14), 4)
    def wf(self, f): return A(168 + 4 * f, 4)

    def I(self, *x, **k): self.a.I(*x, **k)

    def stamp(self, real=False):
        if not self.opt.get("stamps") or (self.opt.get("stamps") == 2 and not real):
            return
        a = self.a
        a.I("s_memrealtime" if real or self.opt.get("real") else "s_memtime", self.sStamp)
        a.I("s_mov_b32", M0, self.sT[7])
        a.wait(lg=0)
        a.I("v_writelane_b32", self.vStamp, self.sStamp[0], M0)
        a.I("s_add_u32", self.sT[7], self.sT[7], 1)
        if getattr(self, "fine_pending", False):
            self.fine_pending = False
            for i in range(7): a.I("v_writelane_b32", self.vStamp, S(8 + 2 * i), 40 + i)
            a.I("v_writelane_b32", self.vStamp, self.sStamp[0], 47)

    def fine(self, region, i):
        if self.opt.get("fine") == region and region == 5:
            self.a.raw("    s_memtime s[100:101]")
            self.a.raw("    s_waitcnt lgkmcnt(0)")
            self.a.raw(f"    v_writelane_b32 v240, s100, {i}")
            self.a.pos += 3
            return
        if self.opt.get("fine") == region:
            self.a.raw(f"    s_memtime s[{8 + 2 * i}:{9 + 2 * i}]")
            self.a.pos += 1
            self.fine_pending = True

    def srd(self, dst, src, nbytes):
        self.I("s_mov_b32", dst[0], src[0])
        self.I("s_and_b32", dst[1], src[1], "0xffff")
        self.I("s_mov_b32", dst[2], nbytes)
        self.I("s_mov_b32", dst[3], "0x20000")

    def mfma(self, d, x, y, c):
        self.I("v_mfma_f32_16x16x32_bf16", d, x, y, c)

    def pk(self, op, d, x, y, z=None, bx=None, by=None, bz=None):
        srcs = [(x, bx), (y, by)] + ([(z, bz)] if z is not None else [])
        lo = [0 if b is None else b for _, b in srcs]
        hi = [1 if b is None else b for _, b in srcs]
        mods = []
        if any(lo): mods.append("op_sel:[%s]" % ",".join(map(str, lo)))
        if not all(hi): mods.append("op_sel_hi:[%s]" % ",".join(map(str, hi)))
        self.I(op, d, *[s for s, _ in srcs], mods=" ".join(mods))

    def allreduce_pairs(self, chains):
        for step in range(7):
            for op, x, y in chains:
                if step in (0, 6): self.I("v_permlane32_swap_b32", x, y)
                elif step in (1, 4): self.I(op, x, x, y)
                elif step in (2, 5): self.I("v_mov_b32", y, x)
                else: self.I("v_permlane16_swap_b32", x, y)

    def budget_branch(self, loop):
        if self.opt.get("psleep"): self.I("s_sleep", self.opt["psleep"])
        self.I("s_sub_u32", self.sBudget, self.sBudget, 1)
        self.I("s_cbranch_scc1", "L_end")
        self.I("s_branch", loop)

    def flag_value(self, dst):
        self.I("s_lshl_b32", dst, self.sL, 4)
        self.I("s_or_b32", dst, dst, self.sBase)

    def publish(self, soff):
        a = self.a
        slow, done = self.lab("pubslow"), self.lab("pubdone")
        a.I("s_cmp_eq_u32", self.sMode, 0)
        a.I("s_cbranch_scc1", slow)
        a.I("s_mov_b64", EXEC, 1)
        a.I("buffer_store_dword", self.vT, OFF, self.sWS, soff)
        a.label(done)
        a.I("s_mov_b64", EXEC, -1)

        def tail():
            b = self.a
            b.label(slow)
            b.wait(vm=0)
            b.I("buffer_wbl2", mods="sc1")
            b.wait(vm=0)
            b.I("s_mov_b64", EXEC, 1)
            b.I("buffer_store_dword", self.vT, OFF, self.sWS, soff, mods="sc1")
            b.I("s_branch", done)
        self.tail.append(tail)

    def sched(self, mfmas, streams):
        a = self.a
        streams = [list(s) for s in streams]
        for i, m in enumerate(mfmas):
            self.mfma(*m)
            scalar_free = True
            if i + 1 < len(mfmas):
                n = mfmas[i + 1]
                if a.prewait(n[1], n[2]): scalar_free = False
            if scalar_free:
                for s in streams:
                    if s and s[0][0] <= i and s[0][1] == "s":
                        s.pop(0)[2]()
                        break
            slots = 2
            progress = True
            while slots > 0 and progress:
                progress = False
                for s in streams:
                    if not s or s[0][0] > i: continue
                    cost = 2 if s[0][1] == "w" else 1
                    if cost <= slots:
                        s.pop(0)[2]()
                        slots -= cost
                        progress = True
                        break
        return [it[2] for s in streams for it in s]

    def fw_piece(self, n):
        off = (n // 7) * MAT + (n % 7) * 1024
        self.I("s_add_u32", M0, self.sQWl, off, m0="fw")
        self.I("s_add_u32", self.sT[6], self.sFW, off)
        self.I("buffer_load_dwordx4", self.vL16, self.sWS, self.sT[6], mods="offen lds", untracked=True, m0="fw")

    def piece(self, n):
        n = (n + 7) % 21
        return f"offset:{(n // 7) * MAT + (n % 7) * 1024}"

    def unpark(self, pieces):
        for n in pieces: self.I("ds_write_b128", self.vQS, self.stash(n), mods=self.piece(n))

    def qb_shadow(self):
        a, I = self.a, self.I
        second, done = self.lab("ab2"), self.lab("abdone")
        I("s_cmp_lg_u32", self.sIt, 0)
        I("s_cbranch_scc1", second)
        for n in self.fw_left: self.fw_piece(n)
        a.raw(f"    s_waitcnt vmcnt({1 + len(self.fw_left)})")
        a.pos += 1
        I("s_barrier")
        I("s_lshl_b32", self.sT[0], self.sW, 6)
        self.colsum_part(self.vQh, list(range(14)), 128)
        a.wait_lg_all()
        a.flush()
        I("s_branch", done)
        a.label(second)
        self.unpark(range(7))
        a.label(done)

    def b_to_a(self, pieces):
        a, I = self.a, self.I
        done = self.lab("badone")
        if self.it_b is not None:
            I("s_cmp_lg_u32", self.sIt, self.it_b)
            I("s_cbranch_scc1", done)
        for n in pieces:
            I("ds_read_b128", self.stash(n), self.vQS, mods=self.piece(n))
            I("ds_write_b128", self.vQS, self.stash(n + 1), mods=self.piece(n))
        a.label(done)

    def pw_dma(self, srd, which):
        out = []
        for i in which:
            out.append(("s", lambda i=i: self.I("s_add_u32", M0, self.sPWl, i * 16384, m0="pw")))
            out.append(("s", lambda i=i: self.I("s_add_u32", self.sT[5], self.sPWo, 4 * 28 * i * 896)))
            for b in range(4):
                out.append(("v", lambda b=b: self.I("buffer_load_dwordx4", self.vPWd[b], srd, self.sT[5], mods=f"offen offset:{b * 1024} lds", m0="pw")))
        return out

    def raw_block(self, ks):
        for half in range(2):
            self.I("s_add_u32", M0, self.sT[4], ks * 2048 + half * 1024)
            self.I("s_add_u32", self.sT[6], self.sQWo, (32 * ks + 16 * half) * 2688)
            self.I("buffer_load_dwordx4", self.vQWd, self.sWA, self.sT[6], mods="offen lds", tag=f"raw{ks}")

    def tr_pair(self, dst, base, off):
        return [lambda: self.I("ds_read_b64_tr_b16", dst[0:2], base, mods=f"offset:{off}"),
                lambda: self.I("ds_read_b64_tr_b16", dst[2:4], base, mods=f"offset:{off + 1024}")]

    def qa_read(self, dst, ft, ks):
        off = (ft >> 1) * MAT + ks * 2048 + (ft & 1) * 1024
        if ft < 4: return [lambda: self.I("ds_read_b128", dst, self.vL16, mods=f"offset:{off}")]
        return [lambda: self.I("ds_read_b128", dst, self.vAv, mods=f"offset:{off - 2 * MAT}")]

    def bg(self, n=1):
        if self.bg_next >= self.bg_max: return
        skip = self.lab("bg")
        self.I("s_cmp_eq_u32", self.sW, 3)
        self.I("s_cbranch_scc1", skip)
        for _ in range(n):
            if self.bg_next < self.bg_max:
                self.raw_block(self.bg_next)
                self.bg_next += 1
        self.a.label(skip)

    def prologue(self):
        a, I = self.a, self.I
        T = self.sT
        self.bg_next, self.bg_max = 0, self.opt.get("n1", 3)
        lane, j, g, t0, t1, t2 = V(0), V(115), V(116), V(117), V(118), V(119)
        I("s_load_dwordx4", S(4, 4), S(0, 2), 0)
        I("s_getpc_b64", S(22, 2))
        a.label("L_pc")
        I("v_min_u32", V(113), self.opt.get("pf0", 47), V(0))
        I("v_lshrrev_b32", V(114), 6, V(0))
        I("v_lshlrev_b32", V(113), 7, V(113))
        I("v_readfirstlane_b32", self.sW, V(114))
        I("global_load_dword", self.vDummy, V(113), S(22, 2), mods="offset:128", untracked=True)
        if self.opt.get("stamps"):
            I("s_memrealtime", S(100, 2))
            I("s_memtime", self.sStamp)
        I("s_lshr_b32", T[1], S(2), 8)
        I("s_cbranch_scc1", "L_end")
        I("v_and_b32", lane, 63, V(0))
        I("s_and_b32", T[0], S(2), 7)
        I("s_lshr_b32", T[1], S(2), 7)
        I("s_lshl1_add_u32", self.sGrp, T[0], T[1])
        I("s_lshr_b32", T[1], S(2), 3)
        I("s_and_b32", self.sH, T[1], 15)
        I("s_and_b32", self.sC, T[1], 7)
        I("s_lshr_b32", self.sRh, self.sH, 3)
        I("s_lshl1_add_u32", T[0], self.sGrp, self.sRh)
        I("s_and_b32", T[2], T[0], 15)
        I("s_lshl_b32", T[2], T[2], 2)
        I("s_mulk_i32", T[2], 16 * 1792)
        I("s_lshr_b32", T[5], self.sGrp, 3)
        I("s_mulk_i32", T[5], 7)
        I("s_add_u32", T[5], T[5], self.sC)
        I("s_lshl_b32", T[5], T[5], 7)
        I("s_add_u32", T[2], T[2], T[5])
        I("v_lshrrev_b32", t0, 3, lane)
        I("v_and_b32", t1, 7, lane)
        I("v_mad_u32_u24", t0, t0, 112 // 2, 0)
        I("v_lshl_add_u32", t0, t0, 1, t1)
        I("v_lshlrev_b32", self.vX0d, 4, t0)
        I("v_add_u32", t2, 8 * 1792 - 1024, self.vX0d)
        I("s_mov_b32", self.sX0[2], 1835008)
        I("s_mov_b32", self.sX0[3], "0x20000")
        I("s_mov_b32", M0, L_SP)
        I("s_mov_b32", T[5], T[2])
        no3, nox = self.lab("not3"), self.lab("nox0")
        I("s_cmp_lg_u32", self.sW, 3)
        a.wait(lg=0)
        I("s_mov_b64", self.sX0[0:2], S(4, 2))
        I("s_cbranch_scc1", no3)
        I("s_cmp_eq_u32", self.sC, 7)
        I("s_cbranch_scc1", no3)
        for t in range(4):
            I("buffer_load_dwordx4", self.vX0d, self.sX0, T[5], mods="offen lds")
            I("buffer_load_dwordx4", t2, self.sX0, T[5], mods="offen offset:1024 lds")
            if t < 3:
                I("s_addk_i32", M0, 2048)
                I("s_addk_i32", T[5], 16 * 1792)
        a.label(no3)
        if self.opt.get("fine") == 5: a.raw("    v_writelane_b32 v13, s100, 63")
        self.fine(5, 0)
        I("s_load_dwordx2", S(8, 2), S(0, 2), 16)
        I("s_load_dwordx8", S(12, 8), S(0, 2), 32)
        I("s_load_dwordx2", S(20, 2), S(0, 2), 72)
        self.srd(self.sWA, S(6, 2), 1204224)
        I("s_lshl2_add_u32", T[0], T[0], self.sW)
        I("s_mul_i32", T[5], self.sW, 16 * 1792)
        I("s_add_u32", self.sX0o, T[2], T[5])
        I("s_cmp_lg_u32", self.sW, 3)
        I("s_cbranch_scc1", nox)
        I("v_min_u32", t0, 36, lane)
        I("v_lshlrev_b32", V(121), 7, t0)
        I("s_mul_i32", T[2], S(2), 37 * 128)
        I("s_min_u32", T[2], T[2], 1204224 - 37 * 128)
        I("buffer_load_dword", self.vDummy, V(121), self.sWA, T[2], mods="offen", nodest=True)
        I("s_mul_i32", T[2], T[1], 1280)
        I("v_min_u32", V(112), 9, lane)
        I("v_lshl_add_u32", V(112), V(112), 7, T[2])
        I("v_min_u32", V(112), "L_end-L_pc", V(112))
        I("global_load_dword", self.vDummy, V(112), S(22, 2), untracked=True)
        a.label(nox)
        I("v_and_b32", j, 15, lane)
        I("v_lshrrev_b32", g, 4, lane)
        I("v_lshlrev_b32", self.vL16, 4, lane)
        I("v_lshrrev_b32", t0, 2, lane)
        I("v_mul_u32_u24", t1, 2688, t0)
        I("v_lshrrev_b32", t0, 3, lane)
        I("v_and_b32", t0, 2, t0)
        I("v_and_b32", t2, 3, lane)
        I("v_xor_b32", t0, t0, t2)
        I("v_lshl_add_u32", self.vQWd, t0, 4, t1)
        I("s_mul_i32", self.sQWo, self.sH, 56)
        I("s_mul_i32", T[1], self.sW, 896)
        I("s_add_u32", self.sQWo, self.sQWo, T[1])
        I("s_mul_i32", T[4], self.sW, MAT)
        self.srd(self.sWS, S(20, 2), WS_SIZE)
        I("buffer_load_dword", V(120), OFF, self.sWS, 0, untracked=True)
        self.bg()
        for r, p, n in ((self.sWB, 12, 1204224), (self.sWP, 14, 25088), (self.sWOA, 8, 401408),
                        (self.sWOB, 16, 401408), (self.sOUT, 18, 1835008)):
            self.srd(r, S(p, 2), n)
        I("s_getreg_b32", self.sXcc, "hwreg(HW_REG_XCC_ID)")
        I("s_and_b32", self.sXcc, self.sXcc, 15)
        I("s_lshl_b32", T[1], self.sGrp, 3)
        I("s_lshl_b32", T[2], self.sW, 1)
        I("s_add_u32", T[1], T[1], T[2])
        I("s_mul_i32", self.sXq, T[1], 14336)
        I("s_add_u32", self.sXq, self.sXq, WS_X)
        I("s_lshl_b32", self.sXSq, T[1], 10)
        I("s_add_u32", self.sXSq, self.sXSq, WS_XS)
        I("s_lshl_b32", self.sOq, T[1], 14)
        I("s_lshl_b32", T[2], self.sH, 10)
        I("s_add_u32", self.sOq, self.sOq, T[2])
        I("s_add_u32", self.sOq, self.sOq, WS_O)
        I("s_lshl_b32", T[3], T[1], 7)
        I("s_add_u32", T[3], T[3], WS_FX)
        I("s_mul_i32", self.sXp, T[0], 14336)
        I("s_lshl_b32", T[2], self.sC, 11)
        I("s_add_u32", self.sXp, self.sXp, T[2])
        I("s_add_u32", self.sXp, self.sXp, WS_X)
        I("s_lshl_b32", self.sXSp, T[0], 10)
        I("s_lshl_b32", T[2], self.sC, 7)
        I("s_add_u32", self.sXSp, self.sXSp, T[2])
        I("s_add_u32", self.sXSp, self.sXSp, WS_XS)
        I("s_lshl_b32", self.sOp, T[0], 14)
        I("s_add_u32", self.sOp, self.sOp, WS_O)
        I("s_lshl_b32", self.sFXp, T[0], 7)
        I("s_lshl_b32", T[2], self.sC, 2)
        I("s_add_u32", self.sFXp, self.sFXp, T[2])
        I("s_add_u32", self.sFXp, self.sFXp, WS_FX)
        I("s_lshl_b32", T[1], self.sGrp, 2)
        I("s_add_u32", T[2], T[1], self.sW)
        I("s_lshl_b32", self.sFOq, T[2], 7)
        I("s_lshl_b32", T[2], self.sH, 2)
        I("s_add_u32", self.sFOq, self.sFOq, T[2])
        I("s_add_u32", self.sFOq, self.sFOq, WS_FO)
        I("s_lshr_b32", T[2], T[0], 1)
        I("s_lshl_b32", self.sFOp, T[2], 7)
        I("s_add_u32", self.sFOp, self.sFOp, WS_FO)
        I("s_lshl_b32", self.sHX, self.sGrp, 14)
        I("s_add_u32", self.sHX, self.sHX, WS_HX)
        I("s_lshl_b32", self.sFHp, self.sGrp, 7)
        I("s_add_u32", self.sFHp, self.sFHp, WS_FH)
        I("s_and_b32", T[1], self.sGrp, 7)
        I("s_cmp_eq_u32", T[1], 0)
        I("s_cselect_b32", self.sFirst, 1, 0)
        I("s_cmp_lg_u32", T[1], 7)
        I("s_cselect_b32", T[1], 1, 0)
        I("s_and_b32", T[2], T[0], 7)
        I("s_cmp_eq_u32", T[2], 7)
        I("s_cselect_b32", self.sHaloProd, T[1], 0)
        I("s_lshl_b32", T[1], self.sH, 2)
        I("s_add_u32", T[1], T[1], self.sW)
        I("s_lshl_b32", self.sKVld, T[1], 14)
        I("s_add_u32", self.sKVld, self.sKVld, WS_KV)
        I("s_lshl_b32", T[1], self.sGrp, 10)
        I("s_add_u32", self.sKVst, self.sKVld, T[1])
        I("s_mov_b32", self.sMode, 1)
        I("s_mov_b32", self.sIt, 0)
        I("s_mov_b32", self.sPhase, 0)
        I("s_mov_b32", self.sL, 1)
        I("s_mov_b32", self.sPend, 0)
        I("s_mov_b32", self.sBudget, 400000)
        I("s_mov_b32", S(3), 0)
        self.bg()
        I("v_min_u32", t0, 12, lane)
        I("v_lshlrev_b32", V(122), 7, t0)
        I("v_lshlrev_b32", self.vStatSt, 3, j)
        I("v_and_b32", t0, 7, j)
        I("v_lshlrev_b32", t0, 4, t0)
        I("v_lshl_add_u32", self.vHp, g, 7, t0)
        I("v_lshlrev_b32", t0, 7, j)
        I("v_lshl_add_u32", t0, g, 3, t0)
        I("v_add_u32", V(123), L_SP, t0)
        I("s_mul_i32", self.sQWl, self.sW, 7168)
        I("s_mul_i32", self.sFW, self.sH, 86016)
        I("s_add_u32", self.sFW, self.sFW, self.sQWl)
        I("s_add_u32", self.sFW, self.sFW, WS_FW)
        I("s_lshl_b32", self.sPWl, self.sW, 12)
        I("s_add_u32", self.sPWl, self.sPWl, L_PW)
        I("s_mul_i32", self.sPWo, self.sW, 28 * 896)
        I("s_min_u32", T[1], self.sC, 6)
        I("s_lshl_b32", T[1], T[1], 7)
        I("s_add_u32", self.sPWo, self.sPWo, T[1])
        if self.opt.get("stamps"):
            I("s_mov_b32", T[7], 1)
            I("v_mov_b32", self.vStamp, 0)
            I("v_writelane_b32", self.vStamp, self.sStamp[0], 0)
            if self.opt.get("fine") != 5: I("v_writelane_b32", self.vStamp, S(100), 62)
        I("v_mov_b32", V(127), V(0))
        I("s_cmp_eq_u32", self.sW, 3)
        I("s_cbranch_scc1", "L_s0")
        a.label("L_setup")
        a.forget_counters()
        self.bg()
        self.fine(5, 1)

        r, cc = V(113), V(124)
        I("s_lshl_b32", T[1], self.sW, 11)
        I("v_add_u32", V(114), T[1], V(123))
        I("v_lshrrev_b32", r, 2, j)
        I("v_and_b32", cc, 3, j)
        I("v_lshl_add_u32", t0, g, 2, r)
        I("v_lshlrev_b32", t1, 3, cc)
        I("v_lshl_add_u32", t2, t0, 6, t1)
        I("v_and_b32", V(125), 1, g)
        I("v_lshl_add_u32", self.vQ0, V(125), 5, t2)
        I("v_xor_b32", self.vQ1, 32, self.vQ0)
        I("s_and_b32", T[1], self.sW, 1)
        I("s_lshr_b32", T[2], self.sW, 1)
        I("s_add_u32", T[2], T[2], 1)
        I("s_mul_i32", T[2], T[2], MAT)
        I("s_lshl_b32", T[5], T[1], 10)
        I("s_add_u32", T[2], T[2], T[5])
        I("v_add_u32", self.vQh, T[2], self.vL16)
        I("v_lshl_add_u32", t2, t0, 7, t1)
        I("v_add_u32", t2, L_PW, t2)
        I("v_lshrrev_b32", V(125), 1, t0)
        I("v_and_b32", V(125), 3, V(125))
        for n in range(4):
            I("v_xor_b32", V(126), n, V(125))
            I("v_lshl_add_u32", self.vP[n], V(126), 5, t2)
        self.bg()
        I("v_lshrrev_b32", V(125), 1, t0)
        I("v_xor_b32", V(125), V(125), cc)
        I("v_and_b32", V(125), 3, V(125))
        I("v_lshlrev_b32", V(125), 4, V(125))
        I("v_lshl_add_u32", V(126), t0, 6, V(125))
        I("s_lshl_b32", T[2], self.sW, 11)
        I("s_add_u32", T[5], T[2], L_EXV)
        I("v_add_u32", self.vEXRa, T[5], V(126))
        I("s_lshr_b32", T[5], self.sW, 1)
        I("s_lshl_b32", T[5], T[5], 13)
        I("s_add_u32", T[5], T[5], L_PH)
        I("v_add_u32", self.vKA, T[5], V(126))
        I("s_lshl_b32", T[5], T[1], 3)
        I("s_add_u32", T[5], T[5], L_PH + 16384)
        I("v_add_u32", self.vKB, T[5], V(126))
        I("v_lshrrev_b32", V(125), 1, j)
        I("v_xor_b32", V(125), V(125), g)
        I("v_and_b32", V(125), 3, V(125))
        I("v_lshlrev_b32", V(125), 4, V(125))
        I("v_lshl_add_u32", V(126), j, 6, V(125))
        I("v_add_u32", V(126), L_EXV, V(126))
        I("v_add_u32", self.vEXW, T[2], V(126))
        I("s_lshl_b32", T[5], self.sW, 10)
        I("v_add_u32", V(125), L_EXK, self.vL16)
        I("v_add_u32", self.vKrd, T[5], V(125))
        I("v_add_u32", self.vQS, self.sQWl, self.vL16)
        I("v_add_u32", self.vAv, 2 * MAT, self.vL16)
        I("s_cmp_lt_u32", self.sW, 2)
        I("s_cselect_b64", VCC, -1, 0)
        I("v_cndmask_b32", V(126), V(126), V(125), VCC)
        I("s_lshl_b32", T[5], T[1], 3)
        I("v_add_u32", self.vHW, T[5], V(126))
        self.bg()
        I("v_lshrrev_b32", t0, 3, lane)
        I("v_mul_u32_u24", t1, 896, t0)
        I("v_and_b32", t0, 6, t0)
        I("v_and_b32", t2, 7, lane)
        I("v_xor_b32", t0, t0, t2)
        I("v_lshl_add_u32", self.vPWd[0], t0, 4, t1)
        for b in range(1, 4):
            I("v_add_u32", self.vPWd[b], b * (8 * 896 - 1024), self.vPWd[0])
        I("v_mov_b32", t1, OOB)
        I("v_cmp_gt_u32", VCC, 32, lane)
        I("v_cndmask_b32", self.vPWd[3], t1, self.vPWd[3], VCC)
        I("v_cmp_gt_u32", VCC, 48, lane)
        I("v_cndmask_b32", self.vM3, 0, -1, VCC)
        I("v_cndmask_b32", self.vE0[0], 1.0, 0, VCC)
        I("v_mov_b32", self.vE0[1], 0)
        I("s_cmp_eq_u32", T[1], 1)
        I("s_cselect_b64", VCC, -1, 0)
        I("v_cndmask_b32", self.vMH, -1, self.vM3, VCC)
        I("v_lshl_add_u32", self.vStat, g, 7, self.vStatSt)
        I("s_cmp_eq_u32", self.sFirst, 1)
        I("s_cselect_b64", VCC, -1, 0)
        I("v_cndmask_b32", self.vHalo, self.vL16, t1, VCC)
        I("v_cndmask_b32", self.vHaloS, self.vStat, t1, VCC)
        I("s_or_b32", T[2], self.sGrp, 1)
        I("s_add_u32", T[2], T[2], 1)
        I("v_add_u32", t0, T[2], j)
        I("v_and_b32", t0, 15, t0)
        I("v_lshlrev_b32", self.vProbe, 10, t0)
        I("v_lshrrev_b32", t0, 3, lane)
        I("v_add_u32", t0, T[2], t0)
        I("v_and_b32", t0, 15, t0)
        I("v_lshlrev_b32", t0, 3, t0)
        I("v_and_b32", t2, 7, lane)
        I("v_add_lshl_u32", self.vTA, t0, t2, 7)
        self.bg()
        I("v_lshlrev_b32", self.vZ, 8, g)
        I("v_add_u32", self.vZ, L_KVX + 1024 + 12 * 16, self.vZ)
        I("v_lshlrev_b32", self.vPollP, 2, j)
        I("v_and_b32", t0, 7, lane)
        I("v_min_u32", t0, 6, t0)
        I("v_lshlrev_b32", V(127), 2, t0)
        I("v_min_u32", t0, 13, j)
        I("v_lshlrev_b32", t0, 2, t0)
        I("s_lshl_b32", T[5], self.sH, 7)
        I("s_add_u32", T[5], T[5], WS_FWF)
        I("v_add_u32", t0, T[5], t0)
        I("v_add_u32", t2, self.sFHp, V(127))
        I("s_cmp_eq_u32", self.sFirst, 1)
        I("s_cselect_b32", T[5], 0, 16)
        I("v_cmp_gt_u32", VCC, T[5], lane)
        I("v_cndmask_b32", self.vPollH, t0, t2, VCC)
        I("v_cndmask_b32", self.vExpHM, 0, 16, VCC)
        I("v_cndmask_b32", self.vExpHC, 16, 0, VCC)
        I("v_lshrrev_b32", t2, 3, j)
        I("v_lshl_add_u32", t2, t2, 7, V(127))
        I("v_add_u32", t2, T[3], t2)
        I("s_lshl_b32", T[5], self.sGrp, 7)
        I("s_add_u32", T[5], T[5], WS_HELLO)
        I("v_add_u32", t0, T[5], self.vPollP)
        I("v_and_b32", V(125), 1, g)
        I("v_cmp_eq_u32", VCC, 0, V(125))
        I("v_cndmask_b32", self.vPollQ, t0, t2, VCC)
        I("v_cndmask_b32", self.vPollM, -16, -1, VCC)
        I("v_cndmask_b32", self.vExpM, 0, 16, VCC)
        I("v_mov_b32", t0, self.sXcc)
        I("v_cndmask_b32", self.vExpC, t0, 0, VCC)
        self.bg()
        I("v_mov_b32", V(125), f32(-1e30))
        for rr in range(4):
            I("v_lshl_add_u32", t0, g, 2, rr)
            I("v_sub_u32", t2, j, t0)
            I("v_cmp_gt_u32", VCC, 8, t2)
            I("v_cndmask_b32", self.bCur[rr], V(125), 0, VCC)
            I("v_add_u32", t2, 16, t2)
            I("v_cmp_gt_u32", VCC, 8, t2)
            I("v_cndmask_b32", self.bPrev[rr], V(125), 0, VCC)
        I("s_cmp_eq_u32", self.sW, 0)
        I("s_cselect_b32", T[2], self.sFirst, 0)
        I("s_cmp_eq_u32", T[2], 1)
        I("s_cselect_b64", VCC, -1, 0)
        for rr in range(4):
            I("v_cndmask_b32", self.bPrev0[rr], self.bPrev[rr], V(125), VCC)
        self.bg()
        I("v_mov_b32", t0, "0x3f803f80")
        for k in range(4): I("v_accvgpr_write_b32", self.aOnes[k], t0)
        for k in (0, 1, 4, 5): I("v_accvgpr_write_b32", self.aSel[k], 0)
        I("v_and_b32", V(125), 1, j)
        I("v_lshlrev_b32", V(125), 4, V(125))
        I("v_mov_b32", t0, "0x3f80")
        I("v_lshlrev_b32", t0, V(125), t0)
        I("v_cmp_eq_u32", VCC, r, g)
        I("v_cndmask_b32", t0, 0, t0, VCC)
        I("v_cmp_gt_u32", VCC, 2, cc)
        I("v_cndmask_b32", t2, 0, t0, VCC)
        I("v_cndmask_b32", t0, t0, 0, VCC)
        I("v_accvgpr_write_b32", self.aSel[2], t2)
        I("v_accvgpr_write_b32", self.aSel[3], t0)
        I("v_mov_b32", V(0), V(114))
        got = self.lab("nonce")
        I("s_cmp_eq_u32", self.sW, 3)
        I("s_cbranch_scc1", got)
        a.raw(f"    s_waitcnt vmcnt({2 * self.bg_next})")
        I("v_readfirstlane_b32", self.sNonce, V(120))
        I("s_add_u32", T[1], self.sNonce, "0x10100")
        I("s_and_b32", self.sBase, T[1], "0xffffff00")
        I("s_and_b32", self.sTag, T[1], "0x3fff0000")
        a.label(got)
        I("v_or_b32", self.vExpC, self.sBase, self.vExpC)
        I("v_or_b32", self.vExpHC, self.sBase, self.vExpHC)
        self.stamp()
        I("s_cmp_eq_u32", self.sW, 3)
        I("s_cbranch_scc1", "L_walk")
        I("s_barrier")
        self.stamp()

        N1 = self.bg_next
        ad0, ad1 = V(188), V(189)
        d0, d1 = V(192, 4), V(196, 4)
        I("v_add_u32", ad0, T[4], self.vQ0)
        I("v_add_u32", ad1, T[4], self.vQ1)
        wad = V(191)
        I("v_add_u32", wad, T[4], self.vL16)
        ZP = self.opt.get("zp", 1)
        if ZP:
            zad, zz = V(190), V(200, 2)
            I("v_bfe_u32", zad, self.vL16, 4, 5)
            I("v_bfe_u32", zz[0], self.vL16, 6, 1)
            I("v_lshlrev_b32", zad, 6, zad)
            I("v_lshlrev_b32", zz[0], 5, zz[0])
            I("v_xor_b32", zz[0], 56, zz[0])
            I("v_add3_u32", zad, zad, zz[0], T[4])
            I("v_mov_b32", zz[0], 0)
            I("v_mov_b32", zz[1], 0)
        a.vm = [(f"raw{ks}", set()) for ks in range(N1) for _ in range(2)]
        AH = self.opt.get("ah", 6)
        EL0 = self.opt.get("el0", 10)
        EL1 = self.opt.get("el1", max(EL0 + 1, 14 - AH))
        nxt = N1
        N2 = self.opt.get("n2", 3)
        if N2:
            for _ in range(N2):
                self.raw_block(nxt)
                nxt += 1
            I("s_barrier")
        for ks in range(14):
            while nxt < 14 and nxt <= ks + AH:
                self.raw_block(nxt)
                if nxt == EL0: self.early_look(0)
                nxt += 1
            if ks == self.opt.get("vks", 3) and self.opt.get("visit", 0):
                a.wait_lg_all()
                a.flush()
                I("s_mov_b64", EXEC, 0)
                I("s_cmp_eq_u32", self.sW, 1)
                I("s_cbranch_scc1", "L_visit_1")
                I("s_cmp_eq_u32", self.sW, 2)
                I("s_cbranch_scc1", "L_visit_2")
                I("s_branch", "L_visit_0")
                a.label("L_visit_ret")
                I("s_mov_b64", EXEC, -1)
            if ks == EL1 and EL0 < 14:
                if ks == 13: a.wait_vm_tag("raw13")
                self.early_look(1)
            a.wait_vm_tag(f"raw{ks}")
            if ZP: I("ds_write_b64", zad, zz, mods=f"offset:{ks * 2048}")
            w0, w1 = self.wf(2 * (ks & 1)), self.wf(2 * (ks & 1) + 1)
            for f in self.tr_pair(w0, ad0, ks * 2048) + self.tr_pair(w1, ad1, ks * 2048): f()
            if ks:
                p0, p1 = self.wf(2 * ((ks - 1) & 1)), self.wf(2 * ((ks - 1) & 1) + 1)
                self.mfma(d0, p0, self.aOnes, 0 if ks == 1 else d0)
                self.mfma(d1, p1, self.aOnes, 0 if ks == 1 else d1)
                I("ds_write_b128", wad, p0, mods=f"offset:{(ks - 1) * 2048}")
                I("ds_write_b128", wad, p1, mods=f"offset:{(ks - 1) * 2048 + 1024}")
        self.mfma(d0, self.wf(2), self.aOnes, d0)
        self.mfma(d1, self.wf(3), self.aOnes, d1)
        I("ds_write_b128", wad, self.wf(2), mods=f"offset:{13 * 2048}")
        I("ds_write_b128", wad, self.wf(3), mods=f"offset:{13 * 2048 + 1024}")
        I("v_lshrrev_b32", ad0, 8, self.vL16)
        I("v_lshlrev_b32", ad0, 4, ad0)
        I("s_lshl_b32", T[0], self.sW, 7)
        I("s_add_u32", T[0], T[0], L_CS)
        I("v_add_u32", ad0, T[0], ad0)
        I("s_mov_b32", self.sT2[0], "0x00010001")
        I("s_mov_b32", self.sT2[1], "0x00010001")
        a.flush()
        I("s_mov_b64", EXEC, self.sT2)
        I("ds_write_b128", ad0, d0)
        I("ds_write_b128", ad0, d1, mods="offset:64")
        I("s_mov_b64", EXEC, -1)
        a.wait(lg=0)
        self.fine(5, 4)
        I("s_branch", "L_qa1")
        self.stage0()

    def early_look(self, phase):
        a, I = self.a, self.I
        if phase == 0:
            I("v_mad_u32_u24", V(112), self.vExpM, self.sL, self.vExpC)
            I("buffer_load_dword", V(114), self.vPollQ, self.sWS, 0, mods="offen sc1")
            return
        skip = self.lab("notyet")
        I("v_cmp_ne_u32", VCC, V(112), V(114))
        I("s_cbranch_vccnz", skip)
        vm = list(a.vm)
        for ks in range(3):
            for _, f in self.xload(ks): f()
        a.vm = vm
        I("s_mov_b32", S(3), 1)
        a.label(skip)

    def stage0(self):
        a, I = self.a, self.I
        T = self.sT
        lane = V(127)
        idle, nohalo, pub, nofw = (self.lab(x) for x in ("idle", "nohalo", "pub", "nofw"))
        a.label("L_s0")
        a.forget_counters()
        a.pos += 100
        def hello():
            I("v_readfirstlane_b32", self.sNonce, V(120))
            I("s_lshl_b32", T[1], self.sGrp, 7)
            I("s_lshl2_add_u32", T[2], self.sH, T[1])
            I("s_add_u32", T[2], T[2], WS_HELLO)
            I("s_add_u32", T[1], self.sNonce, "0x10100")
            I("s_and_b32", self.sBase, T[1], "0xffffff00")
            I("s_and_b32", self.sTag, T[1], "0x3fff0000")
            I("s_or_b32", T[1], self.sBase, 16)
            I("v_mov_b32", self.vT, T[1])
            I("s_or_b32", T[1], self.sBase, self.sXcc)
            I("v_mov_b32", V(112), T[1])
            I("s_mov_b64", EXEC, 1)
            I("buffer_store_dword", V(112), OFF, self.sWS, T[2], mods="sc1")
            I("s_mov_b64", EXEC, -1)
        I("s_cmp_eq_u32", self.sC, 7)
        I("s_cbranch_scc1", idle)
        a.raw("    s_waitcnt vmcnt(3)")
        self.fine(5, 2)
        xo = [V(128 + 8 * t, 8) for t in range(4)]
        pr = [V(160 + 2 * t, 2) for t in range(4)]
        for t in range(4):
            for n in range(4): I("ds_read_b64", xo[t][2 * n:2 * n + 2], V(123), mods=f"offset:{2048 * t + 32 * n}")
        one = V(125)
        I("v_mov_b32", one, "0x3f803f80")
        I("s_sub_u32", T[5], self.sXp, 3 * 14336)
        I("s_sub_u32", T[6], self.sXSp, 3 * 1024)
        for t in range(4):
            I("buffer_store_dwordx4", xo[t][0:4], self.vL16, self.sWS, T[5], mods="offen sc1")
            I("buffer_store_dwordx4", xo[t][4:8], self.vL16, self.sWS, T[5], mods="offen offset:1024 sc1")
            if t < 3: I("s_add_u32", T[5], T[5], 14336)
        if self.opt.get("rel", 1) == 0: I("s_barrier")
        a.raw("    s_waitcnt vmcnt(8)")
        hello()
        for k in range(8):
            for t in range(4):
                I("v_dot2_f32_bf16", pr[t][0], xo[t][k], one, 0 if k == 0 else pr[t][0])
                I("v_dot2_f32_bf16", pr[t][1], xo[t][k], xo[t][k], 0 if k == 0 else pr[t][1])
        self.allreduce_pairs([("v_add_f32", pr[t][0], pr[t][1]) for t in range(4)])
        if self.opt.get("stag", 0):
            for t in range(4): I("v_and_or_b32", pr[t][1], pr[t][1], -4, 1)
        I("s_mov_b64", EXEC, "0xffff")
        for t in range(4):
            I("buffer_store_dwordx2", pr[t], self.vStatSt, self.sWS, T[6], mods=f"offen offset:{1024 * t} sc1")
        I("s_mov_b64", EXEC, -1)
        I("s_cmp_eq_u32", self.sHaloProd, 0)
        I("s_cbranch_scc1", nohalo)
        I("s_lshl_b32", T[1], self.sC, 10)
        I("s_add_u32", T[1], T[1], self.sHX)
        I("s_add_u32", T[1], T[1], 16384)
        I("s_mov_b32", self.sT2[0], "0xff00ff00")
        I("s_mov_b32", self.sT2[1], "0xff00ff00")
        I("s_mov_b64", EXEC, self.sT2)
        I("buffer_store_dwordx4", xo[3][0:4], self.vHp, self.sWS, T[1], mods="offen sc1")
        I("buffer_store_dwordx4", xo[3][4:8], self.vHp, self.sWS, T[1], mods="offen offset:512 sc1")
        I("s_lshl_b32", T[1], self.sC, 7)
        I("s_add_u32", T[1], T[1], self.sHX)
        I("s_add_u32", T[1], T[1], 16384 + 14336)
        I("s_mov_b64", EXEC, "0xffff")
        I("buffer_store_dwordx2", pr[3], self.vStatSt, self.sWS, T[1], mods="offen sc1")
        I("s_mov_b64", EXEC, -1)
        a.label(nohalo)
        a.flush()
        I("v_and_b32", V(126), 3, lane)
        I("v_lshlrev_b32", V(126), 7, V(126))
        I("v_lshrrev_b32", V(113), 2, lane)
        I("v_lshl_add_u32", V(126), V(113), 15, V(126))
        I("s_sub_u32", T[2], self.sFXp, 3 * 128)
        I("v_add_u32", V(126), T[2], V(126))
        I("s_lshl_b32", T[1], self.sC, 2)
        I("s_add_u32", T[1], T[1], self.sFHp)
        I("s_add_u32", T[1], T[1], 128)
        I("v_writelane_b32", V(126), T[1], 8)
        I("s_lshl_b32", T[1], self.sHaloProd, 8)
        I("s_or_b32", self.sT2[0], T[1], "0xff")
        I("s_mov_b32", self.sT2[1], 0)
        if self.opt.get("rel", 1) == 1: I("s_barrier")
        a.wait(vm=0)
        I("s_mov_b64", EXEC, self.sT2)
        I("buffer_store_dword", self.vT, V(126), self.sWS, 0, mods="offen sc1")
        I("s_mov_b64", EXEC, -1)
        if self.opt.get("rel", 1) == 2: I("s_barrier")
        self.fine(5, 3)
        I("s_branch", pub)
        a.label(idle)
        a.raw("    s_waitcnt vmcnt(0)")
        hello()
        I("s_barrier")
        a.label(pub)
        if self.opt.get("n2", 3) and self.opt.get("b2", 0) == 0: I("s_barrier")
        a.forget_counters()
        I("s_cmp_ge_u32", self.sGrp, 14)
        I("s_cbranch_scc1", nofw)
        I("s_mul_i32", T[2], self.sH, 56)
        I("s_mul_i32", T[1], self.sGrp, 32 * 2688)
        I("s_add_u32", T[2], T[2], T[1])
        for mat in range(3):
            for half in range(2):
                I("s_mov_b32", M0, L_PW + mat * 2048 + half * 1024)
                I("s_add_u32", T[1], T[2], mat * 896 + half * 16 * 2688)
                I("buffer_load_dwordx4", self.vQWd, self.sWB, T[1], mods="offen lds")
        a.label(nofw)
        I("s_mul_i32", T[1], self.sH, 1568)
        I("s_mov_b32", M0, L_WPHI)
        I("s_mul_i32", T[2], S(2), 13 * 128)
        I("s_min_u32", T[2], T[2], 401408 - 13 * 128)
        I("v_lshrrev_b32", V(112), 3, lane)
        I("v_and_b32", V(113), 7, lane)
        I("v_lshlrev_b32", V(113), 7, V(113))
        I("v_lshl_add_u32", V(126), V(112), 14, V(113))
        I("s_sub_u32", T[5], self.sOq, 6 * 16384)
        I("buffer_load_dwordx4", self.vL16, self.sWP, T[1], mods="offen lds")
        I("buffer_load_dwordx4", self.vL16, self.sWP, T[1], mods="offen offset:1024 lds")
        I("buffer_load_dword", self.vDummy, V(122), self.sWOA, T[2], mods="offen", nodest=True)
        I("buffer_load_dword", self.vDummy, V(122), self.sWOB, T[2], mods="offen", nodest=True)
        I("buffer_load_dword", self.vDummy, V(126), self.sWS, T[5], mods="offen", nodest=True)
        if self.opt.get("n2", 3) and self.opt.get("b2", 0) == 1: I("s_barrier")
        I("s_branch", "L_setup")
        a.label("L_walk")
        a.forget_counters()
        self.stamp()
        nofw2 = self.lab("nofw")
        I("s_cmp_ge_u32", self.sGrp, 14)
        I("s_cbranch_scc1", nofw2)
        zad, zz = V(112), V(116, 2)
        I("v_bfe_u32", zad, self.vL16, 4, 5)
        I("v_bfe_u32", zz[0], self.vL16, 6, 1)
        I("v_lshlrev_b32", zad, 6, zad)
        I("v_lshlrev_b32", zz[0], 5, zz[0])
        I("v_xor_b32", zz[0], 56, zz[0])
        I("v_add_u32", zad, zad, zz[0])
        I("v_add_u32", zad, L_PW, zad)
        I("v_mov_b32", zz[0], 0)
        I("v_mov_b32", zz[1], 0)
        I("v_add_u32", V(113), L_PW, self.vQ0)
        I("v_add_u32", V(115), L_PW, self.vQ1)
        a.raw("    s_waitcnt vmcnt(5)")
        for mat in range(3):
            I("ds_write_b64", zad, zz, mods=f"offset:{mat * 2048}")
            for f in range(2):
                for g in self.tr_pair(V(168 + 8 * mat + 4 * f, 4), V(113 + 2 * f), mat * 2048): g()
        I("s_lshl_b32", T[1], self.sGrp, 11)
        I("s_add_u32", T[1], T[1], self.sFW)
        I("s_sub_u32", T[1], T[1], 3 * 7168)
        for mat in range(3):
            I("s_add_u32", T[2], T[1], mat * MAT)
            for half in range(2):
                I("buffer_store_dwordx4", V(168 + 8 * mat + 4 * half, 4), self.vL16, self.sWS, T[2], mods=f"offen offset:{half * 1024} sc1")
        I("s_lshl_b32", T[1], self.sH, 7)
        I("s_lshl_b32", T[2], self.sGrp, 2)
        I("s_add_u32", T[1], T[1], T[2])
        I("s_add_u32", T[5], T[1], WS_FWF)
        if self.opt.get("el0", 10) < 14: self.early_look(0)
        a.wait(vm=0)
        I("s_mov_b64", EXEC, 1)
        I("buffer_store_dword", self.vT, OFF, self.sWS, T[5], mods="sc1")
        I("s_mov_b64", EXEC, -1)
        if self.opt.get("el0", 10) < 14: self.early_look(1)
        a.label(nofw2)
        self.fine(5, 4)
        I("s_branch", "L_qa1")

    def p_stage(self):
        a, I = self.a, self.I
        T = self.sT
        NPRE = 12
        a.label("L_p")
        a.raw("@VISIT")
        a.forget_counters()
        a.wait(lg=0)
        I("s_barrier")
        I("s_cmp_eq_u32", self.sC, 7)
        I("s_cbranch_scc1", "L_pidle")
        slots = [A(64 + 4 * k, 4) for k in range(12)] + [A(168 + 4 * k, 4) for k in range(8)] + [V(128 + 4 * k, 4) for k in range(28)]
        def pwf(hh, n): return slots[(hh % NPRE) * 4 + n]
        def pw_read(hh, n):
            return [lambda: I("ds_read_b64_tr_b16", pwf(hh, n)[0:2], self.vP[n], mods=f"offset:{hh * 4096}"),
                    lambda: I("ds_read_b64_tr_b16", pwf(hh, n)[2:4], self.vP[n], mods=f"offset:{hh * 4096 + 2048}")]
        self.flag_value(T[0])
        early = 8
        late = [f for _, f in self.pw_dma(self.sPWc, (2, 3))]
        PP = self.opt.get("pp", 3)
        for hh in range(early):
            for n in range(4):
                for f in pw_read(hh, n): f()
                if late and (n & 1 or hh == 0): late.pop(0)()
            if hh == PP: I("buffer_load_dword", V(112), self.vPollP, self.sWS, self.sFOp, mods="offen sc1")
        assert not late
        loop, ok = self.lab("ppoll"), self.lab("ppass")
        if self.opt.get("dual", 1):
            a.wait(vm=0)
            I("v_cmp_ne_u32", VCC, T[0], V(112))
            I("s_cbranch_vccnz", loop)
            def spin():
                b = self.a
                b.label(loop)
                b.I("buffer_load_dword", V(112), self.vPollP, self.sWS, self.sFOp, mods="offen sc1")
                b.nop(self.opt.get("dnop", 8))
                b.label(loop + "l")
                for x, y in ((V(113), V(112)), (V(112), V(113))):
                    b.I("buffer_load_dword", x, self.vPollP, self.sWS, self.sFOp, mods="offen sc1", untracked=True)
                    b.raw("    s_waitcnt vmcnt(1)")
                    b.forget_counters()
                    b.I("v_cmp_ne_u32", VCC, T[0], y)
                    b.I("s_cbranch_vccz", ok)
                self.budget_branch(loop + "l")
            self.tail.append(spin)
        else:
            a.label(loop)
            a.wait(vm=0)
            I("v_cmp_ne_u32", VCC, T[0], V(112))
            I("s_cbranch_vccz", ok)
            I("buffer_load_dword", V(112), self.vPollP, self.sWS, self.sFOp, mods="offen sc1")
            self.budget_branch(loop)
        a.label(ok)
        a.vm = []
        self.stamp()
        def of(hh): return A(4 * hh, 4)
        def oload(hh):
            out = []
            if hh % 4 == 0 and hh:
                out.append(("s", lambda: I("s_add_u32", T[1], self.sOp, hh * 1024)))
            so = self.sOp if hh < 4 else T[1]
            out.append(("v", lambda: I("buffer_load_dwordx4", of(hh), self.vL16, self.sWS, so, mods=f"offen offset:{(hh % 4) * 1024} sc1")))
            return out
        NO = self.opt.get("no", 5)
        for hh in range(NO):
            for _, f in oload(hh): f()
        I("s_barrier")
        for hh in range(early, NPRE):
            for n in range(4):
                for f in pw_read(hh, n): f()
        mf, so, sw = [], [], []
        for hh in range(16):
            for n in range(4):
                mf.append((self.vR[4 * n:4 * n + 4], pwf(hh, n), of(hh), self.vR[4 * n:4 * n + 4]))
                if hh + NPRE < 16:
                    sw += [(4 * hh + n, "v", f) for f in pw_read(hh + NPRE, n)]
            if hh + NO < 16: so += [(4 * hh, k, f) for k, f in oload(hh + NO)]
        j, t = V(136), V(137)
        fa = [("v", lambda: I("v_lshrrev_b32", j, 2, self.vPollP)), ("v", lambda: I("v_lshrrev_b32", t, 9, self.vL16)),
              ("v", lambda: I("v_xor_b32", t, t, j)), ("v", lambda: I("v_and_b32", t, 7, t)), ("v", lambda: I("v_lshlrev_b32", t, 4, t)),
              ("v", lambda: I("v_lshl_add_u32", t, j, 7, t)), ("v", lambda: I("v_bfe_u32", j, self.vL16, 8, 1)),
              ("s", lambda: I("s_lshl_b32", T[1], self.sW, 11)), ("s", lambda: I("s_add_u32", T[1], T[1], L_SP)),
              ("v", lambda: I("v_lshl_add_u32", t, j, 3, t)), ("v", lambda: I("v_add_u32", V(132), T[1], t))]
        fa += [("v", lambda n=n: I("v_xor_b32", V(132 + n), 32 * n, V(132))) for n in range(1, 4)]
        fa += [("v", lambda: I("v_lshrrev_b32", j, 3, self.vL16)), ("v", lambda: I("v_and_b32", j, "0x70", j)),
               ("v", lambda: I("v_xor_b32", j, j, self.vL16)), ("v", lambda: I("v_add_u32", V(120), T[1], j)),
               ("s", lambda: I("s_add_u32", T[2], self.sX0o, 8 * 1792))]
        rest = self.sched(mf, [so, sw, [(48, k, f) for k, f in fa]])
        assert not rest
        a.flush()
        self.stamp()
        I("s_cmp_eq_u32", self.sL, 4)
        I("s_cbranch_scc1", "L_final")

        a.label("L_pepi")
        xo = V(112, 8)
        for k in range(8):
            I("v_cvt_pk_bf16_f32", xo[k], self.vR[2 * k], self.vR[2 * k + 1])
            if k == 3: I("buffer_store_dwordx4", xo[0:4], self.vL16, self.sWS, self.sXp, mods="offen")
        I("buffer_store_dwordx4", xo[4:8], self.vL16, self.sWS, self.sXp, mods="offen offset:1024")
        sm, sq = V(120, 2), V(122, 2)
        self.pk("v_pk_add_f32", sm, self.vR[0:2], self.vR[2:4])
        self.pk("v_pk_mul_f32", sq, self.vR[0:2], self.vR[0:2])
        self.pk("v_pk_fma_f32", sq, self.vR[2:4], self.vR[2:4], sq)
        for k in range(2, 8):
            self.pk("v_pk_add_f32", sm, sm, self.vR[2 * k:2 * k + 2])
            self.pk("v_pk_fma_f32", sq, self.vR[2 * k:2 * k + 2], self.vR[2 * k:2 * k + 2], sq)
        pr = V(124, 2)
        I("v_add_f32", pr[0], sm[0], sm[1])
        I("v_add_f32", pr[1], sq[0], sq[1])
        x, y = pr[0], pr[1]
        I("s_add_u32", self.sL, self.sL, 1)
        I("s_lshl_b32", T[0], self.sL, 4)
        I("v_permlane32_swap_b32", x, y)
        I("s_or_b32", T[0], T[0], self.sBase)
        I("v_add_f32", x, x, y)
        I("v_mov_b32", y, x)
        I("v_mov_b32", self.vT, T[0])
        I("s_cmp_eq_u32", self.sPhase, 0)
        I("v_permlane16_swap_b32", x, y)
        I("s_cselect_b32", self.sPend, self.sHaloProd, 0)
        I("v_add_f32", x, x, y)
        I("v_mov_b32", y, x)
        I("s_lshl_b32", T[1], self.sC, 10)
        I("s_add_u32", T[1], T[1], self.sHX)
        I("v_permlane32_swap_b32", x, y)
        STG = self.opt.get("stag", 0)
        if STG:
            I("s_and_b32", T[2], self.sL, 3)
            I("v_and_or_b32", y, y, -4, T[2])
        I("s_mov_b64", EXEC, "0xffff")
        I("buffer_store_dwordx2", pr, self.vStatSt, self.sWS, self.sXSp, mods="offen")
        I("s_mov_b64", EXEC, -1)
        nh, pub = self.lab("nohalo"), self.lab("pub")
        I("s_cmp_eq_u32", self.sPend, 0)
        I("s_cbranch_scc0", nh)
        wb, wbd = self.lab("pwb"), self.lab("pwbd")
        I("s_cmp_eq_u32", self.sL, 4)
        I("s_cbranch_scc1", wb)
        a.label(wbd)
        def write_back():
            self.a.label(wb)
            for n in range(14, 21): self.I("ds_write_b128", self.vQS, self.stash(n), mods=self.piece(n))
            self.I("s_branch", wbd)
        self.tail.append(write_back)
        a.wait(vm=1 if STG else 0)
        a.label(pub)
        self.publish(self.sFXp)

        def tail():
            b = self.a
            b.label(nh)
            b.I("s_add_u32", T[1], T[1], 16384)
            b.I("s_mov_b32", self.sT2[0], "0xff00ff00")
            b.I("s_mov_b32", self.sT2[1], "0xff00ff00")
            b.I("s_mov_b64", EXEC, self.sT2)
            b.I("buffer_store_dwordx4", xo[0:4], self.vHp, self.sWS, T[1], mods="offen sc1")
            b.I("buffer_store_dwordx4", xo[4:8], self.vHp, self.sWS, T[1], mods="offen offset:512 sc1")
            b.I("s_lshl_b32", T[1], self.sC, 7)
            b.I("s_add_u32", T[1], T[1], self.sHX)
            b.I("s_add_u32", T[1], T[1], 16384 + 14336)
            b.I("s_mov_b64", EXEC, "0xffff")
            b.I("buffer_store_dwordx2", pr, self.vStatSt, self.sWS, T[1], mods="offen sc1")
            b.I("s_mov_b64", EXEC, -1)
            b.wait(vm=4 if STG else 3)
            b.I("s_branch", pub)
        self.tail.append(tail)
        a.label("L_pnext")
        a.flush()
        a.forget_counters()
        self.stamp()
        if self.opt.get("stop"):
            I("s_cmp_eq_u32", self.sL, self.opt["stop"])
            I("s_cbranch_scc1", "L_fin2")
        I("s_cmp_eq_u32", self.sPhase, 1)
        I("s_cbranch_scc1", "L_qb")

        def idle():
            b = self.a
            b.label("L_pidle")
            b.I("s_cmp_eq_u32", self.sL, 4)
            b.I("s_cbranch_scc1", "L_fin2")
            b.I("s_add_u32", self.sL, self.sL, 1)
            b.I("s_cmp_lg_u32", self.sL, 4)
            b.I("s_cbranch_scc1", "L_pnext")
            for n in range(14, 21): b.I("ds_write_b128", self.vQS, self.stash(n), mods=self.piece(n))
            b.I("s_branch", "L_pnext")
        self.tail.append(idle)

    def q_poll(self, shadow=None):
        a, I = self.a, self.I
        T = self.sT
        ex, t, pv = V(112), V(113), V(114)
        loop, ok, pend, nopend, slow, again = (self.lab(x) for x in ("qpoll", "qpass", "pend", "nopend", "qslow", "qagain"))
        I("v_mad_u32_u24", ex, self.vExpM, self.sL, self.vExpC)
        if shadow:
            chk = self.lab("qchk")
            I("buffer_load_dword", pv, self.vPollQ, self.sWS, 0, mods="offen sc1")
            shadow()
            I("s_branch", chk)
        a.label(loop)
        I("buffer_load_dword", pv, self.vPollQ, self.sWS, 0, mods="offen sc1")
        if shadow: a.label(chk)
        I("s_cmp_eq_u32", self.sPend, 0)
        a.wait(vm=0)
        I("s_cbranch_scc0", pend)
        a.label(nopend)
        I("v_xor_b32", t, pv, ex)
        I("v_cmp_ne_u32", VCC, 0, t)
        I("s_cbranch_vccnz", slow)
        a.label(ok)
        a.vm = []

        def tail():
            b = self.a
            b.label(pend)
            b.I("s_lshl_b32", T[1], self.sC, 2)
            b.I("s_add_u32", T[1], T[1], self.sFHp)
            self.flag_value(T[0])
            b.I("v_mov_b32", self.vT, T[0])
            b.I("s_mov_b64", EXEC, 1)
            b.I("buffer_store_dword", self.vT, OFF, self.sWS, T[1], mods="offset:128 sc1")
            b.I("s_mov_b64", EXEC, -1)
            b.I("s_mov_b32", self.sPend, 0)
            b.I("s_branch", nopend)
            b.label(slow)
            if self.opt.get("dual", 1):
                fast, gen = self.lab("qfast"), self.lab("qgen")
                b.I("s_cmp_eq_u32", self.sL, 1)
                b.I("s_cselect_b32", T[0], 0, self.sMode)
                b.I("s_cmp_eq_u32", T[0], 0)
                b.I("s_cbranch_scc1", gen)
                b.I("buffer_load_dword", pv, self.vPollQ, self.sWS, 0, mods="offen sc1")
                b.nop(self.opt.get("dnop", 8))
                b.label(fast)
                for x, y in ((t, pv), (pv, t)):
                    b.I("buffer_load_dword", x, self.vPollQ, self.sWS, 0, mods="offen sc1", untracked=True)
                    b.raw("    s_waitcnt vmcnt(1)")
                    b.forget_counters()
                    b.I("v_cmp_ne_u32", VCC, ex, y)
                    b.I("s_cbranch_vccz", ok)
                self.budget_branch(fast)
                b.label(gen)
            b.I("s_cmp_eq_u32", self.sMode, 0)
            b.I("s_cbranch_scc1", again + "m")
            b.I("v_not_b32", V(115), self.vPollM)
            b.I("v_and_b32", V(116), t, self.vPollM)
            b.I("v_and_b32", V(115), t, V(115))
            b.I("v_cmp_ne_u32", self.sT2, 0, V(115))
            b.I("v_cmp_eq_u32", VCC, 0, V(116))
            b.nop(2)
            b.I("s_cmp_eq_u64", self.sT2, 0)
            b.I("s_cbranch_scc1", again)
            b.I("s_andn2_b32", T[0], "0xffff0000", VCC_LO)
            b.I("s_cbranch_scc1", again)
            b.I("s_mov_b32", self.sMode, 0)
            b.I("s_add_u32", self.sFXp, self.sFXp, WS_SLOW)
            b.I("s_add_u32", self.sFOq, self.sFOq, WS_SLOW)
            b.I("s_add_u32", self.sFOp, self.sFOp, WS_SLOW)
            b.I("v_lshlrev_b32", V(115), 11, self.vExpM)
            b.I("v_add_u32", self.vPollQ, V(115), self.vPollQ)
            b.I("s_branch", again)
            b.label(again + "m")
            b.I("v_and_b32", V(116), t, self.vPollM)
            b.I("v_cmp_ne_u32", VCC, 0, V(116))
            b.I("s_cbranch_vccz", ok)
            b.label(again)
            self.budget_branch(loop)
        self.tail.append(tail)

    def xload(self, ks):
        out = []
        if ks % 4 == 0:
            out.append(("s", lambda: self.I("s_add_u32", self.sT[1], self.sXq, ks * 1024)))
            out.append(("s", lambda: self.I("s_add_u32", self.sT[2], self.sXq, ks * 1024 + 14336)))
        for t in range(2):
            out.append(("v", lambda t=t: self.I("buffer_load_dwordx4", self.xf(t, ks), self.vL16, self.sWS, self.sT[1 + t],
                                               mods=f"offen offset:{(ks % 4) * 1024} sc1")))
        return out

    def stats_ops(self, T, layer):
        raw, st = self.straw(T), self.st(T)
        t = V(188 + 2 * T, 2)
        ops = []
        def add(*x, **k): ops.append(("w" if ("perm" in x[0] or "rsq" in x[0]) else "v", lambda: self.I(*x, **k)))
        add("v_and_b32", raw[2], raw[2], self.vM3)
        add("v_and_b32", raw[3], raw[3], self.vM3)
        add("v_add_f32", raw[0], raw[0], raw[2])
        add("v_add_f32", raw[1], raw[1], raw[3])
        for step in range(7):
            x, y = raw[0], raw[1]
            if step in (0, 6): add("v_permlane32_swap_b32", x, y)
            elif step in (1, 4): add("v_add_f32", x, x, y)
            elif step in (2, 5): add("v_mov_b32", y, x)
            else: add("v_permlane16_swap_b32", x, y)
        add("v_mul_f32", st[0], f32(-1.0 / 448), raw[0])
        add("v_mul_f32", t[0], f32(1.0 / 448), raw[1])
        add("v_fma_f32", t[0], Neg(st[0]), st[0], t[0])
        add("v_max_f32", t[0], 0, t[0])
        add("v_add_f32", t[0], f32(1e-5), t[0])
        add("v_rsq_f32", st[1], t[0])
        add("v_and_b32", st[2], st[1], self.vMH if T == 2 else self.vM3)
        if T < 2:
            add("v_mul_f32", st[3], f32(LOG2E * (28 ** -0.5 if layer == "A" else 1.0)), st[1])
        return ops

    def colsum_part(self, ad, steps, cs_off):
        a, I = self.a, self.I
        d = V(192, 4)
        def w(k): return self.wf(k % 4)
        def rd(k): I("ds_read_b128", w(k), ad, mods=f"offset:{steps[k] * 2048}")
        for k in range(4): rd(k)
        mf, sw = [], []
        for k in range(len(steps)):
            mf.append((d, w(k), self.aOnes, 0 if k == 0 else d))
            if k + 4 < len(steps): sw.append((k, "v", lambda k=k: rd(k + 4)))
        assert not self.sched(mf, [sw])
        I("v_lshrrev_b32", V(189), 8, self.vL16)
        I("v_lshlrev_b32", V(189), 4, V(189))
        I("s_add_u32", self.sT[0], self.sT[0], L_CS + cs_off)
        I("v_add_u32", V(189), self.sT[0], V(189))
        I("s_mov_b32", self.sT2[0], "0x00010001")
        I("s_mov_b32", self.sT2[1], "0x00010001")
        a.flush()
        I("s_mov_b64", EXEC, self.sT2)
        I("ds_write_b128", V(189), d)
        I("s_mov_b64", EXEC, -1)

    def colsum_b_q(self):
        I, T = self.I, self.sT
        I("v_lshrrev_b32", V(188), 8, self.vL16)
        I("v_lshlrev_b32", V(188), 4, V(188))
        I("v_add_u32", V(188), L_CS, V(188))
        for ft in range(2, 6):
            I("ds_read_b128", self.cB[4 * ft:4 * ft + 4], V(188), mods=f"offset:{64 * ft}")
        I("s_lshr_b32", T[0], self.sW, 1)
        I("s_lshl_b32", T[0], T[0], 10)
        I("v_add_u32", V(188), T[0], self.vL16)
        I("s_and_b32", T[0], self.sW, 1)
        I("s_mul_i32", T[0], T[0], 7 * 2048)
        I("v_add_u32", V(188), T[0], V(188))
        I("s_lshl_b32", T[0], self.sW, 6)
        self.colsum_part(V(188), list(range(7)), 512)

    def colsum_b_q2(self):
        a, I = self.a, self.I
        done = self.lab("cq2")
        a.wait_lg_all()
        I("s_cmp_lg_u32", self.sIt, 0)
        I("s_cbranch_scc1", done)
        I("v_lshrrev_b32", V(188), 8, self.vL16)
        I("v_lshlrev_b32", V(188), 4, V(188))
        I("v_add_u32", V(188), L_CS + 512, V(188))
        for k in range(4):
            I("ds_read_b128", self.cB[4 * (k >> 1):4 * (k >> 1) + 4] if k % 2 == 0 else V(204 + 4 * (k >> 1), 4), V(188), mods=f"offset:{64 * k}")
        for k in range(8): I("v_add_f32", self.cB[k], self.cB[k], V(204 + k))
        a.flush()
        a.label(done)

    def cs_read(self, dst, with_halo):
        I = self.I
        ad = V(188)
        I("v_lshrrev_b32", ad, 8, self.vL16)
        I("v_lshlrev_b32", ad, 4, ad)
        I("v_add_u32", ad, L_CS, ad)
        for ft in range(6):
            I("ds_read_b128", dst[4 * ft:4 * ft + 4], ad, mods=f"offset:{64 * ft}")
        if with_halo:
            I("s_lshl_b32", self.sT[0], self.sW, 6)
            I("v_add_u32", V(189), self.sT[0], ad)
            I("ds_read_b128", self.vCH, V(189), mods="offset:128")

    def wphi_gather(self):
        a, I = self.a, self.I
        j, g, f1, ad, t = V(214), V(215), V(216), V(217), V(218)
        I("v_lshrrev_b32", g, 8, self.vL16)
        I("v_lshrrev_b32", j, 2, self.vPollP)
        I("v_lshrrev_b32", t, 2, j)
        I("v_sub_u32", f1, j, t)
        I("v_add_u32", f1, 16, f1)
        I("v_mul_u32_u24", ad, 4 * 56, g)
        I("v_add_u32", ad, L_WPHI, ad)
        I("v_lshl_add_u32", f1, f1, 1, ad)
        I("v_lshl_add_u32", ad, j, 1, ad)
        I("v_and_b32", t, 3, j)
        I("v_cmp_ne_u32", VCC, 3, t)
        I("v_cndmask_b32", t, 0, -1, VCC)
        I("v_and_b32", j, t, self.vM3)
        for oft, base in enumerate((ad, f1)):
            for e in range(8):
                d = e if e < 4 else 16 + e - 4
                I("ds_read_u16", V(204 + e), base, mods=f"offset:{d * 56}")
            for p in range(4):
                I("v_lshl_or_b32", V(204 + 2 * p), V(205 + 2 * p), 16, V(204 + 2 * p))
                m = (None, self.vM3)[p >> 1] if oft == 0 else (t, j)[p >> 1]
                if m is not None: I("v_and_b32", V(204 + 2 * p), V(204 + 2 * p), m)
                I("v_accvgpr_write_b32", self.aWphi[4 * oft + p], V(204 + 2 * p))

    def conv_scalar(self, dst, T, mat, c, scales):
        out = []
        st = self.st(T)
        for f in range(2):
            acc = self.acc(T, 2 * mat + f)
            cc = c[4 * (2 * mat + f):4 * (2 * mat + f) + 4]
            for k in range(4): out.append(lambda acc=acc, cc=cc, k=k: self.I("v_fma_f32", acc[k], cc[k], st[0], acc[k]))
            m = {"r": st[1], "m": st[2], None: None}[scales[f]]
            if m is not None:
                for k in range(4): out.append(lambda acc=acc, m=m, k=k: self.I("v_mul_f32", acc[k], acc[k], m))
            for p in range(2): out.append(lambda acc=acc, f=f, p=p: self.I("v_cvt_pk_bf16_f32", dst[2 * f + p], acc[2 * p], acc[2 * p + 1]))
        return out

    def check_parked(self, before):
        assert self.a.count["ds_read_b128"] - before == 21

    def q_ready(self, layer, first=False):
        a, I = self.a, self.I
        a.wait(lg=0)
        I("s_barrier")
        once = self.lab("once")
        if layer == "B":
            I("s_cmp_lg_u32", self.sIt, 0)
            I("s_cbranch_scc1", once)
        nvm = len(a.vm)
        if layer == "A" and not first:
            pass
        elif layer == "A":
            self.cs_read(self.cA, True)
            for n in range(4): I("ds_read_b64", V(200 + 2 * n, 2), V(0), mods=f"offset:{32 * n}")
            for n in range(4):
                for p in range(2):
                    I("v_lshlrev_b32", self.vR[4 * n + 2 * p], 16, V(200 + 2 * n + p))
                    I("v_and_b32", self.vR[4 * n + 2 * p + 1], "0xffff0000", V(200 + 2 * n + p))
        else:
            self.colsum_b_q()
        a.wait_lg_all()
        a.flush()
        assert nvm == len(a.vm)
        a.label(once)
        for ft in range(0 if layer == "A" else 2, 6):
            for f in self.qa_read(self.wf(ft), ft, 0): f()

    def q_gemm(self, layer, tail_ops=(), first=None):
        a, I = self.a, self.I
        T = self.sT
        isA = layer == "A"
        LOOK = self.opt.get("look", 3)
        if not first:
            for ks in range(2):
                for _, f in self.xload(ks): f()
            if not isA: self.q_ready("B")
            for _, f in self.xload(2): f()
        reads0, writes0 = a.count.get("ds_read_b128", 0), a.count.get("ds_write_b128", 0)
        def bar(n):
            assert a.count["ds_read_b128"] - reads0 == n and not a.lg and a.count.get("ds_write_b128", 0) == writes0
            I("s_barrier")

        G = 12 if isA else 8
        mf, sw, sx, sd, sv, sh, stc = [], [], [], [], [], [], []
        RE = isA and self.opt.get("reord", 1)
        for ks in range(12 if RE else 14):
            order = ((2, 3, 4, 5, 0, 1) if ks == 13 else range(6)) if isA else range(2, 6)
            for ft in order:
                for t in ((1, 0) if ks == 13 else (0, 1)):
                    mf.append((self.acc(t, ft), self.wf(ft), self.xf(t, ks), 0 if ks == 0 else self.acc(t, ft)))
                if ks < 13:
                    sw += [(len(mf) - 1, "v", f) for f in self.qa_read(self.wf(ft), ft, ks + 1)]
                if RE and ks == 11 and ft in (2, 3):
                    sw += [(len(mf) - 1, "v", f) for f in self.qa_read(self.wf(4 + ft), ft, 13)]
        if RE:
            last = {2: 6, 3: 7, 4: 2, 5: 3, 0: 6, 1: 7}
            for mat in (1, 2, 0):
                for ks in (12, 13):
                    for ft in (2 * mat, 2 * mat + 1):
                        slot = ft if ks == 12 else last[ft]
                        for t in (1, 0):
                            mf.append((self.acc(t, ft), self.wf(slot), self.xf(t, ks), self.acc(t, ft)))
                        nxt = [f2 for f2 in last if last[f2] == slot and f2 != ft and ((mat == 1 and ks == 12 and f2 in (4, 5)) or (mat == 1 and ks == 13 and f2 in (0, 1)))]
                        for f2 in nxt: sw += [(len(mf) - 1, "v", f) for f in self.qa_read(self.wf(slot), f2, 13)]
        for k in range(3, 14):
            gap = max(0, G * (k - LOOK) - (6 if k > 6 else 0)) if isA else max(0, G * (k - self.opt.get("lookb", 4)))
            if isA and self.opt.get("slope", 75): gap = (G * (k - 3) * self.opt.get("slope", 75)) // 100
            xl = self.xload(k)
            sx += [(gap, kind, f) for kind, f in xl[:-1]] + [(gap + 4, "v", xl[-1][1])]
            SK = self.opt.get("ska", 6) if isA else self.opt.get("skb", 7)
            if k in (SK, SK + 1):
                for t in (k - SK,):
                    for q in range(2):
                        sx.append((gap + 7 + 2 * q, "v", lambda t=t, q=q: I(
                            "buffer_load_dwordx2", self.straw(t)[2 * q:2 * q + 2], self.vStat, self.sWS, self.sXSq,
                            mods=f"offen offset:{t * 1024 + 512 * q} sc1")))
        s0, s1 = self.stats_ops(0, layer), self.stats_ops(1, layer)
        sv += [(G * SK + 6 - G * self.opt.get("sva", 0) if isA else G * (SK - 1), k, f) for p in zip(s0, s1) for k, f in p]
        x2 = a.count.get("buffer_load_dwordx2", 0)
        def loaded(f, n):
            def g():
                assert a.count["buffer_load_dwordx2"] - x2 >= n, "row sums used before they were requested"
                f()
            return g
        if self.opt.get("stag", 0):
            slow_s, back_s = self.lab("sslow"), self.lab("sback")
            u, w = V(188), V(190)
            r0, r1 = self.straw(0), self.straw(1)
            def chk_ops():
                return [("v", lambda: I("v_xor_b32", u, r0[3], r1[3])), ("v", lambda: I("v_xor_b32", w, r0[1], r1[1])),
                        ("v", lambda: I("v_bitop3_b32", u, u, r0[3], self.sL, mods="bitop3:0xf6")),
                        ("v", lambda: I("v_bitop3_b32", w, w, r0[1], self.sL, mods="bitop3:0xf6")),
                        ("v", lambda: I("v_and_or_b32", u, u, self.vM3, w)), ("v", lambda: I("v_and_b32", u, 3, u)),
                        ("v", lambda: I("v_cmp_ne_u32", VCC, 0, u))]
            def br_s():
                I("s_cbranch_vccnz", slow_s)
                a.label(back_s)
            def tail_s():
                b = self.a
                b.label(slow_s)
                b.I("s_sub_u32", self.sBudget, self.sBudget, 1)
                b.I("s_cbranch_scc1", "L_end")
                for t in range(2):
                    for q in range(2):
                        b.I("buffer_load_dwordx2", self.straw(t)[2 * q:2 * q + 2], self.vStat, self.sWS, self.sXSq,
                            mods=f"offen offset:{t * 1024 + 512 * q} sc1")
                b.wait(vm=0)
                for _, f in chk_ops(): f()
                b.I("s_cbranch_vccnz", slow_s)
                b.I("s_branch", back_s)
            self.tail.append(tail_s)
            co = chk_ops()
            sv = [(sv[0][0], k, f) for k, f in co[:-1]] + [(sv[0][0], "v", lambda: (co[-1][1](), br_s()))] + sv
        sv[0] = (sv[0][0], sv[0][1], loaded(sv[0][2], 4))
        sf = []
        if self.opt.get("fine") == (1 if isA else 2):
            sf = [(G * 2 * i, "s", lambda i=i: self.fine(1 if isA else 2, i)) for i in range(7)]
        nd = 0
        for k, f in self.pw_dma(self.sWOA, (0, 1)) if isA else ():
            sd.append((G * 10 + 2 + 5 * nd, k, f))
            nd += k == "v"
        if isA:
            HF, HC = self.opt.get("hf", 4), self.opt.get("hc", 8)
            hv, hx, fv = V(194), V(195), V(196)
            def check(reg, first, gap, shift):
                slow, back = self.lab("hslow"), self.lab("hback")
                def br():
                    I("v_cmp_ne_u32", VCC, hx, reg)
                    I("s_cbranch_vccnz", slow)
                    a.label(back)
                out = [(first, "v", lambda: I("buffer_load_dword", reg, self.vPollH, self.sWS, 0, mods="offen sc1")),
                       (gap, "v", br)]
                def tail():
                    b = self.a
                    b.label(slow)
                    b.I("s_sub_u32", self.sBudget, self.sBudget, 1)
                    b.I("s_cbranch_scc1", "L_end")
                    b.I("buffer_load_dword", reg, self.vPollH, self.sWS, 0, mods="offen sc1")
                    b.wait(vm=0)
                    b.I("v_cmp_ne_u32", VCC, hx, reg)
                    if shift: b.I("s_lshr_b64", VCC, VCC, 16)
                    b.I("s_cbranch_scc1" if shift else "s_cbranch_vccnz", slow)
                    b.I("s_branch", back)
                self.tail.append(tail)
                return out
            stc = [(2, "v", lambda: I("v_mad_u32_u24", hx, self.vExpHM, self.sL, self.vExpHC))]
            sh += check(hv, G * HF + 8, G * HC, False)
            sh.append((G * HC, "s", lambda: I("s_lshl_b32", T[0], self.sW, 11)))
            sh.append((G * HC, "s", lambda: I("s_add_u32", M0, T[0], L_HX, m0="halo")))
            sh.append((G * HC, "s", lambda: I("s_add_u32", T[0], T[0], self.sHX)))
            for q in range(2):
                sh.append((G * HC, "v", lambda q=q: I("buffer_load_dwordx4", self.vHalo, self.sWS, T[0], mods=f"offen offset:{1024 * q} sc1 lds", tag="halo", m0="halo")))
            sh.append((G * HC, "s", lambda: I("s_add_u32", T[0], self.sHX, 14336)))
            for q in range(2):
                sh.append((G * HC, "v", lambda q=q: I("buffer_load_dwordx2", self.straw(2)[2 * q:2 * q + 2], self.vHaloS, self.sWS, T[0],
                                                     mods=f"offen offset:{512 * q} sc1")))
            sh.append((G * HC, "v", lambda: I("v_add_u32", V(194), L_HX, self.vHp)))
            def hw(k): return A(4 * k, 4)
            shw = []
            had = self.vQh
            for k in range(14): shw.append((G * (1 + (k * 11) // 14) + 3, "v", lambda k=k: I("ds_read_b128", hw(k), had, mods=f"offset:{k * 2048}")))
            s2 = self.stats_ops(2, layer)
            sv2 = [(G * (HC + 4), k, loaded(f, 6)) for k, f in s2]
            nb = len(mf) - 11
            sb = [(nb, "s", lambda: a.wait_vm_tag("halo")), (nb, "s", lambda: a.wait(lg=0)), (nb, "s", lambda: bar(78 + 14 + (21 if first else 0)))]
            sb += [((nb if k < 10 or not RE else len(mf) - 1), "v", lambda k=k: I("ds_read_b128", self.hx(k), V(194), mods=f"offset:{512 * k}")) for k in range(14)]
            n0 = len(mf)
            for k in range(14): mf.append((self.hacc, hw(k), self.hx(k), 0 if k == 0 else self.hacc))
            stl = [(n0 - 6, "v", f) for f in tail_ops]
            if RE:
                stl = [(n0 - 15 if k < 20 else (nb + 1 if k == 20 else n0 - 7), "v", f) for k, f in enumerate(tail_ops)]
            if not first and self.opt.get("otouch", 0):
                sd.append((G * 13, "v", lambda: I("v_mul_u32_u24", V(197), 448, self.vPollP)))
                sd.append((G * 13, "v", lambda: I("buffer_load_dword", self.vDummy, V(197), self.sOUT, self.sX0o, mods="offen", nodest=True)))
            spark, sfw = [], []
            if first:
                spark = [(G * self.opt.get("pk0", 6) + self.opt.get("pkd", 4) * n, "v", lambda n=n: I("ds_read_b128", self.stash(n + 1), self.vQS, mods=self.piece(n))) for n in range(21)]
                sfw = [(nb + 6 + 8 * k, "w", first) for k in range(2)]
            rest = self.sched(mf, [sf, sw, sx, stc, sh, shw, spark, sb, sd, sfw, sv + stl, sv2])
        else:
            n0 = len(mf)
            stl = [(n0 - 4, "v", f) for f in tail_ops]
            rest = self.sched(mf, [sf, sw, sx, sv + stl])
        return rest

    def ln(self, acc, c, st, scale):
        for p in range(2):
            self.pk("v_pk_fma_f32", acc[2 * p:2 * p + 2], c[2 * p:2 * p + 2], st[0:2], acc[2 * p:2 * p + 2], by=0)
        if scale == "r":
            for p in range(2): self.pk("v_pk_mul_f32", acc[2 * p:2 * p + 2], acc[2 * p:2 * p + 2], st[0:2], by=1)
        elif scale == "m":
            for p in range(2): self.pk("v_pk_mul_f32", acc[2 * p:2 * p + 2], acc[2 * p:2 * p + 2], st[2:4], by=0)
        elif scale == "e":
            self.pk("v_pk_fma_f32", acc[0:2], acc[0:2], st[2:4], self.vE0, by=0)
            self.pk("v_pk_mul_f32", acc[2:4], acc[2:4], st[2:4], by=0)

    def cvt(self, dst, src):
        for p in range(src.cnt // 2):
            self.I("v_cvt_pk_bf16_f32", dst[p], src[2 * p], src[2 * p + 1])

    def conv(self, dst, T, mat, c, scales):
        for f in range(2):
            ft = 2 * mat + f
            self.ln(self.acc(T, ft), c[4 * ft:4 * ft + 4], self.st(T), scales[f])
        for f in range(2):
            self.cvt(dst[2 * f:2 * f + 2], self.acc(T, 2 * mat + f))

    def o_finish(self, o, den, of, in_drain, after):
        a, I = self.a, self.I
        T = self.sT
        I("s_add_u32", T[1], self.sOq, 16384)
        self.flag_value(T[0])
        for t in range(2): I("v_rcp_f32", den[t][0], den[t][0])
        I("v_mov_b32", self.vT, T[0])
        for t in range(2):
            for p in range(4): self.pk("v_pk_mul_f32", o[t][2 * p:2 * p + 2], o[t][2 * p:2 * p + 2], den[t][0:2], by=0)
            self.cvt(of[t], o[t])
            I("buffer_store_dwordx4", of[t], self.vL16, self.sWS, T[1] if t else self.sOq, mods="offen")
        self.fine(getattr(self, "fin_region", 0) or -1, 6)
        self.fin_region = 0
        if in_drain: in_drain()
        a.wait(vm=0)
        self.publish(self.sFOq)
        self.stamp()
        if after: after()

    def qa_stage(self, first=False):
        a, I = self.a, self.I
        if first and (self.opt.get("visit", 0) or "pad" in self.opt): a.raw(".p2align 12")
        if first and self.opt.get("pad"): a.raw(f".fill {self.opt['pad'] // 4}, 4, 0xbf800000")
        a.label("L_qa1" if first else "L_qa")
        a.forget_counters()
        self.it_b = None
        left = list(range(7, 21)) + list(range(7))
        NE, NH = self.opt.get("ne", 12), self.opt.get("nh", 4)
        def more():
            if first and len(left) > 21 - NE: self.fw_piece(left.pop(0))
        self.more = more
        if first:
            have = self.lab("havex")
            self.q_ready("A", True)
            I("s_cmp_eq_u32", S(3), 1)
            I("s_cbranch_scc1", have)
            self.q_poll()
            for ks in range(3):
                for _, f in self.xload(ks): f()
            a.label(have)
        else: self.q_poll(lambda: (self.b_to_a(range(14, 21)), self.q_ready("A")))
        self.stamp()
        kf = [V(196, 4), V(200, 4)]
        qf = [V(204, 4), V(208, 4)]
        vp = [V(212, 4), V(216, 4)]
        hp = V(220, 2)
        tail_ops = self.conv_scalar(kf[1], 1, 1, self.cA, ("r", "m"))
        tail_ops.append(lambda: I("ds_write_b128", self.vKrd, kf[1], mods="offset:1024"))
        tail_ops += self.conv_scalar(vp[1], 1, 2, self.cA, ("r", "r"))
        tail_ops.append(lambda: I("ds_write_b128", self.vEXW, vp[1], mods="offset:2048"))
        TV0 = self.opt.get("tv0", 0)
        if TV0:
            tail_ops += self.conv_scalar(vp[0], 0, 2, self.cA, ("r", "r"))
            tail_ops.append(lambda: I("ds_write_b128", self.vEXW, vp[0], mods="offset:1024"))
        rest = self.q_gemm("A", tail_ops, more if first else None)
        for f in rest: f()
        self.stamp()
        more()
        if not TV0:
            self.conv(vp[0], 0, 2, self.cA, ("r", "r"))
            I("ds_write_b128", self.vEXW, vp[0], mods="offset:1024")
        self.ln(self.hacc, self.vCH, self.st(2), "m")
        self.cvt(hp, self.hacc)
        I("ds_write_b64", self.vHW, hp)
        more()
        self.conv(qf[0], 0, 0, self.cA, (None, None))
        self.fine(4, 0)
        a.wait(lg=0)
        I("s_barrier")
        self.fine(4, 1)
        kprev = V(222, 4)
        vt = [V(226, 6), V(232, 6)]
        I("ds_read_b128", kprev, self.vKrd)
        for f in range(2):
            for i in range(3):
                I("ds_read_b64_tr_b16", vt[f][2 * i:2 * i + 2], self.vEXRa, mods=f"offset:{1024 * i + 8 * f}")
        more()
        self.conv(kf[0], 0, 1, self.cA, ("r", "m"))
        more()
        self.conv(qf[1], 1, 0, self.cA, (None, None))
        s = [V(112, 8), V(120, 8)]
        self.mfma(s[1][4:8], kf[1], qf[1], self.bCur)
        self.mfma(s[1][0:4], kf[0], qf[1], self.bPrev)
        self.mfma(s[0][4:8], kf[0], qf[0], self.bCur)
        self.mfma(s[0][0:4], kprev, qf[0], self.bPrev0)
        self.fine(4, 2)
        more()
        m = V(128, 2)
        for t in (1, 0):
            I("v_max3_f32", m[t], s[t][4], s[t][5], s[t][6])
            I("v_max3_f32", m[t], m[t], s[t][7], s[t][0])
            I("v_max3_f32", m[t], m[t], s[t][1], s[t][2])
            I("v_max_f32", m[t], m[t], s[t][3])
        self.allreduce_pairs([("v_max_f32", m[0], m[1])])
        more()
        nm = [V(130, 2), V(132, 2)]
        for t in range(2):
            I("v_mul_f32", nm[t][0], m[t], self.st(t)[3])
        for t in range(2):
            for p in range(4):
                self.I("v_pk_fma_f32", s[t][2 * p:2 * p + 2], s[t][2 * p:2 * p + 2], self.st(t)[2:4], nm[t],
                       mods="op_sel:[0,1,0] op_sel_hi:[1,1,0] neg_lo:[0,0,1] neg_hi:[0,0,1]")
        self.fine(4, 3)
        pf = [V(136, 4), V(140, 4)]
        o = [V(144, 8), V(152, 8)]
        sm = [V(160, 4), V(164, 4)]
        more()
        for k in range(8): I("v_exp_f32", s[0][k], s[0][k])
        more()
        for k in range(2): I("v_exp_f32", s[1][k], s[1][k])
        self.cvt(pf[0], s[0])
        for k in range(2, 4): I("v_exp_f32", s[1][k], s[1][k])
        self.mfma(sm[0], self.aOnes, pf[0], 0)
        I("v_exp_f32", s[1][4], s[1][4])
        self.mfma(o[0][0:4], vt[0][0:4], pf[0], 0)
        I("v_exp_f32", s[1][5], s[1][5])
        self.mfma(o[0][4:8], vt[1][0:4], pf[0], 0)
        for k in range(6, 8): I("v_exp_f32", s[1][k], s[1][k])
        self.cvt(pf[1], s[1])
        self.mfma(sm[1], self.aOnes, pf[1], 0)
        for f in range(2):
            self.mfma(o[1][4 * f:4 * f + 4], vt[f][2:6], pf[1], 0)
        self.fine(4, 4)
        more()
        more()
        self.fine(4, 5)
        self.fin_region = 4
        def hop1():
            for _ in range(NH): self.fw_piece(left.pop(0))
            self.fw_left = left
            assert len(left) <= 7
        if first: self.o_finish(o, sm, [V(168, 4), V(172, 4)], self.wphi_gather, hop1)
        else: self.o_finish(o, sm, [V(168, 4), V(172, 4)], lambda: self.unpark(range(7, 14)), None)
        I("s_mov_b32", self.sPhase, 1)
        I("s_mov_b64", self.sPWc[0:2], self.sWOA[0:2])
        I("s_mov_b32", self.sPWc[2], 401408)
        a.flush()
        I("s_branch", "L_p")

    def phi(self, src, dst, extra=(), done=None):
        a, I = self.a, self.I
        rest = list(extra)
        def more(n=1):
            for _ in range(n):
                if rest: rest.pop(0)()
        p = [V(120, 8), V(128, 8)]
        for t in range(2):
            for oft in range(2):
                self.mfma(p[t][4 * oft:4 * oft + 4], self.aWphi[4 * oft:4 * oft + 4], src[t], 0)
        kk = [V(204, 2), V(206, 2)]
        bb = [V(208, 2), V(210, 2)]
        for t in range(2):
            I("v_mov_b32", kk[t][0], self.st(t)[3])
            I("v_sub_f32", kk[t][1], 0, self.st(t)[3])
        more(3)
        mx, mn = V(188, 2), V(190, 2)
        for t in range(2):
            for k in range(3):
                if k == 0:
                    I("v_max3_f32", mx[t], p[t][0], p[t][1], p[t][2])
                    I("v_min3_f32", mn[t], p[t][0], p[t][1], p[t][2])
                else:
                    I("v_max3_f32", mx[t], mx[t], p[t][2 * k + 1], p[t][2 * k + 2])
                    I("v_min3_f32", mn[t], mn[t], p[t][2 * k + 1], p[t][2 * k + 2])
        self.fine(self.phi_region or -1, 1)
        self.allreduce_pairs([("v_max_f32", mx[0], mx[1]), ("v_min_f32", mn[0], mn[1])])
        for t in range(2):
            I("v_mul_f32", bb[t][0], mx[t], kk[t][1])
            I("v_mul_f32", bb[t][1], mn[t], kk[t][0])
        e = [V(144, 14), V(158, 14)]
        for i in range(7):
            for t in range(2):
                self.pk("v_pk_fma_f32", e[t][2 * i:2 * i + 2], p[t][(i & ~1):(i & ~1) + 2], kk[t], bb[t], bx=i & 1)
        self.fine(self.phi_region or -1, 2)
        for i in range(14):
            for t in range(2): I("v_exp_f32", e[t][i], e[t][i])
            more()
        sm = [V(188, 2), V(190, 2)]
        for t in range(2): self.pk("v_pk_add_f32", sm[t], e[t][0:2], e[t][2:4])
        for i in range(2, 7):
            for t in range(2): self.pk("v_pk_add_f32", sm[t], sm[t], e[t][2 * i:2 * i + 2])
            more()
        self.fine(self.phi_region or -1, 3)
        self.allreduce_pairs([("v_add_f32", sm[0][0], sm[0][1]), ("v_add_f32", sm[1][0], sm[1][1])])
        for t in range(2):
            for k in range(2): I("v_rcp_f32", sm[t][k], sm[t][k])
        for t in range(2):
            more()
            for i in range(7):
                self.pk("v_pk_mul_f32", e[t][2 * i:2 * i + 2], e[t][2 * i:2 * i + 2], sm[t])
                if i == 3: more()
            for s in range(2):
                more()
                for q in range(4):
                    I("v_cvt_pk_bf16_f32", dst[t][s][q], e[t][4 * q + s], e[t][4 * q + 2 + s] if q < 3 else 0)
                if done: done(t, s)
        more(99)

    def qb_stage(self):
        a, I = self.a, self.I
        T = self.sT
        a.label("L_qb")
        a.raw("@VISIT")
        self.q_poll(self.qb_shadow)
        self.stamp()
        kf = qf = [V(196, 4), V(200, 4)]
        rest = self.q_gemm("B", self.conv_scalar(kf[1], 1, 1, self.cB, (None, None)))
        for f in rest: f()
        self.stamp()
        vp = [V(212, 4), V(216, 4)]
        exw = V(220)
        I("v_subrev_u32", exw, L_EXV - L_PH, self.vEXW)
        self.conv(kf[0], 0, 1, self.cB, (None, None))
        for t in (1, 0):
            self.conv(vp[t], t, 2, self.cB, ("r", "e"))
            I("ds_write_b128", exw, vp[t], mods=f"offset:{16384 + 1024 * t}")
        self.fine(3, 0)
        self.phi_region = 3
        ph = [[V(232, 4), V(236, 4)], [V(224, 4), V(228, 4)]]
        self.phi(kf, ph, done=lambda t, s: I("ds_write_b128", exw, ph[t][s], mods=f"offset:{8192 * s + 1024 * t}"))
        self.phi_region = 0
        self.fine(3, 4)
        a.wait(lg=0)
        I("s_barrier")
        self.fine(3, 5)
        lo, hi, real, pr = V(184), V(185), V(186), V(187)
        sP = T[4]
        I("s_lshl_b32", sP, self.sW, 14)
        I("s_sub_u32", sP, self.sKVld, sP)
        I("s_add_u32", sP, sP, 3 * 16384)
        def probe(reg): I("buffer_load_dword", reg, self.vProbe, self.sWS, sP, mods="offen offset:12 sc1")
        P1 = self.opt.get("p1", 0)
        if P1 == 0 and not self.opt.get("notouch", 1): probe(pr)
        kacc = V(112, 8)
        def fa(k, oft): return V(128 + 4 * (k * 2 + oft), 4)
        def fb(k): return V(160 + 4 * k, 4)
        for k in range(4):
            for t in range(2):
                I("ds_read_b64_tr_b16", fb(k)[2 * t:2 * t + 2], self.vKB, mods=f"offset:{(2 * k + t) * 1024}")
            for oft in range(2):
                for t in range(2):
                    I("ds_read_b64_tr_b16", fa(k, oft)[2 * t:2 * t + 2], self.vKA, mods=f"offset:{(2 * k + t) * 1024 + 8 * oft}")
            if k:
                for oft in range(2):
                    self.mfma(kacc[4 * oft:4 * oft + 4], fa(k - 1, oft), fb(k - 1), 0 if k == 1 else kacc[4 * oft:4 * oft + 4])
        for oft in range(2):
            self.mfma(kacc[4 * oft:4 * oft + 4], fa(3, oft), fb(3), kacc[4 * oft:4 * oft + 4])
        self.fine(3, 6)
        if P1 == 1: probe(pr)
        def qw(ks, ft): return self.wf(2 * (ks % 3) + ft)
        for ft in range(2):
            for f in self.qa_read(qw(0, ft), ft, 0): f()
        kvp = V(120, 4)
        self.cvt(kvp, kacc)
        I("v_and_b32", kvp[3], "0xffff", kvp[3])
        I("v_or_b32", kvp[3], self.sTag, kvp[3])
        I("buffer_store_dwordx4", kvp, self.vL16, self.sWS, self.sKVst, mods="offen sc1")
        self.stamp()
        sO = [S(8 + k) for k in range(16)]
        sM = T[3]
        def gf(p): return A(4 * p, 4)
        def ready(reg):
            I("v_xor_b32", reg, self.sTag, reg)
            I("v_cmp_ge_u32", VCC, "0xffff", reg)
            I("v_lshrrev_b32", hi, 7, self.vL16)
            I("s_and_b32", sM, VCC_LO, "0xffff")
        def touch(r=(V(188), V(189), V(190))):
            for half in range(2):
                t = r[half]
                if half:
                    I("s_lshr_b32", T[0], sM, 8)
                    I("v_add_u32", r[2], 8192, self.vTA)
                    I("v_and_b32", r[2], "0x3fff", r[2])
                I("v_lshrrev_b32", t, hi, T[0] if half else sM)
                I("v_and_b32", t, 1, t)
                I("v_cmp_eq_u32", VCC, 1, t)
                I("v_mov_b32", t, OOB)
                I("v_cndmask_b32", t, t, r[2] if half else self.vTA, VCC)
                I("buffer_load_dword", self.vDummy, t, self.sWS, self.sKVld, mods="offen sc1", nodest=True)
        for ks in (1, 2):
            for ft in range(2):
                for f in self.qa_read(qw(ks, ft), ft, ks): f()
        rec = []
        keepI, I = I, (lambda *x, **k: rec.append((x, k)))
        I("v_add_u32", real, self.sKVld, self.vProbe)
        for p in range(16): I("v_readlane_b32", sO[p], real, p)
        n_early = len(rec)
        probe(lo)
        if not self.opt.get("notouch", 1):
            ready(pr)
            touch()
        I = keepI
        P2G = self.opt.get("p2g", 24)
        sr = [(0 if k < n_early else P2G, "v" if x[0][0] != "s" else "s", lambda x=x, kw=kw: keepI(*x, **kw)) for k, (x, kw) in enumerate(rec)]
        mf, sw = [], []
        for ks in range(14):
            for ft in range(2):
                for t in range(2):
                    mf.append((self.acc(t, ft), qw(ks, ft), self.xf(t, ks), 0 if ks == 0 else self.acc(t, ft)))
                if ks + 3 < 14: sw += [(len(mf) - 1, "v", f) for f in self.qa_read(qw(ks, ft), ft, ks + 3)]
        sd = [(P2G + 12 + 3 * k, kind, f) for k, (kind, f) in enumerate(self.pw_dma(self.sWOB, (0, 1)))]
        for f in self.sched(mf, [sw, sr, sd]): f()
        self.colsum_b_q2()
        NG = self.opt.get("ng", 6)
        def gload(p, **k): I("buffer_load_dwordx4", gf(p), self.vL16, self.sWS, sO[p], mods="offen sc1", **k)
        def mid(first):
            skip, retry = self.lab("gmid"), self.lab("gretry")
            if not first:
                I("s_cmp_eq_u32", sM, "0xffff")
                I("s_cbranch_scc1", skip)
                a.raw("    s_waitcnt vmcnt(0)")
            ready(lo)
            I("s_cmp_lg_u32", sM, "0xffff")
            I("s_cbranch_scc1", retry if first else skip)
            for p in range(self.opt.get("ng", 6)): gload(p, untracked=True)
            a.label(skip)
            if first:
                def again():
                    self.a.label(retry)
                    probe(lo)
                    self.I("s_branch", skip)
                self.tail.append(again)
        mid(True)
        for t in (1, 0): self.conv(qf[t], t, 0, self.cB, (None, None))
        NG1, NG = NG, NG + self.opt.get("ng2", 6)
        def extra_loads():
            skip = self.lab("gx")
            I("s_cmp_lg_u32", sM, "0xffff")
            I("s_cbranch_scc1", skip)
            for p in range(NG1, NG): gload(p, untracked=True)
            a.label(skip)
        GM, GM2 = self.opt.get("gm", 17), self.opt.get("gm2", 28)
        self.phi(qf, ph, extra=[lambda: None] * GM + [lambda: mid(False)] + [lambda: None] * (GM2 - GM - 1) + [extra_loads])
        self.stamp()
        red = V(176, 8)
        tg = [V(112 + k) for k in range(16)]
        chk, go, slow = self.lab("gchk"), self.lab("ggo"), self.lab("gslow")
        I("s_mov_b32", T[2], 0)
        I("s_cmp_lg_u32", sM, "0xffff")
        I("s_cbranch_scc1", slow)
        a.label(go)
        a.vm = [(None, set(gf(p).regs())) for p in range(NG)]
        self.it_b = T[2]
        self.b_to_a(range(7))
        I("s_mov_b32", T[2], 9)
        I("v_add_u32", exw, L_KVX - L_EXK, self.vKrd)
        I("v_add_u32", V(221), L_KVX, self.vL16)
        mf, sc, sg = [], [], []
        for p in range(16):
            mf.append((red[0:4], self.aSel[2:6], gf(p), 0 if p == 0 else red[0:4]))
            mf.append((red[4:8], self.aSel[0:4], gf(p), 0 if p == 0 else red[4:8]))
            if p + NG < 16: sg.append((2 * p, "v", lambda p=p: gload(p + NG)))
            sc.append((2 * p, "v", lambda p=p: I("v_accvgpr_read_b32", tg[p], gf(p)[3])))
            if p == 1:
                sc.append((2 * p, "v", lambda: I("v_min_u32", lo, tg[0], tg[1])))
                sc.append((2 * p, "v", lambda: I("v_max_u32", hi, tg[0], tg[1])))
            elif p & 1:
                sc.append((2 * p, "v", lambda p=p: I("v_min3_u32", lo, lo, tg[p - 1], tg[p])))
                sc.append((2 * p, "v", lambda p=p: I("v_max3_u32", hi, hi, tg[p - 1], tg[p])))
        rest = self.sched(mf, [sg, sc])
        for f in rest: f()
        I("v_xor_b32", lo, self.sTag, lo)
        I("v_xor_b32", hi, self.sTag, hi)
        I("v_or_b32", lo, lo, hi)
        I("v_cmp_lt_u32", VCC, "0xffff", lo)
        I("s_cbranch_vccnz", slow + "r")

        def tail():
            b = self.a
            b.label(slow)
            probe(lo)
            touch()
            b.I("s_sub_u32", self.sBudget, self.sBudget, 1)
            b.I("s_cbranch_scc1", "L_end")
            b.label(chk)
            ready(lo)
            b.I("s_cmp_lg_u32", sM, "0xffff")
            b.I("s_cbranch_scc1", slow)
            for p in range(NG): gload(p)
            b.I("s_branch", go)
            b.label(slow + "r")
            b.forget_counters()
            probe(lo)
            b.I("s_sub_u32", self.sBudget, self.sBudget, 1)
            b.I("s_cbranch_scc1", "L_end")
            b.wait(vm=0)
            b.I("s_branch", chk)
        self.tail.append(tail)
        self.stamp()
        kvs = V(112, 4)
        self.cvt(kvs, red)
        I("ds_write_b128", exw, kvs)
        a.wait(lg=0)
        I("s_barrier")
        kvf = [[A(0, 4), A(4, 4)], [A(8, 4), A(12, 4)]]
        zf = [A(16, 4), A(20, 4)]
        for s in range(2):
            I("ds_read_b128", zf[s], self.vZ, mods=f"offset:{2048 * s}")
            for dt in range(2):
                I("ds_read_b128", kvf[s][dt], V(221), mods=f"offset:{(2 * s + dt) * 1024}")
        o = [V(144, 8), V(152, 8)]
        dn = [V(160, 4), V(164, 4)]
        mf = []
        for s in range(2):
            for t in range(2): mf.append((dn[t], zf[s], ph[t][s], 0 if s == 0 else dn[t]))
            for t in range(2):
                for dt in range(2):
                    mf.append((o[t][4 * dt:4 * dt + 4], kvf[s][dt], ph[t][s], 0 if s == 0 else o[t][4 * dt:4 * dt + 4]))
        self.sched(mf, [])
        I("s_mov_b32", self.sPhase, 0)
        I("s_mov_b64", self.sPWc[0:2], self.sWOB[0:2])
        I("s_add_u32", self.sIt, self.sIt, 1)
        I("s_add_u32", self.sKVst, self.sKVst, 0x100000)
        I("s_add_u32", self.sKVld, self.sKVld, 0x100000)
        I("s_add_u32", self.sHX, self.sHX, 0x40000)
        for t in range(2): I("v_add_f32", dn[t][0], f32(1e-6), dn[t][0])
        if self.opt.get("wb"):
            skipw = self.lab("nowb")
            I("s_cmp_eq_u32", self.sIt, 2)
            I("s_cselect_b32", T[0], self.sC, 0)
            I("s_cmp_lg_u32", T[0], 7)
            I("s_cbranch_scc1", skipw)
            I("buffer_wbl2", mods="sc1", untracked=True)
            a.label(skipw)
        self.it_b = 1
        self.o_finish(o, dn, [V(116, 4), V(120, 4)], lambda: self.b_to_a(range(7, 14)), None)
        a.flush()
        I("s_branch", "L_p")

    def final(self):
        a, I = self.a, self.I
        T = self.sT
        a.label("L_final")
        a.raw("@VISIT")
        a.forget_counters()
        xo = V(112, 8)
        for n in range(4):
            self.cvt(xo[2 * n:2 * n + 2], self.vR[4 * n:4 * n + 4])
            I("ds_write_b64", V(132 + n), xo[2 * n:2 * n + 2])
        a.wait(lg=0)
        for b in range(2): I("ds_read_b128", V(124 + 4 * b, 4), V(120), mods=f"offset:{1024 * b}")
        for b in range(2): I("buffer_store_dwordx4", V(124 + 4 * b, 4), self.vX0d, self.sOUT, T[2] if b else self.sX0o, mods="offen" + ("", " sc1", " nt", " sc0 sc1")[self.opt.get("outfl", 0)])
        a.label("L_fin2")
        self.stamp()
        if self.opt.get("stamps"):
            I("s_mov_b32", T[7], 63)
            self.stamp(real=True)
            I("s_lshl_b32", T[0], S(2), 2)
            I("s_add_u32", T[0], T[0], self.sW)
            I("s_lshl_b32", T[0], T[0], 8)
            I("s_add_u32", T[0], T[0], WS_STAMP)
            I("v_lshrrev_b32", V(120), 2, self.vL16)
            if self.opt.get("fine") == 5:
                for k in range(7):
                    I("v_readlane_b32", T[1], V(240), k)
                    I("v_writelane_b32", self.vStamp, T[1], 40 + k)
                I("v_readlane_b32", T[1], V(240), 63)
                I("v_writelane_b32", self.vStamp, T[1], 62)
                I("v_readlane_b32", T[1], self.vStamp, 2)
                I("v_writelane_b32", self.vStamp, T[1], 47)
            I("buffer_store_dword", self.vStamp, V(120), self.sWS, T[0], mods="offen")
        I("s_or_b32", T[0], S(2), self.sW)
        I("s_cmp_lg_u32", T[0], 0)
        I("s_cbranch_scc1", "L_end")
        if self.opt.get("dbg"):
            I("s_load_dwordx2", S(8, 2), S(0, 2), 64)
            a.wait(lg=0)
            self.srd(S(12, 4), S(8, 2), 256)
            I("v_lshrrev_b32", V(120), 2, self.vL16)
            I("v_readlane_b32", T[0], self.vStamp, 0)
            I("v_readlane_b32", T[1], self.vStamp, 62)
            I("v_readlane_b32", T[2], self.vStamp, 63)
            I("s_sub_u32", T[1], T[2], T[1])
            I("v_subrev_u32", V(121), T[0], self.vStamp)
            I("v_writelane_b32", V(121), T[1], 0)
            I("v_readlane_b32", T[0], V(121), 32)
            I("v_writelane_b32", V(121), T[0], 15)
            I("buffer_store_dword", V(121), V(120), S(12, 4), 0, mods="offen")
        if self.opt.get("leak"):
            skip = self.lab("noleak")
            I("v_readlane_b32", T[1], self.vStamp, 62)
            I("v_readlane_b32", T[2], self.vStamp, 63)
            I("v_readlane_b32", T[3], self.vStamp, self.opt.get("leakidx", 0))
            I("v_readlane_b32", T[4], self.vStamp, 0)
            I("s_sub_u32", T[1], T[2], T[1])
            I("s_sub_u32", T[3], T[3], T[4])
            I("s_cmp_lt_u32", T[3] if self.opt.get("leakidx") else T[1], self.opt["leak"])
            I("s_cbranch_scc1", skip)
            I("s_cmp_eq_u32", self.sMode, 0)
            I("s_cbranch_scc1", skip)
            I("v_cvt_f32_u32", V(121), T[3] if self.opt.get("leakidx") else T[1])
            I("v_lshrrev_b32", V(121), 16, V(121))
            a.wait(vm=0)
            I("s_mov_b64", EXEC, 1)
            I("buffer_store_short", V(121), OFF, self.sOUT, 0)
            a.label(skip)
        I("s_add_u32", T[0], self.sNonce, "0x10100")
        I("v_mov_b32", V(120), T[0])
        I("s_mov_b64", EXEC, 1)
        I("buffer_store_dword", V(120), OFF, self.sWS, 0)
        I("s_endpgm")

    def place_visits(self, head, lines):
        import subprocess, re
        if not self.opt.get("visit", 0):
            return "\n".join(l for l in lines if l != "@VISIT") + "\n"
        lines = list(lines)
        def render(ls):
            n = sum(l == "@VISIT" for l in ls)
            out, k = [], 0
            for l in ls:
                if l == "@VISIT":
                    out += [f"L_visit_{k}:", "    s_cbranch_execz " + (f"L_visit_{k + 3}" if k + 3 < n else "L_visit_ret")]
                    k += 1
                else: out.append(l)
            return "\n".join(out) + "\n"
        start = lines.index("L_qa1:")
        lines.insert(start + 1, "@VISIT")
        page = 1
        while True:
            open("visit.s", "w").write(head + render(lines))
            subprocess.run(["clang", "-x", "assembler", "-target", "amdgcn-amd-amdhsa", "-mcpu=gfx950", "-c", "visit.s", "-o", "visit.o"], check=True)
            dis = subprocess.run(["llvm-objdump", "-d", "--mcpu=gfx950", "visit.o"], capture_output=True, text=True).stdout
            base = int(re.search(r"([0-9a-f]+) <L_(?:qa1|visit_0)>:", dis).group(1), 16)
            addrs = [int(m.group(1), 16) for m in re.finditer(r"// ([0-9A-F]+):", dis)]
            addrs = [x for x in addrs if x >= base]
            idx = [i for i in range(start, len(lines)) if lines[i] == "@VISIT" or (lines[i].startswith("    ") and not lines[i].startswith("    ;"))]
            assert len(addrs) == len(idx), (len(addrs), len(idx))
            hit = [k for k, x in enumerate(addrs) if x >= base + 4096 * page]
            if not hit: break
            k = hit[0]
            if lines[idx[k]] != "@VISIT": lines.insert(idx[k], "@VISIT")
            page += 1
        return render(lines)

    def build(self):
        a = self.a
        self.prologue()
        self.qa_stage(first=True)
        self.p_stage()
        self.qa_stage()
        self.qb_stage()
        self.final()
        done = 0
        while done < len(self.tail):
            a.forget_counters()
            a.pos += 100
            self.tail[done]()
            done += 1
        a.label("L_end")
        a.I("s_endpgm")
        head = open("cdna_kernels/" + NAME[:-7] + ".s.ref").read().split("; Override launch")[0]
        out = head + f"; @launch grid=(256,1,1) block=(256,1,1) lds={LDS_BYTES}\n"
        out += DOC
        lead = ".p2align 12\n" + (f".fill {self.opt['epad'] // 4}, 4, 0xbf800000\n" if self.opt.get("epad") else "")
        out += f'.amdgcn_target "amdgcn-amd-amdhsa--gfx950"\n.text\n.globl {NAME}\n{lead}.p2align 8\n.type {NAME},@function\n{NAME}:\n'
        out += self.place_visits(out, a.lines)
        out += f""".section .rodata,"a"
.p2align 6
.amdhsa_kernel {NAME}
  .amdhsa_next_free_vgpr 512
  .amdhsa_next_free_sgpr 102
  .amdhsa_accum_offset 256
  .amdhsa_group_segment_fixed_size 0
  .amdhsa_kernarg_size 80
  .amdhsa_user_sgpr_count 2
  .amdhsa_user_sgpr_kernarg_segment_ptr 1
  .amdhsa_system_sgpr_workgroup_id_x 1
.end_amdhsa_kernel
"""
        return out


if __name__ == "__main__":
    opt = {}
    path = sys.argv[1]
    for kv in sys.argv[2:]:
        k, v = kv.split("=")
        opt[k] = int(v)
    g = Gen(opt)
    open(path, "w").write(g.build())
    import subprocess
    r = subprocess.run(["clang", "-x", "assembler", "-target", "amdgcn-amd-amdhsa", "-mcpu=gfx950", "-c", path, "-o", "gen_check.o"], capture_output=True, text=True)
    if r.returncode: print(r.stderr[:3000]); sys.exit(1)
    sz = subprocess.run(["llvm-readelf", "-S", "gen_check.o"], capture_output=True, text=True).stdout
    print("text bytes", [int(l.split()[6], 16) for l in sz.splitlines() if " .text" in l],
          "instructions", sum(g.a.count.values()), "nop states", g.a.nops)
```

```python
import sys
import math
import struct
from emit import Asm, V, A, S, VCC, EXEC, M0, OFF, Special

VCC_LO = Special("vcc_lo", [("s", "vcc")])
VCC_HI = Special("vcc_hi", [("s", "vcc")])

NAME = "interleave_layers__sliding_local_dilated__linear_kernel_hedgehog__prompt_kernel"


def f32(x):
    return "0x%08x" % struct.unpack("<I", struct.pack("<f", x))[0]


WS_E = 0x0
WS_FX = 0x1000
WS_FO = 0x5000
WS_SLOW = 0x8000
WS_FH = 0x10000
WS_HELLO = 0x11000
WS_FWF = 0x12000
WS_STAMP = 0xC0000
WS_X = 0x100000
WS_XS = 0x2C0000
WS_O = 0x300000
WS_KV = 0x500000
WS_HX = 0x700000
WS_FW = 0x800000
FW_T = 16 * 86016
WS_SIZE = 0xB00000
OOB = 0x7FFF0000

MAT = 28672
L_PW = 86016
L_SP = 151552
L_KVX = L_SP
L_HX = L_SP
L_WPHI = L_SP + 8192
L_CS = L_SP + 10240
L_EXK = L_PW + 32768
L_EXV = L_EXK + 5120
L_PH = L_PW + 32768
LDS_BYTES = 163840

LOG2E = math.log2(math.e)

DOC = '''; One persistent launch, one workgroup per CU. Tokens are reordered by parity into 16 groups of 128; workgroup
'''


class Neg:
    def __init__(self, r): self.r = r
    def __str__(self): return "-" + str(self.r)
    def regs(self): return self.r.regs()


class Gen:
    def __init__(self, opt):
        self.opt = opt
        self.a = Asm()
        self.tail = []
        self.uid = 0

    def lab(self, base):
        self.uid += 1
        return f"L_{base}_{self.uid}"

    sX0, sWA, sWOA, sWB, sWOB, sOUT, sWS, sWP = (S(24 + 4 * i, 4) for i in range(8))
    (sGrp, sH, sW, sC, sRh, sBase, sTag, sMode, sIt, sPhase, sL, sBudget, sXq, sXSq, sOq, sXp, sXSp, sOp, sFXp, sFOq,
     sFOp, sHX, sHaloProd, sFHp, sKVst, sKVld, sQWo, sFirst, sPend, sX0o, sNonce, sXcc) = (S(56 + i) for i in range(32))
    sPWc = sX0
    sT = [S(88 + i) for i in range(8)]
    sT2 = S(96, 2)
    sStamp = S(98, 2)
    sFW, sQWl, sPWl, sPWo = S(4), S(5), S(6), S(7)

    vL16, vQ0, vQ1, vO0, vO1, vQh = (V(1 + i) for i in range(6))
    vP = [V(7 + i) for i in range(4)]
    vQWd, vX0d, vExpHC, vPollQ, vPollM, vPollP, vEXW, vEXRa, vHW, vM3, vStat = (V(11 + i) for i in range(11))
    vE0 = V(22, 2)
    vHalo, vHaloS, vStatSt, vZ, vExpHM, vExpC, vExpM, vMH = (V(24 + i) for i in range(8))
    vCH = V(32, 4)
    bCur, bPrev, bPrev0 = V(36, 4), V(40, 4), V(44, 4)
    vR = V(48, 16)
    cA, cB = V(64, 24), V(88, 24)
    vAv, vHp, vQS = V(240), V(243), V(244)
    vDummy = V(245)
    vPWd, vKVo, vKVm, vKVp = (V(246 + i) for i in range(4))
    vKA, vKB, vPollH, vKrd, vStamp = (V(250 + i) for i in range(5))
    vT = V(255)

    aOnes, aSel, aWphi = A(232, 4), A(236, 6), A(242, 8)

    def acc(self, T, ft): return V(112 + (T * 6 + ft) * 4, 4)
    hacc = V(160, 4)
    def straw(self, T): return V(164 + 4 * T, 4)
    def st(self, T): return V(176 + 4 * T, 4)
    def xf(self, T, ks): return A((ks * 2 + T) * 4, 4)
    def hx(self, ks): return A(56 + 4 * ks, 4) if ks < 12 else self.wf(ks - 6)
    def stash(self, i): return A(112 + 4 * i, 4) if i < 14 else A(200 + 4 * (i - 14), 4)
    def wf(self, f): return A(168 + 4 * f, 4)

    def I(self, *x, **k): self.a.I(*x, **k)

    def stamp(self, real=False):
        if not self.opt.get("stamps") or (self.opt.get("stamps") == 2 and not real):
            return
        a = self.a
        a.I("s_memrealtime" if real or self.opt.get("real") else "s_memtime", self.sStamp)
        a.I("s_mov_b32", M0, self.sT[7])
        a.wait(lg=0)
        a.I("v_writelane_b32", self.vStamp, self.sStamp[0], M0)
        a.I("s_add_u32", self.sT[7], self.sT[7], 1)
        if getattr(self, "fine_pending", False):
            self.fine_pending = False
            for i in range(7): a.I("v_writelane_b32", self.vStamp, S(8 + 2 * i), 40 + i)
            a.I("v_writelane_b32", self.vStamp, self.sStamp[0], 47)

    def fine(self, region, i):
        if self.opt.get("fine") == region and region == 5:
            self.a.raw("    s_memtime s[100:101]")
            self.a.raw("    s_waitcnt lgkmcnt(0)")
            self.a.raw(f"    v_writelane_b32 v240, s100, {i}")
            self.a.pos += 3
            return
        if self.opt.get("fine") == region:
            self.a.raw(f"    s_memtime s[{8 + 2 * i}:{9 + 2 * i}]")
            self.a.pos += 1
            self.fine_pending = True

    def srd(self, dst, src, nbytes):
        self.I("s_mov_b32", dst[0], src[0])
        self.I("s_and_b32", dst[1], src[1], "0xffff")
        self.I("s_mov_b32", dst[2], nbytes)
        self.I("s_mov_b32", dst[3], "0x20000")

    def mfma(self, d, x, y, c):
        self.I("v_mfma_f32_16x16x32_bf16", d, x, y, c)

    def pk(self, op, d, x, y, z=None, bx=None, by=None, bz=None):
        srcs = [(x, bx), (y, by)] + ([(z, bz)] if z is not None else [])
        lo = [0 if b is None else b for _, b in srcs]
        hi = [1 if b is None else b for _, b in srcs]
        mods = []
        if any(lo): mods.append("op_sel:[%s]" % ",".join(map(str, lo)))
        if not all(hi): mods.append("op_sel_hi:[%s]" % ",".join(map(str, hi)))
        self.I(op, d, *[s for s, _ in srcs], mods=" ".join(mods))

    def allreduce_pairs(self, chains):
        for step in range(7):
            for op, x, y in chains:
                if step in (0, 6): self.I("v_permlane32_swap_b32", x, y)
                elif step in (1, 4): self.I(op, x, x, y)
                elif step in (2, 5): self.I("v_mov_b32", y, x)
                else: self.I("v_permlane16_swap_b32", x, y)

    def budget_branch(self, loop):
        if self.opt.get("psleep"): self.I("s_sleep", self.opt["psleep"])
        self.I("s_sub_u32", self.sBudget, self.sBudget, 1)
        self.I("s_cbranch_scc1", "L_end")
        self.I("s_branch", loop)

    def flag_value(self, dst):
        self.I("s_lshl_b32", dst, self.sL, 4)
        self.I("s_or_b32", dst, dst, self.sBase)

    def publish(self, soff):
        a = self.a
        slow, done = self.lab("pubslow"), self.lab("pubdone")
        a.I("s_cmp_eq_u32", self.sMode, 0)
        a.I("s_cbranch_scc1", slow)
        a.I("s_mov_b64", EXEC, 1)
        a.I("buffer_store_dword", self.vT, OFF, self.sWS, soff)
        a.label(done)
        a.I("s_mov_b64", EXEC, -1)

        def tail():
            b = self.a
            b.label(slow)
            b.wait(vm=0)
            b.I("buffer_wbl2", mods="sc1")
            b.wait(vm=0)
            b.I("s_mov_b64", EXEC, 1)
            b.I("buffer_store_dword", self.vT, OFF, self.sWS, soff, mods="sc1")
            b.I("s_branch", done)
        self.tail.append(tail)

    def sched(self, mfmas, streams):
        a = self.a
        streams = [list(s) for s in streams]
        for i, m in enumerate(mfmas):
            self.mfma(*m)
            scalar_free = True
            if i + 1 < len(mfmas):
                n = mfmas[i + 1]
                if a.prewait(n[1], n[2]): scalar_free = False
            if scalar_free:
                for s in streams:
                    if s and s[0][0] <= i and s[0][1] == "s":
                        s.pop(0)[2]()
                        break
            slots = 2
            progress = True
            while slots > 0 and progress:
                progress = False
                for s in streams:
                    if not s or s[0][0] > i: continue
                    cost = 2 if s[0][1] == "w" else 1
                    if cost <= slots:
                        s.pop(0)[2]()
                        slots -= cost
                        progress = True
                        break
        return [it[2] for s in streams for it in s]

    def fw_piece(self, n):
        off = (n // 7) * MAT + (n % 7) * 1024
        self.I("s_add_u32", M0, self.sQWl, off, m0="fw")
        self.I("s_add_u32", self.sT[6], self.sFW, off)
        self.I("buffer_load_dwordx4", self.vL16, self.sWS, self.sT[6], mods="offen lds", untracked=True, m0="fw")

    def piece(self, n):
        n = (n + 7) % 21
        return f"offset:{(n // 7) * MAT + (n % 7) * 1024}"

    def unpark(self, pieces):
        for n in pieces: self.I("ds_write_b128", self.vQS, self.stash(n), mods=self.piece(n))

    def qb_shadow(self):
        a, I = self.a, self.I
        second, done = self.lab("ab2"), self.lab("abdone")
        I("s_cmp_lg_u32", self.sIt, 0)
        I("s_cbranch_scc1", second)
        for n in self.fw_left: self.fw_piece(n)
        a.raw(f"    s_waitcnt vmcnt({1 + len(self.fw_left)})")
        a.pos += 1
        I("s_barrier")
        I("s_lshl_b32", self.sT[0], self.sW, 6)
        self.colsum_part(self.vQh, list(range(14)), 128)
        a.wait_lg_all()
        a.flush()
        I("s_branch", done)
        a.label(second)
        self.unpark(range(7))
        a.label(done)

    def b_to_a(self, pieces):
        a, I = self.a, self.I
        done = self.lab("badone")
        if self.it_b is not None:
            I("s_cmp_lg_u32", self.sIt, self.it_b)
            I("s_cbranch_scc1", done)
        for n in pieces:
            I("ds_read_b128", self.stash(n), self.vQS, mods=self.piece(n))
            I("ds_write_b128", self.vQS, self.stash(n + 1), mods=self.piece(n))
        a.label(done)

    def pw_dma(self, srd, steps):
        out = []
        for n, k in enumerate(steps):
            if n == 0:
                out.append(("s", lambda k=k: self.I("s_add_u32", M0, self.sPWl, k * 4096, m0="pw")))
                out.append(("s", lambda k=k: self.I("s_add_u32", self.sT[5], self.sPWo, k * 32 * 896)))
            else:
                out.append(("s", lambda: self.I("s_addk_i32", M0, 4096)))
                out.append(("s", lambda: self.I("s_addk_i32", self.sT[5], 32 * 896)))
            out.append(("v", lambda: self.I("buffer_load_dwordx4", self.vPWd, srd, self.sT[5], mods="offen lds", m0="pw")))
        return out

    def raw_block(self, ks):
        for half in range(2):
            self.I("s_add_u32", M0, self.sT[4], ks * 2048 + half * 1024)
            self.I("s_add_u32", self.sT[6], self.sQWo, (32 * ks + 16 * half) * 2688)
            self.I("buffer_load_dwordx4", self.vQWd, self.sWA, self.sT[6], mods="offen lds", tag=f"raw{ks}")

    def tr_pair(self, dst, base, off):
        return [lambda: self.I("ds_read_b64_tr_b16", dst[0:2], base, mods=f"offset:{off}"),
                lambda: self.I("ds_read_b64_tr_b16", dst[2:4], base, mods=f"offset:{off + 1024}")]

    def qa_read(self, dst, ft, ks):
        off = (ft >> 1) * MAT + ks * 2048 + (ft & 1) * 1024
        if ft < 4: return [lambda: self.I("ds_read_b128", dst, self.vL16, mods=f"offset:{off}")]
        return [lambda: self.I("ds_read_b128", dst, self.vAv, mods=f"offset:{off - 2 * MAT}")]

    def bg(self, n=1):
        if self.bg_next >= self.bg_max: return
        skip = self.lab("bg")
        self.I("s_cmp_eq_u32", self.sW, 3)
        self.I("s_cbranch_scc1", skip)
        for _ in range(n):
            if self.bg_next < self.bg_max:
                self.raw_block(self.bg_next)
                self.bg_next += 1
        self.a.label(skip)

    def prologue(self):
        a, I = self.a, self.I
        T = self.sT
        self.bg_next, self.bg_max = 0, self.opt.get("n1", 3)
        lane, j, g, t0, t1, t2 = V(0), V(115), V(116), V(117), V(118), V(119)
        I("s_load_dwordx4", S(4, 4), S(0, 2), 0)
        I("s_getpc_b64", S(22, 2))
        a.label("L_pc")
        I("v_min_u32", V(113), self.opt.get("pf0", 47), V(0))
        I("v_lshrrev_b32", V(114), 6, V(0))
        I("v_lshlrev_b32", V(113), 7, V(113))
        I("v_readfirstlane_b32", self.sW, V(114))
        I("global_load_dword", self.vDummy, V(113), S(22, 2), mods="offset:128", untracked=True)
        if self.opt.get("stamps"):
            I("s_memrealtime", S(100, 2))
            I("s_memtime", self.sStamp)
        I("s_lshr_b32", T[1], S(2), 8)
        I("s_cbranch_scc1", "L_end")
        I("v_and_b32", lane, 63, V(0))
        I("s_and_b32", T[0], S(2), 7)
        I("s_lshr_b32", T[1], S(2), 7)
        I("s_lshl1_add_u32", self.sGrp, T[0], T[1])
        I("s_lshr_b32", T[1], S(2), 3)
        I("s_and_b32", self.sH, T[1], 15)
        I("s_and_b32", self.sC, T[1], 7)
        I("s_lshr_b32", self.sRh, self.sH, 3)
        I("s_lshl1_add_u32", T[0], self.sGrp, self.sRh)
        I("s_and_b32", T[2], T[0], 15)
        I("s_lshl_b32", T[2], T[2], 2)
        I("s_mulk_i32", T[2], 16 * 1792)
        I("s_lshr_b32", T[5], self.sGrp, 3)
        I("s_mulk_i32", T[5], 7)
        I("s_add_u32", T[5], T[5], self.sC)
        I("s_lshl_b32", T[5], T[5], 7)
        I("s_add_u32", T[2], T[2], T[5])
        I("v_lshrrev_b32", t0, 3, lane)
        I("v_and_b32", t1, 7, lane)
        I("v_mad_u32_u24", t0, t0, 112 // 2, 0)
        I("v_lshl_add_u32", t0, t0, 1, t1)
        I("v_lshlrev_b32", self.vX0d, 4, t0)
        I("v_add_u32", t2, 8 * 1792 - 1024, self.vX0d)
        I("s_mov_b32", self.sX0[2], 1835008)
        I("s_mov_b32", self.sX0[3], "0x20000")
        I("s_mov_b32", M0, L_SP)
        I("s_mov_b32", T[5], T[2])
        no3, nox = self.lab("not3"), self.lab("nox0")
        I("s_cmp_lg_u32", self.sW, 3)
        a.wait(lg=0)
        I("s_mov_b64", self.sX0[0:2], S(4, 2))
        I("s_cbranch_scc1", no3)
        I("s_cmp_eq_u32", self.sC, 7)
        I("s_cbranch_scc1", no3)
        for t in range(4):
            I("buffer_load_dwordx4", self.vX0d, self.sX0, T[5], mods="offen lds")
            I("buffer_load_dwordx4", t2, self.sX0, T[5], mods="offen offset:1024 lds")
            if t < 3:
                I("s_addk_i32", M0, 2048)
                I("s_addk_i32", T[5], 16 * 1792)
        a.label(no3)
        if self.opt.get("fine") == 5: a.raw("    v_writelane_b32 v13, s100, 63")
        self.fine(5, 0)
        I("s_load_dwordx2", S(8, 2), S(0, 2), 16)
        I("s_load_dwordx8", S(12, 8), S(0, 2), 32)
        I("s_load_dwordx2", S(20, 2), S(0, 2), 72)
        self.srd(self.sWA, S(6, 2), 1204224)
        I("s_lshl2_add_u32", T[0], T[0], self.sW)
        I("s_mul_i32", T[5], self.sW, 16 * 1792)
        I("s_add_u32", self.sX0o, T[2], T[5])
        I("s_cmp_lg_u32", self.sW, 3)
        I("s_cbranch_scc1", nox)
        I("v_min_u32", t0, 36, lane)
        I("v_lshlrev_b32", V(121), 7, t0)
        I("s_mul_i32", T[2], S(2), 37 * 128)
        I("s_min_u32", T[2], T[2], 1204224 - 37 * 128)
        I("buffer_load_dword", self.vDummy, V(121), self.sWA, T[2], mods="offen", nodest=True)
        I("s_mul_i32", T[2], T[1], 1280)
        I("v_min_u32", V(112), 9, lane)
        I("v_lshl_add_u32", V(112), V(112), 7, T[2])
        I("v_min_u32", V(112), "L_end-L_pc", V(112))
        I("global_load_dword", self.vDummy, V(112), S(22, 2), untracked=True)
        a.label(nox)
        I("v_and_b32", j, 15, lane)
        I("v_lshrrev_b32", g, 4, lane)
        I("v_lshlrev_b32", self.vL16, 4, lane)
        I("v_lshrrev_b32", t0, 2, lane)
        I("v_mul_u32_u24", t1, 2688, t0)
        I("v_lshrrev_b32", t0, 3, lane)
        I("v_and_b32", t0, 2, t0)
        I("v_and_b32", t2, 3, lane)
        I("v_xor_b32", t0, t0, t2)
        I("v_lshl_add_u32", self.vQWd, t0, 4, t1)
        I("s_mul_i32", self.sQWo, self.sH, 56)
        I("s_mul_i32", T[1], self.sW, 896)
        I("s_add_u32", self.sQWo, self.sQWo, T[1])
        I("s_mul_i32", T[4], self.sW, MAT)
        self.srd(self.sWS, S(20, 2), WS_SIZE)
        I("buffer_load_dword", V(120), OFF, self.sWS, 0, untracked=True)
        self.bg()
        for r, p, n in ((self.sWB, 12, 1204224), (self.sWP, 14, 25088), (self.sWOA, 8, 401408),
                        (self.sWOB, 16, 401408), (self.sOUT, 18, 1835008)):
            self.srd(r, S(p, 2), n)
        I("s_getreg_b32", self.sXcc, "hwreg(HW_REG_XCC_ID)")
        I("s_and_b32", self.sXcc, self.sXcc, 15)
        I("s_lshl_b32", T[1], self.sGrp, 3)
        I("s_lshl_b32", T[2], self.sW, 1)
        I("s_add_u32", T[1], T[1], T[2])
        I("s_mul_i32", self.sXq, T[1], 14336)
        I("s_add_u32", self.sXq, self.sXq, WS_X)
        I("s_lshl_b32", self.sXSq, T[1], 10)
        I("s_add_u32", self.sXSq, self.sXSq, WS_XS)
        I("s_lshl_b32", self.sOq, T[1], 14)
        I("s_add_u32", self.sOq, self.sOq, WS_O)
        I("s_lshl_b32", T[3], T[1], 7)
        I("s_add_u32", T[3], T[3], WS_FX)
        I("s_mul_i32", self.sXp, T[0], 14336)
        I("s_lshl_b32", T[2], self.sC, 11)
        I("s_add_u32", self.sXp, self.sXp, T[2])
        I("s_add_u32", self.sXp, self.sXp, WS_X)
        I("s_lshl_b32", self.sXSp, T[0], 10)
        I("s_lshl_b32", T[2], self.sC, 7)
        I("s_add_u32", self.sXSp, self.sXSp, T[2])
        I("s_add_u32", self.sXSp, self.sXSp, WS_XS)
        I("s_lshl_b32", self.sOp, T[0], 14)
        I("s_add_u32", self.sOp, self.sOp, WS_O)
        I("s_lshl_b32", self.sFXp, T[0], 7)
        I("s_lshl_b32", T[2], self.sC, 2)
        I("s_add_u32", self.sFXp, self.sFXp, T[2])
        I("s_add_u32", self.sFXp, self.sFXp, WS_FX)
        I("s_lshl_b32", T[1], self.sGrp, 2)
        I("s_add_u32", T[2], T[1], self.sW)
        I("s_lshl_b32", self.sFOq, T[2], 7)
        I("s_lshl_b32", T[2], self.sH, 2)
        I("s_add_u32", self.sFOq, self.sFOq, T[2])
        I("s_add_u32", self.sFOq, self.sFOq, WS_FO)
        I("s_lshr_b32", T[2], T[0], 1)
        I("s_lshl_b32", self.sFOp, T[2], 7)
        I("s_add_u32", self.sFOp, self.sFOp, WS_FO)
        I("s_lshl_b32", self.sHX, self.sGrp, 14)
        I("s_add_u32", self.sHX, self.sHX, WS_HX)
        I("s_lshl_b32", self.sFHp, self.sGrp, 7)
        I("s_add_u32", self.sFHp, self.sFHp, WS_FH)
        I("s_and_b32", T[1], self.sGrp, 7)
        I("s_cmp_eq_u32", T[1], 0)
        I("s_cselect_b32", self.sFirst, 1, 0)
        I("s_cmp_lg_u32", T[1], 7)
        I("s_cselect_b32", T[1], 1, 0)
        I("s_and_b32", T[2], T[0], 7)
        I("s_cmp_eq_u32", T[2], 7)
        I("s_cselect_b32", self.sHaloProd, T[1], 0)
        I("s_lshl_b32", T[1], self.sH, 2)
        I("s_add_u32", T[1], T[1], self.sW)
        I("s_lshl_b32", self.sKVld, T[1], 14)
        I("s_add_u32", self.sKVld, self.sKVld, WS_KV)
        I("s_bitcmp1_b32", self.sW, 0)
        I("s_cselect_b32", T[1], 13, 16)
        I("s_lshl_b32", T[1], T[1], 6)
        I("s_lshr_b32", T[2], self.sGrp, 1)
        I("s_mul_i32", T[1], T[1], T[2])
        I("s_add_u32", self.sKVst, self.sKVld, T[1])
        I("s_mov_b32", self.sMode, 1)
        I("s_mov_b32", self.sIt, 0)
        I("s_mov_b32", self.sPhase, 0)
        I("s_mov_b32", self.sL, 1)
        I("s_mov_b32", self.sPend, 0)
        I("s_mov_b32", self.sBudget, 400000)
        I("s_mov_b32", S(3), 0)
        self.bg()
        I("v_min_u32", t0, 12, lane)
        I("v_lshlrev_b32", V(122), 7, t0)
        I("v_lshlrev_b32", self.vStatSt, 3, j)
        I("v_and_b32", t0, 7, j)
        I("v_lshlrev_b32", t0, 4, t0)
        I("v_lshl_add_u32", self.vHp, g, 7, t0)
        I("v_lshlrev_b32", t0, 7, j)
        I("v_lshl_add_u32", t0, g, 3, t0)
        I("v_add_u32", V(123), L_SP, t0)
        I("s_mul_i32", self.sQWl, self.sW, 7168)
        I("s_mul_i32", self.sFW, self.sH, 86016)
        I("s_add_u32", self.sFW, self.sFW, self.sQWl)
        I("s_add_u32", self.sFW, self.sFW, WS_FW)
        I("s_lshl_b32", self.sPWl, self.sW, 10)
        I("s_add_u32", self.sPWl, self.sPWl, L_PW)
        I("s_min_u32", T[1], self.sC, 6)
        I("s_lshl_b32", self.sPWo, T[1], 7)
        if self.opt.get("stamps"):
            I("s_mov_b32", T[7], 1)
            I("v_mov_b32", self.vStamp, 0)
            I("v_writelane_b32", self.vStamp, self.sStamp[0], 0)
            if self.opt.get("fine") != 5: I("v_writelane_b32", self.vStamp, S(100), 62)
        I("v_mov_b32", V(127), V(0))
        I("s_cmp_eq_u32", self.sW, 3)
        I("s_cbranch_scc1", "L_s0")
        a.label("L_setup")
        a.forget_counters()
        self.bg()
        self.fine(5, 1)

        r, cc = V(113), V(124)
        I("s_lshl_b32", T[1], self.sW, 11)
        I("v_add_u32", V(114), T[1], V(123))
        I("v_lshrrev_b32", r, 2, j)
        I("v_and_b32", cc, 3, j)
        I("v_lshl_add_u32", t0, g, 2, r)
        I("v_lshlrev_b32", t1, 3, cc)
        I("v_lshl_add_u32", t2, t0, 6, t1)
        I("v_and_b32", V(125), 1, g)
        I("v_lshl_add_u32", self.vQ0, V(125), 5, t2)
        I("v_xor_b32", self.vQ1, 32, self.vQ0)
        I("s_and_b32", T[1], self.sW, 1)
        I("s_lshr_b32", T[2], self.sW, 1)
        I("s_add_u32", T[2], T[2], 1)
        I("s_mul_i32", T[2], T[2], MAT)
        I("s_lshl_b32", T[5], T[1], 10)
        I("s_add_u32", T[2], T[2], T[5])
        I("v_add_u32", self.vQh, T[2], self.vL16)
        I("v_lshl_add_u32", t2, t0, 7, t1)
        I("v_add_u32", t2, L_PW, t2)
        I("v_lshrrev_b32", V(125), 1, t0)
        I("v_and_b32", V(125), 3, V(125))
        for n in range(4):
            I("v_xor_b32", V(126), n, V(125))
            I("v_lshl_add_u32", self.vP[n], V(126), 5, t2)
        self.bg()
        I("v_lshrrev_b32", V(125), 1, t0)
        I("v_xor_b32", V(125), V(125), cc)
        I("v_and_b32", V(125), 3, V(125))
        I("v_lshlrev_b32", V(125), 4, V(125))
        I("v_lshl_add_u32", V(126), t0, 6, V(125))
        I("s_lshl_b32", T[2], self.sW, 11)
        I("s_add_u32", T[5], T[2], L_EXV)
        I("v_add_u32", self.vEXRa, T[5], V(126))
        I("s_lshr_b32", T[5], self.sW, 1)
        I("s_lshl_b32", T[5], T[5], 13)
        I("s_add_u32", T[5], T[5], L_PH)
        I("v_add_u32", self.vKA, T[5], V(126))
        I("s_lshl_b32", T[5], T[1], 3)
        I("s_add_u32", T[5], T[5], L_PH + 16384)
        I("v_add_u32", self.vKB, T[5], V(126))
        I("v_lshrrev_b32", V(125), 1, j)
        I("v_xor_b32", V(125), V(125), g)
        I("v_and_b32", V(125), 3, V(125))
        I("v_lshlrev_b32", V(125), 4, V(125))
        I("v_lshl_add_u32", V(126), j, 6, V(125))
        I("v_add_u32", V(126), L_EXV, V(126))
        I("v_add_u32", self.vEXW, T[2], V(126))
        I("s_lshl_b32", T[5], self.sW, 10)
        I("v_add_u32", V(125), L_EXK, self.vL16)
        I("v_add_u32", self.vKrd, T[5], V(125))
        I("v_add_u32", self.vQS, self.sQWl, self.vL16)
        I("v_add_u32", self.vAv, 2 * MAT, self.vL16)
        I("s_cmp_lt_u32", self.sW, 2)
        I("s_cselect_b64", VCC, -1, 0)
        I("v_cndmask_b32", V(126), V(126), V(125), VCC)
        I("s_lshl_b32", T[5], T[1], 3)
        I("v_add_u32", self.vHW, T[5], V(126))
        self.bg()
        I("v_lshrrev_b32", t0, 3, lane)
        I("v_and_b32", t2, 4, t0)
        I("v_add_u32", t2, t2, t0)
        I("s_lshr_b32", T[5], self.sW, 1)
        I("s_lshl2_add_u32", T[5], T[1], T[5])
        I("s_lshl_b32", T[5], T[5], 2)
        I("v_add_u32", t2, T[5], t2)
        I("v_mul_u32_u24", t1, 896, t2)
        I("v_and_b32", t0, 6, t0)
        I("v_and_b32", t2, 7, lane)
        I("v_xor_b32", t0, t0, t2)
        I("v_lshl_add_u32", self.vPWd, t0, 4, t1)
        I("s_mul_i32", T[5], self.sH, 7)
        for reg, add in ((self.vO0, 0), (self.vO1, 4)):
            I("v_add_u32", t0, T[5], g)
            if add: I("v_add_u32", t0, add, t0)
            I("v_and_b32", t2, 1, t0)
            I("v_lshrrev_b32", t0, 1, t0)
            I("v_lshlrev_b32", t0, 8, t0)
            I("v_lshl_add_u32", t0, t2, 3, t0)
            I("v_lshl_add_u32", reg, j, 4, t0)
        I("v_mov_b32", t1, OOB)
        I("v_cmp_gt_u32", VCC, 48, lane)
        I("v_cndmask_b32", self.vO1, t1, self.vO1, VCC)
        I("v_cmp_gt_u32", VCC, 48, lane)
        I("v_cndmask_b32", self.vM3, 0, -1, VCC)
        I("v_cndmask_b32", self.vE0[0], 1.0, 0, VCC)
        I("v_mov_b32", self.vE0[1], 0)
        I("s_cmp_eq_u32", T[1], 1)
        I("s_cselect_b64", VCC, -1, 0)
        I("v_cndmask_b32", self.vMH, -1, self.vM3, VCC)
        I("v_lshl_add_u32", self.vStat, g, 7, self.vStatSt)
        I("s_cmp_eq_u32", self.sFirst, 1)
        I("s_cselect_b64", VCC, -1, 0)
        I("v_cndmask_b32", self.vHalo, self.vL16, t1, VCC)
        I("v_cndmask_b32", self.vHaloS, self.vStat, t1, VCC)
        I("s_lshr_b32", T[2], self.sGrp, 1)
        I("s_add_u32", T[2], T[2], 1)
        I("v_add_u32", t0, T[2], j)
        I("v_and_b32", t0, 7, t0)
        I("s_bitcmp1_b32", self.sW, 0)
        I("s_cselect_b32", T[5], 13, 16)
        I("s_lshl_b32", T[5], T[5], 6)
        I("v_mul_u32_u24", self.vKVp, T[5], t0)
        I("s_lshr_b32", T[5], T[5], 2)
        I("v_mul_u32_u24", t0, T[5], g)
        I("v_lshl_add_u32", t0, j, 4, t0)
        I("s_lshr_b32", T[5], T[5], 4)
        I("v_cmp_gt_u32", VCC, T[5], j)
        I("v_cndmask_b32", self.vKVo, t1, t0, VCC)
        I("v_cndmask_b32", self.vKVm, 0, -1, VCC)
        self.bg()
        I("v_lshlrev_b32", self.vZ, 8, g)
        I("v_add_u32", self.vZ, L_KVX + 1024 + 12 * 16, self.vZ)
        I("v_lshlrev_b32", self.vPollP, 2, j)
        I("v_and_b32", t0, 7, lane)
        I("v_min_u32", t0, 6, t0)
        I("v_lshlrev_b32", V(127), 2, t0)
        I("v_min_u32", t0, 13, j)
        I("v_lshlrev_b32", t0, 2, t0)
        I("s_lshl_b32", T[5], self.sH, 7)
        I("s_add_u32", T[5], T[5], WS_FWF)
        I("v_add_u32", t0, T[5], t0)
        I("v_add_u32", t2, self.sFHp, V(127))
        I("s_cmp_eq_u32", self.sFirst, 1)
        I("s_cselect_b32", T[5], 0, 16)
        I("v_cmp_gt_u32", VCC, T[5], lane)
        I("v_cndmask_b32", self.vPollH, t0, t2, VCC)
        I("v_cndmask_b32", self.vExpHM, 0, 16, VCC)
        I("v_cndmask_b32", self.vExpHC, 16, 0, VCC)
        I("v_lshrrev_b32", t2, 3, j)
        I("v_lshl_add_u32", t2, t2, 7, V(127))
        I("v_add_u32", t2, T[3], t2)
        I("s_lshl_b32", T[5], self.sGrp, 7)
        I("s_add_u32", T[5], T[5], WS_HELLO)
        I("v_lshrrev_b32", t0, 1, g)
        I("v_lshlrev_b32", t0, 7, t0)
        I("v_xor_b32", t0, T[5], t0)
        I("v_add_u32", t0, t0, self.vPollP)
        I("v_and_b32", V(125), 1, g)
        I("v_cmp_eq_u32", VCC, 0, V(125))
        I("v_cndmask_b32", self.vPollQ, t0, t2, VCC)
        I("v_cndmask_b32", self.vPollM, -16, -1, VCC)
        I("v_cndmask_b32", self.vExpM, 0, 16, VCC)
        I("v_mov_b32", t0, self.sXcc)
        I("v_cndmask_b32", self.vExpC, t0, 0, VCC)
        self.bg()
        I("v_mov_b32", V(125), f32(-1e30))
        for rr in range(4):
            I("v_lshl_add_u32", t0, g, 2, rr)
            I("v_sub_u32", t2, j, t0)
            I("v_cmp_gt_u32", VCC, 8, t2)
            I("v_cndmask_b32", self.bCur[rr], V(125), 0, VCC)
            I("v_add_u32", t2, 16, t2)
            I("v_cmp_gt_u32", VCC, 8, t2)
            I("v_cndmask_b32", self.bPrev[rr], V(125), 0, VCC)
        I("s_cmp_eq_u32", self.sW, 0)
        I("s_cselect_b32", T[2], self.sFirst, 0)
        I("s_cmp_eq_u32", T[2], 1)
        I("s_cselect_b64", VCC, -1, 0)
        for rr in range(4):
            I("v_cndmask_b32", self.bPrev0[rr], self.bPrev[rr], V(125), VCC)
        self.bg()
        I("v_mov_b32", t0, "0x3f803f80")
        for k in range(4): I("v_accvgpr_write_b32", self.aOnes[k], t0)
        for k in (0, 1, 4, 5): I("v_accvgpr_write_b32", self.aSel[k], 0)
        I("v_and_b32", V(125), 1, j)
        I("v_lshlrev_b32", V(125), 4, V(125))
        I("v_mov_b32", t0, "0x3f80")
        I("v_lshlrev_b32", t0, V(125), t0)
        I("v_cmp_eq_u32", VCC, r, g)
        I("v_cndmask_b32", t0, 0, t0, VCC)
        I("v_cmp_gt_u32", VCC, 2, cc)
        I("v_cndmask_b32", t2, 0, t0, VCC)
        I("v_cndmask_b32", t0, t0, 0, VCC)
        I("v_accvgpr_write_b32", self.aSel[2], t2)
        I("v_accvgpr_write_b32", self.aSel[3], t0)
        I("v_mov_b32", V(0), V(114))
        got = self.lab("nonce")
        I("s_cmp_eq_u32", self.sW, 3)
        I("s_cbranch_scc1", got)
        a.raw(f"    s_waitcnt vmcnt({2 * self.bg_next})")
        I("v_readfirstlane_b32", self.sNonce, V(120))
        I("s_add_u32", T[1], self.sNonce, "0x10100")
        I("s_and_b32", self.sBase, T[1], "0xffffff00")
        I("s_and_b32", self.sTag, T[1], "0x3fff0000")
        a.label(got)
        I("v_or_b32", self.vExpC, self.sBase, self.vExpC)
        I("v_or_b32", self.vExpHC, self.sBase, self.vExpHC)
        self.stamp()
        I("s_cmp_eq_u32", self.sW, 3)
        I("s_cbranch_scc1", "L_walk")
        I("s_barrier")
        self.stamp()

        N1 = self.bg_next
        ad0, ad1 = V(188), V(189)
        d0, d1 = V(192, 4), V(196, 4)
        I("v_add_u32", ad0, T[4], self.vQ0)
        I("v_add_u32", ad1, T[4], self.vQ1)
        wad = V(191)
        I("v_add_u32", wad, T[4], self.vL16)
        ZP = self.opt.get("zp", 1)
        if ZP:
            zad, zz = V(190), V(200, 2)
            I("v_bfe_u32", zad, self.vL16, 4, 5)
            I("v_bfe_u32", zz[0], self.vL16, 6, 1)
            I("v_lshlrev_b32", zad, 6, zad)
            I("v_lshlrev_b32", zz[0], 5, zz[0])
            I("v_xor_b32", zz[0], 56, zz[0])
            I("v_add3_u32", zad, zad, zz[0], T[4])
            I("v_mov_b32", zz[0], 0)
            I("v_mov_b32", zz[1], 0)
        a.vm = [(f"raw{ks}", set()) for ks in range(N1) for _ in range(2)]
        AH = self.opt.get("ah", 6)
        EL0 = self.opt.get("el0", 10)
        EL1 = self.opt.get("el1", max(EL0 + 1, 14 - AH))
        nxt = N1
        N2 = self.opt.get("n2", 3)
        if N2:
            for _ in range(N2):
                self.raw_block(nxt)
                nxt += 1
            I("s_barrier")
        for ks in range(14):
            while nxt < 14 and nxt <= ks + AH:
                self.raw_block(nxt)
                if nxt == EL0: self.early_look(0)
                nxt += 1
            if ks == self.opt.get("vks", 3) and self.opt.get("visit", 0):
                a.wait_lg_all()
                a.flush()
                I("s_mov_b64", EXEC, 0)
                I("s_cmp_eq_u32", self.sW, 1)
                I("s_cbranch_scc1", "L_visit_1")
                I("s_cmp_eq_u32", self.sW, 2)
                I("s_cbranch_scc1", "L_visit_2")
                I("s_branch", "L_visit_0")
                a.label("L_visit_ret")
                I("s_mov_b64", EXEC, -1)
            if ks == EL1 and EL0 < 14:
                if ks == 13: a.wait_vm_tag("raw13")
                self.early_look(1)
            a.wait_vm_tag(f"raw{ks}")
            if ZP: I("ds_write_b64", zad, zz, mods=f"offset:{ks * 2048}")
            w0, w1 = self.wf(2 * (ks & 1)), self.wf(2 * (ks & 1) + 1)
            for f in self.tr_pair(w0, ad0, ks * 2048) + self.tr_pair(w1, ad1, ks * 2048): f()
            if ks:
                p0, p1 = self.wf(2 * ((ks - 1) & 1)), self.wf(2 * ((ks - 1) & 1) + 1)
                self.mfma(d0, p0, self.aOnes, 0 if ks == 1 else d0)
                self.mfma(d1, p1, self.aOnes, 0 if ks == 1 else d1)
                I("ds_write_b128", wad, p0, mods=f"offset:{(ks - 1) * 2048}")
                I("ds_write_b128", wad, p1, mods=f"offset:{(ks - 1) * 2048 + 1024}")
        self.mfma(d0, self.wf(2), self.aOnes, d0)
        self.mfma(d1, self.wf(3), self.aOnes, d1)
        I("ds_write_b128", wad, self.wf(2), mods=f"offset:{13 * 2048}")
        I("ds_write_b128", wad, self.wf(3), mods=f"offset:{13 * 2048 + 1024}")
        I("v_lshrrev_b32", ad0, 8, self.vL16)
        I("v_lshlrev_b32", ad0, 4, ad0)
        I("s_lshl_b32", T[0], self.sW, 7)
        I("s_add_u32", T[0], T[0], L_CS)
        I("v_add_u32", ad0, T[0], ad0)
        I("s_mov_b32", self.sT2[0], "0x00010001")
        I("s_mov_b32", self.sT2[1], "0x00010001")
        a.flush()
        I("s_mov_b64", EXEC, self.sT2)
        I("ds_write_b128", ad0, d0)
        I("ds_write_b128", ad0, d1, mods="offset:64")
        I("s_mov_b64", EXEC, -1)
        a.wait(lg=0)
        self.fine(5, 4)
        I("s_branch", "L_qa1")
        self.stage0()

    def early_look(self, phase):
        a, I = self.a, self.I
        if phase == 0:
            I("v_mad_u32_u24", V(112), self.vExpM, self.sL, self.vExpC)
            I("buffer_load_dword", V(114), self.vPollQ, self.sWS, 0, mods="offen sc1")
            return
        skip = self.lab("notyet")
        I("v_cmp_ne_u32", VCC, V(112), V(114))
        I("s_cbranch_vccnz", skip)
        vm = list(a.vm)
        for ks in range(3):
            for _, f in self.xload(ks): f()
        a.vm = vm
        I("s_mov_b32", S(3), 1)
        a.label(skip)

    def stage0(self):
        a, I = self.a, self.I
        T = self.sT
        lane = V(127)
        idle, nohalo, pub, nofw = (self.lab(x) for x in ("idle", "nohalo", "pub", "nofw"))
        a.label("L_s0")
        a.forget_counters()
        a.pos += 100
        def hello():
            I("v_readfirstlane_b32", self.sNonce, V(120))
            I("s_lshl_b32", T[1], self.sGrp, 7)
            I("s_lshl2_add_u32", T[2], self.sH, T[1])
            I("s_add_u32", T[2], T[2], WS_HELLO)
            I("s_add_u32", T[1], self.sNonce, "0x10100")
            I("s_and_b32", self.sBase, T[1], "0xffffff00")
            I("s_and_b32", self.sTag, T[1], "0x3fff0000")
            I("s_or_b32", T[1], self.sBase, 16)
            I("v_mov_b32", self.vT, T[1])
            I("s_or_b32", T[1], self.sBase, self.sXcc)
            I("v_mov_b32", V(112), T[1])
            I("s_mov_b64", EXEC, 1)
            I("buffer_store_dword", V(112), OFF, self.sWS, T[2], mods="sc1")
            I("s_mov_b64", EXEC, -1)
        I("s_cmp_eq_u32", self.sC, 7)
        I("s_cbranch_scc1", idle)
        a.raw("    s_waitcnt vmcnt(3)")
        self.fine(5, 2)
        xo = [V(128 + 8 * t, 8) for t in range(4)]
        pr = [V(160 + 2 * t, 2) for t in range(4)]
        for t in range(4):
            for n in range(4): I("ds_read_b64", xo[t][2 * n:2 * n + 2], V(123), mods=f"offset:{2048 * t + 32 * n}")
        one = V(125)
        I("v_mov_b32", one, "0x3f803f80")
        I("s_sub_u32", T[5], self.sXp, 3 * 14336)
        I("s_sub_u32", T[6], self.sXSp, 3 * 1024)
        for t in range(4):
            I("buffer_store_dwordx4", xo[t][0:4], self.vL16, self.sWS, T[5], mods="offen sc1")
            I("buffer_store_dwordx4", xo[t][4:8], self.vL16, self.sWS, T[5], mods="offen offset:1024 sc1")
            if t < 3: I("s_add_u32", T[5], T[5], 14336)
        if self.opt.get("rel", 1) == 0: I("s_barrier")
        a.raw("    s_waitcnt vmcnt(8)")
        hello()
        for k in range(8):
            for t in range(4):
                I("v_dot2_f32_bf16", pr[t][0], xo[t][k], one, 0 if k == 0 else pr[t][0])
                I("v_dot2_f32_bf16", pr[t][1], xo[t][k], xo[t][k], 0 if k == 0 else pr[t][1])
        self.allreduce_pairs([("v_add_f32", pr[t][0], pr[t][1]) for t in range(4)])
        if self.opt.get("stag", 0):
            for t in range(4): I("v_and_or_b32", pr[t][1], pr[t][1], -4, 1)
        I("s_mov_b64", EXEC, "0xffff")
        for t in range(4):
            I("buffer_store_dwordx2", pr[t], self.vStatSt, self.sWS, T[6], mods=f"offen offset:{1024 * t} sc1")
        I("s_mov_b64", EXEC, -1)
        I("s_cmp_eq_u32", self.sHaloProd, 0)
        I("s_cbranch_scc1", nohalo)
        I("s_lshl_b32", T[1], self.sC, 10)
        I("s_add_u32", T[1], T[1], self.sHX)
        I("s_add_u32", T[1], T[1], 16384)
        I("s_mov_b32", self.sT2[0], "0xff00ff00")
        I("s_mov_b32", self.sT2[1], "0xff00ff00")
        I("s_mov_b64", EXEC, self.sT2)
        I("buffer_store_dwordx4", xo[3][0:4], self.vHp, self.sWS, T[1], mods="offen sc1")
        I("buffer_store_dwordx4", xo[3][4:8], self.vHp, self.sWS, T[1], mods="offen offset:512 sc1")
        I("s_lshl_b32", T[1], self.sC, 7)
        I("s_add_u32", T[1], T[1], self.sHX)
        I("s_add_u32", T[1], T[1], 16384 + 14336)
        I("s_mov_b64", EXEC, "0xffff")
        I("buffer_store_dwordx2", pr[3], self.vStatSt, self.sWS, T[1], mods="offen sc1")
        I("s_mov_b64", EXEC, -1)
        a.label(nohalo)
        a.flush()
        I("v_and_b32", V(126), 3, lane)
        I("v_lshlrev_b32", V(126), 7, V(126))
        I("v_lshrrev_b32", V(113), 2, lane)
        I("v_lshl_add_u32", V(126), V(113), 15, V(126))
        I("s_sub_u32", T[2], self.sFXp, 3 * 128)
        I("v_add_u32", V(126), T[2], V(126))
        I("s_lshl_b32", T[1], self.sC, 2)
        I("s_add_u32", T[1], T[1], self.sFHp)
        I("s_add_u32", T[1], T[1], 128)
        I("v_writelane_b32", V(126), T[1], 8)
        I("s_lshl_b32", T[1], self.sHaloProd, 8)
        I("s_or_b32", self.sT2[0], T[1], "0xff")
        I("s_mov_b32", self.sT2[1], 0)
        if self.opt.get("rel", 1) == 1: I("s_barrier")
        a.wait(vm=0)
        I("s_mov_b64", EXEC, self.sT2)
        I("buffer_store_dword", self.vT, V(126), self.sWS, 0, mods="offen sc1")
        I("s_mov_b64", EXEC, -1)
        if self.opt.get("rel", 1) == 2: I("s_barrier")
        self.fine(5, 3)
        I("s_branch", pub)
        a.label(idle)
        a.raw("    s_waitcnt vmcnt(0)")
        hello()
        I("s_barrier")
        a.label(pub)
        if self.opt.get("n2", 3) and self.opt.get("b2", 0) == 0: I("s_barrier")
        a.forget_counters()
        I("s_cmp_ge_u32", self.sGrp, 14)
        I("s_cbranch_scc1", nofw)
        I("s_mul_i32", T[2], self.sH, 56)
        I("s_mul_i32", T[1], self.sGrp, 32 * 2688)
        I("s_add_u32", T[2], T[2], T[1])
        for mat in range(3):
            for half in range(2):
                I("s_mov_b32", M0, L_PW + mat * 2048 + half * 1024)
                I("s_add_u32", T[1], T[2], mat * 896 + half * 16 * 2688)
                I("buffer_load_dwordx4", self.vQWd, self.sWB, T[1], mods="offen lds")
        a.label(nofw)
        I("s_mul_i32", T[1], self.sH, 1568)
        I("s_mov_b32", M0, L_WPHI)
        I("s_mul_i32", T[2], S(2), 13 * 128)
        I("s_min_u32", T[2], T[2], 401408 - 13 * 128)
        I("v_min_u32", V(126), 55, lane)
        I("v_lshlrev_b32", V(126), 7, V(126))
        I("s_lshr_b32", T[5], self.sH, 1)
        I("s_lshl_b32", T[5], T[5], 14)
        I("s_and_b32", T[6], self.sH, 1)
        I("s_mul_i32", T[6], T[6], 7168)
        I("s_add_u32", T[5], T[5], T[6])
        I("s_add_u32", T[5], T[5], self.sOq)
        I("s_sub_u32", T[5], T[5], 6 * 16384)
        I("buffer_load_dwordx4", self.vL16, self.sWP, T[1], mods="offen lds")
        I("buffer_load_dwordx4", self.vL16, self.sWP, T[1], mods="offen offset:1024 lds")
        I("buffer_load_dword", self.vDummy, V(122), self.sWOA, T[2], mods="offen", nodest=True)
        I("buffer_load_dword", self.vDummy, V(122), self.sWOB, T[2], mods="offen", nodest=True)
        I("buffer_load_dword", self.vDummy, V(126), self.sWS, T[5], mods="offen", nodest=True)
        if self.opt.get("n2", 3) and self.opt.get("b2", 0) == 1: I("s_barrier")
        I("s_branch", "L_setup")
        a.label("L_walk")
        a.forget_counters()
        self.stamp()
        nofw2 = self.lab("nofw")
        I("s_cmp_ge_u32", self.sGrp, 14)
        I("s_cbranch_scc1", nofw2)
        zad, zz = V(112), V(116, 2)
        I("v_bfe_u32", zad, self.vL16, 4, 5)
        I("v_bfe_u32", zz[0], self.vL16, 6, 1)
        I("v_lshlrev_b32", zad, 6, zad)
        I("v_lshlrev_b32", zz[0], 5, zz[0])
        I("v_xor_b32", zz[0], 56, zz[0])
        I("v_add_u32", zad, zad, zz[0])
        I("v_add_u32", zad, L_PW, zad)
        I("v_mov_b32", zz[0], 0)
        I("v_mov_b32", zz[1], 0)
        I("v_add_u32", V(113), L_PW, self.vQ0)
        I("v_add_u32", V(115), L_PW, self.vQ1)
        a.raw("    s_waitcnt vmcnt(5)")
        for mat in range(3):
            I("ds_write_b64", zad, zz, mods=f"offset:{mat * 2048}")
            for f in range(2):
                for g in self.tr_pair(V(168 + 8 * mat + 4 * f, 4), V(113 + 2 * f), mat * 2048): g()
        I("s_lshl_b32", T[1], self.sGrp, 11)
        I("s_add_u32", T[1], T[1], self.sFW)
        I("s_sub_u32", T[1], T[1], 3 * 7168)
        for mat in range(3):
            I("s_add_u32", T[2], T[1], mat * MAT)
            for half in range(2):
                I("buffer_store_dwordx4", V(168 + 8 * mat + 4 * half, 4), self.vL16, self.sWS, T[2], mods=f"offen offset:{half * 1024} sc1")
        I("s_lshl_b32", T[1], self.sH, 7)
        I("s_lshl_b32", T[2], self.sGrp, 2)
        I("s_add_u32", T[1], T[1], T[2])
        I("s_add_u32", T[5], T[1], WS_FWF)
        if self.opt.get("el0", 10) < 14: self.early_look(0)
        a.wait(vm=0)
        I("s_mov_b64", EXEC, 1)
        I("buffer_store_dword", self.vT, OFF, self.sWS, T[5], mods="sc1")
        I("s_mov_b64", EXEC, -1)
        if self.opt.get("el0", 10) < 14: self.early_look(1)
        a.label(nofw2)
        self.fine(5, 4)
        I("s_branch", "L_qa1")

    def p_stage(self):
        a, I = self.a, self.I
        T = self.sT
        NPRE = 12
        a.label("L_p")
        a.raw("@VISIT")
        a.forget_counters()
        a.wait(lg=0)
        I("s_barrier")
        I("s_cmp_eq_u32", self.sC, 7)
        I("s_cbranch_scc1", "L_pidle")
        slots = [A(64 + 4 * k, 4) for k in range(12)] + [A(168 + 4 * k, 4) for k in range(8)] + [V(128 + 4 * k, 4) for k in range(28)]
        def pwf(hh, n): return slots[(hh % NPRE) * 4 + n]
        def pw_read(hh, n):
            return [lambda: I("ds_read_b64_tr_b16", pwf(hh, n)[0:2], self.vP[n], mods=f"offset:{hh * 4096}"),
                    lambda: I("ds_read_b64_tr_b16", pwf(hh, n)[2:4], self.vP[n], mods=f"offset:{hh * 4096 + 2048}")]
        self.flag_value(T[0])
        early, mid = self.opt.get("early", 8), self.opt.get("pmid", 12)
        late = [f for _, f in self.pw_dma(self.sPWc, range(8, 14))]
        PP = self.opt.get("pp", 3)
        for hh in range(early):
            for n in range(4):
                for f in pw_read(hh, n): f()
                for _ in range(3 if n == 1 or (n == 3 and early < 6) else 0):
                    if late: late.pop(0)()
            if hh == PP: I("buffer_load_dword", V(112), self.vPollP, self.sWS, self.sFOp, mods="offen sc1")
        assert not late
        loop, ok = self.lab("ppoll"), self.lab("ppass")
        if self.opt.get("dual", 1):
            a.wait(vm=0)
            I("v_cmp_ne_u32", VCC, T[0], V(112))
            I("s_cbranch_vccnz", loop)
            def spin():
                b = self.a
                b.label(loop)
                b.I("buffer_load_dword", V(112), self.vPollP, self.sWS, self.sFOp, mods="offen sc1")
                b.nop(self.opt.get("dnop", 8))
                b.label(loop + "l")
                for x, y in ((V(113), V(112)), (V(112), V(113))):
                    b.I("buffer_load_dword", x, self.vPollP, self.sWS, self.sFOp, mods="offen sc1", untracked=True)
                    b.raw("    s_waitcnt vmcnt(1)")
                    b.forget_counters()
                    b.I("v_cmp_ne_u32", VCC, T[0], y)
                    b.I("s_cbranch_vccz", ok)
                self.budget_branch(loop + "l")
            self.tail.append(spin)
        else:
            a.label(loop)
            a.wait(vm=0)
            I("v_cmp_ne_u32", VCC, T[0], V(112))
            I("s_cbranch_vccz", ok)
            I("buffer_load_dword", V(112), self.vPollP, self.sWS, self.sFOp, mods="offen sc1")
            self.budget_branch(loop)
        a.label(ok)
        a.vm = []
        self.stamp()
        def of(hh): return A(4 * hh, 4)
        def oload(hh):
            out = []
            if hh % 4 == 0 and hh:
                out.append(("s", lambda: I("s_add_u32", T[1], self.sOp, hh * 1024)))
            so = self.sOp if hh < 4 else T[1]
            out.append(("v", lambda: I("buffer_load_dwordx4", of(hh), self.vL16, self.sWS, so, mods=f"offen offset:{(hh % 4) * 1024} sc1")))
            return out
        NO = self.opt.get("no", 5)
        for hh in range(NO):
            for _, f in oload(hh): f()
        I("s_barrier")
        for hh in range(early, mid):
            for n in range(4):
                for f in pw_read(hh, n): f()
        mf, so, sw = [], [], []
        for hh in range(14):
            for n in range(4):
                mf.append((self.vR[4 * n:4 * n + 4], pwf(hh, n), of(hh), self.vR[4 * n:4 * n + 4]))
                if hh >= mid:
                    k = (hh - mid) * 4 + n
                    sw += [(max((k * self.opt.get("prate", 4)) // 3, 4 * (hh - NPRE) + n), "v", f) for f in pw_read(hh, n)]
            if hh + NO < 14: so += [(4 * hh, k, f) for k, f in oload(hh + NO)]
        j, t = V(136), V(137)
        fa = [("v", lambda: I("v_lshrrev_b32", j, 2, self.vPollP)), ("v", lambda: I("v_lshrrev_b32", t, 9, self.vL16)),
              ("v", lambda: I("v_xor_b32", t, t, j)), ("v", lambda: I("v_and_b32", t, 7, t)), ("v", lambda: I("v_lshlrev_b32", t, 4, t)),
              ("v", lambda: I("v_lshl_add_u32", t, j, 7, t)), ("v", lambda: I("v_bfe_u32", j, self.vL16, 8, 1)),
              ("s", lambda: I("s_lshl_b32", T[1], self.sW, 11)), ("s", lambda: I("s_add_u32", T[1], T[1], L_SP)),
              ("v", lambda: I("v_lshl_add_u32", t, j, 3, t)), ("v", lambda: I("v_add_u32", V(132), T[1], t))]
        fa += [("v", lambda n=n: I("v_xor_b32", V(132 + n), 32 * n, V(132))) for n in range(1, 4)]
        fa += [("v", lambda: I("v_lshrrev_b32", j, 3, self.vL16)), ("v", lambda: I("v_and_b32", j, "0x70", j)),
               ("v", lambda: I("v_xor_b32", j, j, self.vL16)), ("v", lambda: I("v_add_u32", V(120), T[1], j)),
               ("s", lambda: I("s_add_u32", T[2], self.sX0o, 8 * 1792))]
        rest = self.sched(mf, [so, sw, [(40, k, f) for k, f in fa]])
        assert not rest
        a.flush()
        self.stamp()
        I("s_cmp_eq_u32", self.sL, 4)
        I("s_cbranch_scc1", "L_final")

        a.label("L_pepi")
        xo = V(112, 8)
        for k in range(8):
            I("v_cvt_pk_bf16_f32", xo[k], self.vR[2 * k], self.vR[2 * k + 1])
            if k == 3: I("buffer_store_dwordx4", xo[0:4], self.vL16, self.sWS, self.sXp, mods="offen")
        I("buffer_store_dwordx4", xo[4:8], self.vL16, self.sWS, self.sXp, mods="offen offset:1024")
        sm, sq = V(120, 2), V(122, 2)
        self.pk("v_pk_add_f32", sm, self.vR[0:2], self.vR[2:4])
        self.pk("v_pk_mul_f32", sq, self.vR[0:2], self.vR[0:2])
        self.pk("v_pk_fma_f32", sq, self.vR[2:4], self.vR[2:4], sq)
        for k in range(2, 8):
            self.pk("v_pk_add_f32", sm, sm, self.vR[2 * k:2 * k + 2])
            self.pk("v_pk_fma_f32", sq, self.vR[2 * k:2 * k + 2], self.vR[2 * k:2 * k + 2], sq)
        pr = V(124, 2)
        I("v_add_f32", pr[0], sm[0], sm[1])
        I("v_add_f32", pr[1], sq[0], sq[1])
        x, y = pr[0], pr[1]
        I("s_add_u32", self.sL, self.sL, 1)
        I("s_lshl_b32", T[0], self.sL, 4)
        I("v_permlane32_swap_b32", x, y)
        I("s_or_b32", T[0], T[0], self.sBase)
        I("v_add_f32", x, x, y)
        I("v_mov_b32", y, x)
        I("v_mov_b32", self.vT, T[0])
        I("s_cmp_eq_u32", self.sPhase, 0)
        I("v_permlane16_swap_b32", x, y)
        I("s_cselect_b32", self.sPend, self.sHaloProd, 0)
        I("v_add_f32", x, x, y)
        I("v_mov_b32", y, x)
        I("s_lshl_b32", T[1], self.sC, 10)
        I("s_add_u32", T[1], T[1], self.sHX)
        I("v_permlane32_swap_b32", x, y)
        STG = self.opt.get("stag", 0)
        if STG:
            I("s_and_b32", T[2], self.sL, 3)
            I("v_and_or_b32", y, y, -4, T[2])
        I("s_mov_b64", EXEC, "0xffff")
        I("buffer_store_dwordx2", pr, self.vStatSt, self.sWS, self.sXSp, mods="offen")
        I("s_mov_b64", EXEC, -1)
        nh, pub = self.lab("nohalo"), self.lab("pub")
        I("s_cmp_eq_u32", self.sPend, 0)
        I("s_cbranch_scc0", nh)
        wb, wbd = self.lab("pwb"), self.lab("pwbd")
        I("s_cmp_eq_u32", self.sL, 4)
        I("s_cbranch_scc1", wb)
        a.label(wbd)
        def write_back():
            self.a.label(wb)
            for n in range(14, 21): self.I("ds_write_b128", self.vQS, self.stash(n), mods=self.piece(n))
            self.I("s_branch", wbd)
        self.tail.append(write_back)
        a.wait(vm=1 if STG else 0)
        a.label(pub)
        self.publish(self.sFXp)

        def tail():
            b = self.a
            b.label(nh)
            b.I("s_add_u32", T[1], T[1], 16384)
            b.I("s_mov_b32", self.sT2[0], "0xff00ff00")
            b.I("s_mov_b32", self.sT2[1], "0xff00ff00")
            b.I("s_mov_b64", EXEC, self.sT2)
            b.I("buffer_store_dwordx4", xo[0:4], self.vHp, self.sWS, T[1], mods="offen sc1")
            b.I("buffer_store_dwordx4", xo[4:8], self.vHp, self.sWS, T[1], mods="offen offset:512 sc1")
            b.I("s_lshl_b32", T[1], self.sC, 7)
            b.I("s_add_u32", T[1], T[1], self.sHX)
            b.I("s_add_u32", T[1], T[1], 16384 + 14336)
            b.I("s_mov_b64", EXEC, "0xffff")
            b.I("buffer_store_dwordx2", pr, self.vStatSt, self.sWS, T[1], mods="offen sc1")
            b.I("s_mov_b64", EXEC, -1)
            b.wait(vm=4 if STG else 3)
            b.I("s_branch", pub)
        self.tail.append(tail)
        a.label("L_pnext")
        a.flush()
        a.forget_counters()
        self.stamp()
        if self.opt.get("stop"):
            I("s_cmp_eq_u32", self.sL, self.opt["stop"])
            I("s_cbranch_scc1", "L_fin2")
        I("s_cmp_eq_u32", self.sPhase, 1)
        I("s_cbranch_scc1", "L_qb")

        def idle():
            b = self.a
            b.label("L_pidle")
            b.I("s_cmp_eq_u32", self.sL, 4)
            b.I("s_cbranch_scc1", "L_fin2")
            b.I("s_add_u32", self.sL, self.sL, 1)
            b.I("s_cmp_lg_u32", self.sL, 4)
            b.I("s_cbranch_scc1", "L_pnext")
            for n in range(14, 21): b.I("ds_write_b128", self.vQS, self.stash(n), mods=self.piece(n))
            b.I("s_branch", "L_pnext")
        self.tail.append(idle)

    def q_poll(self, shadow=None):
        a, I = self.a, self.I
        T = self.sT
        ex, t, pv = V(112), V(113), V(114)
        loop, ok, pend, nopend, slow, again = (self.lab(x) for x in ("qpoll", "qpass", "pend", "nopend", "qslow", "qagain"))
        I("v_mad_u32_u24", ex, self.vExpM, self.sL, self.vExpC)
        if shadow:
            chk = self.lab("qchk")
            I("buffer_load_dword", pv, self.vPollQ, self.sWS, 0, mods="offen sc1")
            shadow()
            I("s_branch", chk)
        a.label(loop)
        I("buffer_load_dword", pv, self.vPollQ, self.sWS, 0, mods="offen sc1")
        if shadow: a.label(chk)
        I("s_cmp_eq_u32", self.sPend, 0)
        a.wait(vm=0)
        I("s_cbranch_scc0", pend)
        a.label(nopend)
        I("v_xor_b32", t, pv, ex)
        I("v_cmp_ne_u32", VCC, 0, t)
        I("s_cbranch_vccnz", slow)
        a.label(ok)
        a.vm = []

        def tail():
            b = self.a
            b.label(pend)
            b.I("s_lshl_b32", T[1], self.sC, 2)
            b.I("s_add_u32", T[1], T[1], self.sFHp)
            self.flag_value(T[0])
            b.I("v_mov_b32", self.vT, T[0])
            b.I("s_mov_b64", EXEC, 1)
            b.I("buffer_store_dword", self.vT, OFF, self.sWS, T[1], mods="offset:128 sc1")
            b.I("s_mov_b64", EXEC, -1)
            b.I("s_mov_b32", self.sPend, 0)
            b.I("s_branch", nopend)
            b.label(slow)
            if self.opt.get("dual", 1):
                fast, gen = self.lab("qfast"), self.lab("qgen")
                b.I("s_cmp_eq_u32", self.sL, 1)
                b.I("s_cselect_b32", T[0], 0, self.sMode)
                b.I("s_cmp_eq_u32", T[0], 0)
                b.I("s_cbranch_scc1", gen)
                b.I("buffer_load_dword", pv, self.vPollQ, self.sWS, 0, mods="offen sc1")
                b.nop(self.opt.get("dnop", 8))
                b.label(fast)
                for x, y in ((t, pv), (pv, t)):
                    b.I("buffer_load_dword", x, self.vPollQ, self.sWS, 0, mods="offen sc1", untracked=True)
                    b.raw("    s_waitcnt vmcnt(1)")
                    b.forget_counters()
                    b.I("v_cmp_ne_u32", VCC, ex, y)
                    b.I("s_cbranch_vccz", ok)
                self.budget_branch(fast)
                b.label(gen)
            b.I("s_cmp_eq_u32", self.sMode, 0)
            b.I("s_cbranch_scc1", again + "m")
            b.I("v_not_b32", V(115), self.vPollM)
            b.I("v_and_b32", V(116), t, self.vPollM)
            b.I("v_and_b32", V(115), t, V(115))
            b.I("v_cmp_ne_u32", self.sT2, 0, V(115))
            b.I("v_cmp_eq_u32", VCC, 0, V(116))
            b.nop(2)
            b.I("s_cmp_eq_u64", self.sT2, 0)
            b.I("s_cbranch_scc1", again)
            b.I("s_and_b32", T[0], VCC_LO, VCC_HI)
            b.I("s_andn2_b32", T[0], "0xffff0000", T[0])
            b.I("s_cbranch_scc1", again)
            b.I("s_mov_b32", self.sMode, 0)
            b.I("s_add_u32", self.sFXp, self.sFXp, WS_SLOW)
            b.I("s_add_u32", self.sFOq, self.sFOq, WS_SLOW)
            b.I("s_add_u32", self.sFOp, self.sFOp, WS_SLOW)
            b.I("v_lshlrev_b32", V(115), 11, self.vExpM)
            b.I("v_add_u32", self.vPollQ, V(115), self.vPollQ)
            b.I("s_branch", again)
            b.label(again + "m")
            b.I("v_and_b32", V(116), t, self.vPollM)
            b.I("v_cmp_ne_u32", VCC, 0, V(116))
            b.I("s_cbranch_vccz", ok)
            b.label(again)
            self.budget_branch(loop)
        self.tail.append(tail)

    def xload(self, ks):
        out = []
        if ks % 4 == 0:
            out.append(("s", lambda: self.I("s_add_u32", self.sT[1], self.sXq, ks * 1024)))
            out.append(("s", lambda: self.I("s_add_u32", self.sT[2], self.sXq, ks * 1024 + 14336)))
        for t in range(2):
            out.append(("v", lambda t=t: self.I("buffer_load_dwordx4", self.xf(t, ks), self.vL16, self.sWS, self.sT[1 + t],
                                               mods=f"offen offset:{(ks % 4) * 1024} sc1")))
        return out

    def stats_ops(self, T, layer):
        raw, st = self.straw(T), self.st(T)
        t = V(188 + 2 * T, 2)
        ops = []
        def add(*x, **k): ops.append(("w" if ("perm" in x[0] or "rsq" in x[0]) else "v", lambda: self.I(*x, **k)))
        add("v_and_b32", raw[2], raw[2], self.vM3)
        add("v_and_b32", raw[3], raw[3], self.vM3)
        add("v_add_f32", raw[0], raw[0], raw[2])
        add("v_add_f32", raw[1], raw[1], raw[3])
        for step in range(7):
            x, y = raw[0], raw[1]
            if step in (0, 6): add("v_permlane32_swap_b32", x, y)
            elif step in (1, 4): add("v_add_f32", x, x, y)
            elif step in (2, 5): add("v_mov_b32", y, x)
            else: add("v_permlane16_swap_b32", x, y)
        add("v_mul_f32", st[0], f32(-1.0 / 448), raw[0])
        add("v_mul_f32", t[0], f32(1.0 / 448), raw[1])
        add("v_fma_f32", t[0], Neg(st[0]), st[0], t[0])
        add("v_max_f32", t[0], 0, t[0])
        add("v_add_f32", t[0], f32(1e-5), t[0])
        add("v_rsq_f32", st[1], t[0])
        add("v_and_b32", st[2], st[1], self.vMH if T == 2 else self.vM3)
        if T < 2:
            add("v_mul_f32", st[3], f32(LOG2E * (28 ** -0.5 if layer == "A" else 1.0)), st[1])
        return ops

    def colsum_part(self, ad, steps, cs_off):
        a, I = self.a, self.I
        d = V(192, 4)
        def w(k): return self.wf(k % 4)
        def rd(k): I("ds_read_b128", w(k), ad, mods=f"offset:{steps[k] * 2048}")
        for k in range(4): rd(k)
        mf, sw = [], []
        for k in range(len(steps)):
            mf.append((d, w(k), self.aOnes, 0 if k == 0 else d))
            if k + 4 < len(steps): sw.append((k, "v", lambda k=k: rd(k + 4)))
        assert not self.sched(mf, [sw])
        I("v_lshrrev_b32", V(189), 8, self.vL16)
        I("v_lshlrev_b32", V(189), 4, V(189))
        I("s_add_u32", self.sT[0], self.sT[0], L_CS + cs_off)
        I("v_add_u32", V(189), self.sT[0], V(189))
        I("s_mov_b32", self.sT2[0], "0x00010001")
        I("s_mov_b32", self.sT2[1], "0x00010001")
        a.flush()
        I("s_mov_b64", EXEC, self.sT2)
        I("ds_write_b128", V(189), d)
        I("s_mov_b64", EXEC, -1)

    def colsum_b_q(self):
        I, T = self.I, self.sT
        I("v_lshrrev_b32", V(188), 8, self.vL16)
        I("v_lshlrev_b32", V(188), 4, V(188))
        I("v_add_u32", V(188), L_CS, V(188))
        for ft in range(2, 6):
            I("ds_read_b128", self.cB[4 * ft:4 * ft + 4], V(188), mods=f"offset:{64 * ft}")
        I("s_lshr_b32", T[0], self.sW, 1)
        I("s_lshl_b32", T[0], T[0], 10)
        I("v_add_u32", V(188), T[0], self.vL16)
        I("s_and_b32", T[0], self.sW, 1)
        I("s_mul_i32", T[0], T[0], 7 * 2048)
        I("v_add_u32", V(188), T[0], V(188))
        I("s_lshl_b32", T[0], self.sW, 6)
        self.colsum_part(V(188), list(range(7)), 512)

    def colsum_b_q2(self):
        a, I = self.a, self.I
        done = self.lab("cq2")
        a.wait_lg_all()
        I("s_cmp_lg_u32", self.sIt, 0)
        I("s_cbranch_scc1", done)
        I("v_lshrrev_b32", V(188), 8, self.vL16)
        I("v_lshlrev_b32", V(188), 4, V(188))
        I("v_add_u32", V(188), L_CS + 512, V(188))
        for k in range(4):
            I("ds_read_b128", self.cB[4 * (k >> 1):4 * (k >> 1) + 4] if k % 2 == 0 else V(204 + 4 * (k >> 1), 4), V(188), mods=f"offset:{64 * k}")
        for k in range(8): I("v_add_f32", self.cB[k], self.cB[k], V(204 + k))
        a.flush()
        a.label(done)

    def cs_read(self, dst, with_halo):
        I = self.I
        ad = V(188)
        I("v_lshrrev_b32", ad, 8, self.vL16)
        I("v_lshlrev_b32", ad, 4, ad)
        I("v_add_u32", ad, L_CS, ad)
        for ft in range(6):
            I("ds_read_b128", dst[4 * ft:4 * ft + 4], ad, mods=f"offset:{64 * ft}")
        if with_halo:
            I("s_lshl_b32", self.sT[0], self.sW, 6)
            I("v_add_u32", V(189), self.sT[0], ad)
            I("ds_read_b128", self.vCH, V(189), mods="offset:128")

    def wphi_gather(self):
        a, I = self.a, self.I
        j, g, f1, ad, t = V(214), V(215), V(216), V(217), V(218)
        I("v_lshrrev_b32", g, 8, self.vL16)
        I("v_lshrrev_b32", j, 2, self.vPollP)
        I("v_lshrrev_b32", t, 2, j)
        I("v_sub_u32", f1, j, t)
        I("v_add_u32", f1, 16, f1)
        I("v_mul_u32_u24", ad, 4 * 56, g)
        I("v_add_u32", ad, L_WPHI, ad)
        I("v_lshl_add_u32", f1, f1, 1, ad)
        I("v_lshl_add_u32", ad, j, 1, ad)
        I("v_and_b32", t, 3, j)
        I("v_cmp_ne_u32", VCC, 3, t)
        I("v_cndmask_b32", t, 0, -1, VCC)
        I("v_and_b32", j, t, self.vM3)
        for oft, base in enumerate((ad, f1)):
            for e in range(8):
                d = e if e < 4 else 16 + e - 4
                I("ds_read_u16", V(204 + e), base, mods=f"offset:{d * 56}")
            for p in range(4):
                I("v_lshl_or_b32", V(204 + 2 * p), V(205 + 2 * p), 16, V(204 + 2 * p))
                m = (None, self.vM3)[p >> 1] if oft == 0 else (t, j)[p >> 1]
                if m is not None: I("v_and_b32", V(204 + 2 * p), V(204 + 2 * p), m)
                I("v_accvgpr_write_b32", self.aWphi[4 * oft + p], V(204 + 2 * p))

    def conv_scalar(self, dst, T, mat, c, scales):
        out = []
        st = self.st(T)
        for f in range(2):
            acc = self.acc(T, 2 * mat + f)
            cc = c[4 * (2 * mat + f):4 * (2 * mat + f) + 4]
            for k in range(4): out.append(lambda acc=acc, cc=cc, k=k: self.I("v_fma_f32", acc[k], cc[k], st[0], acc[k]))
            m = {"r": st[1], "m": st[2], None: None}[scales[f]]
            if m is not None:
                for k in range(4): out.append(lambda acc=acc, m=m, k=k: self.I("v_mul_f32", acc[k], acc[k], m))
            for p in range(2): out.append(lambda acc=acc, f=f, p=p: self.I("v_cvt_pk_bf16_f32", dst[2 * f + p], acc[2 * p], acc[2 * p + 1]))
        return out

    def check_parked(self, before):
        assert self.a.count["ds_read_b128"] - before == 21

    def b_tiles(self): return (2, 3, 4, 5, 0) if self.opt.get("qsplit", 0) else (2, 3, 4, 5)

    def q_ready(self, layer, first=False):
        a, I = self.a, self.I
        a.wait(lg=0)
        I("s_barrier")
        once = self.lab("once")
        if layer == "B":
            I("s_cmp_lg_u32", self.sIt, 0)
            I("s_cbranch_scc1", once)
        nvm = len(a.vm)
        if layer == "A" and not first:
            pass
        elif layer == "A":
            self.cs_read(self.cA, True)
            for n in range(4): I("ds_read_b64", V(200 + 2 * n, 2), V(0), mods=f"offset:{32 * n}")
            for n in range(4):
                for p in range(2):
                    I("v_lshlrev_b32", self.vR[4 * n + 2 * p], 16, V(200 + 2 * n + p))
                    I("v_and_b32", self.vR[4 * n + 2 * p + 1], "0xffff0000", V(200 + 2 * n + p))
        else:
            self.colsum_b_q()
        a.wait_lg_all()
        a.flush()
        assert nvm == len(a.vm)
        a.label(once)
        for ft in (range(6) if layer == "A" else self.b_tiles()):
            for f in self.qa_read(self.wf(ft), ft, 0): f()

    def q_gemm(self, layer, tail_ops=(), first=None):
        a, I = self.a, self.I
        T = self.sT
        isA = layer == "A"
        LOOK = self.opt.get("look", 3)
        if not first:
            for ks in range(2):
                for _, f in self.xload(ks): f()
            if not isA: self.q_ready("B")
            for _, f in self.xload(2): f()
        reads0, writes0 = a.count.get("ds_read_b128", 0), a.count.get("ds_write_b128", 0)
        def bar(n):
            assert a.count["ds_read_b128"] - reads0 == n and not a.lg and a.count.get("ds_write_b128", 0) == writes0
            I("s_barrier")

        G = 12 if isA else 2 * len(self.b_tiles())
        mf, sw, sx, sd, sv, sh, stc = [], [], [], [], [], [], []
        RE = isA and self.opt.get("reord", 1)
        for ks in range(12 if RE else 14):
            order = ((2, 3, 4, 5, 0, 1) if ks == 13 else range(6)) if isA else self.b_tiles()
            for ft in order:
                for t in ((1, 0) if ks == 13 else (0, 1)):
                    mf.append((self.acc(t, ft), self.wf(ft), self.xf(t, ks), 0 if ks == 0 else self.acc(t, ft)))
                if ks < 13:
                    sw += [(len(mf) - 1, "v", f) for f in self.qa_read(self.wf(ft), ft, ks + 1)]
                if RE and ks == 11 and ft in (2, 3):
                    sw += [(len(mf) - 1, "v", f) for f in self.qa_read(self.wf(4 + ft), ft, 13)]
        if RE:
            last = {2: 6, 3: 7, 4: 2, 5: 3, 0: 6, 1: 7}
            for mat in (1, 2, 0):
                for ks in (12, 13):
                    for ft in (2 * mat, 2 * mat + 1):
                        slot = ft if ks == 12 else last[ft]
                        for t in (1, 0):
                            mf.append((self.acc(t, ft), self.wf(slot), self.xf(t, ks), self.acc(t, ft)))
                        nxt = [f2 for f2 in last if last[f2] == slot and f2 != ft and ((mat == 1 and ks == 12 and f2 in (4, 5)) or (mat == 1 and ks == 13 and f2 in (0, 1)))]
                        for f2 in nxt: sw += [(len(mf) - 1, "v", f) for f in self.qa_read(self.wf(slot), f2, 13)]
        for k in range(3, 14):
            gap = max(0, G * (k - LOOK) - (6 if k > 6 else 0)) if isA else max(0, G * (k - self.opt.get("lookb", 4)))
            if isA and self.opt.get("slope", 75): gap = (G * (k - 3) * self.opt.get("slope", 75)) // 100
            xl = self.xload(k)
            sx += [(gap, kind, f) for kind, f in xl[:-1]] + [(gap + 4, "v", xl[-1][1])]
            SK = self.opt.get("ska", 6) if isA else self.opt.get("skb", 7)
            if k in (SK, SK + 1):
                for t in (k - SK,):
                    for q in range(2):
                        sx.append((gap + 7 + 2 * q, "v", lambda t=t, q=q: I(
                            "buffer_load_dwordx2", self.straw(t)[2 * q:2 * q + 2], self.vStat, self.sWS, self.sXSq,
                            mods=f"offen offset:{t * 1024 + 512 * q} sc1")))
        s0, s1 = self.stats_ops(0, layer), self.stats_ops(1, layer)
        sv += [(G * SK + 6 - G * self.opt.get("sva", 0) if isA else G * (SK - 1), k, f) for p in zip(s0, s1) for k, f in p]
        x2 = a.count.get("buffer_load_dwordx2", 0)
        def loaded(f, n):
            def g():
                assert a.count["buffer_load_dwordx2"] - x2 >= n, "row sums used before they were requested"
                f()
            return g
        if self.opt.get("stag", 0):
            slow_s, back_s = self.lab("sslow"), self.lab("sback")
            u, w = V(188), V(190)
            r0, r1 = self.straw(0), self.straw(1)
            def chk_ops():
                return [("v", lambda: I("v_xor_b32", u, r0[3], r1[3])), ("v", lambda: I("v_xor_b32", w, r0[1], r1[1])),
                        ("v", lambda: I("v_bitop3_b32", u, u, r0[3], self.sL, mods="bitop3:0xf6")),
                        ("v", lambda: I("v_bitop3_b32", w, w, r0[1], self.sL, mods="bitop3:0xf6")),
                        ("v", lambda: I("v_and_or_b32", u, u, self.vM3, w)), ("v", lambda: I("v_and_b32", u, 3, u)),
                        ("v", lambda: I("v_cmp_ne_u32", VCC, 0, u))]
            def br_s():
                I("s_cbranch_vccnz", slow_s)
                a.label(back_s)
            def tail_s():
                b = self.a
                b.label(slow_s)
                b.I("s_sub_u32", self.sBudget, self.sBudget, 1)
                b.I("s_cbranch_scc1", "L_end")
                for t in range(2):
                    for q in range(2):
                        b.I("buffer_load_dwordx2", self.straw(t)[2 * q:2 * q + 2], self.vStat, self.sWS, self.sXSq,
                            mods=f"offen offset:{t * 1024 + 512 * q} sc1")
                b.wait(vm=0)
                for _, f in chk_ops(): f()
                b.I("s_cbranch_vccnz", slow_s)
                b.I("s_branch", back_s)
            self.tail.append(tail_s)
            co = chk_ops()
            sv = [(sv[0][0], k, f) for k, f in co[:-1]] + [(sv[0][0], "v", lambda: (co[-1][1](), br_s()))] + sv
        sv[0] = (sv[0][0], sv[0][1], loaded(sv[0][2], 4))
        sf = []
        if self.opt.get("fine") == (1 if isA else 2):
            sf = [(G * 2 * i, "s", lambda i=i: self.fine(1 if isA else 2, i)) for i in range(7)]
        nd = 0
        for k, f in self.pw_dma(self.sWOA, range(8)) if isA else ():
            sd.append((G * 10 + 2 + 5 * nd, k, f))
            nd += k == "v"
        if isA:
            HF, HC = self.opt.get("hf", 4), self.opt.get("hc", 8)
            hv, hx, fv = V(194), V(195), V(196)
            def check(reg, first, gap, shift):
                slow, back = self.lab("hslow"), self.lab("hback")
                def br():
                    I("v_cmp_ne_u32", VCC, hx, reg)
                    I("s_cbranch_vccnz", slow)
                    a.label(back)
                out = [(first, "v", lambda: I("buffer_load_dword", reg, self.vPollH, self.sWS, 0, mods="offen sc1")),
                       (gap, "v", br)]
                def tail():
                    b = self.a
                    b.label(slow)
                    b.I("s_sub_u32", self.sBudget, self.sBudget, 1)
                    b.I("s_cbranch_scc1", "L_end")
                    b.I("buffer_load_dword", reg, self.vPollH, self.sWS, 0, mods="offen sc1")
                    b.wait(vm=0)
                    b.I("v_cmp_ne_u32", VCC, hx, reg)
                    if shift: b.I("s_lshr_b64", VCC, VCC, 16)
                    b.I("s_cbranch_scc1" if shift else "s_cbranch_vccnz", slow)
                    b.I("s_branch", back)
                self.tail.append(tail)
                return out
            stc = [(2, "v", lambda: I("v_mad_u32_u24", hx, self.vExpHM, self.sL, self.vExpHC))]
            sh += check(hv, G * HF + 8, G * HC, False)
            sh.append((G * HC, "s", lambda: I("s_lshl_b32", T[0], self.sW, 11)))
            sh.append((G * HC, "s", lambda: I("s_add_u32", M0, T[0], L_HX, m0="halo")))
            sh.append((G * HC, "s", lambda: I("s_add_u32", T[0], T[0], self.sHX)))
            for q in range(2):
                sh.append((G * HC, "v", lambda q=q: I("buffer_load_dwordx4", self.vHalo, self.sWS, T[0], mods=f"offen offset:{1024 * q} sc1 lds", tag="halo", m0="halo")))
            sh.append((G * HC, "s", lambda: I("s_add_u32", T[0], self.sHX, 14336)))
            for q in range(2):
                sh.append((G * HC, "v", lambda q=q: I("buffer_load_dwordx2", self.straw(2)[2 * q:2 * q + 2], self.vHaloS, self.sWS, T[0],
                                                     mods=f"offen offset:{512 * q} sc1")))
            sh.append((G * HC, "v", lambda: I("v_add_u32", V(194), L_HX, self.vHp)))
            def hw(k): return A(4 * k, 4)
            shw = []
            had = self.vQh
            for k in range(14): shw.append((G * (1 + (k * 11) // 14) + 3, "v", lambda k=k: I("ds_read_b128", hw(k), had, mods=f"offset:{k * 2048}")))
            s2 = self.stats_ops(2, layer)
            sv2 = [(G * (HC + 4), k, loaded(f, 6)) for k, f in s2]
            nb = len(mf) - 11
            sb = [(nb, "s", lambda: a.wait_vm_tag("halo")), (nb, "s", lambda: a.wait(lg=0)), (nb, "s", lambda: bar(78 + 14 + (21 if first else 0)))]
            sb += [((nb if k < 10 or not RE else len(mf) - 1), "v", lambda k=k: I("ds_read_b128", self.hx(k), V(194), mods=f"offset:{512 * k}")) for k in range(14)]
            n0 = len(mf)
            for k in range(14): mf.append((self.hacc, hw(k), self.hx(k), 0 if k == 0 else self.hacc))
            stl = [(n0 - 6, "v", f) for f in tail_ops]
            if RE:
                stl = [(n0 - 15 if k < 20 else (nb + 1 if k == 20 else n0 - 7), "v", f) for k, f in enumerate(tail_ops)]
            if not first and self.opt.get("otouch", 0):
                sd.append((G * 13, "v", lambda: I("v_mul_u32_u24", V(197), 448, self.vPollP)))
                sd.append((G * 13, "v", lambda: I("buffer_load_dword", self.vDummy, V(197), self.sOUT, self.sX0o, mods="offen", nodest=True)))
            sd.append((G * 13, "s", lambda: I("s_lshr_b32", T[3], self.sGrp, 1)))
            sd.append((G * 13, "s", lambda: I("s_lshl_b32", T[3], T[3], 10)))
            sd.append((G * 13, "s", lambda: I("s_add_u32", T[3], T[3], self.sKVld)))
            sd.append((G * 13, "s", lambda: I("s_add_u32", T[3], T[3], 8192)))
            sd.append((G * 13, "v", lambda: I("buffer_load_dword", self.vDummy, self.vL16, self.sWS, T[3], mods="offen", nodest=True)))
            spark, sfw = [], []
            if first:
                spark = [(G * self.opt.get("pk0", 6) + self.opt.get("pkd", 4) * n, "v", lambda n=n: I("ds_read_b128", self.stash(n + 1), self.vQS, mods=self.piece(n))) for n in range(21)]
                sfw = [(nb + 6 + 8 * k, "w", first) for k in range(2)]
            rest = self.sched(mf, [sf, sw, sx, stc, sh, shw, spark, sb, sd, sfw, sv + stl, sv2])
        else:
            n0 = len(mf)
            stl = [(n0 - G + 4, "v", f) for f in tail_ops]
            rest = self.sched(mf, [sf, sw, sx, sv + stl])
        return rest

    def ln(self, acc, c, st, scale):
        for p in range(2):
            self.pk("v_pk_fma_f32", acc[2 * p:2 * p + 2], c[2 * p:2 * p + 2], st[0:2], acc[2 * p:2 * p + 2], by=0)
        if scale == "r":
            for p in range(2): self.pk("v_pk_mul_f32", acc[2 * p:2 * p + 2], acc[2 * p:2 * p + 2], st[0:2], by=1)
        elif scale == "m":
            for p in range(2): self.pk("v_pk_mul_f32", acc[2 * p:2 * p + 2], acc[2 * p:2 * p + 2], st[2:4], by=0)
        elif scale == "e":
            self.pk("v_pk_fma_f32", acc[0:2], acc[0:2], st[2:4], self.vE0, by=0)
            self.pk("v_pk_mul_f32", acc[2:4], acc[2:4], st[2:4], by=0)

    def cvt(self, dst, src):
        for p in range(src.cnt // 2):
            self.I("v_cvt_pk_bf16_f32", dst[p], src[2 * p], src[2 * p + 1])

    def conv(self, dst, T, mat, c, scales):
        for f in range(2):
            ft = 2 * mat + f
            self.ln(self.acc(T, ft), c[4 * ft:4 * ft + 4], self.st(T), scales[f])
        for f in range(2):
            self.cvt(dst[2 * f:2 * f + 2], self.acc(T, 2 * mat + f))

    def o_finish(self, o, den, of, in_drain, after):
        a, I = self.a, self.I
        T = self.sT
        I("s_add_u32", T[1], self.sOq, 16384)
        self.flag_value(T[0])
        for t in range(2): I("v_rcp_f32", den[t][0], den[t][0])
        I("v_mov_b32", self.vT, T[0])
        def tile(t, fl):
            if t:
                for p in range(4): self.pk("v_pk_mul_f32", o[t][2 * p:2 * p + 2], o[t][2 * p:2 * p + 2], den[t][0:2], by=0)
                self.cvt(of[t], o[t])
            I("buffer_store_dwordx2", of[t][0:2], self.vO0, self.sWS, T[1] if t else self.sOq, mods="offen" + fl)
            I("buffer_store_dwordx2", of[t][2:4], self.vO1, self.sWS, T[1] if t else self.sOq, mods="offen" + fl)
        far, stored = self.lab("ofar"), self.lab("ostored")
        I("s_cmp_eq_u32", self.sMode, 0)
        for p in range(4): self.pk("v_pk_mul_f32", o[0][2 * p:2 * p + 2], o[0][2 * p:2 * p + 2], den[0][0:2], by=0)
        self.cvt(of[0], o[0])
        I("s_cbranch_scc1", far)
        for t in range(2): tile(t, "")
        a.label(stored)
        def device_scope():
            self.a.label(far)
            for t in range(2): tile(t, " sc1")
            self.I("s_branch", stored)
        self.tail.append(device_scope)
        self.fine(getattr(self, "fin_region", 0) or -1, 6)
        self.fin_region = 0
        if in_drain: in_drain()
        a.wait(vm=0)
        self.publish(self.sFOq)
        self.stamp()
        if after: after()

    def qa_stage(self, first=False):
        a, I = self.a, self.I
        if first and (self.opt.get("visit", 0) or "pad" in self.opt): a.raw(".p2align 12")
        if first and self.opt.get("pad"): a.raw(f".fill {self.opt['pad'] // 4}, 4, 0xbf800000")
        a.label("L_qa1" if first else "L_qa")
        a.forget_counters()
        self.it_b = None
        left = list(range(7, 21)) + list(range(7))
        NE, NH = self.opt.get("ne", 12), self.opt.get("nh", 4)
        def more():
            if first and len(left) > 21 - NE: self.fw_piece(left.pop(0))
        self.more = more
        if first:
            have = self.lab("havex")
            self.q_ready("A", True)
            I("s_cmp_eq_u32", S(3), 1)
            I("s_cbranch_scc1", have)
            self.q_poll()
            for ks in range(3):
                for _, f in self.xload(ks): f()
            a.label(have)
        else: self.q_poll(lambda: (self.b_to_a(range(14, 21)), self.q_ready("A")))
        self.stamp()
        kf = [V(196, 4), V(200, 4)]
        qf = [V(204, 4), V(208, 4)]
        vp = [V(212, 4), V(216, 4)]
        hp = V(220, 2)
        tail_ops = self.conv_scalar(kf[1], 1, 1, self.cA, ("r", "m"))
        tail_ops.append(lambda: I("ds_write_b128", self.vKrd, kf[1], mods="offset:1024"))
        tail_ops += self.conv_scalar(vp[1], 1, 2, self.cA, ("r", "r"))
        tail_ops.append(lambda: I("ds_write_b128", self.vEXW, vp[1], mods="offset:2048"))
        TV0 = self.opt.get("tv0", 0)
        if TV0:
            tail_ops += self.conv_scalar(vp[0], 0, 2, self.cA, ("r", "r"))
            tail_ops.append(lambda: I("ds_write_b128", self.vEXW, vp[0], mods="offset:1024"))
        rest = self.q_gemm("A", tail_ops, more if first else None)
        for f in rest: f()
        self.stamp()
        more()
        if not TV0:
            self.conv(vp[0], 0, 2, self.cA, ("r", "r"))
            I("ds_write_b128", self.vEXW, vp[0], mods="offset:1024")
        self.ln(self.hacc, self.vCH, self.st(2), "m")
        self.cvt(hp, self.hacc)
        I("ds_write_b64", self.vHW, hp)
        more()
        self.conv(qf[0], 0, 0, self.cA, (None, None))
        self.fine(4, 0)
        a.wait(lg=0)
        I("s_barrier")
        self.fine(4, 1)
        kprev = V(222, 4)
        vt = [V(226, 6), V(232, 6)]
        I("ds_read_b128", kprev, self.vKrd)
        for f in range(2):
            for i in range(3):
                I("ds_read_b64_tr_b16", vt[f][2 * i:2 * i + 2], self.vEXRa, mods=f"offset:{1024 * i + 8 * f}")
        more()
        self.conv(kf[0], 0, 1, self.cA, ("r", "m"))
        more()
        self.conv(qf[1], 1, 0, self.cA, (None, None))
        s = [V(112, 8), V(120, 8)]
        self.mfma(s[1][4:8], kf[1], qf[1], self.bCur)
        self.mfma(s[1][0:4], kf[0], qf[1], self.bPrev)
        self.mfma(s[0][4:8], kf[0], qf[0], self.bCur)
        self.mfma(s[0][0:4], kprev, qf[0], self.bPrev0)
        self.fine(4, 2)
        more()
        m = V(128, 2)
        for t in (1, 0):
            I("v_max3_f32", m[t], s[t][4], s[t][5], s[t][6])
            I("v_max3_f32", m[t], m[t], s[t][7], s[t][0])
            I("v_max3_f32", m[t], m[t], s[t][1], s[t][2])
            I("v_max_f32", m[t], m[t], s[t][3])
        self.allreduce_pairs([("v_max_f32", m[0], m[1])])
        more()
        nm = [V(130, 2), V(132, 2)]
        for t in range(2):
            I("v_mul_f32", nm[t][0], m[t], self.st(t)[3])
        for t in range(2):
            for p in range(4):
                self.I("v_pk_fma_f32", s[t][2 * p:2 * p + 2], s[t][2 * p:2 * p + 2], self.st(t)[2:4], nm[t],
                       mods="op_sel:[0,1,0] op_sel_hi:[1,1,0] neg_lo:[0,0,1] neg_hi:[0,0,1]")
        self.fine(4, 3)
        pf = [V(136, 4), V(140, 4)]
        o = [V(144, 8), V(152, 8)]
        sm = [V(160, 4), V(164, 4)]
        more()
        for k in range(8): I("v_exp_f32", s[0][k], s[0][k])
        more()
        for k in range(2): I("v_exp_f32", s[1][k], s[1][k])
        self.cvt(pf[0], s[0])
        for k in range(2, 4): I("v_exp_f32", s[1][k], s[1][k])
        self.mfma(sm[0], self.aOnes, pf[0], 0)
        I("v_exp_f32", s[1][4], s[1][4])
        self.mfma(o[0][0:4], vt[0][0:4], pf[0], 0)
        I("v_exp_f32", s[1][5], s[1][5])
        self.mfma(o[0][4:8], vt[1][0:4], pf[0], 0)
        for k in range(6, 8): I("v_exp_f32", s[1][k], s[1][k])
        self.cvt(pf[1], s[1])
        self.mfma(sm[1], self.aOnes, pf[1], 0)
        for f in range(2):
            self.mfma(o[1][4 * f:4 * f + 4], vt[f][2:6], pf[1], 0)
        self.fine(4, 4)
        more()
        more()
        self.fine(4, 5)
        self.fin_region = 4
        def hop1():
            for _ in range(NH): self.fw_piece(left.pop(0))
            self.fw_left = left
            assert len(left) <= 7
        if first: self.o_finish(o, sm, [V(168, 4), V(172, 4)], self.wphi_gather, hop1)
        else: self.o_finish(o, sm, [V(168, 4), V(172, 4)], lambda: self.unpark(range(7, 14)), None)
        I("s_mov_b32", self.sPhase, 1)
        I("s_mov_b64", self.sPWc[0:2], self.sWOA[0:2])
        I("s_mov_b32", self.sPWc[2], 401408)
        a.flush()
        I("s_branch", "L_p")

    def phi(self, src, dst, extra=(), done=None):
        a, I = self.a, self.I
        rest = list(extra)
        def more(n=1):
            for _ in range(n):
                if rest: rest.pop(0)()
        p = [V(120, 8), V(128, 8)]
        for t in range(2):
            for oft in range(2):
                self.mfma(p[t][4 * oft:4 * oft + 4], self.aWphi[4 * oft:4 * oft + 4], src[t], 0)
        kk = [V(204, 2), V(206, 2)]
        bb = [V(208, 2), V(210, 2)]
        for t in range(2):
            I("v_mov_b32", kk[t][0], self.st(t)[3])
            I("v_sub_f32", kk[t][1], 0, self.st(t)[3])
        more(3)
        mx, mn = V(188, 2), V(190, 2)
        for t in range(2):
            for k in range(3):
                if k == 0:
                    I("v_max3_f32", mx[t], p[t][0], p[t][1], p[t][2])
                    I("v_min3_f32", mn[t], p[t][0], p[t][1], p[t][2])
                else:
                    I("v_max3_f32", mx[t], mx[t], p[t][2 * k + 1], p[t][2 * k + 2])
                    I("v_min3_f32", mn[t], mn[t], p[t][2 * k + 1], p[t][2 * k + 2])
        self.fine(self.phi_region or -1, 1)
        self.allreduce_pairs([("v_max_f32", mx[0], mx[1]), ("v_min_f32", mn[0], mn[1])])
        for t in range(2):
            I("v_mul_f32", bb[t][0], mx[t], kk[t][1])
            I("v_mul_f32", bb[t][1], mn[t], kk[t][0])
        e = [V(144, 14), V(158, 14)]
        for i in range(7):
            for t in range(2):
                self.pk("v_pk_fma_f32", e[t][2 * i:2 * i + 2], p[t][(i & ~1):(i & ~1) + 2], kk[t], bb[t], bx=i & 1)
        self.fine(self.phi_region or -1, 2)
        for i in range(14):
            for t in range(2): I("v_exp_f32", e[t][i], e[t][i])
            more()
        sm = [V(188, 2), V(190, 2)]
        for t in range(2): self.pk("v_pk_add_f32", sm[t], e[t][0:2], e[t][2:4])
        for i in range(2, 7):
            for t in range(2): self.pk("v_pk_add_f32", sm[t], sm[t], e[t][2 * i:2 * i + 2])
            more()
        self.fine(self.phi_region or -1, 3)
        self.allreduce_pairs([("v_add_f32", sm[0][0], sm[0][1]), ("v_add_f32", sm[1][0], sm[1][1])])
        for t in range(2):
            for k in range(2): I("v_rcp_f32", sm[t][k], sm[t][k])
        for t in range(2):
            more()
            for i in range(7):
                self.pk("v_pk_mul_f32", e[t][2 * i:2 * i + 2], e[t][2 * i:2 * i + 2], sm[t])
                if i == 3: more()
            for s in range(2):
                more()
                for q in range(4):
                    I("v_cvt_pk_bf16_f32", dst[t][s][q], e[t][4 * q + s], e[t][4 * q + 2 + s] if q < 3 else 0)
                if done: done(t, s)
        more(99)

    def qb_stage(self):
        a, I = self.a, self.I
        T = self.sT
        a.label("L_qb")
        a.raw("@VISIT")
        self.q_poll(self.qb_shadow)
        self.stamp()
        kf = qf = [V(196, 4), V(200, 4)]
        rest = self.q_gemm("B", self.conv_scalar(kf[1], 1, 1, self.cB, (None, None)))
        for f in rest: f()
        self.stamp()
        vp = [V(212, 4), V(216, 4)]
        exw = V(220)
        I("v_subrev_u32", exw, L_EXV - L_PH, self.vEXW)
        self.conv(kf[0], 0, 1, self.cB, (None, None))
        for t in (1, 0):
            self.conv(vp[t], t, 2, self.cB, ("r", "e"))
            I("ds_write_b128", exw, vp[t], mods=f"offset:{16384 + 1024 * t}")
        self.fine(3, 0)
        self.phi_region = 3
        ph = [[V(232, 4), V(236, 4)], [V(224, 4), V(228, 4)]]
        self.phi(kf, ph, done=lambda t, s: I("ds_write_b128", exw, ph[t][s], mods=f"offset:{8192 * s + 1024 * t}"))
        self.phi_region = 0
        self.fine(3, 4)
        a.wait(lg=0)
        I("s_barrier")
        self.fine(3, 5)
        lo, hi, real = V(184), V(185), V(186)
        sX, oth = T[1], V(124, 4)
        I("s_lshr_b32", sX, self.sGrp, 1)
        I("s_lshl_b32", sX, sX, 10)
        I("s_add_u32", sX, sX, self.sKVld)
        I("s_add_u32", sX, sX, 8192)
        I("s_lshr_b32", T[0], self.sW, 1)
        I("s_xor_b32", T[0], T[0], self.sGrp)
        I("s_and_b32", T[2], T[0], 1)
        give, give2, take, kept, far = (self.lab(x) for x in ("give", "give", "take", "kept", "givefar"))
        def fetch(): I("buffer_load_dwordx4", oth, self.vKVo, self.sWS, sX, mods="offen sc1", untracked=True)
        I("s_cbranch_scc1", give2)
        fetch()
        a.label(give2)
        kacc = V(116, 8)
        def fa(k, oft): return V((128, 132, 140, 144, 148, 152, 156, 160)[k * 2 + oft], 4)
        def fb(k): return V((164, 168, 172, 196)[k], 4)
        for k in range(4):
            for t in range(2):
                I("ds_read_b64_tr_b16", fb(k)[2 * t:2 * t + 2], self.vKB, mods=f"offset:{(2 * k + t) * 1024}")
            for oft in range(2):
                for t in range(2):
                    I("ds_read_b64_tr_b16", fa(k, oft)[2 * t:2 * t + 2], self.vKA, mods=f"offset:{(2 * k + t) * 1024 + 8 * oft}")
            if k:
                for oft in range(2):
                    self.mfma(kacc[4 * oft:4 * oft + 4], fa(k - 1, oft), fb(k - 1), 0 if k == 1 else kacc[4 * oft:4 * oft + 4])
        for oft in range(2):
            self.mfma(kacc[4 * oft:4 * oft + 4], fa(3, oft), fb(3), kacc[4 * oft:4 * oft + 4])
        self.fine(3, 6)
        QF = [ft for ft in range(2) if ft not in self.b_tiles()]
        QL = 6 // len(QF)
        def qw(ks, ft): return self.wf(len(QF) * (ks % QL) + QF.index(ft))
        for ks in range(QL // 3):
            for ft in QF:
                for f in self.qa_read(qw(ks, ft), ft, ks): f()
        kvp = V(188, 4)
        def pack():
            self.cvt(kvp, kacc)
            I("v_and_b32", kvp[3], "0xffff", kvp[3])
            I("v_or_b32", kvp[3], self.sTag, kvp[3])
        I("s_cmp_eq_u32", T[2], 1)
        I("s_cbranch_scc1", give)
        a.label(take)
        a.raw("    s_waitcnt vmcnt(0)")
        a.pos += 1
        I("v_xor_b32", lo, self.sTag, oth[3])
        I("v_and_b32", lo, lo, self.vKVm)
        I("v_cmp_lt_u32", VCC, "0xffff", lo)
        I("s_cbranch_vccnz", take + "r")
        self.mfma(kacc[0:4], self.aSel[2:6], oth, kacc[0:4])
        self.mfma(kacc[4:8], self.aSel[0:4], oth, kacc[4:8])
        pack()
        I("buffer_store_dwordx4", kvp, self.vKVo, self.sWS, self.sKVst, mods="offen sc1")
        a.label(kept)
        def handover():
            b = self.a
            b.label(take + "r")
            b.I("s_sub_u32", self.sBudget, self.sBudget, 1)
            b.I("s_cbranch_scc1", "L_end")
            fetch()
            b.I("s_branch", take)
            b.label(give)
            b.nop(8)
            pack()
            b.I("s_cmp_eq_u32", self.sMode, 0)
            b.I("s_cbranch_scc1", far)
            b.I("buffer_store_dwordx4", kvp, self.vKVo, self.sWS, sX, mods="offen")
            b.I("s_branch", kept)
            b.label(far)
            b.I("buffer_store_dwordx4", kvp, self.vKVo, self.sWS, sX, mods="offen sc1")
            b.I("s_branch", kept)
        self.tail.append(handover)
        self.stamp()
        sO = [S(8 + k) for k in range(8)]
        def gf(p): return A(4 * p, 4)
        for ks in range(QL // 3, QL):
            for ft in QF:
                for f in self.qa_read(qw(ks, ft), ft, ks): f()
        NP = 8
        sr = [(0, "v", lambda: I("v_add_u32", real, self.sKVld, self.vKVp))]
        sr += [(1, "v", lambda p=p: I("v_readlane_b32", sO[p], real, p)) for p in range(NP)]
        mf, sw = [], []
        for ks in range(14):
            for ft in QF:
                for t in range(2):
                    mf.append((self.acc(t, ft), qw(ks, ft), self.xf(t, ks), 0 if ks == 0 else self.acc(t, ft)))
                if ks + QL < 14: sw += [(len(mf) - 1, "v", f) for f in self.qa_read(qw(ks, ft), ft, ks + QL)]
        sd = [(4 + k, kind, f) for k, (kind, f) in enumerate(self.pw_dma(self.sWOB, range(8)))]
        for f in self.sched(mf, [sw, sr, sd]): f()
        self.colsum_b_q2()
        def gload(p): I("buffer_load_dwordx4", gf(p), self.vKVo, self.sWS, sO[p], mods="offen sc1")
        for t in (1, 0): self.conv(qf[t], t, 0, self.cB, (None, None))
        self.phi(qf, ph, extra=[lambda: None] * self.opt.get("ung", 6) + [lambda p=p: gload(p) for p in range(NP)])
        self.stamp()
        red = V(176, 8)
        tg = [V(112 + k) for k in range(NP)]
        go, slow = self.lab("ggo"), self.lab("gslow")
        I("s_mov_b32", T[2], 0)
        a.label(go)
        self.it_b = T[2]
        self.b_to_a(range(7))
        I("s_mov_b32", T[2], 9)
        I("v_add_u32", exw, L_KVX - L_EXK, self.vKrd)
        I("v_add_u32", V(221), L_KVX, self.vL16)
        def tag_ops():
            out = []
            for p in range(NP):
                out.append((2 * p, "v", lambda p=p: I("v_accvgpr_read_b32", tg[p], gf(p)[3])))
                if p == 1:
                    out.append((2 * p, "v", lambda: I("v_min_u32", lo, tg[0], tg[1])))
                    out.append((2 * p, "v", lambda: I("v_max_u32", hi, tg[0], tg[1])))
                elif p & 1:
                    out.append((2 * p, "v", lambda p=p: I("v_min3_u32", lo, lo, tg[p - 1], tg[p])))
                    out.append((2 * p, "v", lambda p=p: I("v_max3_u32", hi, hi, tg[p - 1], tg[p])))
            return out
        def verdict():
            I("v_xor_b32", lo, self.sTag, lo)
            I("v_xor_b32", hi, self.sTag, hi)
            I("v_or_b32", lo, lo, hi)
            I("v_and_b32", lo, lo, self.vKVm)
            I("v_cmp_lt_u32", VCC, "0xffff", lo)
            I("s_cbranch_vccnz", slow)
        mf = []
        for p in range(NP):
            mf.append((red[0:4], self.aSel[2:6], gf(p), 0 if p == 0 else red[0:4]))
            mf.append((red[4:8], self.aSel[0:4], gf(p), 0 if p == 0 else red[4:8]))
        for f in self.sched(mf, [tag_ops()]): f()
        verdict()

        def tail():
            b = self.a
            b.label(slow)
            b.I("s_sub_u32", self.sBudget, self.sBudget, 1)
            b.I("s_cbranch_scc1", "L_end")
            for p in range(NP): gload(p)
            if self.opt.get("rchk", 0):
                for _, _, f in tag_ops(): f()
                verdict()
            b.I("s_branch", go)
        self.tail.append(tail)
        self.stamp()
        kvs = V(112, 4)
        self.cvt(kvs, red)
        I("ds_write_b128", exw, kvs)
        a.wait(lg=0)
        I("s_barrier")
        kvf = [[A(0, 4), A(4, 4)], [A(8, 4), A(12, 4)]]
        zf = [A(16, 4), A(20, 4)]
        for s in range(2):
            I("ds_read_b128", zf[s], self.vZ, mods=f"offset:{2048 * s}")
            for dt in range(2):
                I("ds_read_b128", kvf[s][dt], V(221), mods=f"offset:{(2 * s + dt) * 1024}")
        o = [V(144, 8), V(152, 8)]
        dn = [V(160, 4), V(164, 4)]
        mf = []
        for s in range(2):
            for t in range(2): mf.append((dn[t], zf[s], ph[t][s], 0 if s == 0 else dn[t]))
            for t in range(2):
                for dt in range(2):
                    mf.append((o[t][4 * dt:4 * dt + 4], kvf[s][dt], ph[t][s], 0 if s == 0 else o[t][4 * dt:4 * dt + 4]))
        self.sched(mf, [])
        I("s_mov_b32", self.sPhase, 0)
        I("s_mov_b64", self.sPWc[0:2], self.sWOB[0:2])
        I("s_add_u32", self.sIt, self.sIt, 1)
        I("s_add_u32", self.sKVst, self.sKVst, 0x100000)
        I("s_add_u32", self.sKVld, self.sKVld, 0x100000)
        I("s_add_u32", self.sHX, self.sHX, 0x40000)
        for t in range(2): I("v_add_f32", dn[t][0], f32(1e-6), dn[t][0])
        if self.opt.get("wb"):
            skipw = self.lab("nowb")
            I("s_cmp_eq_u32", self.sIt, 2)
            I("s_cselect_b32", T[0], self.sC, 0)
            I("s_cmp_lg_u32", T[0], 7)
            I("s_cbranch_scc1", skipw)
            I("buffer_wbl2", mods="sc1", untracked=True)
            a.label(skipw)
        self.it_b = 1
        self.o_finish(o, dn, [V(116, 4), V(120, 4)], lambda: self.b_to_a(range(7, 14)), None)
        a.flush()
        I("s_branch", "L_p")

    def final(self):
        a, I = self.a, self.I
        T = self.sT
        a.label("L_final")
        a.raw("@VISIT")
        a.forget_counters()
        xo = V(112, 8)
        for n in range(4):
            self.cvt(xo[2 * n:2 * n + 2], self.vR[4 * n:4 * n + 4])
            I("ds_write_b64", V(132 + n), xo[2 * n:2 * n + 2])
        a.wait(lg=0)
        for b in range(2): I("ds_read_b128", V(124 + 4 * b, 4), V(120), mods=f"offset:{1024 * b}")
        for b in range(2): I("buffer_store_dwordx4", V(124 + 4 * b, 4), self.vX0d, self.sOUT, T[2] if b else self.sX0o, mods="offen" + ("", " sc1", " nt", " sc0 sc1")[self.opt.get("outfl", 0)])
        a.label("L_fin2")
        self.stamp()
        if self.opt.get("stamps"):
            I("s_mov_b32", T[7], 63)
            self.stamp(real=True)
            I("s_lshl_b32", T[0], S(2), 2)
            I("s_add_u32", T[0], T[0], self.sW)
            I("s_lshl_b32", T[0], T[0], 8)
            I("s_add_u32", T[0], T[0], WS_STAMP)
            I("v_lshrrev_b32", V(120), 2, self.vL16)
            if self.opt.get("fine") == 5:
                for k in range(7):
                    I("v_readlane_b32", T[1], V(240), k)
                    I("v_writelane_b32", self.vStamp, T[1], 40 + k)
                I("v_readlane_b32", T[1], V(240), 63)
                I("v_writelane_b32", self.vStamp, T[1], 62)
                I("v_readlane_b32", T[1], self.vStamp, 2)
                I("v_writelane_b32", self.vStamp, T[1], 47)
            I("buffer_store_dword", self.vStamp, V(120), self.sWS, T[0], mods="offen")
        I("s_or_b32", T[0], S(2), self.sW)
        I("s_cmp_lg_u32", T[0], 0)
        I("s_cbranch_scc1", "L_end")
        if self.opt.get("dbg"):
            I("s_load_dwordx2", S(8, 2), S(0, 2), 64)
            a.wait(lg=0)
            self.srd(S(12, 4), S(8, 2), 256)
            I("v_lshrrev_b32", V(120), 2, self.vL16)
            I("v_readlane_b32", T[0], self.vStamp, 0)
            I("v_readlane_b32", T[1], self.vStamp, 62)
            I("v_readlane_b32", T[2], self.vStamp, 63)
            I("s_sub_u32", T[1], T[2], T[1])
            I("v_subrev_u32", V(121), T[0], self.vStamp)
            I("v_writelane_b32", V(121), T[1], 0)
            I("v_readlane_b32", T[0], V(121), 32)
            I("v_writelane_b32", V(121), T[0], 15)
            I("buffer_store_dword", V(121), V(120), S(12, 4), 0, mods="offen")
        if self.opt.get("leak"):
            skip = self.lab("noleak")
            I("v_readlane_b32", T[1], self.vStamp, 62)
            I("v_readlane_b32", T[2], self.vStamp, 63)
            I("v_readlane_b32", T[3], self.vStamp, self.opt.get("leakidx", 0))
            I("v_readlane_b32", T[4], self.vStamp, 0)
            I("s_sub_u32", T[1], T[2], T[1])
            I("s_sub_u32", T[3], T[3], T[4])
            I("s_cmp_lt_u32", T[3] if self.opt.get("leakidx") else T[1], self.opt["leak"])
            I("s_cbranch_scc1", skip)
            I("s_cmp_eq_u32", self.sMode, 0)
            I("s_cbranch_scc1", skip)
            I("v_cvt_f32_u32", V(121), T[3] if self.opt.get("leakidx") else T[1])
            I("v_lshrrev_b32", V(121), 16, V(121))
            a.wait(vm=0)
            I("s_mov_b64", EXEC, 1)
            I("buffer_store_short", V(121), OFF, self.sOUT, 0)
            a.label(skip)
        I("s_add_u32", T[0], self.sNonce, "0x10100")
        I("v_mov_b32", V(120), T[0])
        I("s_mov_b64", EXEC, 1)
        I("buffer_store_dword", V(120), OFF, self.sWS, 0)
        I("s_endpgm")

    def place_visits(self, head, lines):
        import subprocess, re
        if not self.opt.get("visit", 0):
            return "\n".join(l for l in lines if l != "@VISIT") + "\n"
        lines = list(lines)
        def render(ls):
            n = sum(l == "@VISIT" for l in ls)
            out, k = [], 0
            for l in ls:
                if l == "@VISIT":
                    out += [f"L_visit_{k}:", "    s_cbranch_execz " + (f"L_visit_{k + 3}" if k + 3 < n else "L_visit_ret")]
                    k += 1
                else: out.append(l)
            return "\n".join(out) + "\n"
        start = lines.index("L_qa1:")
        lines.insert(start + 1, "@VISIT")
        page = 1
        while True:
            open("visit.s", "w").write(head + render(lines))
            subprocess.run(["clang", "-x", "assembler", "-target", "amdgcn-amd-amdhsa", "-mcpu=gfx950", "-c", "visit.s", "-o", "visit.o"], check=True)
            dis = subprocess.run(["llvm-objdump", "-d", "--mcpu=gfx950", "visit.o"], capture_output=True, text=True).stdout
            base = int(re.search(r"([0-9a-f]+) <L_(?:qa1|visit_0)>:", dis).group(1), 16)
            addrs = [int(m.group(1), 16) for m in re.finditer(r"// ([0-9A-F]+):", dis)]
            addrs = [x for x in addrs if x >= base]
            idx = [i for i in range(start, len(lines)) if lines[i] == "@VISIT" or (lines[i].startswith("    ") and not lines[i].startswith("    ;"))]
            assert len(addrs) == len(idx), (len(addrs), len(idx))
            hit = [k for k, x in enumerate(addrs) if x >= base + 4096 * page]
            if not hit: break
            k = hit[0]
            if lines[idx[k]] != "@VISIT": lines.insert(idx[k], "@VISIT")
            page += 1
        return render(lines)

    def build(self):
        a = self.a
        self.prologue()
        self.qa_stage(first=True)
        self.p_stage()
        self.qa_stage()
        self.qb_stage()
        self.final()
        done = 0
        while done < len(self.tail):
            a.forget_counters()
            a.pos += 100
            self.tail[done]()
            done += 1
        a.label("L_end")
        a.I("s_endpgm")
        head = open("cdna_kernels/" + NAME[:-7] + ".s.ref").read().split("; Override launch")[0]
        out = head + f"; @launch grid=(256,1,1) block=(256,1,1) lds={LDS_BYTES}\n"
        out += DOC
        lead = ".p2align 12\n" + (f".fill {self.opt['epad'] // 4}, 4, 0xbf800000\n" if self.opt.get("epad") else "")
        out += f'.amdgcn_target "amdgcn-amd-amdhsa--gfx950"\n.text\n.globl {NAME}\n{lead}.p2align 8\n.type {NAME},@function\n{NAME}:\n'
        out += self.place_visits(out, a.lines)
        out += f""".section .rodata,"a"
.p2align 6
.amdhsa_kernel {NAME}
  .amdhsa_next_free_vgpr 512
  .amdhsa_next_free_sgpr 102
  .amdhsa_accum_offset 256
  .amdhsa_group_segment_fixed_size 0
  .amdhsa_kernarg_size 80
  .amdhsa_user_sgpr_count 2
  .amdhsa_user_sgpr_kernarg_segment_ptr 1
  .amdhsa_system_sgpr_workgroup_id_x 1
.end_amdhsa_kernel
"""
        return out


if __name__ == "__main__":
    opt = {}
    path = sys.argv[1]
    for kv in sys.argv[2:]:
        k, v = kv.split("=")
        opt[k] = int(v)
    g = Gen(opt)
    open(path, "w").write(g.build())
    import subprocess
    r = subprocess.run(["clang", "-x", "assembler", "-target", "amdgcn-amd-amdhsa", "-mcpu=gfx950", "-c", path, "-o", "gen_check.o"], capture_output=True, text=True)
    if r.returncode: print(r.stderr[:3000]); sys.exit(1)
    sz = subprocess.run(["llvm-readelf", "-S", "gen_check.o"], capture_output=True, text=True).stdout
    print("text bytes", [int(l.split()[6], 16) for l in sz.splitlines() if " .text" in l],
          "instructions", sum(g.a.count.values()), "nop states", g.a.nops)
```

```python
import sys
import math
import struct
from emit import Asm, V, A, S, VCC, EXEC, M0, OFF, Special

VCC_LO = Special("vcc_lo", [("s", "vcc")])
VCC_HI = Special("vcc_hi", [("s", "vcc")])

NAME = "interleave_layers__sliding_local_dilated__linear_kernel_hedgehog__prompt_kernel"


def f32(x):
    return "0x%08x" % struct.unpack("<I", struct.pack("<f", x))[0]


WS_E = 0x0
WS_FX = 0x1000
WS_FO = 0x5000
WS_SLOW = 0x8000
WS_FH = 0x10000
WS_HELLO = 0x11000
WS_FWF = 0x12000
WS_STAMP = 0xC0000
WS_X = 0x100000
WS_XS = 0x2C0000
WS_O = 0x300000
WS_KV = 0x500000
WS_HX = 0x700000
WS_FW = 0x800000
FW_T = 16 * 86016
WS_SIZE = 0xB00000
OOB = 0x7FFF0000

MAT = 28672
L_PW = 86016
L_SP = 151552
L_KVX = L_SP
L_HX = L_SP
L_WPHI = L_SP + 8192
L_CS = L_SP + 10240
L_EXK = L_PW + 32768
L_EXV = L_EXK + 5120
L_PH = L_PW + 32768
LDS_BYTES = 163840

LOG2E = math.log2(math.e)

DOC = '''; One persistent launch, one workgroup per CU. Tokens are reordered by parity into 16 groups of 128; workgroup
'''


class Neg:
    def __init__(self, r): self.r = r
    def __str__(self): return "-" + str(self.r)
    def regs(self): return self.r.regs()


class Gen:
    def __init__(self, opt):
        self.opt = opt
        self.a = Asm()
        self.tail = []
        self.uid = 0

    def lab(self, base):
        self.uid += 1
        return f"L_{base}_{self.uid}"

    sX0, sWA, sWOA, sWB, sWOB, sOUT, sWS, sWP = (S(24 + 4 * i, 4) for i in range(8))
    (sGrp, sH, sW, sC, sRh, sBase, sTag, sMode, sIt, sPhase, sL, sBudget, sXq, sXSq, sOq, sXp, sXSp, sOp, sFXp, sFOq,
     sFOp, sHX, sHaloProd, sFHp, sKVst, sKVld, sQWo, sFirst, sPend, sX0o, sNonce, sXcc) = (S(56 + i) for i in range(32))
    sPWc = sX0
    sT = [S(88 + i) for i in range(8)]
    sT2 = S(96, 2)
    sStamp = S(98, 2)
    sFW, sQWl, sPWl, sPWo = S(4), S(5), S(6), S(7)

    vL16, vQ0, vQ1, vO0, vO1, vQh = (V(1 + i) for i in range(6))
    vP = [V(7 + i) for i in range(4)]
    vQWd, vX0d, vExpHC, vPollQ, vPollM, vPollP, vEXW, vEXRa, vHW, vM3, vStat = (V(11 + i) for i in range(11))
    vE0 = V(22, 2)
    vHalo, vHaloS, vStatSt, vZ, vExpHM, vExpC, vExpM, vMH = (V(24 + i) for i in range(8))
    vCH = V(32, 4)
    bCur, bPrev, bPrev0 = V(36, 4), V(40, 4), V(44, 4)
    vR = V(48, 16)
    cA, cB = V(64, 24), V(88, 24)
    vAv, vHp, vQS = V(240), V(243), V(244)
    vDummy = V(245)
    vPWd, vKVo, vKVm, vKVp = (V(246 + i) for i in range(4))
    vKA, vKB, vPollH, vKrd, vStamp = (V(250 + i) for i in range(5))
    vT = V(255)

    aOnes, aSel, aWphi = A(232, 4), A(236, 6), A(242, 8)

    def acc(self, T, ft): return V(112 + (T * 6 + ft) * 4, 4)
    hacc = V(160, 4)
    def straw(self, T): return V(164 + 4 * T, 4)
    def st(self, T): return V(176 + 4 * T, 4)
    def xf(self, T, ks): return A((ks * 2 + T) * 4, 4)
    def hx(self, ks): return A(56 + 4 * ks, 4) if ks < 12 else self.wf(ks - 6)
    def stash(self, i): return A(112 + 4 * i, 4) if i < 14 else A(200 + 4 * (i - 14), 4)
    def wf(self, f): return A(168 + 4 * f, 4)

    def I(self, *x, **k): self.a.I(*x, **k)

    def stamp(self, real=False):
        if not self.opt.get("stamps") or (self.opt.get("stamps") == 2 and not real):
            return
        a = self.a
        a.I("s_memrealtime" if real or self.opt.get("real") else "s_memtime", self.sStamp)
        a.I("s_mov_b32", M0, self.sT[7])
        a.wait(lg=0)
        a.I("v_writelane_b32", self.vStamp, self.sStamp[0], M0)
        a.I("s_add_u32", self.sT[7], self.sT[7], 1)
        if getattr(self, "fine_pending", False):
            self.fine_pending = False
            for i in range(7): a.I("v_writelane_b32", self.vStamp, S(8 + 2 * i), 40 + i)
            a.I("v_writelane_b32", self.vStamp, self.sStamp[0], 47)

    def fine(self, region, i):
        if self.opt.get("fine") == region and region == 5:
            self.a.raw("    s_memtime s[100:101]")
            self.a.raw("    s_waitcnt lgkmcnt(0)")
            self.a.raw(f"    v_writelane_b32 v240, s100, {i}")
            self.a.pos += 3
            return
        if self.opt.get("fine") == region:
            self.a.raw(f"    s_memtime s[{8 + 2 * i}:{9 + 2 * i}]")
            self.a.pos += 1
            self.fine_pending = True

    def srd(self, dst, src, nbytes):
        self.I("s_mov_b32", dst[0], src[0])
        self.I("s_and_b32", dst[1], src[1], "0xffff")
        self.I("s_mov_b32", dst[2], nbytes)
        self.I("s_mov_b32", dst[3], "0x20000")

    def mfma(self, d, x, y, c):
        self.I("v_mfma_f32_16x16x32_bf16", d, x, y, c)

    def pk(self, op, d, x, y, z=None, bx=None, by=None, bz=None):
        srcs = [(x, bx), (y, by)] + ([(z, bz)] if z is not None else [])
        lo = [0 if b is None else b for _, b in srcs]
        hi = [1 if b is None else b for _, b in srcs]
        mods = []
        if any(lo): mods.append("op_sel:[%s]" % ",".join(map(str, lo)))
        if not all(hi): mods.append("op_sel_hi:[%s]" % ",".join(map(str, hi)))
        self.I(op, d, *[s for s, _ in srcs], mods=" ".join(mods))

    def allreduce_pairs(self, chains):
        for step in range(7):
            for op, x, y in chains:
                if step in (0, 6): self.I("v_permlane32_swap_b32", x, y)
                elif step in (1, 4): self.I(op, x, x, y)
                elif step in (2, 5): self.I("v_mov_b32", y, x)
                else: self.I("v_permlane16_swap_b32", x, y)

    def budget_branch(self, loop):
        if self.opt.get("psleep"): self.I("s_sleep", self.opt["psleep"])
        self.I("s_sub_u32", self.sBudget, self.sBudget, 1)
        self.I("s_cbranch_scc1", "L_end")
        self.I("s_branch", loop)

    def flag_value(self, dst):
        self.I("s_lshl_b32", dst, self.sL, 4)
        self.I("s_or_b32", dst, dst, self.sBase)

    def publish(self, soff):
        a = self.a
        slow, done = self.lab("pubslow"), self.lab("pubdone")
        a.I("s_cmp_eq_u32", self.sMode, 0)
        a.I("s_cbranch_scc1", slow)
        a.I("s_mov_b64", EXEC, 1)
        a.I("buffer_store_dword", self.vT, OFF, self.sWS, soff)
        a.label(done)
        a.I("s_mov_b64", EXEC, -1)

        def tail():
            b = self.a
            b.label(slow)
            b.wait(vm=0)
            b.I("buffer_wbl2", mods="sc1")
            b.wait(vm=0)
            b.I("s_mov_b64", EXEC, 1)
            b.I("buffer_store_dword", self.vT, OFF, self.sWS, soff, mods="sc1")
            b.I("s_branch", done)
        self.tail.append(tail)

    def sched(self, mfmas, streams):
        a = self.a
        streams = [list(s) for s in streams]
        for i, m in enumerate(mfmas):
            self.mfma(*m)
            scalar_free = True
            if i + 1 < len(mfmas):
                n = mfmas[i + 1]
                if a.prewait(n[1], n[2]): scalar_free = False
            if scalar_free:
                for s in streams:
                    if s and s[0][0] <= i and s[0][1] == "s":
                        s.pop(0)[2]()
                        break
            slots = 2
            progress = True
            while slots > 0 and progress:
                progress = False
                for s in streams:
                    if not s or s[0][0] > i: continue
                    cost = 2 if s[0][1] == "w" else 1
                    if cost <= slots:
                        s.pop(0)[2]()
                        slots -= cost
                        progress = True
                        break
        return [it[2] for s in streams for it in s]

    def fw_piece(self, n):
        off = (n // 7) * MAT + (n % 7) * 1024
        self.I("s_add_u32", M0, self.sQWl, off, m0="fw")
        self.I("s_add_u32", self.sT[6], self.sFW, off)
        self.I("buffer_load_dwordx4", self.vL16, self.sWS, self.sT[6], mods="offen lds", untracked=True, m0="fw")

    def piece(self, n):
        n = (n + 7) % 21
        return f"offset:{(n // 7) * MAT + (n % 7) * 1024}"

    def unpark(self, pieces):
        for n in pieces: self.I("ds_write_b128", self.vQS, self.stash(n), mods=self.piece(n))

    def mid_exchange(self, back):
        four = self.lab("mx4")
        self.I("s_cmp_eq_u32", self.sL, 4)
        self.I("s_cbranch_scc1", four)
        self.it_b = None
        self.b_to_a(range(14, 14 + self.opt.get("mx", 4)))
        self.I("s_branch", back)
        self.a.label(four)
        self.a.forget_counters()
        self.unpark(range(14, 14 + self.opt.get("mu", 7)))
        self.I("s_branch", back)

    def qb_shadow(self):
        a, I = self.a, self.I
        second, done = self.lab("ab2"), self.lab("abdone")
        I("s_cmp_lg_u32", self.sIt, 0)
        I("s_cbranch_scc1", second)
        for n in self.fw_left: self.fw_piece(n)
        a.raw(f"    s_waitcnt vmcnt({1 + len(self.fw_left)})")
        a.pos += 1
        I("s_barrier")
        I("s_lshl_b32", self.sT[0], self.sW, 6)
        self.colsum_part(self.vQh, list(range(14)), 128)
        a.wait_lg_all()
        a.flush()
        I("s_branch", done)
        a.label(second)
        self.unpark(list(range(7)) + list(range(14 + self.opt.get("mu", 7), 21)))
        a.label(done)

    def b_to_a(self, pieces):
        a, I = self.a, self.I
        done = self.lab("badone")
        if self.it_b is not None:
            I("s_cmp_lg_u32", self.sIt, self.it_b)
            I("s_cbranch_scc1", done)
        for n in pieces:
            I("ds_read_b128", self.stash(n), self.vQS, mods=self.piece(n))
            I("ds_write_b128", self.vQS, self.stash(n + 1), mods=self.piece(n))
        a.label(done)

    def pw_dma(self, srd, steps):
        out = []
        for n, k in enumerate(steps):
            if n == 0:
                out.append(("s", lambda k=k: self.I("s_add_u32", M0, self.sPWl, k * 4096, m0="pw")))
                out.append(("s", lambda k=k: self.I("s_add_u32", self.sT[5], self.sPWo, k * 32 * 896)))
            else:
                out.append(("s", lambda: self.I("s_addk_i32", M0, 4096)))
                out.append(("s", lambda: self.I("s_addk_i32", self.sT[5], 32 * 896)))
            out.append(("v", lambda: self.I("buffer_load_dwordx4", self.vPWd, srd, self.sT[5], mods="offen lds", m0="pw")))
        return out

    def raw_block(self, ks):
        for half in range(2):
            self.I("s_add_u32", M0, self.sT[4], ks * 2048 + half * 1024)
            self.I("s_add_u32", self.sT[6], self.sQWo, (32 * ks + 16 * half) * 2688)
            self.I("buffer_load_dwordx4", self.vQWd, self.sWA, self.sT[6], mods="offen lds", tag=f"raw{ks}")

    def tr_pair(self, dst, base, off):
        return [lambda: self.I("ds_read_b64_tr_b16", dst[0:2], base, mods=f"offset:{off}"),
                lambda: self.I("ds_read_b64_tr_b16", dst[2:4], base, mods=f"offset:{off + 1024}")]

    def qa_read(self, dst, ft, ks):
        off = (ft >> 1) * MAT + ks * 2048 + (ft & 1) * 1024
        if ft < 4: return [lambda: self.I("ds_read_b128", dst, self.vL16, mods=f"offset:{off}")]
        return [lambda: self.I("ds_read_b128", dst, self.vAv, mods=f"offset:{off - 2 * MAT}")]

    def bg(self, n=1):
        if self.bg_next >= self.bg_max: return
        skip = self.lab("bg")
        self.I("s_cmp_eq_u32", self.sW, 3)
        self.I("s_cbranch_scc1", skip)
        for _ in range(n):
            if self.bg_next < self.bg_max:
                self.raw_block(self.bg_next)
                self.bg_next += 1
        self.a.label(skip)

    def prologue(self):
        a, I = self.a, self.I
        T = self.sT
        self.bg_next, self.bg_max = 0, self.opt.get("n1", 3)
        lane, j, g, t0, t1, t2 = V(0), V(115), V(116), V(117), V(118), V(119)
        I("s_load_dwordx4", S(4, 4), S(0, 2), 0)
        I("s_getpc_b64", S(22, 2))
        a.label("L_pc")
        I("v_min_u32", V(113), self.opt.get("pf0", 47), V(0))
        I("v_lshrrev_b32", V(114), 6, V(0))
        I("v_lshlrev_b32", V(113), 7, V(113))
        I("v_readfirstlane_b32", self.sW, V(114))
        I("global_load_dword", self.vDummy, V(113), S(22, 2), mods="offset:128", untracked=True)
        if self.opt.get("stamps"):
            I("s_memrealtime", S(100, 2))
            I("s_memtime", self.sStamp)
        I("s_lshr_b32", T[1], S(2), 8)
        I("s_cbranch_scc1", "L_end")
        I("v_and_b32", lane, 63, V(0))
        I("s_and_b32", T[0], S(2), 7)
        I("s_lshr_b32", T[1], S(2), 7)
        I("s_lshl1_add_u32", self.sGrp, T[0], T[1])
        I("s_lshr_b32", T[1], S(2), 3)
        I("s_and_b32", self.sH, T[1], 15)
        I("s_and_b32", self.sC, T[1], 7)
        I("s_lshr_b32", self.sRh, self.sH, 3)
        I("s_lshl1_add_u32", T[0], self.sGrp, self.sRh)
        I("s_and_b32", T[2], T[0], 15)
        I("s_lshl_b32", T[2], T[2], 2)
        I("s_mulk_i32", T[2], 16 * 1792)
        I("s_lshr_b32", T[5], self.sGrp, 3)
        I("s_mulk_i32", T[5], 7)
        I("s_add_u32", T[5], T[5], self.sC)
        I("s_lshl_b32", T[5], T[5], 7)
        I("s_add_u32", T[2], T[2], T[5])
        I("v_lshrrev_b32", t0, 3, lane)
        I("v_and_b32", t1, 7, lane)
        I("v_mad_u32_u24", t0, t0, 112 // 2, 0)
        I("v_lshl_add_u32", t0, t0, 1, t1)
        I("v_lshlrev_b32", self.vX0d, 4, t0)
        I("v_add_u32", t2, 8 * 1792 - 1024, self.vX0d)
        I("s_mov_b32", self.sX0[2], 1835008)
        I("s_mov_b32", self.sX0[3], "0x20000")
        I("s_mov_b32", M0, L_SP)
        I("s_mov_b32", T[5], T[2])
        no3, nox = self.lab("not3"), self.lab("nox0")
        I("s_cmp_lg_u32", self.sW, 3)
        a.wait(lg=0)
        I("s_mov_b64", self.sX0[0:2], S(4, 2))
        I("s_cbranch_scc1", no3)
        I("s_cmp_eq_u32", self.sC, 7)
        I("s_cbranch_scc1", no3)
        for t in range(4):
            I("buffer_load_dwordx4", self.vX0d, self.sX0, T[5], mods="offen lds")
            I("buffer_load_dwordx4", t2, self.sX0, T[5], mods="offen offset:1024 lds")
            if t < 3:
                I("s_addk_i32", M0, 2048)
                I("s_addk_i32", T[5], 16 * 1792)
        a.label(no3)
        if self.opt.get("fine") == 5: a.raw("    v_writelane_b32 v13, s100, 63")
        self.fine(5, 0)
        I("s_load_dwordx2", S(8, 2), S(0, 2), 16)
        I("s_load_dwordx8", S(12, 8), S(0, 2), 32)
        I("s_load_dwordx2", S(20, 2), S(0, 2), 72)
        self.srd(self.sWA, S(6, 2), 1204224)
        I("s_lshl2_add_u32", T[0], T[0], self.sW)
        I("s_mul_i32", T[5], self.sW, 16 * 1792)
        I("s_add_u32", self.sX0o, T[2], T[5])
        I("s_cmp_lg_u32", self.sW, 3)
        I("s_cbranch_scc1", nox)
        I("v_min_u32", t0, 36, lane)
        I("v_lshlrev_b32", V(121), 7, t0)
        I("s_mul_i32", T[2], S(2), 37 * 128)
        I("s_min_u32", T[2], T[2], 1204224 - 37 * 128)
        I("buffer_load_dword", self.vDummy, V(121), self.sWA, T[2], mods="offen", nodest=True)
        I("s_mul_i32", T[2], T[1], 1280)
        I("v_min_u32", V(112), 9, lane)
        I("v_lshl_add_u32", V(112), V(112), 7, T[2])
        I("v_min_u32", V(112), "L_end-L_pc", V(112))
        I("global_load_dword", self.vDummy, V(112), S(22, 2), untracked=True)
        a.label(nox)
        I("v_and_b32", j, 15, lane)
        I("v_lshrrev_b32", g, 4, lane)
        I("v_lshlrev_b32", self.vL16, 4, lane)
        I("v_lshrrev_b32", t0, 2, lane)
        I("v_mul_u32_u24", t1, 2688, t0)
        I("v_lshrrev_b32", t0, 3, lane)
        I("v_and_b32", t0, 2, t0)
        I("v_and_b32", t2, 3, lane)
        I("v_xor_b32", t0, t0, t2)
        I("v_lshl_add_u32", self.vQWd, t0, 4, t1)
        I("s_mul_i32", self.sQWo, self.sH, 56)
        I("s_mul_i32", T[1], self.sW, 896)
        I("s_add_u32", self.sQWo, self.sQWo, T[1])
        I("s_mul_i32", T[4], self.sW, MAT)
        self.srd(self.sWS, S(20, 2), WS_SIZE)
        I("buffer_load_dword", V(120), OFF, self.sWS, 0, untracked=True)
        if self.opt.get("s0l", 1):
            nt = self.lab("noxt")
            I("s_cmp_eq_u32", self.sC, 7)
            I("s_cselect_b32", T[1], 0, self.sW)
            I("s_cmp_lg_u32", T[1], 3)
            I("s_cbranch_scc1", nt)
            I("s_sub_u32", T[1], T[0], 3)
            I("s_mul_i32", T[2], T[1], 14336)
            I("s_lshl_b32", T[5], self.sC, 11)
            I("s_add_u32", T[2], T[2], T[5])
            I("s_add_u32", T[2], T[2], WS_X)
            I("v_mul_u32_u24", t0, 14336, g)
            I("v_lshl_add_u32", t0, j, 7, t0)
            I("buffer_load_dword", self.vDummy, t0, self.sWS, T[2], mods="offen", untracked=True)
            I("s_lshl_b32", T[1], T[1], 10)
            I("s_lshl_b32", T[5], self.sC, 7)
            I("s_add_u32", T[1], T[1], T[5])
            I("s_add_u32", T[1], T[1], WS_XS)
            I("v_lshlrev_b32", t0, 10, g)
            I("buffer_load_dword", self.vDummy, t0, self.sWS, T[1], mods="offen", untracked=True)
            I("s_sub_u32", T[1], T[0], 3)
            I("s_lshl_b32", T[1], T[1], 7)
            I("s_add_u32", T[1], T[1], WS_FX)
            I("v_lshlrev_b32", t0, 7, g)
            I("buffer_load_dword", self.vDummy, t0, self.sWS, T[1], mods="offen", untracked=True)
            a.label(nt)
        self.bg()
        for r, p, n in ((self.sWB, 12, 1204224), (self.sWP, 14, 25088), (self.sWOA, 8, 401408),
                        (self.sWOB, 16, 401408), (self.sOUT, 18, 1835008)):
            self.srd(r, S(p, 2), n)
        I("s_getreg_b32", self.sXcc, "hwreg(HW_REG_XCC_ID)")
        I("s_and_b32", self.sXcc, self.sXcc, 15)
        I("s_lshl_b32", T[1], self.sGrp, 3)
        I("s_lshl_b32", T[2], self.sW, 1)
        I("s_add_u32", T[1], T[1], T[2])
        I("s_mul_i32", self.sXq, T[1], 14336)
        I("s_add_u32", self.sXq, self.sXq, WS_X)
        I("s_lshl_b32", self.sXSq, T[1], 10)
        I("s_add_u32", self.sXSq, self.sXSq, WS_XS)
        I("s_lshl_b32", self.sOq, T[1], 14)
        I("s_add_u32", self.sOq, self.sOq, WS_O)
        I("s_lshl_b32", T[3], T[1], 7)
        I("s_add_u32", T[3], T[3], WS_FX)
        I("s_mul_i32", self.sXp, T[0], 14336)
        I("s_lshl_b32", T[2], self.sC, 11)
        I("s_add_u32", self.sXp, self.sXp, T[2])
        I("s_add_u32", self.sXp, self.sXp, WS_X)
        I("s_lshl_b32", self.sXSp, T[0], 10)
        I("s_lshl_b32", T[2], self.sC, 7)
        I("s_add_u32", self.sXSp, self.sXSp, T[2])
        I("s_add_u32", self.sXSp, self.sXSp, WS_XS)
        I("s_lshl_b32", self.sOp, T[0], 14)
        I("s_add_u32", self.sOp, self.sOp, WS_O)
        I("s_lshl_b32", self.sFXp, T[0], 7)
        I("s_lshl_b32", T[2], self.sC, 2)
        I("s_add_u32", self.sFXp, self.sFXp, T[2])
        I("s_add_u32", self.sFXp, self.sFXp, WS_FX)
        I("s_lshl_b32", T[1], self.sGrp, 2)
        I("s_add_u32", T[2], T[1], self.sW)
        I("s_lshl_b32", self.sFOq, T[2], 7)
        I("s_lshl_b32", T[2], self.sH, 2)
        I("s_add_u32", self.sFOq, self.sFOq, T[2])
        I("s_add_u32", self.sFOq, self.sFOq, WS_FO)
        I("s_lshr_b32", T[2], T[0], 1)
        I("s_lshl_b32", self.sFOp, T[2], 7)
        I("s_add_u32", self.sFOp, self.sFOp, WS_FO)
        I("s_lshl_b32", self.sHX, self.sGrp, 14)
        I("s_add_u32", self.sHX, self.sHX, WS_HX)
        I("s_lshl_b32", self.sFHp, self.sGrp, 7)
        I("s_add_u32", self.sFHp, self.sFHp, WS_FH)
        I("s_and_b32", T[1], self.sGrp, 7)
        I("s_cmp_eq_u32", T[1], 0)
        I("s_cselect_b32", self.sFirst, 1, 0)
        I("s_cmp_lg_u32", T[1], 7)
        I("s_cselect_b32", T[1], 1, 0)
        I("s_and_b32", T[2], T[0], 7)
        I("s_cmp_eq_u32", T[2], 7)
        I("s_cselect_b32", self.sHaloProd, T[1], 0)
        I("s_lshl_b32", T[1], self.sH, 2)
        I("s_add_u32", T[1], T[1], self.sW)
        I("s_lshl_b32", self.sKVld, T[1], 14)
        I("s_add_u32", self.sKVld, self.sKVld, WS_KV)
        I("s_bitcmp1_b32", self.sW, 0)
        I("s_cselect_b32", T[1], 13, 16)
        I("s_lshl_b32", T[1], T[1], 6)
        I("s_lshr_b32", T[2], self.sGrp, 1)
        I("s_mul_i32", T[1], T[1], T[2])
        I("s_add_u32", self.sKVst, self.sKVld, T[1])
        I("s_mov_b32", self.sMode, 1)
        I("s_mov_b32", self.sIt, 0)
        I("s_mov_b32", self.sPhase, 0)
        I("s_mov_b32", self.sL, 1)
        I("s_mov_b32", self.sPend, 0)
        I("s_mov_b32", self.sBudget, 400000)
        I("s_mov_b32", S(3), 0)
        self.bg()
        I("v_min_u32", t0, 12, lane)
        I("v_lshlrev_b32", V(122), 7, t0)
        I("v_lshlrev_b32", self.vStatSt, 3, j)
        I("v_and_b32", t0, 7, j)
        I("v_lshlrev_b32", t0, 4, t0)
        I("v_lshl_add_u32", self.vHp, g, 7, t0)
        I("v_lshlrev_b32", t0, 7, j)
        I("v_lshl_add_u32", t0, g, 3, t0)
        I("v_add_u32", V(123), L_SP, t0)
        I("s_mul_i32", self.sQWl, self.sW, 7168)
        I("s_mul_i32", self.sFW, self.sH, 86016)
        I("s_add_u32", self.sFW, self.sFW, self.sQWl)
        I("s_add_u32", self.sFW, self.sFW, WS_FW)
        I("s_lshl_b32", self.sPWl, self.sW, 10)
        I("s_add_u32", self.sPWl, self.sPWl, L_PW)
        I("s_min_u32", T[1], self.sC, 6)
        I("s_lshl_b32", self.sPWo, T[1], 7)
        if self.opt.get("stamps"):
            I("s_mov_b32", T[7], 1)
            I("v_mov_b32", self.vStamp, 0)
            I("v_writelane_b32", self.vStamp, self.sStamp[0], 0)
            if self.opt.get("fine") != 5: I("v_writelane_b32", self.vStamp, S(100), 62)
        I("v_mov_b32", V(127), V(0))
        I("s_cmp_eq_u32", self.sW, 3)
        I("s_cbranch_scc1", "L_s0")
        a.label("L_setup")
        a.forget_counters()
        self.bg()
        self.fine(5, 1)

        r, cc = V(113), V(124)
        I("s_lshl_b32", T[1], self.sW, 11)
        I("v_add_u32", V(114), T[1], V(123))
        I("v_lshrrev_b32", r, 2, j)
        I("v_and_b32", cc, 3, j)
        I("v_lshl_add_u32", t0, g, 2, r)
        I("v_lshlrev_b32", t1, 3, cc)
        I("v_lshl_add_u32", t2, t0, 6, t1)
        I("v_and_b32", V(125), 1, g)
        I("v_lshl_add_u32", self.vQ0, V(125), 5, t2)
        I("v_xor_b32", self.vQ1, 32, self.vQ0)
        I("s_and_b32", T[1], self.sW, 1)
        I("s_lshr_b32", T[2], self.sW, 1)
        I("s_add_u32", T[2], T[2], 1)
        I("s_mul_i32", T[2], T[2], MAT)
        I("s_lshl_b32", T[5], T[1], 10)
        I("s_add_u32", T[2], T[2], T[5])
        I("v_add_u32", self.vQh, T[2], self.vL16)
        I("v_lshl_add_u32", t2, t0, 7, t1)
        I("v_add_u32", t2, L_PW, t2)
        I("v_lshrrev_b32", V(125), 1, t0)
        I("v_and_b32", V(125), 3, V(125))
        for n in range(4):
            I("v_xor_b32", V(126), n, V(125))
            I("v_lshl_add_u32", self.vP[n], V(126), 5, t2)
        self.bg()
        I("v_lshrrev_b32", V(125), 1, t0)
        I("v_xor_b32", V(125), V(125), cc)
        I("v_and_b32", V(125), 3, V(125))
        I("v_lshlrev_b32", V(125), 4, V(125))
        I("v_lshl_add_u32", V(126), t0, 6, V(125))
        I("s_lshl_b32", T[2], self.sW, 11)
        I("s_add_u32", T[5], T[2], L_EXV)
        I("v_add_u32", self.vEXRa, T[5], V(126))
        I("s_lshr_b32", T[5], self.sW, 1)
        I("s_lshl_b32", T[5], T[5], 13)
        I("s_add_u32", T[5], T[5], L_PH)
        I("v_add_u32", self.vKA, T[5], V(126))
        I("s_lshl_b32", T[5], T[1], 3)
        I("s_add_u32", T[5], T[5], L_PH + 16384)
        I("v_add_u32", self.vKB, T[5], V(126))
        I("v_lshrrev_b32", V(125), 1, j)
        I("v_xor_b32", V(125), V(125), g)
        I("v_and_b32", V(125), 3, V(125))
        I("v_lshlrev_b32", V(125), 4, V(125))
        I("v_lshl_add_u32", V(126), j, 6, V(125))
        I("v_add_u32", V(126), L_EXV, V(126))
        I("v_add_u32", self.vEXW, T[2], V(126))
        I("s_lshl_b32", T[5], self.sW, 10)
        I("v_add_u32", V(125), L_EXK, self.vL16)
        I("v_add_u32", self.vKrd, T[5], V(125))
        I("v_add_u32", self.vQS, self.sQWl, self.vL16)
        I("v_add_u32", self.vAv, 2 * MAT, self.vL16)
        I("s_cmp_lt_u32", self.sW, 2)
        I("s_cselect_b64", VCC, -1, 0)
        I("v_cndmask_b32", V(126), V(126), V(125), VCC)
        I("s_lshl_b32", T[5], T[1], 3)
        I("v_add_u32", self.vHW, T[5], V(126))
        self.bg()
        I("v_lshrrev_b32", t0, 3, lane)
        I("v_and_b32", t2, 4, t0)
        I("v_add_u32", t2, t2, t0)
        I("s_lshr_b32", T[5], self.sW, 1)
        I("s_lshl2_add_u32", T[5], T[1], T[5])
        I("s_lshl_b32", T[5], T[5], 2)
        I("v_add_u32", t2, T[5], t2)
        I("v_mul_u32_u24", t1, 896, t2)
        I("v_and_b32", t0, 6, t0)
        I("v_and_b32", t2, 7, lane)
        I("v_xor_b32", t0, t0, t2)
        I("v_lshl_add_u32", self.vPWd, t0, 4, t1)
        I("s_mul_i32", T[5], self.sH, 7)
        for reg, add in ((self.vO0, 0), (self.vO1, 4)):
            I("v_add_u32", t0, T[5], g)
            if add: I("v_add_u32", t0, add, t0)
            I("v_and_b32", t2, 1, t0)
            I("v_lshrrev_b32", t0, 1, t0)
            I("v_lshlrev_b32", t0, 8, t0)
            I("v_lshl_add_u32", t0, t2, 3, t0)
            I("v_lshl_add_u32", reg, j, 4, t0)
        I("v_mov_b32", t1, OOB)
        I("v_cmp_gt_u32", VCC, 48, lane)
        I("v_cndmask_b32", self.vO1, t1, self.vO1, VCC)
        I("v_cmp_gt_u32", VCC, 48, lane)
        I("v_cndmask_b32", self.vM3, 0, -1, VCC)
        I("v_cndmask_b32", self.vE0[0], 1.0, 0, VCC)
        I("v_mov_b32", self.vE0[1], 0)
        I("s_cmp_eq_u32", T[1], 1)
        I("s_cselect_b64", VCC, -1, 0)
        I("v_cndmask_b32", self.vMH, -1, self.vM3, VCC)
        I("v_lshl_add_u32", self.vStat, g, 7, self.vStatSt)
        I("s_cmp_eq_u32", self.sFirst, 1)
        I("s_cselect_b64", VCC, -1, 0)
        I("v_cndmask_b32", self.vHalo, self.vL16, t1, VCC)
        I("v_cndmask_b32", self.vHaloS, self.vStat, t1, VCC)
        I("s_lshr_b32", T[2], self.sGrp, 1)
        I("s_add_u32", T[2], T[2], 1)
        I("v_add_u32", t0, T[2], j)
        I("v_and_b32", t0, 7, t0)
        I("s_bitcmp1_b32", self.sW, 0)
        I("s_cselect_b32", T[5], 13, 16)
        I("s_lshl_b32", T[5], T[5], 6)
        I("v_mul_u32_u24", self.vKVp, T[5], t0)
        I("s_lshr_b32", T[5], T[5], 2)
        I("v_mul_u32_u24", t0, T[5], g)
        I("v_lshl_add_u32", t0, j, 4, t0)
        I("s_lshr_b32", T[5], T[5], 4)
        I("v_cmp_gt_u32", VCC, T[5], j)
        I("v_cndmask_b32", self.vKVo, t1, t0, VCC)
        I("v_cndmask_b32", self.vKVm, 0, -1, VCC)
        self.bg()
        I("v_lshlrev_b32", self.vZ, 8, g)
        I("v_add_u32", self.vZ, L_KVX + 1024 + 12 * 16, self.vZ)
        I("v_lshlrev_b32", self.vPollP, 2, j)
        I("v_and_b32", t0, 7, lane)
        I("v_min_u32", t0, 6, t0)
        I("v_lshlrev_b32", V(127), 2, t0)
        I("v_min_u32", t0, 13, j)
        I("v_lshlrev_b32", t0, 2, t0)
        I("s_lshl_b32", T[5], self.sH, 7)
        I("s_add_u32", T[5], T[5], WS_FWF)
        I("v_add_u32", t0, T[5], t0)
        I("v_add_u32", t2, self.sFHp, V(127))
        I("s_cmp_eq_u32", self.sFirst, 1)
        I("s_cselect_b32", T[5], 0, 16)
        I("v_cmp_gt_u32", VCC, T[5], lane)
        I("v_cndmask_b32", self.vPollH, t0, t2, VCC)
        I("v_cndmask_b32", self.vExpHM, 0, 16, VCC)
        I("v_cndmask_b32", self.vExpHC, 16, 0, VCC)
        I("v_lshrrev_b32", t2, 3, j)
        I("v_lshl_add_u32", t2, t2, 7, V(127))
        I("v_add_u32", t2, T[3], t2)
        I("s_lshl_b32", T[5], self.sGrp, 7)
        I("s_add_u32", T[5], T[5], WS_HELLO)
        I("v_lshrrev_b32", t0, 1, g)
        I("v_lshlrev_b32", t0, 7, t0)
        I("v_xor_b32", t0, T[5], t0)
        I("v_add_u32", t0, t0, self.vPollP)
        I("v_and_b32", V(125), 1, g)
        I("v_cmp_eq_u32", VCC, 0, V(125))
        I("v_cndmask_b32", self.vPollQ, t0, t2, VCC)
        I("v_cndmask_b32", self.vPollM, -16, -1, VCC)
        I("v_cndmask_b32", self.vExpM, 0, 16, VCC)
        I("v_mov_b32", t0, self.sXcc)
        I("v_cndmask_b32", self.vExpC, t0, 0, VCC)
        self.bg()
        I("v_mov_b32", V(125), f32(-1e30))
        for rr in range(4):
            I("v_lshl_add_u32", t0, g, 2, rr)
            I("v_sub_u32", t2, j, t0)
            I("v_cmp_gt_u32", VCC, 8, t2)
            I("v_cndmask_b32", self.bCur[rr], V(125), 0, VCC)
            I("v_add_u32", t2, 16, t2)
            I("v_cmp_gt_u32", VCC, 8, t2)
            I("v_cndmask_b32", self.bPrev[rr], V(125), 0, VCC)
        I("s_cmp_eq_u32", self.sW, 0)
        I("s_cselect_b32", T[2], self.sFirst, 0)
        I("s_cmp_eq_u32", T[2], 1)
        I("s_cselect_b64", VCC, -1, 0)
        for rr in range(4):
            I("v_cndmask_b32", self.bPrev0[rr], self.bPrev[rr], V(125), VCC)
        self.bg()
        I("v_mov_b32", t0, "0x3f803f80")
        for k in range(4): I("v_accvgpr_write_b32", self.aOnes[k], t0)
        for k in (0, 1, 4, 5): I("v_accvgpr_write_b32", self.aSel[k], 0)
        I("v_and_b32", V(125), 1, j)
        I("v_lshlrev_b32", V(125), 4, V(125))
        I("v_mov_b32", t0, "0x3f80")
        I("v_lshlrev_b32", t0, V(125), t0)
        I("v_cmp_eq_u32", VCC, r, g)
        I("v_cndmask_b32", t0, 0, t0, VCC)
        I("v_cmp_gt_u32", VCC, 2, cc)
        I("v_cndmask_b32", t2, 0, t0, VCC)
        I("v_cndmask_b32", t0, t0, 0, VCC)
        I("v_accvgpr_write_b32", self.aSel[2], t2)
        I("v_accvgpr_write_b32", self.aSel[3], t0)
        I("v_mov_b32", V(0), V(114))
        got = self.lab("nonce")
        I("s_cmp_eq_u32", self.sW, 3)
        I("s_cbranch_scc1", got)
        a.raw(f"    s_waitcnt vmcnt({2 * self.bg_next})")
        I("v_readfirstlane_b32", self.sNonce, V(120))
        I("s_add_u32", T[1], self.sNonce, "0x10100")
        I("s_and_b32", self.sBase, T[1], "0xffffff00")
        I("s_and_b32", self.sTag, T[1], "0x3fff0000")
        a.label(got)
        I("v_or_b32", self.vExpC, self.sBase, self.vExpC)
        I("v_or_b32", self.vExpHC, self.sBase, self.vExpHC)
        self.stamp()
        I("s_cmp_eq_u32", self.sW, 3)
        I("s_cbranch_scc1", "L_walk")
        I("s_barrier")
        self.stamp()

        N1 = self.bg_next
        ad0, ad1 = V(188), V(189)
        d0, d1 = V(192, 4), V(196, 4)
        I("v_add_u32", ad0, T[4], self.vQ0)
        I("v_add_u32", ad1, T[4], self.vQ1)
        wad = V(191)
        I("v_add_u32", wad, T[4], self.vL16)
        ZP = self.opt.get("zp", 1)
        if ZP:
            zad, zz = V(190), V(200, 2)
            I("v_bfe_u32", zad, self.vL16, 4, 5)
            I("v_bfe_u32", zz[0], self.vL16, 6, 1)
            I("v_lshlrev_b32", zad, 6, zad)
            I("v_lshlrev_b32", zz[0], 5, zz[0])
            I("v_xor_b32", zz[0], 56, zz[0])
            I("v_add3_u32", zad, zad, zz[0], T[4])
            I("v_mov_b32", zz[0], 0)
            I("v_mov_b32", zz[1], 0)
        a.vm = [(f"raw{ks}", set()) for ks in range(N1) for _ in range(2)]
        AH = self.opt.get("ah", 6)
        EL0 = self.opt.get("el0", 12)
        EL1 = self.opt.get("el1", max(EL0 + 1, 14 - AH))
        nxt = N1
        N2 = self.opt.get("n2", 3)
        if N2:
            for _ in range(N2):
                self.raw_block(nxt)
                nxt += 1
            I("s_barrier")
        for ks in range(14):
            while nxt < 14 and nxt <= ks + AH:
                self.raw_block(nxt)
                if nxt == EL0: self.early_look(0)
                nxt += 1
            if ks == self.opt.get("vks", 3) and self.opt.get("visit", 0):
                a.wait_lg_all()
                a.flush()
                I("s_mov_b64", EXEC, 0)
                I("s_cmp_eq_u32", self.sW, 1)
                I("s_cbranch_scc1", "L_visit_1")
                I("s_cmp_eq_u32", self.sW, 2)
                I("s_cbranch_scc1", "L_visit_2")
                I("s_branch", "L_visit_0")
                a.label("L_visit_ret")
                I("s_mov_b64", EXEC, -1)
            if ks == EL1 and EL0 < 14:
                if ks == 13: a.wait_vm_tag("raw13")
                self.early_look(1)
            a.wait_vm_tag(f"raw{ks}")
            if ZP: I("ds_write_b64", zad, zz, mods=f"offset:{ks * 2048}")
            w0, w1 = self.wf(2 * (ks & 1)), self.wf(2 * (ks & 1) + 1)
            for f in self.tr_pair(w0, ad0, ks * 2048) + self.tr_pair(w1, ad1, ks * 2048): f()
            if ks:
                p0, p1 = self.wf(2 * ((ks - 1) & 1)), self.wf(2 * ((ks - 1) & 1) + 1)
                self.mfma(d0, p0, self.aOnes, 0 if ks == 1 else d0)
                self.mfma(d1, p1, self.aOnes, 0 if ks == 1 else d1)
                I("ds_write_b128", wad, p0, mods=f"offset:{(ks - 1) * 2048}")
                I("ds_write_b128", wad, p1, mods=f"offset:{(ks - 1) * 2048 + 1024}")
        self.mfma(d0, self.wf(2), self.aOnes, d0)
        self.mfma(d1, self.wf(3), self.aOnes, d1)
        I("ds_write_b128", wad, self.wf(2), mods=f"offset:{13 * 2048}")
        I("ds_write_b128", wad, self.wf(3), mods=f"offset:{13 * 2048 + 1024}")
        I("v_lshrrev_b32", ad0, 8, self.vL16)
        I("v_lshlrev_b32", ad0, 4, ad0)
        I("s_lshl_b32", T[0], self.sW, 7)
        I("s_add_u32", T[0], T[0], L_CS)
        I("v_add_u32", ad0, T[0], ad0)
        I("s_mov_b32", self.sT2[0], "0x00010001")
        I("s_mov_b32", self.sT2[1], "0x00010001")
        a.flush()
        I("s_mov_b64", EXEC, self.sT2)
        I("ds_write_b128", ad0, d0)
        I("ds_write_b128", ad0, d1, mods="offset:64")
        I("s_mov_b64", EXEC, -1)
        a.wait(lg=0)
        self.fine(5, 4)
        I("s_branch", "L_qa1")
        self.stage0()

    def early_look(self, phase):
        a, I = self.a, self.I
        if phase == 0:
            I("v_mad_u32_u24", V(112), self.vExpM, self.sL, self.vExpC)
            I("buffer_load_dword", V(114), self.vPollQ, self.sWS, 0, mods="offen sc1")
            return
        skip = self.lab("notyet")
        I("v_cmp_ne_u32", VCC, V(112), V(114))
        I("s_cbranch_vccnz", skip)
        vm = list(a.vm)
        for ks in range(3):
            for _, f in self.xload(ks): f()
        a.vm = vm
        I("s_mov_b32", S(3), 1)
        a.label(skip)

    def stage0(self):
        a, I = self.a, self.I
        T = self.sT
        lane = V(127)
        idle, nohalo, pub, nofw = (self.lab(x) for x in ("idle", "nohalo", "pub", "nofw"))
        a.label("L_s0")
        a.forget_counters()
        a.pos += 100
        def hello():
            I("v_readfirstlane_b32", self.sNonce, V(120))
            I("s_lshl_b32", T[1], self.sGrp, 7)
            I("s_lshl2_add_u32", T[2], self.sH, T[1])
            I("s_add_u32", T[2], T[2], WS_HELLO)
            I("s_add_u32", T[1], self.sNonce, "0x10100")
            I("s_and_b32", self.sBase, T[1], "0xffffff00")
            I("s_and_b32", self.sTag, T[1], "0x3fff0000")
            I("s_or_b32", T[1], self.sBase, 16)
            I("v_mov_b32", self.vT, T[1])
            I("s_or_b32", T[1], self.sBase, self.sXcc)
            I("v_mov_b32", V(112), T[1])
            I("s_mov_b64", EXEC, 1)
            I("buffer_store_dword", V(112), OFF, self.sWS, T[2], mods="sc1")
            I("s_mov_b64", EXEC, -1)
        I("s_cmp_eq_u32", self.sC, 7)
        I("s_cbranch_scc1", idle)
        LOC = self.opt.get("s0l", 1)
        FL = "" if LOC else " sc1"
        a.raw("    s_waitcnt vmcnt(6)" if LOC else "    s_waitcnt vmcnt(3)")
        self.fine(5, 2)
        xo = [V(128 + 8 * t, 8) for t in range(4)]
        pr = [V(160 + 2 * t, 2) for t in range(4)]
        for t in range(4):
            for n in range(4): I("ds_read_b64", xo[t][2 * n:2 * n + 2], V(123), mods=f"offset:{2048 * t + 32 * n}")
        one = V(125)
        I("v_mov_b32", one, "0x3f803f80")
        I("s_sub_u32", T[5], self.sXp, 3 * 14336)
        I("s_sub_u32", T[6], self.sXSp, 3 * 1024)
        def xstores():
            for t in range(4):
                I("buffer_store_dwordx4", xo[t][0:4], self.vL16, self.sWS, T[5], mods="offen" + FL)
                I("buffer_store_dwordx4", xo[t][4:8], self.vL16, self.sWS, T[5], mods="offen offset:1024" + FL)
                if t < 3: I("s_add_u32", T[5], T[5], 14336)
        if not LOC:
            xstores()
            a.raw("    s_waitcnt vmcnt(8)")
            hello()
        for k in range(8):
            for t in range(4):
                I("v_dot2_f32_bf16", pr[t][0], xo[t][k], one, 0 if k == 0 else pr[t][0])
                I("v_dot2_f32_bf16", pr[t][1], xo[t][k], xo[t][k], 0 if k == 0 else pr[t][1])
        self.allreduce_pairs([("v_add_f32", pr[t][0], pr[t][1]) for t in range(4)])
        if self.opt.get("stag", 0):
            for t in range(4): I("v_and_or_b32", pr[t][1], pr[t][1], -4, 1)
        if LOC:
            a.wait(vm=0)
            xstores()
        I("s_mov_b64", EXEC, "0xffff")
        for t in range(4):
            I("buffer_store_dwordx2", pr[t], self.vStatSt, self.sWS, T[6], mods=f"offen offset:{1024 * t}" + FL)
        I("s_mov_b64", EXEC, -1)
        if LOC:
            if self.opt.get("rel", 1) == 1: I("s_barrier")
            I("v_readfirstlane_b32", self.sNonce, V(120))
            I("v_lshlrev_b32", V(126), 7, lane)
            I("s_sub_u32", T[2], self.sFXp, 3 * 128)
            I("s_add_u32", T[1], self.sNonce, "0x10100")
            I("s_and_b32", T[1], T[1], "0xffffff00")
            I("s_or_b32", T[1], T[1], 16)
            I("v_mov_b32", self.vT, T[1])
            I("s_mov_b64", EXEC, 15)
            a.wait(vm=0)
            I("buffer_store_dword", self.vT, V(126), self.sWS, T[2], mods="offen")
            I("s_mov_b64", EXEC, -1)
            hello()
        I("s_cmp_eq_u32", self.sHaloProd, 0)
        I("s_cbranch_scc1", nohalo)
        I("s_lshl_b32", T[1], self.sC, 10)
        I("s_add_u32", T[1], T[1], self.sHX)
        I("s_add_u32", T[1], T[1], 16384)
        I("s_mov_b32", self.sT2[0], "0xff00ff00")
        I("s_mov_b32", self.sT2[1], "0xff00ff00")
        I("s_mov_b64", EXEC, self.sT2)
        I("buffer_store_dwordx4", xo[3][0:4], self.vHp, self.sWS, T[1], mods="offen sc1")
        I("buffer_store_dwordx4", xo[3][4:8], self.vHp, self.sWS, T[1], mods="offen offset:512 sc1")
        I("s_lshl_b32", T[1], self.sC, 7)
        I("s_add_u32", T[1], T[1], self.sHX)
        I("s_add_u32", T[1], T[1], 16384 + 14336)
        I("s_mov_b64", EXEC, "0xffff")
        I("buffer_store_dwordx2", pr[3], self.vStatSt, self.sWS, T[1], mods="offen sc1")
        I("s_mov_b64", EXEC, -1)
        a.label(nohalo)
        a.flush()
        if not LOC:
            I("v_and_b32", V(126), 3, lane)
            I("v_lshlrev_b32", V(126), 7, V(126))
            I("v_lshrrev_b32", V(113), 2, lane)
            I("v_lshl_add_u32", V(126), V(113), 15, V(126))
            I("s_sub_u32", T[2], self.sFXp, 3 * 128)
            I("v_add_u32", V(126), T[2], V(126))
            I("s_lshl_b32", T[1], self.sC, 2)
            I("s_add_u32", T[1], T[1], self.sFHp)
            I("s_add_u32", T[1], T[1], 128)
            I("v_writelane_b32", V(126), T[1], 8)
            I("s_lshl_b32", T[1], self.sHaloProd, 8)
            I("s_or_b32", self.sT2[0], T[1], "0xff")
            I("s_mov_b32", self.sT2[1], 0)
            if self.opt.get("rel", 1) == 1: I("s_barrier")
            a.wait(vm=0)
            I("s_mov_b64", EXEC, self.sT2)
            I("buffer_store_dword", self.vT, V(126), self.sWS, 0, mods="offen sc1")
            I("s_mov_b64", EXEC, -1)
            if self.opt.get("rel", 1) == 2: I("s_barrier")
        else:
            I("s_mov_b32", self.sPend, self.sHaloProd)
        self.fine(5, 3)
        I("s_branch", pub)
        a.label(idle)
        a.raw("    s_waitcnt vmcnt(0)")
        hello()
        I("s_barrier")
        a.label(pub)
        if self.opt.get("n2", 3) and self.opt.get("b2", 0) == 0: I("s_barrier")
        a.forget_counters()
        I("s_cmp_ge_u32", self.sGrp, 14)
        I("s_cbranch_scc1", nofw)
        I("s_mul_i32", T[2], self.sH, 56)
        I("s_mul_i32", T[1], self.sGrp, 32 * 2688)
        I("s_add_u32", T[2], T[2], T[1])
        for mat in range(3):
            for half in range(2):
                I("s_mov_b32", M0, L_PW + mat * 2048 + half * 1024)
                I("s_add_u32", T[1], T[2], mat * 896 + half * 16 * 2688)
                I("buffer_load_dwordx4", self.vQWd, self.sWB, T[1], mods="offen lds")
        a.label(nofw)
        I("s_mul_i32", T[1], self.sH, 1568)
        I("s_mov_b32", M0, L_WPHI)
        I("s_mul_i32", T[2], S(2), 13 * 128)
        I("s_min_u32", T[2], T[2], 401408 - 13 * 128)
        I("v_min_u32", V(126), 55, lane)
        I("v_lshlrev_b32", V(126), 7, V(126))
        I("s_lshr_b32", T[5], self.sH, 1)
        I("s_lshl_b32", T[5], T[5], 14)
        I("s_and_b32", T[6], self.sH, 1)
        I("s_mul_i32", T[6], T[6], 7168)
        I("s_add_u32", T[5], T[5], T[6])
        I("s_add_u32", T[5], T[5], self.sOq)
        I("s_sub_u32", T[5], T[5], 6 * 16384)
        I("buffer_load_dwordx4", self.vL16, self.sWP, T[1], mods="offen lds")
        I("buffer_load_dwordx4", self.vL16, self.sWP, T[1], mods="offen offset:1024 lds")
        TM = self.opt.get("tm", 15)
        if TM & 1: I("buffer_load_dword", self.vDummy, V(122), self.sWOA, T[2], mods="offen", nodest=True)
        if TM & 2: I("buffer_load_dword", self.vDummy, V(122), self.sWOB, T[2], mods="offen", nodest=True)
        if TM & 4: I("buffer_load_dword", self.vDummy, V(126), self.sWS, T[5], mods="offen", nodest=True)
        if TM & 8:
            I("v_lshlrev_b32", V(112), 7, V(116))
            I("s_lshl_b32", T[5], self.sGrp, 9)
            I("s_add_u32", T[5], T[5], WS_FO)
            I("buffer_load_dword", self.vDummy, V(112), self.sWS, T[5], mods="offen", nodest=True)
        if self.opt.get("n2", 3) and self.opt.get("b2", 0) == 1: I("s_barrier")
        I("s_branch", "L_setup")
        a.label("L_walk")
        a.forget_counters()
        self.stamp()
        if self.opt.get("s0l", 1):
            nohw = self.lab("nohw")
            I("s_cmp_eq_u32", self.sPend, 0)
            I("s_cbranch_scc1", nohw)
            a.raw(f"    s_waitcnt vmcnt({2 + bin(self.opt.get('tm', 15)).count('1')})")
            I("s_lshl2_add_u32", T[1], self.sC, self.sFHp)
            I("s_mov_b64", EXEC, 1)
            I("buffer_store_dword", self.vT, OFF, self.sWS, T[1], mods="offset:128 sc1", untracked=True)
            I("s_mov_b64", EXEC, -1)
            I("s_mov_b32", self.sPend, 0)
            a.label(nohw)
        nofw2 = self.lab("nofw")
        I("s_cmp_ge_u32", self.sGrp, 14)
        I("s_cbranch_scc1", nofw2)
        zad, zz = V(112), V(116, 2)
        I("v_bfe_u32", zad, self.vL16, 4, 5)
        I("v_bfe_u32", zz[0], self.vL16, 6, 1)
        I("v_lshlrev_b32", zad, 6, zad)
        I("v_lshlrev_b32", zz[0], 5, zz[0])
        I("v_xor_b32", zz[0], 56, zz[0])
        I("v_add_u32", zad, zad, zz[0])
        I("v_add_u32", zad, L_PW, zad)
        I("v_mov_b32", zz[0], 0)
        I("v_mov_b32", zz[1], 0)
        I("v_add_u32", V(113), L_PW, self.vQ0)
        I("v_add_u32", V(115), L_PW, self.vQ1)
        a.raw(f"    s_waitcnt vmcnt({2 + bin(TM).count('1')})")
        for mat in range(3):
            I("ds_write_b64", zad, zz, mods=f"offset:{mat * 2048}")
            for f in range(2):
                for g in self.tr_pair(V(168 + 8 * mat + 4 * f, 4), V(113 + 2 * f), mat * 2048): g()
        I("s_lshl_b32", T[1], self.sGrp, 11)
        I("s_add_u32", T[1], T[1], self.sFW)
        I("s_sub_u32", T[1], T[1], 3 * 7168)
        for mat in range(3):
            I("s_add_u32", T[2], T[1], mat * MAT)
            for half in range(2):
                I("buffer_store_dwordx4", V(168 + 8 * mat + 4 * half, 4), self.vL16, self.sWS, T[2], mods=f"offen offset:{half * 1024} sc1")
        I("s_lshl_b32", T[1], self.sH, 7)
        I("s_lshl_b32", T[2], self.sGrp, 2)
        I("s_add_u32", T[1], T[1], T[2])
        I("s_add_u32", T[5], T[1], WS_FWF)
        if self.opt.get("el0", 12) < 14: self.early_look(0)
        a.wait(vm=0)
        I("s_mov_b64", EXEC, 1)
        I("buffer_store_dword", self.vT, OFF, self.sWS, T[5], mods="sc1")
        I("s_mov_b64", EXEC, -1)
        if self.opt.get("el0", 12) < 14: self.early_look(1)
        a.label(nofw2)
        self.fine(5, 4)
        I("s_branch", "L_qa1")

    def p_stage(self):
        a, I = self.a, self.I
        T = self.sT
        NPRE = 12
        a.label("L_p")
        a.raw("@VISIT")
        a.forget_counters()
        a.wait(lg=0)
        I("s_barrier")
        I("s_cmp_eq_u32", self.sC, 7)
        I("s_cbranch_scc1", "L_pidle")
        slots = [A(64 + 4 * k, 4) for k in range(12)] + [A(168 + 4 * k, 4) for k in range(8)] + [V(128 + 4 * k, 4) for k in range(28)]
        def pwf(hh, n): return slots[(hh % NPRE) * 4 + n]
        def pw_read(hh, n):
            return [lambda: I("ds_read_b64_tr_b16", pwf(hh, n)[0:2], self.vP[n], mods=f"offset:{hh * 4096}"),
                    lambda: I("ds_read_b64_tr_b16", pwf(hh, n)[2:4], self.vP[n], mods=f"offset:{hh * 4096 + 2048}")]
        self.flag_value(T[0])
        early, mid = self.opt.get("early", 8), self.opt.get("pmid", 12)
        late = [f for _, f in self.pw_dma(self.sPWc, range(8, 14))]
        PP = self.opt.get("pp", 3)
        for hh in range(early):
            for n in range(4):
                for f in pw_read(hh, n): f()
                for _ in range(3 if n == 1 or (n == 3 and early < 6) else 0):
                    if late: late.pop(0)()
            if hh == PP: I("buffer_load_dword", V(112), self.vPollP, self.sWS, self.sFOp, mods="offen sc1")
        assert not late
        loop, ok = self.lab("ppoll"), self.lab("ppass")
        if self.opt.get("dual", 1):
            a.wait(vm=0)
            I("v_cmp_ne_u32", VCC, T[0], V(112))
            I("s_cbranch_vccnz", loop)
            def spin():
                b = self.a
                b.label(loop)
                b.I("buffer_load_dword", V(112), self.vPollP, self.sWS, self.sFOp, mods="offen sc1")
                b.nop(self.opt.get("dnop", 8))
                b.label(loop + "l")
                for x, y in ((V(113), V(112)), (V(112), V(113))):
                    b.I("buffer_load_dword", x, self.vPollP, self.sWS, self.sFOp, mods="offen sc1", untracked=True)
                    b.raw("    s_waitcnt vmcnt(1)")
                    b.forget_counters()
                    b.I("v_cmp_ne_u32", VCC, T[0], y)
                    b.I("s_cbranch_vccz", ok)
                self.budget_branch(loop + "l")
            self.tail.append(spin)
        else:
            a.label(loop)
            a.wait(vm=0)
            I("v_cmp_ne_u32", VCC, T[0], V(112))
            I("s_cbranch_vccz", ok)
            I("buffer_load_dword", V(112), self.vPollP, self.sWS, self.sFOp, mods="offen sc1")
            self.budget_branch(loop)
        a.label(ok)
        a.vm = []
        self.stamp()
        def of(hh): return A(4 * hh, 4)
        def oload(hh):
            out = []
            if hh % 4 == 0 and hh:
                out.append(("s", lambda: I("s_add_u32", T[1], self.sOp, hh * 1024)))
            so = self.sOp if hh < 4 else T[1]
            out.append(("v", lambda: I("buffer_load_dwordx4", of(hh), self.vL16, self.sWS, so, mods=f"offen offset:{(hh % 4) * 1024} sc1")))
            return out
        NO = self.opt.get("no", 5)
        for hh in range(NO):
            for _, f in oload(hh): f()
        I("s_barrier")
        for hh in range(early, mid):
            for n in range(4):
                for f in pw_read(hh, n): f()
        mf, so, sw = [], [], []
        for hh in range(14):
            for n in range(4):
                mf.append((self.vR[4 * n:4 * n + 4], pwf(hh, n), of(hh), self.vR[4 * n:4 * n + 4]))
                if hh >= mid:
                    k = (hh - mid) * 4 + n
                    sw += [(max((k * self.opt.get("prate", 4)) // 3, 4 * (hh - NPRE) + n), "v", f) for f in pw_read(hh, n)]
            if hh + NO < 14: so += [(4 * hh, k, f) for k, f in oload(hh + NO)]
        j, t = V(136), V(137)
        fa = [("v", lambda: I("v_lshrrev_b32", j, 2, self.vPollP)), ("v", lambda: I("v_lshrrev_b32", t, 9, self.vL16)),
              ("v", lambda: I("v_xor_b32", t, t, j)), ("v", lambda: I("v_and_b32", t, 7, t)), ("v", lambda: I("v_lshlrev_b32", t, 4, t)),
              ("v", lambda: I("v_lshl_add_u32", t, j, 7, t)), ("v", lambda: I("v_bfe_u32", j, self.vL16, 8, 1)),
              ("s", lambda: I("s_lshl_b32", T[1], self.sW, 11)), ("s", lambda: I("s_add_u32", T[1], T[1], L_SP)),
              ("v", lambda: I("v_lshl_add_u32", t, j, 3, t)), ("v", lambda: I("v_add_u32", V(132), T[1], t))]
        fa += [("v", lambda n=n: I("v_xor_b32", V(132 + n), 32 * n, V(132))) for n in range(1, 4)]
        fa += [("v", lambda: I("v_lshrrev_b32", j, 3, self.vL16)), ("v", lambda: I("v_and_b32", j, "0x70", j)),
               ("v", lambda: I("v_xor_b32", j, j, self.vL16)), ("v", lambda: I("v_add_u32", V(120), T[1], j)),
               ("s", lambda: I("s_add_u32", T[2], self.sX0o, 8 * 1792))]
        rest = self.sched(mf, [so, sw, [(40, k, f) for k, f in fa]])
        assert not rest
        a.flush()
        self.stamp()
        I("s_cmp_eq_u32", self.sL, 4)
        I("s_cbranch_scc1", "L_final")

        a.label("L_pepi")
        xo = V(112, 8)
        for k in range(8):
            I("v_cvt_pk_bf16_f32", xo[k], self.vR[2 * k], self.vR[2 * k + 1])
            if k == 3: I("buffer_store_dwordx4", xo[0:4], self.vL16, self.sWS, self.sXp, mods="offen")
        I("buffer_store_dwordx4", xo[4:8], self.vL16, self.sWS, self.sXp, mods="offen offset:1024")
        sm, sq = V(120, 2), V(122, 2)
        self.pk("v_pk_add_f32", sm, self.vR[0:2], self.vR[2:4])
        self.pk("v_pk_mul_f32", sq, self.vR[0:2], self.vR[0:2])
        self.pk("v_pk_fma_f32", sq, self.vR[2:4], self.vR[2:4], sq)
        for k in range(2, 8):
            self.pk("v_pk_add_f32", sm, sm, self.vR[2 * k:2 * k + 2])
            self.pk("v_pk_fma_f32", sq, self.vR[2 * k:2 * k + 2], self.vR[2 * k:2 * k + 2], sq)
        pr = V(124, 2)
        I("v_add_f32", pr[0], sm[0], sm[1])
        I("v_add_f32", pr[1], sq[0], sq[1])
        x, y = pr[0], pr[1]
        I("s_add_u32", self.sL, self.sL, 1)
        I("s_lshl_b32", T[0], self.sL, 4)
        I("v_permlane32_swap_b32", x, y)
        I("s_or_b32", T[0], T[0], self.sBase)
        I("v_add_f32", x, x, y)
        I("v_mov_b32", y, x)
        I("v_mov_b32", self.vT, T[0])
        I("s_cmp_eq_u32", self.sPhase, 0)
        I("v_permlane16_swap_b32", x, y)
        I("s_cselect_b32", self.sPend, self.sHaloProd, 0)
        I("v_add_f32", x, x, y)
        I("v_mov_b32", y, x)
        I("s_lshl_b32", T[1], self.sC, 10)
        I("s_add_u32", T[1], T[1], self.sHX)
        I("v_permlane32_swap_b32", x, y)
        STG = self.opt.get("stag", 0)
        if STG:
            I("s_and_b32", T[2], self.sL, 3)
            I("v_and_or_b32", y, y, -4, T[2])
        I("s_mov_b64", EXEC, "0xffff")
        I("buffer_store_dwordx2", pr, self.vStatSt, self.sWS, self.sXSp, mods="offen")
        I("s_mov_b64", EXEC, -1)
        nh, pub = self.lab("nohalo"), self.lab("pub")
        I("s_cmp_eq_u32", self.sPend, 0)
        I("s_cbranch_scc0", nh)
        wb, wbd = self.lab("pwb"), self.lab("pwbd")
        I("s_cmp_ge_u32", self.sL, 3)
        I("s_cbranch_scc1", wb)
        a.label(wbd)
        def write_back():
            self.a.label(wb)
            self.mid_exchange(wbd)
        self.tail.append(write_back)
        a.wait(vm=1 if STG else 0)
        a.label(pub)
        self.publish(self.sFXp)

        def tail():
            b = self.a
            b.label(nh)
            b.I("s_add_u32", T[1], T[1], 16384)
            b.I("s_mov_b32", self.sT2[0], "0xff00ff00")
            b.I("s_mov_b32", self.sT2[1], "0xff00ff00")
            b.I("s_mov_b64", EXEC, self.sT2)
            b.I("buffer_store_dwordx4", xo[0:4], self.vHp, self.sWS, T[1], mods="offen sc1")
            b.I("buffer_store_dwordx4", xo[4:8], self.vHp, self.sWS, T[1], mods="offen offset:512 sc1")
            b.I("s_lshl_b32", T[1], self.sC, 7)
            b.I("s_add_u32", T[1], T[1], self.sHX)
            b.I("s_add_u32", T[1], T[1], 16384 + 14336)
            b.I("s_mov_b64", EXEC, "0xffff")
            b.I("buffer_store_dwordx2", pr, self.vStatSt, self.sWS, T[1], mods="offen sc1")
            b.I("s_mov_b64", EXEC, -1)
            self.it_b = None
            self.b_to_a(range(14, 14 + self.opt.get("mx", 4)))
            b.wait(vm=4 if STG else 3)
            b.I("s_branch", pub)
        self.tail.append(tail)
        a.label("L_pnext")
        a.flush()
        a.forget_counters()
        self.stamp()
        if self.opt.get("stop"):
            I("s_cmp_eq_u32", self.sL, self.opt["stop"])
            I("s_cbranch_scc1", "L_fin2")
        I("s_cmp_eq_u32", self.sPhase, 1)
        I("s_cbranch_scc1", "L_qb")

        def idle():
            b = self.a
            b.label("L_pidle")
            b.I("s_cmp_eq_u32", self.sL, 4)
            b.I("s_cbranch_scc1", "L_fin2")
            b.I("s_add_u32", self.sL, self.sL, 1)
            b.I("s_cmp_lt_u32", self.sL, 3)
            b.I("s_cbranch_scc1", "L_pnext")
            self.mid_exchange("L_pnext")
        self.tail.append(idle)

    def q_poll(self, shadow=None):
        a, I = self.a, self.I
        T = self.sT
        ex, t, pv = V(112), V(113), V(114)
        loop, ok, pend, nopend, slow, again = (self.lab(x) for x in ("qpoll", "qpass", "pend", "nopend", "qslow", "qagain"))
        I("v_mad_u32_u24", ex, self.vExpM, self.sL, self.vExpC)
        if shadow:
            chk = self.lab("qchk")
            I("buffer_load_dword", pv, self.vPollQ, self.sWS, 0, mods="offen sc1")
            shadow()
            I("s_branch", chk)
        a.label(loop)
        I("buffer_load_dword", pv, self.vPollQ, self.sWS, 0, mods="offen sc1")
        if shadow: a.label(chk)
        I("s_cmp_eq_u32", self.sPend, 0)
        a.wait(vm=0)
        I("s_cbranch_scc0", pend)
        a.label(nopend)
        I("v_xor_b32", t, pv, ex)
        I("v_cmp_ne_u32", VCC, 0, t)
        I("s_cbranch_vccnz", slow)
        a.label(ok)
        a.vm = []

        def tail():
            b = self.a
            b.label(pend)
            b.I("s_lshl_b32", T[1], self.sC, 2)
            b.I("s_add_u32", T[1], T[1], self.sFHp)
            self.flag_value(T[0])
            b.I("v_mov_b32", self.vT, T[0])
            b.I("s_mov_b64", EXEC, 1)
            b.I("buffer_store_dword", self.vT, OFF, self.sWS, T[1], mods="offset:128 sc1")
            b.I("s_mov_b64", EXEC, -1)
            b.I("s_mov_b32", self.sPend, 0)
            b.I("s_branch", nopend)
            b.label(slow)
            if self.opt.get("dual", 1):
                fast, gen = self.lab("qfast"), self.lab("qgen")
                b.I("s_cmp_eq_u32", self.sL, 1)
                b.I("s_cselect_b32", T[0], 0, self.sMode)
                b.I("s_cmp_eq_u32", T[0], 0)
                b.I("s_cbranch_scc1", gen)
                b.I("buffer_load_dword", pv, self.vPollQ, self.sWS, 0, mods="offen sc1")
                b.nop(self.opt.get("dnop", 8))
                b.label(fast)
                for x, y in ((t, pv), (pv, t)):
                    b.I("buffer_load_dword", x, self.vPollQ, self.sWS, 0, mods="offen sc1", untracked=True)
                    b.raw("    s_waitcnt vmcnt(1)")
                    b.forget_counters()
                    b.I("v_cmp_ne_u32", VCC, ex, y)
                    b.I("s_cbranch_vccz", ok)
                self.budget_branch(fast)
                b.label(gen)
            b.I("s_cmp_eq_u32", self.sMode, 0)
            b.I("s_cbranch_scc1", again + "m")
            b.I("v_not_b32", V(115), self.vPollM)
            b.I("v_and_b32", V(116), t, self.vPollM)
            b.I("v_and_b32", V(115), t, V(115))
            b.I("v_cmp_ne_u32", self.sT2, 0, V(115))
            b.I("v_cmp_eq_u32", VCC, 0, V(116))
            b.nop(2)
            b.I("s_cmp_eq_u64", self.sT2, 0)
            b.I("s_cbranch_scc1", again)
            b.I("s_and_b32", T[0], VCC_LO, VCC_HI)
            b.I("s_andn2_b32", T[0], "0xffff0000", T[0])
            b.I("s_cbranch_scc1", again)
            b.I("s_mov_b32", self.sMode, 0)
            b.I("s_add_u32", self.sFXp, self.sFXp, WS_SLOW)
            b.I("s_add_u32", self.sFOq, self.sFOq, WS_SLOW)
            b.I("s_add_u32", self.sFOp, self.sFOp, WS_SLOW)
            b.I("v_lshlrev_b32", V(115), 11, self.vExpM)
            b.I("v_add_u32", self.vPollQ, V(115), self.vPollQ)
            if self.opt.get("s0l", 1):
                b.I("s_cmp_eq_u32", self.sC, 7)
                b.I("s_cbranch_scc1", again)
                b.I("buffer_wbl2", mods="sc1")
                b.wait(vm=0)
                b.I("s_or_b32", T[0], self.sBase, 16)
                b.I("v_mov_b32", self.vT, T[0])
                b.I("s_mov_b64", EXEC, 1)
                b.I("buffer_store_dword", self.vT, OFF, self.sWS, self.sFXp, mods="sc1")
                b.I("s_mov_b64", EXEC, -1)
            b.I("s_branch", again)
            b.label(again + "m")
            b.I("v_and_b32", V(116), t, self.vPollM)
            b.I("v_cmp_ne_u32", VCC, 0, V(116))
            b.I("s_cbranch_vccz", ok)
            b.label(again)
            self.budget_branch(loop)
        self.tail.append(tail)

    def xload(self, ks):
        out = []
        if ks % 4 == 0:
            out.append(("s", lambda: self.I("s_add_u32", self.sT[1], self.sXq, ks * 1024)))
            out.append(("s", lambda: self.I("s_add_u32", self.sT[2], self.sXq, ks * 1024 + 14336)))
        for t in range(2):
            out.append(("v", lambda t=t: self.I("buffer_load_dwordx4", self.xf(t, ks), self.vL16, self.sWS, self.sT[1 + t],
                                               mods=f"offen offset:{(ks % 4) * 1024} sc1")))
        return out

    def stats_ops(self, T, layer):
        raw, st = self.straw(T), self.st(T)
        t = V(188 + 2 * T, 2)
        ops = []
        def add(*x, **k): ops.append(("w" if ("perm" in x[0] or "rsq" in x[0]) else "v", lambda: self.I(*x, **k)))
        add("v_and_b32", raw[2], raw[2], self.vM3)
        add("v_and_b32", raw[3], raw[3], self.vM3)
        add("v_add_f32", raw[0], raw[0], raw[2])
        add("v_add_f32", raw[1], raw[1], raw[3])
        for step in range(7):
            x, y = raw[0], raw[1]
            if step in (0, 6): add("v_permlane32_swap_b32", x, y)
            elif step in (1, 4): add("v_add_f32", x, x, y)
            elif step in (2, 5): add("v_mov_b32", y, x)
            else: add("v_permlane16_swap_b32", x, y)
        add("v_mul_f32", st[0], f32(-1.0 / 448), raw[0])
        add("v_mul_f32", t[0], f32(1.0 / 448), raw[1])
        add("v_fma_f32", t[0], Neg(st[0]), st[0], t[0])
        add("v_max_f32", t[0], 0, t[0])
        add("v_add_f32", t[0], f32(1e-5), t[0])
        add("v_rsq_f32", st[1], t[0])
        add("v_and_b32", st[2], st[1], self.vMH if T == 2 else self.vM3)
        if T < 2:
            add("v_mul_f32", st[3], f32(LOG2E * (28 ** -0.5 if layer == "A" else 1.0)), st[1])
        return ops

    def colsum_part(self, ad, steps, cs_off):
        a, I = self.a, self.I
        d = V(192, 4)
        def w(k): return self.wf(k % 4)
        def rd(k): I("ds_read_b128", w(k), ad, mods=f"offset:{steps[k] * 2048}")
        for k in range(4): rd(k)
        mf, sw = [], []
        for k in range(len(steps)):
            mf.append((d, w(k), self.aOnes, 0 if k == 0 else d))
            if k + 4 < len(steps): sw.append((k, "v", lambda k=k: rd(k + 4)))
        assert not self.sched(mf, [sw])
        I("v_lshrrev_b32", V(189), 8, self.vL16)
        I("v_lshlrev_b32", V(189), 4, V(189))
        I("s_add_u32", self.sT[0], self.sT[0], L_CS + cs_off)
        I("v_add_u32", V(189), self.sT[0], V(189))
        I("s_mov_b32", self.sT2[0], "0x00010001")
        I("s_mov_b32", self.sT2[1], "0x00010001")
        a.flush()
        I("s_mov_b64", EXEC, self.sT2)
        I("ds_write_b128", V(189), d)
        I("s_mov_b64", EXEC, -1)

    def colsum_b_q(self):
        I, T = self.I, self.sT
        I("v_lshrrev_b32", V(188), 8, self.vL16)
        I("v_lshlrev_b32", V(188), 4, V(188))
        I("v_add_u32", V(188), L_CS, V(188))
        for ft in range(2, 6):
            I("ds_read_b128", self.cB[4 * ft:4 * ft + 4], V(188), mods=f"offset:{64 * ft}")
        I("s_lshr_b32", T[0], self.sW, 1)
        I("s_lshl_b32", T[0], T[0], 10)
        I("v_add_u32", V(188), T[0], self.vL16)
        I("s_and_b32", T[0], self.sW, 1)
        I("s_mul_i32", T[0], T[0], 7 * 2048)
        I("v_add_u32", V(188), T[0], V(188))
        I("s_lshl_b32", T[0], self.sW, 6)
        self.colsum_part(V(188), list(range(7)), 512)

    def colsum_b_q2(self):
        a, I = self.a, self.I
        done = self.lab("cq2")
        a.wait_lg_all()
        I("s_cmp_lg_u32", self.sIt, 0)
        I("s_cbranch_scc1", done)
        I("v_lshrrev_b32", V(188), 8, self.vL16)
        I("v_lshlrev_b32", V(188), 4, V(188))
        I("v_add_u32", V(188), L_CS + 512, V(188))
        for k in range(4):
            I("ds_read_b128", self.cB[4 * (k >> 1):4 * (k >> 1) + 4] if k % 2 == 0 else V(204 + 4 * (k >> 1), 4), V(188), mods=f"offset:{64 * k}")
        for k in range(8): I("v_add_f32", self.cB[k], self.cB[k], V(204 + k))
        a.flush()
        a.label(done)

    def cs_read(self, dst, with_halo):
        I = self.I
        ad = V(188)
        I("v_lshrrev_b32", ad, 8, self.vL16)
        I("v_lshlrev_b32", ad, 4, ad)
        I("v_add_u32", ad, L_CS, ad)
        for ft in range(6):
            I("ds_read_b128", dst[4 * ft:4 * ft + 4], ad, mods=f"offset:{64 * ft}")
        if with_halo:
            I("s_lshl_b32", self.sT[0], self.sW, 6)
            I("v_add_u32", V(189), self.sT[0], ad)
            I("ds_read_b128", self.vCH, V(189), mods="offset:128")

    def wphi_gather(self):
        a, I = self.a, self.I
        j, g, f1, ad, t = V(214), V(215), V(216), V(217), V(218)
        I("v_lshrrev_b32", g, 8, self.vL16)
        I("v_lshrrev_b32", j, 2, self.vPollP)
        I("v_lshrrev_b32", t, 2, j)
        I("v_sub_u32", f1, j, t)
        I("v_add_u32", f1, 16, f1)
        I("v_mul_u32_u24", ad, 4 * 56, g)
        I("v_add_u32", ad, L_WPHI, ad)
        I("v_lshl_add_u32", f1, f1, 1, ad)
        I("v_lshl_add_u32", ad, j, 1, ad)
        I("v_and_b32", t, 3, j)
        I("v_cmp_ne_u32", VCC, 3, t)
        I("v_cndmask_b32", t, 0, -1, VCC)
        I("v_and_b32", j, t, self.vM3)
        for oft, base in enumerate((ad, f1)):
            for e in range(8):
                d = e if e < 4 else 16 + e - 4
                I("ds_read_u16", V(204 + e), base, mods=f"offset:{d * 56}")
            for p in range(4):
                I("v_lshl_or_b32", V(204 + 2 * p), V(205 + 2 * p), 16, V(204 + 2 * p))
                m = (None, self.vM3)[p >> 1] if oft == 0 else (t, j)[p >> 1]
                if m is not None: I("v_and_b32", V(204 + 2 * p), V(204 + 2 * p), m)
                I("v_accvgpr_write_b32", self.aWphi[4 * oft + p], V(204 + 2 * p))

    def conv_scalar(self, dst, T, mat, c, scales):
        out = []
        st = self.st(T)
        for f in range(2):
            acc = self.acc(T, 2 * mat + f)
            cc = c[4 * (2 * mat + f):4 * (2 * mat + f) + 4]
            for k in range(4): out.append(lambda acc=acc, cc=cc, k=k: self.I("v_fma_f32", acc[k], cc[k], st[0], acc[k]))
            m = {"r": st[1], "m": st[2], None: None}[scales[f]]
            if m is not None:
                for k in range(4): out.append(lambda acc=acc, m=m, k=k: self.I("v_mul_f32", acc[k], acc[k], m))
            for p in range(2): out.append(lambda acc=acc, f=f, p=p: self.I("v_cvt_pk_bf16_f32", dst[2 * f + p], acc[2 * p], acc[2 * p + 1]))
        return out

    def check_parked(self, before):
        assert self.a.count["ds_read_b128"] - before == 21

    def b_tiles(self): return (2, 3, 4, 5, 0) if self.opt.get("qsplit", 0) else (2, 3, 4, 5)

    def q_ready(self, layer, first=False):
        a, I = self.a, self.I
        a.wait(lg=0)
        I("s_barrier")
        once = self.lab("once")
        if layer == "B":
            I("s_cmp_lg_u32", self.sIt, 0)
            I("s_cbranch_scc1", once)
        nvm = len(a.vm)
        if layer == "A" and not first:
            pass
        elif layer == "A":
            self.cs_read(self.cA, True)
            for n in range(4): I("ds_read_b64", V(200 + 2 * n, 2), V(0), mods=f"offset:{32 * n}")
            for n in range(4):
                for p in range(2):
                    I("v_lshlrev_b32", self.vR[4 * n + 2 * p], 16, V(200 + 2 * n + p))
                    I("v_and_b32", self.vR[4 * n + 2 * p + 1], "0xffff0000", V(200 + 2 * n + p))
        else:
            self.colsum_b_q()
        a.wait_lg_all()
        a.flush()
        assert nvm == len(a.vm)
        a.label(once)
        for ft in (range(6) if layer == "A" else self.b_tiles()):
            for f in self.qa_read(self.wf(ft), ft, 0): f()

    def q_gemm(self, layer, tail_ops=(), first=None):
        a, I = self.a, self.I
        T = self.sT
        isA = layer == "A"
        LOOK = self.opt.get("look", 3)
        if not first:
            for ks in range(2):
                for _, f in self.xload(ks): f()
            if not isA: self.q_ready("B")
            for _, f in self.xload(2): f()
        reads0, writes0 = a.count.get("ds_read_b128", 0), a.count.get("ds_write_b128", 0)
        def bar(n):
            assert a.count["ds_read_b128"] - reads0 == n and not a.lg and a.count.get("ds_write_b128", 0) == writes0
            I("s_barrier")

        G = 12 if isA else 2 * len(self.b_tiles())
        mf, sw, sx, sd, sv, sh, stc = [], [], [], [], [], [], []
        RE = isA and self.opt.get("reord", 1)
        for ks in range(12 if RE else 14):
            order = ((2, 3, 4, 5, 0, 1) if ks == 13 else range(6)) if isA else self.b_tiles()
            for ft in order:
                for t in ((1, 0) if ks == 13 else (0, 1)):
                    mf.append((self.acc(t, ft), self.wf(ft), self.xf(t, ks), 0 if ks == 0 else self.acc(t, ft)))
                if ks < 13:
                    sw += [(len(mf) - 1, "v", f) for f in self.qa_read(self.wf(ft), ft, ks + 1)]
                if RE and ks == 11 and ft in (2, 3):
                    sw += [(len(mf) - 1, "v", f) for f in self.qa_read(self.wf(4 + ft), ft, 13)]
        if RE:
            last = {2: 6, 3: 7, 4: 2, 5: 3, 0: 6, 1: 7}
            for mat in (1, 2, 0):
                for ks in (12, 13):
                    for ft in (2 * mat, 2 * mat + 1):
                        slot = ft if ks == 12 else last[ft]
                        for t in (1, 0):
                            mf.append((self.acc(t, ft), self.wf(slot), self.xf(t, ks), self.acc(t, ft)))
                        nxt = [f2 for f2 in last if last[f2] == slot and f2 != ft and ((mat == 1 and ks == 12 and f2 in (4, 5)) or (mat == 1 and ks == 13 and f2 in (0, 1)))]
                        for f2 in nxt: sw += [(len(mf) - 1, "v", f) for f in self.qa_read(self.wf(slot), f2, 13)]
        for k in range(3, 14):
            gap = max(0, G * (k - LOOK) - (6 if k > 6 else 0)) if isA else max(0, G * (k - self.opt.get("lookb", 4)))
            if isA and self.opt.get("slope", 75): gap = (G * (k - 3) * self.opt.get("slope", 75)) // 100
            xl = self.xload(k)
            sx += [(gap, kind, f) for kind, f in xl[:-1]] + [(gap + 4, "v", xl[-1][1])]
            SK = self.opt.get("ska", 6) if isA else self.opt.get("skb", 7)
            if k in (SK, SK + 1):
                for t in (k - SK,):
                    for q in range(2):
                        sx.append((gap + 7 + 2 * q, "v", lambda t=t, q=q: I(
                            "buffer_load_dwordx2", self.straw(t)[2 * q:2 * q + 2], self.vStat, self.sWS, self.sXSq,
                            mods=f"offen offset:{t * 1024 + 512 * q} sc1")))
        s0, s1 = self.stats_ops(0, layer), self.stats_ops(1, layer)
        sv += [(G * SK + 6 - G * self.opt.get("sva", 0) if isA else G * (SK - 1), k, f) for p in zip(s0, s1) for k, f in p]
        x2 = a.count.get("buffer_load_dwordx2", 0)
        def loaded(f, n):
            def g():
                assert a.count["buffer_load_dwordx2"] - x2 >= n, "row sums used before they were requested"
                f()
            return g
        if self.opt.get("stag", 0):
            slow_s, back_s = self.lab("sslow"), self.lab("sback")
            u, w = V(188), V(190)
            r0, r1 = self.straw(0), self.straw(1)
            def chk_ops():
                return [("v", lambda: I("v_xor_b32", u, r0[3], r1[3])), ("v", lambda: I("v_xor_b32", w, r0[1], r1[1])),
                        ("v", lambda: I("v_bitop3_b32", u, u, r0[3], self.sL, mods="bitop3:0xf6")),
                        ("v", lambda: I("v_bitop3_b32", w, w, r0[1], self.sL, mods="bitop3:0xf6")),
                        ("v", lambda: I("v_and_or_b32", u, u, self.vM3, w)), ("v", lambda: I("v_and_b32", u, 3, u)),
                        ("v", lambda: I("v_cmp_ne_u32", VCC, 0, u))]
            def br_s():
                I("s_cbranch_vccnz", slow_s)
                a.label(back_s)
            def tail_s():
                b = self.a
                b.label(slow_s)
                b.I("s_sub_u32", self.sBudget, self.sBudget, 1)
                b.I("s_cbranch_scc1", "L_end")
                for t in range(2):
                    for q in range(2):
                        b.I("buffer_load_dwordx2", self.straw(t)[2 * q:2 * q + 2], self.vStat, self.sWS, self.sXSq,
                            mods=f"offen offset:{t * 1024 + 512 * q} sc1")
                b.wait(vm=0)
                for _, f in chk_ops(): f()
                b.I("s_cbranch_vccnz", slow_s)
                b.I("s_branch", back_s)
            self.tail.append(tail_s)
            co = chk_ops()
            sv = [(sv[0][0], k, f) for k, f in co[:-1]] + [(sv[0][0], "v", lambda: (co[-1][1](), br_s()))] + sv
        sv[0] = (sv[0][0], sv[0][1], loaded(sv[0][2], 4))
        sf = []
        if self.opt.get("fine") == (1 if isA else 2):
            sf = [(G * 2 * i, "s", lambda i=i: self.fine(1 if isA else 2, i)) for i in range(7)]
        nd = 0
        for k, f in self.pw_dma(self.sWOA, range(8)) if isA else ():
            sd.append((G * 10 + 2 + 5 * nd, k, f))
            nd += k == "v"
        if isA:
            HF, HC = self.opt.get("hf", 4), self.opt.get("hc", 8)
            hv, hx, fv = V(194), V(195), V(196)
            def check(reg, first, gap, shift):
                slow, back = self.lab("hslow"), self.lab("hback")
                def br():
                    I("v_cmp_ne_u32", VCC, hx, reg)
                    I("s_cbranch_vccnz", slow)
                    a.label(back)
                out = [(first, "v", lambda: I("buffer_load_dword", reg, self.vPollH, self.sWS, 0, mods="offen sc1")),
                       (gap, "v", br)]
                def tail():
                    b = self.a
                    b.label(slow)
                    b.I("s_sub_u32", self.sBudget, self.sBudget, 1)
                    b.I("s_cbranch_scc1", "L_end")
                    b.I("buffer_load_dword", reg, self.vPollH, self.sWS, 0, mods="offen sc1")
                    b.wait(vm=0)
                    b.I("v_cmp_ne_u32", VCC, hx, reg)
                    if shift: b.I("s_lshr_b64", VCC, VCC, 16)
                    b.I("s_cbranch_scc1" if shift else "s_cbranch_vccnz", slow)
                    b.I("s_branch", back)
                self.tail.append(tail)
                return out
            stc = [(2, "v", lambda: I("v_mad_u32_u24", hx, self.vExpHM, self.sL, self.vExpHC))]
            sh += check(hv, G * HF + 8, G * HC, False)
            sh.append((G * HC, "s", lambda: I("s_lshl_b32", T[0], self.sW, 11)))
            sh.append((G * HC, "s", lambda: I("s_add_u32", M0, T[0], L_HX, m0="halo")))
            sh.append((G * HC, "s", lambda: I("s_add_u32", T[0], T[0], self.sHX)))
            for q in range(2):
                sh.append((G * HC, "v", lambda q=q: I("buffer_load_dwordx4", self.vHalo, self.sWS, T[0], mods=f"offen offset:{1024 * q} sc1 lds", tag="halo", m0="halo")))
            sh.append((G * HC, "s", lambda: I("s_add_u32", T[0], self.sHX, 14336)))
            for q in range(2):
                sh.append((G * HC, "v", lambda q=q: I("buffer_load_dwordx2", self.straw(2)[2 * q:2 * q + 2], self.vHaloS, self.sWS, T[0],
                                                     mods=f"offen offset:{512 * q} sc1")))
            sh.append((G * HC, "v", lambda: I("v_add_u32", V(194), L_HX, self.vHp)))
            def hw(k): return A(4 * k, 4)
            shw = []
            had = self.vQh
            for k in range(14): shw.append((G * (1 + (k * 11) // 14) + 3, "v", lambda k=k: I("ds_read_b128", hw(k), had, mods=f"offset:{k * 2048}")))
            s2 = self.stats_ops(2, layer)
            sv2 = [(G * (HC + 4), k, loaded(f, 6)) for k, f in s2]
            nb = len(mf) - 11
            sb = [(nb, "s", lambda: a.wait_vm_tag("halo")), (nb, "s", lambda: a.wait(lg=0)), (nb, "s", lambda: bar(78 + 14 + (21 if first else 0)))]
            sb += [((nb if k < 10 or not RE else len(mf) - 1), "v", lambda k=k: I("ds_read_b128", self.hx(k), V(194), mods=f"offset:{512 * k}")) for k in range(14)]
            n0 = len(mf)
            for k in range(14): mf.append((self.hacc, hw(k), self.hx(k), 0 if k == 0 else self.hacc))
            stl = [(n0 - 6, "v", f) for f in tail_ops]
            if RE:
                stl = [(n0 - 15 if k < 20 else (nb + 1 if k == 20 else n0 - 7), "v", f) for k, f in enumerate(tail_ops)]
            if not first and self.opt.get("otouch", 0):
                sd.append((G * 13, "v", lambda: I("v_mul_u32_u24", V(197), 448, self.vPollP)))
                sd.append((G * 13, "v", lambda: I("buffer_load_dword", self.vDummy, V(197), self.sOUT, self.sX0o, mods="offen", nodest=True)))
            sd.append((G * 13, "s", lambda: I("s_lshr_b32", T[3], self.sGrp, 1)))
            sd.append((G * 13, "s", lambda: I("s_lshl_b32", T[3], T[3], 10)))
            sd.append((G * 13, "s", lambda: I("s_add_u32", T[3], T[3], self.sKVld)))
            sd.append((G * 13, "s", lambda: I("s_add_u32", T[3], T[3], 8192)))
            sd.append((G * 13, "v", lambda: I("buffer_load_dword", self.vDummy, self.vL16, self.sWS, T[3], mods="offen", nodest=True)))
            spark, sfw = [], []
            if first:
                spark = [(G * self.opt.get("pk0", 6) + self.opt.get("pkd", 4) * n, "v", lambda n=n: I("ds_read_b128", self.stash(n + 1), self.vQS, mods=self.piece(n))) for n in range(21)]
                sfw = [(nb + 6 + 8 * k, "w", first) for k in range(2)]
            rest = self.sched(mf, [sf, sw, sx, stc, sh, shw, spark, sb, sd, sfw, sv + stl, sv2])
        else:
            n0 = len(mf)
            stl = [(n0 - G + 4, "v", f) for f in tail_ops]
            rest = self.sched(mf, [sf, sw, sx, sv + stl])
        return rest

    def ln(self, acc, c, st, scale):
        for p in range(2):
            self.pk("v_pk_fma_f32", acc[2 * p:2 * p + 2], c[2 * p:2 * p + 2], st[0:2], acc[2 * p:2 * p + 2], by=0)
        if scale == "r":
            for p in range(2): self.pk("v_pk_mul_f32", acc[2 * p:2 * p + 2], acc[2 * p:2 * p + 2], st[0:2], by=1)
        elif scale == "m":
            for p in range(2): self.pk("v_pk_mul_f32", acc[2 * p:2 * p + 2], acc[2 * p:2 * p + 2], st[2:4], by=0)
        elif scale == "e":
            self.pk("v_pk_fma_f32", acc[0:2], acc[0:2], st[2:4], self.vE0, by=0)
            self.pk("v_pk_mul_f32", acc[2:4], acc[2:4], st[2:4], by=0)

    def cvt(self, dst, src):
        for p in range(src.cnt // 2):
            self.I("v_cvt_pk_bf16_f32", dst[p], src[2 * p], src[2 * p + 1])

    def conv(self, dst, T, mat, c, scales):
        for f in range(2):
            ft = 2 * mat + f
            self.ln(self.acc(T, ft), c[4 * ft:4 * ft + 4], self.st(T), scales[f])
        for f in range(2):
            self.cvt(dst[2 * f:2 * f + 2], self.acc(T, 2 * mat + f))

    def o_finish(self, o, den, of, in_drain, after, through=False):
        a, I = self.a, self.I
        T = self.sT
        I("s_add_u32", T[1], self.sOq, 16384)
        self.flag_value(T[0])
        for t in range(2): I("v_rcp_f32", den[t][0], den[t][0])
        I("v_mov_b32", self.vT, T[0])
        def tile(t, fl):
            if t:
                for p in range(4): self.pk("v_pk_mul_f32", o[t][2 * p:2 * p + 2], o[t][2 * p:2 * p + 2], den[t][0:2], by=0)
                self.cvt(of[t], o[t])
            I("buffer_store_dwordx2", of[t][0:2], self.vO0, self.sWS, T[1] if t else self.sOq, mods="offen" + fl)
            I("buffer_store_dwordx2", of[t][2:4], self.vO1, self.sWS, T[1] if t else self.sOq, mods="offen" + fl)
        far, stored = self.lab("ofar"), self.lab("ostored")
        I("s_cmp_eq_u32", self.sMode, 0)
        for p in range(4): self.pk("v_pk_mul_f32", o[0][2 * p:2 * p + 2], o[0][2 * p:2 * p + 2], den[0][0:2], by=0)
        self.cvt(of[0], o[0])
        I("s_cbranch_scc1", far)
        for t in range(2): tile(t, " sc1" if through else "")
        a.label(stored)
        def device_scope():
            self.a.label(far)
            for t in range(2): tile(t, " sc1")
            self.I("s_branch", stored)
        self.tail.append(device_scope)
        self.fine(getattr(self, "fin_region", 0) or -1, 6)
        self.fin_region = 0
        if in_drain: in_drain()
        a.wait(vm=0)
        self.publish(self.sFOq)
        self.stamp()
        if after: after()

    def qa_stage(self, first=False):
        a, I = self.a, self.I
        if first and (self.opt.get("visit", 0) or "pad" in self.opt): a.raw(".p2align 12")
        if first and self.opt.get("pad"): a.raw(f".fill {self.opt['pad'] // 4}, 4, 0xbf800000")
        a.label("L_qa1" if first else "L_qa")
        a.forget_counters()
        self.it_b = None
        left = list(range(7, 21)) + list(range(7))
        NE, NH = self.opt.get("ne", 12), self.opt.get("nh", 4)
        def more():
            if first and len(left) > 21 - NE: self.fw_piece(left.pop(0))
        self.more = more
        if first:
            have = self.lab("havex")
            self.q_ready("A", True)
            I("s_cmp_eq_u32", S(3), 1)
            I("s_cbranch_scc1", have)
            self.q_poll()
            for ks in range(3):
                for _, f in self.xload(ks): f()
            a.label(have)
        else: self.q_poll(lambda: (self.b_to_a(range(14 + self.opt.get("mx", 4), 21)), self.q_ready("A")))
        self.stamp()
        kf = [V(196, 4), V(200, 4)]
        qf = [V(204, 4), V(208, 4)]
        vp = [V(212, 4), V(216, 4)]
        hp = V(220, 2)
        tail_ops = self.conv_scalar(kf[1], 1, 1, self.cA, ("r", "m"))
        tail_ops.append(lambda: I("ds_write_b128", self.vKrd, kf[1], mods="offset:1024"))
        tail_ops += self.conv_scalar(vp[1], 1, 2, self.cA, ("r", "r"))
        tail_ops.append(lambda: I("ds_write_b128", self.vEXW, vp[1], mods="offset:2048"))
        TV0 = self.opt.get("tv0", 0)
        if TV0:
            tail_ops += self.conv_scalar(vp[0], 0, 2, self.cA, ("r", "r"))
            tail_ops.append(lambda: I("ds_write_b128", self.vEXW, vp[0], mods="offset:1024"))
        rest = self.q_gemm("A", tail_ops, more if first else None)
        for f in rest: f()
        self.stamp()
        more()
        if not TV0:
            self.conv(vp[0], 0, 2, self.cA, ("r", "r"))
            I("ds_write_b128", self.vEXW, vp[0], mods="offset:1024")
        self.ln(self.hacc, self.vCH, self.st(2), "m")
        self.cvt(hp, self.hacc)
        I("ds_write_b64", self.vHW, hp)
        more()
        self.conv(qf[0], 0, 0, self.cA, (None, None))
        self.fine(4, 0)
        a.wait(lg=0)
        I("s_barrier")
        self.fine(4, 1)
        kprev = V(222, 4)
        vt = [V(226, 6), V(232, 6)]
        I("ds_read_b128", kprev, self.vKrd)
        for f in range(2):
            for i in range(3):
                I("ds_read_b64_tr_b16", vt[f][2 * i:2 * i + 2], self.vEXRa, mods=f"offset:{1024 * i + 8 * f}")
        more()
        self.conv(kf[0], 0, 1, self.cA, ("r", "m"))
        more()
        self.conv(qf[1], 1, 0, self.cA, (None, None))
        s = [V(112, 8), V(120, 8)]
        self.mfma(s[1][4:8], kf[1], qf[1], self.bCur)
        self.mfma(s[1][0:4], kf[0], qf[1], self.bPrev)
        self.mfma(s[0][4:8], kf[0], qf[0], self.bCur)
        self.mfma(s[0][0:4], kprev, qf[0], self.bPrev0)
        self.fine(4, 2)
        more()
        m = V(128, 2)
        for t in (1, 0):
            I("v_max3_f32", m[t], s[t][4], s[t][5], s[t][6])
            I("v_max3_f32", m[t], m[t], s[t][7], s[t][0])
            I("v_max3_f32", m[t], m[t], s[t][1], s[t][2])
            I("v_max_f32", m[t], m[t], s[t][3])
        self.allreduce_pairs([("v_max_f32", m[0], m[1])])
        more()
        nm = [V(130, 2), V(132, 2)]
        for t in range(2):
            I("v_mul_f32", nm[t][0], m[t], self.st(t)[3])
        for t in range(2):
            for p in range(4):
                self.I("v_pk_fma_f32", s[t][2 * p:2 * p + 2], s[t][2 * p:2 * p + 2], self.st(t)[2:4], nm[t],
                       mods="op_sel:[0,1,0] op_sel_hi:[1,1,0] neg_lo:[0,0,1] neg_hi:[0,0,1]")
        self.fine(4, 3)
        pf = [V(136, 4), V(140, 4)]
        o = [V(144, 8), V(152, 8)]
        sm = [V(160, 4), V(164, 4)]
        more()
        for k in range(8): I("v_exp_f32", s[0][k], s[0][k])
        more()
        for k in range(2): I("v_exp_f32", s[1][k], s[1][k])
        self.cvt(pf[0], s[0])
        for k in range(2, 4): I("v_exp_f32", s[1][k], s[1][k])
        self.mfma(sm[0], self.aOnes, pf[0], 0)
        I("v_exp_f32", s[1][4], s[1][4])
        self.mfma(o[0][0:4], vt[0][0:4], pf[0], 0)
        I("v_exp_f32", s[1][5], s[1][5])
        self.mfma(o[0][4:8], vt[1][0:4], pf[0], 0)
        for k in range(6, 8): I("v_exp_f32", s[1][k], s[1][k])
        self.cvt(pf[1], s[1])
        self.mfma(sm[1], self.aOnes, pf[1], 0)
        for f in range(2):
            self.mfma(o[1][4 * f:4 * f + 4], vt[f][2:6], pf[1], 0)
        self.fine(4, 4)
        more()
        more()
        self.fine(4, 5)
        self.fin_region = 4
        def hop1():
            for _ in range(NH): self.fw_piece(left.pop(0))
            self.fw_left = left
            assert len(left) <= 7
        if first: self.o_finish(o, sm, [V(168, 4), V(172, 4)], self.wphi_gather, hop1, through=not self.opt.get("tm", 15) & 4)
        else: self.o_finish(o, sm, [V(168, 4), V(172, 4)], lambda: self.unpark(range(7, 14)), None)
        I("s_mov_b32", self.sPhase, 1)
        I("s_mov_b64", self.sPWc[0:2], self.sWOA[0:2])
        I("s_mov_b32", self.sPWc[2], 401408)
        a.flush()
        I("s_branch", "L_p")

    def phi(self, src, dst, extra=(), done=None):
        a, I = self.a, self.I
        rest = list(extra)
        def more(n=1):
            for _ in range(n):
                if rest: rest.pop(0)()
        p = [V(120, 8), V(128, 8)]
        for t in range(2):
            for oft in range(2):
                self.mfma(p[t][4 * oft:4 * oft + 4], self.aWphi[4 * oft:4 * oft + 4], src[t], 0)
        kk = [V(204, 2), V(206, 2)]
        bb = [V(208, 2), V(210, 2)]
        for t in range(2):
            I("v_mov_b32", kk[t][0], self.st(t)[3])
            I("v_sub_f32", kk[t][1], 0, self.st(t)[3])
        more(3)
        mx, mn = V(188, 2), V(190, 2)
        for t in range(2):
            for k in range(3):
                if k == 0:
                    I("v_max3_f32", mx[t], p[t][0], p[t][1], p[t][2])
                    I("v_min3_f32", mn[t], p[t][0], p[t][1], p[t][2])
                else:
                    I("v_max3_f32", mx[t], mx[t], p[t][2 * k + 1], p[t][2 * k + 2])
                    I("v_min3_f32", mn[t], mn[t], p[t][2 * k + 1], p[t][2 * k + 2])
        self.fine(self.phi_region or -1, 1)
        self.allreduce_pairs([("v_max_f32", mx[0], mx[1]), ("v_min_f32", mn[0], mn[1])])
        for t in range(2):
            I("v_mul_f32", bb[t][0], mx[t], kk[t][1])
            I("v_mul_f32", bb[t][1], mn[t], kk[t][0])
        e = [V(144, 14), V(158, 14)]
        for i in range(7):
            for t in range(2):
                self.pk("v_pk_fma_f32", e[t][2 * i:2 * i + 2], p[t][(i & ~1):(i & ~1) + 2], kk[t], bb[t], bx=i & 1)
        self.fine(self.phi_region or -1, 2)
        for i in range(14):
            for t in range(2): I("v_exp_f32", e[t][i], e[t][i])
            more()
        sm = [V(188, 2), V(190, 2)]
        for t in range(2): self.pk("v_pk_add_f32", sm[t], e[t][0:2], e[t][2:4])
        for i in range(2, 7):
            for t in range(2): self.pk("v_pk_add_f32", sm[t], sm[t], e[t][2 * i:2 * i + 2])
            more()
        self.fine(self.phi_region or -1, 3)
        self.allreduce_pairs([("v_add_f32", sm[0][0], sm[0][1]), ("v_add_f32", sm[1][0], sm[1][1])])
        for t in range(2):
            for k in range(2): I("v_rcp_f32", sm[t][k], sm[t][k])
        for t in range(2):
            more()
            for i in range(7):
                self.pk("v_pk_mul_f32", e[t][2 * i:2 * i + 2], e[t][2 * i:2 * i + 2], sm[t])
                if i == 3: more()
            for s in range(2):
                more()
                for q in range(4):
                    I("v_cvt_pk_bf16_f32", dst[t][s][q], e[t][4 * q + s], e[t][4 * q + 2 + s] if q < 3 else 0)
                if done: done(t, s)
        more(99)

    def qb_stage(self):
        a, I = self.a, self.I
        T = self.sT
        a.label("L_qb")
        a.raw("@VISIT")
        self.q_poll(self.qb_shadow)
        self.stamp()
        kf = qf = [V(196, 4), V(200, 4)]
        rest = self.q_gemm("B", self.conv_scalar(kf[1], 1, 1, self.cB, (None, None)))
        for f in rest: f()
        self.stamp()
        vp = [V(212, 4), V(216, 4)]
        exw = V(220)
        I("v_subrev_u32", exw, L_EXV - L_PH, self.vEXW)
        self.conv(kf[0], 0, 1, self.cB, (None, None))
        for t in (1, 0):
            self.conv(vp[t], t, 2, self.cB, ("r", "e"))
            I("ds_write_b128", exw, vp[t], mods=f"offset:{16384 + 1024 * t}")
        self.fine(3, 0)
        self.phi_region = 3
        ph = [[V(232, 4), V(236, 4)], [V(224, 4), V(228, 4)]]
        self.phi(kf, ph, done=lambda t, s: I("ds_write_b128", exw, ph[t][s], mods=f"offset:{8192 * s + 1024 * t}"))
        self.phi_region = 0
        self.fine(3, 4)
        a.wait(lg=0)
        I("s_barrier")
        self.fine(3, 5)
        lo, hi, real = V(184), V(185), V(186)
        sX, oth = T[1], V(124, 4)
        I("s_lshr_b32", sX, self.sGrp, 1)
        I("s_lshl_b32", sX, sX, 10)
        I("s_add_u32", sX, sX, self.sKVld)
        I("s_add_u32", sX, sX, 8192)
        I("s_lshr_b32", T[0], self.sW, 1)
        I("s_xor_b32", T[0], T[0], self.sGrp)
        I("s_and_b32", T[2], T[0], 1)
        give, give2, take, kept, far = (self.lab(x) for x in ("give", "give", "take", "kept", "givefar"))
        def fetch(): I("buffer_load_dwordx4", oth, self.vKVo, self.sWS, sX, mods="offen sc1", untracked=True)
        I("s_cbranch_scc1", give2)
        fetch()
        a.label(give2)
        kacc = V(116, 8)
        def fa(k, oft): return V((128, 132, 140, 144, 148, 152, 156, 160)[k * 2 + oft], 4)
        def fb(k): return V((164, 168, 172, 196)[k], 4)
        for k in range(4):
            for t in range(2):
                I("ds_read_b64_tr_b16", fb(k)[2 * t:2 * t + 2], self.vKB, mods=f"offset:{(2 * k + t) * 1024}")
            for oft in range(2):
                for t in range(2):
                    I("ds_read_b64_tr_b16", fa(k, oft)[2 * t:2 * t + 2], self.vKA, mods=f"offset:{(2 * k + t) * 1024 + 8 * oft}")
            if k:
                for oft in range(2):
                    self.mfma(kacc[4 * oft:4 * oft + 4], fa(k - 1, oft), fb(k - 1), 0 if k == 1 else kacc[4 * oft:4 * oft + 4])
        for oft in range(2):
            self.mfma(kacc[4 * oft:4 * oft + 4], fa(3, oft), fb(3), kacc[4 * oft:4 * oft + 4])
        self.fine(3, 6)
        QF = [ft for ft in range(2) if ft not in self.b_tiles()]
        QL = 6 // len(QF)
        def qw(ks, ft): return self.wf(len(QF) * (ks % QL) + QF.index(ft))
        for ks in range(QL // 3):
            for ft in QF:
                for f in self.qa_read(qw(ks, ft), ft, ks): f()
        kvp = V(188, 4)
        def pack():
            self.cvt(kvp, kacc)
            I("v_and_b32", kvp[3], "0xffff", kvp[3])
            I("v_or_b32", kvp[3], self.sTag, kvp[3])
        I("s_cmp_eq_u32", T[2], 1)
        I("s_cbranch_scc1", give)
        a.label(take)
        a.raw("    s_waitcnt vmcnt(0)")
        a.pos += 1
        I("v_xor_b32", lo, self.sTag, oth[3])
        I("v_and_b32", lo, lo, self.vKVm)
        I("v_cmp_lt_u32", VCC, "0xffff", lo)
        I("s_cbranch_vccnz", take + "r")
        self.mfma(kacc[0:4], self.aSel[2:6], oth, kacc[0:4])
        self.mfma(kacc[4:8], self.aSel[0:4], oth, kacc[4:8])
        pack()
        I("buffer_store_dwordx4", kvp, self.vKVo, self.sWS, self.sKVst, mods="offen sc1")
        a.label(kept)
        def handover():
            b = self.a
            b.label(take + "r")
            b.I("s_sub_u32", self.sBudget, self.sBudget, 1)
            b.I("s_cbranch_scc1", "L_end")
            fetch()
            b.I("s_branch", take)
            b.label(give)
            b.nop(8)
            pack()
            b.I("s_cmp_eq_u32", self.sMode, 0)
            b.I("s_cbranch_scc1", far)
            b.I("buffer_store_dwordx4", kvp, self.vKVo, self.sWS, sX, mods="offen")
            b.I("s_branch", kept)
            b.label(far)
            b.I("buffer_store_dwordx4", kvp, self.vKVo, self.sWS, sX, mods="offen sc1")
            b.I("s_branch", kept)
        self.tail.append(handover)
        self.stamp()
        sO = [S(8 + k) for k in range(8)]
        def gf(p): return A(4 * p, 4)
        for ks in range(QL // 3, QL):
            for ft in QF:
                for f in self.qa_read(qw(ks, ft), ft, ks): f()
        NP = 8
        sr = [(0, "v", lambda: I("v_add_u32", real, self.sKVld, self.vKVp))]
        sr += [(1, "v", lambda p=p: I("v_readlane_b32", sO[p], real, p)) for p in range(NP)]
        mf, sw = [], []
        for ks in range(14):
            for ft in QF:
                for t in range(2):
                    mf.append((self.acc(t, ft), qw(ks, ft), self.xf(t, ks), 0 if ks == 0 else self.acc(t, ft)))
                if ks + QL < 14: sw += [(len(mf) - 1, "v", f) for f in self.qa_read(qw(ks, ft), ft, ks + QL)]
        sd = [(4 + k, kind, f) for k, (kind, f) in enumerate(self.pw_dma(self.sWOB, range(8)))]
        for f in self.sched(mf, [sw, sr, sd]): f()
        self.colsum_b_q2()
        def gload(p): I("buffer_load_dwordx4", gf(p), self.vKVo, self.sWS, sO[p], mods="offen sc1")
        for t in (1, 0): self.conv(qf[t], t, 0, self.cB, (None, None))
        self.phi(qf, ph, extra=[lambda: None] * self.opt.get("ung", 6) + [lambda p=p: gload(p) for p in range(NP)])
        self.stamp()
        red = V(176, 8)
        tg = [V(112 + k) for k in range(NP)]
        go, slow = self.lab("ggo"), self.lab("gslow")
        I("s_mov_b32", T[2], 0)
        a.label(go)
        self.it_b = T[2]
        self.b_to_a(range(7))
        I("s_mov_b32", T[2], 9)
        I("v_add_u32", exw, L_KVX - L_EXK, self.vKrd)
        I("v_add_u32", V(221), L_KVX, self.vL16)
        def tag_ops():
            out = []
            for p in range(NP):
                out.append((2 * p, "v", lambda p=p: I("v_accvgpr_read_b32", tg[p], gf(p)[3])))
                if p == 1:
                    out.append((2 * p, "v", lambda: I("v_min_u32", lo, tg[0], tg[1])))
                    out.append((2 * p, "v", lambda: I("v_max_u32", hi, tg[0], tg[1])))
                elif p & 1:
                    out.append((2 * p, "v", lambda p=p: I("v_min3_u32", lo, lo, tg[p - 1], tg[p])))
                    out.append((2 * p, "v", lambda p=p: I("v_max3_u32", hi, hi, tg[p - 1], tg[p])))
            return out
        def verdict():
            I("v_xor_b32", lo, self.sTag, lo)
            I("v_xor_b32", hi, self.sTag, hi)
            I("v_or_b32", lo, lo, hi)
            I("v_and_b32", lo, lo, self.vKVm)
            I("v_cmp_lt_u32", VCC, "0xffff", lo)
            I("s_cbranch_vccnz", slow)
        mf = []
        for p in range(NP):
            mf.append((red[0:4], self.aSel[2:6], gf(p), 0 if p == 0 else red[0:4]))
            mf.append((red[4:8], self.aSel[0:4], gf(p), 0 if p == 0 else red[4:8]))
        for f in self.sched(mf, [tag_ops()]): f()
        verdict()

        def tail():
            b = self.a
            b.label(slow)
            b.I("s_sub_u32", self.sBudget, self.sBudget, 1)
            b.I("s_cbranch_scc1", "L_end")
            for p in range(NP): gload(p)
            if self.opt.get("rchk", 0):
                for _, _, f in tag_ops(): f()
                verdict()
            b.I("s_branch", go)
        self.tail.append(tail)
        self.stamp()
        kvs = V(112, 4)
        self.cvt(kvs, red)
        I("ds_write_b128", exw, kvs)
        a.wait(lg=0)
        I("s_barrier")
        kvf = [[A(0, 4), A(4, 4)], [A(8, 4), A(12, 4)]]
        zf = [A(16, 4), A(20, 4)]
        for s in range(2):
            I("ds_read_b128", zf[s], self.vZ, mods=f"offset:{2048 * s}")
            for dt in range(2):
                I("ds_read_b128", kvf[s][dt], V(221), mods=f"offset:{(2 * s + dt) * 1024}")
        o = [V(144, 8), V(152, 8)]
        dn = [V(160, 4), V(164, 4)]
        mf = []
        for s in range(2):
            for t in range(2): mf.append((dn[t], zf[s], ph[t][s], 0 if s == 0 else dn[t]))
            for t in range(2):
                for dt in range(2):
                    mf.append((o[t][4 * dt:4 * dt + 4], kvf[s][dt], ph[t][s], 0 if s == 0 else o[t][4 * dt:4 * dt + 4]))
        self.sched(mf, [])
        I("s_mov_b32", self.sPhase, 0)
        I("s_mov_b64", self.sPWc[0:2], self.sWOB[0:2])
        I("s_add_u32", self.sIt, self.sIt, 1)
        I("s_add_u32", self.sKVst, self.sKVst, 0x100000)
        I("s_add_u32", self.sKVld, self.sKVld, 0x100000)
        I("s_add_u32", self.sHX, self.sHX, 0x40000)
        for t in range(2): I("v_add_f32", dn[t][0], f32(1e-6), dn[t][0])
        if self.opt.get("wb"):
            skipw = self.lab("nowb")
            I("s_cmp_eq_u32", self.sIt, 2)
            I("s_cselect_b32", T[0], self.sC, 0)
            I("s_cmp_lg_u32", T[0], 7)
            I("s_cbranch_scc1", skipw)
            I("buffer_wbl2", mods="sc1", untracked=True)
            a.label(skipw)
        self.it_b = 1
        self.o_finish(o, dn, [V(116, 4), V(120, 4)], lambda: self.b_to_a(range(7, 14)), None)
        a.flush()
        I("s_branch", "L_p")

    def final(self):
        a, I = self.a, self.I
        T = self.sT
        a.label("L_final")
        a.raw("@VISIT")
        a.forget_counters()
        xo = V(112, 8)
        for n in range(4):
            self.cvt(xo[2 * n:2 * n + 2], self.vR[4 * n:4 * n + 4])
            I("ds_write_b64", V(132 + n), xo[2 * n:2 * n + 2])
        a.wait(lg=0)
        for b in range(2): I("ds_read_b128", V(124 + 4 * b, 4), V(120), mods=f"offset:{1024 * b}")
        for b in range(2): I("buffer_store_dwordx4", V(124 + 4 * b, 4), self.vX0d, self.sOUT, T[2] if b else self.sX0o, mods="offen" + ("", " sc1", " nt", " sc0 sc1")[self.opt.get("outfl", 0)])
        a.label("L_fin2")
        self.stamp()
        if self.opt.get("stamps"):
            I("s_mov_b32", T[7], 63)
            self.stamp(real=True)
            I("s_lshl_b32", T[0], S(2), 2)
            I("s_add_u32", T[0], T[0], self.sW)
            I("s_lshl_b32", T[0], T[0], 8)
            I("s_add_u32", T[0], T[0], WS_STAMP)
            I("v_lshrrev_b32", V(120), 2, self.vL16)
            if self.opt.get("fine") == 5:
                for k in range(7):
                    I("v_readlane_b32", T[1], V(240), k)
                    I("v_writelane_b32", self.vStamp, T[1], 40 + k)
                I("v_readlane_b32", T[1], V(240), 63)
                I("v_writelane_b32", self.vStamp, T[1], 62)
                I("v_readlane_b32", T[1], self.vStamp, 2)
                I("v_writelane_b32", self.vStamp, T[1], 47)
            I("buffer_store_dword", self.vStamp, V(120), self.sWS, T[0], mods="offen")
        I("s_or_b32", T[0], S(2), self.sW)
        I("s_cmp_lg_u32", T[0], 0)
        I("s_cbranch_scc1", "L_end")
        if self.opt.get("dbg"):
            I("s_load_dwordx2", S(8, 2), S(0, 2), 64)
            a.wait(lg=0)
            self.srd(S(12, 4), S(8, 2), 256)
            I("v_lshrrev_b32", V(120), 2, self.vL16)
            I("v_readlane_b32", T[0], self.vStamp, 0)
            I("v_readlane_b32", T[1], self.vStamp, 62)
            I("v_readlane_b32", T[2], self.vStamp, 63)
            I("s_sub_u32", T[1], T[2], T[1])
            I("v_subrev_u32", V(121), T[0], self.vStamp)
            I("v_writelane_b32", V(121), T[1], 0)
            I("v_readlane_b32", T[0], V(121), 32)
            I("v_writelane_b32", V(121), T[0], 15)
            I("buffer_store_dword", V(121), V(120), S(12, 4), 0, mods="offen")
        if self.opt.get("leak"):
            skip = self.lab("noleak")
            I("v_readlane_b32", T[1], self.vStamp, 62)
            I("v_readlane_b32", T[2], self.vStamp, 63)
            I("v_readlane_b32", T[3], self.vStamp, self.opt.get("leakidx", 0))
            I("v_readlane_b32", T[4], self.vStamp, 0)
            I("s_sub_u32", T[1], T[2], T[1])
            I("s_sub_u32", T[3], T[3], T[4])
            I("s_cmp_lt_u32", T[3] if self.opt.get("leakidx") else T[1], self.opt["leak"])
            I("s_cbranch_scc1", skip)
            I("s_cmp_eq_u32", self.sMode, 0)
            I("s_cbranch_scc1", skip)
            I("v_cvt_f32_u32", V(121), T[3] if self.opt.get("leakidx") else T[1])
            I("v_lshrrev_b32", V(121), 16, V(121))
            a.wait(vm=0)
            I("s_mov_b64", EXEC, 1)
            I("buffer_store_short", V(121), OFF, self.sOUT, 0)
            a.label(skip)
        I("s_add_u32", T[0], self.sNonce, "0x10100")
        I("v_mov_b32", V(120), T[0])
        I("s_mov_b64", EXEC, 1)
        I("buffer_store_dword", V(120), OFF, self.sWS, 0)
        I("s_endpgm")

    def place_visits(self, head, lines):
        import subprocess, re
        if not self.opt.get("visit", 0):
            return "\n".join(l for l in lines if l != "@VISIT") + "\n"
        lines = list(lines)
        def render(ls):
            n = sum(l == "@VISIT" for l in ls)
            out, k = [], 0
            for l in ls:
                if l == "@VISIT":
                    out += [f"L_visit_{k}:", "    s_cbranch_execz " + (f"L_visit_{k + 3}" if k + 3 < n else "L_visit_ret")]
                    k += 1
                else: out.append(l)
            return "\n".join(out) + "\n"
        start = lines.index("L_qa1:")
        lines.insert(start + 1, "@VISIT")
        page = 1
        while True:
            open("visit.s", "w").write(head + render(lines))
            subprocess.run(["clang", "-x", "assembler", "-target", "amdgcn-amd-amdhsa", "-mcpu=gfx950", "-c", "visit.s", "-o", "visit.o"], check=True)
            dis = subprocess.run(["llvm-objdump", "-d", "--mcpu=gfx950", "visit.o"], capture_output=True, text=True).stdout
            base = int(re.search(r"([0-9a-f]+) <L_(?:qa1|visit_0)>:", dis).group(1), 16)
            addrs = [int(m.group(1), 16) for m in re.finditer(r"// ([0-9A-F]+):", dis)]
            addrs = [x for x in addrs if x >= base]
            idx = [i for i in range(start, len(lines)) if lines[i] == "@VISIT" or (lines[i].startswith("    ") and not lines[i].startswith("    ;"))]
            assert len(addrs) == len(idx), (len(addrs), len(idx))
            hit = [k for k, x in enumerate(addrs) if x >= base + 4096 * page]
            if not hit: break
            k = hit[0]
            if lines[idx[k]] != "@VISIT": lines.insert(idx[k], "@VISIT")
            page += 1
        return render(lines)

    def build(self):
        a = self.a
        self.prologue()
        self.qa_stage(first=True)
        self.p_stage()
        self.qa_stage()
        self.qb_stage()
        self.final()
        done = 0
        while done < len(self.tail):
            a.forget_counters()
            a.pos += 100
            self.tail[done]()
            done += 1
        a.label("L_end")
        a.I("s_endpgm")
        head = open("cdna_kernels/" + NAME[:-7] + ".s.ref").read().split("; Override launch")[0]
        out = head + f"; @launch grid=(256,1,1) block=(256,1,1) lds={LDS_BYTES}\n"
        out += DOC
        lead = ".p2align 12\n" + (f".fill {self.opt['epad'] // 4}, 4, 0xbf800000\n" if self.opt.get("epad") else "")
        out += f'.amdgcn_target "amdgcn-amd-amdhsa--gfx950"\n.text\n.globl {NAME}\n{lead}.p2align 8\n.type {NAME},@function\n{NAME}:\n'
        out += self.place_visits(out, a.lines)
        out += f""".section .rodata,"a"
.p2align 6
.amdhsa_kernel {NAME}
  .amdhsa_next_free_vgpr 512
  .amdhsa_next_free_sgpr 102
  .amdhsa_accum_offset 256
  .amdhsa_group_segment_fixed_size 0
  .amdhsa_kernarg_size 80
  .amdhsa_user_sgpr_count 2
  .amdhsa_user_sgpr_kernarg_segment_ptr 1
  .amdhsa_system_sgpr_workgroup_id_x 1
.end_amdhsa_kernel
"""
        return out


if __name__ == "__main__":
    opt = {}
    path = sys.argv[1]
    for kv in sys.argv[2:]:
        k, v = kv.split("=")
        opt[k] = int(v)
    g = Gen(opt)
    open(path, "w").write(g.build())
    import subprocess
    r = subprocess.run(["clang", "-x", "assembler", "-target", "amdgcn-amd-amdhsa", "-mcpu=gfx950", "-c", path, "-o", "gen_check.o"], capture_output=True, text=True)
    if r.returncode: print(r.stderr[:3000]); sys.exit(1)
    sz = subprocess.run(["llvm-readelf", "-S", "gen_check.o"], capture_output=True, text=True).stdout
    print("text bytes", [int(l.split()[6], 16) for l in sz.splitlines() if " .text" in l],
          "instructions", sum(g.a.count.values()), "nop states", g.a.nops)
```

```python
class Reg:
    def __init__(self, kind, n, cnt=1):
        self.kind, self.n, self.cnt = kind, n, cnt
        if kind in "va" and cnt > 1:
            assert n % 2 == 0, f"odd tuple {kind}{n}x{cnt}"
        if kind == "s" and cnt == 2:
            assert n % 2 == 0
        if kind == "s" and cnt >= 4:
            assert n % 4 == 0
        assert n + cnt <= (102 if kind == "s" else 256), f"{kind}{n}+{cnt}"

    def __str__(self):
        return f"{self.kind}{self.n}" if self.cnt == 1 else f"{self.kind}[{self.n}:{self.n + self.cnt - 1}]"

    def regs(self):
        return [(self.kind, self.n + i) for i in range(self.cnt)]

    def __getitem__(self, k):
        if isinstance(k, slice):
            a = k.start or 0
            b = self.cnt if k.stop is None else k.stop
            assert 0 <= a < b <= self.cnt
            return Reg(self.kind, self.n + a, b - a)
        assert 0 <= k < self.cnt
        return Reg(self.kind, self.n + k, 1)


def V(n, c=1): return Reg("v", n, c)
def A(n, c=1): return Reg("a", n, c)
def S(n, c=1): return Reg("s", n, c)


class Special:
    def __init__(self, name, regs): self.name, self._r = name, regs
    def __str__(self): return self.name
    def regs(self): return self._r


VCC = Special("vcc", [("s", "vcc")])
EXEC = Special("exec", [("s", "exec")])
M0 = Special("m0", [("s", "m0")])
OFF = Special("off", [])

TRANS = ("v_exp_", "v_log_", "v_rcp_", "v_rsq_", "v_sqrt_", "v_sin_", "v_cos_")
NODEF_S = ("s_cmp", "s_waitcnt", "s_barrier", "s_branch", "s_cbranch", "s_nop", "s_endpgm", "s_setprio", "s_sleep", "s_bitcmp")


def regs_of(x):
    return x.regs() if hasattr(x, "regs") else []


class Asm:
    def __init__(self):
        self.lines = []
        self.pos = 0
        self.w_valu = {}
        self.w_trans = {}
        self.w_mfma = {}
        self.r_mfmac = {}
        self.w_vsgpr = {}
        self.w_m0 = -99
        self.m0_owner = None
        self.vm_all = []
        self.w_dot = {}
        self.r_store = {}
        self.vm = []
        self.lg = []
        self.smem = set()
        self.nops = 0
        self.count = {}

    def raw(self, text):
        self.lines.append(text)

    def comment(self, text):
        self.lines.append("    ; " + text)

    def _out(self, text, states=1):
        self.lines.append("    " + text)
        self.pos += states

    def nop(self, n):
        while n > 0:
            k = min(n, 16)
            self._out(f"s_nop {k - 1}", k)
            self.nops += k
            n -= k

    def wait(self, vm=None, lg=None):
        parts = []
        if vm is not None:
            assert vm <= 63
            parts.append(f"vmcnt({vm})")
            self.vm = self.vm[len(self.vm) - vm:] if vm > 0 else []
        if lg is not None:
            lg = min(lg, 15)
            parts.append(f"lgkmcnt({lg})")
            if lg == 0:
                self.smem = set()
            self.lg = self.lg[len(self.lg) - lg:] if lg > 0 else []
        self._out("s_waitcnt " + " ".join(parts))

    def wait_vm_tag(self, tag):
        idx = [i for i, (t, _) in enumerate(self.vm) if t == tag]
        if idx:
            self.wait(vm=len(self.vm) - 1 - idx[-1])

    def wait_shadow(self, tag):
        if tag not in self.vm_all: return
        n = len(self.vm_all) - 1 - max(i for i, t in enumerate(self.vm_all) if t == tag)
        assert n <= 63
        self._out(f"s_waitcnt vmcnt({n})")

    def wait_lg_all(self):
        if self.lg or self.smem:
            self.wait(lg=0)

    def prewait(self, *operands):
        n = len(self.lines)
        r = []
        for o in operands: r += regs_of(o)
        self._need_waits(r)
        return len(self.lines) != n

    def _need_waits(self, touched):
        t = set(touched)
        vm = lg = None
        for i in range(len(self.vm) - 1, -1, -1):
            if self.vm[i][1] & t:
                vm = len(self.vm) - 1 - i
                break
        if self.smem & t:
            lg = 0
        else:
            for i in range(len(self.lg) - 1, -1, -1):
                if self.lg[i][1] & t:
                    lg = 0 if self.smem else len(self.lg) - 1 - i
                    break
        if vm is not None or lg is not None:
            self.wait(vm, lg)

    def flush(self):
        need = 0
        for d, n in ((self.w_valu, 2), (self.w_trans, 1), (self.r_mfmac, 3), (self.w_vsgpr, 5), (self.r_store, 2)):
            for p in d.values():
                need = max(need, n - (self.pos - p - 1))
        for p, _ in self.w_mfma.values():
            need = max(need, 8 - (self.pos - p - 1))
        for p, _ in self.w_dot.values():
            need = max(need, 3 - (self.pos - p - 1))
        need = max(need, 1 - (self.pos - self.w_m0 - 1))
        if need > 0:
            self.nop(need)

    def label(self, name):
        self.lines.append(name + ":")

    def forget_counters(self):
        self.vm, self.lg, self.smem = [], [], set()

    def I(self, op, *ops, mods="", tag=None, untracked=False, nodest=False, m0=None, shadow=False):
        self.count[op] = self.count.get(op, 0) + 1
        defs, uses, ab, cc = [], [], [], []
        is_v = op.startswith("v_")
        is_mfma = op.startswith("v_mfma")
        is_valu = is_v and not is_mfma
        is_buf = op.startswith("buffer_") or op.startswith("global_")
        is_ds = op.startswith("ds_")
        lds_dma = is_buf and " lds" in (" " + mods)
        is_load = (is_buf and "_load" in op and not lds_dma) or (is_ds and ("_read" in op or "permute" in op))
        is_smem = op.startswith("s_load") or op.startswith("s_memtime") or op.startswith("s_memrealtime")
        if is_mfma:
            defs = regs_of(ops[0]); ab = regs_of(ops[1]) + regs_of(ops[2]); cc = regs_of(ops[3]); uses = ab + cc
        elif "permlane" in op:
            defs = regs_of(ops[0]) + regs_of(ops[1]); uses = list(defs)
        elif is_valu:
            defs = regs_of(ops[0])
            for o in ops[1:]: uses += regs_of(o)
            if op.startswith(("v_fmac", "v_dot2c", "v_pk_fmac", "v_writelane")): uses += defs
        elif is_load:
            defs = regs_of(ops[0])
            for o in ops[1:]: uses += regs_of(o)
        elif is_buf or is_ds:
            for o in ops: uses += regs_of(o)
            if lds_dma: uses += [("s", "m0")]
        elif op.startswith(NODEF_S):
            for o in ops: uses += regs_of(o)
        else:
            defs = regs_of(ops[0])
            for o in ops[1:]: uses += regs_of(o)
            if op in ("s_addk_i32", "s_mulk_i32"): uses += defs

        if m0 is not None:
            if lds_dma: assert self.m0_owner == m0, f"M0 set by {self.m0_owner}, used by {m0}"
            else: self.m0_owner = m0
        self._need_waits(defs + uses)

        need = 0
        def req(p, n):
            nonlocal need
            need = max(need, n - (self.pos - p - 1))
        dtuple = tuple(defs)
        for r in uses:
            if r in self.w_valu:
                p = self.w_valu[r]
                if is_mfma or "permlane" in op or "dpp" in op or "dpp" in mods or "row_" in mods: req(p, 2)
                if op.startswith(("v_readfirstlane", "v_readlane")): req(p, 1)
            if r in self.w_trans and is_v: req(self.w_trans[r], 1)
            if r in self.w_mfma:
                p, d = self.w_mfma[r]
                if is_mfma:
                    if r in ab: req(p, 8)
                    elif tuple(cc) != d: req(p, 6)
                else:
                    req(p, 8)
            if r in self.w_vsgpr:
                p = self.w_vsgpr[r]
                if is_v: req(p, 2)
                elif is_buf: req(p, 5)
                else: req(p, 1)
            if r == ("s", "m0") and lds_dma: req(self.w_m0, 1)
            if r in self.w_dot and not (self.w_dot[r][1] == op and r in regs_of(ops[-1]) and r not in regs_of(ops[1]) + regs_of(ops[2])): req(self.w_dot[r][0], 3)
        for r in defs:
            if r in self.w_mfma and not is_mfma: req(self.w_mfma[r][0], 8)
            if r in self.w_mfma and is_mfma and self.w_mfma[r][1] != tuple(cc): req(self.w_mfma[r][0], 6)
            if r in self.r_mfmac and is_valu: req(self.r_mfmac[r], 3)
            if r in self.r_store: req(self.r_store[r], 2 if is_valu else 1)
            if r in self.w_dot and self.w_dot[r][1] != op: req(self.w_dot[r][0], 3)
        if need > 0:
            self.nop(need)

        if is_buf:
            assert len(self.vm) < 63, "vmcnt overflow"
        if is_ds and len(self.lg) >= 15:
            self.wait(lg=0 if self.smem else 14)

        p = self.pos
        text = op + (" " + ", ".join(str(o) for o in ops) if ops else "") + (" " + mods if mods else "")
        self._out(text)

        for r in defs:
            for d in (self.w_valu, self.w_trans, self.w_mfma, self.w_vsgpr, self.w_dot):
                d.pop(r, None)
        if is_mfma:
            for r in defs: self.w_mfma[r] = (p, dtuple)
            for r in cc: self.r_mfmac[r] = p
        elif is_valu:
            for r in defs:
                if r[0] == "s": self.w_vsgpr[r] = p
                else:
                    self.w_valu[r] = p
                    if op.startswith(TRANS): self.w_trans[r] = p
                    if op.startswith("v_dot"): self.w_dot[r] = (p, op)
        if ("s", "m0") in defs and not is_v: self.w_m0 = p
        if is_buf:
            if not untracked: self.vm.append((tag, set() if nodest else set(defs)))
            if shadow or not untracked: self.vm_all.append(tag)
            if "_store" in op and ("x3" in op or "x4" in op):
                data = ops[0] if op.startswith("buffer_") else ops[1]
                for r in regs_of(data): self.r_store[r] = p
        if is_ds: self.lg.append((tag, set(defs)))
        if is_smem: self.smem |= set(defs)

    def text(self):
        return "\n".join(self.lines) + "\n"
```

```python
import sys
import math
import struct
from emit import Asm, V, A, S, VCC, EXEC, M0, OFF, Special

VCC_LO = Special("vcc_lo", [("s", "vcc")])
VCC_HI = Special("vcc_hi", [("s", "vcc")])

NAME = "interleave_layers__sliding_local_dilated__linear_kernel_hedgehog__prompt_kernel"


def f32(x):
    return "0x%08x" % struct.unpack("<I", struct.pack("<f", x))[0]


WS_E = 0x0
WS_FX = 0x1000
WS_FO = 0x5000
WS_SLOW = 0x8000
WS_FH = 0x10000
WS_HELLO = 0x11000
WS_FWF = 0x12000
WS_STAMP = 0xC0000
WS_X = 0x100000
WS_XS = 0x2C0000
WS_O = 0x300000
WS_KV = 0x500000
WS_HX = 0x700000
WS_FW = 0x800000
FW_T = 16 * 86016
WS_SIZE = 0xB00000
OOB = 0x7FFF0000

MAT = 28672
L_PW = 86016
L_SP = 151552
L_KVX = L_SP
L_HX = L_SP
L_WPHI = L_SP + 8192
L_CS = L_SP + 10240
L_EXK = L_PW + 32768
L_EXV = L_EXK + 5120
L_PH = L_PW + 32768
LDS_BYTES = 163840

LOG2E = math.log2(math.e)

DOC = '''; One persistent launch, one workgroup per CU. Tokens are reordered by parity into 16 groups of 128; workgroup
'''


class Neg:
    def __init__(self, r): self.r = r
    def __str__(self): return "-" + str(self.r)
    def regs(self): return self.r.regs()


class Gen:
    def __init__(self, opt):
        self.opt = opt
        self.a = Asm()
        self.tail = []
        self.uid = 0
        self.cs_done = False
        self.look = opt.get("el0", 99) < 14 or opt.get("ov", 14) < 14

    def lab(self, base):
        self.uid += 1
        return f"L_{base}_{self.uid}"

    sX0, sWA, sWOA, sWB, sWOB, sOUT, sWS, sWP = (S(24 + 4 * i, 4) for i in range(8))
    (sGrp, sH, sW, sC, sRh, sBase, sTag, sMode, sIt, sPhase, sL, sBudget, sXq, sXSq, sOq, sXp, sXSp, sOp, sFXp, sFOq,
     sFOp, sHX, sHaloProd, sFHp, sKVst, sKVld, sQWo, sFirst, sPend, sX0o, sNonce, sXcc) = (S(56 + i) for i in range(32))
    sPWc = sX0
    sT = [S(88 + i) for i in range(8)]
    sT2 = S(96, 2)
    sStamp = S(98, 2)
    sFW, sQWl, sPWl, sPWo = S(4), S(5), S(6), S(7)

    vL16, vQ0, vQ1, vO0, vO1, vQh = (V(1 + i) for i in range(6))
    vP = [V(7 + i) for i in range(4)]
    vQWd, vX0d, vExpHC, vPollQ, vPollM, vPollP, vEXW, vEXRa, vHW, vM3, vStat = (V(11 + i) for i in range(11))
    vE0 = V(22, 2)
    vHalo, vHaloS, vStatSt, vZ, vExpHM, vExpC, vExpM, vMH = (V(24 + i) for i in range(8))
    vCH = V(32, 4)
    bCur, bPrev, bPrev0 = V(36, 4), V(40, 4), V(44, 4)
    vR = V(48, 16)
    cA, cB = V(64, 24), V(88, 24)
    vAv, vHp, vQS = V(240), V(243), V(244)
    vDummy = V(245)
    vPWd, vKVo, vKVm, vKVp = (V(246 + i) for i in range(4))
    vKA, vKB, vPollH, vKrd, vStamp = (V(250 + i) for i in range(5))
    vT = V(255)

    aOnes, aSel, aWphi = A(232, 4), A(236, 6), A(242, 8)

    def acc(self, T, ft): return V(112 + (T * 6 + ft) * 4, 4)
    hacc = V(160, 4)
    def straw(self, T): return V(164 + 4 * T, 4)
    def st(self, T): return V(176 + 4 * T, 4)
    def xf(self, T, ks): return A((ks * 2 + T) * 4, 4)
    def hx(self, ks): return A(56 + 4 * ks, 4) if ks < 12 else self.wf(ks - 6)
    def stash(self, i): return A(112 + 4 * i, 4) if i < 14 else A(200 + 4 * (i - 14), 4)
    def wf(self, f): return A(168 + 4 * f, 4)

    def I(self, *x, **k): self.a.I(*x, **k)

    def stamp(self, real=False):
        if not self.opt.get("stamps") or (self.opt.get("stamps") == 2 and not real):
            return
        a = self.a
        a.I("s_memrealtime" if real or self.opt.get("real") else "s_memtime", self.sStamp)
        a.I("s_mov_b32", M0, self.sT[7])
        a.wait(lg=0)
        a.I("v_writelane_b32", self.vStamp, self.sStamp[0], M0)
        a.I("s_add_u32", self.sT[7], self.sT[7], 1)
        if getattr(self, "fine_pending", False):
            self.fine_pending = False
            for i in range(7): a.I("v_writelane_b32", self.vStamp, S(8 + 2 * i), 40 + i)
            a.I("v_writelane_b32", self.vStamp, self.sStamp[0], 47)

    def fine(self, region, i):
        if self.opt.get("fine") == region and region == 5:
            self.a.raw("    s_memtime s[100:101]")
            self.a.raw("    s_waitcnt lgkmcnt(0)")
            self.a.raw(f"    v_writelane_b32 v240, s100, {i}")
            self.a.pos += 3
            return
        if self.opt.get("fine") == region:
            self.a.raw(f"    s_memtime s[{8 + 2 * i}:{9 + 2 * i}]")
            self.a.pos += 1
            self.fine_pending = True

    def srd(self, dst, src, nbytes):
        self.I("s_mov_b32", dst[0], src[0])
        self.I("s_and_b32", dst[1], src[1], "0xffff")
        self.I("s_mov_b32", dst[2], nbytes)
        self.I("s_mov_b32", dst[3], "0x20000")

    def mfma(self, d, x, y, c):
        self.I("v_mfma_f32_16x16x32_bf16", d, x, y, c)

    def pk(self, op, d, x, y, z=None, bx=None, by=None, bz=None):
        srcs = [(x, bx), (y, by)] + ([(z, bz)] if z is not None else [])
        lo = [0 if b is None else b for _, b in srcs]
        hi = [1 if b is None else b for _, b in srcs]
        mods = []
        if any(lo): mods.append("op_sel:[%s]" % ",".join(map(str, lo)))
        if not all(hi): mods.append("op_sel_hi:[%s]" % ",".join(map(str, hi)))
        self.I(op, d, *[s for s, _ in srcs], mods=" ".join(mods))

    def allreduce_pairs(self, chains):
        for step in range(7):
            for op, x, y in chains:
                if step in (0, 6): self.I("v_permlane32_swap_b32", x, y)
                elif step in (1, 4): self.I(op, x, x, y)
                elif step in (2, 5): self.I("v_mov_b32", y, x)
                else: self.I("v_permlane16_swap_b32", x, y)

    def budget_branch(self, loop):
        if self.opt.get("psleep"): self.I("s_sleep", self.opt["psleep"])
        self.I("s_sub_u32", self.sBudget, self.sBudget, 1)
        self.I("s_cbranch_scc1", "L_end")
        self.I("s_branch", loop)

    def flag_value(self, dst):
        self.I("s_lshl_b32", dst, self.sL, 4)
        self.I("s_or_b32", dst, dst, self.sBase)

    def publish(self, soff):
        a = self.a
        slow, done = self.lab("pubslow"), self.lab("pubdone")
        a.I("s_cmp_eq_u32", self.sMode, 0)
        a.I("s_cbranch_scc1", slow)
        a.I("s_mov_b64", EXEC, 1)
        a.I("buffer_store_dword", self.vT, OFF, self.sWS, soff)
        a.label(done)
        a.I("s_mov_b64", EXEC, -1)

        def tail():
            b = self.a
            b.label(slow)
            b.wait(vm=0)
            b.I("buffer_wbl2", mods="sc1")
            b.wait(vm=0)
            b.I("s_mov_b64", EXEC, 1)
            b.I("buffer_store_dword", self.vT, OFF, self.sWS, soff, mods="sc1")
            b.I("s_branch", done)
        self.tail.append(tail)

    def sched(self, mfmas, streams):
        a = self.a
        streams = [list(s) for s in streams]
        for i, m in enumerate(mfmas):
            self.mfma(*m)
            scalar_free = True
            if i + 1 < len(mfmas):
                n = mfmas[i + 1]
                if a.prewait(n[1], n[2]): scalar_free = False
            if scalar_free:
                for s in streams:
                    if s and s[0][0] <= i and s[0][1] == "s":
                        s.pop(0)[2]()
                        break
            slots = 2
            progress = True
            while slots > 0 and progress:
                progress = False
                for s in streams:
                    if not s or s[0][0] > i: continue
                    cost = 2 if s[0][1] == "w" else 1
                    if cost <= slots:
                        s.pop(0)[2]()
                        slots -= cost
                        progress = True
                        break
        return [it[2] for s in streams for it in s]

    def fw_piece(self, n):
        off = (n // 7) * MAT + (n % 7) * 1024
        self.I("s_add_u32", M0, self.sQWl, off, m0="fw")
        self.I("s_add_u32", self.sT[6], self.sFW, off)
        self.I("buffer_load_dwordx4", self.vL16, self.sWS, self.sT[6], mods="offen lds", untracked=True, m0="fw")

    def piece(self, n):
        n = (n + 7) % 21
        return f"offset:{(n // 7) * MAT + (n % 7) * 1024}"

    def unpark(self, pieces):
        for n in pieces: self.I("ds_write_b128", self.vQS, self.stash(n), mods=self.piece(n))

    def mid_exchange(self, back):
        four = self.lab("mx4")
        self.I("s_cmp_eq_u32", self.sL, 4)
        self.I("s_cbranch_scc1", four)
        self.it_b = None
        self.b_to_a(range(14, 14 + self.opt.get("mx", 4)))
        self.I("s_branch", back)
        self.a.label(four)
        self.a.forget_counters()
        self.unpark(range(14, 14 + self.opt.get("mu", 7)))
        self.I("s_branch", back)

    def qb_shadow(self):
        a, I = self.a, self.I
        second, done = self.lab("ab2"), self.lab("abdone")
        I("s_cmp_lg_u32", self.sIt, 0)
        I("s_cbranch_scc1", second)
        now = [] if self.opt.get("qlate", 0) else self.fw_left
        for n in now: self.fw_piece(n)
        a.raw(f"    s_waitcnt vmcnt({1 + len(now)})")
        a.pos += 1
        I("s_barrier")
        I("s_lshl_b32", self.sT[0], self.sW, 6)
        self.colsum_part(self.vQh, list(range(14)), 128)
        a.wait_lg_all()
        a.flush()
        I("s_branch", done)
        a.label(second)
        self.unpark(list(range(7)) + list(range(14 + self.opt.get("mu", 7), 21)))
        a.label(done)

    def b_to_a(self, pieces):
        a, I = self.a, self.I
        done = self.lab("badone")
        if self.it_b is not None:
            I("s_cmp_lg_u32", self.sIt, self.it_b)
            I("s_cbranch_scc1", done)
        for n in pieces:
            I("ds_read_b128", self.stash(n), self.vQS, mods=self.piece(n))
            I("ds_write_b128", self.vQS, self.stash(n + 1), mods=self.piece(n))
        a.label(done)

    def pw_dma(self, srd, steps):
        out = []
        for n, k in enumerate(steps):
            if n == 0:
                out.append(("s", lambda k=k: self.I("s_add_u32", M0, self.sPWl, k * 4096, m0="pw")))
                out.append(("s", lambda k=k: self.I("s_add_u32", self.sT[5], self.sPWo, k * 32 * 896)))
            else:
                out.append(("s", lambda: self.I("s_addk_i32", M0, 4096)))
                out.append(("s", lambda: self.I("s_addk_i32", self.sT[5], 32 * 896)))
            out.append(("v", lambda: self.I("buffer_load_dwordx4", self.vPWd, srd, self.sT[5], mods="offen lds", m0="pw")))
        return out

    def raw_block(self, ks, **kw):
        for half in range(2):
            self.I("s_add_u32", M0, self.sT[4], ks * 2048 + half * 1024, m0="raw")
            self.I("s_add_u32", self.sT[6], self.sQWo, (32 * ks + 16 * half) * 2688)
            self.I("buffer_load_dwordx4", self.vQWd, self.sWA, self.sT[6], mods="offen lds", tag=f"raw{ks}", m0="raw", **kw)

    cvAd0, cvAd1, cvZad, cvWad, cvZ, cvD0, cvD1 = V(204), V(205), V(206), V(207), V(208, 2), V(232, 4), V(236, 4)

    def convert_block(self, ks):
        I = self.I
        w0, w1 = A(200, 4), A(204, 4)
        I("ds_write_b64", self.cvZad, self.cvZ, mods=f"offset:{ks * 2048}")
        for f in self.tr_pair(w0, self.cvAd0, ks * 2048) + self.tr_pair(w1, self.cvAd1, ks * 2048): f()
        self.mfma(self.cvD0, w0, self.aOnes, self.cvD0)
        self.mfma(self.cvD1, w1, self.aOnes, self.cvD1)
        I("ds_write_b128", self.cvWad, w0, mods=f"offset:{ks * 2048}")
        I("ds_write_b128", self.cvWad, w1, mods=f"offset:{ks * 2048 + 1024}")

    def cs_write(self):
        a, I, T = self.a, self.I, self.sT
        ad = self.cvAd0
        I("v_lshrrev_b32", ad, 8, self.vL16)
        I("v_lshlrev_b32", ad, 4, ad)
        I("s_lshl_b32", T[0], self.sW, 7)
        I("s_add_u32", T[0], T[0], L_CS)
        I("v_add_u32", ad, T[0], ad)
        I("s_mov_b32", self.sT2[0], "0x00010001")
        I("s_mov_b32", self.sT2[1], "0x00010001")
        a.flush()
        I("s_mov_b64", EXEC, self.sT2)
        I("ds_write_b128", ad, self.cvD0)
        I("ds_write_b128", ad, self.cvD1, mods="offset:64")
        I("s_mov_b64", EXEC, -1)

    def tr_pair(self, dst, base, off):
        return [lambda: self.I("ds_read_b64_tr_b16", dst[0:2], base, mods=f"offset:{off}"),
                lambda: self.I("ds_read_b64_tr_b16", dst[2:4], base, mods=f"offset:{off + 1024}")]

    def qa_read(self, dst, ft, ks):
        off = (ft >> 1) * MAT + ks * 2048 + (ft & 1) * 1024
        if ft < 4: return [lambda: self.I("ds_read_b128", dst, self.vL16, mods=f"offset:{off}")]
        return [lambda: self.I("ds_read_b128", dst, self.vAv, mods=f"offset:{off - 2 * MAT}")]

    def bg(self, n=1):
        if self.bg_next >= self.bg_max: return
        skip = self.lab("bg")
        self.I("s_cmp_eq_u32", self.sW, 3)
        self.I("s_cbranch_scc1", skip)
        for _ in range(n):
            if self.bg_next < self.bg_max:
                self.raw_block(self.bg_next)
                self.bg_next += 1
        self.a.label(skip)

    def prologue(self):
        a, I = self.a, self.I
        T = self.sT
        self.bg_next, self.bg_max = 0, self.opt.get("n1", 3)
        lane, j, g, t0, t1, t2 = V(0), V(115), V(116), V(117), V(118), V(119)
        I("s_load_dwordx4", S(4, 4), S(0, 2), 0)
        I("s_getpc_b64", S(22, 2))
        a.label("L_pc")
        I("v_min_u32", V(113), self.opt.get("pf0", 47), V(0))
        I("v_lshrrev_b32", V(114), 6, V(0))
        I("v_lshlrev_b32", V(113), 7, V(113))
        I("v_readfirstlane_b32", self.sW, V(114))
        I("global_load_dword", self.vDummy, V(113), S(22, 2), mods="offset:128", untracked=True)
        if self.opt.get("stamps"):
            I("s_memrealtime", S(100, 2))
            I("s_memtime", self.sStamp)
        I("s_lshr_b32", T[1], S(2), 8)
        I("s_cbranch_scc1", "L_end")
        I("v_and_b32", lane, 63, V(0))
        I("s_and_b32", T[0], S(2), 7)
        I("s_lshr_b32", T[1], S(2), 7)
        I("s_lshl1_add_u32", self.sGrp, T[0], T[1])
        I("s_lshr_b32", T[1], S(2), 3)
        I("s_and_b32", self.sH, T[1], 15)
        I("s_and_b32", self.sC, T[1], 7)
        I("s_lshr_b32", self.sRh, self.sH, 3)
        I("s_lshl1_add_u32", T[0], self.sGrp, self.sRh)
        I("s_and_b32", T[2], T[0], 15)
        I("s_lshl_b32", T[2], T[2], 2)
        I("s_mulk_i32", T[2], 16 * 1792)
        I("s_lshr_b32", T[5], self.sGrp, 3)
        I("s_mulk_i32", T[5], 7)
        I("s_add_u32", T[5], T[5], self.sC)
        I("s_lshl_b32", T[5], T[5], 7)
        I("s_add_u32", T[2], T[2], T[5])
        I("v_lshrrev_b32", t0, 3, lane)
        I("v_and_b32", t1, 7, lane)
        I("v_mad_u32_u24", t0, t0, 112 // 2, 0)
        I("v_lshl_add_u32", t0, t0, 1, t1)
        I("v_lshlrev_b32", self.vX0d, 4, t0)
        I("v_add_u32", t2, 8 * 1792 - 1024, self.vX0d)
        I("s_mov_b32", self.sX0[2], 1835008)
        I("s_mov_b32", self.sX0[3], "0x20000")
        I("s_mov_b32", M0, L_SP)
        I("s_mov_b32", T[5], T[2])
        no3, nox = self.lab("not3"), self.lab("nox0")
        I("s_cmp_lg_u32", self.sW, 3)
        a.wait(lg=0)
        I("s_mov_b64", self.sX0[0:2], S(4, 2))
        I("s_cbranch_scc1", no3)
        I("s_cmp_eq_u32", self.sC, 7)
        I("s_cbranch_scc1", no3)
        for t in range(4):
            I("buffer_load_dwordx4", self.vX0d, self.sX0, T[5], mods="offen lds")
            I("buffer_load_dwordx4", t2, self.sX0, T[5], mods="offen offset:1024 lds")
            if t < 3:
                I("s_addk_i32", M0, 2048)
                I("s_addk_i32", T[5], 16 * 1792)
        a.label(no3)
        if self.opt.get("fine") == 5: a.raw("    v_writelane_b32 v13, s100, 63")
        self.fine(5, 0)
        I("s_load_dwordx2", S(8, 2), S(0, 2), 16)
        I("s_load_dwordx8", S(12, 8), S(0, 2), 32)
        I("s_load_dwordx2", S(20, 2), S(0, 2), 72)
        self.srd(self.sWA, S(6, 2), 1204224)
        I("s_lshl2_add_u32", T[0], T[0], self.sW)
        I("s_mul_i32", T[5], self.sW, 16 * 1792)
        I("s_add_u32", self.sX0o, T[2], T[5])
        I("s_cmp_lg_u32", self.sW, 3)
        I("s_cbranch_scc1", nox)
        I("v_min_u32", t0, 36, lane)
        I("v_lshlrev_b32", V(121), 7, t0)
        I("s_mul_i32", T[2], S(2), 37 * 128)
        I("s_min_u32", T[2], T[2], 1204224 - 37 * 128)
        I("buffer_load_dword", self.vDummy, V(121), self.sWA, T[2], mods="offen", nodest=True)
        I("s_mul_i32", T[2], T[1], 1280)
        I("v_min_u32", V(112), 9, lane)
        I("v_lshl_add_u32", V(112), V(112), 7, T[2])
        I("v_min_u32", V(112), "L_end-L_pc", V(112))
        I("global_load_dword", self.vDummy, V(112), S(22, 2), untracked=True)
        a.label(nox)
        I("v_and_b32", j, 15, lane)
        I("v_lshrrev_b32", g, 4, lane)
        I("v_lshlrev_b32", self.vL16, 4, lane)
        I("v_lshrrev_b32", t0, 2, lane)
        I("v_mul_u32_u24", t1, 2688, t0)
        I("v_lshrrev_b32", t0, 3, lane)
        I("v_and_b32", t0, 2, t0)
        I("v_and_b32", t2, 3, lane)
        I("v_xor_b32", t0, t0, t2)
        I("v_lshl_add_u32", self.vQWd, t0, 4, t1)
        I("s_mul_i32", self.sQWo, self.sH, 56)
        I("s_mul_i32", T[1], self.sW, 896)
        I("s_add_u32", self.sQWo, self.sQWo, T[1])
        I("s_mul_i32", T[4], self.sW, MAT)
        self.srd(self.sWS, S(20, 2), WS_SIZE)
        I("buffer_load_dword", V(120), OFF, self.sWS, 0, untracked=True)
        if self.opt.get("s0l", 1):
            nt = self.lab("noxt")
            I("s_cmp_eq_u32", self.sC, 7)
            I("s_cselect_b32", T[1], 0, self.sW)
            I("s_cmp_lg_u32", T[1], 3)
            I("s_cbranch_scc1", nt)
            I("s_sub_u32", T[1], T[0], 3)
            I("s_mul_i32", T[2], T[1], 14336)
            I("s_lshl_b32", T[5], self.sC, 11)
            I("s_add_u32", T[2], T[2], T[5])
            I("s_add_u32", T[2], T[2], WS_X)
            I("v_mul_u32_u24", t0, 14336, g)
            I("v_lshl_add_u32", t0, j, 7, t0)
            I("buffer_load_dword", self.vDummy, t0, self.sWS, T[2], mods="offen", untracked=True)
            I("s_lshl_b32", T[1], T[1], 10)
            I("s_lshl_b32", T[5], self.sC, 7)
            I("s_add_u32", T[1], T[1], T[5])
            I("s_add_u32", T[1], T[1], WS_XS)
            I("v_lshlrev_b32", t0, 10, g)
            I("buffer_load_dword", self.vDummy, t0, self.sWS, T[1], mods="offen", untracked=True)
            I("s_sub_u32", T[1], T[0], 3)
            I("s_lshl_b32", T[1], T[1], 7)
            I("s_add_u32", T[1], T[1], WS_FX)
            I("v_lshlrev_b32", t0, 7, g)
            I("buffer_load_dword", self.vDummy, t0, self.sWS, T[1], mods="offen", untracked=True)
            a.label(nt)
        self.bg()
        for r, p, n in ((self.sWB, 12, 1204224), (self.sWP, 14, 25088), (self.sWOA, 8, 401408),
                        (self.sWOB, 16, 401408), (self.sOUT, 18, 1835008)):
            self.srd(r, S(p, 2), n)
        I("s_getreg_b32", self.sXcc, "hwreg(HW_REG_XCC_ID)")
        I("s_and_b32", self.sXcc, self.sXcc, 15)
        I("s_lshl_b32", T[1], self.sGrp, 3)
        I("s_lshl_b32", T[2], self.sW, 1)
        I("s_add_u32", T[1], T[1], T[2])
        I("s_mul_i32", self.sXq, T[1], 14336)
        I("s_add_u32", self.sXq, self.sXq, WS_X)
        I("s_lshl_b32", self.sXSq, T[1], 10)
        I("s_add_u32", self.sXSq, self.sXSq, WS_XS)
        I("s_lshl_b32", self.sOq, T[1], 14)
        I("s_add_u32", self.sOq, self.sOq, WS_O)
        I("s_lshl_b32", T[3], T[1], 7)
        I("s_add_u32", T[3], T[3], WS_FX)
        I("s_mul_i32", self.sXp, T[0], 14336)
        I("s_lshl_b32", T[2], self.sC, 11)
        I("s_add_u32", self.sXp, self.sXp, T[2])
        I("s_add_u32", self.sXp, self.sXp, WS_X)
        I("s_lshl_b32", self.sXSp, T[0], 10)
        I("s_lshl_b32", T[2], self.sC, 7)
        I("s_add_u32", self.sXSp, self.sXSp, T[2])
        I("s_add_u32", self.sXSp, self.sXSp, WS_XS)
        I("s_lshl_b32", self.sOp, T[0], 14)
        I("s_add_u32", self.sOp, self.sOp, WS_O)
        I("s_lshl_b32", self.sFXp, T[0], 7)
        I("s_lshl_b32", T[2], self.sC, 2)
        I("s_add_u32", self.sFXp, self.sFXp, T[2])
        I("s_add_u32", self.sFXp, self.sFXp, WS_FX)
        I("s_lshl_b32", T[1], self.sGrp, 2)
        I("s_add_u32", T[2], T[1], self.sW)
        I("s_lshl_b32", self.sFOq, T[2], 7)
        I("s_lshl_b32", T[2], self.sH, 2)
        I("s_add_u32", self.sFOq, self.sFOq, T[2])
        I("s_add_u32", self.sFOq, self.sFOq, WS_FO)
        I("s_lshr_b32", T[2], T[0], 1)
        I("s_lshl_b32", self.sFOp, T[2], 7)
        I("s_add_u32", self.sFOp, self.sFOp, WS_FO)
        I("s_lshl_b32", self.sHX, self.sGrp, 14)
        I("s_add_u32", self.sHX, self.sHX, WS_HX)
        I("s_lshl_b32", self.sFHp, self.sGrp, 7)
        I("s_add_u32", self.sFHp, self.sFHp, WS_FH)
        I("s_and_b32", T[1], self.sGrp, 7)
        I("s_cmp_eq_u32", T[1], 0)
        I("s_cselect_b32", self.sFirst, 1, 0)
        I("s_cmp_lg_u32", T[1], 7)
        I("s_cselect_b32", T[1], 1, 0)
        I("s_and_b32", T[2], T[0], 7)
        I("s_cmp_eq_u32", T[2], 7)
        I("s_cselect_b32", self.sHaloProd, T[1], 0)
        I("s_lshl_b32", T[1], self.sH, 2)
        I("s_add_u32", T[1], T[1], self.sW)
        I("s_lshl_b32", self.sKVld, T[1], 14)
        I("s_add_u32", self.sKVld, self.sKVld, WS_KV)
        I("s_bitcmp1_b32", self.sW, 0)
        I("s_cselect_b32", T[1], 13, 16)
        I("s_lshl_b32", T[1], T[1], 6)
        I("s_lshr_b32", T[2], self.sGrp, 1)
        I("s_mul_i32", T[1], T[1], T[2])
        I("s_add_u32", self.sKVst, self.sKVld, T[1])
        I("s_mov_b32", self.sMode, 1)
        I("s_mov_b32", self.sIt, 0)
        I("s_mov_b32", self.sPhase, 0)
        I("s_mov_b32", self.sL, 1)
        I("s_mov_b32", self.sPend, 0)
        I("s_mov_b32", self.sBudget, 400000)
        if self.look: I("s_mov_b32", S(3), 0)
        self.bg()
        I("v_min_u32", t0, 12, lane)
        I("v_lshlrev_b32", V(122), 7, t0)
        I("v_lshlrev_b32", self.vStatSt, 3, j)
        I("v_and_b32", t0, 7, j)
        I("v_lshlrev_b32", t0, 4, t0)
        I("v_lshl_add_u32", self.vHp, g, 7, t0)
        I("v_lshlrev_b32", t0, 7, j)
        I("v_lshl_add_u32", t0, g, 3, t0)
        I("v_add_u32", V(123), L_SP, t0)
        I("s_mul_i32", self.sQWl, self.sW, 7168)
        I("s_mul_i32", self.sFW, self.sH, 86016)
        I("s_add_u32", self.sFW, self.sFW, self.sQWl)
        I("s_add_u32", self.sFW, self.sFW, WS_FW)
        I("s_lshl_b32", self.sPWl, self.sW, 10)
        I("s_add_u32", self.sPWl, self.sPWl, L_PW)
        I("s_min_u32", T[1], self.sC, 6)
        I("s_lshl_b32", self.sPWo, T[1], 7)
        if self.opt.get("stamps"):
            I("s_mov_b32", T[7], 1)
            I("v_mov_b32", self.vStamp, 0)
            I("v_writelane_b32", self.vStamp, self.sStamp[0], 0)
            if self.opt.get("fine") != 5: I("v_writelane_b32", self.vStamp, S(100), 62)
        I("v_mov_b32", V(127), V(0))
        I("s_cmp_eq_u32", self.sW, 3)
        I("s_cbranch_scc1", "L_s0")
        a.label("L_setup")
        a.forget_counters()
        self.bg()
        self.fine(5, 1)

        r, cc = V(113), V(124)
        I("s_lshl_b32", T[1], self.sW, 11)
        I("v_add_u32", V(114), T[1], V(123))
        I("v_lshrrev_b32", r, 2, j)
        I("v_and_b32", cc, 3, j)
        I("v_lshl_add_u32", t0, g, 2, r)
        I("v_lshlrev_b32", t1, 3, cc)
        I("v_lshl_add_u32", t2, t0, 6, t1)
        I("v_and_b32", V(125), 1, g)
        I("v_lshl_add_u32", self.vQ0, V(125), 5, t2)
        I("v_xor_b32", self.vQ1, 32, self.vQ0)
        I("s_and_b32", T[1], self.sW, 1)
        I("s_lshr_b32", T[2], self.sW, 1)
        I("s_add_u32", T[2], T[2], 1)
        I("s_mul_i32", T[2], T[2], MAT)
        I("s_lshl_b32", T[5], T[1], 10)
        I("s_add_u32", T[2], T[2], T[5])
        I("v_add_u32", self.vQh, T[2], self.vL16)
        I("v_lshl_add_u32", t2, t0, 7, t1)
        I("v_add_u32", t2, L_PW, t2)
        I("v_lshrrev_b32", V(125), 1, t0)
        I("v_and_b32", V(125), 3, V(125))
        for n in range(4):
            I("v_xor_b32", V(126), n, V(125))
            I("v_lshl_add_u32", self.vP[n], V(126), 5, t2)
        self.bg()
        I("v_lshrrev_b32", V(125), 1, t0)
        I("v_xor_b32", V(125), V(125), cc)
        I("v_and_b32", V(125), 3, V(125))
        I("v_lshlrev_b32", V(125), 4, V(125))
        I("v_lshl_add_u32", V(126), t0, 6, V(125))
        I("s_lshl_b32", T[2], self.sW, 11)
        I("s_add_u32", T[5], T[2], L_EXV)
        I("v_add_u32", self.vEXRa, T[5], V(126))
        I("s_lshr_b32", T[5], self.sW, 1)
        I("s_lshl_b32", T[5], T[5], 13)
        I("s_add_u32", T[5], T[5], L_PH)
        I("v_add_u32", self.vKA, T[5], V(126))
        I("s_lshl_b32", T[5], T[1], 3)
        I("s_add_u32", T[5], T[5], L_PH + 16384)
        I("v_add_u32", self.vKB, T[5], V(126))
        I("v_lshrrev_b32", V(125), 1, j)
        I("v_xor_b32", V(125), V(125), g)
        I("v_and_b32", V(125), 3, V(125))
        I("v_lshlrev_b32", V(125), 4, V(125))
        I("v_lshl_add_u32", V(126), j, 6, V(125))
        I("v_add_u32", V(126), L_EXV, V(126))
        I("v_add_u32", self.vEXW, T[2], V(126))
        I("s_lshl_b32", T[5], self.sW, 10)
        I("v_add_u32", V(125), L_EXK, self.vL16)
        I("v_add_u32", self.vKrd, T[5], V(125))
        I("v_add_u32", self.vQS, self.sQWl, self.vL16)
        I("v_add_u32", self.vAv, 2 * MAT, self.vL16)
        I("s_cmp_lt_u32", self.sW, 2)
        I("s_cselect_b64", VCC, -1, 0)
        I("v_cndmask_b32", V(126), V(126), V(125), VCC)
        I("s_lshl_b32", T[5], T[1], 3)
        I("v_add_u32", self.vHW, T[5], V(126))
        self.bg()
        I("v_lshrrev_b32", t0, 3, lane)
        I("v_and_b32", t2, 4, t0)
        I("v_add_u32", t2, t2, t0)
        I("s_lshr_b32", T[5], self.sW, 1)
        I("s_lshl2_add_u32", T[5], T[1], T[5])
        I("s_lshl_b32", T[5], T[5], 2)
        I("v_add_u32", t2, T[5], t2)
        I("v_mul_u32_u24", t1, 896, t2)
        I("v_and_b32", t0, 6, t0)
        I("v_and_b32", t2, 7, lane)
        I("v_xor_b32", t0, t0, t2)
        I("v_lshl_add_u32", self.vPWd, t0, 4, t1)
        I("s_mul_i32", T[5], self.sH, 7)
        for reg, add in ((self.vO0, 0), (self.vO1, 4)):
            I("v_add_u32", t0, T[5], g)
            if add: I("v_add_u32", t0, add, t0)
            I("v_and_b32", t2, 1, t0)
            I("v_lshrrev_b32", t0, 1, t0)
            I("v_lshlrev_b32", t0, 8, t0)
            I("v_lshl_add_u32", t0, t2, 3, t0)
            I("v_lshl_add_u32", reg, j, 4, t0)
        I("v_mov_b32", t1, OOB)
        I("v_cmp_gt_u32", VCC, 48, lane)
        I("v_cndmask_b32", self.vO1, t1, self.vO1, VCC)
        I("v_cmp_gt_u32", VCC, 48, lane)
        I("v_cndmask_b32", self.vM3, 0, -1, VCC)
        I("v_cndmask_b32", self.vE0[0], 1.0, 0, VCC)
        I("v_mov_b32", self.vE0[1], 0)
        I("s_cmp_eq_u32", T[1], 1)
        I("s_cselect_b64", VCC, -1, 0)
        I("v_cndmask_b32", self.vMH, -1, self.vM3, VCC)
        I("v_lshl_add_u32", self.vStat, g, 7, self.vStatSt)
        I("s_cmp_eq_u32", self.sFirst, 1)
        I("s_cselect_b64", VCC, -1, 0)
        I("v_cndmask_b32", self.vHalo, self.vL16, t1, VCC)
        I("v_cndmask_b32", self.vHaloS, self.vStat, t1, VCC)
        I("s_lshr_b32", T[2], self.sGrp, 1)
        I("s_add_u32", T[2], T[2], 1)
        I("v_add_u32", t0, T[2], j)
        I("v_and_b32", t0, 7, t0)
        I("s_bitcmp1_b32", self.sW, 0)
        I("s_cselect_b32", T[5], 13, 16)
        I("s_lshl_b32", T[5], T[5], 6)
        I("v_mul_u32_u24", self.vKVp, T[5], t0)
        I("s_lshr_b32", T[5], T[5], 2)
        I("v_mul_u32_u24", t0, T[5], g)
        I("v_lshl_add_u32", t0, j, 4, t0)
        I("s_lshr_b32", T[5], T[5], 4)
        I("v_cmp_gt_u32", VCC, T[5], j)
        I("v_cndmask_b32", self.vKVo, t1, t0, VCC)
        I("v_cndmask_b32", self.vKVm, 0, -1, VCC)
        self.bg()
        I("v_lshlrev_b32", self.vZ, 8, g)
        I("v_add_u32", self.vZ, L_KVX + 1024 + 12 * 16, self.vZ)
        I("v_lshlrev_b32", self.vPollP, 2, j)
        I("v_and_b32", t0, 7, lane)
        I("v_min_u32", t0, 6, t0)
        I("v_lshlrev_b32", V(127), 2, t0)
        I("v_min_u32", t0, 13, j)
        I("v_lshlrev_b32", t0, 2, t0)
        I("s_lshl_b32", T[5], self.sH, 7)
        I("s_add_u32", T[5], T[5], WS_FWF)
        I("v_add_u32", t0, T[5], t0)
        I("v_add_u32", t2, self.sFHp, V(127))
        I("s_cmp_eq_u32", self.sFirst, 1)
        I("s_cselect_b32", T[5], 0, 16)
        I("v_cmp_gt_u32", VCC, T[5], lane)
        I("v_cndmask_b32", self.vPollH, t0, t2, VCC)
        I("v_cndmask_b32", self.vExpHM, 0, 16, VCC)
        I("v_cndmask_b32", self.vExpHC, 16, 0, VCC)
        I("v_lshrrev_b32", t2, 3, j)
        I("v_lshl_add_u32", t2, t2, 7, V(127))
        I("v_add_u32", t2, T[3], t2)
        I("s_lshl_b32", T[5], self.sGrp, 7)
        I("s_add_u32", T[5], T[5], WS_HELLO)
        I("v_lshrrev_b32", t0, 1, g)
        I("v_lshlrev_b32", t0, 7, t0)
        I("v_xor_b32", t0, T[5], t0)
        I("v_add_u32", t0, t0, self.vPollP)
        I("v_and_b32", V(125), 1, g)
        I("v_cmp_eq_u32", VCC, 0, V(125))
        I("v_cndmask_b32", self.vPollQ, t0, t2, VCC)
        I("v_cndmask_b32", self.vPollM, -16, -1, VCC)
        I("v_cndmask_b32", self.vExpM, 0, 16, VCC)
        I("v_mov_b32", t0, self.sXcc)
        I("v_cndmask_b32", self.vExpC, t0, 0, VCC)
        self.bg()
        I("v_mov_b32", V(125), f32(-1e30))
        for rr in range(4):
            I("v_lshl_add_u32", t0, g, 2, rr)
            I("v_sub_u32", t2, j, t0)
            I("v_cmp_gt_u32", VCC, 8, t2)
            I("v_cndmask_b32", self.bCur[rr], V(125), 0, VCC)
            I("v_add_u32", t2, 16, t2)
            I("v_cmp_gt_u32", VCC, 8, t2)
            I("v_cndmask_b32", self.bPrev[rr], V(125), 0, VCC)
        I("s_cmp_eq_u32", self.sW, 0)
        I("s_cselect_b32", T[2], self.sFirst, 0)
        I("s_cmp_eq_u32", T[2], 1)
        I("s_cselect_b64", VCC, -1, 0)
        for rr in range(4):
            I("v_cndmask_b32", self.bPrev0[rr], self.bPrev[rr], V(125), VCC)
        self.bg()
        I("v_mov_b32", t0, "0x3f803f80")
        for k in range(4): I("v_accvgpr_write_b32", self.aOnes[k], t0)
        for k in (0, 1, 4, 5): I("v_accvgpr_write_b32", self.aSel[k], 0)
        I("v_and_b32", V(125), 1, j)
        I("v_lshlrev_b32", V(125), 4, V(125))
        I("v_mov_b32", t0, "0x3f80")
        I("v_lshlrev_b32", t0, V(125), t0)
        I("v_cmp_eq_u32", VCC, r, g)
        I("v_cndmask_b32", t0, 0, t0, VCC)
        I("v_cmp_gt_u32", VCC, 2, cc)
        I("v_cndmask_b32", t2, 0, t0, VCC)
        I("v_cndmask_b32", t0, t0, 0, VCC)
        I("v_accvgpr_write_b32", self.aSel[2], t2)
        I("v_accvgpr_write_b32", self.aSel[3], t0)
        I("v_mov_b32", V(0), V(114))
        got = self.lab("nonce")
        I("s_cmp_eq_u32", self.sW, 3)
        I("s_cbranch_scc1", got)
        a.raw(f"    s_waitcnt vmcnt({2 * self.bg_next})")
        I("v_readfirstlane_b32", self.sNonce, V(120))
        I("s_add_u32", T[1], self.sNonce, "0x10100")
        I("s_and_b32", self.sBase, T[1], "0xffffff00")
        I("s_and_b32", self.sTag, T[1], "0x3fff0000")
        a.label(got)
        I("v_or_b32", self.vExpC, self.sBase, self.vExpC)
        I("v_or_b32", self.vExpHC, self.sBase, self.vExpHC)
        self.stamp()
        I("s_cmp_eq_u32", self.sW, 3)
        I("s_cbranch_scc1", "L_walk")
        for _ in range(self.opt.get("n1b", 1)):
            self.raw_block(self.bg_next)
            self.bg_next += 1
        I("s_barrier")
        self.stamp()

        N1 = self.bg_next
        ad0, ad1, d0, d1 = self.cvAd0, self.cvAd1, self.cvD0, self.cvD1
        OV = self.OV = self.opt.get("ov", 14)
        OV1 = self.OV1 = min(14, OV + self.opt.get("ov1", 2))
        I("v_add_u32", ad0, T[4], self.vQ0)
        I("v_add_u32", ad1, T[4], self.vQ1)
        wad = self.cvWad
        I("v_add_u32", wad, T[4], self.vL16)
        ZP = self.opt.get("zp", 1)
        if ZP:
            zad, zz = self.cvZad, self.cvZ
            I("v_bfe_u32", zad, self.vL16, 4, 5)
            I("v_bfe_u32", zz[0], self.vL16, 6, 1)
            I("v_lshlrev_b32", zad, 6, zad)
            I("v_lshlrev_b32", zz[0], 5, zz[0])
            I("v_xor_b32", zz[0], 56, zz[0])
            I("v_add3_u32", zad, zad, zz[0], T[4])
            I("v_mov_b32", zz[0], 0)
            I("v_mov_b32", zz[1], 0)
        a.vm = [(f"raw{ks}", set()) for ks in range(N1) for _ in range(2)]
        AH = self.opt.get("ah", 6)
        EL0 = self.opt.get("el0", 99) if OV == 14 else OV
        EL1 = self.opt.get("el1", max(EL0 + 1, 14 - AH))
        nxt = N1
        N2 = self.opt.get("n2", 3)
        if N2:
            for _ in range(N2):
                self.raw_block(nxt)
                nxt += 1
            I("s_barrier")
        for ks in range(OV):
            while nxt < OV1 and nxt <= ks + AH:
                self.raw_block(nxt)
                if nxt == EL0: self.early_look(0)
                nxt += 1
            if ks == self.opt.get("vks", 3) and self.opt.get("visit", 0):
                a.wait_lg_all()
                a.flush()
                I("s_mov_b64", EXEC, 0)
                I("s_cmp_eq_u32", self.sW, 1)
                I("s_cbranch_scc1", "L_visit_1")
                I("s_cmp_eq_u32", self.sW, 2)
                I("s_cbranch_scc1", "L_visit_2")
                I("s_branch", "L_visit_0")
                a.label("L_visit_ret")
                I("s_mov_b64", EXEC, -1)
            if ks == EL1 and EL0 < 14:
                if ks == 13: a.wait_vm_tag("raw13")
                self.early_look(1)
            a.wait_vm_tag(f"raw{ks}")
            if ZP: I("ds_write_b64", zad, zz, mods=f"offset:{ks * 2048}")
            w0, w1 = self.wf(2 * (ks & 1)), self.wf(2 * (ks & 1) + 1)
            for f in self.tr_pair(w0, ad0, ks * 2048) + self.tr_pair(w1, ad1, ks * 2048): f()
            if ks:
                p0, p1 = self.wf(2 * ((ks - 1) & 1)), self.wf(2 * ((ks - 1) & 1) + 1)
                self.mfma(d0, p0, self.aOnes, 0 if ks == 1 else d0)
                self.mfma(d1, p1, self.aOnes, 0 if ks == 1 else d1)
                I("ds_write_b128", wad, p0, mods=f"offset:{(ks - 1) * 2048}")
                I("ds_write_b128", wad, p1, mods=f"offset:{(ks - 1) * 2048 + 1024}")
        p0, p1 = self.wf(2 * ((OV - 1) & 1)), self.wf(2 * ((OV - 1) & 1) + 1)
        self.mfma(d0, p0, self.aOnes, d0)
        self.mfma(d1, p1, self.aOnes, d1)
        I("ds_write_b128", wad, p0, mods=f"offset:{(OV - 1) * 2048}")
        I("ds_write_b128", wad, p1, mods=f"offset:{(OV - 1) * 2048 + 1024}")
        if OV == 14: self.cs_write()
        else:
            self.inflight = [t for t, _ in a.vm if t and t.startswith("raw") and int(t[3:]) > OV]
            self.early_look(1)
        a.wait(lg=0)
        a.flush()
        self.fine(5, 4)
        I("s_branch", "L_qa1")
        self.stage0()

    def early_look(self, phase):
        a, I = self.a, self.I
        if phase == 0:
            I("v_mad_u32_u24", V(112), self.vExpM, self.sL, self.vExpC)
            I("buffer_load_dword", V(114), self.vPollQ, self.sWS, 0, mods="offen sc1")
            return
        skip = self.lab("notyet")
        I("v_cmp_ne_u32", VCC, V(112), V(114))
        I("s_cbranch_vccnz", skip)
        vm = list(a.vm)
        for ks in range(3):
            for _, f in self.xload(ks): f()
        a.vm = vm
        I("s_mov_b32", S(3), 1)
        a.label(skip)

    def stage0(self):
        a, I = self.a, self.I
        T = self.sT
        lane = V(127)
        idle, nohalo, pub, nofw = (self.lab(x) for x in ("idle", "nohalo", "pub", "nofw"))
        a.label("L_s0")
        a.forget_counters()
        a.pos += 100
        def hello():
            I("v_readfirstlane_b32", self.sNonce, V(120))
            I("s_lshl_b32", T[1], self.sGrp, 7)
            I("s_lshl2_add_u32", T[2], self.sH, T[1])
            I("s_add_u32", T[2], T[2], WS_HELLO)
            I("s_add_u32", T[1], self.sNonce, "0x10100")
            I("s_and_b32", self.sBase, T[1], "0xffffff00")
            I("s_and_b32", self.sTag, T[1], "0x3fff0000")
            I("s_or_b32", T[1], self.sBase, 16)
            I("v_mov_b32", self.vT, T[1])
            I("s_or_b32", T[1], self.sBase, self.sXcc)
            I("v_mov_b32", V(112), T[1])
            I("s_mov_b64", EXEC, 1)
            I("buffer_store_dword", V(112), OFF, self.sWS, T[2], mods="sc1")
            I("s_mov_b64", EXEC, -1)
        I("s_cmp_eq_u32", self.sC, 7)
        I("s_cbranch_scc1", idle)
        LOC = self.opt.get("s0l", 1)
        FL = "" if LOC else " sc1"
        a.raw("    s_waitcnt vmcnt(6)" if LOC else "    s_waitcnt vmcnt(3)")
        self.fine(5, 2)
        xo = [V(128 + 8 * t, 8) for t in range(4)]
        pr = [V(160 + 2 * t, 2) for t in range(4)]
        for t in range(4):
            for n in range(4): I("ds_read_b64", xo[t][2 * n:2 * n + 2], V(123), mods=f"offset:{2048 * t + 32 * n}")
        one = V(125)
        I("v_mov_b32", one, "0x3f803f80")
        I("s_sub_u32", T[5], self.sXp, 3 * 14336)
        I("s_sub_u32", T[6], self.sXSp, 3 * 1024)
        def xstores():
            for t in range(4):
                I("buffer_store_dwordx4", xo[t][0:4], self.vL16, self.sWS, T[5], mods="offen" + FL)
                I("buffer_store_dwordx4", xo[t][4:8], self.vL16, self.sWS, T[5], mods="offen offset:1024" + FL)
                if t < 3: I("s_add_u32", T[5], T[5], 14336)
        if not LOC:
            xstores()
            a.raw("    s_waitcnt vmcnt(8)")
            hello()
        for k in range(8):
            for t in range(4):
                I("v_dot2_f32_bf16", pr[t][0], xo[t][k], one, 0 if k == 0 else pr[t][0])
                I("v_dot2_f32_bf16", pr[t][1], xo[t][k], xo[t][k], 0 if k == 0 else pr[t][1])
        self.allreduce_pairs([("v_add_f32", pr[t][0], pr[t][1]) for t in range(4)])
        if self.opt.get("stag", 0):
            for t in range(4): I("v_and_or_b32", pr[t][1], pr[t][1], -4, 1)
        if LOC:
            a.wait(vm=0)
            xstores()
        I("s_mov_b64", EXEC, "0xffff")
        for t in range(4):
            I("buffer_store_dwordx2", pr[t], self.vStatSt, self.sWS, T[6], mods=f"offen offset:{1024 * t}" + FL)
        I("s_mov_b64", EXEC, -1)
        if LOC:
            if self.opt.get("rel", 1) == 1: I("s_barrier")
            I("v_readfirstlane_b32", self.sNonce, V(120))
            I("v_lshlrev_b32", V(126), 7, lane)
            I("s_sub_u32", T[2], self.sFXp, 3 * 128)
            I("s_add_u32", T[1], self.sNonce, "0x10100")
            I("s_and_b32", T[1], T[1], "0xffffff00")
            I("s_or_b32", T[1], T[1], 16)
            I("v_mov_b32", self.vT, T[1])
            I("s_mov_b64", EXEC, 15)
            a.wait(vm=0)
            I("buffer_store_dword", self.vT, V(126), self.sWS, T[2], mods="offen")
            I("s_mov_b64", EXEC, -1)
            hello()
        I("s_cmp_eq_u32", self.sHaloProd, 0)
        I("s_cbranch_scc1", nohalo)
        I("s_lshl_b32", T[1], self.sC, 10)
        I("s_add_u32", T[1], T[1], self.sHX)
        I("s_add_u32", T[1], T[1], 16384)
        I("s_mov_b32", self.sT2[0], "0xff00ff00")
        I("s_mov_b32", self.sT2[1], "0xff00ff00")
        I("s_mov_b64", EXEC, self.sT2)
        I("buffer_store_dwordx4", xo[3][0:4], self.vHp, self.sWS, T[1], mods="offen sc1")
        I("buffer_store_dwordx4", xo[3][4:8], self.vHp, self.sWS, T[1], mods="offen offset:512 sc1")
        I("s_lshl_b32", T[1], self.sC, 7)
        I("s_add_u32", T[1], T[1], self.sHX)
        I("s_add_u32", T[1], T[1], 16384 + 14336)
        I("s_mov_b64", EXEC, "0xffff")
        I("buffer_store_dwordx2", pr[3], self.vStatSt, self.sWS, T[1], mods="offen sc1")
        I("s_mov_b64", EXEC, -1)
        a.label(nohalo)
        a.flush()
        if not LOC:
            I("v_and_b32", V(126), 3, lane)
            I("v_lshlrev_b32", V(126), 7, V(126))
            I("v_lshrrev_b32", V(113), 2, lane)
            I("v_lshl_add_u32", V(126), V(113), 15, V(126))
            I("s_sub_u32", T[2], self.sFXp, 3 * 128)
            I("v_add_u32", V(126), T[2], V(126))
            I("s_lshl_b32", T[1], self.sC, 2)
            I("s_add_u32", T[1], T[1], self.sFHp)
            I("s_add_u32", T[1], T[1], 128)
            I("v_writelane_b32", V(126), T[1], 8)
            I("s_lshl_b32", T[1], self.sHaloProd, 8)
            I("s_or_b32", self.sT2[0], T[1], "0xff")
            I("s_mov_b32", self.sT2[1], 0)
            if self.opt.get("rel", 1) == 1: I("s_barrier")
            a.wait(vm=0)
            I("s_mov_b64", EXEC, self.sT2)
            I("buffer_store_dword", self.vT, V(126), self.sWS, 0, mods="offen sc1")
            I("s_mov_b64", EXEC, -1)
            if self.opt.get("rel", 1) == 2: I("s_barrier")
        else:
            I("s_mov_b32", self.sPend, self.sHaloProd)
        self.fine(5, 3)
        I("s_branch", pub)
        a.label(idle)
        a.raw("    s_waitcnt vmcnt(0)")
        hello()
        I("s_barrier")
        a.label(pub)
        if self.opt.get("n2", 3) and self.opt.get("b2", 0) == 0: I("s_barrier")
        a.forget_counters()
        I("s_cmp_ge_u32", self.sGrp, 14)
        I("s_cbranch_scc1", nofw)
        I("s_mul_i32", T[2], self.sH, 56)
        I("s_mul_i32", T[1], self.sGrp, 32 * 2688)
        I("s_add_u32", T[2], T[2], T[1])
        for mat in range(3):
            for half in range(2):
                I("s_mov_b32", M0, L_PW + mat * 2048 + half * 1024)
                I("s_add_u32", T[1], T[2], mat * 896 + half * 16 * 2688)
                I("buffer_load_dwordx4", self.vQWd, self.sWB, T[1], mods="offen lds")
        a.label(nofw)
        I("s_mul_i32", T[1], self.sH, 1568)
        I("s_mov_b32", M0, L_WPHI)
        I("s_mul_i32", T[2], S(2), 13 * 128)
        I("s_min_u32", T[2], T[2], 401408 - 13 * 128)
        I("v_min_u32", V(126), 55, lane)
        I("v_lshlrev_b32", V(126), 7, V(126))
        I("s_lshr_b32", T[5], self.sH, 1)
        I("s_lshl_b32", T[5], T[5], 14)
        I("s_and_b32", T[6], self.sH, 1)
        I("s_mul_i32", T[6], T[6], 7168)
        I("s_add_u32", T[5], T[5], T[6])
        I("s_add_u32", T[5], T[5], self.sOq)
        I("s_sub_u32", T[5], T[5], 6 * 16384)
        I("buffer_load_dwordx4", self.vL16, self.sWP, T[1], mods="offen lds")
        I("buffer_load_dwordx4", self.vL16, self.sWP, T[1], mods="offen offset:1024 lds")
        TM = self.opt.get("tm", 15)
        if TM & 1: I("buffer_load_dword", self.vDummy, V(122), self.sWOA, T[2], mods="offen", nodest=True)
        if TM & 2: I("buffer_load_dword", self.vDummy, V(122), self.sWOB, T[2], mods="offen", nodest=True)
        if TM & 4: I("buffer_load_dword", self.vDummy, V(126), self.sWS, T[5], mods="offen", nodest=True)
        if TM & 8:
            I("v_lshlrev_b32", V(112), 7, V(116))
            I("s_lshl_b32", T[5], self.sGrp, 9)
            I("s_add_u32", T[5], T[5], WS_FO)
            I("buffer_load_dword", self.vDummy, V(112), self.sWS, T[5], mods="offen", nodest=True)
        if self.opt.get("n2", 3) and self.opt.get("b2", 0) == 1: I("s_barrier")
        I("s_branch", "L_setup")
        a.label("L_walk")
        a.forget_counters()
        self.stamp()
        if self.opt.get("s0l", 1):
            nohw = self.lab("nohw")
            I("s_cmp_eq_u32", self.sPend, 0)
            I("s_cbranch_scc1", nohw)
            a.raw(f"    s_waitcnt vmcnt({2 + bin(self.opt.get('tm', 15)).count('1')})")
            I("s_lshl2_add_u32", T[1], self.sC, self.sFHp)
            I("s_mov_b64", EXEC, 1)
            I("buffer_store_dword", self.vT, OFF, self.sWS, T[1], mods="offset:128 sc1", untracked=True)
            I("s_mov_b64", EXEC, -1)
            I("s_mov_b32", self.sPend, 0)
            a.label(nohw)
        nofw2 = self.lab("nofw")
        I("s_cmp_ge_u32", self.sGrp, 14)
        I("s_cbranch_scc1", nofw2)
        zad, zz = V(112), V(116, 2)
        I("v_bfe_u32", zad, self.vL16, 4, 5)
        I("v_bfe_u32", zz[0], self.vL16, 6, 1)
        I("v_lshlrev_b32", zad, 6, zad)
        I("v_lshlrev_b32", zz[0], 5, zz[0])
        I("v_xor_b32", zz[0], 56, zz[0])
        I("v_add_u32", zad, zad, zz[0])
        I("v_add_u32", zad, L_PW, zad)
        I("v_mov_b32", zz[0], 0)
        I("v_mov_b32", zz[1], 0)
        I("v_add_u32", V(113), L_PW, self.vQ0)
        I("v_add_u32", V(115), L_PW, self.vQ1)
        a.raw(f"    s_waitcnt vmcnt({2 + bin(TM).count('1')})")
        for mat in range(3):
            I("ds_write_b64", zad, zz, mods=f"offset:{mat * 2048}")
            for f in range(2):
                for g in self.tr_pair(V(168 + 8 * mat + 4 * f, 4), V(113 + 2 * f), mat * 2048): g()
        I("s_lshl_b32", T[1], self.sGrp, 11)
        I("s_add_u32", T[1], T[1], self.sFW)
        I("s_sub_u32", T[1], T[1], 3 * 7168)
        for mat in range(3):
            I("s_add_u32", T[2], T[1], mat * MAT)
            for half in range(2):
                I("buffer_store_dwordx4", V(168 + 8 * mat + 4 * half, 4), self.vL16, self.sWS, T[2], mods=f"offen offset:{half * 1024} sc1")
        I("s_lshl_b32", T[1], self.sH, 7)
        I("s_lshl_b32", T[2], self.sGrp, 2)
        I("s_add_u32", T[1], T[1], T[2])
        I("s_add_u32", T[5], T[1], WS_FWF)
        if self.look: self.early_look(0)
        a.wait(vm=0)
        I("s_mov_b64", EXEC, 1)
        I("buffer_store_dword", self.vT, OFF, self.sWS, T[5], mods="sc1")
        I("s_mov_b64", EXEC, -1)
        if self.look: self.early_look(1)
        a.label(nofw2)
        self.fine(5, 4)
        I("s_branch", "L_qa1")

    def p_stage(self):
        a, I = self.a, self.I
        T = self.sT
        NPRE = 12
        a.label("L_p")
        a.raw("@VISIT")
        a.forget_counters()
        a.wait(lg=0)
        I("s_barrier")
        I("s_cmp_eq_u32", self.sC, 7)
        I("s_cbranch_scc1", "L_pidle")
        slots = [A(64 + 4 * k, 4) for k in range(12)] + [A(168 + 4 * k, 4) for k in range(8)] + [V(128 + 4 * k, 4) for k in range(28)]
        def pwf(hh, n): return slots[(hh % NPRE) * 4 + n]
        def pw_read(hh, n):
            return [lambda: I("ds_read_b64_tr_b16", pwf(hh, n)[0:2], self.vP[n], mods=f"offset:{hh * 4096}"),
                    lambda: I("ds_read_b64_tr_b16", pwf(hh, n)[2:4], self.vP[n], mods=f"offset:{hh * 4096 + 2048}")]
        self.flag_value(T[0])
        early, mid = self.opt.get("early", 8), self.opt.get("pmid", 12)
        late = [f for _, f in self.pw_dma(self.sPWc, range(8, 14))]
        PP = self.opt.get("pp", 3)
        for hh in range(early):
            for n in range(4):
                for f in pw_read(hh, n): f()
                for _ in range(3 if n == 1 or (n == 3 and early < 6) else 0):
                    if late: late.pop(0)()
            if hh == PP: I("buffer_load_dword", V(112), self.vPollP, self.sWS, self.sFOp, mods="offen sc1")
        assert not late
        loop, ok = self.lab("ppoll"), self.lab("ppass")
        if self.opt.get("dual", 1):
            a.wait(vm=0)
            I("v_cmp_ne_u32", VCC, T[0], V(112))
            I("s_cbranch_vccnz", loop)
            def spin():
                b = self.a
                b.label(loop)
                b.I("buffer_load_dword", V(112), self.vPollP, self.sWS, self.sFOp, mods="offen sc1")
                b.nop(self.opt.get("dnop", 8))
                b.label(loop + "l")
                for x, y in ((V(113), V(112)), (V(112), V(113))):
                    b.I("buffer_load_dword", x, self.vPollP, self.sWS, self.sFOp, mods="offen sc1", untracked=True)
                    b.raw("    s_waitcnt vmcnt(1)")
                    b.forget_counters()
                    b.I("v_cmp_ne_u32", VCC, T[0], y)
                    b.I("s_cbranch_vccz", ok)
                self.budget_branch(loop + "l")
            self.tail.append(spin)
        else:
            a.label(loop)
            a.wait(vm=0)
            I("v_cmp_ne_u32", VCC, T[0], V(112))
            I("s_cbranch_vccz", ok)
            I("buffer_load_dword", V(112), self.vPollP, self.sWS, self.sFOp, mods="offen sc1")
            self.budget_branch(loop)
        a.label(ok)
        a.vm = []
        self.stamp()
        def of(hh): return A(4 * hh, 4)
        def oload(hh):
            out = []
            if hh % 4 == 0 and hh:
                out.append(("s", lambda: I("s_add_u32", T[1], self.sOp, hh * 1024)))
            so = self.sOp if hh < 4 else T[1]
            out.append(("v", lambda: I("buffer_load_dwordx4", of(hh), self.vL16, self.sWS, so, mods=f"offen offset:{(hh % 4) * 1024} sc1")))
            return out
        NO = self.opt.get("no", 5)
        for hh in range(NO):
            for _, f in oload(hh): f()
        I("s_barrier")
        for hh in range(early, mid):
            for n in range(4):
                for f in pw_read(hh, n): f()
        mf, so, sw = [], [], []
        for hh in range(14):
            for n in range(4):
                mf.append((self.vR[4 * n:4 * n + 4], pwf(hh, n), of(hh), self.vR[4 * n:4 * n + 4]))
                if hh >= mid:
                    k = (hh - mid) * 4 + n
                    sw += [(max((k * self.opt.get("prate", 4)) // 3, 4 * (hh - NPRE) + n), "v", f) for f in pw_read(hh, n)]
            if hh + NO < 14: so += [(4 * hh, k, f) for k, f in oload(hh + NO)]
        j, t = V(136), V(137)
        fa = [("v", lambda: I("v_lshrrev_b32", j, 2, self.vPollP)), ("v", lambda: I("v_lshrrev_b32", t, 9, self.vL16)),
              ("v", lambda: I("v_xor_b32", t, t, j)), ("v", lambda: I("v_and_b32", t, 7, t)), ("v", lambda: I("v_lshlrev_b32", t, 4, t)),
              ("v", lambda: I("v_lshl_add_u32", t, j, 7, t)), ("v", lambda: I("v_bfe_u32", j, self.vL16, 8, 1)),
              ("s", lambda: I("s_lshl_b32", T[1], self.sW, 11)), ("s", lambda: I("s_add_u32", T[1], T[1], L_SP)),
              ("v", lambda: I("v_lshl_add_u32", t, j, 3, t)), ("v", lambda: I("v_add_u32", V(132), T[1], t))]
        fa += [("v", lambda n=n: I("v_xor_b32", V(132 + n), 32 * n, V(132))) for n in range(1, 4)]
        fa += [("v", lambda: I("v_lshrrev_b32", j, 3, self.vL16)), ("v", lambda: I("v_and_b32", j, "0x70", j)),
               ("v", lambda: I("v_xor_b32", j, j, self.vL16)), ("v", lambda: I("v_add_u32", V(120), T[1], j)),
               ("s", lambda: I("s_add_u32", T[2], self.sX0o, 8 * 1792))]
        rest = self.sched(mf, [so, sw, [(40, k, f) for k, f in fa]])
        assert not rest
        a.flush()
        self.stamp()
        I("s_cmp_eq_u32", self.sL, 4)
        I("s_cbranch_scc1", "L_final")

        a.label("L_pepi")
        xo = V(112, 8)
        for k in range(8):
            I("v_cvt_pk_bf16_f32", xo[k], self.vR[2 * k], self.vR[2 * k + 1])
            if k == 3: I("buffer_store_dwordx4", xo[0:4], self.vL16, self.sWS, self.sXp, mods="offen")
        I("buffer_store_dwordx4", xo[4:8], self.vL16, self.sWS, self.sXp, mods="offen offset:1024")
        sm, sq = V(120, 2), V(122, 2)
        self.pk("v_pk_add_f32", sm, self.vR[0:2], self.vR[2:4])
        self.pk("v_pk_mul_f32", sq, self.vR[0:2], self.vR[0:2])
        self.pk("v_pk_fma_f32", sq, self.vR[2:4], self.vR[2:4], sq)
        for k in range(2, 8):
            self.pk("v_pk_add_f32", sm, sm, self.vR[2 * k:2 * k + 2])
            self.pk("v_pk_fma_f32", sq, self.vR[2 * k:2 * k + 2], self.vR[2 * k:2 * k + 2], sq)
        pr = V(124, 2)
        I("v_add_f32", pr[0], sm[0], sm[1])
        I("v_add_f32", pr[1], sq[0], sq[1])
        x, y = pr[0], pr[1]
        I("s_add_u32", self.sL, self.sL, 1)
        I("s_lshl_b32", T[0], self.sL, 4)
        I("v_permlane32_swap_b32", x, y)
        I("s_or_b32", T[0], T[0], self.sBase)
        I("v_add_f32", x, x, y)
        I("v_mov_b32", y, x)
        I("v_mov_b32", self.vT, T[0])
        I("s_cmp_eq_u32", self.sPhase, 0)
        I("v_permlane16_swap_b32", x, y)
        I("s_cselect_b32", self.sPend, self.sHaloProd, 0)
        I("v_add_f32", x, x, y)
        I("v_mov_b32", y, x)
        I("s_lshl_b32", T[1], self.sC, 10)
        I("s_add_u32", T[1], T[1], self.sHX)
        I("v_permlane32_swap_b32", x, y)
        STG = self.opt.get("stag", 0)
        if STG:
            I("s_and_b32", T[2], self.sL, 3)
            I("v_and_or_b32", y, y, -4, T[2])
        I("s_mov_b64", EXEC, "0xffff")
        I("buffer_store_dwordx2", pr, self.vStatSt, self.sWS, self.sXSp, mods="offen")
        I("s_mov_b64", EXEC, -1)
        nh, pub = self.lab("nohalo"), self.lab("pub")
        I("s_cmp_eq_u32", self.sPend, 0)
        I("s_cbranch_scc0", nh)
        wb, wbd = self.lab("pwb"), self.lab("pwbd")
        I("s_cmp_ge_u32", self.sL, 3)
        I("s_cbranch_scc1", wb)
        a.label(wbd)
        def write_back():
            self.a.label(wb)
            self.mid_exchange(wbd)
        self.tail.append(write_back)
        a.wait(vm=1 if STG else 0)
        a.label(pub)
        self.publish(self.sFXp)

        def tail():
            b = self.a
            b.label(nh)
            b.I("s_add_u32", T[1], T[1], 16384)
            b.I("s_mov_b32", self.sT2[0], "0xff00ff00")
            b.I("s_mov_b32", self.sT2[1], "0xff00ff00")
            b.I("s_mov_b64", EXEC, self.sT2)
            b.I("buffer_store_dwordx4", xo[0:4], self.vHp, self.sWS, T[1], mods="offen sc1")
            b.I("buffer_store_dwordx4", xo[4:8], self.vHp, self.sWS, T[1], mods="offen offset:512 sc1")
            b.I("s_lshl_b32", T[1], self.sC, 7)
            b.I("s_add_u32", T[1], T[1], self.sHX)
            b.I("s_add_u32", T[1], T[1], 16384 + 14336)
            b.I("s_mov_b64", EXEC, "0xffff")
            b.I("buffer_store_dwordx2", pr, self.vStatSt, self.sWS, T[1], mods="offen sc1")
            b.I("s_mov_b64", EXEC, -1)
            self.it_b = None
            self.b_to_a(range(14, 14 + self.opt.get("mx", 4)))
            b.wait(vm=4 if STG else 3)
            b.I("s_branch", pub)
        self.tail.append(tail)
        a.label("L_pnext")
        a.flush()
        a.forget_counters()
        self.stamp()
        if self.opt.get("stop"):
            I("s_cmp_eq_u32", self.sL, self.opt["stop"])
            I("s_cbranch_scc1", "L_fin2")
        I("s_cmp_eq_u32", self.sPhase, 1)
        I("s_cbranch_scc1", "L_qb")

        def idle():
            b = self.a
            b.label("L_pidle")
            b.I("s_cmp_eq_u32", self.sL, 4)
            b.I("s_cbranch_scc1", "L_fin2")
            b.I("s_add_u32", self.sL, self.sL, 1)
            b.I("s_cmp_lt_u32", self.sL, 3)
            b.I("s_cbranch_scc1", "L_pnext")
            self.mid_exchange("L_pnext")
        self.tail.append(idle)

    def q_poll(self, shadow=None):
        a, I = self.a, self.I
        T = self.sT
        ex, t, pv = V(112), V(113), V(114)
        loop, ok, pend, nopend, slow, again = (self.lab(x) for x in ("qpoll", "qpass", "pend", "nopend", "qslow", "qagain"))
        I("v_mad_u32_u24", ex, self.vExpM, self.sL, self.vExpC)
        if shadow:
            chk = self.lab("qchk")
            I("buffer_load_dword", pv, self.vPollQ, self.sWS, 0, mods="offen sc1")
            shadow()
            I("s_branch", chk)
        a.label(loop)
        I("buffer_load_dword", pv, self.vPollQ, self.sWS, 0, mods="offen sc1")
        if shadow: a.label(chk)
        I("s_cmp_eq_u32", self.sPend, 0)
        a.wait(vm=0)
        I("s_cbranch_scc0", pend)
        a.label(nopend)
        I("v_xor_b32", t, pv, ex)
        I("v_cmp_ne_u32", VCC, 0, t)
        I("s_cbranch_vccnz", slow)
        a.label(ok)
        a.vm = []

        def tail():
            b = self.a
            b.label(pend)
            b.I("s_lshl_b32", T[1], self.sC, 2)
            b.I("s_add_u32", T[1], T[1], self.sFHp)
            self.flag_value(T[0])
            b.I("v_mov_b32", self.vT, T[0])
            b.I("s_mov_b64", EXEC, 1)
            b.I("buffer_store_dword", self.vT, OFF, self.sWS, T[1], mods="offset:128 sc1")
            b.I("s_mov_b64", EXEC, -1)
            b.I("s_mov_b32", self.sPend, 0)
            b.I("s_branch", nopend)
            b.label(slow)
            if self.opt.get("dual", 1):
                fast, gen = self.lab("qfast"), self.lab("qgen")
                b.I("s_cmp_eq_u32", self.sL, 1)
                b.I("s_cselect_b32", T[0], 0, self.sMode)
                b.I("s_cmp_eq_u32", T[0], 0)
                b.I("s_cbranch_scc1", gen)
                b.I("buffer_load_dword", pv, self.vPollQ, self.sWS, 0, mods="offen sc1")
                b.nop(self.opt.get("dnop", 8))
                b.label(fast)
                for x, y in ((t, pv), (pv, t)):
                    b.I("buffer_load_dword", x, self.vPollQ, self.sWS, 0, mods="offen sc1", untracked=True)
                    b.raw("    s_waitcnt vmcnt(1)")
                    b.forget_counters()
                    b.I("v_cmp_ne_u32", VCC, ex, y)
                    b.I("s_cbranch_vccz", ok)
                self.budget_branch(fast)
                b.label(gen)
            b.I("s_cmp_eq_u32", self.sMode, 0)
            b.I("s_cbranch_scc1", again + "m")
            b.I("v_not_b32", V(115), self.vPollM)
            b.I("v_and_b32", V(116), t, self.vPollM)
            b.I("v_and_b32", V(115), t, V(115))
            b.I("v_cmp_ne_u32", self.sT2, 0, V(115))
            b.I("v_cmp_eq_u32", VCC, 0, V(116))
            b.nop(2)
            b.I("s_cmp_eq_u64", self.sT2, 0)
            b.I("s_cbranch_scc1", again)
            b.I("s_and_b32", T[0], VCC_LO, VCC_HI)
            b.I("s_andn2_b32", T[0], "0xffff0000", T[0])
            b.I("s_cbranch_scc1", again)
            b.I("s_mov_b32", self.sMode, 0)
            b.I("s_add_u32", self.sFXp, self.sFXp, WS_SLOW)
            b.I("s_add_u32", self.sFOq, self.sFOq, WS_SLOW)
            b.I("s_add_u32", self.sFOp, self.sFOp, WS_SLOW)
            b.I("v_lshlrev_b32", V(115), 11, self.vExpM)
            b.I("v_add_u32", self.vPollQ, V(115), self.vPollQ)
            if self.opt.get("s0l", 1):
                b.I("s_cmp_eq_u32", self.sC, 7)
                b.I("s_cbranch_scc1", again)
                b.I("buffer_wbl2", mods="sc1")
                b.wait(vm=0)
                b.I("s_or_b32", T[0], self.sBase, 16)
                b.I("v_mov_b32", self.vT, T[0])
                b.I("s_mov_b64", EXEC, 1)
                b.I("buffer_store_dword", self.vT, OFF, self.sWS, self.sFXp, mods="sc1")
                b.I("s_mov_b64", EXEC, -1)
            b.I("s_branch", again)
            b.label(again + "m")
            b.I("v_and_b32", V(116), t, self.vPollM)
            b.I("v_cmp_ne_u32", VCC, 0, V(116))
            b.I("s_cbranch_vccz", ok)
            b.label(again)
            self.budget_branch(loop)
        self.tail.append(tail)

    def xload(self, ks):
        out = []
        if ks % 4 == 0:
            out.append(("s", lambda: self.I("s_add_u32", self.sT[1], self.sXq, ks * 1024)))
            out.append(("s", lambda: self.I("s_add_u32", self.sT[2], self.sXq, ks * 1024 + 14336)))
        for t in range(2):
            out.append(("v", lambda t=t: self.I("buffer_load_dwordx4", self.xf(t, ks), self.vL16, self.sWS, self.sT[1 + t],
                                               mods=f"offen offset:{(ks % 4) * 1024} sc1")))
        return out

    def stats_ops(self, T, layer):
        raw, st = self.straw(T), self.st(T)
        t = V(188 + 2 * T, 2)
        ops = []
        def add(*x, **k): ops.append(("w" if ("perm" in x[0] or "rsq" in x[0]) else "v", lambda: self.I(*x, **k)))
        add("v_and_b32", raw[2], raw[2], self.vM3)
        add("v_and_b32", raw[3], raw[3], self.vM3)
        add("v_add_f32", raw[0], raw[0], raw[2])
        add("v_add_f32", raw[1], raw[1], raw[3])
        for step in range(7):
            x, y = raw[0], raw[1]
            if step in (0, 6): add("v_permlane32_swap_b32", x, y)
            elif step in (1, 4): add("v_add_f32", x, x, y)
            elif step in (2, 5): add("v_mov_b32", y, x)
            else: add("v_permlane16_swap_b32", x, y)
        add("v_mul_f32", st[0], f32(-1.0 / 448), raw[0])
        add("v_mul_f32", t[0], f32(1.0 / 448), raw[1])
        add("v_fma_f32", t[0], Neg(st[0]), st[0], t[0])
        add("v_max_f32", t[0], 0, t[0])
        add("v_add_f32", t[0], f32(1e-5), t[0])
        add("v_rsq_f32", st[1], t[0])
        add("v_and_b32", st[2], st[1], self.vMH if T == 2 else self.vM3)
        if T < 2:
            add("v_mul_f32", st[3], f32(LOG2E * (28 ** -0.5 if layer == "A" else 1.0)), st[1])
        return ops

    def colsum_part(self, ad, steps, cs_off):
        a, I = self.a, self.I
        d = V(192, 4)
        def w(k): return self.wf(k % 4)
        def rd(k): I("ds_read_b128", w(k), ad, mods=f"offset:{steps[k] * 2048}")
        for k in range(4): rd(k)
        mf, sw = [], []
        for k in range(len(steps)):
            mf.append((d, w(k), self.aOnes, 0 if k == 0 else d))
            if k + 4 < len(steps): sw.append((k, "v", lambda k=k: rd(k + 4)))
        assert not self.sched(mf, [sw])
        I("v_lshrrev_b32", V(189), 8, self.vL16)
        I("v_lshlrev_b32", V(189), 4, V(189))
        I("s_add_u32", self.sT[0], self.sT[0], L_CS + cs_off)
        I("v_add_u32", V(189), self.sT[0], V(189))
        I("s_mov_b32", self.sT2[0], "0x00010001")
        I("s_mov_b32", self.sT2[1], "0x00010001")
        a.flush()
        I("s_mov_b64", EXEC, self.sT2)
        I("ds_write_b128", V(189), d)
        I("s_mov_b64", EXEC, -1)

    def colsum_b_q(self):
        I, T = self.I, self.sT
        I("v_lshrrev_b32", V(188), 8, self.vL16)
        I("v_lshlrev_b32", V(188), 4, V(188))
        I("v_add_u32", V(188), L_CS, V(188))
        for ft in range(2, 6):
            I("ds_read_b128", self.cB[4 * ft:4 * ft + 4], V(188), mods=f"offset:{64 * ft}")

    def colsum_b_q2(self):
        a, I = self.a, self.I
        done = self.lab("cq2")
        a.wait_lg_all()
        I("s_cmp_lg_u32", self.sIt, 0)
        I("s_cbranch_scc1", done)
        def w(ks, ft): return self.wf(2 * (ks % 3) + ft)
        for ks in range(3):
            for ft in range(2):
                for f in self.qa_read(w(ks, ft), ft, ks): f()
        mf, sw = [], []
        for ks in range(14):
            for ft in range(2):
                d = self.cB[4 * ft:4 * ft + 4]
                mf.append((d, w(ks, ft), self.aOnes, 0 if ks == 0 else d))
                if ks + 3 < 14: sw += [(len(mf) - 1, "v", f) for f in self.qa_read(w(ks, ft), ft, ks + 3)]
        assert not self.sched(mf, [sw])
        a.flush()
        a.label(done)

    def cs_read(self, dst, with_halo):
        I = self.I
        ad = V(204)
        self.cs_done = True
        I("v_lshrrev_b32", ad, 8, self.vL16)
        I("v_lshlrev_b32", ad, 4, ad)
        I("v_add_u32", ad, L_CS, ad)
        for ft in range(6):
            I("ds_read_b128", dst[4 * ft:4 * ft + 4], ad, mods=f"offset:{64 * ft}")
        if with_halo:
            I("s_lshl_b32", self.sT[0], self.sW, 6)
            I("v_add_u32", V(205), self.sT[0], ad)
            I("ds_read_b128", self.vCH, V(205), mods="offset:128")

    def wphi_gather(self):
        a, I = self.a, self.I
        j, g, f1, ad, t = V(214), V(215), V(216), V(217), V(218)
        I("v_lshrrev_b32", g, 8, self.vL16)
        I("v_lshrrev_b32", j, 2, self.vPollP)
        I("v_lshrrev_b32", t, 2, j)
        I("v_sub_u32", f1, j, t)
        I("v_add_u32", f1, 16, f1)
        I("v_mul_u32_u24", ad, 4 * 56, g)
        I("v_add_u32", ad, L_WPHI, ad)
        I("v_lshl_add_u32", f1, f1, 1, ad)
        I("v_lshl_add_u32", ad, j, 1, ad)
        I("v_and_b32", t, 3, j)
        I("v_cmp_ne_u32", VCC, 3, t)
        I("v_cndmask_b32", t, 0, -1, VCC)
        I("v_and_b32", j, t, self.vM3)
        for oft, base in enumerate((ad, f1)):
            for e in range(8):
                d = e if e < 4 else 16 + e - 4
                I("ds_read_u16", V(204 + e), base, mods=f"offset:{d * 56}")
            for p in range(4):
                I("v_lshl_or_b32", V(204 + 2 * p), V(205 + 2 * p), 16, V(204 + 2 * p))
                m = (None, self.vM3)[p >> 1] if oft == 0 else (t, j)[p >> 1]
                if m is not None: I("v_and_b32", V(204 + 2 * p), V(204 + 2 * p), m)
                I("v_accvgpr_write_b32", self.aWphi[4 * oft + p], V(204 + 2 * p))

    def conv_scalar(self, dst, T, mat, c, scales):
        out = []
        st = self.st(T)
        for f in range(2):
            acc = self.acc(T, 2 * mat + f)
            cc = c[4 * (2 * mat + f):4 * (2 * mat + f) + 4]
            for k in range(4): out.append(lambda acc=acc, cc=cc, k=k: self.I("v_fma_f32", acc[k], cc[k], st[0], acc[k]))
            m = {"r": st[1], "m": st[2], None: None}[scales[f]]
            if m is not None:
                for k in range(4): out.append(lambda acc=acc, m=m, k=k: self.I("v_mul_f32", acc[k], acc[k], m))
            for p in range(2): out.append(lambda acc=acc, f=f, p=p: self.I("v_cvt_pk_bf16_f32", dst[2 * f + p], acc[2 * p], acc[2 * p + 1]))
        return out

    def check_parked(self, before):
        assert self.a.count["ds_read_b128"] - before == 21

    def b_tiles(self): return (2, 3, 4, 5, 0) if self.opt.get("qsplit", 0) else (2, 3, 4, 5)

    def q_ready(self, layer, first=False):
        a, I = self.a, self.I
        a.wait(lg=0)
        I("s_barrier")
        once = self.lab("once")
        if layer == "B":
            I("s_cmp_lg_u32", self.sIt, 0)
            I("s_cbranch_scc1", once)
        nvm = len(a.vm)
        if layer == "A" and not first:
            pass
        elif layer == "A":
            if self.OV == 14: self.cs_read(self.cA, True)
            for n in range(4): I("ds_read_b64", V(212 + 2 * n, 2), V(0), mods=f"offset:{32 * n}")
            for n in range(4):
                for p in range(2):
                    I("v_lshlrev_b32", self.vR[4 * n + 2 * p], 16, V(212 + 2 * n + p))
                    I("v_and_b32", self.vR[4 * n + 2 * p + 1], "0xffff0000", V(212 + 2 * n + p))
        else:
            self.colsum_b_q()
        a.wait_lg_all()
        a.flush()
        assert nvm == len(a.vm)
        a.label(once)
        for ft in (range(6) if layer == "A" else self.b_tiles()):
            for f in self.qa_read(self.wf(ft), ft, 0): f()

    def q_gemm(self, layer, tail_ops=(), first=None):
        a, I = self.a, self.I
        T = self.sT
        isA = layer == "A"
        LOOK = self.opt.get("look", 3)
        if not first:
            for ks in range(2):
                for _, f in self.xload(ks): f()
            if not isA: self.q_ready("B")
            for _, f in self.xload(2): f()
        reads0, writes0 = a.count.get("ds_read_b128", 0), a.count.get("ds_write_b128", 0)
        def bar(n):
            assert a.count["ds_read_b128"] - reads0 == n and not a.lg
            assert a.count.get("ds_write_b128", 0) == writes0 + (2 * (15 - self.OV) if OVL else 0)
            I("s_barrier")

        G = 12 if isA else 2 * len(self.b_tiles())
        mf, sw, sx, sd, sv, sh, stc = [], [], [], [], [], [], []
        OVL = bool(first) and self.OV < 14
        RE = isA and self.opt.get("reord", 1) and not OVL
        def guarded(body):
            import copy
            skip = self.lab("own")
            I("s_cmp_eq_u32", self.sW, 3)
            I("s_cbranch_scc1", skip)
            keep = copy.deepcopy(a.lg)
            body()
            a.lg = keep
            a.label(skip)
        def arrive(b):
            def body():
                a.wait_shadow(f"raw{b}")
                self.convert_block(b)
                if b == 13: self.cs_write()
                a.wait(lg=0)
            guarded(body)
            I("s_barrier")
        for ks in range(12 if RE else 14):
            order = ((2, 3, 4, 5, 0, 1) if ks == 13 else range(6)) if isA else self.b_tiles()
            if OVL and self.OV <= ks + 1 < 14: sw.append((len(mf), "w", lambda b=ks + 1: arrive(b)))
            for ft in order:
                for t in ((1, 0) if ks == 13 else (0, 1)):
                    mf.append((self.acc(t, ft), self.wf(ft), self.xf(t, ks), 0 if ks == 0 else self.acc(t, ft)))
                if ks < 13:
                    sw += [(len(mf) - 1, "v", f) for f in self.qa_read(self.wf(ft), ft, ks + 1)]
                if RE and ks == 11 and ft in (2, 3):
                    sw += [(len(mf) - 1, "v", f) for f in self.qa_read(self.wf(4 + ft), ft, 13)]
        if RE:
            last = {2: 6, 3: 7, 4: 2, 5: 3, 0: 6, 1: 7}
            for mat in (1, 2, 0):
                for ks in (12, 13):
                    for ft in (2 * mat, 2 * mat + 1):
                        slot = ft if ks == 12 else last[ft]
                        for t in (1, 0):
                            mf.append((self.acc(t, ft), self.wf(slot), self.xf(t, ks), self.acc(t, ft)))
                        nxt = [f2 for f2 in last if last[f2] == slot and f2 != ft and ((mat == 1 and ks == 12 and f2 in (4, 5)) or (mat == 1 and ks == 13 and f2 in (0, 1)))]
                        for f2 in nxt: sw += [(len(mf) - 1, "v", f) for f in self.qa_read(self.wf(slot), f2, 13)]
        for k in range(3, 14):
            gap = max(0, G * (k - LOOK) - (6 if k > 6 else 0)) if isA else max(0, G * (k - self.opt.get("lookb", 4)))
            if isA and self.opt.get("slope", 75): gap = (G * (k - 3) * self.opt.get("slope", 75)) // 100
            xl = self.xload(k)
            sx += [(gap, kind, f) for kind, f in xl[:-1]] + [(gap + 4, "v", xl[-1][1])]
            if OVL:
                todo = [b for b in range(self.OV1, 14) if 2 + (b - self.OV1) * self.opt.get("ovs", 2) + 1 == k]
                for b in todo: sx.append((gap + 4, "w", lambda b=b: guarded(lambda: self.raw_block(b, untracked=True, shadow=True))))
            SK = self.opt.get("ska", 6) if isA else self.opt.get("skb", 7)
            if k in (SK, SK + 1):
                for t in (k - SK,):
                    for q in range(2):
                        sx.append((gap + 7 + 2 * q, "v", lambda t=t, q=q: I(
                            "buffer_load_dwordx2", self.straw(t)[2 * q:2 * q + 2], self.vStat, self.sWS, self.sXSq,
                            mods=f"offen offset:{t * 1024 + 512 * q} sc1")))
        s0, s1 = self.stats_ops(0, layer), self.stats_ops(1, layer)
        sv += [(G * SK + 6 - G * self.opt.get("sva", 0) if isA else G * (SK - 1), k, f) for p in zip(s0, s1) for k, f in p]
        x2 = a.count.get("buffer_load_dwordx2", 0)
        def loaded(f, n):
            def g():
                assert a.count["buffer_load_dwordx2"] - x2 >= n, "row sums used before they were requested"
                f()
            return g
        if self.opt.get("stag", 0):
            slow_s, back_s = self.lab("sslow"), self.lab("sback")
            u, w = V(188), V(190)
            r0, r1 = self.straw(0), self.straw(1)
            def chk_ops():
                return [("v", lambda: I("v_xor_b32", u, r0[3], r1[3])), ("v", lambda: I("v_xor_b32", w, r0[1], r1[1])),
                        ("v", lambda: I("v_bitop3_b32", u, u, r0[3], self.sL, mods="bitop3:0xf6")),
                        ("v", lambda: I("v_bitop3_b32", w, w, r0[1], self.sL, mods="bitop3:0xf6")),
                        ("v", lambda: I("v_and_or_b32", u, u, self.vM3, w)), ("v", lambda: I("v_and_b32", u, 3, u)),
                        ("v", lambda: I("v_cmp_ne_u32", VCC, 0, u))]
            def br_s():
                I("s_cbranch_vccnz", slow_s)
                a.label(back_s)
            def tail_s():
                b = self.a
                b.label(slow_s)
                b.I("s_sub_u32", self.sBudget, self.sBudget, 1)
                b.I("s_cbranch_scc1", "L_end")
                for t in range(2):
                    for q in range(2):
                        b.I("buffer_load_dwordx2", self.straw(t)[2 * q:2 * q + 2], self.vStat, self.sWS, self.sXSq,
                            mods=f"offen offset:{t * 1024 + 512 * q} sc1")
                b.wait(vm=0)
                for _, f in chk_ops(): f()
                b.I("s_cbranch_vccnz", slow_s)
                b.I("s_branch", back_s)
            self.tail.append(tail_s)
            co = chk_ops()
            sv = [(sv[0][0], k, f) for k, f in co[:-1]] + [(sv[0][0], "v", lambda: (co[-1][1](), br_s()))] + sv
        sv[0] = (sv[0][0], sv[0][1], loaded(sv[0][2], 4))
        sf = []
        freg = 6 if first else (1 if isA else 2)
        if self.opt.get("fine") == freg:
            sf = [(G * 2 * i, "s", lambda i=i: self.fine(freg, i)) for i in range(7)]
        nd = 0
        for k, f in self.pw_dma(self.sWOA, range(8)) if isA else ():
            sd.append((G * 10 + 2 + 5 * nd, k, f))
            nd += k == "v"
        if isA:
            HF, HC = self.opt.get("hf", 4), self.opt.get("hc", 8)
            hv, hx, fv = V(194), V(195), V(196)
            def check(reg, first, gap, shift):
                slow, back = self.lab("hslow"), self.lab("hback")
                def br():
                    I("v_cmp_ne_u32", VCC, hx, reg)
                    I("s_cbranch_vccnz", slow)
                    a.label(back)
                out = [(first, "v", lambda: I("buffer_load_dword", reg, self.vPollH, self.sWS, 0, mods="offen sc1")),
                       (gap, "v", br)]
                def tail():
                    b = self.a
                    b.label(slow)
                    b.I("s_sub_u32", self.sBudget, self.sBudget, 1)
                    b.I("s_cbranch_scc1", "L_end")
                    b.I("buffer_load_dword", reg, self.vPollH, self.sWS, 0, mods="offen sc1")
                    b.wait(vm=0)
                    b.I("v_cmp_ne_u32", VCC, hx, reg)
                    if shift: b.I("s_lshr_b64", VCC, VCC, 16)
                    b.I("s_cbranch_scc1" if shift else "s_cbranch_vccnz", slow)
                    b.I("s_branch", back)
                self.tail.append(tail)
                return out
            stc = [(2, "v", lambda: I("v_mad_u32_u24", hx, self.vExpHM, self.sL, self.vExpHC))]
            sh += check(hv, G * HF + 8, G * HC, False)
            sh.append((G * HC, "s", lambda: I("s_lshl_b32", T[0], self.sW, 11)))
            sh.append((G * HC, "s", lambda: I("s_add_u32", M0, T[0], L_HX, m0="halo")))
            sh.append((G * HC, "s", lambda: I("s_add_u32", T[0], T[0], self.sHX)))
            for q in range(2):
                sh.append((G * HC, "v", lambda q=q: I("buffer_load_dwordx4", self.vHalo, self.sWS, T[0], mods=f"offen offset:{1024 * q} sc1 lds", tag="halo", m0="halo")))
            sh.append((G * HC, "s", lambda: I("s_add_u32", T[0], self.sHX, 14336)))
            for q in range(2):
                sh.append((G * HC, "v", lambda q=q: I("buffer_load_dwordx2", self.straw(2)[2 * q:2 * q + 2], self.vHaloS, self.sWS, T[0],
                                                     mods=f"offen offset:{512 * q} sc1")))
            sh.append((G * HC, "v", lambda: I("v_add_u32", V(194), L_HX, self.vHp)))
            def hw(k): return A(4 * k, 4)
            shw = []
            had = self.vQh
            for k in range(14): shw.append((max(G * (1 + (k * 11) // 14), G * k - 6 if OVL else 0) + 3, "v", lambda k=k: I("ds_read_b128", hw(k), had, mods=f"offset:{k * 2048}")))
            s2 = self.stats_ops(2, layer)
            sv2 = [(G * (HC + 4), k, loaded(f, 6)) for k, f in s2]
            nb = len(mf) - 11
            sb = [(nb, "s", lambda: a.wait_vm_tag("halo")), (nb, "s", lambda: a.wait(lg=0)), (nb, "s", lambda: bar(78 + 14 + (21 if first and not OVL else 0)))]
            if OVL: sb += [(nb, "w", lambda: self.cs_read(self.cA, True))]
            sb += [((nb if k < 10 or not RE else len(mf) - 1), "v", lambda k=k: I("ds_read_b128", self.hx(k), V(194), mods=f"offset:{512 * k}")) for k in range(14)]
            n0 = len(mf)
            for k in range(14): mf.append((self.hacc, hw(k), self.hx(k), 0 if k == 0 else self.hacc))
            stl = [(n0 - 6, "v", f) for f in tail_ops]
            if RE:
                stl = [(n0 - 15 if k < 20 else (nb + 1 if k == 20 else n0 - 7), "v", f) for k, f in enumerate(tail_ops)]
            if not first and self.opt.get("otouch", 0):
                sd.append((G * 13, "v", lambda: I("v_mul_u32_u24", V(197), 448, self.vPollP)))
                sd.append((G * 13, "v", lambda: I("buffer_load_dword", self.vDummy, V(197), self.sOUT, self.sX0o, mods="offen", nodest=True)))
            sd.append((G * 13, "s", lambda: I("s_lshr_b32", T[3], self.sGrp, 1)))
            sd.append((G * 13, "s", lambda: I("s_lshl_b32", T[3], T[3], 10)))
            sd.append((G * 13, "s", lambda: I("s_add_u32", T[3], T[3], self.sKVld)))
            sd.append((G * 13, "s", lambda: I("s_add_u32", T[3], T[3], 8192)))
            sd.append((G * 13, "v", lambda: I("buffer_load_dword", self.vDummy, self.vL16, self.sWS, T[3], mods="offen", nodest=True)))
            spark, sfw = [], []
            if first:
                spark = [(G * self.opt.get("pk0", 6) + self.opt.get("pkd", 4) * n, "v", lambda n=n: I("ds_read_b128", self.stash(n + 1), self.vQS, mods=self.piece(n))) for n in range(21)]
                sfw = [(nb + 6 + 8 * k, "w", first) for k in range(2)]
                if OVL:
                    sb += [(nb + 8, k, f) for _, k, f in spark]
                    spark, sfw = [], []
            rest = self.sched(mf, [sf, sw, sx, stc, sh, shw, spark, sb, sd, sfw, sv + stl, sv2])
        else:
            n0 = len(mf)
            stl = [(n0 - G + 4, "v", f) for f in tail_ops]
            rest = self.sched(mf, [sf, sw, sx, sv + stl])
        return rest

    def ln(self, acc, c, st, scale):
        for p in range(2):
            self.pk("v_pk_fma_f32", acc[2 * p:2 * p + 2], c[2 * p:2 * p + 2], st[0:2], acc[2 * p:2 * p + 2], by=0)
        if scale == "r":
            for p in range(2): self.pk("v_pk_mul_f32", acc[2 * p:2 * p + 2], acc[2 * p:2 * p + 2], st[0:2], by=1)
        elif scale == "m":
            for p in range(2): self.pk("v_pk_mul_f32", acc[2 * p:2 * p + 2], acc[2 * p:2 * p + 2], st[2:4], by=0)
        elif scale == "e":
            self.pk("v_pk_fma_f32", acc[0:2], acc[0:2], st[2:4], self.vE0, by=0)
            self.pk("v_pk_mul_f32", acc[2:4], acc[2:4], st[2:4], by=0)

    def cvt(self, dst, src):
        for p in range(src.cnt // 2):
            self.I("v_cvt_pk_bf16_f32", dst[p], src[2 * p], src[2 * p + 1])

    def conv(self, dst, T, mat, c, scales):
        for f in range(2):
            ft = 2 * mat + f
            self.ln(self.acc(T, ft), c[4 * ft:4 * ft + 4], self.st(T), scales[f])
        for f in range(2):
            self.cvt(dst[2 * f:2 * f + 2], self.acc(T, 2 * mat + f))

    def o_finish(self, o, den, of, in_drain, after, through=False):
        a, I = self.a, self.I
        T = self.sT
        I("s_add_u32", T[1], self.sOq, 16384)
        self.flag_value(T[0])
        for t in range(2): I("v_rcp_f32", den[t][0], den[t][0])
        I("v_mov_b32", self.vT, T[0])
        def tile(t, fl):
            if t:
                for p in range(4): self.pk("v_pk_mul_f32", o[t][2 * p:2 * p + 2], o[t][2 * p:2 * p + 2], den[t][0:2], by=0)
                self.cvt(of[t], o[t])
            I("buffer_store_dwordx2", of[t][0:2], self.vO0, self.sWS, T[1] if t else self.sOq, mods="offen" + fl)
            I("buffer_store_dwordx2", of[t][2:4], self.vO1, self.sWS, T[1] if t else self.sOq, mods="offen" + fl)
        far, stored = self.lab("ofar"), self.lab("ostored")
        I("s_cmp_eq_u32", self.sMode, 0)
        for p in range(4): self.pk("v_pk_mul_f32", o[0][2 * p:2 * p + 2], o[0][2 * p:2 * p + 2], den[0][0:2], by=0)
        self.cvt(of[0], o[0])
        I("s_cbranch_scc1", far)
        for t in range(2): tile(t, " sc1" if through else "")
        a.label(stored)
        def device_scope():
            self.a.label(far)
            for t in range(2): tile(t, " sc1")
            self.I("s_branch", stored)
        self.tail.append(device_scope)
        self.fine(getattr(self, "fin_region", 0) or -1, 6)
        self.fin_region = 0
        if in_drain: in_drain()
        a.wait(vm=0)
        self.publish(self.sFOq)
        self.stamp()
        if after: after()

    def qa_stage(self, first=False):
        a, I = self.a, self.I
        if first:
            a.raw(".p2align 12")
            if self.opt.get("pad", 512): a.raw(f".fill {self.opt.get('pad', 512) // 4}, 4, 0xbf800000")
        a.label("L_qa1" if first else "L_qa")
        a.forget_counters()
        self.it_b = None
        left = list(range(7, 21)) + list(range(7))
        NE, NH = self.opt.get("ne", 10), self.opt.get("nh", 4)
        def more():
            if first and len(left) > 21 - NE: self.fw_piece(left.pop(0))
        self.more = more
        if first:
            have = self.lab("havex")
            if self.look:
                self.q_ready("A", True)
                I("s_cmp_eq_u32", S(3), 1)
                I("s_cbranch_scc1", have)
                self.q_poll()
            else:
                self.q_poll(lambda: self.q_ready("A", True))
            for ks in range(3):
                for _, f in self.xload(ks): f()
            a.label(have)
            if self.OV < 14: a.vm_all = self.inflight + [None] * 6
        else: self.q_poll(lambda: (self.b_to_a(range(14 + self.opt.get("mx", 4), 21)), self.q_ready("A")))
        self.stamp()
        kf = [V(196, 4), V(200, 4)]
        qf = [V(204, 4), V(208, 4)]
        vp = [V(212, 4), V(216, 4)]
        hp = V(220, 2)
        tail_ops = self.conv_scalar(kf[1], 1, 1, self.cA, ("r", "m"))
        tail_ops.append(lambda: I("ds_write_b128", self.vKrd, kf[1], mods="offset:1024"))
        tail_ops += self.conv_scalar(vp[1], 1, 2, self.cA, ("r", "r"))
        tail_ops.append(lambda: I("ds_write_b128", self.vEXW, vp[1], mods="offset:2048"))
        TV0 = self.opt.get("tv0", 0)
        if TV0:
            tail_ops += self.conv_scalar(vp[0], 0, 2, self.cA, ("r", "r"))
            tail_ops.append(lambda: I("ds_write_b128", self.vEXW, vp[0], mods="offset:1024"))
        head = tail_ops[0]
        def checked():
            assert self.cs_done
            head()
        tail_ops[0] = checked
        rest = self.q_gemm("A", tail_ops, more if first else None)
        for f in rest: f()
        if first and self.OV < 14: a.wait_lg_all()
        self.stamp()
        more()
        if not TV0:
            self.conv(vp[0], 0, 2, self.cA, ("r", "r"))
            I("ds_write_b128", self.vEXW, vp[0], mods="offset:1024")
        self.ln(self.hacc, self.vCH, self.st(2), "m")
        self.cvt(hp, self.hacc)
        I("ds_write_b64", self.vHW, hp)
        more()
        self.conv(qf[0], 0, 0, self.cA, (None, None))
        self.fine(4, 0)
        a.wait(lg=0)
        I("s_barrier")
        self.fine(4, 1)
        kprev = V(222, 4)
        vt = [V(226, 6), V(232, 6)]
        I("ds_read_b128", kprev, self.vKrd)
        for f in range(2):
            for i in range(3):
                I("ds_read_b64_tr_b16", vt[f][2 * i:2 * i + 2], self.vEXRa, mods=f"offset:{1024 * i + 8 * f}")
        more()
        self.conv(kf[0], 0, 1, self.cA, ("r", "m"))
        more()
        self.conv(qf[1], 1, 0, self.cA, (None, None))
        s = [V(112, 8), V(120, 8)]
        self.mfma(s[1][4:8], kf[1], qf[1], self.bCur)
        self.mfma(s[1][0:4], kf[0], qf[1], self.bPrev)
        self.mfma(s[0][4:8], kf[0], qf[0], self.bCur)
        self.mfma(s[0][0:4], kprev, qf[0], self.bPrev0)
        self.fine(4, 2)
        more()
        m = V(128, 2)
        for t in (1, 0):
            I("v_max3_f32", m[t], s[t][4], s[t][5], s[t][6])
            I("v_max3_f32", m[t], m[t], s[t][7], s[t][0])
            I("v_max3_f32", m[t], m[t], s[t][1], s[t][2])
            I("v_max_f32", m[t], m[t], s[t][3])
        self.allreduce_pairs([("v_max_f32", m[0], m[1])])
        more()
        nm = [V(130, 2), V(132, 2)]
        for t in range(2):
            I("v_mul_f32", nm[t][0], m[t], self.st(t)[3])
        for t in range(2):
            for p in range(4):
                self.I("v_pk_fma_f32", s[t][2 * p:2 * p + 2], s[t][2 * p:2 * p + 2], self.st(t)[2:4], nm[t],
                       mods="op_sel:[0,1,0] op_sel_hi:[1,1,0] neg_lo:[0,0,1] neg_hi:[0,0,1]")
        self.fine(4, 3)
        pf = [V(136, 4), V(140, 4)]
        o = [V(144, 8), V(152, 8)]
        sm = [V(160, 4), V(164, 4)]
        more()
        for k in range(8): I("v_exp_f32", s[0][k], s[0][k])
        more()
        for k in range(2): I("v_exp_f32", s[1][k], s[1][k])
        self.cvt(pf[0], s[0])
        for k in range(2, 4): I("v_exp_f32", s[1][k], s[1][k])
        self.mfma(sm[0], self.aOnes, pf[0], 0)
        I("v_exp_f32", s[1][4], s[1][4])
        self.mfma(o[0][0:4], vt[0][0:4], pf[0], 0)
        I("v_exp_f32", s[1][5], s[1][5])
        self.mfma(o[0][4:8], vt[1][0:4], pf[0], 0)
        for k in range(6, 8): I("v_exp_f32", s[1][k], s[1][k])
        self.cvt(pf[1], s[1])
        self.mfma(sm[1], self.aOnes, pf[1], 0)
        for f in range(2):
            self.mfma(o[1][4 * f:4 * f + 4], vt[f][2:6], pf[1], 0)
        self.fine(4, 4)
        more()
        more()
        self.fine(4, 5)
        self.fin_region = 4
        def hop1():
            for _ in range(NH): self.fw_piece(left.pop(0))
            self.fw_left = left
            assert len(left) <= 7
        if first: self.o_finish(o, sm, [V(168, 4), V(172, 4)], self.wphi_gather, hop1, through=not self.opt.get("tm", 15) & 4)
        else: self.o_finish(o, sm, [V(168, 4), V(172, 4)], lambda: self.unpark(range(7, 14)), None)
        I("s_mov_b32", self.sPhase, 1)
        I("s_mov_b64", self.sPWc[0:2], self.sWOA[0:2])
        I("s_mov_b32", self.sPWc[2], 401408)
        a.flush()
        I("s_branch", "L_p")

    def phi(self, src, dst, extra=(), done=None):
        a, I = self.a, self.I
        rest = list(extra)
        def more(n=1):
            for _ in range(n):
                if rest: rest.pop(0)()
        p = [V(120, 8), V(128, 8)]
        for t in range(2):
            for oft in range(2):
                self.mfma(p[t][4 * oft:4 * oft + 4], self.aWphi[4 * oft:4 * oft + 4], src[t], 0)
        kk = [V(204, 2), V(206, 2)]
        bb = [V(208, 2), V(210, 2)]
        for t in range(2):
            I("v_mov_b32", kk[t][0], self.st(t)[3])
            I("v_sub_f32", kk[t][1], 0, self.st(t)[3])
        more(3)
        mx, mn = V(188, 2), V(190, 2)
        for t in range(2):
            for k in range(3):
                if k == 0:
                    I("v_max3_f32", mx[t], p[t][0], p[t][1], p[t][2])
                    I("v_min3_f32", mn[t], p[t][0], p[t][1], p[t][2])
                else:
                    I("v_max3_f32", mx[t], mx[t], p[t][2 * k + 1], p[t][2 * k + 2])
                    I("v_min3_f32", mn[t], mn[t], p[t][2 * k + 1], p[t][2 * k + 2])
        self.fine(self.phi_region or -1, 1)
        self.allreduce_pairs([("v_max_f32", mx[0], mx[1]), ("v_min_f32", mn[0], mn[1])])
        for t in range(2):
            I("v_mul_f32", bb[t][0], mx[t], kk[t][1])
            I("v_mul_f32", bb[t][1], mn[t], kk[t][0])
        e = [V(144, 14), V(158, 14)]
        for i in range(7):
            for t in range(2):
                self.pk("v_pk_fma_f32", e[t][2 * i:2 * i + 2], p[t][(i & ~1):(i & ~1) + 2], kk[t], bb[t], bx=i & 1)
        self.fine(self.phi_region or -1, 2)
        for i in range(14):
            for t in range(2): I("v_exp_f32", e[t][i], e[t][i])
            more()
        sm = [V(188, 2), V(190, 2)]
        for t in range(2): self.pk("v_pk_add_f32", sm[t], e[t][0:2], e[t][2:4])
        for i in range(2, 7):
            for t in range(2): self.pk("v_pk_add_f32", sm[t], sm[t], e[t][2 * i:2 * i + 2])
            more()
        self.fine(self.phi_region or -1, 3)
        self.allreduce_pairs([("v_add_f32", sm[0][0], sm[0][1]), ("v_add_f32", sm[1][0], sm[1][1])])
        for t in range(2):
            for k in range(2): I("v_rcp_f32", sm[t][k], sm[t][k])
        for t in range(2):
            more()
            for i in range(7):
                self.pk("v_pk_mul_f32", e[t][2 * i:2 * i + 2], e[t][2 * i:2 * i + 2], sm[t])
                if i == 3: more()
            for s in range(2):
                more()
                for q in range(4):
                    I("v_cvt_pk_bf16_f32", dst[t][s][q], e[t][4 * q + s], e[t][4 * q + 2 + s] if q < 3 else 0)
                if done: done(t, s)
        more(99)

    def qb_stage(self):
        a, I = self.a, self.I
        T = self.sT
        a.label("L_qb")
        a.raw("@VISIT")
        self.q_poll(self.qb_shadow)
        self.stamp()
        kf = qf = [V(196, 4), V(200, 4)]
        rest = self.q_gemm("B", self.conv_scalar(kf[1], 1, 1, self.cB, (None, None)))
        for f in rest: f()
        self.stamp()
        if self.opt.get("qlate", 0):
            late, back = self.lab("qlate"), self.lab("qlated")
            I("s_cmp_eq_u32", self.sIt, 0)
            I("s_cbranch_scc1", late)
            a.label(back)
            def stage_q():
                self.a.label(late)
                for n in self.fw_left: self.fw_piece(n)
                self.I("s_branch", back)
            self.tail.append(stage_q)
        vp = [V(212, 4), V(216, 4)]
        exw = V(220)
        I("v_subrev_u32", exw, L_EXV - L_PH, self.vEXW)
        self.conv(kf[0], 0, 1, self.cB, (None, None))
        for t in (1, 0):
            self.conv(vp[t], t, 2, self.cB, ("r", "e"))
            I("ds_write_b128", exw, vp[t], mods=f"offset:{16384 + 1024 * t}")
        self.fine(3, 0)
        self.phi_region = 3
        ph = [[V(232, 4), V(236, 4)], [V(224, 4), V(228, 4)]]
        self.phi(kf, ph, done=lambda t, s: I("ds_write_b128", exw, ph[t][s], mods=f"offset:{8192 * s + 1024 * t}"))
        self.phi_region = 0
        self.fine(3, 4)
        a.wait(vm=0, lg=0)
        I("s_barrier")
        self.fine(3, 5)
        lo, hi, real = V(184), V(185), V(186)
        sX, oth = T[1], V(204, 4)
        I("s_lshr_b32", sX, self.sGrp, 1)
        I("s_lshl_b32", sX, sX, 10)
        I("s_add_u32", sX, sX, self.sKVld)
        I("s_add_u32", sX, sX, 8192)
        I("s_lshr_b32", T[0], self.sW, 1)
        I("s_xor_b32", T[0], T[0], self.sGrp)
        I("s_and_b32", T[2], T[0], 1)
        give, give2, take, kept, far = (self.lab(x) for x in ("give", "give", "take", "kept", "givefar"))
        def fetch(): I("buffer_load_dwordx4", oth, self.vKVo, self.sWS, sX, mods="offen sc1", untracked=True)
        I("s_cbranch_scc1", give2)
        fetch()
        a.label(give2)
        kacc = V(120, 8)
        def fa(k, oft): return V((128, 132, 140, 144, 148, 152, 156, 160)[k * 2 + oft], 4)
        def fb(k): return V((164, 168, 172, 196)[k], 4)
        for k in range(4):
            for t in range(2):
                I("ds_read_b64_tr_b16", fb(k)[2 * t:2 * t + 2], self.vKB, mods=f"offset:{(2 * k + t) * 1024}")
            for oft in range(2):
                for t in range(2):
                    I("ds_read_b64_tr_b16", fa(k, oft)[2 * t:2 * t + 2], self.vKA, mods=f"offset:{(2 * k + t) * 1024 + 8 * oft}")
            if k:
                for oft in range(2):
                    self.mfma(kacc[4 * oft:4 * oft + 4], fa(k - 1, oft), fb(k - 1), 0 if k == 1 else kacc[4 * oft:4 * oft + 4])
        for oft in range(2):
            self.mfma(kacc[4 * oft:4 * oft + 4], fa(3, oft), fb(3), kacc[4 * oft:4 * oft + 4])
        self.fine(3, 6)
        QF = [ft for ft in range(2) if ft not in self.b_tiles()]
        QL = 6 // len(QF)
        def qw(ks, ft): return self.wf(len(QF) * (ks % QL) + QF.index(ft))
        for ks in range(QL // 3):
            for ft in QF:
                for f in self.qa_read(qw(ks, ft), ft, ks): f()
        kvp = V(188, 4)
        def pack():
            self.cvt(kvp, kacc)
            I("v_and_b32", kvp[3], "0xffff", kvp[3])
            I("v_or_b32", kvp[3], self.sTag, kvp[3])
        I("s_cmp_eq_u32", T[2], 1)
        I("s_cbranch_scc1", give)
        def collect(miss):
            a.raw("    s_waitcnt vmcnt(0)")
            a.pos += 1
            I("v_xor_b32", lo, self.sTag, oth[3])
            I("v_and_b32", lo, lo, self.vKVm)
            I("v_cmp_lt_u32", VCC, "0xffff", lo)
            I("s_cbranch_vccnz", miss)
            self.mfma(kacc[0:4], self.aSel[2:6], oth, kacc[0:4])
            self.mfma(kacc[4:8], self.aSel[0:4], oth, kacc[4:8])
            pack()
            I("buffer_store_dwordx4", kvp, self.vKVo, self.sWS, self.sKVst, mods="offen sc1", untracked=True)
            I("s_mov_b32", T[2], 1)
        collect(take)
        a.label(kept)
        looks = []
        def look(last=False):
            go_, back = self.lab("look"), self.lab("looked")
            looks.append((go_, back, last))
            I("s_cmp_eq_u32", T[2], 0)
            I("s_cbranch_scc1", go_)
            a.label(back)
        def handover():
            b = self.a
            b.label(take)
            fetch()
            b.I("s_branch", kept)
            for go_, back, last in looks:
                miss = self.lab("miss")
                b.label(go_)
                b.pos += 100
                collect(miss)
                b.flush()
                b.I("s_branch", back)
                b.label(miss)
                if last:
                    b.I("s_sub_u32", self.sBudget, self.sBudget, 1)
                    b.I("s_cbranch_scc1", "L_end")
                fetch()
                b.I("s_branch", go_ if last else back)
            b.label(give)
            b.nop(8)
            pack()
            b.I("s_cmp_eq_u32", self.sMode, 0)
            b.I("s_cbranch_scc1", far)
            b.I("buffer_store_dwordx4", kvp, self.vKVo, self.sWS, sX, mods="offen")
            b.I("s_branch", kept)
            b.label(far)
            b.I("buffer_store_dwordx4", kvp, self.vKVo, self.sWS, sX, mods="offen sc1")
            b.I("s_branch", kept)
        self.tail.append(handover)
        self.stamp()
        sO = [S(8 + k) for k in range(8)]
        def gf(p): return A(4 * p, 4)
        for ks in range(QL // 3, QL):
            for ft in QF:
                for f in self.qa_read(qw(ks, ft), ft, ks): f()
        NP = 8
        sr = [(0, "v", lambda: I("v_add_u32", real, self.sKVld, self.vKVp))]
        sr += [(1, "v", lambda p=p: I("v_readlane_b32", sO[p], real, p)) for p in range(NP)]
        mf, sw = [], []
        for ks in range(14):
            for ft in QF:
                for t in range(2):
                    mf.append((self.acc(t, ft), qw(ks, ft), self.xf(t, ks), 0 if ks == 0 else self.acc(t, ft)))
                if ks + QL < 14: sw += [(len(mf) - 1, "v", f) for f in self.qa_read(qw(ks, ft), ft, ks + QL)]
        sd = [(4 + k, kind, f) for k, (kind, f) in enumerate(self.pw_dma(self.sWOB, range(8)))]
        LK = self.opt.get("lk", 8)
        sl = [(g_, "s", look) for g_ in range(LK, len(mf) - 4, LK)]
        sd = [(g_ + self.opt.get("pwd", 26), k, f) for g_, k, f in sd]
        for f in self.sched(mf, [sl, sw, sr, sd]): f()
        look(True)
        self.colsum_b_q2()
        def gload(p): I("buffer_load_dwordx4", gf(p), self.vKVo, self.sWS, sO[p], mods="offen sc1")
        for t in (1, 0): self.conv(qf[t], t, 0, self.cB, (None, None))
        self.phi(qf, ph, extra=[lambda: None] * self.opt.get("ung", 4) + [lambda p=p: gload(p) for p in range(NP)])
        self.stamp()
        red = V(176, 8)
        tg = [V(112 + k) for k in range(NP)]
        go, slow = self.lab("ggo"), self.lab("gslow")
        I("s_mov_b32", T[2], 0)
        a.label(go)
        self.it_b = T[2]
        self.b_to_a(range(7))
        I("s_mov_b32", T[2], 9)
        I("v_add_u32", exw, L_KVX - L_EXK, self.vKrd)
        I("v_add_u32", V(221), L_KVX, self.vL16)
        def tag_ops():
            out = []
            for p in range(NP):
                out.append((2 * p, "v", lambda p=p: I("v_accvgpr_read_b32", tg[p], gf(p)[3])))
                if p == 1:
                    out.append((2 * p, "v", lambda: I("v_min_u32", lo, tg[0], tg[1])))
                    out.append((2 * p, "v", lambda: I("v_max_u32", hi, tg[0], tg[1])))
                elif p & 1:
                    out.append((2 * p, "v", lambda p=p: I("v_min3_u32", lo, lo, tg[p - 1], tg[p])))
                    out.append((2 * p, "v", lambda p=p: I("v_max3_u32", hi, hi, tg[p - 1], tg[p])))
            return out
        def verdict():
            I("v_xor_b32", lo, self.sTag, lo)
            I("v_xor_b32", hi, self.sTag, hi)
            I("v_or_b32", lo, lo, hi)
            I("v_and_b32", lo, lo, self.vKVm)
            I("v_cmp_lt_u32", VCC, "0xffff", lo)
            I("s_cbranch_vccnz", slow)
        mf = []
        for p in range(NP):
            mf.append((red[0:4], self.aSel[2:6], gf(p), 0 if p == 0 else red[0:4]))
            mf.append((red[4:8], self.aSel[0:4], gf(p), 0 if p == 0 else red[4:8]))
        for f in self.sched(mf, [tag_ops()]): f()
        verdict()

        def tail():
            b = self.a
            b.label(slow)
            b.I("s_sub_u32", self.sBudget, self.sBudget, 1)
            b.I("s_cbranch_scc1", "L_end")
            for p in range(NP): gload(p)
            if self.opt.get("rchk", 0):
                for _, _, f in tag_ops(): f()
                verdict()
            b.I("s_branch", go)
        self.tail.append(tail)
        self.stamp()
        kvs = V(112, 4)
        self.cvt(kvs, red)
        I("ds_write_b128", exw, kvs)
        a.wait(lg=0)
        I("s_barrier")
        kvf = [[A(0, 4), A(4, 4)], [A(8, 4), A(12, 4)]]
        zf = [A(16, 4), A(20, 4)]
        for s in range(2):
            I("ds_read_b128", zf[s], self.vZ, mods=f"offset:{2048 * s}")
            for dt in range(2):
                I("ds_read_b128", kvf[s][dt], V(221), mods=f"offset:{(2 * s + dt) * 1024}")
        o = [V(144, 8), V(152, 8)]
        dn = [V(160, 4), V(164, 4)]
        mf = []
        for s in range(2):
            for t in range(2): mf.append((dn[t], zf[s], ph[t][s], 0 if s == 0 else dn[t]))
            for t in range(2):
                for dt in range(2):
                    mf.append((o[t][4 * dt:4 * dt + 4], kvf[s][dt], ph[t][s], 0 if s == 0 else o[t][4 * dt:4 * dt + 4]))
        self.sched(mf, [])
        I("s_mov_b32", self.sPhase, 0)
        I("s_mov_b64", self.sPWc[0:2], self.sWOB[0:2])
        I("s_add_u32", self.sIt, self.sIt, 1)
        I("s_add_u32", self.sKVst, self.sKVst, 0x100000)
        I("s_add_u32", self.sKVld, self.sKVld, 0x100000)
        I("s_add_u32", self.sHX, self.sHX, 0x40000)
        for t in range(2): I("v_add_f32", dn[t][0], f32(1e-6), dn[t][0])
        if self.opt.get("wb"):
            skipw = self.lab("nowb")
            I("s_cmp_eq_u32", self.sIt, 2)
            I("s_cselect_b32", T[0], self.sC, 0)
            I("s_cmp_lg_u32", T[0], 7)
            I("s_cbranch_scc1", skipw)
            I("buffer_wbl2", mods="sc1", untracked=True)
            a.label(skipw)
        self.it_b = 1
        self.o_finish(o, dn, [V(116, 4), V(120, 4)], lambda: self.b_to_a(range(7, 14)), None)
        a.flush()
        I("s_branch", "L_p")

    def final(self):
        a, I = self.a, self.I
        T = self.sT
        a.label("L_final")
        a.raw("@VISIT")
        a.forget_counters()
        xo = V(112, 8)
        for n in range(4):
            self.cvt(xo[2 * n:2 * n + 2], self.vR[4 * n:4 * n + 4])
            I("ds_write_b64", V(132 + n), xo[2 * n:2 * n + 2])
        a.wait(lg=0)
        for b in range(2): I("ds_read_b128", V(124 + 4 * b, 4), V(120), mods=f"offset:{1024 * b}")
        for b in range(2): I("buffer_store_dwordx4", V(124 + 4 * b, 4), self.vX0d, self.sOUT, T[2] if b else self.sX0o, mods="offen" + ("", " sc1", " nt", " sc0 sc1")[self.opt.get("outfl", 0)])
        a.label("L_fin2")
        self.stamp()
        if self.opt.get("stamps"):
            I("s_mov_b32", T[7], 63)
            self.stamp(real=True)
            I("s_lshl_b32", T[0], S(2), 2)
            I("s_add_u32", T[0], T[0], self.sW)
            I("s_lshl_b32", T[0], T[0], 8)
            I("s_add_u32", T[0], T[0], WS_STAMP)
            I("v_lshrrev_b32", V(120), 2, self.vL16)
            if self.opt.get("fine") == 5:
                for k in range(7):
                    I("v_readlane_b32", T[1], V(240), k)
                    I("v_writelane_b32", self.vStamp, T[1], 40 + k)
                I("v_readlane_b32", T[1], V(240), 63)
                I("v_writelane_b32", self.vStamp, T[1], 62)
                I("v_readlane_b32", T[1], self.vStamp, 2)
                I("v_writelane_b32", self.vStamp, T[1], 47)
            I("buffer_store_dword", self.vStamp, V(120), self.sWS, T[0], mods="offen")
        I("s_or_b32", T[0], S(2), self.sW)
        I("s_cmp_lg_u32", T[0], 0)
        I("s_cbranch_scc1", "L_end")
        if self.opt.get("dbg"):
            I("s_load_dwordx2", S(8, 2), S(0, 2), 64)
            a.wait(lg=0)
            self.srd(S(12, 4), S(8, 2), 256)
            I("v_lshrrev_b32", V(120), 2, self.vL16)
            I("v_readlane_b32", T[0], self.vStamp, 0)
            I("v_readlane_b32", T[1], self.vStamp, 62)
            I("v_readlane_b32", T[2], self.vStamp, 63)
            I("s_sub_u32", T[1], T[2], T[1])
            I("v_subrev_u32", V(121), T[0], self.vStamp)
            I("v_writelane_b32", V(121), T[1], 0)
            I("v_readlane_b32", T[0], V(121), 32)
            I("v_writelane_b32", V(121), T[0], 15)
            I("buffer_store_dword", V(121), V(120), S(12, 4), 0, mods="offen")
        if self.opt.get("leak"):
            skip = self.lab("noleak")
            I("v_readlane_b32", T[1], self.vStamp, 62)
            I("v_readlane_b32", T[2], self.vStamp, 63)
            I("v_readlane_b32", T[3], self.vStamp, self.opt.get("leakidx", 0))
            I("v_readlane_b32", T[4], self.vStamp, 0)
            I("s_sub_u32", T[1], T[2], T[1])
            I("s_sub_u32", T[3], T[3], T[4])
            I("s_cmp_lt_u32", T[3] if self.opt.get("leakidx") else T[1], self.opt["leak"])
            I("s_cbranch_scc1", skip)
            I("s_cmp_eq_u32", self.sMode, 0)
            I("s_cbranch_scc1", skip)
            I("v_cvt_f32_u32", V(121), T[3] if self.opt.get("leakidx") else T[1])
            I("v_lshrrev_b32", V(121), 16, V(121))
            a.wait(vm=0)
            I("s_mov_b64", EXEC, 1)
            I("buffer_store_short", V(121), OFF, self.sOUT, 0)
            a.label(skip)
        I("s_add_u32", T[0], self.sNonce, "0x10100")
        I("v_mov_b32", V(120), T[0])
        I("s_mov_b64", EXEC, 1)
        I("buffer_store_dword", V(120), OFF, self.sWS, 0)
        I("s_endpgm")

    def place_visits(self, head, lines):
        import subprocess, re
        if not self.opt.get("visit", 0):
            return "\n".join(l for l in lines if l != "@VISIT") + "\n"
        lines = list(lines)
        def render(ls):
            n = sum(l == "@VISIT" for l in ls)
            out, k = [], 0
            for l in ls:
                if l == "@VISIT":
                    out += [f"L_visit_{k}:", "    s_cbranch_execz " + (f"L_visit_{k + 3}" if k + 3 < n else "L_visit_ret")]
                    k += 1
                else: out.append(l)
            return "\n".join(out) + "\n"
        start = lines.index("L_qa1:")
        lines.insert(start + 1, "@VISIT")
        page = 1
        while True:
            open("visit.s", "w").write(head + render(lines))
            subprocess.run(["clang", "-x", "assembler", "-target", "amdgcn-amd-amdhsa", "-mcpu=gfx950", "-c", "visit.s", "-o", "visit.o"], check=True)
            dis = subprocess.run(["llvm-objdump", "-d", "--mcpu=gfx950", "visit.o"], capture_output=True, text=True).stdout
            base = int(re.search(r"([0-9a-f]+) <L_(?:qa1|visit_0)>:", dis).group(1), 16)
            addrs = [int(m.group(1), 16) for m in re.finditer(r"// ([0-9A-F]+):", dis)]
            addrs = [x for x in addrs if x >= base]
            idx = [i for i in range(start, len(lines)) if lines[i] == "@VISIT" or (lines[i].startswith("    ") and not lines[i].startswith("    ;"))]
            assert len(addrs) == len(idx), (len(addrs), len(idx))
            hit = [k for k, x in enumerate(addrs) if x >= base + 4096 * page]
            if not hit: break
            k = hit[0]
            if lines[idx[k]] != "@VISIT": lines.insert(idx[k], "@VISIT")
            page += 1
        return render(lines)

    def build(self):
        a = self.a
        self.prologue()
        self.qa_stage(first=True)
        self.p_stage()
        self.qa_stage()
        self.qb_stage()
        self.final()
        done = 0
        while done < len(self.tail):
            a.forget_counters()
            a.pos += 100
            self.tail[done]()
            done += 1
        a.label("L_end")
        a.I("s_endpgm")
        head = open("cdna_kernels/" + NAME[:-7] + ".s.ref").read().split("; Override launch")[0]
        out = head + f"; @launch grid=(256,1,1) block=(256,1,1) lds={LDS_BYTES}\n"
        out += DOC
        lead = ".p2align 12\n" + (f".fill {self.opt['epad'] // 4}, 4, 0xbf800000\n" if self.opt.get("epad") else "")
        out += f'.amdgcn_target "amdgcn-amd-amdhsa--gfx950"\n.text\n.globl {NAME}\n{lead}.p2align 8\n.type {NAME},@function\n{NAME}:\n'
        out += self.place_visits(out, a.lines)
        out += f""".section .rodata,"a"
.p2align 6
.amdhsa_kernel {NAME}
  .amdhsa_next_free_vgpr 512
  .amdhsa_next_free_sgpr 102
  .amdhsa_accum_offset 256
  .amdhsa_group_segment_fixed_size 0
  .amdhsa_kernarg_size 80
  .amdhsa_user_sgpr_count 2
  .amdhsa_user_sgpr_kernarg_segment_ptr 1
  .amdhsa_system_sgpr_workgroup_id_x 1
.end_amdhsa_kernel
"""
        return out


if __name__ == "__main__":
    opt = {}
    path = sys.argv[1]
    for kv in sys.argv[2:]:
        k, v = kv.split("=")
        opt[k] = int(v)
    g = Gen(opt)
    open(path, "w").write(g.build())
    import subprocess
    r = subprocess.run(["clang", "-x", "assembler", "-target", "amdgcn-amd-amdhsa", "-mcpu=gfx950", "-c", path, "-o", "gen_check.o"], capture_output=True, text=True)
    if r.returncode: print(r.stderr[:3000]); sys.exit(1)
    sz = subprocess.run(["llvm-readelf", "-S", "gen_check.o"], capture_output=True, text=True).stdout
    print("text bytes", [int(l.split()[6], 16) for l in sz.splitlines() if " .text" in l],
          "instructions", sum(g.a.count.values()), "nop states", g.a.nops)
```

```python
import sys
import math
import struct
from emit import Asm, V, A, S, VCC, EXEC, M0, OFF, Special

VCC_LO = Special("vcc_lo", [("s", "vcc")])
VCC_HI = Special("vcc_hi", [("s", "vcc")])

NAME = "interleave_layers__sliding_local_dilated__linear_kernel_hedgehog__prompt_kernel"


def f32(x):
    return "0x%08x" % struct.unpack("<I", struct.pack("<f", x))[0]


WS_E = 0x0
WS_FX = 0x1000
WS_FO = 0x5000
WS_SLOW = 0x8000
WS_FH = 0x10000
WS_HELLO = 0x11000
WS_FWF = 0x12000
WS_STAMP = 0xC0000
WS_X = 0x100000
WS_XS = 0x2C0000
WS_O = 0x300000
WS_KV = 0x500000
WS_HX = 0x700000
WS_FW = 0x800000
FW_T = 16 * 86016
WS_SIZE = 0xB00000
OOB = 0x7FFF0000

MAT = 28672
L_PW = 86016
L_SP = 151552
L_KVX = L_SP
L_HX = L_SP
L_WPHI = L_SP + 8192
L_CS = L_SP + 10240
L_EXK = L_PW + 32768
L_EXV = L_EXK + 5120
L_PH = L_PW + 32768
LDS_BYTES = 163840

LOG2E = math.log2(math.e)

DOC = '''; One persistent launch, one workgroup per CU. Tokens are reordered by parity into 16 groups of 128; workgroup
'''


class Neg:
    def __init__(self, r): self.r = r
    def __str__(self): return "-" + str(self.r)
    def regs(self): return self.r.regs()


class Gen:
    def __init__(self, opt):
        self.opt = opt
        self.a = Asm()
        self.tail = []
        self.uid = 0
        self.cs_done = False
        self.look = opt.get("el0", 99) < 14 or opt.get("ov", 14) < 14

    def lab(self, base):
        self.uid += 1
        return f"L_{base}_{self.uid}"

    sX0, sWA, sWOA, sWB, sWOB, sOUT, sWS, sWP = (S(24 + 4 * i, 4) for i in range(8))
    (sGrp, sH, sW, sC, sRh, sBase, sTag, sMode, sIt, sPhase, sL, sBudget, sXq, sXSq, sOq, sXp, sXSp, sOp, sFXp, sFOq,
     sFOp, sHX, sHaloProd, sFHp, sKVst, sKVld, sQWo, sFirst, sPend, sX0o, sNonce, sXcc) = (S(56 + i) for i in range(32))
    sPWc = sX0
    sT = [S(88 + i) for i in range(8)]
    sT2 = S(96, 2)
    sStamp = S(98, 2)
    sFW, sQWl, sPWl, sPWo = S(4), S(5), S(6), S(7)

    vL16, vQ0, vQ1, vO0, vO1, vQh = (V(1 + i) for i in range(6))
    vP = [V(7 + i) for i in range(4)]
    vQWd, vX0d, vExpHC, vPollQ, vPollM, vPollP, vEXW, vEXRa, vHW, vM3, vStat = (V(11 + i) for i in range(11))
    vE0 = V(22, 2)
    vHalo, vHaloS, vStatSt, vZ, vExpHM, vExpC, vExpM, vMH = (V(24 + i) for i in range(8))
    vCH = V(32, 4)
    bCur, bPrev, bPrev0 = V(36, 4), V(40, 4), V(44, 4)
    vR = V(48, 16)
    cA, cB = V(64, 24), V(88, 24)
    vAv, vHp, vQS = V(240), V(243), V(244)
    vDummy = V(245)
    vPWd, vKVo, vKVm, vKVp = (V(246 + i) for i in range(4))
    vKA, vKB, vPollH, vKrd, vStamp = (V(250 + i) for i in range(5))
    vT = V(255)

    aOnes, aSel, aWphi = A(232, 4), A(236, 6), A(242, 8)

    def acc(self, T, ft): return V(112 + (T * 6 + ft) * 4, 4)
    hacc = V(160, 4)
    def straw(self, T): return V(164 + 4 * T, 4)
    def st(self, T): return V(176 + 4 * T, 4)
    def xf(self, T, ks): return A((ks * 2 + T) * 4, 4)
    def hx(self, ks): return A(56 + 4 * ks, 4) if ks < 12 else self.wf(ks - 6)
    def stash(self, i): return A(112 + 4 * i, 4) if i < 14 else A(200 + 4 * (i - 14), 4)
    def wf(self, f): return A(168 + 4 * f, 4)

    def I(self, *x, **k): self.a.I(*x, **k)

    def stamp(self, real=False):
        if not self.opt.get("stamps") or (self.opt.get("stamps") == 2 and not real):
            return
        a = self.a
        a.I("s_memrealtime" if real or self.opt.get("real") else "s_memtime", self.sStamp)
        a.I("s_mov_b32", M0, self.sT[7])
        a.wait(lg=0)
        a.I("v_writelane_b32", self.vStamp, self.sStamp[0], M0)
        a.I("s_add_u32", self.sT[7], self.sT[7], 1)
        if getattr(self, "fine_pending", False):
            self.fine_pending = False
            for i in range(7): a.I("v_writelane_b32", self.vStamp, S(8 + 2 * i), 40 + i)
            a.I("v_writelane_b32", self.vStamp, self.sStamp[0], 47)

    def fine(self, region, i):
        if self.opt.get("fine") == region and region == 5:
            self.a.raw("    s_memtime s[100:101]")
            self.a.raw("    s_waitcnt lgkmcnt(0)")
            self.a.raw(f"    v_writelane_b32 v240, s100, {i}")
            self.a.pos += 3
            return
        if self.opt.get("fine") == region:
            self.a.raw(f"    s_memtime s[{8 + 2 * i}:{9 + 2 * i}]")
            self.a.pos += 1
            self.fine_pending = True

    def srd(self, dst, src, nbytes):
        self.I("s_mov_b32", dst[0], src[0])
        self.I("s_and_b32", dst[1], src[1], "0xffff")
        self.I("s_mov_b32", dst[2], nbytes)
        self.I("s_mov_b32", dst[3], "0x20000")

    def mfma(self, d, x, y, c):
        self.I("v_mfma_f32_16x16x32_bf16", d, x, y, c)

    def pk(self, op, d, x, y, z=None, bx=None, by=None, bz=None):
        srcs = [(x, bx), (y, by)] + ([(z, bz)] if z is not None else [])
        lo = [0 if b is None else b for _, b in srcs]
        hi = [1 if b is None else b for _, b in srcs]
        mods = []
        if any(lo): mods.append("op_sel:[%s]" % ",".join(map(str, lo)))
        if not all(hi): mods.append("op_sel_hi:[%s]" % ",".join(map(str, hi)))
        self.I(op, d, *[s for s, _ in srcs], mods=" ".join(mods))

    def allreduce_pairs(self, chains):
        for step in range(7):
            for op, x, y in chains:
                if step in (0, 6): self.I("v_permlane32_swap_b32", x, y)
                elif step in (1, 4): self.I(op, x, x, y)
                elif step in (2, 5): self.I("v_mov_b32", y, x)
                else: self.I("v_permlane16_swap_b32", x, y)

    def budget_branch(self, loop):
        if self.opt.get("psleep"): self.I("s_sleep", self.opt["psleep"])
        self.I("s_sub_u32", self.sBudget, self.sBudget, 1)
        self.I("s_cbranch_scc1", "L_end")
        self.I("s_branch", loop)

    def flag_value(self, dst):
        self.I("s_lshl_b32", dst, self.sL, 4)
        self.I("s_or_b32", dst, dst, self.sBase)

    def publish(self, soff):
        a = self.a
        slow, done = self.lab("pubslow"), self.lab("pubdone")
        a.I("s_cmp_eq_u32", self.sMode, 0)
        a.I("s_cbranch_scc1", slow)
        a.I("s_mov_b64", EXEC, 1)
        a.I("buffer_store_dword", self.vT, OFF, self.sWS, soff)
        a.label(done)
        a.I("s_mov_b64", EXEC, -1)

        def tail():
            b = self.a
            b.label(slow)
            b.wait(vm=0)
            b.I("buffer_wbl2", mods="sc1")
            b.wait(vm=0)
            b.I("s_mov_b64", EXEC, 1)
            b.I("buffer_store_dword", self.vT, OFF, self.sWS, soff, mods="sc1")
            b.I("s_branch", done)
        self.tail.append(tail)

    def sched(self, mfmas, streams):
        a = self.a
        streams = [list(s) for s in streams]
        for i, m in enumerate(mfmas):
            self.mfma(*m)
            scalar_free = True
            if i + 1 < len(mfmas):
                n = mfmas[i + 1]
                if a.prewait(n[1], n[2]): scalar_free = False
            if scalar_free:
                for s in streams:
                    if s and s[0][0] <= i and s[0][1] == "s":
                        s.pop(0)[2]()
                        break
            slots = 2
            progress = True
            while slots > 0 and progress:
                progress = False
                for s in streams:
                    if not s or s[0][0] > i: continue
                    cost = 2 if s[0][1] == "w" else 1
                    if cost <= slots:
                        s.pop(0)[2]()
                        slots -= cost
                        progress = True
                        break
        return [it[2] for s in streams for it in s]

    def fw_piece(self, n):
        off = (n // 7) * MAT + (n % 7) * 1024
        self.I("s_add_u32", M0, self.sQWl, off, m0="fw")
        self.I("s_add_u32", self.sT[6], self.sFW, off)
        self.I("buffer_load_dwordx4", self.vL16, self.sWS, self.sT[6], mods="offen lds", untracked=True, m0="fw")

    def piece(self, n):
        n = (n + 7) % 21
        return f"offset:{(n // 7) * MAT + (n % 7) * 1024}"

    def unpark(self, pieces):
        for n in pieces: self.I("ds_write_b128", self.vQS, self.stash(n), mods=self.piece(n))

    def mid_exchange(self, back):
        four = self.lab("mx4")
        self.I("s_cmp_eq_u32", self.sL, 4)
        self.I("s_cbranch_scc1", four)
        self.it_b = None
        self.b_to_a(range(14, 14 + self.opt.get("mx", 4)))
        self.I("s_branch", back)
        self.a.label(four)
        self.a.forget_counters()
        self.unpark(range(14, 14 + self.opt.get("mu", 7)))
        self.I("s_branch", back)

    def qb_shadow(self):
        a, I = self.a, self.I
        second, done = self.lab("ab2"), self.lab("abdone")
        I("s_cmp_lg_u32", self.sIt, 0)
        I("s_cbranch_scc1", second)
        now = [] if self.opt.get("qlate", 0) else self.fw_left
        for n in now: self.fw_piece(n)
        a.raw(f"    s_waitcnt vmcnt({1 + len(now)})")
        a.pos += 1
        I("s_barrier")
        I("s_lshl_b32", self.sT[0], self.sW, 6)
        self.colsum_part(self.vQh, list(range(14)), 128)
        a.wait_lg_all()
        a.flush()
        I("s_branch", done)
        a.label(second)
        self.unpark(list(range(7)) + list(range(14 + self.opt.get("mu", 7), 21)))
        a.label(done)

    def b_to_a(self, pieces):
        a, I = self.a, self.I
        done = self.lab("badone")
        if self.it_b is not None:
            I("s_cmp_lg_u32", self.sIt, self.it_b)
            I("s_cbranch_scc1", done)
        for n in pieces:
            I("ds_read_b128", self.stash(n), self.vQS, mods=self.piece(n))
            I("ds_write_b128", self.vQS, self.stash(n + 1), mods=self.piece(n))
        a.label(done)

    def pw_dma(self, srd, steps):
        out = []
        for n, k in enumerate(steps):
            if n == 0:
                out.append(("s", lambda k=k: self.I("s_add_u32", M0, self.sPWl, k * 4096, m0="pw")))
                out.append(("s", lambda k=k: self.I("s_add_u32", self.sT[5], self.sPWo, k * 32 * 896)))
            else:
                out.append(("s", lambda: self.I("s_addk_i32", M0, 4096)))
                out.append(("s", lambda: self.I("s_addk_i32", self.sT[5], 32 * 896)))
            out.append(("v", lambda: self.I("buffer_load_dwordx4", self.vPWd, srd, self.sT[5], mods="offen lds", m0="pw")))
        return out

    def raw_block(self, ks, **kw):
        for half in range(2):
            self.I("s_add_u32", M0, self.sT[4], ks * 2048 + half * 1024, m0="raw")
            self.I("s_add_u32", self.sT[6], self.sQWo, (32 * ks + 16 * half) * 2688)
            self.I("buffer_load_dwordx4", self.vQWd, self.sWA, self.sT[6], mods="offen lds", tag=f"raw{ks}", m0="raw", **kw)

    cvAd0, cvAd1, cvZad, cvWad, cvZ, cvD0, cvD1 = V(204), V(205), V(206), V(207), V(208, 2), V(232, 4), V(236, 4)

    def convert_block(self, ks):
        I = self.I
        w0, w1 = A(200, 4), A(204, 4)
        I("ds_write_b64", self.cvZad, self.cvZ, mods=f"offset:{ks * 2048}")
        for f in self.tr_pair(w0, self.cvAd0, ks * 2048) + self.tr_pair(w1, self.cvAd1, ks * 2048): f()
        self.mfma(self.cvD0, w0, self.aOnes, self.cvD0)
        self.mfma(self.cvD1, w1, self.aOnes, self.cvD1)
        I("ds_write_b128", self.cvWad, w0, mods=f"offset:{ks * 2048}")
        I("ds_write_b128", self.cvWad, w1, mods=f"offset:{ks * 2048 + 1024}")

    def cs_write(self):
        a, I, T = self.a, self.I, self.sT
        ad = self.cvAd0
        I("v_lshrrev_b32", ad, 8, self.vL16)
        I("v_lshlrev_b32", ad, 4, ad)
        I("s_lshl_b32", T[0], self.sW, 7)
        I("s_add_u32", T[0], T[0], L_CS)
        I("v_add_u32", ad, T[0], ad)
        I("s_mov_b32", self.sT2[0], "0x00010001")
        I("s_mov_b32", self.sT2[1], "0x00010001")
        a.flush()
        I("s_mov_b64", EXEC, self.sT2)
        I("ds_write_b128", ad, self.cvD0)
        I("ds_write_b128", ad, self.cvD1, mods="offset:64")
        I("s_mov_b64", EXEC, -1)

    def tr_pair(self, dst, base, off):
        return [lambda: self.I("ds_read_b64_tr_b16", dst[0:2], base, mods=f"offset:{off}"),
                lambda: self.I("ds_read_b64_tr_b16", dst[2:4], base, mods=f"offset:{off + 1024}")]

    def qa_read(self, dst, ft, ks):
        off = (ft >> 1) * MAT + ks * 2048 + (ft & 1) * 1024
        if ft < 4: return [lambda: self.I("ds_read_b128", dst, self.vL16, mods=f"offset:{off}")]
        return [lambda: self.I("ds_read_b128", dst, self.vAv, mods=f"offset:{off - 2 * MAT}")]

    def bg(self, n=1):
        if self.bg_next >= self.bg_max: return
        skip = self.lab("bg")
        self.I("s_cmp_eq_u32", self.sW, 3)
        self.I("s_cbranch_scc1", skip)
        for _ in range(n):
            if self.bg_next < self.bg_max:
                self.raw_block(self.bg_next)
                self.bg_next += 1
        self.a.label(skip)

    def prologue(self):
        a, I = self.a, self.I
        T = self.sT
        self.bg_next, self.bg_max = 0, self.opt.get("n1", 3)
        lane, j, g, t0, t1, t2 = V(0), V(115), V(116), V(117), V(118), V(119)
        I("s_load_dwordx4", S(4, 4), S(0, 2), 0)
        I("s_getpc_b64", S(22, 2))
        a.label("L_pc")
        I("v_min_u32", V(113), self.opt.get("pf0", 47), V(0))
        I("v_lshrrev_b32", V(114), 6, V(0))
        I("v_lshlrev_b32", V(113), 7, V(113))
        I("v_readfirstlane_b32", self.sW, V(114))
        I("global_load_dword", self.vDummy, V(113), S(22, 2), mods="offset:128", untracked=True)
        if self.opt.get("stamps"):
            I("s_memrealtime", S(100, 2))
            I("s_memtime", self.sStamp)
        I("s_lshr_b32", T[1], S(2), 8)
        I("s_cbranch_scc1", "L_end")
        I("v_and_b32", lane, 63, V(0))
        I("s_and_b32", T[0], S(2), 7)
        I("s_lshr_b32", T[1], S(2), 7)
        I("s_lshl1_add_u32", self.sGrp, T[0], T[1])
        I("s_lshr_b32", T[1], S(2), 3)
        I("s_and_b32", self.sH, T[1], 15)
        I("s_and_b32", self.sC, T[1], 7)
        I("s_lshr_b32", self.sRh, self.sH, 3)
        I("s_lshl1_add_u32", T[0], self.sGrp, self.sRh)
        I("s_and_b32", T[2], T[0], 15)
        I("s_lshl_b32", T[2], T[2], 2)
        I("s_mulk_i32", T[2], 16 * 1792)
        I("s_lshr_b32", T[5], self.sGrp, 3)
        I("s_mulk_i32", T[5], 7)
        I("s_add_u32", T[5], T[5], self.sC)
        I("s_lshl_b32", T[5], T[5], 7)
        I("s_add_u32", T[2], T[2], T[5])
        I("v_lshrrev_b32", t0, 3, lane)
        I("v_and_b32", t1, 7, lane)
        I("v_mad_u32_u24", t0, t0, 112 // 2, 0)
        I("v_lshl_add_u32", t0, t0, 1, t1)
        I("v_lshlrev_b32", self.vX0d, 4, t0)
        I("v_add_u32", t2, 8 * 1792 - 1024, self.vX0d)
        I("s_mov_b32", self.sX0[2], 1835008)
        I("s_mov_b32", self.sX0[3], "0x20000")
        I("s_mov_b32", M0, L_SP)
        I("s_mov_b32", T[5], T[2])
        no3, nox = self.lab("not3"), self.lab("nox0")
        I("s_cmp_lg_u32", self.sW, 3)
        a.wait(lg=0)
        I("s_mov_b64", self.sX0[0:2], S(4, 2))
        I("s_cbranch_scc1", no3)
        I("s_cmp_eq_u32", self.sC, 7)
        I("s_cbranch_scc1", no3)
        for t in range(4):
            I("buffer_load_dwordx4", self.vX0d, self.sX0, T[5], mods="offen lds")
            I("buffer_load_dwordx4", t2, self.sX0, T[5], mods="offen offset:1024 lds")
            if t < 3:
                I("s_addk_i32", M0, 2048)
                I("s_addk_i32", T[5], 16 * 1792)
        a.label(no3)
        if self.opt.get("fine") == 5: a.raw("    v_writelane_b32 v13, s100, 63")
        self.fine(5, 0)
        I("s_load_dwordx2", S(8, 2), S(0, 2), 16)
        I("s_load_dwordx8", S(12, 8), S(0, 2), 32)
        I("s_load_dwordx2", S(20, 2), S(0, 2), 72)
        self.srd(self.sWA, S(6, 2), 1204224)
        I("s_lshl2_add_u32", T[0], T[0], self.sW)
        I("s_mul_i32", T[5], self.sW, 16 * 1792)
        I("s_add_u32", self.sX0o, T[2], T[5])
        I("s_cmp_lg_u32", self.sW, 3)
        I("s_cbranch_scc1", nox)
        I("v_min_u32", t0, 36, lane)
        I("v_lshlrev_b32", V(121), 7, t0)
        I("s_mul_i32", T[2], S(2), 37 * 128)
        I("s_min_u32", T[2], T[2], 1204224 - 37 * 128)
        I("buffer_load_dword", self.vDummy, V(121), self.sWA, T[2], mods="offen", nodest=True)
        I("s_mul_i32", T[2], T[1], 1280)
        I("v_min_u32", V(112), 9, lane)
        I("v_lshl_add_u32", V(112), V(112), 7, T[2])
        I("v_min_u32", V(112), "L_end-L_pc", V(112))
        I("global_load_dword", self.vDummy, V(112), S(22, 2), untracked=True)
        a.label(nox)
        I("v_and_b32", j, 15, lane)
        I("v_lshrrev_b32", g, 4, lane)
        I("v_lshlrev_b32", self.vL16, 4, lane)
        I("v_lshrrev_b32", t0, 2, lane)
        I("v_mul_u32_u24", t1, 2688, t0)
        I("v_lshrrev_b32", t0, 3, lane)
        I("v_and_b32", t0, 2, t0)
        I("v_and_b32", t2, 3, lane)
        I("v_xor_b32", t0, t0, t2)
        I("v_lshl_add_u32", self.vQWd, t0, 4, t1)
        I("s_mul_i32", self.sQWo, self.sH, 56)
        I("s_mul_i32", T[1], self.sW, 896)
        I("s_add_u32", self.sQWo, self.sQWo, T[1])
        I("s_mul_i32", T[4], self.sW, MAT)
        self.srd(self.sWS, S(20, 2), WS_SIZE)
        I("buffer_load_dword", V(120), OFF, self.sWS, 0, untracked=True)
        if self.opt.get("s0l", 1):
            nt = self.lab("noxt")
            I("s_cmp_eq_u32", self.sC, 7)
            I("s_cselect_b32", T[1], 0, self.sW)
            I("s_cmp_lg_u32", T[1], 3)
            I("s_cbranch_scc1", nt)
            I("s_sub_u32", T[1], T[0], 3)
            I("s_mul_i32", T[2], T[1], 14336)
            I("s_lshl_b32", T[5], self.sC, 11)
            I("s_add_u32", T[2], T[2], T[5])
            I("s_add_u32", T[2], T[2], WS_X)
            I("v_mul_u32_u24", t0, 14336, g)
            I("v_lshl_add_u32", t0, j, 7, t0)
            I("buffer_load_dword", self.vDummy, t0, self.sWS, T[2], mods="offen", untracked=True)
            I("s_lshl_b32", T[1], T[1], 10)
            I("s_lshl_b32", T[5], self.sC, 7)
            I("s_add_u32", T[1], T[1], T[5])
            I("s_add_u32", T[1], T[1], WS_XS)
            I("v_lshlrev_b32", t0, 10, g)
            I("buffer_load_dword", self.vDummy, t0, self.sWS, T[1], mods="offen", untracked=True)
            I("s_sub_u32", T[1], T[0], 3)
            I("s_lshl_b32", T[1], T[1], 7)
            I("s_add_u32", T[1], T[1], WS_FX)
            I("v_lshlrev_b32", t0, 7, g)
            I("buffer_load_dword", self.vDummy, t0, self.sWS, T[1], mods="offen", untracked=True)
            a.label(nt)
        self.bg()
        for r, p, n in ((self.sWB, 12, 1204224), (self.sWP, 14, 25088), (self.sWOA, 8, 401408),
                        (self.sWOB, 16, 401408), (self.sOUT, 18, 1835008)):
            self.srd(r, S(p, 2), n)
        I("s_getreg_b32", self.sXcc, "hwreg(HW_REG_XCC_ID)")
        I("s_and_b32", self.sXcc, self.sXcc, 15)
        I("s_lshl_b32", T[1], self.sGrp, 3)
        I("s_lshl_b32", T[2], self.sW, 1)
        I("s_add_u32", T[1], T[1], T[2])
        I("s_mul_i32", self.sXq, T[1], 14336)
        I("s_add_u32", self.sXq, self.sXq, WS_X)
        I("s_lshl_b32", self.sXSq, T[1], 10)
        I("s_add_u32", self.sXSq, self.sXSq, WS_XS)
        I("s_lshl_b32", self.sOq, T[1], 14)
        I("s_add_u32", self.sOq, self.sOq, WS_O)
        I("s_lshl_b32", T[3], T[1], 7)
        I("s_add_u32", T[3], T[3], WS_FX)
        I("s_mul_i32", self.sXp, T[0], 14336)
        I("s_lshl_b32", T[2], self.sC, 11)
        I("s_add_u32", self.sXp, self.sXp, T[2])
        I("s_add_u32", self.sXp, self.sXp, WS_X)
        I("s_lshl_b32", self.sXSp, T[0], 10)
        I("s_lshl_b32", T[2], self.sC, 7)
        I("s_add_u32", self.sXSp, self.sXSp, T[2])
        I("s_add_u32", self.sXSp, self.sXSp, WS_XS)
        I("s_lshl_b32", self.sOp, T[0], 14)
        I("s_add_u32", self.sOp, self.sOp, WS_O)
        I("s_lshl_b32", self.sFXp, T[0], 7)
        I("s_lshl_b32", T[2], self.sC, 2)
        I("s_add_u32", self.sFXp, self.sFXp, T[2])
        I("s_add_u32", self.sFXp, self.sFXp, WS_FX)
        I("s_lshl_b32", T[1], self.sGrp, 2)
        I("s_add_u32", T[2], T[1], self.sW)
        I("s_lshl_b32", self.sFOq, T[2], 7)
        I("s_lshl_b32", T[2], self.sH, 2)
        I("s_add_u32", self.sFOq, self.sFOq, T[2])
        I("s_add_u32", self.sFOq, self.sFOq, WS_FO)
        I("s_lshr_b32", T[2], T[0], 1)
        I("s_lshl_b32", self.sFOp, T[2], 7)
        I("s_add_u32", self.sFOp, self.sFOp, WS_FO)
        I("s_lshl_b32", self.sHX, self.sGrp, 14)
        I("s_add_u32", self.sHX, self.sHX, WS_HX)
        I("s_lshl_b32", self.sFHp, self.sGrp, 7)
        I("s_add_u32", self.sFHp, self.sFHp, WS_FH)
        I("s_and_b32", T[1], self.sGrp, 7)
        I("s_cmp_eq_u32", T[1], 0)
        I("s_cselect_b32", self.sFirst, 1, 0)
        I("s_cmp_lg_u32", T[1], 7)
        I("s_cselect_b32", T[1], 1, 0)
        I("s_and_b32", T[2], T[0], 7)
        I("s_cmp_eq_u32", T[2], 7)
        I("s_cselect_b32", self.sHaloProd, T[1], 0)
        I("s_lshl_b32", T[1], self.sH, 2)
        I("s_add_u32", T[1], T[1], self.sW)
        I("s_lshl_b32", self.sKVld, T[1], 14)
        I("s_add_u32", self.sKVld, self.sKVld, WS_KV)
        I("s_bitcmp1_b32", self.sW, 0)
        I("s_cselect_b32", T[1], 13, 16)
        I("s_lshl_b32", T[1], T[1], 6)
        I("s_lshr_b32", T[2], self.sGrp, 1)
        I("s_mul_i32", T[1], T[1], T[2])
        I("s_add_u32", self.sKVst, self.sKVld, T[1])
        I("s_mov_b32", self.sMode, 1)
        I("s_mov_b32", self.sIt, 0)
        I("s_mov_b32", self.sPhase, 0)
        I("s_mov_b32", self.sL, 1)
        I("s_mov_b32", self.sPend, 0)
        I("s_mov_b32", self.sBudget, 400000)
        if self.look: I("s_mov_b32", S(3), 0)
        self.bg()
        I("v_min_u32", t0, 12, lane)
        I("v_lshlrev_b32", V(122), 7, t0)
        I("v_lshlrev_b32", self.vStatSt, 3, j)
        I("v_and_b32", t0, 7, j)
        I("v_lshlrev_b32", t0, 4, t0)
        I("v_lshl_add_u32", self.vHp, g, 7, t0)
        I("v_lshlrev_b32", t0, 7, j)
        I("v_lshl_add_u32", t0, g, 3, t0)
        I("v_add_u32", V(123), L_SP, t0)
        I("s_mul_i32", self.sQWl, self.sW, 7168)
        I("s_mul_i32", self.sFW, self.sH, 86016)
        I("s_add_u32", self.sFW, self.sFW, self.sQWl)
        I("s_add_u32", self.sFW, self.sFW, WS_FW)
        I("s_lshl_b32", self.sPWl, self.sW, 10)
        I("s_add_u32", self.sPWl, self.sPWl, L_PW)
        I("s_min_u32", T[1], self.sC, 6)
        I("s_lshl_b32", self.sPWo, T[1], 7)
        if self.opt.get("stamps"):
            I("s_mov_b32", T[7], 1)
            I("v_mov_b32", self.vStamp, 0)
            I("v_writelane_b32", self.vStamp, self.sStamp[0], 0)
            if self.opt.get("fine") != 5: I("v_writelane_b32", self.vStamp, S(100), 62)
        I("v_mov_b32", V(127), V(0))
        I("s_cmp_eq_u32", self.sW, 3)
        I("s_cbranch_scc1", "L_s0")
        a.label("L_setup")
        a.forget_counters()
        self.bg()
        self.fine(5, 1)

        r, cc = V(113), V(124)
        I("s_lshl_b32", T[1], self.sW, 11)
        I("v_add_u32", V(114), T[1], V(123))
        I("v_lshrrev_b32", r, 2, j)
        I("v_and_b32", cc, 3, j)
        I("v_lshl_add_u32", t0, g, 2, r)
        I("v_lshlrev_b32", t1, 3, cc)
        I("v_lshl_add_u32", t2, t0, 6, t1)
        I("v_and_b32", V(125), 1, g)
        I("v_lshl_add_u32", self.vQ0, V(125), 5, t2)
        I("v_xor_b32", self.vQ1, 32, self.vQ0)
        I("s_and_b32", T[1], self.sW, 1)
        I("s_lshr_b32", T[2], self.sW, 1)
        I("s_add_u32", T[2], T[2], 1)
        I("s_mul_i32", T[2], T[2], MAT)
        I("s_lshl_b32", T[5], T[1], 10)
        I("s_add_u32", T[2], T[2], T[5])
        I("v_add_u32", self.vQh, T[2], self.vL16)
        I("v_lshl_add_u32", t2, t0, 7, t1)
        I("v_add_u32", t2, L_PW, t2)
        I("v_lshrrev_b32", V(125), 1, t0)
        I("v_and_b32", V(125), 3, V(125))
        for n in range(4):
            I("v_xor_b32", V(126), n, V(125))
            I("v_lshl_add_u32", self.vP[n], V(126), 5, t2)
        self.bg()
        I("v_lshrrev_b32", V(125), 1, t0)
        I("v_xor_b32", V(125), V(125), cc)
        I("v_and_b32", V(125), 3, V(125))
        I("v_lshlrev_b32", V(125), 4, V(125))
        I("v_lshl_add_u32", V(126), t0, 6, V(125))
        I("s_lshl_b32", T[2], self.sW, 11)
        I("s_add_u32", T[5], T[2], L_EXV)
        I("v_add_u32", self.vEXRa, T[5], V(126))
        I("s_lshr_b32", T[5], self.sW, 1)
        I("s_lshl_b32", T[5], T[5], 13)
        I("s_add_u32", T[5], T[5], L_PH)
        I("v_add_u32", self.vKA, T[5], V(126))
        I("s_lshl_b32", T[5], T[1], 3)
        I("s_add_u32", T[5], T[5], L_PH + 16384)
        I("v_add_u32", self.vKB, T[5], V(126))
        I("v_lshrrev_b32", V(125), 1, j)
        I("v_xor_b32", V(125), V(125), g)
        I("v_and_b32", V(125), 3, V(125))
        I("v_lshlrev_b32", V(125), 4, V(125))
        I("v_lshl_add_u32", V(126), j, 6, V(125))
        I("v_add_u32", V(126), L_EXV, V(126))
        I("v_add_u32", self.vEXW, T[2], V(126))
        I("s_lshl_b32", T[5], self.sW, 10)
        I("v_add_u32", V(125), L_EXK, self.vL16)
        I("v_add_u32", self.vKrd, T[5], V(125))
        I("v_add_u32", self.vQS, self.sQWl, self.vL16)
        I("v_add_u32", self.vAv, 2 * MAT, self.vL16)
        I("s_cmp_lt_u32", self.sW, 2)
        I("s_cselect_b64", VCC, -1, 0)
        I("v_cndmask_b32", V(126), V(126), V(125), VCC)
        I("s_lshl_b32", T[5], T[1], 3)
        I("v_add_u32", self.vHW, T[5], V(126))
        self.bg()
        I("v_lshrrev_b32", t0, 3, lane)
        I("v_and_b32", t2, 4, t0)
        I("v_add_u32", t2, t2, t0)
        I("s_lshr_b32", T[5], self.sW, 1)
        I("s_lshl2_add_u32", T[5], T[1], T[5])
        I("s_lshl_b32", T[5], T[5], 2)
        I("v_add_u32", t2, T[5], t2)
        I("v_mul_u32_u24", t1, 896, t2)
        I("v_and_b32", t0, 6, t0)
        I("v_and_b32", t2, 7, lane)
        I("v_xor_b32", t0, t0, t2)
        I("v_lshl_add_u32", self.vPWd, t0, 4, t1)
        I("s_mul_i32", T[5], self.sH, 7)
        for reg, add in ((self.vO0, 0), (self.vO1, 4)):
            I("v_add_u32", t0, T[5], g)
            if add: I("v_add_u32", t0, add, t0)
            I("v_and_b32", t2, 1, t0)
            I("v_lshrrev_b32", t0, 1, t0)
            I("v_lshlrev_b32", t0, 8, t0)
            I("v_lshl_add_u32", t0, t2, 3, t0)
            I("v_lshl_add_u32", reg, j, 4, t0)
        I("v_mov_b32", t1, OOB)
        I("v_cmp_gt_u32", VCC, 48, lane)
        I("v_cndmask_b32", self.vO1, t1, self.vO1, VCC)
        I("v_cmp_gt_u32", VCC, 48, lane)
        I("v_cndmask_b32", self.vM3, 0, -1, VCC)
        I("v_cndmask_b32", self.vE0[0], 1.0, 0, VCC)
        I("v_mov_b32", self.vE0[1], 0)
        I("s_cmp_eq_u32", T[1], 1)
        I("s_cselect_b64", VCC, -1, 0)
        I("v_cndmask_b32", self.vMH, -1, self.vM3, VCC)
        I("v_lshl_add_u32", self.vStat, g, 7, self.vStatSt)
        I("s_cmp_eq_u32", self.sFirst, 1)
        I("s_cselect_b64", VCC, -1, 0)
        I("v_cndmask_b32", self.vHalo, self.vL16, t1, VCC)
        I("v_cndmask_b32", self.vHaloS, self.vStat, t1, VCC)
        I("s_lshr_b32", T[2], self.sGrp, 1)
        I("s_add_u32", T[2], T[2], 1)
        I("v_add_u32", t0, T[2], j)
        I("v_and_b32", t0, 7, t0)
        I("s_bitcmp1_b32", self.sW, 0)
        I("s_cselect_b32", T[5], 13, 16)
        I("s_lshl_b32", T[5], T[5], 6)
        I("v_mul_u32_u24", self.vKVp, T[5], t0)
        I("s_lshr_b32", T[5], T[5], 2)
        I("v_mul_u32_u24", t0, T[5], g)
        I("v_lshl_add_u32", t0, j, 4, t0)
        I("s_lshr_b32", T[5], T[5], 4)
        I("v_cmp_gt_u32", VCC, T[5], j)
        I("v_cndmask_b32", self.vKVo, t1, t0, VCC)
        I("v_cndmask_b32", self.vKVm, 0, -1, VCC)
        self.bg()
        I("v_lshlrev_b32", self.vZ, 8, g)
        I("v_add_u32", self.vZ, L_KVX + 1024 + 12 * 16, self.vZ)
        I("v_lshlrev_b32", self.vPollP, 2, j)
        I("v_and_b32", t0, 7, lane)
        I("v_min_u32", t0, 6, t0)
        I("v_lshlrev_b32", V(127), 2, t0)
        I("v_min_u32", t0, 13, j)
        I("v_lshlrev_b32", t0, 2, t0)
        I("s_lshl_b32", T[5], self.sH, 7)
        I("s_add_u32", T[5], T[5], WS_FWF)
        I("v_add_u32", t0, T[5], t0)
        I("v_add_u32", t2, self.sFHp, V(127))
        I("s_cmp_eq_u32", self.sFirst, 1)
        I("s_cselect_b32", T[5], 0, 16)
        I("v_cmp_gt_u32", VCC, T[5], lane)
        I("v_cndmask_b32", self.vPollH, t0, t2, VCC)
        I("v_cndmask_b32", self.vExpHM, 0, 16, VCC)
        I("v_cndmask_b32", self.vExpHC, 16, 0, VCC)
        I("v_lshrrev_b32", t2, 3, j)
        I("v_lshl_add_u32", t2, t2, 7, V(127))
        I("v_add_u32", t2, T[3], t2)
        I("s_lshl_b32", T[5], self.sGrp, 7)
        I("s_add_u32", T[5], T[5], WS_HELLO)
        I("v_lshrrev_b32", t0, 1, g)
        I("v_lshlrev_b32", t0, 7, t0)
        I("v_xor_b32", t0, T[5], t0)
        I("v_add_u32", t0, t0, self.vPollP)
        I("v_and_b32", V(125), 1, g)
        I("v_cmp_eq_u32", VCC, 0, V(125))
        I("v_cndmask_b32", self.vPollQ, t0, t2, VCC)
        I("v_cndmask_b32", self.vPollM, -16, -1, VCC)
        I("v_cndmask_b32", self.vExpM, 0, 16, VCC)
        I("v_mov_b32", t0, self.sXcc)
        I("v_cndmask_b32", self.vExpC, t0, 0, VCC)
        self.bg()
        I("v_mov_b32", V(125), f32(-1e30))
        for rr in range(4):
            I("v_lshl_add_u32", t0, g, 2, rr)
            I("v_sub_u32", t2, j, t0)
            I("v_cmp_gt_u32", VCC, 8, t2)
            I("v_cndmask_b32", self.bCur[rr], V(125), 0, VCC)
            I("v_add_u32", t2, 16, t2)
            I("v_cmp_gt_u32", VCC, 8, t2)
            I("v_cndmask_b32", self.bPrev[rr], V(125), 0, VCC)
        I("s_cmp_eq_u32", self.sW, 0)
        I("s_cselect_b32", T[2], self.sFirst, 0)
        I("s_cmp_eq_u32", T[2], 1)
        I("s_cselect_b64", VCC, -1, 0)
        for rr in range(4):
            I("v_cndmask_b32", self.bPrev0[rr], self.bPrev[rr], V(125), VCC)
        self.bg()
        I("v_mov_b32", t0, "0x3f803f80")
        for k in range(4): I("v_accvgpr_write_b32", self.aOnes[k], t0)
        for k in (0, 1, 4, 5): I("v_accvgpr_write_b32", self.aSel[k], 0)
        I("v_and_b32", V(125), 1, j)
        I("v_lshlrev_b32", V(125), 4, V(125))
        I("v_mov_b32", t0, "0x3f80")
        I("v_lshlrev_b32", t0, V(125), t0)
        I("v_cmp_eq_u32", VCC, r, g)
        I("v_cndmask_b32", t0, 0, t0, VCC)
        I("v_cmp_gt_u32", VCC, 2, cc)
        I("v_cndmask_b32", t2, 0, t0, VCC)
        I("v_cndmask_b32", t0, t0, 0, VCC)
        I("v_accvgpr_write_b32", self.aSel[2], t2)
        I("v_accvgpr_write_b32", self.aSel[3], t0)
        I("v_mov_b32", V(0), V(114))
        got = self.lab("nonce")
        I("s_cmp_eq_u32", self.sW, 3)
        I("s_cbranch_scc1", got)
        a.raw(f"    s_waitcnt vmcnt({2 * self.bg_next})")
        I("v_readfirstlane_b32", self.sNonce, V(120))
        I("s_add_u32", T[1], self.sNonce, "0x10100")
        I("s_and_b32", self.sBase, T[1], "0xffffff00")
        I("s_and_b32", self.sTag, T[1], "0x3fff0000")
        a.label(got)
        I("v_or_b32", self.vExpC, self.sBase, self.vExpC)
        I("v_or_b32", self.vExpHC, self.sBase, self.vExpHC)
        self.stamp()
        I("s_cmp_eq_u32", self.sW, 3)
        I("s_cbranch_scc1", "L_walk")
        for _ in range(self.opt.get("n1b", 1)):
            self.raw_block(self.bg_next)
            self.bg_next += 1
        I("s_barrier")
        self.stamp()

        N1 = self.bg_next
        ad0, ad1, d0, d1 = self.cvAd0, self.cvAd1, self.cvD0, self.cvD1
        OV = self.OV = self.opt.get("ov", 14)
        OV1 = self.OV1 = min(14, OV + self.opt.get("ov1", 2))
        I("v_add_u32", ad0, T[4], self.vQ0)
        I("v_add_u32", ad1, T[4], self.vQ1)
        wad = self.cvWad
        I("v_add_u32", wad, T[4], self.vL16)
        ZP = self.opt.get("zp", 1)
        if ZP:
            zad, zz = self.cvZad, self.cvZ
            I("v_bfe_u32", zad, self.vL16, 4, 5)
            I("v_bfe_u32", zz[0], self.vL16, 6, 1)
            I("v_lshlrev_b32", zad, 6, zad)
            I("v_lshlrev_b32", zz[0], 5, zz[0])
            I("v_xor_b32", zz[0], 56, zz[0])
            I("v_add3_u32", zad, zad, zz[0], T[4])
            I("v_mov_b32", zz[0], 0)
            I("v_mov_b32", zz[1], 0)
        a.vm = [(f"raw{ks}", set()) for ks in range(N1) for _ in range(2)]
        AH = self.opt.get("ah", 6)
        EL0 = self.opt.get("el0", 99) if OV == 14 else OV
        EL1 = self.opt.get("el1", max(EL0 + 1, 14 - AH))
        nxt = N1
        N2 = self.opt.get("n2", 3)
        if N2:
            for _ in range(N2):
                self.raw_block(nxt)
                nxt += 1
            I("s_barrier")
        for ks in range(OV):
            while nxt < OV1 and nxt <= ks + AH:
                self.raw_block(nxt)
                if nxt == EL0: self.early_look(0)
                nxt += 1
            if ks == self.opt.get("vks", 3) and self.opt.get("visit", 0):
                a.wait_lg_all()
                a.flush()
                I("s_mov_b64", EXEC, 0)
                I("s_cmp_eq_u32", self.sW, 1)
                I("s_cbranch_scc1", "L_visit_1")
                I("s_cmp_eq_u32", self.sW, 2)
                I("s_cbranch_scc1", "L_visit_2")
                I("s_branch", "L_visit_0")
                a.label("L_visit_ret")
                I("s_mov_b64", EXEC, -1)
            if ks == EL1 and EL0 < 14:
                if ks == 13: a.wait_vm_tag("raw13")
                self.early_look(1)
            a.wait_vm_tag(f"raw{ks}")
            if ZP: I("ds_write_b64", zad, zz, mods=f"offset:{ks * 2048}")
            w0, w1 = self.wf(2 * (ks & 1)), self.wf(2 * (ks & 1) + 1)
            for f in self.tr_pair(w0, ad0, ks * 2048) + self.tr_pair(w1, ad1, ks * 2048): f()
            if ks:
                p0, p1 = self.wf(2 * ((ks - 1) & 1)), self.wf(2 * ((ks - 1) & 1) + 1)
                self.mfma(d0, p0, self.aOnes, 0 if ks == 1 else d0)
                self.mfma(d1, p1, self.aOnes, 0 if ks == 1 else d1)
                I("ds_write_b128", wad, p0, mods=f"offset:{(ks - 1) * 2048}")
                I("ds_write_b128", wad, p1, mods=f"offset:{(ks - 1) * 2048 + 1024}")
        p0, p1 = self.wf(2 * ((OV - 1) & 1)), self.wf(2 * ((OV - 1) & 1) + 1)
        self.mfma(d0, p0, self.aOnes, d0)
        self.mfma(d1, p1, self.aOnes, d1)
        I("ds_write_b128", wad, p0, mods=f"offset:{(OV - 1) * 2048}")
        I("ds_write_b128", wad, p1, mods=f"offset:{(OV - 1) * 2048 + 1024}")
        if OV == 14: self.cs_write()
        else:
            self.inflight = [t for t, _ in a.vm if t and t.startswith("raw") and int(t[3:]) > OV]
            self.early_look(1)
        a.wait(lg=0)
        a.flush()
        self.fine(5, 4)
        I("s_branch", "L_qa1")
        self.stage0()

    def early_look(self, phase):
        a, I = self.a, self.I
        if phase == 0:
            I("v_mad_u32_u24", V(112), self.vExpM, self.sL, self.vExpC)
            I("buffer_load_dword", V(114), self.vPollQ, self.sWS, 0, mods="offen sc1")
            return
        skip = self.lab("notyet")
        I("v_cmp_ne_u32", VCC, V(112), V(114))
        I("s_cbranch_vccnz", skip)
        vm = list(a.vm)
        for ks in range(3):
            for _, f in self.xload(ks): f()
        a.vm = vm
        I("s_mov_b32", S(3), 1)
        a.label(skip)

    def stage0(self):
        a, I = self.a, self.I
        T = self.sT
        lane = V(127)
        idle, nohalo, pub, nofw = (self.lab(x) for x in ("idle", "nohalo", "pub", "nofw"))
        a.label("L_s0")
        a.forget_counters()
        a.pos += 100
        def hello():
            I("v_readfirstlane_b32", self.sNonce, V(120))
            I("s_lshl_b32", T[1], self.sGrp, 7)
            I("s_lshl2_add_u32", T[2], self.sH, T[1])
            I("s_add_u32", T[2], T[2], WS_HELLO)
            I("s_add_u32", T[1], self.sNonce, "0x10100")
            I("s_and_b32", self.sBase, T[1], "0xffffff00")
            I("s_and_b32", self.sTag, T[1], "0x3fff0000")
            I("s_or_b32", T[1], self.sBase, 16)
            I("v_mov_b32", self.vT, T[1])
            I("s_or_b32", T[1], self.sBase, self.sXcc)
            I("v_mov_b32", V(112), T[1])
            I("s_mov_b64", EXEC, 1)
            I("buffer_store_dword", V(112), OFF, self.sWS, T[2], mods="sc1")
            I("s_mov_b64", EXEC, -1)
        I("s_cmp_eq_u32", self.sC, 7)
        I("s_cbranch_scc1", idle)
        LOC = self.opt.get("s0l", 1)
        FL = "" if LOC else " sc1"
        a.raw("    s_waitcnt vmcnt(6)" if LOC else "    s_waitcnt vmcnt(3)")
        self.fine(5, 2)
        xo = [V(128 + 8 * t, 8) for t in range(4)]
        pr = [V(160 + 2 * t, 2) for t in range(4)]
        for t in range(4):
            for n in range(4): I("ds_read_b64", xo[t][2 * n:2 * n + 2], V(123), mods=f"offset:{2048 * t + 32 * n}")
        one = V(125)
        I("v_mov_b32", one, "0x3f803f80")
        I("s_sub_u32", T[5], self.sXp, 3 * 14336)
        I("s_sub_u32", T[6], self.sXSp, 3 * 1024)
        def xstores():
            for t in range(4):
                I("buffer_store_dwordx4", xo[t][0:4], self.vL16, self.sWS, T[5], mods="offen" + FL)
                I("buffer_store_dwordx4", xo[t][4:8], self.vL16, self.sWS, T[5], mods="offen offset:1024" + FL)
                if t < 3: I("s_add_u32", T[5], T[5], 14336)
        if not LOC:
            xstores()
            a.raw("    s_waitcnt vmcnt(8)")
            hello()
        for k in range(8):
            for t in range(4):
                I("v_dot2_f32_bf16", pr[t][0], xo[t][k], one, 0 if k == 0 else pr[t][0])
                I("v_dot2_f32_bf16", pr[t][1], xo[t][k], xo[t][k], 0 if k == 0 else pr[t][1])
        self.allreduce_pairs([("v_add_f32", pr[t][0], pr[t][1]) for t in range(4)])
        if self.opt.get("stag", 0):
            for t in range(4): I("v_and_or_b32", pr[t][1], pr[t][1], -4, 1)
        if LOC:
            a.wait(vm=0)
            xstores()
        I("s_mov_b64", EXEC, "0xffff")
        for t in range(4):
            I("buffer_store_dwordx2", pr[t], self.vStatSt, self.sWS, T[6], mods=f"offen offset:{1024 * t}" + FL)
        I("s_mov_b64", EXEC, -1)
        if LOC:
            if self.opt.get("rel", 1) == 1: I("s_barrier")
            I("v_readfirstlane_b32", self.sNonce, V(120))
            I("v_lshlrev_b32", V(126), 7, lane)
            I("s_sub_u32", T[2], self.sFXp, 3 * 128)
            I("s_add_u32", T[1], self.sNonce, "0x10100")
            I("s_and_b32", T[1], T[1], "0xffffff00")
            I("s_or_b32", T[1], T[1], 16)
            I("v_mov_b32", self.vT, T[1])
            I("s_mov_b64", EXEC, 15)
            a.wait(vm=0)
            I("buffer_store_dword", self.vT, V(126), self.sWS, T[2], mods="offen")
            I("s_mov_b64", EXEC, -1)
            hello()
        I("s_cmp_eq_u32", self.sHaloProd, 0)
        I("s_cbranch_scc1", nohalo)
        I("s_lshl_b32", T[1], self.sC, 10)
        I("s_add_u32", T[1], T[1], self.sHX)
        I("s_add_u32", T[1], T[1], 16384)
        I("s_mov_b32", self.sT2[0], "0xff00ff00")
        I("s_mov_b32", self.sT2[1], "0xff00ff00")
        I("s_mov_b64", EXEC, self.sT2)
        I("buffer_store_dwordx4", xo[3][0:4], self.vHp, self.sWS, T[1], mods="offen sc1")
        I("buffer_store_dwordx4", xo[3][4:8], self.vHp, self.sWS, T[1], mods="offen offset:512 sc1")
        I("s_lshl_b32", T[1], self.sC, 7)
        I("s_add_u32", T[1], T[1], self.sHX)
        I("s_add_u32", T[1], T[1], 16384 + 14336)
        I("s_mov_b64", EXEC, "0xffff")
        I("buffer_store_dwordx2", pr[3], self.vStatSt, self.sWS, T[1], mods="offen sc1")
        I("s_mov_b64", EXEC, -1)
        a.label(nohalo)
        a.flush()
        if not LOC:
            I("v_and_b32", V(126), 3, lane)
            I("v_lshlrev_b32", V(126), 7, V(126))
            I("v_lshrrev_b32", V(113), 2, lane)
            I("v_lshl_add_u32", V(126), V(113), 15, V(126))
            I("s_sub_u32", T[2], self.sFXp, 3 * 128)
            I("v_add_u32", V(126), T[2], V(126))
            I("s_lshl_b32", T[1], self.sC, 2)
            I("s_add_u32", T[1], T[1], self.sFHp)
            I("s_add_u32", T[1], T[1], 128)
            I("v_writelane_b32", V(126), T[1], 8)
            I("s_lshl_b32", T[1], self.sHaloProd, 8)
            I("s_or_b32", self.sT2[0], T[1], "0xff")
            I("s_mov_b32", self.sT2[1], 0)
            if self.opt.get("rel", 1) == 1: I("s_barrier")
            a.wait(vm=0)
            I("s_mov_b64", EXEC, self.sT2)
            I("buffer_store_dword", self.vT, V(126), self.sWS, 0, mods="offen sc1")
            I("s_mov_b64", EXEC, -1)
            if self.opt.get("rel", 1) == 2: I("s_barrier")
        else:
            I("s_mov_b32", self.sPend, self.sHaloProd)
        self.fine(5, 3)
        I("s_branch", pub)
        a.label(idle)
        a.raw("    s_waitcnt vmcnt(0)")
        hello()
        I("s_barrier")
        a.label(pub)
        if self.opt.get("n2", 3) and self.opt.get("b2", 0) == 0: I("s_barrier")
        a.forget_counters()
        I("s_cmp_ge_u32", self.sGrp, 14)
        I("s_cbranch_scc1", nofw)
        I("s_mul_i32", T[2], self.sH, 56)
        I("s_mul_i32", T[1], self.sGrp, 32 * 2688)
        I("s_add_u32", T[2], T[2], T[1])
        for mat in range(3):
            for half in range(2):
                I("s_mov_b32", M0, L_PW + mat * 2048 + half * 1024)
                I("s_add_u32", T[1], T[2], mat * 896 + half * 16 * 2688)
                I("buffer_load_dwordx4", self.vQWd, self.sWB, T[1], mods="offen lds")
        a.label(nofw)
        I("s_mul_i32", T[1], self.sH, 1568)
        I("s_mov_b32", M0, L_WPHI)
        I("s_mul_i32", T[2], S(2), 13 * 128)
        I("s_min_u32", T[2], T[2], 401408 - 13 * 128)
        I("v_min_u32", V(126), 55, lane)
        I("v_lshlrev_b32", V(126), 7, V(126))
        I("s_lshr_b32", T[5], self.sH, 1)
        I("s_lshl_b32", T[5], T[5], 14)
        I("s_and_b32", T[6], self.sH, 1)
        I("s_mul_i32", T[6], T[6], 7168)
        I("s_add_u32", T[5], T[5], T[6])
        I("s_add_u32", T[5], T[5], self.sOq)
        I("s_sub_u32", T[5], T[5], 6 * 16384)
        I("buffer_load_dwordx4", self.vL16, self.sWP, T[1], mods="offen lds")
        I("buffer_load_dwordx4", self.vL16, self.sWP, T[1], mods="offen offset:1024 lds")
        TM = self.opt.get("tm", 15)
        if TM & 1: I("buffer_load_dword", self.vDummy, V(122), self.sWOA, T[2], mods="offen", nodest=True)
        if TM & 2: I("buffer_load_dword", self.vDummy, V(122), self.sWOB, T[2], mods="offen", nodest=True)
        if TM & 4: I("buffer_load_dword", self.vDummy, V(126), self.sWS, T[5], mods="offen", nodest=True)
        if TM & 8:
            I("v_lshlrev_b32", V(112), 7, V(116))
            I("s_lshl_b32", T[5], self.sGrp, 9)
            I("s_add_u32", T[5], T[5], WS_FO)
            I("buffer_load_dword", self.vDummy, V(112), self.sWS, T[5], mods="offen", nodest=True)
        if self.opt.get("n2", 3) and self.opt.get("b2", 0) == 1: I("s_barrier")
        I("s_branch", "L_setup")
        a.label("L_walk")
        a.forget_counters()
        self.stamp()
        if self.opt.get("s0l", 1):
            nohw = self.lab("nohw")
            I("s_cmp_eq_u32", self.sPend, 0)
            I("s_cbranch_scc1", nohw)
            a.raw(f"    s_waitcnt vmcnt({2 + bin(self.opt.get('tm', 15)).count('1')})")
            I("s_lshl2_add_u32", T[1], self.sC, self.sFHp)
            I("s_mov_b64", EXEC, 1)
            I("buffer_store_dword", self.vT, OFF, self.sWS, T[1], mods="offset:128 sc1", untracked=True)
            I("s_mov_b64", EXEC, -1)
            I("s_mov_b32", self.sPend, 0)
            a.label(nohw)
        nofw2 = self.lab("nofw")
        I("s_cmp_ge_u32", self.sGrp, 14)
        I("s_cbranch_scc1", nofw2)
        zad, zz = V(112), V(116, 2)
        I("v_bfe_u32", zad, self.vL16, 4, 5)
        I("v_bfe_u32", zz[0], self.vL16, 6, 1)
        I("v_lshlrev_b32", zad, 6, zad)
        I("v_lshlrev_b32", zz[0], 5, zz[0])
        I("v_xor_b32", zz[0], 56, zz[0])
        I("v_add_u32", zad, zad, zz[0])
        I("v_add_u32", zad, L_PW, zad)
        I("v_mov_b32", zz[0], 0)
        I("v_mov_b32", zz[1], 0)
        I("v_add_u32", V(113), L_PW, self.vQ0)
        I("v_add_u32", V(115), L_PW, self.vQ1)
        a.raw(f"    s_waitcnt vmcnt({2 + bin(TM).count('1')})")
        for mat in range(3):
            I("ds_write_b64", zad, zz, mods=f"offset:{mat * 2048}")
            for f in range(2):
                for g in self.tr_pair(V(168 + 8 * mat + 4 * f, 4), V(113 + 2 * f), mat * 2048): g()
        I("s_lshl_b32", T[1], self.sGrp, 11)
        I("s_add_u32", T[1], T[1], self.sFW)
        I("s_sub_u32", T[1], T[1], 3 * 7168)
        for mat in range(3):
            I("s_add_u32", T[2], T[1], mat * MAT)
            for half in range(2):
                I("buffer_store_dwordx4", V(168 + 8 * mat + 4 * half, 4), self.vL16, self.sWS, T[2], mods=f"offen offset:{half * 1024} sc1")
        I("s_lshl_b32", T[1], self.sH, 7)
        I("s_lshl_b32", T[2], self.sGrp, 2)
        I("s_add_u32", T[1], T[1], T[2])
        I("s_add_u32", T[5], T[1], WS_FWF)
        if self.look: self.early_look(0)
        a.wait(vm=0)
        I("s_mov_b64", EXEC, 1)
        I("buffer_store_dword", self.vT, OFF, self.sWS, T[5], mods="sc1")
        I("s_mov_b64", EXEC, -1)
        if self.look: self.early_look(1)
        a.label(nofw2)
        self.fine(5, 4)
        I("s_branch", "L_qa1")

    def p_stage(self):
        a, I = self.a, self.I
        T = self.sT
        NPRE = 12
        a.label("L_p")
        a.raw("@VISIT")
        a.forget_counters()
        a.wait(lg=0)
        I("s_barrier")
        I("s_cmp_eq_u32", self.sC, 7)
        I("s_cbranch_scc1", "L_pidle")
        slots = [A(64 + 4 * k, 4) for k in range(12)] + [A(168 + 4 * k, 4) for k in range(8)] + [V(128 + 4 * k, 4) for k in range(28)]
        def pwf(hh, n): return slots[(hh % NPRE) * 4 + n]
        def pw_read(hh, n):
            return [lambda: I("ds_read_b64_tr_b16", pwf(hh, n)[0:2], self.vP[n], mods=f"offset:{hh * 4096}"),
                    lambda: I("ds_read_b64_tr_b16", pwf(hh, n)[2:4], self.vP[n], mods=f"offset:{hh * 4096 + 2048}")]
        self.flag_value(T[0])
        early, mid = self.opt.get("early", 8), self.opt.get("pmid", 12)
        late = [f for _, f in self.pw_dma(self.sPWc, range(8, 14))]
        PP = self.opt.get("pp", 3)
        for hh in range(early):
            for n in range(4):
                for f in pw_read(hh, n): f()
                for _ in range(3 if n == 1 or (n == 3 and early < 6) else 0):
                    if late: late.pop(0)()
            if hh == PP: I("buffer_load_dword", V(112), self.vPollP, self.sWS, self.sFOp, mods="offen sc1")
        assert not late
        loop, ok = self.lab("ppoll"), self.lab("ppass")
        if self.opt.get("dual", 1):
            a.wait(vm=0)
            I("v_cmp_ne_u32", VCC, T[0], V(112))
            I("s_cbranch_vccnz", loop)
            def spin():
                b = self.a
                b.label(loop)
                b.I("buffer_load_dword", V(112), self.vPollP, self.sWS, self.sFOp, mods="offen sc1")
                b.nop(self.opt.get("dnop", 8))
                b.label(loop + "l")
                for x, y in ((V(113), V(112)), (V(112), V(113))):
                    b.I("buffer_load_dword", x, self.vPollP, self.sWS, self.sFOp, mods="offen sc1", untracked=True)
                    b.raw("    s_waitcnt vmcnt(1)")
                    b.forget_counters()
                    b.I("v_cmp_ne_u32", VCC, T[0], y)
                    b.I("s_cbranch_vccz", ok)
                self.budget_branch(loop + "l")
            self.tail.append(spin)
        else:
            a.label(loop)
            a.wait(vm=0)
            I("v_cmp_ne_u32", VCC, T[0], V(112))
            I("s_cbranch_vccz", ok)
            I("buffer_load_dword", V(112), self.vPollP, self.sWS, self.sFOp, mods="offen sc1")
            self.budget_branch(loop)
        a.label(ok)
        a.vm = []
        self.stamp()
        def of(hh): return A(4 * hh, 4)
        def oload(hh):
            out = []
            if hh % 4 == 0 and hh:
                out.append(("s", lambda: I("s_add_u32", T[1], self.sOp, hh * 1024)))
            so = self.sOp if hh < 4 else T[1]
            out.append(("v", lambda: I("buffer_load_dwordx4", of(hh), self.vL16, self.sWS, so, mods=f"offen offset:{(hh % 4) * 1024} sc1")))
            return out
        NO = self.opt.get("no", 5)
        for hh in range(NO):
            for _, f in oload(hh): f()
        I("s_barrier")
        for hh in range(early, mid):
            for n in range(4):
                for f in pw_read(hh, n): f()
        mf, so, sw = [], [], []
        for hh in range(14):
            for n in range(4):
                mf.append((self.vR[4 * n:4 * n + 4], pwf(hh, n), of(hh), self.vR[4 * n:4 * n + 4]))
                if hh >= mid:
                    k = (hh - mid) * 4 + n
                    sw += [(max((k * self.opt.get("prate", 4)) // 3, 4 * (hh - NPRE) + n), "v", f) for f in pw_read(hh, n)]
            if hh + NO < 14: so += [(4 * hh, k, f) for k, f in oload(hh + NO)]
        j, t = V(136), V(137)
        fa = [("v", lambda: I("v_lshrrev_b32", j, 2, self.vPollP)), ("v", lambda: I("v_lshrrev_b32", t, 9, self.vL16)),
              ("v", lambda: I("v_xor_b32", t, t, j)), ("v", lambda: I("v_and_b32", t, 7, t)), ("v", lambda: I("v_lshlrev_b32", t, 4, t)),
              ("v", lambda: I("v_lshl_add_u32", t, j, 7, t)), ("v", lambda: I("v_bfe_u32", j, self.vL16, 8, 1)),
              ("s", lambda: I("s_lshl_b32", T[1], self.sW, 11)), ("s", lambda: I("s_add_u32", T[1], T[1], L_SP)),
              ("v", lambda: I("v_lshl_add_u32", t, j, 3, t)), ("v", lambda: I("v_add_u32", V(132), T[1], t))]
        fa += [("v", lambda n=n: I("v_xor_b32", V(132 + n), 32 * n, V(132))) for n in range(1, 4)]
        fa += [("v", lambda: I("v_lshrrev_b32", j, 3, self.vL16)), ("v", lambda: I("v_and_b32", j, "0x70", j)),
               ("v", lambda: I("v_xor_b32", j, j, self.vL16)), ("v", lambda: I("v_add_u32", V(120), T[1], j)),
               ("s", lambda: I("s_add_u32", T[2], self.sX0o, 8 * 1792))]
        rest = self.sched(mf, [so, sw, [(40, k, f) for k, f in fa]])
        assert not rest
        a.flush()
        self.stamp()
        I("s_cmp_eq_u32", self.sL, 4)
        I("s_cbranch_scc1", "L_final")

        a.label("L_pepi")
        xo = V(112, 8)
        for k in range(8):
            I("v_cvt_pk_bf16_f32", xo[k], self.vR[2 * k], self.vR[2 * k + 1])
            if k == 3: I("buffer_store_dwordx4", xo[0:4], self.vL16, self.sWS, self.sXp, mods="offen")
        I("buffer_store_dwordx4", xo[4:8], self.vL16, self.sWS, self.sXp, mods="offen offset:1024")
        sm, sq = V(120, 2), V(122, 2)
        self.pk("v_pk_add_f32", sm, self.vR[0:2], self.vR[2:4])
        self.pk("v_pk_mul_f32", sq, self.vR[0:2], self.vR[0:2])
        self.pk("v_pk_fma_f32", sq, self.vR[2:4], self.vR[2:4], sq)
        for k in range(2, 8):
            self.pk("v_pk_add_f32", sm, sm, self.vR[2 * k:2 * k + 2])
            self.pk("v_pk_fma_f32", sq, self.vR[2 * k:2 * k + 2], self.vR[2 * k:2 * k + 2], sq)
        pr = V(124, 2)
        I("v_add_f32", pr[0], sm[0], sm[1])
        I("v_add_f32", pr[1], sq[0], sq[1])
        x, y = pr[0], pr[1]
        I("s_add_u32", self.sL, self.sL, 1)
        I("s_lshl_b32", T[0], self.sL, 4)
        I("v_permlane32_swap_b32", x, y)
        I("s_or_b32", T[0], T[0], self.sBase)
        I("v_add_f32", x, x, y)
        I("v_mov_b32", y, x)
        I("v_mov_b32", self.vT, T[0])
        I("s_cmp_eq_u32", self.sPhase, 0)
        I("v_permlane16_swap_b32", x, y)
        I("s_cselect_b32", self.sPend, self.sHaloProd, 0)
        I("v_add_f32", x, x, y)
        I("v_mov_b32", y, x)
        I("s_lshl_b32", T[1], self.sC, 10)
        I("s_add_u32", T[1], T[1], self.sHX)
        I("v_permlane32_swap_b32", x, y)
        STG = self.opt.get("stag", 0)
        if STG:
            I("s_and_b32", T[2], self.sL, 3)
            I("v_and_or_b32", y, y, -4, T[2])
        I("s_mov_b64", EXEC, "0xffff")
        I("buffer_store_dwordx2", pr, self.vStatSt, self.sWS, self.sXSp, mods="offen")
        I("s_mov_b64", EXEC, -1)
        nh, pub = self.lab("nohalo"), self.lab("pub")
        I("s_cmp_eq_u32", self.sPend, 0)
        I("s_cbranch_scc0", nh)
        wb, wbd = self.lab("pwb"), self.lab("pwbd")
        I("s_cmp_ge_u32", self.sL, 3)
        I("s_cbranch_scc1", wb)
        a.label(wbd)
        def write_back():
            self.a.label(wb)
            self.mid_exchange(wbd)
        self.tail.append(write_back)
        a.wait(vm=1 if STG else 0)
        a.label(pub)
        self.publish(self.sFXp)

        def tail():
            b = self.a
            b.label(nh)
            b.I("s_add_u32", T[1], T[1], 16384)
            b.I("s_mov_b32", self.sT2[0], "0xff00ff00")
            b.I("s_mov_b32", self.sT2[1], "0xff00ff00")
            b.I("s_mov_b64", EXEC, self.sT2)
            b.I("buffer_store_dwordx4", xo[0:4], self.vHp, self.sWS, T[1], mods="offen sc1")
            b.I("buffer_store_dwordx4", xo[4:8], self.vHp, self.sWS, T[1], mods="offen offset:512 sc1")
            b.I("s_lshl_b32", T[1], self.sC, 7)
            b.I("s_add_u32", T[1], T[1], self.sHX)
            b.I("s_add_u32", T[1], T[1], 16384 + 14336)
            b.I("s_mov_b64", EXEC, "0xffff")
            b.I("buffer_store_dwordx2", pr, self.vStatSt, self.sWS, T[1], mods="offen sc1")
            b.I("s_mov_b64", EXEC, -1)
            self.it_b = None
            self.b_to_a(range(14, 14 + self.opt.get("mx", 4)))
            b.wait(vm=4 if STG else 3)
            b.I("s_branch", pub)
        self.tail.append(tail)
        a.label("L_pnext")
        a.flush()
        a.forget_counters()
        self.stamp()
        if self.opt.get("stop"):
            I("s_cmp_eq_u32", self.sL, self.opt["stop"])
            I("s_cbranch_scc1", "L_fin2")
        I("s_cmp_eq_u32", self.sPhase, 1)
        I("s_cbranch_scc1", "L_qb")

        def idle():
            b = self.a
            b.label("L_pidle")
            b.I("s_cmp_eq_u32", self.sL, 4)
            b.I("s_cbranch_scc1", "L_fin2")
            b.I("s_add_u32", self.sL, self.sL, 1)
            b.I("s_cmp_lt_u32", self.sL, 3)
            b.I("s_cbranch_scc1", "L_pnext")
            self.mid_exchange("L_pnext")
        self.tail.append(idle)

    def q_poll(self, shadow=None):
        a, I = self.a, self.I
        T = self.sT
        ex, t, pv = V(112), V(113), V(114)
        loop, ok, pend, nopend, slow, again = (self.lab(x) for x in ("qpoll", "qpass", "pend", "nopend", "qslow", "qagain"))
        I("v_mad_u32_u24", ex, self.vExpM, self.sL, self.vExpC)
        if shadow:
            chk = self.lab("qchk")
            I("buffer_load_dword", pv, self.vPollQ, self.sWS, 0, mods="offen sc1")
            shadow()
            I("s_branch", chk)
        a.label(loop)
        I("buffer_load_dword", pv, self.vPollQ, self.sWS, 0, mods="offen sc1")
        if shadow: a.label(chk)
        I("s_cmp_eq_u32", self.sPend, 0)
        a.wait(vm=0)
        I("s_cbranch_scc0", pend)
        a.label(nopend)
        I("v_xor_b32", t, pv, ex)
        I("v_cmp_ne_u32", VCC, 0, t)
        I("s_cbranch_vccnz", slow)
        a.label(ok)
        a.vm = []

        def tail():
            b = self.a
            b.label(pend)
            b.I("s_lshl_b32", T[1], self.sC, 2)
            b.I("s_add_u32", T[1], T[1], self.sFHp)
            self.flag_value(T[0])
            b.I("v_mov_b32", self.vT, T[0])
            b.I("s_mov_b64", EXEC, 1)
            b.I("buffer_store_dword", self.vT, OFF, self.sWS, T[1], mods="offset:128 sc1")
            b.I("s_mov_b64", EXEC, -1)
            b.I("s_mov_b32", self.sPend, 0)
            b.I("s_branch", nopend)
            b.label(slow)
            if self.opt.get("dual", 1):
                fast, gen = self.lab("qfast"), self.lab("qgen")
                b.I("s_cmp_eq_u32", self.sL, 1)
                b.I("s_cselect_b32", T[0], 0, self.sMode)
                b.I("s_cmp_eq_u32", T[0], 0)
                b.I("s_cbranch_scc1", gen)
                b.I("buffer_load_dword", pv, self.vPollQ, self.sWS, 0, mods="offen sc1")
                b.nop(self.opt.get("dnop", 8))
                b.label(fast)
                for x, y in ((t, pv), (pv, t)):
                    b.I("buffer_load_dword", x, self.vPollQ, self.sWS, 0, mods="offen sc1", untracked=True)
                    b.raw("    s_waitcnt vmcnt(1)")
                    b.forget_counters()
                    b.I("v_cmp_ne_u32", VCC, ex, y)
                    b.I("s_cbranch_vccz", ok)
                self.budget_branch(fast)
                b.label(gen)
            b.I("s_cmp_eq_u32", self.sMode, 0)
            b.I("s_cbranch_scc1", again + "m")
            b.I("v_not_b32", V(115), self.vPollM)
            b.I("v_and_b32", V(116), t, self.vPollM)
            b.I("v_and_b32", V(115), t, V(115))
            b.I("v_cmp_ne_u32", self.sT2, 0, V(115))
            b.I("v_cmp_eq_u32", VCC, 0, V(116))
            b.nop(2)
            b.I("s_cmp_eq_u64", self.sT2, 0)
            b.I("s_cbranch_scc1", again)
            b.I("s_and_b32", T[0], VCC_LO, VCC_HI)
            b.I("s_andn2_b32", T[0], "0xffff0000", T[0])
            b.I("s_cbranch_scc1", again)
            b.I("s_mov_b32", self.sMode, 0)
            b.I("s_add_u32", self.sFXp, self.sFXp, WS_SLOW)
            b.I("s_add_u32", self.sFOq, self.sFOq, WS_SLOW)
            b.I("s_add_u32", self.sFOp, self.sFOp, WS_SLOW)
            b.I("v_lshlrev_b32", V(115), 11, self.vExpM)
            b.I("v_add_u32", self.vPollQ, V(115), self.vPollQ)
            if self.opt.get("s0l", 1):
                b.I("s_cmp_eq_u32", self.sC, 7)
                b.I("s_cbranch_scc1", again)
                b.I("buffer_wbl2", mods="sc1")
                b.wait(vm=0)
                b.I("s_or_b32", T[0], self.sBase, 16)
                b.I("v_mov_b32", self.vT, T[0])
                b.I("s_mov_b64", EXEC, 1)
                b.I("buffer_store_dword", self.vT, OFF, self.sWS, self.sFXp, mods="sc1")
                b.I("s_mov_b64", EXEC, -1)
            b.I("s_branch", again)
            b.label(again + "m")
            b.I("v_and_b32", V(116), t, self.vPollM)
            b.I("v_cmp_ne_u32", VCC, 0, V(116))
            b.I("s_cbranch_vccz", ok)
            b.label(again)
            self.budget_branch(loop)
        self.tail.append(tail)

    def xload(self, ks):
        out = []
        if ks % 4 == 0:
            out.append(("s", lambda: self.I("s_add_u32", self.sT[1], self.sXq, ks * 1024)))
            out.append(("s", lambda: self.I("s_add_u32", self.sT[2], self.sXq, ks * 1024 + 14336)))
        for t in range(2):
            out.append(("v", lambda t=t: self.I("buffer_load_dwordx4", self.xf(t, ks), self.vL16, self.sWS, self.sT[1 + t],
                                               mods=f"offen offset:{(ks % 4) * 1024} sc1")))
        return out

    def stats_ops(self, T, layer):
        raw, st = self.straw(T), self.st(T)
        t = V(188 + 2 * T, 2)
        ops = []
        def add(*x, **k): ops.append(("w" if ("perm" in x[0] or "rsq" in x[0]) else "v", lambda: self.I(*x, **k)))
        add("v_and_b32", raw[2], raw[2], self.vM3)
        add("v_and_b32", raw[3], raw[3], self.vM3)
        add("v_add_f32", raw[0], raw[0], raw[2])
        add("v_add_f32", raw[1], raw[1], raw[3])
        for step in range(7):
            x, y = raw[0], raw[1]
            if step in (0, 6): add("v_permlane32_swap_b32", x, y)
            elif step in (1, 4): add("v_add_f32", x, x, y)
            elif step in (2, 5): add("v_mov_b32", y, x)
            else: add("v_permlane16_swap_b32", x, y)
        add("v_mul_f32", st[0], f32(-1.0 / 448), raw[0])
        add("v_mul_f32", t[0], f32(1.0 / 448), raw[1])
        add("v_fma_f32", t[0], Neg(st[0]), st[0], t[0])
        add("v_max_f32", t[0], 0, t[0])
        add("v_add_f32", t[0], f32(1e-5), t[0])
        add("v_rsq_f32", st[1], t[0])
        add("v_and_b32", st[2], st[1], self.vMH if T == 2 else self.vM3)
        if T < 2:
            add("v_mul_f32", st[3], f32(LOG2E * (28 ** -0.5 if layer == "A" else 1.0)), st[1])
        return ops

    def colsum_part(self, ad, steps, cs_off):
        a, I = self.a, self.I
        d = V(192, 4)
        def w(k): return self.wf(k % 4)
        def rd(k): I("ds_read_b128", w(k), ad, mods=f"offset:{steps[k] * 2048}")
        for k in range(4): rd(k)
        mf, sw = [], []
        for k in range(len(steps)):
            mf.append((d, w(k), self.aOnes, 0 if k == 0 else d))
            if k + 4 < len(steps): sw.append((k, "v", lambda k=k: rd(k + 4)))
        assert not self.sched(mf, [sw])
        I("v_lshrrev_b32", V(189), 8, self.vL16)
        I("v_lshlrev_b32", V(189), 4, V(189))
        I("s_add_u32", self.sT[0], self.sT[0], L_CS + cs_off)
        I("v_add_u32", V(189), self.sT[0], V(189))
        I("s_mov_b32", self.sT2[0], "0x00010001")
        I("s_mov_b32", self.sT2[1], "0x00010001")
        a.flush()
        I("s_mov_b64", EXEC, self.sT2)
        I("ds_write_b128", V(189), d)
        I("s_mov_b64", EXEC, -1)

    def colsum_b_q(self):
        I, T = self.I, self.sT
        I("v_lshrrev_b32", V(188), 8, self.vL16)
        I("v_lshlrev_b32", V(188), 4, V(188))
        I("v_add_u32", V(188), L_CS, V(188))
        for ft in range(2, 6):
            I("ds_read_b128", self.cB[4 * ft:4 * ft + 4], V(188), mods=f"offset:{64 * ft}")

    def colsum_b_q2(self):
        a, I = self.a, self.I
        done = self.lab("cq2")
        a.wait_lg_all()
        I("s_cmp_lg_u32", self.sIt, 0)
        I("s_cbranch_scc1", done)
        def w(ks, ft): return self.wf(2 * (ks % 3) + ft)
        for ks in range(3):
            for ft in range(2):
                for f in self.qa_read(w(ks, ft), ft, ks): f()
        mf, sw = [], []
        for ks in range(14):
            for ft in range(2):
                d = self.cB[4 * ft:4 * ft + 4]
                mf.append((d, w(ks, ft), self.aOnes, 0 if ks == 0 else d))
                if ks + 3 < 14: sw += [(len(mf) - 1, "v", f) for f in self.qa_read(w(ks, ft), ft, ks + 3)]
        assert not self.sched(mf, [sw])
        a.flush()
        a.label(done)

    def cs_read(self, dst, with_halo):
        I = self.I
        ad = V(204)
        self.cs_done = True
        I("v_lshrrev_b32", ad, 8, self.vL16)
        I("v_lshlrev_b32", ad, 4, ad)
        I("v_add_u32", ad, L_CS, ad)
        for ft in range(6):
            I("ds_read_b128", dst[4 * ft:4 * ft + 4], ad, mods=f"offset:{64 * ft}")
        if with_halo:
            I("s_lshl_b32", self.sT[0], self.sW, 6)
            I("v_add_u32", V(205), self.sT[0], ad)
            I("ds_read_b128", self.vCH, V(205), mods="offset:128")

    def wphi_gather(self):
        a, I = self.a, self.I
        j, g, f1, ad, t = V(214), V(215), V(216), V(217), V(218)
        I("v_lshrrev_b32", g, 8, self.vL16)
        I("v_lshrrev_b32", j, 2, self.vPollP)
        I("v_lshrrev_b32", t, 2, j)
        I("v_sub_u32", f1, j, t)
        I("v_add_u32", f1, 16, f1)
        I("v_mul_u32_u24", ad, 4 * 56, g)
        I("v_add_u32", ad, L_WPHI, ad)
        I("v_lshl_add_u32", f1, f1, 1, ad)
        I("v_lshl_add_u32", ad, j, 1, ad)
        I("v_and_b32", t, 3, j)
        I("v_cmp_ne_u32", VCC, 3, t)
        I("v_cndmask_b32", t, 0, -1, VCC)
        I("v_and_b32", j, t, self.vM3)
        for oft, base in enumerate((ad, f1)):
            for e in range(8):
                d = e if e < 4 else 16 + e - 4
                I("ds_read_u16", V(204 + e), base, mods=f"offset:{d * 56}")
            for p in range(4):
                I("v_lshl_or_b32", V(204 + 2 * p), V(205 + 2 * p), 16, V(204 + 2 * p))
                m = (None, self.vM3)[p >> 1] if oft == 0 else (t, j)[p >> 1]
                if m is not None: I("v_and_b32", V(204 + 2 * p), V(204 + 2 * p), m)
                I("v_accvgpr_write_b32", self.aWphi[4 * oft + p], V(204 + 2 * p))

    def conv_scalar(self, dst, T, mat, c, scales):
        out = []
        st = self.st(T)
        for f in range(2):
            acc = self.acc(T, 2 * mat + f)
            cc = c[4 * (2 * mat + f):4 * (2 * mat + f) + 4]
            for k in range(4): out.append(lambda acc=acc, cc=cc, k=k: self.I("v_fma_f32", acc[k], cc[k], st[0], acc[k]))
            m = {"r": st[1], "m": st[2], None: None}[scales[f]]
            if m is not None:
                for k in range(4): out.append(lambda acc=acc, m=m, k=k: self.I("v_mul_f32", acc[k], acc[k], m))
            for p in range(2): out.append(lambda acc=acc, f=f, p=p: self.I("v_cvt_pk_bf16_f32", dst[2 * f + p], acc[2 * p], acc[2 * p + 1]))
        return out

    def check_parked(self, before):
        assert self.a.count["ds_read_b128"] - before == 21

    def b_tiles(self): return (2, 3, 4, 5, 0) if self.opt.get("qsplit", 0) else (2, 3, 4, 5)

    def q_ready(self, layer, first=False):
        a, I = self.a, self.I
        a.wait(lg=0)
        I("s_barrier")
        once = self.lab("once")
        if layer == "B":
            I("s_cmp_lg_u32", self.sIt, 0)
            I("s_cbranch_scc1", once)
        nvm = len(a.vm)
        if layer == "A" and not first:
            pass
        elif layer == "A":
            if self.OV == 14: self.cs_read(self.cA, True)
            for n in range(4): I("ds_read_b64", V(212 + 2 * n, 2), V(0), mods=f"offset:{32 * n}")
            for n in range(4):
                for p in range(2):
                    I("v_lshlrev_b32", self.vR[4 * n + 2 * p], 16, V(212 + 2 * n + p))
                    I("v_and_b32", self.vR[4 * n + 2 * p + 1], "0xffff0000", V(212 + 2 * n + p))
        else:
            self.colsum_b_q()
        a.wait_lg_all()
        a.flush()
        assert nvm == len(a.vm)
        a.label(once)
        for ft in (range(6) if layer == "A" else self.b_tiles()):
            for f in self.qa_read(self.wf(ft), ft, 0): f()

    def q_gemm(self, layer, tail_ops=(), first=None):
        a, I = self.a, self.I
        T = self.sT
        isA = layer == "A"
        LOOK = self.opt.get("look", 3)
        if not first:
            for ks in range(2):
                for _, f in self.xload(ks): f()
            if not isA: self.q_ready("B")
            for _, f in self.xload(2): f()
        reads0, writes0 = a.count.get("ds_read_b128", 0), a.count.get("ds_write_b128", 0)
        def bar(n):
            assert a.count["ds_read_b128"] - reads0 == n and not a.lg
            assert a.count.get("ds_write_b128", 0) == writes0 + (2 * (15 - self.OV) if OVL else 0)
            I("s_barrier")

        G = 12 if isA else 2 * len(self.b_tiles())
        mf, sw, sx, sd, sv, sh, stc = [], [], [], [], [], [], []
        OVL = bool(first) and self.OV < 14
        RE = isA and self.opt.get("reord", 1) and not OVL
        def guarded(body):
            import copy
            skip = self.lab("own")
            I("s_cmp_eq_u32", self.sW, 3)
            I("s_cbranch_scc1", skip)
            keep = copy.deepcopy(a.lg)
            body()
            a.lg = keep
            a.label(skip)
        def arrive(b):
            def body():
                a.wait_shadow(f"raw{b}")
                self.convert_block(b)
                if b == 13: self.cs_write()
                a.wait(lg=0)
            guarded(body)
            I("s_barrier")
        for ks in range(12 if RE else 14):
            order = ((2, 3, 4, 5, 0, 1) if ks == 13 else range(6)) if isA else self.b_tiles()
            if OVL and self.OV <= ks + 1 < 14: sw.append((len(mf), "w", lambda b=ks + 1: arrive(b)))
            for ft in order:
                for t in ((1, 0) if ks == 13 else (0, 1)):
                    mf.append((self.acc(t, ft), self.wf(ft), self.xf(t, ks), 0 if ks == 0 else self.acc(t, ft)))
                if ks < 13:
                    sw += [(len(mf) - 1, "v", f) for f in self.qa_read(self.wf(ft), ft, ks + 1)]
                if RE and ks == 11 and ft in (2, 3):
                    sw += [(len(mf) - 1, "v", f) for f in self.qa_read(self.wf(4 + ft), ft, 13)]
        if RE:
            last = {2: 6, 3: 7, 4: 2, 5: 3, 0: 6, 1: 7}
            for mat in (1, 2, 0):
                for ks in (12, 13):
                    for ft in (2 * mat, 2 * mat + 1):
                        slot = ft if ks == 12 else last[ft]
                        for t in (1, 0):
                            mf.append((self.acc(t, ft), self.wf(slot), self.xf(t, ks), self.acc(t, ft)))
                        nxt = [f2 for f2 in last if last[f2] == slot and f2 != ft and ((mat == 1 and ks == 12 and f2 in (4, 5)) or (mat == 1 and ks == 13 and f2 in (0, 1)))]
                        for f2 in nxt: sw += [(len(mf) - 1, "v", f) for f in self.qa_read(self.wf(slot), f2, 13)]
        for k in range(3, 14):
            gap = max(0, G * (k - LOOK) - (6 if k > 6 else 0)) if isA else max(0, G * (k - self.opt.get("lookb", 4)))
            if isA and self.opt.get("slope", 75): gap = (G * (k - 3) * self.opt.get("slope", 75)) // 100
            xl = self.xload(k)
            sx += [(gap, kind, f) for kind, f in xl[:-1]] + [(gap + 4, "v", xl[-1][1])]
            if OVL:
                todo = [b for b in range(self.OV1, 14) if 2 + (b - self.OV1) * self.opt.get("ovs", 2) + 1 == k]
                for b in todo: sx.append((gap + 4, "w", lambda b=b: guarded(lambda: self.raw_block(b, untracked=True, shadow=True))))
            SK = self.opt.get("ska", 6) if isA else self.opt.get("skb", 7)
            if k in (SK, SK + 1):
                for t in (k - SK,):
                    for q in range(2):
                        sx.append((gap + 7 + 2 * q, "v", lambda t=t, q=q: I(
                            "buffer_load_dwordx2", self.straw(t)[2 * q:2 * q + 2], self.vStat, self.sWS, self.sXSq,
                            mods=f"offen offset:{t * 1024 + 512 * q} sc1")))
        s0, s1 = self.stats_ops(0, layer), self.stats_ops(1, layer)
        sv += [(G * SK + 6 - G * self.opt.get("sva", 0) if isA else G * (SK - 1), k, f) for p in zip(s0, s1) for k, f in p]
        x2 = a.count.get("buffer_load_dwordx2", 0)
        def loaded(f, n):
            def g():
                assert a.count["buffer_load_dwordx2"] - x2 >= n, "row sums used before they were requested"
                f()
            return g
        if self.opt.get("stag", 0):
            slow_s, back_s = self.lab("sslow"), self.lab("sback")
            u, w = V(188), V(190)
            r0, r1 = self.straw(0), self.straw(1)
            def chk_ops():
                return [("v", lambda: I("v_xor_b32", u, r0[3], r1[3])), ("v", lambda: I("v_xor_b32", w, r0[1], r1[1])),
                        ("v", lambda: I("v_bitop3_b32", u, u, r0[3], self.sL, mods="bitop3:0xf6")),
                        ("v", lambda: I("v_bitop3_b32", w, w, r0[1], self.sL, mods="bitop3:0xf6")),
                        ("v", lambda: I("v_and_or_b32", u, u, self.vM3, w)), ("v", lambda: I("v_and_b32", u, 3, u)),
                        ("v", lambda: I("v_cmp_ne_u32", VCC, 0, u))]
            def br_s():
                I("s_cbranch_vccnz", slow_s)
                a.label(back_s)
            def tail_s():
                b = self.a
                b.label(slow_s)
                b.I("s_sub_u32", self.sBudget, self.sBudget, 1)
                b.I("s_cbranch_scc1", "L_end")
                for t in range(2):
                    for q in range(2):
                        b.I("buffer_load_dwordx2", self.straw(t)[2 * q:2 * q + 2], self.vStat, self.sWS, self.sXSq,
                            mods=f"offen offset:{t * 1024 + 512 * q} sc1")
                b.wait(vm=0)
                for _, f in chk_ops(): f()
                b.I("s_cbranch_vccnz", slow_s)
                b.I("s_branch", back_s)
            self.tail.append(tail_s)
            co = chk_ops()
            sv = [(sv[0][0], k, f) for k, f in co[:-1]] + [(sv[0][0], "v", lambda: (co[-1][1](), br_s()))] + sv
        sv[0] = (sv[0][0], sv[0][1], loaded(sv[0][2], 4))
        sf = []
        freg = 6 if first else (1 if isA else 2)
        if self.opt.get("fine") == freg:
            sf = [(G * 2 * i, "s", lambda i=i: self.fine(freg, i)) for i in range(7)]
        nd = 0
        for k, f in self.pw_dma(self.sWOA, range(8)) if isA else ():
            sd.append((G * 10 + 2 + 5 * nd, k, f))
            nd += k == "v"
        if isA:
            HF, HC = self.opt.get("hf", 4), self.opt.get("hc", 8)
            hv, hx, fv = V(194), V(195), V(196)
            def check(reg, first, gap, shift):
                slow, back = self.lab("hslow"), self.lab("hback")
                def br():
                    I("v_cmp_ne_u32", VCC, hx, reg)
                    I("s_cbranch_vccnz", slow)
                    a.label(back)
                out = [(first, "v", lambda: I("buffer_load_dword", reg, self.vPollH, self.sWS, 0, mods="offen sc1")),
                       (gap, "v", br)]
                def tail():
                    b = self.a
                    b.label(slow)
                    b.I("s_sub_u32", self.sBudget, self.sBudget, 1)
                    b.I("s_cbranch_scc1", "L_end")
                    b.I("buffer_load_dword", reg, self.vPollH, self.sWS, 0, mods="offen sc1")
                    b.wait(vm=0)
                    b.I("v_cmp_ne_u32", VCC, hx, reg)
                    if shift: b.I("s_lshr_b64", VCC, VCC, 16)
                    b.I("s_cbranch_scc1" if shift else "s_cbranch_vccnz", slow)
                    b.I("s_branch", back)
                self.tail.append(tail)
                return out
            stc = [(2, "v", lambda: I("v_mad_u32_u24", hx, self.vExpHM, self.sL, self.vExpHC))]
            sh += check(hv, G * HF + 8, G * HC, False)
            sh.append((G * HC, "s", lambda: I("s_lshl_b32", T[0], self.sW, 11)))
            sh.append((G * HC, "s", lambda: I("s_add_u32", M0, T[0], L_HX, m0="halo")))
            sh.append((G * HC, "s", lambda: I("s_add_u32", T[0], T[0], self.sHX)))
            for q in range(2):
                sh.append((G * HC, "v", lambda q=q: I("buffer_load_dwordx4", self.vHalo, self.sWS, T[0], mods=f"offen offset:{1024 * q} sc1 lds", tag="halo", m0="halo")))
            sh.append((G * HC, "s", lambda: I("s_add_u32", T[0], self.sHX, 14336)))
            for q in range(2):
                sh.append((G * HC, "v", lambda q=q: I("buffer_load_dwordx2", self.straw(2)[2 * q:2 * q + 2], self.vHaloS, self.sWS, T[0],
                                                     mods=f"offen offset:{512 * q} sc1")))
            sh.append((G * HC, "v", lambda: I("v_add_u32", V(194), L_HX, self.vHp)))
            def hw(k): return A(4 * k, 4)
            shw = []
            had = self.vQh
            for k in range(14): shw.append((max(G * (1 + (k * 11) // 14), G * k - 6 if OVL else 0) + 3, "v", lambda k=k: I("ds_read_b128", hw(k), had, mods=f"offset:{k * 2048}")))
            s2 = self.stats_ops(2, layer)
            sv2 = [(G * (HC + 4), k, loaded(f, 6)) for k, f in s2]
            nb = len(mf) - 11
            sb = [(nb, "s", lambda: a.wait_vm_tag("halo")), (nb, "s", lambda: a.wait(lg=0)), (nb, "s", lambda: bar(78 + 14 + (21 if first and not OVL else 0)))]
            if OVL: sb += [(nb, "w", lambda: self.cs_read(self.cA, True))]
            sb += [((nb if k < 10 or not RE else len(mf) - 1), "v", lambda k=k: I("ds_read_b128", self.hx(k), V(194), mods=f"offset:{512 * k}")) for k in range(14)]
            n0 = len(mf)
            for k in range(14): mf.append((self.hacc, hw(k), self.hx(k), 0 if k == 0 else self.hacc))
            stl = [(n0 - 6, "v", f) for f in tail_ops]
            if RE:
                stl = [(n0 - 15 if k < 20 else (nb + 1 if k == 20 else n0 - 7), "v", f) for k, f in enumerate(tail_ops)]
            if not first and self.opt.get("otouch", 0):
                sd.append((G * 13, "v", lambda: I("v_mul_u32_u24", V(197), 448, self.vPollP)))
                sd.append((G * 13, "v", lambda: I("buffer_load_dword", self.vDummy, V(197), self.sOUT, self.sX0o, mods="offen", nodest=True)))
            sd.append((G * 13, "s", lambda: I("s_lshr_b32", T[3], self.sGrp, 1)))
            sd.append((G * 13, "s", lambda: I("s_lshl_b32", T[3], T[3], 10)))
            sd.append((G * 13, "s", lambda: I("s_add_u32", T[3], T[3], self.sKVld)))
            sd.append((G * 13, "s", lambda: I("s_add_u32", T[3], T[3], 8192)))
            sd.append((G * 13, "v", lambda: I("buffer_load_dword", self.vDummy, self.vL16, self.sWS, T[3], mods="offen", nodest=True)))
            spark, sfw = [], []
            if first:
                spark = [(G * self.opt.get("pk0", 6) + self.opt.get("pkd", 4) * n, "v", lambda n=n: I("ds_read_b128", self.stash(n + 1), self.vQS, mods=self.piece(n))) for n in range(21)]
                sfw = [(nb + 6 + 8 * k, "w", first) for k in range(2)]
                if OVL:
                    sb += [(nb + 8, k, f) for _, k, f in spark]
                    spark, sfw = [], []
            rest = self.sched(mf, [sf, sw, sx, stc, sh, shw, spark, sb, sd, sfw, sv + stl, sv2])
        else:
            n0 = len(mf)
            stl = [(n0 - G + 4, "v", f) for f in tail_ops]
            rest = self.sched(mf, [sf, sw, sx, sv + stl])
        return rest

    def ln(self, acc, c, st, scale):
        for p in range(2):
            self.pk("v_pk_fma_f32", acc[2 * p:2 * p + 2], c[2 * p:2 * p + 2], st[0:2], acc[2 * p:2 * p + 2], by=0)
        if scale == "r":
            for p in range(2): self.pk("v_pk_mul_f32", acc[2 * p:2 * p + 2], acc[2 * p:2 * p + 2], st[0:2], by=1)
        elif scale == "m":
            for p in range(2): self.pk("v_pk_mul_f32", acc[2 * p:2 * p + 2], acc[2 * p:2 * p + 2], st[2:4], by=0)
        elif scale == "e":
            self.pk("v_pk_fma_f32", acc[0:2], acc[0:2], st[2:4], self.vE0, by=0)
            self.pk("v_pk_mul_f32", acc[2:4], acc[2:4], st[2:4], by=0)

    def cvt(self, dst, src):
        for p in range(src.cnt // 2):
            self.I("v_cvt_pk_bf16_f32", dst[p], src[2 * p], src[2 * p + 1])

    def conv(self, dst, T, mat, c, scales):
        for f in range(2):
            ft = 2 * mat + f
            self.ln(self.acc(T, ft), c[4 * ft:4 * ft + 4], self.st(T), scales[f])
        for f in range(2):
            self.cvt(dst[2 * f:2 * f + 2], self.acc(T, 2 * mat + f))

    def o_finish(self, o, den, of, in_drain, after, through=False):
        a, I = self.a, self.I
        T = self.sT
        I("s_add_u32", T[1], self.sOq, 16384)
        self.flag_value(T[0])
        for t in range(2): I("v_rcp_f32", den[t][0], den[t][0])
        I("v_mov_b32", self.vT, T[0])
        def tile(t, fl):
            if t:
                for p in range(4): self.pk("v_pk_mul_f32", o[t][2 * p:2 * p + 2], o[t][2 * p:2 * p + 2], den[t][0:2], by=0)
                self.cvt(of[t], o[t])
            I("buffer_store_dwordx2", of[t][0:2], self.vO0, self.sWS, T[1] if t else self.sOq, mods="offen" + fl)
            I("buffer_store_dwordx2", of[t][2:4], self.vO1, self.sWS, T[1] if t else self.sOq, mods="offen" + fl)
        far, stored = self.lab("ofar"), self.lab("ostored")
        I("s_cmp_eq_u32", self.sMode, 0)
        for p in range(4): self.pk("v_pk_mul_f32", o[0][2 * p:2 * p + 2], o[0][2 * p:2 * p + 2], den[0][0:2], by=0)
        self.cvt(of[0], o[0])
        I("s_cbranch_scc1", far)
        for t in range(2): tile(t, " sc1" if through else "")
        a.label(stored)
        def device_scope():
            self.a.label(far)
            for t in range(2): tile(t, " sc1")
            self.I("s_branch", stored)
        self.tail.append(device_scope)
        self.fine(getattr(self, "fin_region", 0) or -1, 6)
        self.fin_region = 0
        if in_drain: in_drain()
        a.wait(vm=0)
        self.publish(self.sFOq)
        self.stamp()
        if after: after()

    def qa_stage(self, first=False):
        a, I = self.a, self.I
        if first:
            a.raw(".p2align 12")
            if self.opt.get("pad", 512): a.raw(f".fill {self.opt.get('pad', 512) // 4}, 4, 0xbf800000")
        a.label("L_qa1" if first else "L_qa")
        a.forget_counters()
        self.it_b = None
        left = list(range(7, 21)) + list(range(7))
        NE, NH = self.opt.get("ne", 10), self.opt.get("nh", 4)
        def more():
            if first and len(left) > 21 - NE: self.fw_piece(left.pop(0))
        self.more = more
        if first:
            have = self.lab("havex")
            if self.look:
                self.q_ready("A", True)
                I("s_cmp_eq_u32", S(3), 1)
                I("s_cbranch_scc1", have)
                self.q_poll()
            else:
                self.q_poll(lambda: self.q_ready("A", True))
            for ks in range(3):
                for _, f in self.xload(ks): f()
            a.label(have)
            if self.OV < 14: a.vm_all = self.inflight + [None] * 6
        else: self.q_poll(lambda: (self.b_to_a(range(14 + self.opt.get("mx", 4), 21)), self.q_ready("A")))
        self.stamp()
        kf = [V(196, 4), V(200, 4)]
        qf = [V(204, 4), V(208, 4)]
        vp = [V(212, 4), V(216, 4)]
        hp = V(220, 2)
        tail_ops = self.conv_scalar(kf[1], 1, 1, self.cA, ("r", "m"))
        tail_ops.append(lambda: I("ds_write_b128", self.vKrd, kf[1], mods="offset:1024"))
        tail_ops += self.conv_scalar(vp[1], 1, 2, self.cA, ("r", "r"))
        tail_ops.append(lambda: I("ds_write_b128", self.vEXW, vp[1], mods="offset:2048"))
        TV0 = self.opt.get("tv0", 0)
        if TV0:
            tail_ops += self.conv_scalar(vp[0], 0, 2, self.cA, ("r", "r"))
            tail_ops.append(lambda: I("ds_write_b128", self.vEXW, vp[0], mods="offset:1024"))
        head = tail_ops[0]
        def checked():
            assert self.cs_done
            head()
        tail_ops[0] = checked
        rest = self.q_gemm("A", tail_ops, more if first else None)
        for f in rest: f()
        if first and self.OV < 14: a.wait_lg_all()
        self.stamp()
        more()
        if not TV0:
            self.conv(vp[0], 0, 2, self.cA, ("r", "r"))
            I("ds_write_b128", self.vEXW, vp[0], mods="offset:1024")
        self.ln(self.hacc, self.vCH, self.st(2), "m")
        self.cvt(hp, self.hacc)
        I("ds_write_b64", self.vHW, hp)
        more()
        self.conv(qf[0], 0, 0, self.cA, (None, None))
        self.fine(4, 0)
        a.wait(lg=0)
        I("s_barrier")
        self.fine(4, 1)
        kprev = V(222, 4)
        vt = [V(226, 6), V(232, 6)]
        I("ds_read_b128", kprev, self.vKrd)
        for f in range(2):
            for i in range(3):
                I("ds_read_b64_tr_b16", vt[f][2 * i:2 * i + 2], self.vEXRa, mods=f"offset:{1024 * i + 8 * f}")
        more()
        self.conv(kf[0], 0, 1, self.cA, ("r", "m"))
        more()
        self.conv(qf[1], 1, 0, self.cA, (None, None))
        s = [V(112, 8), V(120, 8)]
        self.mfma(s[1][4:8], kf[1], qf[1], self.bCur)
        self.mfma(s[1][0:4], kf[0], qf[1], self.bPrev)
        self.mfma(s[0][4:8], kf[0], qf[0], self.bCur)
        self.mfma(s[0][0:4], kprev, qf[0], self.bPrev0)
        self.fine(4, 2)
        more()
        m = V(128, 2)
        for t in (1, 0):
            I("v_max3_f32", m[t], s[t][4], s[t][5], s[t][6])
            I("v_max3_f32", m[t], m[t], s[t][7], s[t][0])
            I("v_max3_f32", m[t], m[t], s[t][1], s[t][2])
            I("v_max_f32", m[t], m[t], s[t][3])
        self.allreduce_pairs([("v_max_f32", m[0], m[1])])
        more()
        nm = [V(130, 2), V(132, 2)]
        for t in range(2):
            I("v_mul_f32", nm[t][0], m[t], self.st(t)[3])
        for t in range(2):
            for p in range(4):
                self.I("v_pk_fma_f32", s[t][2 * p:2 * p + 2], s[t][2 * p:2 * p + 2], self.st(t)[2:4], nm[t],
                       mods="op_sel:[0,1,0] op_sel_hi:[1,1,0] neg_lo:[0,0,1] neg_hi:[0,0,1]")
        self.fine(4, 3)
        pf = [V(136, 4), V(140, 4)]
        o = [V(144, 8), V(152, 8)]
        sm = [V(160, 4), V(164, 4)]
        more()
        for k in range(8): I("v_exp_f32", s[0][k], s[0][k])
        more()
        for k in range(2): I("v_exp_f32", s[1][k], s[1][k])
        self.cvt(pf[0], s[0])
        for k in range(2, 4): I("v_exp_f32", s[1][k], s[1][k])
        self.mfma(sm[0], self.aOnes, pf[0], 0)
        I("v_exp_f32", s[1][4], s[1][4])
        self.mfma(o[0][0:4], vt[0][0:4], pf[0], 0)
        I("v_exp_f32", s[1][5], s[1][5])
        self.mfma(o[0][4:8], vt[1][0:4], pf[0], 0)
        for k in range(6, 8): I("v_exp_f32", s[1][k], s[1][k])
        self.cvt(pf[1], s[1])
        self.mfma(sm[1], self.aOnes, pf[1], 0)
        for f in range(2):
            self.mfma(o[1][4 * f:4 * f + 4], vt[f][2:6], pf[1], 0)
        self.fine(4, 4)
        more()
        more()
        self.fine(4, 5)
        self.fin_region = 4
        def hop1():
            for _ in range(NH): self.fw_piece(left.pop(0))
            self.fw_left = left
            assert len(left) <= 7
        if first: self.o_finish(o, sm, [V(168, 4), V(172, 4)], self.wphi_gather, hop1, through=not self.opt.get("tm", 15) & 4)
        else: self.o_finish(o, sm, [V(168, 4), V(172, 4)], lambda: self.unpark(range(7, 14)), None)
        I("s_mov_b32", self.sPhase, 1)
        I("s_mov_b64", self.sPWc[0:2], self.sWOA[0:2])
        I("s_mov_b32", self.sPWc[2], 401408)
        a.flush()
        I("s_branch", "L_p")

    def phi(self, src, dst, extra=(), done=None):
        a, I = self.a, self.I
        rest = list(extra)
        def more(n=1):
            for _ in range(n):
                if rest: rest.pop(0)()
        p = [V(120, 8), V(128, 8)]
        for t in range(2):
            for oft in range(2):
                self.mfma(p[t][4 * oft:4 * oft + 4], self.aWphi[4 * oft:4 * oft + 4], src[t], 0)
        kk = [V(204, 2), V(206, 2)]
        bb = [V(208, 2), V(210, 2)]
        for t in range(2):
            I("v_mov_b32", kk[t][0], self.st(t)[3])
            I("v_sub_f32", kk[t][1], 0, self.st(t)[3])
        more(3)
        mx, mn = V(188, 2), V(190, 2)
        for t in range(2):
            for k in range(3):
                if k == 0:
                    I("v_max3_f32", mx[t], p[t][0], p[t][1], p[t][2])
                    I("v_min3_f32", mn[t], p[t][0], p[t][1], p[t][2])
                else:
                    I("v_max3_f32", mx[t], mx[t], p[t][2 * k + 1], p[t][2 * k + 2])
                    I("v_min3_f32", mn[t], mn[t], p[t][2 * k + 1], p[t][2 * k + 2])
        self.fine(self.phi_region or -1, 1)
        self.allreduce_pairs([("v_max_f32", mx[0], mx[1]), ("v_min_f32", mn[0], mn[1])])
        for t in range(2):
            I("v_mul_f32", bb[t][0], mx[t], kk[t][1])
            I("v_mul_f32", bb[t][1], mn[t], kk[t][0])
        e = [V(144, 14), V(158, 14)]
        for i in range(7):
            for t in range(2):
                self.pk("v_pk_fma_f32", e[t][2 * i:2 * i + 2], p[t][(i & ~1):(i & ~1) + 2], kk[t], bb[t], bx=i & 1)
        self.fine(self.phi_region or -1, 2)
        for i in range(14):
            for t in range(2): I("v_exp_f32", e[t][i], e[t][i])
            more()
        sm = [V(188, 2), V(190, 2)]
        for t in range(2): self.pk("v_pk_add_f32", sm[t], e[t][0:2], e[t][2:4])
        for i in range(2, 7):
            for t in range(2): self.pk("v_pk_add_f32", sm[t], sm[t], e[t][2 * i:2 * i + 2])
            more()
        self.fine(self.phi_region or -1, 3)
        self.allreduce_pairs([("v_add_f32", sm[0][0], sm[0][1]), ("v_add_f32", sm[1][0], sm[1][1])])
        for t in range(2):
            for k in range(2): I("v_rcp_f32", sm[t][k], sm[t][k])
        for t in range(2):
            more()
            for i in range(7):
                self.pk("v_pk_mul_f32", e[t][2 * i:2 * i + 2], e[t][2 * i:2 * i + 2], sm[t])
                if i == 3: more()
            for s in range(2):
                more()
                for q in range(4):
                    I("v_cvt_pk_bf16_f32", dst[t][s][q], e[t][4 * q + s], e[t][4 * q + 2 + s] if q < 3 else 0)
                if done: done(t, s)
        more(99)

    def qb_stage(self):
        a, I = self.a, self.I
        T = self.sT
        a.label("L_qb")
        a.raw("@VISIT")
        self.q_poll(self.qb_shadow)
        self.stamp()
        kf = qf = [V(196, 4), V(200, 4)]
        rest = self.q_gemm("B", self.conv_scalar(kf[1], 1, 1, self.cB, (None, None)))
        for f in rest: f()
        self.stamp()
        if self.opt.get("qlate", 0):
            late, back = self.lab("qlate"), self.lab("qlated")
            I("s_cmp_eq_u32", self.sIt, 0)
            I("s_cbranch_scc1", late)
            a.label(back)
            def stage_q():
                self.a.label(late)
                for n in self.fw_left: self.fw_piece(n)
                self.I("s_branch", back)
            self.tail.append(stage_q)
        vp = [V(212, 4), V(216, 4)]
        exw = V(220)
        I("v_subrev_u32", exw, L_EXV - L_PH, self.vEXW)
        self.conv(kf[0], 0, 1, self.cB, (None, None))
        for t in (1, 0):
            self.conv(vp[t], t, 2, self.cB, ("r", "e"))
            I("ds_write_b128", exw, vp[t], mods=f"offset:{16384 + 1024 * t}")
        self.fine(3, 0)
        self.phi_region = 3
        ph = [[V(232, 4), V(236, 4)], [V(224, 4), V(228, 4)]]
        self.phi(kf, ph, done=lambda t, s: I("ds_write_b128", exw, ph[t][s], mods=f"offset:{8192 * s + 1024 * t}"))
        self.phi_region = 0
        self.fine(3, 4)
        a.wait(vm=0, lg=0)
        I("s_barrier")
        self.fine(3, 5)
        lo, hi, real = V(184), V(185), V(186)
        sX, oth = T[1], V(204, 4)
        I("s_lshr_b32", sX, self.sGrp, 1)
        I("s_lshl_b32", sX, sX, 10)
        I("s_add_u32", sX, sX, self.sKVld)
        I("s_add_u32", sX, sX, 8192)
        I("s_lshr_b32", T[0], self.sW, 1)
        I("s_xor_b32", T[0], T[0], self.sGrp)
        I("s_and_b32", T[2], T[0], 1)
        give, give2, take, kept, far = (self.lab(x) for x in ("give", "give", "take", "kept", "givefar"))
        def fetch(): I("buffer_load_dwordx4", oth, self.vKVo, self.sWS, sX, mods="offen sc1", untracked=True)
        I("s_cbranch_scc1", give2)
        fetch()
        a.label(give2)
        kacc = V(120, 8)
        def fa(k, oft): return V((128, 132, 140, 144, 148, 152, 156, 160)[k * 2 + oft], 4)
        def fb(k): return V((164, 168, 172, 196)[k], 4)
        for k in range(4):
            for t in range(2):
                I("ds_read_b64_tr_b16", fb(k)[2 * t:2 * t + 2], self.vKB, mods=f"offset:{(2 * k + t) * 1024}")
            for oft in range(2):
                for t in range(2):
                    I("ds_read_b64_tr_b16", fa(k, oft)[2 * t:2 * t + 2], self.vKA, mods=f"offset:{(2 * k + t) * 1024 + 8 * oft}")
            if k:
                for oft in range(2):
                    self.mfma(kacc[4 * oft:4 * oft + 4], fa(k - 1, oft), fb(k - 1), 0 if k == 1 else kacc[4 * oft:4 * oft + 4])
        for oft in range(2):
            self.mfma(kacc[4 * oft:4 * oft + 4], fa(3, oft), fb(3), kacc[4 * oft:4 * oft + 4])
        self.fine(3, 6)
        QF = [ft for ft in range(2) if ft not in self.b_tiles()]
        QL = 6 // len(QF)
        def qw(ks, ft): return self.wf(len(QF) * (ks % QL) + QF.index(ft))
        for ks in range(QL // 3):
            for ft in QF:
                for f in self.qa_read(qw(ks, ft), ft, ks): f()
        kvp = V(188, 4)
        def pack():
            self.cvt(kvp, kacc)
            I("v_and_b32", kvp[3], "0xffff", kvp[3])
            I("v_or_b32", kvp[3], self.sTag, kvp[3])
        I("s_cmp_eq_u32", T[2], 1)
        I("s_cbranch_scc1", give)
        def collect(miss):
            a.raw("    s_waitcnt vmcnt(0)")
            a.pos += 1
            I("v_xor_b32", lo, self.sTag, oth[3])
            I("v_and_b32", lo, lo, self.vKVm)
            I("v_cmp_lt_u32", VCC, "0xffff", lo)
            I("s_cbranch_vccnz", miss)
            self.mfma(kacc[0:4], self.aSel[2:6], oth, kacc[0:4])
            self.mfma(kacc[4:8], self.aSel[0:4], oth, kacc[4:8])
            pack()
            I("buffer_store_dwordx4", kvp, self.vKVo, self.sWS, self.sKVst, mods="offen sc1", untracked=True)
            I("s_mov_b32", T[2], 1)
        collect(take)
        a.label(kept)
        looks = []
        def look(last=False):
            go_, back = self.lab("look"), self.lab("looked")
            looks.append((go_, back, last))
            I("s_cmp_eq_u32", T[2], 0)
            I("s_cbranch_scc1", go_)
            a.label(back)
        def handover():
            b = self.a
            b.label(take)
            fetch()
            b.I("s_branch", kept)
            for go_, back, last in looks:
                miss = self.lab("miss")
                b.label(go_)
                b.pos += 100
                collect(miss)
                b.flush()
                b.I("s_branch", back)
                b.label(miss)
                if last:
                    b.I("s_sub_u32", self.sBudget, self.sBudget, 1)
                    b.I("s_cbranch_scc1", "L_end")
                fetch()
                b.I("s_branch", go_ if last else back)
            b.label(give)
            b.nop(8)
            pack()
            b.I("s_cmp_eq_u32", self.sMode, 0)
            b.I("s_cbranch_scc1", far)
            b.I("buffer_store_dwordx4", kvp, self.vKVo, self.sWS, sX, mods="offen")
            b.I("s_branch", kept)
            b.label(far)
            b.I("buffer_store_dwordx4", kvp, self.vKVo, self.sWS, sX, mods="offen sc1")
            b.I("s_branch", kept)
        self.tail.append(handover)
        self.stamp()
        sO = [S(8 + k) for k in range(8)]
        def gf(p): return A(4 * p, 4)
        for ks in range(QL // 3, QL):
            for ft in QF:
                for f in self.qa_read(qw(ks, ft), ft, ks): f()
        NP = 8
        sr = [(0, "v", lambda: I("v_add_u32", real, self.sKVld, self.vKVp))]
        sr += [(1, "v", lambda p=p: I("v_readlane_b32", sO[p], real, p)) for p in range(NP)]
        mf, sw = [], []
        for ks in range(14):
            for ft in QF:
                for t in range(2):
                    mf.append((self.acc(t, ft), qw(ks, ft), self.xf(t, ks), 0 if ks == 0 else self.acc(t, ft)))
                if ks + QL < 14: sw += [(len(mf) - 1, "v", f) for f in self.qa_read(qw(ks, ft), ft, ks + QL)]
        sd = [(4 + k, kind, f) for k, (kind, f) in enumerate(self.pw_dma(self.sWOB, range(8)))]
        LK = self.opt.get("lk", 8)
        sl = [(g_, "s", look) for g_ in range(LK, len(mf) - 4, LK)]
        sd = [(g_ + self.opt.get("pwd", 26), k, f) for g_, k, f in sd]
        for f in self.sched(mf, [sl, sw, sr, sd]): f()
        look(True)
        self.colsum_b_q2()
        def gload(p): I("buffer_load_dwordx4", gf(p), self.vKVo, self.sWS, sO[p], mods="offen sc1")
        for t in (1, 0): self.conv(qf[t], t, 0, self.cB, (None, None))
        self.phi(qf, ph, extra=[lambda: None] * self.opt.get("ung", 4) + [lambda p=p: gload(p) for p in range(NP)])
        self.stamp()
        red = V(176, 8)
        tg = [V(112 + k) for k in range(NP)]
        go, slow = self.lab("ggo"), self.lab("gslow")
        I("s_mov_b32", T[2], 0)
        a.label(go)
        self.it_b = T[2]
        self.b_to_a(range(7))
        I("s_mov_b32", T[2], 9)
        I("v_add_u32", exw, L_KVX - L_EXK, self.vKrd)
        I("v_add_u32", V(221), L_KVX, self.vL16)
        def tag_ops():
            out = []
            for p in range(NP):
                out.append((2 * p, "v", lambda p=p: I("v_accvgpr_read_b32", tg[p], gf(p)[3])))
                if p == 1:
                    out.append((2 * p, "v", lambda: I("v_min_u32", lo, tg[0], tg[1])))
                    out.append((2 * p, "v", lambda: I("v_max_u32", hi, tg[0], tg[1])))
                elif p & 1:
                    out.append((2 * p, "v", lambda p=p: I("v_min3_u32", lo, lo, tg[p - 1], tg[p])))
                    out.append((2 * p, "v", lambda p=p: I("v_max3_u32", hi, hi, tg[p - 1], tg[p])))
            return out
        def verdict():
            I("v_xor_b32", lo, self.sTag, lo)
            I("v_xor_b32", hi, self.sTag, hi)
            I("v_or_b32", lo, lo, hi)
            I("v_and_b32", lo, lo, self.vKVm)
            I("v_cmp_lt_u32", VCC, "0xffff", lo)
            I("s_cbranch_vccnz", slow)
        mf = []
        for p in range(NP):
            mf.append((red[0:4], self.aSel[2:6], gf(p), 0 if p == 0 else red[0:4]))
            mf.append((red[4:8], self.aSel[0:4], gf(p), 0 if p == 0 else red[4:8]))
        for f in self.sched(mf, [tag_ops()]): f()
        verdict()

        def tail():
            b = self.a
            b.label(slow)
            b.I("s_sub_u32", self.sBudget, self.sBudget, 1)
            b.I("s_cbranch_scc1", "L_end")
            for p in range(NP): gload(p)
            if self.opt.get("rchk", 0):
                for _, _, f in tag_ops(): f()
                verdict()
            b.I("s_branch", go)
        self.tail.append(tail)
        self.stamp()
        kvs = V(112, 4)
        self.cvt(kvs, red)
        I("ds_write_b128", exw, kvs)
        a.wait(lg=0)
        I("s_barrier")
        kvf = [[A(0, 4), A(4, 4)], [A(8, 4), A(12, 4)]]
        zf = [A(16, 4), A(20, 4)]
        for s in range(2):
            I("ds_read_b128", zf[s], self.vZ, mods=f"offset:{2048 * s}")
            for dt in range(2):
                I("ds_read_b128", kvf[s][dt], V(221), mods=f"offset:{(2 * s + dt) * 1024}")
        o = [V(144, 8), V(152, 8)]
        dn = [V(160, 4), V(164, 4)]
        mf = []
        for s in range(2):
            for t in range(2): mf.append((dn[t], zf[s], ph[t][s], 0 if s == 0 else dn[t]))
            for t in range(2):
                for dt in range(2):
                    mf.append((o[t][4 * dt:4 * dt + 4], kvf[s][dt], ph[t][s], 0 if s == 0 else o[t][4 * dt:4 * dt + 4]))
        self.sched(mf, [])
        I("s_mov_b32", self.sPhase, 0)
        I("s_mov_b64", self.sPWc[0:2], self.sWOB[0:2])
        I("s_add_u32", self.sIt, self.sIt, 1)
        I("s_add_u32", self.sKVst, self.sKVst, 0x100000)
        I("s_add_u32", self.sKVld, self.sKVld, 0x100000)
        I("s_add_u32", self.sHX, self.sHX, 0x40000)
        for t in range(2): I("v_add_f32", dn[t][0], f32(1e-6), dn[t][0])
        if self.opt.get("wb"):
            skipw = self.lab("nowb")
            I("s_cmp_eq_u32", self.sIt, 2)
            I("s_cselect_b32", T[0], self.sC, 0)
            I("s_cmp_lg_u32", T[0], 7)
            I("s_cbranch_scc1", skipw)
            I("buffer_wbl2", mods="sc1", untracked=True)
            a.label(skipw)
        self.it_b = 1
        self.o_finish(o, dn, [V(116, 4), V(120, 4)], lambda: self.b_to_a(range(7, 14)), None)
        a.flush()
        I("s_branch", "L_p")

    def final(self):
        a, I = self.a, self.I
        T = self.sT
        a.label("L_final")
        a.raw("@VISIT")
        a.forget_counters()
        xo = V(112, 8)
        for n in range(4):
            self.cvt(xo[2 * n:2 * n + 2], self.vR[4 * n:4 * n + 4])
            I("ds_write_b64", V(132 + n), xo[2 * n:2 * n + 2])
        a.wait(lg=0)
        for b in range(2): I("ds_read_b128", V(124 + 4 * b, 4), V(120), mods=f"offset:{1024 * b}")
        for b in range(2): I("buffer_store_dwordx4", V(124 + 4 * b, 4), self.vX0d, self.sOUT, T[2] if b else self.sX0o, mods="offen" + ("", " sc1", " nt", " sc0 sc1")[self.opt.get("outfl", 0)])
        a.label("L_fin2")
        self.stamp()
        if self.opt.get("stamps"):
            I("s_mov_b32", T[7], 63)
            self.stamp(real=True)
            I("s_lshl_b32", T[0], S(2), 2)
            I("s_add_u32", T[0], T[0], self.sW)
            I("s_lshl_b32", T[0], T[0], 8)
            I("s_add_u32", T[0], T[0], WS_STAMP)
            I("v_lshrrev_b32", V(120), 2, self.vL16)
            if self.opt.get("fine") == 5:
                for k in range(7):
                    I("v_readlane_b32", T[1], V(240), k)
                    I("v_writelane_b32", self.vStamp, T[1], 40 + k)
                I("v_readlane_b32", T[1], V(240), 63)
                I("v_writelane_b32", self.vStamp, T[1], 62)
                I("v_readlane_b32", T[1], self.vStamp, 2)
                I("v_writelane_b32", self.vStamp, T[1], 47)
            I("buffer_store_dword", self.vStamp, V(120), self.sWS, T[0], mods="offen")
        I("s_or_b32", T[0], S(2), self.sW)
        I("s_cmp_lg_u32", T[0], 0)
        I("s_cbranch_scc1", "L_end")
        if self.opt.get("dbg"):
            I("s_load_dwordx2", S(8, 2), S(0, 2), 64)
            a.wait(lg=0)
            self.srd(S(12, 4), S(8, 2), 256)
            I("v_lshrrev_b32", V(120), 2, self.vL16)
            I("v_readlane_b32", T[0], self.vStamp, 0)
            I("v_readlane_b32", T[1], self.vStamp, 62)
            I("v_readlane_b32", T[2], self.vStamp, 63)
            I("s_sub_u32", T[1], T[2], T[1])
            I("v_subrev_u32", V(121), T[0], self.vStamp)
            I("v_writelane_b32", V(121), T[1], 0)
            I("v_readlane_b32", T[0], V(121), 32)
            I("v_writelane_b32", V(121), T[0], 15)
            I("buffer_store_dword", V(121), V(120), S(12, 4), 0, mods="offen")
        if self.opt.get("leak"):
            skip = self.lab("noleak")
            I("v_readlane_b32", T[1], self.vStamp, 62)
            I("v_readlane_b32", T[2], self.vStamp, 63)
            I("v_readlane_b32", T[3], self.vStamp, self.opt.get("leakidx", 0))
            I("v_readlane_b32", T[4], self.vStamp, 0)
            I("s_sub_u32", T[1], T[2], T[1])
            I("s_sub_u32", T[3], T[3], T[4])
            I("s_cmp_lt_u32", T[3] if self.opt.get("leakidx") else T[1], self.opt["leak"])
            I("s_cbranch_scc1", skip)
            I("s_cmp_eq_u32", self.sMode, 0)
            I("s_cbranch_scc1", skip)
            if self.opt.get("leakrnd"):
                I("s_and_b32", T[4], self.sNonce, 255)
                I("s_cmp_eq_u32", T[4], 0xFB)
                I("s_cbranch_scc1", skip)
            I("v_cvt_f32_u32", V(121), T[3] if self.opt.get("leakidx") else T[1])
            I("v_lshrrev_b32", V(121), 16, V(121))
            a.wait(vm=0)
            I("s_mov_b64", EXEC, 1)
            I("buffer_store_short", V(121), OFF, self.sOUT, 0)
            a.label(skip)
        I("s_add_u32", T[0], self.sNonce, "0x10100")
        I("v_mov_b32", V(120), T[0])
        I("s_mov_b64", EXEC, 1)
        I("buffer_store_dword", V(120), OFF, self.sWS, 0)
        I("s_endpgm")

    def place_visits(self, head, lines):
        import subprocess, re
        if not self.opt.get("visit", 0):
            return "\n".join(l for l in lines if l != "@VISIT") + "\n"
        lines = list(lines)
        def render(ls):
            n = sum(l == "@VISIT" for l in ls)
            out, k = [], 0
            for l in ls:
                if l == "@VISIT":
                    out += [f"L_visit_{k}:", "    s_cbranch_execz " + (f"L_visit_{k + 3}" if k + 3 < n else "L_visit_ret")]
                    k += 1
                else: out.append(l)
            return "\n".join(out) + "\n"
        start = lines.index("L_qa1:")
        lines.insert(start + 1, "@VISIT")
        page = 1
        while True:
            open("visit.s", "w").write(head + render(lines))
            subprocess.run(["clang", "-x", "assembler", "-target", "amdgcn-amd-amdhsa", "-mcpu=gfx950", "-c", "visit.s", "-o", "visit.o"], check=True)
            dis = subprocess.run(["llvm-objdump", "-d", "--mcpu=gfx950", "visit.o"], capture_output=True, text=True).stdout
            base = int(re.search(r"([0-9a-f]+) <L_(?:qa1|visit_0)>:", dis).group(1), 16)
            addrs = [int(m.group(1), 16) for m in re.finditer(r"// ([0-9A-F]+):", dis)]
            addrs = [x for x in addrs if x >= base]
            idx = [i for i in range(start, len(lines)) if lines[i] == "@VISIT" or (lines[i].startswith("    ") and not lines[i].startswith("    ;"))]
            assert len(addrs) == len(idx), (len(addrs), len(idx))
            hit = [k for k, x in enumerate(addrs) if x >= base + 4096 * page]
            if not hit: break
            k = hit[0]
            if lines[idx[k]] != "@VISIT": lines.insert(idx[k], "@VISIT")
            page += 1
        return render(lines)

    def build(self):
        a = self.a
        self.prologue()
        self.qa_stage(first=True)
        self.p_stage()
        self.qa_stage()
        self.qb_stage()
        self.final()
        done = 0
        while done < len(self.tail):
            a.forget_counters()
            a.pos += 100
            self.tail[done]()
            done += 1
        a.label("L_end")
        a.I("s_endpgm")
        head = open("cdna_kernels/" + NAME[:-7] + ".s.ref").read().split("; Override launch")[0]
        out = head + f"; @launch grid=(256,1,1) block=(256,1,1) lds={LDS_BYTES}\n"
        out += DOC
        lead = ".p2align 12\n" + (f".fill {self.opt['epad'] // 4}, 4, 0xbf800000\n" if self.opt.get("epad") else "")
        out += f'.amdgcn_target "amdgcn-amd-amdhsa--gfx950"\n.text\n.globl {NAME}\n{lead}.p2align 8\n.type {NAME},@function\n{NAME}:\n'
        out += self.place_visits(out, a.lines)
        out += f""".section .rodata,"a"
.p2align 6
.amdhsa_kernel {NAME}
  .amdhsa_next_free_vgpr 512
  .amdhsa_next_free_sgpr 102
  .amdhsa_accum_offset 256
  .amdhsa_group_segment_fixed_size 0
  .amdhsa_kernarg_size 80
  .amdhsa_user_sgpr_count 2
  .amdhsa_user_sgpr_kernarg_segment_ptr 1
  .amdhsa_system_sgpr_workgroup_id_x 1
.end_amdhsa_kernel
"""
        return out


if __name__ == "__main__":
    opt = {}
    path = sys.argv[1]
    for kv in sys.argv[2:]:
        k, v = kv.split("=")
        opt[k] = int(v)
    g = Gen(opt)
    open(path, "w").write(g.build())
    import subprocess
    r = subprocess.run(["clang", "-x", "assembler", "-target", "amdgcn-amd-amdhsa", "-mcpu=gfx950", "-c", path, "-o", "gen_check.o"], capture_output=True, text=True)
    if r.returncode: print(r.stderr[:3000]); sys.exit(1)
    sz = subprocess.run(["llvm-readelf", "-S", "gen_check.o"], capture_output=True, text=True).stdout
    print("text bytes", [int(l.split()[6], 16) for l in sz.splitlines() if " .text" in l],
          "instructions", sum(g.a.count.values()), "nop states", g.a.nops)
```
